```python
import torch

def _softmax(x, axis=-1):
    return torch.softmax(x, dim=axis)
def _gelu(x):
    return torch.nn.functional.gelu(x, approximate="tanh")
def _silu(x):
    return torch.nn.functional.silu(x)
def _sigmoid(x):
    return torch.sigmoid(x)
def _layernorm(x, axis=-1, eps=1e-5):
    m = x.mean(dim=axis, keepdim=True)
    v = x.var(dim=axis, keepdim=True, unbiased=False)
    return (x - m) / torch.sqrt(v + eps)
def _scatter_add(tgt, idx, src, axis=0):
    return tgt.clone().index_add_(axis, idx, src)
def _segment_sum(src, seg, n):
    out = torch.zeros((n,) + src.shape[1:], dtype=src.dtype)
    return out.index_add_(0, seg, src)
def _pad(x, pw):
    flat = tuple(v for pair in reversed(pw) for v in pair)
    return torch.nn.functional.pad(x, flat)

kernel_name = 'interleave_layers__sliding_block__dense_activation_relu__prompt'

def setup_inputs():

    _w = (lambda a: (lambda t: t.to(torch.bfloat16) if t.is_floating_point() else t)(torch.as_tensor(a)))
    def _A_setup():
        B, S, D = 1, 2048, 448
        return {
            "x": _w((lambda *s: torch.randn(*s, dtype=torch.bfloat16) * 0.05)(B, S, D)),
            "wqkv": _w((lambda *s: torch.randn(*s, dtype=torch.bfloat16) * 0.05)(D, 3 * D)),
            "wo": _w((lambda *s: torch.randn(*s, dtype=torch.bfloat16) * 0.05)(D, D)),
        }
    _A_in = _A_setup()

    def _B_setup():
        B, S, D, Dff = 1, 2048, 448, 1792
        return {
            "x": _w((lambda *s: torch.randn(*s, dtype=torch.bfloat16) * 0.05)(B, S, D)),
            "w1": _w((lambda *s: torch.randn(*s, dtype=torch.bfloat16) * 0.05)(D, Dff)),
            "w2": _w((lambda *s: torch.randn(*s, dtype=torch.bfloat16) * 0.05)(Dff, D)),
        }
    _B_in = _B_setup()

    return {
        "A_x": _A_in["x"],
        "A_wqkv": _A_in["wqkv"],
        "A_wo": _A_in["wo"],
        "B_x": _B_in["x"],
        "B_w1": _B_in["w1"],
        "B_w2": _B_in["w2"],
    }

def reference(A_x, A_wqkv, A_wo, B_x, B_w1, B_w2):
    def _A_ref(x, wqkv, wo):
        B, S, D = x.shape
        H = 16; Dh = D // H; W = 256
        qkv = (lambda x, *d: x.permute(*d))((x @ wqkv).reshape(B, S, 3, H, Dh), 2, 0, 3, 1, 4)
        q, k, v = qkv[0], qkv[1], qkv[2]
        scores = torch.einsum("bhqd,bhkd->bhqk", q, k) * (Dh ** -0.5)
        idx = torch.arange(S)
        mask = (idx[:, None] - idx[None, :] >= 0) & (idx[:, None] - idx[None, :] < W)
        scores = torch.where(mask[None, None], scores, -1e9)
        p = _softmax(scores, axis=-1)
        o = torch.einsum("bhqk,bhkd->bhqd", p, v)
        return (lambda x, *d: x.permute(*d))(o, 0, 2, 1, 3).reshape(B, S, D) @ wo

    def _B_ref(x, w1, w2):
        h = torch.einsum("bsd,df->bsf", x, w1)
        zero = torch.zeros_like(h)
        h = torch.maximum(h, zero)
        return torch.einsum("bsf,fd->bsd", h, w2)

    x = A_x
    x = x + _A_ref(_layernorm(x, axis=-1), A_wqkv, A_wo)
    x = x + _B_ref(_layernorm(x, axis=-1), B_w1, B_w2)
    x = x + _A_ref(_layernorm(x, axis=-1), A_wqkv, A_wo)
    x = x + _B_ref(_layernorm(x, axis=-1), B_w1, B_w2)
    return x
```

```python
import re

REG_RE = re.compile(r'(?<![\w.])(-?)(?:abs\()?([vas])(?:(\d+)|\[(\d+):(\d+)\])')
TRANS = ('v_exp_f32', 'v_log_f32', 'v_rcp_f32', 'v_rsq_f32', 'v_sqrt_f32', 'v_sin_f32', 'v_cos_f32')


def regs_of(text):
    out = []
    for m in REG_RE.finditer(text):
        k = m.group(2)
        if m.group(3) is not None:
            out.append((k, int(m.group(3))))
        else:
            out.extend((k, i) for i in range(int(m.group(4)), int(m.group(5)) + 1))
    for sp in ('vcc', 'exec', 'm0'):
        if re.search(r'(?<![\w])' + sp + r'(?:_lo|_hi)?(?![\w])', text):
            out.append((sp, 0))
    return out


def split_ops(s):
    ops, depth, cur = [], 0, ''
    for ch in s:
        if ch in '[(':
            depth += 1
        if ch in '])':
            depth -= 1
        if ch == ',' and depth == 0:
            ops.append(cur.strip())
            cur = ''
        else:
            cur += ch
    if cur.strip():
        ops.append(cur.strip())
    return ops


class Ins:
    __slots__ = ('text', 'op', 'kind', 'rd', 'wr', 'passes', 'srcc', 'srcab', 'tok', 'maybe', 'sdata', 'target')

    def __init__(self, text, tok=None):
        self.text = text.strip()
        self.tok = tok
        self.maybe = False
        self.passes = 0
        self.srcc = set()
        self.srcab = set()
        self.sdata = set()
        self.target = None
        parts = self.text.split(None, 1)
        op = self.op = parts[0]
        rest = parts[1] if len(parts) > 1 else ''
        ops = split_ops(rest)
        R = lambda i: set(regs_of(ops[i])) if i < len(ops) else set()
        allr = lambda lo: set().union(*[R(i) for i in range(lo, len(ops))]) if len(ops) > lo else set()
        rd, wr = set(), set()
        if op.startswith('v_mfma'):
            self.kind = 'mfma'
            self.passes = 8 if '32x32x16' in op else 4
            wr = R(0)
            self.srcab = R(1) | R(2)
            self.srcc = R(3)
            rd = self.srcab | self.srcc
        elif op.startswith('v_cmp'):
            self.kind = 'valu'
            wr = R(0)
            rd = allr(1) | {('exec', 0)}
        elif op.startswith('v_readfirstlane') or op.startswith('v_readlane'):
            self.kind = 'readlane'
            wr = R(0)
            rd = allr(1)
        elif op.startswith('v_permlane'):
            self.kind = 'permlane'
            wr = R(0) | R(1)
            rd = R(0) | R(1)
        elif op.startswith('v_dot2'):
            self.kind = 'dot'
            wr = R(0)
            rd = allr(1) | (R(0) if 'dot2c' in op else set())
        elif op.startswith('v_'):
            self.kind = 'trans' if op.replace('_e32', '').replace('_e64', '') in TRANS else 'valu'
            wr = R(0)
            rd = allr(1)
            if op.startswith('v_fmac') or op.startswith('v_pk_fmac') or '_dpp' in op or op.startswith('v_writelane'):
                rd |= R(0)
            if op.startswith('v_add_co') or op.startswith('v_addc_co') or op.startswith('v_sub_co'):
                wr |= R(1)
                rd = allr(2)
            if '_dpp' in op:
                self.kind = 'dpp'
        elif op.startswith('buffer_load') or op.startswith('global_load'):
            if re.search(r'\blds\b', rest) or 'load_lds' in op:
                self.kind = 'dma'
                rd = allr(0) | {('m0', 0)}
            else:
                self.kind = 'vload'
                wr = R(0)
                rd = allr(1)
        elif op.startswith('buffer_store') or op.startswith('global_store') or op.startswith('buffer_atomic'):
            self.kind = 'vstore'
            rd = allr(0)
            if op.endswith('x4') or op.endswith('x3'):
                self.sdata = R(0) if op.startswith('buffer') else R(1)
        elif op in ('buffer_wbl2', 'buffer_inv'):
            self.kind = 'vstore'
        elif op.startswith('ds_read') or op.startswith('ds_bpermute') or op.startswith('ds_swizzle'):
            self.kind = 'dsread'
            wr = R(0)
            rd = allr(1)
        elif op.startswith('ds_write') or op.startswith('ds_add'):
            self.kind = 'dswrite'
            rd = allr(0)
        elif op.startswith('s_load') or op.startswith('s_buffer_load') or op in ('s_memtime', 's_memrealtime'):
            self.kind = 'smem'
            wr = R(0)
            rd = allr(1)
        elif op == 's_waitcnt':
            self.kind = 'wait'
        elif op == 's_nop':
            self.kind = 'nop'
        elif op == 's_barrier':
            self.kind = 'barrier'
        elif op.startswith('s_cbranch') or op == 's_branch':
            self.kind = 'branch'
            self.target = ops[0]
            if 'vcc' in op:
                rd = {('vcc', 0)}
        elif op in ('s_endpgm', 's_sleep', 's_setprio'):
            self.kind = 'salu'
        elif op.startswith('s_cmp') or op.startswith('s_bitcmp'):
            self.kind = 'salu'
            rd = allr(0)
        elif op.startswith('s_'):
            self.kind = 'salu'
            wr = R(0)
            rd = allr(1)
            if 'saveexec' in op:
                wr |= {('exec', 0)}
                rd |= {('exec', 0)}
            if op.startswith('s_addk') or op.startswith('s_mulk') or op.startswith('s_cmov'):
                rd |= R(0)
        else:
            raise ValueError('unknown op ' + text)
        if op.startswith('v_cndmask') and len(ops) == 3:
            rd.add(('vcc', 0))
        self.rd, self.wr = rd, wr

    def states(self):
        if self.kind == 'nop':
            return int(self.text.split()[1], 0) + 1
        return 1


class Label:
    def __init__(self, name, reset=None):
        self.name = name
        self.reset = reset


class Wait:
    def __init__(self, toks):
        self.toks = set(toks)


class Mark:
    def __init__(self, what):
        self.what = what


class Raw:
    def __init__(self, text):
        self.text = text


VM_KINDS = ('vload', 'vstore', 'dma')
LG_KINDS = ('dsread', 'dswrite', 'smem')
VALU_KINDS = ('valu', 'trans', 'readlane', 'permlane', 'dot', 'dpp')


class Prog:
    def __init__(self):
        self.items = []
        self.uid = 0

    def __call__(self, text, tok=None):
        for line in text.split('\n'):
            line = line.strip()
            if line:
                self.items.append(Ins(line, tok))

    def ext(self, lst):
        for x in lst:
            if isinstance(x, str):
                self(x)
            else:
                self.items.append(x)

    def label(self, name, reset=None):
        self.items.append(Label(name, reset))

    def wait(self, *toks):
        self.items.append(Wait(toks))

    def mark(self, what):
        self.items.append(Mark(what))

    def raw(self, text):
        self.items.append(Raw(text))

    def newlabel(self, base):
        self.uid += 1
        return f'L_{base}_{self.uid}'

    def insert_waits(self):
        out = []
        vm, lg = [], []
        maybe_depth = 0
        block_start = []

        def need(queue, pred):
            for i in range(len(queue) - 1, -1, -1):
                if pred(queue[i]):
                    return i
            return -1

        def emit(vi, li):
            parts = []
            if vi >= 0:
                n = sum(1 for o in vm[vi + 1:] if not o.maybe)
                n = min(n, 63)
                parts.append(f'vmcnt({n})')
                if maybe_depth == 0:
                    del vm[:vi + 1]
                else:
                    cut('vm', vi)
            if li >= 0:
                if any(o.kind == 'smem' for o in lg):
                    n = 0
                    li = len(lg) - 1
                else:
                    n = sum(1 for o in lg[li + 1:] if not o.maybe)
                    n = min(n, 15)
                parts.append(f'lgkmcnt({n})')
                if maybe_depth == 0:
                    del lg[:li + 1]
                else:
                    cut('lg', li)
            if parts:
                out.append(Ins('s_waitcnt ' + ' '.join(parts)))

        def cut(which, idx):
            q = vm if which == 'vm' else lg
            saved = block_start[-1][which]
            inblock = block_start[-1]['ids']
            for o in q[:idx + 1]:
                if id(o) not in inblock:
                    saved.append(o)
            del q[:idx + 1]

        for it in self.items:
            if isinstance(it, Label):
                if it.reset in ('vm', 'all'):
                    vm.clear()
                if it.reset in ('lgkm', 'all'):
                    lg.clear()
                out.append(it)
                continue
            if isinstance(it, Raw):
                out.append(it)
                continue
            if isinstance(it, Mark):
                if it.what == 'maybe_begin':
                    maybe_depth += 1
                    block_start.append({'vm': [], 'lg': [], 'ids': set()})
                elif it.what == 'maybe_end':
                    maybe_depth -= 1
                    b = block_start.pop()
                    for o in vm + lg:
                        if id(o) in b['ids']:
                            o.maybe = True
                    vm[:0] = b['vm']
                    lg[:0] = b['lg']
                    if block_start:
                        block_start[-1]['ids'] |= b['ids']
                elif it.what == 'drained_vm':
                    vm.clear()
                elif it.what == 'drained_lgkm':
                    lg.clear()
                continue
            if isinstance(it, Wait):
                vi = need(vm, lambda o: o.tok in it.toks)
                li = need(lg, lambda o: o.tok in it.toks)
                emit(vi, li)
                continue
            ins = it
            if ins.kind == 'wait':
                m = re.search(r'vmcnt\((\d+)\)', ins.text)
                if m and int(m.group(1)) == 0:
                    if maybe_depth == 0:
                        vm.clear()
                    elif vm:
                        cut('vm', len(vm) - 1)
                m = re.search(r'lgkmcnt\((\d+)\)', ins.text)
                if m and int(m.group(1)) == 0:
                    if maybe_depth == 0:
                        lg.clear()
                    elif lg:
                        cut('lg', len(lg) - 1)
                out.append(ins)
                continue
            touched = ins.rd | ins.wr
            vi = need(vm, lambda o: o.wr & touched)
            li = need(lg, lambda o: o.wr & touched)
            if vi >= 0 and ins.kind == 'vload' and not (vm[vi].wr & ins.rd):
                vi = need(vm, lambda o: o.wr & ins.rd)
            if li >= 0 and ins.kind == 'dsread' and not any(o.kind == 'smem' for o in lg) and not (lg[li].wr & ins.rd):
                li = need(lg, lambda o: o.wr & ins.rd)
            emit(vi, li)
            out.append(ins)
            if ins.kind in VM_KINDS:
                vm.append(ins)
            elif ins.kind in LG_KINDS:
                lg.append(ins)
            if ins.kind in VM_KINDS or ins.kind in LG_KINDS:
                for b in block_start:
                    b['ids'].add(id(ins))
        self.items = out

    @staticmethod
    def required(p, c):
        n = 0
        pv = p.kind in VALU_KINDS
        cv = c.kind in VALU_KINDS
        if pv:
            sw = {r for r in p.wr if r[0] in ('s', 'vcc')}
            vw = {r for r in p.wr if r[0] in ('v', 'a')}
            if sw:
                if c.kind in VM_KINDS and sw & c.rd:
                    n = max(n, 5)
                if (cv or c.kind == 'mfma') and sw & c.rd:
                    n = max(n, 4 if c.kind == 'readlane' or c.op.startswith('v_writelane') else 2)
                if c.kind in ('salu', 'branch', 'smem') and sw & c.rd:
                    n = max(n, 1 if c.kind != 'branch' else 1)
            if vw:
                if c.kind == 'readlane' and vw & c.rd:
                    n = max(n, 1)
                if c.kind in ('permlane', 'dpp') and vw & c.rd:
                    n = max(n, 2)
                if c.kind == 'mfma' and vw & c.rd:
                    n = max(n, 2)
                if p.kind == 'trans' and vw & c.rd and c.kind != 'trans':
                    n = max(n, 1)
                if p.kind == 'dot' and vw & (c.rd | c.wr):
                    if c.kind == 'dot' and c.op == p.op and not (vw & (c.rd - c.wr)) :
                        pass
                    else:
                        n = max(n, 3)
                if ('op_sel' in p.text and not p.op.startswith('v_pk_')) and vw & (c.rd | c.wr) and cv:
                    n = max(n, 1)
        if p.kind == 'mfma':
            ps = p.passes
            if c.kind == 'mfma':
                if p.wr & c.srcab:
                    n = max(n, ps + 4)
                if p.wr & c.srcc:
                    if not (p.wr == c.srcc and c.passes == ps):
                        n = max(n, ps + 2)
                if (p.wr & c.wr) and not (p.wr == c.wr and c.passes == ps and p.wr == c.srcc):
                    n = max(n, ps + 2)
            else:
                if (cv and p.wr & (c.rd | c.wr)) or (c.kind in VM_KINDS + ('dsread', 'dswrite') and p.wr & (c.rd | c.wr)):
                    n = max(n, ps + 4)
                if (cv or c.kind in ('vload', 'dsread')) and p.srcc & c.wr:
                    n = max(n, ps - 1)
        if p.kind == 'vstore' and p.sdata & c.wr:
            n = max(n, 2 if cv else 1)
        if p.kind == 'salu' and ('m0', 0) in p.wr and c.kind == 'dma':
            n = max(n, 1)
        return n

    def fix_hazards(self):
        W = 14
        out = []
        hist = []
        for it in self.items:
            if not isinstance(it, Ins):
                out.append(it)
                continue
            need = 0
            dist = 0
            for p in reversed(hist):
                r = self.required(p, it)
                if r > dist:
                    need = max(need, r - dist)
                dist += p.states()
                if dist >= W:
                    break
            if need:
                nop = Ins(f's_nop {need - 1}')
                out.append(nop)
                hist.append(nop)
            out.append(it)
            hist.append(it)
            if it.op in ('s_branch', 's_endpgm'):
                hist = []
        self.items = out
        idx = {it.name: i for i, it in enumerate(out) if isinstance(it, Label)}
        problems = []
        for i, it in enumerate(out):
            if isinstance(it, Ins) and it.kind == 'branch':
                pre = [x for x in out[max(0, i - 40):i + 1] if isinstance(x, Ins)]
                post = [x for x in out[idx[it.target]:idx[it.target] + 40] if isinstance(x, Ins)]
                d0 = 0
                for c in post:
                    dist = d0
                    for p in reversed(pre):
                        r = self.required(p, c)
                        if r > dist:
                            problems.append((it.text, p.text, c.text, r - dist))
                        dist += p.states()
                        if dist >= W:
                            break
                    d0 += c.states()
                    if d0 >= W or c.op in ('s_branch', 's_endpgm'):
                        break
        return problems

    def text(self):
        L = []
        for it in self.items:
            if isinstance(it, Label):
                L.append(f'{it.name}:')
            elif isinstance(it, Raw):
                L.append(it.text)
            elif isinstance(it, Ins):
                L.append('    ' + it.text)
        return '\n'.join(L) + '\n'

    def maxregs(self):
        mx = {'v': -1, 'a': -1, 's': -1}
        for it in self.items:
            if isinstance(it, Ins):
                for k, i in it.rd | it.wr:
                    if k in mx:
                        mx[k] = max(mx[k], i)
        return mx


def interleave(main, side, start=0, per=1):
    out = []
    si = 0
    for gi, g in enumerate(main):
        out.extend(g)
        if gi >= start:
            k = per(gi) if callable(per) else per
            for _ in range(k):
                if si < len(side):
                    out.append(side[si])
                    si += 1
    out.extend(side[si:])
    return out
```

```python
import sys, os, math, struct
sys.path.insert(0, os.path.dirname(__file__))
from asmlib import Prog, Ins, Wait, Mark, Label, interleave

NAME = 'interleave_layers__sliding_block__dense_activation_relu__prompt'

WS_EPOCH = 0
WS_PUR = 0x1000
TEAM0 = 0x100000
STRIDE = 0x480000
O_KV = 0x000000
O_O = 0x100000
O_X1 = 0x180000
O_X2 = 0x1F0000
O_ST = 0x228000
O_FKV = 0x240000
O_FO = 0x248000
O_FX = 0x249000
O_FH = 0x24A000
O_H = 0x250000
WS_BYTES = TEAM0 + 8 * STRIDE

LB = 100352
LBW = 14336
L_CSQ = 157696
L_CS1 = L_CSQ + 512
LDS_BYTES = 163840

S_X, S_WQ, S_WO, S_W1, S_W2, S_OUT, S_WS = 8, 12, 16, 20, 24, 28, 32
S_WSP = 36
sTEAM, sM, sA, sJ, sW, sRB, sCB, sTB = 40, 41, 42, 43, 44, 45, 46, 47
sF, sFP, sPURE = 48, 50, 52
sTP = 53
sHI = 56
sPERM, sONES = 58, 59
sT0, sT1, sT2, sT3, sT4, sT5 = 60, 61, 62, 63, 64, 65
sCNT = 66
sQ = 67
sRHO, sNU = 67, 68
sBW = 69
sPOLL = 72
sTMP16 = 80

vL, vL16, vTR8a, vTR8b, vTRB4, vTRB8, vW1a, vW1b, vDQ, vD1, vDO = range(11)
vF = 12
vMEAN, vRSTD = 14, 15
vT = 16
vRES = 240

POLL_MAX = 1 << 16


def srd(b):
    return f's[{b}:{b+3}]'


def vr(b, n=4):
    return f'v[{b}:{b+n-1}]' if n > 1 else f'v{b}'


def ar(b, n=4):
    return f'a[{b}:{b+n-1}]'


def f32bits(x):
    return struct.unpack('<I', struct.pack('<f', x))[0]


MF32 = 'v_mfma_f32_32x32x16_bf16'
MF16 = 'v_mfma_f32_16x16x32_bf16'


class K:
    def __init__(self, stop=None, dbg=False):
        self.p = Prog()
        self.stop = stop
        self.dbg = dbg

    def dma(self, srdb, voff, soff_expr, m0_expr, tok, sc=''):
        p = self.p
        L = []
        sr, im = m0_expr
        L.append(f's_add_u32 m0, s{sr}, {im}' if sr is not None else f's_mov_b32 m0, {im}')
        sr, im = soff_expr
        L.append(f's_add_u32 s{sT5}, s{sr}, {im}')
        L.append(Ins(f'buffer_load_dwordx4 v{voff}, {srd(srdb)}, s{sT5} offen {sc} lds', tok))
        return L

    def vpoll(self, voff, soff, nl, freg):
        p = self.p
        lp, lo = p.newlabel('poll'), p.newlabel('pollout')
        p(f's_mov_b64 exec, {(1 << nl) - 1:#x}')
        p(f's_mov_b32 s{sCNT}, 0')
        p.label(lp)
        p(f'buffer_load_dwordx2 {vr(vT + 14, 2)}, v{voff}, {srd(S_WS)}, s{soff} offen sc1')
        p(f's_add_u32 s{sCNT}, s{sCNT}, 1')
        p(f's_cmp_gt_u32 s{sCNT}, {POLL_MAX}')
        p(f's_cbranch_scc1 {lo}')
        p('s_waitcnt vmcnt(0)')
        p(f'v_cmp_ne_u64 vcc, s[{freg}:{freg+1}], {vr(vT + 14, 2)}')
        p(f's_cbranch_vccnz {lp}')
        p.label(lo)
        p('s_waitcnt vmcnt(0)')
        p('s_mov_b64 exec, -1')
        ls = p.newlabel('acq')
        p(f's_cmp_lg_u32 s{sPURE}, 0')
        p(f's_cbranch_scc1 {ls}')
        p('buffer_inv sc1')
        p('s_waitcnt vmcnt(0)')
        p.label(ls)
        p.mark('drained_vm')

    def publish(self, toks, soff, imm=0):
        p = self.p
        p.wait(*toks)
        lslow, lback = p.newlabel('pubslow'), p.newlabel('pubback')
        p('s_mov_b64 exec, 1')
        p(f's_cmp_lg_u32 s{sPURE}, 0')
        p(f's_cbranch_scc0 {lslow}')
        p(f'buffer_store_dwordx2 {vr(vF, 2)}, off, {srd(S_WS)}, s{soff} offset:{imm}')
        p.label(lback)
        p('s_mov_b64 exec, -1')
        self.tail.append((lslow, [
            'buffer_wbl2 sc1', 's_waitcnt vmcnt(0)',
            f'buffer_store_dwordx2 {vr(vF, 2)}, off, {srd(S_WS)}, s{soff} offset:{imm} sc1',
            f's_branch {lback}']))

    def stats_loads(self, soff, dst):
        L = [f'v_and_b32 v{vT+13}, 31, v{vL}',
             f'v_lshlrev_b32 v{vT+13}, 3, v{vT+13}',
             f'v_lshrrev_b32 v{vT+12}, 5, v{vL}',
             f'v_mul_u32_u24 v{vT+12}, {7*256}, v{vT+12}',
             f'v_add_u32 v{vT+13}, v{vT+13}, v{vT+12}']
        for i in range(7):
            L.append(f'buffer_load_dwordx2 {vr(dst + 2*i, 2)}, v{vT+13}, {srd(S_WS)}, s{soff} offen offset:{256*i} sc1')
        return L

    def stats_reduce(self, src):
        L = []
        for i in range(1, 7):
            L.append(f'v_add_f32 v{src}, v{src}, v{src+2*i}')
            L.append(f'v_add_f32 v{src+1}, v{src+1}, v{src+2*i+1}')
        return L + self.stats_finish(src, src + 1, src + 2, src + 3)

    def stats_finish(self, s, q, t0, t1):
        return [
            f'v_mov_b32 v{t0}, v{s}', f'v_mov_b32 v{t1}, v{q}',
            f'v_permlane32_swap_b32 v{s}, v{t0}', f'v_permlane32_swap_b32 v{q}, v{t1}',
            f'v_add_f32 v{s}, v{s}, v{t0}', f'v_add_f32 v{q}, v{q}, v{t1}',
            f'v_mul_f32 v{vMEAN}, {f32bits(-1.0/448):#x}, v{s}',
            f'v_mul_f32 v{q}, {f32bits(1.0/448):#x}, v{q}',
            f'v_fma_f32 v{q}, -v{vMEAN}, v{vMEAN}, v{q}',
            f'v_max_f32 v{q}, 0, v{q}',
            f'v_add_f32 v{q}, {f32bits(1e-5):#x}, v{q}',
            f'v_rsq_f32 v{vRSTD}, v{q}',
        ]

    def prologue(self):
        p = self.p
        p('s_cmp_ge_u32 s2, 256')
        p('s_cbranch_scc1 L_end')
        p(f's_load_dwordx16 s[{sTMP16}:{sTMP16+15}], s[0:1], 0')
        p(f's_load_dwordx2 s[{S_WSP}:{S_WSP+1}], s[0:1], 64')
        p(f'v_lshrrev_b32 v{vT}, 6, v0')
        p(f'v_and_b32 v{vL}, 63, v0')
        p(f'v_readfirstlane_b32 s{sW}, v{vT}')
        p(f's_and_b32 s{sTEAM}, s2, 7')
        p(f's_lshr_b32 s{sM}, s2, 3')
        p(f's_lshr_b32 s{sA}, s{sM}, 4')
        p(f's_and_b32 s{sJ}, s{sM}, 15')
        p(f's_mul_i32 s{sRB}, s{sM}, 37')
        p(f's_lshr_b32 s{sRB}, s{sRB}, 8')
        p(f's_mul_i32 s{sT0}, s{sRB}, 7')
        p(f's_sub_u32 s{sCB}, s{sM}, s{sT0}')
        p(f's_mul_i32 s{sTB}, s{sTEAM}, {STRIDE}')
        p(f's_add_u32 s{sTB}, s{sTB}, {TEAM0}')
        p(f's_lshl_b32 s{sTP}, s{sA}, 2')
        p(f's_add_u32 s{sTP}, s{sTP}, s{sW}')
        p(f's_lshr_b32 s{sRHO}, s{sW}, 1')
        p(f's_and_b32 s{sNU}, s{sW}, 1')
        p(f's_mul_i32 s{sBW}, s{sW}, {LBW}')
        p(f's_add_u32 s{sBW}, s{sBW}, {LB}')
        p(f's_mov_b32 s{sHI}, 0')
        p(f's_mov_b32 s{sHI+1}, -1')
        p(f's_mov_b32 s{sPERM}, 0x07060302')
        p(f's_mov_b32 s{sONES}, 0x3f803f80')
        p(f's_mov_b32 s{sPURE}, 0')
        t0, t1, t2, t3 = vT, vT + 1, vT + 2, vT + 3
        p(f'v_lshlrev_b32 v{vL16}, 4, v{vL}')
        p(f'v_lshrrev_b32 v{t0}, 5, v{vL}')
        p(f'v_bfe_u32 v{t1}, v{vL}, 2, 2')
        p(f'v_bfe_u32 v{t2}, v{vL}, 4, 1')
        p(f'v_and_b32 v{t3}, 3, v{vL}')
        p(f'v_lshlrev_b32 v{t3}, 3, v{t3}')
        p(f'v_lshl_add_u32 v{t2}, v{t2}, 5, v{t3}')
        p(f'v_lshl_add_u32 v{t2}, v{t1}, 6, v{t2}')
        p(f'v_lshl_add_u32 v{vTR8a}, v{t0}, 9, v{t2}')
        p(f'v_add_u32 v{vTR8b}, 57344, v{vTR8a}')
        p(f'v_add_u32 v{vTRB8}, s{sBW}, v{vTR8a}')
        p(f'v_lshl_add_u32 v{vTRB4}, v{t0}, 8, v{t2}')
        p(f'v_add_u32 v{vTRB4}, s{sBW}, v{vTRB4}')
        p(f'v_lshrrev_b32 v{t0}, 2, v{vL}')
        p(f'v_lshl_add_u32 v{vW1a}, v{t0}, 5, v{t3}')
        p(f'v_add_u32 v{vW1b}, 57344, v{vW1a}')
        p(f'v_and_b32 v{t1}, 3, v{vL}')
        p(f'v_lshlrev_b32 v{t1}, 4, v{t1}')
        p(f'v_mul_u32_u24 v{vDQ}, 2688, v{t0}')
        p(f'v_add_u32 v{vDQ}, v{vDQ}, v{t1}')
        p(f'v_mul_u32_u24 v{vDO}, 896, v{t0}')
        p(f'v_add_u32 v{vDO}, v{vDO}, v{t1}')
        p(f'v_bfe_u32 v{t0}, v{vL}, 1, 3')
        p(f'v_bfe_u32 v{t1}, v{vL}, 4, 1')
        p(f'v_lshl_add_u32 v{t0}, v{t1}, 4, v{t0}')
        p(f'v_bfe_u32 v{t1}, v{vL}, 5, 1')
        p(f'v_lshl_add_u32 v{t0}, v{t1}, 3, v{t0}')
        p(f'v_mul_u32_u24 v{vD1}, 3584, v{t0}')
        p(f'v_and_b32 v{t1}, 1, v{vL}')
        p(f'v_lshl_add_u32 v{vD1}, v{t1}, 4, v{vD1}')
        b = sTMP16
        for (d, src, n) in ((S_WQ, b + 2, 1204224), (S_X, b, 1835008), (S_WO, b + 4, 401408), (S_W1, b + 8, 1605632),
                            (S_W2, b + 10, 1605632), (S_OUT, b + 12, 1835008), (S_WS, S_WSP, WS_BYTES)):
            p(f's_mov_b32 s{d}, s{src}')
            p(f's_and_b32 s{d+1}, s{src+1}, 0xffff')
            p(f's_mov_b32 s{d+2}, {n}')
            p(f's_mov_b32 s{d+3}, 0x20000')
        p(f's_getpc_b64 s[{sT0}:{sT0+1}]')
        p.label('L_pc')
        p(f's_lshl_b32 s{sT2}, s{sM}, 2')
        p(f's_add_u32 s{sT2}, s{sT2}, s{sW}')
        p(f's_lshl_b32 s{sT2}, s{sT2}, 10')
        p(f's_min_u32 s{sT2}, s{sT2}, L_codeend-L_pc-1024')
        p(f'v_add_u32 v{vT}, s{sT2}, v{vL16}')
        p(f'global_load_dwordx4 {vr(vT+4)}, v{vT}, s[{sT0}:{sT0+1}]')
        p(f's_load_dwordx16 s[{sTMP16}:{sTMP16+15}], s[{S_WSP}:{S_WSP+1}], {WS_EPOCH}')
        p.ext(self.wqkv_dma())
        p(f's_lshl_b32 s{sT0}, s{sTEAM}, 3')
        p(f's_add_u32 s{sT0}, s{sT0}, s{sTP}')
        p(f's_mul_i32 s{sT0}, s{sT0}, {32*896}')
        p(f'v_and_b32 v{vT}, 31, v{vL}')
        p(f'v_mul_u32_u24 v{vT}, 896, v{vT}')
        p(f'v_lshrrev_b32 v{vT+1}, 5, v{vL}')
        p(f'v_lshl_add_u32 v{vT}, v{vT+1}, 4, v{vT}')
        for s in range(28):
            p(f'buffer_load_dwordx4 {vr(32+4*s)}, v{vT}, {srd(S_X)}, s{sT0} offen offset:{32*s}')
        lab = {}
        for t in range(8):
            pass
        p(f's_lshl_b32 s{sT0}, s{sTEAM}, 1')
        p(f's_mov_b32 m0, s{sT0}')
        p('s_waitcnt lgkmcnt(0)')
        p(f's_movrels_b64 s[{sF}:{sF+1}], s[{sTMP16}:{sTMP16+1}]')
        p(f's_sub_u32 s{sT0}, s{sT0}, 2')
        p(f's_max_i32 s{sT0}, s{sT0}, 0')
        p(f's_mov_b32 m0, s{sT0}')
        p('s_nop 0')
        p(f's_movrels_b64 s[{sFP}:{sFP+1}], s[{sTMP16}:{sTMP16+1}]')
        p(f's_add_u32 s{sF}, s{sF}, 1')
        p(f's_addc_u32 s{sF+1}, s{sF+1}, 0')
        p(f's_add_u32 s{sFP}, s{sFP}, 1')
        p(f's_addc_u32 s{sFP+1}, s{sFP+1}, 0')
        p(f'v_mov_b32 v{vF}, s{sF}')
        p(f'v_mov_b32 v{vF+1}, s{sF+1}')
        p(f's_getreg_b32 s{sT0}, hwreg(HW_REG_XCC_ID)')
        p(f's_and_b32 s{sT0}, s{sT0}, 15')
        p(f's_lshl_b32 s{sT0}, s{sT0}, 28')
        p(f's_xor_b32 s{sT0}, s{sT0}, s{sF+1}')
        p(f'v_mov_b32 v{vT+2}, s{sF}')
        p(f'v_mov_b32 v{vT+3}, s{sT0}')
        p(f's_lshl_b32 s{sT1}, s{sTEAM}, 8')
        p(f's_lshl_b32 s{sT2}, s{sM}, 3')
        p(f's_add_u32 s{sT1}, s{sT1}, s{sT2}')
        p(f's_add_u32 s{sT1}, s{sT1}, {WS_PUR}')
        p('s_mov_b64 exec, 1')
        p(f'buffer_store_dwordx2 {vr(vT+2,2)}, off, {srd(S_WS)}, s{sT1} sc1')
        p('s_mov_b64 exec, -1')
        p(f's_lshl_b32 s{sT0}, s{sTEAM}, 3')
        p(f's_lshl_b32 s{sT1}, s{sRB}, 1')
        p(f's_add_u32 s{sT0}, s{sT0}, s{sT1}')
        p(f's_add_u32 s{sT0}, s{sT0}, s{sRHO}')
        p(f's_mul_i32 s{sT0}, s{sT0}, {32*896}')
        p(f's_lshl_b32 s{sT1}, s{sCB}, 7')
        p(f's_add_u32 s{sT0}, s{sT0}, s{sT1}')
        p(f's_lshl_b32 s{sT1}, s{sNU}, 6')
        p(f's_add_u32 s{sT0}, s{sT0}, s{sT1}')
        p(f's_mov_b32 s70, s{sT0}')
        p(f'v_lshrrev_b32 v{vT+1}, 5, v{vL}')
        p(f'v_lshlrev_b32 v{vT+1}, 3, v{vT+1}')
        p(f'v_sub_u32 v11, v{vT}, v{vT+1}')
        for q in range(4):
            p(f'buffer_load_dwordx2 {vr(248+2*q,2)}, v11, {srd(S_X)}, s70 offen offset:{16*q}')
        p.ext(self.stage_dma(S_W2, 0))

    def wqkv_dma(self, tiles=(0, 1, 2)):
        L = [f's_mul_i32 s{sT0}, s{sW}, {7*16*2688}',
             f's_mul_i32 s{sT1}, s{sJ}, 56',
             f's_add_u32 s{sT0}, s{sT0}, s{sT1}',
             f's_mul_i32 s{sT1}, s{sW}, {7*1024}']
        for tau in tiles:
            col = (448, 896, 0)[tau]
            for i in range(7):
                L += self.dma(S_WQ, vDQ, (sT0, col * 2 + i * 16 * 2688), (sT1, tau * 28672 + i * 1024), 'wq')
        return L

    def w1_dma(self, upper):
        L = []
        if upper:
            L += [f's_add_u32 s{sT2}, s{sW}, 4', f's_min_u32 s{sT2}, s{sT2}, 6']
        else:
            L += [f's_mov_b32 s{sT2}, s{sW}']
        L += [f's_mul_i32 s{sT0}, s{sJ}, 224', f's_lshl_b32 s{sT1}, s{sT2}, 5', f's_add_u32 s{sT0}, s{sT0}, s{sT1}',
              f's_mul_i32 s{sT1}, s{sT2}, 14336']
        for s in range(14):
            L += self.dma(S_W1, vD1, (sT0, s * 32 * 3584), (sT1, s * 1024), 'w1')
        return L

    def stage_dma(self, srdb, rnd):
        rows_w = 112 if srdb == S_WO else 448
        L = [f's_mul_i32 s{sT0}, s{sW}, {rows_w*896}',
             f's_lshl_b32 s{sT1}, s{sCB}, 7',
             f's_add_u32 s{sT0}, s{sT0}, s{sT1}',
             f's_lshl_b32 s{sT1}, s{sNU}, 6',
             f's_add_u32 s{sT2}, s{sT0}, s{sT1}',
             f's_xor_b32 s{sT1}, s{sT1}, 64',
             f's_add_u32 s{sT3}, s{sT0}, s{sT1}']
        for i in range(7):
            for z in range(2):
                L += self.dma(srdb, vDO, ((sT2, sT3)[z], (rnd * 112 + i * 16) * 896), (sBW, z * 7168 + i * 1024), 'stage')
        return L

    def w2_consume(self, rnd):
        L = [Wait(['stage'])]
        for sig in range(7):
            for z in range(2):
                for jj in range(2):
                    d = (7 * rnd + sig) * 8 + z * 4 + 2 * jj
                    if sig < 6:
                        t, kp = (sig // 2) * 2, sig % 2
                        off = z * 7168 + (16 * (t + jj) + 8 * kp) * 64
                        L.append(Ins(f'ds_read_b64_tr_b16 {ar(d,2)}, v{vTRB4} offset:{off}', 'w2c'))
                    else:
                        off = z * 7168 + (96 + 4 * jj) * 64
                        L.append(Ins(f'ds_read_b64_tr_b16 {ar(d,2)}, v{vTRB8} offset:{off}', 'w2c'))
        L.append(Wait(['w2c']))
        return L

    def p1(self, layer):
        p = self.p
        X, ACC, RING, CS = 32, 144, 192, 224
        accK, accV, accQ = ACC, ACC + 16, ACC + 32
        PK, PV = vT, vT + 8
        if layer == 1:
            p(f's_lshl_b32 s{sT0}, s{sTP}, 7')
            p(f's_add_u32 s{sT0}, s{sT0}, s{sTB}')
            p(f's_add_u32 s{sT0}, s{sT0}, {O_FX + 2*1024}')
            p(f'v_lshlrev_b32 v{vT}, 3, v{vL}')
            self.vpoll(vT, sT0, 14, sF)
            p(f's_mul_i32 s{sT0}, s{sTP}, 3584')
            p(f's_add_u32 s{sT0}, s{sT0}, s{sTB}')
            p(f's_add_u32 s{sT0}, s{sT0}, {O_ST + 2*8*3584}')
            p.ext(self.stats_loads(sT0, CS))
            p(f's_mul_i32 s{sT0}, s{sTP}, 28672')
            p(f's_add_u32 s{sT0}, s{sT0}, s{sTB}')
            p(f's_add_u32 s{sT0}, s{sT0}, {O_X2}')
            for s in range(28):
                if s % 4 == 0 and s:
                    p(f's_add_u32 s{sT0}, s{sT0}, 4096')
                p(f'buffer_load_dwordx4 {vr(X+4*s)}, v{vL16}, {srd(S_WS)}, s{sT0} offen offset:{(s%4)*1024} sc1')
        else:
            p.wait('wq')
            p('s_barrier')
            p(f's_min_u32 s{sT0}, s{sW}, 2')
            p(f's_mul_i32 s{sT0}, s{sT0}, 28672')
            p(f'v_add_u32 v{vT}, s{sT0}, v{vTR8a}')
            for i in range(4):
                p(f'v_mov_b32 v{vT+4+i}, s{sONES}')
            rd = lambda s: [f'ds_read_b64_tr_b16 {vr(RING+4*(s%6)+2*jj,2)}, v{vT} offset:{s*1024+jj*256}' for jj in range(2)]
            for s in range(5):
                p.ext(rd(s))
            for s in range(28):
                if s + 5 < 28:
                    p.ext(rd(s + 5))
                p(f'{MF32} {vr(accQ,16)}, {vr(vT+4)}, {vr(RING+4*(s%6))}, {vr(accQ,16) if s else 0}')
            p(f's_lshl_b32 s{sT0}, s{sW}, 7')
            p(f's_add_u32 s{sT0}, s{sT0}, {L_CSQ}')
            p(f'v_and_b32 v{vT}, 31, v{vL}')
            p(f'v_lshlrev_b32 v{vT}, 2, v{vT}')
            p(f'v_add_u32 v{vT}, s{sT0}, v{vT}')
            p(f'ds_write_b32 v{vT}, v{accQ}', tok='csw')
            p.wait('csw')
            p('s_barrier')

        def frag(f):
            if f < 56:
                tau, s = f % 2, f // 2
                base, off = vTR8a, tau * 28672 + s * 1024
            else:
                s = f - 56
                base, off = vTR8b, s * 1024
            r = RING + 4 * (f % 8)
            return [f'ds_read_b64_tr_b16 {vr(r+2*jj,2)}, v{base} offset:{off+jj*256}' for jj in range(2)]

        def mf(f):
            if f < 56:
                acc, s = (accK, accV)[f % 2], f // 2
            else:
                acc, s = accQ, f - 56
            return f'{MF32} {vr(acc,16)}, {vr(RING+4*(f%8))}, {vr(X+4*s)}, {vr(acc,16) if s else 0}'

        PD = 6
        for f in range(PD):
            p.ext(frag(f))
        groups = []
        for f in range(84):
            g = []
            if f + PD < 84:
                g += frag(f + PD)
            g.append(mf(f))
            groups.append(g)
        if layer == 0:
            S, Q2 = vT, vT + 1
            side = []
            pre = [f'v_mov_b32 v{S}, 0', f'v_mov_b32 v{Q2}, 0', f'v_mov_b32 v{vT+2}, 0', f'v_mov_b32 v{vT+3}, 0',
                   f'v_mov_b32 v{vT+4}, s{sONES}']
            p.ext(pre)
            kv = []
            for f in range(56):
                g = list(groups[f])
                if f % 2 == 1:
                    s = f // 2
                    for i in range(4):
                        g.append(f'v_dot2c_f32_bf16 v{S + 2*(i%2)}, v{X+4*s+i}, v{vT+4}')
                        g.append(f'v_dot2c_f32_bf16 v{Q2 + 2*(i%2)}, v{X+4*s+i}, v{X+4*s+i}')
                kv += g
            p.ext(kv)
            fin = [f'v_add_f32 v{S}, v{S}, v{S+2}', f'v_add_f32 v{Q2}, v{Q2}, v{Q2+2}'] + self.stats_finish(S, Q2, vT + 2, vT + 3)
        else:
            p.ext(interleave(groups[:56], self.stats_reduce(CS), start=8, per=2))
            fin = []

        def cs_reads(tau, vaddr):
            return [f'ds_read_b128 {vr(CS+4*q)}, v{vaddr} offset:{tau*128 + 32*q}' for q in range(4)]

        def epi(acc, P, scale):
            L = []
            for r in range(16):
                L.append(f'v_fma_f32 v{acc+r}, v{CS+r}, v{vMEAN}, v{acc+r}')
                L.append(f'v_mul_f32 v{acc+r}, v{acc+r}, v{scale}')
                if r % 2:
                    L.append(f'v_cvt_pk_bf16_f32 v{P+r//2}, v{acc+r-1}, v{acc+r}')
            return L

        def pad(P, c6, c7):
            return [[f's_mov_b64 exec, s[{sHI}:{sHI+1}]', f'v_mov_b32 v{P+6}, {c6:#x}', f'v_mov_b32 v{P+7}, {c7:#x}',
                     's_mov_b64 exec, -1']]

        vCSA = 11
        side = list(fin)
        side += [f'v_lshrrev_b32 v{vCSA}, 5, v{vL}', f'v_lshlrev_b32 v{vCSA}, 4, v{vCSA}', f'v_add_u32 v{vCSA}, {L_CSQ}, v{vCSA}']
        sKV = sT4
        side += [f's_lshl_b32 s{sKV}, s{sJ}, 3', f's_add_u32 s{sKV}, s{sKV}, s{sTP}',
                 f's_add_u32 s{sKV}, s{sKV}, {layer*128}', f's_lshl_b32 s{sT3}, s{sKV}, 7',
                 f's_lshl_b32 s{sKV}, s{sKV}, 12', f's_add_u32 s{sKV}, s{sKV}, s{sTB}',
                 f's_add_u32 s{sT3}, s{sT3}, s{sTB}', f's_add_u32 s{sT3}, s{sT3}, {O_FKV}']
        side += cs_reads(0, vCSA) + epi(accK, PK, vRSTD) + pad(PK, 0x3f803f80, 0x3f80)
        side += [Ins(f'buffer_store_dwordx4 {vr(PK+4*k)}, v{vL16}, {srd(S_WS)}, s{sKV} offen offset:{1024*k} sc1', 'kvst') for k in range(2)]
        side += cs_reads(1, vCSA) + epi(accV, PV, vRSTD) + pad(PV, 0x3f80, 0)
        side += [Ins(f'buffer_store_dwordx4 {vr(PV+4*k)}, v{vL16}, {srd(S_WS)}, s{sKV} offen offset:{2048+1024*k} sc1', 'kvst') for k in range(2)]
        flat = interleave(groups[56:], side, start=1, per=5)
        for x in flat:
            if isinstance(x, list):
                p.ext(x)
            else:
                p.ext([x])
        QF = 200
        p.ext(cs_reads(2, vCSA))
        p(f'v_mul_f32 v{vRSTD}, {f32bits(28 ** -0.5 * math.log2(math.e)):#x}, v{vRSTD}')
        p.ext(epi(accQ, QF, vRSTD))
        p.ext(pad(QF, 0, 0x3f800000)[0])
        p.wait('kvst')
        p('s_mov_b64 exec, 1')
        p(f'buffer_store_dwordx2 {vr(vF,2)}, off, {srd(S_WS)}, s{sT3} sc1')
        p('s_mov_b64 exec, -1')
        p('s_waitcnt lgkmcnt(0)')
        p('s_barrier')

    def attn(self, layer):
        p = self.p
        PK, PV = vT, vT + 8
        KF, ST, MW, MD, OA, QF, PB, VF = 32, 104, 152, 168, 184, 200, 208, 224
        t0, t1 = 104, 105
        p(f's_lshl_b32 s{sT0}, s{sW}, 12')
        p(f's_add_u32 s{sT0}, s{sT0}, {8*4096}')
        p(f'v_add_u32 v{t0}, s{sT0}, v{vL16}')
        p(f'ds_write_b128 v{t0}, {vr(PK)}', tok='kvw')
        p(f'ds_write_b128 v{t0}, {vr(PK+4)} offset:1024', tok='kvw')
        p(f'v_and_b32 v{t1}, 31, v{vL}')
        p(f'v_lshlrev_b32 v{t1}, 6, v{t1}')
        p(f'v_lshrrev_b32 v{t0}, 5, v{vL}')
        p(f'v_lshl_add_u32 v{t1}, v{t0}, 4, v{t1}')
        p(f'v_add_u32 v{t0}, s{sT0}, v{t1}')
        p(f'ds_write_b128 v{t0}, {vr(PV)} offset:2048', tok='kvw')
        p(f'ds_write_b128 v{t0}, {vr(PV+4)} offset:{2048+32}', tok='kvw')
        if layer == 0:
            for q in range(8):
                p(f'v_lshlrev_b32 v{vRES+2*q}, 16, v{248+q}')
                p(f'v_and_b32 v{vRES+2*q+1}, 0xffff0000, v{248+q}')
            p.ext(self.w2_consume(0))
            p.ext(self.stage_dma(S_W2, 1))
        p.ext(self.w1_dma(True))
        p(f'v_and_b32 v{t0}, 31, v{vL}')
        p(f'v_lshrrev_b32 v{t1}, 5, v{vL}')
        p(f'v_lshlrev_b32 v{t1}, 2, v{t1}')
        p(f'v_sub_u32 v{t0}, v{t0}, v{t1}')
        p(f'v_mov_b32 v{t1}, {f32bits(-1e30):#x}')
        for r in range(16):
            key = 8 * (r // 4) + r % 4
            p(f'v_cmp_le_i32 vcc, {key}, v{t0}')
            p(f'v_cndmask_b32 v{MD+r}, v{t1}, 0, vcc' if False else f'v_cndmask_b32_e64 v{MD+r}, v{t1}, 0, vcc')
            p(f'v_cndmask_b32_e64 v{MW+r}, 0, v{t1}, vcc')
        if layer == 0:
            p(f's_lshl_b32 s{sT0}, s{sTEAM}, 8')
            p(f's_add_u32 s{sT0}, s{sT0}, {WS_PUR}')
            p(f'v_lshlrev_b32 v{t0}, 3, v{vL}')
            lp, lo = p.newlabel('pur'), p.newlabel('purout')
            p('s_mov_b32 exec_hi, 0')
            p(f's_mov_b32 s{sCNT}, 0')
            p.label(lp)
            p(f'buffer_load_dwordx2 {vr(106,2)}, v{t0}, {srd(S_WS)}, s{sT0} offen sc1')
            p(f's_add_u32 s{sCNT}, s{sCNT}, 1')
            p(f's_cmp_gt_u32 s{sCNT}, {POLL_MAX}')
            p(f's_cbranch_scc1 {lo}')
            p('s_waitcnt vmcnt(0)')
            p(f'v_xor_b32 v107, s{sF+1}, v107')
            p(f'v_xor_b32 v106, s{sF}, v106')
            p(f'v_and_b32 v108, 0x0fffffff, v107')
            p(f'v_or_b32 v106, v106, v108')
            p(f'v_cmp_ne_u32 vcc, 0, v106')
            p(f's_cbranch_vccnz {lp}')
            p(f'v_readfirstlane_b32 s{sT1}, v107')
            p(f'v_cmp_ne_u32 vcc, s{sT1}, v107')
            p(f's_cmp_eq_u64 vcc, 0')
            p(f's_cselect_b32 s{sPURE}, 1, 0')
            p.label(lo)
            p('s_waitcnt vmcnt(0)')
            p('s_mov_b64 exec, -1')
            p.mark('drained_vm')
            p.ext(self.w2_consume(1))
        p.ext(self.stage_dma(S_WO, 0))
        lnull, ljoin = p.newlabel('null'), p.newlabel('kvjoin')
        p(f's_lshl_b32 s{sT0}, s{sW}, 1')
        p(f's_lshl_b32 s{sT1}, s{sA}, 2')
        p(f's_add_u32 s{sT0}, s{sT0}, s{sT1}')
        p(f's_cmp_lt_u32 s{sT0}, 8')
        p(f's_cselect_b32 s{sT1}, {STRIDE}, 0')
        p(f's_cselect_b64 s[{sPOLL+4}:{sPOLL+5}], s[{sFP}:{sFP+1}], s[{sF}:{sF+1}]')
        p(f's_sub_u32 s{sT1}, s{sTB}, s{sT1}')
        p(f's_cmp_lt_i32 s{sT1}, {TEAM0}')
        p(f's_cbranch_scc1 {lnull}')
        p(f's_and_b32 s{sT0}, s{sT0}, 7')
        p(f's_lshl_b32 s{sT2}, s{sJ}, 3')
        p(f's_add_u32 s{sT0}, s{sT0}, s{sT2}')
        p(f's_add_u32 s{sT0}, s{sT0}, {layer*128}')
        p(f's_lshl_b32 s{sT2}, s{sT0}, 7')
        p(f's_add_u32 s{sT2}, s{sT2}, s{sT1}')
        p(f's_add_u32 s{sT2}, s{sT2}, {O_FKV}')
        p(f's_lshl_b32 s{sT0}, s{sT0}, 12')
        p(f's_add_u32 s{sT0}, s{sT0}, s{sT1}')
        p(f'v_bfe_u32 v{t0}, v{vL}, 1, 1')
        p(f'v_lshlrev_b32 v{t0}, 10, v{t0}')
        p(f'v_and_b32 v{t1}, 1, v{vL}')
        p(f'v_lshl_add_u32 v{t0}, v{t1}, 9, v{t0}')
        p(f'v_lshrrev_b32 v{t1}, 2, v{vL}')
        p(f'v_lshl_add_u32 v{t0}, v{t1}, 4, v{t0}')
        p(f's_lshl_b32 s{sT1}, s{sW}, 13')
        lp, lo = p.newlabel('kvpoll'), p.newlabel('kvpollout')
        p('s_waitcnt lgkmcnt(0)')
        p(f's_mov_b32 s{sCNT}, 0')
        p.label(lp)
        p(f's_load_dwordx2 s[{sPOLL}:{sPOLL+1}], s[{S_WSP}:{S_WSP+1}], s{sT2} glc')
        p(f's_load_dwordx2 s[{sPOLL+2}:{sPOLL+3}], s[{S_WSP}:{S_WSP+1}], s{sT2} offset:128 glc')
        p(f's_add_u32 s{sCNT}, s{sCNT}, 1')
        p(f's_cmp_gt_u32 s{sCNT}, {POLL_MAX}')
        p(f's_cbranch_scc1 {lo}')
        p('s_waitcnt lgkmcnt(0)')
        p(f's_cmp_eq_u64 s[{sPOLL}:{sPOLL+1}], s[{sPOLL+4}:{sPOLL+5}]')
        p(f's_cbranch_scc0 {lp}')
        p(f's_cmp_eq_u64 s[{sPOLL+2}:{sPOLL+3}], s[{sPOLL+4}:{sPOLL+5}]')
        p(f's_cbranch_scc0 {lp}')
        p.label(lo)
        p('s_waitcnt lgkmcnt(0)')
        for tl in range(2):
            for k in range(2):
                p.ext(self.dma(S_WS, vL16, (sT0, tl * 4096 + k * 1024), (sT1, tl * 4096 + k * 1024), 'kvd', 'sc1'))
            for k in range(2):
                p.ext(self.dma(S_WS, t0, (sT0, tl * 4096 + 2048 + k * 256), (sT1, tl * 4096 + 2048 + k * 1024), 'kvd', 'sc1'))
        p('s_waitcnt vmcnt(0)')
        p.label(ljoin)
        p.mark('drained_vm')
        self.tail.append((lnull, [
            f's_lshl_b32 s{sT1}, s{sW}, 13', f'v_add_u32 v{t0}, s{sT1}, v{vL16}',
            'v_mov_b32 v108, 0', 'v_mov_b32 v109, 0', 'v_mov_b32 v110, 0', 'v_mov_b32 v111, 0'] +
            [f'ds_write_b128 v{t0}, v[108:111] offset:{o}' for o in (0, 2048, 3072, 4096, 4096 + 2048, 4096 + 3072)] +
            [f's_mov_b64 exec, s[{sHI}:{sHI+1}]', 'v_mov_b32 v111, 0xf1490000', 's_mov_b64 exec, -1'] +
            [f'ds_write_b128 v{t0}, v[108:111] offset:{o}' for o in (1024, 4096 + 1024)] +
            ['s_waitcnt vmcnt(0) lgkmcnt(0)', f's_branch {ljoin}']))
        vKA, vVA = vT, vT + 1
        p(f's_lshl_b32 s{sT0}, s{sW}, 12')
        p(f'v_add_u32 v{vKA}, s{sT0}, v{vL16}')
        p(f'v_lshrrev_b32 v{t0}, 5, v{vL}')
        p(f'v_bfe_u32 v{t1}, v{vL}, 2, 2')
        p(f'v_lshl_add_u32 v{t0}, v{t0}, 2, v{t1}')
        p(f'v_lshlrev_b32 v{vVA}, 6, v{t0}')
        p(f'v_bfe_u32 v{t0}, v{vL}, 4, 1')
        p(f'v_lshl_add_u32 v{vVA}, v{t0}, 5, v{vVA}')
        p(f'v_and_b32 v{t0}, 1, v{vL}')
        p(f'v_lshl_add_u32 v{vVA}, v{t0}, 4, v{vVA}')
        p(f'v_bfe_u32 v{t0}, v{vL}, 1, 1')
        p(f'v_lshl_add_u32 v{vVA}, v{t0}, 3, v{vVA}')
        p(f'v_add_u32 v{vVA}, s{sT0}, v{vVA}')
        p('s_waitcnt lgkmcnt(0)')
        p('s_barrier')
        for t in range(9):
            for k in range(2):
                p(f'ds_read_b128 {vr(KF+8*t+4*k)}, v{vKA} offset:{t*4096+k*1024}')

        def qk(t):
            s = ST + 16 * (t % 3)
            c = vr(MW, 16) if t == 0 else vr(MD, 16) if t == 8 else '0'
            return [f'{MF32} {vr(s,16)}, {vr(KF+8*t)}, {vr(QF)}, {c}',
                    f'{MF32} {vr(s,16)}, {vr(KF+8*t+4)}, {vr(QF+4)}, {vr(s,16)}']
        vM, vM2 = vT + 2, vT + 3

        def mx(t):
            s = ST + 16 * (t % 3)
            L = []
            for i in range(8):
                d = vM if i % 2 == 0 else vM2
                if t == 0 and i < 2:
                    L.append(f'v_max_f32 v{d}, v{s+2*i}, v{s+2*i+1}')
                else:
                    L.append(f'v_max3_f32 v{d}, v{s+2*i}, v{s+2*i+1}, v{d}')
            return L
        p.ext(qk(0))
        p.ext(qk(1))
        for t in range(9):
            m = mx(t)
            if t + 2 < 9:
                q = qk(t + 2)
                p.ext(m[:4] + [q[0]] + m[4:] + [q[1]])
            else:
                p.ext(m)
        a, b2, r1 = vT + 4, vT + 5, vT + 6
        p(f'v_max_f32 v{vM}, v{vM}, v{vM2}')
        p(f'v_mov_b32 v{a}, v{vM}')
        p(f'v_permlane32_swap_b32 v{vM}, v{a}')
        p(f'v_max_f32 v{vM}, v{vM}, v{a}')
        p(f'v_xor_b32 v{vM}, 0x80000000, v{vM}')
        p(f'v_and_b32 v{a}, 0xffff0000, v{vM}')
        p(f'v_sub_f32 v{r1}, v{vM}, v{a}')
        p(f'v_and_b32 v{a}, 0xffff0000, v{r1}')
        p(f'v_sub_f32 v{b2}, v{r1}, v{a}')
        p(f's_mov_b64 exec, s[{sHI}:{sHI+1}]')
        p(f'v_perm_b32 v{QF+6}, v{r1}, v{vM}, s{sPERM}')
        p(f'v_perm_b32 v{QF+7}, 1.0, v{b2}, s{sPERM}')
        p('s_mov_b64 exec, -1')

        def vread(t):
            d = VF + 8 * (t % 2)
            return [f'ds_read_b64_tr_b16 {vr(d+4*kv+2*jj,2)}, v{vVA} offset:{t*4096+2048+(16*kv+8*jj)*64}'
                    for kv in range(2) for jj in range(2)]

        def ex(t):
            s = ST + 16 * (t % 3)
            pb = PB + 8 * (t % 2)
            L = []
            for i in range(8):
                L.append(f'v_exp_f32 v{s+2*i}, v{s+2*i}')
                L.append(f'v_exp_f32 v{s+2*i+1}, v{s+2*i+1}')
                if i:
                    L.append(f'v_cvt_pk_bf16_f32 v{pb+i-1}, v{s+2*i-2}, v{s+2*i-1}')
            L.append(f'v_cvt_pk_bf16_f32 v{pb+7}, v{s+14}, v{s+15}')
            return L

        def pv(t):
            d = VF + 8 * (t % 2)
            pb = PB + 8 * (t % 2)
            return [f'{MF32} {vr(OA,16)}, {vr(d)}, {vr(pb)}, {vr(OA,16) if t else 0}',
                    f'{MF32} {vr(OA,16)}, {vr(d+4)}, {vr(pb+4)}, {vr(OA,16)}']
        p.ext(vread(0))
        p.ext(qk(0))
        p.ext(qk(1))
        for t in range(9):
            e = ex(t)
            mf = []
            if t > 0:
                mf += pv(t - 1)
            if t + 2 < 9:
                mf += qk(t + 2)
            out = []
            pos = [3, 8, 13, 18]
            for i, x in enumerate(e):
                out.append(x)
                if i in pos and pos.index(i) < len(mf):
                    out.append(mf[pos.index(i)])
                if i == 10 and t + 1 < 9:
                    out += vread(t + 1)
            p.ext(out)
        p.ext(pv(8))
        p(f's_lshl_b32 s{sT0}, s{sTP}, 4')
        p(f's_add_u32 s{sT0}, s{sT0}, s{sJ}')
        p(f's_add_u32 s{sT0}, s{sT0}, {layer*128}')
        p(f's_lshl_b32 s{sT1}, s{sT0}, 3')
        p(f's_add_u32 s{sT1}, s{sT1}, s{sTB}')
        p(f's_add_u32 s{sT1}, s{sT1}, {O_FO}')
        p(f's_lshl_b32 s{sT0}, s{sT0}, 11')
        p(f's_add_u32 s{sT0}, s{sT0}, s{sTB}')
        p(f's_add_u32 s{sT0}, s{sT0}, {O_O}')
        p(f'v_mov_b32 v{a}, v{OA+12}')
        p(f'v_mov_b32 v{b2}, v{OA+12}')
        p(f'v_permlane32_swap_b32 v{a}, v{b2}')
        p(f'v_rcp_f32 v{b2}, v{b2}')
        for i in range(8):
            p(f'v_mul_f32 v{OA+2*i}, v{OA+2*i}, v{b2}')
            p(f'v_mul_f32 v{OA+2*i+1}, v{OA+2*i+1}, v{b2}')
            p(f'v_cvt_pk_bf16_f32 v{PB+i}, v{OA+2*i}, v{OA+2*i+1}')
            if i % 4 == 3:
                p(f'buffer_store_dwordx4 {vr(PB+i-3)}, v{vL16}, {srd(S_WS)}, s{sT0} offen offset:{(i//4)*1024}', tok='ost')
        self.publish(['ost'], sT1)

    def reduce_addr(self):
        L = []
        for x in range(1, 4):
            L += [f's_xor_b32 s{sT0}, s{sW}, {x}', f's_mul_i32 s{sT0}, s{sT0}, 12288',
                  f's_add_u32 s{sT0}, s{sT0}, {LB + (x-1)*4096}', f'v_add_u32 v{vT+x-1}, s{sT0}, v{vL16}']
        L += [f's_mul_i32 s{sT0}, s{sW}, 12288', f's_add_u32 s{sT0}, s{sT0}, {LB}', f'v_add_u32 v{vT+3}, s{sT0}, v{vL16}']
        return L

    def reduce_writes(self, ACC):
        return [Ins(f'ds_write_b128 v{vT+x-1}, {vr(ACC+16*x+4*c)} offset:{c*1024}', 'rw') for x in range(1, 4) for c in range(4)]

    def reduce_finish(self, ACC, TMP):
        p = self.p
        p.wait('rw')
        p('s_barrier')
        for i in range(12):
            p(f'ds_read_b128 {vr(TMP+4*i)}, v{vT+3} offset:{i*1024}')
        for x in range(3):
            for c in range(8):
                p(f'v_pk_add_f32 {vr(ACC+2*c,2)}, {vr(ACC+2*c,2)}, {vr(TMP+16*x+2*c,2)}')

    def x_publish(self, ACC, P, which, xoff, layout16):
        p = self.p
        p(f's_lshl_b32 s{sT0}, s{sRB}, 1')
        p(f's_add_u32 s{sT0}, s{sT0}, s{sRHO}')
        p(f's_lshl_b32 s{sT1}, s{sCB}, 1')
        p(f's_add_u32 s{sT1}, s{sT1}, s{sNU}')
        p(f's_mul_i32 s{sT2}, s{sT0}, 14')
        p(f's_add_u32 s{sT2}, s{sT2}, s{sT1}')
        p(f's_lshl_b32 s{sT3}, s{sT2}, 11')
        p(f's_add_u32 s{sT3}, s{sT3}, s{sTB}')
        p(f's_add_u32 s{sT3}, s{sT3}, {xoff}')
        p(f's_lshl_b32 s{sT2}, s{sT2}, 8')
        p(f's_add_u32 s{sT2}, s{sT2}, s{sTB}')
        p(f's_add_u32 s{sT2}, s{sT2}, {O_ST + which*8*3584}')
        p(f's_lshl_b32 s{sT0}, s{sT0}, 7')
        p(f's_lshl_b32 s{sT1}, s{sT1}, 3')
        p(f's_add_u32 s{sT0}, s{sT0}, s{sT1}')
        p(f's_add_u32 s{sT0}, s{sT0}, s{sTB}')
        p(f's_add_u32 s{sT0}, s{sT0}, {O_FX + which*1024}')
        va = vT + 4
        if layout16:
            p(f'v_bfe_u32 v{va}, v{vL}, 4, 1')
            p(f'v_lshlrev_b32 v{va}, 10, v{va}')
            p(f'v_lshrrev_b32 v{va+1}, 5, v{vL}')
            p(f'v_lshl_add_u32 v{va}, v{va+1}, 8, v{va}')
            p(f'v_and_b32 v{va+1}, 15, v{vL}')
            p(f'v_lshl_add_u32 v{va}, v{va+1}, 4, v{va}')
            offs = (0, 512)
        else:
            va = vL16
            offs = (0, 1024)
        return va, offs

    def x_store(self, ACC, P, va, offs):
        p = self.p
        S, Q2, t0, t1 = vT + 6, vT + 7, vT + 8, vT + 9
        p(f'v_mov_b32 v{t0}, s{sONES}')
        p(f'v_mov_b32 v{S}, 0')
        p(f'v_mov_b32 v{Q2}, 0')
        for i in range(8):
            p(f'v_cvt_pk_bf16_f32 v{P+i}, v{ACC+2*i}, v{ACC+2*i+1}')
            if i % 4 == 3:
                p(f'buffer_store_dwordx4 {vr(P+i-3)}, v{va}, {srd(S_WS)}, s{sT3} offen offset:{offs[i//4]}', tok='xst')
        for i in range(8):
            p(f'v_dot2c_f32_bf16 v{S}, v{P+i}, v{t0}')
            p(f'v_dot2c_f32_bf16 v{Q2}, v{P+i}, v{P+i}')
        p(f'v_mov_b32 v{t0}, v{S}')
        p(f'v_mov_b32 v{t1}, v{Q2}')
        p(f'v_permlane32_swap_b32 v{S}, v{t0}')
        p(f'v_permlane32_swap_b32 v{Q2}, v{t1}')
        p(f'v_add_f32 v{S}, v{S}, v{t0}')
        p(f'v_add_f32 v{Q2}, v{Q2}, v{t1}')
        p(f'v_lshrrev_b32 v{t0}, 1, v{vL16}')
        p('s_mov_b32 exec_hi, 0')
        p(f'buffer_store_dwordx2 {vr(S,2)}, v{t0}, {srd(S_WS)}, s{sT2} offen', tok='xst')
        p('s_mov_b64 exec, -1')
        self.publish(['xst'], sT0)
        for q in range(8):
            p(f'v_lshlrev_b32 v{vRES+2*q}, 16, v{P+q}')
            p(f'v_and_b32 v{vRES+2*q+1}, 0xffff0000, v{P+q}')

    def p3(self, layer):
        p = self.p
        WO, OF, ACC = 32, 96, 160
        p.wait('stage')
        for hd in range(4):
            for kp in range(2):
                for z in range(2):
                    for jj in range(2):
                        d = WO + ((hd * 2 + kp) * 2 + z) * 4 + 2 * jj
                        p(f'ds_read_b64_tr_b16 {vr(d,2)}, v{vTRB4} offset:{z*7168 + (28*hd+16*kp+8*jj)*64}')
        p('s_waitcnt lgkmcnt(0)')
        p(f's_mov_b64 exec, s[{sHI}:{sHI+1}]')
        for hd in range(4):
            for z in range(2):
                d = WO + ((hd * 2 + 1) * 2 + z) * 4
                p(f'v_mov_b32 v{d+2}, 0')
                p(f'v_mov_b32 v{d+3}, 0')
        p('s_mov_b64 exec, -1')
        p('s_barrier')
        lskip, ljoin = p.newlabel('p3skip'), p.newlabel('p3join')
        p(f's_cmp_ge_u32 s{sM}, 28')
        p(f's_cbranch_scc1 {lskip}')
        p.ext(self.reduce_addr())
        p(f'v_lshrrev_b32 v{vT+4}, 2, v{vL}')
        p(f'v_lshlrev_b32 v{vT+4}, 7, v{vT+4}')
        p(f'v_and_b32 v{vT+5}, 3, v{vL}')
        p(f'v_lshl_add_u32 v{vT+4}, v{vT+5}, 3, v{vT+4}')
        p(f's_lshl_b32 s{sT0}, s{sRB}, 8')
        p(f's_lshl_b32 s{sT1}, s{sW}, 5')
        p(f's_add_u32 s{sT0}, s{sT0}, s{sT1}')
        p(f's_add_u32 s{sT0}, s{sT0}, s{sTB}')
        p(f's_add_u32 s{sT0}, s{sT0}, {O_FO + layer*1024}')
        for y in range(2):
            p(f's_xor_b32 s{sT1+y}, s{sRHO}, {y}')
            p(f's_lshl_b32 s{sT3}, s{sRB}, 1')
            p(f's_add_u32 s{sT1+y}, s{sT1+y}, s{sT3}')
            p(f's_lshl_b32 s{sT1+y}, s{sT1+y}, 2')
            p(f's_add_u32 s{sT1+y}, s{sT1+y}, s{sW}')
            p(f's_lshl_b32 s{sT1+y}, s{sT1+y}, 13')
            p(f's_add_u32 s{sT1+y}, s{sT1+y}, s{sTB}')
            p(f's_add_u32 s{sT1+y}, s{sT1+y}, {O_O + layer*16*8*2048}')
        self.vpoll(vT + 4, sT0, 8, sF)
        for ks in range(8):
            if ks == 4:
                p(f's_add_u32 s{sT1}, s{sT1}, 4096')
                p(f's_add_u32 s{sT2}, s{sT2}, 4096')
            for y in range(2):
                p(f'buffer_load_dwordx4 {vr(OF+(ks*2+y)*4)}, v{vL16}, {srd(S_WS)}, s{sT1+y} offen offset:{(ks%4)*1024} sc1')
        va, offs = None, None
        p.ext(self.w1_dma(False))
        va, offs = self.x_publish(ACC, None, layer, O_X1 + layer * 8 * 28672, True)

        def mf(ks, x):
            y, z = x >> 1, x & 1
            c = vr(ACC + 16 * x, 16) if ks else (vr(vRES, 16) if x == 0 else '0')
            return f'{MF32} {vr(ACC+16*x,16)}, {vr(WO+(ks*2+z)*4)}, {vr(OF+(ks*2+y)*4)}, {c}'
        for ks in range(8):
            for x in (1, 2, 3):
                p(mf(ks, x))
        groups = [[mf(ks, 0)] for ks in range(8)]
        p.ext(interleave(groups, self.reduce_writes(ACC), start=2, per=2))
        self.reduce_finish(ACC, 32)
        self.x_store(ACC, 96, va, offs)
        p.label(ljoin)
        self.tail.append((lskip, self.w1_dma(False) + [f's_branch {ljoin}']))
        p('s_waitcnt vmcnt(0) lgkmcnt(0)')
        p('s_barrier')

    def p4(self, layer):
        p = self.p
        X, ACC, RING, CS = 32, 144, 200, 224
        if layer == 0:
            p.ext(self.stage_dma(S_W2, 2))
            for i in range(4):
                p(f'v_mov_b32 v{vT+4+i}, s{sONES}')
            p(f's_mul_i32 s{sT0}, s{sW}, 14336')
            p(f'v_add_u32 v{vT}, s{sT0}, v{vW1a}')
            p(f's_add_u32 s{sT0}, s{sW}, 4')
            p(f's_min_u32 s{sT0}, s{sT0}, 6')
            p(f's_mul_i32 s{sT0}, s{sT0}, 14336')
            p(f'v_add_u32 v{vT+1}, s{sT0}, v{vW1a}')
            rd = lambda f: [f'ds_read_b64_tr_b16 {vr(RING+4*(f%6)+2*jj,2)}, v{vT+f%2} offset:{(f//2)*1024+jj*512}' for jj in range(2)]
            for f in range(5):
                p.ext(rd(f))
            for f in range(28):
                if f + 5 < 28:
                    p.ext(rd(f + 5))
                a = ACC + 4 * (f % 2)
                p(f'{MF16} {vr(a)}, {vr(vT+4)}, {vr(RING+4*(f%6))}, {vr(a) if f > 1 else 0}')
            p(f's_lshl_b32 s{sT0}, s{sW}, 6')
            p(f's_add_u32 s{sT0}, s{sT0}, {L_CS1}')
            p(f'v_and_b32 v{vT}, 15, v{vL}')
            p(f'v_lshlrev_b32 v{vT}, 2, v{vT}')
            p(f'v_add_u32 v{vT}, s{sT0}, v{vT}')
            p(f'ds_write_b32 v{vT}, v{ACC}', tok='csw')
            p(f'ds_write_b32 v{vT}, v{ACC+4} offset:256', tok='csw')
            p.wait('csw')
            p('s_barrier')
        p(f's_lshl_b32 s{sT0}, s{sTP}, 7')
        p(f's_add_u32 s{sT0}, s{sT0}, s{sTB}')
        p(f's_add_u32 s{sT0}, s{sT0}, {O_FX + layer*1024}')
        p(f'v_lshlrev_b32 v{vT}, 3, v{vL}')
        self.vpoll(vT, sT0, 14, sF)
        p(f's_mul_i32 s{sT0}, s{sTP}, 3584')
        p(f's_add_u32 s{sT0}, s{sT0}, s{sTB}')
        p(f's_add_u32 s{sT0}, s{sT0}, {O_ST + layer*8*3584}')
        p.ext(self.stats_loads(sT0, CS))
        p(f's_mul_i32 s{sT0}, s{sTP}, 28672')
        p(f's_add_u32 s{sT0}, s{sT0}, s{sTB}')
        p(f's_add_u32 s{sT0}, s{sT0}, {O_X1 + layer*8*28672}')
        for i in range(28):
            if i % 4 == 0 and i:
                p(f's_add_u32 s{sT0}, s{sT0}, 4096')
            p(f'buffer_load_dwordx4 {vr(X+4*i)}, v{vL16}, {srd(S_WS)}, s{sT0} offen offset:{(i%4)*1024} sc1')
        seq = [(t, s) for s in range(14) for t in range(4)] + [(t, s) for s in range(14) for t in range(4, 7)]

        def frag(f):
            t, s = seq[f]
            base, off = (vW1a, t * 14336) if t < 4 else (vW1b, (t - 4) * 14336)
            r = RING + 4 * (f % 6)
            return [f'ds_read_b64_tr_b16 {vr(r+2*jj,2)}, v{base} offset:{off+s*1024+jj*512}' for jj in range(2)]

        def mf(f):
            t, s = seq[f]
            return [f'{MF16} {vr(ACC+8*t+4*u)}, {vr(RING+4*(f%6))}, {vr(X+4*(2*s+u))}, {vr(ACC+8*t+4*u) if s else 0}' for u in range(2)]
        PD = 5
        for f in range(PD):
            p.ext(frag(f))
        groups = []
        for f in range(98):
            g = (frag(f + PD) if f + PD < 98 else []) + mf(f)
            groups.append(g)
        side = self.stats_reduce(CS) + [f'v_mov_b32 v{vRSTD}, v{vMEAN}', f'v_permlane16_swap_b32 v{vMEAN}, v{vRSTD}']
        vCSA, vHA, vHB = vT, vT + 1, vT + 2
        side += [f'v_lshrrev_b32 v{vCSA}, 4, v{vL}', f'v_lshlrev_b32 v{vCSA}, 4, v{vCSA}', f'v_add_u32 v{vCSA}, {L_CS1}, v{vCSA}',
                 f'v_lshrrev_b32 v{vHA}, 5, v{vL}', f'v_lshlrev_b32 v{vHA}, 10, v{vHA}',
                 f'v_bfe_u32 v{vHB}, v{vL}, 4, 1', f'v_lshl_add_u32 v{vHA}, v{vHB}, 9, v{vHA}',
                 f'v_and_b32 v{vT+3}, 15, v{vL}', f'v_lshl_add_u32 v{vHA}, v{vT+3}, 4, v{vHA}',
                 f'v_lshlrev_b32 v{vHB}, 3, v{vHB}', f'v_lshl_add_u32 v{vHB}, v{vT+3}, 4, v{vHB}',
                 f'v_lshrrev_b32 v{vT+3}, 5, v{vL}', f'v_lshl_add_u32 v{vHB}, v{vT+3}, 9, v{vHB}',
                 f's_mul_i32 s{sT0}, s{sTP}, 112', f's_mul_i32 s{sT1}, s{sJ}, 7', f's_add_u32 s{sT0}, s{sT0}, s{sT1}',
                 f's_lshl_b32 s{sT0}, s{sT0}, 10', f's_add_u32 s{sT0}, s{sT0}, s{sTB}',
                 f's_add_u32 s{sT0}, s{sT0}, {O_H + layer*8*114688}', f's_add_u32 s{sT2}, s{sT0}, 4096',
                 f's_lshl_b32 s{sT1}, s{sTP}, 4', f's_add_u32 s{sT1}, s{sT1}, s{sJ}', f's_lshl_b32 s{sT1}, s{sT1}, 3',
                 f's_add_u32 s{sT1}, s{sT1}, s{sTB}', f's_add_u32 s{sT1}, s{sT1}, {O_FH + layer*2048}']
        p.ext(interleave(groups[:56], side, start=12, per=2))
        PO = vT + 4

        def epi(tiles, tok):
            L = []
            for t in tiles:
                L.append(f'ds_read_b128 {vr(CS+4*(t%4))}, v{vCSA} offset:{t*64}')
            pairs = [tiles[i:i + 2] for i in range(0, len(tiles), 2)]
            for pr in pairs:
                for u in range(2):
                    po = PO + 4 * u
                    mean = (vMEAN, vRSTD)[u]
                    for k, t in enumerate(pr):
                        a = ACC + 8 * t + 4 * u
                        for r in range(4):
                            L.append(f'v_fma_f32 v{a+r}, v{CS+4*(t%4)+r}, v{mean}, v{a+r}')
                        for r in range(2):
                            L.append(f'v_cvt_pk_bf16_f32 v{po+2*k+r}, v{a+2*r}, v{a+2*r+1}')
                        for r in range(2):
                            L.append(f'v_pk_max_i16 v{po+2*k+r}, v{po+2*k+r}, 0')
                    t = pr[0]
                    so, off = (sT0, t * 1024) if t < 4 else (sT2, (t - 4) * 1024)
                    if len(pr) == 2:
                        L.append(Ins(f'buffer_store_dwordx4 {vr(po)}, v{vHA}, {srd(S_WS)}, s{so} offen offset:{off+u*256}', tok))
                    else:
                        L.append(Ins(f'buffer_store_dwordx2 {vr(po,2)}, v{vHB}, {srd(S_WS)}, s{so} offen offset:{off+u*256}', tok))
            return L
        p.ext(interleave(groups[56:], epi([0, 1, 2, 3], 'hst'), start=1, per=2))
        p.ext(epi([4, 5, 6], 'hst'))
        self.publish(['hst'], sT1)
        if layer == 0:
            p.ext(self.w2_consume(2))
            p.ext(self.stage_dma(S_W2, 3))
            p.ext(self.w2_consume(3))
        p('s_waitcnt lgkmcnt(0)')
        p('s_barrier')

    def p5(self, layer):
        p = self.p
        HR, ACC, CS = 32, 160, 224
        lskip, ljoin = p.newlabel('p5skip'), p.newlabel('p5join')
        nextdma = []
        if layer == 0:
            nextdma = [f'v_bfe_u32 v{vDQ}, v{vL}, 2, 2', f'v_bfe_u32 v{vT+10}, v{vL}, 4, 1',
                       f'v_lshl_add_u32 v{vDQ}, v{vT+10}, 3, v{vDQ}', f'v_bfe_u32 v{vT+10}, v{vL}, 5, 1',
                       f'v_lshl_add_u32 v{vDQ}, v{vT+10}, 2, v{vDQ}', f'v_mul_u32_u24 v{vDQ}, 2688, v{vDQ}',
                       f'v_and_b32 v{vT+10}, 3, v{vL}', f'v_lshl_add_u32 v{vDQ}, v{vT+10}, 4, v{vDQ}'] + self.wqkv_dma()
        p(f's_cmp_ge_u32 s{sM}, 28')
        p(f's_cbranch_scc1 {lskip}')
        p.ext(self.reduce_addr())
        p(f'v_lshrrev_b32 v{vT+4}, 2, v{vL}')
        p(f'v_lshlrev_b32 v{vT+4}, 7, v{vT+4}')
        p(f'v_and_b32 v{vT+5}, 3, v{vL}')
        p(f'v_lshl_add_u32 v{vT+4}, v{vT+5}, 3, v{vT+4}')
        p(f's_lshl_b32 s{sT0}, s{sRB}, 8')
        p(f's_lshl_b32 s{sT1}, s{sW}, 5')
        p(f's_add_u32 s{sT0}, s{sT0}, s{sT1}')
        p(f's_add_u32 s{sT0}, s{sT0}, s{sTB}')
        p(f's_add_u32 s{sT0}, s{sT0}, {O_FH + layer*2048}')
        sH = (76, 77)
        for y in range(2):
            p(f's_xor_b32 s{sH[y]}, s{sRHO}, {y}')
            p(f's_lshl_b32 s{sT3}, s{sRB}, 1')
            p(f's_add_u32 s{sH[y]}, s{sH[y]}, s{sT3}')
            p(f's_lshl_b32 s{sH[y]}, s{sH[y]}, 2')
            p(f's_add_u32 s{sH[y]}, s{sH[y]}, s{sW}')
            p(f's_mul_i32 s{sH[y]}, s{sH[y]}, 28672')
            p(f's_add_u32 s{sH[y]}, s{sH[y]}, s{sTB}')
            p(f's_add_u32 s{sH[y]}, s{sH[y]}, {O_H + layer*8*114688}')
        p(f's_lshl_b32 s{sT1}, s{sRB}, 1')
        p(f's_add_u32 s{sT1}, s{sT1}, s{sRHO}')
        p(f's_mul_i32 s{sT1}, s{sT1}, 3584')
        p(f's_add_u32 s{sT1}, s{sT1}, s{sTB}')
        p(f's_add_u32 s{sT1}, s{sT1}, {O_ST + layer*8*3584}')
        self.vpoll(vT + 4, sT0, 8, sF)
        NR = 16

        def ld(ks):
            L = []
            if ks % 4 == 0 and ks:
                L += [f's_add_u32 s{sH[0]}, s{sH[0]}, 4096', f's_add_u32 s{sH[1]}, s{sH[1]}, 4096']
            for y in range(2):
                L.append(f'buffer_load_dwordx4 {vr(HR+((ks%NR)*2+y)*4)}, v{vL16}, {srd(S_WS)}, s{sH[y]} offen offset:{(ks%4)*1024} sc1')
            return L

        def mf(ks, x):
            y, z = x >> 1, x & 1
            return f'{MF32} {vr(ACC+16*x,16)}, {ar(ks*8+z*4)}, {vr(HR+((ks%NR)*2+y)*4)}, {vr(ACC+16*x,16) if ks else 0}'
        PD = 10
        for ks in range(PD):
            p.ext(ld(ks))
        p.ext(self.stats_loads(sT1, CS))
        TAIL = 8
        groups = []
        for ks in range(28):
            xs = (0, 1, 2, 3) if ks < 28 - TAIL else (1, 2, 3)
            for i, x in enumerate(xs):
                g = [mf(ks, x)]
                if i == len(xs) - 1 and ks + PD < 28:
                    g += ld(ks + PD)
                groups.append(g)
        n1 = 4 * (28 - PD)
        p.ext(interleave(groups[:n1], self.stats_reduce(CS), start=16, per=2))
        atoms = []
        i = 0
        while i < len(nextdma):
            x = nextdma[i]
            if isinstance(x, str) and x.startswith('s_add_u32 m0'):
                atoms.append(nextdma[i:i + 3])
                i += 3
            else:
                atoms.append([x])
                i += 1
        flat = interleave(groups[n1:], atoms, start=0, per=2)
        for x in flat:
            p.ext(x if isinstance(x, list) else [x])
        if layer == 0:
            va, offs = self.x_publish(ACC, None, 2, O_X2, False)
        groups = [[mf(ks, 0)] for ks in range(28 - TAIL, 28)]
        p.ext(interleave(groups, self.reduce_writes(ACC), start=2, per=2))
        self.reduce_finish(ACC, 32)
        for r in range(16):
            p(f'v_fma_f32 v{ACC+r}, v{ACC+r}, v{vRSTD}, v{vRES+r}')
        if layer == 0:
            self.x_store(ACC, 96, va, offs)
        else:
            P = 96
            p(f'v_and_b32 v{vT+4}, 31, v{vL}')
            p(f'v_mul_u32_u24 v{vT+4}, 896, v{vT+4}')
            p(f'v_lshrrev_b32 v{vT+5}, 5, v{vL}')
            p(f'v_lshl_add_u32 v{vT+4}, v{vT+5}, 4, v{vT+4}')
            for i in range(8):
                p(f'v_cvt_pk_bf16_f32 v{P+i}, v{ACC+2*i}, v{ACC+2*i+1}')
            for hf in range(2):
                p(f'v_permlane32_swap_b32 v{P+4*hf}, v{P+4*hf+2}')
                p(f'v_permlane32_swap_b32 v{P+4*hf+1}, v{P+4*hf+3}')
                p(f'buffer_store_dwordx4 {vr(P+4*hf)}, v{vT+4}, {srd(S_OUT)}, s70 offen offset:{32*hf}')
            le = p.newlabel('noepoch')
            le2 = p.newlabel('noepoch')
            p(f's_cmp_lg_u32 s{sM}, 27')
            p(f's_cbranch_scc1 {le}')
            p(f's_cmp_lg_u32 s{sW}, 0')
            p(f's_cbranch_scc1 {le}')
            p('s_mov_b64 exec, 1')
            p(f's_lshl_b32 s{sT0}, s{sTEAM}, 3')
            p(f's_cmp_lg_u32 s{sTEAM}, 7')
            p(f's_cbranch_scc1 {le2}')
            p(f'buffer_store_dwordx2 {vr(vF,2)}, off, {srd(S_WS)}, s{sT0} sc1')
            p.label(le2)
            p(f's_cmp_eq_u32 s{sTEAM}, 0')
            p(f's_cbranch_scc1 {le}')
            p(f's_sub_u32 s{sT0}, s{sT0}, 8')
            p(f'v_mov_b32 v{vT}, s{sFP}')
            p(f'v_mov_b32 v{vT+1}, s{sFP+1}')
            p(f'buffer_store_dwordx2 {vr(vT,2)}, off, {srd(S_WS)}, s{sT0} sc1')
            p.label(le)
        p.label(ljoin)
        self.tail.append((lskip, nextdma + [f's_branch {ljoin}']))
        if layer == 0:
            p('s_waitcnt vmcnt(0) lgkmcnt(0)')
            p('s_barrier')

    def build(self):
        p = self.p
        self.tail = []
        self.prologue()
        order = []
        for layer in range(2):
            for ph in ('p1', 'attn', 'p3', 'p4', 'p5'):
                order.append((ph, layer))
        for i, (ph, layer) in enumerate(order):
            getattr(self, ph)(layer)
            if self.stop is not None and i + 1 >= self.stop:
                break
        p.label('L_end')
        p('s_endpgm')
        for lab, code in self.tail:
            p.label(lab, reset='all')
            p.ext(code)
        p.label('L_codeend')
        p.insert_waits()
        probs = p.fix_hazards()
        for x in probs:
            print('BRANCH HAZARD', x, file=sys.stderr)
        mx = p.maxregs()
        head = open(os.path.join(os.path.dirname(__file__), '..', 'cdna_kernels', NAME + '.s.ref')).read().split('\n')
        hdr = [l for l in head if l.startswith(';') and '@launch' not in l]
        out = '\n'.join(hdr) + f'\n; @launch grid=(256,1,1) block=(256,1,1) lds={LDS_BYTES}\n'
        out += '.amdgcn_target "amdgcn-amd-amdhsa--gfx950"\n.text\n'
        out += f'.globl {NAME}_kernel\n.p2align 8\n.type {NAME}_kernel,@function\n{NAME}_kernel:\n'
        out += p.text()
        out += '.fill 64, 4, 0xbf800000\n'
        out += f'''.section .rodata,"a"
.p2align 6
.amdhsa_kernel {NAME}_kernel
  .amdhsa_next_free_vgpr 512
  .amdhsa_next_free_sgpr 102
  .amdhsa_accum_offset 256
  .amdhsa_group_segment_fixed_size 0
  .amdhsa_kernarg_size 72
  .amdhsa_user_sgpr_count 2
  .amdhsa_user_sgpr_kernarg_segment_ptr 1
  .amdhsa_system_sgpr_workgroup_id_x 1
  .amdhsa_float_denorm_mode_32 3
.end_amdhsa_kernel
'''
        print('regs', mx, 'instrs', sum(1 for x in p.items if isinstance(x, Ins)), file=sys.stderr)
        return out


if __name__ == '__main__':
    stop = int(sys.argv[2]) if len(sys.argv) > 2 else None
    open(sys.argv[1], 'w').write(K(stop).build())
```

```python
import re

REG_RE = re.compile(r'(?<![\w.])(-?)(?:abs\()?([vas])(?:(\d+)|\[(\d+):(\d+)\])')
TRANS = ('v_exp_f32', 'v_log_f32', 'v_rcp_f32', 'v_rsq_f32', 'v_sqrt_f32', 'v_sin_f32', 'v_cos_f32')


def regs_of(text):
    out = []
    for m in REG_RE.finditer(text):
        k = m.group(2)
        if m.group(3) is not None:
            out.append((k, int(m.group(3))))
        else:
            out.extend((k, i) for i in range(int(m.group(4)), int(m.group(5)) + 1))
    for sp in ('vcc', 'exec', 'm0'):
        if re.search(r'(?<![\w])' + sp + r'(?:_lo|_hi)?(?![\w])', text):
            out.append((sp, 0))
    return out


def split_ops(s):
    ops, depth, cur = [], 0, ''
    for ch in s:
        if ch in '[(':
            depth += 1
        if ch in '])':
            depth -= 1
        if ch == ',' and depth == 0:
            ops.append(cur.strip())
            cur = ''
        else:
            cur += ch
    if cur.strip():
        ops.append(cur.strip())
    return ops


class Ins:
    __slots__ = ('text', 'op', 'kind', 'rd', 'wr', 'passes', 'srcc', 'srcab', 'tok', 'maybe', 'sdata', 'target')

    def __init__(self, text, tok=None):
        self.text = text.strip()
        self.tok = tok
        self.maybe = False
        self.passes = 0
        self.srcc = set()
        self.srcab = set()
        self.sdata = set()
        self.target = None
        parts = self.text.split(None, 1)
        op = self.op = parts[0]
        rest = parts[1] if len(parts) > 1 else ''
        ops = split_ops(rest)
        R = lambda i: set(regs_of(ops[i])) if i < len(ops) else set()
        allr = lambda lo: set().union(*[R(i) for i in range(lo, len(ops))]) if len(ops) > lo else set()
        rd, wr = set(), set()
        if op.startswith('v_mfma'):
            self.kind = 'mfma'
            self.passes = 8 if '32x32x16' in op else 4
            wr = R(0)
            self.srcab = R(1) | R(2)
            self.srcc = R(3)
            rd = self.srcab | self.srcc
        elif op.startswith('v_cmp'):
            self.kind = 'valu'
            wr = R(0)
            rd = allr(1) | {('exec', 0)}
        elif op.startswith('v_readfirstlane') or op.startswith('v_readlane'):
            self.kind = 'readlane'
            wr = R(0)
            rd = allr(1)
        elif op.startswith('v_permlane'):
            self.kind = 'permlane'
            wr = R(0) | R(1)
            rd = R(0) | R(1)
        elif op.startswith('v_dot2'):
            self.kind = 'dot'
            wr = R(0)
            rd = allr(1) | (R(0) if 'dot2c' in op else set())
        elif op.startswith('v_'):
            self.kind = 'trans' if op.replace('_e32', '').replace('_e64', '') in TRANS else 'valu'
            wr = R(0)
            rd = allr(1)
            if op.startswith('v_fmac') or op.startswith('v_pk_fmac') or '_dpp' in op or op.startswith('v_writelane'):
                rd |= R(0)
            if op.startswith('v_add_co') or op.startswith('v_addc_co') or op.startswith('v_sub_co'):
                wr |= R(1)
                rd = allr(2)
            if '_dpp' in op:
                self.kind = 'dpp'
        elif op.startswith('buffer_load') or op.startswith('global_load'):
            if re.search(r'\blds\b', rest) or 'load_lds' in op:
                self.kind = 'dma'
                rd = allr(0) | {('m0', 0)}
            else:
                self.kind = 'vload'
                wr = R(0)
                rd = allr(1)
        elif op.startswith('buffer_store') or op.startswith('global_store') or op.startswith('buffer_atomic'):
            self.kind = 'vstore'
            rd = allr(0)
            if op.endswith('x4') or op.endswith('x3'):
                self.sdata = R(0) if op.startswith('buffer') else R(1)
        elif op in ('buffer_wbl2', 'buffer_inv'):
            self.kind = 'vstore'
        elif op.startswith('ds_read') or op.startswith('ds_bpermute') or op.startswith('ds_swizzle'):
            self.kind = 'dsread'
            wr = R(0)
            rd = allr(1)
        elif op.startswith('ds_write') or op.startswith('ds_add'):
            self.kind = 'dswrite'
            rd = allr(0)
        elif op.startswith('s_load') or op.startswith('s_buffer_load') or op in ('s_memtime', 's_memrealtime'):
            self.kind = 'smem'
            wr = R(0)
            rd = allr(1)
        elif op == 's_waitcnt':
            self.kind = 'wait'
        elif op == 's_nop':
            self.kind = 'nop'
        elif op == 's_barrier':
            self.kind = 'barrier'
        elif op.startswith('s_cbranch') or op == 's_branch':
            self.kind = 'branch'
            self.target = ops[0]
            if 'vcc' in op:
                rd = {('vcc', 0)}
        elif op == 's_setpc_b64':
            self.kind = 'salu'
            rd = R(0)
        elif op in ('s_endpgm', 's_sleep', 's_setprio'):
            self.kind = 'salu'
        elif op.startswith('s_cmp') or op.startswith('s_bitcmp'):
            self.kind = 'salu'
            rd = allr(0)
        elif op.startswith('s_'):
            self.kind = 'salu'
            wr = R(0)
            rd = allr(1)
            if 'saveexec' in op:
                wr |= {('exec', 0)}
                rd |= {('exec', 0)}
            if op.startswith('s_addk') or op.startswith('s_mulk') or op.startswith('s_cmov'):
                rd |= R(0)
        else:
            raise ValueError('unknown op ' + text)
        if op.startswith('v_cndmask') and len(ops) == 3:
            rd.add(('vcc', 0))
        self.rd, self.wr = rd, wr

    def states(self):
        if self.kind == 'nop':
            return int(self.text.split()[1], 0) + 1
        return 1


class Label:
    def __init__(self, name, reset=None):
        self.name = name
        self.reset = reset


class Wait:
    def __init__(self, toks):
        self.toks = set(toks)


class Touch:
    def __init__(self, text):
        self.regs = set(regs_of(text))


class Mark:
    def __init__(self, what):
        self.what = what


class Raw:
    def __init__(self, text):
        self.text = text


VM_KINDS = ('vload', 'vstore', 'dma')
LG_KINDS = ('dsread', 'dswrite', 'smem')
VALU_KINDS = ('valu', 'trans', 'readlane', 'permlane', 'dot', 'dpp')


class Prog:
    def __init__(self):
        self.items = []
        self.uid = 0

    def __call__(self, text, tok=None):
        for line in text.split('\n'):
            line = line.strip()
            if line:
                self.items.append(Ins(line, tok))

    def ext(self, lst):
        for x in lst:
            if isinstance(x, str):
                self(x)
            elif isinstance(x, (list, tuple)):
                self.ext(x)
            else:
                self.items.append(x)

    def label(self, name, reset=None):
        self.items.append(Label(name, reset))

    def wait(self, *toks):
        self.items.append(Wait(toks))

    def mark(self, what):
        self.items.append(Mark(what))

    def raw(self, text):
        self.items.append(Raw(text))

    def newlabel(self, base):
        self.uid += 1
        return f'L_{base}_{self.uid}'

    def insert_waits(self):
        out = []
        vm, lg = [], []
        maybe_depth = 0
        block_start = []

        def need(queue, pred):
            for i in range(len(queue) - 1, -1, -1):
                if pred(queue[i]):
                    return i
            return -1

        def emit(vi, li):
            parts = []
            if vi >= 0:
                n = sum(1 for o in vm[vi + 1:] if not o.maybe)
                n = min(n, 63)
                parts.append(f'vmcnt({n})')
                if maybe_depth == 0:
                    del vm[:vi + 1]
                else:
                    cut('vm', vi)
            if li >= 0:
                if any(o.kind == 'smem' for o in lg):
                    n = 0
                    li = len(lg) - 1
                else:
                    n = sum(1 for o in lg[li + 1:] if not o.maybe)
                    n = min(n, 15)
                parts.append(f'lgkmcnt({n})')
                if maybe_depth == 0:
                    del lg[:li + 1]
                else:
                    cut('lg', li)
            if parts:
                out.append(Ins('s_waitcnt ' + ' '.join(parts)))

        def cut(which, idx):
            q = vm if which == 'vm' else lg
            saved = block_start[-1][which]
            inblock = block_start[-1]['ids']
            for o in q[:idx + 1]:
                if id(o) not in inblock:
                    saved.append(o)
            del q[:idx + 1]

        for it in self.items:
            if isinstance(it, Label):
                if it.reset in ('vm', 'all'):
                    vm.clear()
                if it.reset in ('lgkm', 'all'):
                    lg.clear()
                out.append(it)
                continue
            if isinstance(it, Raw):
                out.append(it)
                continue
            if isinstance(it, Mark):
                if it.what == 'maybe_begin':
                    maybe_depth += 1
                    block_start.append({'vm': [], 'lg': [], 'ids': set()})
                elif it.what == 'maybe_end':
                    maybe_depth -= 1
                    b = block_start.pop()
                    for o in vm + lg:
                        if id(o) in b['ids']:
                            o.maybe = True
                    vm[:0] = b['vm']
                    lg[:0] = b['lg']
                    if block_start:
                        block_start[-1]['ids'] |= b['ids']
                elif it.what == 'drained_vm':
                    vm.clear()
                elif it.what == 'drained_lgkm':
                    lg.clear()
                continue
            if isinstance(it, Wait):
                vi = need(vm, lambda o: o.tok in it.toks)
                li = need(lg, lambda o: o.tok in it.toks)
                emit(vi, li)
                continue
            if isinstance(it, Touch):
                vi = need(vm, lambda o: o.wr & it.regs)
                li = need(lg, lambda o: o.wr & it.regs)
                emit(vi, li)
                continue
            ins = it
            if ins.kind == 'wait':
                m = re.search(r'vmcnt\((\d+)\)', ins.text)
                if m and int(m.group(1)) == 0:
                    if maybe_depth == 0:
                        vm.clear()
                    elif vm:
                        cut('vm', len(vm) - 1)
                m = re.search(r'lgkmcnt\((\d+)\)', ins.text)
                if m and int(m.group(1)) == 0:
                    if maybe_depth == 0:
                        lg.clear()
                    elif lg:
                        cut('lg', len(lg) - 1)
                out.append(ins)
                continue
            touched = ins.rd | ins.wr
            vi = need(vm, lambda o: o.wr & touched)
            li = need(lg, lambda o: o.wr & touched)
            if vi >= 0 and ins.kind == 'vload' and not (vm[vi].wr & ins.rd):
                vi = need(vm, lambda o: o.wr & ins.rd)
            if li >= 0 and ins.kind == 'dsread' and not any(o.kind == 'smem' for o in lg) and not (lg[li].wr & ins.rd):
                li = need(lg, lambda o: o.wr & ins.rd)
            emit(vi, li)
            out.append(ins)
            if ins.kind in VM_KINDS:
                vm.append(ins)
            elif ins.kind in LG_KINDS:
                lg.append(ins)
            if ins.kind in VM_KINDS or ins.kind in LG_KINDS:
                for b in block_start:
                    b['ids'].add(id(ins))
        self.items = out

    @staticmethod
    def required(p, c):
        n = 0
        pv = p.kind in VALU_KINDS
        cv = c.kind in VALU_KINDS
        if pv:
            sw = {r for r in p.wr if r[0] in ('s', 'vcc')}
            vw = {r for r in p.wr if r[0] in ('v', 'a')}
            if sw:
                if c.kind in VM_KINDS and sw & c.rd:
                    n = max(n, 5)
                if (cv or c.kind == 'mfma') and sw & c.rd:
                    n = max(n, 4 if c.kind == 'readlane' or c.op.startswith('v_writelane') else 2)
                if c.kind in ('salu', 'branch', 'smem') and sw & c.rd:
                    n = max(n, 1 if c.kind != 'branch' else 1)
            if vw:
                if c.kind == 'readlane' and vw & c.rd:
                    n = max(n, 1)
                if c.kind in ('permlane', 'dpp') and vw & c.rd:
                    n = max(n, 2)
                if c.kind == 'mfma' and vw & c.rd:
                    n = max(n, 2)
                if p.kind == 'trans' and vw & c.rd and c.kind != 'trans':
                    n = max(n, 1)
                if p.kind == 'dot' and vw & (c.rd | c.wr):
                    if c.kind == 'dot' and c.op == p.op and not (vw & (c.rd - c.wr)) :
                        pass
                    else:
                        n = max(n, 3)
                if ('op_sel' in p.text and not p.op.startswith('v_pk_')) and vw & (c.rd | c.wr) and cv:
                    n = max(n, 1)
        if p.kind == 'mfma':
            ps = p.passes
            if c.kind == 'mfma':
                if p.wr & c.srcab:
                    n = max(n, ps + 4)
                if p.wr & c.srcc:
                    if not (p.wr == c.srcc and c.passes == ps):
                        n = max(n, ps + 2)
                if (p.wr & c.wr) and not (p.wr == c.wr and c.passes == ps and p.wr == c.srcc):
                    n = max(n, ps + 2)
            else:
                if (cv and p.wr & (c.rd | c.wr)) or (c.kind in VM_KINDS + ('dsread', 'dswrite') and p.wr & (c.rd | c.wr)):
                    n = max(n, ps + 4)
                if (cv or c.kind in ('vload', 'dsread')) and p.srcc & c.wr:
                    n = max(n, ps - 1)
        if p.kind == 'vstore' and p.sdata & c.wr:
            n = max(n, 2 if cv else 1)
        if p.kind == 'salu' and ('m0', 0) in p.wr and (c.kind == 'dma' or 'addtid' in c.op):
            n = max(n, 1)
        return n

    def fix_hazards(self):
        W = 14
        out = []
        hist = []
        for it in self.items:
            if not isinstance(it, Ins):
                out.append(it)
                continue
            need = 0
            dist = 0
            for p in reversed(hist):
                r = self.required(p, it)
                if r > dist:
                    need = max(need, r - dist)
                dist += p.states()
                if dist >= W:
                    break
            if need:
                nop = Ins(f's_nop {need - 1}')
                out.append(nop)
                hist.append(nop)
            out.append(it)
            hist.append(it)
            if it.op in ('s_branch', 's_endpgm', 's_setpc_b64'):
                hist = []
        self.items = out
        idx = {it.name: i for i, it in enumerate(out) if isinstance(it, Label)}
        problems = []
        for i, it in enumerate(out):
            if isinstance(it, Ins) and it.kind == 'branch':
                pre = [x for x in out[max(0, i - 40):i + 1] if isinstance(x, Ins)]
                post = [x for x in out[idx[it.target]:idx[it.target] + 40] if isinstance(x, Ins)]
                d0 = 0
                for c in post:
                    dist = d0
                    for p in reversed(pre):
                        r = self.required(p, c)
                        if r > dist:
                            problems.append((it.text, p.text, c.text, r - dist))
                        dist += p.states()
                        if dist >= W:
                            break
                    d0 += c.states()
                    if d0 >= W or c.op in ('s_branch', 's_endpgm', 's_setpc_b64'):
                        break
        fix = {}
        for br, _p, _c, n in problems:
            tgt = br.split()[1]
            fix[tgt] = max(fix.get(tgt, 0), n)
        if fix:
            out2 = []
            for it in out:
                out2.append(it)
                if isinstance(it, Label) and it.name in fix:
                    out2.append(Ins(f's_nop {fix[it.name] - 1}'))
            self.items = out2
        return [(k, v) for k, v in fix.items()]

    def text(self):
        L = []
        for it in self.items:
            if isinstance(it, Label):
                L.append(f'{it.name}:')
            elif isinstance(it, Raw):
                L.append(it.text)
            elif isinstance(it, Ins):
                L.append('    ' + it.text)
        return '\n'.join(L) + '\n'

    def maxregs(self):
        mx = {'v': -1, 'a': -1, 's': -1}
        for it in self.items:
            if isinstance(it, Ins):
                for k, i in it.rd | it.wr:
                    if k in mx:
                        mx[k] = max(mx[k], i)
        return mx


def interleave(main, side, start=0, per=1):
    out = []
    si = 0
    for gi, g in enumerate(main):
        out.extend(g)
        if gi >= start:
            k = per(gi) if callable(per) else per
            for _ in range(k):
                if si < len(side):
                    out.append(side[si])
                    si += 1
    out.extend(side[si:])
    return out
```

```python
import sys, os, math, struct
sys.path.insert(0, os.path.dirname(__file__))
from asmlib import Prog, Ins, Wait, Mark, Label, Touch

NAME = 'interleave_layers__sliding_block__dense_activation_relu__prompt'

WS_EPOCH = 0
WS_PUR = 0x1000
F_WQ = 0x2000
F_W1 = 0x2800
F_W2 = 0x3000
F_WO = 0x4000
WQT = 0x100000
W1T = 0x250000
WOT = 0x3D8000
W2T = 0x448000
TEAM0 = 0x600000
LSTRIDE = 0x230000
STRIDE = 2 * LSTRIDE
O_KV = 0x000000
O_O = 0x080000
O_X1 = 0x0C0000
O_XA = 0x0F8000
O_ST1 = 0x130000
O_STA = 0x138000
O_FKV = 0x140000
O_FO = 0x144000
O_FX1 = 0x144400
O_FXA = 0x144800
O_FH = 0x145000
O_H = 0x150000
WS_BYTES = TEAM0 + 8 * STRIDE

LKV = 100352
L_CSQ = 149504
L_CS1 = L_CSQ + 512
LDS_BYTES = 163840

S_X, S_WQ, S_WO, S_W1, S_W2, S_OUT, S_WS = 8, 12, 16, 20, 24, 28, 32
S_WSP = 36
sTEAM, sM, sA, sJ, sW, sRB, sCB, sLB = 40, 41, 42, 43, 44, 45, 46, 47
sF, sPURE, sLAYER, sTP = 48, 50, 51, 52
sQOFF = 53
sHI = 54
sPERM, sONES = 56, 57
sRHO, sNU = 58, 59
sT0, sT1, sT2, sT3, sT4, sT5 = 60, 61, 62, 63, 64, 65
sCNT = 66
sTB = 71
sJFL = 67
sXD, sXS, sXF = 68, 69, 70
sPOLL = 72
sO = 80

vL, vL16, vA1, vL8 = 0, 1, 2, 3
vSTA = 4
vFLG = 5
vRW = 6
vX1A = 10
vCSA = 11
vF = 12
vMEAN, vRSTD = 14, 15
vT = 16
vRES = 240

POLL_MAX = 1 << 16
MF32 = 'v_mfma_f32_32x32x16_bf16'
MF16 = 'v_mfma_f32_16x16x32_bf16'


def srd(b):
    return f's[{b}:{b+3}]'


def vr(b, n=4):
    return f'v[{b}:{b+n-1}]' if n > 1 else f'v{b}'


def ar(b, n=4):
    return f'a[{b}:{b+n-1}]'


def f32bits(x):
    return struct.unpack('<I', struct.pack('<f', x))[0]


def is_mem(x):
    if isinstance(x, (list, tuple)):
        return any(is_mem(y) for y in x)
    t = x.text if isinstance(x, Ins) else x if isinstance(x, str) else ''
    return t.startswith('ds_') or t.startswith('buffer_') or t.startswith('global_')


def cost(x):
    if isinstance(x, (list, tuple)):
        return sum(cost(y) for y in x)
    if isinstance(x, (Wait, Touch)):
        return 1
    t = x.text if isinstance(x, Ins) else x
    return 2 if t.startswith('v_exp') or t.startswith('v_rsq') or t.startswith('v_rcp') or t.startswith('v_permlane') else 1


def sched(mfs, pre, mem, side, cap, start=0):
    out = []
    side = list(side)
    for i, m in enumerate(mfs):
        out += pre.get(i, [])
        out.append(m)
        n = 0
        for x in mem.get(i, []):
            out.append(x)
            n += cost(x)
        if pre.get(i + 1):
            n += 1
        valu = False
        if i >= start:
            while side and n + cost(side[0]) <= cap:
                if is_mem(side[0]) and valu:
                    break
                x = side.pop(0)
                if not is_mem(x) and not isinstance(x, (Wait, Touch)):
                    t = x[0] if isinstance(x, (list, tuple)) else x
                    if any((y.text if isinstance(y, Ins) else y).startswith('v_') for y in (x if isinstance(x, (list, tuple)) else [x])):
                        valu = True
                out.append(x)
                n += cost(x)
            if side and n == 0 and cost(side[0]) > cap:
                out.append(side.pop(0))
    return out + side


class K:
    def __init__(self, stop=None, dbg=False):
        self.p = Prog()
        self.stop = stop
        self.dbg = dbg
        self.stamps = []
        self.tail = []
        self.pads = []

    def stamp(self, name):
        if not self.dbg or (name not in self.dbg and name not in ('start', 'end')):
            return
        k = len(self.stamps)
        assert k < 16
        self.stamps.append(name)
        p = self.p
        p('s_memrealtime s[96:97]' if 'RT' in self.dbg else 's_memtime s[96:97]')
        p('s_waitcnt lgkmcnt(0)')
        l1 = p.newlabel('st')
        p(f's_cmp_lg_u32 s{sLAYER}, 0')
        p(f's_cbranch_scc1 {l1}')
        p(f'v_accvgpr_write_b32 a{224+k}, s96')
        p.label(l1)
        p(f'v_accvgpr_write_b32 a{240+k}, s96')

    def stamp_dump(self):
        if not self.dbg:
            return
        p = self.p
        p(f's_lshl_b32 s{sT0}, s2, 2')
        p(f's_add_u32 s{sT0}, s{sT0}, s{sW}')
        p(f's_lshl_b32 s{sT0}, s{sT0}, 7')
        p(f's_add_u32 s{sT0}, s{sT0}, 0x40000')
        p('s_mov_b64 exec, 1')
        for k in range(32):
            p(f'buffer_store_dword a{224+k}, off, {srd(S_WS)}, s{sT0} offset:{4*k}')
        if 'DBG' in self.dbg:
            p('s_cmp_lg_u32 s2, 43')
            p('s_cbranch_scc1 L_end')
            p(f's_cmp_lg_u32 s{sW}, 1')
            p('s_cbranch_scc1 L_end')
            p('s_load_dwordx2 s[96:97], s[0:1], 56')
            p('v_accvgpr_read_b32 v16, a224')
            p('v_mov_b32 v18, 0')
            p('s_waitcnt lgkmcnt(0)')
            n = len(self.stamps)
            f = self.stamps.index('pro') + 1 if 'pro' in self.stamps else 1
            regs = [224 + k for k in range(1, n - 1)] + [240 + k for k in range(f, n)]
            for i, r in enumerate(regs[:16]):
                p(f'v_accvgpr_read_b32 v17, a{r}')
                p('v_sub_u32 v17, v17, v16')
                p(f'global_store_dword v18, v17, s[96:97] offset:{4*i}')
        p('s_mov_b64 exec, -1')

    def dma(self, srdb, voff, sreg, simm, m0, tok, sc='', n=1):
        mr, mi = m0
        L = [f's_add_u32 m0, s{mr}, {mi}' if mr is not None else f's_mov_b32 m0, {mi}',
             f's_add_u32 s{sT5}, s{sreg}, {simm}']
        for k in range(n):
            L.append(Ins(f'buffer_load_dwordx4 v{voff}, {srd(srdb)}, s{sT5} offen offset:{1024*k} {sc} lds', tok))
        return L

    def if_layer0(self, body):
        p = self.p
        l = p.newlabel('l0')
        p(f's_cmp_lg_u32 s{sLAYER}, 0')
        p(f's_cbranch_scc1 {l}')
        p.mark('maybe_begin')
        body()
        p.mark('maybe_end')
        p.label(l)

    def vpoll(self, voff, soff, nl, acquire=True):
        p = self.p
        lp, lo = p.newlabel('poll'), p.newlabel('pollout')
        p(f's_mov_b64 exec, {(1 << nl) - 1:#x}')
        p(f's_mov_b32 s{sCNT}, 0')
        p.label(lp)
        p(f'buffer_load_dwordx2 {vr(vT + 14, 2)}, v{voff}, {srd(S_WS)}, s{soff} offen sc1')
        p(f's_add_u32 s{sCNT}, s{sCNT}, 1')
        p(f's_cmp_gt_u32 s{sCNT}, {POLL_MAX}')
        p(f's_cbranch_scc1 {lo}')
        p('s_waitcnt vmcnt(0)')
        p(f'v_cmp_ne_u64 vcc, s[{sF}:{sF+1}], {vr(vT + 14, 2)}')
        p(f's_cbranch_vccnz {lp}')
        p.label(lo)
        p('s_mov_b64 exec, -1')
        if acquire:
            lslow, lback = p.newlabel('acq'), p.newlabel('acqback')
            p(f's_cmp_lg_u32 s{sPURE}, 0')
            p(f's_cbranch_scc0 {lslow}')
            p.label(lback)
            self.tail.append((lslow, ['buffer_inv sc1', 's_waitcnt vmcnt(0)', f's_branch {lback}']))
        p.mark('drained_vm')

    def publish(self, toks, soff):
        p = self.p
        p.wait(*toks)
        lslow, lback = p.newlabel('pubslow'), p.newlabel('pubback')
        p('s_mov_b64 exec, 1')
        p(f's_cmp_lg_u32 s{sPURE}, 0')
        p(f's_cbranch_scc0 {lslow}')
        p(f'buffer_store_dwordx2 {vr(vF, 2)}, off, {srd(S_WS)}, s{soff}')
        p.label(lback)
        p('s_mov_b64 exec, -1')
        self.tail.append((lslow, [
            'buffer_wbl2 sc1', 's_waitcnt vmcnt(0)',
            f'buffer_store_dwordx2 {vr(vF, 2)}, off, {srd(S_WS)}, s{soff} sc1',
            f's_branch {lback}']))

    def flag_sc1(self, soff):
        return ['s_mov_b64 exec, 1', f'buffer_store_dwordx2 {vr(vF,2)}, off, {srd(S_WS)}, s{soff} sc1', 's_mov_b64 exec, -1']

    def stats_loads(self, soff, dst):
        return [f'buffer_load_dwordx2 {vr(dst + 2*i, 2)}, v{vSTA}, {srd(S_WS)}, s{soff} offen offset:{256*i} sc1' for i in range(7)]

    def stats_reduce(self, src):
        L = []
        for i in range(1, 7):
            L.append(f'v_add_f32 v{src}, v{src}, v{src+2*i}')
            L.append(f'v_add_f32 v{src+1}, v{src+1}, v{src+2*i+1}')
        s, q, t0, t1 = src, src + 1, src + 2, src + 3
        return L + [
            f'v_mov_b32 v{t0}, v{s}', f'v_mov_b32 v{t1}, v{q}', 's_nop 0',
            f'v_permlane32_swap_b32 v{s}, v{t0}', f'v_permlane32_swap_b32 v{q}, v{t1}',
            f'v_add_f32 v{s}, v{s}, v{t0}', f'v_add_f32 v{q}, v{q}, v{t1}',
            f'v_mul_f32 v{vMEAN}, {f32bits(-1.0/448):#x}, v{s}',
            f'v_mul_f32 v{q}, {f32bits(1.0/448):#x}, v{q}',
            f'v_fma_f32 v{q}, -v{vMEAN}, v{vMEAN}, v{q}',
            f'v_max_f32 v{q}, 0, v{q}',
            f'v_add_f32 v{q}, {f32bits(1e-5):#x}, v{q}',
            f'v_rsq_f32 v{vRSTD}, v{q}',
        ]

    def off(self, dst, idx_reg, mul, add):
        return [f's_mul_i32 s{dst}, s{idx_reg}, {mul}', f's_add_u32 s{dst}, s{dst}, s{sLB}', f's_add_u32 s{dst}, s{dst}, {add}']

    def xoff(self, dst, idx_reg, mul, add):
        return [f's_add_u32 s{sT3}, s{sLB}, {add}', f's_add_u32 s{sT4}, s{sTB}, {O_XA}', f's_cmp_lg_u32 s{sPURE}, 0',
                f's_cselect_b32 s{sT3}, s{sT4}, s{sT3}', f's_mul_i32 s{dst}, s{idx_reg}, {mul}', f's_add_u32 s{dst}, s{dst}, s{sT3}']

    def roff(self, dst, idx_reg, mul, add):
        return [f's_cmp_lg_u32 s{sPURE}, 0', f's_cselect_b32 s{sT3}, s{sTB}, s{sLB}',
                f's_mul_i32 s{dst}, s{idx_reg}, {mul}', f's_add_u32 s{dst}, s{dst}, s{sT3}', f's_add_u32 s{dst}, s{dst}, {add}']

    def pub_offsets(self, xoff, stoff, foff):
        return [f's_lshl_b32 s{sT0}, s{sRB}, 1', f's_add_u32 s{sT0}, s{sT0}, s{sRHO}',
                f's_lshl_b32 s{sT1}, s{sCB}, 1', f's_add_u32 s{sT1}, s{sT1}, s{sNU}',
                f's_mul_i32 s{sT2}, s{sT0}, 14', f's_add_u32 s{sT2}, s{sT2}, s{sT1}'] + \
            self.xoff(sXD, sT2, 2048, xoff) + self.off(sXS, sT2, 256, stoff) + \
            [f's_lshl_b32 s{sT0}, s{sT0}, 4', f's_add_u32 s{sT0}, s{sT0}, s{sT1}'] + self.off(sXF, sT0, 8, foff)

    def x_store(self, P, va, offs, sc=''):
        p = self.p
        S, Q2, t0, t1 = vT + 6, vT + 7, vT + 8, vT + 9
        for k in range(2):
            p(f'buffer_store_dwordx4 {vr(P+4*k)}, v{va}, {srd(S_WS)}, s{sXD} offen offset:{offs[k]} {sc}', tok='xst')
        p(f'v_mov_b32 v{t0}, s{sONES}')
        p(f'v_dot2_f32_bf16 v{S}, v{P}, v{t0}, 0')
        p(f'v_dot2_f32_bf16 v{Q2}, v{P}, v{P}, 0')
        for i in range(1, 8):
            p(f'v_dot2_f32_bf16 v{S}, v{P+i}, v{t0}, v{S}')
            p(f'v_dot2_f32_bf16 v{Q2}, v{P+i}, v{P+i}, v{Q2}')
        p(f'v_mov_b32 v{t0}, v{S}')
        p(f'v_mov_b32 v{t1}, v{Q2}')
        p(f'v_permlane32_swap_b32 v{S}, v{t0}')
        p(f'v_permlane32_swap_b32 v{Q2}, v{t1}')
        p(f'v_add_f32 v{S}, v{S}, v{t0}')
        p(f'v_add_f32 v{Q2}, v{Q2}, v{t1}')
        p('s_mov_b32 exec_hi, 0')
        p(f'buffer_store_dwordx2 {vr(S,2)}, v{vL8}, {srd(S_WS)}, s{sXS} offen {sc}', tok='xst')
        p('s_mov_b64 exec, -1')

    def res_unpack(self, P):
        L = []
        for q in range(8):
            L.append(f'v_lshlrev_b32 v{vRES+2*q}, 16, v{P+q}')
            L.append(f'v_and_b32 v{vRES+2*q+1}, 0xffff0000, v{P+q}')
        return L

    def prefetch(self, v128, sreg, base, nbytes):
        L = []
        o = 0
        while o < nbytes:
            oo = min(o, nbytes - 8192)
            L += [f's_add_u32 s{sT5}, s{sreg}, {base + oo}', f'buffer_load_dword v31, v{v128}, {srd(S_WS)}, s{sT5} offen sc1']
            o += 8192
        return L

    def wq_dma(self, tiles, dummy=None):
        L = [f's_mul_i32 s{sT0}, s{sJ}, 86016', f's_mul_i32 s{sT1}, s{sW}, 7168',
             f's_add_u32 s{sT0}, s{sT0}, s{sT1}']
        if dummy is not None:
            L += [f's_sub_u32 s{sT2}, s{dummy}, {WQT}', f's_cmp_lg_u32 s{sLAYER}, 0', f's_cselect_b32 s{sT0}, s{sT2}, s{sT0}']
        for tau in tiles:
            for o, n in ((0, 4), (4096, 3)):
                d = self.dma(S_WS, vL16, sT0, WQT + tau * 28672 + o, (sT1, tau * 28672 + o), 'wq', 'sc1', n)
                L += [d[:3]] + d[3:]
        return L

    def w1_dma(self, part):
        sg, sl = sPOLL, sPOLL + 1
        L = []
        if part == 0:
            L += [f's_mul_i32 s{sg}, s{sJ}, 100352', f's_mul_i32 s{sl}, s{sW}, 14336', f's_add_u32 s{sg}, s{sg}, s{sl}']
            groups = [(0, 4), (4096, 4), (8192, 4), (12288, 2)]
            base = 0
        else:
            L += [f's_mul_i32 s{sg}, s{sJ}, 100352', f's_mul_i32 s{sl}, s{sW}, 10240', f's_add_u32 s{sg}, s{sg}, s{sl}']
            groups = [(0, 4), (4096, 4), (8192, 2)]
            base = 57344
        for o, n in groups:
            d = self.dma(S_WS, vL16, sg, W1T + base + o, (sl, base + o), 'w1', 'sc1', n)
            L += [d[:3]] + d[3:]
        if part == 1:
            L += [f's_sub_u32 s{sg}, s{sg}, s{sl}', f's_lshl_b32 s{sl}, s{sNU}, 10', f's_add_u32 s{sg}, s{sg}, s{sl}']
            L.append(self.dma(S_WS, vL16, sg, W1T + 98304, (sl, 98304), 'w1', 'sc1', 1))
        return L

    def w2_loads(self, lo, hi):
        L = [f's_lshl_b32 s{sT0}, s{sCB}, 2', f's_add_u32 s{sT0}, s{sT0}, s{sW}', f's_mul_i32 s{sT0}, s{sT0}, 57344',
             f's_lshl_b32 s{sT1}, s{sNU}, 10', f'v_xor_b32 v{vT+10}, s{sT1}, v{vL16}', f'v_xor_b32 v{vT+11}, 1024, v{vT+10}']
        for ks in range(lo, hi):
            if ks == lo or ks % 2 == 0:
                L.append(f's_add_u32 s{sT1}, s{sT0}, {W2T + (ks//2)*4096}')
            for z in range(2):
                L.append(f'buffer_load_dwordx4 {ar(ks*8+z*4)}, v{vT+10+z}, {srd(S_WS)}, s{sT1} offen offset:{(ks%2)*2048} sc1')
        return L

    def lane_consts(self):
        p = self.p
        t0, t1 = vT + 6, vT + 7
        p(f'v_add_u32 v{vA1}, 57344, v{vL16}')
        p(f'v_and_b32 v{vSTA}, 31, v{vL}')
        p(f'v_lshlrev_b32 v{vSTA}, 3, v{vSTA}')
        p(f'v_lshrrev_b32 v{t0}, 5, v{vL}')
        p(f'v_mul_u32_u24 v{t1}, {7*256}, v{t0}')
        p(f'v_add_u32 v{vSTA}, v{vSTA}, v{t1}')
        p(f'v_lshrrev_b32 v{vFLG}, 2, v{vL}')
        p(f'v_lshlrev_b32 v{vFLG}, 7, v{vFLG}')
        p(f'v_and_b32 v{t1}, 3, v{vL}')
        p(f'v_lshl_add_u32 v{vFLG}, v{t1}, 3, v{vFLG}')
        for x in range(1, 4):
            p(f's_xor_b32 s{sT0}, s{sW}, {x}')
            p(f's_mul_i32 s{sT0}, s{sT0}, 12288')
            p(f's_add_u32 s{sT0}, s{sT0}, {LKV + (x-1)*4096}')
            p(f'v_add_u32 v{vRW+x-1}, s{sT0}, v{vL16}')
        p(f's_mul_i32 s{sT0}, s{sW}, 12288')
        p(f's_add_u32 s{sT0}, s{sT0}, {LKV}')
        p(f'v_add_u32 v{vRW+3}, s{sT0}, v{vL16}')
        p(f'v_bfe_u32 v{vX1A}, v{vL}, 4, 1')
        p(f'v_lshlrev_b32 v{vX1A}, 10, v{vX1A}')
        p(f'v_lshl_add_u32 v{vX1A}, v{t0}, 8, v{vX1A}')
        p(f'v_and_b32 v{t1}, 15, v{vL}')
        p(f'v_lshl_add_u32 v{vX1A}, v{t1}, 4, v{vX1A}')

    def pad(self):
        p = self.p
        k = len(self.pads)
        self.pads.append(f'L_pad{k}')
        p(f's_branch L_padskip{k}')
        p.label(f'L_pad{k}')
        p('s_setpc_b64 s[98:99]')
        p.label(f'L_padskip{k}')

    def emit_walker(self):
        L = []
        labs = [f'L_walk{w}' for w in range(4)]
        for w in range(1, 4):
            L += [Ins(f's_cmp_eq_u32 s{sW}, {w}'), Ins(f's_cbranch_scc1 {labs[w]}')]
        for w in range(4):
            if w:
                L.append(Label(labs[w]))
            for x in self.pads[w::4]:
                L.append(Ins(f's_call_b64 s[98:99], {x}'))
            if w < 3:
                L.append(Ins('s_branch L_walkend'))
        L.append(Label('L_walkend'))
        self.p.items[self.walker_at:self.walker_at] = L

    def prologue(self):
        p = self.p
        p('s_cmp_ge_u32 s2, 256')
        p('s_cbranch_scc1 L_end')
        p(f's_load_dwordx16 s[{sO}:{sO+15}], s[0:1], 0')
        p(f's_load_dwordx2 s[{S_WSP}:{S_WSP+1}], s[0:1], 64')
        p(f's_mov_b32 s{sLAYER}, 0')
        self.stamp('start')
        p(f'v_lshrrev_b32 v{vT}, 6, v0')
        p(f'v_and_b32 v{vL}, 63, v0')
        p(f'v_readfirstlane_b32 s{sW}, v{vT}')
        p(f's_and_b32 s{sTEAM}, s2, 7')
        p(f's_lshr_b32 s{sM}, s2, 3')
        p(f's_lshr_b32 s{sA}, s{sM}, 4')
        p(f's_and_b32 s{sJ}, s{sM}, 15')
        p(f's_mul_i32 s{sRB}, s{sM}, 37')
        p(f's_lshr_b32 s{sRB}, s{sRB}, 8')
        p(f's_mul_i32 s{sT0}, s{sRB}, 7')
        p(f's_sub_u32 s{sCB}, s{sM}, s{sT0}')
        p(f's_mul_i32 s{sLB}, s{sTEAM}, {STRIDE}')
        p(f's_add_u32 s{sLB}, s{sLB}, {TEAM0}')
        p(f's_mov_b32 s{sTB}, s{sLB}')
        p(f's_lshl_b32 s{sTP}, s{sA}, 2')
        p(f's_add_u32 s{sTP}, s{sTP}, s{sW}')
        p(f's_lshr_b32 s{sRHO}, s{sW}, 1')
        p(f's_and_b32 s{sNU}, s{sW}, 1')
        p(f's_lshl_b32 s{sT0}, s{sTEAM}, 2')
        p(f's_add_u32 s{sT0}, s{sT0}, s{sRB}')
        p(f's_lshl_b32 s{sT1}, s{sT0}, 1')
        p(f's_add_u32 s{sT1}, s{sT1}, s{sRHO}')
        p(f's_mul_i32 s{sQOFF}, s{sT1}, {32*896}')
        p(f's_lshl_b32 s{sT1}, s{sCB}, 7')
        p(f's_add_u32 s{sQOFF}, s{sQOFF}, s{sT1}')
        p(f's_lshl_b32 s{sT1}, s{sNU}, 6')
        p(f's_add_u32 s{sQOFF}, s{sQOFF}, s{sT1}')
        t0, t1, t2, t3 = vT, vT + 1, vT + 2, vT + 3
        p(f'v_lshlrev_b32 v{vL16}, 4, v{vL}')
        p(f'v_and_b32 v{t0}, 31, v{vL}')
        p(f'v_mul_u32_u24 v{t0}, 896, v{t0}')
        p(f'v_lshrrev_b32 v{t1}, 5, v{vL}')
        p(f'v_lshl_add_u32 v{t0}, v{t1}, 3, v{t0}')
        b = sO
        for (d, src, n) in ((S_X, b, 1835008), (S_WQ, b + 2, 1204224), (S_WO, b + 4, 401408), (S_W1, b + 8, 1605632),
                            (S_W2, b + 10, 1605632), (S_OUT, b + 12, 1835008), (S_WS, S_WSP, WS_BYTES)):
            p(f's_mov_b32 s{d}, s{src}')
            p(f's_and_b32 s{d+1}, s{src+1}, 0xffff')
            p(f's_mov_b32 s{d+2}, {n}')
            p(f's_mov_b32 s{d+3}, 0x20000')
        XR = 96
        for q in range(4):
            p(f'buffer_load_dwordx2 {vr(XR+2*q,2)}, v{t0}, {srd(S_X)}, s{sQOFF} offen offset:{16*q}')
        self.stamp('ka')
        p(f's_lshl_b32 s{sT2}, s{sM}, 2')
        p(f's_add_u32 s{sT2}, s{sT2}, s{sW}')
        p(f's_mul_i32 s{sT3}, s{sT2}, 9408')
        p(f'v_lshlrev_b32 v{t2}, 7, v{vL}')
        p(f'buffer_load_dword v31, v{t2}, {srd(S_WQ)}, s{sT3} offen')
        p(f's_add_u32 s{sT3}, s{sT3}, 8192')
        p('s_mov_b64 exec, 0x3ff')
        p(f'buffer_load_dword v31, v{t2}, {srd(S_WQ)}, s{sT3} offen')
        p(f's_getpc_b64 s[{sT0}:{sT0+1}]')
        p.label('L_pc')
        p(f's_lshl_b32 s{sT2}, s{sT2}, 8')
        p(f's_min_u32 s{sT2}, s{sT2}, L_codeend-L_pc-256')
        p(f's_add_u32 s{sT0}, s{sT0}, s{sT2}')
        p(f's_addc_u32 s{sT0+1}, s{sT0+1}, 0')
        p('s_mov_b64 exec, 3')
        p(f'global_load_dword v31, v{t2}, s[{sT0}:{sT0+1}]')
        p('s_mov_b64 exec, -1')
        p(f's_load_dwordx2 s[{sF}:{sF+1}], s[{S_WSP}:{S_WSP+1}], {WS_EPOCH}')
        vDQ, vTQ, vWQ = vT + 10, vT + 11, vT + 12
        sRQ, sLQ = sO + 6, sO + 7
        p(f'v_lshrrev_b32 v{t0}, 2, v{vL}')
        p(f'v_and_b32 v{t1}, 3, v{vL}')

        def rawq(tau, i):
            p.ext(self.dma(S_WQ, vDQ, sRQ, (448, 896, 0)[tau] * 2 + i * 16 * 2688, (sLQ, tau * 28672 + i * 1024), f'rq{tau}{i}'))

        def xform(tau, between=None):
            R = 128 + 32 * (tau % 2)
            for i in range(7):
                p.wait(f'rq{tau}{i}')
                for jj in range(2):
                    p(f'ds_read_b64_tr_b16 {vr(R+4*i+2*jj,2)}, v{vTQ} offset:{tau*28672+i*1024+jj*512}')
                if i >= 2:
                    p(f'ds_write_b128 v{vWQ}, {vr(R+4*(i-2))} offset:{tau*28672+(i-2)*1024}')
                if between:
                    between(i)
            for i in (5, 6):
                p(f'ds_write_b128 v{vWQ}, {vr(R+4*i)} offset:{tau*28672+i*1024}')
        sI, sSTG = sO, sO + 1
        p(f's_lshl_b32 s{sI}, s{sTEAM}, 1')
        p(f's_add_u32 s{sI}, s{sI}, s{sA}')
        p(f's_lshl_b32 s{sSTG}, s{sW}, 13')
        p(f's_add_u32 s{sSTG}, s{sSTG}, {LKV}')
        vD, vTR, vTR8 = vT + 4, vT + 5, vT + 13
        p(f'v_lshlrev_b32 v{t3}, 3, v{t1}')
        p(f'v_lshlrev_b32 v{t1}, 4, v{t1}')
        sFL, sDST, sDST2 = sO + 2, sO + 3, sO + 5
        FR = 32
        p(f'v_bfe_u32 v{t2}, v{vL}, 4, 1')
        p(f'v_lshl_add_u32 v{t2}, v{t2}, 5, v{t3}')
        p(f'v_bfe_u32 v{vTR}, v{vL}, 2, 2')
        p(f'v_lshl_add_u32 v{t2}, v{vTR}, 6, v{t2}')
        p(f'v_lshrrev_b32 v{vTR8}, 5, v{vL}')
        p(f'v_lshl_add_u32 v{vTQ}, v{vTR8}, 8, v{t2}')
        p(f'v_add_u32 v{vTR}, s{sSTG}, v{vTQ}')
        p(f'v_add_u32 v{t2}, s{sSTG}, v{t2}')
        p(f'v_lshl_add_u32 v{vTR8}, v{vTR8}, 9, v{t2}')

        def finish(nfr, offs, pre=()):
            L = list(pre)
            base = None
            for k in range(nfr):
                hi, lo = offs[k] // 4096 * 4096, offs[k] % 4096
                if hi != base:
                    L.append(f's_add_u32 s{sT5}, s{sDST}, {hi}')
                    base = hi
                L.append(f'buffer_store_dwordx4 {vr(FR+4*k)}, v{vL16}, {srd(S_WS)}, s{sT5} offen offset:{lo} sc1')
            return L

        sJOB = sO + 4
        lA = [p.newlabel('jobA') for _ in range(4)]
        p(f's_mov_b32 s{sJOB}, 0')
        p.mark('maybe_begin')
        p(f's_cmp_eq_u32 s{sW}, 1')
        p(f's_cbranch_scc1 {lA[0]}')
        p(f's_cmp_ge_u32 s{sW}, 2')
        p(f's_cbranch_scc1 {lA[1]}')
        p(f's_cmp_ge_u32 s{sI}, 14')
        p(f's_cbranch_scc1 {lA[3]}')
        p(f'v_mul_u32_u24 v{vD}, 2688, v{t0}')
        p(f'v_add_u32 v{vD}, v{vD}, v{t1}')
        p(f's_mul_i32 s{sT0}, s{sI}, {32*2688}')
        p(f's_mul_i32 s{sT1}, s{sJ}, 56')
        p(f's_add_u32 s{sT0}, s{sT0}, s{sT1}')
        for tau in range(3):
            for hb in range(2):
                p.ext(self.dma(S_WQ, vD, sT0, (448, 896, 0)[tau] * 2 + hb * 16 * 2688, (sSTG, tau * 2048 + hb * 1024), 'raw'))
        p(f's_mul_i32 s{sDST}, s{sJ}, 86016')
        p(f's_lshl_b32 s{sT0}, s{sI}, 11')
        p(f's_add_u32 s{sDST}, s{sDST}, s{sT0}')
        p(f's_add_u32 s{sDST}, s{sDST}, {WQT}')
        p(f's_lshl_b32 s{sFL}, s{sJ}, 4')
        p(f's_add_u32 s{sFL}, s{sFL}, s{sI}')
        p(f's_lshl_b32 s{sFL}, s{sFL}, 3')
        p(f's_add_u32 s{sFL}, s{sFL}, {F_WQ}')
        p(f's_mov_b32 s{sJOB}, 1')
        p(f's_branch {lA[3]}')
        p.label(lA[0])
        p(f's_cmp_ge_u32 s{sI}, 14')
        p(f's_cbranch_scc1 {lA[3]}')
        p(f'v_bfe_u32 v{vD}, v{vL}, 1, 3')
        p(f'v_bfe_u32 v{t2}, v{vL}, 4, 1')
        p(f'v_lshl_add_u32 v{vD}, v{t2}, 4, v{vD}')
        p(f'v_bfe_u32 v{t2}, v{vL}, 5, 1')
        p(f'v_lshl_add_u32 v{vD}, v{t2}, 3, v{vD}')
        p(f'v_mul_u32_u24 v{vD}, 3584, v{vD}')
        p(f'v_and_b32 v{t2}, 1, v{vL}')
        p(f'v_lshl_add_u32 v{vD}, v{t2}, 4, v{vD}')
        p(f's_mul_i32 s{sT0}, s{sI}, {32*3584}')
        p(f's_mul_i32 s{sT1}, s{sJ}, 224')
        p(f's_add_u32 s{sT0}, s{sT0}, s{sT1}')
        for t in range(7):
            p.ext(self.dma(S_W1, vD, sT0, t * 32, (sSTG, t * 1024), 'raw'))
        p(f'v_lshl_add_u32 v{vTR}, v{t0}, 5, v{t3}')
        p(f'v_add_u32 v{vTR}, s{sSTG}, v{vTR}')
        p(f's_mul_i32 s{sDST}, s{sJ}, 100352')
        p(f's_add_u32 s{sDST}, s{sDST}, {W1T}')
        p(f's_mul_i32 s{sDST2}, s{sI}, 3072')
        p(f's_add_u32 s{sDST2}, s{sDST2}, s{sDST}')
        p(f's_add_u32 s{sDST2}, s{sDST2}, 57344')
        p(f's_lshl_b32 s{sT0}, s{sI}, 12')
        p(f's_add_u32 s{sDST}, s{sDST}, s{sT0}')
        p(f's_lshl_b32 s{sFL}, s{sJ}, 4')
        p(f's_add_u32 s{sFL}, s{sFL}, s{sI}')
        p(f's_lshl_b32 s{sFL}, s{sFL}, 3')
        p(f's_add_u32 s{sFL}, s{sFL}, {F_W1}')
        p(f's_mov_b32 s{sJOB}, 2')
        p(f's_branch {lA[3]}')
        p.label(lA[1])
        p(f'v_mul_u32_u24 v{vD}, 896, v{t0}')
        p(f'v_add_u32 v{vD}, v{vD}, v{t1}')
        p(f's_cmp_ge_u32 s{sM}, 28')
        p(f's_cbranch_scc1 {lA[2]}')
        sI2, sSL, sHF = sT2, sT3, sT4
        p(f's_lshl_b32 s{sI2}, s{sTEAM}, 2')
        p(f's_add_u32 s{sI2}, s{sI2}, s{sRB}')
        p(f's_lshr_b32 s{sSL}, s{sI2}, 1')
        p(f's_and_b32 s{sHF}, s{sI2}, 1')
        p(f's_mul_i32 s{sT0}, s{sSL}, {112*896}')
        p(f's_mul_i32 s{sT1}, s{sHF}, {64*896}')
        p(f's_add_u32 s{sT0}, s{sT0}, s{sT1}')
        p(f's_lshl_b32 s{sT1}, s{sCB}, 7')
        p(f's_add_u32 s{sT0}, s{sT0}, s{sT1}')
        p(f's_lshl_b32 s{sT1}, s{sNU}, 6')
        p(f's_add_u32 s{sT0}, s{sT0}, s{sT1}')
        for k in range(4):
            p.ext(self.dma(S_W2, vD, sT0, k * 16 * 896, (sSTG, k * 1024), 'raw'))
        p(f's_mul_i32 s{sDST}, s{sCB}, 229376')
        p(f's_mul_i32 s{sT0}, s{sSL}, 14336')
        p(f's_add_u32 s{sDST}, s{sDST}, s{sT0}')
        p(f's_lshl_b32 s{sT0}, s{sHF}, 13')
        p(f's_add_u32 s{sDST}, s{sDST}, s{sT0}')
        p(f's_lshl_b32 s{sT0}, s{sNU}, 10')
        p(f's_add_u32 s{sDST}, s{sDST}, s{sT0}')
        p(f's_add_u32 s{sDST}, s{sDST}, {W2T}')
        p(f's_lshl_b32 s{sFL}, s{sCB}, 5')
        p(f's_add_u32 s{sFL}, s{sFL}, s{sI2}')
        p(f's_lshl_b32 s{sFL}, s{sFL}, 1')
        p(f's_add_u32 s{sFL}, s{sFL}, s{sNU}')
        p(f's_lshl_b32 s{sFL}, s{sFL}, 3')
        p(f's_add_u32 s{sFL}, s{sFL}, {F_W2}')
        p(f's_add_u32 s{sJOB}, s{sHF}, 3')
        p(f's_branch {lA[3]}')
        p.label(lA[2])
        p(f's_cmp_eq_u32 s{sTEAM}, 7')
        p(f's_cbranch_scc1 {lA[3]}')
        p(f's_mul_i32 s{sT0}, s{sCB}, {112*896}')
        p(f's_lshl_b32 s{sT1}, s{sTEAM}, 7')
        p(f's_add_u32 s{sT0}, s{sT0}, s{sT1}')
        p(f's_lshl_b32 s{sT1}, s{sNU}, 6')
        p(f's_add_u32 s{sT0}, s{sT0}, s{sT1}')
        for k in range(8):
            p.ext(self.dma(S_WO, vD, sT0, k * 16 * 896, (sSTG, k * 1024), 'raw'))
        p(f's_lshl_b32 s{sFL}, s{sTEAM}, 2')
        p(f's_add_u32 s{sFL}, s{sFL}, s{sCB}')
        p(f's_lshl_b32 s{sDST}, s{sFL}, 14')
        p(f's_lshl_b32 s{sT0}, s{sNU}, 10')
        p(f's_add_u32 s{sDST}, s{sDST}, s{sT0}')
        p(f's_add_u32 s{sDST}, s{sDST}, {WOT}')
        p(f's_lshl_b32 s{sFL}, s{sFL}, 1')
        p(f's_add_u32 s{sFL}, s{sFL}, s{sNU}')
        p(f's_lshl_b32 s{sFL}, s{sFL}, 3')
        p(f's_add_u32 s{sFL}, s{sFL}, {F_WO}')
        p(f's_mov_b32 s{sJOB}, 5')
        p.mark('maybe_end')
        p.label(lA[3])
        self.stamp('jA')
        p(f'v_mul_u32_u24 v{vDQ}, 2688, v{t0}')
        p(f'v_add_u32 v{vDQ}, v{vDQ}, v{t1}')
        p(f's_mul_i32 s{sRQ}, s{sW}, {7*16*2688}')
        p(f's_mul_i32 s{sT1}, s{sJ}, 56')
        p(f's_add_u32 s{sRQ}, s{sRQ}, s{sT1}')
        p(f's_mul_i32 s{sLQ}, s{sW}, 7168')
        p(f'v_add_u32 v{vTQ}, s{sLQ}, v{vTQ}')
        p(f'v_add_u32 v{vWQ}, s{sLQ}, v{vL16}')
        p(f's_mov_b32 s{sHI}, 0')
        p(f's_mov_b32 s{sHI+1}, -1')
        p(f's_mov_b32 s{sPERM}, 0x07060302')
        p(f's_mov_b32 s{sONES}, 0x3f803f80')
        p(f's_mov_b32 s{sPURE}, 1')
        p(f'v_lshlrev_b32 v{vL8}, 3, v{vL}')
        p.ext(self.pub_offsets(O_XA, O_STA, O_FXA))
        self.lane_consts()
        p('s_waitcnt vmcnt(0) lgkmcnt(0)')
        self.stamp('rt1')
        p(f's_add_u32 s{sF}, s{sF}, 1')
        p(f's_addc_u32 s{sF+1}, s{sF+1}, 0')
        p(f'v_mov_b32 v{vF}, s{sF}')
        p(f'v_mov_b32 v{vF+1}, s{sF+1}')
        for i in range(3):
            rawq(0, i)
        lp0 = p.newlabel('p0skip')
        p(f's_cmp_ge_u32 s{sM}, 28')
        p(f's_cbranch_scc1 {lp0}')
        p.mark('maybe_begin')
        self.x_store(XR, vL16, (0, 1024), 'sc1')
        p.mark('maybe_end')
        p.label(lp0)
        p.mark('maybe_begin')
        lB = {k: p.newlabel('jobB') for k in (2, 3, 4, 5, 'join')}
        for k in (2, 3, 4, 5):
            p(f's_cmp_eq_u32 s{sJOB}, {k}')
            p(f's_cbranch_scc1 {lB[k]}')
        p(f's_cmp_eq_u32 s{sJOB}, 0')
        p(f's_cbranch_scc1 {lB["join"]}')
        for tau in range(3):
            for kp in range(2):
                for jj in range(2):
                    p(f'ds_read_b64_tr_b16 {vr(FR+(tau*2+kp)*4+2*jj,2)}, v{vTR} offset:{tau*2048+(16*kp+8*jj)*64}')
        p.ext(finish(6, [tau * 28672 + kp * 1024 for tau in range(3) for kp in range(2)]))
        p(f's_branch {lB["join"]}')
        p.label(lB[2])
        for t in range(7):
            for jj in range(2):
                p(f'ds_read_b64_tr_b16 {vr(FR+t*4+2*jj,2)}, v{vTR} offset:{t*1024+jj*512}')
        p.ext(finish(4, [t * 1024 for t in range(4)]))
        for t in range(4, 7):
            p(f'buffer_store_dwordx4 {vr(FR+4*t)}, v{vL16}, {srd(S_WS)}, s{sDST2} offen offset:{(t-4)*1024} sc1')
        p(f's_branch {lB["join"]}')
        p.label(lB[3])
        for sg in range(4):
            for jj in range(2):
                p(f'ds_read_b64_tr_b16 {vr(FR+sg*4+2*jj,2)}, v{vTR} offset:{(32*(sg//2)+16*jj+8*(sg%2))*64}')
        p.ext(finish(4, [k * 2048 for k in range(4)]))
        p(f's_branch {lB["join"]}')
        p.label(lB[4])
        for sg in range(2):
            for jj in range(2):
                p(f'ds_read_b64_tr_b16 {vr(FR+sg*4+2*jj,2)}, v{vTR} offset:{(16*jj+8*sg)*64}')
        for jj in range(2):
            p(f'ds_read_b64_tr_b16 {vr(FR+8+2*jj,2)}, v{vTR8} offset:{(32+4*jj)*64}')
        p.ext(finish(3, [k * 2048 for k in range(3)]))
        p(f's_branch {lB["join"]}')
        p.label(lB[5])
        for hd in range(4):
            for kp in range(2):
                for jj in range(2):
                    p(f'ds_read_b64_tr_b16 {vr(FR+(hd*2+kp)*4+2*jj,2)}, v{vTR} offset:{(28*hd+16*kp+8*jj)*64}')
        p('s_waitcnt lgkmcnt(0)')
        p('s_mov_b32 exec_lo, 0')
        for hd in range(4):
            p(f'v_mov_b32 v{FR+(hd*2+1)*4+2}, 0')
            p(f'v_mov_b32 v{FR+(hd*2+1)*4+3}, 0')
        p('s_mov_b64 exec, -1')
        p.ext(finish(8, [k * 2048 for k in range(8)]))
        p.mark('maybe_end')
        p.label(lB['join'])
        p(f's_getreg_b32 s{sT0}, hwreg(HW_REG_XCC_ID)')
        p(f's_and_b32 s{sT0}, s{sT0}, 15')
        p(f's_lshl_b32 s{sT0}, s{sT0}, 28')
        p(f's_xor_b32 s{sT0}, s{sT0}, s{sF+1}')
        p(f'v_mov_b32 v{t2}, s{sF}')
        p(f'v_mov_b32 v{t3}, s{sT0}')
        p(f's_lshl_b32 s{sT1}, s{sTEAM}, 8')
        p(f's_lshl_b32 s{sT2}, s{sM}, 3')
        p(f's_add_u32 s{sT1}, s{sT1}, s{sT2}')
        p(f's_add_u32 s{sT1}, s{sT1}, {WS_PUR}')
        p('s_mov_b64 exec, 1')
        p(f'buffer_store_dwordx2 {vr(t2,2)}, off, {srd(S_WS)}, s{sT1} sc1')
        p('s_mov_b64 exec, -1')
        self.stamp('jB')
        for i in range(3, 7):
            rawq(0, i)
        for i in range(7):
            rawq(1, i)
        p(f's_cmp_eq_u32 s{sJOB}, 0')
        p(f's_cselect_b32 s{sFL}, {WS_PUR + 0x800}, s{sFL}')
        p(f's_cmp_ge_u32 s{sM}, 28')
        p(f's_cselect_b32 s{sXF}, {WS_PUR + 0x800}, s{sXF}')
        p('s_waitcnt vmcnt(11)')
        p('s_mov_b64 exec, 1')
        p(f'buffer_store_dwordx2 {vr(vF,2)}, off, {srd(S_WS)}, s{sXF} sc1')
        p(f'buffer_store_dwordx2 {vr(vF,2)}, off, {srd(S_WS)}, s{sFL} sc1')
        p('s_mov_b64 exec, -1')
        self.stamp('rq')
        xform(0, lambda i: rawq(2, i))
        self.stamp('xf0')
        self.walker_at = len(p.items)
        p.ext(self.res_unpack(XR))
        xform(1)
        xform(2)
        p('s_waitcnt lgkmcnt(0)')
        p('s_barrier')
        self.stamp('pro')

    def p1(self):
        p = self.p
        X, ACC, RING, CS = 32, 144, 192, 224
        accK, accV, accQ = ACC, ACC + 16, ACC + 32
        PK, PV = vT, vT + 8
        sXO, sST, sFX, sKV, sKF = sO, sO + 7, sO + 8, sO + 9, sO + 10
        p.ext(self.xoff(sXO, sTP, 28672, O_XA))
        for g in range(1, 7):
            p(f's_add_u32 s{sXO+g}, s{sXO}, {4096*g}')
        p.ext(self.off(sST, sTP, 3584, O_STA))
        p.ext(self.off(sFX, sTP, 128, O_FXA))
        p(f's_lshl_b32 s{sT0}, s{sJ}, 3')
        p(f's_add_u32 s{sT0}, s{sT0}, s{sTP}')
        p.ext(self.off(sKV, sT0, 4096, O_KV))
        p.ext(self.off(sKF, sT0, 128, O_FKV))
        p(f'v_lshrrev_b32 v{vCSA}, 5, v{vL}')
        p(f'v_lshlrev_b32 v{vCSA}, 4, v{vCSA}')
        p(f'v_add_u32 v{vCSA}, {L_CSQ}, v{vCSA}')

        def frag(f):
            if f < 56:
                base, off = vL16, (f % 2) * 28672 + (f // 2) * 1024
            else:
                base, off = vA1, (f - 56) * 1024
            return f'ds_read_b128 {vr(RING + 4*(f % 8))}, v{base} offset:{off}'

        def mf(f):
            acc, s = ((accK, accV)[f % 2], f // 2) if f < 56 else (accQ, f - 56)
            return f'{MF32} {vr(acc,16)}, {vr(RING+4*(f%8))}, {vr(X+4*s)}, {vr(acc,16) if s else 0}'

        def xl(s):
            return f'buffer_load_dwordx4 {vr(X+4*s)}, v{vL16}, {srd(S_WS)}, s{sXO + s//4} offen offset:{(s%4)*1024} sc1'
        self.stamp('p5')
        self.pad()
        self.vpoll(vL8, sFX, 14)
        self.stamp('E')
        XP = 8
        for s in range(XP):
            p(xl(s))

        def colsum():
            p(f's_min_u32 s{sT0}, s{sW}, 2')
            p(f's_mul_i32 s{sT0}, s{sT0}, 28672')
            p(f'v_add_u32 v{vT}, s{sT0}, v{vL16}')
            for i in range(4):
                p(f'v_mov_b32 v{vT+4+i}, s{sONES}')
            rd = lambda s: f'ds_read_b128 {vr(RING+4*(s%8))}, v{vT} offset:{s*1024}'
            for s in range(6):
                p(rd(s))
            for s in range(28):
                p(f'{MF32} {vr(accQ,16)}, {vr(vT+4)}, {vr(RING+4*(s%8))}, {vr(accQ,16) if s else 0}')
                if s + 6 < 28:
                    p(rd(s + 6))
            p(f's_lshl_b32 s{sT0}, s{sW}, 7')
            p(f's_add_u32 s{sT0}, s{sT0}, {L_CSQ}')
            p(f'v_and_b32 v{vT}, 31, v{vL}')
            p(f'v_lshlrev_b32 v{vT}, 2, v{vT}')
            p(f'v_add_u32 v{vT}, s{sT0}, v{vT}')
            p(f'ds_write_b32 v{vT}, v{accQ}')
            p('s_waitcnt lgkmcnt(0)')
            p('s_barrier')
        self.if_layer0(colsum)
        PD = 6
        for f in range(PD):
            p(frag(f))
        mem, pre = {}, {}
        for f in range(84):
            mem[f] = []
            if f + PD < 84:
                mem[f].append(frag(f + PD))
            if f < 56 and f % 2 == 0 and f // 2 + XP < 28:
                mem[f].append(xl(f // 2 + XP))
            if 33 <= f < 47 and f % 2 == 1:
                mem[f].append(self.stats_loads(sST, CS)[(f - 33) // 2])
            if f % 2 == 0:
                pre[f] = [Touch(vr(RING + 4 * (f % 8)) + ' ' + vr(RING + 4 * ((f + 1) % 8)) + (' ' + vr(X + 4 * (f // 2)) if f < 56 else ''))]

        def cs_reads(tau, dst):
            return [f'ds_read_b128 {vr(dst+4*q)}, v{vCSA} offset:{tau*128 + 32*q}' for q in range(4)]
        p.ext(sched([mf(f) for f in range(56)], pre, mem, cs_reads(1, accQ) + cs_reads(0, PK), 5, start=40))
        p.ext(self.stats_reduce(CS))
        self.stamp('kv')

        def epi(acc, cs, P):
            L = []
            for r in range(0, 16, 2):
                L.append(f'v_pk_fma_f32 {vr(acc+r,2)}, {vr(cs+r,2)}, {vr(vMEAN,2)}, {vr(acc+r,2)} op_sel:[0,0,0] op_sel_hi:[1,0,1]')
            for r in range(0, 16, 2):
                L.append(f'v_pk_mul_f32 {vr(acc+r,2)}, {vr(acc+r,2)}, {vr(vMEAN,2)} op_sel:[0,1] op_sel_hi:[1,1]')
                L.append(f'v_cvt_pk_bf16_f32 v{P+r//2}, v{acc+r}, v{acc+r+1}')
            return L

        def pad(P, c6, c7):
            return ['s_mov_b32 exec_lo, 0', f'v_mov_b32 v{P+6}, {c6:#x}', f'v_mov_b32 v{P+7}, {c7:#x}', 's_mov_b64 exec, -1']

        def st(P, o):
            return [Ins(f'buffer_store_dwordx4 {vr(P+4*k)}, v{vL16}, {srd(S_WS)}, s{sKV} offen offset:{o+1024*k} sc1', 'kvst') for k in range(2)]
        t0, t1 = CS, CS + 1
        p.ext(epi(accK, PK, PK) + pad(PK, 0x3f803f80, 0x3f80) + st(PK, 0))
        p.ext(epi(accV, accQ, PV) + pad(PV, 0x3f80, 0) + st(PV, 2048))
        self.stamp('kvs')
        side = [f's_lshl_b32 s{sT0}, s{sW}, 12', f's_add_u32 s{sT0}, s{sT0}, {LKV + 8*4096}',
                f'v_add_u32 v{t0}, s{sT0}, v{vL16}',
                f'ds_write_b128 v{t0}, {vr(PK)}', f'ds_write_b128 v{t0}, {vr(PK+4)} offset:1024',
                f'v_and_b32 v{t1}, 31, v{vL}', f'v_lshlrev_b32 v{t1}, 6, v{t1}', f'v_lshrrev_b32 v{t0}, 5, v{vL}',
                f'v_lshl_add_u32 v{t1}, v{t0}, 4, v{t1}', f'v_add_u32 v{t0}, s{sT0}, v{t1}',
                f'ds_write_b128 v{t0}, {vr(PV)} offset:2048', f'ds_write_b128 v{t0}, {vr(PV+4)} offset:{2048+32}',
                f'v_mul_f32 v{vRSTD}, {f32bits(28 ** -0.5 * math.log2(math.e)):#x}, v{vRSTD}'] + cs_reads(2, CS)
        pre2 = {f - 56: v for f, v in pre.items() if f >= 56}
        mem2 = {f - 56: v for f, v in mem.items() if f >= 56}
        p.ext(sched([mf(f) for f in range(56, 84)], pre2, mem2, side, 4, start=0))
        p.wait('kvst')
        p.ext(self.flag_sc1(sKF))
        self.stamp('q')
        QF = 200
        p.ext(epi(accQ, CS, QF))
        p.ext(pad(QF, 0, 0x3f800000))
        self.pad()
        p('s_barrier')
        self.stamp('p1')

    def attn(self):
        p = self.p
        KF, ST, MW, MD, OA, QF, PB, VF = 32, 104, 152, 168, 184, 200, 208, 224
        t0, t1 = 104, 105

        def first():
            p(f's_lshl_b32 s{sT0}, s{sJ}, 7')
            p(f's_add_u32 s{sT1}, s{sT0}, {F_WQ - 14*8}')
            p(f's_add_u32 s{sT0}, s{sT0}, {F_W1}')
            p(f's_lshl_b32 s{sT2}, s{sCB}, 6')
            p(f's_add_u32 s{sT2}, s{sT2}, {F_WO - 28*8}')
            p(f'v_mov_b32 v{t0}, s{sT0}')
            for lim, r in ((14, sT1), (28, sT2)):
                p(f'v_mov_b32 v{t1}, s{r}')
                p(f'v_cmp_le_u32 vcc, {lim}, v{vL}')
                p(f'v_cndmask_b32 v{t0}, v{t0}, v{t1}, vcc')
            p(f'v_min_u32 v{t1}, {35*8}, v{vL8}')
            p(f'v_add_u32 v{t0}, v{t0}, v{t1}')
            p(f'v_and_b32 v{t1}, {31*8}, v{vL8}')
            p(f's_lshl_b32 s{sT1}, s{sCB}, 9')
            p(f's_add_u32 s{sT1}, s{sT1}, {F_W2}')
            p(f's_lshl_b32 s{sT3}, s{sTEAM}, 8')
            p(f's_add_u32 s{sT3}, s{sT3}, {WS_PUR}')
            lp, lo = p.newlabel('pur'), p.newlabel('purout')
            p(f's_mov_b32 s{sCNT}, 0')
            p.label(lp)
            p(f'buffer_load_dwordx2 {vr(106,2)}, v{t0}, {srd(S_WS)}, 0 offen sc1')
            p(f'buffer_load_dwordx2 {vr(108,2)}, v{vL8}, {srd(S_WS)}, s{sT1} offen sc1')
            p(f'buffer_load_dwordx2 {vr(110,2)}, v{t1}, {srd(S_WS)}, s{sT3} offen sc1')
            p(f's_add_u32 s{sCNT}, s{sCNT}, 1')
            p(f's_cmp_gt_u32 s{sCNT}, {POLL_MAX}')
            p(f's_cbranch_scc1 {lo}')
            p('s_waitcnt vmcnt(0)')
            p(f'v_cmp_ne_u64 s[{sPOLL}:{sPOLL+1}], s[{sF}:{sF+1}], {vr(106,2)}')
            p(f'v_cmp_ne_u64 s[{sPOLL+2}:{sPOLL+3}], s[{sF}:{sF+1}], {vr(108,2)}')
            p(f'v_xor_b32 v111, s{sF+1}, v111')
            p(f'v_xor_b32 v110, s{sF}, v110')
            p(f'v_and_b32 v108, 0x0fffffff, v111')
            p(f'v_or_b32 v110, v110, v108')
            p(f'v_cmp_ne_u32 vcc, 0, v110')
            p(f's_or_b64 s[{sPOLL}:{sPOLL+1}], s[{sPOLL}:{sPOLL+1}], s[{sPOLL+2}:{sPOLL+3}]')
            p(f's_or_b64 vcc, vcc, s[{sPOLL}:{sPOLL+1}]')
            p(f's_cbranch_scc1 {lp}')
            p(f'v_readfirstlane_b32 s{sT1}, v111')
            p(f'v_cmp_ne_u32 vcc, s{sT1}, v111')
            p(f's_cmp_eq_u64 vcc, 0')
            p(f's_cselect_b32 s{sPURE}, {0 if os.environ.get("FORCE_IMPURE") else 1}, 0')
            p.label(lo)
            p('s_waitcnt vmcnt(0)')
        self.if_layer0(first)
        NK = 2
        sKD, sKL, sKFl, sNULL = sO + 8, sO + 11, sPOLL + 6, sT4
        sKFl = [sO + 14, sO + 15, sT3]
        p(f's_mov_b32 s{sNULL}, 0')
        for k in range(NK):
            p(f's_lshl_b32 s{sT0}, s{sW}, 1')
            p(f's_add_u32 s{sT0}, s{sT0}, {k}')
            p(f's_lshl_b32 s{sKL+k}, s{sT0}, 12')
            p(f's_add_u32 s{sKL+k}, s{sKL+k}, {LKV}')
            p(f's_lshl_b32 s{sT1}, s{sA}, 2')
            p(f's_add_u32 s{sT0}, s{sT0}, s{sT1}')
            p(f's_cmp_lt_u32 s{sT0}, 8')
            p(f's_cselect_b32 s{sT1}, {STRIDE}, 0')
            p(f's_sub_u32 s{sT1}, s{sLB}, s{sT1}')
            p(f's_and_b32 s{sT0}, s{sT0}, 7')
            p(f's_cmp_lt_i32 s{sT1}, {TEAM0}')
            p(f's_cselect_b32 s{sT2}, {1 << k}, 0')
            p(f's_cselect_b32 s{sT1}, s{sLB}, s{sT1}')
            p(f's_cselect_b32 s{sT0}, s{sTP}, s{sT0}')
            p(f's_or_b32 s{sNULL}, s{sNULL}, s{sT2}')
            p(f's_lshl_b32 s{sT2}, s{sJ}, 3')
            p(f's_add_u32 s{sT0}, s{sT0}, s{sT2}')
            p(f's_lshl_b32 s{sKD+k}, s{sT0}, 12')
            p(f's_add_u32 s{sKD+k}, s{sKD+k}, s{sT1}')
            p(f's_lshl_b32 s{sT0}, s{sT0}, 7')
            p(f's_add_u32 s{sT0}, s{sT0}, s{sT1}')
            p(f's_add_u32 s{sKFl[k]}, s{sT0}, {O_FKV}')
        p(f'v_bfe_u32 v{t0}, v{vL}, 1, 1')
        p(f'v_lshlrev_b32 v{t0}, 10, v{t0}')
        p(f'v_and_b32 v{t1}, 1, v{vL}')
        p(f'v_lshl_add_u32 v{t0}, v{t1}, 9, v{t0}')
        p(f'v_lshrrev_b32 v{t1}, 2, v{vL}')
        p(f'v_lshl_add_u32 v{t0}, v{t1}, 4, v{t0}')
        lp, lo = p.newlabel('kvpoll'), p.newlabel('kvpollout')
        self.stamp('w1')
        p('s_waitcnt lgkmcnt(0)')
        p(f's_mov_b32 s{sCNT}, 0')
        p.label(lp)
        for k in range(NK):
            p(f's_load_dwordx2 s[{sPOLL+2*k}:{sPOLL+2*k+1}], s[{S_WSP}:{S_WSP+1}], s{sKFl[k]} glc')
        p(f's_add_u32 s{sCNT}, s{sCNT}, 1')
        p(f's_cmp_gt_u32 s{sCNT}, {POLL_MAX}')
        p(f's_cbranch_scc1 {lo}')
        p('s_waitcnt lgkmcnt(0)')
        for k in range(NK):
            p(f's_cmp_eq_u64 s[{sPOLL+2*k}:{sPOLL+2*k+1}], s[{sF}:{sF+1}]')
            p(f's_cbranch_scc0 {lp}')
        p.label(lo)
        self.stamp('kvf')
        for k in range(NK):
            lnull, lb = p.newlabel('null'), p.newlabel('nullback')
            p(f's_bitcmp1_b32 s{sNULL}, {k}')
            p(f's_cbranch_scc1 {lnull}')
            p(f's_mov_b32 m0, s{sKL+k}')
            p(f's_sub_u32 s{sT5}, s{sKD+k}, 768')
            p(f'buffer_load_dwordx4 v{vL16}, {srd(S_WS)}, s{sKD+k} offen sc1 lds')
            p(f'buffer_load_dwordx4 v{vL16}, {srd(S_WS)}, s{sKD+k} offen offset:1024 sc1 lds')
            p(f'buffer_load_dwordx4 v{t0}, {srd(S_WS)}, s{sKD+k} offen offset:2048 sc1 lds')
            p(f'buffer_load_dwordx4 v{t0}, {srd(S_WS)}, s{sT5} offen offset:3072 sc1 lds')
            p.label(lb)
            self.tail.append((lnull, [
                f'v_add_u32 v{t1}, s{sKL+k}, v{vL16}',
                'v_mov_b32 v108, 0', 'v_mov_b32 v109, 0', 'v_mov_b32 v110, 0', 'v_mov_b32 v111, 0'] +
                [f'ds_write_b128 v{t1}, v[108:111] offset:{o}' for o in (0, 2048, 3072)] +
                ['s_mov_b32 exec_lo, 0', 'v_mov_b32 v111, 0xf1490000', 's_mov_b64 exec, -1',
                 f'ds_write_b128 v{t1}, v[108:111] offset:1024', f's_branch {lb}']))
        t2, t3 = 106, 107
        p(f'v_and_b32 v{t2}, 31, v{vL}')
        p(f'v_lshrrev_b32 v{t3}, 5, v{vL}')
        p(f'v_lshlrev_b32 v{t3}, 2, v{t3}')
        p(f'v_sub_u32 v{t2}, v{t2}, v{t3}')
        p(f'v_mov_b32 v{t3}, {f32bits(-1e30):#x}')
        for r in range(0, 16, 2):
            k0, k1 = 8 * (r // 4) + r % 4, 8 * (r // 4) + r % 4 + 1
            p(f'v_cmp_le_i32 vcc, {k0}, v{t2}')
            p(f'v_cmp_le_i32 s[{sPOLL}:{sPOLL+1}], {k1}, v{t2}')
            p('s_nop 0')
            p(f'v_cndmask_b32_e64 v{MD+r}, v{t3}, 0, vcc')
            p(f'v_cndmask_b32_e64 v{MD+r+1}, v{t3}, 0, s[{sPOLL}:{sPOLL+1}]')
            p(f'v_cndmask_b32_e64 v{MW+r}, 0, v{t3}, vcc')
            p(f'v_cndmask_b32_e64 v{MW+r+1}, 0, v{t3}, s[{sPOLL}:{sPOLL+1}]')
        vKA, vVA = vT, vT + 1
        p(f's_lshl_b32 s{sT0}, s{sW}, 12')
        p(f's_add_u32 s{sT0}, s{sT0}, {LKV}')
        p(f'v_add_u32 v{vKA}, s{sT0}, v{vL16}')
        p(f'v_lshrrev_b32 v{t2}, 5, v{vL}')
        p(f'v_bfe_u32 v{t3}, v{vL}, 2, 2')
        p(f'v_lshl_add_u32 v{t2}, v{t2}, 2, v{t3}')
        p(f'v_lshlrev_b32 v{vVA}, 6, v{t2}')
        p(f'v_bfe_u32 v{t2}, v{vL}, 4, 1')
        p(f'v_lshl_add_u32 v{vVA}, v{t2}, 5, v{vVA}')
        p(f'v_and_b32 v{t2}, 1, v{vL}')
        p(f'v_lshl_add_u32 v{vVA}, v{t2}, 4, v{vVA}')
        p(f'v_bfe_u32 v{t2}, v{vL}, 1, 1')
        p(f'v_lshl_add_u32 v{vVA}, v{t2}, 3, v{vVA}')
        p(f'v_add_u32 v{vVA}, s{sT0}, v{vVA}')
        sOD, sOF, sWO = sO, sO + 1, sO + 2
        p(f's_lshl_b32 s{sT0}, s{sTP}, 4')
        p(f's_add_u32 s{sT0}, s{sT0}, s{sJ}')
        p.ext(self.roff(sOD, sT0, 2048, O_O))
        p.ext(self.off(sOF, sT0, 8, O_FO))
        p(f's_lshl_b32 s{sWO}, s{sCB}, 2')
        p(f's_add_u32 s{sWO}, s{sWO}, s{sW}')
        p(f's_lshl_b32 s{sWO}, s{sWO}, 14')
        p(f's_add_u32 s{sWO}, s{sWO}, {WOT}')
        for g in range(1, 4):
            p(f's_add_u32 s{sWO+g}, s{sWO}, {4096*g}')
        vPT = vT + 12
        p(f'v_lshlrev_b32 v{vPT}, 7, v{vL}')
        p(f'v_add_u32 v{vPT}, s{sOD}, v{vPT}')
        p(f's_lshl_b32 s{sT0}, s{sTP}, 7')
        p(f's_lshl_b32 s{sT1}, s{sRB}, 8')
        p(f's_lshl_b32 s{sT2}, s{sRHO}, 7')
        p(f's_add_u32 s{sT2}, s{sT2}, s{sT1}')
        p(f's_mul_i32 s{sT3}, s{sT2}, 28')
        p(f's_lshl_b32 s{sT4}, s{sCB}, 9')
        p(f's_add_u32 s{sT3}, s{sT3}, s{sT4}')
        p(f's_lshl_b32 s{sT4}, s{sNU}, 8')
        p(f's_add_u32 s{sT3}, s{sT3}, s{sT4}')
        for lane, (r, c) in enumerate([(sT0, O_FO), (sT1, O_FO), (sT1, O_FO + 128), (sT0, O_FX1), (sT2, O_FX1),
                                       (sT3, O_ST1), (sT3, O_ST1 + 128), (sT0, O_FH), (sT1, O_FH), (sT1, O_FH + 128),
                                       (sT3, LSTRIDE + O_STA), (sT3, LSTRIDE + O_STA + 128), (sT2, LSTRIDE + O_FXA),
                                       (sT0, LSTRIDE + O_FXA)]):
            p(f's_add_u32 s{sT4}, s{r}, {c}')
            p(f's_add_u32 s{sT4}, s{sT4}, s{sLB}')
            p(f'v_writelane_b32 v{vPT}, s{sT4}, {16 + lane}')
        p(f'v_cmp_lt_u32 vcc, 29, v{vL}')
        p(f'v_mov_b32 v{t2}, s{sT4}')
        p(f'v_cndmask_b32 v{vPT}, v{vPT}, v{t2}, vcc')
        vZ = vT + 8
        p(f's_lshl_b32 s{sT0}, s{sNU}, 10')
        p(f'v_xor_b32 v{vZ}, s{sT0}, v{vL16}')
        p(f'v_xor_b32 v{vZ+1}, 1024, v{vZ}')
        self.pad()
        p('s_waitcnt vmcnt(0) lgkmcnt(0)')
        self.stamp('kvd')
        p('s_barrier')
        self.stamp('A')
        p(f'v_lshlrev_b32 v{t0}, 7, v{vL}')
        p(f's_lshl_b32 s{sT0}, s{sCB}, 2')
        p(f's_add_u32 s{sT0}, s{sT0}, s{sRB}')
        p(f's_lshl_b32 s{sT1}, s{sT0}, 14')
        p(f's_lshl_b32 s{sT2}, s{sW}, 12')
        p(f's_add_u32 s{sT1}, s{sT1}, s{sT2}')
        p(f's_add_u32 s{sT1}, s{sT1}, {WOT}')
        p('s_mov_b32 exec_hi, 0')
        p(f'buffer_load_dword v31, v{t0}, {srd(S_WS)}, s{sT1} offen sc1')
        p('s_mov_b64 exec, -1')
        p(f'buffer_load_dword v31, v{vPT}, {srd(S_WS)}, 0 offen sc1')
        bg = self.w1_dma(0)

        def kread(t):
            return [f'ds_read_b128 {vr(KF+8*t+4*k)}, v{vKA} offset:{t*4096+k*1024}' for k in range(2)]

        def qk(t):
            s = ST + 16 * (t % 3)
            c = vr(MW, 16) if t == 0 else vr(MD, 16) if t == 8 else '0'
            return [f'{MF32} {vr(s,16)}, {vr(KF+8*t)}, {vr(QF)}, {c}',
                    f'{MF32} {vr(s,16)}, {vr(KF+8*t+4)}, {vr(QF+4)}, {vr(s,16)}']
        vM, vM2 = vT + 2, vT + 3

        def mx(t):
            s = ST + 16 * (t % 3)
            L = []
            for i in range(8):
                d = vM if i % 2 == 0 else vM2
                if t == 0 and i < 2:
                    L.append(f'v_max_f32 v{d}, v{s+2*i}, v{s+2*i+1}')
                else:
                    L.append(f'v_max3_f32 v{d}, v{s+2*i}, v{s+2*i+1}, v{d}')
            return L

        def vread(t):
            d = VF + 8 * (t % 2)
            return [f'ds_read_b64_tr_b16 {vr(d+4*kv+2*jj,2)}, v{vVA} offset:{t*4096+2048+(16*kv+8*jj)*64}'
                    for kv in range(2) for jj in range(2)]
        def popbg():
            L = []
            while bg:
                x = bg.pop(0)
                L.append(x)
                if is_mem(x):
                    break
            return L
        for t in range(4):
            p.ext(kread(t))
        q = qk(0)
        p.ext([q[0]] + kread(4) + [q[1]] + kread(5))
        q = qk(1)
        p.ext([q[0]] + kread(6) + [q[1]] + kread(7))
        for t in range(9):
            m = mx(t)
            if t + 2 < 9:
                q = qk(t + 2)
                extra = kread(8) if t == 0 else vread(0)[:2] if t == 5 else vread(0)[2:] if t == 6 else []
                if t % 2 == 1:
                    extra = extra + popbg()
                p.ext([q[0]] + extra + m[:4] + [q[1]] + m[4:])
            else:
                p.ext(m)
        self.stamp('a1')
        a, b2, r1 = vT + 4, vT + 5, vT + 6
        p(f'v_max_f32 v{vM}, v{vM}, v{vM2}')
        p(f'v_mov_b32 v{a}, v{vM}')
        p(f'v_permlane32_swap_b32 v{vM}, v{a}')
        p(f'v_max_f32 v{vM}, v{vM}, v{a}')
        p(f'v_xor_b32 v{vM}, 0x80000000, v{vM}')
        p(f'v_and_b32 v{a}, 0xffff0000, v{vM}')
        p(f'v_sub_f32 v{r1}, v{vM}, v{a}')
        p(f'v_and_b32 v{a}, 0xffff0000, v{r1}')
        p(f'v_sub_f32 v{b2}, v{r1}, v{a}')
        p('s_mov_b32 exec_lo, 0')
        p(f'v_perm_b32 v{QF+6}, v{r1}, v{vM}, s{sPERM}')
        p(f'v_perm_b32 v{QF+7}, 1.0, v{b2}, s{sPERM}')
        p('s_mov_b64 exec, -1')

        def ex(t):
            s = ST + 16 * (t % 3)
            pb = PB + 8 * (t % 2)
            L = []
            for i in range(8):
                L.append(f'v_exp_f32 v{s+2*i}, v{s+2*i}')
                L.append(f'v_exp_f32 v{s+2*i+1}, v{s+2*i+1}')
                if i:
                    L.append(f'v_cvt_pk_bf16_f32 v{pb+i-1}, v{s+2*i-2}, v{s+2*i-1}')
            L.append(f'v_cvt_pk_bf16_f32 v{pb+7}, v{s+14}, v{s+15}')
            return L

        def pv(t):
            d = VF + 8 * (t % 2)
            pb = PB + 8 * (t % 2)
            return [f'{MF32} {vr(OA,16)}, {vr(d)}, {vr(pb)}, {vr(OA,16) if t else 0}',
                    f'{MF32} {vr(OA,16)}, {vr(d+4)}, {vr(pb+4)}, {vr(OA,16)}']

        self.pad()

        def wol(i):
            ks, z = i // 2, i % 2
            return f'buffer_load_dwordx4 {vr(32+4*i)}, v{vZ+z}, {srd(S_WS)}, s{sWO + ks//2} offen offset:{(ks%2)*2048} sc1'
        p.ext(qk(0))
        p.ext(qk(1))
        for t in range(9):
            e = ex(t)
            mf = (pv(t - 1) if t else []) + (qk(t + 2) if t + 2 < 9 else [])
            out = []
            pos = [2, 7, 12, 17]
            for i, x in enumerate(e):
                out.append(x)
                if i in pos and pos.index(i) < len(mf):
                    k = pos.index(i)
                    out.append(mf[k])
                    if t + 1 < 9:
                        if t == 0:
                            out += vread(1)[2 * k:2 * k + 2]
                        elif k in (1, 2):
                            out += vread(t + 1)[2 * (k - 1):2 * (k - 1) + 2]
                        elif t == 7 and k == 1:
                            pass
                    if t < 6 and k in (0, 3) or t == 0:
                        out += popbg()
                    if t >= 7:
                        out += [wol(8 * (t - 7) + 4 * k + q) for q in range(4)]
            if t == 7:
                out = out[:-3] + vread(8)[2:] + out[-3:]
            p.ext(out)
        assert not bg
        p.ext(pv(8))
        self.stamp('a2')
        p(f'v_mov_b32 v{a}, v{OA+12}')
        p(f'v_mov_b32 v{b2}, v{OA+12}')
        p(f'v_permlane32_swap_b32 v{a}, v{b2}')
        p(f'v_rcp_f32 v{b2}, v{b2}')
        for i in range(8):
            p(f'v_pk_mul_f32 {vr(OA+2*i,2)}, {vr(OA+2*i,2)}, {vr(a,2)} op_sel:[0,1] op_sel_hi:[1,1]')
            p(f'v_cvt_pk_bf16_f32 v{PB+i}, v{OA+2*i}, v{OA+2*i+1}')
            if i % 4 == 3:
                p(f'buffer_store_dwordx4 {vr(PB+i-3)}, v{vL16}, {srd(S_WS)}, s{sOD} offen offset:{(i//4)*1024}', tok='ost')
        self.publish(['ost'], sOF)
        self.stamp('att')

    def reduce_writes(self, ACC):
        return [Ins(f'ds_write_b128 v{vRW+x-1}, {vr(ACC+16*x+4*c)} offset:{c*1024}', 'rw') for x in range(1, 4) for c in range(4)]

    def reduce_finish(self, ACC, TMP):
        p = self.p
        p.wait('rw')
        self.pad()
        p('s_barrier')
        for c in range(4):
            for x in range(3):
                p(f'ds_read_b128 {vr(TMP+16*x+4*c)}, v{vRW+3} offset:{x*4096+c*1024}')
        for c in range(8):
            p(f'v_pk_add_f32 {vr(TMP+2*c,2)}, {vr(TMP+2*c,2)}, {vr(TMP+16+2*c,2)}')
            p(f'v_pk_add_f32 {vr(ACC+2*c,2)}, {vr(ACC+2*c,2)}, {vr(TMP+32+2*c,2)}')
            p(f'v_pk_add_f32 {vr(ACC+2*c,2)}, {vr(ACC+2*c,2)}, {vr(TMP+2*c,2)}')

    def yoffs(self, dst, mul, add):
        L = []
        for y in range(2):
            L += [f's_xor_b32 s{sT0}, s{sRHO}, {y}', f's_lshl_b32 s{sT1}, s{sRB}, 1', f's_add_u32 s{sT0}, s{sT0}, s{sT1}',
                  f's_lshl_b32 s{sT0}, s{sT0}, 2', f's_add_u32 s{sT0}, s{sT0}, s{sW}'] + self.roff(dst + y, sT0, mul, add)
        return L

    def p3(self):
        p = self.p
        WO, OF, ACC, RING = 32, 96, 160, 200

        def colsum():
            for i in range(4):
                p(f'v_mov_b32 v{vT+4+i}, s{sONES}')
            p(f's_lshl_b32 s{sT0}, s{sW}, 10')
            p(f'v_add_u32 v{vT}, s{sT0}, v{vL16}')
            p(f's_min_u32 s{sT0}, s{sT0}, 2048')
            p(f'v_add_u32 v{vT+1}, s{sT0}, v{vA1}')
            rd = lambda f: f'ds_read_b128 {vr(RING+4*(f%6))}, v{vT+f%2} offset:{(f//2)*(4096, 3072)[f%2]}'
            for f in range(5):
                p(rd(f))
            for f in range(28):
                a = ACC + 4 * (f % 2)
                p(f'{MF16} {vr(a)}, {vr(vT+4)}, {vr(RING+4*(f%6))}, {vr(a) if f > 1 else 0}')
                if f + 5 < 28:
                    p(rd(f + 5))
            p(f's_lshl_b32 s{sT0}, s{sW}, 6')
            p(f's_add_u32 s{sT0}, s{sT0}, {L_CS1}')
            p(f'v_and_b32 v{vT}, 15, v{vL}')
            p(f'v_lshlrev_b32 v{vT}, 2, v{vT}')
            p(f'v_add_u32 v{vT}, s{sT0}, v{vT}')
            p(f'ds_write_b32 v{vT}, v{ACC}')
            p(f'ds_write_b32 v{vT}, v{ACC+4} offset:256')
            p('s_waitcnt lgkmcnt(0)')
        self.colsum1 = colsum
        w1d = self.w1_dma(1)
        self.pad()
        p('s_barrier')
        ljoin, lidle = p.newlabel('p3join'), p.newlabel('p3idle')
        p(f's_cmp_ge_u32 s{sM}, 28')
        p(f's_cbranch_scc1 {lidle}')
        p.mark('maybe_begin')
        sFO, sY = sO, sO + 2
        p(f's_lshl_b32 s{sT0}, s{sRB}, 3')
        p(f's_add_u32 s{sT0}, s{sT0}, s{sW}')
        p.ext(self.off(sFO, sT0, 32, O_FO))
        p.ext(self.yoffs(sY, 8192, O_O))
        p(f's_add_u32 s{sY+2}, s{sY}, 4096')
        p(f's_add_u32 s{sY+3}, s{sY+1}, 4096')
        p.ext(self.pub_offsets(O_X1, O_ST1, O_FX1))
        self.vpoll(vFLG, sFO, 8)
        self.stamp('B')

        def ld(ks, y):
            return f'buffer_load_dwordx4 {vr(OF+(ks*2+y)*4)}, v{vL16}, {srd(S_WS)}, s{sY + 2*(ks//4) + y} offen offset:{(ks%4)*1024} sc1'

        def mf(ks, x):
            y, z = x >> 1, x & 1
            c = vr(ACC + 16 * x, 16) if ks else (vr(vRES, 16) if x == 0 else '0')
            return f'{MF32} {vr(ACC+16*x,16)}, {vr(WO+(ks*2+z)*4)}, {vr(OF+(ks*2+y)*4)}, {c}'
        for ks in range(5):
            for y in range(2):
                p(ld(ks, y))
        rest = list(w1d)
        for ks in range(8):
            for x in (1, 2, 3):
                p(mf(ks, x))
                if ks + 5 < 8 and x < 3:
                    p(ld(ks + 5, x - 1))
                elif ks >= 3 and rest:
                    y = rest.pop(0)
                    p.ext([y])
                    while rest and not is_mem(y):
                        y = rest.pop(0)
                        p.ext([y])
        assert not rest
        self.stamp('p3mm')
        p.ext(sched([mf(ks, 0) for ks in range(8)], {}, {}, self.reduce_writes(ACC), 2, start=2))
        self.stamp('p3rw')
        self.reduce_finish(ACC, 32)
        self.stamp('p3rd')
        P = 96
        for i in range(8):
            p(f'v_cvt_pk_bf16_f32 v{P+i}, v{ACC+2*i}, v{ACC+2*i+1}')
        self.x_store(P, vX1A, (0, 512))
        self.publish(['xst'], sXF)
        self.stamp('p3pub')
        p.ext(self.res_unpack(P))
        p.mark('maybe_end')
        p.label(ljoin)
        lq = p.newlabel('p3noq')
        vq = [f's_cmp_lg_u32 s{sLAYER}, 0', f's_cbranch_scc1 {ljoin}',
              f's_lshl_b32 s{sT0}, s{sCB}, 2', f's_add_u32 s{sT0}, s{sT0}, s{sW}',
              f's_lshl_b32 s{sT1}, s{sT0}, 7', f's_add_u32 s{sT1}, s{sT1}, {F_WQ}']
        self.idle3 = (lidle, w1d + vq, sT1, ljoin)
        self.pad()
        p('s_waitcnt vmcnt(0)')
        p('s_barrier')
        self.if_layer0(lambda: (self.colsum1(), p('s_barrier')))
        self.stamp('p3')

    def p4(self):
        p = self.p
        X, ACC, RING, CS = 32, 144, 200, 224
        sXO, sST, sFX, sH, sHF = sO, sO + 7, sO + 8, sO + 9, sO + 11
        self.if_layer0(lambda: p.ext(self.w2_loads(0, 12)))
        p.ext(self.xoff(sXO, sTP, 28672, O_X1))
        for g in range(1, 7):
            p(f's_add_u32 s{sXO+g}, s{sXO}, {4096*g}')
        p.ext(self.off(sST, sTP, 3584, O_ST1))
        p.ext(self.off(sFX, sTP, 128, O_FX1))
        p(f's_lshl_b32 s{sT0}, s{sTP}, 4')
        p(f's_add_u32 s{sT0}, s{sT0}, s{sJ}')
        p.ext(self.roff(sH, sT0, 7168, O_H))
        p(f's_add_u32 s{sH+1}, s{sH}, 4096')
        p.ext(self.off(sHF, sT0, 8, O_FH))
        vHA, vHB = vT + 1, vT + 2
        p.ext([f'v_lshrrev_b32 v{vCSA}, 4, v{vL}', f'v_lshlrev_b32 v{vCSA}, 4, v{vCSA}', f'v_add_u32 v{vCSA}, {L_CS1}, v{vCSA}',
               f'v_lshrrev_b32 v{vHA}, 5, v{vL}', f'v_lshlrev_b32 v{vHA}, 10, v{vHA}',
               f'v_bfe_u32 v{vHB}, v{vL}, 4, 1', f'v_lshl_add_u32 v{vHA}, v{vHB}, 9, v{vHA}',
               f'v_and_b32 v{vT+3}, 15, v{vL}', f'v_lshl_add_u32 v{vHA}, v{vT+3}, 4, v{vHA}',
               f'v_lshlrev_b32 v{vHB}, 3, v{vHB}', f'v_lshl_add_u32 v{vHB}, v{vT+3}, 4, v{vHB}',
               f'v_lshrrev_b32 v{vT+3}, 5, v{vL}', f'v_lshl_add_u32 v{vHB}, v{vT+3}, 9, v{vHB}'])
        seq = [(t, s) for s in range(14) for t in range(4)] + [(t, s) for s in range(14) for t in range(4, 7)]

        def frag(f):
            base, off = (vL16, f * 1024) if f < 56 else (vA1, (f - 56) * 1024)
            return f'ds_read_b128 {vr(RING + 4*(f % 6))}, v{base} offset:{off}'

        def mf(f, u):
            t, s = seq[f]
            return f'{MF16} {vr(ACC+8*t+4*u)}, {vr(RING+4*(f%6))}, {vr(X+4*(2*s+u))}, {vr(ACC+8*t+4*u) if s else 0}'

        def xl(i):
            return f'buffer_load_dwordx4 {vr(X+4*i)}, v{vL16}, {srd(S_WS)}, s{sXO + i//4} offen offset:{(i%4)*1024} sc1'
        PD = 4
        for f in range(PD):
            p(frag(f))
        self.pad()
        self.vpoll(vL8, sFX, 14)
        self.stamp('C')
        XP = 8
        for i in range(XP):
            p(xl(i))
        mem, pre = {}, {}
        for f in range(98):
            mem[2 * f] = [frag(f + PD)] if f + PD < 98 else []
            if f < 56 and f % 2 == 0 and f // 2 + XP < 28:
                mem[2 * f + 1] = [xl(f // 2 + XP)]
            if 27 <= f < 41 and f % 2 == 1:
                mem[2 * f + 1] = [self.stats_loads(sST, CS)[(f - 27) // 2]]
            if f % 2 == 0:
                tch = vr(RING + 4 * (f % 6)) + ' ' + vr(RING + 4 * ((f + 1) % 6))
                if f < 56 and f % 4 == 0:
                    tch += ' ' + vr(X + 8 * (f // 4), 8)
                pre[2 * f] = [Touch(tch)]
        mfs = [mf(f, u) for f in range(98) for u in range(2)]
        side = self.stats_reduce(CS) + [f'v_mov_b32 v{vRSTD}, v{vMEAN}', 's_nop 0', f'v_permlane16_swap_b32 v{vMEAN}, v{vRSTD}']
        p.ext(sched(mfs[:112], pre, mem, side, 2, start=92))
        self.stamp('p4g1')
        PO = vT + 4

        def epi(tiles, tok):
            L = []
            for t in tiles:
                L.append(f'ds_read_b128 {vr(CS+4*(t%4))}, v{vCSA} offset:{t*64}')
            pairs = [tiles[i:i + 2] for i in range(0, len(tiles), 2)]
            n = 0
            for pr in pairs:
                for u in range(2):
                    po = PO + 4 * (n % 3)
                    n += 1
                    mean = (vMEAN, vRSTD)[u]
                    for k, t in enumerate(pr):
                        a = ACC + 8 * t + 4 * u
                        for r in range(4):
                            L.append(f'v_fma_f32 v{a+r}, v{CS+4*(t%4)+r}, v{mean}, v{a+r}')
                        for r in range(2):
                            L.append(f'v_cvt_pk_bf16_f32 v{po+2*k+r}, v{a+2*r}, v{a+2*r+1}')
                        for r in range(2):
                            L.append(f'v_pk_max_i16 v{po+2*k+r}, v{po+2*k+r}, 0')
                    t = pr[0]
                    so, off = (sH, t * 1024) if t < 4 else (sH + 1, (t - 4) * 1024)
                    if len(pr) == 2:
                        L.append(Ins(f'buffer_store_dwordx4 {vr(po)}, v{vHA}, {srd(S_WS)}, s{so} offen offset:{off+u*256}', tok))
                    else:
                        L.append(Ins(f'buffer_store_dwordx2 {vr(po,2)}, v{vHB}, {srd(S_WS)}, s{so} offen offset:{off+u*256}', tok))
            return L
        pre2 = {i - 112: v for i, v in pre.items() if i >= 112}
        mem2 = {i - 112: v for i, v in mem.items() if i >= 112}
        self.pad()
        p('s_barrier')
        wq = self.wq_dma((0, 1), sXO)
        i = 1
        for x in wq:
            mem2.setdefault(i, []).append(x)
            if is_mem(x):
                i += 4
        p.ext(sched(mfs[112:], pre2, mem2, epi([0, 1, 2, 3], 'hst'), 2, start=0))
        self.stamp('p4g2')
        p.ext(epi([4, 5, 6], 'hst'))
        self.stamp('p4ep')
        self.publish(['hst'], sHF)
        self.pad()
        p('s_barrier')
        self.stamp('p4')

    def p5(self):
        p = self.p
        HR, ACC, CS = 32, 160, 224
        lskip, ljoin, llast = p.newlabel('p5skip'), p.newlabel('p5join'), p.newlabel('p5last')
        p(f's_cmp_ge_u32 s{sM}, 28')
        p(f's_cbranch_scc1 {lskip}')
        sFH, sST, sY = sO, sO + 1, sO + 2
        self.if_layer0(lambda: p.ext(self.w2_loads(12, 28)))
        p(f's_lshl_b32 s{sT0}, s{sRB}, 3')
        p(f's_add_u32 s{sT0}, s{sT0}, s{sW}')
        p.ext(self.off(sFH, sT0, 32, O_FH))
        p.ext(self.yoffs(sY, 28672, O_H))
        for g in range(1, 7):
            for y in range(2):
                p(f's_add_u32 s{sY+2*g+y}, s{sY+y}, {4096*g}')
        p(f's_lshl_b32 s{sT0}, s{sRB}, 1')
        p(f's_add_u32 s{sT0}, s{sT0}, s{sRHO}')
        p.ext(self.off(sST, sT0, 3584, O_ST1))
        p.ext(self.pub_offsets(O_XA + LSTRIDE, O_STA + LSTRIDE, O_FXA + LSTRIDE))
        self.pad()
        self.vpoll(vFLG, sFH, 8)
        self.stamp('D')
        NR = 16

        def ld(ks, y):
            return f'buffer_load_dwordx4 {vr(HR+((ks%NR)*2+y)*4)}, v{vL16}, {srd(S_WS)}, s{sY + 2*(ks//4) + y} offen offset:{(ks%4)*1024} sc1'

        def mf(ks, x):
            y, z = x >> 1, x & 1
            return f'{MF32} {vr(ACC+16*x,16)}, {ar(ks*8+z*4)}, {vr(HR+((ks%NR)*2+y)*4)}, {vr(ACC+16*x,16) if ks else 0}'
        PD = 5
        for ks in range(PD):
            p(ld(ks, 0))
            p(ld(ks, 1))
        TAIL = 14
        mfs, mem = [], {}
        bgl = self.stats_loads(sST, CS)
        for ks in range(28):
            xs = (0, 1, 2, 3) if ks < 28 - TAIL else (1, 2, 3)
            for n, x in enumerate(xs):
                i = len(mfs)
                mfs.append(mf(ks, x))
                if ks + PD < 28:
                    if n < 2:
                        mem[i] = [ld(ks + PD, n)]
                else:
                    mem[i] = []
                    while bgl:
                        y = bgl.pop(0)
                        mem[i].append(y)
                        if is_mem(y):
                            break
        p.ext(sched(mfs, {}, mem, [], 6))
        self.stamp('p5mm')
        sr = self.stats_reduce(CS)
        mem = {}
        for i, x in enumerate(self.reduce_writes(ACC)):
            mem.setdefault(2 + i, []).append(x)
        p.ext(sched([mf(ks, 0) for ks in range(28 - TAIL, 28)], {}, mem, bgl + sr, 5, start=0))
        self.stamp('p5rw')
        self.reduce_finish(ACC, 32)
        self.stamp('p5rd')
        P = 96
        for i in range(8):
            p(f'v_pk_fma_f32 {vr(ACC+2*i,2)}, {vr(ACC+2*i,2)}, {vr(vMEAN,2)}, {vr(vRES+2*i,2)} op_sel:[0,1,0] op_sel_hi:[1,1,1]')
            p(f'v_cvt_pk_bf16_f32 v{P+i}, v{ACC+2*i}, v{ACC+2*i+1}')
        p(f's_cmp_lg_u32 s{sLAYER}, 0')
        p(f's_cbranch_scc1 {llast}')
        self.x_store(P, vL16, (0, 1024))
        p.ext(self.wq_dma((2,)))
        self.publish(['xst'], sXF)
        self.stamp('p5pub')
        p.ext(self.res_unpack(P))
        p.label(ljoin)
        p('s_waitcnt vmcnt(0) lgkmcnt(0)')
        p('s_barrier')
        p(f's_mov_b32 s{sLAYER}, 1')
        p(f's_add_u32 s{sLB}, s{sLB}, {LSTRIDE}')
        p('s_branch L_layer')
        self.tail.append((lskip, [f's_cmp_lg_u32 s{sLAYER}, 0', 's_cbranch_scc1 L_fin'] + self.wq_dma((2,)) + [f's_branch {ljoin}']))
        p.label(llast, reset='all')
        p(f'v_and_b32 v{vT+4}, 31, v{vL}')
        p(f'v_mul_u32_u24 v{vT+4}, 896, v{vT+4}')
        p(f'v_lshrrev_b32 v{vT+5}, 5, v{vL}')
        p(f'v_lshl_add_u32 v{vT+4}, v{vT+5}, 4, v{vT+4}')
        for hf in range(2):
            p(f'v_permlane32_swap_b32 v{P+4*hf}, v{P+4*hf+2}')
            p(f'v_permlane32_swap_b32 v{P+4*hf+1}, v{P+4*hf+3}')
            p(f'buffer_store_dwordx4 {vr(P+4*hf)}, v{vT+4}, {srd(S_OUT)}, s{sQOFF} offen offset:{32*hf}')
        p('s_cmp_lg_u32 s2, %d' % (27 * 8 + 7))
        p('s_cbranch_scc1 L_fin')
        p(f's_mov_b32 s{sT0}, {WS_EPOCH}')
        p.ext(self.flag_sc1(sT0))

    def build(self):
        p = self.p
        self.prologue()
        p.label('L_layer', reset='all')
        for i, ph in enumerate(('p1', 'attn', 'p3', 'p4', 'p5')):
            getattr(self, ph)()
            if self.stop is not None and i + 1 >= self.stop:
                break
        p.label('L_fin')
        self.stamp('end')
        self.stamp_dump()
        p.label('L_end')
        p('s_endpgm')
        if hasattr(self, 'idle3'):
            lab, code, sfl, back = self.idle3
            p.label(lab, reset='all')
            p.ext(code)
            self.vpoll(vL8, sfl, 14, acquire=False)
            p(f'v_lshlrev_b32 v{vT}, 7, v{vL}')
            p(f's_mul_i32 s{sT1}, s{sT0}, 86016')
            p.ext(self.prefetch(vT, sT1, WQT, 86016))
            p(f's_branch {back}')
        for lab, code in self.tail:
            p.label(lab, reset='all')
            p.ext(code)
        p.label('L_codeend')
        self.emit_walker()
        p.insert_waits()
        probs = p.fix_hazards()
        for x in probs:
            print('branch hazard padded', x, file=sys.stderr)
        mx = p.maxregs()
        head = open(os.path.join(os.path.dirname(__file__), '..', 'cdna_kernels', NAME + '.s.ref')).read().split('\n')
        hdr = [l for l in head if l.startswith(';') and '@launch' not in l]
        out = '\n'.join(hdr) + f'\n; @launch grid=(256,1,1) block=(256,1,1) lds={LDS_BYTES}\n'
        out += '.amdgcn_target "amdgcn-amd-amdhsa--gfx950"\n.text\n'
        out += f'.globl {NAME}_kernel\n.p2align 8\n.type {NAME}_kernel,@function\n{NAME}_kernel:\n'
        out += p.text()
        out += '.fill 64, 4, 0xbf800000\n'
        out += f'''.section .rodata,"a"
.p2align 6
.amdhsa_kernel {NAME}_kernel
  .amdhsa_next_free_vgpr 512
  .amdhsa_next_free_sgpr 102
  .amdhsa_accum_offset 256
  .amdhsa_group_segment_fixed_size 0
  .amdhsa_kernarg_size 72
  .amdhsa_user_sgpr_count 2
  .amdhsa_user_sgpr_kernarg_segment_ptr 1
  .amdhsa_system_sgpr_workgroup_id_x 1
  .amdhsa_float_denorm_mode_32 3
.end_amdhsa_kernel
'''
        print('regs', mx, 'instrs', sum(1 for x in p.items if isinstance(x, Ins)), file=sys.stderr)
        return out


if __name__ == '__main__':
    stop = int(sys.argv[2]) if len(sys.argv) > 2 else None
    k = K(stop if stop and stop > 0 else None, dbg=sys.argv[3].split(',') if len(sys.argv) > 3 else None)
    open(sys.argv[1], 'w').write(k.build())
    if k.dbg:
        open(os.path.join(os.path.dirname(sys.argv[1]), 'stamps.txt'), 'w').write(' '.join(k.stamps))
```

```python
import sys, os, math, struct
sys.path.insert(0, os.path.dirname(__file__))
from asmlib import Prog, Ins, Wait, Mark, Label, Touch

NAME = 'interleave_layers__sliding_block__dense_activation_relu__prompt'

WS_EPOCH = 0
WS_PUR = 0x1000
F_WQ = 0x2000
F_W1 = 0x2800
F_W2 = 0x3000
F_WO = 0x4000
WQT = 0x100000
W1T = 0x250000
WOT = 0x3D8000
W2T = 0x448000
TEAM0 = 0x600000
LSTRIDE = 0x230000
STRIDE = 2 * LSTRIDE
O_KV = 0x000000
O_O = 0x080000
O_X1 = 0x0C0000
O_XA = 0x0F8000
O_ST1 = 0x130000
O_STA = 0x138000
O_FKV = 0x140000
O_FO = 0x144000
O_FX1 = 0x144400
O_FXA = 0x144800
O_FH = 0x145000
O_H = 0x150000
WS_BYTES = TEAM0 + 8 * STRIDE

LKV = 100352
L_CSQ = 149504
L_CS1 = L_CSQ + 512
LDS_BYTES = 163840

S_X, S_WQ, S_WO, S_W1, S_W2, S_OUT, S_WS = 8, 12, 16, 20, 24, 28, 32
S_WSP = 36
sTEAM, sM, sA, sJ, sW, sRB, sCB, sLB = 40, 41, 42, 43, 44, 45, 46, 47
sF, sPURE, sLAYER, sTP = 48, 50, 51, 52
sQOFF = 53
sHI = 54
sPERM, sONES = 56, 57
sRHO, sNU = 58, 59
sT0, sT1, sT2, sT3, sT4, sT5 = 60, 61, 62, 63, 64, 65
sCNT = 66
sTB = 71
sJFL = 67
sXD, sXS, sXF = 68, 69, 70
sPOLL = 72
sO = 80

vL, vL16, vA1, vL8 = 0, 1, 2, 3
vSTA = 4
vFLG = 5
vRW = 6
vX1A = 10
vCSA = 11
vF = 12
vMEAN, vRSTD = 14, 15
vT = 16
vRES = 240

POLL_MAX = 1 << 16
MF32 = 'v_mfma_f32_32x32x16_bf16'
MF16 = 'v_mfma_f32_16x16x32_bf16'


def srd(b):
    return f's[{b}:{b+3}]'


def vr(b, n=4):
    return f'v[{b}:{b+n-1}]' if n > 1 else f'v{b}'


def ar(b, n=4):
    return f'a[{b}:{b+n-1}]'


def f32bits(x):
    return struct.unpack('<I', struct.pack('<f', x))[0]


def is_mem(x):
    if isinstance(x, (list, tuple)):
        return any(is_mem(y) for y in x)
    t = x.text if isinstance(x, Ins) else x if isinstance(x, str) else ''
    return t.startswith('ds_') or t.startswith('buffer_') or t.startswith('global_')


def cost(x):
    if isinstance(x, (list, tuple)):
        return sum(cost(y) for y in x)
    if isinstance(x, (Wait, Touch)):
        return 1
    t = x.text if isinstance(x, Ins) else x
    return 2 if t.startswith('v_exp') or t.startswith('v_rsq') or t.startswith('v_rcp') or t.startswith('v_permlane') else 1


def sched(mfs, pre, mem, side, cap, start=0):
    out = []
    side = list(side)
    for i, m in enumerate(mfs):
        out += pre.get(i, [])
        out.append(m)
        n = 0
        for x in mem.get(i, []):
            out.append(x)
            n += cost(x)
        if pre.get(i + 1):
            n += 1
        valu = False
        if i >= start:
            while side and n + cost(side[0]) <= cap:
                if is_mem(side[0]) and valu:
                    break
                x = side.pop(0)
                if not is_mem(x) and not isinstance(x, (Wait, Touch)):
                    t = x[0] if isinstance(x, (list, tuple)) else x
                    if any((y.text if isinstance(y, Ins) else y).startswith('v_') for y in (x if isinstance(x, (list, tuple)) else [x])):
                        valu = True
                out.append(x)
                n += cost(x)
            if side and n == 0 and cost(side[0]) > cap:
                out.append(side.pop(0))
    return out + side


class K:
    def __init__(self, stop=None, dbg=False):
        self.p = Prog()
        self.stop = stop
        self.dbg = dbg
        self.stamps = []
        self.tail = []
        self.pads = []

    def stamp(self, name):
        if not self.dbg or (name not in self.dbg and name not in ('start', 'end')):
            return
        k = len(self.stamps)
        assert k < 16
        self.stamps.append(name)
        p = self.p
        p('s_memrealtime s[96:97]' if 'RT' in self.dbg else 's_memtime s[96:97]')
        p('s_waitcnt lgkmcnt(0)')
        l1 = p.newlabel('st')
        p(f's_cmp_lg_u32 s{sLAYER}, 0')
        p(f's_cbranch_scc1 {l1}')
        p(f'v_accvgpr_write_b32 a{224+k}, s96')
        p.label(l1)
        p(f'v_accvgpr_write_b32 a{240+k}, s96')

    def stamp_dump(self):
        if not self.dbg:
            return
        p = self.p
        p(f's_lshl_b32 s{sT0}, s2, 2')
        p(f's_add_u32 s{sT0}, s{sT0}, s{sW}')
        p(f's_lshl_b32 s{sT0}, s{sT0}, 7')
        p(f's_add_u32 s{sT0}, s{sT0}, 0x40000')
        p('s_mov_b64 exec, 1')
        for k in range(32):
            p(f'buffer_store_dword a{224+k}, off, {srd(S_WS)}, s{sT0} offset:{4*k}')
        if 'DBG' in self.dbg:
            p('s_cmp_lg_u32 s2, 43')
            p('s_cbranch_scc1 L_end')
            p(f's_cmp_lg_u32 s{sW}, 1')
            p('s_cbranch_scc1 L_end')
            p('s_load_dwordx2 s[96:97], s[0:1], 56')
            p('v_accvgpr_read_b32 v16, a224')
            p('v_mov_b32 v18, 0')
            p('s_waitcnt lgkmcnt(0)')
            n = len(self.stamps)
            f = self.stamps.index('pro') + 1 if 'pro' in self.stamps else 1
            regs = [224 + k for k in range(1, n - 1)] + [240 + k for k in range(f, n)]
            for i, r in enumerate(regs[:16]):
                p(f'v_accvgpr_read_b32 v17, a{r}')
                p('v_sub_u32 v17, v17, v16')
                p(f'global_store_dword v18, v17, s[96:97] offset:{4*i}')
        p('s_mov_b64 exec, -1')

    def dma(self, srdb, voff, sreg, simm, m0, tok, sc='', n=1):
        mr, mi = m0
        L = [f's_add_u32 m0, s{mr}, {mi}' if mr is not None else f's_mov_b32 m0, {mi}',
             f's_add_u32 s{sT5}, s{sreg}, {simm}']
        for k in range(n):
            L.append(Ins(f'buffer_load_dwordx4 v{voff}, {srd(srdb)}, s{sT5} offen offset:{1024*k} {sc} lds', tok))
        return L

    def if_layer0(self, body):
        p = self.p
        l = p.newlabel('l0')
        p(f's_cmp_lg_u32 s{sLAYER}, 0')
        p(f's_cbranch_scc1 {l}')
        p.mark('maybe_begin')
        body()
        p.mark('maybe_end')
        p.label(l)

    def vpoll(self, voff, soff, nl, acquire=True):
        p = self.p
        lp, lo = p.newlabel('poll'), p.newlabel('pollout')
        p(f's_mov_b64 exec, {(1 << nl) - 1:#x}')
        p(f's_mov_b32 s{sCNT}, 0')
        p.label(lp)
        p(f'buffer_load_dwordx2 {vr(vT + 14, 2)}, v{voff}, {srd(S_WS)}, s{soff} offen sc1')
        p(f's_add_u32 s{sCNT}, s{sCNT}, 1')
        p(f's_cmp_gt_u32 s{sCNT}, {POLL_MAX}')
        p(f's_cbranch_scc1 {lo}')
        p('s_waitcnt vmcnt(0)')
        p(f'v_cmp_ne_u64 vcc, s[{sF}:{sF+1}], {vr(vT + 14, 2)}')
        p(f's_cbranch_vccnz {lp}')
        p.label(lo)
        p('s_mov_b64 exec, -1')
        if acquire:
            lslow, lback = p.newlabel('acq'), p.newlabel('acqback')
            p(f's_cmp_lg_u32 s{sPURE}, 0')
            p(f's_cbranch_scc0 {lslow}')
            p.label(lback)
            self.tail.append((lslow, ['buffer_inv sc1', 's_waitcnt vmcnt(0)', f's_branch {lback}']))
        p.mark('drained_vm')

    def publish(self, toks, soff):
        p = self.p
        p.wait(*toks)
        lslow, lback = p.newlabel('pubslow'), p.newlabel('pubback')
        p('s_mov_b64 exec, 1')
        p(f's_cmp_lg_u32 s{sPURE}, 0')
        p(f's_cbranch_scc0 {lslow}')
        p(f'buffer_store_dwordx2 {vr(vF, 2)}, off, {srd(S_WS)}, s{soff}')
        p.label(lback)
        p('s_mov_b64 exec, -1')
        self.tail.append((lslow, [
            'buffer_wbl2 sc1', 's_waitcnt vmcnt(0)',
            f'buffer_store_dwordx2 {vr(vF, 2)}, off, {srd(S_WS)}, s{soff} sc1',
            f's_branch {lback}']))

    def flag_sc1(self, soff):
        return ['s_mov_b64 exec, 1', f'buffer_store_dwordx2 {vr(vF,2)}, off, {srd(S_WS)}, s{soff} sc1', 's_mov_b64 exec, -1']

    def stats_loads(self, soff, dst):
        return [f'buffer_load_dwordx2 {vr(dst + 2*i, 2)}, v{vSTA}, {srd(S_WS)}, s{soff} offen offset:{256*i} sc1' for i in range(7)]

    def stats_reduce(self, src):
        L = []
        for i in range(1, 7):
            L.append(f'v_add_f32 v{src}, v{src}, v{src+2*i}')
            L.append(f'v_add_f32 v{src+1}, v{src+1}, v{src+2*i+1}')
        s, q, t0, t1 = src, src + 1, src + 2, src + 3
        return L + [
            f'v_mov_b32 v{t0}, v{s}', f'v_mov_b32 v{t1}, v{q}', 's_nop 0',
            f'v_permlane32_swap_b32 v{s}, v{t0}', f'v_permlane32_swap_b32 v{q}, v{t1}',
            f'v_add_f32 v{s}, v{s}, v{t0}', f'v_add_f32 v{q}, v{q}, v{t1}',
            f'v_mul_f32 v{vMEAN}, {f32bits(-1.0/448):#x}, v{s}',
            f'v_mul_f32 v{q}, {f32bits(1.0/448):#x}, v{q}',
            f'v_fma_f32 v{q}, -v{vMEAN}, v{vMEAN}, v{q}',
            f'v_max_f32 v{q}, 0, v{q}',
            f'v_add_f32 v{q}, {f32bits(1e-5):#x}, v{q}',
            f'v_rsq_f32 v{vRSTD}, v{q}',
        ]

    def off(self, dst, idx_reg, mul, add):
        return [f's_mul_i32 s{dst}, s{idx_reg}, {mul}', f's_add_u32 s{dst}, s{dst}, s{sLB}', f's_add_u32 s{dst}, s{dst}, {add}']

    def xoff(self, dst, idx_reg, mul, add):
        return [f's_add_u32 s{sT3}, s{sLB}, {add}', f's_add_u32 s{sT4}, s{sTB}, {O_XA}', f's_cmp_lg_u32 s{sPURE}, 0',
                f's_cselect_b32 s{sT3}, s{sT4}, s{sT3}', f's_mul_i32 s{dst}, s{idx_reg}, {mul}', f's_add_u32 s{dst}, s{dst}, s{sT3}']

    def roff(self, dst, idx_reg, mul, add):
        return [f's_cmp_lg_u32 s{sPURE}, 0', f's_cselect_b32 s{sT3}, s{sTB}, s{sLB}',
                f's_mul_i32 s{dst}, s{idx_reg}, {mul}', f's_add_u32 s{dst}, s{dst}, s{sT3}', f's_add_u32 s{dst}, s{dst}, {add}']

    def pub_offsets(self, xoff, stoff, foff):
        return [f's_lshl_b32 s{sT0}, s{sRB}, 1', f's_add_u32 s{sT0}, s{sT0}, s{sRHO}',
                f's_lshl_b32 s{sT1}, s{sCB}, 1', f's_add_u32 s{sT1}, s{sT1}, s{sNU}',
                f's_mul_i32 s{sT2}, s{sT0}, 14', f's_add_u32 s{sT2}, s{sT2}, s{sT1}'] + \
            self.xoff(sXD, sT2, 2048, xoff) + self.off(sXS, sT2, 256, stoff) + \
            [f's_lshl_b32 s{sT0}, s{sT0}, 4', f's_add_u32 s{sT0}, s{sT0}, s{sT1}'] + self.off(sXF, sT0, 8, foff)

    def x_store(self, P, va, offs, sc=''):
        p = self.p
        S, Q2, t0, t1 = vT + 6, vT + 7, vT + 8, vT + 9
        for k in range(2):
            p(f'buffer_store_dwordx4 {vr(P+4*k)}, v{va}, {srd(S_WS)}, s{sXD} offen offset:{offs[k]} {sc}', tok='xst')
        p(f'v_mov_b32 v{t0}, s{sONES}')
        p(f'v_dot2_f32_bf16 v{S}, v{P}, v{t0}, 0')
        p(f'v_dot2_f32_bf16 v{Q2}, v{P}, v{P}, 0')
        for i in range(1, 8):
            p(f'v_dot2_f32_bf16 v{S}, v{P+i}, v{t0}, v{S}')
            p(f'v_dot2_f32_bf16 v{Q2}, v{P+i}, v{P+i}, v{Q2}')
        p(f'v_mov_b32 v{t0}, v{S}')
        p(f'v_mov_b32 v{t1}, v{Q2}')
        p(f'v_permlane32_swap_b32 v{S}, v{t0}')
        p(f'v_permlane32_swap_b32 v{Q2}, v{t1}')
        p(f'v_add_f32 v{S}, v{S}, v{t0}')
        p(f'v_add_f32 v{Q2}, v{Q2}, v{t1}')
        p('s_mov_b32 exec_hi, 0')
        p(f'buffer_store_dwordx2 {vr(S,2)}, v{vL8}, {srd(S_WS)}, s{sXS} offen {sc}', tok='xst')
        p('s_mov_b64 exec, -1')

    def res_unpack(self, P):
        L = []
        for q in range(8):
            L.append(f'v_lshlrev_b32 v{vRES+2*q}, 16, v{P+q}')
            L.append(f'v_and_b32 v{vRES+2*q+1}, 0xffff0000, v{P+q}')
        return L

    def prefetch(self, v128, sreg, base, nbytes):
        L = []
        o = 0
        while o < nbytes:
            oo = min(o, nbytes - 8192)
            L += [f's_add_u32 s{sT5}, s{sreg}, {base + oo}', f'buffer_load_dword v31, v{v128}, {srd(S_WS)}, s{sT5} offen sc1']
            o += 8192
        return L

    def wq_dma(self, tiles, dummy=None):
        L = [f's_mul_i32 s{sT0}, s{sJ}, 86016', f's_mul_i32 s{sT1}, s{sW}, 7168',
             f's_add_u32 s{sT0}, s{sT0}, s{sT1}']
        if dummy is not None:
            L += [f's_sub_u32 s{sT2}, s{dummy}, {WQT}', f's_cmp_lg_u32 s{sLAYER}, 0', f's_cselect_b32 s{sT0}, s{sT2}, s{sT0}']
        for tau in tiles:
            for o, n in ((0, 4), (4096, 3)):
                d = self.dma(S_WS, vL16, sT0, WQT + tau * 28672 + o, (sT1, tau * 28672 + o), 'wq', 'sc1', n)
                L += [d[:3]] + d[3:]
        return L

    def w1_dma(self, part):
        sg, sl = sPOLL, sPOLL + 1
        L = []
        if part == 0:
            L += [f's_mul_i32 s{sg}, s{sJ}, 100352', f's_mul_i32 s{sl}, s{sW}, 14336', f's_add_u32 s{sg}, s{sg}, s{sl}']
            groups = [(0, 4), (4096, 4), (8192, 4), (12288, 2)]
            base = 0
        else:
            L += [f's_mul_i32 s{sg}, s{sJ}, 100352', f's_mul_i32 s{sl}, s{sW}, 10240', f's_add_u32 s{sg}, s{sg}, s{sl}']
            groups = [(0, 4), (4096, 4), (8192, 2)]
            base = 57344
        for o, n in groups:
            d = self.dma(S_WS, vL16, sg, W1T + base + o, (sl, base + o), 'w1', 'sc1', n)
            L += [d[:3]] + d[3:]
        if part == 1:
            L += [f's_sub_u32 s{sg}, s{sg}, s{sl}', f's_lshl_b32 s{sl}, s{sNU}, 10', f's_add_u32 s{sg}, s{sg}, s{sl}']
            L.append(self.dma(S_WS, vL16, sg, W1T + 98304, (sl, 98304), 'w1', 'sc1', 1))
        return L

    def w2_loads(self, lo, hi):
        L = [f's_lshl_b32 s{sT0}, s{sCB}, 2', f's_add_u32 s{sT0}, s{sT0}, s{sW}', f's_mul_i32 s{sT0}, s{sT0}, 57344',
             f's_lshl_b32 s{sT1}, s{sNU}, 10', f'v_xor_b32 v{vT+10}, s{sT1}, v{vL16}', f'v_xor_b32 v{vT+11}, 1024, v{vT+10}']
        for ks in range(lo, hi):
            if ks == lo or ks % 2 == 0:
                L.append(f's_add_u32 s{sT1}, s{sT0}, {W2T + (ks//2)*4096}')
            for z in range(2):
                L.append(f'buffer_load_dwordx4 {ar(ks*8+z*4)}, v{vT+10+z}, {srd(S_WS)}, s{sT1} offen offset:{(ks%2)*2048} sc1')
        return L

    def lane_consts(self):
        p = self.p
        t0, t1 = vT + 6, vT + 7
        p(f'v_add_u32 v{vA1}, 57344, v{vL16}')
        p(f'v_and_b32 v{vSTA}, 31, v{vL}')
        p(f'v_lshlrev_b32 v{vSTA}, 3, v{vSTA}')
        p(f'v_lshrrev_b32 v{t0}, 5, v{vL}')
        p(f'v_mul_u32_u24 v{t1}, {7*256}, v{t0}')
        p(f'v_add_u32 v{vSTA}, v{vSTA}, v{t1}')
        p(f'v_lshrrev_b32 v{vFLG}, 2, v{vL}')
        p(f'v_lshlrev_b32 v{vFLG}, 7, v{vFLG}')
        p(f'v_and_b32 v{t1}, 3, v{vL}')
        p(f'v_lshl_add_u32 v{vFLG}, v{t1}, 3, v{vFLG}')
        for x in range(1, 4):
            p(f's_xor_b32 s{sT0}, s{sW}, {x}')
            p(f's_mul_i32 s{sT0}, s{sT0}, 12288')
            p(f's_add_u32 s{sT0}, s{sT0}, {LKV + (x-1)*4096}')
            p(f'v_add_u32 v{vRW+x-1}, s{sT0}, v{vL16}')
        p(f's_mul_i32 s{sT0}, s{sW}, 12288')
        p(f's_add_u32 s{sT0}, s{sT0}, {LKV}')
        p(f'v_add_u32 v{vRW+3}, s{sT0}, v{vL16}')
        p(f'v_bfe_u32 v{vX1A}, v{vL}, 4, 1')
        p(f'v_lshlrev_b32 v{vX1A}, 10, v{vX1A}')
        p(f'v_lshl_add_u32 v{vX1A}, v{t0}, 8, v{vX1A}')
        p(f'v_and_b32 v{t1}, 15, v{vL}')
        p(f'v_lshl_add_u32 v{vX1A}, v{t1}, 4, v{vX1A}')

    def pad(self):
        p = self.p
        k = len(self.pads)
        self.pads.append(f'L_pad{k}')
        p(f's_branch L_padskip{k}')
        p.label(f'L_pad{k}')
        p('s_setpc_b64 s[98:99]')
        p.label(f'L_padskip{k}')

    def emit_walker(self):
        L = []
        labs = [f'L_walk{w}' for w in range(4)]
        for w in range(1, 4):
            L += [Ins(f's_cmp_eq_u32 s{sW}, {w}'), Ins(f's_cbranch_scc1 {labs[w]}')]
        for w in range(4):
            if w:
                L.append(Label(labs[w]))
            for x in self.pads[w::4]:
                L.append(Ins(f's_call_b64 s[98:99], {x}'))
            if w < 3:
                L.append(Ins('s_branch L_walkend'))
        L.append(Label('L_walkend'))
        self.p.items[self.walker_at:self.walker_at] = L

    def prologue(self):
        p = self.p
        p('s_cmp_ge_u32 s2, 256')
        p('s_cbranch_scc1 L_end')
        p(f's_load_dwordx16 s[{sO}:{sO+15}], s[0:1], 0')
        p(f's_load_dwordx2 s[{S_WSP}:{S_WSP+1}], s[0:1], 64')
        p(f's_mov_b32 s{sLAYER}, 0')
        self.stamp('start')
        p(f'v_lshrrev_b32 v{vT}, 6, v0')
        p(f'v_and_b32 v{vL}, 63, v0')
        p(f'v_readfirstlane_b32 s{sW}, v{vT}')
        p(f's_and_b32 s{sTEAM}, s2, 7')
        p(f's_lshr_b32 s{sM}, s2, 3')
        p(f's_lshr_b32 s{sA}, s{sM}, 4')
        p(f's_and_b32 s{sJ}, s{sM}, 15')
        p(f's_mul_i32 s{sRB}, s{sM}, 37')
        p(f's_lshr_b32 s{sRB}, s{sRB}, 8')
        p(f's_mul_i32 s{sT0}, s{sRB}, 7')
        p(f's_sub_u32 s{sCB}, s{sM}, s{sT0}')
        p(f's_mul_i32 s{sLB}, s{sTEAM}, {STRIDE}')
        p(f's_add_u32 s{sLB}, s{sLB}, {TEAM0}')
        p(f's_mov_b32 s{sTB}, s{sLB}')
        p(f's_lshl_b32 s{sTP}, s{sA}, 2')
        p(f's_add_u32 s{sTP}, s{sTP}, s{sW}')
        p(f's_lshr_b32 s{sRHO}, s{sW}, 1')
        p(f's_and_b32 s{sNU}, s{sW}, 1')
        p(f's_lshl_b32 s{sT0}, s{sTEAM}, 2')
        p(f's_add_u32 s{sT0}, s{sT0}, s{sRB}')
        p(f's_lshl_b32 s{sT1}, s{sT0}, 1')
        p(f's_add_u32 s{sT1}, s{sT1}, s{sRHO}')
        p(f's_mul_i32 s{sQOFF}, s{sT1}, {32*896}')
        p(f's_lshl_b32 s{sT1}, s{sCB}, 7')
        p(f's_add_u32 s{sQOFF}, s{sQOFF}, s{sT1}')
        p(f's_lshl_b32 s{sT1}, s{sNU}, 6')
        p(f's_add_u32 s{sQOFF}, s{sQOFF}, s{sT1}')
        t0, t1, t2, t3 = vT, vT + 1, vT + 2, vT + 3
        p(f'v_lshlrev_b32 v{vL16}, 4, v{vL}')
        p(f'v_and_b32 v{t0}, 31, v{vL}')
        p(f'v_mul_u32_u24 v{t0}, 896, v{t0}')
        p(f'v_lshrrev_b32 v{t1}, 5, v{vL}')
        p(f'v_lshl_add_u32 v{t0}, v{t1}, 3, v{t0}')
        b = sO
        for (d, src, n) in ((S_X, b, 1835008), (S_WQ, b + 2, 1204224), (S_WO, b + 4, 401408), (S_W1, b + 8, 1605632),
                            (S_W2, b + 10, 1605632), (S_OUT, b + 12, 1835008), (S_WS, S_WSP, WS_BYTES)):
            p(f's_mov_b32 s{d}, s{src}')
            p(f's_and_b32 s{d+1}, s{src+1}, 0xffff')
            p(f's_mov_b32 s{d+2}, {n}')
            p(f's_mov_b32 s{d+3}, 0x20000')
        XR = 96
        for q in range(4):
            p(f'buffer_load_dwordx2 {vr(XR+2*q,2)}, v{t0}, {srd(S_X)}, s{sQOFF} offen offset:{16*q}')
        self.stamp('ka')
        p(f's_sub_u32 s{sT0}, s{sLB}, {24 << 18}')
        p(f's_sub_u32 s{sT1}, s{sLB}, {STRIDE + (42 << 18)}')
        p(f's_cmp_eq_u32 s{sTEAM}, 0')
        p(f's_cselect_b32 s{sT1}, s{sT0}, s{sT1}')
        p(f'v_mov_b32 v{t2}, 0')
        p(f'v_mov_b32 v{t3}, s{sT0}')
        p(f'v_cmp_le_u32 vcc, 24, v{vL}')
        p(f'v_cndmask_b32 v{t2}, v{t2}, v{t3}, vcc')
        p(f'v_mov_b32 v{t3}, s{sT1}')
        p(f'v_cmp_le_u32 vcc, 42, v{vL}')
        p(f'v_cndmask_b32 v{t2}, v{t2}, v{t3}, vcc')
        p(f'v_lshl_add_u32 v{t2}, v{vL}, 18, v{t2}')
        p(f'v_add_u32 v{t2}, 0x3ff80, v{t2}')
        p(f'buffer_load_dword v30, v{t2}, {srd(S_WS)}, 0 offen sc1')
        p(f'v_lshlrev_b32 v{t2}, 18, v{vL}')
        p('s_mov_b64 exec, 0x7f')
        for sr in (S_W1, S_W2, S_WO, S_OUT):
            p(f'buffer_load_dword v30, v{t2}, {srd(sr)}, 0 offen')
        p('s_mov_b64 exec, -1')
        p(f's_lshl_b32 s{sT2}, s{sM}, 2')
        p(f's_add_u32 s{sT2}, s{sT2}, s{sW}')
        p(f's_mul_i32 s{sT3}, s{sT2}, 9408')
        p(f'v_lshlrev_b32 v{t2}, 7, v{vL}')
        p(f'buffer_load_dword v31, v{t2}, {srd(S_WQ)}, s{sT3} offen')
        p(f's_add_u32 s{sT3}, s{sT3}, 8192')
        p('s_mov_b64 exec, 0x3ff')
        p(f'buffer_load_dword v31, v{t2}, {srd(S_WQ)}, s{sT3} offen')
        p(f's_getpc_b64 s[{sT0}:{sT0+1}]')
        p.label('L_pc')
        p(f's_lshl_b32 s{sT2}, s{sT2}, 8')
        p(f's_min_u32 s{sT2}, s{sT2}, L_codeend-L_pc-256')
        p(f's_add_u32 s{sT0}, s{sT0}, s{sT2}')
        p(f's_addc_u32 s{sT0+1}, s{sT0+1}, 0')
        p('s_mov_b64 exec, 3')
        p(f'global_load_dword v31, v{t2}, s[{sT0}:{sT0+1}]')
        p('s_mov_b64 exec, -1')
        p(f's_load_dwordx2 s[{sF}:{sF+1}], s[{S_WSP}:{S_WSP+1}], {WS_EPOCH}')
        vDQ, vTQ, vWQ = vT + 10, vT + 11, vT + 12
        sRQ, sLQ = sO + 6, sO + 7
        p(f'v_lshrrev_b32 v{t0}, 2, v{vL}')
        p(f'v_and_b32 v{t1}, 3, v{vL}')

        def rawq(tau, i):
            p.ext(self.dma(S_WQ, vDQ, sRQ, (448, 896, 0)[tau] * 2 + i * 16 * 2688, (sLQ, tau * 28672 + i * 1024), f'rq{tau}{i}'))

        def xform(tau, between=None):
            R = 128 + 32 * (tau % 2)
            for i in range(7):
                p.wait(f'rq{tau}{i}')
                for jj in range(2):
                    p(f'ds_read_b64_tr_b16 {vr(R+4*i+2*jj,2)}, v{vTQ} offset:{tau*28672+i*1024+jj*512}')
                if i >= 2:
                    p(f'ds_write_b128 v{vWQ}, {vr(R+4*(i-2))} offset:{tau*28672+(i-2)*1024}')
                if between:
                    between(i)
            for i in (5, 6):
                p(f'ds_write_b128 v{vWQ}, {vr(R+4*i)} offset:{tau*28672+i*1024}')
        sI, sSTG = sO, sO + 1
        p(f's_lshl_b32 s{sI}, s{sTEAM}, 1')
        p(f's_add_u32 s{sI}, s{sI}, s{sA}')
        p(f's_lshl_b32 s{sSTG}, s{sW}, 13')
        p(f's_add_u32 s{sSTG}, s{sSTG}, {LKV}')
        vD, vTR, vTR8 = vT + 4, vT + 5, vT + 13
        p(f'v_lshlrev_b32 v{t3}, 3, v{t1}')
        p(f'v_lshlrev_b32 v{t1}, 4, v{t1}')
        sFL, sDST, sDST2 = sO + 2, sO + 3, sO + 5
        FR = 32
        p(f'v_bfe_u32 v{t2}, v{vL}, 4, 1')
        p(f'v_lshl_add_u32 v{t2}, v{t2}, 5, v{t3}')
        p(f'v_bfe_u32 v{vTR}, v{vL}, 2, 2')
        p(f'v_lshl_add_u32 v{t2}, v{vTR}, 6, v{t2}')
        p(f'v_lshrrev_b32 v{vTR8}, 5, v{vL}')
        p(f'v_lshl_add_u32 v{vTQ}, v{vTR8}, 8, v{t2}')
        p(f'v_add_u32 v{vTR}, s{sSTG}, v{vTQ}')
        p(f'v_add_u32 v{t2}, s{sSTG}, v{t2}')
        p(f'v_lshl_add_u32 v{vTR8}, v{vTR8}, 9, v{t2}')

        def finish(nfr, offs, pre=()):
            L = list(pre)
            base = None
            for k in range(nfr):
                hi, lo = offs[k] // 4096 * 4096, offs[k] % 4096
                if hi != base:
                    L.append(f's_add_u32 s{sT5}, s{sDST}, {hi}')
                    base = hi
                L.append(f'buffer_store_dwordx4 {vr(FR+4*k)}, v{vL16}, {srd(S_WS)}, s{sT5} offen offset:{lo} sc1')
            return L

        sJOB = sO + 4
        lA = [p.newlabel('jobA') for _ in range(4)]
        p(f's_mov_b32 s{sJOB}, 0')
        p.mark('maybe_begin')
        p(f's_cmp_eq_u32 s{sW}, 1')
        p(f's_cbranch_scc1 {lA[0]}')
        p(f's_cmp_ge_u32 s{sW}, 2')
        p(f's_cbranch_scc1 {lA[1]}')
        p(f's_cmp_ge_u32 s{sI}, 14')
        p(f's_cbranch_scc1 {lA[3]}')
        p(f'v_mul_u32_u24 v{vD}, 2688, v{t0}')
        p(f'v_add_u32 v{vD}, v{vD}, v{t1}')
        p(f's_mul_i32 s{sT0}, s{sI}, {32*2688}')
        p(f's_mul_i32 s{sT1}, s{sJ}, 56')
        p(f's_add_u32 s{sT0}, s{sT0}, s{sT1}')
        for tau in range(3):
            for hb in range(2):
                p.ext(self.dma(S_WQ, vD, sT0, (448, 896, 0)[tau] * 2 + hb * 16 * 2688, (sSTG, tau * 2048 + hb * 1024), 'raw'))
        p(f's_mul_i32 s{sDST}, s{sJ}, 86016')
        p(f's_lshl_b32 s{sT0}, s{sI}, 11')
        p(f's_add_u32 s{sDST}, s{sDST}, s{sT0}')
        p(f's_add_u32 s{sDST}, s{sDST}, {WQT}')
        p(f's_lshl_b32 s{sFL}, s{sJ}, 4')
        p(f's_add_u32 s{sFL}, s{sFL}, s{sI}')
        p(f's_lshl_b32 s{sFL}, s{sFL}, 3')
        p(f's_add_u32 s{sFL}, s{sFL}, {F_WQ}')
        p(f's_mov_b32 s{sJOB}, 1')
        p(f's_branch {lA[3]}')
        p.label(lA[0])
        p(f's_cmp_ge_u32 s{sI}, 14')
        p(f's_cbranch_scc1 {lA[3]}')
        p(f'v_bfe_u32 v{vD}, v{vL}, 1, 3')
        p(f'v_bfe_u32 v{t2}, v{vL}, 4, 1')
        p(f'v_lshl_add_u32 v{vD}, v{t2}, 4, v{vD}')
        p(f'v_bfe_u32 v{t2}, v{vL}, 5, 1')
        p(f'v_lshl_add_u32 v{vD}, v{t2}, 3, v{vD}')
        p(f'v_mul_u32_u24 v{vD}, 3584, v{vD}')
        p(f'v_and_b32 v{t2}, 1, v{vL}')
        p(f'v_lshl_add_u32 v{vD}, v{t2}, 4, v{vD}')
        p(f's_mul_i32 s{sT0}, s{sI}, {32*3584}')
        p(f's_mul_i32 s{sT1}, s{sJ}, 224')
        p(f's_add_u32 s{sT0}, s{sT0}, s{sT1}')
        for t in range(7):
            p.ext(self.dma(S_W1, vD, sT0, t * 32, (sSTG, t * 1024), 'raw'))
        p(f'v_lshl_add_u32 v{vTR}, v{t0}, 5, v{t3}')
        p(f'v_add_u32 v{vTR}, s{sSTG}, v{vTR}')
        p(f's_mul_i32 s{sDST}, s{sJ}, 100352')
        p(f's_add_u32 s{sDST}, s{sDST}, {W1T}')
        p(f's_mul_i32 s{sDST2}, s{sI}, 3072')
        p(f's_add_u32 s{sDST2}, s{sDST2}, s{sDST}')
        p(f's_add_u32 s{sDST2}, s{sDST2}, 57344')
        p(f's_lshl_b32 s{sT0}, s{sI}, 12')
        p(f's_add_u32 s{sDST}, s{sDST}, s{sT0}')
        p(f's_lshl_b32 s{sFL}, s{sJ}, 4')
        p(f's_add_u32 s{sFL}, s{sFL}, s{sI}')
        p(f's_lshl_b32 s{sFL}, s{sFL}, 3')
        p(f's_add_u32 s{sFL}, s{sFL}, {F_W1}')
        p(f's_mov_b32 s{sJOB}, 2')
        p(f's_branch {lA[3]}')
        p.label(lA[1])
        p(f'v_mul_u32_u24 v{vD}, 896, v{t0}')
        p(f'v_add_u32 v{vD}, v{vD}, v{t1}')
        p(f's_cmp_ge_u32 s{sM}, 28')
        p(f's_cbranch_scc1 {lA[2]}')
        sI2, sSL, sHF = sT2, sT3, sT4
        p(f's_lshl_b32 s{sI2}, s{sTEAM}, 2')
        p(f's_add_u32 s{sI2}, s{sI2}, s{sRB}')
        p(f's_lshr_b32 s{sSL}, s{sI2}, 1')
        p(f's_and_b32 s{sHF}, s{sI2}, 1')
        p(f's_mul_i32 s{sT0}, s{sSL}, {112*896}')
        p(f's_mul_i32 s{sT1}, s{sHF}, {64*896}')
        p(f's_add_u32 s{sT0}, s{sT0}, s{sT1}')
        p(f's_lshl_b32 s{sT1}, s{sCB}, 7')
        p(f's_add_u32 s{sT0}, s{sT0}, s{sT1}')
        p(f's_lshl_b32 s{sT1}, s{sNU}, 6')
        p(f's_add_u32 s{sT0}, s{sT0}, s{sT1}')
        for k in range(4):
            p.ext(self.dma(S_W2, vD, sT0, k * 16 * 896, (sSTG, k * 1024), 'raw'))
        p(f's_mul_i32 s{sDST}, s{sCB}, 229376')
        p(f's_mul_i32 s{sT0}, s{sSL}, 14336')
        p(f's_add_u32 s{sDST}, s{sDST}, s{sT0}')
        p(f's_lshl_b32 s{sT0}, s{sHF}, 13')
        p(f's_add_u32 s{sDST}, s{sDST}, s{sT0}')
        p(f's_lshl_b32 s{sT0}, s{sNU}, 10')
        p(f's_add_u32 s{sDST}, s{sDST}, s{sT0}')
        p(f's_add_u32 s{sDST}, s{sDST}, {W2T}')
        p(f's_lshl_b32 s{sFL}, s{sCB}, 5')
        p(f's_add_u32 s{sFL}, s{sFL}, s{sI2}')
        p(f's_lshl_b32 s{sFL}, s{sFL}, 1')
        p(f's_add_u32 s{sFL}, s{sFL}, s{sNU}')
        p(f's_lshl_b32 s{sFL}, s{sFL}, 3')
        p(f's_add_u32 s{sFL}, s{sFL}, {F_W2}')
        p(f's_add_u32 s{sJOB}, s{sHF}, 3')
        p(f's_branch {lA[3]}')
        p.label(lA[2])
        p(f's_cmp_eq_u32 s{sTEAM}, 7')
        p(f's_cbranch_scc1 {lA[3]}')
        p(f's_mul_i32 s{sT0}, s{sCB}, {112*896}')
        p(f's_lshl_b32 s{sT1}, s{sTEAM}, 7')
        p(f's_add_u32 s{sT0}, s{sT0}, s{sT1}')
        p(f's_lshl_b32 s{sT1}, s{sNU}, 6')
        p(f's_add_u32 s{sT0}, s{sT0}, s{sT1}')
        for k in range(8):
            p.ext(self.dma(S_WO, vD, sT0, k * 16 * 896, (sSTG, k * 1024), 'raw'))
        p(f's_lshl_b32 s{sFL}, s{sTEAM}, 2')
        p(f's_add_u32 s{sFL}, s{sFL}, s{sCB}')
        p(f's_lshl_b32 s{sDST}, s{sFL}, 14')
        p(f's_lshl_b32 s{sT0}, s{sNU}, 10')
        p(f's_add_u32 s{sDST}, s{sDST}, s{sT0}')
        p(f's_add_u32 s{sDST}, s{sDST}, {WOT}')
        p(f's_lshl_b32 s{sFL}, s{sFL}, 1')
        p(f's_add_u32 s{sFL}, s{sFL}, s{sNU}')
        p(f's_lshl_b32 s{sFL}, s{sFL}, 3')
        p(f's_add_u32 s{sFL}, s{sFL}, {F_WO}')
        p(f's_mov_b32 s{sJOB}, 5')
        p.mark('maybe_end')
        p.label(lA[3])
        self.stamp('jA')
        p(f'v_mul_u32_u24 v{vDQ}, 2688, v{t0}')
        p(f'v_add_u32 v{vDQ}, v{vDQ}, v{t1}')
        p(f's_mul_i32 s{sRQ}, s{sW}, {7*16*2688}')
        p(f's_mul_i32 s{sT1}, s{sJ}, 56')
        p(f's_add_u32 s{sRQ}, s{sRQ}, s{sT1}')
        p(f's_mul_i32 s{sLQ}, s{sW}, 7168')
        p(f'v_add_u32 v{vTQ}, s{sLQ}, v{vTQ}')
        p(f'v_add_u32 v{vWQ}, s{sLQ}, v{vL16}')
        p(f's_mov_b32 s{sHI}, 0')
        p(f's_mov_b32 s{sHI+1}, -1')
        p(f's_mov_b32 s{sPERM}, 0x07060302')
        p(f's_mov_b32 s{sONES}, 0x3f803f80')
        p(f's_mov_b32 s{sPURE}, 1')
        p(f'v_lshlrev_b32 v{vL8}, 3, v{vL}')
        p.ext(self.pub_offsets(O_XA, O_STA, O_FXA))
        self.lane_consts()
        p('s_waitcnt vmcnt(0) lgkmcnt(0)')
        self.stamp('rt1')
        p(f's_add_u32 s{sF}, s{sF}, 1')
        p(f's_addc_u32 s{sF+1}, s{sF+1}, 0')
        p(f'v_mov_b32 v{vF}, s{sF}')
        p(f'v_mov_b32 v{vF+1}, s{sF+1}')
        for i in range(3):
            rawq(0, i)
        lp0 = p.newlabel('p0skip')
        p(f's_cmp_ge_u32 s{sM}, 28')
        p(f's_cbranch_scc1 {lp0}')
        p.mark('maybe_begin')
        self.x_store(XR, vL16, (0, 1024), 'sc1')
        p.mark('maybe_end')
        p.label(lp0)
        p.mark('maybe_begin')
        lB = {k: p.newlabel('jobB') for k in (2, 3, 4, 5, 'join')}
        for k in (2, 3, 4, 5):
            p(f's_cmp_eq_u32 s{sJOB}, {k}')
            p(f's_cbranch_scc1 {lB[k]}')
        p(f's_cmp_eq_u32 s{sJOB}, 0')
        p(f's_cbranch_scc1 {lB["join"]}')
        for tau in range(3):
            for kp in range(2):
                for jj in range(2):
                    p(f'ds_read_b64_tr_b16 {vr(FR+(tau*2+kp)*4+2*jj,2)}, v{vTR} offset:{tau*2048+(16*kp+8*jj)*64}')
        p.ext(finish(6, [tau * 28672 + kp * 1024 for tau in range(3) for kp in range(2)]))
        p(f's_branch {lB["join"]}')
        p.label(lB[2])
        for t in range(7):
            for jj in range(2):
                p(f'ds_read_b64_tr_b16 {vr(FR+t*4+2*jj,2)}, v{vTR} offset:{t*1024+jj*512}')
        p.ext(finish(4, [t * 1024 for t in range(4)]))
        for t in range(4, 7):
            p(f'buffer_store_dwordx4 {vr(FR+4*t)}, v{vL16}, {srd(S_WS)}, s{sDST2} offen offset:{(t-4)*1024} sc1')
        p(f's_branch {lB["join"]}')
        p.label(lB[3])
        for sg in range(4):
            for jj in range(2):
                p(f'ds_read_b64_tr_b16 {vr(FR+sg*4+2*jj,2)}, v{vTR} offset:{(32*(sg//2)+16*jj+8*(sg%2))*64}')
        p.ext(finish(4, [k * 2048 for k in range(4)]))
        p(f's_branch {lB["join"]}')
        p.label(lB[4])
        for sg in range(2):
            for jj in range(2):
                p(f'ds_read_b64_tr_b16 {vr(FR+sg*4+2*jj,2)}, v{vTR} offset:{(16*jj+8*sg)*64}')
        for jj in range(2):
            p(f'ds_read_b64_tr_b16 {vr(FR+8+2*jj,2)}, v{vTR8} offset:{(32+4*jj)*64}')
        p.ext(finish(3, [k * 2048 for k in range(3)]))
        p(f's_branch {lB["join"]}')
        p.label(lB[5])
        for hd in range(4):
            for kp in range(2):
                for jj in range(2):
                    p(f'ds_read_b64_tr_b16 {vr(FR+(hd*2+kp)*4+2*jj,2)}, v{vTR} offset:{(28*hd+16*kp+8*jj)*64}')
        p('s_waitcnt lgkmcnt(0)')
        p('s_mov_b32 exec_lo, 0')
        for hd in range(4):
            p(f'v_mov_b32 v{FR+(hd*2+1)*4+2}, 0')
            p(f'v_mov_b32 v{FR+(hd*2+1)*4+3}, 0')
        p('s_mov_b64 exec, -1')
        p.ext(finish(8, [k * 2048 for k in range(8)]))
        p.mark('maybe_end')
        p.label(lB['join'])
        p(f's_getreg_b32 s{sT0}, hwreg(HW_REG_XCC_ID)')
        p(f's_and_b32 s{sT0}, s{sT0}, 15')
        p(f's_lshl_b32 s{sT0}, s{sT0}, 28')
        p(f's_xor_b32 s{sT0}, s{sT0}, s{sF+1}')
        p(f'v_mov_b32 v{t2}, s{sF}')
        p(f'v_mov_b32 v{t3}, s{sT0}')
        p(f's_lshl_b32 s{sT1}, s{sTEAM}, 8')
        p(f's_lshl_b32 s{sT2}, s{sM}, 3')
        p(f's_add_u32 s{sT1}, s{sT1}, s{sT2}')
        p(f's_add_u32 s{sT1}, s{sT1}, {WS_PUR}')
        p('s_mov_b64 exec, 1')
        p(f'buffer_store_dwordx2 {vr(t2,2)}, off, {srd(S_WS)}, s{sT1} sc1')
        p('s_mov_b64 exec, -1')
        self.stamp('jB')
        for i in range(3, 7):
            rawq(0, i)
        for i in range(7):
            rawq(1, i)
        p(f's_cmp_eq_u32 s{sJOB}, 0')
        p(f's_cselect_b32 s{sFL}, {WS_PUR + 0x800}, s{sFL}')
        p(f's_cmp_ge_u32 s{sM}, 28')
        p(f's_cselect_b32 s{sXF}, {WS_PUR + 0x800}, s{sXF}')
        p('s_waitcnt vmcnt(11)')
        p('s_mov_b64 exec, 1')
        p(f'buffer_store_dwordx2 {vr(vF,2)}, off, {srd(S_WS)}, s{sXF} sc1')
        p(f'buffer_store_dwordx2 {vr(vF,2)}, off, {srd(S_WS)}, s{sFL} sc1')
        p('s_mov_b64 exec, -1')
        self.stamp('rq')
        xform(0, lambda i: rawq(2, i))
        self.stamp('xf0')
        self.walker_at = len(p.items)
        p.ext(self.res_unpack(XR))
        xform(1)
        xform(2)
        p('s_waitcnt lgkmcnt(0)')
        p('s_barrier')
        self.stamp('pro')

    def p1(self):
        p = self.p
        X, ACC, RING, CS = 32, 144, 192, 224
        accK, accV, accQ = ACC, ACC + 16, ACC + 32
        PK, PV = vT, vT + 8
        sXO, sST, sFX, sKV, sKF = sO, sO + 7, sO + 8, sO + 9, sO + 10
        p.ext(self.xoff(sXO, sTP, 28672, O_XA))
        for g in range(1, 7):
            p(f's_add_u32 s{sXO+g}, s{sXO}, {4096*g}')
        p.ext(self.off(sST, sTP, 3584, O_STA))
        p.ext(self.off(sFX, sTP, 128, O_FXA))
        p(f's_lshl_b32 s{sT0}, s{sJ}, 3')
        p(f's_add_u32 s{sT0}, s{sT0}, s{sTP}')
        p.ext(self.off(sKV, sT0, 4096, O_KV))
        p.ext(self.off(sKF, sT0, 128, O_FKV))
        p(f'v_lshrrev_b32 v{vCSA}, 5, v{vL}')
        p(f'v_lshlrev_b32 v{vCSA}, 4, v{vCSA}')
        p(f'v_add_u32 v{vCSA}, {L_CSQ}, v{vCSA}')

        def frag(f):
            if f < 56:
                base, off = vL16, (f % 2) * 28672 + (f // 2) * 1024
            else:
                base, off = vA1, (f - 56) * 1024
            return f'ds_read_b128 {vr(RING + 4*(f % 8))}, v{base} offset:{off}'

        def mf(f):
            acc, s = ((accK, accV)[f % 2], f // 2) if f < 56 else (accQ, f - 56)
            return f'{MF32} {vr(acc,16)}, {vr(RING+4*(f%8))}, {vr(X+4*s)}, {vr(acc,16) if s else 0}'

        def xl(s):
            return f'buffer_load_dwordx4 {vr(X+4*s)}, v{vL16}, {srd(S_WS)}, s{sXO + s//4} offen offset:{(s%4)*1024} sc1'
        self.stamp('p5')
        self.pad()
        self.vpoll(vL8, sFX, 14)
        self.stamp('E')
        XP = 8
        for s in range(XP):
            p(xl(s))

        def colsum():
            p(f's_min_u32 s{sT0}, s{sW}, 2')
            p(f's_mul_i32 s{sT0}, s{sT0}, 28672')
            p(f'v_add_u32 v{vT}, s{sT0}, v{vL16}')
            for i in range(4):
                p(f'v_mov_b32 v{vT+4+i}, s{sONES}')
            rd = lambda s: f'ds_read_b128 {vr(RING+4*(s%8))}, v{vT} offset:{s*1024}'
            for s in range(6):
                p(rd(s))
            for s in range(28):
                p(f'{MF32} {vr(accQ,16)}, {vr(vT+4)}, {vr(RING+4*(s%8))}, {vr(accQ,16) if s else 0}')
                if s + 6 < 28:
                    p(rd(s + 6))
            p(f's_lshl_b32 s{sT0}, s{sW}, 7')
            p(f's_add_u32 s{sT0}, s{sT0}, {L_CSQ}')
            p(f'v_and_b32 v{vT}, 31, v{vL}')
            p(f'v_lshlrev_b32 v{vT}, 2, v{vT}')
            p(f'v_add_u32 v{vT}, s{sT0}, v{vT}')
            p(f'ds_write_b32 v{vT}, v{accQ}')
            p('s_waitcnt lgkmcnt(0)')
            p('s_barrier')
        self.if_layer0(colsum)
        PD = 6
        for f in range(PD):
            p(frag(f))
        mem, pre = {}, {}
        for f in range(84):
            mem[f] = []
            if f + PD < 84:
                mem[f].append(frag(f + PD))
            if f < 56 and f % 2 == 0 and f // 2 + XP < 28:
                mem[f].append(xl(f // 2 + XP))
            if 33 <= f < 47 and f % 2 == 1:
                mem[f].append(self.stats_loads(sST, CS)[(f - 33) // 2])
            if f % 2 == 0:
                pre[f] = [Touch(vr(RING + 4 * (f % 8)) + ' ' + vr(RING + 4 * ((f + 1) % 8)) + (' ' + vr(X + 4 * (f // 2)) if f < 56 else ''))]

        def cs_reads(tau, dst):
            return [f'ds_read_b128 {vr(dst+4*q)}, v{vCSA} offset:{tau*128 + 32*q}' for q in range(4)]
        p.ext(sched([mf(f) for f in range(56)], pre, mem, cs_reads(1, accQ) + cs_reads(0, PK), 5, start=40))
        p.ext(self.stats_reduce(CS))
        self.stamp('kv')

        def epi(acc, cs, P):
            L = []
            for r in range(0, 16, 2):
                L.append(f'v_pk_fma_f32 {vr(acc+r,2)}, {vr(cs+r,2)}, {vr(vMEAN,2)}, {vr(acc+r,2)} op_sel:[0,0,0] op_sel_hi:[1,0,1]')
            for r in range(0, 16, 2):
                L.append(f'v_pk_mul_f32 {vr(acc+r,2)}, {vr(acc+r,2)}, {vr(vMEAN,2)} op_sel:[0,1] op_sel_hi:[1,1]')
                L.append(f'v_cvt_pk_bf16_f32 v{P+r//2}, v{acc+r}, v{acc+r+1}')
            return L

        def pad(P, c6, c7):
            return ['s_mov_b32 exec_lo, 0', f'v_mov_b32 v{P+6}, {c6:#x}', f'v_mov_b32 v{P+7}, {c7:#x}', 's_mov_b64 exec, -1']

        def st(P, o):
            return [Ins(f'buffer_store_dwordx4 {vr(P+4*k)}, v{vL16}, {srd(S_WS)}, s{sKV} offen offset:{o+1024*k} sc1', 'kvst') for k in range(2)]
        t0, t1 = CS, CS + 1
        p.ext(epi(accK, PK, PK) + pad(PK, 0x3f803f80, 0x3f80) + st(PK, 0))
        p.ext(epi(accV, accQ, PV) + pad(PV, 0x3f80, 0) + st(PV, 2048))
        self.stamp('kvs')
        side = [f's_lshl_b32 s{sT0}, s{sW}, 12', f's_add_u32 s{sT0}, s{sT0}, {LKV + 8*4096}',
                f'v_add_u32 v{t0}, s{sT0}, v{vL16}',
                f'ds_write_b128 v{t0}, {vr(PK)}', f'ds_write_b128 v{t0}, {vr(PK+4)} offset:1024',
                f'v_and_b32 v{t1}, 31, v{vL}', f'v_lshlrev_b32 v{t1}, 6, v{t1}', f'v_lshrrev_b32 v{t0}, 5, v{vL}',
                f'v_lshl_add_u32 v{t1}, v{t0}, 4, v{t1}', f'v_add_u32 v{t0}, s{sT0}, v{t1}',
                f'ds_write_b128 v{t0}, {vr(PV)} offset:2048', f'ds_write_b128 v{t0}, {vr(PV+4)} offset:{2048+32}',
                f'v_mul_f32 v{vRSTD}, {f32bits(28 ** -0.5 * math.log2(math.e)):#x}, v{vRSTD}'] + cs_reads(2, CS)
        pre2 = {f - 56: v for f, v in pre.items() if f >= 56}
        mem2 = {f - 56: v for f, v in mem.items() if f >= 56}
        p.ext(sched([mf(f) for f in range(56, 84)], pre2, mem2, side, 4, start=0))
        p.wait('kvst')
        p.ext(self.flag_sc1(sKF))
        self.stamp('q')
        QF = 200
        p.ext(epi(accQ, CS, QF))
        p.ext(pad(QF, 0, 0x3f800000))
        self.pad()
        p('s_barrier')
        self.stamp('p1')

    def attn(self):
        p = self.p
        KF, ST, MW, MD, OA, QF, PB, VF = 32, 104, 152, 168, 184, 200, 208, 224
        t0, t1 = 104, 105

        def first():
            p(f's_lshl_b32 s{sT0}, s{sJ}, 7')
            p(f's_add_u32 s{sT1}, s{sT0}, {F_WQ - 14*8}')
            p(f's_add_u32 s{sT0}, s{sT0}, {F_W1}')
            p(f's_lshl_b32 s{sT2}, s{sCB}, 6')
            p(f's_add_u32 s{sT2}, s{sT2}, {F_WO - 28*8}')
            p(f'v_mov_b32 v{t0}, s{sT0}')
            for lim, r in ((14, sT1), (28, sT2)):
                p(f'v_mov_b32 v{t1}, s{r}')
                p(f'v_cmp_le_u32 vcc, {lim}, v{vL}')
                p(f'v_cndmask_b32 v{t0}, v{t0}, v{t1}, vcc')
            p(f'v_min_u32 v{t1}, {35*8}, v{vL8}')
            p(f'v_add_u32 v{t0}, v{t0}, v{t1}')
            p(f'v_and_b32 v{t1}, {31*8}, v{vL8}')
            p(f's_lshl_b32 s{sT1}, s{sCB}, 9')
            p(f's_add_u32 s{sT1}, s{sT1}, {F_W2}')
            p(f's_lshl_b32 s{sT3}, s{sTEAM}, 8')
            p(f's_add_u32 s{sT3}, s{sT3}, {WS_PUR}')
            lp, lo = p.newlabel('pur'), p.newlabel('purout')
            p(f's_mov_b32 s{sCNT}, 0')
            p.label(lp)
            p(f'buffer_load_dwordx2 {vr(106,2)}, v{t0}, {srd(S_WS)}, 0 offen sc1')
            p(f'buffer_load_dwordx2 {vr(108,2)}, v{vL8}, {srd(S_WS)}, s{sT1} offen sc1')
            p(f'buffer_load_dwordx2 {vr(110,2)}, v{t1}, {srd(S_WS)}, s{sT3} offen sc1')
            p(f's_add_u32 s{sCNT}, s{sCNT}, 1')
            p(f's_cmp_gt_u32 s{sCNT}, {POLL_MAX}')
            p(f's_cbranch_scc1 {lo}')
            p('s_waitcnt vmcnt(0)')
            p(f'v_cmp_ne_u64 s[{sPOLL}:{sPOLL+1}], s[{sF}:{sF+1}], {vr(106,2)}')
            p(f'v_cmp_ne_u64 s[{sPOLL+2}:{sPOLL+3}], s[{sF}:{sF+1}], {vr(108,2)}')
            p(f'v_xor_b32 v111, s{sF+1}, v111')
            p(f'v_xor_b32 v110, s{sF}, v110')
            p(f'v_and_b32 v108, 0x0fffffff, v111')
            p(f'v_or_b32 v110, v110, v108')
            p(f'v_cmp_ne_u32 vcc, 0, v110')
            p(f's_or_b64 s[{sPOLL}:{sPOLL+1}], s[{sPOLL}:{sPOLL+1}], s[{sPOLL+2}:{sPOLL+3}]')
            p(f's_or_b64 vcc, vcc, s[{sPOLL}:{sPOLL+1}]')
            p(f's_cbranch_scc1 {lp}')
            p(f'v_readfirstlane_b32 s{sT1}, v111')
            p(f'v_cmp_ne_u32 vcc, s{sT1}, v111')
            p(f's_cmp_eq_u64 vcc, 0')
            p(f's_cselect_b32 s{sPURE}, {0 if os.environ.get("FORCE_IMPURE") else 1}, 0')
            p.label(lo)
            p('s_waitcnt vmcnt(0)')
        self.if_layer0(first)
        NK = 2
        sKD, sKL, sKFl, sNULL = sO + 8, sO + 11, sPOLL + 6, sT4
        sKFl = [sO + 14, sO + 15, sT3]
        p(f's_mov_b32 s{sNULL}, 0')
        for k in range(NK):
            p(f's_lshl_b32 s{sT0}, s{sW}, 1')
            p(f's_add_u32 s{sT0}, s{sT0}, {k}')
            p(f's_lshl_b32 s{sKL+k}, s{sT0}, 12')
            p(f's_add_u32 s{sKL+k}, s{sKL+k}, {LKV}')
            p(f's_lshl_b32 s{sT1}, s{sA}, 2')
            p(f's_add_u32 s{sT0}, s{sT0}, s{sT1}')
            p(f's_cmp_lt_u32 s{sT0}, 8')
            p(f's_cselect_b32 s{sT1}, {STRIDE}, 0')
            p(f's_sub_u32 s{sT1}, s{sLB}, s{sT1}')
            p(f's_and_b32 s{sT0}, s{sT0}, 7')
            p(f's_cmp_lt_i32 s{sT1}, {TEAM0}')
            p(f's_cselect_b32 s{sT2}, {1 << k}, 0')
            p(f's_cselect_b32 s{sT1}, s{sLB}, s{sT1}')
            p(f's_cselect_b32 s{sT0}, s{sTP}, s{sT0}')
            p(f's_or_b32 s{sNULL}, s{sNULL}, s{sT2}')
            p(f's_lshl_b32 s{sT2}, s{sJ}, 3')
            p(f's_add_u32 s{sT0}, s{sT0}, s{sT2}')
            p(f's_lshl_b32 s{sKD+k}, s{sT0}, 12')
            p(f's_add_u32 s{sKD+k}, s{sKD+k}, s{sT1}')
            p(f's_lshl_b32 s{sT0}, s{sT0}, 7')
            p(f's_add_u32 s{sT0}, s{sT0}, s{sT1}')
            p(f's_add_u32 s{sKFl[k]}, s{sT0}, {O_FKV}')
        p(f'v_bfe_u32 v{t0}, v{vL}, 1, 1')
        p(f'v_lshlrev_b32 v{t0}, 10, v{t0}')
        p(f'v_and_b32 v{t1}, 1, v{vL}')
        p(f'v_lshl_add_u32 v{t0}, v{t1}, 9, v{t0}')
        p(f'v_lshrrev_b32 v{t1}, 2, v{vL}')
        p(f'v_lshl_add_u32 v{t0}, v{t1}, 4, v{t0}')
        lp, lo = p.newlabel('kvpoll'), p.newlabel('kvpollout')
        self.stamp('w1')
        p('s_waitcnt lgkmcnt(0)')
        p(f's_mov_b32 s{sCNT}, 0')
        p.label(lp)
        for k in range(NK):
            p(f's_load_dwordx2 s[{sPOLL+2*k}:{sPOLL+2*k+1}], s[{S_WSP}:{S_WSP+1}], s{sKFl[k]} glc')
        p(f's_add_u32 s{sCNT}, s{sCNT}, 1')
        p(f's_cmp_gt_u32 s{sCNT}, {POLL_MAX}')
        p(f's_cbranch_scc1 {lo}')
        p('s_waitcnt lgkmcnt(0)')
        for k in range(NK):
            p(f's_cmp_eq_u64 s[{sPOLL+2*k}:{sPOLL+2*k+1}], s[{sF}:{sF+1}]')
            p(f's_cbranch_scc0 {lp}')
        p.label(lo)
        self.stamp('kvf')
        for k in range(NK):
            lnull, lb = p.newlabel('null'), p.newlabel('nullback')
            p(f's_bitcmp1_b32 s{sNULL}, {k}')
            p(f's_cbranch_scc1 {lnull}')
            p(f's_mov_b32 m0, s{sKL+k}')
            p(f's_sub_u32 s{sT5}, s{sKD+k}, 768')
            p(f'buffer_load_dwordx4 v{vL16}, {srd(S_WS)}, s{sKD+k} offen sc1 lds')
            p(f'buffer_load_dwordx4 v{vL16}, {srd(S_WS)}, s{sKD+k} offen offset:1024 sc1 lds')
            p(f'buffer_load_dwordx4 v{t0}, {srd(S_WS)}, s{sKD+k} offen offset:2048 sc1 lds')
            p(f'buffer_load_dwordx4 v{t0}, {srd(S_WS)}, s{sT5} offen offset:3072 sc1 lds')
            p.label(lb)
            self.tail.append((lnull, [
                f'v_add_u32 v{t1}, s{sKL+k}, v{vL16}',
                'v_mov_b32 v108, 0', 'v_mov_b32 v109, 0', 'v_mov_b32 v110, 0', 'v_mov_b32 v111, 0'] +
                [f'ds_write_b128 v{t1}, v[108:111] offset:{o}' for o in (0, 2048, 3072)] +
                ['s_mov_b32 exec_lo, 0', 'v_mov_b32 v111, 0xf1490000', 's_mov_b64 exec, -1',
                 f'ds_write_b128 v{t1}, v[108:111] offset:1024', f's_branch {lb}']))
        t2, t3 = 106, 107
        p(f'v_and_b32 v{t2}, 31, v{vL}')
        p(f'v_lshrrev_b32 v{t3}, 5, v{vL}')
        p(f'v_lshlrev_b32 v{t3}, 2, v{t3}')
        p(f'v_sub_u32 v{t2}, v{t2}, v{t3}')
        p(f'v_mov_b32 v{t3}, {f32bits(-1e30):#x}')
        for r in range(0, 16, 2):
            k0, k1 = 8 * (r // 4) + r % 4, 8 * (r // 4) + r % 4 + 1
            p(f'v_cmp_le_i32 vcc, {k0}, v{t2}')
            p(f'v_cmp_le_i32 s[{sPOLL}:{sPOLL+1}], {k1}, v{t2}')
            p('s_nop 0')
            p(f'v_cndmask_b32_e64 v{MD+r}, v{t3}, 0, vcc')
            p(f'v_cndmask_b32_e64 v{MD+r+1}, v{t3}, 0, s[{sPOLL}:{sPOLL+1}]')
            p(f'v_cndmask_b32_e64 v{MW+r}, 0, v{t3}, vcc')
            p(f'v_cndmask_b32_e64 v{MW+r+1}, 0, v{t3}, s[{sPOLL}:{sPOLL+1}]')
        vKA, vVA = vT, vT + 1
        p(f's_lshl_b32 s{sT0}, s{sW}, 12')
        p(f's_add_u32 s{sT0}, s{sT0}, {LKV}')
        p(f'v_add_u32 v{vKA}, s{sT0}, v{vL16}')
        p(f'v_lshrrev_b32 v{t2}, 5, v{vL}')
        p(f'v_bfe_u32 v{t3}, v{vL}, 2, 2')
        p(f'v_lshl_add_u32 v{t2}, v{t2}, 2, v{t3}')
        p(f'v_lshlrev_b32 v{vVA}, 6, v{t2}')
        p(f'v_bfe_u32 v{t2}, v{vL}, 4, 1')
        p(f'v_lshl_add_u32 v{vVA}, v{t2}, 5, v{vVA}')
        p(f'v_and_b32 v{t2}, 1, v{vL}')
        p(f'v_lshl_add_u32 v{vVA}, v{t2}, 4, v{vVA}')
        p(f'v_bfe_u32 v{t2}, v{vL}, 1, 1')
        p(f'v_lshl_add_u32 v{vVA}, v{t2}, 3, v{vVA}')
        p(f'v_add_u32 v{vVA}, s{sT0}, v{vVA}')
        sOD, sOF, sWO = sO, sO + 1, sO + 2
        p(f's_lshl_b32 s{sT0}, s{sTP}, 4')
        p(f's_add_u32 s{sT0}, s{sT0}, s{sJ}')
        p.ext(self.roff(sOD, sT0, 2048, O_O))
        p.ext(self.off(sOF, sT0, 8, O_FO))
        p(f's_lshl_b32 s{sWO}, s{sCB}, 2')
        p(f's_add_u32 s{sWO}, s{sWO}, s{sW}')
        p(f's_lshl_b32 s{sWO}, s{sWO}, 14')
        p(f's_add_u32 s{sWO}, s{sWO}, {WOT}')
        for g in range(1, 4):
            p(f's_add_u32 s{sWO+g}, s{sWO}, {4096*g}')
        vPT = vT + 12
        p(f'v_lshlrev_b32 v{vPT}, 7, v{vL}')
        p(f'v_add_u32 v{vPT}, s{sOD}, v{vPT}')
        p(f's_lshl_b32 s{sT0}, s{sTP}, 7')
        p(f's_lshl_b32 s{sT1}, s{sRB}, 8')
        p(f's_lshl_b32 s{sT2}, s{sRHO}, 7')
        p(f's_add_u32 s{sT2}, s{sT2}, s{sT1}')
        p(f's_mul_i32 s{sT3}, s{sT2}, 28')
        p(f's_lshl_b32 s{sT4}, s{sCB}, 9')
        p(f's_add_u32 s{sT3}, s{sT3}, s{sT4}')
        p(f's_lshl_b32 s{sT4}, s{sNU}, 8')
        p(f's_add_u32 s{sT3}, s{sT3}, s{sT4}')
        for lane, (r, c) in enumerate([(sT0, O_FO), (sT1, O_FO), (sT1, O_FO + 128), (sT0, O_FX1), (sT2, O_FX1),
                                       (sT3, O_ST1), (sT3, O_ST1 + 128), (sT0, O_FH), (sT1, O_FH), (sT1, O_FH + 128),
                                       (sT3, LSTRIDE + O_STA), (sT3, LSTRIDE + O_STA + 128), (sT2, LSTRIDE + O_FXA),
                                       (sT0, LSTRIDE + O_FXA)]):
            p(f's_add_u32 s{sT4}, s{r}, {c}')
            p(f's_add_u32 s{sT4}, s{sT4}, s{sLB}')
            p(f'v_writelane_b32 v{vPT}, s{sT4}, {16 + lane}')
        p(f'v_cmp_lt_u32 vcc, 29, v{vL}')
        p(f'v_mov_b32 v{t2}, s{sT4}')
        p(f'v_cndmask_b32 v{vPT}, v{vPT}, v{t2}, vcc')
        vZ = vT + 8
        p(f's_lshl_b32 s{sT0}, s{sNU}, 10')
        p(f'v_xor_b32 v{vZ}, s{sT0}, v{vL16}')
        p(f'v_xor_b32 v{vZ+1}, 1024, v{vZ}')
        self.pad()
        p('s_waitcnt vmcnt(0) lgkmcnt(0)')
        self.stamp('kvd')
        p('s_barrier')
        self.stamp('A')
        p(f'v_lshlrev_b32 v{t0}, 7, v{vL}')
        p(f's_lshl_b32 s{sT0}, s{sCB}, 2')
        p(f's_add_u32 s{sT0}, s{sT0}, s{sRB}')
        p(f's_lshl_b32 s{sT1}, s{sT0}, 14')
        p(f's_lshl_b32 s{sT2}, s{sW}, 12')
        p(f's_add_u32 s{sT1}, s{sT1}, s{sT2}')
        p(f's_add_u32 s{sT1}, s{sT1}, {WOT}')
        p('s_mov_b32 exec_hi, 0')
        p(f'buffer_load_dword v31, v{t0}, {srd(S_WS)}, s{sT1} offen sc1')
        p('s_mov_b64 exec, -1')
        p(f'buffer_load_dword v31, v{vPT}, {srd(S_WS)}, 0 offen sc1')
        bg = self.w1_dma(0)

        def kread(t):
            return [f'ds_read_b128 {vr(KF+8*t+4*k)}, v{vKA} offset:{t*4096+k*1024}' for k in range(2)]

        def qk(t):
            s = ST + 16 * (t % 3)
            c = vr(MW, 16) if t == 0 else vr(MD, 16) if t == 8 else '0'
            return [f'{MF32} {vr(s,16)}, {vr(KF+8*t)}, {vr(QF)}, {c}',
                    f'{MF32} {vr(s,16)}, {vr(KF+8*t+4)}, {vr(QF+4)}, {vr(s,16)}']
        vM, vM2 = vT + 2, vT + 3

        def mx(t):
            s = ST + 16 * (t % 3)
            L = []
            for i in range(8):
                d = vM if i % 2 == 0 else vM2
                if t == 0 and i < 2:
                    L.append(f'v_max_f32 v{d}, v{s+2*i}, v{s+2*i+1}')
                else:
                    L.append(f'v_max3_f32 v{d}, v{s+2*i}, v{s+2*i+1}, v{d}')
            return L

        def vread(t):
            d = VF + 8 * (t % 2)
            return [f'ds_read_b64_tr_b16 {vr(d+4*kv+2*jj,2)}, v{vVA} offset:{t*4096+2048+(16*kv+8*jj)*64}'
                    for kv in range(2) for jj in range(2)]
        def popbg():
            L = []
            while bg:
                x = bg.pop(0)
                L.append(x)
                if is_mem(x):
                    break
            return L
        for t in range(4):
            p.ext(kread(t))
        q = qk(0)
        p.ext([q[0]] + kread(4) + [q[1]] + kread(5))
        q = qk(1)
        p.ext([q[0]] + kread(6) + [q[1]] + kread(7))
        for t in range(9):
            m = mx(t)
            if t + 2 < 9:
                q = qk(t + 2)
                extra = kread(8) if t == 0 else vread(0)[:2] if t == 5 else vread(0)[2:] if t == 6 else []
                if t % 2 == 1:
                    extra = extra + popbg()
                p.ext([q[0]] + extra + m[:4] + [q[1]] + m[4:])
            else:
                p.ext(m)
        self.stamp('a1')
        a, b2, r1 = vT + 4, vT + 5, vT + 6
        p(f'v_max_f32 v{vM}, v{vM}, v{vM2}')
        p(f'v_mov_b32 v{a}, v{vM}')
        p(f'v_permlane32_swap_b32 v{vM}, v{a}')
        p(f'v_max_f32 v{vM}, v{vM}, v{a}')
        p(f'v_xor_b32 v{vM}, 0x80000000, v{vM}')
        p(f'v_and_b32 v{a}, 0xffff0000, v{vM}')
        p(f'v_sub_f32 v{r1}, v{vM}, v{a}')
        p(f'v_and_b32 v{a}, 0xffff0000, v{r1}')
        p(f'v_sub_f32 v{b2}, v{r1}, v{a}')
        p('s_mov_b32 exec_lo, 0')
        p(f'v_perm_b32 v{QF+6}, v{r1}, v{vM}, s{sPERM}')
        p(f'v_perm_b32 v{QF+7}, 1.0, v{b2}, s{sPERM}')
        p('s_mov_b64 exec, -1')

        def ex(t):
            s = ST + 16 * (t % 3)
            pb = PB + 8 * (t % 2)
            L = []
            for i in range(8):
                L.append(f'v_exp_f32 v{s+2*i}, v{s+2*i}')
                L.append(f'v_exp_f32 v{s+2*i+1}, v{s+2*i+1}')
                if i:
                    L.append(f'v_cvt_pk_bf16_f32 v{pb+i-1}, v{s+2*i-2}, v{s+2*i-1}')
            L.append(f'v_cvt_pk_bf16_f32 v{pb+7}, v{s+14}, v{s+15}')
            return L

        def pv(t):
            d = VF + 8 * (t % 2)
            pb = PB + 8 * (t % 2)
            return [f'{MF32} {vr(OA,16)}, {vr(d)}, {vr(pb)}, {vr(OA,16) if t else 0}',
                    f'{MF32} {vr(OA,16)}, {vr(d+4)}, {vr(pb+4)}, {vr(OA,16)}']

        self.pad()

        def wol(i):
            ks, z = i // 2, i % 2
            return f'buffer_load_dwordx4 {vr(32+4*i)}, v{vZ+z}, {srd(S_WS)}, s{sWO + ks//2} offen offset:{(ks%2)*2048} sc1'
        p.ext(qk(0))
        p.ext(qk(1))
        for t in range(9):
            e = ex(t)
            mf = (pv(t - 1) if t else []) + (qk(t + 2) if t + 2 < 9 else [])
            out = []
            pos = [2, 7, 12, 17]
            for i, x in enumerate(e):
                out.append(x)
                if i in pos and pos.index(i) < len(mf):
                    k = pos.index(i)
                    out.append(mf[k])
                    if t + 1 < 9:
                        if t == 0:
                            out += vread(1)[2 * k:2 * k + 2]
                        elif k in (1, 2):
                            out += vread(t + 1)[2 * (k - 1):2 * (k - 1) + 2]
                        elif t == 7 and k == 1:
                            pass
                    if t < 6 and k in (0, 3) or t == 0:
                        out += popbg()
                    if t >= 7:
                        out += [wol(8 * (t - 7) + 4 * k + q) for q in range(4)]
            if t == 7:
                out = out[:-3] + vread(8)[2:] + out[-3:]
            p.ext(out)
        assert not bg
        p.ext(pv(8))
        self.stamp('a2')
        p(f'v_mov_b32 v{a}, v{OA+12}')
        p(f'v_mov_b32 v{b2}, v{OA+12}')
        p(f'v_permlane32_swap_b32 v{a}, v{b2}')
        p(f'v_rcp_f32 v{b2}, v{b2}')
        for i in range(8):
            p(f'v_pk_mul_f32 {vr(OA+2*i,2)}, {vr(OA+2*i,2)}, {vr(a,2)} op_sel:[0,1] op_sel_hi:[1,1]')
            p(f'v_cvt_pk_bf16_f32 v{PB+i}, v{OA+2*i}, v{OA+2*i+1}')
            if i % 4 == 3:
                p(f'buffer_store_dwordx4 {vr(PB+i-3)}, v{vL16}, {srd(S_WS)}, s{sOD} offen offset:{(i//4)*1024}', tok='ost')
        self.publish(['ost'], sOF)
        self.stamp('att')

    def reduce_writes(self, ACC):
        return [Ins(f'ds_write_b128 v{vRW+x-1}, {vr(ACC+16*x+4*c)} offset:{c*1024}', 'rw') for x in range(1, 4) for c in range(4)]

    def reduce_finish(self, ACC, TMP):
        p = self.p
        p.wait('rw')
        self.pad()
        p('s_barrier')
        for c in range(4):
            for x in range(3):
                p(f'ds_read_b128 {vr(TMP+16*x+4*c)}, v{vRW+3} offset:{x*4096+c*1024}')
        for c in range(8):
            p(f'v_pk_add_f32 {vr(TMP+2*c,2)}, {vr(TMP+2*c,2)}, {vr(TMP+16+2*c,2)}')
            p(f'v_pk_add_f32 {vr(ACC+2*c,2)}, {vr(ACC+2*c,2)}, {vr(TMP+32+2*c,2)}')
            p(f'v_pk_add_f32 {vr(ACC+2*c,2)}, {vr(ACC+2*c,2)}, {vr(TMP+2*c,2)}')

    def yoffs(self, dst, mul, add):
        L = []
        for y in range(2):
            L += [f's_xor_b32 s{sT0}, s{sRHO}, {y}', f's_lshl_b32 s{sT1}, s{sRB}, 1', f's_add_u32 s{sT0}, s{sT0}, s{sT1}',
                  f's_lshl_b32 s{sT0}, s{sT0}, 2', f's_add_u32 s{sT0}, s{sT0}, s{sW}'] + self.roff(dst + y, sT0, mul, add)
        return L

    def p3(self):
        p = self.p
        WO, OF, ACC, RING = 32, 96, 160, 200

        def colsum():
            for i in range(4):
                p(f'v_mov_b32 v{vT+4+i}, s{sONES}')
            p(f's_lshl_b32 s{sT0}, s{sW}, 10')
            p(f'v_add_u32 v{vT}, s{sT0}, v{vL16}')
            p(f's_min_u32 s{sT0}, s{sT0}, 2048')
            p(f'v_add_u32 v{vT+1}, s{sT0}, v{vA1}')
            rd = lambda f: f'ds_read_b128 {vr(RING+4*(f%6))}, v{vT+f%2} offset:{(f//2)*(4096, 3072)[f%2]}'
            for f in range(5):
                p(rd(f))
            for f in range(28):
                a = ACC + 4 * (f % 2)
                p(f'{MF16} {vr(a)}, {vr(vT+4)}, {vr(RING+4*(f%6))}, {vr(a) if f > 1 else 0}')
                if f + 5 < 28:
                    p(rd(f + 5))
            p(f's_lshl_b32 s{sT0}, s{sW}, 6')
            p(f's_add_u32 s{sT0}, s{sT0}, {L_CS1}')
            p(f'v_and_b32 v{vT}, 15, v{vL}')
            p(f'v_lshlrev_b32 v{vT}, 2, v{vT}')
            p(f'v_add_u32 v{vT}, s{sT0}, v{vT}')
            p(f'ds_write_b32 v{vT}, v{ACC}')
            p(f'ds_write_b32 v{vT}, v{ACC+4} offset:256')
            p('s_waitcnt lgkmcnt(0)')
        self.colsum1 = colsum
        w1d = self.w1_dma(1)
        self.pad()
        p('s_barrier')
        ljoin, lidle = p.newlabel('p3join'), p.newlabel('p3idle')
        p(f's_cmp_ge_u32 s{sM}, 28')
        p(f's_cbranch_scc1 {lidle}')
        p.mark('maybe_begin')
        sFO, sY = sO, sO + 2
        p(f's_lshl_b32 s{sT0}, s{sRB}, 3')
        p(f's_add_u32 s{sT0}, s{sT0}, s{sW}')
        p.ext(self.off(sFO, sT0, 32, O_FO))
        p.ext(self.yoffs(sY, 8192, O_O))
        p(f's_add_u32 s{sY+2}, s{sY}, 4096')
        p(f's_add_u32 s{sY+3}, s{sY+1}, 4096')
        p.ext(self.pub_offsets(O_X1, O_ST1, O_FX1))
        self.vpoll(vFLG, sFO, 8)
        self.stamp('B')

        def ld(ks, y):
            return f'buffer_load_dwordx4 {vr(OF+(ks*2+y)*4)}, v{vL16}, {srd(S_WS)}, s{sY + 2*(ks//4) + y} offen offset:{(ks%4)*1024} sc1'

        def mf(ks, x):
            y, z = x >> 1, x & 1
            c = vr(ACC + 16 * x, 16) if ks else (vr(vRES, 16) if x == 0 else '0')
            return f'{MF32} {vr(ACC+16*x,16)}, {vr(WO+(ks*2+z)*4)}, {vr(OF+(ks*2+y)*4)}, {c}'
        for ks in range(5):
            for y in range(2):
                p(ld(ks, y))
        rest = list(w1d)
        for ks in range(8):
            for x in (1, 2, 3):
                p(mf(ks, x))
                if ks + 5 < 8 and x < 3:
                    p(ld(ks + 5, x - 1))
                elif ks >= 3 and rest:
                    y = rest.pop(0)
                    p.ext([y])
                    while rest and not is_mem(y):
                        y = rest.pop(0)
                        p.ext([y])
        assert not rest
        self.stamp('p3mm')
        p.ext(sched([mf(ks, 0) for ks in range(8)], {}, {}, self.reduce_writes(ACC), 2, start=2))
        self.stamp('p3rw')
        self.reduce_finish(ACC, 32)
        self.stamp('p3rd')
        P = 96
        for i in range(8):
            p(f'v_cvt_pk_bf16_f32 v{P+i}, v{ACC+2*i}, v{ACC+2*i+1}')
        self.x_store(P, vX1A, (0, 512))
        self.publish(['xst'], sXF)
        self.stamp('p3pub')
        p.ext(self.res_unpack(P))
        p.mark('maybe_end')
        p.label(ljoin)
        lq = p.newlabel('p3noq')
        vq = [f's_cmp_lg_u32 s{sLAYER}, 0', f's_cbranch_scc1 {ljoin}',
              f's_lshl_b32 s{sT0}, s{sCB}, 2', f's_add_u32 s{sT0}, s{sT0}, s{sW}',
              f's_lshl_b32 s{sT1}, s{sT0}, 7', f's_add_u32 s{sT1}, s{sT1}, {F_WQ}']
        self.idle3 = (lidle, w1d + vq, sT1, ljoin)
        self.pad()
        p('s_waitcnt vmcnt(0)')
        p('s_barrier')
        self.if_layer0(lambda: (self.colsum1(), p('s_barrier')))
        self.stamp('p3')

    def p4(self):
        p = self.p
        X, ACC, RING, CS = 32, 144, 200, 224
        sXO, sST, sFX, sH, sHF = sO, sO + 7, sO + 8, sO + 9, sO + 11
        self.if_layer0(lambda: p.ext(self.w2_loads(0, 12)))
        p.ext(self.xoff(sXO, sTP, 28672, O_X1))
        for g in range(1, 7):
            p(f's_add_u32 s{sXO+g}, s{sXO}, {4096*g}')
        p.ext(self.off(sST, sTP, 3584, O_ST1))
        p.ext(self.off(sFX, sTP, 128, O_FX1))
        p(f's_lshl_b32 s{sT0}, s{sTP}, 4')
        p(f's_add_u32 s{sT0}, s{sT0}, s{sJ}')
        p.ext(self.roff(sH, sT0, 7168, O_H))
        p(f's_add_u32 s{sH+1}, s{sH}, 4096')
        p.ext(self.off(sHF, sT0, 8, O_FH))
        vHA, vHB = vT + 1, vT + 2
        p.ext([f'v_lshrrev_b32 v{vCSA}, 4, v{vL}', f'v_lshlrev_b32 v{vCSA}, 4, v{vCSA}', f'v_add_u32 v{vCSA}, {L_CS1}, v{vCSA}',
               f'v_lshrrev_b32 v{vHA}, 5, v{vL}', f'v_lshlrev_b32 v{vHA}, 10, v{vHA}',
               f'v_bfe_u32 v{vHB}, v{vL}, 4, 1', f'v_lshl_add_u32 v{vHA}, v{vHB}, 9, v{vHA}',
               f'v_and_b32 v{vT+3}, 15, v{vL}', f'v_lshl_add_u32 v{vHA}, v{vT+3}, 4, v{vHA}',
               f'v_lshlrev_b32 v{vHB}, 3, v{vHB}', f'v_lshl_add_u32 v{vHB}, v{vT+3}, 4, v{vHB}',
               f'v_lshrrev_b32 v{vT+3}, 5, v{vL}', f'v_lshl_add_u32 v{vHB}, v{vT+3}, 9, v{vHB}'])
        seq = [(t, s) for s in range(14) for t in range(4)] + [(t, s) for s in range(14) for t in range(4, 7)]

        def frag(f):
            base, off = (vL16, f * 1024) if f < 56 else (vA1, (f - 56) * 1024)
            return f'ds_read_b128 {vr(RING + 4*(f % 6))}, v{base} offset:{off}'

        def mf(f, u):
            t, s = seq[f]
            return f'{MF16} {vr(ACC+8*t+4*u)}, {vr(RING+4*(f%6))}, {vr(X+4*(2*s+u))}, {vr(ACC+8*t+4*u) if s else 0}'

        def xl(i):
            return f'buffer_load_dwordx4 {vr(X+4*i)}, v{vL16}, {srd(S_WS)}, s{sXO + i//4} offen offset:{(i%4)*1024} sc1'
        PD = 4
        for f in range(PD):
            p(frag(f))
        self.pad()
        self.vpoll(vL8, sFX, 14)
        self.stamp('C')
        XP = 8
        for i in range(XP):
            p(xl(i))
        mem, pre = {}, {}
        for f in range(98):
            mem[2 * f] = [frag(f + PD)] if f + PD < 98 else []
            if f < 56 and f % 2 == 0 and f // 2 + XP < 28:
                mem[2 * f + 1] = [xl(f // 2 + XP)]
            if 27 <= f < 41 and f % 2 == 1:
                mem[2 * f + 1] = [self.stats_loads(sST, CS)[(f - 27) // 2]]
            if f % 2 == 0:
                tch = vr(RING + 4 * (f % 6)) + ' ' + vr(RING + 4 * ((f + 1) % 6))
                if f < 56 and f % 4 == 0:
                    tch += ' ' + vr(X + 8 * (f // 4), 8)
                pre[2 * f] = [Touch(tch)]
        mfs = [mf(f, u) for f in range(98) for u in range(2)]
        side = self.stats_reduce(CS) + [f'v_mov_b32 v{vRSTD}, v{vMEAN}', 's_nop 0', f'v_permlane16_swap_b32 v{vMEAN}, v{vRSTD}']
        p.ext(sched(mfs[:112], pre, mem, side, 2, start=92))
        self.stamp('p4g1')
        PO = vT + 4

        def epi(tiles, tok):
            L = []
            for t in tiles:
                L.append(f'ds_read_b128 {vr(CS+4*(t%4))}, v{vCSA} offset:{t*64}')
            pairs = [tiles[i:i + 2] for i in range(0, len(tiles), 2)]
            n = 0
            for pr in pairs:
                for u in range(2):
                    po = PO + 4 * (n % 3)
                    n += 1
                    mean = (vMEAN, vRSTD)[u]
                    for k, t in enumerate(pr):
                        a = ACC + 8 * t + 4 * u
                        for r in range(4):
                            L.append(f'v_fma_f32 v{a+r}, v{CS+4*(t%4)+r}, v{mean}, v{a+r}')
                        for r in range(2):
                            L.append(f'v_cvt_pk_bf16_f32 v{po+2*k+r}, v{a+2*r}, v{a+2*r+1}')
                        for r in range(2):
                            L.append(f'v_pk_max_i16 v{po+2*k+r}, v{po+2*k+r}, 0')
                    t = pr[0]
                    so, off = (sH, t * 1024) if t < 4 else (sH + 1, (t - 4) * 1024)
                    if len(pr) == 2:
                        L.append(Ins(f'buffer_store_dwordx4 {vr(po)}, v{vHA}, {srd(S_WS)}, s{so} offen offset:{off+u*256}', tok))
                    else:
                        L.append(Ins(f'buffer_store_dwordx2 {vr(po,2)}, v{vHB}, {srd(S_WS)}, s{so} offen offset:{off+u*256}', tok))
            return L
        pre2 = {i - 112: v for i, v in pre.items() if i >= 112}
        mem2 = {i - 112: v for i, v in mem.items() if i >= 112}
        self.pad()
        p('s_barrier')
        wq = self.wq_dma((0, 1), sXO)
        i = 1
        for x in wq:
            mem2.setdefault(i, []).append(x)
            if is_mem(x):
                i += 4
        p.ext(sched(mfs[112:], pre2, mem2, epi([0, 1, 2, 3], 'hst'), 2, start=0))
        self.stamp('p4g2')
        p.ext(epi([4, 5, 6], 'hst'))
        self.stamp('p4ep')
        self.publish(['hst'], sHF)
        self.pad()
        p('s_barrier')
        self.stamp('p4')

    def p5(self):
        p = self.p
        HR, ACC, CS = 32, 160, 224
        lskip, ljoin, llast = p.newlabel('p5skip'), p.newlabel('p5join'), p.newlabel('p5last')
        p(f's_cmp_ge_u32 s{sM}, 28')
        p(f's_cbranch_scc1 {lskip}')
        sFH, sST, sY = sO, sO + 1, sO + 2
        self.if_layer0(lambda: p.ext(self.w2_loads(12, 28)))
        p(f's_lshl_b32 s{sT0}, s{sRB}, 3')
        p(f's_add_u32 s{sT0}, s{sT0}, s{sW}')
        p.ext(self.off(sFH, sT0, 32, O_FH))
        p.ext(self.yoffs(sY, 28672, O_H))
        for g in range(1, 7):
            for y in range(2):
                p(f's_add_u32 s{sY+2*g+y}, s{sY+y}, {4096*g}')
        p(f's_lshl_b32 s{sT0}, s{sRB}, 1')
        p(f's_add_u32 s{sT0}, s{sT0}, s{sRHO}')
        p.ext(self.off(sST, sT0, 3584, O_ST1))
        p.ext(self.pub_offsets(O_XA + LSTRIDE, O_STA + LSTRIDE, O_FXA + LSTRIDE))
        self.pad()
        self.vpoll(vFLG, sFH, 8)
        self.stamp('D')
        NR = 16

        def ld(ks, y):
            return f'buffer_load_dwordx4 {vr(HR+((ks%NR)*2+y)*4)}, v{vL16}, {srd(S_WS)}, s{sY + 2*(ks//4) + y} offen offset:{(ks%4)*1024} sc1'

        def mf(ks, x):
            y, z = x >> 1, x & 1
            return f'{MF32} {vr(ACC+16*x,16)}, {ar(ks*8+z*4)}, {vr(HR+((ks%NR)*2+y)*4)}, {vr(ACC+16*x,16) if ks else 0}'
        PD = 5
        for ks in range(PD):
            p(ld(ks, 0))
            p(ld(ks, 1))
        TAIL = 14
        mfs, mem = [], {}
        bgl = self.stats_loads(sST, CS)
        for ks in range(28):
            xs = (0, 1, 2, 3) if ks < 28 - TAIL else (1, 2, 3)
            for n, x in enumerate(xs):
                i = len(mfs)
                mfs.append(mf(ks, x))
                if ks + PD < 28:
                    if n < 2:
                        mem[i] = [ld(ks + PD, n)]
                else:
                    mem[i] = []
                    while bgl:
                        y = bgl.pop(0)
                        mem[i].append(y)
                        if is_mem(y):
                            break
        p.ext(sched(mfs, {}, mem, [], 6))
        self.stamp('p5mm')
        sr = self.stats_reduce(CS)
        mem = {}
        for i, x in enumerate(self.reduce_writes(ACC)):
            mem.setdefault(2 + i, []).append(x)
        p.ext(sched([mf(ks, 0) for ks in range(28 - TAIL, 28)], {}, mem, bgl + sr, 5, start=0))
        self.stamp('p5rw')
        self.reduce_finish(ACC, 32)
        self.stamp('p5rd')
        P = 96
        for i in range(8):
            p(f'v_pk_fma_f32 {vr(ACC+2*i,2)}, {vr(ACC+2*i,2)}, {vr(vMEAN,2)}, {vr(vRES+2*i,2)} op_sel:[0,1,0] op_sel_hi:[1,1,1]')
            p(f'v_cvt_pk_bf16_f32 v{P+i}, v{ACC+2*i}, v{ACC+2*i+1}')
        p(f's_cmp_lg_u32 s{sLAYER}, 0')
        p(f's_cbranch_scc1 {llast}')
        self.x_store(P, vL16, (0, 1024))
        p.ext(self.wq_dma((2,)))
        self.publish(['xst'], sXF)
        self.stamp('p5pub')
        p.ext(self.res_unpack(P))
        p.label(ljoin)
        p('s_waitcnt vmcnt(0) lgkmcnt(0)')
        p('s_barrier')
        p(f's_mov_b32 s{sLAYER}, 1')
        p(f's_add_u32 s{sLB}, s{sLB}, {LSTRIDE}')
        p('s_branch L_layer')
        self.tail.append((lskip, [f's_cmp_lg_u32 s{sLAYER}, 0', 's_cbranch_scc1 L_fin'] + self.wq_dma((2,)) + [f's_branch {ljoin}']))
        p.label(llast, reset='all')
        p(f'v_and_b32 v{vT+4}, 31, v{vL}')
        p(f'v_mul_u32_u24 v{vT+4}, 896, v{vT+4}')
        p(f'v_lshrrev_b32 v{vT+5}, 5, v{vL}')
        p(f'v_lshl_add_u32 v{vT+4}, v{vT+5}, 4, v{vT+4}')
        for hf in range(2):
            p(f'v_permlane32_swap_b32 v{P+4*hf}, v{P+4*hf+2}')
            p(f'v_permlane32_swap_b32 v{P+4*hf+1}, v{P+4*hf+3}')
            p(f'buffer_store_dwordx4 {vr(P+4*hf)}, v{vT+4}, {srd(S_OUT)}, s{sQOFF} offen offset:{32*hf}')
        p('s_cmp_lg_u32 s2, %d' % (27 * 8 + 7))
        p('s_cbranch_scc1 L_fin')
        p(f's_mov_b32 s{sT0}, {WS_EPOCH}')
        p.ext(self.flag_sc1(sT0))

    def build(self):
        p = self.p
        self.prologue()
        p.label('L_layer', reset='all')
        for i, ph in enumerate(('p1', 'attn', 'p3', 'p4', 'p5')):
            getattr(self, ph)()
            if self.stop is not None and i + 1 >= self.stop:
                break
        p.label('L_fin')
        self.stamp('end')
        self.stamp_dump()
        p.label('L_end')
        p('s_endpgm')
        if hasattr(self, 'idle3'):
            lab, code, sfl, back = self.idle3
            p.label(lab, reset='all')
            p.ext(code)
            self.vpoll(vL8, sfl, 14, acquire=False)
            p(f'v_lshlrev_b32 v{vT}, 7, v{vL}')
            p(f's_mul_i32 s{sT1}, s{sT0}, 86016')
            p.ext(self.prefetch(vT, sT1, WQT, 86016))
            p(f's_branch {back}')
        for lab, code in self.tail:
            p.label(lab, reset='all')
            p.ext(code)
        p.label('L_codeend')
        self.emit_walker()
        p.insert_waits()
        probs = p.fix_hazards()
        for x in probs:
            print('branch hazard padded', x, file=sys.stderr)
        mx = p.maxregs()
        head = open(os.path.join(os.path.dirname(__file__), '..', 'cdna_kernels', NAME + '.s.ref')).read().split('\n')
        hdr = [l for l in head if l.startswith(';') and '@launch' not in l]
        out = '\n'.join(hdr) + f'\n; @launch grid=(256,1,1) block=(256,1,1) lds={LDS_BYTES}\n'
        out += '.amdgcn_target "amdgcn-amd-amdhsa--gfx950"\n.text\n'
        out += f'.globl {NAME}_kernel\n.p2align 8\n.type {NAME}_kernel,@function\n{NAME}_kernel:\n'
        out += p.text()
        out += '.fill 64, 4, 0xbf800000\n'
        out += f'''.section .rodata,"a"
.p2align 6
.amdhsa_kernel {NAME}_kernel
  .amdhsa_next_free_vgpr 512
  .amdhsa_next_free_sgpr 102
  .amdhsa_accum_offset 256
  .amdhsa_group_segment_fixed_size 0
  .amdhsa_kernarg_size 72
  .amdhsa_user_sgpr_count 2
  .amdhsa_user_sgpr_kernarg_segment_ptr 1
  .amdhsa_system_sgpr_workgroup_id_x 1
  .amdhsa_float_denorm_mode_32 3
.end_amdhsa_kernel
'''
        print('regs', mx, 'instrs', sum(1 for x in p.items if isinstance(x, Ins)), file=sys.stderr)
        return out


if __name__ == '__main__':
    stop = int(sys.argv[2]) if len(sys.argv) > 2 else None
    k = K(stop if stop and stop > 0 else None, dbg=sys.argv[3].split(',') if len(sys.argv) > 3 else None)
    open(sys.argv[1], 'w').write(k.build())
    if k.dbg:
        open(os.path.join(os.path.dirname(sys.argv[1]), 'stamps.txt'), 'w').write(' '.join(k.stamps))
```

```python
import sys, os, math, struct
sys.path.insert(0, os.path.dirname(__file__))
from asmlib import Prog, Ins, Wait, Mark, Label, Touch

NAME = 'interleave_layers__sliding_block__dense_activation_relu__prompt'

WS_EPOCH = 0
WS_PUR = 0x1000
F_WQ = 0x2000
F_W1 = 0x2800
F_W2 = 0x3000
F_WO = 0x4000
WQT = 0x100000
W1T = 0x250000
WOT = 0x3D8000
W2T = 0x448000
TEAM0 = 0x600000
LSTRIDE = 0x230000
STRIDE = 2 * LSTRIDE
O_KV = 0x000000
O_O = 0x080000
O_X1 = 0x0C0000
O_XA = 0x0F8000
O_ST1 = 0x130000
O_STA = 0x138000
O_FKV = 0x140000
O_FO = 0x144000
O_FX1 = 0x144400
O_FXA = 0x144800
O_FH = 0x145000
O_H = 0x150000
WS_BYTES = TEAM0 + 8 * STRIDE

LKV = 100352
L_CSQ = 149504
L_CS1 = L_CSQ + 512
LDS_BYTES = 163840

S_X, S_WQ, S_WO, S_W1, S_W2, S_OUT, S_WS = 8, 12, 16, 20, 24, 28, 32
S_WSP = 36
sTEAM, sM, sA, sJ, sW, sRB, sCB, sLB = 40, 41, 42, 43, 44, 45, 46, 47
sF, sPURE, sLAYER, sTP = 48, 50, 51, 52
sQOFF = 53
sHI = 54
sPERM, sONES = 56, 57
sRHO, sNU = 58, 59
sT0, sT1, sT2, sT3, sT4, sT5 = 60, 61, 62, 63, 64, 65
sCNT = 66
sTB = 71
sJFL = 67
sXD, sXS, sXF = 68, 69, 70
sPOLL = 72
sO = 80

vL, vL16, vA1, vL8 = 0, 1, 2, 3
vSTA = 4
vFLG = 5
vRW = 6
vX1A = 10
vCSA = 11
vF = 12
vMEAN, vRSTD = 14, 15
vT = 16
vRES = 240

POLL_MAX = 1 << 16
MF32 = 'v_mfma_f32_32x32x16_bf16'
MF16 = 'v_mfma_f32_16x16x32_bf16'


def srd(b):
    return f's[{b}:{b+3}]'


def vr(b, n=4):
    return f'v[{b}:{b+n-1}]' if n > 1 else f'v{b}'


def ar(b, n=4):
    return f'a[{b}:{b+n-1}]'


def f32bits(x):
    return struct.unpack('<I', struct.pack('<f', x))[0]


def is_mem(x):
    if isinstance(x, (list, tuple)):
        return any(is_mem(y) for y in x)
    t = x.text if isinstance(x, Ins) else x if isinstance(x, str) else ''
    return t.startswith('ds_') or t.startswith('buffer_') or t.startswith('global_')


def cost(x):
    if isinstance(x, (list, tuple)):
        return sum(cost(y) for y in x)
    if isinstance(x, (Wait, Touch)):
        return 1
    t = x.text if isinstance(x, Ins) else x
    return 2 if t.startswith('v_exp') or t.startswith('v_rsq') or t.startswith('v_rcp') or t.startswith('v_permlane') else 1


def sched(mfs, pre, mem, side, cap, start=0):
    out = []
    side = list(side)
    for i, m in enumerate(mfs):
        out += pre.get(i, [])
        out.append(m)
        n = 0
        for x in mem.get(i, []):
            out.append(x)
            n += cost(x)
        if pre.get(i + 1):
            n += 1
        valu = False
        if i >= start:
            while side and n + cost(side[0]) <= cap:
                if is_mem(side[0]) and valu:
                    break
                x = side.pop(0)
                if not is_mem(x) and not isinstance(x, (Wait, Touch)):
                    t = x[0] if isinstance(x, (list, tuple)) else x
                    if any((y.text if isinstance(y, Ins) else y).startswith('v_') for y in (x if isinstance(x, (list, tuple)) else [x])):
                        valu = True
                out.append(x)
                n += cost(x)
            if side and n == 0 and cost(side[0]) > cap:
                out.append(side.pop(0))
    return out + side


class K:
    def __init__(self, stop=None, dbg=False):
        self.p = Prog()
        self.stop = stop
        self.dbg = dbg
        self.stamps = []
        self.tail = []
        self.pads = []

    def stamp(self, name):
        if not self.dbg or (name not in self.dbg and name not in ('start', 'end')):
            return
        k = len(self.stamps)
        assert k < 16
        self.stamps.append(name)
        p = self.p
        p('s_memrealtime s[96:97]' if 'RT' in self.dbg else 's_memtime s[96:97]')
        p('s_waitcnt lgkmcnt(0)')
        l1 = p.newlabel('st')
        p(f's_cmp_lg_u32 s{sLAYER}, 0')
        p(f's_cbranch_scc1 {l1}')
        p(f'v_accvgpr_write_b32 a{224+k}, s96')
        p.label(l1)
        p(f'v_accvgpr_write_b32 a{240+k}, s96')

    def stamp_dump(self):
        if not self.dbg:
            return
        p = self.p
        p(f's_lshl_b32 s{sT0}, s2, 2')
        p(f's_add_u32 s{sT0}, s{sT0}, s{sW}')
        p(f's_lshl_b32 s{sT0}, s{sT0}, 7')
        p(f's_add_u32 s{sT0}, s{sT0}, 0x40000')
        p('s_mov_b64 exec, 1')
        for k in range(32):
            p(f'buffer_store_dword a{224+k}, off, {srd(S_WS)}, s{sT0} offset:{4*k}')
        if 'DBG' in self.dbg:
            p('s_cmp_lg_u32 s2, 43')
            p('s_cbranch_scc1 L_end')
            p(f's_cmp_lg_u32 s{sW}, 1')
            p('s_cbranch_scc1 L_end')
            p('s_load_dwordx2 s[96:97], s[0:1], 56')
            p('v_accvgpr_read_b32 v16, a224')
            p('v_mov_b32 v18, 0')
            p('s_waitcnt lgkmcnt(0)')
            n = len(self.stamps)
            f = self.stamps.index('pro') + 1 if 'pro' in self.stamps else 1
            regs = [224 + k for k in range(1, n - 1)] + [240 + k for k in range(f, n)]
            for i, r in enumerate(regs[:16]):
                p(f'v_accvgpr_read_b32 v17, a{r}')
                p('v_sub_u32 v17, v17, v16')
                p(f'global_store_dword v18, v17, s[96:97] offset:{4*i}')
        p('s_mov_b64 exec, -1')

    def dma(self, srdb, voff, sreg, simm, m0, tok, sc='', n=1):
        mr, mi = m0
        L = [f's_add_u32 m0, s{mr}, {mi}' if mr is not None else f's_mov_b32 m0, {mi}',
             f's_add_u32 s{sT5}, s{sreg}, {simm}']
        for k in range(n):
            L.append(Ins(f'buffer_load_dwordx4 v{voff}, {srd(srdb)}, s{sT5} offen offset:{1024*k} {sc} lds', tok))
        return L

    def if_layer0(self, body):
        p = self.p
        l = p.newlabel('l0')
        p(f's_cmp_lg_u32 s{sLAYER}, 0')
        p(f's_cbranch_scc1 {l}')
        p.mark('maybe_begin')
        body()
        p.mark('maybe_end')
        p.label(l)

    def vpoll(self, voff, soff, nl, acquire=True):
        p = self.p
        lp, lo = p.newlabel('poll'), p.newlabel('pollout')
        p(f's_mov_b64 exec, {(1 << nl) - 1:#x}')
        p(f's_mov_b32 s{sCNT}, 0')
        p.label(lp)
        p(f'buffer_load_dwordx2 {vr(vT + 14, 2)}, v{voff}, {srd(S_WS)}, s{soff} offen sc1')
        p(f's_add_u32 s{sCNT}, s{sCNT}, 1')
        p(f's_cmp_gt_u32 s{sCNT}, {POLL_MAX}')
        p(f's_cbranch_scc1 {lo}')
        p('s_waitcnt vmcnt(0)')
        p(f'v_cmp_ne_u64 vcc, s[{sF}:{sF+1}], {vr(vT + 14, 2)}')
        p(f's_cbranch_vccnz {lp}')
        p.label(lo)
        p('s_mov_b64 exec, -1')
        if acquire:
            lslow, lback = p.newlabel('acq'), p.newlabel('acqback')
            p(f's_cmp_lg_u32 s{sPURE}, 0')
            p(f's_cbranch_scc0 {lslow}')
            p.label(lback)
            self.tail.append((lslow, ['buffer_inv sc1', 's_waitcnt vmcnt(0)', f's_branch {lback}']))
        p.mark('drained_vm')

    def publish(self, toks, soff):
        p = self.p
        p.wait(*toks)
        lslow, lback = p.newlabel('pubslow'), p.newlabel('pubback')
        p('s_mov_b64 exec, 1')
        p(f's_cmp_lg_u32 s{sPURE}, 0')
        p(f's_cbranch_scc0 {lslow}')
        p(f'buffer_store_dwordx2 {vr(vF, 2)}, off, {srd(S_WS)}, s{soff}')
        p.label(lback)
        p('s_mov_b64 exec, -1')
        self.tail.append((lslow, [
            'buffer_wbl2 sc1', 's_waitcnt vmcnt(0)',
            f'buffer_store_dwordx2 {vr(vF, 2)}, off, {srd(S_WS)}, s{soff} sc1',
            f's_branch {lback}']))

    def flag_sc1(self, soff):
        return ['s_mov_b64 exec, 1', f'buffer_store_dwordx2 {vr(vF,2)}, off, {srd(S_WS)}, s{soff} sc1', 's_mov_b64 exec, -1']

    def stats_loads(self, soff, dst):
        return [f'buffer_load_dwordx2 {vr(dst + 2*i, 2)}, v{vSTA}, {srd(S_WS)}, s{soff} offen offset:{256*i} sc1' for i in range(7)]

    def stats_reduce(self, src):
        L = []
        for i in range(1, 7):
            L.append(f'v_add_f32 v{src}, v{src}, v{src+2*i}')
            L.append(f'v_add_f32 v{src+1}, v{src+1}, v{src+2*i+1}')
        s, q, t0, t1 = src, src + 1, src + 2, src + 3
        return L + [
            f'v_mov_b32 v{t0}, v{s}', f'v_mov_b32 v{t1}, v{q}', 's_nop 0',
            f'v_permlane32_swap_b32 v{s}, v{t0}', f'v_permlane32_swap_b32 v{q}, v{t1}',
            f'v_add_f32 v{s}, v{s}, v{t0}', f'v_add_f32 v{q}, v{q}, v{t1}',
            f'v_mul_f32 v{vMEAN}, {f32bits(-1.0/448):#x}, v{s}',
            f'v_mul_f32 v{q}, {f32bits(1.0/448):#x}, v{q}',
            f'v_fma_f32 v{q}, -v{vMEAN}, v{vMEAN}, v{q}',
            f'v_max_f32 v{q}, 0, v{q}',
            f'v_add_f32 v{q}, {f32bits(1e-5):#x}, v{q}',
            f'v_rsq_f32 v{vRSTD}, v{q}',
        ]

    def off(self, dst, idx_reg, mul, add):
        return [f's_mul_i32 s{dst}, s{idx_reg}, {mul}', f's_add_u32 s{dst}, s{dst}, s{sLB}', f's_add_u32 s{dst}, s{dst}, {add}']

    def xoff(self, dst, idx_reg, mul, add):
        return [f's_add_u32 s{sT3}, s{sLB}, {add}', f's_add_u32 s{sT4}, s{sTB}, {O_XA}', f's_cmp_lg_u32 s{sPURE}, 0',
                f's_cselect_b32 s{sT3}, s{sT4}, s{sT3}', f's_mul_i32 s{dst}, s{idx_reg}, {mul}', f's_add_u32 s{dst}, s{dst}, s{sT3}']

    def roff(self, dst, idx_reg, mul, add):
        return [f's_cmp_lg_u32 s{sPURE}, 0', f's_cselect_b32 s{sT3}, s{sTB}, s{sLB}',
                f's_mul_i32 s{dst}, s{idx_reg}, {mul}', f's_add_u32 s{dst}, s{dst}, s{sT3}', f's_add_u32 s{dst}, s{dst}, {add}']

    def pub_offsets(self, xoff, stoff, foff):
        return [f's_lshl_b32 s{sT0}, s{sRB}, 1', f's_add_u32 s{sT0}, s{sT0}, s{sRHO}',
                f's_lshl_b32 s{sT1}, s{sCB}, 1', f's_add_u32 s{sT1}, s{sT1}, s{sNU}',
                f's_mul_i32 s{sT2}, s{sT0}, 14', f's_add_u32 s{sT2}, s{sT2}, s{sT1}'] + \
            self.xoff(sXD, sT2, 2048, xoff) + self.off(sXS, sT2, 256, stoff) + \
            [f's_lshl_b32 s{sT0}, s{sT0}, 4', f's_add_u32 s{sT0}, s{sT0}, s{sT1}'] + self.off(sXF, sT0, 8, foff)

    def x_store(self, P, va, offs, sc=''):
        p = self.p
        S, Q2, t0, t1 = vT + 6, vT + 7, vT + 8, vT + 9
        for k in range(2):
            p(f'buffer_store_dwordx4 {vr(P+4*k)}, v{va}, {srd(S_WS)}, s{sXD} offen offset:{offs[k]} {sc}', tok='xst')
        p(f'v_mov_b32 v{t0}, s{sONES}')
        p(f'v_dot2_f32_bf16 v{S}, v{P}, v{t0}, 0')
        p(f'v_dot2_f32_bf16 v{Q2}, v{P}, v{P}, 0')
        for i in range(1, 8):
            p(f'v_dot2_f32_bf16 v{S}, v{P+i}, v{t0}, v{S}')
            p(f'v_dot2_f32_bf16 v{Q2}, v{P+i}, v{P+i}, v{Q2}')
        p(f'v_mov_b32 v{t0}, v{S}')
        p(f'v_mov_b32 v{t1}, v{Q2}')
        p(f'v_permlane32_swap_b32 v{S}, v{t0}')
        p(f'v_permlane32_swap_b32 v{Q2}, v{t1}')
        p(f'v_add_f32 v{S}, v{S}, v{t0}')
        p(f'v_add_f32 v{Q2}, v{Q2}, v{t1}')
        p('s_mov_b32 exec_hi, 0')
        p(f'buffer_store_dwordx2 {vr(S,2)}, v{vL8}, {srd(S_WS)}, s{sXS} offen {sc}', tok='xst')
        p('s_mov_b64 exec, -1')

    def res_unpack(self, P):
        L = []
        for q in range(8):
            L.append(f'v_lshlrev_b32 v{vRES+2*q}, 16, v{P+q}')
            L.append(f'v_and_b32 v{vRES+2*q+1}, 0xffff0000, v{P+q}')
        return L

    def prefetch(self, v128, sreg, base, nbytes):
        L = []
        o = 0
        while o < nbytes:
            oo = min(o, nbytes - 8192)
            L += [f's_add_u32 s{sT5}, s{sreg}, {base + oo}', f'buffer_load_dword v31, v{v128}, {srd(S_WS)}, s{sT5} offen sc1']
            o += 8192
        return L

    def wq_dma(self, tiles, dummy=None):
        L = [f's_mul_i32 s{sT0}, s{sJ}, 86016', f's_mul_i32 s{sT1}, s{sW}, 7168',
             f's_add_u32 s{sT0}, s{sT0}, s{sT1}']
        if dummy is not None:
            L += [f's_sub_u32 s{sT2}, s{dummy}, {WQT}', f's_cmp_lg_u32 s{sLAYER}, 0', f's_cselect_b32 s{sT0}, s{sT2}, s{sT0}']
        for tau in tiles:
            for o, n in ((0, 4), (4096, 3)):
                d = self.dma(S_WS, vL16, sT0, WQT + tau * 28672 + o, (sT1, tau * 28672 + o), 'wq', 'sc1', n)
                L += [d[:3]] + d[3:]
        return L

    def w1_dma(self, part):
        sg, sl = sPOLL, sPOLL + 1
        L = []
        if part == 0:
            L += [f's_mul_i32 s{sg}, s{sJ}, 100352', f's_mul_i32 s{sl}, s{sW}, 14336', f's_add_u32 s{sg}, s{sg}, s{sl}']
            groups = [(0, 4), (4096, 4), (8192, 4), (12288, 2)]
            base = 0
        else:
            L += [f's_mul_i32 s{sg}, s{sJ}, 100352', f's_mul_i32 s{sl}, s{sW}, 10240', f's_add_u32 s{sg}, s{sg}, s{sl}']
            groups = [(0, 4), (4096, 4), (8192, 2)]
            base = 57344
        for o, n in groups:
            d = self.dma(S_WS, vL16, sg, W1T + base + o, (sl, base + o), 'w1', 'sc1', n)
            L += [d[:3]] + d[3:]
        if part == 1:
            L += [f's_sub_u32 s{sg}, s{sg}, s{sl}', f's_lshl_b32 s{sl}, s{sNU}, 10', f's_add_u32 s{sg}, s{sg}, s{sl}']
            L.append(self.dma(S_WS, vL16, sg, W1T + 98304, (sl, 98304), 'w1', 'sc1', 1))
        return L

    def w2_loads(self, lo, hi):
        L = [f's_lshl_b32 s{sT0}, s{sCB}, 2', f's_add_u32 s{sT0}, s{sT0}, s{sW}', f's_mul_i32 s{sT0}, s{sT0}, 57344',
             f's_lshl_b32 s{sT1}, s{sNU}, 10', f'v_xor_b32 v{vT+10}, s{sT1}, v{vL16}', f'v_xor_b32 v{vT+11}, 1024, v{vT+10}']
        for ks in range(lo, hi):
            if ks == lo or ks % 2 == 0:
                L.append(f's_add_u32 s{sT1}, s{sT0}, {W2T + (ks//2)*4096}')
            for z in range(2):
                L.append(f'buffer_load_dwordx4 {ar(ks*8+z*4)}, v{vT+10+z}, {srd(S_WS)}, s{sT1} offen offset:{(ks%2)*2048} sc1')
        return L

    def lane_consts(self):
        p = self.p
        t0, t1 = vT + 6, vT + 7
        p(f'v_add_u32 v{vA1}, 57344, v{vL16}')
        p(f'v_and_b32 v{vSTA}, 31, v{vL}')
        p(f'v_lshlrev_b32 v{vSTA}, 3, v{vSTA}')
        p(f'v_lshrrev_b32 v{t0}, 5, v{vL}')
        p(f'v_mul_u32_u24 v{t1}, {7*256}, v{t0}')
        p(f'v_add_u32 v{vSTA}, v{vSTA}, v{t1}')
        p(f'v_lshrrev_b32 v{vFLG}, 2, v{vL}')
        p(f'v_lshlrev_b32 v{vFLG}, 7, v{vFLG}')
        p(f'v_and_b32 v{t1}, 3, v{vL}')
        p(f'v_lshl_add_u32 v{vFLG}, v{t1}, 3, v{vFLG}')
        for x in range(1, 4):
            p(f's_xor_b32 s{sT0}, s{sW}, {x}')
            p(f's_mul_i32 s{sT0}, s{sT0}, 12288')
            p(f's_add_u32 s{sT0}, s{sT0}, {LKV + (x-1)*4096}')
            p(f'v_add_u32 v{vRW+x-1}, s{sT0}, v{vL16}')
        p(f's_mul_i32 s{sT0}, s{sW}, 12288')
        p(f's_add_u32 s{sT0}, s{sT0}, {LKV}')
        p(f'v_add_u32 v{vRW+3}, s{sT0}, v{vL16}')
        p(f'v_bfe_u32 v{vX1A}, v{vL}, 4, 1')
        p(f'v_lshlrev_b32 v{vX1A}, 10, v{vX1A}')
        p(f'v_lshl_add_u32 v{vX1A}, v{t0}, 8, v{vX1A}')
        p(f'v_and_b32 v{t1}, 15, v{vL}')
        p(f'v_lshl_add_u32 v{vX1A}, v{t1}, 4, v{vX1A}')

    def pad(self):
        p = self.p
        k = len(self.pads)
        self.pads.append(f'L_pad{k}')
        p(f's_branch L_padskip{k}')
        p.label(f'L_pad{k}')
        p('s_setpc_b64 s[98:99]')
        p.label(f'L_padskip{k}')

    def emit_walker(self):
        L = []
        labs = [f'L_walk{w}' for w in range(4)]
        for w in range(1, 4):
            L += [Ins(f's_cmp_eq_u32 s{sW}, {w}'), Ins(f's_cbranch_scc1 {labs[w]}')]
        for w in range(4):
            if w:
                L.append(Label(labs[w]))
            for x in self.pads[w::4]:
                L.append(Ins(f's_call_b64 s[98:99], {x}'))
            if w < 3:
                L.append(Ins('s_branch L_walkend'))
        L.append(Label('L_walkend'))
        self.p.items[self.walker_at:self.walker_at] = L

    def prologue(self):
        p = self.p
        t0, t1, t2, t3 = vT, vT + 1, vT + 2, vT + 3
        vDQ, vTQ, vWQ = vT + 10, vT + 11, vT + 12
        sRQ, sLQ = sO + 6 + 16, sO + 7 + 16
        sRQ, sLQ = 76, 77
        p('s_cmp_ge_u32 s2, 256')
        p('s_cbranch_scc1 L_end')
        p(f's_load_dwordx16 s[{sO}:{sO+15}], s[0:1], 0')
        p(f's_load_dwordx2 s[{S_WSP}:{S_WSP+1}], s[0:1], 64')
        p(f's_getpc_b64 s[{sT0}:{sT0+1}]')
        p.label('L_pc')
        p(f'v_lshlrev_b32 v{t2}, 7, v0')
        p(f'v_min_u32 v{t2}, L_codeend-L_pc, v{t2}')
        p(f'global_load_dword v31, v{t2}, s[{sT0}:{sT0+1}]')
        p(f's_mov_b32 s{sLAYER}, 0')
        self.stamp('start')
        p(f'v_lshrrev_b32 v{vT}, 6, v0')
        p(f'v_and_b32 v{vL}, 63, v0')
        p(f'v_readfirstlane_b32 s{sW}, v{vT}')
        p(f's_and_b32 s{sTEAM}, s2, 7')
        p(f's_lshr_b32 s{sM}, s2, 3')
        p(f's_and_b32 s{sJ}, s{sM}, 15')
        p(f's_mul_i32 s{sRB}, s{sM}, 37')
        p(f's_lshr_b32 s{sRB}, s{sRB}, 8')
        p(f's_mul_i32 s{sT0}, s{sRB}, 7')
        p(f's_sub_u32 s{sCB}, s{sM}, s{sT0}')
        p(f's_lshr_b32 s{sRHO}, s{sW}, 1')
        p(f's_and_b32 s{sNU}, s{sW}, 1')
        p(f's_lshl_b32 s{sT0}, s{sTEAM}, 2')
        p(f's_add_u32 s{sT0}, s{sT0}, s{sRB}')
        p(f's_lshl_b32 s{sT1}, s{sT0}, 1')
        p(f's_add_u32 s{sT1}, s{sT1}, s{sRHO}')
        p(f's_mul_i32 s{sQOFF}, s{sT1}, {32*896}')
        p(f's_lshl_b32 s{sT1}, s{sCB}, 7')
        p(f's_add_u32 s{sQOFF}, s{sQOFF}, s{sT1}')
        p(f's_lshl_b32 s{sT1}, s{sNU}, 6')
        p(f's_add_u32 s{sQOFF}, s{sQOFF}, s{sT1}')
        p(f'v_and_b32 v{t3}, 31, v{vL}')
        p(f'v_mul_u32_u24 v{t3}, 896, v{t3}')
        p(f'v_lshrrev_b32 v{t1}, 5, v{vL}')
        p(f'v_lshl_add_u32 v{t3}, v{t1}, 3, v{t3}')
        p(f'v_lshrrev_b32 v{t0}, 2, v{vL}')
        p(f'v_and_b32 v{t1}, 3, v{vL}')
        p(f'v_mul_u32_u24 v{vDQ}, 2688, v{t0}')
        p(f'v_lshl_add_u32 v{vDQ}, v{t1}, 4, v{vDQ}')
        p(f's_mul_i32 s{sRQ}, s{sW}, {7*16*2688}')
        p(f's_mul_i32 s{sT1}, s{sJ}, 56')
        p(f's_add_u32 s{sRQ}, s{sRQ}, s{sT1}')
        p(f's_mul_i32 s{sLQ}, s{sW}, 7168')
        p(f's_lshl_b32 s{sT2}, s{sM}, 2')
        p(f's_add_u32 s{sT2}, s{sT2}, s{sW}')
        p(f's_mul_i32 s{sT3}, s{sT2}, 9408')
        p(f'v_lshlrev_b32 v{t2}, 7, v{vL}')
        b = sO

        def mksrd(d, src, n):
            p(f's_mov_b32 s{d}, s{src}')
            p(f's_and_b32 s{d+1}, s{src+1}, 0xffff')
            p(f's_mov_b32 s{d+2}, {n}')
            p(f's_mov_b32 s{d+3}, 0x20000')

        def rawq(tau, i):
            p.ext(self.dma(S_WQ, vDQ, sRQ, (448, 896, 0)[tau] * 2 + i * 16 * 2688, (sLQ, tau * 28672 + i * 1024), f'rq{tau}{i}'))
        mksrd(S_X, b, 1835008)
        mksrd(S_WQ, b + 2, 1204224)
        XR = 96
        for q in range(4):
            p(f'buffer_load_dwordx2 {vr(XR+2*q,2)}, v{t3}, {srd(S_X)}, s{sQOFF} offen offset:{16*q}')
        p(f'buffer_load_dword v31, v{t2}, {srd(S_WQ)}, s{sT3} offen')
        p(f's_add_u32 s{sT3}, s{sT3}, 8192')
        p('s_mov_b64 exec, 0x3ff')
        p(f'buffer_load_dword v31, v{t2}, {srd(S_WQ)}, s{sT3} offen')
        p('s_mov_b64 exec, -1')
        p(f's_load_dwordx2 s[{sF}:{sF+1}], s[{S_WSP}:{S_WSP+1}], {WS_EPOCH}')
        self.stamp('ka')
        for i in range(7):
            rawq(0, i)
        for (d, src, n) in ((S_WO, b + 4, 401408), (S_W1, b + 8, 1605632),
                            (S_W2, b + 10, 1605632), (S_OUT, b + 12, 1835008), (S_WS, S_WSP, WS_BYTES)):
            mksrd(d, src, n)
        p(f's_lshr_b32 s{sA}, s{sM}, 4')
        p(f's_mul_i32 s{sLB}, s{sTEAM}, {STRIDE}')
        p(f's_add_u32 s{sLB}, s{sLB}, {TEAM0}')
        p(f's_mov_b32 s{sTB}, s{sLB}')
        p(f's_lshl_b32 s{sTP}, s{sA}, 2')
        p(f's_add_u32 s{sTP}, s{sTP}, s{sW}')
        p(f'v_lshlrev_b32 v{vL16}, 4, v{vL}')

        def xform(tau, between=None):
            R = 128 + 32 * (tau % 2)
            for i in range(7):
                p.wait(f'rq{tau}{i}')
                for jj in range(2):
                    p(f'ds_read_b64_tr_b16 {vr(R+4*i+2*jj,2)}, v{vTQ} offset:{tau*28672+i*1024+jj*512}')
                if i >= 2:
                    p(f'ds_write_b128 v{vWQ}, {vr(R+4*(i-2))} offset:{tau*28672+(i-2)*1024}')
                if between:
                    between(i)
            for i in (5, 6):
                p(f'ds_write_b128 v{vWQ}, {vr(R+4*i)} offset:{tau*28672+i*1024}')
        sI, sSTG = sO, sO + 1
        p(f's_lshl_b32 s{sI}, s{sTEAM}, 1')
        p(f's_add_u32 s{sI}, s{sI}, s{sA}')
        p(f's_lshl_b32 s{sSTG}, s{sW}, 13')
        p(f's_add_u32 s{sSTG}, s{sSTG}, {LKV}')
        vD, vTR, vTR8 = vT + 4, vT + 5, vT + 13
        p(f'v_lshlrev_b32 v{t3}, 3, v{t1}')
        p(f'v_lshlrev_b32 v{t1}, 4, v{t1}')
        sFL, sDST, sDST2 = sO + 2, sO + 3, sO + 5
        FR = 32
        p(f'v_bfe_u32 v{t2}, v{vL}, 4, 1')
        p(f'v_lshl_add_u32 v{t2}, v{t2}, 5, v{t3}')
        p(f'v_bfe_u32 v{vTR}, v{vL}, 2, 2')
        p(f'v_lshl_add_u32 v{t2}, v{vTR}, 6, v{t2}')
        p(f'v_lshrrev_b32 v{vTR8}, 5, v{vL}')
        p(f'v_lshl_add_u32 v{vTQ}, v{vTR8}, 8, v{t2}')
        p(f'v_add_u32 v{vTR}, s{sSTG}, v{vTQ}')
        p(f'v_add_u32 v{t2}, s{sSTG}, v{t2}')
        p(f'v_lshl_add_u32 v{vTR8}, v{vTR8}, 9, v{t2}')

        def finish(nfr, offs, pre=()):
            L = list(pre)
            base = None
            for k in range(nfr):
                hi, lo = offs[k] // 4096 * 4096, offs[k] % 4096
                if hi != base:
                    L.append(f's_add_u32 s{sT5}, s{sDST}, {hi}')
                    base = hi
                L.append(f'buffer_store_dwordx4 {vr(FR+4*k)}, v{vL16}, {srd(S_WS)}, s{sT5} offen offset:{lo} sc1')
            return L

        sJOB = sO + 4
        lA = [p.newlabel('jobA') for _ in range(4)]
        p(f's_mov_b32 s{sJOB}, 0')
        p.mark('maybe_begin')
        p(f's_cmp_eq_u32 s{sW}, 1')
        p(f's_cbranch_scc1 {lA[0]}')
        p(f's_cmp_ge_u32 s{sW}, 2')
        p(f's_cbranch_scc1 {lA[1]}')
        p(f's_cmp_ge_u32 s{sI}, 14')
        p(f's_cbranch_scc1 {lA[3]}')
        p(f'v_mul_u32_u24 v{vD}, 2688, v{t0}')
        p(f'v_add_u32 v{vD}, v{vD}, v{t1}')
        p(f's_mul_i32 s{sT0}, s{sI}, {32*2688}')
        p(f's_mul_i32 s{sT1}, s{sJ}, 56')
        p(f's_add_u32 s{sT0}, s{sT0}, s{sT1}')
        for tau in range(3):
            for hb in range(2):
                p.ext(self.dma(S_WQ, vD, sT0, (448, 896, 0)[tau] * 2 + hb * 16 * 2688, (sSTG, tau * 2048 + hb * 1024), 'raw'))
        p(f's_mul_i32 s{sDST}, s{sJ}, 86016')
        p(f's_lshl_b32 s{sT0}, s{sI}, 11')
        p(f's_add_u32 s{sDST}, s{sDST}, s{sT0}')
        p(f's_add_u32 s{sDST}, s{sDST}, {WQT}')
        p(f's_lshl_b32 s{sFL}, s{sJ}, 4')
        p(f's_add_u32 s{sFL}, s{sFL}, s{sI}')
        p(f's_lshl_b32 s{sFL}, s{sFL}, 3')
        p(f's_add_u32 s{sFL}, s{sFL}, {F_WQ}')
        p(f's_mov_b32 s{sJOB}, 1')
        p(f's_branch {lA[3]}')
        p.label(lA[0])
        p(f's_cmp_ge_u32 s{sI}, 14')
        p(f's_cbranch_scc1 {lA[3]}')
        p(f'v_bfe_u32 v{vD}, v{vL}, 1, 3')
        p(f'v_bfe_u32 v{t2}, v{vL}, 4, 1')
        p(f'v_lshl_add_u32 v{vD}, v{t2}, 4, v{vD}')
        p(f'v_bfe_u32 v{t2}, v{vL}, 5, 1')
        p(f'v_lshl_add_u32 v{vD}, v{t2}, 3, v{vD}')
        p(f'v_mul_u32_u24 v{vD}, 3584, v{vD}')
        p(f'v_and_b32 v{t2}, 1, v{vL}')
        p(f'v_lshl_add_u32 v{vD}, v{t2}, 4, v{vD}')
        p(f's_mul_i32 s{sT0}, s{sI}, {32*3584}')
        p(f's_mul_i32 s{sT1}, s{sJ}, 224')
        p(f's_add_u32 s{sT0}, s{sT0}, s{sT1}')
        for t in range(7):
            p.ext(self.dma(S_W1, vD, sT0, t * 32, (sSTG, t * 1024), 'raw'))
        p(f'v_lshl_add_u32 v{vTR}, v{t0}, 5, v{t3}')
        p(f'v_add_u32 v{vTR}, s{sSTG}, v{vTR}')
        p(f's_mul_i32 s{sDST}, s{sJ}, 100352')
        p(f's_add_u32 s{sDST}, s{sDST}, {W1T}')
        p(f's_mul_i32 s{sDST2}, s{sI}, 3072')
        p(f's_add_u32 s{sDST2}, s{sDST2}, s{sDST}')
        p(f's_add_u32 s{sDST2}, s{sDST2}, 57344')
        p(f's_lshl_b32 s{sT0}, s{sI}, 12')
        p(f's_add_u32 s{sDST}, s{sDST}, s{sT0}')
        p(f's_lshl_b32 s{sFL}, s{sJ}, 4')
        p(f's_add_u32 s{sFL}, s{sFL}, s{sI}')
        p(f's_lshl_b32 s{sFL}, s{sFL}, 3')
        p(f's_add_u32 s{sFL}, s{sFL}, {F_W1}')
        p(f's_mov_b32 s{sJOB}, 2')
        p(f's_branch {lA[3]}')
        p.label(lA[1])
        p(f'v_mul_u32_u24 v{vD}, 896, v{t0}')
        p(f'v_add_u32 v{vD}, v{vD}, v{t1}')
        p(f's_cmp_ge_u32 s{sM}, 28')
        p(f's_cbranch_scc1 {lA[2]}')
        sI2, sSL, sHF = sT2, sT3, sT4
        p(f's_lshl_b32 s{sI2}, s{sTEAM}, 2')
        p(f's_add_u32 s{sI2}, s{sI2}, s{sRB}')
        p(f's_lshr_b32 s{sSL}, s{sI2}, 1')
        p(f's_and_b32 s{sHF}, s{sI2}, 1')
        p(f's_mul_i32 s{sT0}, s{sSL}, {112*896}')
        p(f's_mul_i32 s{sT1}, s{sHF}, {64*896}')
        p(f's_add_u32 s{sT0}, s{sT0}, s{sT1}')
        p(f's_lshl_b32 s{sT1}, s{sCB}, 7')
        p(f's_add_u32 s{sT0}, s{sT0}, s{sT1}')
        p(f's_lshl_b32 s{sT1}, s{sNU}, 6')
        p(f's_add_u32 s{sT0}, s{sT0}, s{sT1}')
        for k in range(4):
            p.ext(self.dma(S_W2, vD, sT0, k * 16 * 896, (sSTG, k * 1024), 'raw'))
        p(f's_mul_i32 s{sDST}, s{sCB}, 229376')
        p(f's_mul_i32 s{sT0}, s{sSL}, 14336')
        p(f's_add_u32 s{sDST}, s{sDST}, s{sT0}')
        p(f's_lshl_b32 s{sT0}, s{sHF}, 13')
        p(f's_add_u32 s{sDST}, s{sDST}, s{sT0}')
        p(f's_lshl_b32 s{sT0}, s{sNU}, 10')
        p(f's_add_u32 s{sDST}, s{sDST}, s{sT0}')
        p(f's_add_u32 s{sDST}, s{sDST}, {W2T}')
        p(f's_lshl_b32 s{sFL}, s{sCB}, 5')
        p(f's_add_u32 s{sFL}, s{sFL}, s{sI2}')
        p(f's_lshl_b32 s{sFL}, s{sFL}, 1')
        p(f's_add_u32 s{sFL}, s{sFL}, s{sNU}')
        p(f's_lshl_b32 s{sFL}, s{sFL}, 3')
        p(f's_add_u32 s{sFL}, s{sFL}, {F_W2}')
        p(f's_add_u32 s{sJOB}, s{sHF}, 3')
        p(f's_branch {lA[3]}')
        p.label(lA[2])
        p(f's_cmp_eq_u32 s{sTEAM}, 7')
        p(f's_cbranch_scc1 {lA[3]}')
        p(f's_mul_i32 s{sT0}, s{sCB}, {112*896}')
        p(f's_lshl_b32 s{sT1}, s{sTEAM}, 7')
        p(f's_add_u32 s{sT0}, s{sT0}, s{sT1}')
        p(f's_lshl_b32 s{sT1}, s{sNU}, 6')
        p(f's_add_u32 s{sT0}, s{sT0}, s{sT1}')
        for k in range(8):
            p.ext(self.dma(S_WO, vD, sT0, k * 16 * 896, (sSTG, k * 1024), 'raw'))
        p(f's_lshl_b32 s{sFL}, s{sTEAM}, 2')
        p(f's_add_u32 s{sFL}, s{sFL}, s{sCB}')
        p(f's_lshl_b32 s{sDST}, s{sFL}, 14')
        p(f's_lshl_b32 s{sT0}, s{sNU}, 10')
        p(f's_add_u32 s{sDST}, s{sDST}, s{sT0}')
        p(f's_add_u32 s{sDST}, s{sDST}, {WOT}')
        p(f's_lshl_b32 s{sFL}, s{sFL}, 1')
        p(f's_add_u32 s{sFL}, s{sFL}, s{sNU}')
        p(f's_lshl_b32 s{sFL}, s{sFL}, 3')
        p(f's_add_u32 s{sFL}, s{sFL}, {F_WO}')
        p(f's_mov_b32 s{sJOB}, 5')
        p.mark('maybe_end')
        p.label(lA[3])
        self.stamp('jA')
        p(f'v_add_u32 v{vTQ}, s{sLQ}, v{vTQ}')
        p(f'v_add_u32 v{vWQ}, s{sLQ}, v{vL16}')
        p(f's_mov_b32 s{sHI}, 0')
        p(f's_mov_b32 s{sHI+1}, -1')
        p(f's_mov_b32 s{sPERM}, 0x07060302')
        p(f's_mov_b32 s{sONES}, 0x3f803f80')
        p(f's_mov_b32 s{sPURE}, 1')
        p(f'v_lshlrev_b32 v{vL8}, 3, v{vL}')
        p.ext(self.pub_offsets(O_XA, O_STA, O_FXA))
        self.lane_consts()
        p('s_waitcnt vmcnt(0) lgkmcnt(0)')
        self.stamp('rt1')
        p(f's_add_u32 s{sF}, s{sF}, 1')
        p(f's_addc_u32 s{sF+1}, s{sF+1}, 0')
        p(f'v_mov_b32 v{vF}, s{sF}')
        p(f'v_mov_b32 v{vF+1}, s{sF+1}')
        for i in range(3):
            rawq(1, i)
        lp0 = p.newlabel('p0skip')
        p(f's_cmp_ge_u32 s{sM}, 28')
        p(f's_cbranch_scc1 {lp0}')
        p.mark('maybe_begin')
        self.x_store(XR, vL16, (0, 1024), 'sc1')
        p.mark('maybe_end')
        p.label(lp0)
        p.mark('maybe_begin')
        lB = {k: p.newlabel('jobB') for k in (2, 3, 4, 5, 'join')}
        for k in (2, 3, 4, 5):
            p(f's_cmp_eq_u32 s{sJOB}, {k}')
            p(f's_cbranch_scc1 {lB[k]}')
        p(f's_cmp_eq_u32 s{sJOB}, 0')
        p(f's_cbranch_scc1 {lB["join"]}')
        for tau in range(3):
            for kp in range(2):
                for jj in range(2):
                    p(f'ds_read_b64_tr_b16 {vr(FR+(tau*2+kp)*4+2*jj,2)}, v{vTR} offset:{tau*2048+(16*kp+8*jj)*64}')
        p.ext(finish(6, [tau * 28672 + kp * 1024 for tau in range(3) for kp in range(2)]))
        p(f's_branch {lB["join"]}')
        p.label(lB[2])
        for t in range(7):
            for jj in range(2):
                p(f'ds_read_b64_tr_b16 {vr(FR+t*4+2*jj,2)}, v{vTR} offset:{t*1024+jj*512}')
        p.ext(finish(4, [t * 1024 for t in range(4)]))
        for t in range(4, 7):
            p(f'buffer_store_dwordx4 {vr(FR+4*t)}, v{vL16}, {srd(S_WS)}, s{sDST2} offen offset:{(t-4)*1024} sc1')
        p(f's_branch {lB["join"]}')
        p.label(lB[3])
        for sg in range(4):
            for jj in range(2):
                p(f'ds_read_b64_tr_b16 {vr(FR+sg*4+2*jj,2)}, v{vTR} offset:{(32*(sg//2)+16*jj+8*(sg%2))*64}')
        p.ext(finish(4, [k * 2048 for k in range(4)]))
        p(f's_branch {lB["join"]}')
        p.label(lB[4])
        for sg in range(2):
            for jj in range(2):
                p(f'ds_read_b64_tr_b16 {vr(FR+sg*4+2*jj,2)}, v{vTR} offset:{(16*jj+8*sg)*64}')
        for jj in range(2):
            p(f'ds_read_b64_tr_b16 {vr(FR+8+2*jj,2)}, v{vTR8} offset:{(32+4*jj)*64}')
        p.ext(finish(3, [k * 2048 for k in range(3)]))
        p(f's_branch {lB["join"]}')
        p.label(lB[5])
        for hd in range(4):
            for kp in range(2):
                for jj in range(2):
                    p(f'ds_read_b64_tr_b16 {vr(FR+(hd*2+kp)*4+2*jj,2)}, v{vTR} offset:{(28*hd+16*kp+8*jj)*64}')
        p('s_waitcnt lgkmcnt(0)')
        p('s_mov_b32 exec_lo, 0')
        for hd in range(4):
            p(f'v_mov_b32 v{FR+(hd*2+1)*4+2}, 0')
            p(f'v_mov_b32 v{FR+(hd*2+1)*4+3}, 0')
        p('s_mov_b64 exec, -1')
        p.ext(finish(8, [k * 2048 for k in range(8)]))
        p.mark('maybe_end')
        p.label(lB['join'])
        p(f's_getreg_b32 s{sT0}, hwreg(HW_REG_XCC_ID)')
        p(f's_and_b32 s{sT0}, s{sT0}, 15')
        p(f's_lshl_b32 s{sT0}, s{sT0}, 28')
        p(f's_xor_b32 s{sT0}, s{sT0}, s{sF+1}')
        p(f'v_mov_b32 v{t2}, s{sF}')
        p(f'v_mov_b32 v{t3}, s{sT0}')
        p(f's_lshl_b32 s{sT1}, s{sTEAM}, 8')
        p(f's_lshl_b32 s{sT2}, s{sM}, 3')
        p(f's_add_u32 s{sT1}, s{sT1}, s{sT2}')
        p(f's_add_u32 s{sT1}, s{sT1}, {WS_PUR}')
        p('s_mov_b64 exec, 1')
        p(f'buffer_store_dwordx2 {vr(t2,2)}, off, {srd(S_WS)}, s{sT1} sc1')
        p('s_mov_b64 exec, -1')
        self.stamp('jB')
        for i in range(3, 7):
            rawq(1, i)
        xform(0, lambda i: rawq(2, i))
        p(f's_cmp_eq_u32 s{sJOB}, 0')
        p(f's_cselect_b32 s{sFL}, {WS_PUR + 0x800}, s{sFL}')
        p(f's_cmp_ge_u32 s{sM}, 28')
        p(f's_cselect_b32 s{sXF}, {WS_PUR + 0x800}, s{sXF}')
        p('s_waitcnt vmcnt(11)')
        p('s_mov_b64 exec, 1')
        p(f'buffer_store_dwordx2 {vr(vF,2)}, off, {srd(S_WS)}, s{sXF} sc1')
        p(f'buffer_store_dwordx2 {vr(vF,2)}, off, {srd(S_WS)}, s{sFL} sc1')
        p('s_mov_b64 exec, -1')
        self.stamp('rq')
        self.walker_at = len(p.items)
        p.ext(self.res_unpack(XR))
        xform(1)
        xform(2)
        p('s_waitcnt lgkmcnt(0)')
        p('s_barrier')
        self.stamp('pro')

    def p1(self):
        p = self.p
        X, ACC, RING, CS = 32, 144, 192, 224
        accK, accV, accQ = ACC, ACC + 16, ACC + 32
        PK, PV = vT, vT + 8
        sXO, sST, sFX, sKV, sKF = sO, sO + 7, sO + 8, sO + 9, sO + 10
        p.ext(self.xoff(sXO, sTP, 28672, O_XA))
        for g in range(1, 7):
            p(f's_add_u32 s{sXO+g}, s{sXO}, {4096*g}')
        p.ext(self.off(sST, sTP, 3584, O_STA))
        p.ext(self.off(sFX, sTP, 128, O_FXA))
        p(f's_lshl_b32 s{sT0}, s{sJ}, 3')
        p(f's_add_u32 s{sT0}, s{sT0}, s{sTP}')
        p.ext(self.off(sKV, sT0, 4096, O_KV))
        p.ext(self.off(sKF, sT0, 128, O_FKV))
        p(f'v_lshrrev_b32 v{vCSA}, 5, v{vL}')
        p(f'v_lshlrev_b32 v{vCSA}, 4, v{vCSA}')
        p(f'v_add_u32 v{vCSA}, {L_CSQ}, v{vCSA}')

        def frag(f):
            if f < 56:
                base, off = vL16, (f % 2) * 28672 + (f // 2) * 1024
            else:
                base, off = vA1, (f - 56) * 1024
            return f'ds_read_b128 {vr(RING + 4*(f % 8))}, v{base} offset:{off}'

        def mf(f):
            acc, s = ((accK, accV)[f % 2], f // 2) if f < 56 else (accQ, f - 56)
            return f'{MF32} {vr(acc,16)}, {vr(RING+4*(f%8))}, {vr(X+4*s)}, {vr(acc,16) if s else 0}'

        def xl(s):
            return f'buffer_load_dwordx4 {vr(X+4*s)}, v{vL16}, {srd(S_WS)}, s{sXO + s//4} offen offset:{(s%4)*1024} sc1'
        self.stamp('p5')
        self.pad()
        self.vpoll(vL8, sFX, 14)
        self.stamp('E')
        XP = 8
        for s in range(XP):
            p(xl(s))

        def colsum():
            p(f's_min_u32 s{sT0}, s{sW}, 2')
            p(f's_mul_i32 s{sT0}, s{sT0}, 28672')
            p(f'v_add_u32 v{vT}, s{sT0}, v{vL16}')
            for i in range(4):
                p(f'v_mov_b32 v{vT+4+i}, s{sONES}')
            rd = lambda s: f'ds_read_b128 {vr(RING+4*(s%8))}, v{vT} offset:{s*1024}'
            for s in range(6):
                p(rd(s))
            for s in range(28):
                p(f'{MF32} {vr(accQ,16)}, {vr(vT+4)}, {vr(RING+4*(s%8))}, {vr(accQ,16) if s else 0}')
                if s + 6 < 28:
                    p(rd(s + 6))
            p(f's_lshl_b32 s{sT0}, s{sW}, 7')
            p(f's_add_u32 s{sT0}, s{sT0}, {L_CSQ}')
            p(f'v_and_b32 v{vT}, 31, v{vL}')
            p(f'v_lshlrev_b32 v{vT}, 2, v{vT}')
            p(f'v_add_u32 v{vT}, s{sT0}, v{vT}')
            p(f'ds_write_b32 v{vT}, v{accQ}')
            p('s_waitcnt lgkmcnt(0)')
            p('s_barrier')
        self.if_layer0(colsum)
        PD = 6
        for f in range(PD):
            p(frag(f))
        mem, pre = {}, {}
        for f in range(84):
            mem[f] = []
            if f + PD < 84:
                mem[f].append(frag(f + PD))
            if f < 56 and f % 2 == 0 and f // 2 + XP < 28:
                mem[f].append(xl(f // 2 + XP))
            if 33 <= f < 47 and f % 2 == 1:
                mem[f].append(self.stats_loads(sST, CS)[(f - 33) // 2])
            if f % 2 == 0:
                pre[f] = [Touch(vr(RING + 4 * (f % 8)) + ' ' + vr(RING + 4 * ((f + 1) % 8)) + (' ' + vr(X + 4 * (f // 2)) if f < 56 else ''))]

        def cs_reads(tau, dst):
            return [f'ds_read_b128 {vr(dst+4*q)}, v{vCSA} offset:{tau*128 + 32*q}' for q in range(4)]
        p.ext(sched([mf(f) for f in range(56)], pre, mem, cs_reads(1, accQ) + cs_reads(0, PK), 5, start=40))
        p.ext(self.stats_reduce(CS))
        self.stamp('kv')

        def epi(acc, cs, P):
            L = []
            for r in range(0, 16, 2):
                L.append(f'v_pk_fma_f32 {vr(acc+r,2)}, {vr(cs+r,2)}, {vr(vMEAN,2)}, {vr(acc+r,2)} op_sel:[0,0,0] op_sel_hi:[1,0,1]')
            for r in range(0, 16, 2):
                L.append(f'v_pk_mul_f32 {vr(acc+r,2)}, {vr(acc+r,2)}, {vr(vMEAN,2)} op_sel:[0,1] op_sel_hi:[1,1]')
                L.append(f'v_cvt_pk_bf16_f32 v{P+r//2}, v{acc+r}, v{acc+r+1}')
            return L

        def pad(P, c6, c7):
            return ['s_mov_b32 exec_lo, 0', f'v_mov_b32 v{P+6}, {c6:#x}', f'v_mov_b32 v{P+7}, {c7:#x}', 's_mov_b64 exec, -1']

        def st(P, o):
            return [Ins(f'buffer_store_dwordx4 {vr(P+4*k)}, v{vL16}, {srd(S_WS)}, s{sKV} offen offset:{o+1024*k} sc1', 'kvst') for k in range(2)]
        t0, t1 = CS, CS + 1
        p.ext(epi(accK, PK, PK) + pad(PK, 0x3f803f80, 0x3f80) + st(PK, 0))
        p.ext(epi(accV, accQ, PV) + pad(PV, 0x3f80, 0) + st(PV, 2048))
        self.stamp('kvs')
        side = [f's_lshl_b32 s{sT0}, s{sW}, 12', f's_add_u32 s{sT0}, s{sT0}, {LKV + 8*4096}',
                f'v_add_u32 v{t0}, s{sT0}, v{vL16}',
                f'ds_write_b128 v{t0}, {vr(PK)}', f'ds_write_b128 v{t0}, {vr(PK+4)} offset:1024',
                f'v_and_b32 v{t1}, 31, v{vL}', f'v_lshlrev_b32 v{t1}, 6, v{t1}', f'v_lshrrev_b32 v{t0}, 5, v{vL}',
                f'v_lshl_add_u32 v{t1}, v{t0}, 4, v{t1}', f'v_add_u32 v{t0}, s{sT0}, v{t1}',
                f'ds_write_b128 v{t0}, {vr(PV)} offset:2048', f'ds_write_b128 v{t0}, {vr(PV+4)} offset:{2048+32}',
                f'v_mul_f32 v{vRSTD}, {f32bits(28 ** -0.5 * math.log2(math.e)):#x}, v{vRSTD}'] + cs_reads(2, CS)
        pre2 = {f - 56: v for f, v in pre.items() if f >= 56}
        mem2 = {f - 56: v for f, v in mem.items() if f >= 56}
        p.ext(sched([mf(f) for f in range(56, 84)], pre2, mem2, side, 4, start=0))
        p.wait('kvst')
        p.ext(self.flag_sc1(sKF))
        self.stamp('q')
        QF = 200
        p.ext(epi(accQ, CS, QF))
        p.ext(pad(QF, 0, 0x3f800000))
        self.pad()
        p('s_barrier')
        self.stamp('p1')

    def attn(self):
        p = self.p
        KF, ST, MW, MD, OA, QF, PB, VF = 32, 104, 152, 168, 184, 200, 208, 224
        t0, t1 = 104, 105

        def first():
            p(f's_lshl_b32 s{sT0}, s{sJ}, 7')
            p(f's_add_u32 s{sT1}, s{sT0}, {F_WQ - 14*8}')
            p(f's_add_u32 s{sT0}, s{sT0}, {F_W1}')
            p(f's_lshl_b32 s{sT2}, s{sCB}, 6')
            p(f's_add_u32 s{sT2}, s{sT2}, {F_WO - 28*8}')
            p(f'v_mov_b32 v{t0}, s{sT0}')
            for lim, r in ((14, sT1), (28, sT2)):
                p(f'v_mov_b32 v{t1}, s{r}')
                p(f'v_cmp_le_u32 vcc, {lim}, v{vL}')
                p(f'v_cndmask_b32 v{t0}, v{t0}, v{t1}, vcc')
            p(f'v_min_u32 v{t1}, {35*8}, v{vL8}')
            p(f'v_add_u32 v{t0}, v{t0}, v{t1}')
            p(f'v_and_b32 v{t1}, {31*8}, v{vL8}')
            p(f's_lshl_b32 s{sT1}, s{sCB}, 9')
            p(f's_add_u32 s{sT1}, s{sT1}, {F_W2}')
            p(f's_lshl_b32 s{sT3}, s{sTEAM}, 8')
            p(f's_add_u32 s{sT3}, s{sT3}, {WS_PUR}')
            lp, lo = p.newlabel('pur'), p.newlabel('purout')
            p(f's_mov_b32 s{sCNT}, 0')
            p.label(lp)
            p(f'buffer_load_dwordx2 {vr(106,2)}, v{t0}, {srd(S_WS)}, 0 offen sc1')
            p(f'buffer_load_dwordx2 {vr(108,2)}, v{vL8}, {srd(S_WS)}, s{sT1} offen sc1')
            p(f'buffer_load_dwordx2 {vr(110,2)}, v{t1}, {srd(S_WS)}, s{sT3} offen sc1')
            p(f's_add_u32 s{sCNT}, s{sCNT}, 1')
            p(f's_cmp_gt_u32 s{sCNT}, {POLL_MAX}')
            p(f's_cbranch_scc1 {lo}')
            p('s_waitcnt vmcnt(0)')
            p(f'v_cmp_ne_u64 s[{sPOLL}:{sPOLL+1}], s[{sF}:{sF+1}], {vr(106,2)}')
            p(f'v_cmp_ne_u64 s[{sPOLL+2}:{sPOLL+3}], s[{sF}:{sF+1}], {vr(108,2)}')
            p(f'v_xor_b32 v111, s{sF+1}, v111')
            p(f'v_xor_b32 v110, s{sF}, v110')
            p(f'v_and_b32 v108, 0x0fffffff, v111')
            p(f'v_or_b32 v110, v110, v108')
            p(f'v_cmp_ne_u32 vcc, 0, v110')
            p(f's_or_b64 s[{sPOLL}:{sPOLL+1}], s[{sPOLL}:{sPOLL+1}], s[{sPOLL+2}:{sPOLL+3}]')
            p(f's_or_b64 vcc, vcc, s[{sPOLL}:{sPOLL+1}]')
            p(f's_cbranch_scc1 {lp}')
            p(f'v_readfirstlane_b32 s{sT1}, v111')
            p(f'v_cmp_ne_u32 vcc, s{sT1}, v111')
            p(f's_cmp_eq_u64 vcc, 0')
            p(f's_cselect_b32 s{sPURE}, {0 if os.environ.get("FORCE_IMPURE") else 1}, 0')
            p.label(lo)
            p('s_waitcnt vmcnt(0)')
        self.if_layer0(first)
        NK = 2
        sKD, sKL, sKFl, sNULL = sO + 8, sO + 11, sPOLL + 6, sT4
        sKFl = [sO + 14, sO + 15, sT3]
        p(f's_mov_b32 s{sNULL}, 0')
        for k in range(NK):
            p(f's_lshl_b32 s{sT0}, s{sW}, 1')
            p(f's_add_u32 s{sT0}, s{sT0}, {k}')
            p(f's_lshl_b32 s{sKL+k}, s{sT0}, 12')
            p(f's_add_u32 s{sKL+k}, s{sKL+k}, {LKV}')
            p(f's_lshl_b32 s{sT1}, s{sA}, 2')
            p(f's_add_u32 s{sT0}, s{sT0}, s{sT1}')
            p(f's_cmp_lt_u32 s{sT0}, 8')
            p(f's_cselect_b32 s{sT1}, {STRIDE}, 0')
            p(f's_sub_u32 s{sT1}, s{sLB}, s{sT1}')
            p(f's_and_b32 s{sT0}, s{sT0}, 7')
            p(f's_cmp_lt_i32 s{sT1}, {TEAM0}')
            p(f's_cselect_b32 s{sT2}, {1 << k}, 0')
            p(f's_cselect_b32 s{sT1}, s{sLB}, s{sT1}')
            p(f's_cselect_b32 s{sT0}, s{sTP}, s{sT0}')
            p(f's_or_b32 s{sNULL}, s{sNULL}, s{sT2}')
            p(f's_lshl_b32 s{sT2}, s{sJ}, 3')
            p(f's_add_u32 s{sT0}, s{sT0}, s{sT2}')
            p(f's_lshl_b32 s{sKD+k}, s{sT0}, 12')
            p(f's_add_u32 s{sKD+k}, s{sKD+k}, s{sT1}')
            p(f's_lshl_b32 s{sT0}, s{sT0}, 7')
            p(f's_add_u32 s{sT0}, s{sT0}, s{sT1}')
            p(f's_add_u32 s{sKFl[k]}, s{sT0}, {O_FKV}')
        p(f'v_bfe_u32 v{t0}, v{vL}, 1, 1')
        p(f'v_lshlrev_b32 v{t0}, 10, v{t0}')
        p(f'v_and_b32 v{t1}, 1, v{vL}')
        p(f'v_lshl_add_u32 v{t0}, v{t1}, 9, v{t0}')
        p(f'v_lshrrev_b32 v{t1}, 2, v{vL}')
        p(f'v_lshl_add_u32 v{t0}, v{t1}, 4, v{t0}')
        lp, lo = p.newlabel('kvpoll'), p.newlabel('kvpollout')
        self.stamp('w1')
        p('s_waitcnt lgkmcnt(0)')
        p(f's_mov_b32 s{sCNT}, 0')
        p.label(lp)
        for k in range(NK):
            p(f's_load_dwordx2 s[{sPOLL+2*k}:{sPOLL+2*k+1}], s[{S_WSP}:{S_WSP+1}], s{sKFl[k]} glc')
        p(f's_add_u32 s{sCNT}, s{sCNT}, 1')
        p(f's_cmp_gt_u32 s{sCNT}, {POLL_MAX}')
        p(f's_cbranch_scc1 {lo}')
        p('s_waitcnt lgkmcnt(0)')
        for k in range(NK):
            p(f's_cmp_eq_u64 s[{sPOLL+2*k}:{sPOLL+2*k+1}], s[{sF}:{sF+1}]')
            p(f's_cbranch_scc0 {lp}')
        p.label(lo)
        self.stamp('kvf')
        for k in range(NK):
            lnull, lb = p.newlabel('null'), p.newlabel('nullback')
            p(f's_bitcmp1_b32 s{sNULL}, {k}')
            p(f's_cbranch_scc1 {lnull}')
            p(f's_mov_b32 m0, s{sKL+k}')
            p(f's_sub_u32 s{sT5}, s{sKD+k}, 768')
            p(f'buffer_load_dwordx4 v{vL16}, {srd(S_WS)}, s{sKD+k} offen sc1 lds')
            p(f'buffer_load_dwordx4 v{vL16}, {srd(S_WS)}, s{sKD+k} offen offset:1024 sc1 lds')
            p(f'buffer_load_dwordx4 v{t0}, {srd(S_WS)}, s{sKD+k} offen offset:2048 sc1 lds')
            p(f'buffer_load_dwordx4 v{t0}, {srd(S_WS)}, s{sT5} offen offset:3072 sc1 lds')
            p.label(lb)
            self.tail.append((lnull, [
                f'v_add_u32 v{t1}, s{sKL+k}, v{vL16}',
                'v_mov_b32 v108, 0', 'v_mov_b32 v109, 0', 'v_mov_b32 v110, 0', 'v_mov_b32 v111, 0'] +
                [f'ds_write_b128 v{t1}, v[108:111] offset:{o}' for o in (0, 2048, 3072)] +
                ['s_mov_b32 exec_lo, 0', 'v_mov_b32 v111, 0xf1490000', 's_mov_b64 exec, -1',
                 f'ds_write_b128 v{t1}, v[108:111] offset:1024', f's_branch {lb}']))
        t2, t3 = 106, 107
        p(f'v_and_b32 v{t2}, 31, v{vL}')
        p(f'v_lshrrev_b32 v{t3}, 5, v{vL}')
        p(f'v_lshlrev_b32 v{t3}, 2, v{t3}')
        p(f'v_sub_u32 v{t2}, v{t2}, v{t3}')
        p(f'v_mov_b32 v{t3}, {f32bits(-1e30):#x}')
        for r in range(0, 16, 2):
            k0, k1 = 8 * (r // 4) + r % 4, 8 * (r // 4) + r % 4 + 1
            p(f'v_cmp_le_i32 vcc, {k0}, v{t2}')
            p(f'v_cmp_le_i32 s[{sPOLL}:{sPOLL+1}], {k1}, v{t2}')
            p('s_nop 0')
            p(f'v_cndmask_b32_e64 v{MD+r}, v{t3}, 0, vcc')
            p(f'v_cndmask_b32_e64 v{MD+r+1}, v{t3}, 0, s[{sPOLL}:{sPOLL+1}]')
            p(f'v_cndmask_b32_e64 v{MW+r}, 0, v{t3}, vcc')
            p(f'v_cndmask_b32_e64 v{MW+r+1}, 0, v{t3}, s[{sPOLL}:{sPOLL+1}]')
        vKA, vVA = vT, vT + 1
        p(f's_lshl_b32 s{sT0}, s{sW}, 12')
        p(f's_add_u32 s{sT0}, s{sT0}, {LKV}')
        p(f'v_add_u32 v{vKA}, s{sT0}, v{vL16}')
        p(f'v_lshrrev_b32 v{t2}, 5, v{vL}')
        p(f'v_bfe_u32 v{t3}, v{vL}, 2, 2')
        p(f'v_lshl_add_u32 v{t2}, v{t2}, 2, v{t3}')
        p(f'v_lshlrev_b32 v{vVA}, 6, v{t2}')
        p(f'v_bfe_u32 v{t2}, v{vL}, 4, 1')
        p(f'v_lshl_add_u32 v{vVA}, v{t2}, 5, v{vVA}')
        p(f'v_and_b32 v{t2}, 1, v{vL}')
        p(f'v_lshl_add_u32 v{vVA}, v{t2}, 4, v{vVA}')
        p(f'v_bfe_u32 v{t2}, v{vL}, 1, 1')
        p(f'v_lshl_add_u32 v{vVA}, v{t2}, 3, v{vVA}')
        p(f'v_add_u32 v{vVA}, s{sT0}, v{vVA}')
        sOD, sOF, sWO = sO, sO + 1, sO + 2
        p(f's_lshl_b32 s{sT0}, s{sTP}, 4')
        p(f's_add_u32 s{sT0}, s{sT0}, s{sJ}')
        p.ext(self.roff(sOD, sT0, 2048, O_O))
        p.ext(self.off(sOF, sT0, 8, O_FO))
        p(f's_lshl_b32 s{sWO}, s{sCB}, 2')
        p(f's_add_u32 s{sWO}, s{sWO}, s{sW}')
        p(f's_lshl_b32 s{sWO}, s{sWO}, 14')
        p(f's_add_u32 s{sWO}, s{sWO}, {WOT}')
        for g in range(1, 4):
            p(f's_add_u32 s{sWO+g}, s{sWO}, {4096*g}')
        vPT = vT + 12
        p(f'v_lshlrev_b32 v{vPT}, 7, v{vL}')
        p(f'v_add_u32 v{vPT}, s{sOD}, v{vPT}')
        p(f's_lshl_b32 s{sT0}, s{sTP}, 7')
        p(f's_lshl_b32 s{sT1}, s{sRB}, 8')
        p(f's_lshl_b32 s{sT2}, s{sRHO}, 7')
        p(f's_add_u32 s{sT2}, s{sT2}, s{sT1}')
        p(f's_mul_i32 s{sT3}, s{sT2}, 28')
        p(f's_lshl_b32 s{sT4}, s{sCB}, 9')
        p(f's_add_u32 s{sT3}, s{sT3}, s{sT4}')
        p(f's_lshl_b32 s{sT4}, s{sNU}, 8')
        p(f's_add_u32 s{sT3}, s{sT3}, s{sT4}')
        for lane, (r, c) in enumerate([(sT0, O_FO), (sT1, O_FO), (sT1, O_FO + 128), (sT0, O_FX1), (sT2, O_FX1),
                                       (sT3, O_ST1), (sT3, O_ST1 + 128), (sT0, O_FH), (sT1, O_FH), (sT1, O_FH + 128),
                                       (sT3, LSTRIDE + O_STA), (sT3, LSTRIDE + O_STA + 128), (sT2, LSTRIDE + O_FXA),
                                       (sT0, LSTRIDE + O_FXA)]):
            p(f's_add_u32 s{sT4}, s{r}, {c}')
            p(f's_add_u32 s{sT4}, s{sT4}, s{sLB}')
            p(f'v_writelane_b32 v{vPT}, s{sT4}, {16 + lane}')
        p(f'v_cmp_lt_u32 vcc, 29, v{vL}')
        p(f'v_mov_b32 v{t2}, s{sT4}')
        p(f'v_cndmask_b32 v{vPT}, v{vPT}, v{t2}, vcc')
        vZ = vT + 8
        p(f's_lshl_b32 s{sT0}, s{sNU}, 10')
        p(f'v_xor_b32 v{vZ}, s{sT0}, v{vL16}')
        p(f'v_xor_b32 v{vZ+1}, 1024, v{vZ}')
        self.pad()
        p('s_waitcnt vmcnt(0) lgkmcnt(0)')
        self.stamp('kvd')
        p('s_barrier')
        self.stamp('A')
        p(f'v_lshlrev_b32 v{t0}, 7, v{vL}')
        p(f's_lshl_b32 s{sT0}, s{sCB}, 2')
        p(f's_add_u32 s{sT0}, s{sT0}, s{sRB}')
        p(f's_lshl_b32 s{sT1}, s{sT0}, 14')
        p(f's_lshl_b32 s{sT2}, s{sW}, 12')
        p(f's_add_u32 s{sT1}, s{sT1}, s{sT2}')
        p(f's_add_u32 s{sT1}, s{sT1}, {WOT}')
        p('s_mov_b32 exec_hi, 0')
        p(f'buffer_load_dword v31, v{t0}, {srd(S_WS)}, s{sT1} offen sc1')
        p('s_mov_b64 exec, -1')
        p(f'buffer_load_dword v31, v{vPT}, {srd(S_WS)}, 0 offen sc1')

        def hpre():
            p(f's_lshl_b32 s{sT0}, s{sTP}, 4')
            p(f's_add_u32 s{sT0}, s{sT0}, s{sJ}')
            p.ext(self.off(sT1, sT0, 7168, O_H))
            p('s_mov_b32 exec_hi, 0xffffff')
            p(f'buffer_load_dword v31, v{t0}, {srd(S_WS)}, s{sT1} offen sc1')
            p('s_mov_b64 exec, -1')
        self.if_layer0(hpre)
        bg = self.w1_dma(0)

        def kread(t):
            return [f'ds_read_b128 {vr(KF+8*t+4*k)}, v{vKA} offset:{t*4096+k*1024}' for k in range(2)]

        def qk(t):
            s = ST + 16 * (t % 3)
            c = vr(MW, 16) if t == 0 else vr(MD, 16) if t == 8 else '0'
            return [f'{MF32} {vr(s,16)}, {vr(KF+8*t)}, {vr(QF)}, {c}',
                    f'{MF32} {vr(s,16)}, {vr(KF+8*t+4)}, {vr(QF+4)}, {vr(s,16)}']
        vM, vM2 = vT + 2, vT + 3

        def mx(t):
            s = ST + 16 * (t % 3)
            L = []
            for i in range(8):
                d = vM if i % 2 == 0 else vM2
                if t == 0 and i < 2:
                    L.append(f'v_max_f32 v{d}, v{s+2*i}, v{s+2*i+1}')
                else:
                    L.append(f'v_max3_f32 v{d}, v{s+2*i}, v{s+2*i+1}, v{d}')
            return L

        def vread(t):
            d = VF + 8 * (t % 2)
            return [f'ds_read_b64_tr_b16 {vr(d+4*kv+2*jj,2)}, v{vVA} offset:{t*4096+2048+(16*kv+8*jj)*64}'
                    for kv in range(2) for jj in range(2)]
        def popbg():
            L = []
            while bg:
                x = bg.pop(0)
                L.append(x)
                if is_mem(x):
                    break
            return L
        for t in range(4):
            p.ext(kread(t))
        q = qk(0)
        p.ext([q[0]] + kread(4) + [q[1]] + kread(5))
        q = qk(1)
        p.ext([q[0]] + kread(6) + [q[1]] + kread(7))
        for t in range(9):
            m = mx(t)
            if t + 2 < 9:
                q = qk(t + 2)
                extra = kread(8) if t == 0 else vread(0)[:2] if t == 5 else vread(0)[2:] if t == 6 else []
                if t % 2 == 1:
                    extra = extra + popbg()
                p.ext([q[0]] + extra + m[:4] + [q[1]] + m[4:])
            else:
                p.ext(m)
        self.stamp('a1')
        a, b2, r1 = vT + 4, vT + 5, vT + 6
        p(f'v_max_f32 v{vM}, v{vM}, v{vM2}')
        p(f'v_mov_b32 v{a}, v{vM}')
        p(f'v_permlane32_swap_b32 v{vM}, v{a}')
        p(f'v_max_f32 v{vM}, v{vM}, v{a}')
        p(f'v_xor_b32 v{vM}, 0x80000000, v{vM}')
        p(f'v_and_b32 v{a}, 0xffff0000, v{vM}')
        p(f'v_sub_f32 v{r1}, v{vM}, v{a}')
        p(f'v_and_b32 v{a}, 0xffff0000, v{r1}')
        p(f'v_sub_f32 v{b2}, v{r1}, v{a}')
        p('s_mov_b32 exec_lo, 0')
        p(f'v_perm_b32 v{QF+6}, v{r1}, v{vM}, s{sPERM}')
        p(f'v_perm_b32 v{QF+7}, 1.0, v{b2}, s{sPERM}')
        p('s_mov_b64 exec, -1')

        def ex(t):
            s = ST + 16 * (t % 3)
            pb = PB + 8 * (t % 2)
            L = []
            for i in range(8):
                L.append(f'v_exp_f32 v{s+2*i}, v{s+2*i}')
                L.append(f'v_exp_f32 v{s+2*i+1}, v{s+2*i+1}')
                if i:
                    L.append(f'v_cvt_pk_bf16_f32 v{pb+i-1}, v{s+2*i-2}, v{s+2*i-1}')
            L.append(f'v_cvt_pk_bf16_f32 v{pb+7}, v{s+14}, v{s+15}')
            return L

        def pv(t):
            d = VF + 8 * (t % 2)
            pb = PB + 8 * (t % 2)
            return [f'{MF32} {vr(OA,16)}, {vr(d)}, {vr(pb)}, {vr(OA,16) if t else 0}',
                    f'{MF32} {vr(OA,16)}, {vr(d+4)}, {vr(pb+4)}, {vr(OA,16)}']

        self.pad()

        def wol(i):
            ks, z = i // 2, i % 2
            return f'buffer_load_dwordx4 {vr(32+4*i)}, v{vZ+z}, {srd(S_WS)}, s{sWO + ks//2} offen offset:{(ks%2)*2048} sc1'
        p.ext(qk(0))
        p.ext(qk(1))
        for t in range(9):
            e = ex(t)
            mf = (pv(t - 1) if t else []) + (qk(t + 2) if t + 2 < 9 else [])
            out = []
            pos = [2, 7, 12, 17]
            for i, x in enumerate(e):
                out.append(x)
                if i in pos and pos.index(i) < len(mf):
                    k = pos.index(i)
                    out.append(mf[k])
                    if t + 1 < 9:
                        if t == 0:
                            out += vread(1)[2 * k:2 * k + 2]
                        elif k in (1, 2):
                            out += vread(t + 1)[2 * (k - 1):2 * (k - 1) + 2]
                        elif t == 7 and k == 1:
                            pass
                    if t < 6 and k in (0, 3) or t == 0:
                        out += popbg()
                    if t >= 7:
                        out += [wol(8 * (t - 7) + 4 * k + q) for q in range(4)]
            if t == 7:
                out = out[:-3] + vread(8)[2:] + out[-3:]
            p.ext(out)
        assert not bg
        p.ext(pv(8))
        self.stamp('a2')
        p(f'v_mov_b32 v{a}, v{OA+12}')
        p(f'v_mov_b32 v{b2}, v{OA+12}')
        p(f'v_permlane32_swap_b32 v{a}, v{b2}')
        p(f'v_rcp_f32 v{b2}, v{b2}')
        for i in range(8):
            p(f'v_pk_mul_f32 {vr(OA+2*i,2)}, {vr(OA+2*i,2)}, {vr(a,2)} op_sel:[0,1] op_sel_hi:[1,1]')
            p(f'v_cvt_pk_bf16_f32 v{PB+i}, v{OA+2*i}, v{OA+2*i+1}')
            if i % 4 == 3:
                p(f'buffer_store_dwordx4 {vr(PB+i-3)}, v{vL16}, {srd(S_WS)}, s{sOD} offen offset:{(i//4)*1024}', tok='ost')
        self.publish(['ost'], sOF)
        self.stamp('att')

    def reduce_writes(self, ACC):
        return [Ins(f'ds_write_b128 v{vRW+x-1}, {vr(ACC+16*x+4*c)} offset:{c*1024}', 'rw') for x in range(1, 4) for c in range(4)]

    def reduce_finish(self, ACC, TMP):
        p = self.p
        p.wait('rw')
        self.pad()
        p('s_barrier')
        for c in range(4):
            for x in range(3):
                p(f'ds_read_b128 {vr(TMP+16*x+4*c)}, v{vRW+3} offset:{x*4096+c*1024}')
        for c in range(8):
            p(f'v_pk_add_f32 {vr(TMP+2*c,2)}, {vr(TMP+2*c,2)}, {vr(TMP+16+2*c,2)}')
            p(f'v_pk_add_f32 {vr(ACC+2*c,2)}, {vr(ACC+2*c,2)}, {vr(TMP+32+2*c,2)}')
            p(f'v_pk_add_f32 {vr(ACC+2*c,2)}, {vr(ACC+2*c,2)}, {vr(TMP+2*c,2)}')

    def yoffs(self, dst, mul, add):
        L = []
        for y in range(2):
            L += [f's_xor_b32 s{sT0}, s{sRHO}, {y}', f's_lshl_b32 s{sT1}, s{sRB}, 1', f's_add_u32 s{sT0}, s{sT0}, s{sT1}',
                  f's_lshl_b32 s{sT0}, s{sT0}, 2', f's_add_u32 s{sT0}, s{sT0}, s{sW}'] + self.roff(dst + y, sT0, mul, add)
        return L

    def p3(self):
        p = self.p
        WO, OF, ACC, RING = 32, 96, 160, 200

        def colsum():
            for i in range(4):
                p(f'v_mov_b32 v{vT+4+i}, s{sONES}')
            p(f's_lshl_b32 s{sT0}, s{sW}, 10')
            p(f'v_add_u32 v{vT}, s{sT0}, v{vL16}')
            p(f's_min_u32 s{sT0}, s{sT0}, 2048')
            p(f'v_add_u32 v{vT+1}, s{sT0}, v{vA1}')
            rd = lambda f: f'ds_read_b128 {vr(RING+4*(f%6))}, v{vT+f%2} offset:{(f//2)*(4096, 3072)[f%2]}'
            for f in range(5):
                p(rd(f))
            for f in range(28):
                a = ACC + 4 * (f % 2)
                p(f'{MF16} {vr(a)}, {vr(vT+4)}, {vr(RING+4*(f%6))}, {vr(a) if f > 1 else 0}')
                if f + 5 < 28:
                    p(rd(f + 5))
            p(f's_lshl_b32 s{sT0}, s{sW}, 6')
            p(f's_add_u32 s{sT0}, s{sT0}, {L_CS1}')
            p(f'v_and_b32 v{vT}, 15, v{vL}')
            p(f'v_lshlrev_b32 v{vT}, 2, v{vT}')
            p(f'v_add_u32 v{vT}, s{sT0}, v{vT}')
            p(f'ds_write_b32 v{vT}, v{ACC}')
            p(f'ds_write_b32 v{vT}, v{ACC+4} offset:256')
            p('s_waitcnt lgkmcnt(0)')
        self.colsum1 = colsum
        w1d = self.w1_dma(1)
        self.pad()
        p('s_barrier')
        ljoin, lidle = p.newlabel('p3join'), p.newlabel('p3idle')
        p(f's_cmp_ge_u32 s{sM}, 28')
        p(f's_cbranch_scc1 {lidle}')
        p.mark('maybe_begin')
        sFO, sY = sO, sO + 2
        p(f's_lshl_b32 s{sT0}, s{sRB}, 3')
        p(f's_add_u32 s{sT0}, s{sT0}, s{sW}')
        p.ext(self.off(sFO, sT0, 32, O_FO))
        p.ext(self.yoffs(sY, 8192, O_O))
        p(f's_add_u32 s{sY+2}, s{sY}, 4096')
        p(f's_add_u32 s{sY+3}, s{sY+1}, 4096')
        p.ext(self.pub_offsets(O_X1, O_ST1, O_FX1))
        self.vpoll(vFLG, sFO, 8)
        self.stamp('B')

        def ld(ks, y):
            return f'buffer_load_dwordx4 {vr(OF+(ks*2+y)*4)}, v{vL16}, {srd(S_WS)}, s{sY + 2*(ks//4) + y} offen offset:{(ks%4)*1024} sc1'

        def mf(ks, x):
            y, z = x >> 1, x & 1
            c = vr(ACC + 16 * x, 16) if ks else (vr(vRES, 16) if x == 0 else '0')
            return f'{MF32} {vr(ACC+16*x,16)}, {vr(WO+(ks*2+z)*4)}, {vr(OF+(ks*2+y)*4)}, {c}'
        for ks in range(5):
            for y in range(2):
                p(ld(ks, y))
        rest = list(w1d)
        for ks in range(8):
            for x in (1, 2, 3):
                p(mf(ks, x))
                if ks + 5 < 8 and x < 3:
                    p(ld(ks + 5, x - 1))
                elif ks >= 3 and rest:
                    y = rest.pop(0)
                    p.ext([y])
                    while rest and not is_mem(y):
                        y = rest.pop(0)
                        p.ext([y])
        assert not rest
        self.stamp('p3mm')
        p.ext(sched([mf(ks, 0) for ks in range(8)], {}, {}, self.reduce_writes(ACC), 2, start=2))
        self.stamp('p3rw')
        self.reduce_finish(ACC, 32)
        self.stamp('p3rd')
        P = 96
        for i in range(8):
            p(f'v_cvt_pk_bf16_f32 v{P+i}, v{ACC+2*i}, v{ACC+2*i+1}')
        self.x_store(P, vX1A, (0, 512))
        self.publish(['xst'], sXF)
        self.stamp('p3pub')
        p.ext(self.res_unpack(P))
        p.mark('maybe_end')
        p.label(ljoin)
        lq = p.newlabel('p3noq')
        vq = [f's_cmp_lg_u32 s{sLAYER}, 0', f's_cbranch_scc1 {ljoin}',
              f's_lshl_b32 s{sT0}, s{sCB}, 2', f's_add_u32 s{sT0}, s{sT0}, s{sW}',
              f's_lshl_b32 s{sT1}, s{sT0}, 7', f's_add_u32 s{sT1}, s{sT1}, {F_WQ}']
        self.idle3 = (lidle, w1d + vq, sT1, ljoin)
        self.pad()
        p('s_waitcnt vmcnt(0)')
        p('s_barrier')
        self.if_layer0(lambda: (self.colsum1(), p('s_barrier')))
        self.stamp('p3')

    def p4(self):
        p = self.p
        X, ACC, RING, CS = 32, 144, 200, 224
        sXO, sST, sFX, sH, sHF = sO, sO + 7, sO + 8, sO + 9, sO + 11
        self.if_layer0(lambda: p.ext(self.w2_loads(0, 12)))
        p.ext(self.xoff(sXO, sTP, 28672, O_X1))
        for g in range(1, 7):
            p(f's_add_u32 s{sXO+g}, s{sXO}, {4096*g}')
        p.ext(self.off(sST, sTP, 3584, O_ST1))
        p.ext(self.off(sFX, sTP, 128, O_FX1))
        p(f's_lshl_b32 s{sT0}, s{sTP}, 4')
        p(f's_add_u32 s{sT0}, s{sT0}, s{sJ}')
        p.ext(self.roff(sH, sT0, 7168, O_H))
        p(f's_add_u32 s{sH+1}, s{sH}, 4096')
        p.ext(self.off(sHF, sT0, 8, O_FH))
        vHA, vHB = vT + 1, vT + 2
        p.ext([f'v_lshrrev_b32 v{vCSA}, 4, v{vL}', f'v_lshlrev_b32 v{vCSA}, 4, v{vCSA}', f'v_add_u32 v{vCSA}, {L_CS1}, v{vCSA}',
               f'v_lshrrev_b32 v{vHA}, 5, v{vL}', f'v_lshlrev_b32 v{vHA}, 10, v{vHA}',
               f'v_bfe_u32 v{vHB}, v{vL}, 4, 1', f'v_lshl_add_u32 v{vHA}, v{vHB}, 9, v{vHA}',
               f'v_and_b32 v{vT+3}, 15, v{vL}', f'v_lshl_add_u32 v{vHA}, v{vT+3}, 4, v{vHA}',
               f'v_lshlrev_b32 v{vHB}, 3, v{vHB}', f'v_lshl_add_u32 v{vHB}, v{vT+3}, 4, v{vHB}',
               f'v_lshrrev_b32 v{vT+3}, 5, v{vL}', f'v_lshl_add_u32 v{vHB}, v{vT+3}, 9, v{vHB}'])
        seq = [(t, s) for s in range(14) for t in range(4)] + [(t, s) for s in range(14) for t in range(4, 7)]

        def frag(f):
            base, off = (vL16, f * 1024) if f < 56 else (vA1, (f - 56) * 1024)
            return f'ds_read_b128 {vr(RING + 4*(f % 6))}, v{base} offset:{off}'

        def mf(f, u):
            t, s = seq[f]
            return f'{MF16} {vr(ACC+8*t+4*u)}, {vr(RING+4*(f%6))}, {vr(X+4*(2*s+u))}, {vr(ACC+8*t+4*u) if s else 0}'

        def xl(i):
            return f'buffer_load_dwordx4 {vr(X+4*i)}, v{vL16}, {srd(S_WS)}, s{sXO + i//4} offen offset:{(i%4)*1024} sc1'
        PD = 4
        for f in range(PD):
            p(frag(f))
        self.pad()
        self.vpoll(vL8, sFX, 14)
        self.stamp('C')
        XP = 8
        for i in range(XP):
            p(xl(i))
        mem, pre = {}, {}
        for f in range(98):
            mem[2 * f] = [frag(f + PD)] if f + PD < 98 else []
            if f < 56 and f % 2 == 0 and f // 2 + XP < 28:
                mem[2 * f + 1] = [xl(f // 2 + XP)]
            if 27 <= f < 41 and f % 2 == 1:
                mem[2 * f + 1] = [self.stats_loads(sST, CS)[(f - 27) // 2]]
            if f % 2 == 0:
                tch = vr(RING + 4 * (f % 6)) + ' ' + vr(RING + 4 * ((f + 1) % 6))
                if f < 56 and f % 4 == 0:
                    tch += ' ' + vr(X + 8 * (f // 4), 8)
                pre[2 * f] = [Touch(tch)]
        mfs = [mf(f, u) for f in range(98) for u in range(2)]
        side = self.stats_reduce(CS) + [f'v_mov_b32 v{vRSTD}, v{vMEAN}', 's_nop 0', f'v_permlane16_swap_b32 v{vMEAN}, v{vRSTD}']
        p.ext(sched(mfs[:112], pre, mem, side, 2, start=92))
        self.stamp('p4g1')
        PO = vT + 4

        def epi(tiles, tok):
            L = []
            for t in tiles:
                L.append(f'ds_read_b128 {vr(CS+4*(t%4))}, v{vCSA} offset:{t*64}')
            pairs = [tiles[i:i + 2] for i in range(0, len(tiles), 2)]
            n = 0
            for pr in pairs:
                for u in range(2):
                    po = PO + 4 * (n % 3)
                    n += 1
                    mean = (vMEAN, vRSTD)[u]
                    for k, t in enumerate(pr):
                        a = ACC + 8 * t + 4 * u
                        for r in range(4):
                            L.append(f'v_fma_f32 v{a+r}, v{CS+4*(t%4)+r}, v{mean}, v{a+r}')
                        for r in range(2):
                            L.append(f'v_cvt_pk_bf16_f32 v{po+2*k+r}, v{a+2*r}, v{a+2*r+1}')
                        for r in range(2):
                            L.append(f'v_pk_max_i16 v{po+2*k+r}, v{po+2*k+r}, 0')
                    t = pr[0]
                    so, off = (sH, t * 1024) if t < 4 else (sH + 1, (t - 4) * 1024)
                    if len(pr) == 2:
                        L.append(Ins(f'buffer_store_dwordx4 {vr(po)}, v{vHA}, {srd(S_WS)}, s{so} offen offset:{off+u*256}', tok))
                    else:
                        L.append(Ins(f'buffer_store_dwordx2 {vr(po,2)}, v{vHB}, {srd(S_WS)}, s{so} offen offset:{off+u*256}', tok))
            return L
        pre2 = {i - 112: v for i, v in pre.items() if i >= 112}
        mem2 = {i - 112: v for i, v in mem.items() if i >= 112}
        self.pad()
        p('s_barrier')
        wq = self.wq_dma((0, 1), sXO)
        i = 1
        for x in wq:
            mem2.setdefault(i, []).append(x)
            if is_mem(x):
                i += 4
        p.ext(sched(mfs[112:], pre2, mem2, epi([0, 1, 2, 3], 'hst'), 2, start=0))
        self.stamp('p4g2')
        p.ext(epi([4, 5, 6], 'hst'))
        self.stamp('p4ep')
        self.publish(['hst'], sHF)
        self.pad()
        p('s_barrier')
        self.stamp('p4')

    def p5(self):
        p = self.p
        HR, ACC, CS = 32, 160, 224
        lskip, ljoin, llast = p.newlabel('p5skip'), p.newlabel('p5join'), p.newlabel('p5last')
        p(f's_cmp_ge_u32 s{sM}, 28')
        p(f's_cbranch_scc1 {lskip}')
        sFH, sST, sY = sO, sO + 1, sO + 2
        self.if_layer0(lambda: p.ext(self.w2_loads(12, 28)))
        p(f's_lshl_b32 s{sT0}, s{sRB}, 3')
        p(f's_add_u32 s{sT0}, s{sT0}, s{sW}')
        p.ext(self.off(sFH, sT0, 32, O_FH))
        p.ext(self.yoffs(sY, 28672, O_H))
        for g in range(1, 7):
            for y in range(2):
                p(f's_add_u32 s{sY+2*g+y}, s{sY+y}, {4096*g}')
        p(f's_lshl_b32 s{sT0}, s{sRB}, 1')
        p(f's_add_u32 s{sT0}, s{sT0}, s{sRHO}')
        p.ext(self.off(sST, sT0, 3584, O_ST1))
        p.ext(self.pub_offsets(O_XA + LSTRIDE, O_STA + LSTRIDE, O_FXA + LSTRIDE))
        self.pad()
        self.vpoll(vFLG, sFH, 8)
        self.stamp('D')
        NR = 16

        def ld(ks, y):
            return f'buffer_load_dwordx4 {vr(HR+((ks%NR)*2+y)*4)}, v{vL16}, {srd(S_WS)}, s{sY + 2*(ks//4) + y} offen offset:{(ks%4)*1024} sc1'

        def mf(ks, x):
            y, z = x >> 1, x & 1
            return f'{MF32} {vr(ACC+16*x,16)}, {ar(ks*8+z*4)}, {vr(HR+((ks%NR)*2+y)*4)}, {vr(ACC+16*x,16) if ks else 0}'
        PD = 5
        for ks in range(PD):
            p(ld(ks, 0))
            p(ld(ks, 1))
        TAIL = 14
        mfs, mem = [], {}
        bgl = self.stats_loads(sST, CS)
        for ks in range(28):
            xs = (0, 1, 2, 3) if ks < 28 - TAIL else (1, 2, 3)
            for n, x in enumerate(xs):
                i = len(mfs)
                mfs.append(mf(ks, x))
                if ks + PD < 28:
                    if n < 2:
                        mem[i] = [ld(ks + PD, n)]
                else:
                    mem[i] = []
                    while bgl:
                        y = bgl.pop(0)
                        mem[i].append(y)
                        if is_mem(y):
                            break
        p.ext(sched(mfs, {}, mem, [], 6))
        self.stamp('p5mm')
        sr = self.stats_reduce(CS)
        mem = {}
        for i, x in enumerate(self.reduce_writes(ACC)):
            mem.setdefault(2 + i, []).append(x)
        p.ext(sched([mf(ks, 0) for ks in range(28 - TAIL, 28)], {}, mem, bgl + sr, 5, start=0))
        self.stamp('p5rw')
        self.reduce_finish(ACC, 32)
        self.stamp('p5rd')
        P = 96
        for i in range(8):
            p(f'v_pk_fma_f32 {vr(ACC+2*i,2)}, {vr(ACC+2*i,2)}, {vr(vMEAN,2)}, {vr(vRES+2*i,2)} op_sel:[0,1,0] op_sel_hi:[1,1,1]')
            p(f'v_cvt_pk_bf16_f32 v{P+i}, v{ACC+2*i}, v{ACC+2*i+1}')
        p(f's_cmp_lg_u32 s{sLAYER}, 0')
        p(f's_cbranch_scc1 {llast}')
        self.x_store(P, vL16, (0, 1024))
        p.ext(self.wq_dma((2,)))
        self.publish(['xst'], sXF)
        self.stamp('p5pub')
        p.ext(self.res_unpack(P))
        p.label(ljoin)
        p('s_waitcnt vmcnt(0) lgkmcnt(0)')
        p('s_barrier')
        p(f's_mov_b32 s{sLAYER}, 1')
        p(f's_add_u32 s{sLB}, s{sLB}, {LSTRIDE}')
        p('s_branch L_layer')
        self.tail.append((lskip, [f's_cmp_lg_u32 s{sLAYER}, 0', 's_cbranch_scc1 L_fin'] + self.wq_dma((2,)) + [f's_branch {ljoin}']))
        p.label(llast, reset='all')
        p(f'v_and_b32 v{vT+4}, 31, v{vL}')
        p(f'v_mul_u32_u24 v{vT+4}, 896, v{vT+4}')
        p(f'v_lshrrev_b32 v{vT+5}, 5, v{vL}')
        p(f'v_lshl_add_u32 v{vT+4}, v{vT+5}, 4, v{vT+4}')
        for hf in range(2):
            p(f'v_permlane32_swap_b32 v{P+4*hf}, v{P+4*hf+2}')
            p(f'v_permlane32_swap_b32 v{P+4*hf+1}, v{P+4*hf+3}')
            p(f'buffer_store_dwordx4 {vr(P+4*hf)}, v{vT+4}, {srd(S_OUT)}, s{sQOFF} offen offset:{32*hf}')
        p('s_cmp_lg_u32 s2, %d' % (27 * 8 + 7))
        p('s_cbranch_scc1 L_fin')
        p(f's_mov_b32 s{sT0}, {WS_EPOCH}')
        p.ext(self.flag_sc1(sT0))

    def build(self):
        p = self.p
        self.prologue()
        p.label('L_layer', reset='all')
        for i, ph in enumerate(('p1', 'attn', 'p3', 'p4', 'p5')):
            getattr(self, ph)()
            if self.stop is not None and i + 1 >= self.stop:
                break
        p.label('L_fin')
        self.stamp('end')
        self.stamp_dump()
        p.label('L_end')
        p('s_endpgm')
        if hasattr(self, 'idle3'):
            lab, code, sfl, back = self.idle3
            p.label(lab, reset='all')
            p.ext(code)
            self.vpoll(vL8, sfl, 14, acquire=False)
            p(f'v_lshlrev_b32 v{vT}, 7, v{vL}')
            p(f's_mul_i32 s{sT1}, s{sT0}, 86016')
            p.ext(self.prefetch(vT, sT1, WQT, 86016))
            p(f's_branch {back}')
        for lab, code in self.tail:
            p.label(lab, reset='all')
            p.ext(code)
        p.label('L_codeend')
        self.emit_walker()
        p.insert_waits()
        probs = p.fix_hazards()
        for x in probs:
            print('branch hazard padded', x, file=sys.stderr)
        mx = p.maxregs()
        head = open(os.path.join(os.path.dirname(__file__), '..', 'cdna_kernels', NAME + '.s.ref')).read().split('\n')
        hdr = [l for l in head if l.startswith(';') and '@launch' not in l]
        out = '\n'.join(hdr) + f'\n; @launch grid=(256,1,1) block=(256,1,1) lds={LDS_BYTES}\n'
        out += '.amdgcn_target "amdgcn-amd-amdhsa--gfx950"\n.text\n'
        out += f'.globl {NAME}_kernel\n.p2align 8\n.type {NAME}_kernel,@function\n{NAME}_kernel:\n'
        out += p.text()
        out += '.fill 64, 4, 0xbf800000\n'
        out += f'''.section .rodata,"a"
.p2align 6
.amdhsa_kernel {NAME}_kernel
  .amdhsa_next_free_vgpr 512
  .amdhsa_next_free_sgpr 102
  .amdhsa_accum_offset 256
  .amdhsa_group_segment_fixed_size 0
  .amdhsa_kernarg_size 72
  .amdhsa_user_sgpr_count 2
  .amdhsa_user_sgpr_kernarg_segment_ptr 1
  .amdhsa_system_sgpr_workgroup_id_x 1
  .amdhsa_float_denorm_mode_32 3
.end_amdhsa_kernel
'''
        print('regs', mx, 'instrs', sum(1 for x in p.items if isinstance(x, Ins)), file=sys.stderr)
        return out


if __name__ == '__main__':
    stop = int(sys.argv[2]) if len(sys.argv) > 2 else None
    k = K(stop if stop and stop > 0 else None, dbg=sys.argv[3].split(',') if len(sys.argv) > 3 else None)
    open(sys.argv[1], 'w').write(k.build())
    if k.dbg:
        open(os.path.join(os.path.dirname(sys.argv[1]), 'stamps.txt'), 'w').write(' '.join(k.stamps))
```

```python
import sys, os, math, struct
sys.path.insert(0, os.path.dirname(__file__))
from asmlib import Prog, Ins, Wait, Mark, Label, Touch

NAME = 'interleave_layers__sliding_block__dense_activation_relu__prompt'

WS_EPOCH = 0
WS_PUR = 0x1000
F_WQ = 0x2000
F_W1 = 0x2800
F_W2 = 0x3000
F_WO = 0x4000
WQT = 0x100000
W1T = 0x250000
WOT = 0x3D8000
W2T = 0x448000
TEAM0 = 0x600000
LSTRIDE = 0x230000
STRIDE = 2 * LSTRIDE
O_KV = 0x000000
O_O = 0x080000
O_X1 = 0x0C0000
O_XA = 0x0F8000
O_ST1 = 0x130000
O_STA = 0x138000
O_FKV = 0x140000
O_FO = 0x144000
O_FX1 = 0x144400
O_FXA = 0x144800
O_FH = 0x145000
O_H = 0x150000
WS_BYTES = TEAM0 + 8 * STRIDE

LKV = 100352
L_CSQ = 149504
L_CS1 = L_CSQ + 512
L_CSP = L_CS1 + 512
LDS_BYTES = 163840

S_X, S_WQ, S_WO, S_W1, S_W2, S_OUT, S_WS = 8, 12, 16, 20, 24, 28, 32
S_WSP = 36
sTEAM, sM, sA, sJ, sW, sRB, sCB, sLB = 40, 41, 42, 43, 44, 45, 46, 47
sF, sPURE, sLAYER, sTP = 48, 50, 51, 52
sQOFF = 53
sHI = 54
sPERM, sONES = 56, 57
sRHO, sNU = 58, 59
sT0, sT1, sT2, sT3, sT4, sT5 = 60, 61, 62, 63, 64, 65
sCNT = 66
sTB = 71
sJFL = 67
sXD, sXS, sXF = 68, 69, 70
sPOLL = 72
sO = 80

vL, vL16, vA1, vL8 = 0, 1, 2, 3
vSTA = 4
vFLG = 5
vRW = 6
vX1A = 10
vCSA = 11
vF = 12
vMEAN, vRSTD = 14, 15
vT = 16
vRES = 240

POLL_MAX = 1 << 16
MF32 = 'v_mfma_f32_32x32x16_bf16'
MF16 = 'v_mfma_f32_16x16x32_bf16'


def srd(b):
    return f's[{b}:{b+3}]'


def vr(b, n=4):
    return f'v[{b}:{b+n-1}]' if n > 1 else f'v{b}'


def ar(b, n=4):
    return f'a[{b}:{b+n-1}]'


def f32bits(x):
    return struct.unpack('<I', struct.pack('<f', x))[0]


def is_mem(x):
    if isinstance(x, (list, tuple)):
        return any(is_mem(y) for y in x)
    t = x.text if isinstance(x, Ins) else x if isinstance(x, str) else ''
    return t.startswith('ds_') or t.startswith('buffer_') or t.startswith('global_')


def cost(x):
    if isinstance(x, (list, tuple)):
        return sum(cost(y) for y in x)
    if isinstance(x, (Wait, Touch)):
        return 1
    t = x.text if isinstance(x, Ins) else x
    return 2 if t.startswith('v_exp') or t.startswith('v_rsq') or t.startswith('v_rcp') or t.startswith('v_permlane') else 1


def sched(mfs, pre, mem, side, cap, start=0):
    out = []
    side = list(side)
    for i, m in enumerate(mfs):
        out += pre.get(i, [])
        out.append(m)
        n = 0
        for x in mem.get(i, []):
            out.append(x)
            n += cost(x)
        if pre.get(i + 1):
            n += 1
        valu = False
        if i >= start:
            while side and n + cost(side[0]) <= cap:
                if is_mem(side[0]) and valu:
                    break
                x = side.pop(0)
                if not is_mem(x) and not isinstance(x, (Wait, Touch)):
                    t = x[0] if isinstance(x, (list, tuple)) else x
                    if any((y.text if isinstance(y, Ins) else y).startswith('v_') for y in (x if isinstance(x, (list, tuple)) else [x])):
                        valu = True
                out.append(x)
                n += cost(x)
            if side and n == 0 and cost(side[0]) > cap:
                out.append(side.pop(0))
    return out + side


class K:
    def __init__(self, stop=None, dbg=False):
        self.p = Prog()
        self.stop = stop
        self.dbg = dbg
        self.stamps = []
        self.tail = []
        self.pads = []

    def stamp(self, name):
        if not self.dbg or (name not in self.dbg and name not in ('start', 'end')):
            return
        k = len(self.stamps)
        assert k < 15
        self.stamps.append(name)
        p = self.p
        p('s_memrealtime s[96:97]' if 'RT' in self.dbg else 's_memtime s[96:97]')
        p('s_waitcnt lgkmcnt(0)')
        l1 = p.newlabel('st')
        p(f's_cmp_lg_u32 s{sLAYER}, 0')
        p(f's_cbranch_scc1 {l1}')
        p(f'v_accvgpr_write_b32 a{224+k}, s96')
        p.label(l1)
        p(f'v_accvgpr_write_b32 a{240+k}, s96')

    def stamp_dump(self):
        if not self.dbg:
            return
        p = self.p
        p(f's_lshl_b32 s{sT0}, s2, 2')
        p(f's_add_u32 s{sT0}, s{sT0}, s{sW}')
        p(f's_lshl_b32 s{sT0}, s{sT0}, 7')
        p(f's_add_u32 s{sT0}, s{sT0}, 0x40000')
        p('s_mov_b64 exec, 1')
        for k in range(32):
            p(f'buffer_store_dword a{224+k}, off, {srd(S_WS)}, s{sT0} offset:{4*k}')
        if 'DBG' in self.dbg:
            p('s_cmp_lg_u32 s2, 43')
            p('s_cbranch_scc1 L_end')
            p(f's_cmp_lg_u32 s{sW}, 1')
            p('s_cbranch_scc1 L_end')
            p('s_load_dwordx2 s[96:97], s[0:1], 56')
            p('v_accvgpr_read_b32 v16, a224')
            p('v_mov_b32 v18, 0')
            p('s_waitcnt lgkmcnt(0)')
            n = len(self.stamps)
            f = self.stamps.index('pro') + 1 if 'pro' in self.stamps else 1
            regs = [224 + k for k in range(1, n - 1)] + [240 + k for k in range(f, n)]
            for i, r in enumerate(regs[:16]):
                p(f'v_accvgpr_read_b32 v17, a{r}')
                p('v_sub_u32 v17, v17, v16')
                p(f'global_store_dword v18, v17, s[96:97] offset:{4*i}')
        p('s_mov_b64 exec, -1')

    def dma(self, srdb, voff, sreg, simm, m0, tok, sc='', n=1):
        mr, mi = m0
        L = [f's_add_u32 m0, s{mr}, {mi}' if mr is not None else f's_mov_b32 m0, {mi}',
             f's_add_u32 s{sT5}, s{sreg}, {simm}']
        for k in range(n):
            L.append(Ins(f'buffer_load_dwordx4 v{voff}, {srd(srdb)}, s{sT5} offen offset:{1024*k} {sc} lds', tok))
        return L

    def if_layer0(self, body):
        p = self.p
        l = p.newlabel('l0')
        p(f's_cmp_lg_u32 s{sLAYER}, 0')
        p(f's_cbranch_scc1 {l}')
        p.mark('maybe_begin')
        body()
        p.mark('maybe_end')
        p.label(l)

    def vpoll(self, voff, soff, nl, acquire=True):
        p = self.p
        lp, lo = p.newlabel('poll'), p.newlabel('pollout')
        p(f's_mov_b64 exec, {(1 << nl) - 1:#x}')
        p(f's_mov_b32 s{sCNT}, 0')
        p.label(lp)
        p(f'buffer_load_dwordx2 {vr(vT + 14, 2)}, v{voff}, {srd(S_WS)}, s{soff} offen sc1')
        p(f's_add_u32 s{sCNT}, s{sCNT}, 1')
        p(f's_cmp_gt_u32 s{sCNT}, {POLL_MAX}')
        p(f's_cbranch_scc1 {lo}')
        p('s_waitcnt vmcnt(0)')
        p(f'v_cmp_ne_u64 vcc, s[{sF}:{sF+1}], {vr(vT + 14, 2)}')
        p(f's_cbranch_vccnz {lp}')
        p.label(lo)
        p('s_mov_b64 exec, -1')
        if acquire:
            lslow, lback = p.newlabel('acq'), p.newlabel('acqback')
            p(f's_cmp_lg_u32 s{sPURE}, 0')
            p(f's_cbranch_scc0 {lslow}')
            p.label(lback)
            self.tail.append((lslow, ['buffer_inv sc1', 's_waitcnt vmcnt(0)', f's_branch {lback}']))
        p.mark('drained_vm')

    def publish(self, toks, soff):
        p = self.p
        p.wait(*toks)
        lslow, lback = p.newlabel('pubslow'), p.newlabel('pubback')
        p('s_mov_b64 exec, 1')
        p(f's_cmp_lg_u32 s{sPURE}, 0')
        p(f's_cbranch_scc0 {lslow}')
        p(f'buffer_store_dwordx2 {vr(vF, 2)}, off, {srd(S_WS)}, s{soff}')
        p.label(lback)
        p('s_mov_b64 exec, -1')
        self.tail.append((lslow, [
            'buffer_wbl2 sc1', 's_waitcnt vmcnt(0)',
            f'buffer_store_dwordx2 {vr(vF, 2)}, off, {srd(S_WS)}, s{soff} sc1',
            f's_branch {lback}']))

    def flag_sc1(self, soff):
        return ['s_mov_b64 exec, 1', f'buffer_store_dwordx2 {vr(vF,2)}, off, {srd(S_WS)}, s{soff} sc1', 's_mov_b64 exec, -1']

    def stats_loads(self, soff, dst):
        return [f'buffer_load_dwordx2 {vr(dst + 2*i, 2)}, v{vSTA}, {srd(S_WS)}, s{soff} offen offset:{256*i} sc1' for i in range(7)]

    def stats_reduce(self, src):
        L = []
        for i in range(1, 7):
            L.append(f'v_add_f32 v{src}, v{src}, v{src+2*i}')
            L.append(f'v_add_f32 v{src+1}, v{src+1}, v{src+2*i+1}')
        s, q, t0, t1 = src, src + 1, src + 2, src + 3
        return L + [
            f'v_mov_b32 v{t0}, v{s}', f'v_mov_b32 v{t1}, v{q}', 's_nop 0',
            f'v_permlane32_swap_b32 v{s}, v{t0}', f'v_permlane32_swap_b32 v{q}, v{t1}',
            f'v_add_f32 v{s}, v{s}, v{t0}', f'v_add_f32 v{q}, v{q}, v{t1}',
            f'v_mul_f32 v{vMEAN}, {f32bits(-1.0/448):#x}, v{s}',
            f'v_mul_f32 v{q}, {f32bits(1.0/448):#x}, v{q}',
            f'v_fma_f32 v{q}, -v{vMEAN}, v{vMEAN}, v{q}',
            f'v_max_f32 v{q}, 0, v{q}',
            f'v_add_f32 v{q}, {f32bits(1e-5):#x}, v{q}',
            f'v_rsq_f32 v{vRSTD}, v{q}',
        ]

    def off(self, dst, idx_reg, mul, add):
        return [f's_mul_i32 s{dst}, s{idx_reg}, {mul}', f's_add_u32 s{dst}, s{dst}, s{sLB}', f's_add_u32 s{dst}, s{dst}, {add}']

    def xoff(self, dst, idx_reg, mul, add):
        return [f's_add_u32 s{sT3}, s{sLB}, {add}', f's_add_u32 s{sT4}, s{sTB}, {O_XA}', f's_cmp_lg_u32 s{sPURE}, 0',
                f's_cselect_b32 s{sT3}, s{sT4}, s{sT3}', f's_mul_i32 s{dst}, s{idx_reg}, {mul}', f's_add_u32 s{dst}, s{dst}, s{sT3}']

    def roff(self, dst, idx_reg, mul, add):
        return [f's_cmp_lg_u32 s{sPURE}, 0', f's_cselect_b32 s{sT3}, s{sTB}, s{sLB}',
                f's_mul_i32 s{dst}, s{idx_reg}, {mul}', f's_add_u32 s{dst}, s{dst}, s{sT3}', f's_add_u32 s{dst}, s{dst}, {add}']

    def pub_offsets(self, xoff, stoff, foff):
        return [f's_lshl_b32 s{sT0}, s{sRB}, 1', f's_add_u32 s{sT0}, s{sT0}, s{sRHO}',
                f's_lshl_b32 s{sT1}, s{sCB}, 1', f's_add_u32 s{sT1}, s{sT1}, s{sNU}',
                f's_mul_i32 s{sT2}, s{sT0}, 14', f's_add_u32 s{sT2}, s{sT2}, s{sT1}'] + \
            self.xoff(sXD, sT2, 2048, xoff) + self.off(sXS, sT2, 256, stoff) + \
            [f's_lshl_b32 s{sT0}, s{sT0}, 4', f's_add_u32 s{sT0}, s{sT0}, s{sT1}'] + self.off(sXF, sT0, 8, foff)

    def x_store(self, P, va, offs, sc=''):
        p = self.p
        S, Q2, t0, t1 = vT + 6, vT + 7, vT + 8, vT + 9
        for k in range(2):
            p(f'buffer_store_dwordx4 {vr(P+4*k)}, v{va}, {srd(S_WS)}, s{sXD} offen offset:{offs[k]} {sc}', tok='xst')
        p(f'v_mov_b32 v{t0}, s{sONES}')
        p(f'v_dot2_f32_bf16 v{S}, v{P}, v{t0}, 0')
        p(f'v_dot2_f32_bf16 v{Q2}, v{P}, v{P}, 0')
        for i in range(1, 8):
            p(f'v_dot2_f32_bf16 v{S}, v{P+i}, v{t0}, v{S}')
            p(f'v_dot2_f32_bf16 v{Q2}, v{P+i}, v{P+i}, v{Q2}')
        p(f'v_mov_b32 v{t0}, v{S}')
        p(f'v_mov_b32 v{t1}, v{Q2}')
        p(f'v_permlane32_swap_b32 v{S}, v{t0}')
        p(f'v_permlane32_swap_b32 v{Q2}, v{t1}')
        p(f'v_add_f32 v{S}, v{S}, v{t0}')
        p(f'v_add_f32 v{Q2}, v{Q2}, v{t1}')
        p('s_mov_b32 exec_hi, 0')
        p(f'buffer_store_dwordx2 {vr(S,2)}, v{vL8}, {srd(S_WS)}, s{sXS} offen {sc}', tok='xst')
        p('s_mov_b64 exec, -1')

    def res_unpack(self, P):
        L = []
        for q in range(8):
            L.append(f'v_lshlrev_b32 v{vRES+2*q}, 16, v{P+q}')
            L.append(f'v_and_b32 v{vRES+2*q+1}, 0xffff0000, v{P+q}')
        return L

    def prefetch(self, v128, sreg, base, nbytes):
        L = []
        o = 0
        while o < nbytes:
            oo = min(o, nbytes - 8192)
            L += [f's_add_u32 s{sT5}, s{sreg}, {base + oo}', f'buffer_load_dword a255, v{v128}, {srd(S_WS)}, s{sT5} offen sc1']
            o += 8192
        return L

    def wq_dma(self, tiles, dummy=None):
        L = [f's_mul_i32 s{sT0}, s{sJ}, 86016', f's_mul_i32 s{sT1}, s{sW}, 7168',
             f's_add_u32 s{sT0}, s{sT0}, s{sT1}']
        if dummy is not None:
            L += [f's_sub_u32 s{sT2}, s{dummy}, {WQT}', f's_cmp_lg_u32 s{sLAYER}, 0', f's_cselect_b32 s{sT0}, s{sT2}, s{sT0}']
        for tau in tiles:
            for o, n in ((0, 4), (4096, 3)):
                d = self.dma(S_WS, vL16, sT0, WQT + tau * 28672 + o, (sT1, tau * 28672 + o), 'wq', 'sc1', n)
                L += [d[:3]] + d[3:]
        return L

    def w1_dma(self, part):
        sg, sl = sPOLL, sPOLL + 1
        L = []
        if part == 0:
            L += [f's_mul_i32 s{sg}, s{sJ}, 100352', f's_mul_i32 s{sl}, s{sW}, 14336', f's_add_u32 s{sg}, s{sg}, s{sl}']
            groups = [(0, 4), (4096, 4), (8192, 4), (12288, 2)]
            base = 0
        else:
            L += [f's_mul_i32 s{sg}, s{sJ}, 100352', f's_mul_i32 s{sl}, s{sW}, 10240', f's_add_u32 s{sg}, s{sg}, s{sl}']
            groups = [(0, 4), (4096, 4), (8192, 2)]
            base = 57344
        for o, n in groups:
            d = self.dma(S_WS, vL16, sg, W1T + base + o, (sl, base + o), 'w1', 'sc1', n)
            L += [d[:3]] + d[3:]
        if part == 1:
            L += [f's_sub_u32 s{sg}, s{sg}, s{sl}', f's_lshl_b32 s{sl}, s{sNU}, 10', f's_add_u32 s{sg}, s{sg}, s{sl}']
            L.append(self.dma(S_WS, vL16, sg, W1T + 98304, (sl, 98304), 'w1', 'sc1', 1))
        return L

    def w2_loads(self, lo, hi):
        L = [f's_lshl_b32 s{sT0}, s{sCB}, 2', f's_add_u32 s{sT0}, s{sT0}, s{sW}', f's_mul_i32 s{sT0}, s{sT0}, 57344',
             f's_lshl_b32 s{sT1}, s{sNU}, 10', f'v_xor_b32 v{vT+10}, s{sT1}, v{vL16}', f'v_xor_b32 v{vT+11}, 1024, v{vT+10}']
        for ks in range(lo, hi):
            if ks == lo or ks % 2 == 0:
                L.append(f's_add_u32 s{sT1}, s{sT0}, {W2T + (ks//2)*4096}')
            for z in range(2):
                L.append(f'buffer_load_dwordx4 {ar(ks*8+z*4)}, v{vT+10+z}, {srd(S_WS)}, s{sT1} offen offset:{(ks%2)*2048} sc1')
        return L

    def lane_consts(self):
        p = self.p
        t0, t1 = vT + 6, vT + 7
        p(f'v_add_u32 v{vA1}, 57344, v{vL16}')
        p(f'v_and_b32 v{vSTA}, 31, v{vL}')
        p(f'v_lshlrev_b32 v{vSTA}, 3, v{vSTA}')
        p(f'v_lshrrev_b32 v{t0}, 5, v{vL}')
        p(f'v_mul_u32_u24 v{t1}, {7*256}, v{t0}')
        p(f'v_add_u32 v{vSTA}, v{vSTA}, v{t1}')
        p(f'v_lshrrev_b32 v{vFLG}, 2, v{vL}')
        p(f'v_lshlrev_b32 v{vFLG}, 7, v{vFLG}')
        p(f'v_and_b32 v{t1}, 3, v{vL}')
        p(f'v_lshl_add_u32 v{vFLG}, v{t1}, 3, v{vFLG}')
        for x in range(1, 4):
            p(f's_xor_b32 s{sT0}, s{sW}, {x}')
            p(f's_mul_i32 s{sT0}, s{sT0}, 12288')
            p(f's_add_u32 s{sT0}, s{sT0}, {LKV + (x-1)*4096}')
            p(f'v_add_u32 v{vRW+x-1}, s{sT0}, v{vL16}')
        p(f's_mul_i32 s{sT0}, s{sW}, 12288')
        p(f's_add_u32 s{sT0}, s{sT0}, {LKV}')
        p(f'v_add_u32 v{vRW+3}, s{sT0}, v{vL16}')
        p(f'v_bfe_u32 v{vX1A}, v{vL}, 4, 1')
        p(f'v_lshlrev_b32 v{vX1A}, 10, v{vX1A}')
        p(f'v_lshl_add_u32 v{vX1A}, v{t0}, 8, v{vX1A}')
        p(f'v_and_b32 v{t1}, 15, v{vL}')
        p(f'v_lshl_add_u32 v{vX1A}, v{t1}, 4, v{vX1A}')

    def pad(self):
        p = self.p
        k = len(self.pads)
        self.pads.append(f'L_pad{k}')
        p(f's_branch L_padskip{k}')
        p.label(f'L_pad{k}')
        p('s_setpc_b64 s[98:99]')
        p.label(f'L_padskip{k}')

    def emit_walker(self):
        L = []
        labs = [f'L_walk{w}' for w in range(4)]
        for w in range(1, 4):
            L += [Ins(f's_cmp_eq_u32 s{sW}, {w}'), Ins(f's_cbranch_scc1 {labs[w]}')]
        for w in range(4):
            if w:
                L.append(Label(labs[w]))
            for x in self.pads[w::4]:
                L.append(Ins(f's_call_b64 s[98:99], {x}'))
            if w < 3:
                L.append(Ins('s_branch L_walkend'))
        L.append(Label('L_walkend'))
        self.p.items[self.walker_at:self.walker_at] = L

    def prologue(self):
        p = self.p
        t0, t1, t2, t3 = vT, vT + 1, vT + 2, vT + 3
        vDQ, vTQ, vWQ = vT + 10, vT + 11, vT + 12
        sRQ, sLQ = sO + 6 + 16, sO + 7 + 16
        sRQ, sLQ = 76, 77
        p('s_cmp_ge_u32 s2, 256')
        p('s_cbranch_scc1 L_end')
        p(f's_load_dwordx16 s[{sO}:{sO+15}], s[0:1], 0')
        p(f's_load_dwordx2 s[{S_WSP}:{S_WSP+1}], s[0:1], 64')
        p(f's_getpc_b64 s[{sT0}:{sT0+1}]')
        p.label('L_pc')
        p(f'v_lshlrev_b32 v{t2}, 7, v0')
        p(f'v_min_u32 v{t2}, L_codeend-L_pc, v{t2}')
        p(f'global_load_dword a255, v{t2}, s[{sT0}:{sT0+1}]')
        p(f's_mov_b32 s{sLAYER}, 0')
        self.stamp('start')
        p(f'v_lshrrev_b32 v{vT}, 6, v0')
        p(f'v_and_b32 v{vL}, 63, v0')
        p(f'v_readfirstlane_b32 s{sW}, v{vT}')
        p(f's_and_b32 s{sTEAM}, s2, 7')
        p(f's_lshr_b32 s{sM}, s2, 3')
        p(f's_and_b32 s{sJ}, s{sM}, 15')
        p(f's_mul_i32 s{sRB}, s{sM}, 37')
        p(f's_lshr_b32 s{sRB}, s{sRB}, 8')
        p(f's_mul_i32 s{sT0}, s{sRB}, 7')
        p(f's_sub_u32 s{sCB}, s{sM}, s{sT0}')
        p(f's_lshr_b32 s{sRHO}, s{sW}, 1')
        p(f's_and_b32 s{sNU}, s{sW}, 1')
        p(f's_lshl_b32 s{sT0}, s{sTEAM}, 2')
        p(f's_add_u32 s{sT0}, s{sT0}, s{sRB}')
        p(f's_lshl_b32 s{sT1}, s{sT0}, 1')
        p(f's_add_u32 s{sT1}, s{sT1}, s{sRHO}')
        p(f's_mul_i32 s{sQOFF}, s{sT1}, {32*896}')
        p(f's_lshl_b32 s{sT1}, s{sCB}, 7')
        p(f's_add_u32 s{sQOFF}, s{sQOFF}, s{sT1}')
        p(f's_lshl_b32 s{sT1}, s{sNU}, 6')
        p(f's_add_u32 s{sQOFF}, s{sQOFF}, s{sT1}')
        p(f'v_and_b32 v{t3}, 31, v{vL}')
        p(f'v_mul_u32_u24 v{t3}, 896, v{t3}')
        p(f'v_lshrrev_b32 v{t1}, 5, v{vL}')
        p(f'v_lshl_add_u32 v{t3}, v{t1}, 3, v{t3}')
        p(f'v_lshrrev_b32 v{t0}, 2, v{vL}')
        p(f'v_and_b32 v{t1}, 3, v{vL}')
        p(f'v_mul_u32_u24 v{vDQ}, 2688, v{t0}')
        p(f'v_lshl_add_u32 v{vDQ}, v{t1}, 4, v{vDQ}')
        p(f's_mul_i32 s{sRQ}, s{sW}, {7*16*2688}')
        p(f's_mul_i32 s{sT1}, s{sJ}, 56')
        p(f's_add_u32 s{sRQ}, s{sRQ}, s{sT1}')
        p(f's_mul_i32 s{sLQ}, s{sW}, 7168')
        p(f's_lshl_b32 s{sT2}, s{sM}, 2')
        p(f's_add_u32 s{sT2}, s{sT2}, s{sW}')
        vPK, vPQ = vT + 14, vT + 15
        p(f's_mul_i32 s{sT3}, s{sT2}, 49')
        p(f'v_add_u32 v{t2}, s{sT3}, v{vL}')
        p(f'v_mul_u32_u24 v{vPK}, 74899, v{t2}')
        p(f'v_lshrrev_b32 v{vPK}, 20, v{vPK}')
        p(f'v_mul_u32_u24 v{vPK}, 7, v{vPK}')
        p(f'v_add_u32 v{vPK}, v{vPK}, v{t2}')
        p(f'v_lshlrev_b32 v{vPK}, 7, v{vPK}')
        b = sO

        def mksrd(d, src, n):
            p(f's_mov_b32 s{d}, s{src}')
            p(f's_and_b32 s{d+1}, s{src+1}, 0xffff')
            p(f's_mov_b32 s{d+2}, {n}')
            p(f's_mov_b32 s{d+3}, 0x20000')

        def rawq(tau, i):
            p.ext(self.dma(S_WQ, vDQ, sRQ, (448, 896, 0)[tau] * 2 + i * 16 * 2688, (sLQ, tau * 28672 + i * 1024), f'rq{tau}{i}'))
        mksrd(S_X, b, 1835008)
        mksrd(S_WQ, b + 2, 1204224)
        XR = 96
        for q in range(4):
            p(f'buffer_load_dwordx2 {vr(XR+2*q,2)}, v{t3}, {srd(S_X)}, s{sQOFF} offen offset:{16*q}')
        p('s_mov_b32 exec_hi, 0x1ffff')
        p(f'buffer_load_dword a255, v{vPK}, {srd(S_WQ)}, 0 offen offset:896')
        p('s_mov_b64 exec, -1')
        p(f's_load_dwordx2 s[{sF}:{sF+1}], s[{S_WSP}:{S_WSP+1}], {WS_EPOCH}')
        self.stamp('ka')
        p(f's_mul_i32 s{sT3}, s{sT2}, 25')
        p(f'v_add_u32 v{t2}, s{sT3}, v{vL}')
        p(f'v_mul_u32_u24 v{vPQ}, 149797, v{t2}')
        p(f'v_lshrrev_b32 v{vPQ}, 20, v{vPQ}')
        p(f'v_mul_u32_u24 v{vPQ}, 14, v{vPQ}')
        p(f'v_add_u32 v{vPQ}, v{vPQ}, v{t2}')
        p(f'v_lshlrev_b32 v{vPQ}, 7, v{vPQ}')
        for (d, src, n) in ((S_WO, b + 4, 401408), (S_W1, b + 8, 1605632),
                            (S_W2, b + 10, 1605632), (S_OUT, b + 12, 1835008), (S_WS, S_WSP, WS_BYTES)):
            mksrd(d, src, n)
        p(f's_lshr_b32 s{sA}, s{sM}, 4')
        p(f's_mul_i32 s{sLB}, s{sTEAM}, {STRIDE}')
        p(f's_add_u32 s{sLB}, s{sLB}, {TEAM0}')
        p(f's_mov_b32 s{sTB}, s{sLB}')
        p(f's_lshl_b32 s{sTP}, s{sA}, 2')
        p(f's_add_u32 s{sTP}, s{sTP}, s{sW}')
        p(f'v_lshlrev_b32 v{vL16}, 4, v{vL}')

        vCSP = 104

        def xform(tau, between=None):
            R = 128 + 32 * (tau % 2)

            def fin(i):
                p(f'ds_write_b128 v{vWQ}, {vr(R+4*i)} offset:{tau*28672+i*1024}')
                for q in range(4):
                    p(f'v_dot2_f32_bf16 v{vCSP+tau}, v{R+4*i+q}, v{vCSP+3}, {f"v{vCSP+tau}" if i or q else 0}')
            for i in range(7):
                p.wait(f'rq{tau}{i}')
                for jj in range(2):
                    p(f'ds_read_b64_tr_b16 {vr(R+4*i+2*jj,2)}, v{vTQ} offset:{tau*28672+i*1024+jj*512}')
                if between:
                    between(i)
                if i >= 1:
                    fin(i - 1)
            fin(6)
        sI, sSTG = sO, sO + 1
        p(f's_lshl_b32 s{sI}, s{sTEAM}, 1')
        p(f's_add_u32 s{sI}, s{sI}, s{sA}')
        p(f's_lshl_b32 s{sSTG}, s{sW}, 13')
        p(f's_add_u32 s{sSTG}, s{sSTG}, {LKV}')
        vD, vTR, vTR8 = vT + 4, vT + 5, vT + 13
        p(f'v_lshlrev_b32 v{t3}, 3, v{t1}')
        p(f'v_lshlrev_b32 v{t1}, 4, v{t1}')
        sFL, sDST, sDST2 = sO + 2, sO + 3, sO + 5
        FR = 32
        p(f'v_bfe_u32 v{t2}, v{vL}, 4, 1')
        p(f'v_lshl_add_u32 v{t2}, v{t2}, 5, v{t3}')
        p(f'v_bfe_u32 v{vTR}, v{vL}, 2, 2')
        p(f'v_lshl_add_u32 v{t2}, v{vTR}, 6, v{t2}')
        p(f'v_lshrrev_b32 v{vTR8}, 5, v{vL}')
        p(f'v_lshl_add_u32 v{vTQ}, v{vTR8}, 8, v{t2}')
        p(f'v_add_u32 v{vTR}, s{sSTG}, v{vTQ}')
        p(f'v_add_u32 v{t2}, s{sSTG}, v{t2}')
        p(f'v_lshl_add_u32 v{vTR8}, v{vTR8}, 9, v{t2}')

        def finish(nfr, offs, pre=()):
            L = list(pre)
            base = None
            for k in range(nfr):
                hi, lo = offs[k] // 4096 * 4096, offs[k] % 4096
                if hi != base:
                    L.append(f's_add_u32 s{sT5}, s{sDST}, {hi}')
                    base = hi
                L.append(f'buffer_store_dwordx4 {vr(FR+4*k)}, v{vL16}, {srd(S_WS)}, s{sT5} offen offset:{lo} sc1')
            return L

        p(f'v_add_u32 v{vTQ}, s{sLQ}, v{vTQ}')
        p(f'v_add_u32 v{vWQ}, s{sLQ}, v{vL16}')
        p(f's_mov_b32 s{sHI}, 0')
        p(f's_mov_b32 s{sHI+1}, -1')
        p(f's_mov_b32 s{sPERM}, 0x07060302')
        p(f's_mov_b32 s{sONES}, 0x3f803f80')
        p(f's_mov_b32 s{sPURE}, 1')
        p(f'v_lshlrev_b32 v{vL8}, 3, v{vL}')
        p.ext(self.pub_offsets(O_XA, O_STA, O_FXA))
        self.lane_consts()
        p(f'v_mov_b32 v{vCSP+3}, s{sONES}')
        p('s_waitcnt lgkmcnt(0)')
        p(f's_add_u32 s{sF}, s{sF}, 1')
        p(f's_addc_u32 s{sF+1}, s{sF+1}, 0')
        p(f'v_mov_b32 v{vF}, s{sF}')
        p(f'v_mov_b32 v{vF+1}, s{sF+1}')
        p(f's_cmp_ge_u32 s{sM}, 28')
        p(f's_cselect_b32 s{sXF}, {WS_PUR + 0x800}, s{sXF}')
        lp0 = p.newlabel('p0skip')
        p(f's_cbranch_scc1 {lp0}')
        p.mark('maybe_begin')
        self.x_store(XR, vL16, (0, 1024), 'sc1')
        p.mark('maybe_end')
        p.label(lp0)
        self.stamp('x0')
        p('s_waitcnt vmcnt(0)')
        self.stamp('rt1')
        for i in range(4):
            rawq(0, i)
        p.ext(self.flag_sc1(sXF))
        p('s_mov_b64 exec, 0x1ffffff')
        p(f'buffer_load_dword a255, v{vPQ}, {srd(S_WQ)}, 0 offen')
        p('s_mov_b64 exec, -1')
        for i in range(4, 7):
            rawq(0, i)
        xform(0, lambda i: rawq(1, i))
        self.stamp('xf0')
        sJOB = sO + 4
        lA = [p.newlabel('jobA') for _ in range(4)]
        p(f's_mov_b32 s{sJOB}, 0')
        p.mark('maybe_begin')
        p(f's_cmp_eq_u32 s{sW}, 1')
        p(f's_cbranch_scc1 {lA[0]}')
        p(f's_cmp_ge_u32 s{sW}, 2')
        p(f's_cbranch_scc1 {lA[1]}')
        p(f's_cmp_ge_u32 s{sI}, 14')
        p(f's_cbranch_scc1 {lA[3]}')
        p(f'v_mul_u32_u24 v{vD}, 2688, v{t0}')
        p(f'v_add_u32 v{vD}, v{vD}, v{t1}')
        p(f's_mul_i32 s{sT0}, s{sI}, {32*2688}')
        p(f's_mul_i32 s{sT1}, s{sJ}, 56')
        p(f's_add_u32 s{sT0}, s{sT0}, s{sT1}')
        for tau in range(3):
            for hb in range(2):
                p.ext(self.dma(S_WQ, vD, sT0, (448, 896, 0)[tau] * 2 + hb * 16 * 2688, (sSTG, tau * 2048 + hb * 1024), 'raw'))
        p(f's_mul_i32 s{sDST}, s{sJ}, 86016')
        p(f's_lshl_b32 s{sT0}, s{sI}, 11')
        p(f's_add_u32 s{sDST}, s{sDST}, s{sT0}')
        p(f's_add_u32 s{sDST}, s{sDST}, {WQT}')
        p(f's_lshl_b32 s{sFL}, s{sJ}, 4')
        p(f's_add_u32 s{sFL}, s{sFL}, s{sI}')
        p(f's_lshl_b32 s{sFL}, s{sFL}, 3')
        p(f's_add_u32 s{sFL}, s{sFL}, {F_WQ}')
        p(f's_mov_b32 s{sJOB}, 1')
        p(f's_branch {lA[3]}')
        p.label(lA[0])
        p(f's_cmp_ge_u32 s{sI}, 14')
        p(f's_cbranch_scc1 {lA[3]}')
        p(f'v_bfe_u32 v{vD}, v{vL}, 1, 3')
        p(f'v_bfe_u32 v{t2}, v{vL}, 4, 1')
        p(f'v_lshl_add_u32 v{vD}, v{t2}, 4, v{vD}')
        p(f'v_bfe_u32 v{t2}, v{vL}, 5, 1')
        p(f'v_lshl_add_u32 v{vD}, v{t2}, 3, v{vD}')
        p(f'v_mul_u32_u24 v{vD}, 3584, v{vD}')
        p(f'v_and_b32 v{t2}, 1, v{vL}')
        p(f'v_lshl_add_u32 v{vD}, v{t2}, 4, v{vD}')
        p(f's_mul_i32 s{sT0}, s{sI}, {32*3584}')
        p(f's_mul_i32 s{sT1}, s{sJ}, 224')
        p(f's_add_u32 s{sT0}, s{sT0}, s{sT1}')
        for t in range(7):
            p.ext(self.dma(S_W1, vD, sT0, t * 32, (sSTG, t * 1024), 'raw'))
        p(f'v_lshl_add_u32 v{vTR}, v{t0}, 5, v{t3}')
        p(f'v_add_u32 v{vTR}, s{sSTG}, v{vTR}')
        p(f's_mul_i32 s{sDST}, s{sJ}, 100352')
        p(f's_add_u32 s{sDST}, s{sDST}, {W1T}')
        p(f's_mul_i32 s{sDST2}, s{sI}, 3072')
        p(f's_add_u32 s{sDST2}, s{sDST2}, s{sDST}')
        p(f's_add_u32 s{sDST2}, s{sDST2}, 57344')
        p(f's_lshl_b32 s{sT0}, s{sI}, 12')
        p(f's_add_u32 s{sDST}, s{sDST}, s{sT0}')
        p(f's_lshl_b32 s{sFL}, s{sJ}, 4')
        p(f's_add_u32 s{sFL}, s{sFL}, s{sI}')
        p(f's_lshl_b32 s{sFL}, s{sFL}, 3')
        p(f's_add_u32 s{sFL}, s{sFL}, {F_W1}')
        p(f's_mov_b32 s{sJOB}, 2')
        p(f's_branch {lA[3]}')
        p.label(lA[1])
        p(f'v_mul_u32_u24 v{vD}, 896, v{t0}')
        p(f'v_add_u32 v{vD}, v{vD}, v{t1}')
        p(f's_cmp_ge_u32 s{sM}, 28')
        p(f's_cbranch_scc1 {lA[2]}')
        sI2, sSL, sHF = sT2, sT3, sT4
        p(f's_lshl_b32 s{sI2}, s{sTEAM}, 2')
        p(f's_add_u32 s{sI2}, s{sI2}, s{sRB}')
        p(f's_lshr_b32 s{sSL}, s{sI2}, 1')
        p(f's_and_b32 s{sHF}, s{sI2}, 1')
        p(f's_mul_i32 s{sT0}, s{sSL}, {112*896}')
        p(f's_mul_i32 s{sT1}, s{sHF}, {64*896}')
        p(f's_add_u32 s{sT0}, s{sT0}, s{sT1}')
        p(f's_lshl_b32 s{sT1}, s{sCB}, 7')
        p(f's_add_u32 s{sT0}, s{sT0}, s{sT1}')
        p(f's_lshl_b32 s{sT1}, s{sNU}, 6')
        p(f's_add_u32 s{sT0}, s{sT0}, s{sT1}')
        for k in range(4):
            p.ext(self.dma(S_W2, vD, sT0, k * 16 * 896, (sSTG, k * 1024), 'raw'))
        p(f's_mul_i32 s{sDST}, s{sCB}, 229376')
        p(f's_mul_i32 s{sT0}, s{sSL}, 14336')
        p(f's_add_u32 s{sDST}, s{sDST}, s{sT0}')
        p(f's_lshl_b32 s{sT0}, s{sHF}, 13')
        p(f's_add_u32 s{sDST}, s{sDST}, s{sT0}')
        p(f's_lshl_b32 s{sT0}, s{sNU}, 10')
        p(f's_add_u32 s{sDST}, s{sDST}, s{sT0}')
        p(f's_add_u32 s{sDST}, s{sDST}, {W2T}')
        p(f's_lshl_b32 s{sFL}, s{sCB}, 5')
        p(f's_add_u32 s{sFL}, s{sFL}, s{sI2}')
        p(f's_lshl_b32 s{sFL}, s{sFL}, 1')
        p(f's_add_u32 s{sFL}, s{sFL}, s{sNU}')
        p(f's_lshl_b32 s{sFL}, s{sFL}, 3')
        p(f's_add_u32 s{sFL}, s{sFL}, {F_W2}')
        p(f's_add_u32 s{sJOB}, s{sHF}, 3')
        p(f's_branch {lA[3]}')
        p.label(lA[2])
        p(f's_cmp_eq_u32 s{sTEAM}, 7')
        p(f's_cbranch_scc1 {lA[3]}')
        p(f's_mul_i32 s{sT0}, s{sCB}, {112*896}')
        p(f's_lshl_b32 s{sT1}, s{sTEAM}, 7')
        p(f's_add_u32 s{sT0}, s{sT0}, s{sT1}')
        p(f's_lshl_b32 s{sT1}, s{sNU}, 6')
        p(f's_add_u32 s{sT0}, s{sT0}, s{sT1}')
        for k in range(8):
            p.ext(self.dma(S_WO, vD, sT0, k * 16 * 896, (sSTG, k * 1024), 'raw'))
        p(f's_lshl_b32 s{sFL}, s{sTEAM}, 2')
        p(f's_add_u32 s{sFL}, s{sFL}, s{sCB}')
        p(f's_lshl_b32 s{sDST}, s{sFL}, 14')
        p(f's_lshl_b32 s{sT0}, s{sNU}, 10')
        p(f's_add_u32 s{sDST}, s{sDST}, s{sT0}')
        p(f's_add_u32 s{sDST}, s{sDST}, {WOT}')
        p(f's_lshl_b32 s{sFL}, s{sFL}, 1')
        p(f's_add_u32 s{sFL}, s{sFL}, s{sNU}')
        p(f's_lshl_b32 s{sFL}, s{sFL}, 3')
        p(f's_add_u32 s{sFL}, s{sFL}, {F_WO}')
        p(f's_mov_b32 s{sJOB}, 5')
        p.mark('maybe_end')
        p.label(lA[3])
        self.stamp('jA')
        xform(1, lambda i: rawq(2, i))
        self.stamp('xf1')
        self.walker_at = len(p.items)
        p.ext(self.res_unpack(XR))
        xform(2)
        for tau in range(3):
            p(f'v_mov_b32 v{t2}, v{vCSP+tau}')
            p(f'v_permlane32_swap_b32 v{vCSP+tau}, v{t2}')
            p(f'v_add_f32 v{vCSP+tau}, v{vCSP+tau}, v{t2}')
        p(f'v_and_b32 v{t2}, 31, v{vL}')
        p(f'v_lshlrev_b32 v{t2}, 2, v{t2}')
        p(f's_mul_i32 s{sT0}, s{sW}, 384')
        p(f's_add_u32 s{sT0}, s{sT0}, {L_CSP}')
        p(f'v_add_u32 v{t3}, s{sT0}, v{t2}')
        for tau in range(3):
            p(f'ds_write_b32 v{t3}, v{vCSP+tau} offset:{tau*128}')
        p('s_waitcnt vmcnt(0) lgkmcnt(0)')
        p('s_barrier')
        self.stamp('bar')
        p(f'v_add_u32 v{t3}, {L_CSP}, v{t2}')
        for tau in range(3):
            for w in range(4):
                p(f'ds_read_b32 v{108+4*tau+w}, v{t3} offset:{w*384+tau*128}')
        p.mark('maybe_begin')
        lB = {k: p.newlabel('jobB') for k in (2, 3, 4, 5, 'join')}
        for k in (2, 3, 4, 5):
            p(f's_cmp_eq_u32 s{sJOB}, {k}')
            p(f's_cbranch_scc1 {lB[k]}')
        p(f's_cmp_eq_u32 s{sJOB}, 0')
        p(f's_cbranch_scc1 {lB["join"]}')
        for tau in range(3):
            for kp in range(2):
                for jj in range(2):
                    p(f'ds_read_b64_tr_b16 {vr(FR+(tau*2+kp)*4+2*jj,2)}, v{vTR} offset:{tau*2048+(16*kp+8*jj)*64}')
        p.ext(finish(6, [tau * 28672 + kp * 1024 for tau in range(3) for kp in range(2)]))
        p(f's_branch {lB["join"]}')
        p.label(lB[2])
        for t in range(7):
            for jj in range(2):
                p(f'ds_read_b64_tr_b16 {vr(FR+t*4+2*jj,2)}, v{vTR} offset:{t*1024+jj*512}')
        p.ext(finish(4, [t * 1024 for t in range(4)]))
        for t in range(4, 7):
            p(f'buffer_store_dwordx4 {vr(FR+4*t)}, v{vL16}, {srd(S_WS)}, s{sDST2} offen offset:{(t-4)*1024} sc1')
        p(f's_branch {lB["join"]}')
        p.label(lB[3])
        for sg in range(4):
            for jj in range(2):
                p(f'ds_read_b64_tr_b16 {vr(FR+sg*4+2*jj,2)}, v{vTR} offset:{(32*(sg//2)+16*jj+8*(sg%2))*64}')
        p.ext(finish(4, [k * 2048 for k in range(4)]))
        p(f's_branch {lB["join"]}')
        p.label(lB[4])
        for sg in range(2):
            for jj in range(2):
                p(f'ds_read_b64_tr_b16 {vr(FR+sg*4+2*jj,2)}, v{vTR} offset:{(16*jj+8*sg)*64}')
        for jj in range(2):
            p(f'ds_read_b64_tr_b16 {vr(FR+8+2*jj,2)}, v{vTR8} offset:{(32+4*jj)*64}')
        p.ext(finish(3, [k * 2048 for k in range(3)]))
        p(f's_branch {lB["join"]}')
        p.label(lB[5])
        for hd in range(4):
            for kp in range(2):
                for jj in range(2):
                    p(f'ds_read_b64_tr_b16 {vr(FR+(hd*2+kp)*4+2*jj,2)}, v{vTR} offset:{(28*hd+16*kp+8*jj)*64}')
        p('s_waitcnt lgkmcnt(0)')
        p('s_mov_b32 exec_lo, 0')
        for hd in range(4):
            p(f'v_mov_b32 v{FR+(hd*2+1)*4+2}, 0')
            p(f'v_mov_b32 v{FR+(hd*2+1)*4+3}, 0')
        p('s_mov_b64 exec, -1')
        p.ext(finish(8, [k * 2048 for k in range(8)]))
        p.mark('maybe_end')
        p.label(lB['join'])
        p(f's_getreg_b32 s{sT0}, hwreg(HW_REG_XCC_ID)')
        p(f's_and_b32 s{sT0}, s{sT0}, 15')
        p(f's_lshl_b32 s{sT0}, s{sT0}, 28')
        p(f's_xor_b32 s{sT0}, s{sT0}, s{sF+1}')
        p(f'v_mov_b32 v{t2}, s{sF}')
        p(f'v_mov_b32 v{t3}, s{sT0}')
        p(f's_lshl_b32 s{sT1}, s{sTEAM}, 8')
        p(f's_lshl_b32 s{sT2}, s{sM}, 3')
        p(f's_add_u32 s{sT1}, s{sT1}, s{sT2}')
        p(f's_add_u32 s{sT1}, s{sT1}, {WS_PUR}')
        p('s_mov_b64 exec, 1')
        p(f'buffer_store_dwordx2 {vr(t2,2)}, off, {srd(S_WS)}, s{sT1} sc1')
        p('s_mov_b64 exec, -1')
        p(f's_cmp_eq_u32 s{sJOB}, 0')
        p(f's_cselect_b32 s{sJFL}, {WS_PUR + 0x800}, s{sFL}')
        p(f'v_and_b32 v{t2}, 31, v{vL}')
        p(f'v_lshlrev_b32 v{t2}, 2, v{t2}')
        p(f'v_add_u32 v{t3}, {L_CSQ}, v{t2}')
        for tau in range(3):
            r = 108 + 4 * tau
            p(f'v_add_f32 v{r}, v{r}, v{r+1}')
            p(f'v_add_f32 v{r+2}, v{r+2}, v{r+3}')
            p(f'v_add_f32 v{r}, v{r}, v{r+2}')
            p(f'ds_write_b32 v{t3}, v{r} offset:{tau*128}')
        p('s_waitcnt lgkmcnt(0)')
        self.stamp('pro')

    def p1(self):
        p = self.p
        X, ACC, RING, CS = 32, 144, 192, 224
        accK, accV, accQ = ACC, ACC + 16, ACC + 32
        PK, PV = vT, vT + 8
        sXO, sST, sFX, sKV, sKF = sO, sO + 7, sO + 8, sO + 9, sO + 10
        p.ext(self.xoff(sXO, sTP, 28672, O_XA))
        for g in range(1, 7):
            p(f's_add_u32 s{sXO+g}, s{sXO}, {4096*g}')
        p.ext(self.off(sST, sTP, 3584, O_STA))
        p.ext(self.off(sFX, sTP, 128, O_FXA))
        p(f's_lshl_b32 s{sT0}, s{sJ}, 3')
        p(f's_add_u32 s{sT0}, s{sT0}, s{sTP}')
        p.ext(self.off(sKV, sT0, 4096, O_KV))
        p.ext(self.off(sKF, sT0, 128, O_FKV))
        p(f'v_lshrrev_b32 v{vCSA}, 5, v{vL}')
        p(f'v_lshlrev_b32 v{vCSA}, 4, v{vCSA}')
        p(f'v_add_u32 v{vCSA}, {L_CSQ}, v{vCSA}')

        def frag(f):
            if f < 56:
                base, off = vL16, (f % 2) * 28672 + (f // 2) * 1024
            else:
                base, off = vA1, (f - 56) * 1024
            return f'ds_read_b128 {vr(RING + 4*(f % 8))}, v{base} offset:{off}'

        def mf(f):
            acc, s = ((accK, accV)[f % 2], f // 2) if f < 56 else (accQ, f - 56)
            return f'{MF32} {vr(acc,16)}, {vr(RING+4*(f%8))}, {vr(X+4*s)}, {vr(acc,16) if s else 0}'

        def xl(s):
            return f'buffer_load_dwordx4 {vr(X+4*s)}, v{vL16}, {srd(S_WS)}, s{sXO + s//4} offen offset:{(s%4)*1024} sc1'
        self.stamp('p5')
        self.pad()
        self.vpoll(vL8, sFX, 14)
        self.stamp('E')
        XP = 8
        for s in range(XP):
            p(xl(s))

        self.if_layer0(lambda: p.ext(self.flag_sc1(sJFL)))
        PD = 6
        for f in range(PD):
            p(frag(f))
        mem, pre = {}, {}
        for f in range(84):
            mem[f] = []
            if f + PD < 84:
                mem[f].append(frag(f + PD))
            if f < 56 and f % 2 == 0 and f // 2 + XP < 28:
                mem[f].append(xl(f // 2 + XP))
            if 33 <= f < 47 and f % 2 == 1:
                mem[f].append(self.stats_loads(sST, CS)[(f - 33) // 2])
            if f % 2 == 0:
                pre[f] = [Touch(vr(RING + 4 * (f % 8)) + ' ' + vr(RING + 4 * ((f + 1) % 8)) + (' ' + vr(X + 4 * (f // 2)) if f < 56 else ''))]

        def cs_reads(tau, dst):
            return [f'ds_read_b128 {vr(dst+4*q)}, v{vCSA} offset:{tau*128 + 32*q}' for q in range(4)]
        p.ext(sched([mf(f) for f in range(56)], pre, mem, cs_reads(1, accQ) + cs_reads(0, PK), 5, start=40))
        p.ext(self.stats_reduce(CS))
        self.stamp('kv')

        def epi(acc, cs, P):
            L = []
            for r in range(0, 16, 2):
                L.append(f'v_pk_fma_f32 {vr(acc+r,2)}, {vr(cs+r,2)}, {vr(vMEAN,2)}, {vr(acc+r,2)} op_sel:[0,0,0] op_sel_hi:[1,0,1]')
            for r in range(0, 16, 2):
                L.append(f'v_pk_mul_f32 {vr(acc+r,2)}, {vr(acc+r,2)}, {vr(vMEAN,2)} op_sel:[0,1] op_sel_hi:[1,1]')
                L.append(f'v_cvt_pk_bf16_f32 v{P+r//2}, v{acc+r}, v{acc+r+1}')
            return L

        def pad(P, c6, c7):
            return ['s_mov_b32 exec_lo, 0', f'v_mov_b32 v{P+6}, {c6:#x}', f'v_mov_b32 v{P+7}, {c7:#x}', 's_mov_b64 exec, -1']

        def st(P, o):
            return [Ins(f'buffer_store_dwordx4 {vr(P+4*k)}, v{vL16}, {srd(S_WS)}, s{sKV} offen offset:{o+1024*k} sc1', 'kvst') for k in range(2)]
        t0, t1 = CS, CS + 1
        p.ext(epi(accK, PK, PK) + pad(PK, 0x3f803f80, 0x3f80) + st(PK, 0))
        p.ext(epi(accV, accQ, PV) + pad(PV, 0x3f80, 0) + st(PV, 2048))
        self.stamp('kvs')
        side = [f's_lshl_b32 s{sT0}, s{sW}, 12', f's_add_u32 s{sT0}, s{sT0}, {LKV + 8*4096}',
                f'v_add_u32 v{t0}, s{sT0}, v{vL16}',
                f'ds_write_b128 v{t0}, {vr(PK)}', f'ds_write_b128 v{t0}, {vr(PK+4)} offset:1024',
                f'v_and_b32 v{t1}, 31, v{vL}', f'v_lshlrev_b32 v{t1}, 6, v{t1}', f'v_lshrrev_b32 v{t0}, 5, v{vL}',
                f'v_lshl_add_u32 v{t1}, v{t0}, 4, v{t1}', f'v_add_u32 v{t0}, s{sT0}, v{t1}',
                f'ds_write_b128 v{t0}, {vr(PV)} offset:2048', f'ds_write_b128 v{t0}, {vr(PV+4)} offset:{2048+32}',
                f'v_mul_f32 v{vRSTD}, {f32bits(28 ** -0.5 * math.log2(math.e)):#x}, v{vRSTD}'] + cs_reads(2, CS)
        pre2 = {f - 56: v for f, v in pre.items() if f >= 56}
        mem2 = {f - 56: v for f, v in mem.items() if f >= 56}
        p.ext(sched([mf(f) for f in range(56, 84)], pre2, mem2, side, 4, start=0))
        p.wait('kvst')
        p.ext(self.flag_sc1(sKF))
        self.stamp('q')
        QF = 200
        p.ext(epi(accQ, CS, QF))
        p.ext(pad(QF, 0, 0x3f800000))
        self.pad()
        p('s_barrier')
        self.stamp('p1')

    def attn(self):
        p = self.p
        KF, ST, MW, MD, OA, QF, PB, VF = 32, 104, 152, 168, 184, 200, 208, 224
        t0, t1 = 104, 105

        def first():
            p(f's_lshl_b32 s{sT0}, s{sJ}, 7')
            p(f's_add_u32 s{sT1}, s{sT0}, {F_WQ - 14*8}')
            p(f's_add_u32 s{sT0}, s{sT0}, {F_W1}')
            p(f's_lshl_b32 s{sT2}, s{sCB}, 6')
            p(f's_add_u32 s{sT2}, s{sT2}, {F_WO - 28*8}')
            p(f'v_mov_b32 v{t0}, s{sT0}')
            for lim, r in ((14, sT1), (28, sT2)):
                p(f'v_mov_b32 v{t1}, s{r}')
                p(f'v_cmp_le_u32 vcc, {lim}, v{vL}')
                p(f'v_cndmask_b32 v{t0}, v{t0}, v{t1}, vcc')
            p(f'v_min_u32 v{t1}, {35*8}, v{vL8}')
            p(f'v_add_u32 v{t0}, v{t0}, v{t1}')
            p(f'v_and_b32 v{t1}, {31*8}, v{vL8}')
            p(f's_lshl_b32 s{sT1}, s{sCB}, 9')
            p(f's_add_u32 s{sT1}, s{sT1}, {F_W2}')
            p(f's_lshl_b32 s{sT3}, s{sTEAM}, 8')
            p(f's_add_u32 s{sT3}, s{sT3}, {WS_PUR}')
            lp, lo = p.newlabel('pur'), p.newlabel('purout')
            p(f's_mov_b32 s{sCNT}, 0')
            p.label(lp)
            p(f'buffer_load_dwordx2 {vr(106,2)}, v{t0}, {srd(S_WS)}, 0 offen sc1')
            p(f'buffer_load_dwordx2 {vr(108,2)}, v{vL8}, {srd(S_WS)}, s{sT1} offen sc1')
            p(f'buffer_load_dwordx2 {vr(110,2)}, v{t1}, {srd(S_WS)}, s{sT3} offen sc1')
            p(f's_add_u32 s{sCNT}, s{sCNT}, 1')
            p(f's_cmp_gt_u32 s{sCNT}, {POLL_MAX}')
            p(f's_cbranch_scc1 {lo}')
            p('s_waitcnt vmcnt(0)')
            p(f'v_cmp_ne_u64 s[{sPOLL}:{sPOLL+1}], s[{sF}:{sF+1}], {vr(106,2)}')
            p(f'v_cmp_ne_u64 s[{sPOLL+2}:{sPOLL+3}], s[{sF}:{sF+1}], {vr(108,2)}')
            p(f'v_xor_b32 v111, s{sF+1}, v111')
            p(f'v_xor_b32 v110, s{sF}, v110')
            p(f'v_and_b32 v108, 0x0fffffff, v111')
            p(f'v_or_b32 v110, v110, v108')
            p(f'v_cmp_ne_u32 vcc, 0, v110')
            p(f's_or_b64 s[{sPOLL}:{sPOLL+1}], s[{sPOLL}:{sPOLL+1}], s[{sPOLL+2}:{sPOLL+3}]')
            p(f's_or_b64 vcc, vcc, s[{sPOLL}:{sPOLL+1}]')
            p(f's_cbranch_scc1 {lp}')
            p(f'v_readfirstlane_b32 s{sT1}, v111')
            p(f'v_cmp_ne_u32 vcc, s{sT1}, v111')
            p(f's_cmp_eq_u64 vcc, 0')
            p(f's_cselect_b32 s{sPURE}, {0 if os.environ.get("FORCE_IMPURE") else 1}, 0')
            p.label(lo)
            p('s_waitcnt vmcnt(0)')
        self.if_layer0(first)
        NK = 2
        sKD, sKL, sKFl, sNULL = sO + 8, sO + 11, sPOLL + 6, sT4
        sKFl = [sO + 14, sO + 15, sT3]
        p(f's_mov_b32 s{sNULL}, 0')
        for k in range(NK):
            p(f's_lshl_b32 s{sT0}, s{sW}, 1')
            p(f's_add_u32 s{sT0}, s{sT0}, {k}')
            p(f's_lshl_b32 s{sKL+k}, s{sT0}, 12')
            p(f's_add_u32 s{sKL+k}, s{sKL+k}, {LKV}')
            p(f's_lshl_b32 s{sT1}, s{sA}, 2')
            p(f's_add_u32 s{sT0}, s{sT0}, s{sT1}')
            p(f's_cmp_lt_u32 s{sT0}, 8')
            p(f's_cselect_b32 s{sT1}, {STRIDE}, 0')
            p(f's_sub_u32 s{sT1}, s{sLB}, s{sT1}')
            p(f's_and_b32 s{sT0}, s{sT0}, 7')
            p(f's_cmp_lt_i32 s{sT1}, {TEAM0}')
            p(f's_cselect_b32 s{sT2}, {1 << k}, 0')
            p(f's_cselect_b32 s{sT1}, s{sLB}, s{sT1}')
            p(f's_cselect_b32 s{sT0}, s{sTP}, s{sT0}')
            p(f's_or_b32 s{sNULL}, s{sNULL}, s{sT2}')
            p(f's_lshl_b32 s{sT2}, s{sJ}, 3')
            p(f's_add_u32 s{sT0}, s{sT0}, s{sT2}')
            p(f's_lshl_b32 s{sKD+k}, s{sT0}, 12')
            p(f's_add_u32 s{sKD+k}, s{sKD+k}, s{sT1}')
            p(f's_lshl_b32 s{sT0}, s{sT0}, 7')
            p(f's_add_u32 s{sT0}, s{sT0}, s{sT1}')
            p(f's_add_u32 s{sKFl[k]}, s{sT0}, {O_FKV}')
        p(f'v_bfe_u32 v{t0}, v{vL}, 1, 1')
        p(f'v_lshlrev_b32 v{t0}, 10, v{t0}')
        p(f'v_and_b32 v{t1}, 1, v{vL}')
        p(f'v_lshl_add_u32 v{t0}, v{t1}, 9, v{t0}')
        p(f'v_lshrrev_b32 v{t1}, 2, v{vL}')
        p(f'v_lshl_add_u32 v{t0}, v{t1}, 4, v{t0}')
        lp, lo = p.newlabel('kvpoll'), p.newlabel('kvpollout')
        self.stamp('w1')
        p('s_waitcnt lgkmcnt(0)')
        p(f's_mov_b32 s{sCNT}, 0')
        p.label(lp)
        for k in range(NK):
            p(f's_load_dwordx2 s[{sPOLL+2*k}:{sPOLL+2*k+1}], s[{S_WSP}:{S_WSP+1}], s{sKFl[k]} glc')
        p(f's_add_u32 s{sCNT}, s{sCNT}, 1')
        p(f's_cmp_gt_u32 s{sCNT}, {POLL_MAX}')
        p(f's_cbranch_scc1 {lo}')
        p('s_waitcnt lgkmcnt(0)')
        for k in range(NK):
            p(f's_cmp_eq_u64 s[{sPOLL+2*k}:{sPOLL+2*k+1}], s[{sF}:{sF+1}]')
            p(f's_cbranch_scc0 {lp}')
        p.label(lo)
        self.stamp('kvf')
        for k in range(NK):
            lnull, lb = p.newlabel('null'), p.newlabel('nullback')
            p(f's_bitcmp1_b32 s{sNULL}, {k}')
            p(f's_cbranch_scc1 {lnull}')
            p(f's_mov_b32 m0, s{sKL+k}')
            p(f's_sub_u32 s{sT5}, s{sKD+k}, 768')
            p(f'buffer_load_dwordx4 v{vL16}, {srd(S_WS)}, s{sKD+k} offen sc1 lds')
            p(f'buffer_load_dwordx4 v{vL16}, {srd(S_WS)}, s{sKD+k} offen offset:1024 sc1 lds')
            p(f'buffer_load_dwordx4 v{t0}, {srd(S_WS)}, s{sKD+k} offen offset:2048 sc1 lds')
            p(f'buffer_load_dwordx4 v{t0}, {srd(S_WS)}, s{sT5} offen offset:3072 sc1 lds')
            p.label(lb)
            self.tail.append((lnull, [
                f'v_add_u32 v{t1}, s{sKL+k}, v{vL16}',
                'v_mov_b32 v108, 0', 'v_mov_b32 v109, 0', 'v_mov_b32 v110, 0', 'v_mov_b32 v111, 0'] +
                [f'ds_write_b128 v{t1}, v[108:111] offset:{o}' for o in (0, 2048, 3072)] +
                ['s_mov_b32 exec_lo, 0', 'v_mov_b32 v111, 0xf1490000', 's_mov_b64 exec, -1',
                 f'ds_write_b128 v{t1}, v[108:111] offset:1024', f's_branch {lb}']))
        t2, t3 = 106, 107
        p(f'v_and_b32 v{t2}, 31, v{vL}')
        p(f'v_lshrrev_b32 v{t3}, 5, v{vL}')
        p(f'v_lshlrev_b32 v{t3}, 2, v{t3}')
        p(f'v_sub_u32 v{t2}, v{t2}, v{t3}')
        p(f'v_mov_b32 v{t3}, {f32bits(-1e30):#x}')
        for r in range(0, 16, 2):
            k0, k1 = 8 * (r // 4) + r % 4, 8 * (r // 4) + r % 4 + 1
            p(f'v_cmp_le_i32 vcc, {k0}, v{t2}')
            p(f'v_cmp_le_i32 s[{sPOLL}:{sPOLL+1}], {k1}, v{t2}')
            p('s_nop 0')
            p(f'v_cndmask_b32_e64 v{MD+r}, v{t3}, 0, vcc')
            p(f'v_cndmask_b32_e64 v{MD+r+1}, v{t3}, 0, s[{sPOLL}:{sPOLL+1}]')
            p(f'v_cndmask_b32_e64 v{MW+r}, 0, v{t3}, vcc')
            p(f'v_cndmask_b32_e64 v{MW+r+1}, 0, v{t3}, s[{sPOLL}:{sPOLL+1}]')
        vKA, vVA = vT, vT + 1
        p(f's_lshl_b32 s{sT0}, s{sW}, 12')
        p(f's_add_u32 s{sT0}, s{sT0}, {LKV}')
        p(f'v_add_u32 v{vKA}, s{sT0}, v{vL16}')
        p(f'v_lshrrev_b32 v{t2}, 5, v{vL}')
        p(f'v_bfe_u32 v{t3}, v{vL}, 2, 2')
        p(f'v_lshl_add_u32 v{t2}, v{t2}, 2, v{t3}')
        p(f'v_lshlrev_b32 v{vVA}, 6, v{t2}')
        p(f'v_bfe_u32 v{t2}, v{vL}, 4, 1')
        p(f'v_lshl_add_u32 v{vVA}, v{t2}, 5, v{vVA}')
        p(f'v_and_b32 v{t2}, 1, v{vL}')
        p(f'v_lshl_add_u32 v{vVA}, v{t2}, 4, v{vVA}')
        p(f'v_bfe_u32 v{t2}, v{vL}, 1, 1')
        p(f'v_lshl_add_u32 v{vVA}, v{t2}, 3, v{vVA}')
        p(f'v_add_u32 v{vVA}, s{sT0}, v{vVA}')
        sOD, sOF, sWO = sO, sO + 1, sO + 2
        p(f's_lshl_b32 s{sT0}, s{sTP}, 4')
        p(f's_add_u32 s{sT0}, s{sT0}, s{sJ}')
        p.ext(self.roff(sOD, sT0, 2048, O_O))
        p.ext(self.off(sOF, sT0, 8, O_FO))
        p(f's_lshl_b32 s{sWO}, s{sCB}, 2')
        p(f's_add_u32 s{sWO}, s{sWO}, s{sW}')
        p(f's_lshl_b32 s{sWO}, s{sWO}, 14')
        p(f's_add_u32 s{sWO}, s{sWO}, {WOT}')
        for g in range(1, 4):
            p(f's_add_u32 s{sWO+g}, s{sWO}, {4096*g}')
        vPT = vT + 12
        p(f'v_lshlrev_b32 v{vPT}, 7, v{vL}')
        p(f'v_add_u32 v{vPT}, s{sOD}, v{vPT}')
        p(f's_lshl_b32 s{sT0}, s{sTP}, 7')
        p(f's_lshl_b32 s{sT1}, s{sRB}, 8')
        p(f's_lshl_b32 s{sT2}, s{sRHO}, 7')
        p(f's_add_u32 s{sT2}, s{sT2}, s{sT1}')
        p(f's_mul_i32 s{sT3}, s{sT2}, 28')
        p(f's_lshl_b32 s{sT4}, s{sCB}, 9')
        p(f's_add_u32 s{sT3}, s{sT3}, s{sT4}')
        p(f's_lshl_b32 s{sT4}, s{sNU}, 8')
        p(f's_add_u32 s{sT3}, s{sT3}, s{sT4}')
        for lane, (r, c) in enumerate([(sT0, O_FO), (sT1, O_FO), (sT1, O_FO + 128), (sT0, O_FX1), (sT2, O_FX1),
                                       (sT3, O_ST1), (sT3, O_ST1 + 128), (sT0, O_FH), (sT1, O_FH), (sT1, O_FH + 128),
                                       (sT3, LSTRIDE + O_STA), (sT3, LSTRIDE + O_STA + 128), (sT2, LSTRIDE + O_FXA),
                                       (sT0, LSTRIDE + O_FXA)]):
            p(f's_add_u32 s{sT4}, s{r}, {c}')
            p(f's_add_u32 s{sT4}, s{sT4}, s{sLB}')
            p(f'v_writelane_b32 v{vPT}, s{sT4}, {16 + lane}')
        p(f'v_cmp_lt_u32 vcc, 29, v{vL}')
        p(f'v_mov_b32 v{t2}, s{sT4}')
        p(f'v_cndmask_b32 v{vPT}, v{vPT}, v{t2}, vcc')
        vZ = vT + 8
        p(f's_lshl_b32 s{sT0}, s{sNU}, 10')
        p(f'v_xor_b32 v{vZ}, s{sT0}, v{vL16}')
        p(f'v_xor_b32 v{vZ+1}, 1024, v{vZ}')
        self.pad()
        p('s_waitcnt vmcnt(0) lgkmcnt(0)')
        self.stamp('kvd')
        p('s_barrier')
        self.stamp('A')
        p(f'v_lshlrev_b32 v{t0}, 7, v{vL}')
        p(f's_lshl_b32 s{sT0}, s{sCB}, 2')
        p(f's_add_u32 s{sT0}, s{sT0}, s{sRB}')
        p(f's_lshl_b32 s{sT1}, s{sT0}, 14')
        p(f's_lshl_b32 s{sT2}, s{sW}, 12')
        p(f's_add_u32 s{sT1}, s{sT1}, s{sT2}')
        p(f's_add_u32 s{sT1}, s{sT1}, {WOT}')
        p('s_mov_b32 exec_hi, 0')
        p(f'buffer_load_dword a255, v{t0}, {srd(S_WS)}, s{sT1} offen sc1')
        p('s_mov_b64 exec, -1')
        p(f'buffer_load_dword a255, v{vPT}, {srd(S_WS)}, 0 offen sc1')
        bg = self.w1_dma(0)

        def kread(t):
            return [f'ds_read_b128 {vr(KF+8*t+4*k)}, v{vKA} offset:{t*4096+k*1024}' for k in range(2)]

        def qk(t):
            s = ST + 16 * (t % 3)
            c = vr(MW, 16) if t == 0 else vr(MD, 16) if t == 8 else '0'
            return [f'{MF32} {vr(s,16)}, {vr(KF+8*t)}, {vr(QF)}, {c}',
                    f'{MF32} {vr(s,16)}, {vr(KF+8*t+4)}, {vr(QF+4)}, {vr(s,16)}']
        vM, vM2 = vT + 2, vT + 3

        def mx(t):
            s = ST + 16 * (t % 3)
            L = []
            for i in range(8):
                d = vM if i % 2 == 0 else vM2
                if t == 0 and i < 2:
                    L.append(f'v_max_f32 v{d}, v{s+2*i}, v{s+2*i+1}')
                else:
                    L.append(f'v_max3_f32 v{d}, v{s+2*i}, v{s+2*i+1}, v{d}')
            return L

        def vread(t):
            d = VF + 8 * (t % 2)
            return [f'ds_read_b64_tr_b16 {vr(d+4*kv+2*jj,2)}, v{vVA} offset:{t*4096+2048+(16*kv+8*jj)*64}'
                    for kv in range(2) for jj in range(2)]
        def popbg():
            L = []
            while bg:
                x = bg.pop(0)
                L.append(x)
                if is_mem(x):
                    break
            return L
        for t in range(4):
            p.ext(kread(t))
        q = qk(0)
        p.ext([q[0]] + kread(4) + [q[1]] + kread(5))
        q = qk(1)
        p.ext([q[0]] + kread(6) + [q[1]] + kread(7))
        for t in range(9):
            m = mx(t)
            if t + 2 < 9:
                q = qk(t + 2)
                extra = kread(8) if t == 0 else vread(0)[:2] if t == 5 else vread(0)[2:] if t == 6 else []
                if t % 2 == 1:
                    extra = extra + popbg()
                p.ext([q[0]] + extra + m[:4] + [q[1]] + m[4:])
            else:
                p.ext(m)
        self.stamp('a1')
        a, b2, r1 = vT + 4, vT + 5, vT + 6
        p(f'v_max_f32 v{vM}, v{vM}, v{vM2}')
        p(f'v_mov_b32 v{a}, v{vM}')
        p(f'v_permlane32_swap_b32 v{vM}, v{a}')
        p(f'v_max_f32 v{vM}, v{vM}, v{a}')
        p(f'v_xor_b32 v{vM}, 0x80000000, v{vM}')
        p(f'v_and_b32 v{a}, 0xffff0000, v{vM}')
        p(f'v_sub_f32 v{r1}, v{vM}, v{a}')
        p(f'v_and_b32 v{a}, 0xffff0000, v{r1}')
        p(f'v_sub_f32 v{b2}, v{r1}, v{a}')
        p('s_mov_b32 exec_lo, 0')
        p(f'v_perm_b32 v{QF+6}, v{r1}, v{vM}, s{sPERM}')
        p(f'v_perm_b32 v{QF+7}, 1.0, v{b2}, s{sPERM}')
        p('s_mov_b64 exec, -1')

        def ex(t):
            s = ST + 16 * (t % 3)
            pb = PB + 8 * (t % 2)
            L = []
            for i in range(8):
                L.append(f'v_exp_f32 v{s+2*i}, v{s+2*i}')
                L.append(f'v_exp_f32 v{s+2*i+1}, v{s+2*i+1}')
                if i:
                    L.append(f'v_cvt_pk_bf16_f32 v{pb+i-1}, v{s+2*i-2}, v{s+2*i-1}')
            L.append(f'v_cvt_pk_bf16_f32 v{pb+7}, v{s+14}, v{s+15}')
            return L

        def pv(t):
            d = VF + 8 * (t % 2)
            pb = PB + 8 * (t % 2)
            return [f'{MF32} {vr(OA,16)}, {vr(d)}, {vr(pb)}, {vr(OA,16) if t else 0}',
                    f'{MF32} {vr(OA,16)}, {vr(d+4)}, {vr(pb+4)}, {vr(OA,16)}']

        self.pad()

        def wol(i):
            ks, z = i // 2, i % 2
            return f'buffer_load_dwordx4 {vr(32+4*i)}, v{vZ+z}, {srd(S_WS)}, s{sWO + ks//2} offen offset:{(ks%2)*2048} sc1'
        p.ext(qk(0))
        p.ext(qk(1))
        for t in range(9):
            e = ex(t)
            mf = (pv(t - 1) if t else []) + (qk(t + 2) if t + 2 < 9 else [])
            out = []
            pos = [2, 7, 12, 17]
            for i, x in enumerate(e):
                out.append(x)
                if i in pos and pos.index(i) < len(mf):
                    k = pos.index(i)
                    out.append(mf[k])
                    if t + 1 < 9:
                        if t == 0:
                            out += vread(1)[2 * k:2 * k + 2]
                        elif k in (1, 2):
                            out += vread(t + 1)[2 * (k - 1):2 * (k - 1) + 2]
                        elif t == 7 and k == 1:
                            pass
                    if t < 6 and k in (0, 3) or t == 0:
                        out += popbg()
                    if t >= 7:
                        out += [wol(8 * (t - 7) + 4 * k + q) for q in range(4)]
            if t == 7:
                out = out[:-3] + vread(8)[2:] + out[-3:]
            p.ext(out)
        assert not bg
        p.ext(pv(8))
        self.stamp('a2')
        p(f'v_mov_b32 v{a}, v{OA+12}')
        p(f'v_mov_b32 v{b2}, v{OA+12}')
        p(f'v_permlane32_swap_b32 v{a}, v{b2}')
        p(f'v_rcp_f32 v{b2}, v{b2}')
        for i in range(8):
            p(f'v_pk_mul_f32 {vr(OA+2*i,2)}, {vr(OA+2*i,2)}, {vr(a,2)} op_sel:[0,1] op_sel_hi:[1,1]')
            p(f'v_cvt_pk_bf16_f32 v{PB+i}, v{OA+2*i}, v{OA+2*i+1}')
            if i % 4 == 3:
                p(f'buffer_store_dwordx4 {vr(PB+i-3)}, v{vL16}, {srd(S_WS)}, s{sOD} offen offset:{(i//4)*1024}', tok='ost')
        self.publish(['ost'], sOF)
        self.stamp('att')

    def reduce_writes(self, ACC):
        return [Ins(f'ds_write_b128 v{vRW+x-1}, {vr(ACC+16*x+4*c)} offset:{c*1024}', 'rw') for x in range(1, 4) for c in range(4)]

    def reduce_finish(self, ACC, TMP):
        p = self.p
        p.wait('rw')
        self.pad()
        p('s_barrier')
        for c in range(4):
            for x in range(3):
                p(f'ds_read_b128 {vr(TMP+16*x+4*c)}, v{vRW+3} offset:{x*4096+c*1024}')
        for c in range(8):
            p(f'v_pk_add_f32 {vr(TMP+2*c,2)}, {vr(TMP+2*c,2)}, {vr(TMP+16+2*c,2)}')
            p(f'v_pk_add_f32 {vr(ACC+2*c,2)}, {vr(ACC+2*c,2)}, {vr(TMP+32+2*c,2)}')
            p(f'v_pk_add_f32 {vr(ACC+2*c,2)}, {vr(ACC+2*c,2)}, {vr(TMP+2*c,2)}')

    def yoffs(self, dst, mul, add):
        L = []
        for y in range(2):
            L += [f's_xor_b32 s{sT0}, s{sRHO}, {y}', f's_lshl_b32 s{sT1}, s{sRB}, 1', f's_add_u32 s{sT0}, s{sT0}, s{sT1}',
                  f's_lshl_b32 s{sT0}, s{sT0}, 2', f's_add_u32 s{sT0}, s{sT0}, s{sW}'] + self.roff(dst + y, sT0, mul, add)
        return L

    def p3(self):
        p = self.p
        WO, OF, ACC, RING = 32, 96, 160, 200

        def colsum(part):
            for i in range(4):
                p(f'v_mov_b32 v{vT+4+i}, s{sONES}')
            p(f's_lshl_b32 s{sT0}, s{sW}, 10')
            if part == 0:
                p(f'v_add_u32 v{vT}, s{sT0}, v{vL16}')
            else:
                p(f's_min_u32 s{sT0}, s{sT0}, 2048')
                p(f'v_add_u32 v{vT}, s{sT0}, v{vA1}')
            rd = lambda f: f'ds_read_b128 {vr(RING+4*(f%6))}, v{vT} offset:{f*(4096, 3072)[part]}'
            for f in range(5):
                p(rd(f))
            for f in range(14):
                p(f'{MF16} {vr(ACC)}, {vr(vT+4)}, {vr(RING+4*(f%6))}, {vr(ACC) if f else 0}')
                if f + 5 < 14:
                    p(rd(f + 5))
            p(f's_lshl_b32 s{sT0}, s{sW}, 6')
            p(f's_add_u32 s{sT0}, s{sT0}, {L_CS1 + 256*part}')
            p(f'v_and_b32 v{vT}, 15, v{vL}')
            p(f'v_lshlrev_b32 v{vT}, 2, v{vT}')
            p(f'v_add_u32 v{vT}, s{sT0}, v{vT}')
            p(f'ds_write_b32 v{vT}, v{ACC}')
            p('s_waitcnt lgkmcnt(0)')
        w1d = self.w1_dma(1)
        self.pad()
        p('s_barrier')
        self.if_layer0(lambda: colsum(0))
        ljoin, lidle = p.newlabel('p3join'), p.newlabel('p3idle')
        p(f's_cmp_ge_u32 s{sM}, 28')
        p(f's_cbranch_scc1 {lidle}')
        p.mark('maybe_begin')
        sFO, sY = sO, sO + 2
        p(f's_lshl_b32 s{sT0}, s{sRB}, 3')
        p(f's_add_u32 s{sT0}, s{sT0}, s{sW}')
        p.ext(self.off(sFO, sT0, 32, O_FO))
        p.ext(self.yoffs(sY, 8192, O_O))
        p(f's_add_u32 s{sY+2}, s{sY}, 4096')
        p(f's_add_u32 s{sY+3}, s{sY+1}, 4096')
        p.ext(self.pub_offsets(O_X1, O_ST1, O_FX1))
        self.vpoll(vFLG, sFO, 8)
        self.stamp('B')

        def ld(ks, y):
            return f'buffer_load_dwordx4 {vr(OF+(ks*2+y)*4)}, v{vL16}, {srd(S_WS)}, s{sY + 2*(ks//4) + y} offen offset:{(ks%4)*1024} sc1'

        def mf(ks, x):
            y, z = x >> 1, x & 1
            c = vr(ACC + 16 * x, 16) if ks else (vr(vRES, 16) if x == 0 else '0')
            return f'{MF32} {vr(ACC+16*x,16)}, {vr(WO+(ks*2+z)*4)}, {vr(OF+(ks*2+y)*4)}, {c}'
        for ks in range(5):
            for y in range(2):
                p(ld(ks, y))
        rest = list(w1d)
        for ks in range(8):
            for x in (1, 2, 3):
                p(mf(ks, x))
                if ks + 5 < 8 and x < 3:
                    p(ld(ks + 5, x - 1))
                elif ks >= 3 and rest:
                    y = rest.pop(0)
                    p.ext([y])
                    while rest and not is_mem(y):
                        y = rest.pop(0)
                        p.ext([y])
        assert not rest
        self.stamp('p3mm')
        p.ext(sched([mf(ks, 0) for ks in range(8)], {}, {}, self.reduce_writes(ACC), 2, start=2))
        self.stamp('p3rw')
        self.reduce_finish(ACC, 32)
        self.stamp('p3rd')
        P = 96
        for i in range(8):
            p(f'v_cvt_pk_bf16_f32 v{P+i}, v{ACC+2*i}, v{ACC+2*i+1}')
        self.x_store(P, vX1A, (0, 512))
        self.publish(['xst'], sXF)
        self.stamp('p3pub')
        p.ext(self.res_unpack(P))
        p.mark('maybe_end')
        p.label(ljoin)
        lq = p.newlabel('p3noq')
        vq = [f's_cmp_lg_u32 s{sLAYER}, 0', f's_cbranch_scc1 {ljoin}',
              f's_lshl_b32 s{sT0}, s{sCB}, 2', f's_add_u32 s{sT0}, s{sT0}, s{sW}',
              f's_lshl_b32 s{sT1}, s{sT0}, 7', f's_add_u32 s{sT1}, s{sT1}, {F_WQ}']
        self.idle3 = (lidle, w1d + vq, sT1, ljoin)
        self.pad()
        p('s_waitcnt vmcnt(0)')
        p('s_barrier')
        self.if_layer0(lambda: colsum(1))
        self.stamp('p3')

    def p4(self):
        p = self.p
        X, ACC, RING, CS = 32, 144, 200, 224
        sXO, sST, sFX, sH, sHF = sO, sO + 7, sO + 8, sO + 9, sO + 11
        self.if_layer0(lambda: p.ext(self.w2_loads(0, 12)))
        p.ext(self.xoff(sXO, sTP, 28672, O_X1))
        for g in range(1, 7):
            p(f's_add_u32 s{sXO+g}, s{sXO}, {4096*g}')
        p.ext(self.off(sST, sTP, 3584, O_ST1))
        p.ext(self.off(sFX, sTP, 128, O_FX1))
        p(f's_lshl_b32 s{sT0}, s{sTP}, 4')
        p(f's_add_u32 s{sT0}, s{sT0}, s{sJ}')
        p.ext(self.roff(sH, sT0, 7168, O_H))
        p(f's_add_u32 s{sH+1}, s{sH}, 4096')
        p.ext(self.off(sHF, sT0, 8, O_FH))
        vHA, vHB = vT + 1, vT + 2
        p.ext([f'v_lshrrev_b32 v{vCSA}, 4, v{vL}', f'v_lshlrev_b32 v{vCSA}, 4, v{vCSA}', f'v_add_u32 v{vCSA}, {L_CS1}, v{vCSA}',
               f'v_lshrrev_b32 v{vHA}, 5, v{vL}', f'v_lshlrev_b32 v{vHA}, 10, v{vHA}',
               f'v_bfe_u32 v{vHB}, v{vL}, 4, 1', f'v_lshl_add_u32 v{vHA}, v{vHB}, 9, v{vHA}',
               f'v_and_b32 v{vT+3}, 15, v{vL}', f'v_lshl_add_u32 v{vHA}, v{vT+3}, 4, v{vHA}',
               f'v_lshlrev_b32 v{vHB}, 3, v{vHB}', f'v_lshl_add_u32 v{vHB}, v{vT+3}, 4, v{vHB}',
               f'v_lshrrev_b32 v{vT+3}, 5, v{vL}', f'v_lshl_add_u32 v{vHB}, v{vT+3}, 9, v{vHB}'])
        p(f'v_lshlrev_b32 v{vT}, 7, v{vL}')
        seq = [(t, s) for s in range(14) for t in range(4)] + [(t, s) for s in range(14) for t in range(4, 7)]

        def frag(f):
            base, off = (vL16, f * 1024) if f < 56 else (vA1, (f - 56) * 1024)
            return f'ds_read_b128 {vr(RING + 4*(f % 6))}, v{base} offset:{off}'

        def mf(f, u):
            t, s = seq[f]
            return f'{MF16} {vr(ACC+8*t+4*u)}, {vr(RING+4*(f%6))}, {vr(X+4*(2*s+u))}, {vr(ACC+8*t+4*u) if s else 0}'

        def xl(i):
            return f'buffer_load_dwordx4 {vr(X+4*i)}, v{vL16}, {srd(S_WS)}, s{sXO + i//4} offen offset:{(i%4)*1024} sc1'
        PD = 4
        for f in range(PD):
            p(frag(f))
        self.pad()
        self.vpoll(vL8, sFX, 14)
        self.stamp('C')
        XP = 8
        for i in range(XP):
            p(xl(i))
        mem, pre = {}, {}
        for f in range(98):
            mem[2 * f] = [frag(f + PD)] if f + PD < 98 else []
            if f < 56 and f % 2 == 0 and f // 2 + XP < 28:
                mem[2 * f + 1] = [xl(f // 2 + XP)]
            if 27 <= f < 41 and f % 2 == 1:
                mem[2 * f + 1] = [self.stats_loads(sST, CS)[(f - 27) // 2]]
            if f % 2 == 0:
                tch = vr(RING + 4 * (f % 6)) + ' ' + vr(RING + 4 * ((f + 1) % 6))
                if f < 56 and f % 4 == 0:
                    tch += ' ' + vr(X + 8 * (f // 4), 8)
                pre[2 * f] = [Touch(tch)]
        mem[2 * 41 + 1] = [['s_mov_b32 exec_hi, 0xffffff', f'buffer_load_dword a255, v{vT}, {srd(S_WS)}, s{sH} offen sc1', 's_mov_b64 exec, -1']]
        mfs = [mf(f, u) for f in range(98) for u in range(2)]
        side = self.stats_reduce(CS) + [f'v_mov_b32 v{vRSTD}, v{vMEAN}', 's_nop 0', f'v_permlane16_swap_b32 v{vMEAN}, v{vRSTD}']
        p.ext(sched(mfs[:112], pre, mem, side, 2, start=92))
        self.stamp('p4g1')
        PO = vT + 4

        def epi(tiles, tok):
            L = []
            for t in tiles:
                L.append(f'ds_read_b128 {vr(CS+4*(t%4))}, v{vCSA} offset:{t*64}')
            pairs = [tiles[i:i + 2] for i in range(0, len(tiles), 2)]
            n = 0
            for pr in pairs:
                for u in range(2):
                    po = PO + 4 * (n % 3)
                    n += 1
                    mean = (vMEAN, vRSTD)[u]
                    for k, t in enumerate(pr):
                        a = ACC + 8 * t + 4 * u
                        for r in range(4):
                            L.append(f'v_fma_f32 v{a+r}, v{CS+4*(t%4)+r}, v{mean}, v{a+r}')
                        for r in range(2):
                            L.append(f'v_cvt_pk_bf16_f32 v{po+2*k+r}, v{a+2*r}, v{a+2*r+1}')
                        for r in range(2):
                            L.append(f'v_pk_max_i16 v{po+2*k+r}, v{po+2*k+r}, 0')
                    t = pr[0]
                    so, off = (sH, t * 1024) if t < 4 else (sH + 1, (t - 4) * 1024)
                    if len(pr) == 2:
                        L.append(Ins(f'buffer_store_dwordx4 {vr(po)}, v{vHA}, {srd(S_WS)}, s{so} offen offset:{off+u*256}', tok))
                    else:
                        L.append(Ins(f'buffer_store_dwordx2 {vr(po,2)}, v{vHB}, {srd(S_WS)}, s{so} offen offset:{off+u*256}', tok))
            return L
        pre2 = {i - 112: v for i, v in pre.items() if i >= 112}
        mem2 = {i - 112: v for i, v in mem.items() if i >= 112}
        self.pad()
        p('s_barrier')
        wq = self.wq_dma((0, 1), sXO)
        i = 1
        for x in wq:
            mem2.setdefault(i, []).append(x)
            if is_mem(x):
                i += 4
        p.ext(sched(mfs[112:], pre2, mem2, epi([0, 1, 2, 3], 'hst'), 2, start=0))
        self.stamp('p4g2')
        p.ext(epi([4, 5, 6], 'hst'))
        self.stamp('p4ep')
        self.publish(['hst'], sHF)
        self.pad()
        p('s_barrier')
        self.stamp('p4')

    def p5(self):
        p = self.p
        HR, ACC, CS = 32, 160, 224
        lskip, ljoin, llast = p.newlabel('p5skip'), p.newlabel('p5join'), p.newlabel('p5last')
        p(f's_cmp_ge_u32 s{sM}, 28')
        p(f's_cbranch_scc1 {lskip}')
        sFH, sST, sY = sO, sO + 1, sO + 2
        self.if_layer0(lambda: p.ext(self.w2_loads(12, 28)))
        p(f's_lshl_b32 s{sT0}, s{sRB}, 3')
        p(f's_add_u32 s{sT0}, s{sT0}, s{sW}')
        p.ext(self.off(sFH, sT0, 32, O_FH))
        p.ext(self.yoffs(sY, 28672, O_H))
        for g in range(1, 7):
            for y in range(2):
                p(f's_add_u32 s{sY+2*g+y}, s{sY+y}, {4096*g}')
        p(f's_lshl_b32 s{sT0}, s{sRB}, 1')
        p(f's_add_u32 s{sT0}, s{sT0}, s{sRHO}')
        p.ext(self.off(sST, sT0, 3584, O_ST1))
        p.ext(self.pub_offsets(O_XA + LSTRIDE, O_STA + LSTRIDE, O_FXA + LSTRIDE))
        self.pad()
        self.vpoll(vFLG, sFH, 8)
        self.stamp('D')
        NR = 16

        def ld(ks, y):
            return f'buffer_load_dwordx4 {vr(HR+((ks%NR)*2+y)*4)}, v{vL16}, {srd(S_WS)}, s{sY + 2*(ks//4) + y} offen offset:{(ks%4)*1024} sc1'

        def mf(ks, x):
            y, z = x >> 1, x & 1
            return f'{MF32} {vr(ACC+16*x,16)}, {ar(ks*8+z*4)}, {vr(HR+((ks%NR)*2+y)*4)}, {vr(ACC+16*x,16) if ks else 0}'
        PD = 5
        for ks in range(PD):
            p(ld(ks, 0))
            p(ld(ks, 1))
        TAIL = 14
        mfs, mem = [], {}
        bgl = self.stats_loads(sST, CS)
        for ks in range(28):
            xs = (0, 1, 2, 3) if ks < 28 - TAIL else (1, 2, 3)
            for n, x in enumerate(xs):
                i = len(mfs)
                mfs.append(mf(ks, x))
                if ks + PD < 28:
                    if n < 2:
                        mem[i] = [ld(ks + PD, n)]
                else:
                    mem[i] = []
                    while bgl:
                        y = bgl.pop(0)
                        mem[i].append(y)
                        if is_mem(y):
                            break
        p.ext(sched(mfs, {}, mem, [], 6))
        self.stamp('p5mm')
        sr = self.stats_reduce(CS)
        mem = {}
        for i, x in enumerate(self.reduce_writes(ACC)):
            mem.setdefault(2 + i, []).append(x)
        p.ext(sched([mf(ks, 0) for ks in range(28 - TAIL, 28)], {}, mem, bgl + sr, 5, start=0))
        self.stamp('p5rw')
        self.reduce_finish(ACC, 32)
        self.stamp('p5rd')
        P = 96
        for i in range(8):
            p(f'v_pk_fma_f32 {vr(ACC+2*i,2)}, {vr(ACC+2*i,2)}, {vr(vMEAN,2)}, {vr(vRES+2*i,2)} op_sel:[0,1,0] op_sel_hi:[1,1,1]')
            p(f'v_cvt_pk_bf16_f32 v{P+i}, v{ACC+2*i}, v{ACC+2*i+1}')
        p(f's_cmp_lg_u32 s{sLAYER}, 0')
        p(f's_cbranch_scc1 {llast}')
        self.x_store(P, vL16, (0, 1024))
        p.ext(self.wq_dma((2,)))
        self.publish(['xst'], sXF)
        self.stamp('p5pub')
        p.ext(self.res_unpack(P))
        p.label(ljoin)
        p('s_waitcnt vmcnt(0) lgkmcnt(0)')
        p('s_barrier')
        p(f's_mov_b32 s{sLAYER}, 1')
        p(f's_add_u32 s{sLB}, s{sLB}, {LSTRIDE}')
        p('s_branch L_layer')
        self.tail.append((lskip, [f's_cmp_lg_u32 s{sLAYER}, 0', 's_cbranch_scc1 L_fin'] + self.wq_dma((2,)) + [f's_branch {ljoin}']))
        p.label(llast, reset='all')
        p(f'v_and_b32 v{vT+4}, 31, v{vL}')
        p(f'v_mul_u32_u24 v{vT+4}, 896, v{vT+4}')
        p(f'v_lshrrev_b32 v{vT+5}, 5, v{vL}')
        p(f'v_lshl_add_u32 v{vT+4}, v{vT+5}, 4, v{vT+4}')
        for hf in range(2):
            p(f'v_permlane32_swap_b32 v{P+4*hf}, v{P+4*hf+2}')
            p(f'v_permlane32_swap_b32 v{P+4*hf+1}, v{P+4*hf+3}')
            p(f'buffer_store_dwordx4 {vr(P+4*hf)}, v{vT+4}, {srd(S_OUT)}, s{sQOFF} offen offset:{32*hf}')
        p('s_cmp_lg_u32 s2, %d' % (27 * 8 + 7))
        p('s_cbranch_scc1 L_fin')
        p(f's_mov_b32 s{sT0}, {WS_EPOCH}')
        p.ext(self.flag_sc1(sT0))

    def build(self):
        p = self.p
        self.prologue()
        p.label('L_layer', reset='all')
        for i, ph in enumerate(('p1', 'attn', 'p3', 'p4', 'p5')):
            getattr(self, ph)()
            if self.stop is not None and i + 1 >= self.stop:
                break
        p.label('L_fin')
        self.stamp('end')
        self.stamp_dump()
        p.label('L_end')
        p('s_endpgm')
        if hasattr(self, 'idle3'):
            lab, code, sfl, back = self.idle3
            p.label(lab, reset='all')
            p.ext(code)
            self.vpoll(vL8, sfl, 14, acquire=False)
            p(f'v_lshlrev_b32 v{vT}, 7, v{vL}')
            p(f's_mul_i32 s{sT1}, s{sT0}, 86016')
            p.ext(self.prefetch(vT, sT1, WQT, 86016))
            p(f's_branch {back}')
        for lab, code in self.tail:
            p.label(lab, reset='all')
            p.ext(code)
        p.label('L_codeend')
        self.emit_walker()
        p.insert_waits()
        probs = p.fix_hazards()
        for x in probs:
            print('branch hazard padded', x, file=sys.stderr)
        mx = p.maxregs()
        head = open(os.path.join(os.path.dirname(__file__), '..', 'cdna_kernels', NAME + '.s.ref')).read().split('\n')
        hdr = [l for l in head if l.startswith(';') and '@launch' not in l]
        out = '\n'.join(hdr) + f'\n; @launch grid=(256,1,1) block=(256,1,1) lds={LDS_BYTES}\n'
        out += '.amdgcn_target "amdgcn-amd-amdhsa--gfx950"\n.text\n'
        out += f'.globl {NAME}_kernel\n.p2align 8\n.type {NAME}_kernel,@function\n{NAME}_kernel:\n'
        out += p.text()
        out += '.fill 64, 4, 0xbf800000\n'
        out += f'''.section .rodata,"a"
.p2align 6
.amdhsa_kernel {NAME}_kernel
  .amdhsa_next_free_vgpr 512
  .amdhsa_next_free_sgpr 102
  .amdhsa_accum_offset 256
  .amdhsa_group_segment_fixed_size 0
  .amdhsa_kernarg_size 72
  .amdhsa_user_sgpr_count 2
  .amdhsa_user_sgpr_kernarg_segment_ptr 1
  .amdhsa_system_sgpr_workgroup_id_x 1
  .amdhsa_float_denorm_mode_32 3
.end_amdhsa_kernel
'''
        print('regs', mx, 'instrs', sum(1 for x in p.items if isinstance(x, Ins)), file=sys.stderr)
        return out


if __name__ == '__main__':
    stop = int(sys.argv[2]) if len(sys.argv) > 2 else None
    k = K(stop if stop and stop > 0 else None, dbg=sys.argv[3].split(',') if len(sys.argv) > 3 else None)
    open(sys.argv[1], 'w').write(k.build())
    if k.dbg:
        open(os.path.join(os.path.dirname(sys.argv[1]), 'stamps.txt'), 'w').write(' '.join(k.stamps))
```

```python
import sys, os, math, struct
sys.path.insert(0, os.path.dirname(__file__))
from asmlib import Prog, Ins, Wait, Mark, Label, Touch

NAME = 'interleave_layers__sliding_block__dense_activation_relu__prompt'

WS_EPOCH = 0
WS_PUR = 0x1000
F_WQ = 0x2000
F_W1 = 0x2800
F_W2 = 0x3000
F_WO = 0x4000
WQT = 0x100000
W1T = 0x250000
WOT = 0x3D8000
W2T = 0x448000
TEAM0 = 0x600000
LSTRIDE = 0x230000
STRIDE = 2 * LSTRIDE
O_KV = 0x000000
O_O = 0x080000
O_X1 = 0x0C0000
O_XA = 0x0F8000
O_ST1 = 0x130000
O_STA = 0x138000
O_FKV = 0x140000
O_FO = 0x144000
O_FX1 = 0x144400
O_FXA = 0x144800
O_FH = 0x145000
O_H = 0x150000
WS_BYTES = TEAM0 + 8 * STRIDE

LKV = 100352
L_CSQ = 149504
L_CS1 = L_CSQ + 512
L_PUR = L_CS1 + 512 + 1536
L_CSP = L_CS1 + 512
LDS_BYTES = 163840

S_X, S_WQ, S_WO, S_W1, S_W2, S_OUT, S_WS = 8, 12, 16, 20, 24, 28, 32
S_WSP = 36
sTEAM, sM, sA, sJ, sW, sRB, sCB, sLB = 40, 41, 42, 43, 44, 45, 46, 47
sF, sPURE, sLAYER, sTP = 48, 50, 51, 52
sQOFF = 53
sHI = 54
sPERM, sONES = 56, 57
sRHO, sNU = 58, 59
sT0, sT1, sT2, sT3, sT4, sT5 = 60, 61, 62, 63, 64, 65
sCNT = 66
sTB = 71
sJFL = 67
sXD, sXS, sXF = 68, 69, 70
sPOLL = 72
sO = 80

vL, vL16, vA1, vL8 = 0, 1, 2, 3
vSTA = 4
vFLG = 5
vRW = 6
vX1A = 10
vCSA = 11
vF = 12
vMEAN, vRSTD = 14, 15
vT = 16
vRES = 240

POLL_MAX = 1 << 16
MF32 = 'v_mfma_f32_32x32x16_bf16'
MF16 = 'v_mfma_f32_16x16x32_bf16'


def srd(b):
    return f's[{b}:{b+3}]'


def vr(b, n=4):
    return f'v[{b}:{b+n-1}]' if n > 1 else f'v{b}'


def ar(b, n=4):
    return f'a[{b}:{b+n-1}]'


def f32bits(x):
    return struct.unpack('<I', struct.pack('<f', x))[0]


def is_mem(x):
    if isinstance(x, (list, tuple)):
        return any(is_mem(y) for y in x)
    t = x.text if isinstance(x, Ins) else x if isinstance(x, str) else ''
    return t.startswith('ds_') or t.startswith('buffer_') or t.startswith('global_')


def cost(x):
    if isinstance(x, (list, tuple)):
        return sum(cost(y) for y in x)
    if isinstance(x, (Wait, Touch)):
        return 1
    t = x.text if isinstance(x, Ins) else x
    return 2 if t.startswith('v_exp') or t.startswith('v_rsq') or t.startswith('v_rcp') or t.startswith('v_permlane') else 1


def sched(mfs, pre, mem, side, cap, start=0):
    out = []
    side = list(side)
    for i, m in enumerate(mfs):
        out += pre.get(i, [])
        out.append(m)
        n = 0
        for x in mem.get(i, []):
            out.append(x)
            n += cost(x)
        if pre.get(i + 1):
            n += 1
        valu = False
        if i >= start:
            while side and n + cost(side[0]) <= cap:
                if is_mem(side[0]) and valu:
                    break
                x = side.pop(0)
                if not is_mem(x) and not isinstance(x, (Wait, Touch)):
                    t = x[0] if isinstance(x, (list, tuple)) else x
                    if any((y.text if isinstance(y, Ins) else y).startswith('v_') for y in (x if isinstance(x, (list, tuple)) else [x])):
                        valu = True
                out.append(x)
                n += cost(x)
            if side and n == 0 and cost(side[0]) > cap:
                out.append(side.pop(0))
    return out + side


class K:
    def __init__(self, stop=None, dbg=False):
        self.p = Prog()
        self.stop = stop
        self.dbg = dbg
        self.stamps = []
        self.tail = []
        self.pads = []

    def stamp(self, name):
        if not self.dbg or (name not in self.dbg and name not in ('start', 'end')):
            return
        k = len(self.stamps)
        assert k < 15
        self.stamps.append(name)
        p = self.p
        p('s_memrealtime s[96:97]' if 'RT' in self.dbg else 's_memtime s[96:97]')
        p('s_waitcnt lgkmcnt(0)')
        l1 = p.newlabel('st')
        p(f's_cmp_lg_u32 s{sLAYER}, 0')
        p(f's_cbranch_scc1 {l1}')
        p(f'v_accvgpr_write_b32 a{224+k}, s96')
        p.label(l1)
        p(f'v_accvgpr_write_b32 a{240+k}, s96')

    def stamp_dump(self):
        if not self.dbg:
            return
        p = self.p
        p(f's_lshl_b32 s{sT0}, s2, 2')
        p(f's_add_u32 s{sT0}, s{sT0}, s{sW}')
        p(f's_lshl_b32 s{sT0}, s{sT0}, 7')
        p(f's_add_u32 s{sT0}, s{sT0}, 0x40000')
        p('s_mov_b64 exec, 1')
        for k in range(32):
            p(f'buffer_store_dword a{224+k}, off, {srd(S_WS)}, s{sT0} offset:{4*k}')
        if 'DBG' in self.dbg:
            p('s_cmp_lg_u32 s2, 43')
            p('s_cbranch_scc1 L_end')
            p(f's_cmp_lg_u32 s{sW}, 1')
            p('s_cbranch_scc1 L_end')
            p('s_load_dwordx2 s[96:97], s[0:1], 56')
            p('v_accvgpr_read_b32 v16, a224')
            p('v_mov_b32 v18, 0')
            p('s_waitcnt lgkmcnt(0)')
            n = len(self.stamps)
            f = self.stamps.index('pro') + 1 if 'pro' in self.stamps else 1
            regs = [224 + k for k in range(1, n - 1)] + [240 + k for k in range(f, n)]
            for i, r in enumerate(regs[:16]):
                p(f'v_accvgpr_read_b32 v17, a{r}')
                p('v_sub_u32 v17, v17, v16')
                p(f'global_store_dword v18, v17, s[96:97] offset:{4*i}')
        p('s_mov_b64 exec, -1')

    def dma(self, srdb, voff, sreg, simm, m0, tok, sc='', n=1):
        mr, mi = m0
        L = [f's_add_u32 m0, s{mr}, {mi}' if mr is not None else f's_mov_b32 m0, {mi}',
             f's_add_u32 s{sT5}, s{sreg}, {simm}']
        for k in range(n):
            L.append(Ins(f'buffer_load_dwordx4 v{voff}, {srd(srdb)}, s{sT5} offen offset:{1024*k} {sc} lds', tok))
        return L

    def if_layer0(self, body):
        p = self.p
        l = p.newlabel('l0')
        p(f's_cmp_lg_u32 s{sLAYER}, 0')
        p(f's_cbranch_scc1 {l}')
        p.mark('maybe_begin')
        body()
        p.mark('maybe_end')
        p.label(l)

    def vpoll(self, voff, soff, nl, acquire=True, drained=True):
        p = self.p
        lp, lo = p.newlabel('poll'), p.newlabel('pollout')
        p(f's_mov_b64 exec, {(1 << nl) - 1:#x}')
        p(f's_mov_b32 s{sCNT}, 0')
        p.label(lp)
        p(f'buffer_load_dwordx2 {vr(vT + 14, 2)}, v{voff}, {srd(S_WS)}, s{soff} offen sc1')
        p(f's_add_u32 s{sCNT}, s{sCNT}, 1')
        p(f's_cmp_gt_u32 s{sCNT}, {POLL_MAX}')
        p(f's_cbranch_scc1 {lo}')
        p('s_waitcnt vmcnt(0)')
        p(f'v_cmp_ne_u64 vcc, s[{sF}:{sF+1}], {vr(vT + 14, 2)}')
        p(f's_cbranch_vccnz {lp}')
        p.label(lo)
        p('s_mov_b64 exec, -1')
        if acquire:
            lslow, lback = p.newlabel('acq'), p.newlabel('acqback')
            p(f's_cmp_lg_u32 s{sPURE}, 0')
            p(f's_cbranch_scc0 {lslow}')
            p.label(lback)
            self.tail.append((lslow, ['buffer_inv sc1', 's_waitcnt vmcnt(0)', f's_branch {lback}']))
        if drained:
            p.mark('drained_vm')

    def publish(self, toks, soff):
        p = self.p
        p.wait(*toks)
        lslow, lback = p.newlabel('pubslow'), p.newlabel('pubback')
        p('s_mov_b64 exec, 1')
        p(f's_cmp_lg_u32 s{sPURE}, 0')
        p(f's_cbranch_scc0 {lslow}')
        p(f'buffer_store_dwordx2 {vr(vF, 2)}, off, {srd(S_WS)}, s{soff}')
        p.label(lback)
        p('s_mov_b64 exec, -1')
        self.tail.append((lslow, [
            'buffer_wbl2 sc1', 's_waitcnt vmcnt(0)',
            f'buffer_store_dwordx2 {vr(vF, 2)}, off, {srd(S_WS)}, s{soff} sc1',
            f's_branch {lback}']))

    def flag_sc1(self, soff):
        return ['s_mov_b64 exec, 1', f'buffer_store_dwordx2 {vr(vF,2)}, off, {srd(S_WS)}, s{soff} sc1', 's_mov_b64 exec, -1']

    def stats_loads(self, soff, dst):
        return [f'buffer_load_dwordx2 {vr(dst + 2*i, 2)}, v{vSTA}, {srd(S_WS)}, s{soff} offen offset:{256*i} sc1' for i in range(7)]

    def stats_reduce(self, src):
        L = []
        for i in range(1, 7):
            L.append(f'v_add_f32 v{src}, v{src}, v{src+2*i}')
            L.append(f'v_add_f32 v{src+1}, v{src+1}, v{src+2*i+1}')
        s, q, t0, t1 = src, src + 1, src + 2, src + 3
        return L + [
            f'v_mov_b32 v{t0}, v{s}', f'v_mov_b32 v{t1}, v{q}', 's_nop 0',
            f'v_permlane32_swap_b32 v{s}, v{t0}', f'v_permlane32_swap_b32 v{q}, v{t1}',
            f'v_add_f32 v{s}, v{s}, v{t0}', f'v_add_f32 v{q}, v{q}, v{t1}',
            f'v_mul_f32 v{vMEAN}, {f32bits(-1.0/448):#x}, v{s}',
            f'v_mul_f32 v{q}, {f32bits(1.0/448):#x}, v{q}',
            f'v_fma_f32 v{q}, -v{vMEAN}, v{vMEAN}, v{q}',
            f'v_max_f32 v{q}, 0, v{q}',
            f'v_add_f32 v{q}, {f32bits(1e-5):#x}, v{q}',
            f'v_rsq_f32 v{vRSTD}, v{q}',
        ]

    def off(self, dst, idx_reg, mul, add):
        return [f's_mul_i32 s{dst}, s{idx_reg}, {mul}', f's_add_u32 s{dst}, s{dst}, s{sLB}', f's_add_u32 s{dst}, s{dst}, {add}']

    def xoff(self, dst, idx_reg, mul, add):
        return [f's_add_u32 s{sT3}, s{sLB}, {add}', f's_add_u32 s{sT4}, s{sTB}, {O_XA}', f's_cmp_lg_u32 s{sPURE}, 0',
                f's_cselect_b32 s{sT3}, s{sT4}, s{sT3}', f's_mul_i32 s{dst}, s{idx_reg}, {mul}', f's_add_u32 s{dst}, s{dst}, s{sT3}']

    def roff(self, dst, idx_reg, mul, add):
        return [f's_cmp_lg_u32 s{sPURE}, 0', f's_cselect_b32 s{sT3}, s{sTB}, s{sLB}',
                f's_mul_i32 s{dst}, s{idx_reg}, {mul}', f's_add_u32 s{dst}, s{dst}, s{sT3}', f's_add_u32 s{dst}, s{dst}, {add}']

    def pub_offsets(self, xoff, stoff, foff):
        return [f's_lshl_b32 s{sT0}, s{sRB}, 1', f's_add_u32 s{sT0}, s{sT0}, s{sRHO}',
                f's_lshl_b32 s{sT1}, s{sCB}, 1', f's_add_u32 s{sT1}, s{sT1}, s{sNU}',
                f's_mul_i32 s{sT2}, s{sT0}, 14', f's_add_u32 s{sT2}, s{sT2}, s{sT1}'] + \
            self.xoff(sXD, sT2, 2048, xoff) + self.off(sXS, sT2, 256, stoff) + \
            [f's_lshl_b32 s{sT0}, s{sT0}, 4', f's_add_u32 s{sT0}, s{sT0}, s{sT1}'] + self.off(sXF, sT0, 8, foff)

    def x_store(self, P, va, offs, sc=''):
        p = self.p
        S, Q2, t0, t1 = vT + 6, vT + 7, vT + 8, vT + 9
        for k in range(2):
            p(f'buffer_store_dwordx4 {vr(P+4*k)}, v{va}, {srd(S_WS)}, s{sXD} offen offset:{offs[k]} {sc}', tok='xst')
        p(f'v_mov_b32 v{t0}, s{sONES}')
        p(f'v_dot2_f32_bf16 v{S}, v{P}, v{t0}, 0')
        p(f'v_dot2_f32_bf16 v{Q2}, v{P}, v{P}, 0')
        for i in range(1, 8):
            p(f'v_dot2_f32_bf16 v{S}, v{P+i}, v{t0}, v{S}')
            p(f'v_dot2_f32_bf16 v{Q2}, v{P+i}, v{P+i}, v{Q2}')
        p(f'v_mov_b32 v{t0}, v{S}')
        p(f'v_mov_b32 v{t1}, v{Q2}')
        p(f'v_permlane32_swap_b32 v{S}, v{t0}')
        p(f'v_permlane32_swap_b32 v{Q2}, v{t1}')
        p(f'v_add_f32 v{S}, v{S}, v{t0}')
        p(f'v_add_f32 v{Q2}, v{Q2}, v{t1}')
        p('s_mov_b32 exec_hi, 0')
        p(f'buffer_store_dwordx2 {vr(S,2)}, v{vL8}, {srd(S_WS)}, s{sXS} offen {sc}', tok='xst')
        p('s_mov_b64 exec, -1')

    def res_unpack(self, P):
        L = []
        for q in range(8):
            L.append(f'v_lshlrev_b32 v{vRES+2*q}, 16, v{P+q}')
            L.append(f'v_and_b32 v{vRES+2*q+1}, 0xffff0000, v{P+q}')
        return L

    def prefetch(self, v128, sreg, base, nbytes):
        L = []
        o = 0
        while o < nbytes:
            oo = min(o, nbytes - 8192)
            L += [f's_add_u32 s{sT5}, s{sreg}, {base + oo}', f'buffer_load_dword a255, v{v128}, {srd(S_WS)}, s{sT5} offen sc1']
            o += 8192
        return L

    def wq_dma(self, tiles, dummy=None):
        L = [f's_mul_i32 s{sT0}, s{sJ}, 86016', f's_mul_i32 s{sT1}, s{sW}, 7168',
             f's_add_u32 s{sT0}, s{sT0}, s{sT1}']
        if dummy is not None:
            L += [f's_sub_u32 s{sT2}, s{dummy}, {WQT}', f's_cmp_lg_u32 s{sLAYER}, 0', f's_cselect_b32 s{sT0}, s{sT2}, s{sT0}']
        for tau in tiles:
            for o, n in ((0, 4), (4096, 3)):
                d = self.dma(S_WS, vL16, sT0, WQT + tau * 28672 + o, (sT1, tau * 28672 + o), 'wq', 'sc1', n)
                L += [d[:3]] + d[3:]
        return L

    def w1_dma(self, part):
        sg, sl = sPOLL, sPOLL + 1
        L = []
        if part == 0:
            L += [f's_mul_i32 s{sg}, s{sJ}, 100352', f's_mul_i32 s{sl}, s{sW}, 14336', f's_add_u32 s{sg}, s{sg}, s{sl}']
            groups = [(0, 4), (4096, 4), (8192, 4), (12288, 2)]
            base = 0
        else:
            L += [f's_mul_i32 s{sg}, s{sJ}, 100352', f's_mul_i32 s{sl}, s{sW}, 10240', f's_add_u32 s{sg}, s{sg}, s{sl}']
            groups = [(0, 4), (4096, 4), (8192, 2)]
            base = 57344
        for o, n in groups:
            d = self.dma(S_WS, vL16, sg, W1T + base + o, (sl, base + o), 'w1', 'sc1', n)
            L += [d[:3]] + d[3:]
        if part == 1:
            L += [f's_sub_u32 s{sg}, s{sg}, s{sl}', f's_lshl_b32 s{sl}, s{sNU}, 10', f's_add_u32 s{sg}, s{sg}, s{sl}']
            L.append(self.dma(S_WS, vL16, sg, W1T + 98304, (sl, 98304), 'w1', 'sc1', 1))
        return L

    def w2_loads(self, lo, hi):
        L = [f's_lshl_b32 s{sT0}, s{sCB}, 2', f's_add_u32 s{sT0}, s{sT0}, s{sW}', f's_mul_i32 s{sT0}, s{sT0}, 57344',
             f's_lshl_b32 s{sT1}, s{sNU}, 10', f'v_xor_b32 v{vT+10}, s{sT1}, v{vL16}', f'v_xor_b32 v{vT+11}, 1024, v{vT+10}']
        for ks in range(lo, hi):
            if ks == lo or ks % 2 == 0:
                L.append(f's_add_u32 s{sT1}, s{sT0}, {W2T + (ks//2)*4096}')
            for z in range(2):
                L.append(f'buffer_load_dwordx4 {ar(ks*8+z*4)}, v{vT+10+z}, {srd(S_WS)}, s{sT1} offen offset:{(ks%2)*2048} sc1')
        return L

    def lane_consts(self):
        p = self.p
        t0, t1 = vT + 6, vT + 7
        p(f'v_add_u32 v{vA1}, 57344, v{vL16}')
        p(f'v_and_b32 v{vSTA}, 31, v{vL}')
        p(f'v_lshlrev_b32 v{vSTA}, 3, v{vSTA}')
        p(f'v_lshrrev_b32 v{t0}, 5, v{vL}')
        p(f'v_mul_u32_u24 v{t1}, {7*256}, v{t0}')
        p(f'v_add_u32 v{vSTA}, v{vSTA}, v{t1}')
        p(f'v_lshrrev_b32 v{vFLG}, 2, v{vL}')
        p(f'v_lshlrev_b32 v{vFLG}, 7, v{vFLG}')
        p(f'v_and_b32 v{t1}, 3, v{vL}')
        p(f'v_lshl_add_u32 v{vFLG}, v{t1}, 3, v{vFLG}')
        for x in range(1, 4):
            p(f's_xor_b32 s{sT0}, s{sW}, {x}')
            p(f's_mul_i32 s{sT0}, s{sT0}, 12288')
            p(f's_add_u32 s{sT0}, s{sT0}, {LKV + (x-1)*4096}')
            p(f'v_add_u32 v{vRW+x-1}, s{sT0}, v{vL16}')
        p(f's_mul_i32 s{sT0}, s{sW}, 12288')
        p(f's_add_u32 s{sT0}, s{sT0}, {LKV}')
        p(f'v_add_u32 v{vRW+3}, s{sT0}, v{vL16}')
        p(f'v_bfe_u32 v{vX1A}, v{vL}, 4, 1')
        p(f'v_lshlrev_b32 v{vX1A}, 10, v{vX1A}')
        p(f'v_lshl_add_u32 v{vX1A}, v{t0}, 8, v{vX1A}')
        p(f'v_and_b32 v{t1}, 15, v{vL}')
        p(f'v_lshl_add_u32 v{vX1A}, v{t1}, 4, v{vX1A}')

    def pad(self):
        p = self.p
        k = len(self.pads)
        self.pads.append(f'L_pad{k}')
        p(f's_branch L_padskip{k}')
        p.label(f'L_pad{k}')
        p('s_setpc_b64 s[98:99]')
        p.label(f'L_padskip{k}')

    def emit_walker(self):
        L = []
        labs = [f'L_walk{w}' for w in range(4)]
        for w in range(1, 4):
            L += [Ins(f's_cmp_eq_u32 s{sW}, {w}'), Ins(f's_cbranch_scc1 {labs[w]}')]
        for w in range(4):
            if w:
                L.append(Label(labs[w]))
            for x in self.pads[w::4]:
                L.append(Ins(f's_call_b64 s[98:99], {x}'))
            if w < 3:
                L.append(Ins('s_branch L_walkend'))
        L.append(Label('L_walkend'))
        self.p.items[self.walker_at:self.walker_at] = L

    def prologue(self):
        p = self.p
        t0, t1, t2, t3 = vT, vT + 1, vT + 2, vT + 3
        vDQ, vTQ, vWQ = vT + 10, vT + 11, vT + 12
        sRQ, sLQ = sO + 6 + 16, sO + 7 + 16
        sRQ, sLQ = 76, 77
        p('s_cmp_ge_u32 s2, 256')
        p('s_cbranch_scc1 L_end')
        p(f's_load_dwordx16 s[{sO}:{sO+15}], s[0:1], 0')
        p(f's_load_dwordx2 s[{S_WSP}:{S_WSP+1}], s[0:1], 64')
        p(f's_getpc_b64 s[{sT0}:{sT0+1}]')
        p.label('L_pc')
        p(f'v_lshlrev_b32 v{t2}, 7, v0')
        p(f'v_min_u32 v{t2}, L_codeend-L_pc, v{t2}')
        p(f'global_load_dword a255, v{t2}, s[{sT0}:{sT0+1}]')
        p(f's_mov_b32 s{sLAYER}, 0')
        self.stamp('start')
        p(f'v_lshrrev_b32 v{vT}, 6, v0')
        p(f'v_and_b32 v{vL}, 63, v0')
        p(f'v_readfirstlane_b32 s{sW}, v{vT}')
        p(f's_and_b32 s{sTEAM}, s2, 7')
        p(f's_lshr_b32 s{sM}, s2, 3')
        p(f's_and_b32 s{sJ}, s{sM}, 15')
        p(f's_mul_i32 s{sRB}, s{sM}, 37')
        p(f's_lshr_b32 s{sRB}, s{sRB}, 8')
        p(f's_mul_i32 s{sT0}, s{sRB}, 7')
        p(f's_sub_u32 s{sCB}, s{sM}, s{sT0}')
        p(f's_lshr_b32 s{sRHO}, s{sW}, 1')
        p(f's_and_b32 s{sNU}, s{sW}, 1')
        p(f's_lshl_b32 s{sT0}, s{sTEAM}, 2')
        p(f's_add_u32 s{sT0}, s{sT0}, s{sRB}')
        p(f's_lshl_b32 s{sT1}, s{sT0}, 1')
        p(f's_add_u32 s{sT1}, s{sT1}, s{sRHO}')
        p(f's_mul_i32 s{sQOFF}, s{sT1}, {32*896}')
        p(f's_lshl_b32 s{sT1}, s{sCB}, 7')
        p(f's_add_u32 s{sQOFF}, s{sQOFF}, s{sT1}')
        p(f's_lshl_b32 s{sT1}, s{sNU}, 6')
        p(f's_add_u32 s{sQOFF}, s{sQOFF}, s{sT1}')
        p(f'v_and_b32 v{t3}, 31, v{vL}')
        p(f'v_mul_u32_u24 v{t3}, 896, v{t3}')
        p(f'v_lshrrev_b32 v{t1}, 5, v{vL}')
        p(f'v_lshl_add_u32 v{t3}, v{t1}, 3, v{t3}')
        p(f'v_lshrrev_b32 v{t0}, 2, v{vL}')
        p(f'v_and_b32 v{t1}, 3, v{vL}')
        p(f'v_mul_u32_u24 v{vDQ}, 2688, v{t0}')
        p(f'v_lshl_add_u32 v{vDQ}, v{t1}, 4, v{vDQ}')
        p(f's_mul_i32 s{sRQ}, s{sW}, {7*16*2688}')
        p(f's_mul_i32 s{sT1}, s{sJ}, 56')
        p(f's_add_u32 s{sRQ}, s{sRQ}, s{sT1}')
        p(f's_mul_i32 s{sLQ}, s{sW}, 7168')
        p(f's_lshl_b32 s{sT2}, s{sM}, 2')
        p(f's_add_u32 s{sT2}, s{sT2}, s{sW}')
        vPK, vPQ = vT + 14, vT + 15
        p(f's_mul_i32 s{sT3}, s{sT2}, 49')
        p(f'v_add_u32 v{t2}, s{sT3}, v{vL}')
        p(f'v_mul_u32_u24 v{vPK}, 74899, v{t2}')
        p(f'v_lshrrev_b32 v{vPK}, 20, v{vPK}')
        p(f'v_mul_u32_u24 v{vPK}, 7, v{vPK}')
        p(f'v_add_u32 v{vPK}, v{vPK}, v{t2}')
        p(f'v_lshlrev_b32 v{vPK}, 7, v{vPK}')
        b = sO

        def mksrd(d, src, n):
            p(f's_mov_b32 s{d}, s{src}')
            p(f's_and_b32 s{d+1}, s{src+1}, 0xffff')
            p(f's_mov_b32 s{d+2}, {n}')
            p(f's_mov_b32 s{d+3}, 0x20000')

        def rawq(tau, i):
            p.ext(self.dma(S_WQ, vDQ, sRQ, (448, 896, 0)[tau] * 2 + i * 16 * 2688, (sLQ, tau * 28672 + i * 1024), f'rq{tau}{i}'))
        mksrd(S_X, b, 1835008)
        mksrd(S_WQ, b + 2, 1204224)
        XR = 96
        for q in range(4):
            p(f'buffer_load_dwordx2 {vr(XR+2*q,2)}, v{t3}, {srd(S_X)}, s{sQOFF} offen offset:{16*q}')
        p('s_mov_b32 exec_hi, 0x1ffff')
        p(f'buffer_load_dword a255, v{vPK}, {srd(S_WQ)}, 0 offen offset:896')
        p('s_mov_b64 exec, -1')
        p(f's_load_dwordx2 s[{sF}:{sF+1}], s[{S_WSP}:{S_WSP+1}], {WS_EPOCH}')
        self.stamp('ka')
        p(f's_mul_i32 s{sT3}, s{sT2}, 25')
        p(f'v_add_u32 v{t2}, s{sT3}, v{vL}')
        p(f'v_mul_u32_u24 v{vPQ}, 149797, v{t2}')
        p(f'v_lshrrev_b32 v{vPQ}, 20, v{vPQ}')
        p(f'v_mul_u32_u24 v{vPQ}, 14, v{vPQ}')
        p(f'v_add_u32 v{vPQ}, v{vPQ}, v{t2}')
        p(f'v_lshlrev_b32 v{vPQ}, 7, v{vPQ}')
        p('s_mov_b64 exec, 0x1ffffff')
        p(f'buffer_load_dword a255, v{vPQ}, {srd(S_WQ)}, 0 offen')
        p('s_mov_b64 exec, -1')
        for (d, src, n) in ((S_WO, b + 4, 401408), (S_W1, b + 8, 1605632),
                            (S_W2, b + 10, 1605632), (S_OUT, b + 12, 1835008), (S_WS, S_WSP, WS_BYTES)):
            mksrd(d, src, n)
        p(f's_lshr_b32 s{sA}, s{sM}, 4')
        p(f's_mul_i32 s{sLB}, s{sTEAM}, {STRIDE}')
        p(f's_add_u32 s{sLB}, s{sLB}, {TEAM0}')
        p(f's_mov_b32 s{sTB}, s{sLB}')
        p(f's_lshl_b32 s{sTP}, s{sA}, 2')
        p(f's_add_u32 s{sTP}, s{sTP}, s{sW}')
        p(f'v_lshlrev_b32 v{vL16}, 4, v{vL}')

        vCSP = 104

        def xform(tau, between=None):
            R = 128 + 32 * (tau % 2)

            def fin(i):
                p(f'ds_write_b128 v{vWQ}, {vr(R+4*i)} offset:{tau*28672+i*1024}')
                for q in range(4):
                    p(f'v_dot2_f32_bf16 v{vCSP+tau}, v{R+4*i+q}, v{vCSP+3}, {f"v{vCSP+tau}" if i or q else 0}')
            for i in range(7):
                p.wait(f'rq{tau}{i}')
                for jj in range(2):
                    p(f'ds_read_b64_tr_b16 {vr(R+4*i+2*jj,2)}, v{vTQ} offset:{tau*28672+i*1024+jj*512}')
                if between:
                    between(i)
                if i >= 1:
                    fin(i - 1)
            fin(6)
        sI, sSTG = sO, sO + 1
        p(f's_lshl_b32 s{sI}, s{sTEAM}, 1')
        p(f's_add_u32 s{sI}, s{sI}, s{sA}')
        p(f's_lshl_b32 s{sSTG}, s{sW}, 13')
        p(f's_add_u32 s{sSTG}, s{sSTG}, {LKV}')
        vD, vTR, vTR8 = vT + 4, vT + 5, vT + 13
        p(f'v_lshlrev_b32 v{t3}, 3, v{t1}')
        p(f'v_lshlrev_b32 v{t1}, 4, v{t1}')
        sFL, sDST, sDST2 = sO + 2, sO + 3, sO + 5
        FR = 32
        p(f'v_bfe_u32 v{t2}, v{vL}, 4, 1')
        p(f'v_lshl_add_u32 v{t2}, v{t2}, 5, v{t3}')
        p(f'v_bfe_u32 v{vTR}, v{vL}, 2, 2')
        p(f'v_lshl_add_u32 v{t2}, v{vTR}, 6, v{t2}')
        p(f'v_lshrrev_b32 v{vTR8}, 5, v{vL}')
        p(f'v_lshl_add_u32 v{vTQ}, v{vTR8}, 8, v{t2}')
        p(f'v_add_u32 v{vTR}, s{sSTG}, v{vTQ}')
        p(f'v_add_u32 v{t2}, s{sSTG}, v{t2}')
        p(f'v_lshl_add_u32 v{vTR8}, v{vTR8}, 9, v{t2}')

        def finish(nfr, offs, pre=()):
            L = list(pre)
            base = None
            for k in range(nfr):
                hi, lo = offs[k] // 4096 * 4096, offs[k] % 4096
                if hi != base:
                    L.append(f's_add_u32 s{sT5}, s{sDST}, {hi}')
                    base = hi
                L.append(f'buffer_store_dwordx4 {vr(FR+4*k)}, v{vL16}, {srd(S_WS)}, s{sT5} offen offset:{lo} sc1')
            return L

        p(f'v_add_u32 v{vTQ}, s{sLQ}, v{vTQ}')
        p(f'v_add_u32 v{vWQ}, s{sLQ}, v{vL16}')
        p(f's_mov_b32 s{sHI}, 0')
        p(f's_mov_b32 s{sHI+1}, -1')
        p(f's_mov_b32 s{sPERM}, 0x07060302')
        p(f's_mov_b32 s{sONES}, 0x3f803f80')
        p(f's_mov_b32 s{sPURE}, 1')
        p(f'v_lshlrev_b32 v{vL8}, 3, v{vL}')
        p.ext(self.pub_offsets(O_XA, O_STA, O_FXA))
        self.lane_consts()
        p(f'v_mov_b32 v{vCSP+3}, s{sONES}')
        p('s_waitcnt lgkmcnt(0)')
        p(f's_add_u32 s{sF}, s{sF}, 1')
        p(f's_addc_u32 s{sF+1}, s{sF+1}, 0')
        p(f'v_mov_b32 v{vF}, s{sF}')
        p(f'v_mov_b32 v{vF+1}, s{sF+1}')
        p(f's_cmp_ge_u32 s{sM}, 28')
        p(f's_cselect_b32 s{sXF}, {WS_PUR + 0x800}, s{sXF}')
        lp0 = p.newlabel('p0skip')
        p(f's_cbranch_scc1 {lp0}')
        p.mark('maybe_begin')
        self.x_store(XR, vL16, (0, 1024), 'sc1')
        p.mark('maybe_end')
        p.label(lp0)
        self.stamp('x0')
        sJOB = sO + 4
        lA = [p.newlabel('jobA') for _ in range(4)]
        p(f's_mov_b32 s{sJOB}, 0')
        p.mark('maybe_begin')
        p(f's_cmp_eq_u32 s{sW}, 1')
        p(f's_cbranch_scc1 {lA[0]}')
        p(f's_cmp_ge_u32 s{sW}, 2')
        p(f's_cbranch_scc1 {lA[1]}')
        p(f's_cmp_ge_u32 s{sI}, 14')
        p(f's_cbranch_scc1 {lA[3]}')
        p(f'v_mul_u32_u24 v{vD}, 2688, v{t0}')
        p(f'v_add_u32 v{vD}, v{vD}, v{t1}')
        p(f's_mul_i32 s{sT0}, s{sI}, {32*2688}')
        p(f's_mul_i32 s{sT1}, s{sJ}, 56')
        p(f's_add_u32 s{sT0}, s{sT0}, s{sT1}')
        for tau in range(3):
            for hb in range(2):
                p.ext(self.dma(S_WQ, vD, sT0, (448, 896, 0)[tau] * 2 + hb * 16 * 2688, (sSTG, tau * 2048 + hb * 1024), 'raw'))
        p(f's_mul_i32 s{sDST}, s{sJ}, 86016')
        p(f's_lshl_b32 s{sT0}, s{sI}, 11')
        p(f's_add_u32 s{sDST}, s{sDST}, s{sT0}')
        p(f's_add_u32 s{sDST}, s{sDST}, {WQT}')
        p(f's_lshl_b32 s{sFL}, s{sJ}, 4')
        p(f's_add_u32 s{sFL}, s{sFL}, s{sI}')
        p(f's_lshl_b32 s{sFL}, s{sFL}, 3')
        p(f's_add_u32 s{sFL}, s{sFL}, {F_WQ}')
        p(f's_mov_b32 s{sJOB}, 1')
        p(f's_branch {lA[3]}')
        p.label(lA[0])
        p(f's_cmp_ge_u32 s{sI}, 14')
        p(f's_cbranch_scc1 {lA[3]}')
        p(f'v_bfe_u32 v{vD}, v{vL}, 1, 3')
        p(f'v_bfe_u32 v{t2}, v{vL}, 4, 1')
        p(f'v_lshl_add_u32 v{vD}, v{t2}, 4, v{vD}')
        p(f'v_bfe_u32 v{t2}, v{vL}, 5, 1')
        p(f'v_lshl_add_u32 v{vD}, v{t2}, 3, v{vD}')
        p(f'v_mul_u32_u24 v{vD}, 3584, v{vD}')
        p(f'v_and_b32 v{t2}, 1, v{vL}')
        p(f'v_lshl_add_u32 v{vD}, v{t2}, 4, v{vD}')
        p(f's_mul_i32 s{sT0}, s{sI}, {32*3584}')
        p(f's_mul_i32 s{sT1}, s{sJ}, 224')
        p(f's_add_u32 s{sT0}, s{sT0}, s{sT1}')
        for t in range(7):
            p.ext(self.dma(S_W1, vD, sT0, t * 32, (sSTG, t * 1024), 'raw'))
        p(f'v_lshl_add_u32 v{vTR}, v{t0}, 5, v{t3}')
        p(f'v_add_u32 v{vTR}, s{sSTG}, v{vTR}')
        p(f's_mul_i32 s{sDST}, s{sJ}, 100352')
        p(f's_add_u32 s{sDST}, s{sDST}, {W1T}')
        p(f's_mul_i32 s{sDST2}, s{sI}, 3072')
        p(f's_add_u32 s{sDST2}, s{sDST2}, s{sDST}')
        p(f's_add_u32 s{sDST2}, s{sDST2}, 57344')
        p(f's_lshl_b32 s{sT0}, s{sI}, 12')
        p(f's_add_u32 s{sDST}, s{sDST}, s{sT0}')
        p(f's_lshl_b32 s{sFL}, s{sJ}, 4')
        p(f's_add_u32 s{sFL}, s{sFL}, s{sI}')
        p(f's_lshl_b32 s{sFL}, s{sFL}, 3')
        p(f's_add_u32 s{sFL}, s{sFL}, {F_W1}')
        p(f's_mov_b32 s{sJOB}, 2')
        p(f's_branch {lA[3]}')
        p.label(lA[1])
        p(f'v_mul_u32_u24 v{vD}, 896, v{t0}')
        p(f'v_add_u32 v{vD}, v{vD}, v{t1}')
        p(f's_cmp_ge_u32 s{sM}, 28')
        p(f's_cbranch_scc1 {lA[2]}')
        sI2, sSL, sHF = sT2, sT3, sT4
        p(f's_lshl_b32 s{sI2}, s{sTEAM}, 2')
        p(f's_add_u32 s{sI2}, s{sI2}, s{sRB}')
        p(f's_lshr_b32 s{sSL}, s{sI2}, 1')
        p(f's_and_b32 s{sHF}, s{sI2}, 1')
        p(f's_mul_i32 s{sT0}, s{sSL}, {112*896}')
        p(f's_mul_i32 s{sT1}, s{sHF}, {64*896}')
        p(f's_add_u32 s{sT0}, s{sT0}, s{sT1}')
        p(f's_lshl_b32 s{sT1}, s{sCB}, 7')
        p(f's_add_u32 s{sT0}, s{sT0}, s{sT1}')
        p(f's_lshl_b32 s{sT1}, s{sNU}, 6')
        p(f's_add_u32 s{sT0}, s{sT0}, s{sT1}')
        for k in range(4):
            p.ext(self.dma(S_W2, vD, sT0, k * 16 * 896, (sSTG, k * 1024), 'raw'))
        p(f's_mul_i32 s{sDST}, s{sCB}, 229376')
        p(f's_mul_i32 s{sT0}, s{sSL}, 14336')
        p(f's_add_u32 s{sDST}, s{sDST}, s{sT0}')
        p(f's_lshl_b32 s{sT0}, s{sHF}, 13')
        p(f's_add_u32 s{sDST}, s{sDST}, s{sT0}')
        p(f's_lshl_b32 s{sT0}, s{sNU}, 10')
        p(f's_add_u32 s{sDST}, s{sDST}, s{sT0}')
        p(f's_add_u32 s{sDST}, s{sDST}, {W2T}')
        p(f's_lshl_b32 s{sFL}, s{sCB}, 5')
        p(f's_add_u32 s{sFL}, s{sFL}, s{sI2}')
        p(f's_lshl_b32 s{sFL}, s{sFL}, 1')
        p(f's_add_u32 s{sFL}, s{sFL}, s{sNU}')
        p(f's_lshl_b32 s{sFL}, s{sFL}, 3')
        p(f's_add_u32 s{sFL}, s{sFL}, {F_W2}')
        p(f's_add_u32 s{sJOB}, s{sHF}, 3')
        p(f's_branch {lA[3]}')
        p.label(lA[2])
        p(f's_cmp_eq_u32 s{sTEAM}, 7')
        p(f's_cbranch_scc1 {lA[3]}')
        p(f's_mul_i32 s{sT0}, s{sCB}, {112*896}')
        p(f's_lshl_b32 s{sT1}, s{sTEAM}, 7')
        p(f's_add_u32 s{sT0}, s{sT0}, s{sT1}')
        p(f's_lshl_b32 s{sT1}, s{sNU}, 6')
        p(f's_add_u32 s{sT0}, s{sT0}, s{sT1}')
        for k in range(8):
            p.ext(self.dma(S_WO, vD, sT0, k * 16 * 896, (sSTG, k * 1024), 'raw'))
        p(f's_lshl_b32 s{sFL}, s{sTEAM}, 2')
        p(f's_add_u32 s{sFL}, s{sFL}, s{sCB}')
        p(f's_lshl_b32 s{sDST}, s{sFL}, 14')
        p(f's_lshl_b32 s{sT0}, s{sNU}, 10')
        p(f's_add_u32 s{sDST}, s{sDST}, s{sT0}')
        p(f's_add_u32 s{sDST}, s{sDST}, {WOT}')
        p(f's_lshl_b32 s{sFL}, s{sFL}, 1')
        p(f's_add_u32 s{sFL}, s{sFL}, s{sNU}')
        p(f's_lshl_b32 s{sFL}, s{sFL}, 3')
        p(f's_add_u32 s{sFL}, s{sFL}, {F_WO}')
        p(f's_mov_b32 s{sJOB}, 5')
        p.mark('maybe_end')
        p.label(lA[3])
        self.stamp('jA')
        for i in range(7):
            rawq(0, i)
        for i in range(7):
            rawq(1, i)
        p('s_waitcnt vmcnt(14)')
        p.ext(self.flag_sc1(sXF))
        self.stamp('rt1')
        p.mark('maybe_begin')
        lB = {k: p.newlabel('jobB') for k in (2, 3, 4, 5, 'join')}
        for k in (2, 3, 4, 5):
            p(f's_cmp_eq_u32 s{sJOB}, {k}')
            p(f's_cbranch_scc1 {lB[k]}')
        p(f's_cmp_eq_u32 s{sJOB}, 0')
        p(f's_cbranch_scc1 {lB["join"]}')
        for tau in range(3):
            for kp in range(2):
                for jj in range(2):
                    p(f'ds_read_b64_tr_b16 {vr(FR+(tau*2+kp)*4+2*jj,2)}, v{vTR} offset:{tau*2048+(16*kp+8*jj)*64}')
        p.ext(finish(6, [tau * 28672 + kp * 1024 for tau in range(3) for kp in range(2)]))
        p(f's_branch {lB["join"]}')
        p.label(lB[2])
        for t in range(7):
            for jj in range(2):
                p(f'ds_read_b64_tr_b16 {vr(FR+t*4+2*jj,2)}, v{vTR} offset:{t*1024+jj*512}')
        p.ext(finish(4, [t * 1024 for t in range(4)]))
        for t in range(4, 7):
            p(f'buffer_store_dwordx4 {vr(FR+4*t)}, v{vL16}, {srd(S_WS)}, s{sDST2} offen offset:{(t-4)*1024} sc1')
        p(f's_branch {lB["join"]}')
        p.label(lB[3])
        for sg in range(4):
            for jj in range(2):
                p(f'ds_read_b64_tr_b16 {vr(FR+sg*4+2*jj,2)}, v{vTR} offset:{(32*(sg//2)+16*jj+8*(sg%2))*64}')
        p.ext(finish(4, [k * 2048 for k in range(4)]))
        p(f's_branch {lB["join"]}')
        p.label(lB[4])
        for sg in range(2):
            for jj in range(2):
                p(f'ds_read_b64_tr_b16 {vr(FR+sg*4+2*jj,2)}, v{vTR} offset:{(16*jj+8*sg)*64}')
        for jj in range(2):
            p(f'ds_read_b64_tr_b16 {vr(FR+8+2*jj,2)}, v{vTR8} offset:{(32+4*jj)*64}')
        p.ext(finish(3, [k * 2048 for k in range(3)]))
        p(f's_branch {lB["join"]}')
        p.label(lB[5])
        for hd in range(4):
            for kp in range(2):
                for jj in range(2):
                    p(f'ds_read_b64_tr_b16 {vr(FR+(hd*2+kp)*4+2*jj,2)}, v{vTR} offset:{(28*hd+16*kp+8*jj)*64}')
        p('s_waitcnt lgkmcnt(0)')
        p('s_mov_b32 exec_lo, 0')
        for hd in range(4):
            p(f'v_mov_b32 v{FR+(hd*2+1)*4+2}, 0')
            p(f'v_mov_b32 v{FR+(hd*2+1)*4+3}, 0')
        p('s_mov_b64 exec, -1')
        p.ext(finish(8, [k * 2048 for k in range(8)]))
        p.mark('maybe_end')
        p.label(lB['join'])
        p(f's_getreg_b32 s{sT0}, hwreg(HW_REG_XCC_ID)')
        p(f's_and_b32 s{sT0}, s{sT0}, 15')
        p(f's_lshl_b32 s{sT0}, s{sT0}, 28')
        p(f's_xor_b32 s{sT0}, s{sT0}, s{sF+1}')
        p(f'v_mov_b32 v{t2}, s{sF}')
        p(f'v_mov_b32 v{t3}, s{sT0}')
        p(f's_lshl_b32 s{sT1}, s{sTEAM}, 8')
        p(f's_lshl_b32 s{sT2}, s{sM}, 3')
        p(f's_add_u32 s{sT1}, s{sT1}, s{sT2}')
        p(f's_add_u32 s{sT1}, s{sT1}, {WS_PUR}')
        p('s_mov_b64 exec, 1')
        p(f'buffer_store_dwordx2 {vr(t2,2)}, off, {srd(S_WS)}, s{sT1} sc1')
        p('s_mov_b64 exec, -1')
        xform(0, lambda i: rawq(2, i))
        self.stamp('xf0')
        xform(1)
        p(f's_cmp_eq_u32 s{sJOB}, 0')
        p(f's_cselect_b32 s{sFL}, {WS_PUR + 0x800}, s{sFL}')
        p('s_waitcnt vmcnt(7)')
        p.ext(self.flag_sc1(sFL))
        self.stamp('xf1')
        self.walker_at = len(p.items)
        p.ext(self.res_unpack(XR))
        xform(2)
        for tau in range(3):
            p(f'v_mov_b32 v{t2}, v{vCSP+tau}')
            p(f'v_permlane32_swap_b32 v{vCSP+tau}, v{t2}')
            p(f'v_add_f32 v{vCSP+tau}, v{vCSP+tau}, v{t2}')
        p(f'v_and_b32 v{t2}, 31, v{vL}')
        p(f'v_lshlrev_b32 v{t2}, 2, v{t2}')
        p(f's_mul_i32 s{sT0}, s{sW}, 384')
        p(f's_add_u32 s{sT0}, s{sT0}, {L_CSP}')
        p(f'v_add_u32 v{t3}, s{sT0}, v{t2}')
        for tau in range(3):
            p(f'ds_write_b32 v{t3}, v{vCSP+tau} offset:{tau*128}')
        p('s_waitcnt vmcnt(0) lgkmcnt(0)')
        p('s_barrier')
        self.stamp('bar')
        p(f'v_add_u32 v{t3}, {L_CSP}, v{t2}')
        for tau in range(3):
            for w in range(4):
                p(f'ds_read_b32 v{108+4*tau+w}, v{t3} offset:{w*384+tau*128}')
        p(f'v_and_b32 v{t2}, 31, v{vL}')
        p(f'v_lshlrev_b32 v{t2}, 2, v{t2}')
        p(f'v_add_u32 v{t3}, {L_CSQ}, v{t2}')
        for tau in range(3):
            r = 108 + 4 * tau
            p(f'v_add_f32 v{r}, v{r}, v{r+1}')
            p(f'v_add_f32 v{r+2}, v{r+2}, v{r+3}')
            p(f'v_add_f32 v{r}, v{r}, v{r+2}')
            p(f'ds_write_b32 v{t3}, v{r} offset:{tau*128}')
        p('s_waitcnt lgkmcnt(0)')
        self.stamp('pro')

    def p1(self):
        p = self.p
        X, ACC, RING, CS = 32, 144, 192, 224
        accK, accV, accQ = ACC, ACC + 16, ACC + 32
        PK, PV = vT, vT + 8
        sXO, sST, sFX, sKV, sKF = sO, sO + 7, sO + 8, sO + 9, sO + 10
        p.ext(self.xoff(sXO, sTP, 28672, O_XA))
        for g in range(1, 7):
            p(f's_add_u32 s{sXO+g}, s{sXO}, {4096*g}')
        p.ext(self.off(sST, sTP, 3584, O_STA))
        p.ext(self.off(sFX, sTP, 128, O_FXA))
        p(f's_lshl_b32 s{sT0}, s{sJ}, 3')
        p(f's_add_u32 s{sT0}, s{sT0}, s{sTP}')
        p.ext(self.off(sKV, sT0, 4096, O_KV))
        p.ext(self.off(sKF, sT0, 128, O_FKV))
        p(f'v_lshrrev_b32 v{vCSA}, 5, v{vL}')
        p(f'v_lshlrev_b32 v{vCSA}, 4, v{vCSA}')
        p(f'v_add_u32 v{vCSA}, {L_CSQ}, v{vCSA}')

        def frag(f):
            if f < 56:
                base, off = vL16, (f % 2) * 28672 + (f // 2) * 1024
            else:
                base, off = vA1, (f - 56) * 1024
            return f'ds_read_b128 {vr(RING + 4*(f % 8))}, v{base} offset:{off}'

        def mf(f):
            acc, s = ((accK, accV)[f % 2], f // 2) if f < 56 else (accQ, f - 56)
            return f'{MF32} {vr(acc,16)}, {vr(RING+4*(f%8))}, {vr(X+4*s)}, {vr(acc,16) if s else 0}'

        def xl(s):
            return f'buffer_load_dwordx4 {vr(X+4*s)}, v{vL16}, {srd(S_WS)}, s{sXO + s//4} offen offset:{(s%4)*1024} sc1'
        self.stamp('p5')
        self.pad()
        self.vpoll(vL8, sFX, 14)
        self.stamp('E')
        XP = 8
        for s in range(XP):
            p(xl(s))

        PD = 6
        for f in range(PD):
            p(frag(f))
        mem, pre = {}, {}
        for f in range(84):
            mem[f] = []
            if f + PD < 84:
                mem[f].append(frag(f + PD))
            if f < 56 and f % 2 == 0 and f // 2 + XP < 28:
                mem[f].append(xl(f // 2 + XP))
            if 33 <= f < 47 and f % 2 == 1:
                mem[f].append(self.stats_loads(sST, CS)[(f - 33) // 2])
            if f % 2 == 0:
                pre[f] = [Touch(vr(RING + 4 * (f % 8)) + ' ' + vr(RING + 4 * ((f + 1) % 8)) + (' ' + vr(X + 4 * (f // 2)) if f < 56 else ''))]

        def cs_reads(tau, dst):
            return [f'ds_read_b128 {vr(dst+4*q)}, v{vCSA} offset:{tau*128 + 32*q}' for q in range(4)]
        p.ext(sched([mf(f) for f in range(56)], pre, mem, cs_reads(1, accQ) + cs_reads(0, PK), 5, start=40))
        p.ext(self.stats_reduce(CS))
        self.stamp('kv')

        def epi(acc, cs, P):
            L = []
            for r in range(0, 16, 2):
                L.append(f'v_pk_fma_f32 {vr(acc+r,2)}, {vr(cs+r,2)}, {vr(vMEAN,2)}, {vr(acc+r,2)} op_sel:[0,0,0] op_sel_hi:[1,0,1]')
            for r in range(0, 16, 2):
                L.append(f'v_pk_mul_f32 {vr(acc+r,2)}, {vr(acc+r,2)}, {vr(vMEAN,2)} op_sel:[0,1] op_sel_hi:[1,1]')
                L.append(f'v_cvt_pk_bf16_f32 v{P+r//2}, v{acc+r}, v{acc+r+1}')
            return L

        def pad(P, c6, c7):
            return ['s_mov_b32 exec_lo, 0', f'v_mov_b32 v{P+6}, {c6:#x}', f'v_mov_b32 v{P+7}, {c7:#x}', 's_mov_b64 exec, -1']

        def st(P, o):
            return [Ins(f'buffer_store_dwordx4 {vr(P+4*k)}, v{vL16}, {srd(S_WS)}, s{sKV} offen offset:{o+1024*k} sc1', 'kvst') for k in range(2)]
        t0, t1 = CS, CS + 1
        p.ext(epi(accK, PK, PK) + pad(PK, 0x3f803f80, 0x3f80) + st(PK, 0))
        p.ext(epi(accV, accQ, PV) + pad(PV, 0x3f80, 0) + st(PV, 2048))
        self.stamp('kvs')
        side = [f's_lshl_b32 s{sT0}, s{sW}, 12', f's_add_u32 s{sT0}, s{sT0}, {LKV + 8*4096}',
                f'v_add_u32 v{t0}, s{sT0}, v{vL16}',
                f'ds_write_b128 v{t0}, {vr(PK)}', f'ds_write_b128 v{t0}, {vr(PK+4)} offset:1024',
                f'v_and_b32 v{t1}, 31, v{vL}', f'v_lshlrev_b32 v{t1}, 6, v{t1}', f'v_lshrrev_b32 v{t0}, 5, v{vL}',
                f'v_lshl_add_u32 v{t1}, v{t0}, 4, v{t1}', f'v_add_u32 v{t0}, s{sT0}, v{t1}',
                f'ds_write_b128 v{t0}, {vr(PV)} offset:2048', f'ds_write_b128 v{t0}, {vr(PV+4)} offset:{2048+32}',
                f'v_mul_f32 v{vRSTD}, {f32bits(28 ** -0.5 * math.log2(math.e)):#x}, v{vRSTD}'] + cs_reads(2, CS)
        pre2 = {f - 56: v for f, v in pre.items() if f >= 56}
        mem2 = {f - 56: v for f, v in mem.items() if f >= 56}
        p.ext(sched([mf(f) for f in range(56, 84)], pre2, mem2, side, 4, start=0))
        p.wait('kvst')
        p.ext(self.flag_sc1(sKF))
        self.stamp('q')
        QF = 200
        p.ext(epi(accQ, CS, QF))
        p.ext(pad(QF, 0, 0x3f800000))
        self.pad()
        p('s_barrier')
        self.stamp('p1')

    def attn(self):
        p = self.p
        KF, ST, MW, MD, OA, QF, PB, VF = 32, 104, 152, 168, 184, 200, 208, 224
        t0, t1 = 104, 105

        NK = 2
        sKD, sKL, sKFl, sNULL = sO + 8, sO + 11, sPOLL + 6, sT4
        sKFl = [sO + 14, sO + 15, sT3]
        p(f's_mov_b32 s{sNULL}, 0')
        for k in range(NK):
            p(f's_lshl_b32 s{sT0}, s{sW}, 1')
            p(f's_add_u32 s{sT0}, s{sT0}, {k}')
            p(f's_lshl_b32 s{sKL+k}, s{sT0}, 12')
            p(f's_add_u32 s{sKL+k}, s{sKL+k}, {LKV}')
            p(f's_lshl_b32 s{sT1}, s{sA}, 2')
            p(f's_add_u32 s{sT0}, s{sT0}, s{sT1}')
            p(f's_cmp_lt_u32 s{sT0}, 8')
            p(f's_cselect_b32 s{sT1}, {STRIDE}, 0')
            p(f's_sub_u32 s{sT1}, s{sLB}, s{sT1}')
            p(f's_and_b32 s{sT0}, s{sT0}, 7')
            p(f's_cmp_lt_i32 s{sT1}, {TEAM0}')
            p(f's_cselect_b32 s{sT2}, {1 << k}, 0')
            p(f's_cselect_b32 s{sT1}, s{sLB}, s{sT1}')
            p(f's_cselect_b32 s{sT0}, s{sTP}, s{sT0}')
            p(f's_or_b32 s{sNULL}, s{sNULL}, s{sT2}')
            p(f's_lshl_b32 s{sT2}, s{sJ}, 3')
            p(f's_add_u32 s{sT0}, s{sT0}, s{sT2}')
            p(f's_lshl_b32 s{sKD+k}, s{sT0}, 12')
            p(f's_add_u32 s{sKD+k}, s{sKD+k}, s{sT1}')
            p(f's_lshl_b32 s{sT0}, s{sT0}, 7')
            p(f's_add_u32 s{sT0}, s{sT0}, s{sT1}')
            p(f's_add_u32 s{sKFl[k]}, s{sT0}, {O_FKV}')
        p(f'v_bfe_u32 v{t0}, v{vL}, 1, 1')
        p(f'v_lshlrev_b32 v{t0}, 10, v{t0}')
        p(f'v_and_b32 v{t1}, 1, v{vL}')
        p(f'v_lshl_add_u32 v{t0}, v{t1}, 9, v{t0}')
        p(f'v_lshrrev_b32 v{t1}, 2, v{vL}')
        p(f'v_lshl_add_u32 v{t0}, v{t1}, 4, v{t0}')
        lp, lo = p.newlabel('kvpoll'), p.newlabel('kvpollout')
        self.stamp('w1')
        p('s_waitcnt lgkmcnt(0)')
        p(f's_mov_b32 s{sCNT}, 0')
        p.label(lp)
        for k in range(NK):
            p(f's_load_dwordx2 s[{sPOLL+2*k}:{sPOLL+2*k+1}], s[{S_WSP}:{S_WSP+1}], s{sKFl[k]} glc')
        p(f's_add_u32 s{sCNT}, s{sCNT}, 1')
        p(f's_cmp_gt_u32 s{sCNT}, {POLL_MAX}')
        p(f's_cbranch_scc1 {lo}')
        p('s_waitcnt lgkmcnt(0)')
        for k in range(NK):
            p(f's_cmp_eq_u64 s[{sPOLL+2*k}:{sPOLL+2*k+1}], s[{sF}:{sF+1}]')
            p(f's_cbranch_scc0 {lp}')
        p.label(lo)
        self.stamp('kvf')
        for k in range(NK):
            lnull, lb = p.newlabel('null'), p.newlabel('nullback')
            p(f's_bitcmp1_b32 s{sNULL}, {k}')
            p(f's_cbranch_scc1 {lnull}')
            p(f's_mov_b32 m0, s{sKL+k}')
            p(f's_sub_u32 s{sT5}, s{sKD+k}, 768')
            p(f'buffer_load_dwordx4 v{vL16}, {srd(S_WS)}, s{sKD+k} offen sc1 lds')
            p(f'buffer_load_dwordx4 v{vL16}, {srd(S_WS)}, s{sKD+k} offen offset:1024 sc1 lds')
            p(f'buffer_load_dwordx4 v{t0}, {srd(S_WS)}, s{sKD+k} offen offset:2048 sc1 lds')
            p(f'buffer_load_dwordx4 v{t0}, {srd(S_WS)}, s{sT5} offen offset:3072 sc1 lds')
            p.label(lb)
            self.tail.append((lnull, [
                f'v_add_u32 v{t1}, s{sKL+k}, v{vL16}',
                'v_mov_b32 v108, 0', 'v_mov_b32 v109, 0', 'v_mov_b32 v110, 0', 'v_mov_b32 v111, 0'] +
                [f'ds_write_b128 v{t1}, v[108:111] offset:{o}' for o in (0, 2048, 3072)] +
                ['s_mov_b32 exec_lo, 0', 'v_mov_b32 v111, 0xf1490000', 's_mov_b64 exec, -1',
                 f'ds_write_b128 v{t1}, v[108:111] offset:1024', f's_branch {lb}']))
        t2, t3 = 106, 107
        p(f'v_and_b32 v{t2}, 31, v{vL}')
        p(f'v_lshrrev_b32 v{t3}, 5, v{vL}')
        p(f'v_lshlrev_b32 v{t3}, 2, v{t3}')
        p(f'v_sub_u32 v{t2}, v{t2}, v{t3}')
        p(f'v_mov_b32 v{t3}, {f32bits(-1e30):#x}')
        for r in range(0, 16, 2):
            k0, k1 = 8 * (r // 4) + r % 4, 8 * (r // 4) + r % 4 + 1
            p(f'v_cmp_le_i32 vcc, {k0}, v{t2}')
            p(f'v_cmp_le_i32 s[{sPOLL}:{sPOLL+1}], {k1}, v{t2}')
            p('s_nop 0')
            p(f'v_cndmask_b32_e64 v{MD+r}, v{t3}, 0, vcc')
            p(f'v_cndmask_b32_e64 v{MD+r+1}, v{t3}, 0, s[{sPOLL}:{sPOLL+1}]')
            p(f'v_cndmask_b32_e64 v{MW+r}, 0, v{t3}, vcc')
            p(f'v_cndmask_b32_e64 v{MW+r+1}, 0, v{t3}, s[{sPOLL}:{sPOLL+1}]')
        vKA, vVA = vT, vT + 1
        p(f's_lshl_b32 s{sT0}, s{sW}, 12')
        p(f's_add_u32 s{sT0}, s{sT0}, {LKV}')
        p(f'v_add_u32 v{vKA}, s{sT0}, v{vL16}')
        p(f'v_lshrrev_b32 v{t2}, 5, v{vL}')
        p(f'v_bfe_u32 v{t3}, v{vL}, 2, 2')
        p(f'v_lshl_add_u32 v{t2}, v{t2}, 2, v{t3}')
        p(f'v_lshlrev_b32 v{vVA}, 6, v{t2}')
        p(f'v_bfe_u32 v{t2}, v{vL}, 4, 1')
        p(f'v_lshl_add_u32 v{vVA}, v{t2}, 5, v{vVA}')
        p(f'v_and_b32 v{t2}, 1, v{vL}')
        p(f'v_lshl_add_u32 v{vVA}, v{t2}, 4, v{vVA}')
        p(f'v_bfe_u32 v{t2}, v{vL}, 1, 1')
        p(f'v_lshl_add_u32 v{vVA}, v{t2}, 3, v{vVA}')
        p(f'v_add_u32 v{vVA}, s{sT0}, v{vVA}')
        sOD, sOF, sWO = sO, sO + 1, sO + 2
        p(f's_lshl_b32 s{sT0}, s{sTP}, 4')
        p(f's_add_u32 s{sT0}, s{sT0}, s{sJ}')
        p.ext(self.roff(sOD, sT0, 2048, O_O))
        p.ext(self.off(sOF, sT0, 8, O_FO))
        p(f's_lshl_b32 s{sWO}, s{sCB}, 2')
        p(f's_add_u32 s{sWO}, s{sWO}, s{sW}')
        p(f's_lshl_b32 s{sWO}, s{sWO}, 14')
        p(f's_add_u32 s{sWO}, s{sWO}, {WOT}')
        for g in range(1, 4):
            p(f's_add_u32 s{sWO+g}, s{sWO}, {4096*g}')
        vPT = vT + 12
        p(f'v_lshlrev_b32 v{vPT}, 7, v{vL}')
        p(f'v_add_u32 v{vPT}, s{sOD}, v{vPT}')
        p(f's_lshl_b32 s{sT0}, s{sTP}, 7')
        p(f's_lshl_b32 s{sT1}, s{sRB}, 8')
        p(f's_lshl_b32 s{sT2}, s{sRHO}, 7')
        p(f's_add_u32 s{sT2}, s{sT2}, s{sT1}')
        p(f's_mul_i32 s{sT3}, s{sT2}, 28')
        p(f's_lshl_b32 s{sT4}, s{sCB}, 9')
        p(f's_add_u32 s{sT3}, s{sT3}, s{sT4}')
        p(f's_lshl_b32 s{sT4}, s{sNU}, 8')
        p(f's_add_u32 s{sT3}, s{sT3}, s{sT4}')
        for lane, (r, c) in enumerate([(sT0, O_FO), (sT1, O_FO), (sT1, O_FO + 128), (sT0, O_FX1), (sT2, O_FX1),
                                       (sT3, O_ST1), (sT3, O_ST1 + 128), (sT0, O_FH), (sT1, O_FH), (sT1, O_FH + 128),
                                       (sT3, LSTRIDE + O_STA), (sT3, LSTRIDE + O_STA + 128), (sT2, LSTRIDE + O_FXA),
                                       (sT0, LSTRIDE + O_FXA)]):
            p(f's_add_u32 s{sT4}, s{r}, {c}')
            p(f's_add_u32 s{sT4}, s{sT4}, s{sLB}')
            p(f'v_writelane_b32 v{vPT}, s{sT4}, {16 + lane}')
        p(f'v_cmp_lt_u32 vcc, 29, v{vL}')
        p(f'v_mov_b32 v{t2}, s{sT4}')
        p(f'v_cndmask_b32 v{vPT}, v{vPT}, v{t2}, vcc')
        vZ = vT + 8
        p(f's_lshl_b32 s{sT0}, s{sNU}, 10')
        p(f'v_xor_b32 v{vZ}, s{sT0}, v{vL16}')
        p(f'v_xor_b32 v{vZ+1}, 1024, v{vZ}')

        def first():
            l0 = p.newlabel('first')
            p(f's_cmp_lg_u32 s{sW}, 0')
            p(f's_cbranch_scc1 {l0}')
            p(f's_lshl_b32 s{sT0}, s{sJ}, 7')
            p(f's_add_u32 s{sT0}, s{sT0}, {F_W1}')
            p(f's_lshl_b32 s{sT2}, s{sCB}, 6')
            p(f's_add_u32 s{sT2}, s{sT2}, {F_WO - 14*8}')
            p(f's_lshl_b32 s{sT3}, s{sTEAM}, 8')
            p(f's_add_u32 s{sT3}, s{sT3}, {WS_PUR - 32*8}')
            p(f'v_add_u32 v{t2}, s{sT0}, v{vL8}')
            p(f'v_min_u32 v{t3}, {21*8}, v{vL8}')
            p(f'v_add_u32 v{t3}, s{sT2}, v{t3}')
            p(f'v_cmp_le_u32 vcc, 14, v{vL}')
            p(f'v_cndmask_b32 v{t2}, v{t2}, v{t3}, vcc')
            p(f'v_add_u32 v{t3}, s{sT3}, v{vL8}')
            p(f'v_cmp_le_u32 vcc, 32, v{vL}')
            p(f'v_cndmask_b32 v{t2}, v{t2}, v{t3}, vcc')
            lp, lo, ls = p.newlabel('pur'), p.newlabel('purout'), p.newlabel('pursleep')
            p(f's_mov_b32 s{sCNT}, 0')
            p.label(lp)
            p(f'buffer_load_dwordx2 {vr(108,2)}, v{t2}, {srd(S_WS)}, 0 offen sc1')
            p(f's_add_u32 s{sCNT}, s{sCNT}, 1')
            p(f's_cmp_gt_u32 s{sCNT}, {POLL_MAX}')
            p(f's_cbranch_scc1 {lo}')
            p('s_waitcnt vmcnt(0)')
            p(f'v_xor_b32 v109, s{sF+1}, v109')
            p(f'v_xor_b32 v108, s{sF}, v108')
            p(f'v_and_b32 v110, 0x0fffffff, v109')
            p(f'v_or_b32 v108, v108, v110')
            p(f'v_cmp_ne_u32 vcc, 0, v108')
            p(f's_cbranch_vccnz {ls}')
            p(f'v_readlane_b32 s{sT1}, v109, 32')
            p(f'v_cmp_ne_u32 vcc, s{sT1}, v109')
            p(f's_cmp_eq_u32 vcc_hi, 0')
            p(f's_cselect_b32 s{sT1}, {0 if os.environ.get("FORCE_IMPURE") else 1}, 0')
            p(f'v_mov_b32 v108, s{sT1}')
            p(f'v_mov_b32 v109, {L_PUR}')
            p('ds_write_b32 v109, v108')
            p.label(lo)
            p.label(l0)
            self.tail.append((ls, ['s_sleep 8', f's_branch {lp}']))
        self.if_layer0(first)
        self.pad()
        p('s_waitcnt vmcnt(0) lgkmcnt(0)')
        self.stamp('kvd')
        p('s_barrier')
        self.stamp('A')

        def getpure():
            p(f'v_mov_b32 v{t0}, {L_PUR}')
            p(f'ds_read_b32 v{t0}, v{t0}')
            p(f'v_readfirstlane_b32 s{sPURE}, v{t0}')
        self.if_layer0(getpure)
        p(f'v_lshlrev_b32 v{t0}, 7, v{vL}')
        p(f's_lshl_b32 s{sT0}, s{sCB}, 2')
        p(f's_add_u32 s{sT0}, s{sT0}, s{sRB}')
        p(f's_lshl_b32 s{sT1}, s{sT0}, 14')
        p(f's_lshl_b32 s{sT2}, s{sW}, 12')
        p(f's_add_u32 s{sT1}, s{sT1}, s{sT2}')
        p(f's_add_u32 s{sT1}, s{sT1}, {WOT}')
        p('s_mov_b32 exec_hi, 0')
        p(f'buffer_load_dword a255, v{t0}, {srd(S_WS)}, s{sT1} offen sc1')
        p('s_mov_b64 exec, -1')
        p(f'buffer_load_dword a255, v{vPT}, {srd(S_WS)}, 0 offen sc1')
        bg = self.w1_dma(0)

        def kread(t):
            return [f'ds_read_b128 {vr(KF+8*t+4*k)}, v{vKA} offset:{t*4096+k*1024}' for k in range(2)]

        def qk(t):
            s = ST + 16 * (t % 3)
            c = vr(MW, 16) if t == 0 else vr(MD, 16) if t == 8 else '0'
            return [f'{MF32} {vr(s,16)}, {vr(KF+8*t)}, {vr(QF)}, {c}',
                    f'{MF32} {vr(s,16)}, {vr(KF+8*t+4)}, {vr(QF+4)}, {vr(s,16)}']
        vM, vM2 = vT + 2, vT + 3

        def mx(t):
            s = ST + 16 * (t % 3)
            L = []
            for i in range(8):
                d = vM if i % 2 == 0 else vM2
                if t == 0 and i < 2:
                    L.append(f'v_max_f32 v{d}, v{s+2*i}, v{s+2*i+1}')
                else:
                    L.append(f'v_max3_f32 v{d}, v{s+2*i}, v{s+2*i+1}, v{d}')
            return L

        def vread(t):
            d = VF + 8 * (t % 2)
            return [f'ds_read_b64_tr_b16 {vr(d+4*kv+2*jj,2)}, v{vVA} offset:{t*4096+2048+(16*kv+8*jj)*64}'
                    for kv in range(2) for jj in range(2)]
        def popbg():
            L = []
            while bg:
                x = bg.pop(0)
                L.append(x)
                if is_mem(x):
                    break
            return L
        for t in range(4):
            p.ext(kread(t))
        q = qk(0)
        p.ext([q[0]] + kread(4) + [q[1]] + kread(5))
        q = qk(1)
        p.ext([q[0]] + kread(6) + [q[1]] + kread(7))
        for t in range(9):
            m = mx(t)
            if t + 2 < 9:
                q = qk(t + 2)
                extra = kread(8) if t == 0 else vread(0)[:2] if t == 5 else vread(0)[2:] if t == 6 else []
                if t % 2 == 1:
                    extra = extra + popbg()
                p.ext([q[0]] + extra + m[:4] + [q[1]] + m[4:])
            else:
                p.ext(m)
        self.stamp('a1')
        a, b2, r1 = vT + 4, vT + 5, vT + 6
        p(f'v_max_f32 v{vM}, v{vM}, v{vM2}')
        p(f'v_mov_b32 v{a}, v{vM}')
        p(f'v_permlane32_swap_b32 v{vM}, v{a}')
        p(f'v_max_f32 v{vM}, v{vM}, v{a}')
        p(f'v_xor_b32 v{vM}, 0x80000000, v{vM}')
        p(f'v_and_b32 v{a}, 0xffff0000, v{vM}')
        p(f'v_sub_f32 v{r1}, v{vM}, v{a}')
        p(f'v_and_b32 v{a}, 0xffff0000, v{r1}')
        p(f'v_sub_f32 v{b2}, v{r1}, v{a}')
        p('s_mov_b32 exec_lo, 0')
        p(f'v_perm_b32 v{QF+6}, v{r1}, v{vM}, s{sPERM}')
        p(f'v_perm_b32 v{QF+7}, 1.0, v{b2}, s{sPERM}')
        p('s_mov_b64 exec, -1')

        def ex(t):
            s = ST + 16 * (t % 3)
            pb = PB + 8 * (t % 2)
            L = []
            for i in range(8):
                L.append(f'v_exp_f32 v{s+2*i}, v{s+2*i}')
                L.append(f'v_exp_f32 v{s+2*i+1}, v{s+2*i+1}')
                if i:
                    L.append(f'v_cvt_pk_bf16_f32 v{pb+i-1}, v{s+2*i-2}, v{s+2*i-1}')
            L.append(f'v_cvt_pk_bf16_f32 v{pb+7}, v{s+14}, v{s+15}')
            return L

        def pv(t):
            d = VF + 8 * (t % 2)
            pb = PB + 8 * (t % 2)
            return [f'{MF32} {vr(OA,16)}, {vr(d)}, {vr(pb)}, {vr(OA,16) if t else 0}',
                    f'{MF32} {vr(OA,16)}, {vr(d+4)}, {vr(pb+4)}, {vr(OA,16)}']

        self.pad()

        def wol(i):
            ks, z = i // 2, i % 2
            return f'buffer_load_dwordx4 {vr(32+4*i)}, v{vZ+z}, {srd(S_WS)}, s{sWO + ks//2} offen offset:{(ks%2)*2048} sc1'
        p.ext(qk(0))
        p.ext(qk(1))
        for t in range(9):
            e = ex(t)
            mf = (pv(t - 1) if t else []) + (qk(t + 2) if t + 2 < 9 else [])
            out = []
            pos = [2, 7, 12, 17]
            for i, x in enumerate(e):
                out.append(x)
                if i in pos and pos.index(i) < len(mf):
                    k = pos.index(i)
                    out.append(mf[k])
                    if t + 1 < 9:
                        if t == 0:
                            out += vread(1)[2 * k:2 * k + 2]
                        elif k in (1, 2):
                            out += vread(t + 1)[2 * (k - 1):2 * (k - 1) + 2]
                        elif t == 7 and k == 1:
                            pass
                    if t < 6 and k in (0, 3) or t == 0:
                        out += popbg()
                    if t >= 7:
                        out += [wol(8 * (t - 7) + 4 * k + q) for q in range(4)]
            if t == 7:
                out = out[:-3] + vread(8)[2:] + out[-3:]
            p.ext(out)
        assert not bg
        p.ext(pv(8))
        self.stamp('a2')
        p(f'v_mov_b32 v{a}, v{OA+12}')
        p(f'v_mov_b32 v{b2}, v{OA+12}')
        p(f'v_permlane32_swap_b32 v{a}, v{b2}')
        p(f'v_rcp_f32 v{b2}, v{b2}')
        for i in range(8):
            p(f'v_pk_mul_f32 {vr(OA+2*i,2)}, {vr(OA+2*i,2)}, {vr(a,2)} op_sel:[0,1] op_sel_hi:[1,1]')
            p(f'v_cvt_pk_bf16_f32 v{PB+i}, v{OA+2*i}, v{OA+2*i+1}')
            if i % 4 == 3:
                p(f'buffer_store_dwordx4 {vr(PB+i-3)}, v{vL16}, {srd(S_WS)}, s{sOD} offen offset:{(i//4)*1024}', tok='ost')
        self.publish(['ost'], sOF)
        self.stamp('att')

    def reduce_writes(self, ACC):
        return [Ins(f'ds_write_b128 v{vRW+x-1}, {vr(ACC+16*x+4*c)} offset:{c*1024}', 'rw') for x in range(1, 4) for c in range(4)]

    def reduce_finish(self, ACC, TMP):
        p = self.p
        p.wait('rw')
        self.pad()
        p('s_barrier')
        for c in range(4):
            for x in range(3):
                p(f'ds_read_b128 {vr(TMP+16*x+4*c)}, v{vRW+3} offset:{x*4096+c*1024}')
        for c in range(8):
            p(f'v_pk_add_f32 {vr(TMP+2*c,2)}, {vr(TMP+2*c,2)}, {vr(TMP+16+2*c,2)}')
            p(f'v_pk_add_f32 {vr(ACC+2*c,2)}, {vr(ACC+2*c,2)}, {vr(TMP+32+2*c,2)}')
            p(f'v_pk_add_f32 {vr(ACC+2*c,2)}, {vr(ACC+2*c,2)}, {vr(TMP+2*c,2)}')

    def yoffs(self, dst, mul, add):
        L = []
        for y in range(2):
            L += [f's_xor_b32 s{sT0}, s{sRHO}, {y}', f's_lshl_b32 s{sT1}, s{sRB}, 1', f's_add_u32 s{sT0}, s{sT0}, s{sT1}',
                  f's_lshl_b32 s{sT0}, s{sT0}, 2', f's_add_u32 s{sT0}, s{sT0}, s{sW}'] + self.roff(dst + y, sT0, mul, add)
        return L

    def p3(self):
        p = self.p
        WO, OF, ACC, RING = 32, 96, 160, 200

        def colsum(part):
            for i in range(4):
                p(f'v_mov_b32 v{vT+4+i}, s{sONES}')
            p(f's_lshl_b32 s{sT0}, s{sW}, 10')
            if part == 0:
                p(f'v_add_u32 v{vT}, s{sT0}, v{vL16}')
            else:
                p(f's_min_u32 s{sT0}, s{sT0}, 2048')
                p(f'v_add_u32 v{vT}, s{sT0}, v{vA1}')
            rd = lambda f: f'ds_read_b128 {vr(RING+4*(f%6))}, v{vT} offset:{f*(4096, 3072)[part]}'
            for f in range(5):
                p(rd(f))
            for f in range(14):
                p(f'{MF16} {vr(ACC)}, {vr(vT+4)}, {vr(RING+4*(f%6))}, {vr(ACC) if f else 0}')
                if f + 5 < 14:
                    p(rd(f + 5))
            p(f's_lshl_b32 s{sT0}, s{sW}, 6')
            p(f's_add_u32 s{sT0}, s{sT0}, {L_CS1 + 256*part}')
            p(f'v_and_b32 v{vT}, 15, v{vL}')
            p(f'v_lshlrev_b32 v{vT}, 2, v{vT}')
            p(f'v_add_u32 v{vT}, s{sT0}, v{vT}')
            p(f'ds_write_b32 v{vT}, v{ACC}')
            p('s_waitcnt lgkmcnt(0)')
        w1d = self.w1_dma(1)
        self.pad()
        p('s_barrier')
        self.if_layer0(lambda: colsum(0))
        ljoin, lidle = p.newlabel('p3join'), p.newlabel('p3idle')
        p(f's_cmp_ge_u32 s{sM}, 28')
        p(f's_cbranch_scc1 {lidle}')
        p.mark('maybe_begin')
        sFO, sY = sO, sO + 2
        p(f's_lshl_b32 s{sT0}, s{sRB}, 3')
        p(f's_add_u32 s{sT0}, s{sT0}, s{sW}')
        p.ext(self.off(sFO, sT0, 32, O_FO))
        p.ext(self.yoffs(sY, 8192, O_O))
        p(f's_add_u32 s{sY+2}, s{sY}, 4096')
        p(f's_add_u32 s{sY+3}, s{sY+1}, 4096')
        p.ext(self.pub_offsets(O_X1, O_ST1, O_FX1))
        self.vpoll(vFLG, sFO, 8)
        self.stamp('B')

        def ld(ks, y):
            return f'buffer_load_dwordx4 {vr(OF+(ks*2+y)*4)}, v{vL16}, {srd(S_WS)}, s{sY + 2*(ks//4) + y} offen offset:{(ks%4)*1024} sc1'

        def mf(ks, x):
            y, z = x >> 1, x & 1
            c = vr(ACC + 16 * x, 16) if ks else (vr(vRES, 16) if x == 0 else '0')
            return f'{MF32} {vr(ACC+16*x,16)}, {vr(WO+(ks*2+z)*4)}, {vr(OF+(ks*2+y)*4)}, {c}'
        for ks in range(5):
            for y in range(2):
                p(ld(ks, y))
        rest = list(w1d)
        for ks in range(8):
            for x in (1, 2, 3):
                p(mf(ks, x))
                if ks + 5 < 8 and x < 3:
                    p(ld(ks + 5, x - 1))
                elif ks >= 3 and rest:
                    y = rest.pop(0)
                    p.ext([y])
                    while rest and not is_mem(y):
                        y = rest.pop(0)
                        p.ext([y])
        assert not rest
        self.stamp('p3mm')
        p.ext(sched([mf(ks, 0) for ks in range(8)], {}, {}, self.reduce_writes(ACC), 2, start=2))
        self.stamp('p3rw')
        self.reduce_finish(ACC, 32)
        self.stamp('p3rd')
        P = 96
        for i in range(8):
            p(f'v_cvt_pk_bf16_f32 v{P+i}, v{ACC+2*i}, v{ACC+2*i+1}')
        self.x_store(P, vX1A, (0, 512))
        self.publish(['xst'], sXF)
        self.stamp('p3pub')
        p.ext(self.res_unpack(P))
        p.mark('maybe_end')
        p.label(ljoin)
        lq = p.newlabel('p3noq')
        vq = [f's_cmp_lg_u32 s{sLAYER}, 0', f's_cbranch_scc1 {ljoin}',
              f's_lshl_b32 s{sT0}, s{sCB}, 2', f's_add_u32 s{sT0}, s{sT0}, s{sW}',
              f's_lshl_b32 s{sT1}, s{sT0}, 7', f's_add_u32 s{sT1}, s{sT1}, {F_WQ}']
        self.idle3 = (lidle, w1d + vq, sT1, ljoin)
        self.pad()
        p('s_waitcnt vmcnt(0)')
        p('s_barrier')
        self.if_layer0(lambda: colsum(1))
        self.stamp('p3')

    def p4(self):
        p = self.p
        X, ACC, RING, CS = 32, 144, 200, 224
        sXO, sST, sFX, sH, sHF = sO, sO + 7, sO + 8, sO + 9, sO + 11

        def late():
            p(f's_lshl_b32 s{sT0}, s{sCB}, 9')
            p(f's_lshl_b32 s{sT1}, s{sW}, 7')
            p(f's_add_u32 s{sT0}, s{sT0}, s{sT1}')
            p(f's_add_u32 s{sT0}, s{sT0}, {F_W2}')
            p(f's_lshl_b32 s{sT1}, s{sJ}, 7')
            p(f's_add_u32 s{sT1}, s{sT1}, {F_WQ - 16*8}')
            p(f'v_mov_b32 v{vT}, s{sT0}')
            p(f'v_mov_b32 v{vT+1}, s{sT1}')
            p(f'v_cmp_le_u32 vcc, 16, v{vL}')
            p(f'v_cndmask_b32 v{vT}, v{vT}, v{vT+1}, vcc')
            p(f'v_add_u32 v{vT}, v{vT}, v{vL8}')
            p(f's_mov_b32 s{sT0}, 0')
            self.vpoll(vT, sT0, 30, acquire=False, drained=False)
            p.ext(self.w2_loads(0, 12))
        self.if_layer0(late)
        p.ext(self.xoff(sXO, sTP, 28672, O_X1))
        for g in range(1, 7):
            p(f's_add_u32 s{sXO+g}, s{sXO}, {4096*g}')
        p.ext(self.off(sST, sTP, 3584, O_ST1))
        p.ext(self.off(sFX, sTP, 128, O_FX1))
        p(f's_lshl_b32 s{sT0}, s{sTP}, 4')
        p(f's_add_u32 s{sT0}, s{sT0}, s{sJ}')
        p.ext(self.roff(sH, sT0, 7168, O_H))
        p(f's_add_u32 s{sH+1}, s{sH}, 4096')
        p.ext(self.off(sHF, sT0, 8, O_FH))
        vHA, vHB = vT + 1, vT + 2
        p.ext([f'v_lshrrev_b32 v{vCSA}, 4, v{vL}', f'v_lshlrev_b32 v{vCSA}, 4, v{vCSA}', f'v_add_u32 v{vCSA}, {L_CS1}, v{vCSA}',
               f'v_lshrrev_b32 v{vHA}, 5, v{vL}', f'v_lshlrev_b32 v{vHA}, 10, v{vHA}',
               f'v_bfe_u32 v{vHB}, v{vL}, 4, 1', f'v_lshl_add_u32 v{vHA}, v{vHB}, 9, v{vHA}',
               f'v_and_b32 v{vT+3}, 15, v{vL}', f'v_lshl_add_u32 v{vHA}, v{vT+3}, 4, v{vHA}',
               f'v_lshlrev_b32 v{vHB}, 3, v{vHB}', f'v_lshl_add_u32 v{vHB}, v{vT+3}, 4, v{vHB}',
               f'v_lshrrev_b32 v{vT+3}, 5, v{vL}', f'v_lshl_add_u32 v{vHB}, v{vT+3}, 9, v{vHB}'])
        p(f'v_lshlrev_b32 v{vT}, 7, v{vL}')
        seq = [(t, s) for s in range(14) for t in range(4)] + [(t, s) for s in range(14) for t in range(4, 7)]

        def frag(f):
            base, off = (vL16, f * 1024) if f < 56 else (vA1, (f - 56) * 1024)
            return f'ds_read_b128 {vr(RING + 4*(f % 6))}, v{base} offset:{off}'

        def mf(f, u):
            t, s = seq[f]
            return f'{MF16} {vr(ACC+8*t+4*u)}, {vr(RING+4*(f%6))}, {vr(X+4*(2*s+u))}, {vr(ACC+8*t+4*u) if s else 0}'

        def xl(i):
            return f'buffer_load_dwordx4 {vr(X+4*i)}, v{vL16}, {srd(S_WS)}, s{sXO + i//4} offen offset:{(i%4)*1024} sc1'
        PD = 4
        for f in range(PD):
            p(frag(f))
        self.pad()
        self.vpoll(vL8, sFX, 14)
        self.stamp('C')
        XP = 8
        for i in range(XP):
            p(xl(i))
        mem, pre = {}, {}
        for f in range(98):
            mem[2 * f] = [frag(f + PD)] if f + PD < 98 else []
            if f < 56 and f % 2 == 0 and f // 2 + XP < 28:
                mem[2 * f + 1] = [xl(f // 2 + XP)]
            if 27 <= f < 41 and f % 2 == 1:
                mem[2 * f + 1] = [self.stats_loads(sST, CS)[(f - 27) // 2]]
            if f % 2 == 0:
                tch = vr(RING + 4 * (f % 6)) + ' ' + vr(RING + 4 * ((f + 1) % 6))
                if f < 56 and f % 4 == 0:
                    tch += ' ' + vr(X + 8 * (f // 4), 8)
                pre[2 * f] = [Touch(tch)]
        mem[2 * 41 + 1] = [['s_mov_b32 exec_hi, 0xffffff', f'buffer_load_dword a255, v{vT}, {srd(S_WS)}, s{sH} offen sc1', 's_mov_b64 exec, -1']]
        mfs = [mf(f, u) for f in range(98) for u in range(2)]
        side = self.stats_reduce(CS) + [f'v_mov_b32 v{vRSTD}, v{vMEAN}', 's_nop 0', f'v_permlane16_swap_b32 v{vMEAN}, v{vRSTD}']
        p.ext(sched(mfs[:112], pre, mem, side, 2, start=92))
        self.stamp('p4g1')
        PO = vT + 4

        def epi(tiles, tok):
            L = []
            for t in tiles:
                L.append(f'ds_read_b128 {vr(CS+4*(t%4))}, v{vCSA} offset:{t*64}')
            pairs = [tiles[i:i + 2] for i in range(0, len(tiles), 2)]
            n = 0
            for pr in pairs:
                for u in range(2):
                    po = PO + 4 * (n % 3)
                    n += 1
                    mean = (vMEAN, vRSTD)[u]
                    for k, t in enumerate(pr):
                        a = ACC + 8 * t + 4 * u
                        for r in range(4):
                            L.append(f'v_fma_f32 v{a+r}, v{CS+4*(t%4)+r}, v{mean}, v{a+r}')
                        for r in range(2):
                            L.append(f'v_cvt_pk_bf16_f32 v{po+2*k+r}, v{a+2*r}, v{a+2*r+1}')
                        for r in range(2):
                            L.append(f'v_pk_max_i16 v{po+2*k+r}, v{po+2*k+r}, 0')
                    t = pr[0]
                    so, off = (sH, t * 1024) if t < 4 else (sH + 1, (t - 4) * 1024)
                    if len(pr) == 2:
                        L.append(Ins(f'buffer_store_dwordx4 {vr(po)}, v{vHA}, {srd(S_WS)}, s{so} offen offset:{off+u*256}', tok))
                    else:
                        L.append(Ins(f'buffer_store_dwordx2 {vr(po,2)}, v{vHB}, {srd(S_WS)}, s{so} offen offset:{off+u*256}', tok))
            return L
        pre2 = {i - 112: v for i, v in pre.items() if i >= 112}
        mem2 = {i - 112: v for i, v in mem.items() if i >= 112}
        self.pad()
        p('s_barrier')
        wq = self.wq_dma((0, 1), sXO)
        i = 1
        for x in wq:
            mem2.setdefault(i, []).append(x)
            if is_mem(x):
                i += 4
        p.ext(sched(mfs[112:], pre2, mem2, epi([0, 1, 2, 3], 'hst'), 2, start=0))
        self.stamp('p4g2')
        p.ext(epi([4, 5, 6], 'hst'))
        self.stamp('p4ep')
        self.publish(['hst'], sHF)
        self.pad()
        p('s_barrier')
        self.stamp('p4')

    def p5(self):
        p = self.p
        HR, ACC, CS = 32, 160, 224
        lskip, ljoin, llast = p.newlabel('p5skip'), p.newlabel('p5join'), p.newlabel('p5last')
        p(f's_cmp_ge_u32 s{sM}, 28')
        p(f's_cbranch_scc1 {lskip}')
        sFH, sST, sY = sO, sO + 1, sO + 2
        self.if_layer0(lambda: p.ext(self.w2_loads(12, 28)))
        p(f's_lshl_b32 s{sT0}, s{sRB}, 3')
        p(f's_add_u32 s{sT0}, s{sT0}, s{sW}')
        p.ext(self.off(sFH, sT0, 32, O_FH))
        p.ext(self.yoffs(sY, 28672, O_H))
        for g in range(1, 7):
            for y in range(2):
                p(f's_add_u32 s{sY+2*g+y}, s{sY+y}, {4096*g}')
        p(f's_lshl_b32 s{sT0}, s{sRB}, 1')
        p(f's_add_u32 s{sT0}, s{sT0}, s{sRHO}')
        p.ext(self.off(sST, sT0, 3584, O_ST1))
        p.ext(self.pub_offsets(O_XA + LSTRIDE, O_STA + LSTRIDE, O_FXA + LSTRIDE))
        self.pad()
        self.vpoll(vFLG, sFH, 8)
        self.stamp('D')
        NR = 16

        def ld(ks, y):
            return f'buffer_load_dwordx4 {vr(HR+((ks%NR)*2+y)*4)}, v{vL16}, {srd(S_WS)}, s{sY + 2*(ks//4) + y} offen offset:{(ks%4)*1024} sc1'

        def mf(ks, x):
            y, z = x >> 1, x & 1
            return f'{MF32} {vr(ACC+16*x,16)}, {ar(ks*8+z*4)}, {vr(HR+((ks%NR)*2+y)*4)}, {vr(ACC+16*x,16) if ks else 0}'
        PD = 5
        for ks in range(PD):
            p(ld(ks, 0))
            p(ld(ks, 1))
        TAIL = 14
        mfs, mem = [], {}
        bgl = self.stats_loads(sST, CS)
        for ks in range(28):
            xs = (0, 1, 2, 3) if ks < 28 - TAIL else (1, 2, 3)
            for n, x in enumerate(xs):
                i = len(mfs)
                mfs.append(mf(ks, x))
                if ks + PD < 28:
                    if n < 2:
                        mem[i] = [ld(ks + PD, n)]
                else:
                    mem[i] = []
                    while bgl:
                        y = bgl.pop(0)
                        mem[i].append(y)
                        if is_mem(y):
                            break
        p.ext(sched(mfs, {}, mem, [], 6))
        self.stamp('p5mm')
        sr = self.stats_reduce(CS)
        mem = {}
        for i, x in enumerate(self.reduce_writes(ACC)):
            mem.setdefault(2 + i, []).append(x)
        p.ext(sched([mf(ks, 0) for ks in range(28 - TAIL, 28)], {}, mem, bgl + sr, 5, start=0))
        self.stamp('p5rw')
        self.reduce_finish(ACC, 32)
        self.stamp('p5rd')
        P = 96
        for i in range(8):
            p(f'v_pk_fma_f32 {vr(ACC+2*i,2)}, {vr(ACC+2*i,2)}, {vr(vMEAN,2)}, {vr(vRES+2*i,2)} op_sel:[0,1,0] op_sel_hi:[1,1,1]')
            p(f'v_cvt_pk_bf16_f32 v{P+i}, v{ACC+2*i}, v{ACC+2*i+1}')
        p(f's_cmp_lg_u32 s{sLAYER}, 0')
        p(f's_cbranch_scc1 {llast}')
        self.x_store(P, vL16, (0, 1024))
        p.ext(self.wq_dma((2,)))
        self.publish(['xst'], sXF)
        self.stamp('p5pub')
        p.ext(self.res_unpack(P))
        p.label(ljoin)
        p('s_waitcnt vmcnt(0) lgkmcnt(0)')
        p('s_barrier')
        p(f's_mov_b32 s{sLAYER}, 1')
        p(f's_add_u32 s{sLB}, s{sLB}, {LSTRIDE}')
        p('s_branch L_layer')
        self.tail.append((lskip, [f's_cmp_lg_u32 s{sLAYER}, 0', 's_cbranch_scc1 L_fin'] + self.wq_dma((2,)) + [f's_branch {ljoin}']))
        p.label(llast, reset='all')
        p(f'v_and_b32 v{vT+4}, 31, v{vL}')
        p(f'v_mul_u32_u24 v{vT+4}, 896, v{vT+4}')
        p(f'v_lshrrev_b32 v{vT+5}, 5, v{vL}')
        p(f'v_lshl_add_u32 v{vT+4}, v{vT+5}, 4, v{vT+4}')
        for hf in range(2):
            p(f'v_permlane32_swap_b32 v{P+4*hf}, v{P+4*hf+2}')
            p(f'v_permlane32_swap_b32 v{P+4*hf+1}, v{P+4*hf+3}')
            p(f'buffer_store_dwordx4 {vr(P+4*hf)}, v{vT+4}, {srd(S_OUT)}, s{sQOFF} offen offset:{32*hf}')
        p('s_cmp_lg_u32 s2, %d' % (27 * 8 + 7))
        p('s_cbranch_scc1 L_fin')
        p(f's_mov_b32 s{sT0}, {WS_EPOCH}')
        p.ext(self.flag_sc1(sT0))

    def build(self):
        p = self.p
        self.prologue()
        p.label('L_layer', reset='all')
        for i, ph in enumerate(('p1', 'attn', 'p3', 'p4', 'p5')):
            getattr(self, ph)()
            if self.stop is not None and i + 1 >= self.stop:
                break
        p.label('L_fin')
        self.stamp('end')
        self.stamp_dump()
        p.label('L_end')
        p('s_endpgm')
        if hasattr(self, 'idle3'):
            lab, code, sfl, back = self.idle3
            p.label(lab, reset='all')
            p.ext(code)
            self.vpoll(vL8, sfl, 14, acquire=False)
            p(f'v_lshlrev_b32 v{vT}, 7, v{vL}')
            p(f's_mul_i32 s{sT1}, s{sT0}, 86016')
            p.ext(self.prefetch(vT, sT1, WQT, 86016))
            p(f's_branch {back}')
        for lab, code in self.tail:
            p.label(lab, reset='all')
            p.ext(code)
        p.label('L_codeend')
        self.emit_walker()
        p.insert_waits()
        probs = p.fix_hazards()
        for x in probs:
            print('branch hazard padded', x, file=sys.stderr)
        mx = p.maxregs()
        head = open(os.path.join(os.path.dirname(__file__), '..', 'cdna_kernels', NAME + '.s.ref')).read().split('\n')
        hdr = [l for l in head if l.startswith(';') and '@launch' not in l]
        out = '\n'.join(hdr) + f'\n; @launch grid=(256,1,1) block=(256,1,1) lds={LDS_BYTES}\n'
        out += '.amdgcn_target "amdgcn-amd-amdhsa--gfx950"\n.text\n'
        out += f'.globl {NAME}_kernel\n.p2align 8\n.type {NAME}_kernel,@function\n{NAME}_kernel:\n'
        out += p.text()
        out += '.fill 64, 4, 0xbf800000\n'
        out += f'''.section .rodata,"a"
.p2align 6
.amdhsa_kernel {NAME}_kernel
  .amdhsa_next_free_vgpr 512
  .amdhsa_next_free_sgpr 102
  .amdhsa_accum_offset 256
  .amdhsa_group_segment_fixed_size 0
  .amdhsa_kernarg_size 72
  .amdhsa_user_sgpr_count 2
  .amdhsa_user_sgpr_kernarg_segment_ptr 1
  .amdhsa_system_sgpr_workgroup_id_x 1
  .amdhsa_float_denorm_mode_32 3
.end_amdhsa_kernel
'''
        print('regs', mx, 'instrs', sum(1 for x in p.items if isinstance(x, Ins)), file=sys.stderr)
        return out


if __name__ == '__main__':
    stop = int(sys.argv[2]) if len(sys.argv) > 2 else None
    k = K(stop if stop and stop > 0 else None, dbg=sys.argv[3].split(',') if len(sys.argv) > 3 else None)
    open(sys.argv[1], 'w').write(k.build())
    if k.dbg:
        open(os.path.join(os.path.dirname(sys.argv[1]), 'stamps.txt'), 'w').write(' '.join(k.stamps))
```

```python
import sys, os, math, struct
sys.path.insert(0, os.path.dirname(__file__))
from asmlib import Prog, Ins, Wait, Mark, Label, Touch

NAME = 'interleave_layers__sliding_block__dense_activation_relu__prompt'

WS_EPOCH = 0
WS_PUR = 0x1000
F_WQ = 0x2000
F_W1 = 0x2800
F_W2 = 0x3000
F_WO = 0x4000
WQT = 0x100000
W1T = 0x250000
WOT = 0x3D8000
W2T = 0x448000
TEAM0 = 0x600000
LSTRIDE = 0x230000
STRIDE = 2 * LSTRIDE
O_KV = 0x000000
O_O = 0x080000
O_X1 = 0x0C0000
O_XA = 0x0F8000
O_ST1 = 0x130000
O_STA = 0x138000
O_FKV = 0x140000
O_FO = 0x144000
O_FX1 = 0x144400
O_FXA = 0x144800
O_FH = 0x145000
O_H = 0x150000
WS_BYTES = TEAM0 + 8 * STRIDE

LKV = 100352
L_CSQ = 149504
L_CS1 = L_CSQ + 512
L_PUR = L_CS1 + 512 + 1536
L_CSP = L_CS1 + 512
LDS_BYTES = 163840

S_X, S_WQ, S_WO, S_W1, S_W2, S_OUT, S_WS = 8, 12, 16, 20, 24, 28, 32
S_WSP = 36
sTEAM, sM, sA, sJ, sW, sRB, sCB, sLB = 40, 41, 42, 43, 44, 45, 46, 47
sF, sPURE, sLAYER, sTP = 48, 50, 51, 52
sQOFF = 53
sHI = 54
sPERM, sONES = 56, 57
sRHO, sNU = 58, 59
sT0, sT1, sT2, sT3, sT4, sT5 = 60, 61, 62, 63, 64, 65
sCNT = 66
sTB = 71
sJFL = 67
sXD, sXS, sXF = 68, 69, 70
sPOLL = 72
sO = 80

vL, vL16, vA1, vL8 = 0, 1, 2, 3
vSTA = 4
vFLG = 5
vRW = 6
vX1A = 10
vCSA = 11
vF = 12
vMEAN, vRSTD = 14, 15
vT = 16
vRES = 240

POLL_MAX = 1 << 16
MF32 = 'v_mfma_f32_32x32x16_bf16'
MF16 = 'v_mfma_f32_16x16x32_bf16'


def srd(b):
    return f's[{b}:{b+3}]'


def vr(b, n=4):
    return f'v[{b}:{b+n-1}]' if n > 1 else f'v{b}'


def ar(b, n=4):
    return f'a[{b}:{b+n-1}]'


def f32bits(x):
    return struct.unpack('<I', struct.pack('<f', x))[0]


def is_mem(x):
    if isinstance(x, (list, tuple)):
        return any(is_mem(y) for y in x)
    t = x.text if isinstance(x, Ins) else x if isinstance(x, str) else ''
    return t.startswith('ds_') or t.startswith('buffer_') or t.startswith('global_')


def cost(x):
    if isinstance(x, (list, tuple)):
        return sum(cost(y) for y in x)
    if isinstance(x, (Wait, Touch)):
        return 1
    t = x.text if isinstance(x, Ins) else x
    return 2 if t.startswith('v_exp') or t.startswith('v_rsq') or t.startswith('v_rcp') or t.startswith('v_permlane') else 1


def sched(mfs, pre, mem, side, cap, start=0):
    out = []
    side = list(side)
    for i, m in enumerate(mfs):
        out += pre.get(i, [])
        out.append(m)
        n = 0
        for x in mem.get(i, []):
            out.append(x)
            n += cost(x)
        if pre.get(i + 1):
            n += 1
        valu = False
        if i >= start:
            while side and n + cost(side[0]) <= cap:
                if is_mem(side[0]) and valu:
                    break
                x = side.pop(0)
                if not is_mem(x) and not isinstance(x, (Wait, Touch)):
                    t = x[0] if isinstance(x, (list, tuple)) else x
                    if any((y.text if isinstance(y, Ins) else y).startswith('v_') for y in (x if isinstance(x, (list, tuple)) else [x])):
                        valu = True
                out.append(x)
                n += cost(x)
            if side and n == 0 and cost(side[0]) > cap:
                out.append(side.pop(0))
    return out + side


class K:
    def __init__(self, stop=None, dbg=False):
        self.p = Prog()
        self.stop = stop
        self.dbg = dbg
        self.stamps = []
        self.tail = []
        self.pads = []

    def stamp(self, name):
        if not self.dbg or (name not in self.dbg and name not in ('start', 'end')):
            return
        k = len(self.stamps)
        assert k < 15
        self.stamps.append(name)
        p = self.p
        p('s_memrealtime s[96:97]' if 'RT' in self.dbg else 's_memtime s[96:97]')
        p('s_waitcnt lgkmcnt(0)')
        l1 = p.newlabel('st')
        p(f's_cmp_lg_u32 s{sLAYER}, 0')
        p(f's_cbranch_scc1 {l1}')
        p(f'v_accvgpr_write_b32 a{224+k}, s96')
        p.label(l1)
        p(f'v_accvgpr_write_b32 a{240+k}, s96')

    def stamp_dump(self):
        if not self.dbg:
            return
        p = self.p
        p(f's_lshl_b32 s{sT0}, s2, 2')
        p(f's_add_u32 s{sT0}, s{sT0}, s{sW}')
        p(f's_lshl_b32 s{sT0}, s{sT0}, 7')
        p(f's_add_u32 s{sT0}, s{sT0}, 0x40000')
        p('s_mov_b64 exec, 1')
        for k in range(32):
            p(f'buffer_store_dword a{224+k}, off, {srd(S_WS)}, s{sT0} offset:{4*k}')
        if 'DBG' in self.dbg:
            p('s_cmp_lg_u32 s2, 43')
            p('s_cbranch_scc1 L_end')
            p(f's_cmp_lg_u32 s{sW}, 1')
            p('s_cbranch_scc1 L_end')
            p('s_load_dwordx2 s[96:97], s[0:1], 56')
            p('v_accvgpr_read_b32 v16, a224')
            p('v_mov_b32 v18, 0')
            p('s_waitcnt lgkmcnt(0)')
            n = len(self.stamps)
            f = self.stamps.index('pro') + 1 if 'pro' in self.stamps else 1
            regs = [224 + k for k in range(1, n - 1)] + [240 + k for k in range(f, n)]
            for i, r in enumerate(regs[:16]):
                p(f'v_accvgpr_read_b32 v17, a{r}')
                p('v_sub_u32 v17, v17, v16')
                p(f'global_store_dword v18, v17, s[96:97] offset:{4*i}')
        p('s_mov_b64 exec, -1')

    def dma(self, srdb, voff, sreg, simm, m0, tok, sc='', n=1):
        mr, mi = m0
        L = [f's_add_u32 m0, s{mr}, {mi}' if mr is not None else f's_mov_b32 m0, {mi}',
             f's_add_u32 s{sT5}, s{sreg}, {simm}']
        for k in range(n):
            L.append(Ins(f'buffer_load_dwordx4 v{voff}, {srd(srdb)}, s{sT5} offen offset:{1024*k} {sc} lds', tok))
        return L

    def if_layer0(self, body):
        p = self.p
        l = p.newlabel('l0')
        p(f's_cmp_lg_u32 s{sLAYER}, 0')
        p(f's_cbranch_scc1 {l}')
        p.mark('maybe_begin')
        body()
        p.mark('maybe_end')
        p.label(l)

    def vpoll(self, voff, soff, nl, acquire=True, drained=True):
        p = self.p
        lp, lo = p.newlabel('poll'), p.newlabel('pollout')
        p(f's_mov_b64 exec, {(1 << nl) - 1:#x}')
        p(f's_mov_b32 s{sCNT}, 0')
        p.label(lp)
        p(f'buffer_load_dwordx2 {vr(vT + 14, 2)}, v{voff}, {srd(S_WS)}, s{soff} offen sc1')
        p(f's_add_u32 s{sCNT}, s{sCNT}, 1')
        p(f's_cmp_gt_u32 s{sCNT}, {POLL_MAX}')
        p(f's_cbranch_scc1 {lo}')
        p('s_waitcnt vmcnt(0)')
        p(f'v_cmp_ne_u64 vcc, s[{sF}:{sF+1}], {vr(vT + 14, 2)}')
        p(f's_cbranch_vccnz {lp}')
        p.label(lo)
        p('s_mov_b64 exec, -1')
        if acquire:
            lslow, lback = p.newlabel('acq'), p.newlabel('acqback')
            p(f's_cmp_lg_u32 s{sPURE}, 0')
            p(f's_cbranch_scc0 {lslow}')
            p.label(lback)
            self.tail.append((lslow, ['buffer_inv sc1', 's_waitcnt vmcnt(0)', f's_branch {lback}']))
        if drained:
            p.mark('drained_vm')

    def publish(self, toks, soff):
        p = self.p
        p.wait(*toks)
        lslow, lback = p.newlabel('pubslow'), p.newlabel('pubback')
        p('s_mov_b64 exec, 1')
        p(f's_cmp_lg_u32 s{sPURE}, 0')
        p(f's_cbranch_scc0 {lslow}')
        p(f'buffer_store_dwordx2 {vr(vF, 2)}, off, {srd(S_WS)}, s{soff}')
        p.label(lback)
        p('s_mov_b64 exec, -1')
        self.tail.append((lslow, [
            'buffer_wbl2 sc1', 's_waitcnt vmcnt(0)',
            f'buffer_store_dwordx2 {vr(vF, 2)}, off, {srd(S_WS)}, s{soff} sc1',
            f's_branch {lback}']))

    def flag_sc1(self, soff):
        return ['s_mov_b64 exec, 1', f'buffer_store_dwordx2 {vr(vF,2)}, off, {srd(S_WS)}, s{soff} sc1', 's_mov_b64 exec, -1']

    def stats_loads(self, soff, dst):
        return [f'buffer_load_dwordx2 {vr(dst + 2*i, 2)}, v{vSTA}, {srd(S_WS)}, s{soff} offen offset:{256*i} sc1' for i in range(7)]

    def stats_reduce(self, src):
        L = []
        for i in range(1, 7):
            L.append(f'v_add_f32 v{src}, v{src}, v{src+2*i}')
            L.append(f'v_add_f32 v{src+1}, v{src+1}, v{src+2*i+1}')
        s, q, t0, t1 = src, src + 1, src + 2, src + 3
        return L + [
            f'v_mov_b32 v{t0}, v{s}', f'v_mov_b32 v{t1}, v{q}', 's_nop 0',
            f'v_permlane32_swap_b32 v{s}, v{t0}', f'v_permlane32_swap_b32 v{q}, v{t1}',
            f'v_add_f32 v{s}, v{s}, v{t0}', f'v_add_f32 v{q}, v{q}, v{t1}',
            f'v_mul_f32 v{vMEAN}, {f32bits(-1.0/448):#x}, v{s}',
            f'v_mul_f32 v{q}, {f32bits(1.0/448):#x}, v{q}',
            f'v_fma_f32 v{q}, -v{vMEAN}, v{vMEAN}, v{q}',
            f'v_max_f32 v{q}, 0, v{q}',
            f'v_add_f32 v{q}, {f32bits(1e-5):#x}, v{q}',
            f'v_rsq_f32 v{vRSTD}, v{q}',
        ]

    def off(self, dst, idx_reg, mul, add):
        return [f's_mul_i32 s{dst}, s{idx_reg}, {mul}', f's_add_u32 s{dst}, s{dst}, s{sLB}', f's_add_u32 s{dst}, s{dst}, {add}']

    def xoff(self, dst, idx_reg, mul, add):
        return [f's_add_u32 s{sT3}, s{sLB}, {add}', f's_add_u32 s{sT4}, s{sTB}, {O_XA}', f's_cmp_lg_u32 s{sPURE}, 0',
                f's_cselect_b32 s{sT3}, s{sT4}, s{sT3}', f's_mul_i32 s{dst}, s{idx_reg}, {mul}', f's_add_u32 s{dst}, s{dst}, s{sT3}']

    def roff(self, dst, idx_reg, mul, add):
        return [f's_cmp_lg_u32 s{sPURE}, 0', f's_cselect_b32 s{sT3}, s{sTB}, s{sLB}',
                f's_mul_i32 s{dst}, s{idx_reg}, {mul}', f's_add_u32 s{dst}, s{dst}, s{sT3}', f's_add_u32 s{dst}, s{dst}, {add}']

    def pub_offsets(self, xoff, stoff, foff):
        return [f's_lshl_b32 s{sT0}, s{sRB}, 1', f's_add_u32 s{sT0}, s{sT0}, s{sRHO}',
                f's_lshl_b32 s{sT1}, s{sCB}, 1', f's_add_u32 s{sT1}, s{sT1}, s{sNU}',
                f's_mul_i32 s{sT2}, s{sT0}, 14', f's_add_u32 s{sT2}, s{sT2}, s{sT1}'] + \
            self.xoff(sXD, sT2, 2048, xoff) + self.off(sXS, sT2, 256, stoff) + \
            [f's_lshl_b32 s{sT0}, s{sT0}, 4', f's_add_u32 s{sT0}, s{sT0}, s{sT1}'] + self.off(sXF, sT0, 8, foff)

    def x_store(self, P, va, offs, sc=''):
        p = self.p
        S, Q2, t0, t1 = vT + 6, vT + 7, vT + 8, vT + 9
        for k in range(2):
            p(f'buffer_store_dwordx4 {vr(P+4*k)}, v{va}, {srd(S_WS)}, s{sXD} offen offset:{offs[k]} {sc}', tok='xst')
        p(f'v_mov_b32 v{t0}, s{sONES}')
        p(f'v_dot2_f32_bf16 v{S}, v{P}, v{t0}, 0')
        p(f'v_dot2_f32_bf16 v{Q2}, v{P}, v{P}, 0')
        for i in range(1, 8):
            p(f'v_dot2_f32_bf16 v{S}, v{P+i}, v{t0}, v{S}')
            p(f'v_dot2_f32_bf16 v{Q2}, v{P+i}, v{P+i}, v{Q2}')
        p(f'v_mov_b32 v{t0}, v{S}')
        p(f'v_mov_b32 v{t1}, v{Q2}')
        p(f'v_permlane32_swap_b32 v{S}, v{t0}')
        p(f'v_permlane32_swap_b32 v{Q2}, v{t1}')
        p(f'v_add_f32 v{S}, v{S}, v{t0}')
        p(f'v_add_f32 v{Q2}, v{Q2}, v{t1}')
        p('s_mov_b32 exec_hi, 0')
        p(f'buffer_store_dwordx2 {vr(S,2)}, v{vL8}, {srd(S_WS)}, s{sXS} offen {sc}', tok='xst')
        p('s_mov_b64 exec, -1')

    def res_unpack(self, P):
        L = []
        for q in range(8):
            L.append(f'v_lshlrev_b32 v{vRES+2*q}, 16, v{P+q}')
            L.append(f'v_and_b32 v{vRES+2*q+1}, 0xffff0000, v{P+q}')
        return L

    def prefetch(self, v128, sreg, base, nbytes):
        L = []
        o = 0
        while o < nbytes:
            oo = min(o, nbytes - 8192)
            L += [f's_add_u32 s{sT5}, s{sreg}, {base + oo}', f'buffer_load_dword a255, v{v128}, {srd(S_WS)}, s{sT5} offen sc1']
            o += 8192
        return L

    def wq_dma(self, tiles, dummy=None):
        L = [f's_mul_i32 s{sT0}, s{sJ}, 86016', f's_mul_i32 s{sT1}, s{sW}, 7168',
             f's_add_u32 s{sT0}, s{sT0}, s{sT1}']
        if dummy is not None:
            L += [f's_sub_u32 s{sT2}, s{dummy}, {WQT}', f's_cmp_lg_u32 s{sLAYER}, 0', f's_cselect_b32 s{sT0}, s{sT2}, s{sT0}']
        for tau in tiles:
            for o, n in ((0, 4), (4096, 3)):
                d = self.dma(S_WS, vL16, sT0, WQT + tau * 28672 + o, (sT1, tau * 28672 + o), 'wq', 'sc1', n)
                L += [d[:3]] + d[3:]
        return L

    def w1_dma(self, part):
        sg, sl = sPOLL, sPOLL + 1
        L = []
        if part == 0:
            L += [f's_mul_i32 s{sg}, s{sJ}, 100352', f's_mul_i32 s{sl}, s{sW}, 14336', f's_add_u32 s{sg}, s{sg}, s{sl}']
            groups = [(0, 4), (4096, 4), (8192, 4), (12288, 2)]
            base = 0
        else:
            L += [f's_mul_i32 s{sg}, s{sJ}, 100352', f's_mul_i32 s{sl}, s{sW}, 10240', f's_add_u32 s{sg}, s{sg}, s{sl}']
            groups = [(0, 4), (4096, 4), (8192, 2)]
            base = 57344
        for o, n in groups:
            d = self.dma(S_WS, vL16, sg, W1T + base + o, (sl, base + o), 'w1', 'sc1', n)
            L += [d[:3]] + d[3:]
        if part == 1:
            L += [f's_sub_u32 s{sg}, s{sg}, s{sl}', f's_lshl_b32 s{sl}, s{sNU}, 10', f's_add_u32 s{sg}, s{sg}, s{sl}']
            L.append(self.dma(S_WS, vL16, sg, W1T + 98304, (sl, 98304), 'w1', 'sc1', 1))
        return L

    def w2_loads(self, lo, hi):
        L = [f's_lshl_b32 s{sT0}, s{sCB}, 2', f's_add_u32 s{sT0}, s{sT0}, s{sW}', f's_mul_i32 s{sT0}, s{sT0}, 57344',
             f's_lshl_b32 s{sT1}, s{sNU}, 10', f'v_xor_b32 v{vT+10}, s{sT1}, v{vL16}', f'v_xor_b32 v{vT+11}, 1024, v{vT+10}']
        for ks in range(lo, hi):
            if ks == lo or ks % 2 == 0:
                L.append(f's_add_u32 s{sT1}, s{sT0}, {W2T + (ks//2)*4096}')
            for z in range(2):
                L.append(f'buffer_load_dwordx4 {ar(ks*8+z*4)}, v{vT+10+z}, {srd(S_WS)}, s{sT1} offen offset:{(ks%2)*2048} sc1')
        return L

    def lane_consts(self):
        p = self.p
        t0, t1 = vT + 6, vT + 7
        p(f'v_add_u32 v{vA1}, 57344, v{vL16}')
        p(f'v_and_b32 v{vSTA}, 31, v{vL}')
        p(f'v_lshlrev_b32 v{vSTA}, 3, v{vSTA}')
        p(f'v_lshrrev_b32 v{t0}, 5, v{vL}')
        p(f'v_mul_u32_u24 v{t1}, {7*256}, v{t0}')
        p(f'v_add_u32 v{vSTA}, v{vSTA}, v{t1}')
        p(f'v_lshrrev_b32 v{vFLG}, 2, v{vL}')
        p(f'v_lshlrev_b32 v{vFLG}, 7, v{vFLG}')
        p(f'v_and_b32 v{t1}, 3, v{vL}')
        p(f'v_lshl_add_u32 v{vFLG}, v{t1}, 3, v{vFLG}')
        for x in range(1, 4):
            p(f's_xor_b32 s{sT0}, s{sW}, {x}')
            p(f's_mul_i32 s{sT0}, s{sT0}, 12288')
            p(f's_add_u32 s{sT0}, s{sT0}, {LKV + (x-1)*4096}')
            p(f'v_add_u32 v{vRW+x-1}, s{sT0}, v{vL16}')
        p(f's_mul_i32 s{sT0}, s{sW}, 12288')
        p(f's_add_u32 s{sT0}, s{sT0}, {LKV}')
        p(f'v_add_u32 v{vRW+3}, s{sT0}, v{vL16}')
        p(f'v_bfe_u32 v{vX1A}, v{vL}, 4, 1')
        p(f'v_lshlrev_b32 v{vX1A}, 10, v{vX1A}')
        p(f'v_lshl_add_u32 v{vX1A}, v{t0}, 8, v{vX1A}')
        p(f'v_and_b32 v{t1}, 15, v{vL}')
        p(f'v_lshl_add_u32 v{vX1A}, v{t1}, 4, v{vX1A}')

    def pad(self):
        p = self.p
        k = len(self.pads)
        self.pads.append(f'L_pad{k}')
        p(f's_branch L_padskip{k}')
        p.label(f'L_pad{k}')
        p('s_setpc_b64 s[98:99]')
        p.label(f'L_padskip{k}')

    def emit_walker(self):
        L = []
        labs = [f'L_walk{w}' for w in range(4)]
        for w in range(1, 4):
            L += [Ins(f's_cmp_eq_u32 s{sW}, {w}'), Ins(f's_cbranch_scc1 {labs[w]}')]
        for w in range(4):
            if w:
                L.append(Label(labs[w]))
            for x in self.pads[w::4]:
                L.append(Ins(f's_call_b64 s[98:99], {x}'))
            if w < 3:
                L.append(Ins('s_branch L_walkend'))
        L.append(Label('L_walkend'))
        self.p.items[self.walker_at:self.walker_at] = L

    def prologue(self):
        p = self.p
        t0, t1, t2, t3 = vT, vT + 1, vT + 2, vT + 3
        vDQ, vTQ, vWQ = vT + 10, vT + 11, vT + 12
        sRQ, sLQ = sO + 6 + 16, sO + 7 + 16
        sRQ, sLQ = 76, 77
        p('s_cmp_ge_u32 s2, 256')
        p('s_cbranch_scc1 L_end')
        p(f's_load_dwordx16 s[{sO}:{sO+15}], s[0:1], 0')
        p(f's_load_dwordx2 s[{S_WSP}:{S_WSP+1}], s[0:1], 64')
        p(f's_getpc_b64 s[{sT0}:{sT0+1}]')
        p.label('L_pc')
        p(f'v_lshlrev_b32 v{t2}, 7, v0')
        p(f'v_min_u32 v{t2}, L_codeend-L_pc, v{t2}')
        p(f'global_load_dword a255, v{t2}, s[{sT0}:{sT0+1}]')
        p(f's_mov_b32 s{sLAYER}, 0')
        if os.environ.get('CALIB'):
            p('s_memrealtime s[100:101]')
        self.stamp('start')
        p(f'v_lshrrev_b32 v{vT}, 6, v0')
        p(f'v_and_b32 v{vL}, 63, v0')
        p(f'v_readfirstlane_b32 s{sW}, v{vT}')
        p(f's_and_b32 s{sTEAM}, s2, 7')
        p(f's_lshr_b32 s{sM}, s2, 3')
        p(f's_and_b32 s{sJ}, s{sM}, 15')
        p(f's_mul_i32 s{sRB}, s{sM}, 37')
        p(f's_lshr_b32 s{sRB}, s{sRB}, 8')
        p(f's_mul_i32 s{sT0}, s{sRB}, 7')
        p(f's_sub_u32 s{sCB}, s{sM}, s{sT0}')
        p(f's_lshr_b32 s{sRHO}, s{sW}, 1')
        p(f's_and_b32 s{sNU}, s{sW}, 1')
        p(f's_lshl_b32 s{sT0}, s{sTEAM}, 2')
        p(f's_add_u32 s{sT0}, s{sT0}, s{sRB}')
        p(f's_lshl_b32 s{sT1}, s{sT0}, 1')
        p(f's_add_u32 s{sT1}, s{sT1}, s{sRHO}')
        p(f's_mul_i32 s{sQOFF}, s{sT1}, {32*896}')
        p(f's_lshl_b32 s{sT1}, s{sCB}, 7')
        p(f's_add_u32 s{sQOFF}, s{sQOFF}, s{sT1}')
        p(f's_lshl_b32 s{sT1}, s{sNU}, 6')
        p(f's_add_u32 s{sQOFF}, s{sQOFF}, s{sT1}')
        p(f'v_and_b32 v{t3}, 31, v{vL}')
        p(f'v_mul_u32_u24 v{t3}, 896, v{t3}')
        p(f'v_lshrrev_b32 v{t1}, 5, v{vL}')
        p(f'v_lshl_add_u32 v{t3}, v{t1}, 3, v{t3}')
        p(f'v_lshrrev_b32 v{t0}, 2, v{vL}')
        p(f'v_and_b32 v{t1}, 3, v{vL}')
        p(f'v_mul_u32_u24 v{vDQ}, 2688, v{t0}')
        p(f'v_lshl_add_u32 v{vDQ}, v{t1}, 4, v{vDQ}')
        p(f's_mul_i32 s{sRQ}, s{sW}, {7*16*2688}')
        p(f's_mul_i32 s{sT1}, s{sJ}, 56')
        p(f's_add_u32 s{sRQ}, s{sRQ}, s{sT1}')
        p(f's_mul_i32 s{sLQ}, s{sW}, 7168')
        p(f's_lshl_b32 s{sT2}, s{sM}, 2')
        p(f's_add_u32 s{sT2}, s{sT2}, s{sW}')
        vPK, vPQ = vT + 14, vT + 15
        p(f's_mul_i32 s{sT3}, s{sT2}, 49')
        p(f'v_add_u32 v{t2}, s{sT3}, v{vL}')
        p(f'v_mul_u32_u24 v{vPK}, 74899, v{t2}')
        p(f'v_lshrrev_b32 v{vPK}, 20, v{vPK}')
        p(f'v_mul_u32_u24 v{vPK}, 7, v{vPK}')
        p(f'v_add_u32 v{vPK}, v{vPK}, v{t2}')
        p(f'v_lshlrev_b32 v{vPK}, 7, v{vPK}')
        b = sO

        def mksrd(d, src, n):
            p(f's_mov_b32 s{d}, s{src}')
            p(f's_and_b32 s{d+1}, s{src+1}, 0xffff')
            p(f's_mov_b32 s{d+2}, {n}')
            p(f's_mov_b32 s{d+3}, 0x20000')

        def rawq(tau, i):
            p.ext(self.dma(S_WQ, vDQ, sRQ, (448, 896, 0)[tau] * 2 + i * 16 * 2688, (sLQ, tau * 28672 + i * 1024), f'rq{tau}{i}'))
        mksrd(S_X, b, 1835008)
        mksrd(S_WQ, b + 2, 1204224)
        XR = 96
        for q in range(4):
            p(f'buffer_load_dwordx2 {vr(XR+2*q,2)}, v{t3}, {srd(S_X)}, s{sQOFF} offen offset:{16*q}')
        p('s_mov_b32 exec_hi, 0x1ffff')
        p(f'buffer_load_dword a255, v{vPK}, {srd(S_WQ)}, 0 offen offset:896')
        p('s_mov_b64 exec, -1')
        p(f's_load_dwordx2 s[{sF}:{sF+1}], s[{S_WSP}:{S_WSP+1}], {WS_EPOCH}')
        self.stamp('ka')
        p(f's_mul_i32 s{sT3}, s{sT2}, 25')
        p(f'v_add_u32 v{t2}, s{sT3}, v{vL}')
        p(f'v_mul_u32_u24 v{vPQ}, 149797, v{t2}')
        p(f'v_lshrrev_b32 v{vPQ}, 20, v{vPQ}')
        p(f'v_mul_u32_u24 v{vPQ}, 14, v{vPQ}')
        p(f'v_add_u32 v{vPQ}, v{vPQ}, v{t2}')
        p(f'v_lshlrev_b32 v{vPQ}, 7, v{vPQ}')
        p('s_mov_b64 exec, 0x1ffffff')
        p(f'buffer_load_dword a255, v{vPQ}, {srd(S_WQ)}, 0 offen')
        p('s_mov_b64 exec, -1')
        for (d, src, n) in ((S_WO, b + 4, 401408), (S_W1, b + 8, 1605632),
                            (S_W2, b + 10, 1605632), (S_OUT, b + 12, 1835008), (S_WS, S_WSP, WS_BYTES)):
            mksrd(d, src, n)
        p(f's_lshr_b32 s{sA}, s{sM}, 4')
        p(f's_mul_i32 s{sLB}, s{sTEAM}, {STRIDE}')
        p(f's_add_u32 s{sLB}, s{sLB}, {TEAM0}')
        p(f's_mov_b32 s{sTB}, s{sLB}')
        p(f's_lshl_b32 s{sTP}, s{sA}, 2')
        p(f's_add_u32 s{sTP}, s{sTP}, s{sW}')
        p(f'v_lshlrev_b32 v{vL16}, 4, v{vL}')

        vCSP = 104

        def xform(tau, between=None):
            R = 128 + 32 * (tau % 2)

            def fin(i):
                p(f'ds_write_b128 v{vWQ}, {vr(R+4*i)} offset:{tau*28672+i*1024}')
                for q in range(4):
                    p(f'v_dot2_f32_bf16 v{vCSP+tau}, v{R+4*i+q}, v{vCSP+3}, {f"v{vCSP+tau}" if i or q else 0}')
            for i in range(7):
                p.wait(f'rq{tau}{i}')
                for jj in range(2):
                    p(f'ds_read_b64_tr_b16 {vr(R+4*i+2*jj,2)}, v{vTQ} offset:{tau*28672+i*1024+jj*512}')
                if between:
                    between(i)
                if i >= 1:
                    fin(i - 1)
            fin(6)
        sI, sSTG = sO, sO + 1
        p(f's_lshl_b32 s{sI}, s{sTEAM}, 1')
        p(f's_add_u32 s{sI}, s{sI}, s{sA}')
        p(f's_lshl_b32 s{sSTG}, s{sW}, 13')
        p(f's_add_u32 s{sSTG}, s{sSTG}, {LKV}')
        vD, vTR, vTR8 = vT + 4, vT + 5, vT + 13
        p(f'v_lshlrev_b32 v{t3}, 3, v{t1}')
        p(f'v_lshlrev_b32 v{t1}, 4, v{t1}')
        sFL, sDST, sDST2 = sO + 2, sO + 3, sO + 5
        FR = 32
        p(f'v_bfe_u32 v{t2}, v{vL}, 4, 1')
        p(f'v_lshl_add_u32 v{t2}, v{t2}, 5, v{t3}')
        p(f'v_bfe_u32 v{vTR}, v{vL}, 2, 2')
        p(f'v_lshl_add_u32 v{t2}, v{vTR}, 6, v{t2}')
        p(f'v_lshrrev_b32 v{vTR8}, 5, v{vL}')
        p(f'v_lshl_add_u32 v{vTQ}, v{vTR8}, 8, v{t2}')
        p(f'v_add_u32 v{vTR}, s{sSTG}, v{vTQ}')
        p(f'v_add_u32 v{t2}, s{sSTG}, v{t2}')
        p(f'v_lshl_add_u32 v{vTR8}, v{vTR8}, 9, v{t2}')

        def finish(nfr, offs, pre=()):
            L = list(pre)
            base = None
            for k in range(nfr):
                hi, lo = offs[k] // 4096 * 4096, offs[k] % 4096
                if hi != base:
                    L.append(f's_add_u32 s{sT5}, s{sDST}, {hi}')
                    base = hi
                L.append(f'buffer_store_dwordx4 {vr(FR+4*k)}, v{vL16}, {srd(S_WS)}, s{sT5} offen offset:{lo} sc1')
            return L

        p(f'v_add_u32 v{vTQ}, s{sLQ}, v{vTQ}')
        p(f'v_add_u32 v{vWQ}, s{sLQ}, v{vL16}')
        p(f's_mov_b32 s{sHI}, 0')
        p(f's_mov_b32 s{sHI+1}, -1')
        p(f's_mov_b32 s{sPERM}, 0x07060302')
        p(f's_mov_b32 s{sONES}, 0x3f803f80')
        p(f's_mov_b32 s{sPURE}, 1')
        p(f'v_lshlrev_b32 v{vL8}, 3, v{vL}')
        p.ext(self.pub_offsets(O_XA, O_STA, O_FXA))
        self.lane_consts()
        p(f'v_mov_b32 v{vCSP+3}, s{sONES}')
        p('s_waitcnt lgkmcnt(0)')
        p(f's_add_u32 s{sF}, s{sF}, 1')
        p(f's_addc_u32 s{sF+1}, s{sF+1}, 0')
        p(f'v_mov_b32 v{vF}, s{sF}')
        p(f'v_mov_b32 v{vF+1}, s{sF+1}')
        p(f's_cmp_ge_u32 s{sM}, 28')
        p(f's_cselect_b32 s{sXF}, {WS_PUR + 0x800}, s{sXF}')
        lp0 = p.newlabel('p0skip')
        p(f's_cbranch_scc1 {lp0}')
        p.mark('maybe_begin')
        self.x_store(XR, vL16, (0, 1024), 'sc1')
        p.mark('maybe_end')
        p.label(lp0)
        self.stamp('x0')
        sJOB = sO + 4
        lA = [p.newlabel('jobA') for _ in range(4)]
        p(f's_mov_b32 s{sJOB}, 0')
        p.mark('maybe_begin')
        p(f's_cmp_eq_u32 s{sW}, 1')
        p(f's_cbranch_scc1 {lA[0]}')
        p(f's_cmp_ge_u32 s{sW}, 2')
        p(f's_cbranch_scc1 {lA[1]}')
        p(f's_cmp_ge_u32 s{sI}, 14')
        p(f's_cbranch_scc1 {lA[3]}')
        p(f'v_mul_u32_u24 v{vD}, 2688, v{t0}')
        p(f'v_add_u32 v{vD}, v{vD}, v{t1}')
        p(f's_mul_i32 s{sT0}, s{sI}, {32*2688}')
        p(f's_mul_i32 s{sT1}, s{sJ}, 56')
        p(f's_add_u32 s{sT0}, s{sT0}, s{sT1}')
        for tau in range(3):
            for hb in range(2):
                p.ext(self.dma(S_WQ, vD, sT0, (448, 896, 0)[tau] * 2 + hb * 16 * 2688, (sSTG, tau * 2048 + hb * 1024), 'raw'))
        p(f's_mul_i32 s{sDST}, s{sJ}, 86016')
        p(f's_lshl_b32 s{sT0}, s{sI}, 11')
        p(f's_add_u32 s{sDST}, s{sDST}, s{sT0}')
        p(f's_add_u32 s{sDST}, s{sDST}, {WQT}')
        p(f's_lshl_b32 s{sFL}, s{sJ}, 4')
        p(f's_add_u32 s{sFL}, s{sFL}, s{sI}')
        p(f's_lshl_b32 s{sFL}, s{sFL}, 3')
        p(f's_add_u32 s{sFL}, s{sFL}, {F_WQ}')
        p(f's_mov_b32 s{sJOB}, 1')
        p(f's_branch {lA[3]}')
        p.label(lA[0])
        p(f's_cmp_ge_u32 s{sI}, 14')
        p(f's_cbranch_scc1 {lA[3]}')
        p(f'v_bfe_u32 v{vD}, v{vL}, 1, 3')
        p(f'v_bfe_u32 v{t2}, v{vL}, 4, 1')
        p(f'v_lshl_add_u32 v{vD}, v{t2}, 4, v{vD}')
        p(f'v_bfe_u32 v{t2}, v{vL}, 5, 1')
        p(f'v_lshl_add_u32 v{vD}, v{t2}, 3, v{vD}')
        p(f'v_mul_u32_u24 v{vD}, 3584, v{vD}')
        p(f'v_and_b32 v{t2}, 1, v{vL}')
        p(f'v_lshl_add_u32 v{vD}, v{t2}, 4, v{vD}')
        p(f's_mul_i32 s{sT0}, s{sI}, {32*3584}')
        p(f's_mul_i32 s{sT1}, s{sJ}, 224')
        p(f's_add_u32 s{sT0}, s{sT0}, s{sT1}')
        for t in range(7):
            p.ext(self.dma(S_W1, vD, sT0, t * 32, (sSTG, t * 1024), 'raw'))
        p(f'v_lshl_add_u32 v{vTR}, v{t0}, 5, v{t3}')
        p(f'v_add_u32 v{vTR}, s{sSTG}, v{vTR}')
        p(f's_mul_i32 s{sDST}, s{sJ}, 100352')
        p(f's_add_u32 s{sDST}, s{sDST}, {W1T}')
        p(f's_mul_i32 s{sDST2}, s{sI}, 3072')
        p(f's_add_u32 s{sDST2}, s{sDST2}, s{sDST}')
        p(f's_add_u32 s{sDST2}, s{sDST2}, 57344')
        p(f's_lshl_b32 s{sT0}, s{sI}, 12')
        p(f's_add_u32 s{sDST}, s{sDST}, s{sT0}')
        p(f's_lshl_b32 s{sFL}, s{sJ}, 4')
        p(f's_add_u32 s{sFL}, s{sFL}, s{sI}')
        p(f's_lshl_b32 s{sFL}, s{sFL}, 3')
        p(f's_add_u32 s{sFL}, s{sFL}, {F_W1}')
        p(f's_mov_b32 s{sJOB}, 2')
        p(f's_branch {lA[3]}')
        p.label(lA[1])
        p(f'v_mul_u32_u24 v{vD}, 896, v{t0}')
        p(f'v_add_u32 v{vD}, v{vD}, v{t1}')
        p(f's_cmp_ge_u32 s{sM}, 28')
        p(f's_cbranch_scc1 {lA[2]}')
        sI2, sSL, sHF = sT2, sT3, sT4
        p(f's_lshl_b32 s{sI2}, s{sTEAM}, 2')
        p(f's_add_u32 s{sI2}, s{sI2}, s{sRB}')
        p(f's_lshr_b32 s{sSL}, s{sI2}, 1')
        p(f's_and_b32 s{sHF}, s{sI2}, 1')
        p(f's_mul_i32 s{sT0}, s{sSL}, {112*896}')
        p(f's_mul_i32 s{sT1}, s{sHF}, {64*896}')
        p(f's_add_u32 s{sT0}, s{sT0}, s{sT1}')
        p(f's_lshl_b32 s{sT1}, s{sCB}, 7')
        p(f's_add_u32 s{sT0}, s{sT0}, s{sT1}')
        p(f's_lshl_b32 s{sT1}, s{sNU}, 6')
        p(f's_add_u32 s{sT0}, s{sT0}, s{sT1}')
        for k in range(4):
            p.ext(self.dma(S_W2, vD, sT0, k * 16 * 896, (sSTG, k * 1024), 'raw'))
        p(f's_mul_i32 s{sDST}, s{sCB}, 229376')
        p(f's_mul_i32 s{sT0}, s{sSL}, 14336')
        p(f's_add_u32 s{sDST}, s{sDST}, s{sT0}')
        p(f's_lshl_b32 s{sT0}, s{sHF}, 13')
        p(f's_add_u32 s{sDST}, s{sDST}, s{sT0}')
        p(f's_lshl_b32 s{sT0}, s{sNU}, 10')
        p(f's_add_u32 s{sDST}, s{sDST}, s{sT0}')
        p(f's_add_u32 s{sDST}, s{sDST}, {W2T}')
        p(f's_lshl_b32 s{sFL}, s{sCB}, 5')
        p(f's_add_u32 s{sFL}, s{sFL}, s{sI2}')
        p(f's_lshl_b32 s{sFL}, s{sFL}, 1')
        p(f's_add_u32 s{sFL}, s{sFL}, s{sNU}')
        p(f's_lshl_b32 s{sFL}, s{sFL}, 3')
        p(f's_add_u32 s{sFL}, s{sFL}, {F_W2}')
        p(f's_add_u32 s{sJOB}, s{sHF}, 3')
        p(f's_branch {lA[3]}')
        p.label(lA[2])
        p(f's_cmp_eq_u32 s{sTEAM}, 7')
        p(f's_cbranch_scc1 {lA[3]}')
        p(f's_mul_i32 s{sT0}, s{sCB}, {112*896}')
        p(f's_lshl_b32 s{sT1}, s{sTEAM}, 7')
        p(f's_add_u32 s{sT0}, s{sT0}, s{sT1}')
        p(f's_lshl_b32 s{sT1}, s{sNU}, 6')
        p(f's_add_u32 s{sT0}, s{sT0}, s{sT1}')
        for k in range(8):
            p.ext(self.dma(S_WO, vD, sT0, k * 16 * 896, (sSTG, k * 1024), 'raw'))
        p(f's_lshl_b32 s{sFL}, s{sTEAM}, 2')
        p(f's_add_u32 s{sFL}, s{sFL}, s{sCB}')
        p(f's_lshl_b32 s{sDST}, s{sFL}, 14')
        p(f's_lshl_b32 s{sT0}, s{sNU}, 10')
        p(f's_add_u32 s{sDST}, s{sDST}, s{sT0}')
        p(f's_add_u32 s{sDST}, s{sDST}, {WOT}')
        p(f's_lshl_b32 s{sFL}, s{sFL}, 1')
        p(f's_add_u32 s{sFL}, s{sFL}, s{sNU}')
        p(f's_lshl_b32 s{sFL}, s{sFL}, 3')
        p(f's_add_u32 s{sFL}, s{sFL}, {F_WO}')
        p(f's_mov_b32 s{sJOB}, 5')
        p.mark('maybe_end')
        p.label(lA[3])
        self.stamp('jA')
        for i in range(7):
            rawq(0, i)
        for i in range(7):
            rawq(1, i)
        p('s_waitcnt vmcnt(14)')
        p.ext(self.flag_sc1(sXF))
        self.stamp('rt1')
        p.mark('maybe_begin')
        lB = {k: p.newlabel('jobB') for k in (2, 3, 4, 5, 'join')}
        for k in (2, 3, 4, 5):
            p(f's_cmp_eq_u32 s{sJOB}, {k}')
            p(f's_cbranch_scc1 {lB[k]}')
        p(f's_cmp_eq_u32 s{sJOB}, 0')
        p(f's_cbranch_scc1 {lB["join"]}')
        for tau in range(3):
            for kp in range(2):
                for jj in range(2):
                    p(f'ds_read_b64_tr_b16 {vr(FR+(tau*2+kp)*4+2*jj,2)}, v{vTR} offset:{tau*2048+(16*kp+8*jj)*64}')
        p.ext(finish(6, [tau * 28672 + kp * 1024 for tau in range(3) for kp in range(2)]))
        p(f's_branch {lB["join"]}')
        p.label(lB[2])
        for t in range(7):
            for jj in range(2):
                p(f'ds_read_b64_tr_b16 {vr(FR+t*4+2*jj,2)}, v{vTR} offset:{t*1024+jj*512}')
        p.ext(finish(4, [t * 1024 for t in range(4)]))
        for t in range(4, 7):
            p(f'buffer_store_dwordx4 {vr(FR+4*t)}, v{vL16}, {srd(S_WS)}, s{sDST2} offen offset:{(t-4)*1024} sc1')
        p(f's_branch {lB["join"]}')
        p.label(lB[3])
        for sg in range(4):
            for jj in range(2):
                p(f'ds_read_b64_tr_b16 {vr(FR+sg*4+2*jj,2)}, v{vTR} offset:{(32*(sg//2)+16*jj+8*(sg%2))*64}')
        p.ext(finish(4, [k * 2048 for k in range(4)]))
        p(f's_branch {lB["join"]}')
        p.label(lB[4])
        for sg in range(2):
            for jj in range(2):
                p(f'ds_read_b64_tr_b16 {vr(FR+sg*4+2*jj,2)}, v{vTR} offset:{(16*jj+8*sg)*64}')
        for jj in range(2):
            p(f'ds_read_b64_tr_b16 {vr(FR+8+2*jj,2)}, v{vTR8} offset:{(32+4*jj)*64}')
        p.ext(finish(3, [k * 2048 for k in range(3)]))
        p(f's_branch {lB["join"]}')
        p.label(lB[5])
        for hd in range(4):
            for kp in range(2):
                for jj in range(2):
                    p(f'ds_read_b64_tr_b16 {vr(FR+(hd*2+kp)*4+2*jj,2)}, v{vTR} offset:{(28*hd+16*kp+8*jj)*64}')
        p('s_waitcnt lgkmcnt(0)')
        p('s_mov_b32 exec_lo, 0')
        for hd in range(4):
            p(f'v_mov_b32 v{FR+(hd*2+1)*4+2}, 0')
            p(f'v_mov_b32 v{FR+(hd*2+1)*4+3}, 0')
        p('s_mov_b64 exec, -1')
        p.ext(finish(8, [k * 2048 for k in range(8)]))
        p.mark('maybe_end')
        p.label(lB['join'])
        p(f's_getreg_b32 s{sT0}, hwreg(HW_REG_XCC_ID)')
        p(f's_and_b32 s{sT0}, s{sT0}, 15')
        p(f's_lshl_b32 s{sT0}, s{sT0}, 28')
        p(f's_xor_b32 s{sT0}, s{sT0}, s{sF+1}')
        p(f'v_mov_b32 v{t2}, s{sF}')
        p(f'v_mov_b32 v{t3}, s{sT0}')
        p(f's_lshl_b32 s{sT1}, s{sTEAM}, 8')
        p(f's_lshl_b32 s{sT2}, s{sM}, 3')
        p(f's_add_u32 s{sT1}, s{sT1}, s{sT2}')
        p(f's_add_u32 s{sT1}, s{sT1}, {WS_PUR}')
        p('s_mov_b64 exec, 1')
        p(f'buffer_store_dwordx2 {vr(t2,2)}, off, {srd(S_WS)}, s{sT1} sc1')
        p('s_mov_b64 exec, -1')
        xform(0, lambda i: rawq(2, i))
        self.stamp('xf0')
        xform(1)
        p(f's_cmp_eq_u32 s{sJOB}, 0')
        p(f's_cselect_b32 s{sFL}, {WS_PUR + 0x800}, s{sFL}')
        p('s_waitcnt vmcnt(7)')
        p.ext(self.flag_sc1(sFL))
        self.stamp('xf1')
        self.walker_at = len(p.items)
        p.ext(self.res_unpack(XR))
        xform(2)
        for tau in range(3):
            p(f'v_mov_b32 v{t2}, v{vCSP+tau}')
            p(f'v_permlane32_swap_b32 v{vCSP+tau}, v{t2}')
            p(f'v_add_f32 v{vCSP+tau}, v{vCSP+tau}, v{t2}')
        p(f'v_and_b32 v{t2}, 31, v{vL}')
        p(f'v_lshlrev_b32 v{t2}, 2, v{t2}')
        p(f's_mul_i32 s{sT0}, s{sW}, 384')
        p(f's_add_u32 s{sT0}, s{sT0}, {L_CSP}')
        p(f'v_add_u32 v{t3}, s{sT0}, v{t2}')
        for tau in range(3):
            p(f'ds_write_b32 v{t3}, v{vCSP+tau} offset:{tau*128}')
        p('s_waitcnt vmcnt(0) lgkmcnt(0)')
        p('s_barrier')
        self.stamp('bar')
        p(f'v_add_u32 v{t3}, {L_CSP}, v{t2}')
        for tau in range(3):
            for w in range(4):
                p(f'ds_read_b32 v{108+4*tau+w}, v{t3} offset:{w*384+tau*128}')
        p(f'v_and_b32 v{t2}, 31, v{vL}')
        p(f'v_lshlrev_b32 v{t2}, 2, v{t2}')
        p(f'v_add_u32 v{t3}, {L_CSQ}, v{t2}')
        for tau in range(3):
            r = 108 + 4 * tau
            p(f'v_add_f32 v{r}, v{r}, v{r+1}')
            p(f'v_add_f32 v{r+2}, v{r+2}, v{r+3}')
            p(f'v_add_f32 v{r}, v{r}, v{r+2}')
            p(f'ds_write_b32 v{t3}, v{r} offset:{tau*128}')
        p('s_waitcnt lgkmcnt(0)')
        self.stamp('pro')

    def p1(self):
        p = self.p
        X, ACC, RING, CS = 32, 144, 192, 224
        accK, accV, accQ = ACC, ACC + 16, ACC + 32
        PK, PV = vT, vT + 8
        sXO, sST, sFX, sKV, sKF = sO, sO + 7, sO + 8, sO + 9, sO + 10
        p.ext(self.xoff(sXO, sTP, 28672, O_XA))
        for g in range(1, 7):
            p(f's_add_u32 s{sXO+g}, s{sXO}, {4096*g}')
        p.ext(self.off(sST, sTP, 3584, O_STA))
        p.ext(self.off(sFX, sTP, 128, O_FXA))
        p(f's_lshl_b32 s{sT0}, s{sJ}, 3')
        p(f's_add_u32 s{sT0}, s{sT0}, s{sTP}')
        p.ext(self.off(sKV, sT0, 4096, O_KV))
        p.ext(self.off(sKF, sT0, 128, O_FKV))
        p(f'v_lshrrev_b32 v{vCSA}, 5, v{vL}')
        p(f'v_lshlrev_b32 v{vCSA}, 4, v{vCSA}')
        p(f'v_add_u32 v{vCSA}, {L_CSQ}, v{vCSA}')

        def frag(f):
            if f < 56:
                base, off = vL16, (f % 2) * 28672 + (f // 2) * 1024
            else:
                base, off = vA1, (f - 56) * 1024
            return f'ds_read_b128 {vr(RING + 4*(f % 8))}, v{base} offset:{off}'

        def mf(f):
            acc, s = ((accK, accV)[f % 2], f // 2) if f < 56 else (accQ, f - 56)
            return f'{MF32} {vr(acc,16)}, {vr(RING+4*(f%8))}, {vr(X+4*s)}, {vr(acc,16) if s else 0}'

        def xl(s):
            return f'buffer_load_dwordx4 {vr(X+4*s)}, v{vL16}, {srd(S_WS)}, s{sXO + s//4} offen offset:{(s%4)*1024} sc1'
        self.stamp('p5')
        self.pad()
        self.vpoll(vL8, sFX, 14)
        self.stamp('E')
        XP = 8
        for s in range(XP):
            p(xl(s))

        PD = 6
        for f in range(PD):
            p(frag(f))
        mem, pre = {}, {}
        for f in range(84):
            mem[f] = []
            if f + PD < 84:
                mem[f].append(frag(f + PD))
            if f < 56 and f % 2 == 0 and f // 2 + XP < 28:
                mem[f].append(xl(f // 2 + XP))
            if 33 <= f < 47 and f % 2 == 1:
                mem[f].append(self.stats_loads(sST, CS)[(f - 33) // 2])
            if f % 2 == 0:
                pre[f] = [Touch(vr(RING + 4 * (f % 8)) + ' ' + vr(RING + 4 * ((f + 1) % 8)) + (' ' + vr(X + 4 * (f // 2)) if f < 56 else ''))]

        def cs_reads(tau, dst):
            return [f'ds_read_b128 {vr(dst+4*q)}, v{vCSA} offset:{tau*128 + 32*q}' for q in range(4)]
        p.ext(sched([mf(f) for f in range(56)], pre, mem, cs_reads(1, accQ) + cs_reads(0, PK), 5, start=40))
        p.ext(self.stats_reduce(CS))
        self.stamp('kv')

        def epi(acc, cs, P):
            L = []
            for r in range(0, 16, 2):
                L.append(f'v_pk_fma_f32 {vr(acc+r,2)}, {vr(cs+r,2)}, {vr(vMEAN,2)}, {vr(acc+r,2)} op_sel:[0,0,0] op_sel_hi:[1,0,1]')
            for r in range(0, 16, 2):
                L.append(f'v_pk_mul_f32 {vr(acc+r,2)}, {vr(acc+r,2)}, {vr(vMEAN,2)} op_sel:[0,1] op_sel_hi:[1,1]')
                L.append(f'v_cvt_pk_bf16_f32 v{P+r//2}, v{acc+r}, v{acc+r+1}')
            return L

        def pad(P, c6, c7):
            return ['s_mov_b32 exec_lo, 0', f'v_mov_b32 v{P+6}, {c6:#x}', f'v_mov_b32 v{P+7}, {c7:#x}', 's_mov_b64 exec, -1']

        def st(P, o):
            return [Ins(f'buffer_store_dwordx4 {vr(P+4*k)}, v{vL16}, {srd(S_WS)}, s{sKV} offen offset:{o+1024*k} sc1', 'kvst') for k in range(2)]
        t0, t1 = CS, CS + 1
        p.ext(epi(accK, PK, PK) + pad(PK, 0x3f803f80, 0x3f80) + st(PK, 0))
        p.ext(epi(accV, accQ, PV) + pad(PV, 0x3f80, 0) + st(PV, 2048))
        self.stamp('kvs')
        side = [f's_lshl_b32 s{sT0}, s{sW}, 12', f's_add_u32 s{sT0}, s{sT0}, {LKV + 8*4096}',
                f'v_add_u32 v{t0}, s{sT0}, v{vL16}',
                f'ds_write_b128 v{t0}, {vr(PK)}', f'ds_write_b128 v{t0}, {vr(PK+4)} offset:1024',
                f'v_and_b32 v{t1}, 31, v{vL}', f'v_lshlrev_b32 v{t1}, 6, v{t1}', f'v_lshrrev_b32 v{t0}, 5, v{vL}',
                f'v_lshl_add_u32 v{t1}, v{t0}, 4, v{t1}', f'v_add_u32 v{t0}, s{sT0}, v{t1}',
                f'ds_write_b128 v{t0}, {vr(PV)} offset:2048', f'ds_write_b128 v{t0}, {vr(PV+4)} offset:{2048+32}',
                f'v_mul_f32 v{vRSTD}, {f32bits(28 ** -0.5 * math.log2(math.e)):#x}, v{vRSTD}'] + cs_reads(2, CS)
        pre2 = {f - 56: v for f, v in pre.items() if f >= 56}
        mem2 = {f - 56: v for f, v in mem.items() if f >= 56}
        p.ext(sched([mf(f) for f in range(56, 84)], pre2, mem2, side, 4, start=0))
        p.wait('kvst')
        p.ext(self.flag_sc1(sKF))
        self.stamp('q')
        QF = 200
        p.ext(epi(accQ, CS, QF))
        p.ext(pad(QF, 0, 0x3f800000))
        self.pad()
        p('s_barrier')
        self.stamp('p1')

    def attn(self):
        p = self.p
        KF, ST, MW, MD, OA, QF, PB, VF = 32, 104, 152, 168, 184, 200, 208, 224
        t0, t1 = 104, 105

        NK = 2
        sKD, sKL, sKFl, sNULL = sO + 8, sO + 11, sPOLL + 6, sT4
        sKFl = [sO + 14, sO + 15, sT3]
        p(f's_mov_b32 s{sNULL}, 0')
        for k in range(NK):
            p(f's_lshl_b32 s{sT0}, s{sW}, 1')
            p(f's_add_u32 s{sT0}, s{sT0}, {k}')
            p(f's_lshl_b32 s{sKL+k}, s{sT0}, 12')
            p(f's_add_u32 s{sKL+k}, s{sKL+k}, {LKV}')
            p(f's_lshl_b32 s{sT1}, s{sA}, 2')
            p(f's_add_u32 s{sT0}, s{sT0}, s{sT1}')
            p(f's_cmp_lt_u32 s{sT0}, 8')
            p(f's_cselect_b32 s{sT1}, {STRIDE}, 0')
            p(f's_sub_u32 s{sT1}, s{sLB}, s{sT1}')
            p(f's_and_b32 s{sT0}, s{sT0}, 7')
            p(f's_cmp_lt_i32 s{sT1}, {TEAM0}')
            p(f's_cselect_b32 s{sT2}, {1 << k}, 0')
            p(f's_cselect_b32 s{sT1}, s{sLB}, s{sT1}')
            p(f's_cselect_b32 s{sT0}, s{sTP}, s{sT0}')
            p(f's_or_b32 s{sNULL}, s{sNULL}, s{sT2}')
            p(f's_lshl_b32 s{sT2}, s{sJ}, 3')
            p(f's_add_u32 s{sT0}, s{sT0}, s{sT2}')
            p(f's_lshl_b32 s{sKD+k}, s{sT0}, 12')
            p(f's_add_u32 s{sKD+k}, s{sKD+k}, s{sT1}')
            p(f's_lshl_b32 s{sT0}, s{sT0}, 7')
            p(f's_add_u32 s{sT0}, s{sT0}, s{sT1}')
            p(f's_add_u32 s{sKFl[k]}, s{sT0}, {O_FKV}')
        p(f'v_bfe_u32 v{t0}, v{vL}, 1, 1')
        p(f'v_lshlrev_b32 v{t0}, 10, v{t0}')
        p(f'v_and_b32 v{t1}, 1, v{vL}')
        p(f'v_lshl_add_u32 v{t0}, v{t1}, 9, v{t0}')
        p(f'v_lshrrev_b32 v{t1}, 2, v{vL}')
        p(f'v_lshl_add_u32 v{t0}, v{t1}, 4, v{t0}')
        lp, lo = p.newlabel('kvpoll'), p.newlabel('kvpollout')
        self.stamp('w1')
        p('s_waitcnt lgkmcnt(0)')
        p(f's_mov_b32 s{sCNT}, 0')
        p.label(lp)
        for k in range(NK):
            p(f's_load_dwordx2 s[{sPOLL+2*k}:{sPOLL+2*k+1}], s[{S_WSP}:{S_WSP+1}], s{sKFl[k]} glc')
        p(f's_add_u32 s{sCNT}, s{sCNT}, 1')
        p(f's_cmp_gt_u32 s{sCNT}, {POLL_MAX}')
        p(f's_cbranch_scc1 {lo}')
        p('s_waitcnt lgkmcnt(0)')
        for k in range(NK):
            p(f's_cmp_eq_u64 s[{sPOLL+2*k}:{sPOLL+2*k+1}], s[{sF}:{sF+1}]')
            p(f's_cbranch_scc0 {lp}')
        p.label(lo)
        self.stamp('kvf')
        for k in range(NK):
            lnull, lb = p.newlabel('null'), p.newlabel('nullback')
            p(f's_bitcmp1_b32 s{sNULL}, {k}')
            p(f's_cbranch_scc1 {lnull}')
            p(f's_mov_b32 m0, s{sKL+k}')
            p(f's_sub_u32 s{sT5}, s{sKD+k}, 768')
            p(f'buffer_load_dwordx4 v{vL16}, {srd(S_WS)}, s{sKD+k} offen sc1 lds')
            p(f'buffer_load_dwordx4 v{vL16}, {srd(S_WS)}, s{sKD+k} offen offset:1024 sc1 lds')
            p(f'buffer_load_dwordx4 v{t0}, {srd(S_WS)}, s{sKD+k} offen offset:2048 sc1 lds')
            p(f'buffer_load_dwordx4 v{t0}, {srd(S_WS)}, s{sT5} offen offset:3072 sc1 lds')
            p.label(lb)
            self.tail.append((lnull, [
                f'v_add_u32 v{t1}, s{sKL+k}, v{vL16}',
                'v_mov_b32 v108, 0', 'v_mov_b32 v109, 0', 'v_mov_b32 v110, 0', 'v_mov_b32 v111, 0'] +
                [f'ds_write_b128 v{t1}, v[108:111] offset:{o}' for o in (0, 2048, 3072)] +
                ['s_mov_b32 exec_lo, 0', 'v_mov_b32 v111, 0xf1490000', 's_mov_b64 exec, -1',
                 f'ds_write_b128 v{t1}, v[108:111] offset:1024', f's_branch {lb}']))
        t2, t3 = 106, 107
        p(f'v_and_b32 v{t2}, 31, v{vL}')
        p(f'v_lshrrev_b32 v{t3}, 5, v{vL}')
        p(f'v_lshlrev_b32 v{t3}, 2, v{t3}')
        p(f'v_sub_u32 v{t2}, v{t2}, v{t3}')
        p(f'v_mov_b32 v{t3}, {f32bits(-1e30):#x}')
        for r in range(0, 16, 2):
            k0, k1 = 8 * (r // 4) + r % 4, 8 * (r // 4) + r % 4 + 1
            p(f'v_cmp_le_i32 vcc, {k0}, v{t2}')
            p(f'v_cmp_le_i32 s[{sPOLL}:{sPOLL+1}], {k1}, v{t2}')
            p('s_nop 0')
            p(f'v_cndmask_b32_e64 v{MD+r}, v{t3}, 0, vcc')
            p(f'v_cndmask_b32_e64 v{MD+r+1}, v{t3}, 0, s[{sPOLL}:{sPOLL+1}]')
            p(f'v_cndmask_b32_e64 v{MW+r}, 0, v{t3}, vcc')
            p(f'v_cndmask_b32_e64 v{MW+r+1}, 0, v{t3}, s[{sPOLL}:{sPOLL+1}]')
        vKA, vVA = vT, vT + 1
        p(f's_lshl_b32 s{sT0}, s{sW}, 12')
        p(f's_add_u32 s{sT0}, s{sT0}, {LKV}')
        p(f'v_add_u32 v{vKA}, s{sT0}, v{vL16}')
        p(f'v_lshrrev_b32 v{t2}, 5, v{vL}')
        p(f'v_bfe_u32 v{t3}, v{vL}, 2, 2')
        p(f'v_lshl_add_u32 v{t2}, v{t2}, 2, v{t3}')
        p(f'v_lshlrev_b32 v{vVA}, 6, v{t2}')
        p(f'v_bfe_u32 v{t2}, v{vL}, 4, 1')
        p(f'v_lshl_add_u32 v{vVA}, v{t2}, 5, v{vVA}')
        p(f'v_and_b32 v{t2}, 1, v{vL}')
        p(f'v_lshl_add_u32 v{vVA}, v{t2}, 4, v{vVA}')
        p(f'v_bfe_u32 v{t2}, v{vL}, 1, 1')
        p(f'v_lshl_add_u32 v{vVA}, v{t2}, 3, v{vVA}')
        p(f'v_add_u32 v{vVA}, s{sT0}, v{vVA}')
        sOD, sOF, sWO = sO, sO + 1, sO + 2
        p(f's_lshl_b32 s{sT0}, s{sTP}, 4')
        p(f's_add_u32 s{sT0}, s{sT0}, s{sJ}')
        p.ext(self.roff(sOD, sT0, 2048, O_O))
        p.ext(self.off(sOF, sT0, 8, O_FO))
        p(f's_lshl_b32 s{sWO}, s{sCB}, 2')
        p(f's_add_u32 s{sWO}, s{sWO}, s{sW}')
        p(f's_lshl_b32 s{sWO}, s{sWO}, 14')
        p(f's_add_u32 s{sWO}, s{sWO}, {WOT}')
        for g in range(1, 4):
            p(f's_add_u32 s{sWO+g}, s{sWO}, {4096*g}')
        vPT = vT + 12
        p(f'v_lshlrev_b32 v{vPT}, 7, v{vL}')
        p(f'v_add_u32 v{vPT}, s{sOD}, v{vPT}')
        p(f's_lshl_b32 s{sT0}, s{sTP}, 7')
        p(f's_lshl_b32 s{sT1}, s{sRB}, 8')
        p(f's_lshl_b32 s{sT2}, s{sRHO}, 7')
        p(f's_add_u32 s{sT2}, s{sT2}, s{sT1}')
        p(f's_mul_i32 s{sT3}, s{sT2}, 28')
        p(f's_lshl_b32 s{sT4}, s{sCB}, 9')
        p(f's_add_u32 s{sT3}, s{sT3}, s{sT4}')
        p(f's_lshl_b32 s{sT4}, s{sNU}, 8')
        p(f's_add_u32 s{sT3}, s{sT3}, s{sT4}')
        for lane, (r, c) in enumerate([(sT0, O_FO), (sT1, O_FO), (sT1, O_FO + 128), (sT0, O_FX1), (sT2, O_FX1),
                                       (sT3, O_ST1), (sT3, O_ST1 + 128), (sT0, O_FH), (sT1, O_FH), (sT1, O_FH + 128),
                                       (sT3, LSTRIDE + O_STA), (sT3, LSTRIDE + O_STA + 128), (sT2, LSTRIDE + O_FXA),
                                       (sT0, LSTRIDE + O_FXA)]):
            p(f's_add_u32 s{sT4}, s{r}, {c}')
            p(f's_add_u32 s{sT4}, s{sT4}, s{sLB}')
            p(f'v_writelane_b32 v{vPT}, s{sT4}, {16 + lane}')
        p(f'v_cmp_lt_u32 vcc, 29, v{vL}')
        p(f'v_mov_b32 v{t2}, s{sT4}')
        p(f'v_cndmask_b32 v{vPT}, v{vPT}, v{t2}, vcc')
        vZ = vT + 8
        p(f's_lshl_b32 s{sT0}, s{sNU}, 10')
        p(f'v_xor_b32 v{vZ}, s{sT0}, v{vL16}')
        p(f'v_xor_b32 v{vZ+1}, 1024, v{vZ}')

        def first():
            l0 = p.newlabel('first')
            p(f's_cmp_lg_u32 s{sW}, 0')
            p(f's_cbranch_scc1 {l0}')
            p(f's_lshl_b32 s{sT0}, s{sJ}, 7')
            p(f's_add_u32 s{sT0}, s{sT0}, {F_W1}')
            p(f's_lshl_b32 s{sT2}, s{sCB}, 6')
            p(f's_add_u32 s{sT2}, s{sT2}, {F_WO - 14*8}')
            p(f's_lshl_b32 s{sT3}, s{sTEAM}, 8')
            p(f's_add_u32 s{sT3}, s{sT3}, {WS_PUR - 32*8}')
            p(f'v_add_u32 v{t2}, s{sT0}, v{vL8}')
            p(f'v_min_u32 v{t3}, {21*8}, v{vL8}')
            p(f'v_add_u32 v{t3}, s{sT2}, v{t3}')
            p(f'v_cmp_le_u32 vcc, 14, v{vL}')
            p(f'v_cndmask_b32 v{t2}, v{t2}, v{t3}, vcc')
            p(f'v_add_u32 v{t3}, s{sT3}, v{vL8}')
            p(f'v_cmp_le_u32 vcc, 32, v{vL}')
            p(f'v_cndmask_b32 v{t2}, v{t2}, v{t3}, vcc')
            lp, lo, ls = p.newlabel('pur'), p.newlabel('purout'), p.newlabel('pursleep')
            p(f's_mov_b32 s{sCNT}, 0')
            p.label(lp)
            p(f'buffer_load_dwordx2 {vr(108,2)}, v{t2}, {srd(S_WS)}, 0 offen sc1')
            p(f's_add_u32 s{sCNT}, s{sCNT}, 1')
            p(f's_cmp_gt_u32 s{sCNT}, {POLL_MAX}')
            p(f's_cbranch_scc1 {lo}')
            p('s_waitcnt vmcnt(0)')
            p(f'v_xor_b32 v109, s{sF+1}, v109')
            p(f'v_xor_b32 v108, s{sF}, v108')
            p(f'v_and_b32 v110, 0x0fffffff, v109')
            p(f'v_or_b32 v108, v108, v110')
            p(f'v_cmp_ne_u32 vcc, 0, v108')
            p(f's_cbranch_vccnz {ls}')
            p(f'v_readlane_b32 s{sT1}, v109, 32')
            p(f'v_cmp_ne_u32 vcc, s{sT1}, v109')
            p(f's_cmp_eq_u32 vcc_hi, 0')
            p(f's_cselect_b32 s{sT1}, {0 if os.environ.get("FORCE_IMPURE") else 1}, 0')
            p(f'v_mov_b32 v108, s{sT1}')
            p(f'v_mov_b32 v109, {L_PUR}')
            p('ds_write_b32 v109, v108')
            p.label(lo)
            p.label(l0)
            self.tail.append((ls, ['s_sleep 8', f's_branch {lp}']))
        self.if_layer0(first)
        self.pad()
        p('s_waitcnt vmcnt(0) lgkmcnt(0)')
        self.stamp('kvd')
        p('s_barrier')
        self.stamp('A')

        def getpure():
            p(f'v_mov_b32 v{t0}, {L_PUR}')
            p(f'ds_read_b32 v{t0}, v{t0}')
            p(f'v_readfirstlane_b32 s{sPURE}, v{t0}')
        self.if_layer0(getpure)
        p(f'v_lshlrev_b32 v{t0}, 7, v{vL}')
        p(f's_lshl_b32 s{sT0}, s{sCB}, 2')
        p(f's_add_u32 s{sT0}, s{sT0}, s{sRB}')
        p(f's_lshl_b32 s{sT1}, s{sT0}, 14')
        p(f's_lshl_b32 s{sT2}, s{sW}, 12')
        p(f's_add_u32 s{sT1}, s{sT1}, s{sT2}')
        p(f's_add_u32 s{sT1}, s{sT1}, {WOT}')
        p('s_mov_b32 exec_hi, 0')
        p(f'buffer_load_dword a255, v{t0}, {srd(S_WS)}, s{sT1} offen sc1')
        p('s_mov_b64 exec, -1')
        p(f'buffer_load_dword a255, v{vPT}, {srd(S_WS)}, 0 offen sc1')
        bg = self.w1_dma(0)

        def kread(t):
            return [f'ds_read_b128 {vr(KF+8*t+4*k)}, v{vKA} offset:{t*4096+k*1024}' for k in range(2)]

        def qk(t):
            s = ST + 16 * (t % 3)
            c = vr(MW, 16) if t == 0 else vr(MD, 16) if t == 8 else '0'
            return [f'{MF32} {vr(s,16)}, {vr(KF+8*t)}, {vr(QF)}, {c}',
                    f'{MF32} {vr(s,16)}, {vr(KF+8*t+4)}, {vr(QF+4)}, {vr(s,16)}']
        vM, vM2 = vT + 2, vT + 3

        def mx(t):
            s = ST + 16 * (t % 3)
            L = []
            for i in range(8):
                d = vM if i % 2 == 0 else vM2
                if t == 0 and i < 2:
                    L.append(f'v_max_f32 v{d}, v{s+2*i}, v{s+2*i+1}')
                else:
                    L.append(f'v_max3_f32 v{d}, v{s+2*i}, v{s+2*i+1}, v{d}')
            return L

        def vread(t):
            d = VF + 8 * (t % 2)
            return [f'ds_read_b64_tr_b16 {vr(d+4*kv+2*jj,2)}, v{vVA} offset:{t*4096+2048+(16*kv+8*jj)*64}'
                    for kv in range(2) for jj in range(2)]
        def popbg():
            L = []
            while bg:
                x = bg.pop(0)
                L.append(x)
                if is_mem(x):
                    break
            return L
        for t in range(4):
            p.ext(kread(t))
        q = qk(0)
        p.ext([q[0]] + kread(4) + [q[1]] + kread(5))
        q = qk(1)
        p.ext([q[0]] + kread(6) + [q[1]] + kread(7))
        for t in range(9):
            m = mx(t)
            if t + 2 < 9:
                q = qk(t + 2)
                extra = kread(8) if t == 0 else vread(0)[:2] if t == 5 else vread(0)[2:] if t == 6 else []
                if t % 2 == 1:
                    extra = extra + popbg()
                p.ext([q[0]] + extra + m[:4] + [q[1]] + m[4:])
            else:
                p.ext(m)
        self.stamp('a1')
        a, b2, r1 = vT + 4, vT + 5, vT + 6
        p(f'v_max_f32 v{vM}, v{vM}, v{vM2}')
        p(f'v_mov_b32 v{a}, v{vM}')
        p(f'v_permlane32_swap_b32 v{vM}, v{a}')
        p(f'v_max_f32 v{vM}, v{vM}, v{a}')
        p(f'v_xor_b32 v{vM}, 0x80000000, v{vM}')
        p(f'v_and_b32 v{a}, 0xffff0000, v{vM}')
        p(f'v_sub_f32 v{r1}, v{vM}, v{a}')
        p(f'v_and_b32 v{a}, 0xffff0000, v{r1}')
        p(f'v_sub_f32 v{b2}, v{r1}, v{a}')
        p('s_mov_b32 exec_lo, 0')
        p(f'v_perm_b32 v{QF+6}, v{r1}, v{vM}, s{sPERM}')
        p(f'v_perm_b32 v{QF+7}, 1.0, v{b2}, s{sPERM}')
        p('s_mov_b64 exec, -1')

        def ex(t):
            s = ST + 16 * (t % 3)
            pb = PB + 8 * (t % 2)
            L = []
            for i in range(8):
                L.append(f'v_exp_f32 v{s+2*i}, v{s+2*i}')
                L.append(f'v_exp_f32 v{s+2*i+1}, v{s+2*i+1}')
                if i:
                    L.append(f'v_cvt_pk_bf16_f32 v{pb+i-1}, v{s+2*i-2}, v{s+2*i-1}')
            L.append(f'v_cvt_pk_bf16_f32 v{pb+7}, v{s+14}, v{s+15}')
            return L

        def pv(t):
            d = VF + 8 * (t % 2)
            pb = PB + 8 * (t % 2)
            return [f'{MF32} {vr(OA,16)}, {vr(d)}, {vr(pb)}, {vr(OA,16) if t else 0}',
                    f'{MF32} {vr(OA,16)}, {vr(d+4)}, {vr(pb+4)}, {vr(OA,16)}']

        self.pad()

        def wol(i):
            ks, z = i // 2, i % 2
            return f'buffer_load_dwordx4 {vr(32+4*i)}, v{vZ+z}, {srd(S_WS)}, s{sWO + ks//2} offen offset:{(ks%2)*2048} sc1'
        p.ext(qk(0))
        p.ext(qk(1))
        for t in range(9):
            e = ex(t)
            mf = (pv(t - 1) if t else []) + (qk(t + 2) if t + 2 < 9 else [])
            out = []
            pos = [2, 7, 12, 17]
            for i, x in enumerate(e):
                out.append(x)
                if i in pos and pos.index(i) < len(mf):
                    k = pos.index(i)
                    out.append(mf[k])
                    if t + 1 < 9:
                        if t == 0:
                            out += vread(1)[2 * k:2 * k + 2]
                        elif k in (1, 2):
                            out += vread(t + 1)[2 * (k - 1):2 * (k - 1) + 2]
                        elif t == 7 and k == 1:
                            pass
                    if t < 6 and k in (0, 3) or t == 0:
                        out += popbg()
                    if t >= 7:
                        out += [wol(8 * (t - 7) + 4 * k + q) for q in range(4)]
            if t == 7:
                out = out[:-3] + vread(8)[2:] + out[-3:]
            p.ext(out)
        assert not bg
        p.ext(pv(8))
        self.stamp('a2')
        p(f'v_mov_b32 v{a}, v{OA+12}')
        p(f'v_mov_b32 v{b2}, v{OA+12}')
        p(f'v_permlane32_swap_b32 v{a}, v{b2}')
        p(f'v_rcp_f32 v{b2}, v{b2}')
        for i in range(8):
            p(f'v_pk_mul_f32 {vr(OA+2*i,2)}, {vr(OA+2*i,2)}, {vr(a,2)} op_sel:[0,1] op_sel_hi:[1,1]')
            p(f'v_cvt_pk_bf16_f32 v{PB+i}, v{OA+2*i}, v{OA+2*i+1}')
            if i % 4 == 3:
                p(f'buffer_store_dwordx4 {vr(PB+i-3)}, v{vL16}, {srd(S_WS)}, s{sOD} offen offset:{(i//4)*1024}', tok='ost')
        self.publish(['ost'], sOF)
        self.stamp('att')

    def reduce_writes(self, ACC):
        return [Ins(f'ds_write_b128 v{vRW+x-1}, {vr(ACC+16*x+4*c)} offset:{c*1024}', 'rw') for x in range(1, 4) for c in range(4)]

    def reduce_finish(self, ACC, TMP):
        p = self.p
        p.wait('rw')
        self.pad()
        p('s_barrier')
        for c in range(4):
            for x in range(3):
                p(f'ds_read_b128 {vr(TMP+16*x+4*c)}, v{vRW+3} offset:{x*4096+c*1024}')
        for c in range(8):
            p(f'v_pk_add_f32 {vr(TMP+2*c,2)}, {vr(TMP+2*c,2)}, {vr(TMP+16+2*c,2)}')
            p(f'v_pk_add_f32 {vr(ACC+2*c,2)}, {vr(ACC+2*c,2)}, {vr(TMP+32+2*c,2)}')
            p(f'v_pk_add_f32 {vr(ACC+2*c,2)}, {vr(ACC+2*c,2)}, {vr(TMP+2*c,2)}')

    def yoffs(self, dst, mul, add):
        L = []
        for y in range(2):
            L += [f's_xor_b32 s{sT0}, s{sRHO}, {y}', f's_lshl_b32 s{sT1}, s{sRB}, 1', f's_add_u32 s{sT0}, s{sT0}, s{sT1}',
                  f's_lshl_b32 s{sT0}, s{sT0}, 2', f's_add_u32 s{sT0}, s{sT0}, s{sW}'] + self.roff(dst + y, sT0, mul, add)
        return L

    def p3(self):
        p = self.p
        WO, OF, ACC, RING = 32, 96, 160, 200

        def colsum(part):
            for i in range(4):
                p(f'v_mov_b32 v{vT+4+i}, s{sONES}')
            p(f's_lshl_b32 s{sT0}, s{sW}, 10')
            if part == 0:
                p(f'v_add_u32 v{vT}, s{sT0}, v{vL16}')
            else:
                p(f's_min_u32 s{sT0}, s{sT0}, 2048')
                p(f'v_add_u32 v{vT}, s{sT0}, v{vA1}')
            rd = lambda f: f'ds_read_b128 {vr(RING+4*(f%6))}, v{vT} offset:{f*(4096, 3072)[part]}'
            for f in range(5):
                p(rd(f))
            for f in range(14):
                p(f'{MF16} {vr(ACC)}, {vr(vT+4)}, {vr(RING+4*(f%6))}, {vr(ACC) if f else 0}')
                if f + 5 < 14:
                    p(rd(f + 5))
            p(f's_lshl_b32 s{sT0}, s{sW}, 6')
            p(f's_add_u32 s{sT0}, s{sT0}, {L_CS1 + 256*part}')
            p(f'v_and_b32 v{vT}, 15, v{vL}')
            p(f'v_lshlrev_b32 v{vT}, 2, v{vT}')
            p(f'v_add_u32 v{vT}, s{sT0}, v{vT}')
            p(f'ds_write_b32 v{vT}, v{ACC}')
            p('s_waitcnt lgkmcnt(0)')
        w1d = self.w1_dma(1)
        self.pad()
        p('s_barrier')
        self.if_layer0(lambda: colsum(0))
        ljoin, lidle = p.newlabel('p3join'), p.newlabel('p3idle')
        p(f's_cmp_ge_u32 s{sM}, 28')
        p(f's_cbranch_scc1 {lidle}')
        p.mark('maybe_begin')
        sFO, sY = sO, sO + 2
        p(f's_lshl_b32 s{sT0}, s{sRB}, 3')
        p(f's_add_u32 s{sT0}, s{sT0}, s{sW}')
        p.ext(self.off(sFO, sT0, 32, O_FO))
        p.ext(self.yoffs(sY, 8192, O_O))
        p(f's_add_u32 s{sY+2}, s{sY}, 4096')
        p(f's_add_u32 s{sY+3}, s{sY+1}, 4096')
        p.ext(self.pub_offsets(O_X1, O_ST1, O_FX1))
        self.vpoll(vFLG, sFO, 8)
        self.stamp('B')

        def ld(ks, y):
            return f'buffer_load_dwordx4 {vr(OF+(ks*2+y)*4)}, v{vL16}, {srd(S_WS)}, s{sY + 2*(ks//4) + y} offen offset:{(ks%4)*1024} sc1'

        def mf(ks, x):
            y, z = x >> 1, x & 1
            c = vr(ACC + 16 * x, 16) if ks else (vr(vRES, 16) if x == 0 else '0')
            return f'{MF32} {vr(ACC+16*x,16)}, {vr(WO+(ks*2+z)*4)}, {vr(OF+(ks*2+y)*4)}, {c}'
        for ks in range(5):
            for y in range(2):
                p(ld(ks, y))
        rest = list(w1d)
        for ks in range(8):
            for x in (1, 2, 3):
                p(mf(ks, x))
                if ks + 5 < 8 and x < 3:
                    p(ld(ks + 5, x - 1))
                elif ks >= 3 and rest:
                    y = rest.pop(0)
                    p.ext([y])
                    while rest and not is_mem(y):
                        y = rest.pop(0)
                        p.ext([y])
        assert not rest
        self.stamp('p3mm')
        p.ext(sched([mf(ks, 0) for ks in range(8)], {}, {}, self.reduce_writes(ACC), 2, start=2))
        self.stamp('p3rw')
        self.reduce_finish(ACC, 32)
        self.stamp('p3rd')
        P = 96
        for i in range(8):
            p(f'v_cvt_pk_bf16_f32 v{P+i}, v{ACC+2*i}, v{ACC+2*i+1}')
        self.x_store(P, vX1A, (0, 512))
        self.publish(['xst'], sXF)
        self.stamp('p3pub')
        p.ext(self.res_unpack(P))
        p.mark('maybe_end')
        p.label(ljoin)
        lq = p.newlabel('p3noq')
        vq = [f's_cmp_lg_u32 s{sLAYER}, 0', f's_cbranch_scc1 {ljoin}',
              f's_lshl_b32 s{sT0}, s{sCB}, 2', f's_add_u32 s{sT0}, s{sT0}, s{sW}',
              f's_lshl_b32 s{sT1}, s{sT0}, 7', f's_add_u32 s{sT1}, s{sT1}, {F_WQ}']
        self.idle3 = (lidle, w1d + vq, sT1, ljoin)
        self.pad()
        p('s_waitcnt vmcnt(0)')
        p('s_barrier')
        self.if_layer0(lambda: colsum(1))
        self.stamp('p3')

    def p4(self):
        p = self.p
        X, ACC, RING, CS = 32, 144, 200, 224
        sXO, sST, sFX, sH, sHF = sO, sO + 7, sO + 8, sO + 9, sO + 11

        def late():
            p(f's_lshl_b32 s{sT0}, s{sCB}, 9')
            p(f's_lshl_b32 s{sT1}, s{sW}, 7')
            p(f's_add_u32 s{sT0}, s{sT0}, s{sT1}')
            p(f's_add_u32 s{sT0}, s{sT0}, {F_W2}')
            p(f's_lshl_b32 s{sT1}, s{sJ}, 7')
            p(f's_add_u32 s{sT1}, s{sT1}, {F_WQ - 16*8}')
            p(f'v_mov_b32 v{vT}, s{sT0}')
            p(f'v_mov_b32 v{vT+1}, s{sT1}')
            p(f'v_cmp_le_u32 vcc, 16, v{vL}')
            p(f'v_cndmask_b32 v{vT}, v{vT}, v{vT+1}, vcc')
            p(f'v_add_u32 v{vT}, v{vT}, v{vL8}')
            p(f's_mov_b32 s{sT0}, 0')
            self.vpoll(vT, sT0, 30, acquire=False, drained=False)
            p.ext(self.w2_loads(0, 12))
        self.if_layer0(late)
        p.ext(self.xoff(sXO, sTP, 28672, O_X1))
        for g in range(1, 7):
            p(f's_add_u32 s{sXO+g}, s{sXO}, {4096*g}')
        p.ext(self.off(sST, sTP, 3584, O_ST1))
        p.ext(self.off(sFX, sTP, 128, O_FX1))
        p(f's_lshl_b32 s{sT0}, s{sTP}, 4')
        p(f's_add_u32 s{sT0}, s{sT0}, s{sJ}')
        p.ext(self.roff(sH, sT0, 7168, O_H))
        p(f's_add_u32 s{sH+1}, s{sH}, 4096')
        p.ext(self.off(sHF, sT0, 8, O_FH))
        vHA, vHB = vT + 1, vT + 2
        p.ext([f'v_lshrrev_b32 v{vCSA}, 4, v{vL}', f'v_lshlrev_b32 v{vCSA}, 4, v{vCSA}', f'v_add_u32 v{vCSA}, {L_CS1}, v{vCSA}',
               f'v_lshrrev_b32 v{vHA}, 5, v{vL}', f'v_lshlrev_b32 v{vHA}, 10, v{vHA}',
               f'v_bfe_u32 v{vHB}, v{vL}, 4, 1', f'v_lshl_add_u32 v{vHA}, v{vHB}, 9, v{vHA}',
               f'v_and_b32 v{vT+3}, 15, v{vL}', f'v_lshl_add_u32 v{vHA}, v{vT+3}, 4, v{vHA}',
               f'v_lshlrev_b32 v{vHB}, 3, v{vHB}', f'v_lshl_add_u32 v{vHB}, v{vT+3}, 4, v{vHB}',
               f'v_lshrrev_b32 v{vT+3}, 5, v{vL}', f'v_lshl_add_u32 v{vHB}, v{vT+3}, 9, v{vHB}'])
        p(f'v_lshlrev_b32 v{vT}, 7, v{vL}')
        seq = [(t, s) for s in range(14) for t in range(4)] + [(t, s) for s in range(14) for t in range(4, 7)]

        def frag(f):
            base, off = (vL16, f * 1024) if f < 56 else (vA1, (f - 56) * 1024)
            return f'ds_read_b128 {vr(RING + 4*(f % 6))}, v{base} offset:{off}'

        def mf(f, u):
            t, s = seq[f]
            return f'{MF16} {vr(ACC+8*t+4*u)}, {vr(RING+4*(f%6))}, {vr(X+4*(2*s+u))}, {vr(ACC+8*t+4*u) if s else 0}'

        def xl(i):
            return f'buffer_load_dwordx4 {vr(X+4*i)}, v{vL16}, {srd(S_WS)}, s{sXO + i//4} offen offset:{(i%4)*1024} sc1'
        PD = 4
        for f in range(PD):
            p(frag(f))
        self.pad()
        self.vpoll(vL8, sFX, 14)
        self.stamp('C')
        XP = 8
        for i in range(XP):
            p(xl(i))
        mem, pre = {}, {}
        for f in range(98):
            mem[2 * f] = [frag(f + PD)] if f + PD < 98 else []
            if f < 56 and f % 2 == 0 and f // 2 + XP < 28:
                mem[2 * f + 1] = [xl(f // 2 + XP)]
            if 27 <= f < 41 and f % 2 == 1:
                mem[2 * f + 1] = [self.stats_loads(sST, CS)[(f - 27) // 2]]
            if f % 2 == 0:
                tch = vr(RING + 4 * (f % 6)) + ' ' + vr(RING + 4 * ((f + 1) % 6))
                if f < 56 and f % 4 == 0:
                    tch += ' ' + vr(X + 8 * (f // 4), 8)
                pre[2 * f] = [Touch(tch)]
        mem[2 * 41 + 1] = [['s_mov_b32 exec_hi, 0xffffff', f'buffer_load_dword a255, v{vT}, {srd(S_WS)}, s{sH} offen sc1', 's_mov_b64 exec, -1']]
        mfs = [mf(f, u) for f in range(98) for u in range(2)]
        side = self.stats_reduce(CS) + [f'v_mov_b32 v{vRSTD}, v{vMEAN}', 's_nop 0', f'v_permlane16_swap_b32 v{vMEAN}, v{vRSTD}']
        p.ext(sched(mfs[:112], pre, mem, side, 2, start=92))
        self.stamp('p4g1')
        PO = vT + 4

        def epi(tiles, tok):
            L = []
            for t in tiles:
                L.append(f'ds_read_b128 {vr(CS+4*(t%4))}, v{vCSA} offset:{t*64}')
            pairs = [tiles[i:i + 2] for i in range(0, len(tiles), 2)]
            n = 0
            for pr in pairs:
                for u in range(2):
                    po = PO + 4 * (n % 3)
                    n += 1
                    mean = (vMEAN, vRSTD)[u]
                    for k, t in enumerate(pr):
                        a = ACC + 8 * t + 4 * u
                        for r in range(4):
                            L.append(f'v_fma_f32 v{a+r}, v{CS+4*(t%4)+r}, v{mean}, v{a+r}')
                        for r in range(2):
                            L.append(f'v_cvt_pk_bf16_f32 v{po+2*k+r}, v{a+2*r}, v{a+2*r+1}')
                        for r in range(2):
                            L.append(f'v_pk_max_i16 v{po+2*k+r}, v{po+2*k+r}, 0')
                    t = pr[0]
                    so, off = (sH, t * 1024) if t < 4 else (sH + 1, (t - 4) * 1024)
                    if len(pr) == 2:
                        L.append(Ins(f'buffer_store_dwordx4 {vr(po)}, v{vHA}, {srd(S_WS)}, s{so} offen offset:{off+u*256}', tok))
                    else:
                        L.append(Ins(f'buffer_store_dwordx2 {vr(po,2)}, v{vHB}, {srd(S_WS)}, s{so} offen offset:{off+u*256}', tok))
            return L
        pre2 = {i - 112: v for i, v in pre.items() if i >= 112}
        mem2 = {i - 112: v for i, v in mem.items() if i >= 112}
        self.pad()
        p('s_barrier')
        wq = self.wq_dma((0, 1), sXO)
        i = 1
        for x in wq:
            mem2.setdefault(i, []).append(x)
            if is_mem(x):
                i += 4
        p.ext(sched(mfs[112:], pre2, mem2, epi([0, 1, 2, 3], 'hst'), 2, start=0))
        self.stamp('p4g2')
        p.ext(epi([4, 5, 6], 'hst'))
        self.stamp('p4ep')
        self.publish(['hst'], sHF)
        self.pad()
        p('s_barrier')
        self.stamp('p4')

    def p5(self):
        p = self.p
        HR, ACC, CS = 32, 160, 224
        lskip, ljoin, llast = p.newlabel('p5skip'), p.newlabel('p5join'), p.newlabel('p5last')
        p(f's_cmp_ge_u32 s{sM}, 28')
        p(f's_cbranch_scc1 {lskip}')
        sFH, sST, sY = sO, sO + 1, sO + 2
        self.if_layer0(lambda: p.ext(self.w2_loads(12, 28)))
        p(f's_lshl_b32 s{sT0}, s{sRB}, 3')
        p(f's_add_u32 s{sT0}, s{sT0}, s{sW}')
        p.ext(self.off(sFH, sT0, 32, O_FH))
        p.ext(self.yoffs(sY, 28672, O_H))
        for g in range(1, 7):
            for y in range(2):
                p(f's_add_u32 s{sY+2*g+y}, s{sY+y}, {4096*g}')
        p(f's_lshl_b32 s{sT0}, s{sRB}, 1')
        p(f's_add_u32 s{sT0}, s{sT0}, s{sRHO}')
        p.ext(self.off(sST, sT0, 3584, O_ST1))
        p.ext(self.pub_offsets(O_XA + LSTRIDE, O_STA + LSTRIDE, O_FXA + LSTRIDE))
        self.pad()
        self.vpoll(vFLG, sFH, 8)
        self.stamp('D')
        NR = 16

        def ld(ks, y):
            return f'buffer_load_dwordx4 {vr(HR+((ks%NR)*2+y)*4)}, v{vL16}, {srd(S_WS)}, s{sY + 2*(ks//4) + y} offen offset:{(ks%4)*1024} sc1'

        def mf(ks, x):
            y, z = x >> 1, x & 1
            return f'{MF32} {vr(ACC+16*x,16)}, {ar(ks*8+z*4)}, {vr(HR+((ks%NR)*2+y)*4)}, {vr(ACC+16*x,16) if ks else 0}'
        PD = 5
        for ks in range(PD):
            p(ld(ks, 0))
            p(ld(ks, 1))
        TAIL = 14
        mfs, mem = [], {}
        bgl = self.stats_loads(sST, CS)
        for ks in range(28):
            xs = (0, 1, 2, 3) if ks < 28 - TAIL else (1, 2, 3)
            for n, x in enumerate(xs):
                i = len(mfs)
                mfs.append(mf(ks, x))
                if ks + PD < 28:
                    if n < 2:
                        mem[i] = [ld(ks + PD, n)]
                else:
                    mem[i] = []
                    while bgl:
                        y = bgl.pop(0)
                        mem[i].append(y)
                        if is_mem(y):
                            break
        p.ext(sched(mfs, {}, mem, [], 6))
        self.stamp('p5mm')
        sr = self.stats_reduce(CS)
        mem = {}
        for i, x in enumerate(self.reduce_writes(ACC)):
            mem.setdefault(2 + i, []).append(x)
        p.ext(sched([mf(ks, 0) for ks in range(28 - TAIL, 28)], {}, mem, bgl + sr, 5, start=0))
        self.stamp('p5rw')
        self.reduce_finish(ACC, 32)
        self.stamp('p5rd')
        P = 96
        for i in range(8):
            p(f'v_pk_fma_f32 {vr(ACC+2*i,2)}, {vr(ACC+2*i,2)}, {vr(vMEAN,2)}, {vr(vRES+2*i,2)} op_sel:[0,1,0] op_sel_hi:[1,1,1]')
            p(f'v_cvt_pk_bf16_f32 v{P+i}, v{ACC+2*i}, v{ACC+2*i+1}')
        p(f's_cmp_lg_u32 s{sLAYER}, 0')
        p(f's_cbranch_scc1 {llast}')
        self.x_store(P, vL16, (0, 1024))
        p.ext(self.wq_dma((2,)))
        self.publish(['xst'], sXF)
        self.stamp('p5pub')
        p.ext(self.res_unpack(P))
        p.label(ljoin)
        p('s_waitcnt vmcnt(0) lgkmcnt(0)')
        p('s_barrier')
        p(f's_mov_b32 s{sLAYER}, 1')
        p(f's_add_u32 s{sLB}, s{sLB}, {LSTRIDE}')
        p('s_branch L_layer')
        self.tail.append((lskip, [f's_cmp_lg_u32 s{sLAYER}, 0', 's_cbranch_scc1 L_fin'] + self.wq_dma((2,)) + [f's_branch {ljoin}']))
        p.label(llast, reset='all')
        p(f'v_and_b32 v{vT+4}, 31, v{vL}')
        p(f'v_mul_u32_u24 v{vT+4}, 896, v{vT+4}')
        p(f'v_lshrrev_b32 v{vT+5}, 5, v{vL}')
        p(f'v_lshl_add_u32 v{vT+4}, v{vT+5}, 4, v{vT+4}')
        for hf in range(2):
            p(f'v_permlane32_swap_b32 v{P+4*hf}, v{P+4*hf+2}')
            p(f'v_permlane32_swap_b32 v{P+4*hf+1}, v{P+4*hf+3}')
            p(f'buffer_store_dwordx4 {vr(P+4*hf)}, v{vT+4}, {srd(S_OUT)}, s{sQOFF} offen offset:{32*hf}')
        p('s_cmp_lg_u32 s2, %d' % (27 * 8 + 7))
        p('s_cbranch_scc1 L_fin')
        p(f's_mov_b32 s{sT0}, {WS_EPOCH}')
        p.ext(self.flag_sc1(sT0))

    def build(self):
        p = self.p
        self.prologue()
        p.label('L_layer', reset='all')
        for i, ph in enumerate(('p1', 'attn', 'p3', 'p4', 'p5')):
            getattr(self, ph)()
            if self.stop is not None and i + 1 >= self.stop:
                break
        p.label('L_fin')
        self.stamp('end')
        self.stamp_dump()
        if os.environ.get('CALIB'):
            p.label('L_calib')
            p('s_memrealtime s[96:97]')
            p('s_waitcnt lgkmcnt(0)')
            p('s_sub_u32 s96, s96, s100')
            p(f's_cmp_lt_u32 s96, {int(os.environ["CALIB"])}')
            p('s_cbranch_scc1 L_calib')
        p.label('L_end')
        p('s_endpgm')
        if hasattr(self, 'idle3'):
            lab, code, sfl, back = self.idle3
            p.label(lab, reset='all')
            p.ext(code)
            self.vpoll(vL8, sfl, 14, acquire=False)
            p(f'v_lshlrev_b32 v{vT}, 7, v{vL}')
            p(f's_mul_i32 s{sT1}, s{sT0}, 86016')
            p.ext(self.prefetch(vT, sT1, WQT, 86016))
            p(f's_branch {back}')
        for lab, code in self.tail:
            p.label(lab, reset='all')
            p.ext(code)
        p.label('L_codeend')
        self.emit_walker()
        p.insert_waits()
        probs = p.fix_hazards()
        for x in probs:
            print('branch hazard padded', x, file=sys.stderr)
        mx = p.maxregs()
        head = open(os.path.join(os.path.dirname(__file__), '..', 'cdna_kernels', NAME + '.s.ref')).read().split('\n')
        hdr = [l for l in head if l.startswith(';') and '@launch' not in l]
        out = '\n'.join(hdr) + f'\n; @launch grid=(256,1,1) block=(256,1,1) lds={LDS_BYTES}\n'
        out += '.amdgcn_target "amdgcn-amd-amdhsa--gfx950"\n.text\n'
        out += f'.globl {NAME}_kernel\n.p2align 8\n.type {NAME}_kernel,@function\n{NAME}_kernel:\n'
        out += p.text()
        out += '.fill 64, 4, 0xbf800000\n'
        out += f'''.section .rodata,"a"
.p2align 6
.amdhsa_kernel {NAME}_kernel
  .amdhsa_next_free_vgpr 512
  .amdhsa_next_free_sgpr 102
  .amdhsa_accum_offset 256
  .amdhsa_group_segment_fixed_size 0
  .amdhsa_kernarg_size 72
  .amdhsa_user_sgpr_count 2
  .amdhsa_user_sgpr_kernarg_segment_ptr 1
  .amdhsa_system_sgpr_workgroup_id_x 1
  .amdhsa_float_denorm_mode_32 3
.end_amdhsa_kernel
'''
        print('regs', mx, 'instrs', sum(1 for x in p.items if isinstance(x, Ins)), file=sys.stderr)
        return out


if __name__ == '__main__':
    stop = int(sys.argv[2]) if len(sys.argv) > 2 else None
    k = K(stop if stop and stop > 0 else None, dbg=sys.argv[3].split(',') if len(sys.argv) > 3 else None)
    open(sys.argv[1], 'w').write(k.build())
    if k.dbg:
        open(os.path.join(os.path.dirname(sys.argv[1]), 'stamps.txt'), 'w').write(' '.join(k.stamps))
```

```python
import sys, os, math, struct
sys.path.insert(0, os.path.dirname(__file__))
from asmlib import Prog, Ins, Wait, Mark, Label, Touch

NAME = 'interleave_layers__sliding_block__dense_activation_relu__prompt'

WS_EPOCH = 0
WS_PUR = 0x1000
F_WQ = 0x2000
F_W1 = 0x2800
F_W2 = 0x3000
F_WO = 0x4000
WQT = 0x100000
W1T = 0x250000
WOT = 0x3D8000
W2T = 0x448000
TEAM0 = 0x600000
LSTRIDE = 0x230000
STRIDE = 2 * LSTRIDE
O_KV = 0x000000
O_O = 0x080000
O_X1 = 0x0C0000
O_XA = 0x0F8000
O_ST1 = 0x130000
O_STA = 0x138000
O_FKV = 0x140000
O_FO = 0x144000
O_FX1 = 0x144400
O_FXA = 0x144800
O_FH = 0x145000
O_H = 0x150000
WS_BYTES = TEAM0 + 8 * STRIDE

LKV = 100352
L_CSQ = 149504
L_CS1 = L_CSQ + 512
L_PUR = L_CS1 + 512 + 1536
L_CSP = L_CS1 + 512
LDS_BYTES = 163840

S_X, S_WQ, S_WO, S_W1, S_W2, S_OUT, S_WS = 8, 12, 16, 20, 24, 28, 32
S_WSP = 36
sTEAM, sM, sA, sJ, sW, sRB, sCB, sLB = 40, 41, 42, 43, 44, 45, 46, 47
sF, sPURE, sLAYER, sTP = 48, 50, 51, 52
sQOFF = 53
sHI = 54
sPERM, sONES = 56, 57
sRHO, sNU = 58, 59
sT0, sT1, sT2, sT3, sT4, sT5 = 60, 61, 62, 63, 64, 65
sCNT = 66
sTB = 71
sJFL = 67
sXD, sXS, sXF = 68, 69, 70
sPOLL = 72
sRQ, sLQ = 76, 77
sO = 80

vL, vL16, vA1, vL8 = 0, 1, 2, 3
vSTA = 4
vFLG = 5
vRW = 6
vX1A = 10
vCSA = 11
vF = 12
vMEAN, vRSTD = 14, 15
vT = 16
vRES = 240

POLL_MAX = 1 << 16
MF32 = 'v_mfma_f32_32x32x16_bf16'
MF16 = 'v_mfma_f32_16x16x32_bf16'


def srd(b):
    return f's[{b}:{b+3}]'


def vr(b, n=4):
    return f'v[{b}:{b+n-1}]' if n > 1 else f'v{b}'


def ar(b, n=4):
    return f'a[{b}:{b+n-1}]'


def f32bits(x):
    return struct.unpack('<I', struct.pack('<f', x))[0]


def is_mem(x):
    if isinstance(x, (list, tuple)):
        return any(is_mem(y) for y in x)
    t = x.text if isinstance(x, Ins) else x if isinstance(x, str) else ''
    return t.startswith('ds_') or t.startswith('buffer_') or t.startswith('global_')


def cost(x):
    if isinstance(x, (list, tuple)):
        return sum(cost(y) for y in x)
    if isinstance(x, (Wait, Touch)):
        return 1
    t = x.text if isinstance(x, Ins) else x
    return 2 if t.startswith('v_exp') or t.startswith('v_rsq') or t.startswith('v_rcp') or t.startswith('v_permlane') else 1


def sched(mfs, pre, mem, side, cap, start=0):
    out = []
    side = list(side)
    for i, m in enumerate(mfs):
        out += pre.get(i, [])
        out.append(m)
        n = 0
        for x in mem.get(i, []):
            out.append(x)
            n += cost(x)
        if pre.get(i + 1):
            n += 1
        valu = False
        if i >= start:
            while side and n + cost(side[0]) <= cap:
                if is_mem(side[0]) and valu:
                    break
                x = side.pop(0)
                if not is_mem(x) and not isinstance(x, (Wait, Touch)):
                    t = x[0] if isinstance(x, (list, tuple)) else x
                    if any((y.text if isinstance(y, Ins) else y).startswith('v_') for y in (x if isinstance(x, (list, tuple)) else [x])):
                        valu = True
                out.append(x)
                n += cost(x)
            if side and n == 0 and cost(side[0]) > cap:
                out.append(side.pop(0))
    return out + side


class K:
    def __init__(self, stop=None, dbg=False):
        self.p = Prog()
        self.stop = stop
        self.dbg = dbg
        self.stamps = []
        self.tail = []
        self.pads = []

    def stamp(self, name):
        if not self.dbg or (name not in self.dbg and name not in ('start', 'end')):
            return
        k = len(self.stamps)
        assert k < 12
        self.stamps.append(name)
        p = self.p
        p('s_memrealtime s[96:97]' if 'RT' in self.dbg else 's_memtime s[96:97]')
        p('s_waitcnt lgkmcnt(0)')
        l1 = p.newlabel('st')
        p(f's_cmp_lg_u32 s{sLAYER}, 0')
        p(f's_cbranch_scc1 {l1}')
        p(f'v_accvgpr_write_b32 a{224+k}, s96')
        p.label(l1)
        p(f'v_accvgpr_write_b32 a{240+k}, s96')

    def stamp_dump(self):
        if not self.dbg:
            return
        p = self.p
        p(f's_lshl_b32 s{sT0}, s2, 2')
        p(f's_add_u32 s{sT0}, s{sT0}, s{sW}')
        p(f's_lshl_b32 s{sT0}, s{sT0}, 7')
        p(f's_add_u32 s{sT0}, s{sT0}, 0x40000')
        p('s_mov_b64 exec, 1')
        for k in range(32):
            p(f'buffer_store_dword a{224+k}, off, {srd(S_WS)}, s{sT0} offset:{4*k}')
        if 'DBG' in self.dbg:
            p('s_cmp_lg_u32 s2, 43')
            p('s_cbranch_scc1 L_end')
            p(f's_cmp_lg_u32 s{sW}, 1')
            p('s_cbranch_scc1 L_end')
            p('s_load_dwordx2 s[96:97], s[0:1], 56')
            p('v_accvgpr_read_b32 v16, a224')
            p('v_mov_b32 v18, 0')
            p('s_waitcnt lgkmcnt(0)')
            n = len(self.stamps)
            f = self.stamps.index('pro') + 1 if 'pro' in self.stamps else 1
            regs = [224 + k for k in range(1, n - 1)] + [240 + k for k in range(f, n)]
            for i, r in enumerate(regs[:16]):
                p(f'v_accvgpr_read_b32 v17, a{r}')
                p('v_sub_u32 v17, v17, v16')
                p(f'global_store_dword v18, v17, s[96:97] offset:{4*i}')
        p('s_mov_b64 exec, -1')

    def dma(self, srdb, voff, sreg, simm, m0, tok, sc='', n=1):
        mr, mi = m0
        L = [f's_add_u32 m0, s{mr}, {mi}' if mr is not None else f's_mov_b32 m0, {mi}',
             f's_add_u32 s{sT5}, s{sreg}, {simm}']
        for k in range(n):
            L.append(Ins(f'buffer_load_dwordx4 v{voff}, {srd(srdb)}, s{sT5} offen offset:{1024*k} {sc} lds', tok))
        return L

    def if_layer0(self, body):
        p = self.p
        l = p.newlabel('l0')
        p(f's_cmp_lg_u32 s{sLAYER}, 0')
        p(f's_cbranch_scc1 {l}')
        p.mark('maybe_begin')
        body()
        p.mark('maybe_end')
        p.label(l)

    def vpoll(self, voff, soff, nl, acquire=True, drained=True):
        p = self.p
        lp, lo = p.newlabel('poll'), p.newlabel('pollout')
        p(f's_mov_b64 exec, {(1 << nl) - 1:#x}')
        p(f's_mov_b32 s{sCNT}, 0')
        p.label(lp)
        p(f'buffer_load_dwordx2 {vr(vT + 14, 2)}, v{voff}, {srd(S_WS)}, s{soff} offen sc1')
        p(f's_add_u32 s{sCNT}, s{sCNT}, 1')
        p(f's_cmp_gt_u32 s{sCNT}, {POLL_MAX}')
        p(f's_cbranch_scc1 {lo}')
        p('s_waitcnt vmcnt(0)')
        p(f'v_cmp_ne_u64 vcc, s[{sF}:{sF+1}], {vr(vT + 14, 2)}')
        p(f's_cbranch_vccnz {lp}')
        p.label(lo)
        p('s_mov_b64 exec, -1')
        if acquire:
            lslow, lback = p.newlabel('acq'), p.newlabel('acqback')
            p(f's_cmp_lg_u32 s{sPURE}, 0')
            p(f's_cbranch_scc0 {lslow}')
            p.label(lback)
            self.tail.append((lslow, ['buffer_inv sc1', 's_waitcnt vmcnt(0)', f's_branch {lback}']))
        if drained:
            p.mark('drained_vm')

    def publish(self, toks, soff):
        p = self.p
        p.wait(*toks)
        lslow, lback = p.newlabel('pubslow'), p.newlabel('pubback')
        p('s_mov_b64 exec, 1')
        p(f's_cmp_lg_u32 s{sPURE}, 0')
        p(f's_cbranch_scc0 {lslow}')
        p(f'buffer_store_dwordx2 {vr(vF, 2)}, off, {srd(S_WS)}, s{soff}')
        p.label(lback)
        p('s_mov_b64 exec, -1')
        self.tail.append((lslow, [
            'buffer_wbl2 sc1', 's_waitcnt vmcnt(0)',
            f'buffer_store_dwordx2 {vr(vF, 2)}, off, {srd(S_WS)}, s{soff} sc1',
            f's_branch {lback}']))

    def flag_sc1(self, soff):
        return ['s_mov_b64 exec, 1', f'buffer_store_dwordx2 {vr(vF,2)}, off, {srd(S_WS)}, s{soff} sc1', 's_mov_b64 exec, -1']

    def flag_opt(self, soff):
        p = self.p
        l = p.newlabel('noflag')
        p(f's_cmp_eq_u32 s{soff}, -1')
        p(f's_cbranch_scc1 {l}')
        p.mark('maybe_begin')
        p.ext(self.flag_sc1(soff))
        p.mark('maybe_end')
        p.label(l)

    def stats_loads(self, soff, dst):
        return [f'buffer_load_dwordx2 {vr(dst + 2*i, 2)}, v{vSTA}, {srd(S_WS)}, s{soff} offen offset:{256*i} sc1' for i in range(7)]

    def stats_reduce(self, src):
        L = []
        for i in range(1, 7):
            L.append(f'v_add_f32 v{src}, v{src}, v{src+2*i}')
            L.append(f'v_add_f32 v{src+1}, v{src+1}, v{src+2*i+1}')
        s, q, t0, t1 = src, src + 1, src + 2, src + 3
        return L + [
            f'v_mov_b32 v{t0}, v{s}', f'v_mov_b32 v{t1}, v{q}', 's_nop 0',
            f'v_permlane32_swap_b32 v{s}, v{t0}', f'v_permlane32_swap_b32 v{q}, v{t1}',
            f'v_add_f32 v{s}, v{s}, v{t0}', f'v_add_f32 v{q}, v{q}, v{t1}',
            f'v_mul_f32 v{vMEAN}, {f32bits(-1.0/448):#x}, v{s}',
            f'v_mul_f32 v{q}, {f32bits(1.0/448):#x}, v{q}',
            f'v_fma_f32 v{q}, -v{vMEAN}, v{vMEAN}, v{q}',
            f'v_max_f32 v{q}, 0, v{q}',
            f'v_add_f32 v{q}, {f32bits(1e-5):#x}, v{q}',
            f'v_rsq_f32 v{vRSTD}, v{q}',
        ]

    def off(self, dst, idx_reg, mul, add):
        return [f's_mul_i32 s{dst}, s{idx_reg}, {mul}', f's_add_u32 s{dst}, s{dst}, s{sLB}', f's_add_u32 s{dst}, s{dst}, {add}']

    def xoff(self, dst, idx_reg, mul, add):
        return [f's_add_u32 s{sT3}, s{sLB}, {add}', f's_add_u32 s{sT4}, s{sTB}, {O_XA}', f's_cmp_lg_u32 s{sPURE}, 0',
                f's_cselect_b32 s{sT3}, s{sT4}, s{sT3}', f's_mul_i32 s{dst}, s{idx_reg}, {mul}', f's_add_u32 s{dst}, s{dst}, s{sT3}']

    def roff(self, dst, idx_reg, mul, add):
        return [f's_cmp_lg_u32 s{sPURE}, 0', f's_cselect_b32 s{sT3}, s{sTB}, s{sLB}',
                f's_mul_i32 s{dst}, s{idx_reg}, {mul}', f's_add_u32 s{dst}, s{dst}, s{sT3}', f's_add_u32 s{dst}, s{dst}, {add}']

    def pub_offsets(self, xoff, stoff, foff):
        return [f's_lshl_b32 s{sT0}, s{sRB}, 1', f's_add_u32 s{sT0}, s{sT0}, s{sRHO}',
                f's_lshl_b32 s{sT1}, s{sCB}, 1', f's_add_u32 s{sT1}, s{sT1}, s{sNU}',
                f's_mul_i32 s{sT2}, s{sT0}, 14', f's_add_u32 s{sT2}, s{sT2}, s{sT1}'] + \
            self.xoff(sXD, sT2, 2048, xoff) + self.off(sXS, sT2, 256, stoff) + \
            [f's_lshl_b32 s{sT0}, s{sT0}, 4', f's_add_u32 s{sT0}, s{sT0}, s{sT1}'] + self.off(sXF, sT0, 8, foff)

    def x_store(self, P, va, offs, sc=''):
        p = self.p
        S, Q2, t0, t1 = vT + 6, vT + 7, vT + 8, vT + 9
        for k in range(2):
            p(f'buffer_store_dwordx4 {vr(P+4*k)}, v{va}, {srd(S_WS)}, s{sXD} offen offset:{offs[k]} {sc}', tok='xst')
        p(f'v_mov_b32 v{t0}, s{sONES}')
        p(f'v_dot2_f32_bf16 v{S}, v{P}, v{t0}, 0')
        p(f'v_dot2_f32_bf16 v{Q2}, v{P}, v{P}, 0')
        for i in range(1, 8):
            p(f'v_dot2_f32_bf16 v{S}, v{P+i}, v{t0}, v{S}')
            p(f'v_dot2_f32_bf16 v{Q2}, v{P+i}, v{P+i}, v{Q2}')
        p(f'v_mov_b32 v{t0}, v{S}')
        p(f'v_mov_b32 v{t1}, v{Q2}')
        p(f'v_permlane32_swap_b32 v{S}, v{t0}')
        p(f'v_permlane32_swap_b32 v{Q2}, v{t1}')
        p(f'v_add_f32 v{S}, v{S}, v{t0}')
        p(f'v_add_f32 v{Q2}, v{Q2}, v{t1}')
        p('s_mov_b32 exec_hi, 0')
        p(f'buffer_store_dwordx2 {vr(S,2)}, v{vL8}, {srd(S_WS)}, s{sXS} offen {sc}', tok='xst')
        p('s_mov_b64 exec, -1')

    def res_unpack(self, P):
        L = []
        for q in range(8):
            L.append(f'v_lshlrev_b32 v{vRES+2*q}, 16, v{P+q}')
            L.append(f'v_and_b32 v{vRES+2*q+1}, 0xffff0000, v{P+q}')
        return L

    def prefetch(self, v128, sreg, base, nbytes):
        L = []
        o = 0
        while o < nbytes:
            oo = min(o, nbytes - 8192)
            L += [f's_add_u32 s{sT5}, s{sreg}, {base + oo}', f'buffer_load_dword a255, v{v128}, {srd(S_WS)}, s{sT5} offen sc1']
            o += 8192
        return L

    def wq_dma(self, tiles, dummy=None):
        L = [f's_mul_i32 s{sT0}, s{sJ}, 86016', f's_mul_i32 s{sT1}, s{sW}, 7168',
             f's_add_u32 s{sT0}, s{sT0}, s{sT1}']
        if dummy is not None:
            L += [f's_sub_u32 s{sT2}, s{dummy}, {WQT}', f's_cmp_lg_u32 s{sLAYER}, 0', f's_cselect_b32 s{sT0}, s{sT2}, s{sT0}']
        for tau in tiles:
            for o, n in ((0, 4), (4096, 3)):
                d = self.dma(S_WS, vL16, sT0, WQT + tau * 28672 + o, (sT1, tau * 28672 + o), 'wq', 'sc1', n)
                L += [d[:3]] + d[3:]
        return L

    def w1_dma(self, part):
        sg, sl = sPOLL, sPOLL + 1
        L = []
        if part == 0:
            L += [f's_mul_i32 s{sg}, s{sJ}, 100352', f's_mul_i32 s{sl}, s{sW}, 14336', f's_add_u32 s{sg}, s{sg}, s{sl}']
            groups = [(0, 4), (4096, 4), (8192, 4), (12288, 2)]
            base = 0
        else:
            L += [f's_mul_i32 s{sg}, s{sJ}, 100352', f's_mul_i32 s{sl}, s{sW}, 10240', f's_add_u32 s{sg}, s{sg}, s{sl}']
            groups = [(0, 4), (4096, 4), (8192, 2)]
            base = 57344
        for o, n in groups:
            d = self.dma(S_WS, vL16, sg, W1T + base + o, (sl, base + o), 'w1', 'sc1', n)
            L += [d[:3]] + d[3:]
        if part == 1:
            L += [f's_sub_u32 s{sg}, s{sg}, s{sl}', f's_lshl_b32 s{sl}, s{sNU}, 10', f's_add_u32 s{sg}, s{sg}, s{sl}']
            L.append(self.dma(S_WS, vL16, sg, W1T + 98304, (sl, 98304), 'w1', 'sc1', 1))
        return L

    def w2_loads(self, lo, hi):
        L = [f's_lshl_b32 s{sT0}, s{sCB}, 2', f's_add_u32 s{sT0}, s{sT0}, s{sW}', f's_mul_i32 s{sT0}, s{sT0}, 57344',
             f's_lshl_b32 s{sT1}, s{sNU}, 10', f'v_xor_b32 v{vT+10}, s{sT1}, v{vL16}', f'v_xor_b32 v{vT+11}, 1024, v{vT+10}']
        for ks in range(lo, hi):
            if ks == lo or ks % 2 == 0:
                L.append(f's_add_u32 s{sT1}, s{sT0}, {W2T + (ks//2)*4096}')
            for z in range(2):
                L.append(f'buffer_load_dwordx4 {ar(ks*8+z*4)}, v{vT+10+z}, {srd(S_WS)}, s{sT1} offen offset:{(ks%2)*2048} sc1')
        return L

    def lane_consts(self):
        p = self.p
        t0, t1 = vT + 6, vT + 7
        p(f'v_add_u32 v{vA1}, 57344, v{vL16}')
        p(f'v_and_b32 v{vSTA}, 31, v{vL}')
        p(f'v_lshlrev_b32 v{vSTA}, 3, v{vSTA}')
        p(f'v_lshrrev_b32 v{t0}, 5, v{vL}')
        p(f'v_mul_u32_u24 v{t1}, {7*256}, v{t0}')
        p(f'v_add_u32 v{vSTA}, v{vSTA}, v{t1}')
        p(f'v_lshrrev_b32 v{vFLG}, 2, v{vL}')
        p(f'v_lshlrev_b32 v{vFLG}, 7, v{vFLG}')
        p(f'v_and_b32 v{t1}, 3, v{vL}')
        p(f'v_lshl_add_u32 v{vFLG}, v{t1}, 3, v{vFLG}')
        for x in range(1, 4):
            p(f's_xor_b32 s{sT0}, s{sW}, {x}')
            p(f's_mul_i32 s{sT0}, s{sT0}, 12288')
            p(f's_add_u32 s{sT0}, s{sT0}, {LKV + (x-1)*4096}')
            p(f'v_add_u32 v{vRW+x-1}, s{sT0}, v{vL16}')
        p(f's_mul_i32 s{sT0}, s{sW}, 12288')
        p(f's_add_u32 s{sT0}, s{sT0}, {LKV}')
        p(f'v_add_u32 v{vRW+3}, s{sT0}, v{vL16}')
        p(f'v_bfe_u32 v{vX1A}, v{vL}, 4, 1')
        p(f'v_lshlrev_b32 v{vX1A}, 10, v{vX1A}')
        p(f'v_lshl_add_u32 v{vX1A}, v{t0}, 8, v{vX1A}')
        p(f'v_and_b32 v{t1}, 15, v{vL}')
        p(f'v_lshl_add_u32 v{vX1A}, v{t1}, 4, v{vX1A}')

    def pad(self):
        p = self.p
        k = len(self.pads)
        self.pads.append(f'L_pad{k}')
        p(f's_branch L_padskip{k}')
        p.label(f'L_pad{k}')
        p('s_setpc_b64 s[98:99]')
        p.label(f'L_padskip{k}')

    def emit_walker(self):
        L = []
        labs = [f'L_walk{w}' for w in range(4)]
        for w in range(1, 4):
            L += [Ins(f's_cmp_eq_u32 s{sW}, {w}'), Ins(f's_cbranch_scc1 {labs[w]}')]
        for w in range(4):
            if w:
                L.append(Label(labs[w]))
            for x in self.pads[w::4]:
                L.append(Ins(f's_call_b64 s[98:99], {x}'))
            if w < 3:
                L.append(Ins('s_branch L_walkend'))
        L.append(Label('L_walkend'))
        self.p.items[self.walker_at:self.walker_at] = L

    def rawq(self, tau, i):
        self.p.ext(self.dma(S_WQ, self.vDQ, sRQ, (448, 896, 0)[tau] * 2 + i * 16 * 2688, (sLQ, tau * 28672 + i * 1024), f'rq{tau}{i}'))

    def xform(self, tau, R, vcs, vones, between=None):
        p = self.p

        def fin(i):
            p(f'ds_write_b128 v{self.vWQ}, {vr(R+4*i)} offset:{tau*28672+i*1024}')
            for q in range(4):
                p(f'v_dot2_f32_bf16 v{vcs}, v{R+4*i+q}, v{vones}, {f"v{vcs}" if i or q else 0}')
        for i in range(7):
            p.wait(f'rq{tau}{i}')
            for jj in range(2):
                p(f'ds_read_b64_tr_b16 {vr(R+4*i+2*jj,2)}, v{self.vTQ} offset:{tau*28672+i*1024+jj*512}')
            if between:
                between(i)
            if i >= 1:
                fin(i - 1)
        fin(6)

    def cs_partial(self, taus, vcs, t2, t3):
        p = self.p
        for k, tau in enumerate(taus):
            p(f'v_mov_b32 v{t2}, v{vcs+k}')
            p(f'v_permlane32_swap_b32 v{vcs+k}, v{t2}')
            p(f'v_add_f32 v{vcs+k}, v{vcs+k}, v{t2}')
        p(f'v_and_b32 v{t2}, 31, v{vL}')
        p(f'v_lshlrev_b32 v{t2}, 2, v{t2}')
        p(f's_mul_i32 s{sT0}, s{sW}, 384')
        p(f's_add_u32 s{sT0}, s{sT0}, {L_CSP}')
        p(f'v_add_u32 v{t3}, s{sT0}, v{t2}')
        for k, tau in enumerate(taus):
            p(f'ds_write_b32 v{t3}, v{vcs+k} offset:{tau*128}')

    def cs_sum(self, taus, R, t2, t3):
        p = self.p
        p(f'v_add_u32 v{t3}, {L_CSP}, v{t2}')
        for k, tau in enumerate(taus):
            for w in range(4):
                p(f'ds_read_b32 v{R+4*k+w}, v{t3} offset:{w*384+tau*128}')
        p(f'v_add_u32 v{t3}, {L_CSQ}, v{t2}')
        for k, tau in enumerate(taus):
            r = R + 4 * k
            p(f'v_add_f32 v{r}, v{r}, v{r+1}')
            p(f'v_add_f32 v{r+2}, v{r+2}, v{r+3}')
            p(f'v_add_f32 v{r}, v{r}, v{r+2}')
            p(f'ds_write_b32 v{t3}, v{r} offset:{tau*128}')
        p('s_waitcnt lgkmcnt(0)')

    def prologue(self):
        p = self.p
        t0, t1, t2, t3 = vT, vT + 1, vT + 2, vT + 3
        self.vDQ, self.vTQ, self.vWQ = vDQ, vTQ, vWQ = vT + 10, vT + 11, vT + 12
        p('s_cmp_ge_u32 s2, 256')
        p('s_cbranch_scc1 L_end')
        p(f's_load_dwordx16 s[{sO}:{sO+15}], s[0:1], 0')
        p(f's_load_dwordx2 s[{S_WSP}:{S_WSP+1}], s[0:1], 64')
        p(f's_getpc_b64 s[{sT0}:{sT0+1}]')
        p.label('L_pc')
        p(f'v_lshlrev_b32 v{t2}, 7, v0')
        p(f'v_min_u32 v{t2}, L_codeend-L_pc, v{t2}')
        p(f'global_load_dword a255, v{t2}, s[{sT0}:{sT0+1}]')
        p(f's_mov_b32 s{sLAYER}, 0')
        if os.environ.get('CALIB'):
            p('s_memrealtime s[100:101]')
        self.stamp('start')
        p(f'v_lshrrev_b32 v{vT}, 6, v0')
        p(f'v_and_b32 v{vL}, 63, v0')
        p(f'v_readfirstlane_b32 s{sW}, v{vT}')
        p(f's_lshr_b32 s{sM}, s2, 3')
        vPK = vT + 14
        p(f's_lshl_b32 s{sT2}, s{sM}, 2')
        p(f's_add_u32 s{sT2}, s{sT2}, s{sW}')
        p(f's_mul_i32 s{sT3}, s{sT2}, 49')
        p(f'v_add_u32 v{t2}, s{sT3}, v{vL}')
        p(f'v_mul_u32_u24 v{vPK}, 74899, v{t2}')
        p(f'v_lshrrev_b32 v{vPK}, 20, v{vPK}')
        p(f'v_mul_u32_u24 v{vPK}, 7, v{vPK}')
        p(f'v_add_u32 v{vPK}, v{vPK}, v{t2}')
        p(f'v_lshlrev_b32 v{vPK}, 7, v{vPK}')
        p(f's_and_b32 s{sTEAM}, s2, 7')
        p(f's_and_b32 s{sJ}, s{sM}, 15')
        p(f's_lshr_b32 s{sA}, s{sM}, 4')
        p(f's_mul_i32 s{sRB}, s{sM}, 37')
        p(f's_lshr_b32 s{sRB}, s{sRB}, 8')
        p(f's_mul_i32 s{sT0}, s{sRB}, 7')
        p(f's_sub_u32 s{sCB}, s{sM}, s{sT0}')
        p(f's_lshr_b32 s{sRHO}, s{sW}, 1')
        p(f's_and_b32 s{sNU}, s{sW}, 1')
        p(f'v_lshrrev_b32 v{t0}, 2, v{vL}')
        p(f'v_and_b32 v{t1}, 3, v{vL}')
        p(f'v_lshlrev_b32 v{t3}, 3, v{t1}')
        p(f'v_lshlrev_b32 v{t1}, 4, v{t1}')
        b = sO

        def mksrd(d, src, n):
            p(f's_mov_b32 s{d}, s{src}')
            p(f's_and_b32 s{d+1}, s{src+1}, 0xffff')
            p(f's_mov_b32 s{d+2}, {n}')
            p(f's_mov_b32 s{d+3}, 0x20000')
        mksrd(S_WQ, b + 2, 1204224)
        p('s_mov_b32 exec_hi, 0x1ffff')
        p(f'buffer_load_dword a255, v{vPK}, {srd(S_WQ)}, 0 offen offset:896')
        p('s_mov_b64 exec, -1')
        p(f's_load_dwordx2 s[{sF}:{sF+1}], s[{S_WSP}:{S_WSP+1}], {WS_EPOCH}')
        for (d, src, n) in ((S_X, b, 1835008), (S_WO, b + 4, 401408), (S_W1, b + 8, 1605632),
                            (S_W2, b + 10, 1605632), (S_OUT, b + 12, 1835008), (S_WS, S_WSP, WS_BYTES)):
            mksrd(d, src, n)
        self.stamp('ka')
        sI, sSTG = sO, sO + 1
        sFL, sDST, sJOB, sDST2 = sO + 2, sO + 3, sO + 4, sO + 5
        vD, vTR, vTR8 = vT + 4, vT + 5, vT + 13
        FR = 32
        p(f's_lshl_b32 s{sI}, s{sTEAM}, 1')
        p(f's_add_u32 s{sI}, s{sI}, s{sA}')
        p(f's_lshl_b32 s{sSTG}, s{sW}, 13')
        p(f's_add_u32 s{sSTG}, s{sSTG}, {LKV}')
        lA = [p.newlabel('jobA') for _ in range(3)]
        p(f's_mov_b32 s{sJOB}, 0')
        p.mark('maybe_begin')
        p(f's_cmp_ge_u32 s{sW}, 2')
        p(f's_cbranch_scc1 {lA[0]}')
        p(f's_cmp_eq_u32 s{sW}, 0')
        p(f's_cbranch_scc1 {lA[2]}')
        p(f's_cmp_ge_u32 s{sI}, 14')
        p(f's_cbranch_scc1 {lA[2]}')
        p(f'v_bfe_u32 v{vD}, v{vL}, 1, 3')
        p(f'v_bfe_u32 v{t2}, v{vL}, 4, 1')
        p(f'v_lshl_add_u32 v{vD}, v{t2}, 4, v{vD}')
        p(f'v_bfe_u32 v{t2}, v{vL}, 5, 1')
        p(f'v_lshl_add_u32 v{vD}, v{t2}, 3, v{vD}')
        p(f'v_mul_u32_u24 v{vD}, 3584, v{vD}')
        p(f'v_and_b32 v{t2}, 1, v{vL}')
        p(f'v_lshl_add_u32 v{vD}, v{t2}, 4, v{vD}')
        p(f's_mul_i32 s{sT0}, s{sI}, {32*3584}')
        p(f's_mul_i32 s{sT1}, s{sJ}, 224')
        p(f's_add_u32 s{sT0}, s{sT0}, s{sT1}')
        for t in range(7):
            p.ext(self.dma(S_W1, vD, sT0, t * 32, (sSTG, t * 1024), 'raw'))
        p(f's_mov_b32 s{sJOB}, 2')
        p(f's_branch {lA[2]}')
        p.label(lA[0])
        p(f'v_mul_u32_u24 v{vD}, 896, v{t0}')
        p(f'v_add_u32 v{vD}, v{vD}, v{t1}')
        p(f's_cmp_ge_u32 s{sM}, 28')
        p(f's_cbranch_scc1 {lA[1]}')
        sI2, sSL, sHF = sT2, sT3, sT4
        p(f's_lshl_b32 s{sI2}, s{sTEAM}, 2')
        p(f's_add_u32 s{sI2}, s{sI2}, s{sRB}')
        p(f's_lshr_b32 s{sSL}, s{sI2}, 1')
        p(f's_and_b32 s{sHF}, s{sI2}, 1')
        p(f's_mul_i32 s{sT0}, s{sSL}, {112*896}')
        p(f's_mul_i32 s{sT1}, s{sHF}, {64*896}')
        p(f's_add_u32 s{sT0}, s{sT0}, s{sT1}')
        p(f's_lshl_b32 s{sT1}, s{sCB}, 7')
        p(f's_add_u32 s{sT0}, s{sT0}, s{sT1}')
        p(f's_lshl_b32 s{sT1}, s{sNU}, 6')
        p(f's_add_u32 s{sT0}, s{sT0}, s{sT1}')
        for k in range(4):
            p.ext(self.dma(S_W2, vD, sT0, k * 16 * 896, (sSTG, k * 1024), 'raw'))
        p(f's_add_u32 s{sJOB}, s{sHF}, 3')
        p(f's_branch {lA[2]}')
        p.label(lA[1])
        p(f's_cmp_eq_u32 s{sTEAM}, 7')
        p(f's_cbranch_scc1 {lA[2]}')
        p(f's_mul_i32 s{sT0}, s{sCB}, {112*896}')
        p(f's_lshl_b32 s{sT1}, s{sTEAM}, 7')
        p(f's_add_u32 s{sT0}, s{sT0}, s{sT1}')
        p(f's_lshl_b32 s{sT1}, s{sNU}, 6')
        p(f's_add_u32 s{sT0}, s{sT0}, s{sT1}')
        for k in range(8):
            p.ext(self.dma(S_WO, vD, sT0, k * 16 * 896, (sSTG, k * 1024), 'raw'))
        p(f's_mov_b32 s{sJOB}, 5')
        p.mark('maybe_end')
        p.label(lA[2])
        p(f's_lshl_b32 s{sT0}, s{sTEAM}, 2')
        p(f's_add_u32 s{sT0}, s{sT0}, s{sRB}')
        p(f's_lshl_b32 s{sT1}, s{sT0}, 1')
        p(f's_add_u32 s{sT1}, s{sT1}, s{sRHO}')
        p(f's_mul_i32 s{sQOFF}, s{sT1}, {32*896}')
        p(f's_lshl_b32 s{sT1}, s{sCB}, 7')
        p(f's_add_u32 s{sQOFF}, s{sQOFF}, s{sT1}')
        p(f's_lshl_b32 s{sT1}, s{sNU}, 6')
        p(f's_add_u32 s{sQOFF}, s{sQOFF}, s{sT1}')
        p(f'v_and_b32 v{t2}, 31, v{vL}')
        p(f'v_mul_u32_u24 v{t2}, 896, v{t2}')
        p(f'v_lshrrev_b32 v{vTR8}, 5, v{vL}')
        p(f'v_lshl_add_u32 v{t2}, v{vTR8}, 3, v{t2}')
        XR = 96
        for q in range(4):
            p(f'buffer_load_dwordx2 {vr(XR+2*q,2)}, v{t2}, {srd(S_X)}, s{sQOFF} offen offset:{16*q}')
        p(f's_lshl_b32 s{sT2}, s{sM}, 2')
        p(f's_add_u32 s{sT2}, s{sT2}, s{sW}')
        p(f's_mul_i32 s{sT3}, s{sT2}, 25')
        p(f'v_add_u32 v{t2}, s{sT3}, v{vL}')
        p(f'v_mul_u32_u24 v{vPK}, 149797, v{t2}')
        p(f'v_lshrrev_b32 v{vPK}, 20, v{vPK}')
        p(f'v_mul_u32_u24 v{vPK}, 14, v{vPK}')
        p(f'v_add_u32 v{vPK}, v{vPK}, v{t2}')
        p(f'v_lshlrev_b32 v{vPK}, 7, v{vPK}')
        p('s_mov_b64 exec, 0x1ffffff')
        p(f'buffer_load_dword a255, v{vPK}, {srd(S_WQ)}, 0 offen')
        p('s_mov_b64 exec, -1')
        self.stamp('jA')
        p(f's_mul_i32 s{sLB}, s{sTEAM}, {STRIDE}')
        p(f's_add_u32 s{sLB}, s{sLB}, {TEAM0}')
        p(f's_mov_b32 s{sTB}, s{sLB}')
        p(f's_lshl_b32 s{sTP}, s{sA}, 2')
        p(f's_add_u32 s{sTP}, s{sTP}, s{sW}')
        p(f'v_lshlrev_b32 v{vL16}, 4, v{vL}')
        p(f'v_mul_u32_u24 v{vDQ}, 2688, v{t0}')
        p(f'v_add_u32 v{vDQ}, v{vDQ}, v{t1}')
        p(f's_mul_i32 s{sRQ}, s{sW}, {7*16*2688}')
        p(f's_mul_i32 s{sT1}, s{sJ}, 56')
        p(f's_add_u32 s{sRQ}, s{sRQ}, s{sT1}')
        p(f's_mul_i32 s{sLQ}, s{sW}, 7168')
        p(f'v_bfe_u32 v{t2}, v{vL}, 4, 1')
        p(f'v_lshl_add_u32 v{t2}, v{t2}, 5, v{t3}')
        p(f'v_bfe_u32 v{vTR}, v{vL}, 2, 2')
        p(f'v_lshl_add_u32 v{t2}, v{vTR}, 6, v{t2}')
        p(f'v_lshl_add_u32 v{vTQ}, v{vTR8}, 8, v{t2}')
        p(f'v_add_u32 v{vTR}, s{sSTG}, v{vTQ}')
        p(f'v_add_u32 v{t2}, s{sSTG}, v{t2}')
        p(f'v_lshl_add_u32 v{vTR8}, v{vTR8}, 9, v{t2}')
        p(f'v_add_u32 v{vTQ}, s{sLQ}, v{vTQ}')
        p(f'v_add_u32 v{vWQ}, s{sLQ}, v{vL16}')
        p(f's_mov_b32 s{sPERM}, 0x07060302')
        p(f's_mov_b32 s{sONES}, 0x3f803f80')
        p(f's_mov_b32 s{sPURE}, 1')
        p(f'v_lshlrev_b32 v{vL8}, 3, v{vL}')
        p.ext(self.pub_offsets(O_XA, O_STA, O_FXA))
        self.lane_consts()
        vCSP = 104
        p(f'v_mov_b32 v{vCSP+3}, s{sONES}')
        for k, r in enumerate((vDQ, vTQ, vWQ)):
            p(f'v_accvgpr_write_b32 a{252+k}, v{r}')
        p('s_waitcnt lgkmcnt(0)')
        p(f's_add_u32 s{sF}, s{sF}, 1')
        p(f's_addc_u32 s{sF+1}, s{sF+1}, 0')
        p(f'v_mov_b32 v{vF}, s{sF}')
        p(f'v_mov_b32 v{vF+1}, s{sF+1}')
        p.items.append(Touch(vr(XR, 8)))
        self.stamp('rt1')
        for i in range(3):
            self.rawq(0, i)
        p(f's_cmp_ge_u32 s{sM}, 28')
        p(f's_cselect_b32 s{sXF}, -1, s{sXF}')
        lp0 = p.newlabel('p0skip')
        p(f's_cbranch_scc1 {lp0}')
        p.mark('maybe_begin')
        self.x_store(XR, vL16, (0, 1024), 'sc1')
        p.mark('maybe_end')
        p.label(lp0)

        def finish(nfr, offs):
            L = []
            base = None
            for k in range(nfr):
                hi, lo = offs[k] // 4096 * 4096, offs[k] % 4096
                if hi != base:
                    L.append(f's_add_u32 s{sT5}, s{sDST}, {hi}')
                    base = hi
                L.append(f'buffer_store_dwordx4 {vr(FR+4*k)}, v{vL16}, {srd(S_WS)}, s{sT5} offen offset:{lo} sc1')
            return L
        lB = {k: p.newlabel('jobB') for k in (3, 4, 5, 'join')}
        p(f's_mov_b32 s{sFL}, -1')
        p.mark('maybe_begin')
        p(f's_cmp_eq_u32 s{sJOB}, 0')
        p(f's_cbranch_scc1 {lB["join"]}')
        p(f's_cmp_eq_u32 s{sJOB}, 5')
        p(f's_cbranch_scc1 {lB[5]}')
        p(f's_cmp_ge_u32 s{sJOB}, 3')
        p(f's_cbranch_scc1 {lB[3]}')
        p(f'v_lshl_add_u32 v{vTR}, v{t0}, 5, v{t3}')
        p(f'v_add_u32 v{vTR}, s{sSTG}, v{vTR}')
        for t in range(7):
            for jj in range(2):
                p(f'ds_read_b64_tr_b16 {vr(FR+t*4+2*jj,2)}, v{vTR} offset:{t*1024+jj*512}')
        p(f's_mul_i32 s{sDST}, s{sJ}, 100352')
        p(f's_add_u32 s{sDST}, s{sDST}, {W1T}')
        p(f's_mul_i32 s{sDST2}, s{sI}, 3072')
        p(f's_add_u32 s{sDST2}, s{sDST2}, s{sDST}')
        p(f's_add_u32 s{sDST2}, s{sDST2}, 57344')
        p(f's_lshl_b32 s{sT0}, s{sI}, 12')
        p(f's_add_u32 s{sDST}, s{sDST}, s{sT0}')
        p(f's_lshl_b32 s{sFL}, s{sJ}, 4')
        p(f's_add_u32 s{sFL}, s{sFL}, s{sI}')
        p(f's_lshl_b32 s{sFL}, s{sFL}, 3')
        p(f's_add_u32 s{sFL}, s{sFL}, {F_W1}')
        p.ext(finish(4, [t * 1024 for t in range(4)]))
        for t in range(4, 7):
            p(f'buffer_store_dwordx4 {vr(FR+4*t)}, v{vL16}, {srd(S_WS)}, s{sDST2} offen offset:{(t-4)*1024} sc1')
        p(f's_branch {lB["join"]}')
        p.label(lB[3])
        for sg in range(2):
            for jj in range(2):
                p(f'ds_read_b64_tr_b16 {vr(FR+sg*4+2*jj,2)}, v{vTR} offset:{(16*jj+8*sg)*64}')
        p(f's_lshl_b32 s{sI2}, s{sTEAM}, 2')
        p(f's_add_u32 s{sI2}, s{sI2}, s{sRB}')
        p(f's_lshr_b32 s{sSL}, s{sI2}, 1')
        p(f's_and_b32 s{sHF}, s{sI2}, 1')
        p(f's_mul_i32 s{sDST}, s{sCB}, 229376')
        p(f's_mul_i32 s{sT0}, s{sSL}, 14336')
        p(f's_add_u32 s{sDST}, s{sDST}, s{sT0}')
        p(f's_lshl_b32 s{sT0}, s{sHF}, 13')
        p(f's_add_u32 s{sDST}, s{sDST}, s{sT0}')
        p(f's_lshl_b32 s{sT0}, s{sNU}, 10')
        p(f's_add_u32 s{sDST}, s{sDST}, s{sT0}')
        p(f's_add_u32 s{sDST}, s{sDST}, {W2T}')
        p(f's_lshl_b32 s{sFL}, s{sCB}, 5')
        p(f's_add_u32 s{sFL}, s{sFL}, s{sI2}')
        p(f's_lshl_b32 s{sFL}, s{sFL}, 1')
        p(f's_add_u32 s{sFL}, s{sFL}, s{sNU}')
        p(f's_lshl_b32 s{sFL}, s{sFL}, 3')
        p(f's_add_u32 s{sFL}, s{sFL}, {F_W2}')
        p(f's_cmp_eq_u32 s{sJOB}, 4')
        p(f's_cbranch_scc1 {lB[4]}')
        for sg in range(2, 4):
            for jj in range(2):
                p(f'ds_read_b64_tr_b16 {vr(FR+sg*4+2*jj,2)}, v{vTR} offset:{(32+16*jj+8*(sg%2))*64}')
        p.ext(finish(4, [k * 2048 for k in range(4)]))
        p(f's_branch {lB["join"]}')
        p.label(lB[4])
        for jj in range(2):
            p(f'ds_read_b64_tr_b16 {vr(FR+8+2*jj,2)}, v{vTR8} offset:{(32+4*jj)*64}')
        p('s_waitcnt lgkmcnt(0)')
        p.ext(finish(3, [k * 2048 for k in range(3)]))
        p(f's_branch {lB["join"]}')
        p.label(lB[5])
        for hd in range(4):
            for kp in range(2):
                for jj in range(2):
                    p(f'ds_read_b64_tr_b16 {vr(FR+(hd*2+kp)*4+2*jj,2)}, v{vTR} offset:{(28*hd+16*kp+8*jj)*64}')
        p(f's_lshl_b32 s{sFL}, s{sTEAM}, 2')
        p(f's_add_u32 s{sFL}, s{sFL}, s{sCB}')
        p(f's_lshl_b32 s{sDST}, s{sFL}, 14')
        p(f's_lshl_b32 s{sT0}, s{sNU}, 10')
        p(f's_add_u32 s{sDST}, s{sDST}, s{sT0}')
        p(f's_add_u32 s{sDST}, s{sDST}, {WOT}')
        p(f's_lshl_b32 s{sFL}, s{sFL}, 1')
        p(f's_add_u32 s{sFL}, s{sFL}, s{sNU}')
        p(f's_lshl_b32 s{sFL}, s{sFL}, 3')
        p(f's_add_u32 s{sFL}, s{sFL}, {F_WO}')
        p('s_waitcnt lgkmcnt(0)')
        p('s_mov_b32 exec_lo, 0')
        for hd in range(4):
            p(f'v_mov_b32 v{FR+(hd*2+1)*4+2}, 0')
            p(f'v_mov_b32 v{FR+(hd*2+1)*4+3}, 0')
        p('s_mov_b64 exec, -1')
        p.ext(finish(8, [k * 2048 for k in range(8)]))
        p.mark('maybe_end')
        p.label(lB['join'])
        p(f's_getreg_b32 s{sT0}, hwreg(HW_REG_XCC_ID)')
        p(f's_and_b32 s{sT0}, s{sT0}, 15')
        p(f's_lshl_b32 s{sT0}, s{sT0}, 28')
        p(f's_xor_b32 s{sT0}, s{sT0}, s{sF+1}')
        p(f'v_mov_b32 v{t2}, s{sF}')
        p(f'v_mov_b32 v{t3}, s{sT0}')
        p(f's_lshl_b32 s{sT1}, s{sTEAM}, 8')
        p(f's_lshl_b32 s{sT2}, s{sM}, 3')
        p(f's_add_u32 s{sT1}, s{sT1}, s{sT2}')
        p(f's_add_u32 s{sT1}, s{sT1}, {WS_PUR}')
        lx = p.newlabel('noxcc')
        p(f's_cmp_lg_u32 s{sW}, 0')
        p(f's_cbranch_scc1 {lx}')
        p.mark('maybe_begin')
        p('s_mov_b64 exec, 1')
        p(f'buffer_store_dwordx2 {vr(t2,2)}, off, {srd(S_WS)}, s{sT1} sc1')
        p('s_mov_b64 exec, -1')
        p.mark('maybe_end')
        p.label(lx)
        self.stamp('jB')
        for i in range(3, 7):
            self.rawq(0, i)
        for i in range(4):
            self.rawq(1, i)
        p('s_waitcnt vmcnt(8)')
        self.flag_opt(sXF)
        self.flag_opt(sFL)
        self.xform(0, 128, vCSP, vCSP + 3, lambda i: self.rawq(1, i + 4) if i < 3 else None)
        self.stamp('xf0')
        self.walker_at = len(p.items)
        p.ext(self.res_unpack(XR))
        self.xform(1, 160, vCSP + 1, vCSP + 3)
        self.cs_partial((0, 1), vCSP, t2, t3)
        p('s_waitcnt lgkmcnt(0)')
        p('s_barrier')
        self.stamp('bar')
        self.cs_sum((0, 1), 108, t2, t3)
        self.stamp('pro')

    def q_late(self, R, sKF):
        p = self.p
        vcs, vones, t2, t3 = R + 28, R + 29, R + 30, R + 31
        self.vDQ, self.vTQ, self.vWQ = 224, 225, 226
        for k in range(3):
            p(f'v_accvgpr_read_b32 v{224+k}, a{252+k}')
        p(f'v_mov_b32 v{vones}, s{sONES}')
        for i in range(7):
            self.rawq(2, i)
        p.wait('kvst')
        p.ext(self.flag_sc1(sKF))
        self.xform(2, R, vcs, vones)
        self.cs_partial((2,), vcs, t2, t3)
        p('s_waitcnt lgkmcnt(0)')
        p('s_barrier')
        self.cs_sum((2,), R, t2, t3)

    def wqt_publish(self, R):
        p = self.p
        l = p.newlabel('nowqt')
        p(f's_lshl_b32 s{sT0}, s{sTEAM}, 1')
        p(f's_add_u32 s{sT0}, s{sT0}, s{sA}')
        p(f's_cmp_ge_u32 s{sT0}, 14')
        p(f's_cbranch_scc1 {l}')
        p(f's_cmp_lg_u32 s{sW}, 0')
        p(f's_cbranch_scc1 {l}')
        p(f's_lshl_b32 s{sT1}, s{sT0}, 11')
        p(f'v_add_u32 v{R+24}, s{sT1}, v{vL16}')
        for tau in range(3):
            for kp in range(2):
                p(f'ds_read_b128 {vr(R+(tau*2+kp)*4)}, v{R+24} offset:{tau*28672+kp*1024}')
        p(f's_mul_i32 s{sT2}, s{sJ}, 86016')
        p(f's_add_u32 s{sT1}, s{sT1}, s{sT2}')
        for tau in range(3):
            p(f's_add_u32 s{sT2}, s{sT1}, {WQT + tau*28672}')
            for kp in range(2):
                p(f'buffer_store_dwordx4 {vr(R+(tau*2+kp)*4)}, v{vL16}, {srd(S_WS)}, s{sT2} offen offset:{kp*1024} sc1')
        p(f's_lshl_b32 s{sJFL}, s{sJ}, 4')
        p(f's_add_u32 s{sJFL}, s{sJFL}, s{sT0}')
        p(f's_lshl_b32 s{sJFL}, s{sJFL}, 3')
        p(f's_add_u32 s{sJFL}, s{sJFL}, {F_WQ}')
        p.label(l)

    def p1(self):
        p = self.p
        X, ACC, RING, CS = 32, 144, 192, 224
        accK, accV, accQ = ACC, ACC + 16, ACC + 32
        PK, PV = vT, vT + 8
        sXO, sST, sFX, sKV, sKF = sO, sO + 7, sO + 8, sO + 9, sO + 10
        p.ext(self.xoff(sXO, sTP, 28672, O_XA))
        for g in range(1, 7):
            p(f's_add_u32 s{sXO+g}, s{sXO}, {4096*g}')
        p.ext(self.off(sST, sTP, 3584, O_STA))
        p.ext(self.off(sFX, sTP, 128, O_FXA))
        p(f's_lshl_b32 s{sT0}, s{sJ}, 3')
        p(f's_add_u32 s{sT0}, s{sT0}, s{sTP}')
        p.ext(self.off(sKV, sT0, 4096, O_KV))
        p.ext(self.off(sKF, sT0, 128, O_FKV))
        p(f'v_lshrrev_b32 v{vCSA}, 5, v{vL}')
        p(f'v_lshlrev_b32 v{vCSA}, 4, v{vCSA}')
        p(f'v_add_u32 v{vCSA}, {L_CSQ}, v{vCSA}')

        def frag(f):
            if f < 56:
                base, off = vL16, (f % 2) * 28672 + (f // 2) * 1024
            else:
                base, off = vA1, (f - 56) * 1024
            return f'ds_read_b128 {vr(RING + 4*(f % 8))}, v{base} offset:{off}'

        def mf(f):
            acc, s = ((accK, accV)[f % 2], f // 2) if f < 56 else (accQ, f - 56)
            return f'{MF32} {vr(acc,16)}, {vr(RING+4*(f%8))}, {vr(X+4*s)}, {vr(acc,16) if s else 0}'

        def xl(s):
            return f'buffer_load_dwordx4 {vr(X+4*s)}, v{vL16}, {srd(S_WS)}, s{sXO + s//4} offen offset:{(s%4)*1024} sc1'
        self.stamp('p5')
        self.pad()
        self.vpoll(vL8, sFX, 14)
        self.stamp('E')
        XP = 8
        for s in range(XP):
            p(xl(s))

        PD = 6
        for f in range(PD):
            p(frag(f))
        mem, pre = {}, {}
        for f in range(84):
            mem[f] = []
            if f + PD < 84 and not (f < 56 <= f + PD):
                mem[f].append(frag(f + PD))
            if f < 56 and f % 2 == 0 and f // 2 + XP < 28:
                mem[f].append(xl(f // 2 + XP))
            if 33 <= f < 47 and f % 2 == 1:
                mem[f].append(self.stats_loads(sST, CS)[(f - 33) // 2])
            if f % 2 == 0:
                pre[f] = [Touch(vr(RING + 4 * (f % 8)) + ' ' + vr(RING + 4 * ((f + 1) % 8)) + (' ' + vr(X + 4 * (f // 2)) if f < 56 else ''))]

        def cs_reads(tau, dst):
            return [f'ds_read_b128 {vr(dst+4*q)}, v{vCSA} offset:{tau*128 + 32*q}' for q in range(4)]
        p.ext(sched([mf(f) for f in range(56)], pre, mem, cs_reads(1, accQ) + cs_reads(0, PK), 5, start=40))
        p.ext(self.stats_reduce(CS))
        self.stamp('kv')

        def epi(acc, cs, P):
            L = []
            for r in range(0, 16, 2):
                L.append(f'v_pk_fma_f32 {vr(acc+r,2)}, {vr(cs+r,2)}, {vr(vMEAN,2)}, {vr(acc+r,2)} op_sel:[0,0,0] op_sel_hi:[1,0,1]')
            for r in range(0, 16, 2):
                L.append(f'v_pk_mul_f32 {vr(acc+r,2)}, {vr(acc+r,2)}, {vr(vMEAN,2)} op_sel:[0,1] op_sel_hi:[1,1]')
                L.append(f'v_cvt_pk_bf16_f32 v{P+r//2}, v{acc+r}, v{acc+r+1}')
            return L

        def pad(P, c6, c7):
            return ['s_mov_b32 exec_lo, 0', f'v_mov_b32 v{P+6}, {c6:#x}', f'v_mov_b32 v{P+7}, {c7:#x}', 's_mov_b64 exec, -1']

        def st(P, o):
            return [Ins(f'buffer_store_dwordx4 {vr(P+4*k)}, v{vL16}, {srd(S_WS)}, s{sKV} offen offset:{o+1024*k} sc1', 'kvst') for k in range(2)]
        t0, t1 = CS, CS + 1
        p.ext(epi(accK, PK, PK) + pad(PK, 0x3f803f80, 0x3f80) + st(PK, 0))
        p.ext(epi(accV, accQ, PV) + pad(PV, 0x3f80, 0) + st(PV, 2048))
        self.stamp('kvs')
        self.if_layer0(lambda: self.q_late(ACC, sKF))
        for f in range(56, 56 + PD):
            p(frag(f))
        side = [f's_lshl_b32 s{sT0}, s{sW}, 12', f's_add_u32 s{sT0}, s{sT0}, {LKV + 8*4096}',
                f'v_add_u32 v{t0}, s{sT0}, v{vL16}',
                f'ds_write_b128 v{t0}, {vr(PK)}', f'ds_write_b128 v{t0}, {vr(PK+4)} offset:1024',
                f'v_and_b32 v{t1}, 31, v{vL}', f'v_lshlrev_b32 v{t1}, 6, v{t1}', f'v_lshrrev_b32 v{t0}, 5, v{vL}',
                f'v_lshl_add_u32 v{t1}, v{t0}, 4, v{t1}', f'v_add_u32 v{t0}, s{sT0}, v{t1}',
                f'ds_write_b128 v{t0}, {vr(PV)} offset:2048', f'ds_write_b128 v{t0}, {vr(PV+4)} offset:{2048+32}',
                f'v_mul_f32 v{vRSTD}, {f32bits(28 ** -0.5 * math.log2(math.e)):#x}, v{vRSTD}'] + cs_reads(2, CS)
        pre2 = {f - 56: v for f, v in pre.items() if f >= 56}
        mem2 = {f - 56: v for f, v in mem.items() if f >= 56}
        p.ext(sched([mf(f) for f in range(56, 84)], pre2, mem2, side, 4, start=0))
        p.wait('kvst')
        p.ext(self.flag_sc1(sKF))
        self.stamp('q')
        QF = 200
        p.ext(epi(accQ, CS, QF))
        p.ext(pad(QF, 0, 0x3f800000))
        p(f's_mov_b32 s{sJFL}, -1')
        self.if_layer0(lambda: self.wqt_publish(32))
        self.pad()
        p('s_barrier')
        self.stamp('p1')

    def attn(self):
        p = self.p
        KF, ST, MW, MD, OA, QF, PB, VF = 32, 104, 152, 168, 184, 200, 208, 224
        t0, t1 = 104, 105

        NK = 2
        sKD, sKL, sKFl, sNULL = sO + 8, sO + 11, sPOLL + 6, sT4
        sKFl = [sO + 14, sO + 15, sT3]
        p(f's_mov_b32 s{sNULL}, 0')
        for k in range(NK):
            p(f's_lshl_b32 s{sT0}, s{sW}, 1')
            p(f's_add_u32 s{sT0}, s{sT0}, {k}')
            p(f's_lshl_b32 s{sKL+k}, s{sT0}, 12')
            p(f's_add_u32 s{sKL+k}, s{sKL+k}, {LKV}')
            p(f's_lshl_b32 s{sT1}, s{sA}, 2')
            p(f's_add_u32 s{sT0}, s{sT0}, s{sT1}')
            p(f's_cmp_lt_u32 s{sT0}, 8')
            p(f's_cselect_b32 s{sT1}, {STRIDE}, 0')
            p(f's_sub_u32 s{sT1}, s{sLB}, s{sT1}')
            p(f's_and_b32 s{sT0}, s{sT0}, 7')
            p(f's_cmp_lt_i32 s{sT1}, {TEAM0}')
            p(f's_cselect_b32 s{sT2}, {1 << k}, 0')
            p(f's_cselect_b32 s{sT1}, s{sLB}, s{sT1}')
            p(f's_cselect_b32 s{sT0}, s{sTP}, s{sT0}')
            p(f's_or_b32 s{sNULL}, s{sNULL}, s{sT2}')
            p(f's_lshl_b32 s{sT2}, s{sJ}, 3')
            p(f's_add_u32 s{sT0}, s{sT0}, s{sT2}')
            p(f's_lshl_b32 s{sKD+k}, s{sT0}, 12')
            p(f's_add_u32 s{sKD+k}, s{sKD+k}, s{sT1}')
            p(f's_lshl_b32 s{sT0}, s{sT0}, 7')
            p(f's_add_u32 s{sT0}, s{sT0}, s{sT1}')
            p(f's_add_u32 s{sKFl[k]}, s{sT0}, {O_FKV}')
        p(f'v_bfe_u32 v{t0}, v{vL}, 1, 1')
        p(f'v_lshlrev_b32 v{t0}, 10, v{t0}')
        p(f'v_and_b32 v{t1}, 1, v{vL}')
        p(f'v_lshl_add_u32 v{t0}, v{t1}, 9, v{t0}')
        p(f'v_lshrrev_b32 v{t1}, 2, v{vL}')
        p(f'v_lshl_add_u32 v{t0}, v{t1}, 4, v{t0}')
        lp, lo = p.newlabel('kvpoll'), p.newlabel('kvpollout')
        self.stamp('w1')
        p('s_waitcnt lgkmcnt(0)')
        p(f's_mov_b32 s{sCNT}, 0')
        p.label(lp)
        for k in range(NK):
            p(f's_load_dwordx2 s[{sPOLL+2*k}:{sPOLL+2*k+1}], s[{S_WSP}:{S_WSP+1}], s{sKFl[k]} glc')
        p(f's_add_u32 s{sCNT}, s{sCNT}, 1')
        p(f's_cmp_gt_u32 s{sCNT}, {POLL_MAX}')
        p(f's_cbranch_scc1 {lo}')
        p('s_waitcnt lgkmcnt(0)')
        for k in range(NK):
            p(f's_cmp_eq_u64 s[{sPOLL+2*k}:{sPOLL+2*k+1}], s[{sF}:{sF+1}]')
            p(f's_cbranch_scc0 {lp}')
        p.label(lo)
        self.stamp('kvf')
        for k in range(NK):
            lnull, lb = p.newlabel('null'), p.newlabel('nullback')
            p(f's_bitcmp1_b32 s{sNULL}, {k}')
            p(f's_cbranch_scc1 {lnull}')
            p(f's_mov_b32 m0, s{sKL+k}')
            p(f's_sub_u32 s{sT5}, s{sKD+k}, 768')
            p(f'buffer_load_dwordx4 v{vL16}, {srd(S_WS)}, s{sKD+k} offen sc1 lds')
            p(f'buffer_load_dwordx4 v{vL16}, {srd(S_WS)}, s{sKD+k} offen offset:1024 sc1 lds')
            p(f'buffer_load_dwordx4 v{t0}, {srd(S_WS)}, s{sKD+k} offen offset:2048 sc1 lds')
            p(f'buffer_load_dwordx4 v{t0}, {srd(S_WS)}, s{sT5} offen offset:3072 sc1 lds')
            p.label(lb)
            self.tail.append((lnull, [
                f'v_add_u32 v{t1}, s{sKL+k}, v{vL16}',
                'v_mov_b32 v108, 0', 'v_mov_b32 v109, 0', 'v_mov_b32 v110, 0', 'v_mov_b32 v111, 0'] +
                [f'ds_write_b128 v{t1}, v[108:111] offset:{o}' for o in (0, 2048, 3072)] +
                ['s_mov_b32 exec_lo, 0', 'v_mov_b32 v111, 0xf1490000', 's_mov_b64 exec, -1',
                 f'ds_write_b128 v{t1}, v[108:111] offset:1024', f's_branch {lb}']))
        t2, t3 = 106, 107
        p(f'v_and_b32 v{t2}, 31, v{vL}')
        p(f'v_lshrrev_b32 v{t3}, 5, v{vL}')
        p(f'v_lshlrev_b32 v{t3}, 2, v{t3}')
        p(f'v_sub_u32 v{t2}, v{t2}, v{t3}')
        p(f'v_mov_b32 v{t3}, {f32bits(-1e30):#x}')
        for r in range(0, 16, 2):
            k0, k1 = 8 * (r // 4) + r % 4, 8 * (r // 4) + r % 4 + 1
            p(f'v_cmp_le_i32 vcc, {k0}, v{t2}')
            p(f'v_cmp_le_i32 s[{sPOLL}:{sPOLL+1}], {k1}, v{t2}')
            p('s_nop 0')
            p(f'v_cndmask_b32_e64 v{MD+r}, v{t3}, 0, vcc')
            p(f'v_cndmask_b32_e64 v{MD+r+1}, v{t3}, 0, s[{sPOLL}:{sPOLL+1}]')
            p(f'v_cndmask_b32_e64 v{MW+r}, 0, v{t3}, vcc')
            p(f'v_cndmask_b32_e64 v{MW+r+1}, 0, v{t3}, s[{sPOLL}:{sPOLL+1}]')
        vKA, vVA = vT, vT + 1
        p(f's_lshl_b32 s{sT0}, s{sW}, 12')
        p(f's_add_u32 s{sT0}, s{sT0}, {LKV}')
        p(f'v_add_u32 v{vKA}, s{sT0}, v{vL16}')
        p(f'v_lshrrev_b32 v{t2}, 5, v{vL}')
        p(f'v_bfe_u32 v{t3}, v{vL}, 2, 2')
        p(f'v_lshl_add_u32 v{t2}, v{t2}, 2, v{t3}')
        p(f'v_lshlrev_b32 v{vVA}, 6, v{t2}')
        p(f'v_bfe_u32 v{t2}, v{vL}, 4, 1')
        p(f'v_lshl_add_u32 v{vVA}, v{t2}, 5, v{vVA}')
        p(f'v_and_b32 v{t2}, 1, v{vL}')
        p(f'v_lshl_add_u32 v{vVA}, v{t2}, 4, v{vVA}')
        p(f'v_bfe_u32 v{t2}, v{vL}, 1, 1')
        p(f'v_lshl_add_u32 v{vVA}, v{t2}, 3, v{vVA}')
        p(f'v_add_u32 v{vVA}, s{sT0}, v{vVA}')
        sOD, sOF, sWO = sO, sO + 1, sO + 2
        p(f's_lshl_b32 s{sT0}, s{sTP}, 4')
        p(f's_add_u32 s{sT0}, s{sT0}, s{sJ}')
        p.ext(self.roff(sOD, sT0, 2048, O_O))
        p.ext(self.off(sOF, sT0, 8, O_FO))
        p(f's_lshl_b32 s{sWO}, s{sCB}, 2')
        p(f's_add_u32 s{sWO}, s{sWO}, s{sW}')
        p(f's_lshl_b32 s{sWO}, s{sWO}, 14')
        p(f's_add_u32 s{sWO}, s{sWO}, {WOT}')
        for g in range(1, 4):
            p(f's_add_u32 s{sWO+g}, s{sWO}, {4096*g}')
        vPT = vT + 12
        p(f'v_lshlrev_b32 v{vPT}, 7, v{vL}')
        p(f'v_add_u32 v{vPT}, s{sOD}, v{vPT}')
        p(f's_lshl_b32 s{sT0}, s{sTP}, 7')
        p(f's_lshl_b32 s{sT1}, s{sRB}, 8')
        p(f's_lshl_b32 s{sT2}, s{sRHO}, 7')
        p(f's_add_u32 s{sT2}, s{sT2}, s{sT1}')
        p(f's_mul_i32 s{sT3}, s{sT2}, 28')
        p(f's_lshl_b32 s{sT4}, s{sCB}, 9')
        p(f's_add_u32 s{sT3}, s{sT3}, s{sT4}')
        p(f's_lshl_b32 s{sT4}, s{sNU}, 8')
        p(f's_add_u32 s{sT3}, s{sT3}, s{sT4}')
        for lane, (r, c) in enumerate([(sT0, O_FO), (sT1, O_FO), (sT1, O_FO + 128), (sT0, O_FX1), (sT2, O_FX1),
                                       (sT3, O_ST1), (sT3, O_ST1 + 128), (sT0, O_FH), (sT1, O_FH), (sT1, O_FH + 128),
                                       (sT3, LSTRIDE + O_STA), (sT3, LSTRIDE + O_STA + 128), (sT2, LSTRIDE + O_FXA),
                                       (sT0, LSTRIDE + O_FXA)]):
            p(f's_add_u32 s{sT4}, s{r}, {c}')
            p(f's_add_u32 s{sT4}, s{sT4}, s{sLB}')
            p(f'v_writelane_b32 v{vPT}, s{sT4}, {16 + lane}')
        p(f'v_cmp_lt_u32 vcc, 29, v{vL}')
        p(f'v_mov_b32 v{t2}, s{sT4}')
        p(f'v_cndmask_b32 v{vPT}, v{vPT}, v{t2}, vcc')
        vZ = vT + 8
        p(f's_lshl_b32 s{sT0}, s{sNU}, 10')
        p(f'v_xor_b32 v{vZ}, s{sT0}, v{vL16}')
        p(f'v_xor_b32 v{vZ+1}, 1024, v{vZ}')

        def first():
            l0 = p.newlabel('first')
            p(f's_cmp_lg_u32 s{sW}, 0')
            p(f's_cbranch_scc1 {l0}')
            p(f's_lshl_b32 s{sT0}, s{sJ}, 7')
            p(f's_add_u32 s{sT0}, s{sT0}, {F_W1}')
            p(f's_lshl_b32 s{sT2}, s{sCB}, 6')
            p(f's_add_u32 s{sT2}, s{sT2}, {F_WO - 14*8}')
            p(f's_lshl_b32 s{sT3}, s{sTEAM}, 8')
            p(f's_add_u32 s{sT3}, s{sT3}, {WS_PUR - 32*8}')
            p(f'v_add_u32 v{t2}, s{sT0}, v{vL8}')
            p(f'v_min_u32 v{t3}, {21*8}, v{vL8}')
            p(f'v_add_u32 v{t3}, s{sT2}, v{t3}')
            p(f'v_cmp_le_u32 vcc, 14, v{vL}')
            p(f'v_cndmask_b32 v{t2}, v{t2}, v{t3}, vcc')
            p(f'v_add_u32 v{t3}, s{sT3}, v{vL8}')
            p(f'v_cmp_le_u32 vcc, 32, v{vL}')
            p(f'v_cndmask_b32 v{t2}, v{t2}, v{t3}, vcc')
            lp, lo, ls = p.newlabel('pur'), p.newlabel('purout'), p.newlabel('pursleep')
            p(f's_mov_b32 s{sCNT}, 0')
            p.label(lp)
            p(f'buffer_load_dwordx2 {vr(108,2)}, v{t2}, {srd(S_WS)}, 0 offen sc1')
            p(f's_add_u32 s{sCNT}, s{sCNT}, 1')
            p(f's_cmp_gt_u32 s{sCNT}, {POLL_MAX}')
            p(f's_cbranch_scc1 {lo}')
            p('s_waitcnt vmcnt(0)')
            p(f'v_xor_b32 v109, s{sF+1}, v109')
            p(f'v_xor_b32 v108, s{sF}, v108')
            p(f'v_and_b32 v110, 0x0fffffff, v109')
            p(f'v_or_b32 v108, v108, v110')
            p(f'v_cmp_ne_u32 vcc, 0, v108')
            p(f's_cbranch_vccnz {ls}')
            p(f'v_readlane_b32 s{sT1}, v109, 32')
            p(f'v_cmp_ne_u32 vcc, s{sT1}, v109')
            p(f's_cmp_eq_u32 vcc_hi, 0')
            p(f's_cselect_b32 s{sT1}, {0 if os.environ.get("FORCE_IMPURE") else 1}, 0')
            p(f'v_mov_b32 v108, s{sT1}')
            p(f'v_mov_b32 v109, {L_PUR}')
            p('ds_write_b32 v109, v108')
            p.label(lo)
            p.label(l0)
            self.tail.append((ls, ['s_sleep 8', f's_branch {lp}']))
        self.if_layer0(first)
        self.pad()
        p('s_waitcnt vmcnt(0) lgkmcnt(0)')
        self.flag_opt(sJFL)
        self.stamp('kvd')
        p('s_barrier')
        self.stamp('A')

        def getpure():
            p(f'v_mov_b32 v{t0}, {L_PUR}')
            p(f'ds_read_b32 v{t0}, v{t0}')
            p(f'v_readfirstlane_b32 s{sPURE}, v{t0}')
        self.if_layer0(getpure)
        p(f'v_lshlrev_b32 v{t0}, 7, v{vL}')
        p(f's_lshl_b32 s{sT0}, s{sCB}, 2')
        p(f's_add_u32 s{sT0}, s{sT0}, s{sRB}')
        p(f's_lshl_b32 s{sT1}, s{sT0}, 14')
        p(f's_lshl_b32 s{sT2}, s{sW}, 12')
        p(f's_add_u32 s{sT1}, s{sT1}, s{sT2}')
        p(f's_add_u32 s{sT1}, s{sT1}, {WOT}')
        p('s_mov_b32 exec_hi, 0')
        p(f'buffer_load_dword a255, v{t0}, {srd(S_WS)}, s{sT1} offen sc1')
        p('s_mov_b64 exec, -1')
        p(f'buffer_load_dword a255, v{vPT}, {srd(S_WS)}, 0 offen sc1')
        bg = self.w1_dma(0)

        def kread(t):
            return [f'ds_read_b128 {vr(KF+8*t+4*k)}, v{vKA} offset:{t*4096+k*1024}' for k in range(2)]

        def qk(t):
            s = ST + 16 * (t % 3)
            c = vr(MW, 16) if t == 0 else vr(MD, 16) if t == 8 else '0'
            return [f'{MF32} {vr(s,16)}, {vr(KF+8*t)}, {vr(QF)}, {c}',
                    f'{MF32} {vr(s,16)}, {vr(KF+8*t+4)}, {vr(QF+4)}, {vr(s,16)}']
        vM, vM2 = vT + 2, vT + 3

        def mx(t):
            s = ST + 16 * (t % 3)
            L = []
            for i in range(8):
                d = vM if i % 2 == 0 else vM2
                if t == 0 and i < 2:
                    L.append(f'v_max_f32 v{d}, v{s+2*i}, v{s+2*i+1}')
                else:
                    L.append(f'v_max3_f32 v{d}, v{s+2*i}, v{s+2*i+1}, v{d}')
            return L

        def vread(t):
            d = VF + 8 * (t % 2)
            return [f'ds_read_b64_tr_b16 {vr(d+4*kv+2*jj,2)}, v{vVA} offset:{t*4096+2048+(16*kv+8*jj)*64}'
                    for kv in range(2) for jj in range(2)]
        def popbg():
            L = []
            while bg:
                x = bg.pop(0)
                L.append(x)
                if is_mem(x):
                    break
            return L
        for t in range(4):
            p.ext(kread(t))
        q = qk(0)
        p.ext([q[0]] + kread(4) + [q[1]] + kread(5))
        q = qk(1)
        p.ext([q[0]] + kread(6) + [q[1]] + kread(7))
        for t in range(9):
            m = mx(t)
            if t + 2 < 9:
                q = qk(t + 2)
                extra = kread(8) if t == 0 else vread(0)[:2] if t == 5 else vread(0)[2:] if t == 6 else []
                if t % 2 == 1:
                    extra = extra + popbg()
                p.ext([q[0]] + extra + m[:4] + [q[1]] + m[4:])
            else:
                p.ext(m)
        self.stamp('a1')
        a, b2, r1 = vT + 4, vT + 5, vT + 6
        p(f'v_max_f32 v{vM}, v{vM}, v{vM2}')
        p(f'v_mov_b32 v{a}, v{vM}')
        p(f'v_permlane32_swap_b32 v{vM}, v{a}')
        p(f'v_max_f32 v{vM}, v{vM}, v{a}')
        p(f'v_xor_b32 v{vM}, 0x80000000, v{vM}')
        p(f'v_and_b32 v{a}, 0xffff0000, v{vM}')
        p(f'v_sub_f32 v{r1}, v{vM}, v{a}')
        p(f'v_and_b32 v{a}, 0xffff0000, v{r1}')
        p(f'v_sub_f32 v{b2}, v{r1}, v{a}')
        p('s_mov_b32 exec_lo, 0')
        p(f'v_perm_b32 v{QF+6}, v{r1}, v{vM}, s{sPERM}')
        p(f'v_perm_b32 v{QF+7}, 1.0, v{b2}, s{sPERM}')
        p('s_mov_b64 exec, -1')

        def ex(t):
            s = ST + 16 * (t % 3)
            pb = PB + 8 * (t % 2)
            L = []
            for i in range(8):
                L.append(f'v_exp_f32 v{s+2*i}, v{s+2*i}')
                L.append(f'v_exp_f32 v{s+2*i+1}, v{s+2*i+1}')
                if i:
                    L.append(f'v_cvt_pk_bf16_f32 v{pb+i-1}, v{s+2*i-2}, v{s+2*i-1}')
            L.append(f'v_cvt_pk_bf16_f32 v{pb+7}, v{s+14}, v{s+15}')
            return L

        def pv(t):
            d = VF + 8 * (t % 2)
            pb = PB + 8 * (t % 2)
            return [f'{MF32} {vr(OA,16)}, {vr(d)}, {vr(pb)}, {vr(OA,16) if t else 0}',
                    f'{MF32} {vr(OA,16)}, {vr(d+4)}, {vr(pb+4)}, {vr(OA,16)}']

        self.pad()

        def wol(i):
            ks, z = i // 2, i % 2
            return f'buffer_load_dwordx4 {vr(32+4*i)}, v{vZ+z}, {srd(S_WS)}, s{sWO + ks//2} offen offset:{(ks%2)*2048} sc1'
        p.ext(qk(0))
        p.ext(qk(1))
        for t in range(9):
            e = ex(t)
            mf = (pv(t - 1) if t else []) + (qk(t + 2) if t + 2 < 9 else [])
            out = []
            pos = [2, 7, 12, 17]
            for i, x in enumerate(e):
                out.append(x)
                if i in pos and pos.index(i) < len(mf):
                    k = pos.index(i)
                    out.append(mf[k])
                    if t + 1 < 9:
                        if t == 0:
                            out += vread(1)[2 * k:2 * k + 2]
                        elif k in (1, 2):
                            out += vread(t + 1)[2 * (k - 1):2 * (k - 1) + 2]
                        elif t == 7 and k == 1:
                            pass
                    if t < 6 and k in (0, 3) or t == 0:
                        out += popbg()
                    if t >= 7:
                        out += [wol(8 * (t - 7) + 4 * k + q) for q in range(4)]
            if t == 7:
                out = out[:-3] + vread(8)[2:] + out[-3:]
            p.ext(out)
        assert not bg
        p.ext(pv(8))
        self.stamp('a2')
        p(f'v_mov_b32 v{a}, v{OA+12}')
        p(f'v_mov_b32 v{b2}, v{OA+12}')
        p(f'v_permlane32_swap_b32 v{a}, v{b2}')
        p(f'v_rcp_f32 v{b2}, v{b2}')
        for i in range(8):
            p(f'v_pk_mul_f32 {vr(OA+2*i,2)}, {vr(OA+2*i,2)}, {vr(a,2)} op_sel:[0,1] op_sel_hi:[1,1]')
            p(f'v_cvt_pk_bf16_f32 v{PB+i}, v{OA+2*i}, v{OA+2*i+1}')
            if i % 4 == 3:
                p(f'buffer_store_dwordx4 {vr(PB+i-3)}, v{vL16}, {srd(S_WS)}, s{sOD} offen offset:{(i//4)*1024}', tok='ost')
        self.publish(['ost'], sOF)
        self.stamp('att')

    def reduce_writes(self, ACC):
        return [Ins(f'ds_write_b128 v{vRW+x-1}, {vr(ACC+16*x+4*c)} offset:{c*1024}', 'rw') for x in range(1, 4) for c in range(4)]

    def reduce_finish(self, ACC, TMP):
        p = self.p
        p.wait('rw')
        self.pad()
        p('s_barrier')
        for c in range(4):
            for x in range(3):
                p(f'ds_read_b128 {vr(TMP+16*x+4*c)}, v{vRW+3} offset:{x*4096+c*1024}')
        for c in range(8):
            p(f'v_pk_add_f32 {vr(TMP+2*c,2)}, {vr(TMP+2*c,2)}, {vr(TMP+16+2*c,2)}')
            p(f'v_pk_add_f32 {vr(ACC+2*c,2)}, {vr(ACC+2*c,2)}, {vr(TMP+32+2*c,2)}')
            p(f'v_pk_add_f32 {vr(ACC+2*c,2)}, {vr(ACC+2*c,2)}, {vr(TMP+2*c,2)}')

    def yoffs(self, dst, mul, add):
        L = []
        for y in range(2):
            L += [f's_xor_b32 s{sT0}, s{sRHO}, {y}', f's_lshl_b32 s{sT1}, s{sRB}, 1', f's_add_u32 s{sT0}, s{sT0}, s{sT1}',
                  f's_lshl_b32 s{sT0}, s{sT0}, 2', f's_add_u32 s{sT0}, s{sT0}, s{sW}'] + self.roff(dst + y, sT0, mul, add)
        return L

    def p3(self):
        p = self.p
        WO, OF, ACC, RING = 32, 96, 160, 200

        def colsum(part):
            for i in range(4):
                p(f'v_mov_b32 v{vT+4+i}, s{sONES}')
            p(f's_lshl_b32 s{sT0}, s{sW}, 10')
            if part == 0:
                p(f'v_add_u32 v{vT}, s{sT0}, v{vL16}')
            else:
                p(f's_min_u32 s{sT0}, s{sT0}, 2048')
                p(f'v_add_u32 v{vT}, s{sT0}, v{vA1}')
            rd = lambda f: f'ds_read_b128 {vr(RING+4*(f%6))}, v{vT} offset:{f*(4096, 3072)[part]}'
            for f in range(5):
                p(rd(f))
            for f in range(14):
                p(f'{MF16} {vr(ACC)}, {vr(vT+4)}, {vr(RING+4*(f%6))}, {vr(ACC) if f else 0}')
                if f + 5 < 14:
                    p(rd(f + 5))
            p(f's_lshl_b32 s{sT0}, s{sW}, 6')
            p(f's_add_u32 s{sT0}, s{sT0}, {L_CS1 + 256*part}')
            p(f'v_and_b32 v{vT}, 15, v{vL}')
            p(f'v_lshlrev_b32 v{vT}, 2, v{vT}')
            p(f'v_add_u32 v{vT}, s{sT0}, v{vT}')
            p(f'ds_write_b32 v{vT}, v{ACC}')
            p('s_waitcnt lgkmcnt(0)')
        w1d = self.w1_dma(1)
        self.pad()
        p('s_barrier')
        self.if_layer0(lambda: colsum(0))
        ljoin, lidle = p.newlabel('p3join'), p.newlabel('p3idle')
        p(f's_cmp_ge_u32 s{sM}, 28')
        p(f's_cbranch_scc1 {lidle}')
        p.mark('maybe_begin')
        sFO, sY = sO, sO + 2
        p(f's_lshl_b32 s{sT0}, s{sRB}, 3')
        p(f's_add_u32 s{sT0}, s{sT0}, s{sW}')
        p.ext(self.off(sFO, sT0, 32, O_FO))
        p.ext(self.yoffs(sY, 8192, O_O))
        p(f's_add_u32 s{sY+2}, s{sY}, 4096')
        p(f's_add_u32 s{sY+3}, s{sY+1}, 4096')
        p.ext(self.pub_offsets(O_X1, O_ST1, O_FX1))
        self.vpoll(vFLG, sFO, 8)
        self.stamp('B')

        def ld(ks, y):
            return f'buffer_load_dwordx4 {vr(OF+(ks*2+y)*4)}, v{vL16}, {srd(S_WS)}, s{sY + 2*(ks//4) + y} offen offset:{(ks%4)*1024} sc1'

        def mf(ks, x):
            y, z = x >> 1, x & 1
            c = vr(ACC + 16 * x, 16) if ks else (vr(vRES, 16) if x == 0 else '0')
            return f'{MF32} {vr(ACC+16*x,16)}, {vr(WO+(ks*2+z)*4)}, {vr(OF+(ks*2+y)*4)}, {c}'
        for ks in range(5):
            for y in range(2):
                p(ld(ks, y))
        rest = list(w1d)
        for ks in range(8):
            for x in (1, 2, 3):
                p(mf(ks, x))
                if ks + 5 < 8 and x < 3:
                    p(ld(ks + 5, x - 1))
                elif ks >= 3 and rest:
                    y = rest.pop(0)
                    p.ext([y])
                    while rest and not is_mem(y):
                        y = rest.pop(0)
                        p.ext([y])
        assert not rest
        self.stamp('p3mm')
        p.ext(sched([mf(ks, 0) for ks in range(8)], {}, {}, self.reduce_writes(ACC), 2, start=2))
        self.stamp('p3rw')
        self.reduce_finish(ACC, 32)
        self.stamp('p3rd')
        P = 96
        for i in range(8):
            p(f'v_cvt_pk_bf16_f32 v{P+i}, v{ACC+2*i}, v{ACC+2*i+1}')
        self.x_store(P, vX1A, (0, 512))
        self.publish(['xst'], sXF)
        self.stamp('p3pub')
        p.ext(self.res_unpack(P))
        p.mark('maybe_end')
        p.label(ljoin)
        lq = p.newlabel('p3noq')
        vq = [f's_cmp_lg_u32 s{sLAYER}, 0', f's_cbranch_scc1 {ljoin}',
              f's_lshl_b32 s{sT0}, s{sCB}, 2', f's_add_u32 s{sT0}, s{sT0}, s{sW}',
              f's_lshl_b32 s{sT1}, s{sT0}, 7', f's_add_u32 s{sT1}, s{sT1}, {F_WQ}']
        self.idle3 = (lidle, w1d + vq, sT1, ljoin)
        self.pad()
        p('s_waitcnt vmcnt(0)')
        p('s_barrier')
        self.if_layer0(lambda: colsum(1))
        self.stamp('p3')

    def p4(self):
        p = self.p
        X, ACC, RING, CS = 32, 144, 200, 224
        sXO, sST, sFX, sH, sHF = sO, sO + 7, sO + 8, sO + 9, sO + 11

        def late():
            p(f's_lshl_b32 s{sT0}, s{sCB}, 9')
            p(f's_lshl_b32 s{sT1}, s{sW}, 7')
            p(f's_add_u32 s{sT0}, s{sT0}, s{sT1}')
            p(f's_add_u32 s{sT0}, s{sT0}, {F_W2}')
            p(f's_lshl_b32 s{sT1}, s{sJ}, 7')
            p(f's_add_u32 s{sT1}, s{sT1}, {F_WQ - 16*8}')
            p(f'v_mov_b32 v{vT}, s{sT0}')
            p(f'v_mov_b32 v{vT+1}, s{sT1}')
            p(f'v_cmp_le_u32 vcc, 16, v{vL}')
            p(f'v_cndmask_b32 v{vT}, v{vT}, v{vT+1}, vcc')
            p(f'v_add_u32 v{vT}, v{vT}, v{vL8}')
            p(f's_mov_b32 s{sT0}, 0')
            self.vpoll(vT, sT0, 30, acquire=False, drained=False)
            p.ext(self.w2_loads(0, 12))
        self.if_layer0(late)
        p.ext(self.xoff(sXO, sTP, 28672, O_X1))
        for g in range(1, 7):
            p(f's_add_u32 s{sXO+g}, s{sXO}, {4096*g}')
        p.ext(self.off(sST, sTP, 3584, O_ST1))
        p.ext(self.off(sFX, sTP, 128, O_FX1))
        p(f's_lshl_b32 s{sT0}, s{sTP}, 4')
        p(f's_add_u32 s{sT0}, s{sT0}, s{sJ}')
        p.ext(self.roff(sH, sT0, 7168, O_H))
        p(f's_add_u32 s{sH+1}, s{sH}, 4096')
        p.ext(self.off(sHF, sT0, 8, O_FH))
        vHA, vHB = vT + 1, vT + 2
        p.ext([f'v_lshrrev_b32 v{vCSA}, 4, v{vL}', f'v_lshlrev_b32 v{vCSA}, 4, v{vCSA}', f'v_add_u32 v{vCSA}, {L_CS1}, v{vCSA}',
               f'v_lshrrev_b32 v{vHA}, 5, v{vL}', f'v_lshlrev_b32 v{vHA}, 10, v{vHA}',
               f'v_bfe_u32 v{vHB}, v{vL}, 4, 1', f'v_lshl_add_u32 v{vHA}, v{vHB}, 9, v{vHA}',
               f'v_and_b32 v{vT+3}, 15, v{vL}', f'v_lshl_add_u32 v{vHA}, v{vT+3}, 4, v{vHA}',
               f'v_lshlrev_b32 v{vHB}, 3, v{vHB}', f'v_lshl_add_u32 v{vHB}, v{vT+3}, 4, v{vHB}',
               f'v_lshrrev_b32 v{vT+3}, 5, v{vL}', f'v_lshl_add_u32 v{vHB}, v{vT+3}, 9, v{vHB}'])
        p(f'v_lshlrev_b32 v{vT}, 7, v{vL}')
        seq = [(t, s) for s in range(14) for t in range(4)] + [(t, s) for s in range(14) for t in range(4, 7)]

        def frag(f):
            base, off = (vL16, f * 1024) if f < 56 else (vA1, (f - 56) * 1024)
            return f'ds_read_b128 {vr(RING + 4*(f % 6))}, v{base} offset:{off}'

        def mf(f, u):
            t, s = seq[f]
            return f'{MF16} {vr(ACC+8*t+4*u)}, {vr(RING+4*(f%6))}, {vr(X+4*(2*s+u))}, {vr(ACC+8*t+4*u) if s else 0}'

        def xl(i):
            return f'buffer_load_dwordx4 {vr(X+4*i)}, v{vL16}, {srd(S_WS)}, s{sXO + i//4} offen offset:{(i%4)*1024} sc1'
        PD = 4
        for f in range(PD):
            p(frag(f))
        self.pad()
        self.vpoll(vL8, sFX, 14)
        self.stamp('C')
        XP = 8
        for i in range(XP):
            p(xl(i))
        mem, pre = {}, {}
        for f in range(98):
            mem[2 * f] = [frag(f + PD)] if f + PD < 98 else []
            if f < 56 and f % 2 == 0 and f // 2 + XP < 28:
                mem[2 * f + 1] = [xl(f // 2 + XP)]
            if 27 <= f < 41 and f % 2 == 1:
                mem[2 * f + 1] = [self.stats_loads(sST, CS)[(f - 27) // 2]]
            if f % 2 == 0:
                tch = vr(RING + 4 * (f % 6)) + ' ' + vr(RING + 4 * ((f + 1) % 6))
                if f < 56 and f % 4 == 0:
                    tch += ' ' + vr(X + 8 * (f // 4), 8)
                pre[2 * f] = [Touch(tch)]
        mem[2 * 41 + 1] = [['s_mov_b32 exec_hi, 0xffffff', f'buffer_load_dword a255, v{vT}, {srd(S_WS)}, s{sH} offen sc1', 's_mov_b64 exec, -1']]
        mfs = [mf(f, u) for f in range(98) for u in range(2)]
        side = self.stats_reduce(CS) + [f'v_mov_b32 v{vRSTD}, v{vMEAN}', 's_nop 0', f'v_permlane16_swap_b32 v{vMEAN}, v{vRSTD}']
        p.ext(sched(mfs[:112], pre, mem, side, 2, start=92))
        self.stamp('p4g1')
        PO = vT + 4

        def epi(tiles, tok):
            L = []
            for t in tiles:
                L.append(f'ds_read_b128 {vr(CS+4*(t%4))}, v{vCSA} offset:{t*64}')
            pairs = [tiles[i:i + 2] for i in range(0, len(tiles), 2)]
            n = 0
            for pr in pairs:
                for u in range(2):
                    po = PO + 4 * (n % 3)
                    n += 1
                    mean = (vMEAN, vRSTD)[u]
                    for k, t in enumerate(pr):
                        a = ACC + 8 * t + 4 * u
                        for r in range(4):
                            L.append(f'v_fma_f32 v{a+r}, v{CS+4*(t%4)+r}, v{mean}, v{a+r}')
                        for r in range(2):
                            L.append(f'v_cvt_pk_bf16_f32 v{po+2*k+r}, v{a+2*r}, v{a+2*r+1}')
                        for r in range(2):
                            L.append(f'v_pk_max_i16 v{po+2*k+r}, v{po+2*k+r}, 0')
                    t = pr[0]
                    so, off = (sH, t * 1024) if t < 4 else (sH + 1, (t - 4) * 1024)
                    if len(pr) == 2:
                        L.append(Ins(f'buffer_store_dwordx4 {vr(po)}, v{vHA}, {srd(S_WS)}, s{so} offen offset:{off+u*256}', tok))
                    else:
                        L.append(Ins(f'buffer_store_dwordx2 {vr(po,2)}, v{vHB}, {srd(S_WS)}, s{so} offen offset:{off+u*256}', tok))
            return L
        pre2 = {i - 112: v for i, v in pre.items() if i >= 112}
        mem2 = {i - 112: v for i, v in mem.items() if i >= 112}
        self.pad()
        p('s_barrier')
        wq = self.wq_dma((0, 1), sXO)
        i = 1
        for x in wq:
            mem2.setdefault(i, []).append(x)
            if is_mem(x):
                i += 4
        p.ext(sched(mfs[112:], pre2, mem2, epi([0, 1, 2, 3], 'hst'), 2, start=0))
        self.stamp('p4g2')
        p.ext(epi([4, 5, 6], 'hst'))
        self.stamp('p4ep')
        self.publish(['hst'], sHF)
        self.pad()
        p('s_barrier')
        self.stamp('p4')

    def p5(self):
        p = self.p
        HR, ACC, CS = 32, 160, 224
        lskip, ljoin, llast = p.newlabel('p5skip'), p.newlabel('p5join'), p.newlabel('p5last')
        p(f's_cmp_ge_u32 s{sM}, 28')
        p(f's_cbranch_scc1 {lskip}')
        sFH, sST, sY = sO, sO + 1, sO + 2
        self.if_layer0(lambda: p.ext(self.w2_loads(12, 28)))
        p(f's_lshl_b32 s{sT0}, s{sRB}, 3')
        p(f's_add_u32 s{sT0}, s{sT0}, s{sW}')
        p.ext(self.off(sFH, sT0, 32, O_FH))
        p.ext(self.yoffs(sY, 28672, O_H))
        for g in range(1, 7):
            for y in range(2):
                p(f's_add_u32 s{sY+2*g+y}, s{sY+y}, {4096*g}')
        p(f's_lshl_b32 s{sT0}, s{sRB}, 1')
        p(f's_add_u32 s{sT0}, s{sT0}, s{sRHO}')
        p.ext(self.off(sST, sT0, 3584, O_ST1))
        p.ext(self.pub_offsets(O_XA + LSTRIDE, O_STA + LSTRIDE, O_FXA + LSTRIDE))
        self.pad()
        self.vpoll(vFLG, sFH, 8)
        self.stamp('D')
        NR = 16

        def ld(ks, y):
            return f'buffer_load_dwordx4 {vr(HR+((ks%NR)*2+y)*4)}, v{vL16}, {srd(S_WS)}, s{sY + 2*(ks//4) + y} offen offset:{(ks%4)*1024} sc1'

        def mf(ks, x):
            y, z = x >> 1, x & 1
            return f'{MF32} {vr(ACC+16*x,16)}, {ar(ks*8+z*4)}, {vr(HR+((ks%NR)*2+y)*4)}, {vr(ACC+16*x,16) if ks else 0}'
        PD = 5
        for ks in range(PD):
            p(ld(ks, 0))
            p(ld(ks, 1))
        TAIL = 14
        mfs, mem = [], {}
        bgl = self.stats_loads(sST, CS)
        for ks in range(28):
            xs = (0, 1, 2, 3) if ks < 28 - TAIL else (1, 2, 3)
            for n, x in enumerate(xs):
                i = len(mfs)
                mfs.append(mf(ks, x))
                if ks + PD < 28:
                    if n < 2:
                        mem[i] = [ld(ks + PD, n)]
                else:
                    mem[i] = []
                    while bgl:
                        y = bgl.pop(0)
                        mem[i].append(y)
                        if is_mem(y):
                            break
        p.ext(sched(mfs, {}, mem, [], 6))
        self.stamp('p5mm')
        sr = self.stats_reduce(CS)
        mem = {}
        for i, x in enumerate(self.reduce_writes(ACC)):
            mem.setdefault(2 + i, []).append(x)
        p.ext(sched([mf(ks, 0) for ks in range(28 - TAIL, 28)], {}, mem, bgl + sr, 5, start=0))
        self.stamp('p5rw')
        self.reduce_finish(ACC, 32)
        self.stamp('p5rd')
        P = 96
        for i in range(8):
            p(f'v_pk_fma_f32 {vr(ACC+2*i,2)}, {vr(ACC+2*i,2)}, {vr(vMEAN,2)}, {vr(vRES+2*i,2)} op_sel:[0,1,0] op_sel_hi:[1,1,1]')
            p(f'v_cvt_pk_bf16_f32 v{P+i}, v{ACC+2*i}, v{ACC+2*i+1}')
        p(f's_cmp_lg_u32 s{sLAYER}, 0')
        p(f's_cbranch_scc1 {llast}')
        self.x_store(P, vL16, (0, 1024))
        p.ext(self.wq_dma((2,)))
        self.publish(['xst'], sXF)
        self.stamp('p5pub')
        p.ext(self.res_unpack(P))
        p.label(ljoin)
        p('s_waitcnt vmcnt(0) lgkmcnt(0)')
        p('s_barrier')
        p(f's_mov_b32 s{sLAYER}, 1')
        p(f's_add_u32 s{sLB}, s{sLB}, {LSTRIDE}')
        p('s_branch L_layer')
        self.tail.append((lskip, [f's_cmp_lg_u32 s{sLAYER}, 0', 's_cbranch_scc1 L_fin'] + self.wq_dma((2,)) + [f's_branch {ljoin}']))
        p.label(llast, reset='all')
        p(f'v_and_b32 v{vT+4}, 31, v{vL}')
        p(f'v_mul_u32_u24 v{vT+4}, 896, v{vT+4}')
        p(f'v_lshrrev_b32 v{vT+5}, 5, v{vL}')
        p(f'v_lshl_add_u32 v{vT+4}, v{vT+5}, 4, v{vT+4}')
        for hf in range(2):
            p(f'v_permlane32_swap_b32 v{P+4*hf}, v{P+4*hf+2}')
            p(f'v_permlane32_swap_b32 v{P+4*hf+1}, v{P+4*hf+3}')
            p(f'buffer_store_dwordx4 {vr(P+4*hf)}, v{vT+4}, {srd(S_OUT)}, s{sQOFF} offen offset:{32*hf}')
        p('s_cmp_lg_u32 s2, %d' % (27 * 8 + 7))
        p('s_cbranch_scc1 L_fin')
        p(f's_mov_b32 s{sT0}, {WS_EPOCH}')
        p.ext(self.flag_sc1(sT0))

    def build(self):
        p = self.p
        self.prologue()
        p.label('L_layer', reset='all')
        for i, ph in enumerate(('p1', 'attn', 'p3', 'p4', 'p5')):
            getattr(self, ph)()
            if self.stop is not None and i + 1 >= self.stop:
                break
        p.label('L_fin')
        self.stamp('end')
        self.stamp_dump()
        if os.environ.get('CALIB'):
            p.label('L_calib')
            p('s_memrealtime s[96:97]')
            p('s_waitcnt lgkmcnt(0)')
            p('s_sub_u32 s96, s96, s100')
            p(f's_cmp_lt_u32 s96, {int(os.environ["CALIB"])}')
            p('s_cbranch_scc1 L_calib')
        p.label('L_end')
        p('s_endpgm')
        if hasattr(self, 'idle3'):
            lab, code, sfl, back = self.idle3
            p.label(lab, reset='all')
            p.ext(code)
            self.vpoll(vL8, sfl, 14, acquire=False)
            p(f'v_lshlrev_b32 v{vT}, 7, v{vL}')
            p(f's_mul_i32 s{sT1}, s{sT0}, 86016')
            p.ext(self.prefetch(vT, sT1, WQT, 86016))
            p(f's_branch {back}')
        for lab, code in self.tail:
            p.label(lab, reset='all')
            p.ext(code)
        p.label('L_codeend')
        self.emit_walker()
        p.insert_waits()
        probs = p.fix_hazards()
        for x in probs:
            print('branch hazard padded', x, file=sys.stderr)
        mx = p.maxregs()
        head = open(os.path.join(os.path.dirname(__file__), '..', 'cdna_kernels', NAME + '.s.ref')).read().split('\n')
        hdr = [l for l in head if l.startswith(';') and '@launch' not in l]
        out = '\n'.join(hdr) + f'\n; @launch grid=(256,1,1) block=(256,1,1) lds={LDS_BYTES}\n'
        out += '.amdgcn_target "amdgcn-amd-amdhsa--gfx950"\n.text\n'
        out += f'.globl {NAME}_kernel\n.p2align 8\n.type {NAME}_kernel,@function\n{NAME}_kernel:\n'
        out += p.text()
        out += '.fill 64, 4, 0xbf800000\n'
        out += f'''.section .rodata,"a"
.p2align 6
.amdhsa_kernel {NAME}_kernel
  .amdhsa_next_free_vgpr 512
  .amdhsa_next_free_sgpr 102
  .amdhsa_accum_offset 256
  .amdhsa_group_segment_fixed_size 0
  .amdhsa_kernarg_size 72
  .amdhsa_user_sgpr_count 2
  .amdhsa_user_sgpr_kernarg_segment_ptr 1
  .amdhsa_system_sgpr_workgroup_id_x 1
  .amdhsa_float_denorm_mode_32 3
.end_amdhsa_kernel
'''
        print('regs', mx, 'instrs', sum(1 for x in p.items if isinstance(x, Ins)), file=sys.stderr)
        return out


if __name__ == '__main__':
    stop = int(sys.argv[2]) if len(sys.argv) > 2 else None
    k = K(stop if stop and stop > 0 else None, dbg=sys.argv[3].split(',') if len(sys.argv) > 3 else None)
    open(sys.argv[1], 'w').write(k.build())
    if k.dbg:
        open(os.path.join(os.path.dirname(sys.argv[1]), 'stamps.txt'), 'w').write(' '.join(k.stamps))
```

```python
import sys, os, math, struct
sys.path.insert(0, os.path.dirname(__file__))
from asmlib import Prog, Ins, Wait, Mark, Label, Touch

NAME = 'interleave_layers__sliding_block__dense_activation_relu__prompt'

WS_EPOCH = 0
WS_PUR = 0x1000
F_WQ = 0x2000
F_W1 = 0x2800
F_W2 = 0x3000
F_WO = 0x4000
WQT = 0x100000
W1T = 0x250000
WOT = 0x3D8000
W2T = 0x448000
TEAM0 = 0x600000
LSTRIDE = 0x230000
STRIDE = 2 * LSTRIDE
O_KV = 0x000000
O_O = 0x080000
O_X1 = 0x0C0000
O_XA = 0x0F8000
O_ST1 = 0x130000
O_STA = 0x138000
O_FKV = 0x140000
O_FO = 0x144000
O_FX1 = 0x144400
O_FXA = 0x144800
O_FH = 0x145000
O_H = 0x150000
WS_BYTES = TEAM0 + 8 * STRIDE

LKV = 100352
L_CSQ = 149504
L_CS1 = L_CSQ + 512
L_PUR = L_CS1 + 512 + 1536
L_CSP = L_CS1 + 512
LDS_BYTES = 163840

S_X, S_WQ, S_WO, S_W1, S_W2, S_OUT, S_WS = 8, 12, 16, 20, 24, 28, 32
S_WSP = 36
sTEAM, sM, sA, sJ, sW, sRB, sCB, sLB = 40, 41, 42, 43, 44, 45, 46, 47
sF, sPURE, sLAYER, sTP = 48, 50, 51, 52
sQOFF = 53
sHI = 54
sPERM, sONES = 56, 57
sRHO, sNU = 58, 59
sT0, sT1, sT2, sT3, sT4, sT5 = 60, 61, 62, 63, 64, 65
sCNT = 66
sTB = 71
sJFL = 67
sXD, sXS, sXF = 68, 69, 70
sPOLL = 72
sRQ, sLQ = 76, 77
sO = 80

vL, vL16, vA1, vL8 = 0, 1, 2, 3
vSTA = 4
vFLG = 5
vRW = 6
vX1A = 10
vCSA = 11
vF = 12
vMEAN, vRSTD = 14, 15
vT = 16
vRES = 240

POLL_MAX = 1 << 16
MF32 = 'v_mfma_f32_32x32x16_bf16'
MF16 = 'v_mfma_f32_16x16x32_bf16'


def srd(b):
    return f's[{b}:{b+3}]'


def vr(b, n=4):
    return f'v[{b}:{b+n-1}]' if n > 1 else f'v{b}'


def ar(b, n=4):
    return f'a[{b}:{b+n-1}]'


def f32bits(x):
    return struct.unpack('<I', struct.pack('<f', x))[0]


def is_mem(x):
    if isinstance(x, (list, tuple)):
        return any(is_mem(y) for y in x)
    t = x.text if isinstance(x, Ins) else x if isinstance(x, str) else ''
    return t.startswith('ds_') or t.startswith('buffer_') or t.startswith('global_')


def cost(x):
    if isinstance(x, (list, tuple)):
        return sum(cost(y) for y in x)
    if isinstance(x, (Wait, Touch)):
        return 1
    t = x.text if isinstance(x, Ins) else x
    return 2 if t.startswith('v_exp') or t.startswith('v_rsq') or t.startswith('v_rcp') or t.startswith('v_permlane') else 1


def sched(mfs, pre, mem, side, cap, start=0):
    out = []
    side = list(side)
    for i, m in enumerate(mfs):
        out += pre.get(i, [])
        out.append(m)
        n = 0
        for x in mem.get(i, []):
            out.append(x)
            n += cost(x)
        if pre.get(i + 1):
            n += 1
        valu = False
        if i >= start:
            while side and n + cost(side[0]) <= cap:
                if is_mem(side[0]) and valu:
                    break
                x = side.pop(0)
                if not is_mem(x) and not isinstance(x, (Wait, Touch)):
                    t = x[0] if isinstance(x, (list, tuple)) else x
                    if any((y.text if isinstance(y, Ins) else y).startswith('v_') for y in (x if isinstance(x, (list, tuple)) else [x])):
                        valu = True
                out.append(x)
                n += cost(x)
            if side and n == 0 and cost(side[0]) > cap:
                out.append(side.pop(0))
    return out + side


class K:
    def __init__(self, stop=None, dbg=False):
        self.p = Prog()
        self.stop = stop
        self.dbg = dbg
        self.stamps = []
        self.tail = []
        self.pads = []

    def stamp(self, name):
        if not self.dbg or (name not in self.dbg and name not in ('start', 'end')):
            return
        k = len(self.stamps)
        assert k < 12
        self.stamps.append(name)
        p = self.p
        p('s_memrealtime s[96:97]' if 'RT' in self.dbg else 's_memtime s[96:97]')
        p('s_waitcnt lgkmcnt(0)')
        l1 = p.newlabel('st')
        p(f's_cmp_lg_u32 s{sLAYER}, 0')
        p(f's_cbranch_scc1 {l1}')
        p(f'v_accvgpr_write_b32 a{224+k}, s96')
        p.label(l1)
        p(f'v_accvgpr_write_b32 a{240+k}, s96')

    def stamp_dump(self):
        if not self.dbg:
            return
        p = self.p
        p(f's_lshl_b32 s{sT0}, s2, 2')
        p(f's_add_u32 s{sT0}, s{sT0}, s{sW}')
        p(f's_lshl_b32 s{sT0}, s{sT0}, 7')
        p(f's_add_u32 s{sT0}, s{sT0}, 0x40000')
        p('s_mov_b64 exec, 1')
        for k in range(32):
            p(f'buffer_store_dword a{224+k}, off, {srd(S_WS)}, s{sT0} offset:{4*k}')
        if 'DBG' in self.dbg:
            p('s_cmp_lg_u32 s2, 43')
            p('s_cbranch_scc1 L_end')
            p(f's_cmp_lg_u32 s{sW}, 1')
            p('s_cbranch_scc1 L_end')
            p('s_load_dwordx2 s[96:97], s[0:1], 56')
            p('v_accvgpr_read_b32 v16, a224')
            p('v_mov_b32 v18, 0')
            p('s_waitcnt lgkmcnt(0)')
            n = len(self.stamps)
            f = self.stamps.index('pro') + 1 if 'pro' in self.stamps else 1
            regs = [224 + k for k in range(1, n - 1)] + [240 + k for k in range(f, n)]
            for i, r in enumerate(regs[:16]):
                p(f'v_accvgpr_read_b32 v17, a{r}')
                p('v_sub_u32 v17, v17, v16')
                p(f'global_store_dword v18, v17, s[96:97] offset:{4*i}')
        p('s_mov_b64 exec, -1')

    def dma(self, srdb, voff, sreg, simm, m0, tok, sc='', n=1):
        mr, mi = m0
        L = [f's_add_u32 m0, s{mr}, {mi}' if mr is not None else f's_mov_b32 m0, {mi}',
             f's_add_u32 s{sT5}, s{sreg}, {simm}']
        for k in range(n):
            L.append(Ins(f'buffer_load_dwordx4 v{voff}, {srd(srdb)}, s{sT5} offen offset:{1024*k} {sc} lds', tok))
        return L

    def if_layer0(self, body):
        p = self.p
        l = p.newlabel('l0')
        p(f's_cmp_lg_u32 s{sLAYER}, 0')
        p(f's_cbranch_scc1 {l}')
        p.mark('maybe_begin')
        body()
        p.mark('maybe_end')
        p.label(l)

    def vpoll(self, voff, soff, nl, acquire=True, drained=True):
        p = self.p
        lp, lo = p.newlabel('poll'), p.newlabel('pollout')
        p(f's_mov_b64 exec, {(1 << nl) - 1:#x}')
        p(f's_mov_b32 s{sCNT}, 0')
        p.label(lp)
        p(f'buffer_load_dwordx2 {vr(vT + 14, 2)}, v{voff}, {srd(S_WS)}, s{soff} offen sc1')
        p(f's_add_u32 s{sCNT}, s{sCNT}, 1')
        p(f's_cmp_gt_u32 s{sCNT}, {POLL_MAX}')
        p(f's_cbranch_scc1 {lo}')
        p('s_waitcnt vmcnt(0)')
        p(f'v_cmp_ne_u64 vcc, s[{sF}:{sF+1}], {vr(vT + 14, 2)}')
        p(f's_cbranch_vccnz {lp}')
        p.label(lo)
        p('s_mov_b64 exec, -1')
        if acquire:
            lslow, lback = p.newlabel('acq'), p.newlabel('acqback')
            p(f's_cmp_lg_u32 s{sPURE}, 0')
            p(f's_cbranch_scc0 {lslow}')
            p.label(lback)
            self.tail.append((lslow, ['buffer_inv sc1', 's_waitcnt vmcnt(0)', f's_branch {lback}']))
        if drained:
            p.mark('drained_vm')

    def publish(self, toks, soff):
        p = self.p
        p.wait(*toks)
        lslow, lback = p.newlabel('pubslow'), p.newlabel('pubback')
        p('s_mov_b64 exec, 1')
        p(f's_cmp_lg_u32 s{sPURE}, 0')
        p(f's_cbranch_scc0 {lslow}')
        p(f'buffer_store_dwordx2 {vr(vF, 2)}, off, {srd(S_WS)}, s{soff}')
        p.label(lback)
        p('s_mov_b64 exec, -1')
        self.tail.append((lslow, [
            'buffer_wbl2 sc1', 's_waitcnt vmcnt(0)',
            f'buffer_store_dwordx2 {vr(vF, 2)}, off, {srd(S_WS)}, s{soff} sc1',
            f's_branch {lback}']))

    def flag_sc1(self, soff):
        return ['s_mov_b64 exec, 1', f'buffer_store_dwordx2 {vr(vF,2)}, off, {srd(S_WS)}, s{soff} sc1', 's_mov_b64 exec, -1']

    def flag_opt(self, soff):
        p = self.p
        l = p.newlabel('noflag')
        p(f's_cmp_eq_u32 s{soff}, -1')
        p(f's_cbranch_scc1 {l}')
        p.mark('maybe_begin')
        p.ext(self.flag_sc1(soff))
        p.mark('maybe_end')
        p.label(l)

    def stats_loads(self, soff, dst):
        return [f'buffer_load_dwordx2 {vr(dst + 2*i, 2)}, v{vSTA}, {srd(S_WS)}, s{soff} offen offset:{256*i} sc1' for i in range(7)]

    def stats_reduce(self, src):
        L = []
        for i in range(1, 7):
            L.append(f'v_add_f32 v{src}, v{src}, v{src+2*i}')
            L.append(f'v_add_f32 v{src+1}, v{src+1}, v{src+2*i+1}')
        s, q, t0, t1 = src, src + 1, src + 2, src + 3
        return L + [
            f'v_mov_b32 v{t0}, v{s}', f'v_mov_b32 v{t1}, v{q}', 's_nop 0',
            f'v_permlane32_swap_b32 v{s}, v{t0}', f'v_permlane32_swap_b32 v{q}, v{t1}',
            f'v_add_f32 v{s}, v{s}, v{t0}', f'v_add_f32 v{q}, v{q}, v{t1}',
            f'v_mul_f32 v{vMEAN}, {f32bits(-1.0/448):#x}, v{s}',
            f'v_mul_f32 v{q}, {f32bits(1.0/448):#x}, v{q}',
            f'v_fma_f32 v{q}, -v{vMEAN}, v{vMEAN}, v{q}',
            f'v_max_f32 v{q}, 0, v{q}',
            f'v_add_f32 v{q}, {f32bits(1e-5):#x}, v{q}',
            f'v_rsq_f32 v{vRSTD}, v{q}',
        ]

    def off(self, dst, idx_reg, mul, add):
        return [f's_mul_i32 s{dst}, s{idx_reg}, {mul}', f's_add_u32 s{dst}, s{dst}, s{sLB}', f's_add_u32 s{dst}, s{dst}, {add}']

    def xoff(self, dst, idx_reg, mul, add):
        return [f's_add_u32 s{sT3}, s{sLB}, {add}', f's_add_u32 s{sT4}, s{sTB}, {O_XA}', f's_cmp_lg_u32 s{sPURE}, 0',
                f's_cselect_b32 s{sT3}, s{sT4}, s{sT3}', f's_mul_i32 s{dst}, s{idx_reg}, {mul}', f's_add_u32 s{dst}, s{dst}, s{sT3}']

    def roff(self, dst, idx_reg, mul, add):
        return [f's_cmp_lg_u32 s{sPURE}, 0', f's_cselect_b32 s{sT3}, s{sTB}, s{sLB}',
                f's_mul_i32 s{dst}, s{idx_reg}, {mul}', f's_add_u32 s{dst}, s{dst}, s{sT3}', f's_add_u32 s{dst}, s{dst}, {add}']

    def pub_offsets(self, xoff, stoff, foff):
        return [f's_lshl_b32 s{sT0}, s{sRB}, 1', f's_add_u32 s{sT0}, s{sT0}, s{sRHO}',
                f's_lshl_b32 s{sT1}, s{sCB}, 1', f's_add_u32 s{sT1}, s{sT1}, s{sNU}',
                f's_mul_i32 s{sT2}, s{sT0}, 14', f's_add_u32 s{sT2}, s{sT2}, s{sT1}'] + \
            self.xoff(sXD, sT2, 2048, xoff) + self.off(sXS, sT2, 256, stoff) + \
            [f's_lshl_b32 s{sT0}, s{sT0}, 4', f's_add_u32 s{sT0}, s{sT0}, s{sT1}'] + self.off(sXF, sT0, 8, foff)

    def x_store(self, P, va, offs, sc=''):
        p = self.p
        S, Q2, t0, t1 = vT + 6, vT + 7, vT + 8, vT + 9
        for k in range(2):
            p(f'buffer_store_dwordx4 {vr(P+4*k)}, v{va}, {srd(S_WS)}, s{sXD} offen offset:{offs[k]} {sc}', tok='xst')
        p(f'v_mov_b32 v{t0}, s{sONES}')
        p(f'v_dot2_f32_bf16 v{S}, v{P}, v{t0}, 0')
        p(f'v_dot2_f32_bf16 v{Q2}, v{P}, v{P}, 0')
        for i in range(1, 8):
            p(f'v_dot2_f32_bf16 v{S}, v{P+i}, v{t0}, v{S}')
            p(f'v_dot2_f32_bf16 v{Q2}, v{P+i}, v{P+i}, v{Q2}')
        p(f'v_mov_b32 v{t0}, v{S}')
        p(f'v_mov_b32 v{t1}, v{Q2}')
        p(f'v_permlane32_swap_b32 v{S}, v{t0}')
        p(f'v_permlane32_swap_b32 v{Q2}, v{t1}')
        p(f'v_add_f32 v{S}, v{S}, v{t0}')
        p(f'v_add_f32 v{Q2}, v{Q2}, v{t1}')
        p('s_mov_b32 exec_hi, 0')
        p(f'buffer_store_dwordx2 {vr(S,2)}, v{vL8}, {srd(S_WS)}, s{sXS} offen {sc}', tok='xst')
        p('s_mov_b64 exec, -1')

    def res_unpack(self, P):
        L = []
        for q in range(8):
            L.append(f'v_lshlrev_b32 v{vRES+2*q}, 16, v{P+q}')
            L.append(f'v_and_b32 v{vRES+2*q+1}, 0xffff0000, v{P+q}')
        return L

    def prefetch(self, v128, sreg, base, nbytes):
        L = []
        o = 0
        while o < nbytes:
            oo = min(o, nbytes - 8192)
            L += [f's_add_u32 s{sT5}, s{sreg}, {base + oo}', f'buffer_load_dword a255, v{v128}, {srd(S_WS)}, s{sT5} offen sc1']
            o += 8192
        return L

    def wq_dma(self, tiles, dummy=None):
        L = [f's_mul_i32 s{sT0}, s{sJ}, 86016', f's_mul_i32 s{sT1}, s{sW}, 7168',
             f's_add_u32 s{sT0}, s{sT0}, s{sT1}']
        if dummy is not None:
            L += [f's_sub_u32 s{sT2}, s{dummy}, {WQT}', f's_cmp_lg_u32 s{sLAYER}, 0', f's_cselect_b32 s{sT0}, s{sT2}, s{sT0}']
        for tau in tiles:
            for o, n in ((0, 4), (4096, 3)):
                d = self.dma(S_WS, vL16, sT0, WQT + tau * 28672 + o, (sT1, tau * 28672 + o), 'wq', 'sc1', n)
                L += [d[:3]] + d[3:]
        return L

    def w1_dma(self, part):
        sg, sl = sPOLL, sPOLL + 1
        L = []
        if part == 0:
            L += [f's_mul_i32 s{sg}, s{sJ}, 100352', f's_mul_i32 s{sl}, s{sW}, 14336', f's_add_u32 s{sg}, s{sg}, s{sl}']
            groups = [(0, 4), (4096, 4), (8192, 4), (12288, 2)]
            base = 0
        else:
            L += [f's_mul_i32 s{sg}, s{sJ}, 100352', f's_mul_i32 s{sl}, s{sW}, 10240', f's_add_u32 s{sg}, s{sg}, s{sl}']
            groups = [(0, 4), (4096, 4), (8192, 2)]
            base = 57344
        for o, n in groups:
            d = self.dma(S_WS, vL16, sg, W1T + base + o, (sl, base + o), 'w1', 'sc1', n)
            L += [d[:3]] + d[3:]
        if part == 1:
            L += [f's_sub_u32 s{sg}, s{sg}, s{sl}', f's_lshl_b32 s{sl}, s{sNU}, 10', f's_add_u32 s{sg}, s{sg}, s{sl}']
            L.append(self.dma(S_WS, vL16, sg, W1T + 98304, (sl, 98304), 'w1', 'sc1', 1))
        return L

    def w2_loads(self, lo, hi):
        L = [f's_lshl_b32 s{sT0}, s{sCB}, 2', f's_add_u32 s{sT0}, s{sT0}, s{sW}', f's_mul_i32 s{sT0}, s{sT0}, 57344',
             f's_lshl_b32 s{sT1}, s{sNU}, 10', f'v_xor_b32 v{vT+10}, s{sT1}, v{vL16}', f'v_xor_b32 v{vT+11}, 1024, v{vT+10}']
        for ks in range(lo, hi):
            if ks == lo or ks % 2 == 0:
                L.append(f's_add_u32 s{sT1}, s{sT0}, {W2T + (ks//2)*4096}')
            for z in range(2):
                L.append(f'buffer_load_dwordx4 {ar(ks*8+z*4)}, v{vT+10+z}, {srd(S_WS)}, s{sT1} offen offset:{(ks%2)*2048} sc1')
        return L

    def lane_consts(self):
        p = self.p
        t0, t1 = vT + 6, vT + 7
        p(f'v_add_u32 v{vA1}, 57344, v{vL16}')
        p(f'v_and_b32 v{vSTA}, 31, v{vL}')
        p(f'v_lshlrev_b32 v{vSTA}, 3, v{vSTA}')
        p(f'v_lshrrev_b32 v{t0}, 5, v{vL}')
        p(f'v_mul_u32_u24 v{t1}, {7*256}, v{t0}')
        p(f'v_add_u32 v{vSTA}, v{vSTA}, v{t1}')
        p(f'v_lshrrev_b32 v{vFLG}, 2, v{vL}')
        p(f'v_lshlrev_b32 v{vFLG}, 7, v{vFLG}')
        p(f'v_and_b32 v{t1}, 3, v{vL}')
        p(f'v_lshl_add_u32 v{vFLG}, v{t1}, 3, v{vFLG}')
        for x in range(1, 4):
            p(f's_xor_b32 s{sT0}, s{sW}, {x}')
            p(f's_mul_i32 s{sT0}, s{sT0}, 12288')
            p(f's_add_u32 s{sT0}, s{sT0}, {LKV + (x-1)*4096}')
            p(f'v_add_u32 v{vRW+x-1}, s{sT0}, v{vL16}')
        p(f's_mul_i32 s{sT0}, s{sW}, 12288')
        p(f's_add_u32 s{sT0}, s{sT0}, {LKV}')
        p(f'v_add_u32 v{vRW+3}, s{sT0}, v{vL16}')
        p(f'v_bfe_u32 v{vX1A}, v{vL}, 4, 1')
        p(f'v_lshlrev_b32 v{vX1A}, 10, v{vX1A}')
        p(f'v_lshl_add_u32 v{vX1A}, v{t0}, 8, v{vX1A}')
        p(f'v_and_b32 v{t1}, 15, v{vL}')
        p(f'v_lshl_add_u32 v{vX1A}, v{t1}, 4, v{vX1A}')

    def pad(self):
        p = self.p
        k = len(self.pads)
        self.pads.append(f'L_pad{k}')
        p(f's_branch L_padskip{k}')
        p.label(f'L_pad{k}')
        p('s_setpc_b64 s[98:99]')
        p.label(f'L_padskip{k}')

    def emit_walker(self):
        L = []
        labs = [f'L_walk{w}' for w in range(4)]
        for w in range(1, 4):
            L += [Ins(f's_cmp_eq_u32 s{sW}, {w}'), Ins(f's_cbranch_scc1 {labs[w]}')]
        for w in range(4):
            if w:
                L.append(Label(labs[w]))
            for x in self.pads[w::4]:
                L.append(Ins(f's_call_b64 s[98:99], {x}'))
            if w < 3:
                L.append(Ins('s_branch L_walkend'))
        L.append(Label('L_walkend'))
        self.p.items[self.walker_at:self.walker_at] = L

    def rawq(self, tau, i):
        self.p.ext(self.dma(S_WQ, self.vDQ, sRQ, (448, 896, 0)[tau] * 2 + i * 16 * 2688, (sLQ, tau * 28672 + i * 1024), f'rq{tau}{i}'))

    def xform(self, tau, R, vcs, vones, between=None):
        p = self.p

        def fin(i):
            p(f'ds_write_b128 v{self.vWQ}, {vr(R+4*i)} offset:{tau*28672+i*1024}')
            for q in range(4):
                p(f'v_dot2_f32_bf16 v{vcs}, v{R+4*i+q}, v{vones}, {f"v{vcs}" if i or q else 0}')
        for i in range(7):
            p.wait(f'rq{tau}{i}')
            for jj in range(2):
                p(f'ds_read_b64_tr_b16 {vr(R+4*i+2*jj,2)}, v{self.vTQ} offset:{tau*28672+i*1024+jj*512}')
            if between:
                between(i)
            if i >= 1:
                fin(i - 1)
        fin(6)

    def cs_partial(self, taus, vcs, t2, t3):
        p = self.p
        for k, tau in enumerate(taus):
            p(f'v_mov_b32 v{t2}, v{vcs+k}')
            p(f'v_permlane32_swap_b32 v{vcs+k}, v{t2}')
            p(f'v_add_f32 v{vcs+k}, v{vcs+k}, v{t2}')
        p(f'v_and_b32 v{t2}, 31, v{vL}')
        p(f'v_lshlrev_b32 v{t2}, 2, v{t2}')
        p(f's_mul_i32 s{sT0}, s{sW}, 384')
        p(f's_add_u32 s{sT0}, s{sT0}, {L_CSP}')
        p(f'v_add_u32 v{t3}, s{sT0}, v{t2}')
        for k, tau in enumerate(taus):
            p(f'ds_write_b32 v{t3}, v{vcs+k} offset:{tau*128}')

    def cs_sum(self, taus, R, t2, t3):
        p = self.p
        p(f'v_add_u32 v{t3}, {L_CSP}, v{t2}')
        for k, tau in enumerate(taus):
            for w in range(4):
                p(f'ds_read_b32 v{R+4*k+w}, v{t3} offset:{w*384+tau*128}')
        p(f'v_add_u32 v{t3}, {L_CSQ}, v{t2}')
        for k, tau in enumerate(taus):
            r = R + 4 * k
            p(f'v_add_f32 v{r}, v{r}, v{r+1}')
            p(f'v_add_f32 v{r+2}, v{r+2}, v{r+3}')
            p(f'v_add_f32 v{r}, v{r}, v{r+2}')
            p(f'ds_write_b32 v{t3}, v{r} offset:{tau*128}')
        p('s_waitcnt lgkmcnt(0)')

    def prologue(self):
        p = self.p
        t0, t1, t2, t3 = vT, vT + 1, vT + 2, vT + 3
        self.vDQ, self.vTQ, self.vWQ = vDQ, vTQ, vWQ = vT + 10, vT + 11, vT + 12
        p('s_cmp_ge_u32 s2, 256')
        p('s_cbranch_scc1 L_end')
        p(f's_load_dwordx16 s[{sO}:{sO+15}], s[0:1], 0')
        p(f's_load_dwordx2 s[{S_WSP}:{S_WSP+1}], s[0:1], 64')
        p(f's_getpc_b64 s[{sT0}:{sT0+1}]')
        p.label('L_pc')
        p(f'v_lshlrev_b32 v{t2}, 7, v0')
        p(f'v_min_u32 v{t2}, L_codeend-L_pc, v{t2}')
        p(f'global_load_dword a255, v{t2}, s[{sT0}:{sT0+1}]')
        p(f's_mov_b32 s{sLAYER}, 0')
        if os.environ.get('CALIB'):
            p('s_memrealtime s[100:101]')
        self.stamp('start')
        p(f'v_lshrrev_b32 v{vT}, 6, v0')
        p(f'v_and_b32 v{vL}, 63, v0')
        p(f'v_readfirstlane_b32 s{sW}, v{vT}')
        p(f's_lshr_b32 s{sM}, s2, 3')
        vPK = vT + 14
        p(f's_lshl_b32 s{sT2}, s{sM}, 2')
        p(f's_add_u32 s{sT2}, s{sT2}, s{sW}')
        p(f's_mul_i32 s{sT3}, s{sT2}, 49')
        p(f'v_add_u32 v{t2}, s{sT3}, v{vL}')
        p(f'v_mul_u32_u24 v{vPK}, 74899, v{t2}')
        p(f'v_lshrrev_b32 v{vPK}, 20, v{vPK}')
        p(f'v_mul_u32_u24 v{vPK}, 7, v{vPK}')
        p(f'v_add_u32 v{vPK}, v{vPK}, v{t2}')
        p(f'v_lshlrev_b32 v{vPK}, 7, v{vPK}')
        p(f's_and_b32 s{sTEAM}, s2, 7')
        p(f's_and_b32 s{sJ}, s{sM}, 15')
        p(f's_lshr_b32 s{sA}, s{sM}, 4')
        p(f's_mul_i32 s{sRB}, s{sM}, 37')
        p(f's_lshr_b32 s{sRB}, s{sRB}, 8')
        p(f's_mul_i32 s{sT0}, s{sRB}, 7')
        p(f's_sub_u32 s{sCB}, s{sM}, s{sT0}')
        p(f's_lshr_b32 s{sRHO}, s{sW}, 1')
        p(f's_and_b32 s{sNU}, s{sW}, 1')
        p(f'v_lshrrev_b32 v{t0}, 2, v{vL}')
        p(f'v_and_b32 v{t1}, 3, v{vL}')
        p(f'v_lshlrev_b32 v{t3}, 3, v{t1}')
        p(f'v_lshlrev_b32 v{t1}, 4, v{t1}')
        b = sO

        def mksrd(d, src, n):
            p(f's_mov_b32 s{d}, s{src}')
            p(f's_and_b32 s{d+1}, s{src+1}, 0xffff')
            p(f's_mov_b32 s{d+2}, {n}')
            p(f's_mov_b32 s{d+3}, 0x20000')
        mksrd(S_WQ, b + 2, 1204224)
        p('s_mov_b32 exec_hi, 0x1ffff')
        p(f'buffer_load_dword a255, v{vPK}, {srd(S_WQ)}, 0 offen offset:896')
        p('s_mov_b64 exec, -1')
        p(f's_load_dwordx2 s[{sF}:{sF+1}], s[{S_WSP}:{S_WSP+1}], {WS_EPOCH}')
        for (d, src, n) in ((S_X, b, 1835008), (S_WO, b + 4, 401408), (S_W1, b + 8, 1605632),
                            (S_W2, b + 10, 1605632), (S_OUT, b + 12, 1835008), (S_WS, S_WSP, WS_BYTES)):
            mksrd(d, src, n)
        self.stamp('ka')
        sI, sSTG = sO, sO + 1
        sFL, sDST, sJOB, sDST2 = sO + 2, sO + 3, sO + 4, sO + 5
        vD, vTR, vTR8 = vT + 4, vT + 5, vT + 13
        FR = 32
        p(f's_lshl_b32 s{sI}, s{sTEAM}, 1')
        p(f's_add_u32 s{sI}, s{sI}, s{sA}')
        p(f's_lshl_b32 s{sSTG}, s{sW}, 13')
        p(f's_add_u32 s{sSTG}, s{sSTG}, {LKV}')
        lA = [p.newlabel('jobA') for _ in range(3)]
        p(f's_mov_b32 s{sJOB}, 0')
        p.mark('maybe_begin')
        p(f's_cmp_ge_u32 s{sW}, 2')
        p(f's_cbranch_scc1 {lA[0]}')
        p(f's_cmp_eq_u32 s{sW}, 0')
        p(f's_cbranch_scc1 {lA[2]}')
        p(f's_cmp_ge_u32 s{sI}, 14')
        p(f's_cbranch_scc1 {lA[2]}')
        p(f'v_bfe_u32 v{vD}, v{vL}, 1, 3')
        p(f'v_bfe_u32 v{t2}, v{vL}, 4, 1')
        p(f'v_lshl_add_u32 v{vD}, v{t2}, 4, v{vD}')
        p(f'v_bfe_u32 v{t2}, v{vL}, 5, 1')
        p(f'v_lshl_add_u32 v{vD}, v{t2}, 3, v{vD}')
        p(f'v_mul_u32_u24 v{vD}, 3584, v{vD}')
        p(f'v_and_b32 v{t2}, 1, v{vL}')
        p(f'v_lshl_add_u32 v{vD}, v{t2}, 4, v{vD}')
        p(f's_mul_i32 s{sT0}, s{sI}, {32*3584}')
        p(f's_mul_i32 s{sT1}, s{sJ}, 224')
        p(f's_add_u32 s{sT0}, s{sT0}, s{sT1}')
        for t in range(7):
            p.ext(self.dma(S_W1, vD, sT0, t * 32, (sSTG, t * 1024), 'raw'))
        p(f's_mov_b32 s{sJOB}, 2')
        p(f's_branch {lA[2]}')
        p.label(lA[0])
        p(f'v_mul_u32_u24 v{vD}, 896, v{t0}')
        p(f'v_add_u32 v{vD}, v{vD}, v{t1}')
        p(f's_cmp_ge_u32 s{sM}, 28')
        p(f's_cbranch_scc1 {lA[1]}')
        sI2, sSL, sHF = sT2, sT3, sT4
        p(f's_lshl_b32 s{sI2}, s{sTEAM}, 2')
        p(f's_add_u32 s{sI2}, s{sI2}, s{sRB}')
        p(f's_lshr_b32 s{sSL}, s{sI2}, 1')
        p(f's_and_b32 s{sHF}, s{sI2}, 1')
        p(f's_mul_i32 s{sT0}, s{sSL}, {112*896}')
        p(f's_mul_i32 s{sT1}, s{sHF}, {64*896}')
        p(f's_add_u32 s{sT0}, s{sT0}, s{sT1}')
        p(f's_lshl_b32 s{sT1}, s{sCB}, 7')
        p(f's_add_u32 s{sT0}, s{sT0}, s{sT1}')
        p(f's_lshl_b32 s{sT1}, s{sNU}, 6')
        p(f's_add_u32 s{sT0}, s{sT0}, s{sT1}')
        for k in range(4):
            p.ext(self.dma(S_W2, vD, sT0, k * 16 * 896, (sSTG, k * 1024), 'raw'))
        p(f's_add_u32 s{sJOB}, s{sHF}, 3')
        p(f's_branch {lA[2]}')
        p.label(lA[1])
        p(f's_cmp_eq_u32 s{sTEAM}, 7')
        p(f's_cbranch_scc1 {lA[2]}')
        p(f's_mul_i32 s{sT0}, s{sCB}, {112*896}')
        p(f's_lshl_b32 s{sT1}, s{sTEAM}, 7')
        p(f's_add_u32 s{sT0}, s{sT0}, s{sT1}')
        p(f's_lshl_b32 s{sT1}, s{sNU}, 6')
        p(f's_add_u32 s{sT0}, s{sT0}, s{sT1}')
        for k in range(8):
            p.ext(self.dma(S_WO, vD, sT0, k * 16 * 896, (sSTG, k * 1024), 'raw'))
        p(f's_mov_b32 s{sJOB}, 5')
        p.mark('maybe_end')
        p.label(lA[2])
        p(f's_lshl_b32 s{sT0}, s{sTEAM}, 2')
        p(f's_add_u32 s{sT0}, s{sT0}, s{sRB}')
        p(f's_lshl_b32 s{sT1}, s{sT0}, 1')
        p(f's_add_u32 s{sT1}, s{sT1}, s{sRHO}')
        p(f's_mul_i32 s{sQOFF}, s{sT1}, {32*896}')
        p(f's_lshl_b32 s{sT1}, s{sCB}, 7')
        p(f's_add_u32 s{sQOFF}, s{sQOFF}, s{sT1}')
        p(f's_lshl_b32 s{sT1}, s{sNU}, 6')
        p(f's_add_u32 s{sQOFF}, s{sQOFF}, s{sT1}')
        p(f'v_and_b32 v{t2}, 31, v{vL}')
        p(f'v_mul_u32_u24 v{t2}, 896, v{t2}')
        p(f'v_lshrrev_b32 v{vTR8}, 5, v{vL}')
        p(f'v_lshl_add_u32 v{t2}, v{vTR8}, 3, v{t2}')
        XR = 96
        for q in range(4):
            p(f'buffer_load_dwordx2 {vr(XR+2*q,2)}, v{t2}, {srd(S_X)}, s{sQOFF} offen offset:{16*q}')
        p(f's_lshl_b32 s{sT2}, s{sM}, 2')
        p(f's_add_u32 s{sT2}, s{sT2}, s{sW}')
        p(f's_mul_i32 s{sT3}, s{sT2}, 25')
        p(f'v_add_u32 v{t2}, s{sT3}, v{vL}')
        p(f'v_mul_u32_u24 v{vPK}, 149797, v{t2}')
        p(f'v_lshrrev_b32 v{vPK}, 20, v{vPK}')
        p(f'v_mul_u32_u24 v{vPK}, 14, v{vPK}')
        p(f'v_add_u32 v{vPK}, v{vPK}, v{t2}')
        p(f'v_lshlrev_b32 v{vPK}, 7, v{vPK}')
        p('s_mov_b64 exec, 0x1ffffff')
        p(f'buffer_load_dword a255, v{vPK}, {srd(S_WQ)}, 0 offen')
        p('s_mov_b64 exec, -1')
        self.stamp('jA')
        p(f's_mul_i32 s{sLB}, s{sTEAM}, {STRIDE}')
        p(f's_add_u32 s{sLB}, s{sLB}, {TEAM0}')
        p(f's_mov_b32 s{sTB}, s{sLB}')
        p(f's_lshl_b32 s{sTP}, s{sA}, 2')
        p(f's_add_u32 s{sTP}, s{sTP}, s{sW}')
        p(f'v_lshlrev_b32 v{vL16}, 4, v{vL}')
        p(f'v_mul_u32_u24 v{vDQ}, 2688, v{t0}')
        p(f'v_add_u32 v{vDQ}, v{vDQ}, v{t1}')
        p(f's_mul_i32 s{sRQ}, s{sW}, {7*16*2688}')
        p(f's_mul_i32 s{sT1}, s{sJ}, 56')
        p(f's_add_u32 s{sRQ}, s{sRQ}, s{sT1}')
        p(f's_mul_i32 s{sLQ}, s{sW}, 7168')
        p(f'v_bfe_u32 v{t2}, v{vL}, 4, 1')
        p(f'v_lshl_add_u32 v{t2}, v{t2}, 5, v{t3}')
        p(f'v_bfe_u32 v{vTR}, v{vL}, 2, 2')
        p(f'v_lshl_add_u32 v{t2}, v{vTR}, 6, v{t2}')
        p(f'v_lshl_add_u32 v{vTQ}, v{vTR8}, 8, v{t2}')
        p(f'v_add_u32 v{vTR}, s{sSTG}, v{vTQ}')
        p(f'v_add_u32 v{t2}, s{sSTG}, v{t2}')
        p(f'v_lshl_add_u32 v{vTR8}, v{vTR8}, 9, v{t2}')
        p(f'v_add_u32 v{vTQ}, s{sLQ}, v{vTQ}')
        p(f'v_add_u32 v{vWQ}, s{sLQ}, v{vL16}')
        p(f's_mov_b32 s{sPERM}, 0x07060302')
        p(f's_mov_b32 s{sONES}, 0x3f803f80')
        p(f's_mov_b32 s{sPURE}, 1')
        p(f'v_lshlrev_b32 v{vL8}, 3, v{vL}')
        p.ext(self.pub_offsets(O_XA, O_STA, O_FXA))
        self.lane_consts()
        vCSP = 104
        p(f'v_mov_b32 v{vCSP+3}, s{sONES}')
        for k, r in enumerate((vDQ, vTQ, vWQ)):
            p(f'v_accvgpr_write_b32 a{252+k}, v{r}')
        p('s_waitcnt lgkmcnt(0)')
        p(f's_add_u32 s{sF}, s{sF}, 1')
        p(f's_addc_u32 s{sF+1}, s{sF+1}, 0')
        p(f'v_mov_b32 v{vF}, s{sF}')
        p(f'v_mov_b32 v{vF+1}, s{sF+1}')
        p.items.append(Touch(vr(XR, 8)))
        self.stamp('rt1')
        for i in range(3):
            self.rawq(0, i)
        p(f's_cmp_ge_u32 s{sM}, 28')
        p(f's_cselect_b32 s{sXF}, -1, s{sXF}')
        lp0 = p.newlabel('p0skip')
        p(f's_cbranch_scc1 {lp0}')
        p.mark('maybe_begin')
        self.x_store(XR, vL16, (0, 1024), 'sc1')
        p.mark('maybe_end')
        p.label(lp0)

        def finish(nfr, offs):
            L = []
            base = None
            for k in range(nfr):
                hi, lo = offs[k] // 4096 * 4096, offs[k] % 4096
                if hi != base:
                    L.append(f's_add_u32 s{sT5}, s{sDST}, {hi}')
                    base = hi
                L.append(f'buffer_store_dwordx4 {vr(FR+4*k)}, v{vL16}, {srd(S_WS)}, s{sT5} offen offset:{lo} sc1')
            return L
        lB = {k: p.newlabel('jobB') for k in (3, 4, 5, 'join')}
        p(f's_mov_b32 s{sFL}, -1')
        p.mark('maybe_begin')
        p(f's_cmp_eq_u32 s{sJOB}, 0')
        p(f's_cbranch_scc1 {lB["join"]}')
        p(f's_cmp_eq_u32 s{sJOB}, 5')
        p(f's_cbranch_scc1 {lB[5]}')
        p(f's_cmp_ge_u32 s{sJOB}, 3')
        p(f's_cbranch_scc1 {lB[3]}')
        p(f'v_lshl_add_u32 v{vTR}, v{t0}, 5, v{t3}')
        p(f'v_add_u32 v{vTR}, s{sSTG}, v{vTR}')
        for t in range(7):
            for jj in range(2):
                p(f'ds_read_b64_tr_b16 {vr(FR+t*4+2*jj,2)}, v{vTR} offset:{t*1024+jj*512}')
        p(f's_mul_i32 s{sDST}, s{sJ}, 100352')
        p(f's_add_u32 s{sDST}, s{sDST}, {W1T}')
        p(f's_mul_i32 s{sDST2}, s{sI}, 3072')
        p(f's_add_u32 s{sDST2}, s{sDST2}, s{sDST}')
        p(f's_add_u32 s{sDST2}, s{sDST2}, 57344')
        p(f's_lshl_b32 s{sT0}, s{sI}, 12')
        p(f's_add_u32 s{sDST}, s{sDST}, s{sT0}')
        p(f's_lshl_b32 s{sFL}, s{sJ}, 4')
        p(f's_add_u32 s{sFL}, s{sFL}, s{sI}')
        p(f's_lshl_b32 s{sFL}, s{sFL}, 3')
        p(f's_add_u32 s{sFL}, s{sFL}, {F_W1}')
        p.ext(finish(4, [t * 1024 for t in range(4)]))
        for t in range(4, 7):
            p(f'buffer_store_dwordx4 {vr(FR+4*t)}, v{vL16}, {srd(S_WS)}, s{sDST2} offen offset:{(t-4)*1024} sc1')
        p(f's_branch {lB["join"]}')
        p.label(lB[3])
        for sg in range(2):
            for jj in range(2):
                p(f'ds_read_b64_tr_b16 {vr(FR+sg*4+2*jj,2)}, v{vTR} offset:{(16*jj+8*sg)*64}')
        p(f's_lshl_b32 s{sI2}, s{sTEAM}, 2')
        p(f's_add_u32 s{sI2}, s{sI2}, s{sRB}')
        p(f's_lshr_b32 s{sSL}, s{sI2}, 1')
        p(f's_and_b32 s{sHF}, s{sI2}, 1')
        p(f's_mul_i32 s{sDST}, s{sCB}, 229376')
        p(f's_mul_i32 s{sT0}, s{sSL}, 14336')
        p(f's_add_u32 s{sDST}, s{sDST}, s{sT0}')
        p(f's_lshl_b32 s{sT0}, s{sHF}, 13')
        p(f's_add_u32 s{sDST}, s{sDST}, s{sT0}')
        p(f's_lshl_b32 s{sT0}, s{sNU}, 10')
        p(f's_add_u32 s{sDST}, s{sDST}, s{sT0}')
        p(f's_add_u32 s{sDST}, s{sDST}, {W2T}')
        p(f's_lshl_b32 s{sFL}, s{sCB}, 5')
        p(f's_add_u32 s{sFL}, s{sFL}, s{sI2}')
        p(f's_lshl_b32 s{sFL}, s{sFL}, 1')
        p(f's_add_u32 s{sFL}, s{sFL}, s{sNU}')
        p(f's_lshl_b32 s{sFL}, s{sFL}, 3')
        p(f's_add_u32 s{sFL}, s{sFL}, {F_W2}')
        p(f's_cmp_eq_u32 s{sJOB}, 4')
        p(f's_cbranch_scc1 {lB[4]}')
        for sg in range(2, 4):
            for jj in range(2):
                p(f'ds_read_b64_tr_b16 {vr(FR+sg*4+2*jj,2)}, v{vTR} offset:{(32+16*jj+8*(sg%2))*64}')
        p.ext(finish(4, [k * 2048 for k in range(4)]))
        p(f's_branch {lB["join"]}')
        p.label(lB[4])
        for jj in range(2):
            p(f'ds_read_b64_tr_b16 {vr(FR+8+2*jj,2)}, v{vTR8} offset:{(32+4*jj)*64}')
        p('s_waitcnt lgkmcnt(0)')
        p.ext(finish(3, [k * 2048 for k in range(3)]))
        p(f's_branch {lB["join"]}')
        p.label(lB[5])
        for hd in range(4):
            for kp in range(2):
                for jj in range(2):
                    p(f'ds_read_b64_tr_b16 {vr(FR+(hd*2+kp)*4+2*jj,2)}, v{vTR} offset:{(28*hd+16*kp+8*jj)*64}')
        p(f's_lshl_b32 s{sFL}, s{sTEAM}, 2')
        p(f's_add_u32 s{sFL}, s{sFL}, s{sCB}')
        p(f's_lshl_b32 s{sDST}, s{sFL}, 14')
        p(f's_lshl_b32 s{sT0}, s{sNU}, 10')
        p(f's_add_u32 s{sDST}, s{sDST}, s{sT0}')
        p(f's_add_u32 s{sDST}, s{sDST}, {WOT}')
        p(f's_lshl_b32 s{sFL}, s{sFL}, 1')
        p(f's_add_u32 s{sFL}, s{sFL}, s{sNU}')
        p(f's_lshl_b32 s{sFL}, s{sFL}, 3')
        p(f's_add_u32 s{sFL}, s{sFL}, {F_WO}')
        p('s_waitcnt lgkmcnt(0)')
        p('s_mov_b32 exec_lo, 0')
        for hd in range(4):
            p(f'v_mov_b32 v{FR+(hd*2+1)*4+2}, 0')
            p(f'v_mov_b32 v{FR+(hd*2+1)*4+3}, 0')
        p('s_mov_b64 exec, -1')
        p.ext(finish(8, [k * 2048 for k in range(8)]))
        p.mark('maybe_end')
        p.label(lB['join'])
        p(f's_getreg_b32 s{sT0}, hwreg(HW_REG_XCC_ID)')
        p(f's_and_b32 s{sT0}, s{sT0}, 15')
        p(f's_lshl_b32 s{sT0}, s{sT0}, 28')
        p(f's_xor_b32 s{sT0}, s{sT0}, s{sF+1}')
        p(f'v_mov_b32 v{t2}, s{sF}')
        p(f'v_mov_b32 v{t3}, s{sT0}')
        p(f's_lshl_b32 s{sT1}, s{sTEAM}, 8')
        p(f's_lshl_b32 s{sT2}, s{sM}, 3')
        p(f's_add_u32 s{sT1}, s{sT1}, s{sT2}')
        p(f's_add_u32 s{sT1}, s{sT1}, {WS_PUR}')
        lx = p.newlabel('noxcc')
        p(f's_cmp_lg_u32 s{sW}, 0')
        p(f's_cbranch_scc1 {lx}')
        p.mark('maybe_begin')
        p('s_mov_b64 exec, 1')
        p(f'buffer_store_dwordx2 {vr(t2,2)}, off, {srd(S_WS)}, s{sT1} sc1')
        p('s_mov_b64 exec, -1')
        p.mark('maybe_end')
        p.label(lx)
        self.stamp('jB')
        for i in range(3, 7):
            self.rawq(0, i)
        for i in range(4):
            self.rawq(1, i)
        p('s_waitcnt vmcnt(8)')
        self.flag_opt(sXF)
        self.flag_opt(sFL)
        self.xform(0, 128, vCSP, vCSP + 3, lambda i: self.rawq(1, i + 4) if i < 3 else None)
        self.stamp('xf0')
        self.walker_at = len(p.items)
        p.ext(self.res_unpack(XR))
        self.xform(1, 160, vCSP + 1, vCSP + 3)
        self.cs_partial((0, 1), vCSP, t2, t3)
        p('s_waitcnt lgkmcnt(0)')
        p('s_barrier')
        self.stamp('bar')
        self.cs_sum((0, 1), 108, t2, t3)
        self.stamp('pro')

    def q_late(self, R, sKF):
        p = self.p
        vcs, vones, t2, t3 = R + 28, R + 29, R + 30, R + 31
        self.vDQ, self.vTQ, self.vWQ = 224, 225, 226
        for k in range(3):
            p(f'v_accvgpr_read_b32 v{224+k}, a{252+k}')
        p(f'v_mov_b32 v{vones}, s{sONES}')
        for i in range(7):
            self.rawq(2, i)
        p.wait('kvst')
        p.ext(self.flag_sc1(sKF))
        self.xform(2, R, vcs, vones)
        self.cs_partial((2,), vcs, t2, t3)
        p('s_waitcnt lgkmcnt(0)')
        p('s_barrier')
        self.cs_sum((2,), R, t2, t3)

    def wqt_publish(self, R):
        p = self.p
        l = p.newlabel('nowqt')
        p(f's_lshl_b32 s{sT0}, s{sTEAM}, 1')
        p(f's_add_u32 s{sT0}, s{sT0}, s{sA}')
        p(f's_cmp_ge_u32 s{sT0}, 14')
        p(f's_cbranch_scc1 {l}')
        p(f's_cmp_lg_u32 s{sW}, 0')
        p(f's_cbranch_scc1 {l}')
        p(f's_lshl_b32 s{sT1}, s{sT0}, 11')
        p(f'v_add_u32 v{R+24}, s{sT1}, v{vL16}')
        for tau in range(3):
            for kp in range(2):
                p(f'ds_read_b128 {vr(R+(tau*2+kp)*4)}, v{R+24} offset:{tau*28672+kp*1024}')
        p(f's_mul_i32 s{sT2}, s{sJ}, 86016')
        p(f's_add_u32 s{sT1}, s{sT1}, s{sT2}')
        for tau in range(3):
            p(f's_add_u32 s{sT2}, s{sT1}, {WQT + tau*28672}')
            for kp in range(2):
                p(f'buffer_store_dwordx4 {vr(R+(tau*2+kp)*4)}, v{vL16}, {srd(S_WS)}, s{sT2} offen offset:{kp*1024} sc1')
        p(f's_lshl_b32 s{sJFL}, s{sJ}, 4')
        p(f's_add_u32 s{sJFL}, s{sJFL}, s{sT0}')
        p(f's_lshl_b32 s{sJFL}, s{sJFL}, 3')
        p(f's_add_u32 s{sJFL}, s{sJFL}, {F_WQ}')
        p.label(l)

    def p1(self):
        p = self.p
        X, ACC, RING, CS = 32, 144, 192, 224
        accK, accV, accQ = ACC, ACC + 16, ACC + 32
        PK, PV = vT, vT + 8
        sXO, sST, sFX, sKV, sKF = sO, sO + 7, sO + 8, sO + 9, sO + 10
        p.ext(self.xoff(sXO, sTP, 28672, O_XA))
        for g in range(1, 7):
            p(f's_add_u32 s{sXO+g}, s{sXO}, {4096*g}')
        p.ext(self.off(sST, sTP, 3584, O_STA))
        p.ext(self.off(sFX, sTP, 128, O_FXA))
        p(f's_lshl_b32 s{sT0}, s{sJ}, 3')
        p(f's_add_u32 s{sT0}, s{sT0}, s{sTP}')
        p.ext(self.off(sKV, sT0, 4096, O_KV))
        p.ext(self.off(sKF, sT0, 128, O_FKV))
        p(f'v_lshrrev_b32 v{vCSA}, 5, v{vL}')
        p(f'v_lshlrev_b32 v{vCSA}, 4, v{vCSA}')
        p(f'v_add_u32 v{vCSA}, {L_CSQ}, v{vCSA}')

        def frag(f):
            if f < 56:
                base, off = vL16, (f % 2) * 28672 + (f // 2) * 1024
            else:
                base, off = vA1, (f - 56) * 1024
            return f'ds_read_b128 {vr(RING + 4*(f % 8))}, v{base} offset:{off}'

        def mf(f):
            acc, s = ((accK, accV)[f % 2], f // 2) if f < 56 else (accQ, f - 56)
            return f'{MF32} {vr(acc,16)}, {vr(RING+4*(f%8))}, {vr(X+4*s)}, {vr(acc,16) if s else 0}'

        def xl(s):
            return f'buffer_load_dwordx4 {vr(X+4*s)}, v{vL16}, {srd(S_WS)}, s{sXO + s//4} offen offset:{(s%4)*1024} sc1'
        self.stamp('p5')
        self.pad()
        self.vpoll(vL8, sFX, 14)
        self.stamp('E')
        XP = 8
        for s in range(XP):
            p(xl(s))

        PD = 6
        for f in range(PD):
            p(frag(f))
        mem, pre = {}, {}
        for f in range(84):
            mem[f] = []
            if f + PD < 84 and not (f < 56 <= f + PD):
                mem[f].append(frag(f + PD))
            if f < 56 and f % 2 == 0 and f // 2 + XP < 28:
                mem[f].append(xl(f // 2 + XP))
            if 33 <= f < 47 and f % 2 == 1:
                mem[f].append(self.stats_loads(sST, CS)[(f - 33) // 2])
            if f % 2 == 0:
                pre[f] = [Touch(vr(RING + 4 * (f % 8)) + ' ' + vr(RING + 4 * ((f + 1) % 8)) + (' ' + vr(X + 4 * (f // 2)) if f < 56 else ''))]

        def cs_reads(tau, dst):
            return [f'ds_read_b128 {vr(dst+4*q)}, v{vCSA} offset:{tau*128 + 32*q}' for q in range(4)]
        p.ext(sched([mf(f) for f in range(56)], pre, mem, cs_reads(1, accQ) + cs_reads(0, PK), 5, start=40))
        p.ext(self.stats_reduce(CS))
        self.stamp('kv')

        def epi(acc, cs, P):
            L = []
            for r in range(0, 16, 2):
                L.append(f'v_pk_fma_f32 {vr(acc+r,2)}, {vr(cs+r,2)}, {vr(vMEAN,2)}, {vr(acc+r,2)} op_sel:[0,0,0] op_sel_hi:[1,0,1]')
            for r in range(0, 16, 2):
                L.append(f'v_pk_mul_f32 {vr(acc+r,2)}, {vr(acc+r,2)}, {vr(vMEAN,2)} op_sel:[0,1] op_sel_hi:[1,1]')
                L.append(f'v_cvt_pk_bf16_f32 v{P+r//2}, v{acc+r}, v{acc+r+1}')
            return L

        def pad(P, c6, c7):
            return ['s_mov_b32 exec_lo, 0', f'v_mov_b32 v{P+6}, {c6:#x}', f'v_mov_b32 v{P+7}, {c7:#x}', 's_mov_b64 exec, -1']

        def st(P, o):
            return [Ins(f'buffer_store_dwordx4 {vr(P+4*k)}, v{vL16}, {srd(S_WS)}, s{sKV} offen offset:{o+1024*k} sc1', 'kvst') for k in range(2)]
        t0, t1 = CS, CS + 1
        p.ext(epi(accK, PK, PK) + pad(PK, 0x3f803f80, 0x3f80) + st(PK, 0))
        p.ext(epi(accV, accQ, PV) + pad(PV, 0x3f80, 0) + st(PV, 2048))
        self.stamp('kvs')
        self.if_layer0(lambda: self.q_late(ACC, sKF))
        for f in range(56, 56 + PD):
            p(frag(f))
        side = [f's_lshl_b32 s{sT0}, s{sW}, 12', f's_add_u32 s{sT0}, s{sT0}, {LKV + 8*4096}',
                f'v_add_u32 v{t0}, s{sT0}, v{vL16}',
                f'ds_write_b128 v{t0}, {vr(PK)}', f'ds_write_b128 v{t0}, {vr(PK+4)} offset:1024',
                f'v_and_b32 v{t1}, 31, v{vL}', f'v_lshlrev_b32 v{t1}, 6, v{t1}', f'v_lshrrev_b32 v{t0}, 5, v{vL}',
                f'v_lshl_add_u32 v{t1}, v{t0}, 4, v{t1}', f'v_add_u32 v{t0}, s{sT0}, v{t1}',
                f'ds_write_b128 v{t0}, {vr(PV)} offset:2048', f'ds_write_b128 v{t0}, {vr(PV+4)} offset:{2048+32}',
                f'v_mul_f32 v{vRSTD}, {f32bits(28 ** -0.5 * math.log2(math.e)):#x}, v{vRSTD}'] + cs_reads(2, CS)
        pre2 = {f - 56: v for f, v in pre.items() if f >= 56}
        mem2 = {f - 56: v for f, v in mem.items() if f >= 56}
        p.ext(sched([mf(f) for f in range(56, 84)], pre2, mem2, side, 4, start=0))
        p.wait('kvst')
        p.ext(self.flag_sc1(sKF))
        self.stamp('q')
        QF = 200
        p.ext(epi(accQ, CS, QF))
        p.ext(pad(QF, 0, 0x3f800000))
        p(f's_mov_b32 s{sJFL}, -1')
        self.if_layer0(lambda: self.wqt_publish(32))
        self.pad()
        p('s_barrier')
        self.stamp('p1')

    def attn(self):
        p = self.p
        KF, ST, MW, MD, OA, QF, PB, VF = 32, 104, 152, 168, 184, 200, 208, 224
        t0, t1 = 104, 105

        NK = 2
        sKD, sKL, sKFl, sNULL = sO + 8, sO + 11, sPOLL + 6, sT4
        sKFl = [sO + 14, sO + 15, sT3]
        p(f's_mov_b32 s{sNULL}, 0')
        for k in range(NK):
            p(f's_lshl_b32 s{sT0}, s{sW}, 1')
            p(f's_add_u32 s{sT0}, s{sT0}, {k}')
            p(f's_lshl_b32 s{sKL+k}, s{sT0}, 12')
            p(f's_add_u32 s{sKL+k}, s{sKL+k}, {LKV}')
            p(f's_lshl_b32 s{sT1}, s{sA}, 2')
            p(f's_add_u32 s{sT0}, s{sT0}, s{sT1}')
            p(f's_cmp_lt_u32 s{sT0}, 8')
            p(f's_cselect_b32 s{sT1}, {STRIDE}, 0')
            p(f's_sub_u32 s{sT1}, s{sLB}, s{sT1}')
            p(f's_and_b32 s{sT0}, s{sT0}, 7')
            p(f's_cmp_lt_i32 s{sT1}, {TEAM0}')
            p(f's_cselect_b32 s{sT2}, {1 << k}, 0')
            p(f's_cselect_b32 s{sT1}, s{sLB}, s{sT1}')
            p(f's_cselect_b32 s{sT0}, s{sTP}, s{sT0}')
            p(f's_or_b32 s{sNULL}, s{sNULL}, s{sT2}')
            p(f's_lshl_b32 s{sT2}, s{sJ}, 3')
            p(f's_add_u32 s{sT0}, s{sT0}, s{sT2}')
            p(f's_lshl_b32 s{sKD+k}, s{sT0}, 12')
            p(f's_add_u32 s{sKD+k}, s{sKD+k}, s{sT1}')
            p(f's_lshl_b32 s{sT0}, s{sT0}, 7')
            p(f's_add_u32 s{sT0}, s{sT0}, s{sT1}')
            p(f's_add_u32 s{sKFl[k]}, s{sT0}, {O_FKV}')
        p(f'v_bfe_u32 v{t0}, v{vL}, 1, 1')
        p(f'v_lshlrev_b32 v{t0}, 10, v{t0}')
        p(f'v_and_b32 v{t1}, 1, v{vL}')
        p(f'v_lshl_add_u32 v{t0}, v{t1}, 9, v{t0}')
        p(f'v_lshrrev_b32 v{t1}, 2, v{vL}')
        p(f'v_lshl_add_u32 v{t0}, v{t1}, 4, v{t0}')
        lp, lo = p.newlabel('kvpoll'), p.newlabel('kvpollout')
        self.stamp('w1')
        p('s_waitcnt lgkmcnt(0)')
        p(f's_mov_b32 s{sCNT}, 0')
        p.label(lp)
        for k in range(NK):
            p(f's_load_dwordx2 s[{sPOLL+2*k}:{sPOLL+2*k+1}], s[{S_WSP}:{S_WSP+1}], s{sKFl[k]} glc')
        p(f's_add_u32 s{sCNT}, s{sCNT}, 1')
        p(f's_cmp_gt_u32 s{sCNT}, {POLL_MAX}')
        p(f's_cbranch_scc1 {lo}')
        p('s_waitcnt lgkmcnt(0)')
        for k in range(NK):
            p(f's_cmp_eq_u64 s[{sPOLL+2*k}:{sPOLL+2*k+1}], s[{sF}:{sF+1}]')
            p(f's_cbranch_scc0 {lp}')
        p.label(lo)
        self.stamp('kvf')
        for k in range(NK):
            lnull, lb = p.newlabel('null'), p.newlabel('nullback')
            p(f's_bitcmp1_b32 s{sNULL}, {k}')
            p(f's_cbranch_scc1 {lnull}')
            p(f's_mov_b32 m0, s{sKL+k}')
            p(f's_sub_u32 s{sT5}, s{sKD+k}, 768')
            p(f'buffer_load_dwordx4 v{vL16}, {srd(S_WS)}, s{sKD+k} offen sc1 lds')
            p(f'buffer_load_dwordx4 v{vL16}, {srd(S_WS)}, s{sKD+k} offen offset:1024 sc1 lds')
            p(f'buffer_load_dwordx4 v{t0}, {srd(S_WS)}, s{sKD+k} offen offset:2048 sc1 lds')
            p(f'buffer_load_dwordx4 v{t0}, {srd(S_WS)}, s{sT5} offen offset:3072 sc1 lds')
            p.label(lb)
            self.tail.append((lnull, [
                f'v_add_u32 v{t1}, s{sKL+k}, v{vL16}',
                'v_mov_b32 v108, 0', 'v_mov_b32 v109, 0', 'v_mov_b32 v110, 0', 'v_mov_b32 v111, 0'] +
                [f'ds_write_b128 v{t1}, v[108:111] offset:{o}' for o in (0, 2048, 3072)] +
                ['s_mov_b32 exec_lo, 0', 'v_mov_b32 v111, 0xf1490000', 's_mov_b64 exec, -1',
                 f'ds_write_b128 v{t1}, v[108:111] offset:1024', f's_branch {lb}']))
        t2, t3 = 106, 107
        p(f'v_and_b32 v{t2}, 31, v{vL}')
        p(f'v_lshrrev_b32 v{t3}, 5, v{vL}')
        p(f'v_lshlrev_b32 v{t3}, 2, v{t3}')
        p(f'v_sub_u32 v{t2}, v{t2}, v{t3}')
        p(f'v_mov_b32 v{t3}, {f32bits(-1e30):#x}')
        for r in range(0, 16, 2):
            k0, k1 = 8 * (r // 4) + r % 4, 8 * (r // 4) + r % 4 + 1
            p(f'v_cmp_le_i32 vcc, {k0}, v{t2}')
            p(f'v_cmp_le_i32 s[{sPOLL}:{sPOLL+1}], {k1}, v{t2}')
            p('s_nop 0')
            p(f'v_cndmask_b32_e64 v{MD+r}, v{t3}, 0, vcc')
            p(f'v_cndmask_b32_e64 v{MD+r+1}, v{t3}, 0, s[{sPOLL}:{sPOLL+1}]')
            p(f'v_cndmask_b32_e64 v{MW+r}, 0, v{t3}, vcc')
            p(f'v_cndmask_b32_e64 v{MW+r+1}, 0, v{t3}, s[{sPOLL}:{sPOLL+1}]')
        vKA, vVA = vT, vT + 1
        p(f's_lshl_b32 s{sT0}, s{sW}, 12')
        p(f's_add_u32 s{sT0}, s{sT0}, {LKV}')
        p(f'v_add_u32 v{vKA}, s{sT0}, v{vL16}')
        p(f'v_lshrrev_b32 v{t2}, 5, v{vL}')
        p(f'v_bfe_u32 v{t3}, v{vL}, 2, 2')
        p(f'v_lshl_add_u32 v{t2}, v{t2}, 2, v{t3}')
        p(f'v_lshlrev_b32 v{vVA}, 6, v{t2}')
        p(f'v_bfe_u32 v{t2}, v{vL}, 4, 1')
        p(f'v_lshl_add_u32 v{vVA}, v{t2}, 5, v{vVA}')
        p(f'v_and_b32 v{t2}, 1, v{vL}')
        p(f'v_lshl_add_u32 v{vVA}, v{t2}, 4, v{vVA}')
        p(f'v_bfe_u32 v{t2}, v{vL}, 1, 1')
        p(f'v_lshl_add_u32 v{vVA}, v{t2}, 3, v{vVA}')
        p(f'v_add_u32 v{vVA}, s{sT0}, v{vVA}')
        sOD, sOF, sWO = sO, sO + 1, sO + 2
        p(f's_lshl_b32 s{sT0}, s{sTP}, 4')
        p(f's_add_u32 s{sT0}, s{sT0}, s{sJ}')
        p.ext(self.roff(sOD, sT0, 2048, O_O))
        p.ext(self.off(sOF, sT0, 8, O_FO))
        p(f's_lshl_b32 s{sWO}, s{sCB}, 2')
        p(f's_add_u32 s{sWO}, s{sWO}, s{sW}')
        p(f's_lshl_b32 s{sWO}, s{sWO}, 14')
        p(f's_add_u32 s{sWO}, s{sWO}, {WOT}')
        for g in range(1, 4):
            p(f's_add_u32 s{sWO+g}, s{sWO}, {4096*g}')
        vPT = vT + 12
        p(f'v_lshlrev_b32 v{vPT}, 7, v{vL}')
        p(f'v_add_u32 v{vPT}, s{sOD}, v{vPT}')
        p(f's_lshl_b32 s{sT0}, s{sTP}, 7')
        p(f's_lshl_b32 s{sT1}, s{sRB}, 8')
        p(f's_lshl_b32 s{sT2}, s{sRHO}, 7')
        p(f's_add_u32 s{sT2}, s{sT2}, s{sT1}')
        p(f's_mul_i32 s{sT3}, s{sT2}, 28')
        p(f's_lshl_b32 s{sT4}, s{sCB}, 9')
        p(f's_add_u32 s{sT3}, s{sT3}, s{sT4}')
        p(f's_lshl_b32 s{sT4}, s{sNU}, 8')
        p(f's_add_u32 s{sT3}, s{sT3}, s{sT4}')
        for lane, (r, c) in enumerate([(sT0, O_FO), (sT1, O_FO), (sT1, O_FO + 128), (sT0, O_FX1), (sT2, O_FX1),
                                       (sT3, O_ST1), (sT3, O_ST1 + 128), (sT0, O_FH), (sT1, O_FH), (sT1, O_FH + 128),
                                       (sT3, LSTRIDE + O_STA), (sT3, LSTRIDE + O_STA + 128), (sT2, LSTRIDE + O_FXA),
                                       (sT0, LSTRIDE + O_FXA)]):
            p(f's_add_u32 s{sT4}, s{r}, {c}')
            p(f's_add_u32 s{sT4}, s{sT4}, s{sLB}')
            p(f'v_writelane_b32 v{vPT}, s{sT4}, {16 + lane}')
        p(f'v_cmp_lt_u32 vcc, 29, v{vL}')
        p(f'v_mov_b32 v{t2}, s{sT4}')
        p(f'v_cndmask_b32 v{vPT}, v{vPT}, v{t2}, vcc')
        vZ = vT + 8
        p(f's_lshl_b32 s{sT0}, s{sNU}, 10')
        p(f'v_xor_b32 v{vZ}, s{sT0}, v{vL16}')
        p(f'v_xor_b32 v{vZ+1}, 1024, v{vZ}')

        def first():
            l0 = p.newlabel('first')
            p(f's_cmp_lg_u32 s{sW}, 0')
            p(f's_cbranch_scc1 {l0}')
            p(f's_lshl_b32 s{sT0}, s{sJ}, 7')
            p(f's_add_u32 s{sT0}, s{sT0}, {F_W1}')
            p(f's_lshl_b32 s{sT2}, s{sCB}, 6')
            p(f's_add_u32 s{sT2}, s{sT2}, {F_WO - 14*8}')
            p(f's_lshl_b32 s{sT3}, s{sTEAM}, 8')
            p(f's_add_u32 s{sT3}, s{sT3}, {WS_PUR - 32*8}')
            p(f'v_add_u32 v{t2}, s{sT0}, v{vL8}')
            p(f'v_min_u32 v{t3}, {21*8}, v{vL8}')
            p(f'v_add_u32 v{t3}, s{sT2}, v{t3}')
            p(f'v_cmp_le_u32 vcc, 14, v{vL}')
            p(f'v_cndmask_b32 v{t2}, v{t2}, v{t3}, vcc')
            p(f'v_add_u32 v{t3}, s{sT3}, v{vL8}')
            p(f'v_cmp_le_u32 vcc, 32, v{vL}')
            p(f'v_cndmask_b32 v{t2}, v{t2}, v{t3}, vcc')
            lp, lo, ls = p.newlabel('pur'), p.newlabel('purout'), p.newlabel('pursleep')
            p(f's_mov_b32 s{sCNT}, 0')
            p.label(lp)
            p(f'buffer_load_dwordx2 {vr(108,2)}, v{t2}, {srd(S_WS)}, 0 offen sc1')
            p(f's_add_u32 s{sCNT}, s{sCNT}, 1')
            p(f's_cmp_gt_u32 s{sCNT}, {POLL_MAX}')
            p(f's_cbranch_scc1 {lo}')
            p('s_waitcnt vmcnt(0)')
            p(f'v_xor_b32 v109, s{sF+1}, v109')
            p(f'v_xor_b32 v108, s{sF}, v108')
            p(f'v_and_b32 v110, 0x0fffffff, v109')
            p(f'v_or_b32 v108, v108, v110')
            p(f'v_cmp_ne_u32 vcc, 0, v108')
            p(f's_cbranch_vccnz {ls}')
            p(f'v_readlane_b32 s{sT1}, v109, 32')
            p(f'v_cmp_ne_u32 vcc, s{sT1}, v109')
            p(f's_cmp_eq_u32 vcc_hi, 0')
            p(f's_cselect_b32 s{sT1}, {0 if os.environ.get("FORCE_IMPURE") else 1}, 0')
            p(f'v_mov_b32 v108, s{sT1}')
            p(f'v_mov_b32 v109, {L_PUR}')
            p('ds_write_b32 v109, v108')
            p.label(lo)
            p.label(l0)
            self.tail.append((ls, ['s_sleep 8', f's_branch {lp}']))
        self.if_layer0(first)
        self.pad()
        p('s_waitcnt vmcnt(0) lgkmcnt(0)')
        self.flag_opt(sJFL)
        self.stamp('kvd')
        p('s_barrier')
        self.stamp('A')

        def getpure():
            p(f'v_mov_b32 v{t0}, {L_PUR}')
            p(f'ds_read_b32 v{t0}, v{t0}')
            p(f'v_readfirstlane_b32 s{sPURE}, v{t0}')
        self.if_layer0(getpure)
        p(f'v_lshlrev_b32 v{t0}, 7, v{vL}')
        p(f's_lshl_b32 s{sT0}, s{sCB}, 2')
        p(f's_add_u32 s{sT0}, s{sT0}, s{sRB}')
        p(f's_lshl_b32 s{sT1}, s{sT0}, 14')
        p(f's_lshl_b32 s{sT2}, s{sW}, 12')
        p(f's_add_u32 s{sT1}, s{sT1}, s{sT2}')
        p(f's_add_u32 s{sT1}, s{sT1}, {WOT}')
        p('s_mov_b32 exec_hi, 0')
        p(f'buffer_load_dword a255, v{t0}, {srd(S_WS)}, s{sT1} offen sc1')
        p('s_mov_b64 exec, -1')
        p(f'buffer_load_dword a255, v{vPT}, {srd(S_WS)}, 0 offen sc1')
        bg = self.w1_dma(0)

        def kread(t):
            return [f'ds_read_b128 {vr(KF+8*t+4*k)}, v{vKA} offset:{t*4096+k*1024}' for k in range(2)]

        def qk(t):
            s = ST + 16 * (t % 3)
            c = vr(MW, 16) if t == 0 else vr(MD, 16) if t == 8 else '0'
            return [f'{MF32} {vr(s,16)}, {vr(KF+8*t)}, {vr(QF)}, {c}',
                    f'{MF32} {vr(s,16)}, {vr(KF+8*t+4)}, {vr(QF+4)}, {vr(s,16)}']
        vM, vM2 = vT + 2, vT + 3

        def mx(t):
            s = ST + 16 * (t % 3)
            L = []
            for i in range(8):
                d = vM if i % 2 == 0 else vM2
                if t == 0 and i < 2:
                    L.append(f'v_max_f32 v{d}, v{s+2*i}, v{s+2*i+1}')
                else:
                    L.append(f'v_max3_f32 v{d}, v{s+2*i}, v{s+2*i+1}, v{d}')
            return L

        def vread(t):
            d = VF + 8 * (t % 2)
            return [f'ds_read_b64_tr_b16 {vr(d+4*kv+2*jj,2)}, v{vVA} offset:{t*4096+2048+(16*kv+8*jj)*64}'
                    for kv in range(2) for jj in range(2)]
        def popbg():
            L = []
            while bg:
                x = bg.pop(0)
                L.append(x)
                if is_mem(x):
                    break
            return L
        for t in range(4):
            p.ext(kread(t))
        q = qk(0)
        p.ext([q[0]] + kread(4) + [q[1]] + kread(5))
        q = qk(1)
        p.ext([q[0]] + kread(6) + [q[1]] + kread(7))
        for t in range(9):
            m = mx(t)
            if t + 2 < 9:
                q = qk(t + 2)
                extra = kread(8) if t == 0 else vread(0)[:2] if t == 5 else vread(0)[2:] if t == 6 else []
                if t % 2 == 1:
                    extra = extra + popbg()
                p.ext([q[0]] + extra + m[:4] + [q[1]] + m[4:])
            else:
                p.ext(m)
        self.stamp('a1')
        a, b2, r1 = vT + 4, vT + 5, vT + 6
        p(f'v_max_f32 v{vM}, v{vM}, v{vM2}')
        p(f'v_mov_b32 v{a}, v{vM}')
        p(f'v_permlane32_swap_b32 v{vM}, v{a}')
        p(f'v_max_f32 v{vM}, v{vM}, v{a}')
        p(f'v_xor_b32 v{vM}, 0x80000000, v{vM}')
        p(f'v_and_b32 v{a}, 0xffff0000, v{vM}')
        p(f'v_sub_f32 v{r1}, v{vM}, v{a}')
        p(f'v_and_b32 v{a}, 0xffff0000, v{r1}')
        p(f'v_sub_f32 v{b2}, v{r1}, v{a}')
        p('s_mov_b32 exec_lo, 0')
        p(f'v_perm_b32 v{QF+6}, v{r1}, v{vM}, s{sPERM}')
        p(f'v_perm_b32 v{QF+7}, 1.0, v{b2}, s{sPERM}')
        p('s_mov_b64 exec, -1')

        def ex(t):
            s = ST + 16 * (t % 3)
            pb = PB + 8 * (t % 2)
            L = []
            for i in range(8):
                L.append(f'v_exp_f32 v{s+2*i}, v{s+2*i}')
                L.append(f'v_exp_f32 v{s+2*i+1}, v{s+2*i+1}')
                if i:
                    L.append(f'v_cvt_pk_bf16_f32 v{pb+i-1}, v{s+2*i-2}, v{s+2*i-1}')
            L.append(f'v_cvt_pk_bf16_f32 v{pb+7}, v{s+14}, v{s+15}')
            return L

        def pv(t):
            d = VF + 8 * (t % 2)
            pb = PB + 8 * (t % 2)
            return [f'{MF32} {vr(OA,16)}, {vr(d)}, {vr(pb)}, {vr(OA,16) if t else 0}',
                    f'{MF32} {vr(OA,16)}, {vr(d+4)}, {vr(pb+4)}, {vr(OA,16)}']

        self.pad()

        def wol(i):
            ks, z = i // 2, i % 2
            return f'buffer_load_dwordx4 {vr(32+4*i)}, v{vZ+z}, {srd(S_WS)}, s{sWO + ks//2} offen offset:{(ks%2)*2048} sc1'
        p.ext(qk(0))
        p.ext(qk(1))
        for t in range(9):
            e = ex(t)
            mf = (pv(t - 1) if t else []) + (qk(t + 2) if t + 2 < 9 else [])
            out = []
            pos = [2, 7, 12, 17]
            for i, x in enumerate(e):
                out.append(x)
                if i in pos and pos.index(i) < len(mf):
                    k = pos.index(i)
                    out.append(mf[k])
                    if t + 1 < 9:
                        if t == 0:
                            out += vread(1)[2 * k:2 * k + 2]
                        elif k in (1, 2):
                            out += vread(t + 1)[2 * (k - 1):2 * (k - 1) + 2]
                        elif t == 7 and k == 1:
                            pass
                    if t < 6 and k in (0, 3) or t == 0:
                        out += popbg()
                    if t >= 7:
                        out += [wol(8 * (t - 7) + 4 * k + q) for q in range(4)]
            if t == 7:
                out = out[:-3] + vread(8)[2:] + out[-3:]
            p.ext(out)
        assert not bg
        p.ext(pv(8))
        self.stamp('a2')
        p(f'v_mov_b32 v{a}, v{OA+12}')
        p(f'v_mov_b32 v{b2}, v{OA+12}')
        p(f'v_permlane32_swap_b32 v{a}, v{b2}')
        p(f'v_rcp_f32 v{b2}, v{b2}')
        for i in range(8):
            p(f'v_pk_mul_f32 {vr(OA+2*i,2)}, {vr(OA+2*i,2)}, {vr(a,2)} op_sel:[0,1] op_sel_hi:[1,1]')
            p(f'v_cvt_pk_bf16_f32 v{PB+i}, v{OA+2*i}, v{OA+2*i+1}')
            if i % 4 == 3:
                p(f'buffer_store_dwordx4 {vr(PB+i-3)}, v{vL16}, {srd(S_WS)}, s{sOD} offen offset:{(i//4)*1024}', tok='ost')
        self.publish(['ost'], sOF)
        self.stamp('att')

    def reduce_writes(self, ACC):
        return [Ins(f'ds_write_b128 v{vRW+x-1}, {vr(ACC+16*x+4*c)} offset:{c*1024}', 'rw') for x in range(1, 4) for c in range(4)]

    def reduce_finish(self, ACC, TMP):
        p = self.p
        p.wait('rw')
        self.pad()
        p('s_barrier')
        for c in range(4):
            for x in range(3):
                p(f'ds_read_b128 {vr(TMP+16*x+4*c)}, v{vRW+3} offset:{x*4096+c*1024}')
        for c in range(8):
            p(f'v_pk_add_f32 {vr(TMP+2*c,2)}, {vr(TMP+2*c,2)}, {vr(TMP+16+2*c,2)}')
            p(f'v_pk_add_f32 {vr(ACC+2*c,2)}, {vr(ACC+2*c,2)}, {vr(TMP+32+2*c,2)}')
            p(f'v_pk_add_f32 {vr(ACC+2*c,2)}, {vr(ACC+2*c,2)}, {vr(TMP+2*c,2)}')

    def yoffs(self, dst, mul, add):
        L = []
        for y in range(2):
            L += [f's_xor_b32 s{sT0}, s{sRHO}, {y}', f's_lshl_b32 s{sT1}, s{sRB}, 1', f's_add_u32 s{sT0}, s{sT0}, s{sT1}',
                  f's_lshl_b32 s{sT0}, s{sT0}, 2', f's_add_u32 s{sT0}, s{sT0}, s{sW}'] + self.roff(dst + y, sT0, mul, add)
        return L

    def p3(self):
        p = self.p
        WO, OF, ACC, RING = 32, 96, 160, 200

        def colsum(part):
            for i in range(4):
                p(f'v_mov_b32 v{vT+4+i}, s{sONES}')
            p(f's_lshl_b32 s{sT0}, s{sW}, 10')
            if part == 0:
                p(f'v_add_u32 v{vT}, s{sT0}, v{vL16}')
            else:
                p(f's_min_u32 s{sT0}, s{sT0}, 2048')
                p(f'v_add_u32 v{vT}, s{sT0}, v{vA1}')
            rd = lambda f: f'ds_read_b128 {vr(RING+4*(f%6))}, v{vT} offset:{f*(4096, 3072)[part]}'
            for f in range(5):
                p(rd(f))
            for f in range(14):
                p(f'{MF16} {vr(ACC)}, {vr(vT+4)}, {vr(RING+4*(f%6))}, {vr(ACC) if f else 0}')
                if f + 5 < 14:
                    p(rd(f + 5))
            p(f's_lshl_b32 s{sT0}, s{sW}, 6')
            p(f's_add_u32 s{sT0}, s{sT0}, {L_CS1 + 256*part}')
            p(f'v_and_b32 v{vT}, 15, v{vL}')
            p(f'v_lshlrev_b32 v{vT}, 2, v{vT}')
            p(f'v_add_u32 v{vT}, s{sT0}, v{vT}')
            p(f'ds_write_b32 v{vT}, v{ACC}')
            p('s_waitcnt lgkmcnt(0)')
        w1d = self.w1_dma(1)
        self.pad()
        p('s_barrier')
        self.if_layer0(lambda: colsum(0))
        ljoin, lidle = p.newlabel('p3join'), p.newlabel('p3idle')
        p(f's_cmp_ge_u32 s{sM}, 28')
        p(f's_cbranch_scc1 {lidle}')
        p.mark('maybe_begin')
        sFO, sY = sO, sO + 2
        p(f's_lshl_b32 s{sT0}, s{sRB}, 3')
        p(f's_add_u32 s{sT0}, s{sT0}, s{sW}')
        p.ext(self.off(sFO, sT0, 32, O_FO))
        p.ext(self.yoffs(sY, 8192, O_O))
        p(f's_add_u32 s{sY+2}, s{sY}, 4096')
        p(f's_add_u32 s{sY+3}, s{sY+1}, 4096')
        p.ext(self.pub_offsets(O_X1, O_ST1, O_FX1))
        self.vpoll(vFLG, sFO, 8)
        self.stamp('B')

        def ld(ks, y):
            return f'buffer_load_dwordx4 {vr(OF+(ks*2+y)*4)}, v{vL16}, {srd(S_WS)}, s{sY + 2*(ks//4) + y} offen offset:{(ks%4)*1024} sc1'

        def mf(ks, x):
            y, z = x >> 1, x & 1
            c = vr(ACC + 16 * x, 16) if ks else (vr(vRES, 16) if x == 0 else '0')
            return f'{MF32} {vr(ACC+16*x,16)}, {vr(WO+(ks*2+z)*4)}, {vr(OF+(ks*2+y)*4)}, {c}'
        for ks in range(5):
            for y in range(2):
                p(ld(ks, y))
        rest = list(w1d)
        for ks in range(8):
            for x in (1, 2, 3):
                p(mf(ks, x))
                if ks + 5 < 8 and x < 3:
                    p(ld(ks + 5, x - 1))
                elif ks >= 3 and rest:
                    y = rest.pop(0)
                    p.ext([y])
                    while rest and not is_mem(y):
                        y = rest.pop(0)
                        p.ext([y])
        assert not rest
        self.stamp('p3mm')
        p.ext(sched([mf(ks, 0) for ks in range(8)], {}, {}, self.reduce_writes(ACC), 2, start=2))
        self.stamp('p3rw')
        self.reduce_finish(ACC, 32)
        self.stamp('p3rd')
        P = 96
        for i in range(8):
            p(f'v_cvt_pk_bf16_f32 v{P+i}, v{ACC+2*i}, v{ACC+2*i+1}')
        self.x_store(P, vX1A, (0, 512))
        self.publish(['xst'], sXF)
        self.stamp('p3pub')
        p.ext(self.res_unpack(P))
        p.mark('maybe_end')
        p.label(ljoin)
        lq = p.newlabel('p3noq')
        vq = [f's_cmp_lg_u32 s{sLAYER}, 0', f's_cbranch_scc1 {ljoin}',
              f's_lshl_b32 s{sT0}, s{sCB}, 2', f's_add_u32 s{sT0}, s{sT0}, s{sW}',
              f's_lshl_b32 s{sT1}, s{sT0}, 7', f's_add_u32 s{sT1}, s{sT1}, {F_WQ}']
        self.idle3 = (lidle, w1d + vq, sT1, ljoin)
        self.pad()
        p('s_waitcnt vmcnt(0)')
        p('s_barrier')
        self.if_layer0(lambda: colsum(1))
        self.stamp('p3')

    def p4(self):
        p = self.p
        X, ACC, RING, CS = 32, 144, 200, 224
        sXO, sST, sFX, sH, sHF = sO, sO + 7, sO + 8, sO + 9, sO + 11

        def late():
            p(f's_lshl_b32 s{sT0}, s{sCB}, 9')
            p(f's_lshl_b32 s{sT1}, s{sW}, 7')
            p(f's_add_u32 s{sT0}, s{sT0}, s{sT1}')
            p(f's_add_u32 s{sT0}, s{sT0}, {F_W2}')
            p(f's_lshl_b32 s{sT1}, s{sJ}, 7')
            p(f's_add_u32 s{sT1}, s{sT1}, {F_WQ - 16*8}')
            p(f'v_mov_b32 v{vT}, s{sT0}')
            p(f'v_mov_b32 v{vT+1}, s{sT1}')
            p(f'v_cmp_le_u32 vcc, 16, v{vL}')
            p(f'v_cndmask_b32 v{vT}, v{vT}, v{vT+1}, vcc')
            p(f'v_add_u32 v{vT}, v{vT}, v{vL8}')
            p(f's_mov_b32 s{sT0}, 0')
            self.vpoll(vT, sT0, 30, acquire=False, drained=False)
            p.ext(self.w2_loads(0, 12))
        self.if_layer0(late)
        p.ext(self.xoff(sXO, sTP, 28672, O_X1))
        for g in range(1, 7):
            p(f's_add_u32 s{sXO+g}, s{sXO}, {4096*g}')
        p.ext(self.off(sST, sTP, 3584, O_ST1))
        p.ext(self.off(sFX, sTP, 128, O_FX1))
        p(f's_lshl_b32 s{sT0}, s{sTP}, 4')
        p(f's_add_u32 s{sT0}, s{sT0}, s{sJ}')
        p.ext(self.roff(sH, sT0, 7168, O_H))
        p(f's_add_u32 s{sH+1}, s{sH}, 4096')
        p.ext(self.off(sHF, sT0, 8, O_FH))
        vHA, vHB = vT + 1, vT + 2
        p.ext([f'v_lshrrev_b32 v{vCSA}, 4, v{vL}', f'v_lshlrev_b32 v{vCSA}, 4, v{vCSA}', f'v_add_u32 v{vCSA}, {L_CS1}, v{vCSA}',
               f'v_lshrrev_b32 v{vHA}, 5, v{vL}', f'v_lshlrev_b32 v{vHA}, 10, v{vHA}',
               f'v_bfe_u32 v{vHB}, v{vL}, 4, 1', f'v_lshl_add_u32 v{vHA}, v{vHB}, 9, v{vHA}',
               f'v_and_b32 v{vT+3}, 15, v{vL}', f'v_lshl_add_u32 v{vHA}, v{vT+3}, 4, v{vHA}',
               f'v_lshlrev_b32 v{vHB}, 3, v{vHB}', f'v_lshl_add_u32 v{vHB}, v{vT+3}, 4, v{vHB}',
               f'v_lshrrev_b32 v{vT+3}, 5, v{vL}', f'v_lshl_add_u32 v{vHB}, v{vT+3}, 9, v{vHB}'])
        p(f'v_lshlrev_b32 v{vT}, 7, v{vL}')
        seq = [(t, s) for s in range(14) for t in range(4)] + [(t, s) for s in range(14) for t in range(4, 7)]

        def frag(f):
            base, off = (vL16, f * 1024) if f < 56 else (vA1, (f - 56) * 1024)
            return f'ds_read_b128 {vr(RING + 4*(f % 6))}, v{base} offset:{off}'

        def mf(f, u):
            t, s = seq[f]
            return f'{MF16} {vr(ACC+8*t+4*u)}, {vr(RING+4*(f%6))}, {vr(X+4*(2*s+u))}, {vr(ACC+8*t+4*u) if s else 0}'

        def xl(i):
            return f'buffer_load_dwordx4 {vr(X+4*i)}, v{vL16}, {srd(S_WS)}, s{sXO + i//4} offen offset:{(i%4)*1024} sc1'
        PD = 4
        for f in range(PD):
            p(frag(f))
        self.pad()
        self.vpoll(vL8, sFX, 14)
        self.stamp('C')
        XP = 8
        for i in range(XP):
            p(xl(i))
        mem, pre = {}, {}
        for f in range(98):
            mem[2 * f] = [frag(f + PD)] if f + PD < 98 else []
            if f < 56 and f % 2 == 0 and f // 2 + XP < 28:
                mem[2 * f + 1] = [xl(f // 2 + XP)]
            if 27 <= f < 41 and f % 2 == 1:
                mem[2 * f + 1] = [self.stats_loads(sST, CS)[(f - 27) // 2]]
            if f % 2 == 0:
                tch = vr(RING + 4 * (f % 6)) + ' ' + vr(RING + 4 * ((f + 1) % 6))
                if f < 56 and f % 4 == 0:
                    tch += ' ' + vr(X + 8 * (f // 4), 8)
                pre[2 * f] = [Touch(tch)]
        mem[2 * 41 + 1] = [['s_mov_b32 exec_hi, 0xffffff', f'buffer_load_dword a255, v{vT}, {srd(S_WS)}, s{sH} offen sc1', 's_mov_b64 exec, -1']]
        mfs = [mf(f, u) for f in range(98) for u in range(2)]
        side = self.stats_reduce(CS) + [f'v_mov_b32 v{vRSTD}, v{vMEAN}', 's_nop 0', f'v_permlane16_swap_b32 v{vMEAN}, v{vRSTD}']
        p.ext(sched(mfs[:112], pre, mem, side, 2, start=92))
        self.stamp('p4g1')
        PO = vT + 4

        def epi(tiles, tok):
            L = []
            for t in tiles:
                L.append(f'ds_read_b128 {vr(CS+4*(t%4))}, v{vCSA} offset:{t*64}')
            pairs = [tiles[i:i + 2] for i in range(0, len(tiles), 2)]
            n = 0
            for pr in pairs:
                for u in range(2):
                    po = PO + 4 * (n % 3)
                    n += 1
                    mean = (vMEAN, vRSTD)[u]
                    for k, t in enumerate(pr):
                        a = ACC + 8 * t + 4 * u
                        for r in range(4):
                            L.append(f'v_fma_f32 v{a+r}, v{CS+4*(t%4)+r}, v{mean}, v{a+r}')
                        for r in range(2):
                            L.append(f'v_cvt_pk_bf16_f32 v{po+2*k+r}, v{a+2*r}, v{a+2*r+1}')
                        for r in range(2):
                            L.append(f'v_pk_max_i16 v{po+2*k+r}, v{po+2*k+r}, 0')
                    t = pr[0]
                    so, off = (sH, t * 1024) if t < 4 else (sH + 1, (t - 4) * 1024)
                    if len(pr) == 2:
                        L.append(Ins(f'buffer_store_dwordx4 {vr(po)}, v{vHA}, {srd(S_WS)}, s{so} offen offset:{off+u*256}', tok))
                    else:
                        L.append(Ins(f'buffer_store_dwordx2 {vr(po,2)}, v{vHB}, {srd(S_WS)}, s{so} offen offset:{off+u*256}', tok))
            return L
        pre2 = {i - 112: v for i, v in pre.items() if i >= 112}
        mem2 = {i - 112: v for i, v in mem.items() if i >= 112}
        self.pad()
        p('s_barrier')
        wq = self.wq_dma((0, 1), sXO)
        i = 1
        for x in wq:
            mem2.setdefault(i, []).append(x)
            if is_mem(x):
                i += 4
        p.ext(sched(mfs[112:], pre2, mem2, epi([0, 1, 2, 3], 'hst'), 2, start=0))
        self.stamp('p4g2')
        p.ext(epi([4, 5, 6], 'hst'))
        self.stamp('p4ep')
        self.publish(['hst'], sHF)
        self.pad()
        p('s_barrier')
        self.stamp('p4')

    def p5(self):
        p = self.p
        HR, ACC, CS = 32, 160, 224
        lskip, ljoin, llast = p.newlabel('p5skip'), p.newlabel('p5join'), p.newlabel('p5last')
        p(f's_cmp_ge_u32 s{sM}, 28')
        p(f's_cbranch_scc1 {lskip}')
        sFH, sST, sY = sO, sO + 1, sO + 2
        self.if_layer0(lambda: p.ext(self.w2_loads(12, 28)))
        p(f's_lshl_b32 s{sT0}, s{sRB}, 3')
        p(f's_add_u32 s{sT0}, s{sT0}, s{sW}')
        p.ext(self.off(sFH, sT0, 32, O_FH))
        p.ext(self.yoffs(sY, 28672, O_H))
        for g in range(1, 7):
            for y in range(2):
                p(f's_add_u32 s{sY+2*g+y}, s{sY+y}, {4096*g}')
        p(f's_lshl_b32 s{sT0}, s{sRB}, 1')
        p(f's_add_u32 s{sT0}, s{sT0}, s{sRHO}')
        p.ext(self.off(sST, sT0, 3584, O_ST1))
        p.ext(self.pub_offsets(O_XA + LSTRIDE, O_STA + LSTRIDE, O_FXA + LSTRIDE))
        self.pad()
        self.vpoll(vFLG, sFH, 8)
        self.stamp('D')
        NR = 16

        def ld(ks, y):
            return f'buffer_load_dwordx4 {vr(HR+((ks%NR)*2+y)*4)}, v{vL16}, {srd(S_WS)}, s{sY + 2*(ks//4) + y} offen offset:{(ks%4)*1024} sc1'

        def mf(ks, x):
            y, z = x >> 1, x & 1
            return f'{MF32} {vr(ACC+16*x,16)}, {ar(ks*8+z*4)}, {vr(HR+((ks%NR)*2+y)*4)}, {vr(ACC+16*x,16) if ks else 0}'
        PD = 5
        for ks in range(PD):
            p(ld(ks, 0))
            p(ld(ks, 1))
        TAIL = 14
        mfs, mem = [], {}
        bgl = self.stats_loads(sST, CS)
        for ks in range(28):
            xs = (0, 1, 2, 3) if ks < 28 - TAIL else (1, 2, 3)
            for n, x in enumerate(xs):
                i = len(mfs)
                mfs.append(mf(ks, x))
                if ks + PD < 28:
                    if n < 2:
                        mem[i] = [ld(ks + PD, n)]
                else:
                    mem[i] = []
                    while bgl:
                        y = bgl.pop(0)
                        mem[i].append(y)
                        if is_mem(y):
                            break
        p.ext(sched(mfs, {}, mem, [], 6))
        self.stamp('p5mm')
        sr = self.stats_reduce(CS)
        mem = {}
        for i, x in enumerate(self.reduce_writes(ACC)):
            mem.setdefault(2 + i, []).append(x)
        p.ext(sched([mf(ks, 0) for ks in range(28 - TAIL, 28)], {}, mem, bgl + sr, 5, start=0))
        self.stamp('p5rw')
        self.reduce_finish(ACC, 32)
        self.stamp('p5rd')
        P = 96
        for i in range(8):
            p(f'v_pk_fma_f32 {vr(ACC+2*i,2)}, {vr(ACC+2*i,2)}, {vr(vMEAN,2)}, {vr(vRES+2*i,2)} op_sel:[0,1,0] op_sel_hi:[1,1,1]')
            p(f'v_cvt_pk_bf16_f32 v{P+i}, v{ACC+2*i}, v{ACC+2*i+1}')
        p(f's_cmp_lg_u32 s{sLAYER}, 0')
        p(f's_cbranch_scc1 {llast}')
        self.x_store(P, vL16, (0, 1024))
        p.ext(self.wq_dma((2,)))
        self.publish(['xst'], sXF)
        self.stamp('p5pub')
        p.ext(self.res_unpack(P))
        p.label(ljoin)
        p('s_waitcnt vmcnt(0) lgkmcnt(0)')
        p('s_barrier')
        p(f's_mov_b32 s{sLAYER}, 1')
        p(f's_add_u32 s{sLB}, s{sLB}, {LSTRIDE}')
        p('s_branch L_layer')
        self.tail.append(('L_wb', [f's_cmp_lg_u32 s{sM}, 28', 's_cbranch_scc1 L_fin', f's_cmp_lg_u32 s{sW}, 0', 's_cbranch_scc1 L_fin',
                                   's_sleep 20', 'buffer_wbl2 sc1', 's_waitcnt vmcnt(0)', 's_branch L_fin']))
        self.tail.append((lskip, [f's_cmp_lg_u32 s{sLAYER}, 0', 's_cbranch_scc1 L_wb'] + self.wq_dma((2,)) + [f's_branch {ljoin}']))
        p.label(llast, reset='all')
        p(f'v_and_b32 v{vT+4}, 31, v{vL}')
        p(f'v_mul_u32_u24 v{vT+4}, 896, v{vT+4}')
        p(f'v_lshrrev_b32 v{vT+5}, 5, v{vL}')
        p(f'v_lshl_add_u32 v{vT+4}, v{vT+5}, 4, v{vT+4}')
        for hf in range(2):
            p(f'v_permlane32_swap_b32 v{P+4*hf}, v{P+4*hf+2}')
            p(f'v_permlane32_swap_b32 v{P+4*hf+1}, v{P+4*hf+3}')
            p(f'buffer_store_dwordx4 {vr(P+4*hf)}, v{vT+4}, {srd(S_OUT)}, s{sQOFF} offen offset:{32*hf}')
        p('s_cmp_lg_u32 s2, %d' % (27 * 8 + 7))
        p('s_cbranch_scc1 L_fin')
        p(f's_mov_b32 s{sT0}, {WS_EPOCH}')
        p.ext(self.flag_sc1(sT0))

    def build(self):
        p = self.p
        self.prologue()
        p.label('L_layer', reset='all')
        for i, ph in enumerate(('p1', 'attn', 'p3', 'p4', 'p5')):
            getattr(self, ph)()
            if self.stop is not None and i + 1 >= self.stop:
                break
        p.label('L_fin')
        self.stamp('end')
        self.stamp_dump()
        if os.environ.get('CALIB'):
            p.label('L_calib')
            p('s_memrealtime s[96:97]')
            p('s_waitcnt lgkmcnt(0)')
            p('s_sub_u32 s96, s96, s100')
            p(f's_cmp_lt_u32 s96, {int(os.environ["CALIB"])}')
            p('s_cbranch_scc1 L_calib')
        p.label('L_end')
        p('s_endpgm')
        if hasattr(self, 'idle3'):
            lab, code, sfl, back = self.idle3
            p.label(lab, reset='all')
            p.ext(code)
            self.vpoll(vL8, sfl, 14, acquire=False)
            p(f'v_lshlrev_b32 v{vT}, 7, v{vL}')
            p(f's_mul_i32 s{sT1}, s{sT0}, 86016')
            p.ext(self.prefetch(vT, sT1, WQT, 86016))
            p(f's_branch {back}')
        for lab, code in self.tail:
            p.label(lab, reset='all')
            p.ext(code)
        p.label('L_codeend')
        self.emit_walker()
        p.insert_waits()
        probs = p.fix_hazards()
        for x in probs:
            print('branch hazard padded', x, file=sys.stderr)
        mx = p.maxregs()
        head = open(os.path.join(os.path.dirname(__file__), '..', 'cdna_kernels', NAME + '.s.ref')).read().split('\n')
        hdr = [l for l in head if l.startswith(';') and '@launch' not in l]
        out = '\n'.join(hdr) + f'\n; @launch grid=(256,1,1) block=(256,1,1) lds={LDS_BYTES}\n'
        out += '.amdgcn_target "amdgcn-amd-amdhsa--gfx950"\n.text\n'
        out += f'.globl {NAME}_kernel\n.p2align 8\n.type {NAME}_kernel,@function\n{NAME}_kernel:\n'
        out += p.text()
        out += '.fill 64, 4, 0xbf800000\n'
        out += f'''.section .rodata,"a"
.p2align 6
.amdhsa_kernel {NAME}_kernel
  .amdhsa_next_free_vgpr 512
  .amdhsa_next_free_sgpr 102
  .amdhsa_accum_offset 256
  .amdhsa_group_segment_fixed_size 0
  .amdhsa_kernarg_size 72
  .amdhsa_user_sgpr_count 2
  .amdhsa_user_sgpr_kernarg_segment_ptr 1
  .amdhsa_system_sgpr_workgroup_id_x 1
  .amdhsa_float_denorm_mode_32 3
.end_amdhsa_kernel
'''
        print('regs', mx, 'instrs', sum(1 for x in p.items if isinstance(x, Ins)), file=sys.stderr)
        return out


if __name__ == '__main__':
    stop = int(sys.argv[2]) if len(sys.argv) > 2 else None
    k = K(stop if stop and stop > 0 else None, dbg=sys.argv[3].split(',') if len(sys.argv) > 3 else None)
    open(sys.argv[1], 'w').write(k.build())
    if k.dbg:
        open(os.path.join(os.path.dirname(sys.argv[1]), 'stamps.txt'), 'w').write(' '.join(k.stamps))
```

```python
import sys, os, math, struct
sys.path.insert(0, os.path.dirname(__file__))
from asmlib import Prog, Ins, Wait, Mark, Label, Touch

NAME = 'interleave_layers__sliding_block__dense_activation_relu__prompt'

WS_EPOCH = 0
WS_PUR = 0x1000
F_WQ = 0x2000
F_W1 = 0x2800
F_W2 = 0x3000
F_WO = 0x4000
WQT = 0x100000
W1T = 0x250000
WOT = 0x3D8000
W2T = 0x448000
TEAM0 = 0x600000
LSTRIDE = 0x230000
STRIDE = 2 * LSTRIDE
O_KV = 0x000000
O_O = 0x080000
O_X1 = 0x0C0000
O_XA = 0x0F8000
O_ST1 = 0x130000
O_STA = 0x138000
O_FKV = 0x140000
O_FO = 0x144000
O_FX1 = 0x144400
O_FXA = 0x144800
O_FH = 0x145000
O_H = 0x150000
WS_BYTES = TEAM0 + 8 * STRIDE

LKV = 100352
L_CSQ = 149504
L_CS1 = L_CSQ + 512
L_PUR = L_CS1 + 512 + 1536
L_CSP = L_CS1 + 512
LDS_BYTES = 163840

S_X, S_WQ, S_WO, S_W1, S_W2, S_OUT, S_WS = 8, 12, 16, 20, 24, 28, 32
S_WSP = 36
sTEAM, sM, sA, sJ, sW, sRB, sCB, sLB = 40, 41, 42, 43, 44, 45, 46, 47
sF, sPURE, sLAYER, sTP = 48, 50, 51, 52
sQOFF = 53
sIMP = 54
sPERM, sONES = 56, 57
sRHO, sNU = 58, 59
sT0, sT1, sT2, sT3, sT4, sT5 = 60, 61, 62, 63, 64, 65
sCNT = 66
sTB = 71
sJFL = 67
sXD, sXS, sXF = 68, 69, 70
sPOLL = 72
sRQ, sLQ = 76, 77
sO = 80

vL, vL16, vA1, vL8 = 0, 1, 2, 3
vSTA = 4
vFLG = 5
vRW = 6
vX1A = 10
vCSA = 11
vF = 12
vMEAN, vRSTD = 14, 15
vT = 16
vRES = 240

POLL_MAX = 1 << 16
MF32 = 'v_mfma_f32_32x32x16_bf16'
MF16 = 'v_mfma_f32_16x16x32_bf16'


def srd(b):
    return f's[{b}:{b+3}]'


def vr(b, n=4):
    return f'v[{b}:{b+n-1}]' if n > 1 else f'v{b}'


def ar(b, n=4):
    return f'a[{b}:{b+n-1}]'


def f32bits(x):
    return struct.unpack('<I', struct.pack('<f', x))[0]


def is_mem(x):
    if isinstance(x, (list, tuple)):
        return any(is_mem(y) for y in x)
    if isinstance(x, (Wait, Touch, Label)):
        return False
    t = x.text if isinstance(x, Ins) else x if isinstance(x, str) else ''
    return t.startswith('ds_') or t.startswith('buffer_') or t.startswith('global_')


def cost(x):
    if isinstance(x, (list, tuple)):
        return sum(cost(y) for y in x)
    if isinstance(x, (Wait, Touch)):
        return 1
    if isinstance(x, Label):
        return 0
    t = x.text if isinstance(x, Ins) else x
    return 2 if t.startswith('v_exp') or t.startswith('v_rsq') or t.startswith('v_rcp') or t.startswith('v_permlane') else 1


def sched(mfs, pre, mem, side, cap, start=0):
    out = []
    side = list(side)
    for i, m in enumerate(mfs):
        out += pre.get(i, [])
        out.append(m)
        n = 0
        for x in mem.get(i, []):
            out.append(x)
            n += cost(x)
        if pre.get(i + 1):
            n += 1
        valu = False
        if i >= start:
            while side and n + cost(side[0]) <= cap:
                if is_mem(side[0]) and valu:
                    break
                x = side.pop(0)
                if not is_mem(x) and not isinstance(x, (Wait, Touch)):
                    t = x[0] if isinstance(x, (list, tuple)) else x
                    if any((y.text if isinstance(y, Ins) else y).startswith('v_') for y in (x if isinstance(x, (list, tuple)) else [x]) if isinstance(y, (Ins, str))):
                        valu = True
                out.append(x)
                n += cost(x)
            if side and n == 0 and cost(side[0]) > cap:
                out.append(side.pop(0))
    return out + side


class K:
    def __init__(self, stop=None, dbg=False):
        self.p = Prog()
        self.stop = stop
        self.dbg = dbg
        self.stamps = []
        self.tail = []
        self.pads = []

    def stamp(self, name):
        if not self.dbg or (name not in self.dbg and name not in ('start', 'end')):
            return
        k = len(self.stamps)
        assert k < 28
        self.stamps.append(name)
        p = self.p
        p('s_memrealtime s[96:97]' if 'RT' in self.dbg else 's_memtime s[96:97]')
        p('s_waitcnt lgkmcnt(0)')
        p(f'v_accvgpr_write_b32 a{224+k}, s96')

    def stamp_dump(self):
        if not self.dbg:
            return
        p = self.p
        p(f's_lshl_b32 s{sT0}, s2, 2')
        p(f's_add_u32 s{sT0}, s{sT0}, s{sW}')
        p(f's_lshl_b32 s{sT0}, s{sT0}, 7')
        p(f's_add_u32 s{sT0}, s{sT0}, 0x40000')
        p('s_mov_b64 exec, 1')
        for k in range(28):
            p(f'buffer_store_dword a{224+k}, off, {srd(S_WS)}, s{sT0} offset:{4*k}')
        p('s_mov_b64 exec, -1')

    def dma(self, srdb, voff, sreg, simm, m0, tok, sc='', n=1):
        mr, mi = m0
        L = [f's_add_u32 m0, s{mr}, {mi}' if mr is not None else f's_mov_b32 m0, {mi}',
             f's_add_u32 s{sT5}, s{sreg}, {simm}']
        for k in range(n):
            L.append(Ins(f'buffer_load_dwordx4 v{voff}, {srd(srdb)}, s{sT5} offen offset:{1024*k} {sc} lds', tok))
        return L

    @staticmethod
    def setexec(nl):
        if nl <= 32:
            return [f's_mov_b64 exec, {(1 << nl) - 1:#x}'] if nl < 32 else ['s_mov_b32 exec_hi, 0']
        return [f's_mov_b32 exec_hi, {(1 << (nl - 32)) - 1:#x}']

    def poll_loop(self, voff, soff, nl, imm=0):
        p = self.p
        lp, lo = p.newlabel('poll'), p.newlabel('pollout')
        return self.setexec(nl) + [f's_mov_b32 s{sCNT}, 0', Label(lp),
                f'buffer_load_dwordx2 {vr(vT + 14, 2)}, v{voff}, {srd(S_WS)}, {soff} offen offset:{imm} sc1',
                f's_add_u32 s{sCNT}, s{sCNT}, 1', f's_cmp_gt_u32 s{sCNT}, {POLL_MAX}', f's_cbranch_scc1 {lo}',
                's_waitcnt vmcnt(0)', f'v_cmp_ne_u64 vcc, s[{sF}:{sF+1}], {vr(vT + 14, 2)}', f's_cbranch_vccnz {lp}',
                Label(lo), 's_mov_b64 exec, -1']

    def vpoll(self, voff, soff, nl, acquire=True):
        p = self.p
        p.ext(self.poll_loop(voff, soff, nl))
        if acquire:
            lslow, lback = p.newlabel('acq'), p.newlabel('acqback')
            p(f's_cmp_lg_u32 s{sPURE}, 0')
            p(f's_cbranch_scc0 {lslow}')
            p.label(lback)
            self.tail.append((lslow, ['buffer_inv sc1', 's_waitcnt vmcnt(0)', f's_branch {lback}']))
        p.mark('drained_vm')

    def peek_issue(self, voff, soff, nl, imm=0):
        return [self.setexec(nl) + [f'buffer_load_dwordx2 {vr(vT + 14, 2)}, v{voff}, {srd(S_WS)}, {soff} offen offset:{imm} sc1',
                                    's_mov_b64 exec, -1']]

    def peek_check(self, voff, soff, nl, imm=0):
        p = self.p
        lslow, lback, lacq = p.newlabel('peek'), p.newlabel('peekback'), p.newlabel('peekacq')
        self.tail.append((lslow, self.poll_loop(voff, soff, nl, imm) +
                          [f's_cmp_lg_u32 s{sPURE}, 0', f's_cbranch_scc1 {lback}', 'buffer_inv sc1', 's_waitcnt vmcnt(0)',
                           f's_branch {lback}']))
        return [[Touch(vr(vT + 14, 2))] + self.setexec(nl) +
                [f'v_cmp_ne_u64 vcc, s[{sF}:{sF+1}], {vr(vT + 14, 2)}', 's_mov_b64 exec, -1',
                 f's_or_b64 vcc, vcc, s[{sIMP}:{sIMP+1}]', f's_cbranch_scc1 {lslow}', Label(lback)]]

    def publish_items(self, toks, soff, imm=0):
        p = self.p
        lslow, lback = p.newlabel('pubslow'), p.newlabel('pubback')
        self.tail.append((lslow, [
            'buffer_wbl2 sc1', 's_waitcnt vmcnt(0)',
            f'buffer_store_dwordx2 {vr(vF, 2)}, off, {srd(S_WS)}, s{soff} offset:{imm} sc1',
            f's_branch {lback}']))
        return [[Wait(toks), 's_mov_b64 exec, 1', f's_cmp_lg_u32 s{sPURE}, 0', f's_cbranch_scc0 {lslow}',
                 f'buffer_store_dwordx2 {vr(vF, 2)}, off, {srd(S_WS)}, s{soff} offset:{imm}', Label(lback), 's_mov_b64 exec, -1']]

    def publish(self, toks, soff, imm=0):
        self.p.ext(self.publish_items(toks, soff, imm))

    def flag_sc1(self, soff):
        return ['s_mov_b64 exec, 1', f'buffer_store_dwordx2 {vr(vF,2)}, off, {srd(S_WS)}, s{soff} sc1', 's_mov_b64 exec, -1']

    def flag_opt(self, soff):
        p = self.p
        l = p.newlabel('noflag')
        p(f's_cmp_eq_u32 s{soff}, -1')
        p(f's_cbranch_scc1 {l}')
        p.mark('maybe_begin')
        p.ext(self.flag_sc1(soff))
        p.mark('maybe_end')
        p.label(l)

    def stats_loads(self, soff, dst):
        return [f'buffer_load_dwordx2 {vr(dst + 2*i, 2)}, v{vSTA}, {srd(S_WS)}, s{soff} offen offset:{256*i} sc1' for i in range(7)]

    def stats_reduce(self, src):
        L = []
        for i in range(1, 7):
            L.append(f'v_add_f32 v{src}, v{src}, v{src+2*i}')
            L.append(f'v_add_f32 v{src+1}, v{src+1}, v{src+2*i+1}')
        s, q, t0, t1 = src, src + 1, src + 2, src + 3
        return L + [
            f'v_mov_b32 v{t0}, v{s}', f'v_mov_b32 v{t1}, v{q}', 's_nop 0',
            f'v_permlane32_swap_b32 v{s}, v{t0}', f'v_permlane32_swap_b32 v{q}, v{t1}',
            f'v_add_f32 v{s}, v{s}, v{t0}', f'v_add_f32 v{q}, v{q}, v{t1}',
            f'v_mul_f32 v{vMEAN}, {f32bits(-1.0/448):#x}, v{s}',
            f'v_mul_f32 v{q}, {f32bits(1.0/448):#x}, v{q}',
            f'v_fma_f32 v{q}, -v{vMEAN}, v{vMEAN}, v{q}',
            f'v_max_f32 v{q}, 0, v{q}',
            f'v_add_f32 v{q}, {f32bits(1e-5):#x}, v{q}',
            f'v_rsq_f32 v{vRSTD}, v{q}',
        ]

    def off(self, dst, idx_reg, mul, add):
        return [f's_mul_i32 s{dst}, s{idx_reg}, {mul}', f's_add_u32 s{dst}, s{dst}, s{sLB}', f's_add_u32 s{dst}, s{dst}, {add}']

    def xoff(self, dst, idx_reg, mul, add):
        return [f's_add_u32 s{sT3}, s{sLB}, {add}', f's_add_u32 s{sT4}, s{sTB}, {O_XA}', f's_cmp_lg_u32 s{sPURE}, 0',
                f's_cselect_b32 s{sT3}, s{sT4}, s{sT3}', f's_mul_i32 s{dst}, s{idx_reg}, {mul}', f's_add_u32 s{dst}, s{dst}, s{sT3}']

    def roff(self, dst, idx_reg, mul, add):
        return [f's_cmp_lg_u32 s{sPURE}, 0', f's_cselect_b32 s{sT3}, s{sTB}, s{sLB}',
                f's_mul_i32 s{dst}, s{idx_reg}, {mul}', f's_add_u32 s{dst}, s{dst}, s{sT3}', f's_add_u32 s{dst}, s{dst}, {add}']

    def pub_offsets(self, xoff, stoff, foff):
        return [f's_lshl_b32 s{sT0}, s{sRB}, 1', f's_add_u32 s{sT0}, s{sT0}, s{sRHO}',
                f's_lshl_b32 s{sT1}, s{sCB}, 1', f's_add_u32 s{sT1}, s{sT1}, s{sNU}',
                f's_mul_i32 s{sT2}, s{sT0}, 14', f's_add_u32 s{sT2}, s{sT2}, s{sT1}'] + \
            self.xoff(sXD, sT2, 2048, xoff) + self.off(sXS, sT2, 256, stoff) + \
            [f's_lshl_b32 s{sT0}, s{sT0}, 4', f's_add_u32 s{sT0}, s{sT0}, s{sT1}'] + self.off(sXF, sT0, 8, foff)

    def x_store(self, P, va, offs, sc=''):
        p = self.p
        S, Q2, t0, t1 = vT + 6, vT + 7, vT + 8, vT + 9
        for k in range(2):
            p(f'buffer_store_dwordx4 {vr(P+4*k)}, v{va}, {srd(S_WS)}, s{sXD} offen offset:{offs[k]} {sc}', tok='xst')
        p(f'v_mov_b32 v{t0}, s{sONES}')
        p(f'v_dot2_f32_bf16 v{S}, v{P}, v{t0}, 0')
        p(f'v_dot2_f32_bf16 v{Q2}, v{P}, v{P}, 0')
        for i in range(1, 8):
            p(f'v_dot2_f32_bf16 v{S}, v{P+i}, v{t0}, v{S}')
            p(f'v_dot2_f32_bf16 v{Q2}, v{P+i}, v{P+i}, v{Q2}')
        p(f'v_mov_b32 v{t0}, v{S}')
        p(f'v_mov_b32 v{t1}, v{Q2}')
        p(f'v_permlane32_swap_b32 v{S}, v{t0}')
        p(f'v_permlane32_swap_b32 v{Q2}, v{t1}')
        p(f'v_add_f32 v{S}, v{S}, v{t0}')
        p(f'v_add_f32 v{Q2}, v{Q2}, v{t1}')
        p('s_mov_b32 exec_hi, 0')
        p(f'buffer_store_dwordx2 {vr(S,2)}, v{vL8}, {srd(S_WS)}, s{sXS} offen {sc}', tok='xst')
        p('s_mov_b64 exec, -1')

    def res_unpack(self, P):
        L = []
        for q in range(8):
            L.append(f'v_lshlrev_b32 v{vRES+2*q}, 16, v{P+q}')
            L.append(f'v_and_b32 v{vRES+2*q+1}, 0xffff0000, v{P+q}')
        return L

    def prefetch(self, v128, sreg, base, nbytes):
        L = []
        o = 0
        while o < nbytes:
            oo = min(o, nbytes - 8192)
            L += [f's_add_u32 s{sT5}, s{sreg}, {base + oo}', f'buffer_load_dword a255, v{v128}, {srd(S_WS)}, s{sT5} offen sc1']
            o += 8192
        return L

    def touch(self, v128, sreg, imm, nlines):
        L = [f's_add_u32 s{sT5}, s{sreg}, {imm}']
        if nlines < 64:
            L += self.setexec(nlines)
        L.append(f'buffer_load_dword a255, v{v128}, {srd(S_WS)}, s{sT5} offen sc1')
        if nlines < 64:
            L.append('s_mov_b64 exec, -1')
        return [L]

    def wq_dma(self, tiles):
        sg, sl = sPOLL + 2, sPOLL + 3
        L = [f's_mul_i32 s{sg}, s{sJ}, 86016', f's_mul_i32 s{sl}, s{sW}, 7168', f's_add_u32 s{sg}, s{sg}, s{sl}']
        for tau in tiles:
            for o, n in ((0, 4), (4096, 3)):
                d = self.dma(S_WS, vL16, sg, WQT + tau * 28672 + o, (sl, tau * 28672 + o), 'wq', 'sc1', n)
                L += [d[:3]] + d[3:]
        return L

    def w1_dma(self, part):
        sg, sl = sPOLL, sPOLL + 1
        L = []
        if part == 0:
            L += [f's_mul_i32 s{sg}, s{sJ}, 100352', f's_mul_i32 s{sl}, s{sW}, 14336', f's_add_u32 s{sg}, s{sg}, s{sl}']
            groups = [(0, 4), (4096, 4), (8192, 4), (12288, 2)]
            base = 0
        else:
            L += [f's_mul_i32 s{sg}, s{sJ}, 100352', f's_mul_i32 s{sl}, s{sW}, 10240', f's_add_u32 s{sg}, s{sg}, s{sl}']
            groups = [(0, 4), (4096, 4), (8192, 2)]
            base = 57344
        for o, n in groups:
            d = self.dma(S_WS, vL16, sg, W1T + base + o, (sl, base + o), 'w1', 'sc1', n)
            L += [d[:3]] + d[3:]
        if part == 1:
            L += [f's_sub_u32 s{sg}, s{sg}, s{sl}', f's_lshl_b32 s{sl}, s{sNU}, 10', f's_add_u32 s{sg}, s{sg}, s{sl}']
            L.append(self.dma(S_WS, vL16, sg, W1T + 98304, (sl, 98304), 'w1', 'sc1', 1))
        return L

    def w2_loads(self, steps, sbase, vz):
        L = []
        for ks in steps:
            g = [f's_add_u32 s{sT4}, s{sbase}, {W2T + ks*2048}']
            g.append(f'buffer_load_dwordx4 {ar(ks*8)}, v{vz[0]}, {srd(S_WS)}, s{sT4} offen sc1')
            L += [g, f'buffer_load_dwordx4 {ar(ks*8+4)}, v{vz[1]}, {srd(S_WS)}, s{sT4} offen sc1']
        return L

    def lane_consts(self):
        p = self.p
        t0, t1 = vT + 6, vT + 7
        p(f'v_add_u32 v{vA1}, 57344, v{vL16}')
        p(f'v_and_b32 v{vSTA}, 31, v{vL}')
        p(f'v_lshlrev_b32 v{vSTA}, 3, v{vSTA}')
        p(f'v_lshrrev_b32 v{t0}, 5, v{vL}')
        p(f'v_mul_u32_u24 v{t1}, {7*256}, v{t0}')
        p(f'v_add_u32 v{vSTA}, v{vSTA}, v{t1}')
        p(f'v_lshrrev_b32 v{vFLG}, 2, v{vL}')
        p(f'v_lshlrev_b32 v{vFLG}, 7, v{vFLG}')
        p(f'v_and_b32 v{t1}, 3, v{vL}')
        p(f'v_lshl_add_u32 v{vFLG}, v{t1}, 3, v{vFLG}')
        for x in range(1, 4):
            p(f's_xor_b32 s{sT0}, s{sW}, {x}')
            p(f's_mul_i32 s{sT0}, s{sT0}, 12288')
            p(f's_add_u32 s{sT0}, s{sT0}, {LKV + (x-1)*4096}')
            p(f'v_add_u32 v{vRW+x-1}, s{sT0}, v{vL16}')
        p(f's_mul_i32 s{sT0}, s{sW}, 12288')
        p(f's_add_u32 s{sT0}, s{sT0}, {LKV}')
        p(f'v_add_u32 v{vRW+3}, s{sT0}, v{vL16}')
        p(f'v_bfe_u32 v{vX1A}, v{vL}, 4, 1')
        p(f'v_lshlrev_b32 v{vX1A}, 10, v{vX1A}')
        p(f'v_lshl_add_u32 v{vX1A}, v{t0}, 8, v{vX1A}')
        p(f'v_and_b32 v{t1}, 15, v{vL}')
        p(f'v_lshl_add_u32 v{vX1A}, v{t1}, 4, v{vX1A}')

    def pad(self):
        p = self.p
        k = len(self.pads)
        self.pads.append(f'L_pad{k}')
        p(f's_branch L_padskip{k}')
        p.label(f'L_pad{k}')
        p('s_setpc_b64 s[98:99]')
        p.label(f'L_padskip{k}')

    def emit_walker(self):
        L = []
        labs = [f'L_walk{w}' for w in range(4)]
        for w in range(1, 4):
            L += [Ins(f's_cmp_eq_u32 s{sW}, {w}'), Ins(f's_cbranch_scc1 {labs[w]}')]
        for w in range(4):
            if w:
                L.append(Label(labs[w]))
            for x in self.pads[w::4]:
                L.append(Ins(f's_call_b64 s[98:99], {x}'))
            if w < 3:
                L.append(Ins('s_branch L_walkend'))
        L.append(Label('L_walkend'))
        self.p.items[self.walker_at:self.walker_at] = L

    def rawq(self, tau, i):
        return (self.dma(S_WQ, self.vDQ, sRQ, (448, 896, 0)[tau] * 2 + i * 16 * 2688, (sLQ, tau * 28672 + i * 1024), f'rq{tau}{i}'))

    def xform(self, tau, R, vcs, vones, between=None):
        p = self.p

        def fin(i):
            p(f'ds_write_b128 v{self.vWQ}, {vr(R+4*i)} offset:{tau*28672+i*1024}')
            for q in range(4):
                p(f'v_dot2_f32_bf16 v{vcs}, v{R+4*i+q}, v{vones}, {f"v{vcs}" if i or q else 0}')
        for i in range(7):
            p.wait(f'rq{tau}{i}')
            for jj in range(2):
                p(f'ds_read_b64_tr_b16 {vr(R+4*i+2*jj,2)}, v{self.vTQ} offset:{tau*28672+i*1024+jj*512}')
            if between:
                between(i)
            if i >= 1:
                fin(i - 1)
        fin(6)

    def cs_partial(self, taus, vcs, t2, t3):
        p = self.p
        for k, tau in enumerate(taus):
            p(f'v_mov_b32 v{t2}, v{vcs+k}')
            p(f'v_permlane32_swap_b32 v{vcs+k}, v{t2}')
            p(f'v_add_f32 v{vcs+k}, v{vcs+k}, v{t2}')
        p(f'v_and_b32 v{t2}, 31, v{vL}')
        p(f'v_lshlrev_b32 v{t2}, 2, v{t2}')
        p(f's_mul_i32 s{sT0}, s{sW}, 384')
        p(f's_add_u32 s{sT0}, s{sT0}, {L_CSP}')
        p(f'v_add_u32 v{t3}, s{sT0}, v{t2}')
        for k, tau in enumerate(taus):
            p(f'ds_write_b32 v{t3}, v{vcs+k} offset:{tau*128}')

    def cs_sum(self, taus, R, t2, t3):
        p = self.p
        p(f'v_add_u32 v{t3}, {L_CSP}, v{t2}')
        for k, tau in enumerate(taus):
            for w in range(4):
                p(f'ds_read_b32 v{R+4*k+w}, v{t3} offset:{w*384+tau*128}')
        p(f'v_add_u32 v{t3}, {L_CSQ}, v{t2}')
        for k, tau in enumerate(taus):
            r = R + 4 * k
            p(f'v_add_f32 v{r}, v{r}, v{r+1}')
            p(f'v_add_f32 v{r+2}, v{r+2}, v{r+3}')
            p(f'v_add_f32 v{r}, v{r}, v{r+2}')
            p(f'ds_write_b32 v{t3}, v{r} offset:{tau*128}')
        p('s_waitcnt lgkmcnt(0)')

    def prologue(self):
        p = self.p
        t0, t1, t2, t3 = vT, vT + 1, vT + 2, vT + 3
        self.vDQ, self.vTQ, self.vWQ = vDQ, vTQ, vWQ = vT + 10, vT + 11, vT + 12
        p('s_cmp_ge_u32 s2, 256')
        p('s_cbranch_scc1 L_end')
        p(f's_load_dwordx16 s[{sO}:{sO+15}], s[0:1], 0')
        p(f's_load_dwordx2 s[{S_WSP}:{S_WSP+1}], s[0:1], 64')
        p(f's_getpc_b64 s[{sT0}:{sT0+1}]')
        p.label('L_pc')
        p(f'v_lshlrev_b32 v{t2}, 7, v0')
        p(f'global_load_dword a255, v{t2}, s[{sT0}:{sT0+1}]')
        p(f'v_add_u32 v{t2}, 0x8000, v{t2}')
        p(f'v_min_u32 v{t2}, L_codeend-L_pc, v{t2}')
        p(f'global_load_dword a255, v{t2}, s[{sT0}:{sT0+1}]')
        if os.environ.get('CALIB'):
            p('s_memrealtime s[100:101]')
        self.stamp('start')
        p(f'v_lshrrev_b32 v{vT}, 6, v0')
        p(f'v_and_b32 v{vL}, 63, v0')
        p(f'v_readfirstlane_b32 s{sW}, v{vT}')
        p(f's_lshr_b32 s{sM}, s2, 3')
        p(f's_and_b32 s{sTEAM}, s2, 7')
        p(f's_mul_i32 s{sRB}, s{sM}, 37')
        p(f's_lshr_b32 s{sRB}, s{sRB}, 8')
        p(f's_mul_i32 s{sT0}, s{sRB}, 7')
        p(f's_sub_u32 s{sCB}, s{sM}, s{sT0}')
        p(f's_lshr_b32 s{sRHO}, s{sW}, 1')
        p(f's_and_b32 s{sNU}, s{sW}, 1')
        p(f's_lshl_b32 s{sT0}, s{sTEAM}, 2')
        p(f's_add_u32 s{sT0}, s{sT0}, s{sRB}')
        p(f's_lshl_b32 s{sT1}, s{sT0}, 1')
        p(f's_add_u32 s{sT1}, s{sT1}, s{sRHO}')
        p(f's_mul_i32 s{sQOFF}, s{sT1}, {32*896}')
        p(f's_lshl_b32 s{sT1}, s{sCB}, 7')
        p(f's_add_u32 s{sQOFF}, s{sQOFF}, s{sT1}')
        p(f's_lshl_b32 s{sT1}, s{sNU}, 6')
        p(f's_add_u32 s{sQOFF}, s{sQOFF}, s{sT1}')
        vPK, vPQ, vH = vT + 14, vT + 15, vT + 13
        p(f'v_and_b32 v{t3}, 31, v{vL}')
        p(f'v_mul_u32_u24 v{t3}, 896, v{t3}')
        p(f'v_lshrrev_b32 v{vH}, 5, v{vL}')
        p(f'v_lshl_add_u32 v{t3}, v{vH}, 3, v{t3}')
        p(f's_lshl_b32 s{sT2}, s{sM}, 2')
        p(f's_add_u32 s{sT2}, s{sT2}, s{sW}')
        p(f's_mul_i32 s{sT3}, s{sT2}, 49')
        p(f'v_add_u32 v{t2}, s{sT3}, v{vL}')
        p(f'v_mul_u32_u24 v{vPK}, 74899, v{t2}')
        p(f'v_lshrrev_b32 v{vPK}, 20, v{vPK}')
        p(f'v_mul_u32_u24 v{vPK}, 7, v{vPK}')
        p(f'v_add_u32 v{vPK}, v{vPK}, v{t2}')
        p(f'v_lshlrev_b32 v{vPK}, 7, v{vPK}')
        b = sO

        def mksrd(d, src, n):
            p(f's_mov_b32 s{d}, s{src}')
            p(f's_and_b32 s{d+1}, s{src+1}, 0xffff')
            p(f's_mov_b32 s{d+2}, {n}')
            p(f's_mov_b32 s{d+3}, 0x20000')
        mksrd(S_X, b, 1835008)
        mksrd(S_WQ, b + 2, 1204224)
        XR = 96
        for q in range(4):
            p(f'buffer_load_dwordx2 {vr(XR+2*q,2)}, v{t3}, {srd(S_X)}, s{sQOFF} offen offset:{16*q}')
        p('s_mov_b32 exec_hi, 0x1ffff')
        p(f'buffer_load_dword a255, v{vPK}, {srd(S_WQ)}, 0 offen offset:896')
        p('s_mov_b64 exec, -1')
        p(f's_load_dwordx2 s[{sF}:{sF+1}], s[{S_WSP}:{S_WSP+1}], {WS_EPOCH}')
        for (d, src, n) in ((S_WO, b + 4, 401408), (S_W1, b + 8, 1605632),
                            (S_W2, b + 10, 1605632), (S_OUT, b + 12, 1835008), (S_WS, S_WSP, WS_BYTES)):
            mksrd(d, src, n)
        p(f's_mul_i32 s{sT3}, s{sT2}, 25')
        p(f'v_add_u32 v{t2}, s{sT3}, v{vL}')
        p(f'v_mul_u32_u24 v{vPQ}, 149797, v{t2}')
        p(f'v_lshrrev_b32 v{vPQ}, 20, v{vPQ}')
        p(f'v_mul_u32_u24 v{vPQ}, 14, v{vPQ}')
        p(f'v_add_u32 v{vPQ}, v{vPQ}, v{t2}')
        p(f'v_lshlrev_b32 v{vPQ}, 7, v{vPQ}')
        p(f's_and_b32 s{sJ}, s{sM}, 15')
        p(f's_lshr_b32 s{sA}, s{sM}, 4')
        p(f'v_lshrrev_b32 v{t0}, 2, v{vL}')
        p(f'v_and_b32 v{t1}, 3, v{vL}')
        p(f'v_lshlrev_b32 v{t3}, 3, v{t1}')
        p(f'v_lshlrev_b32 v{t1}, 4, v{t1}')
        self.stamp('ka')
        sI, sSTG = sO, sO + 1
        sFL, sDST, sJOB, sDST2 = sJFL, sO + 3, sO + 4, sO + 5

        p(f's_mul_i32 s{sLB}, s{sTEAM}, {STRIDE}')
        p(f's_add_u32 s{sLB}, s{sLB}, {TEAM0}')
        p(f's_mov_b32 s{sTB}, s{sLB}')
        p(f'v_lshlrev_b32 v{vL16}, 4, v{vL}')
        p(f'v_lshlrev_b32 v{vL8}, 3, v{vL}')
        p(f's_mov_b32 s{sONES}, 0x3f803f80')
        p(f's_mov_b32 s{sPURE}, 1')
        p(f's_mov_b64 s[{sIMP}:{sIMP+1}], 0')
        p.ext(self.pub_offsets(O_XA, O_STA, O_FXA))
        vD, vTR, vTR8 = vT + 4, vT + 5, vT + 13
        FR = 32
        p(f's_lshl_b32 s{sI}, s{sTEAM}, 1')
        p(f's_add_u32 s{sI}, s{sI}, s{sA}')
        p(f's_lshl_b32 s{sSTG}, s{sW}, 13')
        p(f's_add_u32 s{sSTG}, s{sSTG}, {LKV}')
        lA = [p.newlabel('jobA') for _ in range(4)]
        p(f's_mov_b32 s{sJOB}, 0')
        p.mark('maybe_begin')
        p(f's_cmp_ge_u32 s{sW}, 2')
        p(f's_cbranch_scc1 {lA[0]}')
        p(f's_cmp_eq_u32 s{sW}, 0')
        p(f's_cbranch_scc1 {lA[2]}')
        p(f's_cmp_ge_u32 s{sI}, 14')
        p(f's_cbranch_scc1 {lA[2]}')
        p(f'v_bfe_u32 v{vD}, v{vL}, 1, 3')
        p(f'v_bfe_u32 v{t2}, v{vL}, 4, 1')
        p(f'v_lshl_add_u32 v{vD}, v{t2}, 4, v{vD}')
        p(f'v_bfe_u32 v{t2}, v{vL}, 5, 1')
        p(f'v_lshl_add_u32 v{vD}, v{t2}, 3, v{vD}')
        p(f'v_mul_u32_u24 v{vD}, 3584, v{vD}')
        p(f'v_and_b32 v{t2}, 1, v{vL}')
        p(f'v_lshl_add_u32 v{vD}, v{t2}, 4, v{vD}')
        p(f's_mul_i32 s{sT0}, s{sI}, {32*3584}')
        p(f's_mul_i32 s{sT1}, s{sJ}, 224')
        p(f's_add_u32 s{sT0}, s{sT0}, s{sT1}')
        for t in range(7):
            p.ext(self.dma(S_W1, vD, sT0, t * 32, (sSTG, t * 1024), 'raw'))
        p(f's_mov_b32 s{sJOB}, 2')
        p('s_waitcnt vmcnt(8)')
        p(f's_branch {lA[3]}')
        p.label(lA[0])
        p(f'v_mul_u32_u24 v{vD}, 896, v{t0}')
        p(f'v_add_u32 v{vD}, v{vD}, v{t1}')
        p(f's_cmp_ge_u32 s{sM}, 28')
        p(f's_cbranch_scc1 {lA[1]}')
        sI2, sSL, sHF = sT2, sT3, sT4
        p(f's_lshl_b32 s{sI2}, s{sTEAM}, 2')
        p(f's_add_u32 s{sI2}, s{sI2}, s{sRB}')
        p(f's_lshr_b32 s{sSL}, s{sI2}, 1')
        p(f's_and_b32 s{sHF}, s{sI2}, 1')
        p(f's_mul_i32 s{sT0}, s{sSL}, {112*896}')
        p(f's_mul_i32 s{sT1}, s{sHF}, {64*896}')
        p(f's_add_u32 s{sT0}, s{sT0}, s{sT1}')
        p(f's_lshl_b32 s{sT1}, s{sCB}, 7')
        p(f's_add_u32 s{sT0}, s{sT0}, s{sT1}')
        p(f's_lshl_b32 s{sT1}, s{sNU}, 6')
        p(f's_add_u32 s{sT0}, s{sT0}, s{sT1}')
        for k in range(4):
            p.ext(self.dma(S_W2, vD, sT0, k * 16 * 896, (sSTG, k * 1024), 'raw'))
        p(f's_add_u32 s{sJOB}, s{sHF}, 3')
        p('s_waitcnt vmcnt(5)')
        p(f's_branch {lA[3]}')
        p.label(lA[1])
        p(f's_cmp_eq_u32 s{sTEAM}, 7')
        p(f's_cbranch_scc1 {lA[2]}')
        p(f's_mul_i32 s{sT0}, s{sCB}, {112*896}')
        p(f's_lshl_b32 s{sT1}, s{sTEAM}, 7')
        p(f's_add_u32 s{sT0}, s{sT0}, s{sT1}')
        p(f's_lshl_b32 s{sT1}, s{sNU}, 6')
        p(f's_add_u32 s{sT0}, s{sT0}, s{sT1}')
        for k in range(8):
            p.ext(self.dma(S_WO, vD, sT0, k * 16 * 896, (sSTG, k * 1024), 'raw'))
        p(f's_mov_b32 s{sJOB}, 5')
        p.label(lA[2])
        p('s_waitcnt vmcnt(1)')
        p.mark('maybe_end')
        p.label(lA[3])
        self.stamp('jA')
        lp0 = p.newlabel('p0skip')
        p(f's_cmp_ge_u32 s{sM}, 28')
        p(f's_cselect_b32 s{sXF}, -1, s{sXF}')
        p(f's_cbranch_scc1 {lp0}')
        p.mark('drained_vm')
        self.x_store(XR, vL16, (0, 1024), 'sc1')
        p.label(lp0)
        p('s_mov_b64 exec, 0x1ffffff')
        p(f'buffer_load_dword a255, v{vPQ}, {srd(S_WQ)}, 0 offen')
        p('s_mov_b64 exec, -1')
        self.stamp('x0')
        p(f'v_mul_u32_u24 v{vDQ}, 2688, v{t0}')
        p(f'v_add_u32 v{vDQ}, v{vDQ}, v{t1}')
        p(f's_mul_i32 s{sRQ}, s{sW}, {7*16*2688}')
        p(f's_mul_i32 s{sT1}, s{sJ}, 56')
        p(f's_add_u32 s{sRQ}, s{sRQ}, s{sT1}')
        p(f's_mul_i32 s{sLQ}, s{sW}, 7168')
        p(f'v_bfe_u32 v{t2}, v{vL}, 4, 1')
        p(f'v_lshl_add_u32 v{t2}, v{t2}, 5, v{t3}')
        p(f'v_bfe_u32 v{vTR}, v{vL}, 2, 2')
        p(f'v_lshl_add_u32 v{t2}, v{vTR}, 6, v{t2}')
        p(f'v_lshl_add_u32 v{vTQ}, v{vH}, 8, v{t2}')
        p(f'v_add_u32 v{vTR}, s{sSTG}, v{vTQ}')
        p(f'v_add_u32 v{t2}, s{sSTG}, v{t2}')
        p(f'v_lshl_add_u32 v{vTR8}, v{vH}, 9, v{t2}')
        p(f'v_add_u32 v{vTQ}, s{sLQ}, v{vTQ}')
        p(f'v_add_u32 v{vWQ}, s{sLQ}, v{vL16}')
        p(f's_mov_b32 s{sPERM}, 0x07060302')
        p(f's_lshl_b32 s{sTP}, s{sA}, 2')
        p(f's_add_u32 s{sTP}, s{sTP}, s{sW}')
        self.lane_consts()
        vCSP = 104
        p(f'v_mov_b32 v{vCSP+3}, s{sONES}')
        for k, r in enumerate((vDQ, vTQ, vWQ)):
            p(f'v_accvgpr_write_b32 a{252+k}, v{r}')
        p.ext(self.res_unpack(XR))
        p('s_waitcnt lgkmcnt(0)')
        p(f's_add_u32 s{sF}, s{sF}, 1')
        p(f's_addc_u32 s{sF+1}, s{sF+1}, 0')
        p(f'v_mov_b32 v{vF}, s{sF}')
        p(f'v_mov_b32 v{vF+1}, s{sF+1}')
        self.walker_at = len(p.items)
        self.stamp('wk')
        p('s_waitcnt vmcnt(1)')
        p.mark('drained_vm')
        self.stamp('rt1')
        for i in range(4):
            p.ext(self.rawq(0, i))
        self.flag_opt(sXF)

        def finish(nfr, offs):
            L = []
            base = None
            for k in range(nfr):
                hi, lo = offs[k] // 4096 * 4096, offs[k] % 4096
                if hi != base:
                    L.append(f's_add_u32 s{sT5}, s{sDST}, {hi}')
                    base = hi
                L.append(f'buffer_store_dwordx4 {vr(FR+4*k)}, v{vL16}, {srd(S_WS)}, s{sT5} offen offset:{lo} sc1')
            return L
        lB = {k: p.newlabel('jobB') for k in (3, 4, 5, 'join')}
        p(f's_mov_b32 s{sFL}, -1')
        p.mark('maybe_begin')
        p(f's_cmp_eq_u32 s{sJOB}, 0')
        p(f's_cbranch_scc1 {lB["join"]}')
        p(f's_cmp_eq_u32 s{sJOB}, 5')
        p(f's_cbranch_scc1 {lB[5]}')
        p(f's_cmp_ge_u32 s{sJOB}, 3')
        p(f's_cbranch_scc1 {lB[3]}')
        p(f'v_lshl_add_u32 v{vTR}, v{t0}, 5, v{t3}')
        p(f'v_add_u32 v{vTR}, s{sSTG}, v{vTR}')
        for t in range(7):
            for jj in range(2):
                p(f'ds_read_b64_tr_b16 {vr(FR+t*4+2*jj,2)}, v{vTR} offset:{t*1024+jj*512}')
        p(f's_mul_i32 s{sDST}, s{sJ}, 100352')
        p(f's_add_u32 s{sDST}, s{sDST}, {W1T}')
        p(f's_mul_i32 s{sDST2}, s{sI}, 3072')
        p(f's_add_u32 s{sDST2}, s{sDST2}, s{sDST}')
        p(f's_add_u32 s{sDST2}, s{sDST2}, 57344')
        p(f's_lshl_b32 s{sT0}, s{sI}, 12')
        p(f's_add_u32 s{sDST}, s{sDST}, s{sT0}')
        p(f's_lshl_b32 s{sFL}, s{sJ}, 4')
        p(f's_add_u32 s{sFL}, s{sFL}, s{sI}')
        p(f's_lshl_b32 s{sFL}, s{sFL}, 3')
        p(f's_add_u32 s{sFL}, s{sFL}, {F_W1}')
        p.ext(finish(4, [t * 1024 for t in range(4)]))
        for t in range(4, 7):
            p(f'buffer_store_dwordx4 {vr(FR+4*t)}, v{vL16}, {srd(S_WS)}, s{sDST2} offen offset:{(t-4)*1024} sc1')
        p(f's_branch {lB["join"]}')
        p.label(lB[3])
        for sg in range(2):
            for jj in range(2):
                p(f'ds_read_b64_tr_b16 {vr(FR+sg*4+2*jj,2)}, v{vTR} offset:{(16*jj+8*sg)*64}')
        p(f's_lshl_b32 s{sI2}, s{sTEAM}, 2')
        p(f's_add_u32 s{sI2}, s{sI2}, s{sRB}')
        p(f's_lshr_b32 s{sSL}, s{sI2}, 1')
        p(f's_and_b32 s{sHF}, s{sI2}, 1')
        p(f's_mul_i32 s{sDST}, s{sCB}, 229376')
        p(f's_mul_i32 s{sT0}, s{sSL}, 14336')
        p(f's_add_u32 s{sDST}, s{sDST}, s{sT0}')
        p(f's_lshl_b32 s{sT0}, s{sHF}, 13')
        p(f's_add_u32 s{sDST}, s{sDST}, s{sT0}')
        p(f's_lshl_b32 s{sT0}, s{sNU}, 10')
        p(f's_add_u32 s{sDST}, s{sDST}, s{sT0}')
        p(f's_add_u32 s{sDST}, s{sDST}, {W2T}')
        p(f's_lshl_b32 s{sFL}, s{sCB}, 5')
        p(f's_add_u32 s{sFL}, s{sFL}, s{sI2}')
        p(f's_lshl_b32 s{sFL}, s{sFL}, 1')
        p(f's_add_u32 s{sFL}, s{sFL}, s{sNU}')
        p(f's_lshl_b32 s{sFL}, s{sFL}, 3')
        p(f's_add_u32 s{sFL}, s{sFL}, {F_W2}')
        p(f's_cmp_eq_u32 s{sJOB}, 4')
        p(f's_cbranch_scc1 {lB[4]}')
        for sg in range(2, 4):
            for jj in range(2):
                p(f'ds_read_b64_tr_b16 {vr(FR+sg*4+2*jj,2)}, v{vTR} offset:{(32+16*jj+8*(sg%2))*64}')
        p.ext(finish(4, [k * 2048 for k in range(4)]))
        p(f's_branch {lB["join"]}')
        p.label(lB[4])
        for jj in range(2):
            p(f'ds_read_b64_tr_b16 {vr(FR+8+2*jj,2)}, v{vTR8} offset:{(32+4*jj)*64}')
        p('s_waitcnt lgkmcnt(0)')
        p.ext(finish(3, [k * 2048 for k in range(3)]))
        p(f's_branch {lB["join"]}')
        p.label(lB[5])
        for hd in range(4):
            for kp in range(2):
                for jj in range(2):
                    p(f'ds_read_b64_tr_b16 {vr(FR+(hd*2+kp)*4+2*jj,2)}, v{vTR} offset:{(28*hd+16*kp+8*jj)*64}')
        p(f's_lshl_b32 s{sFL}, s{sTEAM}, 2')
        p(f's_add_u32 s{sFL}, s{sFL}, s{sCB}')
        p(f's_lshl_b32 s{sDST}, s{sFL}, 14')
        p(f's_lshl_b32 s{sT0}, s{sNU}, 10')
        p(f's_add_u32 s{sDST}, s{sDST}, s{sT0}')
        p(f's_add_u32 s{sDST}, s{sDST}, {WOT}')
        p(f's_lshl_b32 s{sFL}, s{sFL}, 1')
        p(f's_add_u32 s{sFL}, s{sFL}, s{sNU}')
        p(f's_lshl_b32 s{sFL}, s{sFL}, 3')
        p(f's_add_u32 s{sFL}, s{sFL}, {F_WO}')
        p('s_waitcnt lgkmcnt(0)')
        p('s_mov_b32 exec_lo, 0')
        for hd in range(4):
            p(f'v_mov_b32 v{FR+(hd*2+1)*4+2}, 0')
            p(f'v_mov_b32 v{FR+(hd*2+1)*4+3}, 0')
        p('s_mov_b64 exec, -1')
        p.ext(finish(8, [k * 2048 for k in range(8)]))
        p.mark('maybe_end')
        p.label(lB['join'])
        p(f's_getreg_b32 s{sT0}, hwreg(HW_REG_XCC_ID)')
        p(f's_and_b32 s{sT0}, s{sT0}, 15')
        p(f's_lshl_b32 s{sT0}, s{sT0}, 28')
        p(f's_xor_b32 s{sT0}, s{sT0}, s{sF+1}')
        p(f'v_mov_b32 v{t2}, s{sF}')
        p(f'v_mov_b32 v{t3}, s{sT0}')
        p(f's_lshl_b32 s{sT1}, s{sTEAM}, 8')
        p(f's_lshl_b32 s{sT2}, s{sM}, 3')
        p(f's_add_u32 s{sT1}, s{sT1}, s{sT2}')
        p(f's_add_u32 s{sT1}, s{sT1}, {WS_PUR}')
        lx = p.newlabel('noxcc')
        p(f's_cmp_lg_u32 s{sW}, 0')
        p(f's_cbranch_scc1 {lx}')
        p.mark('maybe_begin')
        p('s_mov_b64 exec, 1')
        p(f'buffer_store_dwordx2 {vr(t2,2)}, off, {srd(S_WS)}, s{sT1} sc1')
        p('s_mov_b64 exec, -1')
        p.mark('maybe_end')
        p.label(lx)
        self.stamp('jB')
        for i in range(4, 7):
            p.ext(self.rawq(0, i))
        for i in range(7):
            p.ext(self.rawq(1, i))
        self.xform(0, 128, vCSP, vCSP + 3)
        self.flag_opt(sFL)
        self.stamp('xf0')
        self.xform(1, 160, vCSP + 1, vCSP + 3)
        self.cs_partial((0, 1), vCSP, t2, t3)
        p('s_waitcnt lgkmcnt(0)')
        p('s_barrier')
        self.stamp('bar')
        self.cs_sum((0, 1), 108, t2, t3)
        self.stamp('pro')

    def wqt_publish(self, R):
        p = self.p
        l = p.newlabel('nowqt')
        p(f's_lshl_b32 s{sT0}, s{sTEAM}, 1')
        p(f's_add_u32 s{sT0}, s{sT0}, s{sA}')
        p(f's_cmp_ge_u32 s{sT0}, 14')
        p(f's_cbranch_scc1 {l}')
        p(f's_cmp_lg_u32 s{sW}, 0')
        p(f's_cbranch_scc1 {l}')
        p.mark('maybe_begin')
        p(f's_lshl_b32 s{sT1}, s{sT0}, 11')
        p(f'v_add_u32 v{R+24}, s{sT1}, v{vL16}')
        for tau in range(3):
            for kp in range(2):
                p(f'ds_read_b128 {vr(R+(tau*2+kp)*4)}, v{R+24} offset:{tau*28672+kp*1024}')
        p(f's_mul_i32 s{sT2}, s{sJ}, 86016')
        p(f's_add_u32 s{sT1}, s{sT1}, s{sT2}')
        for tau in range(3):
            p(f's_add_u32 s{sT2}, s{sT1}, {WQT + tau*28672}')
            for kp in range(2):
                p(f'buffer_store_dwordx4 {vr(R+(tau*2+kp)*4)}, v{vL16}, {srd(S_WS)}, s{sT2} offen offset:{kp*1024} sc1')
        p(f's_lshl_b32 s{sJFL}, s{sJ}, 4')
        p(f's_add_u32 s{sJFL}, s{sJFL}, s{sT0}')
        p(f's_lshl_b32 s{sJFL}, s{sJFL}, 3')
        p(f's_add_u32 s{sJFL}, s{sJFL}, {F_WQ}')
        p.mark('maybe_end')
        p.label(l)

    def p1(self):
        p, L0 = self.p, self.L == 0
        X, ACC, RING, CS = 32, 144, 192, 224
        accK, accV, accQ = ACC, ACC + 16, ACC + 32
        PK, PV = vT, vT + 8
        sXO, sST, sFX, sKV, sKF = sO, sO + 7, sO + 8, sO + 9, sO + 10
        p.ext(self.xoff(sXO, sTP, 28672, O_XA))
        for g in range(1, 7):
            p(f's_add_u32 s{sXO+g}, s{sXO}, {4096*g}')
        p.ext(self.off(sST, sTP, 3584, O_STA))
        p.ext(self.off(sFX, sTP, 128, O_FXA))
        p(f's_lshl_b32 s{sT0}, s{sJ}, 3')
        p(f's_add_u32 s{sT0}, s{sT0}, s{sTP}')
        p.ext(self.off(sKV, sT0, 4096, O_KV))
        p.ext(self.off(sKF, sT0, 128, O_FKV))
        p(f'v_lshrrev_b32 v{vCSA}, 5, v{vL}')
        p(f'v_lshlrev_b32 v{vCSA}, 4, v{vCSA}')
        p(f'v_add_u32 v{vCSA}, {L_CSQ}, v{vCSA}')
        vQ = 238
        if L0:
            self.vDQ, self.vTQ, self.vWQ = vQ, 225, 226
            p(f'v_accvgpr_read_b32 v{vQ}, a252')
        else:
            p(f'v_lshlrev_b32 v{vQ}, 7, v{vL}')
            p(f's_mul_i32 s{sRQ}, s{sJ}, 100352')
            p(f's_mul_i32 s{sT0}, s{sTP}, 7168')
            p(f's_add_u32 s{sRQ}, s{sRQ}, s{sT0}')

        def frag(f):
            if f < 56:
                base, off = vL16, (f % 2) * 28672 + (f // 2) * 1024
            else:
                base, off = vA1, (f - 56) * 1024
            return f'ds_read_b128 {vr(RING + 4*(f % 8))}, v{base} offset:{off}'

        def mf(f):
            acc, s = ((accK, accV)[f % 2], f // 2) if f < 56 else (accQ, f - 56)
            return f'{MF32} {vr(acc,16)}, {vr(RING+4*(f%8))}, {vr(X+4*s)}, {vr(acc,16) if s else 0}'

        def xl(s):
            return f'buffer_load_dwordx4 {vr(X+4*s)}, v{vL16}, {srd(S_WS)}, s{sXO + s//4} offen offset:{(s%4)*1024} sc1'
        PD = 6
        for f in range(PD):
            p(frag(f))
        self.stamp('p5')
        self.pad()
        self.vpoll(vL8, f's{sFX}', 14, acquire=not L0)
        self.stamp('E')
        XP = 8
        for s in range(XP):
            p(xl(s))
        mem, pre = {}, {}
        for f in range(84):
            mem[f] = []
            if f + PD < 84 and not (f < 56 <= f + PD):
                mem[f].append(frag(f + PD))
            if f < 56 and f % 2 == 0 and f // 2 + XP < 28:
                mem[f].append(xl(f // 2 + XP))
            if 27 <= f < 41 and f % 2 == 1:
                mem[f].append(self.stats_loads(sST, CS)[(f - 27) // 2])
            if f % 2 == 0:
                pre[f] = [Touch(vr(RING + 4 * (f % 8)) + ' ' + vr(RING + 4 * ((f + 1) % 8)) + (' ' + vr(X + 4 * (f // 2)) if f < 56 else ''))]
        bg = [self.rawq(2, i) for i in range(7)] if L0 else self.wq_dma((2,)) + self.touch(vQ, sRQ, W1T, 56)
        i = 40
        for x in bg:
            mem[i].append(x)
            if is_mem(x):
                i += 2

        def cs_reads(tau, dst):
            return [f'ds_read_b128 {vr(dst+4*q)}, v{vCSA} offset:{tau*128 + 32*q}' for q in range(4)]
        p.ext(sched([mf(f) for f in range(56)], pre, mem, cs_reads(1, accQ) + cs_reads(0, PK) + self.stats_reduce(CS), 6, start=43))
        self.stamp('kv')

        def epi(acc, cs, P):
            L = []
            for r in range(0, 16, 2):
                L.append(f'v_pk_fma_f32 {vr(acc+r,2)}, {vr(cs+r,2)}, {vr(vMEAN,2)}, {vr(acc+r,2)} op_sel:[0,0,0] op_sel_hi:[1,0,1]')
            for r in range(0, 16, 2):
                L.append(f'v_pk_mul_f32 {vr(acc+r,2)}, {vr(acc+r,2)}, {vr(vMEAN,2)} op_sel:[0,1] op_sel_hi:[1,1]')
                L.append(f'v_cvt_pk_bf16_f32 v{P+r//2}, v{acc+r}, v{acc+r+1}')
            return L

        def pad(P, c6, c7):
            return ['s_mov_b32 exec_lo, 0', f'v_mov_b32 v{P+6}, {c6:#x}', f'v_mov_b32 v{P+7}, {c7:#x}', 's_mov_b64 exec, -1']

        def st(P, o):
            return [Ins(f'buffer_store_dwordx4 {vr(P+4*k)}, v{vL16}, {srd(S_WS)}, s{sKV} offen offset:{o+1024*k} sc1', 'kvst') for k in range(2)]
        t0, t1 = CS, CS + 1
        p.ext(epi(accK, PK, PK) + pad(PK, 0x3f803f80, 0x3f80) + st(PK, 0))
        p.ext(epi(accV, accQ, PV) + pad(PV, 0x3f80, 0) + st(PV, 2048))
        self.stamp('kvs')
        if L0:
            R = ACC
            vcs, vones, t2, t3 = R + 28, R + 29, R + 30, R + 31
            p('v_accvgpr_read_b32 v225, a253')
            p('v_accvgpr_read_b32 v226, a254')
            p(f'v_mov_b32 v{vones}, s{sONES}')
            self.xform(2, R, vcs, vones)
            self.cs_partial((2,), vcs, t2, t3)
            p('s_waitcnt lgkmcnt(0)')
            p('s_barrier')
            self.cs_sum((2,), R, t2, t3)
        else:
            p.wait('wq')
            p('s_barrier')
        for f in range(56, 56 + PD):
            p(frag(f))
        side = [f's_lshl_b32 s{sT0}, s{sW}, 12', f's_add_u32 s{sT0}, s{sT0}, {LKV + 8*4096}',
                f'v_add_u32 v{t0}, s{sT0}, v{vL16}',
                f'ds_write_b128 v{t0}, {vr(PK)}', f'ds_write_b128 v{t0}, {vr(PK+4)} offset:1024',
                f'v_and_b32 v{t1}, 31, v{vL}', f'v_lshlrev_b32 v{t1}, 6, v{t1}', f'v_lshrrev_b32 v{t0}, 5, v{vL}',
                f'v_lshl_add_u32 v{t1}, v{t0}, 4, v{t1}', f'v_add_u32 v{t0}, s{sT0}, v{t1}',
                f'ds_write_b128 v{t0}, {vr(PV)} offset:2048', f'ds_write_b128 v{t0}, {vr(PV+4)} offset:{2048+32}',
                f'v_mul_f32 v{vRSTD}, {f32bits(28 ** -0.5 * math.log2(math.e)):#x}, v{vRSTD}'] + cs_reads(2, CS) + self.kv_addr()
        pre2 = {f - 56: v for f, v in pre.items() if f >= 56}
        mem2 = {f - 56: v for f, v in mem.items() if f >= 56}
        mem2[8 if L0 else 22].append([Wait(['kvst'])] + self.flag_sc1(sKF))
        p.ext(sched([mf(f) for f in range(56, 84)], pre2, mem2, side, 6, start=0))
        self.stamp('q')
        QF = 200
        p.ext(epi(accQ, CS, QF))
        p.ext(pad(QF, 0, 0x3f800000))
        if L0:
            p(f's_mov_b32 s{sJFL}, -1')
            self.wqt_publish(32)
        self.pad()
        p('s_barrier')
        self.stamp('p1')

    sKD, sKL, sKFl, sNULL = sO + 11, sO + 13, (sO + 15, 78), 79

    def kv_addr(self):
        sKD, sKL, sKFl, sNULL = self.sKD, self.sKL, self.sKFl, self.sNULL
        L = [f's_mov_b32 s{sNULL}, 0']
        for k in range(2):
            L += [f's_lshl_b32 s{sT0}, s{sW}, 1', f's_add_u32 s{sT0}, s{sT0}, {k}',
                  f's_lshl_b32 s{sKL+k}, s{sT0}, 12', f's_add_u32 s{sKL+k}, s{sKL+k}, {LKV}',
                  f's_lshl_b32 s{sT1}, s{sA}, 2', f's_add_u32 s{sT0}, s{sT0}, s{sT1}',
                  [f's_cmp_lt_u32 s{sT0}, 8', f's_cselect_b32 s{sT1}, {STRIDE}, 0'],
                  f's_sub_u32 s{sT1}, s{sLB}, s{sT1}', f's_and_b32 s{sT0}, s{sT0}, 7',
                  [f's_cmp_lt_i32 s{sT1}, {TEAM0}', f's_cselect_b32 s{sT2}, {1 << k}, 0',
                   f's_cselect_b32 s{sT1}, s{sLB}, s{sT1}', f's_cselect_b32 s{sT0}, s{sTP}, s{sT0}'],
                  f's_or_b32 s{sNULL}, s{sNULL}, s{sT2}', f's_lshl_b32 s{sT2}, s{sJ}, 3', f's_add_u32 s{sT0}, s{sT0}, s{sT2}',
                  f's_lshl_b32 s{sKD+k}, s{sT0}, 12', f's_add_u32 s{sKD+k}, s{sKD+k}, s{sT1}',
                  f's_lshl_b32 s{sT0}, s{sT0}, 7', f's_add_u32 s{sT0}, s{sT0}, s{sT1}', f's_add_u32 s{sKFl[k]}, s{sT0}, {O_FKV}']
        return L

    def attn(self):
        p, L0 = self.p, self.L == 0
        KF, ST, MW, MD, OA, QF, PB, VF = 32, 104, 152, 168, 184, 200, 208, 224
        t0, t1 = 104, 105
        NK = 2
        sKD, sKL, sKFl, sNULL = self.sKD, self.sKL, self.sKFl, self.sNULL
        p(f'v_bfe_u32 v{t0}, v{vL}, 1, 1')
        p(f'v_lshlrev_b32 v{t0}, 10, v{t0}')
        p(f'v_and_b32 v{t1}, 1, v{vL}')
        p(f'v_lshl_add_u32 v{t0}, v{t1}, 9, v{t0}')
        p(f'v_lshrrev_b32 v{t1}, 2, v{vL}')
        p(f'v_lshl_add_u32 v{t0}, v{t1}, 4, v{t0}')
        lp, lo = p.newlabel('kvpoll'), p.newlabel('kvpollout')
        self.stamp('w1')
        p('s_waitcnt lgkmcnt(0)')
        p(f's_mov_b32 s{sCNT}, 0')
        p.label(lp)
        for k in range(NK):
            p(f's_load_dwordx2 s[{sPOLL+2*k}:{sPOLL+2*k+1}], s[{S_WSP}:{S_WSP+1}], s{sKFl[k]} glc')
        p(f's_add_u32 s{sCNT}, s{sCNT}, 1')
        p(f's_cmp_gt_u32 s{sCNT}, {POLL_MAX}')
        p(f's_cbranch_scc1 {lo}')
        p('s_waitcnt lgkmcnt(0)')
        for k in range(NK):
            p(f's_cmp_eq_u64 s[{sPOLL+2*k}:{sPOLL+2*k+1}], s[{sF}:{sF+1}]')
            p(f's_cbranch_scc0 {lp}')
        p.label(lo)
        self.stamp('kvf')
        for k in range(NK):
            lnull, lb = p.newlabel('null'), p.newlabel('nullback')
            p(f's_bitcmp1_b32 s{sNULL}, {k}')
            p(f's_cbranch_scc1 {lnull}')
            p(f's_mov_b32 m0, s{sKL+k}')
            p(f's_sub_u32 s{sT5}, s{sKD+k}, 768')
            p(f'buffer_load_dwordx4 v{vL16}, {srd(S_WS)}, s{sKD+k} offen sc1 lds')
            p(f'buffer_load_dwordx4 v{vL16}, {srd(S_WS)}, s{sKD+k} offen offset:1024 sc1 lds')
            p(f'buffer_load_dwordx4 v{t0}, {srd(S_WS)}, s{sKD+k} offen offset:2048 sc1 lds')
            p(f'buffer_load_dwordx4 v{t0}, {srd(S_WS)}, s{sT5} offen offset:3072 sc1 lds')
            p.label(lb)
            self.tail.append((lnull, [
                f'v_add_u32 v{t1}, s{sKL+k}, v{vL16}',
                'v_mov_b32 v108, 0', 'v_mov_b32 v109, 0', 'v_mov_b32 v110, 0', 'v_mov_b32 v111, 0'] +
                [f'ds_write_b128 v{t1}, v[108:111] offset:{o}' for o in (0, 2048, 3072)] +
                ['s_mov_b32 exec_lo, 0', 'v_mov_b32 v111, 0xf1490000', 's_mov_b64 exec, -1',
                 f'ds_write_b128 v{t1}, v[108:111] offset:1024', f's_branch {lb}']))
        t2, t3 = 106, 107
        p(f'v_and_b32 v{t2}, 31, v{vL}')
        p(f'v_lshrrev_b32 v{t3}, 5, v{vL}')
        p(f'v_lshlrev_b32 v{t3}, 2, v{t3}')
        p(f'v_sub_u32 v{t2}, v{t2}, v{t3}')
        p(f'v_mov_b32 v{t3}, {f32bits(-1e30):#x}')
        for r in range(0, 16, 2):
            k0, k1 = 8 * (r // 4) + r % 4, 8 * (r // 4) + r % 4 + 1
            p(f'v_cmp_le_i32 vcc, {k0}, v{t2}')
            p(f'v_cmp_le_i32 s[{sPOLL}:{sPOLL+1}], {k1}, v{t2}')
            p('s_nop 0')
            p(f'v_cndmask_b32_e64 v{MD+r}, v{t3}, 0, vcc')
            p(f'v_cndmask_b32_e64 v{MD+r+1}, v{t3}, 0, s[{sPOLL}:{sPOLL+1}]')
            p(f'v_cndmask_b32_e64 v{MW+r}, 0, v{t3}, vcc')
            p(f'v_cndmask_b32_e64 v{MW+r+1}, 0, v{t3}, s[{sPOLL}:{sPOLL+1}]')
        vKA, vVA = vT, vT + 1
        p(f's_lshl_b32 s{sT0}, s{sW}, 12')
        p(f's_add_u32 s{sT0}, s{sT0}, {LKV}')
        p(f'v_add_u32 v{vKA}, s{sT0}, v{vL16}')
        p(f'v_lshrrev_b32 v{t2}, 5, v{vL}')
        p(f'v_bfe_u32 v{t3}, v{vL}, 2, 2')
        p(f'v_lshl_add_u32 v{t2}, v{t2}, 2, v{t3}')
        p(f'v_lshlrev_b32 v{vVA}, 6, v{t2}')
        p(f'v_bfe_u32 v{t2}, v{vL}, 4, 1')
        p(f'v_lshl_add_u32 v{vVA}, v{t2}, 5, v{vVA}')
        p(f'v_and_b32 v{t2}, 1, v{vL}')
        p(f'v_lshl_add_u32 v{vVA}, v{t2}, 4, v{vVA}')
        p(f'v_bfe_u32 v{t2}, v{vL}, 1, 1')
        p(f'v_lshl_add_u32 v{vVA}, v{t2}, 3, v{vVA}')
        p(f'v_add_u32 v{vVA}, s{sT0}, v{vVA}')
        sOD, sOF, sWO = sO, sO + 1, sO + 2
        p(f's_lshl_b32 s{sT0}, s{sTP}, 4')
        p(f's_add_u32 s{sT0}, s{sT0}, s{sJ}')
        p.ext(self.roff(sOD, sT0, 2048, O_O))
        p.ext(self.off(sOF, sT0, 8, O_FO))
        p(f's_lshl_b32 s{sWO}, s{sCB}, 2')
        p(f's_add_u32 s{sWO}, s{sWO}, s{sW}')
        p(f's_lshl_b32 s{sWO}, s{sWO}, 14')
        p(f's_add_u32 s{sWO}, s{sWO}, {WOT}')
        for g in range(1, 4):
            p(f's_add_u32 s{sWO+g}, s{sWO}, {4096*g}')
        vPT = vT + 12
        p(f'v_lshlrev_b32 v{vPT}, 7, v{vL}')
        p(f'v_add_u32 v{vPT}, s{sOD}, v{vPT}')
        p(f's_lshl_b32 s{sT0}, s{sTP}, 7')
        p(f's_lshl_b32 s{sT1}, s{sRB}, 8')
        p(f's_lshl_b32 s{sT2}, s{sRHO}, 7')
        p(f's_add_u32 s{sT2}, s{sT2}, s{sT1}')
        p(f's_mul_i32 s{sT3}, s{sT2}, 28')
        p(f's_lshl_b32 s{sT4}, s{sCB}, 9')
        p(f's_add_u32 s{sT3}, s{sT3}, s{sT4}')
        p(f's_lshl_b32 s{sT4}, s{sNU}, 8')
        p(f's_add_u32 s{sT3}, s{sT3}, s{sT4}')
        for lane, (r, c) in enumerate([(sT0, O_FO), (sT1, O_FO), (sT1, O_FO + 128), (sT0, O_FX1), (sT2, O_FX1),
                                       (sT3, O_ST1), (sT3, O_ST1 + 128), (sT0, O_FH), (sT1, O_FH), (sT1, O_FH + 128),
                                       (sT3, LSTRIDE + O_STA), (sT3, LSTRIDE + O_STA + 128), (sT2, LSTRIDE + O_FXA),
                                       (sT0, LSTRIDE + O_FXA)]):
            p(f's_add_u32 s{sT4}, s{r}, {c}')
            p(f's_add_u32 s{sT4}, s{sT4}, s{sLB}')
            p(f'v_writelane_b32 v{vPT}, s{sT4}, {16 + lane}')
        p(f'v_cmp_lt_u32 vcc, 29, v{vL}')
        p(f'v_mov_b32 v{t2}, s{sT4}')
        p(f'v_cndmask_b32 v{vPT}, v{vPT}, v{t2}, vcc')
        vZ = vT + 8
        p(f's_lshl_b32 s{sT0}, s{sNU}, 10')
        p(f'v_xor_b32 v{vZ}, s{sT0}, v{vL16}')
        p(f'v_xor_b32 v{vZ+1}, 1024, v{vZ}')

        def first():
            l0 = p.newlabel('first')
            p(f's_cmp_lg_u32 s{sW}, 0')
            p(f's_cbranch_scc1 {l0}')
            p.mark('maybe_begin')
            p(f's_lshl_b32 s{sT0}, s{sJ}, 7')
            p(f's_add_u32 s{sT0}, s{sT0}, {F_W1}')
            p(f's_lshl_b32 s{sT2}, s{sCB}, 6')
            p(f's_add_u32 s{sT2}, s{sT2}, {F_WO - 14*8}')
            p(f's_lshl_b32 s{sT3}, s{sTEAM}, 8')
            p(f's_add_u32 s{sT3}, s{sT3}, {WS_PUR - 32*8}')
            p(f'v_add_u32 v{t2}, s{sT0}, v{vL8}')
            p(f'v_min_u32 v{t3}, {21*8}, v{vL8}')
            p(f'v_add_u32 v{t3}, s{sT2}, v{t3}')
            p(f'v_cmp_le_u32 vcc, 14, v{vL}')
            p(f'v_cndmask_b32 v{t2}, v{t2}, v{t3}, vcc')
            p(f'v_add_u32 v{t3}, s{sT3}, v{vL8}')
            p(f'v_cmp_le_u32 vcc, 32, v{vL}')
            p(f'v_cndmask_b32 v{t2}, v{t2}, v{t3}, vcc')
            lp, lo, ls = p.newlabel('pur'), p.newlabel('purout'), p.newlabel('pursleep')
            p(f's_mov_b32 s{sCNT}, 0')
            p.label(lp)
            p(f'buffer_load_dwordx2 {vr(108,2)}, v{t2}, {srd(S_WS)}, 0 offen sc1')
            p(f's_add_u32 s{sCNT}, s{sCNT}, 1')
            p(f's_cmp_gt_u32 s{sCNT}, {POLL_MAX}')
            p(f's_cbranch_scc1 {lo}')
            p('s_waitcnt vmcnt(0)')
            p(f'v_xor_b32 v109, s{sF+1}, v109')
            p(f'v_xor_b32 v108, s{sF}, v108')
            p(f'v_and_b32 v110, 0x0fffffff, v109')
            p(f'v_or_b32 v108, v108, v110')
            p(f'v_cmp_ne_u32 vcc, 0, v108')
            p(f's_cbranch_vccnz {ls}')
            p(f'v_readlane_b32 s{sT1}, v109, 32')
            p(f'v_cmp_ne_u32 vcc, s{sT1}, v109')
            p(f's_cmp_eq_u32 vcc_hi, 0')
            p(f's_cselect_b32 s{sT1}, {0 if os.environ.get("FORCE_IMPURE") else 1}, 0')
            p(f'v_mov_b32 v108, s{sT1}')
            p(f'v_mov_b32 v109, {L_PUR}')
            p('ds_write_b32 v109, v108')
            p.label(lo)
            p.mark('maybe_end')
            p.label(l0)
            self.tail.append((ls, ['s_sleep 8', f's_branch {lp}']))
        if L0:
            first()
        self.pad()
        p('s_waitcnt vmcnt(0) lgkmcnt(0)')
        if L0:
            self.flag_opt(sJFL)
        self.stamp('kvd')
        p('s_barrier')
        self.stamp('A')
        if L0:
            p(f'v_mov_b32 v{t0}, {L_PUR}')
            p(f'ds_read_b32 v{t0}, v{t0}')
            p(f'v_readfirstlane_b32 s{sPURE}, v{t0}')
            p(f's_cmp_eq_u32 s{sPURE}, 0')
            p(f's_cselect_b64 s[{sIMP}:{sIMP+1}], -1, 0')
        p(f'v_lshlrev_b32 v{t0}, 7, v{vL}')
        p(f's_lshl_b32 s{sT0}, s{sCB}, 2')
        p(f's_add_u32 s{sT0}, s{sT0}, s{sRB}')
        p(f's_lshl_b32 s{sT1}, s{sT0}, 14')
        p(f's_lshl_b32 s{sT2}, s{sW}, 12')
        p(f's_add_u32 s{sT1}, s{sT1}, s{sT2}')
        p(f's_add_u32 s{sT1}, s{sT1}, {WOT}')
        p('s_mov_b32 exec_hi, 0')
        p(f'buffer_load_dword a255, v{t0}, {srd(S_WS)}, s{sT1} offen sc1')
        p('s_mov_b64 exec, -1')
        p(f'buffer_load_dword a255, v{vPT}, {srd(S_WS)}, 0 offen sc1')
        bg = self.w1_dma(0)
        bg2 = []
        if not L0:
            p(f's_mul_i32 s{sT1}, s{sJ}, 100352')
            p(f's_mul_i32 s{sT2}, s{sTP}, 5376')
            p(f's_add_u32 s{sT1}, s{sT1}, s{sT2}')
            p.ext(self.touch(t0, sT1, W1T + 57344, 42))
            bg2 = self.w1_dma(1)

        def kread(t):
            return [f'ds_read_b128 {vr(KF+8*t+4*k)}, v{vKA} offset:{t*4096+k*1024}' for k in range(2)]

        def qk(t):
            s = ST + 16 * (t % 3)
            c = vr(MW, 16) if t == 0 else vr(MD, 16) if t == 8 else '0'
            return [f'{MF32} {vr(s,16)}, {vr(KF+8*t)}, {vr(QF)}, {c}',
                    f'{MF32} {vr(s,16)}, {vr(KF+8*t+4)}, {vr(QF+4)}, {vr(s,16)}']
        vM, vM2 = vT + 2, vT + 3

        def mx(t):
            s = ST + 16 * (t % 3)
            L = []
            for i in range(8):
                d = vM if i % 2 == 0 else vM2
                if t == 0 and i < 2:
                    L.append(f'v_max_f32 v{d}, v{s+2*i}, v{s+2*i+1}')
                else:
                    L.append(f'v_max3_f32 v{d}, v{s+2*i}, v{s+2*i+1}, v{d}')
            return L

        def vread(t):
            d = VF + 8 * (t % 2)
            return [f'ds_read_b64_tr_b16 {vr(d+4*kv+2*jj,2)}, v{vVA} offset:{t*4096+2048+(16*kv+8*jj)*64}'
                    for kv in range(2) for jj in range(2)]
        def popbg(bg=bg):
            L = []
            while bg:
                x = bg.pop(0)
                L.append(x)
                if is_mem(x):
                    break
            return L
        for t in range(4):
            p.ext(kread(t))
        q = qk(0)
        p.ext([q[0]] + kread(4) + [q[1]] + kread(5))
        q = qk(1)
        p.ext([q[0]] + kread(6) + [q[1]] + kread(7))
        for t in range(9):
            m = mx(t)
            if t + 2 < 9:
                q = qk(t + 2)
                extra = kread(8) if t == 0 else vread(0)[:2] if t == 5 else vread(0)[2:] if t == 6 else []
                if t % 2 == 1 or not L0:
                    extra = extra + popbg()
                p.ext([q[0]] + extra + m[:4] + [q[1]] + m[4:])
            else:
                p.ext(m)
        self.stamp('a1')
        a, b2, r1 = vT + 4, vT + 5, vT + 6
        p(f'v_max_f32 v{vM}, v{vM}, v{vM2}')
        p(f'v_mov_b32 v{a}, v{vM}')
        p(f'v_permlane32_swap_b32 v{vM}, v{a}')
        p(f'v_max_f32 v{vM}, v{vM}, v{a}')
        p(f'v_xor_b32 v{vM}, 0x80000000, v{vM}')
        p(f'v_and_b32 v{a}, 0xffff0000, v{vM}')
        p(f'v_sub_f32 v{r1}, v{vM}, v{a}')
        p(f'v_and_b32 v{a}, 0xffff0000, v{r1}')
        p(f'v_sub_f32 v{b2}, v{r1}, v{a}')
        p('s_mov_b32 exec_lo, 0')
        p(f'v_perm_b32 v{QF+6}, v{r1}, v{vM}, s{sPERM}')
        p(f'v_perm_b32 v{QF+7}, 1.0, v{b2}, s{sPERM}')
        p('s_mov_b64 exec, -1')

        def ex(t):
            s = ST + 16 * (t % 3)
            pb = PB + 8 * (t % 2)
            L = []
            for i in range(8):
                L.append(f'v_exp_f32 v{s+2*i}, v{s+2*i}')
                L.append(f'v_exp_f32 v{s+2*i+1}, v{s+2*i+1}')
                if i:
                    L.append(f'v_cvt_pk_bf16_f32 v{pb+i-1}, v{s+2*i-2}, v{s+2*i-1}')
            L.append(f'v_cvt_pk_bf16_f32 v{pb+7}, v{s+14}, v{s+15}')
            return L

        def pv(t):
            d = VF + 8 * (t % 2)
            pb = PB + 8 * (t % 2)
            return [f'{MF32} {vr(OA,16)}, {vr(d)}, {vr(pb)}, {vr(OA,16) if t else 0}',
                    f'{MF32} {vr(OA,16)}, {vr(d+4)}, {vr(pb+4)}, {vr(OA,16)}']

        self.pad()

        def wol(i):
            ks, z = i // 2, i % 2
            return f'buffer_load_dwordx4 {vr(32+4*i)}, v{vZ+z}, {srd(S_WS)}, s{sWO + ks//2} offen offset:{(ks%2)*2048} sc1'
        p.ext(qk(0))
        p.ext(qk(1))
        for t in range(9):
            e = ex(t)
            mf = (pv(t - 1) if t else []) + (qk(t + 2) if t + 2 < 9 else [])
            out = []
            pos = [2, 7, 12, 17]
            for i, x in enumerate(e):
                out.append(x)
                if i in pos and pos.index(i) < len(mf):
                    k = pos.index(i)
                    out.append(mf[k])
                    if t + 1 < 9:
                        if t == 0:
                            out += vread(1)[2 * k:2 * k + 2]
                        elif k in (1, 2):
                            out += vread(t + 1)[2 * (k - 1):2 * (k - 1) + 2]
                        elif t == 7 and k == 1:
                            pass
                    if L0:
                        if t < 6 and k in (0, 3) or t == 0:
                            out += popbg()
                    elif t < 3:
                        out += popbg()
                    elif t < 7 and k != 1:
                        out += popbg(bg2)
                    if t >= 7:
                        out += [wol(8 * (t - 7) + 4 * k + q) for q in range(4)]
            if t == 7:
                out = out[:-3] + vread(8)[2:] + out[-3:]
            p.ext(out)
        assert not bg and not bg2
        p.ext(pv(8))
        self.stamp('a2')
        p(f'v_mov_b32 v{a}, v{OA+12}')
        p(f'v_mov_b32 v{b2}, v{OA+12}')
        p(f'v_permlane32_swap_b32 v{a}, v{b2}')
        p(f'v_rcp_f32 v{b2}, v{b2}')
        for i in range(8):
            p(f'v_pk_mul_f32 {vr(OA+2*i,2)}, {vr(OA+2*i,2)}, {vr(a,2)} op_sel:[0,1] op_sel_hi:[1,1]')
            p(f'v_cvt_pk_bf16_f32 v{PB+i}, v{OA+2*i}, v{OA+2*i+1}')
            if i % 4 == 3:
                p(f'buffer_store_dwordx4 {vr(PB+i-3)}, v{vL16}, {srd(S_WS)}, s{sOD} offen offset:{(i//4)*1024}', tok='ost')
        self.publish(['ost'], sOF)
        self.stamp('att')

    def reduce_writes(self, ACC):
        return [Ins(f'ds_write_b128 v{vRW+x-1}, {vr(ACC+16*x+4*c)} offset:{c*1024}', 'rw') for x in range(1, 4) for c in range(4)]

    def reduce_finish(self, ACC, TMP):
        p = self.p
        p.wait('rw')
        self.pad()
        p('s_barrier')
        for c in range(4):
            for x in range(3):
                p(f'ds_read_b128 {vr(TMP+16*x+4*c)}, v{vRW+3} offset:{x*4096+c*1024}')
        for c in range(8):
            p(f'v_pk_add_f32 {vr(TMP+2*c,2)}, {vr(TMP+2*c,2)}, {vr(TMP+16+2*c,2)}')
            p(f'v_pk_add_f32 {vr(ACC+2*c,2)}, {vr(ACC+2*c,2)}, {vr(TMP+32+2*c,2)}')
            p(f'v_pk_add_f32 {vr(ACC+2*c,2)}, {vr(ACC+2*c,2)}, {vr(TMP+2*c,2)}')

    def yoffs(self, dst, mul, add):
        L = []
        for y in range(2):
            L += [f's_xor_b32 s{sT0}, s{sRHO}, {y}', f's_lshl_b32 s{sT1}, s{sRB}, 1', f's_add_u32 s{sT0}, s{sT0}, s{sT1}',
                  f's_lshl_b32 s{sT0}, s{sT0}, 2', f's_add_u32 s{sT0}, s{sT0}, s{sW}'] + self.roff(dst + y, sT0, mul, add)
        return L

    def p3(self):
        p, L0 = self.p, self.L == 0
        WO, OF, ACC, RING = 32, 96, 160, 200

        def colsum(part):
            for i in range(4):
                p(f'v_mov_b32 v{vT+4+i}, s{sONES}')
            p(f's_lshl_b32 s{sT0}, s{sW}, 10')
            if part == 0:
                p(f'v_add_u32 v{vT}, s{sT0}, v{vL16}')
            else:
                p(f's_min_u32 s{sT0}, s{sT0}, 2048')
                p(f'v_add_u32 v{vT}, s{sT0}, v{vA1}')
            rd = lambda f: f'ds_read_b128 {vr(RING+4*(f%6))}, v{vT} offset:{f*(4096, 3072)[part]}'
            for f in range(5):
                p(rd(f))
            for f in range(14):
                p(f'{MF16} {vr(ACC)}, {vr(vT+4)}, {vr(RING+4*(f%6))}, {vr(ACC) if f else 0}')
                if f + 5 < 14:
                    p(rd(f + 5))
            p(f's_lshl_b32 s{sT0}, s{sW}, 6')
            p(f's_add_u32 s{sT0}, s{sT0}, {L_CS1 + 256*part}')
            p(f'v_and_b32 v{vT}, 15, v{vL}')
            p(f'v_lshlrev_b32 v{vT}, 2, v{vT}')
            p(f'v_add_u32 v{vT}, s{sT0}, v{vT}')
            p(f'ds_write_b32 v{vT}, v{ACC}')
            p('s_waitcnt lgkmcnt(0)')
        w1d = self.w1_dma(1) if L0 else []
        self.pad()
        p('s_barrier')
        if L0:
            colsum(0)
        ljoin, lidle = p.newlabel('p3join'), p.newlabel('p3idle')
        p(f's_cmp_ge_u32 s{sM}, 28')
        p(f's_cbranch_scc1 {lidle}')
        p.mark('maybe_begin')
        sFO, sY = sO, sO + 2
        p(f's_lshl_b32 s{sT0}, s{sRB}, 3')
        p(f's_add_u32 s{sT0}, s{sT0}, s{sW}')
        p.ext(self.off(sFO, sT0, 32, O_FO))
        p.ext(self.yoffs(sY, 8192, O_O))
        p(f's_add_u32 s{sY+2}, s{sY}, 4096')
        p(f's_add_u32 s{sY+3}, s{sY+1}, 4096')
        p.ext(self.pub_offsets(O_X1, O_ST1, O_FX1))
        self.vpoll(vFLG, f's{sFO}', 8)
        self.stamp('B')

        def ld(ks, y):
            return f'buffer_load_dwordx4 {vr(OF+(ks*2+y)*4)}, v{vL16}, {srd(S_WS)}, s{sY + 2*(ks//4) + y} offen offset:{(ks%4)*1024} sc1'

        def mf(ks, x):
            y, z = x >> 1, x & 1
            c = vr(ACC + 16 * x, 16) if ks else (vr(vRES, 16) if x == 0 else '0')
            return f'{MF32} {vr(ACC+16*x,16)}, {vr(WO+(ks*2+z)*4)}, {vr(OF+(ks*2+y)*4)}, {c}'
        for ks in range(5):
            for y in range(2):
                p(ld(ks, y))
        rest = list(w1d)
        for ks in range(8):
            for x in (1, 2, 3):
                p(mf(ks, x))
                if ks + 5 < 8 and x < 3:
                    p(ld(ks + 5, x - 1))
                elif ks >= 3 and rest:
                    y = rest.pop(0)
                    p.ext([y])
                    while rest and not is_mem(y):
                        y = rest.pop(0)
                        p.ext([y])
        assert not rest
        self.stamp('p3mm')
        p.ext(sched([mf(ks, 0) for ks in range(8)], {}, {}, self.reduce_writes(ACC), 2, start=2))
        self.stamp('p3rw')
        self.reduce_finish(ACC, 32)
        self.stamp('p3rd')
        P = 96
        for i in range(8):
            p(f'v_cvt_pk_bf16_f32 v{P+i}, v{ACC+2*i}, v{ACC+2*i+1}')
        self.x_store(P, vX1A, (0, 512))
        self.publish(['xst'], sXF)
        self.stamp('p3pub')
        p.ext(self.res_unpack(P))
        p.mark('maybe_end')
        p.label(ljoin)
        idle = list(w1d)
        if L0:
            idle += [f'v_lshrrev_b32 v{vT}, 1, v{vL}', f'v_lshlrev_b32 v{vT}, 9, v{vT}', f'v_and_b32 v{vT+1}, 1, v{vL}',
                     f'v_lshl_add_u32 v{vT}, v{vT+1}, 3, v{vT}',
                     f's_lshl_b32 s{sT0}, s{sW}, 7', f's_lshl_b32 s{sT1}, s{sCB}, 5', f's_add_u32 s{sT0}, s{sT0}, s{sT1}',
                     f's_add_u32 s{sT0}, s{sT0}, {F_W2}'] + self.poll_loop(vT, f's{sT0}', 14)
            idle += [f'v_lshlrev_b32 v{vT}, 7, v{vL}', f's_mul_i32 s{sT0}, s{sW}, 57344', f's_mul_i32 s{sT1}, s{sCB}, 14336',
                     f's_add_u32 s{sT0}, s{sT0}, s{sT1}']
            for cb in range(7):
                idle += self.touch(vT, sT0, W2T + cb * 229376, 64)
        self.tail.append((lidle, idle + [f's_branch {ljoin}']))
        if L0:
            p('s_waitcnt vmcnt(0)')
            p('s_barrier')
            colsum(1)
        self.stamp('p3')

    def p45(self):
        p, L0 = self.p, self.L == 0
        X, ACC, RING, CS = 32, 144, 200, 224
        sXO, sST, sFX, sH, sHF = sO, sO + 4, sO + 5, sO + 6, sO + 8
        sFH, sST5, sW2 = sO + 9, sO + 10, sO + 11
        sY = [76, 77, 78, 79, sO + 12, sO + 13, sO + 14, sO + 15]
        vTC, vHA, vHB, vZ, vLb, PO = vT, vT + 1, vT + 2, (vT + 3, vT + 13), vT + 12, vT + 4
        p.ext(self.xoff(sXO, sTP, 28672, O_X1))
        for g in range(1, 4):
            p(f's_add_u32 s{sXO+g}, s{sXO}, {8192*g}')
        p.ext(self.off(sST, sTP, 3584, O_ST1))
        p.ext(self.off(sFX, sTP, 128, O_FX1))
        p(f's_lshl_b32 s{sT0}, s{sTP}, 4')
        p(f's_add_u32 s{sT0}, s{sT0}, s{sJ}')
        p.ext(self.roff(sH, sT0, 7168, O_H))
        p(f's_add_u32 s{sH+1}, s{sH}, 4096')
        p.ext(self.off(sHF, sT0, 8, O_FH))
        p.ext([f'v_lshrrev_b32 v{vCSA}, 4, v{vL}', f'v_lshlrev_b32 v{vCSA}, 4, v{vCSA}', f'v_add_u32 v{vCSA}, {L_CS1}, v{vCSA}',
               f'v_lshrrev_b32 v{vHA}, 5, v{vL}', f'v_lshlrev_b32 v{vHA}, 10, v{vHA}',
               f'v_bfe_u32 v{vHB}, v{vL}, 4, 1', f'v_lshl_add_u32 v{vHA}, v{vHB}, 9, v{vHA}',
               f'v_and_b32 v{vTC}, 15, v{vL}', f'v_lshl_add_u32 v{vHA}, v{vTC}, 4, v{vHA}',
               f'v_lshlrev_b32 v{vHB}, 3, v{vHB}', f'v_lshl_add_u32 v{vHB}, v{vTC}, 4, v{vHB}',
               f'v_lshrrev_b32 v{vTC}, 5, v{vL}', f'v_lshl_add_u32 v{vHB}, v{vTC}, 9, v{vHB}',
               f'v_add_u32 v{vLb}, 4096, v{vL16}'])
        sRBc = sPOLL
        p(f's_min_u32 s{sRBc}, s{sRB}, 3')
        p(f's_lshl_b32 s{sT0}, s{sRBc}, 3')
        p(f's_add_u32 s{sT0}, s{sT0}, s{sW}')
        p.ext(self.off(sFH, sT0, 32, O_FH))
        for y in range(2):
            p.ext([f's_xor_b32 s{sT0}, s{sRHO}, {y}', f's_lshl_b32 s{sT1}, s{sRBc}, 1', f's_add_u32 s{sT0}, s{sT0}, s{sT1}',
                   f's_lshl_b32 s{sT0}, s{sT0}, 2', f's_add_u32 s{sT0}, s{sT0}, s{sW}'] + self.roff(sY[y], sT0, 28672, O_H))
            for sl in range(1, 4):
                p(f's_add_u32 s{sY[2*sl+y]}, s{sY[y]}, {7168*sl}')
        p(f's_lshl_b32 s{sT0}, s{sRBc}, 1')
        p(f's_add_u32 s{sT0}, s{sT0}, s{sRHO}')
        p.ext(self.off(sST5, sT0, 3584, O_ST1))
        if L0:
            p.ext(self.pub_offsets(O_XA + LSTRIDE, O_STA + LSTRIDE, O_FXA + LSTRIDE))
            p.ext([f's_lshl_b32 s{sW2}, s{sCB}, 2', f's_add_u32 s{sW2}, s{sW2}, s{sW}', f's_mul_i32 s{sW2}, s{sW2}, 57344',
                   f's_lshl_b32 s{sT1}, s{sNU}, 10', f'v_xor_b32 v{vZ[0]}, s{sT1}, v{vL16}', f'v_xor_b32 v{vZ[1]}, 1024, v{vZ[0]}'])
            p.ext([f's_lshl_b32 s{sT0}, s{sCB}, 9', f's_lshl_b32 s{sT1}, s{sW}, 7', f's_add_u32 s{sT0}, s{sT0}, s{sT1}',
                   f's_add_u32 s{sT0}, s{sT0}, {F_W2 - 14*8}', f's_lshl_b32 s{sT1}, s{sJ}, 7', f's_add_u32 s{sT1}, s{sT1}, {F_WQ - 30*8}',
                   f'v_mov_b32 v{PO}, s{sFX}', f'v_mov_b32 v{PO+1}, s{sT0}', f'v_cmp_le_u32 vcc, 14, v{vL}',
                   f'v_cndmask_b32 v{PO}, v{PO}, v{PO+1}, vcc', f'v_mov_b32 v{PO+1}, s{sT1}', f'v_cmp_le_u32 vcc, 30, v{vL}',
                   f'v_cndmask_b32 v{PO}, v{PO}, v{PO+1}, vcc', f'v_add_u32 v{PO}, v{PO}, v{vL8}'])
        p(f'v_lshlrev_b32 v{vTC}, 7, v{vL}')
        seq = [(t, s) for s in range(14) for t in range(4)] + [(t, s) for s in range(14) for t in range(4, 7)]

        def frag(f):
            base, off = (vL16, f * 1024) if f < 56 else (vA1, (f - 56) * 1024)
            return f'ds_read_b128 {vr(RING + 4*(f % 6))}, v{base} offset:{off}'

        def mf(f, u):
            t, s = seq[f]
            return f'{MF16} {vr(ACC+8*t+4*u)}, {vr(RING+4*(f%6))}, {vr(X+4*(2*s+u))}, {vr(ACC+8*t+4*u) if s else 0}'

        def xl(i):
            return f'buffer_load_dwordx4 {vr(X+4*i)}, v{(vL16, vLb)[(i//4)%2]}, {srd(S_WS)}, s{sXO + i//8} offen offset:{(i%4)*1024} sc1'

        def cs_reads(tiles):
            return [f'ds_read_b128 {vr(CS+4*(t%4))}, v{vCSA} offset:{t*64}' for t in tiles]
        PD = 4
        for f in range(PD):
            p(frag(f))
        self.pad()
        if L0:
            self.vpoll(PO, '0', 44)
        else:
            self.vpoll(vL8, f's{sFX}', 14)
        self.stamp('C')
        XP = 8
        for i in range(XP):
            p(xl(i))
        mem, pre = {}, {}
        for f in range(98):
            mem[2 * f] = [frag(f + PD)] if f + PD < 98 else []
            mem[2 * f + 1] = []
            if f < 56 and f % 2 == 0 and f // 2 + XP < 28:
                mem[2 * f + 1] = [xl(f // 2 + XP)]
            if 27 <= f < 41 and f % 2 == 1:
                mem[2 * f + 1] = [self.stats_loads(sST, CS)[(f - 27) // 2]]
            if f % 2 == 0:
                tch = vr(RING + 4 * (f % 6)) + ' ' + vr(RING + 4 * ((f + 1) % 6))
                if f < 56 and f % 4 == 0:
                    tch += ' ' + vr(X + 8 * (f // 4), 8)
                pre[2 * f] = [Touch(tch)]
        mem[2 * 41 + 1] = self.touch(vTC, sH, 0, 56)
        mfs = [mf(f, u) for f in range(98) for u in range(2)]
        side = self.stats_reduce(CS) + [f'v_mov_b32 v{vRSTD}, v{vMEAN}', 's_nop 0', f'v_permlane16_swap_b32 v{vMEAN}, v{vRSTD}']
        p.ext(sched(mfs[:112], pre, mem, side, 2, start=88))
        self.pad()
        p('s_barrier')
        p.ext(cs_reads([0, 1, 2, 3]))
        self.stamp('p4g1')

        def epi(tiles, tok):
            L = []
            pairs = [tiles[i:i + 2] for i in range(0, len(tiles), 2)]
            n = 0
            for pr in pairs:
                for u in range(2):
                    po = PO + 4 * (n % 2)
                    n += 1
                    for k, t in enumerate(pr):
                        a = ACC + 8 * t + 4 * u
                        for r in (0, 2):
                            L.append(f'v_pk_fma_f32 {vr(a+r,2)}, {vr(CS+4*(t%4)+r,2)}, {vr(vMEAN,2)}, {vr(a+r,2)} op_sel:[0,{u},0] op_sel_hi:[1,{u},1]')
                    for k, t in enumerate(pr):
                        a = ACC + 8 * t + 4 * u
                        for r in range(2):
                            L.append(f'v_cvt_pk_bf16_f32 v{po+2*k+r}, v{a+2*r}, v{a+2*r+1}')
                    for k, t in enumerate(pr):
                        for r in range(2):
                            L.append(f'v_pk_max_i16 v{po+2*k+r}, v{po+2*k+r}, 0')
                    t = pr[0]
                    so, off = (sH, t * 1024) if t < 4 else (sH + 1, (t - 4) * 1024)
                    if len(pr) == 2:
                        L.append(Ins(f'buffer_store_dwordx4 {vr(po)}, v{vHA}, {srd(S_WS)}, s{so} offen offset:{off+u*256}', tok))
                    else:
                        L.append(Ins(f'buffer_store_dwordx2 {vr(po,2)}, v{vHB}, {srd(S_WS)}, s{so} offen offset:{off+u*256}', tok))
            return L
        p.ext(epi([0, 1, 2, 3], 'h1'))
        self.stamp('p4e1')
        HR, AC5, NR, PD5, TAIL = 32, 160, 16, 5, 14
        order = [7 * sl + sg for sl in range(4) for sg in range(4)] + [7 * sl + sg for sl in range(4) for sg in range(4, 7)]

        def ld(i, y):
            sl, sg = order[i] // 7, order[i] % 7
            return (f'buffer_load_dwordx4 {vr(HR+((i%NR)*2+y)*4)}, v{(vL16, vLb)[sg//4]}, {srd(S_WS)}, s{sY[2*sl+y]} '
                    f'offen offset:{(sg%4)*1024} sc1')

        def m5(i, x):
            y, z = x >> 1, x & 1
            return f'{MF32} {vr(AC5+16*x,16)}, {ar(order[i]*8+z*4)}, {vr(HR+((i%NR)*2+y)*4)}, {vr(AC5+16*x,16) if i else 0}'
        pre2 = {i - 112: v for i, v in pre.items() if i >= 112}
        mem2 = {i - 112: v for i, v in mem.items() if i >= 112}
        NW2A = 14 if L0 else 0
        w2a = self.w2_loads(order[:NW2A], sW2, vZ) if L0 else []
        i = 1
        for x in w2a:
            mem2[i].append(x)
            i += 2 if i < 17 or i > 21 else 2
        mem2[19] = self.publish_items(['h1'], sHF) + mem2[19]
        mem2[57] += self.peek_issue(vFLG, f's{sFH}', 8)
        mem2[59] += cs_reads([4, 5])
        mem2[61] += cs_reads([6])
        mem2[63] += self.peek_check(vFLG, f's{sFH}', 8)
        for k in range(2 * PD5):
            mem2[65 + 2 * k].append(ld(k // 2, k % 2))
        p.ext(sched(mfs[112:], pre2, mem2, [], 2, start=0))
        self.stamp('p4g2')
        p.ext(epi([4, 5, 6], 'h2'))
        self.stamp('p4')
        lskip, ljoin = p.newlabel('p5skip'), p.newlabel('p5join')
        self.pad()
        p(f's_cmp_ge_u32 s{sM}, 28')
        p(f's_cbranch_scc1 {lskip}')
        idle = ['s_waitcnt vmcnt(0)'] + self.publish_items([], sHF, 1024)
        if L0:
            idle += [f's_lshl_b32 s{sT0}, s{sCB}, 2', f's_add_u32 s{sT0}, s{sT0}, s{sW}', f's_lshl_b32 s{sT1}, s{sT0}, 7',
                     f's_add_u32 s{sT1}, s{sT1}, {F_WQ}'] + self.poll_loop(vL8, f's{sT1}', 14)
            idle += [f's_mul_i32 s{sT1}, s{sT0}, 86016'] + self.prefetch(vTC, sT1, WQT, 86016)
            idle += ['s_waitcnt vmcnt(0)', 's_barrier'] + self.wq_dma((0, 1)) + [f's_branch {ljoin}']
        else:
            idle += [f's_cmp_lg_u32 s{sM}, 28', 's_cbranch_scc1 L_fin', f's_cmp_lg_u32 s{sW}, 0', 's_cbranch_scc1 L_fin',
                     's_sleep 20', 'buffer_wbl2 sc1', 's_waitcnt vmcnt(0)', 's_branch L_fin']
        self.tail.append((lskip, idle))
        mfs, mem = [], {}
        w2b = self.w2_loads(order[NW2A:], sW2, vZ) if L0 else []
        stl = self.stats_loads(sST5, CS)
        for i in range(28):
            xs = (0, 1, 2, 3) if i < 28 - TAIL else (1, 2, 3)
            for n, x in enumerate(xs):
                k = len(mfs)
                mfs.append(m5(i, x))
                mem[k] = []
                if i == 3 and n == 3:
                    mem[k] += self.publish_items(['h2'], sHF, 1024)
                if i == 8 and n == 3:
                    mem[k] += self.peek_issue(vFLG, f's{sFH}', 8, 1024)
                if i == 11 and n == 0:
                    mem[k] += self.peek_check(vFLG, f's{sFH}', 8, 1024)
                if i + PD5 < 28 and n < 2:
                    mem[k].append(ld(i + PD5, n))
                elif w2b and n >= 2:
                    mem[k].append(w2b.pop(0))
                elif i + PD5 >= 28 and stl:
                    mem[k].append(stl.pop(0))
        assert not w2b and not stl
        p.ext(sched(mfs, {}, mem, [], 6))
        self.stamp('p5mm')
        mem = {}
        for i, x in enumerate(self.reduce_writes(AC5)):
            mem.setdefault(2 + i, []).append(x)
        p.ext(sched([m5(i, 0) for i in range(28 - TAIL, 28)], {}, mem, self.stats_reduce(CS), 5, start=0))
        self.stamp('p5rw')
        self.reduce_finish(AC5, 32)
        self.stamp('p5rd')
        P = 96
        for i in range(8):
            p(f'v_pk_fma_f32 {vr(AC5+2*i,2)}, {vr(AC5+2*i,2)}, {vr(vMEAN,2)}, {vr(vRES+2*i,2)} op_sel:[0,1,0] op_sel_hi:[1,1,1]')
            p(f'v_cvt_pk_bf16_f32 v{P+i}, v{AC5+2*i}, v{AC5+2*i+1}')
        if L0:
            self.x_store(P, vL16, (0, 1024))
            wq = self.wq_dma((0, 1))
            p.ext(wq[:9])
            self.publish(['xst'], sXF)
            p.ext(wq[9:])
            self.stamp('p5pub')
            p.ext(self.res_unpack(P))
            p.label(ljoin)
            p(f's_add_u32 s{sLB}, s{sLB}, {LSTRIDE}')
            p('s_waitcnt vmcnt(0) lgkmcnt(0)')
            p('s_barrier')
            return
        p(f'v_and_b32 v{vT+4}, 31, v{vL}')
        p(f'v_mul_u32_u24 v{vT+4}, 896, v{vT+4}')
        p(f'v_lshrrev_b32 v{vT+5}, 5, v{vL}')
        p(f'v_lshl_add_u32 v{vT+4}, v{vT+5}, 4, v{vT+4}')
        for hf in range(2):
            p(f'v_permlane32_swap_b32 v{P+4*hf}, v{P+4*hf+2}')
            p(f'v_permlane32_swap_b32 v{P+4*hf+1}, v{P+4*hf+3}')
            p(f'buffer_store_dwordx4 {vr(P+4*hf)}, v{vT+4}, {srd(S_OUT)}, s{sQOFF} offen offset:{32*hf}')
        p('s_cmp_lg_u32 s2, %d' % (27 * 8 + 7))
        p('s_cbranch_scc1 L_fin')
        p(f's_mov_b32 s{sT0}, {WS_EPOCH}')
        p.ext(self.flag_sc1(sT0))

    def build(self):
        p = self.p
        self.L = 0
        self.prologue()
        for self.L in range(2):
            for ph in ('p1', 'attn', 'p3', 'p45'):
                getattr(self, ph)()
        p.label('L_fin')
        self.stamp('end')
        self.stamp_dump()
        if os.environ.get('CALIB'):
            p.label('L_calib')
            p('s_memrealtime s[96:97]')
            p('s_waitcnt lgkmcnt(0)')
            p('s_sub_u32 s96, s96, s100')
            p(f's_cmp_lt_u32 s96, {int(os.environ["CALIB"])}')
            p('s_cbranch_scc1 L_calib')
        p.label('L_end')
        p('s_endpgm')
        for lab, code in self.tail:
            p.label(lab, reset='all')
            p.ext(code)
        p.label('L_codeend')
        self.emit_walker()
        p.insert_waits()
        probs = p.fix_hazards()
        for x in probs:
            print('branch hazard padded', x, file=sys.stderr)
        mx = p.maxregs()
        head = open(os.path.join(os.path.dirname(__file__), '..', 'cdna_kernels', NAME + '.s.ref')).read().split('\n')
        hdr = [l for l in head if l.startswith(';') and '@launch' not in l]
        out = '\n'.join(hdr) + f'\n; @launch grid=(256,1,1) block=(256,1,1) lds={LDS_BYTES}\n'
        out += '.amdgcn_target "amdgcn-amd-amdhsa--gfx950"\n.text\n'
        out += f'.globl {NAME}_kernel\n.p2align 8\n.type {NAME}_kernel,@function\n{NAME}_kernel:\n'
        out += p.text()
        out += '.fill 64, 4, 0xbf800000\n'
        out += f'''.section .rodata,"a"
.p2align 6
.amdhsa_kernel {NAME}_kernel
  .amdhsa_next_free_vgpr 512
  .amdhsa_next_free_sgpr 102
  .amdhsa_accum_offset 256
  .amdhsa_group_segment_fixed_size 0
  .amdhsa_kernarg_size 72
  .amdhsa_user_sgpr_count 2
  .amdhsa_user_sgpr_kernarg_segment_ptr 1
  .amdhsa_system_sgpr_workgroup_id_x 1
  .amdhsa_float_denorm_mode_32 3
.end_amdhsa_kernel
'''
        print('regs', mx, 'instrs', sum(1 for x in p.items if isinstance(x, Ins)), file=sys.stderr)
        return out


if __name__ == '__main__':
    stop = int(sys.argv[2]) if len(sys.argv) > 2 else None
    k = K(stop if stop and stop > 0 else None, dbg=sys.argv[3].split(',') if len(sys.argv) > 3 else None)
    open(sys.argv[1], 'w').write(k.build())
    if k.dbg:
        open(os.path.join(os.path.dirname(sys.argv[1]), 'stamps.txt'), 'w').write(' '.join(k.stamps))
```

```python
import sys, os, math, struct
sys.path.insert(0, os.path.dirname(__file__))
from asmlib import Prog, Ins, Wait, Mark, Label, Touch

NAME = 'interleave_layers__sliding_block__dense_activation_relu__prompt'

WS_EPOCH = 0
WS_PUR = 0x1000
F_WQ = 0x2000
F_W1 = 0x2800
F_W2 = 0x3000
F_WO = 0x4000
WQT = 0x100000
W1T = 0x250000
WOT = 0x3D8000
W2T = 0x448000
TEAM0 = 0x600000
LSTRIDE = 0x230000
STRIDE = 2 * LSTRIDE
O_KV = 0x000000
O_O = 0x080000
O_X1 = 0x0C0000
O_XA = 0x0F8000
O_ST1 = 0x130000
O_STA = 0x138000
O_FKV = 0x140000
O_FO = 0x144000
O_FX1 = 0x144400
O_FXA = 0x144800
O_FH = 0x145000
O_H = 0x150000
WS_BYTES = TEAM0 + 8 * STRIDE

LKV = 100352
L_CSQ = 149504
L_CS1 = L_CSQ + 512
L_STAMP = 160 * 1024 - 512
L_PUR = L_CS1 + 512 + 1536
L_CSP = L_CS1 + 512
LDS_BYTES = 163840

S_X, S_WQ, S_WO, S_W1, S_W2, S_OUT, S_WS = 8, 12, 16, 20, 24, 28, 32
S_WSP = 36
sTEAM, sM, sA, sJ, sW, sRB, sCB, sLB = 40, 41, 42, 43, 44, 45, 46, 47
sF, sPURE, sLAYER, sTP = 48, 50, 51, 52
sQOFF = 53
sIMP = 54
sPERM, sONES = 56, 57
sRHO, sNU = 58, 59
sT0, sT1, sT2, sT3, sT4, sT5 = 60, 61, 62, 63, 64, 65
sCNT = 66
sTB = 71
sJFL = 67
sXD, sXS, sXF = 68, 69, 70
sPOLL = 72
sRQ, sLQ = 76, 77
sO = 80

vL, vL16, vA1, vL8 = 0, 1, 2, 3
vSTA = 4
vFLG = 5
vRW = 6
vX1A = 10
vCSA = 11
vF = 12
vMEAN, vRSTD = 14, 15
vT = 16
vRES = 240

POLL_MAX = 1 << 16
ORDER = [7 * sl + sg for sl in range(4) for sg in range(4)] + [7 * sl + sg for sl in range(4) for sg in range(4, 7)]
MF32 = 'v_mfma_f32_32x32x16_bf16'
MF16 = 'v_mfma_f32_16x16x32_bf16'


def srd(b):
    return f's[{b}:{b+3}]'


def vr(b, n=4):
    return f'v[{b}:{b+n-1}]' if n > 1 else f'v{b}'


def ar(b, n=4):
    return f'a[{b}:{b+n-1}]'


def f32bits(x):
    return struct.unpack('<I', struct.pack('<f', x))[0]


def is_mem(x):
    if isinstance(x, (list, tuple)):
        return any(is_mem(y) for y in x)
    if isinstance(x, (Wait, Touch, Label, Mark)):
        return False
    t = x.text if isinstance(x, Ins) else x if isinstance(x, str) else ''
    return t.startswith('ds_') or t.startswith('buffer_') or t.startswith('global_')


def cost(x):
    if isinstance(x, (list, tuple)):
        return sum(cost(y) for y in x)
    if isinstance(x, (Wait, Touch)):
        return 1
    if isinstance(x, (Label, Mark)):
        return 0
    t = x.text if isinstance(x, Ins) else x
    return 2 if t.startswith('v_exp') or t.startswith('v_rsq') or t.startswith('v_rcp') or t.startswith('v_permlane') else 1


def sched(mfs, pre, mem, side, cap, start=0):
    out = []
    side = list(side)
    for i, m in enumerate(mfs):
        out += pre.get(i, [])
        out.append(m)
        n = 0
        for x in mem.get(i, []):
            out.append(x)
            n += cost(x)
        if pre.get(i + 1):
            n += 1
        valu = False
        if i >= start:
            while side and n + cost(side[0]) <= cap:
                if is_mem(side[0]) and valu:
                    break
                x = side.pop(0)
                if not is_mem(x) and not isinstance(x, (Wait, Touch)):
                    t = x[0] if isinstance(x, (list, tuple)) else x
                    if any((y.text if isinstance(y, Ins) else y).startswith('v_') for y in (x if isinstance(x, (list, tuple)) else [x]) if isinstance(y, (Ins, str))):
                        valu = True
                out.append(x)
                n += cost(x)
            if side and n == 0 and cost(side[0]) > cap:
                out.append(side.pop(0))
    return out + side


class K:
    def __init__(self, stop=None, dbg=False):
        self.p = Prog()
        self.stop = stop
        self.dbg = dbg
        self.stamps = []
        self.tail = []
        self.pads = []

    def stamp(self, name):
        if not self.dbg or (name not in self.dbg and name not in ('start', 'end')):
            return
        k = len(self.stamps)
        assert k < 32
        self.stamps.append(name)
        p = self.p
        p('s_memrealtime s[96:97]' if 'RT' in self.dbg else 's_memtime s[96:97]')
        if k == 0:
            p('v_readfirstlane_b32 s100, v0')
            p('s_lshr_b32 s100, s100, 6')
            p('s_lshl_b32 s100, s100, 7')
            p(f's_add_u32 s100, s100, {L_STAMP}')
        p('s_waitcnt lgkmcnt(0)')
        p('v_accvgpr_write_b32 a252, s96')
        p('s_mov_b32 s97, m0')
        p('s_mov_b32 m0, s100')
        p('s_mov_b64 exec, 1')
        p(f'ds_write_addtid_b32 a252 offset:{4*k}')
        p('s_mov_b64 exec, -1')
        p('s_mov_b32 m0, s97')

    def stamp_items(self, name):
        n = len(self.p.items)
        self.stamp(name)
        L = self.p.items[n:]
        del self.p.items[n:]
        return [L] if L else []

    def stamp_dump(self):
        if not self.dbg:
            return
        p = self.p
        p(f's_lshl_b32 s{sT0}, s2, 2')
        p(f's_add_u32 s{sT0}, s{sT0}, s{sW}')
        p(f's_lshl_b32 s{sT0}, s{sT0}, 7')
        p(f's_add_u32 s{sT0}, s{sT0}, 0x40000')
        p(f'v_lshlrev_b32 v16, 2, v{vL}')
        p('v_add_u32 v17, s100, v16')
        p('s_waitcnt lgkmcnt(0)')
        p('ds_read_b32 v17, v17')
        p('s_mov_b32 exec_hi, 0')
        p(f'buffer_store_dword v17, v16, {srd(S_WS)}, s{sT0} offen')
        p('s_mov_b64 exec, -1')

    def dma(self, srdb, voff, sreg, simm, m0, tok, sc='', n=1):
        mr, mi = m0
        L = [f's_add_u32 m0, s{mr}, {mi}' if mr is not None else f's_mov_b32 m0, {mi}',
             f's_add_u32 s{sT5}, s{sreg}, {simm}']
        for k in range(n):
            L.append(Ins(f'buffer_load_dwordx4 v{voff}, {srd(srdb)}, s{sT5} offen offset:{1024*k} {sc} lds', tok))
        return L

    @staticmethod
    def setexec(nl):
        if nl <= 32:
            return [f's_mov_b64 exec, {(1 << nl) - 1:#x}'] if nl < 32 else ['s_mov_b32 exec_hi, 0']
        return [f's_mov_b32 exec_hi, {(1 << (nl - 32)) - 1:#x}']

    def poll_loop(self, voff, soff, nl, imm=0):
        p = self.p
        lp, lo = p.newlabel('poll'), p.newlabel('pollout')
        return self.setexec(nl) + [f's_mov_b32 s{sCNT}, 0', Label(lp),
                f'buffer_load_dwordx2 {vr(vT + 14, 2)}, v{voff}, {srd(S_WS)}, {soff} offen offset:{imm} sc1',
                f's_add_u32 s{sCNT}, s{sCNT}, 1', f's_cmp_gt_u32 s{sCNT}, {POLL_MAX}', f's_cbranch_scc1 {lo}',
                's_waitcnt vmcnt(0)', f'v_cmp_ne_u64 vcc, s[{sF}:{sF+1}], {vr(vT + 14, 2)}', f's_cbranch_vccnz {lp}',
                Label(lo), 's_mov_b64 exec, -1']

    def vpoll(self, voff, soff, nl, acquire=True):
        p = self.p
        p.ext(self.poll_loop(voff, soff, nl))
        if acquire:
            lslow, lback = p.newlabel('acq'), p.newlabel('acqback')
            p(f's_cmp_lg_u32 s{sPURE}, 0')
            p(f's_cbranch_scc0 {lslow}')
            p.label(lback)
            self.tail.append((lslow, ['buffer_inv sc1', 's_waitcnt vmcnt(0)', f's_branch {lback}']))
        p.mark('drained_vm')

    def peek_issue(self, voff, soff, nl, imm=0):
        return [self.setexec(nl) + [f'buffer_load_dwordx2 {vr(vT + 14, 2)}, v{voff}, {srd(S_WS)}, {soff} offen offset:{imm} sc1',
                                    's_mov_b64 exec, -1']]

    def peek_check(self, voff, soff, nl, imm=0):
        p = self.p
        lslow, lback, lacq = p.newlabel('peek'), p.newlabel('peekback'), p.newlabel('peekacq')
        self.tail.append((lslow, self.poll_loop(voff, soff, nl, imm) +
                          [f's_cmp_lg_u32 s{sPURE}, 0', f's_cbranch_scc1 {lback}', 'buffer_inv sc1', 's_waitcnt vmcnt(0)',
                           f's_branch {lback}']))
        return [[Touch(vr(vT + 14, 2))] + self.setexec(nl) +
                [f'v_cmp_ne_u64 vcc, s[{sF}:{sF+1}], {vr(vT + 14, 2)}', 's_mov_b64 exec, -1',
                 f's_or_b64 vcc, vcc, s[{sIMP}:{sIMP+1}]', f's_cbranch_scc1 {lslow}', Label(lback)]]

    def publish_items(self, toks, soff, imm=0):
        p = self.p
        lslow, lback = p.newlabel('pubslow'), p.newlabel('pubback')
        self.tail.append((lslow, [
            'buffer_wbl2 sc1', 's_waitcnt vmcnt(0)',
            f'buffer_store_dwordx2 {vr(vF, 2)}, off, {srd(S_WS)}, s{soff} offset:{imm} sc1',
            f's_branch {lback}']))
        return [[Wait(toks), 's_mov_b64 exec, 1', f's_cmp_lg_u32 s{sPURE}, 0', f's_cbranch_scc0 {lslow}',
                 f'buffer_store_dwordx2 {vr(vF, 2)}, off, {srd(S_WS)}, s{soff} offset:{imm}', Label(lback), 's_mov_b64 exec, -1']]

    def publish(self, toks, soff, imm=0):
        self.p.ext(self.publish_items(toks, soff, imm))

    def flag_sc1(self, soff):
        return ['s_mov_b64 exec, 1', f'buffer_store_dwordx2 {vr(vF,2)}, off, {srd(S_WS)}, s{soff} sc1', 's_mov_b64 exec, -1']

    def flag_opt(self, soff):
        p = self.p
        l = p.newlabel('noflag')
        p(f's_cmp_eq_u32 s{soff}, -1')
        p(f's_cbranch_scc1 {l}')
        p.mark('maybe_begin')
        p.ext(self.flag_sc1(soff))
        p.mark('maybe_end')
        p.label(l)

    def stats_loads(self, soff, dst):
        return [f'buffer_load_dwordx2 {vr(dst + 2*i, 2)}, v{vSTA}, {srd(S_WS)}, s{soff} offen offset:{256*i} sc1' for i in range(7)]

    def stats_reduce(self, src):
        L = []
        for i in range(1, 7):
            L.append(f'v_add_f32 v{src}, v{src}, v{src+2*i}')
            L.append(f'v_add_f32 v{src+1}, v{src+1}, v{src+2*i+1}')
        s, q, t0, t1 = src, src + 1, src + 2, src + 3
        return L + [
            f'v_mov_b32 v{t0}, v{s}', f'v_mov_b32 v{t1}, v{q}', 's_nop 0',
            f'v_permlane32_swap_b32 v{s}, v{t0}', f'v_permlane32_swap_b32 v{q}, v{t1}',
            f'v_add_f32 v{s}, v{s}, v{t0}', f'v_add_f32 v{q}, v{q}, v{t1}',
            f'v_mul_f32 v{vMEAN}, {f32bits(-1.0/448):#x}, v{s}',
            f'v_mul_f32 v{q}, {f32bits(1.0/448):#x}, v{q}',
            f'v_fma_f32 v{q}, -v{vMEAN}, v{vMEAN}, v{q}',
            f'v_max_f32 v{q}, 0, v{q}',
            f'v_add_f32 v{q}, {f32bits(1e-5):#x}, v{q}',
            f'v_rsq_f32 v{vRSTD}, v{q}',
        ]

    def off(self, dst, idx_reg, mul, add):
        return [f's_mul_i32 s{dst}, s{idx_reg}, {mul}', f's_add_u32 s{dst}, s{dst}, s{sLB}', f's_add_u32 s{dst}, s{dst}, {add}']

    def xoff(self, dst, idx_reg, mul, add):
        return [f's_add_u32 s{sT3}, s{sLB}, {add}', f's_add_u32 s{sT4}, s{sTB}, {O_XA}', f's_cmp_lg_u32 s{sPURE}, 0',
                f's_cselect_b32 s{sT3}, s{sT4}, s{sT3}', f's_mul_i32 s{dst}, s{idx_reg}, {mul}', f's_add_u32 s{dst}, s{dst}, s{sT3}']

    def roff(self, dst, idx_reg, mul, add):
        return [f's_cmp_lg_u32 s{sPURE}, 0', f's_cselect_b32 s{sT3}, s{sTB}, s{sLB}',
                f's_mul_i32 s{dst}, s{idx_reg}, {mul}', f's_add_u32 s{dst}, s{dst}, s{sT3}', f's_add_u32 s{dst}, s{dst}, {add}']

    def pub_offsets(self, xoff, stoff, foff):
        return [f's_lshl_b32 s{sT0}, s{sRB}, 1', f's_add_u32 s{sT0}, s{sT0}, s{sRHO}',
                f's_lshl_b32 s{sT1}, s{sCB}, 1', f's_add_u32 s{sT1}, s{sT1}, s{sNU}',
                f's_mul_i32 s{sT2}, s{sT0}, 14', f's_add_u32 s{sT2}, s{sT2}, s{sT1}'] + \
            self.xoff(sXD, sT2, 2048, xoff) + self.off(sXS, sT2, 256, stoff) + \
            [f's_lshl_b32 s{sT0}, s{sT0}, 4', f's_add_u32 s{sT0}, s{sT0}, s{sT1}'] + self.off(sXF, sT0, 8, foff) + \
            [f's_cmp_ge_u32 s{sM}, 28'] + [f's_cselect_b32 s{r}, {WS_PUR}, s{r}' for r in (sXD, sXS, sXF)]

    def x_store(self, P, va, offs, sc=''):
        p = self.p
        S, Q2, t0, t1 = vT + 6, vT + 7, vT + 8, vT + 9
        for k in range(2):
            p(f'buffer_store_dwordx4 {vr(P+4*k)}, v{va}, {srd(S_WS)}, s{sXD} offen offset:{offs[k]} {sc}', tok='xst')
        p(f'v_mov_b32 v{t0}, s{sONES}')
        p(f'v_dot2_f32_bf16 v{S}, v{P}, v{t0}, 0')
        p(f'v_dot2_f32_bf16 v{Q2}, v{P}, v{P}, 0')
        for i in range(1, 8):
            p(f'v_dot2_f32_bf16 v{S}, v{P+i}, v{t0}, v{S}')
            p(f'v_dot2_f32_bf16 v{Q2}, v{P+i}, v{P+i}, v{Q2}')
        p(f'v_mov_b32 v{t0}, v{S}')
        p(f'v_mov_b32 v{t1}, v{Q2}')
        p(f'v_permlane32_swap_b32 v{S}, v{t0}')
        p(f'v_permlane32_swap_b32 v{Q2}, v{t1}')
        p(f'v_add_f32 v{S}, v{S}, v{t0}')
        p(f'v_add_f32 v{Q2}, v{Q2}, v{t1}')
        p('s_mov_b32 exec_hi, 0')
        p(f'buffer_store_dwordx2 {vr(S,2)}, v{vL8}, {srd(S_WS)}, s{sXS} offen {sc}', tok='xst')
        p('s_mov_b64 exec, -1')

    def res_unpack(self, P):
        L = []
        for q in range(8):
            L.append(f'v_lshlrev_b32 v{vRES+2*q}, 16, v{P+q}')
            L.append(f'v_and_b32 v{vRES+2*q+1}, 0xffff0000, v{P+q}')
        return L

    def prefetch(self, v128, sreg, base, nbytes):
        L = []
        o = 0
        while o < nbytes:
            oo = min(o, nbytes - 8192)
            L += [f's_add_u32 s{sT5}, s{sreg}, {base + oo}', f'buffer_load_dword a255, v{v128}, {srd(S_WS)}, s{sT5} offen sc1']
            o += 8192
        return L

    def touch(self, v128, sreg, imm, nlines):
        L = [f's_add_u32 s{sT5}, s{sreg}, {imm}']
        if nlines < 64:
            L += self.setexec(nlines)
        L.append(f'buffer_load_dword a255, v{v128}, {srd(S_WS)}, s{sT5} offen sc1')
        if nlines < 64:
            L.append('s_mov_b64 exec, -1')
        return [L]

    def wq_dma(self, tiles):
        sg, sl = sPOLL + 2, sPOLL + 3
        L = [f's_mul_i32 s{sg}, s{sJ}, 86016', f's_mul_i32 s{sl}, s{sW}, 7168', f's_add_u32 s{sg}, s{sg}, s{sl}']
        for tau in tiles:
            for o, n in ((0, 4), (4096, 3)):
                d = self.dma(S_WS, vL16, sg, WQT + tau * 28672 + o, (sl, tau * 28672 + o), 'wq', 'sc1', n)
                L += [d[:3]] + d[3:]
        return L

    def w1_dma(self, part):
        sg, sl = sPOLL, sPOLL + 1
        L = []
        if part == 0:
            L += [f's_mul_i32 s{sg}, s{sJ}, 100352', f's_mul_i32 s{sl}, s{sW}, 14336', f's_add_u32 s{sg}, s{sg}, s{sl}']
            groups = [(0, 4), (4096, 4), (8192, 4), (12288, 2)]
            base = 0
        else:
            L += [f's_mul_i32 s{sg}, s{sJ}, 100352', f's_mul_i32 s{sl}, s{sW}, 10240', f's_add_u32 s{sg}, s{sg}, s{sl}']
            groups = [(0, 4), (4096, 4), (8192, 2)]
            base = 57344
        for o, n in groups:
            d = self.dma(S_WS, vL16, sg, W1T + base + o, (sl, base + o), 'w1', 'sc1', n)
            L += [d[:3]] + d[3:]
        if part == 1:
            L += [f's_sub_u32 s{sg}, s{sg}, s{sl}', f's_lshl_b32 s{sl}, s{sNU}, 10', f's_add_u32 s{sg}, s{sg}, s{sl}']
            L.append(self.dma(S_WS, vL16, sg, W1T + 98304, (sl, 98304), 'w1', 'sc1', 1))
        return L

    def w2_setup(self, sbase, vz):
        return [f's_lshl_b32 s{sbase}, s{sCB}, 2', f's_add_u32 s{sbase}, s{sbase}, s{sW}', f's_mul_i32 s{sbase}, s{sbase}, 57344',
                f's_lshl_b32 s{sT1}, s{sNU}, 10', f'v_xor_b32 v{vz[0]}, s{sT1}, v{vL16}', f'v_xor_b32 v{vz[1]}, 1024, v{vz[0]}']

    def w2_loads(self, steps, sbase, vz):
        L = []
        for ks in steps:
            g = [f's_add_u32 s{sT4}, s{sbase}, {W2T + ks*2048}']
            g.append(f'buffer_load_dwordx4 {ar(ks*8)}, v{vz[0]}, {srd(S_WS)}, s{sT4} offen sc1')
            L += [g, f'buffer_load_dwordx4 {ar(ks*8+4)}, v{vz[1]}, {srd(S_WS)}, s{sT4} offen sc1']
        return L

    def lane_consts(self):
        p = self.p
        t0, t1 = vT + 6, vT + 7
        p(f'v_add_u32 v{vA1}, 57344, v{vL16}')
        p(f'v_and_b32 v{vSTA}, 31, v{vL}')
        p(f'v_lshlrev_b32 v{vSTA}, 3, v{vSTA}')
        p(f'v_lshrrev_b32 v{t0}, 5, v{vL}')
        p(f'v_mul_u32_u24 v{t1}, {7*256}, v{t0}')
        p(f'v_add_u32 v{vSTA}, v{vSTA}, v{t1}')
        p(f'v_lshrrev_b32 v{vFLG}, 2, v{vL}')
        p(f'v_lshlrev_b32 v{vFLG}, 7, v{vFLG}')
        p(f'v_and_b32 v{t1}, 3, v{vL}')
        p(f'v_lshl_add_u32 v{vFLG}, v{t1}, 3, v{vFLG}')
        for x in range(1, 4):
            p(f's_xor_b32 s{sT0}, s{sW}, {x}')
            p(f's_mul_i32 s{sT0}, s{sT0}, 12288')
            p(f's_add_u32 s{sT0}, s{sT0}, {LKV + (x-1)*4096}')
            p(f'v_add_u32 v{vRW+x-1}, s{sT0}, v{vL16}')
        p(f's_mul_i32 s{sT0}, s{sW}, 12288')
        p(f's_add_u32 s{sT0}, s{sT0}, {LKV}')
        p(f'v_add_u32 v{vRW+3}, s{sT0}, v{vL16}')
        p(f'v_bfe_u32 v{vX1A}, v{vL}, 4, 1')
        p(f'v_lshlrev_b32 v{vX1A}, 10, v{vX1A}')
        p(f'v_lshl_add_u32 v{vX1A}, v{t0}, 8, v{vX1A}')
        p(f'v_and_b32 v{t1}, 15, v{vL}')
        p(f'v_lshl_add_u32 v{vX1A}, v{t1}, 4, v{vX1A}')

    def pad(self):
        p = self.p
        k = len(self.pads)
        self.pads.append(f'L_pad{k}')
        p(f's_branch L_padskip{k}')
        p.label(f'L_pad{k}')
        p('s_setpc_b64 s[98:99]')
        p.label(f'L_padskip{k}')

    def emit_walker(self):
        L = []
        labs = [f'L_walk{w}' for w in range(4)]
        for w in range(1, 4):
            L += [Ins(f's_cmp_eq_u32 s{sW}, {w}'), Ins(f's_cbranch_scc1 {labs[w]}')]
        for w in range(4):
            if w:
                L.append(Label(labs[w]))
            for x in self.pads[w::4]:
                L.append(Ins(f's_call_b64 s[98:99], {x}'))
            if w < 3:
                L.append(Ins('s_branch L_walkend'))
        L.append(Label('L_walkend'))
        self.p.items[self.walker_at:self.walker_at] = L

    def rawq(self, tau, i):
        return (self.dma(S_WQ, self.vDQ, sRQ, (448, 896, 0)[tau] * 2 + i * 16 * 2688, (sLQ, tau * 28672 + i * 1024), f'rq{tau}{i}'))

    def xform(self, tau, R, vcs, vones, between=None):
        p = self.p

        def fin(i):
            p(f'ds_write_b128 v{self.vWQ}, {vr(R+4*i)} offset:{tau*28672+i*1024}')
            for q in range(4):
                p(f'v_dot2_f32_bf16 v{vcs}, v{R+4*i+q}, v{vones}, {f"v{vcs}" if i or q else 0}')
        for i in range(7):
            p.wait(f'rq{tau}{i}')
            for jj in range(2):
                p(f'ds_read_b64_tr_b16 {vr(R+4*i+2*jj,2)}, v{self.vTQ} offset:{tau*28672+i*1024+jj*512}')
            if between:
                between(i)
            if i >= 1:
                fin(i - 1)
        fin(6)

    def cs_partial(self, taus, vcs, t2, t3):
        p = self.p
        for k, tau in enumerate(taus):
            p(f'v_mov_b32 v{t2}, v{vcs+k}')
            p(f'v_permlane32_swap_b32 v{vcs+k}, v{t2}')
            p(f'v_add_f32 v{vcs+k}, v{vcs+k}, v{t2}')
        p(f'v_and_b32 v{t2}, 31, v{vL}')
        p(f'v_lshlrev_b32 v{t2}, 2, v{t2}')
        p(f's_mul_i32 s{sT0}, s{sW}, 384')
        p(f's_add_u32 s{sT0}, s{sT0}, {L_CSP}')
        p(f'v_add_u32 v{t3}, s{sT0}, v{t2}')
        for k, tau in enumerate(taus):
            p(f'ds_write_b32 v{t3}, v{vcs+k} offset:{tau*128}')

    def cs_sum(self, taus, R, t2, t3):
        p = self.p
        p(f'v_add_u32 v{t3}, {L_CSP}, v{t2}')
        for k, tau in enumerate(taus):
            for w in range(4):
                p(f'ds_read_b32 v{R+4*k+w}, v{t3} offset:{w*384+tau*128}')
        p(f'v_add_u32 v{t3}, {L_CSQ}, v{t2}')
        for k, tau in enumerate(taus):
            r = R + 4 * k
            p(f'v_add_f32 v{r}, v{r}, v{r+1}')
            p(f'v_add_f32 v{r+2}, v{r+2}, v{r+3}')
            p(f'v_add_f32 v{r}, v{r}, v{r+2}')
            p(f'ds_write_b32 v{t3}, v{r} offset:{tau*128}')
        p('s_waitcnt lgkmcnt(0)')

    def prologue(self):
        p = self.p
        t0, t1, t2, t3 = vT, vT + 1, vT + 2, vT + 3
        self.vDQ, self.vTQ, self.vWQ = vDQ, vTQ, vWQ = vT + 10, vT + 11, vT + 12
        p('s_cmp_ge_u32 s2, 256')
        p('s_cbranch_scc1 L_end')
        p(f's_load_dwordx16 s[{sO}:{sO+15}], s[0:1], 0')
        p(f's_load_dwordx2 s[{S_WSP}:{S_WSP+1}], s[0:1], 64')
        p(f's_getpc_b64 s[{sT0}:{sT0+1}]')
        p.label('L_pc')
        p(f'v_lshlrev_b32 v{t2}, 7, v0')
        p(f'global_load_dword a255, v{t2}, s[{sT0}:{sT0+1}]')
        p(f'v_add_u32 v{t2}, 0x8000, v{t2}')
        p(f'v_min_u32 v{t2}, L_codeend-L_pc, v{t2}')
        p(f'global_load_dword a255, v{t2}, s[{sT0}:{sT0+1}]')
        if os.environ.get('CALIB'):
            p('s_memrealtime s[100:101]')
        self.stamp('start')
        p(f'v_lshrrev_b32 v{vT}, 6, v0')
        p(f'v_and_b32 v{vL}, 63, v0')
        p(f'v_readfirstlane_b32 s{sW}, v{vT}')
        p(f's_lshr_b32 s{sM}, s2, 3')
        p(f's_and_b32 s{sTEAM}, s2, 7')
        p(f's_mul_i32 s{sRB}, s{sM}, 37')
        p(f's_lshr_b32 s{sRB}, s{sRB}, 8')
        p(f's_mul_i32 s{sT0}, s{sRB}, 7')
        p(f's_sub_u32 s{sCB}, s{sM}, s{sT0}')
        p(f's_lshr_b32 s{sRHO}, s{sW}, 1')
        p(f's_and_b32 s{sNU}, s{sW}, 1')
        p(f's_lshl_b32 s{sT0}, s{sTEAM}, 2')
        p(f's_add_u32 s{sT0}, s{sT0}, s{sRB}')
        p(f's_lshl_b32 s{sT1}, s{sT0}, 1')
        p(f's_add_u32 s{sT1}, s{sT1}, s{sRHO}')
        p(f's_mul_i32 s{sQOFF}, s{sT1}, {32*896}')
        p(f's_lshl_b32 s{sT1}, s{sCB}, 7')
        p(f's_add_u32 s{sQOFF}, s{sQOFF}, s{sT1}')
        p(f's_lshl_b32 s{sT1}, s{sNU}, 6')
        p(f's_add_u32 s{sQOFF}, s{sQOFF}, s{sT1}')
        vPK, vPQ, vH = vT + 14, vT + 15, vT + 13
        p(f'v_and_b32 v{t3}, 31, v{vL}')
        p(f'v_mul_u32_u24 v{t3}, 896, v{t3}')
        p(f'v_lshrrev_b32 v{vH}, 5, v{vL}')
        p(f'v_lshl_add_u32 v{t3}, v{vH}, 3, v{t3}')
        p(f's_lshl_b32 s{sT2}, s{sM}, 2')
        p(f's_add_u32 s{sT2}, s{sT2}, s{sW}')
        p(f's_mul_i32 s{sT3}, s{sT2}, 49')
        p(f'v_add_u32 v{t2}, s{sT3}, v{vL}')
        p(f'v_mul_u32_u24 v{vPK}, 74899, v{t2}')
        p(f'v_lshrrev_b32 v{vPK}, 20, v{vPK}')
        p(f'v_mul_u32_u24 v{vPK}, 7, v{vPK}')
        p(f'v_add_u32 v{vPK}, v{vPK}, v{t2}')
        p(f'v_lshlrev_b32 v{vPK}, 7, v{vPK}')
        b = sO

        def mksrd(d, src, n):
            p(f's_mov_b32 s{d}, s{src}')
            p(f's_and_b32 s{d+1}, s{src+1}, 0xffff')
            p(f's_mov_b32 s{d+2}, {n}')
            p(f's_mov_b32 s{d+3}, 0x20000')
        mksrd(S_X, b, 1835008)
        mksrd(S_WQ, b + 2, 1204224)
        XR = 96
        for q in range(4):
            p(f'buffer_load_dwordx2 {vr(XR+2*q,2)}, v{t3}, {srd(S_X)}, s{sQOFF} offen offset:{16*q}')
        p('s_mov_b32 exec_hi, 0x1ffff')
        p(f'buffer_load_dword a255, v{vPK}, {srd(S_WQ)}, 0 offen offset:896')
        p('s_mov_b64 exec, -1')
        p(f's_load_dwordx2 s[{sF}:{sF+1}], s[{S_WSP}:{S_WSP+1}], {WS_EPOCH}')
        for (d, src, n) in ((S_WO, b + 4, 401408), (S_W1, b + 8, 1605632),
                            (S_W2, b + 10, 1605632), (S_OUT, b + 12, 1835008), (S_WS, S_WSP, WS_BYTES)):
            mksrd(d, src, n)
        p(f's_mul_i32 s{sT3}, s{sT2}, 25')
        p(f'v_add_u32 v{t2}, s{sT3}, v{vL}')
        p(f'v_mul_u32_u24 v{vPQ}, 149797, v{t2}')
        p(f'v_lshrrev_b32 v{vPQ}, 20, v{vPQ}')
        p(f'v_mul_u32_u24 v{vPQ}, 14, v{vPQ}')
        p(f'v_add_u32 v{vPQ}, v{vPQ}, v{t2}')
        p(f'v_lshlrev_b32 v{vPQ}, 7, v{vPQ}')
        p(f's_and_b32 s{sJ}, s{sM}, 15')
        p(f's_lshr_b32 s{sA}, s{sM}, 4')
        p(f'v_lshrrev_b32 v{t0}, 2, v{vL}')
        p(f'v_and_b32 v{t1}, 3, v{vL}')
        p(f'v_lshlrev_b32 v{t3}, 3, v{t1}')
        p(f'v_lshlrev_b32 v{t1}, 4, v{t1}')
        self.stamp('ka')
        sI, sSTG = sO, sO + 1
        sFL, sDST, sJOB, sDST2 = sJFL, sO + 3, sO + 4, sO + 5

        p(f's_mul_i32 s{sLB}, s{sTEAM}, {STRIDE}')
        p(f's_add_u32 s{sLB}, s{sLB}, {TEAM0}')
        p(f's_mov_b32 s{sTB}, s{sLB}')
        p(f'v_lshlrev_b32 v{vL16}, 4, v{vL}')
        p(f'v_lshlrev_b32 v{vL8}, 3, v{vL}')
        p(f's_mov_b32 s{sONES}, 0x3f803f80')
        p(f's_mov_b32 s{sPURE}, 1')
        p(f's_mov_b64 s[{sIMP}:{sIMP+1}], 0')
        p.ext(self.pub_offsets(O_XA, O_STA, O_FXA))
        vD, vTR, vTR8 = vT + 4, vT + 5, vT + 13
        FR = 32
        p(f's_lshl_b32 s{sI}, s{sTEAM}, 1')
        p(f's_add_u32 s{sI}, s{sI}, s{sA}')
        p(f's_lshl_b32 s{sSTG}, s{sW}, 13')
        p(f's_add_u32 s{sSTG}, s{sSTG}, {LKV}')
        lA = [p.newlabel('jobA') for _ in range(4)]
        p(f's_mov_b32 s{sJOB}, 0')
        p.mark('maybe_begin')
        p(f's_cmp_ge_u32 s{sW}, 2')
        p(f's_cbranch_scc1 {lA[0]}')
        p(f's_cmp_eq_u32 s{sW}, 0')
        p(f's_cbranch_scc1 {lA[2]}')
        p(f's_cmp_ge_u32 s{sI}, 14')
        p(f's_cbranch_scc1 {lA[2]}')
        p(f'v_bfe_u32 v{vD}, v{vL}, 1, 3')
        p(f'v_bfe_u32 v{t2}, v{vL}, 4, 1')
        p(f'v_lshl_add_u32 v{vD}, v{t2}, 4, v{vD}')
        p(f'v_bfe_u32 v{t2}, v{vL}, 5, 1')
        p(f'v_lshl_add_u32 v{vD}, v{t2}, 3, v{vD}')
        p(f'v_mul_u32_u24 v{vD}, 3584, v{vD}')
        p(f'v_and_b32 v{t2}, 1, v{vL}')
        p(f'v_lshl_add_u32 v{vD}, v{t2}, 4, v{vD}')
        p(f's_mul_i32 s{sT0}, s{sI}, {32*3584}')
        p(f's_mul_i32 s{sT1}, s{sJ}, 224')
        p(f's_add_u32 s{sT0}, s{sT0}, s{sT1}')
        for t in range(7):
            p.ext(self.dma(S_W1, vD, sT0, t * 32, (sSTG, t * 1024), 'raw'))
        p(f's_mov_b32 s{sJOB}, 2')
        p('s_waitcnt vmcnt(8)')
        p(f's_branch {lA[3]}')
        p.label(lA[0])
        p(f'v_mul_u32_u24 v{vD}, 896, v{t0}')
        p(f'v_add_u32 v{vD}, v{vD}, v{t1}')
        p(f's_cmp_ge_u32 s{sM}, 28')
        p(f's_cbranch_scc1 {lA[1]}')
        sI2, sSL, sHF = sT2, sT3, sT4
        p(f's_lshl_b32 s{sI2}, s{sTEAM}, 2')
        p(f's_add_u32 s{sI2}, s{sI2}, s{sRB}')
        p(f's_lshr_b32 s{sSL}, s{sI2}, 1')
        p(f's_and_b32 s{sHF}, s{sI2}, 1')
        p(f's_mul_i32 s{sT0}, s{sSL}, {112*896}')
        p(f's_mul_i32 s{sT1}, s{sHF}, {64*896}')
        p(f's_add_u32 s{sT0}, s{sT0}, s{sT1}')
        p(f's_lshl_b32 s{sT1}, s{sCB}, 7')
        p(f's_add_u32 s{sT0}, s{sT0}, s{sT1}')
        p(f's_lshl_b32 s{sT1}, s{sNU}, 6')
        p(f's_add_u32 s{sT0}, s{sT0}, s{sT1}')
        for k in range(4):
            p.ext(self.dma(S_W2, vD, sT0, k * 16 * 896, (sSTG, k * 1024), 'raw'))
        p(f's_add_u32 s{sJOB}, s{sHF}, 3')
        p('s_waitcnt vmcnt(5)')
        p(f's_branch {lA[3]}')
        p.label(lA[1])
        p(f's_cmp_eq_u32 s{sTEAM}, 7')
        p(f's_cbranch_scc1 {lA[2]}')
        p(f's_mul_i32 s{sT0}, s{sCB}, {112*896}')
        p(f's_lshl_b32 s{sT1}, s{sTEAM}, 7')
        p(f's_add_u32 s{sT0}, s{sT0}, s{sT1}')
        p(f's_lshl_b32 s{sT1}, s{sNU}, 6')
        p(f's_add_u32 s{sT0}, s{sT0}, s{sT1}')
        for k in range(8):
            p.ext(self.dma(S_WO, vD, sT0, k * 16 * 896, (sSTG, k * 1024), 'raw'))
        p(f's_mov_b32 s{sJOB}, 5')
        p.label(lA[2])
        p('s_waitcnt vmcnt(1)')
        p.mark('maybe_end')
        p.label(lA[3])
        self.stamp('jA')
        lp0 = p.newlabel('p0skip')
        p(f's_cmp_ge_u32 s{sM}, 28')
        p(f's_cselect_b32 s{sXF}, -1, s{sXF}')
        p(f's_cbranch_scc1 {lp0}')
        p.mark('drained_vm')
        self.x_store(XR, vL16, (0, 1024), 'sc1')
        p.label(lp0)
        p('s_mov_b64 exec, 0x1ffffff')
        p(f'buffer_load_dword a255, v{vPQ}, {srd(S_WQ)}, 0 offen')
        p('s_mov_b64 exec, -1')
        self.stamp('x0')
        p(f'v_mul_u32_u24 v{vDQ}, 2688, v{t0}')
        p(f'v_add_u32 v{vDQ}, v{vDQ}, v{t1}')
        p(f's_mul_i32 s{sRQ}, s{sW}, {7*16*2688}')
        p(f's_mul_i32 s{sT1}, s{sJ}, 56')
        p(f's_add_u32 s{sRQ}, s{sRQ}, s{sT1}')
        p(f's_mul_i32 s{sLQ}, s{sW}, 7168')
        p(f'v_bfe_u32 v{t2}, v{vL}, 4, 1')
        p(f'v_lshl_add_u32 v{t2}, v{t2}, 5, v{t3}')
        p(f'v_bfe_u32 v{vTR}, v{vL}, 2, 2')
        p(f'v_lshl_add_u32 v{t2}, v{vTR}, 6, v{t2}')
        p(f'v_lshl_add_u32 v{vTQ}, v{vH}, 8, v{t2}')
        p(f'v_add_u32 v{vTR}, s{sSTG}, v{vTQ}')
        p(f'v_add_u32 v{t2}, s{sSTG}, v{t2}')
        p(f'v_lshl_add_u32 v{vTR8}, v{vH}, 9, v{t2}')
        p(f'v_add_u32 v{vTQ}, s{sLQ}, v{vTQ}')
        p(f'v_add_u32 v{vWQ}, s{sLQ}, v{vL16}')
        p(f's_mov_b32 s{sPERM}, 0x07060302')
        p(f's_lshl_b32 s{sTP}, s{sA}, 2')
        p(f's_add_u32 s{sTP}, s{sTP}, s{sW}')
        self.lane_consts()
        vCSP = 104
        p(f'v_mov_b32 v{vCSP+3}, s{sONES}')
        p.ext(self.res_unpack(XR))
        p('s_waitcnt lgkmcnt(0)')
        p(f's_add_u32 s{sF}, s{sF}, 1')
        p(f's_addc_u32 s{sF+1}, s{sF+1}, 0')
        p(f'v_mov_b32 v{vF}, s{sF}')
        p(f'v_mov_b32 v{vF+1}, s{sF+1}')
        self.walker_at = len(p.items)
        self.stamp('wk')
        p('s_waitcnt vmcnt(1)')
        p.mark('drained_vm')
        self.stamp('rt1')
        for i in range(4):
            p.ext(self.rawq(0, i))
        self.flag_opt(sXF)

        def finish(nfr, offs):
            L = []
            base = None
            for k in range(nfr):
                hi, lo = offs[k] // 4096 * 4096, offs[k] % 4096
                if hi != base:
                    L.append(f's_add_u32 s{sT5}, s{sDST}, {hi}')
                    base = hi
                L.append(f'buffer_store_dwordx4 {vr(FR+4*k)}, v{vL16}, {srd(S_WS)}, s{sT5} offen offset:{lo} sc1')
            return L
        lB = {k: p.newlabel('jobB') for k in (3, 4, 5, 'join')}
        p(f's_mov_b32 s{sFL}, -1')
        p.mark('maybe_begin')
        p(f's_cmp_eq_u32 s{sJOB}, 0')
        p(f's_cbranch_scc1 {lB["join"]}')
        p(f's_cmp_eq_u32 s{sJOB}, 5')
        p(f's_cbranch_scc1 {lB[5]}')
        p(f's_cmp_ge_u32 s{sJOB}, 3')
        p(f's_cbranch_scc1 {lB[3]}')
        p(f'v_lshl_add_u32 v{vTR}, v{t0}, 5, v{t3}')
        p(f'v_add_u32 v{vTR}, s{sSTG}, v{vTR}')
        for t in range(7):
            for jj in range(2):
                p(f'ds_read_b64_tr_b16 {vr(FR+t*4+2*jj,2)}, v{vTR} offset:{t*1024+jj*512}')
        p(f's_mul_i32 s{sDST}, s{sJ}, 100352')
        p(f's_add_u32 s{sDST}, s{sDST}, {W1T}')
        p(f's_mul_i32 s{sDST2}, s{sI}, 3072')
        p(f's_add_u32 s{sDST2}, s{sDST2}, s{sDST}')
        p(f's_add_u32 s{sDST2}, s{sDST2}, 57344')
        p(f's_lshl_b32 s{sT0}, s{sI}, 12')
        p(f's_add_u32 s{sDST}, s{sDST}, s{sT0}')
        p(f's_lshl_b32 s{sFL}, s{sJ}, 4')
        p(f's_add_u32 s{sFL}, s{sFL}, s{sI}')
        p(f's_lshl_b32 s{sFL}, s{sFL}, 3')
        p(f's_add_u32 s{sFL}, s{sFL}, {F_W1}')
        p.ext(finish(4, [t * 1024 for t in range(4)]))
        for t in range(4, 7):
            p(f'buffer_store_dwordx4 {vr(FR+4*t)}, v{vL16}, {srd(S_WS)}, s{sDST2} offen offset:{(t-4)*1024} sc1')
        p(f's_branch {lB["join"]}')
        p.label(lB[3])
        for sg in range(2):
            for jj in range(2):
                p(f'ds_read_b64_tr_b16 {vr(FR+sg*4+2*jj,2)}, v{vTR} offset:{(16*jj+8*sg)*64}')
        p(f's_lshl_b32 s{sI2}, s{sTEAM}, 2')
        p(f's_add_u32 s{sI2}, s{sI2}, s{sRB}')
        p(f's_lshr_b32 s{sSL}, s{sI2}, 1')
        p(f's_and_b32 s{sHF}, s{sI2}, 1')
        p(f's_mul_i32 s{sDST}, s{sCB}, 229376')
        p(f's_mul_i32 s{sT0}, s{sSL}, 14336')
        p(f's_add_u32 s{sDST}, s{sDST}, s{sT0}')
        p(f's_lshl_b32 s{sT0}, s{sHF}, 13')
        p(f's_add_u32 s{sDST}, s{sDST}, s{sT0}')
        p(f's_lshl_b32 s{sT0}, s{sNU}, 10')
        p(f's_add_u32 s{sDST}, s{sDST}, s{sT0}')
        p(f's_add_u32 s{sDST}, s{sDST}, {W2T}')
        p(f's_lshl_b32 s{sFL}, s{sCB}, 5')
        p(f's_add_u32 s{sFL}, s{sFL}, s{sI2}')
        p(f's_lshl_b32 s{sFL}, s{sFL}, 1')
        p(f's_add_u32 s{sFL}, s{sFL}, s{sNU}')
        p(f's_lshl_b32 s{sFL}, s{sFL}, 3')
        p(f's_add_u32 s{sFL}, s{sFL}, {F_W2}')
        p(f's_cmp_eq_u32 s{sJOB}, 4')
        p(f's_cbranch_scc1 {lB[4]}')
        for sg in range(2, 4):
            for jj in range(2):
                p(f'ds_read_b64_tr_b16 {vr(FR+sg*4+2*jj,2)}, v{vTR} offset:{(32+16*jj+8*(sg%2))*64}')
        p.ext(finish(4, [k * 2048 for k in range(4)]))
        p(f's_branch {lB["join"]}')
        p.label(lB[4])
        for jj in range(2):
            p(f'ds_read_b64_tr_b16 {vr(FR+8+2*jj,2)}, v{vTR8} offset:{(32+4*jj)*64}')
        p('s_waitcnt lgkmcnt(0)')
        p.ext(finish(3, [k * 2048 for k in range(3)]))
        p(f's_branch {lB["join"]}')
        p.label(lB[5])
        for hd in range(4):
            for kp in range(2):
                for jj in range(2):
                    p(f'ds_read_b64_tr_b16 {vr(FR+(hd*2+kp)*4+2*jj,2)}, v{vTR} offset:{(28*hd+16*kp+8*jj)*64}')
        p(f's_lshl_b32 s{sFL}, s{sTEAM}, 2')
        p(f's_add_u32 s{sFL}, s{sFL}, s{sCB}')
        p(f's_lshl_b32 s{sDST}, s{sFL}, 14')
        p(f's_lshl_b32 s{sT0}, s{sNU}, 10')
        p(f's_add_u32 s{sDST}, s{sDST}, s{sT0}')
        p(f's_add_u32 s{sDST}, s{sDST}, {WOT}')
        p(f's_lshl_b32 s{sFL}, s{sFL}, 1')
        p(f's_add_u32 s{sFL}, s{sFL}, s{sNU}')
        p(f's_lshl_b32 s{sFL}, s{sFL}, 3')
        p(f's_add_u32 s{sFL}, s{sFL}, {F_WO}')
        p('s_waitcnt lgkmcnt(0)')
        p('s_mov_b32 exec_lo, 0')
        for hd in range(4):
            p(f'v_mov_b32 v{FR+(hd*2+1)*4+2}, 0')
            p(f'v_mov_b32 v{FR+(hd*2+1)*4+3}, 0')
        p('s_mov_b64 exec, -1')
        p.ext(finish(8, [k * 2048 for k in range(8)]))
        p.mark('maybe_end')
        p.label(lB['join'])
        p(f's_getreg_b32 s{sT0}, hwreg(HW_REG_XCC_ID)')
        p(f's_and_b32 s{sT0}, s{sT0}, 15')
        p(f's_lshl_b32 s{sT0}, s{sT0}, 28')
        p(f's_xor_b32 s{sT0}, s{sT0}, s{sF+1}')
        p(f'v_mov_b32 v{t2}, s{sF}')
        p(f'v_mov_b32 v{t3}, s{sT0}')
        p(f's_lshl_b32 s{sT1}, s{sTEAM}, 8')
        p(f's_lshl_b32 s{sT2}, s{sM}, 3')
        p(f's_add_u32 s{sT1}, s{sT1}, s{sT2}')
        p(f's_add_u32 s{sT1}, s{sT1}, {WS_PUR}')
        lx = p.newlabel('noxcc')
        p(f's_cmp_lg_u32 s{sW}, 0')
        p(f's_cbranch_scc1 {lx}')
        p.mark('maybe_begin')
        p('s_mov_b64 exec, 1')
        p(f'buffer_store_dwordx2 {vr(t2,2)}, off, {srd(S_WS)}, s{sT1} sc1')
        p('s_mov_b64 exec, -1')
        p.mark('maybe_end')
        p.label(lx)
        self.stamp('jB')
        for i in range(4, 7):
            p.ext(self.rawq(0, i))
        for i in range(7):
            p.ext(self.rawq(1, i))
        self.xform(0, 128, vCSP, vCSP + 3)
        self.flag_opt(sFL)
        self.stamp('xf0')
        self.xform(1, 160, vCSP + 1, vCSP + 3)
        self.cs_partial((0, 1), vCSP, t2, t3)
        p('s_waitcnt lgkmcnt(0)')
        p('s_barrier')
        self.stamp('bar')
        self.cs_sum((0, 1), 108, t2, t3)
        self.stamp('pro')

    def wqt_publish(self, R):
        p = self.p
        l = p.newlabel('nowqt')
        p(f's_lshl_b32 s{sT0}, s{sTEAM}, 1')
        p(f's_add_u32 s{sT0}, s{sT0}, s{sA}')
        p(f's_cmp_ge_u32 s{sT0}, 14')
        p(f's_cbranch_scc1 {l}')
        p(f's_cmp_lg_u32 s{sW}, 0')
        p(f's_cbranch_scc1 {l}')
        p.mark('maybe_begin')
        p(f's_lshl_b32 s{sT1}, s{sT0}, 11')
        p(f'v_add_u32 v{R+24}, s{sT1}, v{vL16}')
        for tau in range(2):
            for kp in range(2):
                p(f'ds_read_b128 {vr(R+(tau*2+kp)*4)}, v{R+24} offset:{tau*28672+kp*1024}')
        p(f's_mul_i32 s{sT2}, s{sJ}, 86016')
        p(f's_add_u32 s{sT1}, s{sT1}, s{sT2}')
        for tau in range(2):
            p(f's_add_u32 s{sT2}, s{sT1}, {WQT + tau*28672}')
            for kp in range(2):
                p(f'buffer_store_dwordx4 {vr(R+(tau*2+kp)*4)}, v{vL16}, {srd(S_WS)}, s{sT2} offen offset:{kp*1024} sc1')
        p(f's_lshl_b32 s{sJFL}, s{sJ}, 4')
        p(f's_add_u32 s{sJFL}, s{sJFL}, s{sT0}')
        p(f's_lshl_b32 s{sJFL}, s{sJFL}, 3')
        p(f's_add_u32 s{sJFL}, s{sJFL}, {F_WQ}')
        p.mark('maybe_end')
        p.label(l)

    def p1(self):
        p, L0 = self.p, self.L == 0
        X, ACC, RING, CS = 32, 144, 192, 224
        accK, accV, accQ = ACC, ACC + 16, ACC + 32
        PK, PV = vT, vT + 8
        sXO, sST, sFX, sKV, sKF = sO, sO + 7, sO + 8, sO + 9, sO + 10
        p.ext(self.xoff(sXO, sTP, 28672, O_XA))
        for g in range(1, 7):
            p(f's_add_u32 s{sXO+g}, s{sXO}, {4096*g}')
        p.ext(self.off(sST, sTP, 3584, O_STA))
        p.ext(self.off(sFX, sTP, 128, O_FXA))
        p(f's_lshl_b32 s{sT0}, s{sJ}, 3')
        p(f's_add_u32 s{sT0}, s{sT0}, s{sTP}')
        p.ext(self.off(sKV, sT0, 4096, O_KV))
        p.ext(self.off(sKF, sT0, 128, O_FKV))
        p(f'v_lshrrev_b32 v{vCSA}, 5, v{vL}')
        p(f'v_lshlrev_b32 v{vCSA}, 4, v{vCSA}')
        p(f'v_add_u32 v{vCSA}, {L_CSQ}, v{vCSA}')
        sW2E, sW2F = sO + 11, sO + 12
        vQ = 238
        if L0:
            self.vDQ, self.vTQ, self.vWQ = vQ, 225, 226
            p.ext([f'v_lshrrev_b32 v{vQ}, 2, v{vL}', f'v_mul_u32_u24 v{vQ}, 2688, v{vQ}', f'v_and_b32 v{vQ+1}, 3, v{vL}',
                   f'v_lshl_add_u32 v{vQ}, v{vQ+1}, 4, v{vQ}', f'v_lshlrev_b32 v{vQ+1}, 7, v{vL}'])
            p.ext([f's_min_u32 s{sT1}, s{sRB}, 3', f's_lshl_b32 s{sT0}, s{sW}, 2', f's_add_u32 s{sT0}, s{sT0}, s{sT1}',
                   f's_mul_i32 s{sW2E}, s{sT0}, 14336', f's_mul_i32 s{sT1}, s{sCB}, 229376', f's_add_u32 s{sW2E}, s{sW2E}, s{sT1}',
                   f's_lshl_b32 s{sT0}, s{sT0}, 5', f's_lshl_b32 s{sT1}, s{sCB}, 9', f's_add_u32 s{sT0}, s{sT0}, s{sT1}',
                   f's_add_u32 s{sW2F}, s{sT0}, {F_W2}'])

        def frag(f):
            if f < 56:
                base, off = vL16, (f % 2) * 28672 + (f // 2) * 1024
            else:
                base, off = vA1, (f - 56) * 1024
            return f'ds_read_b128 {vr(RING + 4*(f % 8))}, v{base} offset:{off}'

        def mf(f):
            acc, s = ((accK, accV)[f % 2], f // 2) if f < 56 else (accQ, f - 56)
            return f'{MF32} {vr(acc,16)}, {vr(RING+4*(f%8))}, {vr(X+4*s)}, {vr(acc,16) if s else 0}'

        def xl(s):
            return f'buffer_load_dwordx4 {vr(X+4*s)}, v{vL16}, {srd(S_WS)}, s{sXO + s//4} offen offset:{(s%4)*1024} sc1'
        PD = 6
        for f in range(PD):
            p(frag(f))
        self.stamp('p5')
        self.pad()
        self.vpoll(vL8, f's{sFX}', 14, acquire=not L0)
        self.stamp('E')
        XP = 8
        for s in range(XP):
            p(xl(s))
        mem, pre = {}, {}
        for f in range(84):
            mem[f] = []
            if f + PD < 84 and not (f < 56 <= f + PD):
                mem[f].append(frag(f + PD))
            if f < 56 and f % 2 == 0 and f // 2 + XP < 28:
                mem[f].append(xl(f // 2 + XP))
            if 27 <= f < 41 and f % 2 == 1:
                mem[f].append(self.stats_loads(sST, CS)[(f - 27) // 2])
            if f % 2 == 0:
                pre[f] = [Touch(vr(RING + 4 * (f % 8)) + ' ' + vr(RING + 4 * ((f + 1) % 8)) + (' ' + vr(X + 4 * (f // 2)) if f < 56 else ''))]
        if L0:
            for i in range(7):
                mem[40 + 2 * i].append(self.rawq(2, i))
            lno = p.newlabel('now2')
            mem[25] += self.peek_issue(vL8, f's{sW2F}', 2)
            mem[54].append([Touch(vr(vT + 14, 2)), 's_mov_b64 exec, 3', f'v_cmp_ne_u64 vcc, s[{sF}:{sF+1}], {vr(vT + 14, 2)}',
                            's_mov_b64 exec, -1', f's_cbranch_vccnz {lno}', Mark('maybe_begin')] +
                           self.touch(vQ + 1, sW2E, W2T, 64) + [Mark('maybe_end'), Label(lno)])
        else:
            p(f's_mul_i32 s{sT0}, s{sW}, 7168')
            p(f'v_add_u32 v{vQ}, s{sT0}, v{vA1}')
            for i in range(7):
                mem[3 + 4 * i].append(Ins(f'ds_write_b128 v{vQ}, {ar(224 + 4*i)} offset:{1024*i}', 'wq'))

        def cs_reads(tau, dst):
            return [f'ds_read_b128 {vr(dst+4*q)}, v{vCSA} offset:{tau*128 + 32*q}' for q in range(4)]
        p.ext(sched([mf(f) for f in range(56)], pre, mem, cs_reads(1, accQ) + self.stats_reduce(CS), 6, start=43))
        p.ext(cs_reads(0, PK))
        self.stamp('kv')

        def epi(acc, cs, P):
            L = []
            for r in range(0, 16, 2):
                L.append(f'v_pk_fma_f32 {vr(acc+r,2)}, {vr(cs+r,2)}, {vr(vMEAN,2)}, {vr(acc+r,2)} op_sel:[0,0,0] op_sel_hi:[1,0,1]')
            for r in range(0, 16, 2):
                L.append(f'v_pk_mul_f32 {vr(acc+r,2)}, {vr(acc+r,2)}, {vr(vMEAN,2)} op_sel:[0,1] op_sel_hi:[1,1]')
                L.append(f'v_cvt_pk_bf16_f32 v{P+r//2}, v{acc+r}, v{acc+r+1}')
            return L

        def pad(P, c6, c7):
            return ['s_mov_b32 exec_lo, 0', f'v_mov_b32 v{P+6}, {c6:#x}', f'v_mov_b32 v{P+7}, {c7:#x}', 's_mov_b64 exec, -1']

        def st(P, o):
            return [Ins(f'buffer_store_dwordx4 {vr(P+4*k)}, v{vL16}, {srd(S_WS)}, s{sKV} offen offset:{o+1024*k} sc1', 'kvst') for k in range(2)]
        t0, t1 = CS, CS + 1
        p.ext(epi(accK, PK, PK) + pad(PK, 0x3f803f80, 0x3f80) + st(PK, 0))
        p.ext(epi(accV, accQ, PV) + pad(PV, 0x3f80, 0) + st(PV, 2048))
        self.stamp('kvs')
        if L0:
            R = ACC
            vcs, vones, t2, t3 = R + 28, R + 29, R + 30, R + 31
            p.ext([f'v_and_b32 v225, 3, v{vL}', 'v_lshlrev_b32 v225, 3, v225', f'v_bfe_u32 v226, v{vL}, 4, 1',
                   'v_lshl_add_u32 v225, v226, 5, v225', f'v_bfe_u32 v226, v{vL}, 2, 2', 'v_lshl_add_u32 v225, v226, 6, v225',
                   f'v_lshrrev_b32 v226, 5, v{vL}', 'v_lshl_add_u32 v225, v226, 8, v225', f'v_add_u32 v225, s{sLQ}, v225',
                   f'v_add_u32 v226, s{sLQ}, v{vL16}', f'v_mov_b32 v{vones}, s{sONES}'])
            self.xform(2, R, vcs, vones)
            for i in range(28):
                p(f'v_accvgpr_write_b32 a{224+i}, v{R+i}')
            self.cs_partial((2,), vcs, t2, t3)
            p('s_waitcnt lgkmcnt(0)')
            p('s_barrier')
            self.cs_sum((2,), R, t2, t3)
        else:
            p.wait('wq')
            p('s_barrier')
        for f in range(56, 56 + PD):
            p(frag(f))
        side = [f's_lshl_b32 s{sT0}, s{sW}, 12', f's_add_u32 s{sT0}, s{sT0}, {LKV + 8*4096}',
                f'v_add_u32 v{t0}, s{sT0}, v{vL16}',
                f'ds_write_b128 v{t0}, {vr(PK)}', f'ds_write_b128 v{t0}, {vr(PK+4)} offset:1024',
                f'v_and_b32 v{t1}, 31, v{vL}', f'v_lshlrev_b32 v{t1}, 6, v{t1}', f'v_lshrrev_b32 v{t0}, 5, v{vL}',
                f'v_lshl_add_u32 v{t1}, v{t0}, 4, v{t1}', f'v_add_u32 v{t0}, s{sT0}, v{t1}',
                f'ds_write_b128 v{t0}, {vr(PV)} offset:2048', f'ds_write_b128 v{t0}, {vr(PV+4)} offset:{2048+32}',
                f'v_mul_f32 v{vRSTD}, {f32bits(28 ** -0.5 * math.log2(math.e)):#x}, v{vRSTD}'] + cs_reads(2, CS) + self.kv_addr()
        pre2 = {f - 56: v for f, v in pre.items() if f >= 56}
        mem2 = {f - 56: v for f, v in mem.items() if f >= 56}
        mem2[8 if L0 else 22].append([Wait(['kvst'])] + self.flag_sc1(sKF))
        p.ext(sched([mf(f) for f in range(56, 84)], pre2, mem2, side, 6, start=0))
        self.stamp('q')
        QF = 200
        p.ext(epi(accQ, CS, QF))
        p.ext(pad(QF, 0, 0x3f800000))
        if L0:
            p(f's_mov_b32 s{sJFL}, -1')
            self.wqt_publish(32)
        self.pad()
        p('s_barrier')
        self.stamp('p1')

    sKD, sKL, sKFl, sNULL = sO + 11, sO + 13, (sO + 15, 78), 79

    def kv_addr(self):
        sKD, sKL, sKFl, sNULL = self.sKD, self.sKL, self.sKFl, self.sNULL
        L = [f's_mov_b32 s{sNULL}, 0']
        for k in range(2):
            L += [f's_lshl_b32 s{sT0}, s{sW}, 1', f's_add_u32 s{sT0}, s{sT0}, {k}',
                  f's_lshl_b32 s{sKL+k}, s{sT0}, 12', f's_add_u32 s{sKL+k}, s{sKL+k}, {LKV}',
                  f's_lshl_b32 s{sT1}, s{sA}, 2', f's_add_u32 s{sT0}, s{sT0}, s{sT1}',
                  [f's_cmp_lt_u32 s{sT0}, 8', f's_cselect_b32 s{sT1}, {STRIDE}, 0'],
                  f's_sub_u32 s{sT1}, s{sLB}, s{sT1}', f's_and_b32 s{sT0}, s{sT0}, 7',
                  [f's_cmp_lt_i32 s{sT1}, {TEAM0}', f's_cselect_b32 s{sT2}, {1 << k}, 0',
                   f's_cselect_b32 s{sT1}, s{sLB}, s{sT1}', f's_cselect_b32 s{sT0}, s{sTP}, s{sT0}'],
                  f's_or_b32 s{sNULL}, s{sNULL}, s{sT2}', f's_lshl_b32 s{sT2}, s{sJ}, 3', f's_add_u32 s{sT0}, s{sT0}, s{sT2}',
                  f's_lshl_b32 s{sKD+k}, s{sT0}, 12', f's_add_u32 s{sKD+k}, s{sKD+k}, s{sT1}',
                  f's_lshl_b32 s{sT0}, s{sT0}, 7', f's_add_u32 s{sT0}, s{sT0}, s{sT1}', f's_add_u32 s{sKFl[k]}, s{sT0}, {O_FKV}']
        return L

    def attn(self):
        p, L0 = self.p, self.L == 0
        KF, ST, MW, MD, OA, QF, PB, VF = 32, 104, 152, 168, 184, 200, 208, 224
        t0, t1 = 104, 105
        NK = 2
        sKD, sKL, sKFl, sNULL = self.sKD, self.sKL, self.sKFl, self.sNULL
        p(f'v_bfe_u32 v{t0}, v{vL}, 1, 1')
        p(f'v_lshlrev_b32 v{t0}, 10, v{t0}')
        p(f'v_and_b32 v{t1}, 1, v{vL}')
        p(f'v_lshl_add_u32 v{t0}, v{t1}, 9, v{t0}')
        p(f'v_lshrrev_b32 v{t1}, 2, v{vL}')
        p(f'v_lshl_add_u32 v{t0}, v{t1}, 4, v{t0}')
        lp, lo = p.newlabel('kvpoll'), p.newlabel('kvpollout')
        self.stamp('w1')
        p('s_waitcnt lgkmcnt(0)')
        p(f's_mov_b32 s{sCNT}, 0')
        p.label(lp)
        for k in range(NK):
            p(f's_load_dwordx2 s[{sPOLL+2*k}:{sPOLL+2*k+1}], s[{S_WSP}:{S_WSP+1}], s{sKFl[k]} glc')
        p(f's_add_u32 s{sCNT}, s{sCNT}, 1')
        p(f's_cmp_gt_u32 s{sCNT}, {POLL_MAX}')
        p(f's_cbranch_scc1 {lo}')
        p('s_waitcnt lgkmcnt(0)')
        for k in range(NK):
            p(f's_cmp_eq_u64 s[{sPOLL+2*k}:{sPOLL+2*k+1}], s[{sF}:{sF+1}]')
            p(f's_cbranch_scc0 {lp}')
        p.label(lo)
        self.stamp('kvf')
        for k in range(NK):
            lnull, lb = p.newlabel('null'), p.newlabel('nullback')
            p(f's_bitcmp1_b32 s{sNULL}, {k}')
            p(f's_cbranch_scc1 {lnull}')
            p(f's_mov_b32 m0, s{sKL+k}')
            p(f's_sub_u32 s{sT5}, s{sKD+k}, 768')
            p(f'buffer_load_dwordx4 v{vL16}, {srd(S_WS)}, s{sKD+k} offen sc1 lds')
            p(f'buffer_load_dwordx4 v{vL16}, {srd(S_WS)}, s{sKD+k} offen offset:1024 sc1 lds')
            p(f'buffer_load_dwordx4 v{t0}, {srd(S_WS)}, s{sKD+k} offen offset:2048 sc1 lds')
            p(f'buffer_load_dwordx4 v{t0}, {srd(S_WS)}, s{sT5} offen offset:3072 sc1 lds')
            p.label(lb)
            self.tail.append((lnull, [
                f'v_add_u32 v{t1}, s{sKL+k}, v{vL16}',
                'v_mov_b32 v108, 0', 'v_mov_b32 v109, 0', 'v_mov_b32 v110, 0', 'v_mov_b32 v111, 0'] +
                [f'ds_write_b128 v{t1}, v[108:111] offset:{o}' for o in (0, 2048, 3072)] +
                ['s_mov_b32 exec_lo, 0', 'v_mov_b32 v111, 0xf1490000', 's_mov_b64 exec, -1',
                 f'ds_write_b128 v{t1}, v[108:111] offset:1024', f's_branch {lb}']))
        t2, t3 = 106, 107
        p(f'v_and_b32 v{t2}, 31, v{vL}')
        p(f'v_lshrrev_b32 v{t3}, 5, v{vL}')
        p(f'v_lshlrev_b32 v{t3}, 2, v{t3}')
        p(f'v_sub_u32 v{t2}, v{t2}, v{t3}')
        p(f'v_mov_b32 v{t3}, {f32bits(-1e30):#x}')
        for r in range(0, 16, 2):
            k0, k1 = 8 * (r // 4) + r % 4, 8 * (r // 4) + r % 4 + 1
            p(f'v_cmp_le_i32 vcc, {k0}, v{t2}')
            p(f'v_cmp_le_i32 s[{sPOLL}:{sPOLL+1}], {k1}, v{t2}')
            p('s_nop 0')
            p(f'v_cndmask_b32_e64 v{MD+r}, v{t3}, 0, vcc')
            p(f'v_cndmask_b32_e64 v{MD+r+1}, v{t3}, 0, s[{sPOLL}:{sPOLL+1}]')
            p(f'v_cndmask_b32_e64 v{MW+r}, 0, v{t3}, vcc')
            p(f'v_cndmask_b32_e64 v{MW+r+1}, 0, v{t3}, s[{sPOLL}:{sPOLL+1}]')
        vKA, vVA = vT, vT + 1
        p(f's_lshl_b32 s{sT0}, s{sW}, 12')
        p(f's_add_u32 s{sT0}, s{sT0}, {LKV}')
        p(f'v_add_u32 v{vKA}, s{sT0}, v{vL16}')
        p(f'v_lshrrev_b32 v{t2}, 5, v{vL}')
        p(f'v_bfe_u32 v{t3}, v{vL}, 2, 2')
        p(f'v_lshl_add_u32 v{t2}, v{t2}, 2, v{t3}')
        p(f'v_lshlrev_b32 v{vVA}, 6, v{t2}')
        p(f'v_bfe_u32 v{t2}, v{vL}, 4, 1')
        p(f'v_lshl_add_u32 v{vVA}, v{t2}, 5, v{vVA}')
        p(f'v_and_b32 v{t2}, 1, v{vL}')
        p(f'v_lshl_add_u32 v{vVA}, v{t2}, 4, v{vVA}')
        p(f'v_bfe_u32 v{t2}, v{vL}, 1, 1')
        p(f'v_lshl_add_u32 v{vVA}, v{t2}, 3, v{vVA}')
        p(f'v_add_u32 v{vVA}, s{sT0}, v{vVA}')
        sOD, sOF, sWO = sO, sO + 1, sO + 2
        p(f's_lshl_b32 s{sT0}, s{sTP}, 4')
        p(f's_add_u32 s{sT0}, s{sT0}, s{sJ}')
        p.ext(self.roff(sOD, sT0, 2048, O_O))
        p.ext(self.off(sOF, sT0, 8, O_FO))
        p(f's_lshl_b32 s{sWO}, s{sCB}, 2')
        p(f's_add_u32 s{sWO}, s{sWO}, s{sW}')
        p(f's_lshl_b32 s{sWO}, s{sWO}, 14')
        p(f's_add_u32 s{sWO}, s{sWO}, {WOT}')
        for g in range(1, 4):
            p(f's_add_u32 s{sWO+g}, s{sWO}, {4096*g}')
        vPT = vT + 12
        p(f'v_lshlrev_b32 v{vPT}, 7, v{vL}')
        p(f'v_add_u32 v{vPT}, s{sOD}, v{vPT}')
        p(f's_lshl_b32 s{sT0}, s{sTP}, 7')
        p(f's_lshl_b32 s{sT1}, s{sRB}, 8')
        p(f's_lshl_b32 s{sT2}, s{sRHO}, 7')
        p(f's_add_u32 s{sT2}, s{sT2}, s{sT1}')
        p(f's_mul_i32 s{sT3}, s{sT2}, 28')
        p(f's_lshl_b32 s{sT4}, s{sCB}, 9')
        p(f's_add_u32 s{sT3}, s{sT3}, s{sT4}')
        p(f's_lshl_b32 s{sT4}, s{sNU}, 8')
        p(f's_add_u32 s{sT3}, s{sT3}, s{sT4}')
        for lane, (r, c) in enumerate([(sT0, O_FO), (sT1, O_FO), (sT1, O_FO + 128), (sT0, O_FX1), (sT2, O_FX1),
                                       (sT3, O_ST1), (sT3, O_ST1 + 128), (sT0, O_FH), (sT1, O_FH), (sT1, O_FH + 128),
                                       (sT0, O_FH + 1024), (sT1, O_FH + 1024), (sT1, O_FH + 1024 + 128)]):
            p(f's_add_u32 s{sT4}, s{r}, {c}')
            p(f's_add_u32 s{sT4}, s{sT4}, s{sLB}')
            p(f'v_writelane_b32 v{vPT}, s{sT4}, {16 + lane}')
        vZ = vT + 8
        p(f's_lshl_b32 s{sT0}, s{sNU}, 10')
        p(f'v_xor_b32 v{vZ}, s{sT0}, v{vL16}')
        p(f'v_xor_b32 v{vZ+1}, 1024, v{vZ}')

        def first():
            l0 = p.newlabel('first')
            p(f's_cmp_lg_u32 s{sW}, 0')
            p(f's_cbranch_scc1 {l0}')
            p.mark('maybe_begin')
            p(f's_lshl_b32 s{sT0}, s{sJ}, 7')
            p(f's_add_u32 s{sT0}, s{sT0}, {F_W1}')
            p(f's_lshl_b32 s{sT2}, s{sCB}, 6')
            p(f's_add_u32 s{sT2}, s{sT2}, {F_WO - 14*8}')
            p(f's_lshl_b32 s{sT3}, s{sTEAM}, 8')
            p(f's_add_u32 s{sT3}, s{sT3}, {WS_PUR - 32*8}')
            p(f'v_add_u32 v{t2}, s{sT0}, v{vL8}')
            p(f'v_min_u32 v{t3}, {21*8}, v{vL8}')
            p(f'v_add_u32 v{t3}, s{sT2}, v{t3}')
            p(f'v_cmp_le_u32 vcc, 14, v{vL}')
            p(f'v_cndmask_b32 v{t2}, v{t2}, v{t3}, vcc')
            p(f'v_add_u32 v{t3}, s{sT3}, v{vL8}')
            p(f'v_cmp_le_u32 vcc, 32, v{vL}')
            p(f'v_cndmask_b32 v{t2}, v{t2}, v{t3}, vcc')
            lp, lo, ls = p.newlabel('pur'), p.newlabel('purout'), p.newlabel('pursleep')
            p(f's_lshl_b32 s{sT0}, s{sCB}, 9')
            p(f's_add_u32 s{sT0}, s{sT0}, {F_W2}')
            p(f's_mov_b32 s{sCNT}, 0')
            p.label(lp)
            p(f'buffer_load_dwordx2 {vr(108,2)}, v{t2}, {srd(S_WS)}, 0 offen sc1')
            p(f'buffer_load_dwordx2 {vr(112,2)}, v{vL8}, {srd(S_WS)}, s{sT0} offen sc1')
            p(f's_add_u32 s{sCNT}, s{sCNT}, 1')
            p(f's_cmp_gt_u32 s{sCNT}, {POLL_MAX}')
            p(f's_cbranch_scc1 {lo}')
            p('s_waitcnt vmcnt(0)')
            p(f'v_xor_b32 v109, s{sF+1}, v109')
            p(f'v_xor_b32 v108, s{sF}, v108')
            p(f'v_and_b32 v110, 0x0fffffff, v109')
            p(f'v_or_b32 v108, v108, v110')
            p(f'v_cmp_ne_u32 vcc, 0, v108')
            p(f's_cbranch_vccnz {ls}')
            p(f'v_cmp_ne_u64 vcc, s[{sF}:{sF+1}], {vr(112,2)}')
            p(f's_cbranch_vccnz {ls}')
            p(f'v_readlane_b32 s{sT1}, v109, 32')
            p(f'v_cmp_ne_u32 vcc, s{sT1}, v109')
            p(f's_cmp_eq_u32 vcc_hi, 0')
            p(f's_cselect_b32 s{sT1}, {0 if os.environ.get("FORCE_IMPURE") else 1}, 0')
            p(f'v_mov_b32 v108, s{sT1}')
            p(f'v_mov_b32 v109, {L_PUR}')
            p('ds_write_b32 v109, v108')
            p.label(lo)
            p.mark('maybe_end')
            p.label(l0)
            self.tail.append((ls, ['s_sleep 8', f's_branch {lp}']))
        if L0:
            first()
        self.pad()
        p('s_waitcnt vmcnt(0) lgkmcnt(0)')
        if L0:
            self.flag_opt(sJFL)
        self.stamp('kvd')
        p('s_barrier')
        self.stamp('A')
        if L0:
            p(f'v_mov_b32 v{t0}, {L_PUR}')
            p(f'ds_read_b32 v{t0}, v{t0}')
            p(f'v_readfirstlane_b32 s{sPURE}, v{t0}')
            p(f's_cmp_eq_u32 s{sPURE}, 0')
            p(f's_cselect_b64 s[{sIMP}:{sIMP+1}], -1, 0')
        p(f'v_lshlrev_b32 v{t0}, 7, v{vL}')
        p(f's_lshl_b32 s{sT0}, s{sCB}, 2')
        p(f's_add_u32 s{sT0}, s{sT0}, s{sRB}')
        p(f's_lshl_b32 s{sT1}, s{sT0}, 14')
        p(f's_lshl_b32 s{sT2}, s{sW}, 12')
        p(f's_add_u32 s{sT1}, s{sT1}, s{sT2}')
        p(f's_add_u32 s{sT1}, s{sT1}, {WOT}')
        p('s_mov_b32 exec_hi, 0')
        p(f'buffer_load_dword a255, v{t0}, {srd(S_WS)}, s{sT1} offen sc1')
        p('s_mov_b64 exec, -1')
        p.ext(self.pub_offsets(O_X1, O_ST1, O_FX1))
        p(f's_sub_u32 s{sT0}, s{sXD}, {29*128}')
        p(f'v_add_u32 v{t1}, s{sT0}, v{t0}')
        p(f'v_cmp_lt_u32 vcc, 28, v{vL}')
        p(f'v_cndmask_b32 v{vPT}, v{vPT}, v{t1}, vcc')
        p.ext(self.setexec(45))
        p(f'buffer_load_dword a255, v{vPT}, {srd(S_WS)}, 0 offen sc1')
        p('s_mov_b64 exec, -1')
        bg = self.w1_dma(0)

        def kread(t):
            return [f'ds_read_b128 {vr(KF+8*t+4*k)}, v{vKA} offset:{t*4096+k*1024}' for k in range(2)]

        def qk(t):
            s = ST + 16 * (t % 3)
            c = vr(MW, 16) if t == 0 else vr(MD, 16) if t == 8 else '0'
            return [f'{MF32} {vr(s,16)}, {vr(KF+8*t)}, {vr(QF)}, {c}',
                    f'{MF32} {vr(s,16)}, {vr(KF+8*t+4)}, {vr(QF+4)}, {vr(s,16)}']
        vM, vM2 = vT + 2, vT + 3

        def mx(t):
            s = ST + 16 * (t % 3)
            L = []
            for i in range(8):
                d = vM if i % 2 == 0 else vM2
                if t == 0 and i < 2:
                    L.append(f'v_max_f32 v{d}, v{s+2*i}, v{s+2*i+1}')
                else:
                    L.append(f'v_max3_f32 v{d}, v{s+2*i}, v{s+2*i+1}, v{d}')
            return L

        def vread(t):
            d = VF + 8 * (t % 2)
            return [f'ds_read_b64_tr_b16 {vr(d+4*kv+2*jj,2)}, v{vVA} offset:{t*4096+2048+(16*kv+8*jj)*64}'
                    for kv in range(2) for jj in range(2)]
        def popbg(bg=bg):
            L = []
            while bg:
                x = bg.pop(0)
                L.append(x)
                if is_mem(x):
                    break
            return L
        for t in range(4):
            p.ext(kread(t))
        q = qk(0)
        p.ext([q[0]] + kread(4) + [q[1]] + kread(5))
        q = qk(1)
        p.ext([q[0]] + kread(6) + [q[1]] + kread(7))
        for t in range(9):
            m = mx(t)
            if t + 2 < 9:
                q = qk(t + 2)
                extra = kread(8) if t == 0 else vread(0)[:2] if t == 5 else vread(0)[2:] if t == 6 else []
                if t % 2 == 1:
                    extra = extra + popbg()
                p.ext([q[0]] + extra + m[:4] + [q[1]] + m[4:])
            else:
                p.ext(m)
        self.stamp('a1')
        a, b2, r1 = vT + 4, vT + 5, vT + 6
        p(f'v_max_f32 v{vM}, v{vM}, v{vM2}')
        p(f'v_mov_b32 v{a}, v{vM}')
        p(f'v_permlane32_swap_b32 v{vM}, v{a}')
        p(f'v_max_f32 v{vM}, v{vM}, v{a}')
        p(f'v_xor_b32 v{vM}, 0x80000000, v{vM}')
        p(f'v_and_b32 v{a}, 0xffff0000, v{vM}')
        p(f'v_sub_f32 v{r1}, v{vM}, v{a}')
        p(f'v_and_b32 v{a}, 0xffff0000, v{r1}')
        p(f'v_sub_f32 v{b2}, v{r1}, v{a}')
        p('s_mov_b32 exec_lo, 0')
        p(f'v_perm_b32 v{QF+6}, v{r1}, v{vM}, s{sPERM}')
        p(f'v_perm_b32 v{QF+7}, 1.0, v{b2}, s{sPERM}')
        p('s_mov_b64 exec, -1')

        def ex(t):
            s = ST + 16 * (t % 3)
            pb = PB + 8 * (t % 2)
            L = []
            for i in range(8):
                L.append(f'v_exp_f32 v{s+2*i}, v{s+2*i}')
                L.append(f'v_exp_f32 v{s+2*i+1}, v{s+2*i+1}')
                if i:
                    L.append(f'v_cvt_pk_bf16_f32 v{pb+i-1}, v{s+2*i-2}, v{s+2*i-1}')
            L.append(f'v_cvt_pk_bf16_f32 v{pb+7}, v{s+14}, v{s+15}')
            return L

        def pv(t):
            d = VF + 8 * (t % 2)
            pb = PB + 8 * (t % 2)
            return [f'{MF32} {vr(OA,16)}, {vr(d)}, {vr(pb)}, {vr(OA,16) if t else 0}',
                    f'{MF32} {vr(OA,16)}, {vr(d+4)}, {vr(pb+4)}, {vr(OA,16)}']

        self.pad()

        def wol(i):
            ks, z = i // 2, i % 2
            return f'buffer_load_dwordx4 {vr(32+4*i)}, v{vZ+z}, {srd(S_WS)}, s{sWO + ks//2} offen offset:{(ks%2)*2048} sc1'
        p.ext(qk(0))
        p.ext(qk(1))
        for t in range(9):
            e = ex(t)
            mf = (pv(t - 1) if t else []) + (qk(t + 2) if t + 2 < 9 else [])
            out = []
            pos = [2, 7, 12, 17]
            for i, x in enumerate(e):
                out.append(x)
                if i in pos and pos.index(i) < len(mf):
                    k = pos.index(i)
                    out.append(mf[k])
                    if t + 1 < 9:
                        if t == 0:
                            out += vread(1)[2 * k:2 * k + 2]
                        elif k in (1, 2):
                            out += vread(t + 1)[2 * (k - 1):2 * (k - 1) + 2]
                        elif t == 7 and k == 1:
                            pass
                    if t < 6 and k in (0, 3) or t == 0:
                        out += popbg()
                    if t >= 7:
                        out += [wol(8 * (t - 7) + 4 * k + q) for q in range(4)]
            if t == 7:
                out = out[:-3] + vread(8)[2:] + out[-3:]
            p.ext(out)
        assert not bg
        p.ext(pv(8))
        self.stamp('a2')
        p(f'v_mov_b32 v{a}, v{OA+12}')
        p(f'v_mov_b32 v{b2}, v{OA+12}')
        p(f'v_permlane32_swap_b32 v{a}, v{b2}')
        p(f'v_rcp_f32 v{b2}, v{b2}')
        for i in range(8):
            p(f'v_pk_mul_f32 {vr(OA+2*i,2)}, {vr(OA+2*i,2)}, {vr(a,2)} op_sel:[0,1] op_sel_hi:[1,1]')
            p(f'v_cvt_pk_bf16_f32 v{PB+i}, v{OA+2*i}, v{OA+2*i+1}')
            if i % 4 == 3:
                p(f'buffer_store_dwordx4 {vr(PB+i-3)}, v{vL16}, {srd(S_WS)}, s{sOD} offen offset:{(i//4)*1024}', tok='ost')
        self.publish(['ost'], sOF)
        self.stamp('att')

    def reduce_writes(self, ACC):
        return [Ins(f'ds_write_b128 v{vRW+x-1}, {vr(ACC+16*x+4*c)} offset:{c*1024}', 'rw') for x in range(1, 4) for c in range(4)]

    def reduce_finish(self, ACC, TMP):
        p = self.p
        p.wait('rw')
        self.pad()
        p('s_barrier')
        for c in range(4):
            for x in range(3):
                p(f'ds_read_b128 {vr(TMP+16*x+4*c)}, v{vRW+3} offset:{x*4096+c*1024}')
        for c in range(8):
            p(f'v_pk_add_f32 {vr(TMP+2*c,2)}, {vr(TMP+2*c,2)}, {vr(TMP+16+2*c,2)}')
            p(f'v_pk_add_f32 {vr(ACC+2*c,2)}, {vr(ACC+2*c,2)}, {vr(TMP+32+2*c,2)}')
            p(f'v_pk_add_f32 {vr(ACC+2*c,2)}, {vr(ACC+2*c,2)}, {vr(TMP+2*c,2)}')

    def yoffs(self, dst, mul, add):
        L = []
        for y in range(2):
            L += [f's_xor_b32 s{sT0}, s{sRHO}, {y}', f's_lshl_b32 s{sT1}, s{sRB}, 1', f's_add_u32 s{sT0}, s{sT0}, s{sT1}',
                  f's_lshl_b32 s{sT0}, s{sT0}, 2', f's_add_u32 s{sT0}, s{sT0}, s{sW}'] + self.roff(dst + y, sT0, mul, add)
        return L

    def p3(self):
        p, L0 = self.p, self.L == 0
        WO, OF, ACC, RING = 32, 96, 160, 200

        def colsum(part, AC=ACC, RG=RING, T=vT):
            for i in range(4):
                p(f'v_mov_b32 v{T+4+i}, s{sONES}')
            p(f's_lshl_b32 s{sT0}, s{sW}, 10')
            if part == 0:
                p(f'v_add_u32 v{T}, s{sT0}, v{vL16}')
            else:
                p(f's_min_u32 s{sT0}, s{sT0}, 2048')
                p(f'v_add_u32 v{T}, s{sT0}, v{vA1}')
            NRG = 6 if part == 0 else 4
            rd = lambda f: f'ds_read_b128 {vr(RG+4*(f%NRG))}, v{T} offset:{f*(4096, 3072)[part]}'
            for f in range(NRG - 1):
                p(rd(f))
            for f in range(14):
                p(f'{MF16} {vr(AC)}, {vr(T+4)}, {vr(RG+4*(f%NRG))}, {vr(AC) if f else 0}')
                if f + NRG - 1 < 14:
                    p(rd(f + NRG - 1))
            p(f's_lshl_b32 s{sT0}, s{sW}, 6')
            p(f's_add_u32 s{sT0}, s{sT0}, {L_CS1 + 256*part}')
            p(f'v_and_b32 v{T}, 15, v{vL}')
            p(f'v_lshlrev_b32 v{T}, 2, v{T}')
            p(f'v_add_u32 v{T}, s{sT0}, v{T}')
            p(f'ds_write_b32 v{T}, v{AC}')
            p('s_waitcnt lgkmcnt(0)')
        w1d = []
        self.pad()
        p('s_barrier')
        if L0:
            p.ext(self.w2_setup(sO + 15, (vT + 10, vT + 11)) + self.w2_loads(ORDER[:7], sO + 15, (vT + 10, vT + 11)))
            colsum(0)
        ljoin, lidle = p.newlabel('p3join'), p.newlabel('p3idle')
        p(f's_cmp_ge_u32 s{sM}, 28')
        p(f's_cbranch_scc1 {lidle}')
        p.mark('maybe_begin')
        sFO, sY = sO, sO + 2
        p(f's_lshl_b32 s{sT0}, s{sRB}, 3')
        p(f's_add_u32 s{sT0}, s{sT0}, s{sW}')
        p.ext(self.off(sFO, sT0, 32, O_FO))
        p.ext(self.yoffs(sY, 8192, O_O))
        p(f's_add_u32 s{sY+2}, s{sY}, 4096')
        p(f's_add_u32 s{sY+3}, s{sY+1}, 4096')
        self.vpoll(vFLG, f's{sFO}', 8)
        self.stamp('B')

        def ld(ks, y):
            return f'buffer_load_dwordx4 {vr(OF+(ks*2+y)*4)}, v{vL16}, {srd(S_WS)}, s{sY + 2*(ks//4) + y} offen offset:{(ks%4)*1024} sc1'

        def mf(ks, x):
            y, z = x >> 1, x & 1
            c = vr(ACC + 16 * x, 16) if ks else (vr(vRES, 16) if x == 0 else '0')
            return f'{MF32} {vr(ACC+16*x,16)}, {vr(WO+(ks*2+z)*4)}, {vr(OF+(ks*2+y)*4)}, {c}'
        for ks in range(5):
            for y in range(2):
                p(ld(ks, y))
        rest = list(w1d)
        for ks in range(8):
            for x in (1, 2, 3):
                p(mf(ks, x))
                if ks + 5 < 8 and x < 3:
                    p(ld(ks + 5, x - 1))
                elif ks >= 3 and rest:
                    y = rest.pop(0)
                    p.ext([y])
                    while rest and not is_mem(y):
                        y = rest.pop(0)
                        p.ext([y])
        assert not rest
        self.stamp('p3mm')
        p.ext(sched([mf(ks, 0) for ks in range(8)], {}, {}, self.reduce_writes(ACC), 2, start=2))
        self.stamp('p3rw')
        self.reduce_finish(ACC, 32)
        self.stamp('p3rd')
        P = 96
        for i in range(8):
            p(f'v_cvt_pk_bf16_f32 v{P+i}, v{ACC+2*i}, v{ACC+2*i+1}')
        self.x_store(P, vX1A, (0, 512))
        self.publish(['xst'], sXF)
        self.stamp('p3pub')
        p.ext(self.res_unpack(P))
        p.mark('maybe_end')
        p.label(ljoin)
        idle = [f'v_lshlrev_b32 v{vT}, 7, v{vL}', f's_lshl_b32 s{sT0}, s{sCB}, 2', f's_add_u32 s{sT0}, s{sT0}, s{sW}']
        if L0:
            idle += [f's_lshl_b32 s{sT1}, s{sT0}, 7', f's_add_u32 s{sT1}, s{sT1}, {F_W1}'] + self.poll_loop(vL8, f's{sT1}', 14)
        idle += [f's_mul_i32 s{sT1}, s{sT0}, 100352'] + self.prefetch(vT, sT1, W1T + 57344, 43008)
        self.tail.append((lidle, idle + [f's_branch {ljoin}']))
        self.colsum = colsum
        self.stamp('p3')

    def p45(self):
        p, L0 = self.p, self.L == 0
        X, ACC, RING, CS = 32, 144, 200, 224
        sXO, sST, sFX, sH, sHF = sO, sO + 4, sO + 5, sO + 6, sO + 8
        sFH, sST5, sW2 = sO + 9, sO + 10, sO + 11
        sY = [76, 77, 78, 79, sO + 12, sO + 13, sO + 14, sO + 15]
        vTC, vHA, vHB, vZ, vLb, PO = vT, vT + 1, vT + 2, (vT + 3, vT + 13), vT + 12, vT + 4
        p.ext(self.xoff(sXO, sTP, 28672, O_X1))
        for g in range(1, 4):
            p(f's_add_u32 s{sXO+g}, s{sXO}, {8192*g}')
        p.ext(self.off(sST, sTP, 3584, O_ST1))
        p.ext(self.off(sFX, sTP, 128, O_FX1))
        p(f's_lshl_b32 s{sT0}, s{sTP}, 4')
        p(f's_add_u32 s{sT0}, s{sT0}, s{sJ}')
        p.ext(self.roff(sH, sT0, 7168, O_H))
        p(f's_add_u32 s{sH+1}, s{sH}, 4096')
        p.ext(self.off(sHF, sT0, 8, O_FH))
        p.ext([f'v_lshrrev_b32 v{vCSA}, 4, v{vL}', f'v_lshlrev_b32 v{vCSA}, 4, v{vCSA}', f'v_add_u32 v{vCSA}, {L_CS1}, v{vCSA}',
               f'v_lshrrev_b32 v{vHA}, 5, v{vL}', f'v_lshlrev_b32 v{vHA}, 10, v{vHA}',
               f'v_bfe_u32 v{vHB}, v{vL}, 4, 1', f'v_lshl_add_u32 v{vHA}, v{vHB}, 9, v{vHA}',
               f'v_and_b32 v{vTC}, 15, v{vL}', f'v_lshl_add_u32 v{vHA}, v{vTC}, 4, v{vHA}',
               f'v_lshlrev_b32 v{vHB}, 3, v{vHB}', f'v_lshl_add_u32 v{vHB}, v{vTC}, 4, v{vHB}',
               f'v_lshrrev_b32 v{vTC}, 5, v{vL}', f'v_lshl_add_u32 v{vHB}, v{vTC}, 9, v{vHB}',
               f'v_add_u32 v{vLb}, 4096, v{vL16}'])
        sRBc = sPOLL
        p(f's_min_u32 s{sRBc}, s{sRB}, 3')
        p(f's_lshl_b32 s{sT0}, s{sRBc}, 3')
        p(f's_add_u32 s{sT0}, s{sT0}, s{sW}')
        p.ext(self.off(sFH, sT0, 32, O_FH))
        for y in range(2):
            p.ext([f's_xor_b32 s{sT0}, s{sRHO}, {y}', f's_lshl_b32 s{sT1}, s{sRBc}, 1', f's_add_u32 s{sT0}, s{sT0}, s{sT1}',
                   f's_lshl_b32 s{sT0}, s{sT0}, 2', f's_add_u32 s{sT0}, s{sT0}, s{sW}'] + self.roff(sY[y], sT0, 28672, O_H))
            for sl in range(1, 4):
                p(f's_add_u32 s{sY[2*sl+y]}, s{sY[y]}, {7168*sl}')
        p(f's_lshl_b32 s{sT0}, s{sRBc}, 1')
        p(f's_add_u32 s{sT0}, s{sT0}, s{sRHO}')
        p.ext(self.off(sST5, sT0, 3584, O_ST1))
        if L0:
            p.ext(self.pub_offsets(O_XA + LSTRIDE, O_STA + LSTRIDE, O_FXA + LSTRIDE))
            p.ext(self.w2_setup(sW2, vZ) + self.w2_loads(ORDER[7:14], sW2, vZ))
            p.ext([f's_lshl_b32 s{sT1}, s{sJ}, 7', f's_add_u32 s{sT1}, s{sT1}, {F_WQ - 14*8}',
                   f'v_mov_b32 v{PO}, s{sFX}', f'v_mov_b32 v{PO+1}, s{sT1}', f'v_cmp_le_u32 vcc, 14, v{vL}',
                   f'v_cndmask_b32 v{PO}, v{PO}, v{PO+1}, vcc', f'v_add_u32 v{PO}, v{PO}, v{vL8}'])
        p(f'v_lshlrev_b32 v{vTC}, 7, v{vL}')
        seq = [(t, s) for s in range(14) for t in range(4)] + [(t, s) for s in range(14) for t in range(4, 7)]

        def frag(f):
            base, off = (vL16, f * 1024) if f < 56 else (vA1, (f - 56) * 1024)
            return f'ds_read_b128 {vr(RING + 4*(f % 6))}, v{base} offset:{off}'

        def mf(f, u):
            t, s = seq[f]
            return f'{MF16} {vr(ACC+8*t+4*u)}, {vr(RING+4*(f%6))}, {vr(X+4*(2*s+u))}, {vr(ACC+8*t+4*u) if s else 0}'

        def xl(i):
            return f'buffer_load_dwordx4 {vr(X+4*i)}, v{(vL16, vLb)[(i//4)%2]}, {srd(S_WS)}, s{sXO + i//8} offen offset:{(i%4)*1024} sc1'

        def cs_reads(tiles):
            return [f'ds_read_b128 {vr(CS+4*(t%4))}, v{vCSA} offset:{t*64}' for t in tiles]
        PD = 4
        for f in range(PD):
            p(frag(f))
        self.pad()
        if L0:
            self.vpoll(PO, '0', 28)
        else:
            self.vpoll(vL8, f's{sFX}', 14)
        self.stamp('C')
        XP = 8
        for i in range(XP):
            p(xl(i))
        mem, pre = {}, {}
        for f in range(98):
            mem[2 * f] = [frag(f + PD)] if f + PD < 98 and not (f < 56 <= f + PD) else []
            mem[2 * f + 1] = []
            if f < 56 and f % 2 == 0 and f // 2 + XP < 28:
                mem[2 * f + 1] = [xl(f // 2 + XP)]
            if 27 <= f < 41 and f % 2 == 1:
                mem[2 * f + 1] = [self.stats_loads(sST, CS)[(f - 27) // 2]]
            if f % 2 == 0:
                tch = vr(RING + 4 * (f % 6)) + ' ' + vr(RING + 4 * ((f + 1) % 6))
                if f < 56 and f % 4 == 0:
                    tch += ' ' + vr(X + 8 * (f // 4), 8)
                pre[2 * f] = [Touch(tch)]
        i = 2 * 40 + 1
        for x in self.w1_dma(1):
            mem[i].append(x)
            i += 2 if is_mem(x) else 0
        mem[i] += self.touch(vTC, sH, 0, 56)
        if L0:
            xa = [f'v_add_u32 v{PO}, s{sXD}, v{vTC}', f's_add_u32 s{sT0}, s{sFX}, {LSTRIDE + O_FXA - O_FX1}', f's_add_u32 s{sT1}, s{sXS}, 128']
            for lane, r in ((16, sXS), (17, sT1), (18, sXF), (19, sT0)):
                xa.append(f'v_writelane_b32 v{PO}, s{r}, {lane}')
            mem[i + 2] += xa
            mem[i + 4].append(self.setexec(20) + [f'buffer_load_dword a255, v{PO}, {srd(S_WS)}, 0 offen sc1', 's_mov_b64 exec, -1'])
        mfs = [mf(f, u) for f in range(98) for u in range(2)]
        side = self.stats_reduce(CS) + [f'v_mov_b32 v{vRSTD}, v{vMEAN}', 's_nop 0', f'v_permlane16_swap_b32 v{vMEAN}, v{vRSTD}']
        p.ext(sched(mfs[:112], pre, mem, side, 2, start=88))
        self.stamp('p4m1')
        self.pad()
        p.wait('w1')
        p('s_barrier')
        p.ext(cs_reads([0, 1, 2, 3]))
        self.stamp('p4g1')

        def epi(tiles, tok):
            L = []
            pairs = [tiles[i:i + 2] for i in range(0, len(tiles), 2)]
            n = 0
            for pr in pairs:
                for u in range(2):
                    po = PO + 4 * (n % 2)
                    n += 1
                    for k, t in enumerate(pr):
                        a = ACC + 8 * t + 4 * u
                        for r in (0, 2):
                            L.append(f'v_pk_fma_f32 {vr(a+r,2)}, {vr(CS+4*(t%4)+r,2)}, {vr(vMEAN,2)}, {vr(a+r,2)} op_sel:[0,{u},0] op_sel_hi:[1,{u},1]')
                    for k, t in enumerate(pr):
                        a = ACC + 8 * t + 4 * u
                        for r in range(2):
                            L.append(f'v_cvt_pk_bf16_f32 v{po+2*k+r}, v{a+2*r}, v{a+2*r+1}')
                    for k, t in enumerate(pr):
                        for r in range(2):
                            L.append(f'v_pk_max_i16 v{po+2*k+r}, v{po+2*k+r}, 0')
                    t = pr[0]
                    so, off = (sH, t * 1024) if t < 4 else (sH + 1, (t - 4) * 1024)
                    if len(pr) == 2:
                        L.append(Ins(f'buffer_store_dwordx4 {vr(po)}, v{vHA}, {srd(S_WS)}, s{so} offen offset:{off+u*256}', tok))
                    else:
                        L.append(Ins(f'buffer_store_dwordx2 {vr(po,2)}, v{vHB}, {srd(S_WS)}, s{so} offen offset:{off+u*256}', tok))
            return L
        for f in range(56, 56 + PD):
            p(frag(f))
        p.ext(epi([0, 1, 2, 3], 'h1'))
        if L0:
            self.colsum(1, AC=144, RG=160, T=vT + 4)
            p('s_barrier')
            for f in range(56, 56 + PD):
                pass
        self.stamp('p4e1')
        HR, AC5, NR, PD5, TAIL = 32, 160, 16, 5, 14
        order = ORDER

        def ld(i, y):
            sl, sg = order[i] // 7, order[i] % 7
            return (f'buffer_load_dwordx4 {vr(HR+((i%NR)*2+y)*4)}, v{(vL16, vLb)[sg//4]}, {srd(S_WS)}, s{sY[2*sl+y]} '
                    f'offen offset:{(sg%4)*1024} sc1')

        def m5(i, x):
            y, z = x >> 1, x & 1
            return f'{MF32} {vr(AC5+16*x,16)}, {ar(order[i]*8+z*4)}, {vr(HR+((i%NR)*2+y)*4)}, {vr(AC5+16*x,16) if i else 0}'
        pre2 = {i - 112: v for i, v in pre.items() if i >= 112}
        mem2 = {i - 112: v for i, v in mem.items() if i >= 112}
        NW2A = 14 if L0 else 0
        mem2[19] = self.publish_items(['h1'], sHF) + mem2[19]
        mem2[57] += self.peek_issue(vFLG, f's{sFH}', 8)
        mem2[59] += cs_reads([4, 5])
        mem2[61] += cs_reads([6])
        mem2[63] += self.peek_check(vFLG, f's{sFH}', 8)
        for k in range(2 * PD5):
            mem2[65 + 2 * k].append(ld(k // 2, k % 2))
        p.ext(sched(mfs[112:], pre2, mem2, [], 2, start=0))
        self.stamp('p4g2')
        p.ext(epi([4, 5, 6], 'h2'))
        self.stamp('p4')
        lskip, ljoin = p.newlabel('p5skip'), p.newlabel('p5join')
        self.pad()
        p(f's_cmp_ge_u32 s{sM}, 28')
        p(f's_cbranch_scc1 {lskip}')
        idle = ['s_waitcnt vmcnt(0)'] + self.publish_items([], sHF, 1024)
        if L0:
            idle += [f's_lshl_b32 s{sT0}, s{sCB}, 2', f's_add_u32 s{sT0}, s{sT0}, s{sW}', f's_lshl_b32 s{sT1}, s{sT0}, 7',
                     f's_add_u32 s{sT1}, s{sT1}, {F_WQ}'] + self.poll_loop(vL8, f's{sT1}', 14)
            idle += [f's_mul_i32 s{sT1}, s{sT0}, 86016'] + self.prefetch(vTC, sT1, WQT, 57344)
            idle += ['s_waitcnt vmcnt(0)', 's_barrier'] + self.wq_dma((0, 1)) + [f's_branch {ljoin}']
        else:
            idle += [f's_cmp_lg_u32 s{sM}, 28', 's_cbranch_scc1 L_fin', f's_cmp_lg_u32 s{sW}, 0', 's_cbranch_scc1 L_fin',
                     f's_sleep {os.environ.get("WBSLEEP", 20)}'] + ([] if os.environ.get('NOWB') else ['buffer_wbl2 sc1']) + ['s_waitcnt vmcnt(0)', 's_branch L_fin']
        self.tail.append((lskip, idle))
        mfs, mem = [], {}
        w2b = self.w2_loads(order[NW2A:], sW2, vZ) if L0 else []
        stl = self.stats_loads(sST5, CS)
        for i in range(28):
            xs = (0, 1, 2, 3) if i < 28 - TAIL else (1, 2, 3)
            for n, x in enumerate(xs):
                k = len(mfs)
                mfs.append(m5(i, x))
                mem[k] = []
                if i == 3 and n == 3:
                    mem[k] += self.publish_items(['h2'], sHF, 1024)
                if i == 8 and n == 3:
                    mem[k] += self.peek_issue(vFLG, f's{sFH}', 8, 1024)
                if i == 11 and n == 0:
                    mem[k] += self.stamp_items('pk0') + self.peek_check(vFLG, f's{sFH}', 8, 1024) + self.stamp_items('pk1')
                if i + PD5 < 28 and n < 2:
                    mem[k].append(ld(i + PD5, n))
                elif w2b and n >= 2:
                    mem[k].append(w2b.pop(0))
                elif i + PD5 >= 28 and stl:
                    mem[k].append(stl.pop(0))
        assert not w2b and not stl
        p.ext(sched(mfs, {}, mem, [], 6))
        self.stamp('p5mm')
        mem = {}
        for i, x in enumerate(self.reduce_writes(AC5)):
            mem.setdefault(2 + i, []).append(x)
        p.ext(sched([m5(i, 0) for i in range(28 - TAIL, 28)], {}, mem, self.stats_reduce(CS), 5, start=0))
        self.stamp('p5rw')
        self.reduce_finish(AC5, 32)
        self.stamp('p5rd')
        P = 96
        for i in range(8):
            p(f'v_pk_fma_f32 {vr(AC5+2*i,2)}, {vr(AC5+2*i,2)}, {vr(vMEAN,2)}, {vr(vRES+2*i,2)} op_sel:[0,1,0] op_sel_hi:[1,1,1]')
            p(f'v_cvt_pk_bf16_f32 v{P+i}, v{AC5+2*i}, v{AC5+2*i+1}')
        if L0:
            self.x_store(P, vL16, (0, 1024))
            wq = self.wq_dma((0, 1))
            p.ext(wq[:9])
            self.publish(['xst'], sXF)
            p.ext(wq[9:])
            self.stamp('p5pub')
            p.ext(self.res_unpack(P))
            p.label(ljoin)
            p(f's_add_u32 s{sLB}, s{sLB}, {LSTRIDE}')
            p('s_waitcnt vmcnt(0) lgkmcnt(0)')
            p('s_barrier')
            return
        p(f'v_and_b32 v{vT+4}, 31, v{vL}')
        p(f'v_mul_u32_u24 v{vT+4}, 896, v{vT+4}')
        p(f'v_lshrrev_b32 v{vT+5}, 5, v{vL}')
        p(f'v_lshl_add_u32 v{vT+4}, v{vT+5}, 4, v{vT+4}')
        for hf in range(2):
            p(f'v_permlane32_swap_b32 v{P+4*hf}, v{P+4*hf+2}')
            p(f'v_permlane32_swap_b32 v{P+4*hf+1}, v{P+4*hf+3}')
            p(f'buffer_store_dwordx4 {vr(P+4*hf)}, v{vT+4}, {srd(S_OUT)}, s{sQOFF} offen offset:{32*hf}')
        p('s_cmp_lg_u32 s2, %d' % (27 * 8 + 7))
        p('s_cbranch_scc1 L_fin')
        p(f's_mov_b32 s{sT0}, {WS_EPOCH}')
        p.ext(self.flag_sc1(sT0))

    def build(self):
        p = self.p
        self.L = 0
        self.prologue()
        for self.L in range(2):
            for ph in ('p1', 'attn', 'p3', 'p45'):
                getattr(self, ph)()
        p.label('L_fin')
        self.stamp('end')
        self.stamp_dump()
        if os.environ.get('CALIB'):
            p.label('L_calib')
            p('s_memrealtime s[96:97]')
            p('s_waitcnt lgkmcnt(0)')
            p('s_sub_u32 s96, s96, s100')
            p(f's_cmp_lt_u32 s96, {int(os.environ["CALIB"])}')
            p('s_cbranch_scc1 L_calib')
        p.label('L_end')
        p('s_endpgm')
        for lab, code in self.tail:
            p.label(lab, reset='all')
            p.ext(code)
        p.label('L_codeend')
        self.emit_walker()
        p.insert_waits()
        probs = p.fix_hazards()
        for x in probs:
            print('branch hazard padded', x, file=sys.stderr)
        mx = p.maxregs()
        head = open(os.path.join(os.path.dirname(__file__), '..', 'cdna_kernels', NAME + '.s.ref')).read().split('\n')
        hdr = [l for l in head if l.startswith(';') and '@launch' not in l]
        out = '\n'.join(hdr) + f'\n; @launch grid=(256,1,1) block=(256,1,1) lds={LDS_BYTES}\n'
        out += '.amdgcn_target "amdgcn-amd-amdhsa--gfx950"\n.text\n'
        out += f'.globl {NAME}_kernel\n.p2align 8\n.type {NAME}_kernel,@function\n{NAME}_kernel:\n'
        out += p.text()
        out += '.fill 64, 4, 0xbf800000\n'
        out += f'''.section .rodata,"a"
.p2align 6
.amdhsa_kernel {NAME}_kernel
  .amdhsa_next_free_vgpr 512
  .amdhsa_next_free_sgpr 102
  .amdhsa_accum_offset 256
  .amdhsa_group_segment_fixed_size 0
  .amdhsa_kernarg_size 72
  .amdhsa_user_sgpr_count 2
  .amdhsa_user_sgpr_kernarg_segment_ptr 1
  .amdhsa_system_sgpr_workgroup_id_x 1
  .amdhsa_float_denorm_mode_32 3
.end_amdhsa_kernel
'''
        print('regs', mx, 'instrs', sum(1 for x in p.items if isinstance(x, Ins)), file=sys.stderr)
        return out


if __name__ == '__main__':
    stop = int(sys.argv[2]) if len(sys.argv) > 2 else None
    k = K(stop if stop and stop > 0 else None, dbg=sys.argv[3].split(',') if len(sys.argv) > 3 else None)
    open(sys.argv[1], 'w').write(k.build())
    if k.dbg:
        open(os.path.join(os.path.dirname(sys.argv[1]), 'stamps.txt'), 'w').write(' '.join(k.stamps))
```

```python
import sys, os, math, struct
sys.path.insert(0, os.path.dirname(__file__))
from asmlib import Prog, Ins, Wait, Mark, Label, Touch

NAME = 'interleave_layers__sliding_block__dense_activation_relu__prompt'

WS_EPOCH = 0
WS_PUR = 0x1000
F_WQ = 0x2000
F_W1 = 0x2800
F_W2 = 0x3000
F_WO = 0x4000
WQT = 0x100000
W1T = 0x250000
WOT = 0x3D8000
W2T = 0x448000
TEAM0 = 0x600000
LSTRIDE = 0x230000
STRIDE = 2 * LSTRIDE
O_KV = 0x000000
O_O = 0x080000
O_X1 = 0x0C0000
O_XA = 0x0F8000
O_ST1 = 0x130000
O_STA = 0x138000
O_FKV = 0x140000
O_FO = 0x144000
O_FX1 = 0x144400
O_FXA = 0x144800
O_FH = 0x145000
O_H = 0x150000
WS_BYTES = TEAM0 + 8 * STRIDE

LKV = 100352
L_CSQ = 149504
L_CS1 = L_CSQ + 512
L_STAMP = 160 * 1024 - 512
L_PUR = L_CS1 + 512 + 1536
L_CSP = L_CS1 + 512
LDS_BYTES = 163840

S_X, S_WQ, S_WO, S_W1, S_W2, S_OUT, S_WS = 8, 12, 16, 20, 24, 28, 32
S_WSP = 36
sTEAM, sM, sA, sJ, sW, sRB, sCB, sLB = 40, 41, 42, 43, 44, 45, 46, 47
sF, sPURE, sLAYER, sTP = 48, 50, 51, 52
sQOFF = 53
sIMP = 54
sPERM, sONES = 56, 57
sRHO, sNU = 58, 59
sT0, sT1, sT2, sT3, sT4, sT5 = 60, 61, 62, 63, 64, 65
sCNT = 66
sTB = 71
sJFL = 67
sXD, sXS, sXF = 68, 69, 70
sPOLL = 72
sRQ, sLQ = 76, 77
sO = 80

vL, vL16, vA1, vL8 = 0, 1, 2, 3
vSTA = 4
vFLG = 5
vRW = 6
vX1A = 10
vCSA = 11
vF = 12
vMEAN, vRSTD = 14, 15
vT = 16
vRES = 240

POLL_MAX = 1 << 16
ORDER = [7 * sl + sg for sl in range(4) for sg in range(4)] + [7 * sl + sg for sl in range(4) for sg in range(4, 7)]
MF32 = 'v_mfma_f32_32x32x16_bf16'
MF16 = 'v_mfma_f32_16x16x32_bf16'


def srd(b):
    return f's[{b}:{b+3}]'


def vr(b, n=4):
    return f'v[{b}:{b+n-1}]' if n > 1 else f'v{b}'


def ar(b, n=4):
    return f'a[{b}:{b+n-1}]'


def f32bits(x):
    return struct.unpack('<I', struct.pack('<f', x))[0]


def is_mem(x):
    if isinstance(x, (list, tuple)):
        return any(is_mem(y) for y in x)
    if isinstance(x, (Wait, Touch, Label, Mark)):
        return False
    t = x.text if isinstance(x, Ins) else x if isinstance(x, str) else ''
    return t.startswith('ds_') or t.startswith('buffer_') or t.startswith('global_')


def cost(x):
    if isinstance(x, (list, tuple)):
        return sum(cost(y) for y in x)
    if isinstance(x, (Wait, Touch)):
        return 1
    if isinstance(x, (Label, Mark)):
        return 0
    t = x.text if isinstance(x, Ins) else x
    return 2 if t.startswith('v_exp') or t.startswith('v_rsq') or t.startswith('v_rcp') or t.startswith('v_permlane') else 1


def sched(mfs, pre, mem, side, cap, start=0):
    out = []
    side = list(side)
    for i, m in enumerate(mfs):
        out += pre.get(i, [])
        out.append(m)
        n = 0
        for x in mem.get(i, []):
            out.append(x)
            n += cost(x)
        if pre.get(i + 1):
            n += 1
        valu = False
        if i >= start:
            while side and n + cost(side[0]) <= cap:
                if is_mem(side[0]) and valu:
                    break
                x = side.pop(0)
                if not is_mem(x) and not isinstance(x, (Wait, Touch)):
                    t = x[0] if isinstance(x, (list, tuple)) else x
                    if any((y.text if isinstance(y, Ins) else y).startswith('v_') for y in (x if isinstance(x, (list, tuple)) else [x]) if isinstance(y, (Ins, str))):
                        valu = True
                out.append(x)
                n += cost(x)
            if side and n == 0 and cost(side[0]) > cap:
                out.append(side.pop(0))
    return out + side


class K:
    def __init__(self, stop=None, dbg=False):
        self.p = Prog()
        self.stop = stop
        self.dbg = dbg
        self.stamps = []
        self.tail = []
        self.pads = []

    def stamp(self, name):
        if not self.dbg or (name not in self.dbg and name not in ('start', 'end')):
            return
        k = len(self.stamps)
        assert k < 32
        self.stamps.append(name)
        p = self.p
        p('s_memrealtime s[96:97]' if 'RT' in self.dbg else 's_memtime s[96:97]')
        if k == 0:
            p('v_readfirstlane_b32 s100, v0')
            p('s_lshr_b32 s100, s100, 6')
            p('s_lshl_b32 s101, s2, 2')
            p('s_add_u32 s100, s100, s101')
            p('s_lshl_b32 s100, s100, 7')
            p('s_add_u32 s100, s100, 0x40000')
        p('s_waitcnt lgkmcnt(0)')
        if k == 0:
            p('v_accvgpr_write_b32 a253, s96')
            return
        p('v_accvgpr_write_b32 a252, s96')
        p('s_mov_b64 exec, 1')
        p(f'buffer_store_dword a252, off, {srd(S_WS)}, s100 offset:{4*k}')
        p('s_mov_b64 exec, -1')

    def stamp_items(self, name):
        n = len(self.p.items)
        self.stamp(name)
        L = self.p.items[n:]
        del self.p.items[n:]
        return [L] if L else []

    def stamp_dump(self):
        if self.dbg:
            self.p(f'buffer_store_dword a253, off, {srd(S_WS)}, s100')

    def dma(self, srdb, voff, sreg, simm, m0, tok, sc='', n=1):
        mr, mi = m0
        L = [f's_add_u32 m0, s{mr}, {mi}' if mr is not None else f's_mov_b32 m0, {mi}',
             f's_add_u32 s{sT5}, s{sreg}, {simm}']
        for k in range(n):
            L.append(Ins(f'buffer_load_dwordx4 v{voff}, {srd(srdb)}, s{sT5} offen offset:{1024*k} {sc} lds', tok))
        return L

    @staticmethod
    def setexec(nl):
        if nl <= 32:
            return [f's_mov_b64 exec, {(1 << nl) - 1:#x}'] if nl < 32 else ['s_mov_b32 exec_hi, 0']
        return [f's_mov_b32 exec_hi, {(1 << (nl - 32)) - 1:#x}']

    def poll_loop(self, voff, soff, nl, imm=0):
        p = self.p
        lp, lo = p.newlabel('poll'), p.newlabel('pollout')
        return self.setexec(nl) + [f's_mov_b32 s{sCNT}, 0', Label(lp),
                f'buffer_load_dwordx2 {vr(vT + 14, 2)}, v{voff}, {srd(S_WS)}, {soff} offen offset:{imm} sc1',
                f's_add_u32 s{sCNT}, s{sCNT}, 1', f's_cmp_gt_u32 s{sCNT}, {POLL_MAX}', f's_cbranch_scc1 {lo}',
                's_waitcnt vmcnt(0)', f'v_cmp_ne_u64 vcc, s[{sF}:{sF+1}], {vr(vT + 14, 2)}', f's_cbranch_vccnz {lp}',
                Label(lo), 's_mov_b64 exec, -1']

    def vpoll(self, voff, soff, nl, acquire=True):
        p = self.p
        p.ext(self.poll_loop(voff, soff, nl))
        if acquire:
            lslow, lback = p.newlabel('acq'), p.newlabel('acqback')
            p(f's_cmp_lg_u32 s{sPURE}, 0')
            p(f's_cbranch_scc0 {lslow}')
            p.label(lback)
            self.tail.append((lslow, ['buffer_inv sc1', 's_waitcnt vmcnt(0)', f's_branch {lback}']))
        p.mark('drained_vm')

    def peek_issue(self, voff, soff, nl, imm=0):
        return [self.setexec(nl) + [f'buffer_load_dwordx2 {vr(vT + 14, 2)}, v{voff}, {srd(S_WS)}, {soff} offen offset:{imm} sc1',
                                    's_mov_b64 exec, -1']]

    def peek_check(self, voff, soff, nl, imm=0):
        p = self.p
        lslow, lback, lacq = p.newlabel('peek'), p.newlabel('peekback'), p.newlabel('peekacq')
        self.tail.append((lslow, self.poll_loop(voff, soff, nl, imm) +
                          [f's_cmp_lg_u32 s{sPURE}, 0', f's_cbranch_scc1 {lback}', 'buffer_inv sc1', 's_waitcnt vmcnt(0)',
                           f's_branch {lback}']))
        return [[Touch(vr(vT + 14, 2))] + self.setexec(nl) +
                [f'v_cmp_ne_u64 vcc, s[{sF}:{sF+1}], {vr(vT + 14, 2)}', 's_mov_b64 exec, -1',
                 f's_or_b64 vcc, vcc, s[{sIMP}:{sIMP+1}]', f's_cbranch_scc1 {lslow}', Label(lback)]]

    def publish_items(self, toks, soff, imm=0):
        p = self.p
        lslow, lback = p.newlabel('pubslow'), p.newlabel('pubback')
        self.tail.append((lslow, [
            'buffer_wbl2 sc1', 's_waitcnt vmcnt(0)',
            f'buffer_store_dwordx2 {vr(vF, 2)}, off, {srd(S_WS)}, s{soff} offset:{imm} sc1',
            f's_branch {lback}']))
        return [[Wait(toks), 's_mov_b64 exec, 1', f's_cmp_lg_u32 s{sPURE}, 0', f's_cbranch_scc0 {lslow}',
                 f'buffer_store_dwordx2 {vr(vF, 2)}, off, {srd(S_WS)}, s{soff} offset:{imm}', Label(lback), 's_mov_b64 exec, -1']]

    def publish(self, toks, soff, imm=0):
        self.p.ext(self.publish_items(toks, soff, imm))

    def flag_sc1(self, soff):
        return ['s_mov_b64 exec, 1', f'buffer_store_dwordx2 {vr(vF,2)}, off, {srd(S_WS)}, s{soff} sc1', 's_mov_b64 exec, -1']

    def flag_opt(self, soff):
        p = self.p
        l = p.newlabel('noflag')
        p(f's_cmp_eq_u32 s{soff}, -1')
        p(f's_cbranch_scc1 {l}')
        p.mark('maybe_begin')
        p.ext(self.flag_sc1(soff))
        p.mark('maybe_end')
        p.label(l)

    def stats_loads(self, soff, dst):
        return [f'buffer_load_dwordx2 {vr(dst + 2*i, 2)}, v{vSTA}, {srd(S_WS)}, s{soff} offen offset:{256*i} sc1' for i in range(7)]

    def stats_reduce(self, src):
        L = []
        for i in range(1, 7):
            L.append(f'v_add_f32 v{src}, v{src}, v{src+2*i}')
            L.append(f'v_add_f32 v{src+1}, v{src+1}, v{src+2*i+1}')
        s, q, t0, t1 = src, src + 1, src + 2, src + 3
        return L + [
            f'v_mov_b32 v{t0}, v{s}', f'v_mov_b32 v{t1}, v{q}', 's_nop 0',
            f'v_permlane32_swap_b32 v{s}, v{t0}', f'v_permlane32_swap_b32 v{q}, v{t1}',
            f'v_add_f32 v{s}, v{s}, v{t0}', f'v_add_f32 v{q}, v{q}, v{t1}',
            f'v_mul_f32 v{vMEAN}, {f32bits(-1.0/448):#x}, v{s}',
            f'v_mul_f32 v{q}, {f32bits(1.0/448):#x}, v{q}',
            f'v_fma_f32 v{q}, -v{vMEAN}, v{vMEAN}, v{q}',
            f'v_max_f32 v{q}, 0, v{q}',
            f'v_add_f32 v{q}, {f32bits(1e-5):#x}, v{q}',
            f'v_rsq_f32 v{vRSTD}, v{q}',
        ]

    def off(self, dst, idx_reg, mul, add):
        return [f's_mul_i32 s{dst}, s{idx_reg}, {mul}', f's_add_u32 s{dst}, s{dst}, s{sLB}', f's_add_u32 s{dst}, s{dst}, {add}']

    def xoff(self, dst, idx_reg, mul, add):
        return [f's_add_u32 s{sT3}, s{sLB}, {add}', f's_add_u32 s{sT4}, s{sTB}, {O_XA}', f's_cmp_lg_u32 s{sPURE}, 0',
                f's_cselect_b32 s{sT3}, s{sT4}, s{sT3}', f's_mul_i32 s{dst}, s{idx_reg}, {mul}', f's_add_u32 s{dst}, s{dst}, s{sT3}']

    def roff(self, dst, idx_reg, mul, add):
        return [f's_cmp_lg_u32 s{sPURE}, 0', f's_cselect_b32 s{sT3}, s{sTB}, s{sLB}',
                f's_mul_i32 s{dst}, s{idx_reg}, {mul}', f's_add_u32 s{dst}, s{dst}, s{sT3}', f's_add_u32 s{dst}, s{dst}, {add}']

    def pub_offsets(self, xoff, stoff, foff):
        return [f's_lshl_b32 s{sT0}, s{sRB}, 1', f's_add_u32 s{sT0}, s{sT0}, s{sRHO}',
                f's_lshl_b32 s{sT1}, s{sCB}, 1', f's_add_u32 s{sT1}, s{sT1}, s{sNU}',
                f's_mul_i32 s{sT2}, s{sT0}, 14', f's_add_u32 s{sT2}, s{sT2}, s{sT1}'] + \
            self.xoff(sXD, sT2, 2048, xoff) + self.off(sXS, sT2, 256, stoff) + \
            [f's_lshl_b32 s{sT0}, s{sT0}, 4', f's_add_u32 s{sT0}, s{sT0}, s{sT1}'] + self.off(sXF, sT0, 8, foff) + \
            [f's_cmp_ge_u32 s{sM}, 28'] + [f's_cselect_b32 s{r}, {WS_PUR}, s{r}' for r in (sXD, sXS, sXF)]

    def x_store(self, P, va, offs, sc=''):
        p = self.p
        S, Q2, t0, t1 = vT + 6, vT + 7, vT + 8, vT + 9
        for k in range(2):
            p(f'buffer_store_dwordx4 {vr(P+4*k)}, v{va}, {srd(S_WS)}, s{sXD} offen offset:{offs[k]} {sc}', tok='xst')
        p(f'v_mov_b32 v{t0}, s{sONES}')
        p(f'v_dot2_f32_bf16 v{S}, v{P}, v{t0}, 0')
        p(f'v_dot2_f32_bf16 v{Q2}, v{P}, v{P}, 0')
        for i in range(1, 8):
            p(f'v_dot2_f32_bf16 v{S}, v{P+i}, v{t0}, v{S}')
            p(f'v_dot2_f32_bf16 v{Q2}, v{P+i}, v{P+i}, v{Q2}')
        p(f'v_mov_b32 v{t0}, v{S}')
        p(f'v_mov_b32 v{t1}, v{Q2}')
        p(f'v_permlane32_swap_b32 v{S}, v{t0}')
        p(f'v_permlane32_swap_b32 v{Q2}, v{t1}')
        p(f'v_add_f32 v{S}, v{S}, v{t0}')
        p(f'v_add_f32 v{Q2}, v{Q2}, v{t1}')
        p('s_mov_b32 exec_hi, 0')
        p(f'buffer_store_dwordx2 {vr(S,2)}, v{vL8}, {srd(S_WS)}, s{sXS} offen {sc}', tok='xst')
        p('s_mov_b64 exec, -1')

    def res_unpack(self, P):
        L = []
        for q in range(8):
            L.append(f'v_lshlrev_b32 v{vRES+2*q}, 16, v{P+q}')
            L.append(f'v_and_b32 v{vRES+2*q+1}, 0xffff0000, v{P+q}')
        return L

    def prefetch(self, v128, sreg, base, nbytes):
        L = []
        o = 0
        while o < nbytes:
            oo = min(o, nbytes - 8192)
            L += [f's_add_u32 s{sT5}, s{sreg}, {base + oo}', f'buffer_load_dword a255, v{v128}, {srd(S_WS)}, s{sT5} offen sc1']
            o += 8192
        return L

    def touch(self, v128, sreg, imm, nlines):
        L = [f's_add_u32 s{sT5}, s{sreg}, {imm}']
        if nlines < 64:
            L += self.setexec(nlines)
        L.append(f'buffer_load_dword a255, v{v128}, {srd(S_WS)}, s{sT5} offen sc1')
        if nlines < 64:
            L.append('s_mov_b64 exec, -1')
        return [L]

    def wq_dma(self, tiles):
        sg, sl = sPOLL + 2, sPOLL + 3
        L = [f's_mul_i32 s{sg}, s{sJ}, 86016', f's_mul_i32 s{sl}, s{sW}, 7168', f's_add_u32 s{sg}, s{sg}, s{sl}']
        for tau in tiles:
            for o, n in ((0, 4), (4096, 3)):
                d = self.dma(S_WS, vL16, sg, WQT + tau * 28672 + o, (sl, tau * 28672 + o), 'wq', 'sc1', n)
                L += [d[:3]] + d[3:]
        return L

    def w1_dma(self, part):
        sg, sl = sPOLL, sPOLL + 1
        L = []
        if part == 0:
            L += [f's_mul_i32 s{sg}, s{sJ}, 100352', f's_mul_i32 s{sl}, s{sW}, 14336', f's_add_u32 s{sg}, s{sg}, s{sl}']
            groups = [(0, 4), (4096, 4), (8192, 4), (12288, 2)]
            base = 0
        else:
            L += [f's_mul_i32 s{sg}, s{sJ}, 100352', f's_mul_i32 s{sl}, s{sW}, 10240', f's_add_u32 s{sg}, s{sg}, s{sl}']
            groups = [(0, 4), (4096, 4), (8192, 2)]
            base = 57344
        for o, n in groups:
            d = self.dma(S_WS, vL16, sg, W1T + base + o, (sl, base + o), 'w1', 'sc1', n)
            L += [d[:3]] + d[3:]
        if part == 1:
            L += [f's_sub_u32 s{sg}, s{sg}, s{sl}', f's_lshl_b32 s{sl}, s{sNU}, 10', f's_add_u32 s{sg}, s{sg}, s{sl}']
            L.append(self.dma(S_WS, vL16, sg, W1T + 98304, (sl, 98304), 'w1', 'sc1', 1))
        return L

    def w2_setup(self, sbase, vz):
        return [f's_lshl_b32 s{sbase}, s{sCB}, 2', f's_add_u32 s{sbase}, s{sbase}, s{sW}', f's_mul_i32 s{sbase}, s{sbase}, 57344',
                f's_lshl_b32 s{sT1}, s{sNU}, 10', f'v_xor_b32 v{vz[0]}, s{sT1}, v{vL16}', f'v_xor_b32 v{vz[1]}, 1024, v{vz[0]}']

    def w2_loads(self, steps, sbase, vz):
        L = []
        for ks in steps:
            g = [f's_add_u32 s{sT4}, s{sbase}, {W2T + ks*2048}']
            g.append(f'buffer_load_dwordx4 {ar(ks*8)}, v{vz[0]}, {srd(S_WS)}, s{sT4} offen sc1')
            L += [g, f'buffer_load_dwordx4 {ar(ks*8+4)}, v{vz[1]}, {srd(S_WS)}, s{sT4} offen sc1']
        return L

    def lane_consts(self):
        p = self.p
        t0, t1 = vT + 6, vT + 7
        p(f'v_add_u32 v{vA1}, 57344, v{vL16}')
        p(f'v_and_b32 v{vSTA}, 31, v{vL}')
        p(f'v_lshlrev_b32 v{vSTA}, 3, v{vSTA}')
        p(f'v_lshrrev_b32 v{t0}, 5, v{vL}')
        p(f'v_mul_u32_u24 v{t1}, {7*256}, v{t0}')
        p(f'v_add_u32 v{vSTA}, v{vSTA}, v{t1}')
        p(f'v_lshrrev_b32 v{vFLG}, 2, v{vL}')
        p(f'v_lshlrev_b32 v{vFLG}, 7, v{vFLG}')
        p(f'v_and_b32 v{t1}, 3, v{vL}')
        p(f'v_lshl_add_u32 v{vFLG}, v{t1}, 3, v{vFLG}')
        for x in range(1, 4):
            p(f's_xor_b32 s{sT0}, s{sW}, {x}')
            p(f's_mul_i32 s{sT0}, s{sT0}, 12288')
            p(f's_add_u32 s{sT0}, s{sT0}, {LKV + (x-1)*4096}')
            p(f'v_add_u32 v{vRW+x-1}, s{sT0}, v{vL16}')
        p(f's_mul_i32 s{sT0}, s{sW}, 12288')
        p(f's_add_u32 s{sT0}, s{sT0}, {LKV}')
        p(f'v_add_u32 v{vRW+3}, s{sT0}, v{vL16}')
        p(f'v_bfe_u32 v{vX1A}, v{vL}, 4, 1')
        p(f'v_lshlrev_b32 v{vX1A}, 10, v{vX1A}')
        p(f'v_lshl_add_u32 v{vX1A}, v{t0}, 8, v{vX1A}')
        p(f'v_and_b32 v{t1}, 15, v{vL}')
        p(f'v_lshl_add_u32 v{vX1A}, v{t1}, 4, v{vX1A}')

    def pad(self):
        p = self.p
        k = len(self.pads)
        self.pads.append(f'L_pad{k}')
        p(f's_branch L_padskip{k}')
        p.label(f'L_pad{k}')
        p('s_setpc_b64 s[98:99]')
        p.label(f'L_padskip{k}')

    def emit_walker(self):
        L = []
        labs = [f'L_walk{w}' for w in range(4)]
        for w in range(1, 4):
            L += [Ins(f's_cmp_eq_u32 s{sW}, {w}'), Ins(f's_cbranch_scc1 {labs[w]}')]
        for w in range(4):
            if w:
                L.append(Label(labs[w]))
            for x in self.pads[w::4]:
                L.append(Ins(f's_call_b64 s[98:99], {x}'))
            if w < 3:
                L.append(Ins('s_branch L_walkend'))
        L.append(Label('L_walkend'))
        self.p.items[self.walker_at:self.walker_at] = L

    def rawq(self, tau, i):
        return (self.dma(S_WQ, self.vDQ, sRQ, (448, 896, 0)[tau] * 2 + i * 16 * 2688, (sLQ, tau * 28672 + i * 1024), f'rq{tau}{i}'))

    def xform(self, tau, R, vcs, vones, between=None):
        p = self.p

        def fin(i):
            p(f'ds_write_b128 v{self.vWQ}, {vr(R+4*i)} offset:{tau*28672+i*1024}')
            for q in range(4):
                p(f'v_dot2_f32_bf16 v{vcs}, v{R+4*i+q}, v{vones}, {f"v{vcs}" if i or q else 0}')
        for i in range(7):
            p.wait(f'rq{tau}{i}')
            for jj in range(2):
                p(f'ds_read_b64_tr_b16 {vr(R+4*i+2*jj,2)}, v{self.vTQ} offset:{tau*28672+i*1024+jj*512}')
            if between:
                between(i)
            if i >= 1:
                fin(i - 1)
        fin(6)

    def cs_partial(self, taus, vcs, t2, t3):
        p = self.p
        for k, tau in enumerate(taus):
            p(f'v_mov_b32 v{t2}, v{vcs+k}')
            p(f'v_permlane32_swap_b32 v{vcs+k}, v{t2}')
            p(f'v_add_f32 v{vcs+k}, v{vcs+k}, v{t2}')
        p(f'v_and_b32 v{t2}, 31, v{vL}')
        p(f'v_lshlrev_b32 v{t2}, 2, v{t2}')
        p(f's_mul_i32 s{sT0}, s{sW}, 384')
        p(f's_add_u32 s{sT0}, s{sT0}, {L_CSP}')
        p(f'v_add_u32 v{t3}, s{sT0}, v{t2}')
        for k, tau in enumerate(taus):
            p(f'ds_write_b32 v{t3}, v{vcs+k} offset:{tau*128}')

    def cs_sum(self, taus, R, t2, t3):
        p = self.p
        p(f'v_add_u32 v{t3}, {L_CSP}, v{t2}')
        for k, tau in enumerate(taus):
            for w in range(4):
                p(f'ds_read_b32 v{R+4*k+w}, v{t3} offset:{w*384+tau*128}')
        p(f'v_add_u32 v{t3}, {L_CSQ}, v{t2}')
        for k, tau in enumerate(taus):
            r = R + 4 * k
            p(f'v_add_f32 v{r}, v{r}, v{r+1}')
            p(f'v_add_f32 v{r+2}, v{r+2}, v{r+3}')
            p(f'v_add_f32 v{r}, v{r}, v{r+2}')
            p(f'ds_write_b32 v{t3}, v{r} offset:{tau*128}')
        p('s_waitcnt lgkmcnt(0)')

    def prologue(self):
        p = self.p
        t0, t1, t2, t3 = vT, vT + 1, vT + 2, vT + 3
        self.vDQ, self.vTQ, self.vWQ = vDQ, vTQ, vWQ = vT + 10, vT + 11, vT + 12
        p('s_cmp_ge_u32 s2, 256')
        p('s_cbranch_scc1 L_end')
        p(f's_load_dwordx16 s[{sO}:{sO+15}], s[0:1], 0')
        p(f's_load_dwordx2 s[{S_WSP}:{S_WSP+1}], s[0:1], 64')
        p(f's_getpc_b64 s[{sT0}:{sT0+1}]')
        p.label('L_pc')
        p(f'v_lshlrev_b32 v{t2}, 7, v0')
        p(f'global_load_dword a255, v{t2}, s[{sT0}:{sT0+1}]')
        p(f'v_add_u32 v{t2}, 0x8000, v{t2}')
        p(f'v_min_u32 v{t2}, L_codeend-L_pc, v{t2}')
        p(f'global_load_dword a255, v{t2}, s[{sT0}:{sT0+1}]')
        if os.environ.get('CALIB'):
            p('s_memrealtime s[100:101]')
        self.stamp('start')
        p(f'v_lshrrev_b32 v{vT}, 6, v0')
        p(f'v_and_b32 v{vL}, 63, v0')
        p(f'v_readfirstlane_b32 s{sW}, v{vT}')
        p(f's_lshr_b32 s{sM}, s2, 3')
        p(f's_and_b32 s{sTEAM}, s2, 7')
        p(f's_mul_i32 s{sRB}, s{sM}, 37')
        p(f's_lshr_b32 s{sRB}, s{sRB}, 8')
        p(f's_mul_i32 s{sT0}, s{sRB}, 7')
        p(f's_sub_u32 s{sCB}, s{sM}, s{sT0}')
        p(f's_lshr_b32 s{sRHO}, s{sW}, 1')
        p(f's_and_b32 s{sNU}, s{sW}, 1')
        p(f's_lshl_b32 s{sT0}, s{sTEAM}, 2')
        p(f's_add_u32 s{sT0}, s{sT0}, s{sRB}')
        p(f's_lshl_b32 s{sT1}, s{sT0}, 1')
        p(f's_add_u32 s{sT1}, s{sT1}, s{sRHO}')
        p(f's_mul_i32 s{sQOFF}, s{sT1}, {32*896}')
        p(f's_lshl_b32 s{sT1}, s{sCB}, 7')
        p(f's_add_u32 s{sQOFF}, s{sQOFF}, s{sT1}')
        p(f's_lshl_b32 s{sT1}, s{sNU}, 6')
        p(f's_add_u32 s{sQOFF}, s{sQOFF}, s{sT1}')
        vPK, vPQ, vH = vT + 14, vT + 15, vT + 13
        p(f'v_and_b32 v{t3}, 31, v{vL}')
        p(f'v_mul_u32_u24 v{t3}, 896, v{t3}')
        p(f'v_lshrrev_b32 v{vH}, 5, v{vL}')
        p(f'v_lshl_add_u32 v{t3}, v{vH}, 3, v{t3}')
        p(f's_lshl_b32 s{sT2}, s{sM}, 2')
        p(f's_add_u32 s{sT2}, s{sT2}, s{sW}')
        p(f's_mul_i32 s{sT3}, s{sT2}, 49')
        p(f'v_add_u32 v{t2}, s{sT3}, v{vL}')
        p(f'v_mul_u32_u24 v{vPK}, 74899, v{t2}')
        p(f'v_lshrrev_b32 v{vPK}, 20, v{vPK}')
        p(f'v_mul_u32_u24 v{vPK}, 7, v{vPK}')
        p(f'v_add_u32 v{vPK}, v{vPK}, v{t2}')
        p(f'v_lshlrev_b32 v{vPK}, 7, v{vPK}')
        b = sO

        def mksrd(d, src, n):
            p(f's_mov_b32 s{d}, s{src}')
            p(f's_and_b32 s{d+1}, s{src+1}, 0xffff')
            p(f's_mov_b32 s{d+2}, {n}')
            p(f's_mov_b32 s{d+3}, 0x20000')
        mksrd(S_X, b, 1835008)
        mksrd(S_WQ, b + 2, 1204224)
        XR = 96
        for q in range(4):
            p(f'buffer_load_dwordx2 {vr(XR+2*q,2)}, v{t3}, {srd(S_X)}, s{sQOFF} offen offset:{16*q}')
        p('s_mov_b32 exec_hi, 0x1ffff')
        p(f'buffer_load_dword a255, v{vPK}, {srd(S_WQ)}, 0 offen offset:896')
        p('s_mov_b64 exec, -1')
        p(f's_load_dwordx2 s[{sF}:{sF+1}], s[{S_WSP}:{S_WSP+1}], {WS_EPOCH}')
        for (d, src, n) in ((S_WO, b + 4, 401408), (S_W1, b + 8, 1605632),
                            (S_W2, b + 10, 1605632), (S_OUT, b + 12, 1835008), (S_WS, S_WSP, WS_BYTES)):
            mksrd(d, src, n)
        p(f's_mul_i32 s{sT3}, s{sT2}, 25')
        p(f'v_add_u32 v{t2}, s{sT3}, v{vL}')
        p(f'v_mul_u32_u24 v{vPQ}, 149797, v{t2}')
        p(f'v_lshrrev_b32 v{vPQ}, 20, v{vPQ}')
        p(f'v_mul_u32_u24 v{vPQ}, 14, v{vPQ}')
        p(f'v_add_u32 v{vPQ}, v{vPQ}, v{t2}')
        p(f'v_lshlrev_b32 v{vPQ}, 7, v{vPQ}')
        p(f's_and_b32 s{sJ}, s{sM}, 15')
        p(f's_lshr_b32 s{sA}, s{sM}, 4')
        p(f'v_lshrrev_b32 v{t0}, 2, v{vL}')
        p(f'v_and_b32 v{t1}, 3, v{vL}')
        p(f'v_lshlrev_b32 v{t3}, 3, v{t1}')
        p(f'v_lshlrev_b32 v{t1}, 4, v{t1}')
        self.stamp('ka')
        sI, sSTG = sO, sO + 1
        sFL, sDST, sJOB, sDST2 = sJFL, sO + 3, sO + 4, sO + 5

        p(f's_mul_i32 s{sLB}, s{sTEAM}, {STRIDE}')
        p(f's_add_u32 s{sLB}, s{sLB}, {TEAM0}')
        p(f's_mov_b32 s{sTB}, s{sLB}')
        p(f'v_lshlrev_b32 v{vL16}, 4, v{vL}')
        p(f'v_lshlrev_b32 v{vL8}, 3, v{vL}')
        p(f's_mov_b32 s{sONES}, 0x3f803f80')
        p(f's_mov_b32 s{sPURE}, 1')
        p(f's_mov_b64 s[{sIMP}:{sIMP+1}], 0')
        p.ext(self.pub_offsets(O_XA, O_STA, O_FXA))
        vD, vTR, vTR8 = vT + 4, vT + 5, vT + 13
        FR = 32
        p(f's_lshl_b32 s{sI}, s{sTEAM}, 1')
        p(f's_add_u32 s{sI}, s{sI}, s{sA}')
        p(f's_lshl_b32 s{sSTG}, s{sW}, 13')
        p(f's_add_u32 s{sSTG}, s{sSTG}, {LKV}')
        lA = [p.newlabel('jobA') for _ in range(4)]
        p(f's_mov_b32 s{sJOB}, 0')
        p.mark('maybe_begin')
        p(f's_cmp_ge_u32 s{sW}, 2')
        p(f's_cbranch_scc1 {lA[0]}')
        p(f's_cmp_eq_u32 s{sW}, 0')
        p(f's_cbranch_scc1 {lA[2]}')
        p(f's_cmp_ge_u32 s{sI}, 14')
        p(f's_cbranch_scc1 {lA[2]}')
        p(f'v_bfe_u32 v{vD}, v{vL}, 1, 3')
        p(f'v_bfe_u32 v{t2}, v{vL}, 4, 1')
        p(f'v_lshl_add_u32 v{vD}, v{t2}, 4, v{vD}')
        p(f'v_bfe_u32 v{t2}, v{vL}, 5, 1')
        p(f'v_lshl_add_u32 v{vD}, v{t2}, 3, v{vD}')
        p(f'v_mul_u32_u24 v{vD}, 3584, v{vD}')
        p(f'v_and_b32 v{t2}, 1, v{vL}')
        p(f'v_lshl_add_u32 v{vD}, v{t2}, 4, v{vD}')
        p(f's_mul_i32 s{sT0}, s{sI}, {32*3584}')
        p(f's_mul_i32 s{sT1}, s{sJ}, 224')
        p(f's_add_u32 s{sT0}, s{sT0}, s{sT1}')
        for t in range(7):
            p.ext(self.dma(S_W1, vD, sT0, t * 32, (sSTG, t * 1024), 'raw'))
        p(f's_mov_b32 s{sJOB}, 2')
        p('s_waitcnt vmcnt(8)')
        p(f's_branch {lA[3]}')
        p.label(lA[0])
        p(f'v_mul_u32_u24 v{vD}, 896, v{t0}')
        p(f'v_add_u32 v{vD}, v{vD}, v{t1}')
        p(f's_cmp_ge_u32 s{sM}, 28')
        p(f's_cbranch_scc1 {lA[1]}')
        sI2, sSL, sHF = sT2, sT3, sT4
        p(f's_lshl_b32 s{sI2}, s{sTEAM}, 2')
        p(f's_add_u32 s{sI2}, s{sI2}, s{sRB}')
        p(f's_lshr_b32 s{sSL}, s{sI2}, 1')
        p(f's_and_b32 s{sHF}, s{sI2}, 1')
        p(f's_mul_i32 s{sT0}, s{sSL}, {112*896}')
        p(f's_mul_i32 s{sT1}, s{sHF}, {64*896}')
        p(f's_add_u32 s{sT0}, s{sT0}, s{sT1}')
        p(f's_lshl_b32 s{sT1}, s{sCB}, 7')
        p(f's_add_u32 s{sT0}, s{sT0}, s{sT1}')
        p(f's_lshl_b32 s{sT1}, s{sNU}, 6')
        p(f's_add_u32 s{sT0}, s{sT0}, s{sT1}')
        for k in range(4):
            p.ext(self.dma(S_W2, vD, sT0, k * 16 * 896, (sSTG, k * 1024), 'raw'))
        p(f's_add_u32 s{sJOB}, s{sHF}, 3')
        p('s_waitcnt vmcnt(5)')
        p(f's_branch {lA[3]}')
        p.label(lA[1])
        p(f's_cmp_eq_u32 s{sTEAM}, 7')
        p(f's_cbranch_scc1 {lA[2]}')
        p(f's_mul_i32 s{sT0}, s{sCB}, {112*896}')
        p(f's_lshl_b32 s{sT1}, s{sTEAM}, 7')
        p(f's_add_u32 s{sT0}, s{sT0}, s{sT1}')
        p(f's_lshl_b32 s{sT1}, s{sNU}, 6')
        p(f's_add_u32 s{sT0}, s{sT0}, s{sT1}')
        for k in range(8):
            p.ext(self.dma(S_WO, vD, sT0, k * 16 * 896, (sSTG, k * 1024), 'raw'))
        p(f's_mov_b32 s{sJOB}, 5')
        p.label(lA[2])
        p('s_waitcnt vmcnt(1)')
        p.mark('maybe_end')
        p.label(lA[3])
        self.stamp('jA')
        lp0 = p.newlabel('p0skip')
        p(f's_cmp_ge_u32 s{sM}, 28')
        p(f's_cselect_b32 s{sXF}, -1, s{sXF}')
        p(f's_cbranch_scc1 {lp0}')
        p.mark('drained_vm')
        self.x_store(XR, vL16, (0, 1024), 'sc1')
        p.label(lp0)
        p('s_mov_b64 exec, 0x1ffffff')
        p(f'buffer_load_dword a255, v{vPQ}, {srd(S_WQ)}, 0 offen')
        p('s_mov_b64 exec, -1')
        self.stamp('x0')
        p(f'v_mul_u32_u24 v{vDQ}, 2688, v{t0}')
        p(f'v_add_u32 v{vDQ}, v{vDQ}, v{t1}')
        p(f's_mul_i32 s{sRQ}, s{sW}, {7*16*2688}')
        p(f's_mul_i32 s{sT1}, s{sJ}, 56')
        p(f's_add_u32 s{sRQ}, s{sRQ}, s{sT1}')
        p(f's_mul_i32 s{sLQ}, s{sW}, 7168')
        p(f'v_bfe_u32 v{t2}, v{vL}, 4, 1')
        p(f'v_lshl_add_u32 v{t2}, v{t2}, 5, v{t3}')
        p(f'v_bfe_u32 v{vTR}, v{vL}, 2, 2')
        p(f'v_lshl_add_u32 v{t2}, v{vTR}, 6, v{t2}')
        p(f'v_lshl_add_u32 v{vTQ}, v{vH}, 8, v{t2}')
        p(f'v_add_u32 v{vTR}, s{sSTG}, v{vTQ}')
        p(f'v_add_u32 v{t2}, s{sSTG}, v{t2}')
        p(f'v_lshl_add_u32 v{vTR8}, v{vH}, 9, v{t2}')
        p(f'v_add_u32 v{vTQ}, s{sLQ}, v{vTQ}')
        p(f'v_add_u32 v{vWQ}, s{sLQ}, v{vL16}')
        p(f's_mov_b32 s{sPERM}, 0x07060302')
        p(f's_lshl_b32 s{sTP}, s{sA}, 2')
        p(f's_add_u32 s{sTP}, s{sTP}, s{sW}')
        self.lane_consts()
        vCSP = 104
        p(f'v_mov_b32 v{vCSP+3}, s{sONES}')
        p.ext(self.res_unpack(XR))
        p('s_waitcnt lgkmcnt(0)')
        p(f's_add_u32 s{sF}, s{sF}, 1')
        p(f's_addc_u32 s{sF+1}, s{sF+1}, 0')
        p(f'v_mov_b32 v{vF}, s{sF}')
        p(f'v_mov_b32 v{vF+1}, s{sF+1}')
        self.walker_at = len(p.items)
        self.stamp('wk')
        p('s_waitcnt vmcnt(1)')
        p.mark('drained_vm')
        self.stamp('rt1')
        for i in range(4):
            p.ext(self.rawq(0, i))
        self.flag_opt(sXF)

        def finish(nfr, offs):
            L = []
            base = None
            for k in range(nfr):
                hi, lo = offs[k] // 4096 * 4096, offs[k] % 4096
                if hi != base:
                    L.append(f's_add_u32 s{sT5}, s{sDST}, {hi}')
                    base = hi
                L.append(f'buffer_store_dwordx4 {vr(FR+4*k)}, v{vL16}, {srd(S_WS)}, s{sT5} offen offset:{lo} sc1')
            return L
        lB = {k: p.newlabel('jobB') for k in (3, 4, 5, 'join')}
        p(f's_mov_b32 s{sFL}, -1')
        p.mark('maybe_begin')
        p(f's_cmp_eq_u32 s{sJOB}, 0')
        p(f's_cbranch_scc1 {lB["join"]}')
        p(f's_cmp_eq_u32 s{sJOB}, 5')
        p(f's_cbranch_scc1 {lB[5]}')
        p(f's_cmp_ge_u32 s{sJOB}, 3')
        p(f's_cbranch_scc1 {lB[3]}')
        p(f'v_lshl_add_u32 v{vTR}, v{t0}, 5, v{t3}')
        p(f'v_add_u32 v{vTR}, s{sSTG}, v{vTR}')
        for t in range(7):
            for jj in range(2):
                p(f'ds_read_b64_tr_b16 {vr(FR+t*4+2*jj,2)}, v{vTR} offset:{t*1024+jj*512}')
        p(f's_mul_i32 s{sDST}, s{sJ}, 100352')
        p(f's_add_u32 s{sDST}, s{sDST}, {W1T}')
        p(f's_mul_i32 s{sDST2}, s{sI}, 3072')
        p(f's_add_u32 s{sDST2}, s{sDST2}, s{sDST}')
        p(f's_add_u32 s{sDST2}, s{sDST2}, 57344')
        p(f's_lshl_b32 s{sT0}, s{sI}, 12')
        p(f's_add_u32 s{sDST}, s{sDST}, s{sT0}')
        p(f's_lshl_b32 s{sFL}, s{sJ}, 4')
        p(f's_add_u32 s{sFL}, s{sFL}, s{sI}')
        p(f's_lshl_b32 s{sFL}, s{sFL}, 3')
        p(f's_add_u32 s{sFL}, s{sFL}, {F_W1}')
        p.ext(finish(4, [t * 1024 for t in range(4)]))
        for t in range(4, 7):
            p(f'buffer_store_dwordx4 {vr(FR+4*t)}, v{vL16}, {srd(S_WS)}, s{sDST2} offen offset:{(t-4)*1024} sc1')
        p(f's_branch {lB["join"]}')
        p.label(lB[3])
        for sg in range(2):
            for jj in range(2):
                p(f'ds_read_b64_tr_b16 {vr(FR+sg*4+2*jj,2)}, v{vTR} offset:{(16*jj+8*sg)*64}')
        p(f's_lshl_b32 s{sI2}, s{sTEAM}, 2')
        p(f's_add_u32 s{sI2}, s{sI2}, s{sRB}')
        p(f's_lshr_b32 s{sSL}, s{sI2}, 1')
        p(f's_and_b32 s{sHF}, s{sI2}, 1')
        p(f's_mul_i32 s{sDST}, s{sCB}, 229376')
        p(f's_mul_i32 s{sT0}, s{sSL}, 14336')
        p(f's_add_u32 s{sDST}, s{sDST}, s{sT0}')
        p(f's_lshl_b32 s{sT0}, s{sHF}, 13')
        p(f's_add_u32 s{sDST}, s{sDST}, s{sT0}')
        p(f's_lshl_b32 s{sT0}, s{sNU}, 10')
        p(f's_add_u32 s{sDST}, s{sDST}, s{sT0}')
        p(f's_add_u32 s{sDST}, s{sDST}, {W2T}')
        p(f's_lshl_b32 s{sFL}, s{sCB}, 5')
        p(f's_add_u32 s{sFL}, s{sFL}, s{sI2}')
        p(f's_lshl_b32 s{sFL}, s{sFL}, 1')
        p(f's_add_u32 s{sFL}, s{sFL}, s{sNU}')
        p(f's_lshl_b32 s{sFL}, s{sFL}, 3')
        p(f's_add_u32 s{sFL}, s{sFL}, {F_W2}')
        p(f's_cmp_eq_u32 s{sJOB}, 4')
        p(f's_cbranch_scc1 {lB[4]}')
        for sg in range(2, 4):
            for jj in range(2):
                p(f'ds_read_b64_tr_b16 {vr(FR+sg*4+2*jj,2)}, v{vTR} offset:{(32+16*jj+8*(sg%2))*64}')
        p.ext(finish(4, [k * 2048 for k in range(4)]))
        p(f's_branch {lB["join"]}')
        p.label(lB[4])
        for jj in range(2):
            p(f'ds_read_b64_tr_b16 {vr(FR+8+2*jj,2)}, v{vTR8} offset:{(32+4*jj)*64}')
        p('s_waitcnt lgkmcnt(0)')
        p.ext(finish(3, [k * 2048 for k in range(3)]))
        p(f's_branch {lB["join"]}')
        p.label(lB[5])
        for hd in range(4):
            for kp in range(2):
                for jj in range(2):
                    p(f'ds_read_b64_tr_b16 {vr(FR+(hd*2+kp)*4+2*jj,2)}, v{vTR} offset:{(28*hd+16*kp+8*jj)*64}')
        p(f's_lshl_b32 s{sFL}, s{sTEAM}, 2')
        p(f's_add_u32 s{sFL}, s{sFL}, s{sCB}')
        p(f's_lshl_b32 s{sDST}, s{sFL}, 14')
        p(f's_lshl_b32 s{sT0}, s{sNU}, 10')
        p(f's_add_u32 s{sDST}, s{sDST}, s{sT0}')
        p(f's_add_u32 s{sDST}, s{sDST}, {WOT}')
        p(f's_lshl_b32 s{sFL}, s{sFL}, 1')
        p(f's_add_u32 s{sFL}, s{sFL}, s{sNU}')
        p(f's_lshl_b32 s{sFL}, s{sFL}, 3')
        p(f's_add_u32 s{sFL}, s{sFL}, {F_WO}')
        p('s_waitcnt lgkmcnt(0)')
        p('s_mov_b32 exec_lo, 0')
        for hd in range(4):
            p(f'v_mov_b32 v{FR+(hd*2+1)*4+2}, 0')
            p(f'v_mov_b32 v{FR+(hd*2+1)*4+3}, 0')
        p('s_mov_b64 exec, -1')
        p.ext(finish(8, [k * 2048 for k in range(8)]))
        p.mark('maybe_end')
        p.label(lB['join'])
        p(f's_getreg_b32 s{sT0}, hwreg(HW_REG_XCC_ID)')
        p(f's_and_b32 s{sT0}, s{sT0}, 15')
        p(f's_lshl_b32 s{sT0}, s{sT0}, 28')
        p(f's_xor_b32 s{sT0}, s{sT0}, s{sF+1}')
        p(f'v_mov_b32 v{t2}, s{sF}')
        p(f'v_mov_b32 v{t3}, s{sT0}')
        p(f's_lshl_b32 s{sT1}, s{sTEAM}, 8')
        p(f's_lshl_b32 s{sT2}, s{sM}, 3')
        p(f's_add_u32 s{sT1}, s{sT1}, s{sT2}')
        p(f's_add_u32 s{sT1}, s{sT1}, {WS_PUR}')
        lx = p.newlabel('noxcc')
        p(f's_cmp_lg_u32 s{sW}, 0')
        p(f's_cbranch_scc1 {lx}')
        p.mark('maybe_begin')
        p('s_mov_b64 exec, 1')
        p(f'buffer_store_dwordx2 {vr(t2,2)}, off, {srd(S_WS)}, s{sT1} sc1')
        p('s_mov_b64 exec, -1')
        p.mark('maybe_end')
        p.label(lx)
        self.stamp('jB')
        for i in range(4, 7):
            p.ext(self.rawq(0, i))
        for i in range(7):
            p.ext(self.rawq(1, i))
        self.xform(0, 128, vCSP, vCSP + 3)
        self.flag_opt(sFL)
        self.stamp('xf0')
        self.xform(1, 160, vCSP + 1, vCSP + 3)
        self.cs_partial((0, 1), vCSP, t2, t3)
        p('s_waitcnt lgkmcnt(0)')
        p('s_barrier')
        self.stamp('bar')
        self.cs_sum((0, 1), 108, t2, t3)
        self.stamp('pro')

    def wqt_publish(self, R):
        p = self.p
        l = p.newlabel('nowqt')
        p(f's_lshl_b32 s{sT0}, s{sTEAM}, 1')
        p(f's_add_u32 s{sT0}, s{sT0}, s{sA}')
        p(f's_cmp_ge_u32 s{sT0}, 14')
        p(f's_cbranch_scc1 {l}')
        p(f's_cmp_lg_u32 s{sW}, 0')
        p(f's_cbranch_scc1 {l}')
        p.mark('maybe_begin')
        p(f's_lshl_b32 s{sT1}, s{sT0}, 11')
        p(f'v_add_u32 v{R+24}, s{sT1}, v{vL16}')
        for tau in range(2):
            for kp in range(2):
                p(f'ds_read_b128 {vr(R+(tau*2+kp)*4)}, v{R+24} offset:{tau*28672+kp*1024}')
        p(f's_mul_i32 s{sT2}, s{sJ}, 86016')
        p(f's_add_u32 s{sT1}, s{sT1}, s{sT2}')
        for tau in range(2):
            p(f's_add_u32 s{sT2}, s{sT1}, {WQT + tau*28672}')
            for kp in range(2):
                p(f'buffer_store_dwordx4 {vr(R+(tau*2+kp)*4)}, v{vL16}, {srd(S_WS)}, s{sT2} offen offset:{kp*1024} sc1')
        p(f's_lshl_b32 s{sJFL}, s{sJ}, 4')
        p(f's_add_u32 s{sJFL}, s{sJFL}, s{sT0}')
        p(f's_lshl_b32 s{sJFL}, s{sJFL}, 3')
        p(f's_add_u32 s{sJFL}, s{sJFL}, {F_WQ}')
        p.mark('maybe_end')
        p.label(l)

    def p1(self):
        p, L0 = self.p, self.L == 0
        X, ACC, RING, CS = 32, 144, 192, 224
        accK, accV, accQ = ACC, ACC + 16, ACC + 32
        PK, PV = vT, vT + 8
        sXO, sST, sFX, sKV, sKF = sO, sO + 7, sO + 8, sO + 9, sO + 10
        p.ext(self.xoff(sXO, sTP, 28672, O_XA))
        for g in range(1, 7):
            p(f's_add_u32 s{sXO+g}, s{sXO}, {4096*g}')
        p.ext(self.off(sST, sTP, 3584, O_STA))
        p.ext(self.off(sFX, sTP, 128, O_FXA))
        p(f's_lshl_b32 s{sT0}, s{sJ}, 3')
        p(f's_add_u32 s{sT0}, s{sT0}, s{sTP}')
        p.ext(self.off(sKV, sT0, 4096, O_KV))
        p.ext(self.off(sKF, sT0, 128, O_FKV))
        p(f'v_lshrrev_b32 v{vCSA}, 5, v{vL}')
        p(f'v_lshlrev_b32 v{vCSA}, 4, v{vCSA}')
        p(f'v_add_u32 v{vCSA}, {L_CSQ}, v{vCSA}')
        sW2E, sW2F = sO + 11, sO + 12
        vQ = 238
        if L0:
            self.vDQ, self.vTQ, self.vWQ = vQ, 225, 226
            p.ext([f'v_lshrrev_b32 v{vQ}, 2, v{vL}', f'v_mul_u32_u24 v{vQ}, 2688, v{vQ}', f'v_and_b32 v{vQ+1}, 3, v{vL}',
                   f'v_lshl_add_u32 v{vQ}, v{vQ+1}, 4, v{vQ}', f'v_lshlrev_b32 v{vQ+1}, 7, v{vL}'])

        def frag(f):
            if f < 56:
                base, off = vL16, (f % 2) * 28672 + (f // 2) * 1024
            else:
                base, off = vA1, (f - 56) * 1024
            return f'ds_read_b128 {vr(RING + 4*(f % 8))}, v{base} offset:{off}'

        def mf(f):
            acc, s = ((accK, accV)[f % 2], f // 2) if f < 56 else (accQ, f - 56)
            return f'{MF32} {vr(acc,16)}, {vr(RING+4*(f%8))}, {vr(X+4*s)}, {vr(acc,16) if s else 0}'

        def xl(s):
            return f'buffer_load_dwordx4 {vr(X+4*s)}, v{vL16}, {srd(S_WS)}, s{sXO + s//4} offen offset:{(s%4)*1024} sc1'
        PD = 6
        for f in range(PD):
            p(frag(f))
        self.stamp('p5')
        self.pad()
        self.vpoll(vL8, f's{sFX}', 14, acquire=not L0)
        self.stamp('E')
        XP = 8
        for s in range(XP):
            p(xl(s))
        mem, pre = {}, {}
        for f in range(84):
            mem[f] = []
            if f + PD < 84 and not (f < 56 <= f + PD):
                mem[f].append(frag(f + PD))
            if f < 56 and f % 2 == 0 and f // 2 + XP < 28:
                mem[f].append(xl(f // 2 + XP))
            if 27 <= f < 41 and f % 2 == 1:
                mem[f].append(self.stats_loads(sST, CS)[(f - 27) // 2])
            if f % 2 == 0:
                pre[f] = [Touch(vr(RING + 4 * (f % 8)) + ' ' + vr(RING + 4 * ((f + 1) % 8)) + (' ' + vr(X + 4 * (f // 2)) if f < 56 else ''))]
        if L0:
            for i in range(7):
                mem[40 + 2 * i].append(self.rawq(2, i))
        else:
            p(f's_mul_i32 s{sT0}, s{sW}, 7168')
            p(f'v_add_u32 v{vQ}, s{sT0}, v{vA1}')
            for i in range(7):
                mem[3 + 4 * i].append(Ins(f'ds_write_b128 v{vQ}, {ar(224 + 4*i)} offset:{1024*i}', 'wq'))
        for f in (0, 16, 38):
            mem[f] += self.stamp_items(f'k{f}')

        def cs_reads(tau, dst):
            return [f'ds_read_b128 {vr(dst+4*q)}, v{vCSA} offset:{tau*128 + 32*q}' for q in range(4)]
        p.ext(sched([mf(f) for f in range(56)], pre, mem, cs_reads(1, accQ) + cs_reads(0, PK) + self.stats_reduce(CS), 6, start=43))
        self.stamp('kv')

        def epi(acc, cs, P):
            L = []
            for r in range(0, 16, 2):
                L.append(f'v_pk_fma_f32 {vr(acc+r,2)}, {vr(cs+r,2)}, {vr(vMEAN,2)}, {vr(acc+r,2)} op_sel:[0,0,0] op_sel_hi:[1,0,1]')
            for r in range(0, 16, 2):
                L.append(f'v_pk_mul_f32 {vr(acc+r,2)}, {vr(acc+r,2)}, {vr(vMEAN,2)} op_sel:[0,1] op_sel_hi:[1,1]')
                L.append(f'v_cvt_pk_bf16_f32 v{P+r//2}, v{acc+r}, v{acc+r+1}')
            return L

        def pad(P, c6, c7):
            return ['s_mov_b32 exec_lo, 0', f'v_mov_b32 v{P+6}, {c6:#x}', f'v_mov_b32 v{P+7}, {c7:#x}', 's_mov_b64 exec, -1']

        def st(P, o):
            return [Ins(f'buffer_store_dwordx4 {vr(P+4*k)}, v{vL16}, {srd(S_WS)}, s{sKV} offen offset:{o+1024*k} sc1', 'kvst') for k in range(2)]
        t0, t1 = CS, CS + 1
        p.ext(epi(accK, PK, PK) + pad(PK, 0x3f803f80, 0x3f80) + st(PK, 0))
        p.ext(epi(accV, accQ, PV) + pad(PV, 0x3f80, 0) + st(PV, 2048))
        self.stamp('kvs')
        if L0:
            R = ACC
            vcs, vones, t2, t3 = R + 28, R + 29, R + 30, R + 31
            p.ext([f'v_and_b32 v225, 3, v{vL}', 'v_lshlrev_b32 v225, 3, v225', f'v_bfe_u32 v226, v{vL}, 4, 1',
                   'v_lshl_add_u32 v225, v226, 5, v225', f'v_bfe_u32 v226, v{vL}, 2, 2', 'v_lshl_add_u32 v225, v226, 6, v225',
                   f'v_lshrrev_b32 v226, 5, v{vL}', 'v_lshl_add_u32 v225, v226, 8, v225', f'v_add_u32 v225, s{sLQ}, v225',
                   f'v_add_u32 v226, s{sLQ}, v{vL16}', f'v_mov_b32 v{vones}, s{sONES}'])
            self.xform(2, R, vcs, vones)
            for i in range(28):
                p(f'v_accvgpr_write_b32 a{224+i}, v{R+i}')
            self.cs_partial((2,), vcs, t2, t3)
            p('s_waitcnt lgkmcnt(0)')
            p('s_barrier')
            self.cs_sum((2,), R, t2, t3)
        else:
            p.wait('wq')
            p('s_barrier')
        for f in range(56, 56 + PD):
            p(frag(f))
        side = [f's_lshl_b32 s{sT0}, s{sW}, 12', f's_add_u32 s{sT0}, s{sT0}, {LKV + 8*4096}',
                f'v_add_u32 v{t0}, s{sT0}, v{vL16}',
                f'ds_write_b128 v{t0}, {vr(PK)}', f'ds_write_b128 v{t0}, {vr(PK+4)} offset:1024',
                f'v_and_b32 v{t1}, 31, v{vL}', f'v_lshlrev_b32 v{t1}, 6, v{t1}', f'v_lshrrev_b32 v{t0}, 5, v{vL}',
                f'v_lshl_add_u32 v{t1}, v{t0}, 4, v{t1}', f'v_add_u32 v{t0}, s{sT0}, v{t1}',
                f'ds_write_b128 v{t0}, {vr(PV)} offset:2048', f'ds_write_b128 v{t0}, {vr(PV+4)} offset:{2048+32}',
                f'v_mul_f32 v{vRSTD}, {f32bits(28 ** -0.5 * math.log2(math.e)):#x}, v{vRSTD}'] + cs_reads(2, CS) + self.kv_addr()
        pre2 = {f - 56: v for f, v in pre.items() if f >= 56}
        mem2 = {f - 56: v for f, v in mem.items() if f >= 56}
        mem2[8 if L0 else 22].append([Wait(['kvst'])] + self.flag_sc1(sKF))
        p.ext(sched([mf(f) for f in range(56, 84)], pre2, mem2, side, 6, start=0))
        self.stamp('q')
        QF = 200
        p.ext(epi(accQ, CS, QF))
        p.ext(pad(QF, 0, 0x3f800000))
        if L0:
            p(f's_mov_b32 s{sJFL}, -1')
            self.wqt_publish(32)
        self.pad()
        p('s_barrier')
        self.stamp('p1')

    sKD, sKL, sKFl, sNULL = sO + 11, sO + 13, (sO + 15, 78), 79

    def kv_addr(self):
        sKD, sKL, sKFl, sNULL = self.sKD, self.sKL, self.sKFl, self.sNULL
        L = [f's_mov_b32 s{sNULL}, 0']
        for k in range(2):
            L += [f's_lshl_b32 s{sT0}, s{sW}, 1', f's_add_u32 s{sT0}, s{sT0}, {k}',
                  f's_lshl_b32 s{sKL+k}, s{sT0}, 12', f's_add_u32 s{sKL+k}, s{sKL+k}, {LKV}',
                  f's_lshl_b32 s{sT1}, s{sA}, 2', f's_add_u32 s{sT0}, s{sT0}, s{sT1}',
                  [f's_cmp_lt_u32 s{sT0}, 8', f's_cselect_b32 s{sT1}, {STRIDE}, 0'],
                  f's_sub_u32 s{sT1}, s{sLB}, s{sT1}', f's_and_b32 s{sT0}, s{sT0}, 7',
                  [f's_cmp_lt_i32 s{sT1}, {TEAM0}', f's_cselect_b32 s{sT2}, {1 << k}, 0',
                   f's_cselect_b32 s{sT1}, s{sLB}, s{sT1}', f's_cselect_b32 s{sT0}, s{sTP}, s{sT0}'],
                  f's_or_b32 s{sNULL}, s{sNULL}, s{sT2}', f's_lshl_b32 s{sT2}, s{sJ}, 3', f's_add_u32 s{sT0}, s{sT0}, s{sT2}',
                  f's_lshl_b32 s{sKD+k}, s{sT0}, 12', f's_add_u32 s{sKD+k}, s{sKD+k}, s{sT1}',
                  f's_lshl_b32 s{sT0}, s{sT0}, 7', f's_add_u32 s{sT0}, s{sT0}, s{sT1}', f's_add_u32 s{sKFl[k]}, s{sT0}, {O_FKV}']
        return L

    def attn(self):
        p, L0 = self.p, self.L == 0
        KF, ST, MW, MD, OA, QF, PB, VF = 32, 104, 152, 168, 184, 200, 208, 224
        t0, t1 = 104, 105
        NK = 2
        sKD, sKL, sKFl, sNULL = self.sKD, self.sKL, self.sKFl, self.sNULL
        p(f'v_bfe_u32 v{t0}, v{vL}, 1, 1')
        p(f'v_lshlrev_b32 v{t0}, 10, v{t0}')
        p(f'v_and_b32 v{t1}, 1, v{vL}')
        p(f'v_lshl_add_u32 v{t0}, v{t1}, 9, v{t0}')
        p(f'v_lshrrev_b32 v{t1}, 2, v{vL}')
        p(f'v_lshl_add_u32 v{t0}, v{t1}, 4, v{t0}')
        lp, lo = p.newlabel('kvpoll'), p.newlabel('kvpollout')
        self.stamp('w1')
        p('s_waitcnt lgkmcnt(0)')
        p(f's_mov_b32 s{sCNT}, 0')
        p.label(lp)
        for k in range(NK):
            p(f's_load_dwordx2 s[{sPOLL+2*k}:{sPOLL+2*k+1}], s[{S_WSP}:{S_WSP+1}], s{sKFl[k]} glc')
        p(f's_add_u32 s{sCNT}, s{sCNT}, 1')
        p(f's_cmp_gt_u32 s{sCNT}, {POLL_MAX}')
        p(f's_cbranch_scc1 {lo}')
        p('s_waitcnt lgkmcnt(0)')
        for k in range(NK):
            p(f's_cmp_eq_u64 s[{sPOLL+2*k}:{sPOLL+2*k+1}], s[{sF}:{sF+1}]')
            p(f's_cbranch_scc0 {lp}')
        p.label(lo)
        self.stamp('kvf')
        for k in range(NK):
            lnull, lb = p.newlabel('null'), p.newlabel('nullback')
            p(f's_bitcmp1_b32 s{sNULL}, {k}')
            p(f's_cbranch_scc1 {lnull}')
            p(f's_mov_b32 m0, s{sKL+k}')
            p(f's_sub_u32 s{sT5}, s{sKD+k}, 768')
            p(f'buffer_load_dwordx4 v{vL16}, {srd(S_WS)}, s{sKD+k} offen sc1 lds')
            p(f'buffer_load_dwordx4 v{vL16}, {srd(S_WS)}, s{sKD+k} offen offset:1024 sc1 lds')
            p(f'buffer_load_dwordx4 v{t0}, {srd(S_WS)}, s{sKD+k} offen offset:2048 sc1 lds')
            p(f'buffer_load_dwordx4 v{t0}, {srd(S_WS)}, s{sT5} offen offset:3072 sc1 lds')
            p.label(lb)
            self.tail.append((lnull, [
                f'v_add_u32 v{t1}, s{sKL+k}, v{vL16}',
                'v_mov_b32 v108, 0', 'v_mov_b32 v109, 0', 'v_mov_b32 v110, 0', 'v_mov_b32 v111, 0'] +
                [f'ds_write_b128 v{t1}, v[108:111] offset:{o}' for o in (0, 2048, 3072)] +
                ['s_mov_b32 exec_lo, 0', 'v_mov_b32 v111, 0xf1490000', 's_mov_b64 exec, -1',
                 f'ds_write_b128 v{t1}, v[108:111] offset:1024', f's_branch {lb}']))
        t2, t3 = 106, 107
        p(f'v_and_b32 v{t2}, 31, v{vL}')
        p(f'v_lshrrev_b32 v{t3}, 5, v{vL}')
        p(f'v_lshlrev_b32 v{t3}, 2, v{t3}')
        p(f'v_sub_u32 v{t2}, v{t2}, v{t3}')
        p(f'v_mov_b32 v{t3}, {f32bits(-1e30):#x}')
        for r in range(0, 16, 2):
            k0, k1 = 8 * (r // 4) + r % 4, 8 * (r // 4) + r % 4 + 1
            p(f'v_cmp_le_i32 vcc, {k0}, v{t2}')
            p(f'v_cmp_le_i32 s[{sPOLL}:{sPOLL+1}], {k1}, v{t2}')
            p('s_nop 0')
            p(f'v_cndmask_b32_e64 v{MD+r}, v{t3}, 0, vcc')
            p(f'v_cndmask_b32_e64 v{MD+r+1}, v{t3}, 0, s[{sPOLL}:{sPOLL+1}]')
            p(f'v_cndmask_b32_e64 v{MW+r}, 0, v{t3}, vcc')
            p(f'v_cndmask_b32_e64 v{MW+r+1}, 0, v{t3}, s[{sPOLL}:{sPOLL+1}]')
        vKA, vVA = vT, vT + 1
        p(f's_lshl_b32 s{sT0}, s{sW}, 12')
        p(f's_add_u32 s{sT0}, s{sT0}, {LKV}')
        p(f'v_add_u32 v{vKA}, s{sT0}, v{vL16}')
        p(f'v_lshrrev_b32 v{t2}, 5, v{vL}')
        p(f'v_bfe_u32 v{t3}, v{vL}, 2, 2')
        p(f'v_lshl_add_u32 v{t2}, v{t2}, 2, v{t3}')
        p(f'v_lshlrev_b32 v{vVA}, 6, v{t2}')
        p(f'v_bfe_u32 v{t2}, v{vL}, 4, 1')
        p(f'v_lshl_add_u32 v{vVA}, v{t2}, 5, v{vVA}')
        p(f'v_and_b32 v{t2}, 1, v{vL}')
        p(f'v_lshl_add_u32 v{vVA}, v{t2}, 4, v{vVA}')
        p(f'v_bfe_u32 v{t2}, v{vL}, 1, 1')
        p(f'v_lshl_add_u32 v{vVA}, v{t2}, 3, v{vVA}')
        p(f'v_add_u32 v{vVA}, s{sT0}, v{vVA}')
        sOD, sOF, sWO = sO, sO + 1, sO + 2
        p(f's_lshl_b32 s{sT0}, s{sTP}, 4')
        p(f's_add_u32 s{sT0}, s{sT0}, s{sJ}')
        p.ext(self.roff(sOD, sT0, 2048, O_O))
        p.ext(self.off(sOF, sT0, 8, O_FO))
        p(f's_lshl_b32 s{sWO}, s{sCB}, 2')
        p(f's_add_u32 s{sWO}, s{sWO}, s{sW}')
        p(f's_lshl_b32 s{sWO}, s{sWO}, 14')
        p(f's_add_u32 s{sWO}, s{sWO}, {WOT}')
        for g in range(1, 4):
            p(f's_add_u32 s{sWO+g}, s{sWO}, {4096*g}')
        vPT = vT + 12
        p(f'v_lshlrev_b32 v{vPT}, 7, v{vL}')
        p(f'v_add_u32 v{vPT}, s{sOD}, v{vPT}')
        p(f's_lshl_b32 s{sT0}, s{sTP}, 7')
        p(f's_lshl_b32 s{sT1}, s{sRB}, 8')
        p(f's_lshl_b32 s{sT2}, s{sRHO}, 7')
        p(f's_add_u32 s{sT2}, s{sT2}, s{sT1}')
        p(f's_mul_i32 s{sT3}, s{sT2}, 28')
        p(f's_lshl_b32 s{sT4}, s{sCB}, 9')
        p(f's_add_u32 s{sT3}, s{sT3}, s{sT4}')
        p(f's_lshl_b32 s{sT4}, s{sNU}, 8')
        p(f's_add_u32 s{sT3}, s{sT3}, s{sT4}')
        for lane, (r, c) in enumerate([(sT0, O_FO), (sT1, O_FO), (sT1, O_FO + 128), (sT0, O_FX1), (sT2, O_FX1),
                                       (sT3, O_ST1), (sT3, O_ST1 + 128), (sT0, O_FH), (sT1, O_FH), (sT1, O_FH + 128),
                                       (sT0, O_FH + 1024), (sT1, O_FH + 1024), (sT1, O_FH + 1024 + 128)]):
            p(f's_add_u32 s{sT4}, s{r}, {c}')
            p(f's_add_u32 s{sT4}, s{sT4}, s{sLB}')
            p(f'v_writelane_b32 v{vPT}, s{sT4}, {16 + lane}')
        vZ = vT + 8
        p(f's_lshl_b32 s{sT0}, s{sNU}, 10')
        p(f'v_xor_b32 v{vZ}, s{sT0}, v{vL16}')
        p(f'v_xor_b32 v{vZ+1}, 1024, v{vZ}')

        def first():
            l0 = p.newlabel('first')
            p(f's_cmp_lg_u32 s{sW}, 0')
            p(f's_cbranch_scc1 {l0}')
            p.mark('maybe_begin')
            p(f's_lshl_b32 s{sT0}, s{sJ}, 7')
            p(f's_add_u32 s{sT0}, s{sT0}, {F_W1}')
            p(f's_lshl_b32 s{sT2}, s{sCB}, 6')
            p(f's_add_u32 s{sT2}, s{sT2}, {F_WO - 14*8}')
            p(f's_lshl_b32 s{sT3}, s{sTEAM}, 8')
            p(f's_add_u32 s{sT3}, s{sT3}, {WS_PUR - 32*8}')
            p(f'v_add_u32 v{t2}, s{sT0}, v{vL8}')
            p(f'v_min_u32 v{t3}, {21*8}, v{vL8}')
            p(f'v_add_u32 v{t3}, s{sT2}, v{t3}')
            p(f'v_cmp_le_u32 vcc, 14, v{vL}')
            p(f'v_cndmask_b32 v{t2}, v{t2}, v{t3}, vcc')
            p(f'v_add_u32 v{t3}, s{sT3}, v{vL8}')
            p(f'v_cmp_le_u32 vcc, 32, v{vL}')
            p(f'v_cndmask_b32 v{t2}, v{t2}, v{t3}, vcc')
            lp, lo, ls = p.newlabel('pur'), p.newlabel('purout'), p.newlabel('pursleep')
            p(f's_lshl_b32 s{sT0}, s{sCB}, 9')
            p(f's_add_u32 s{sT0}, s{sT0}, {F_W2}')
            p(f's_mov_b32 s{sCNT}, 0')
            p.label(lp)
            p(f'buffer_load_dwordx2 {vr(108,2)}, v{t2}, {srd(S_WS)}, 0 offen sc1')
            p(f'buffer_load_dwordx2 {vr(112,2)}, v{vL8}, {srd(S_WS)}, s{sT0} offen sc1')
            p(f's_add_u32 s{sCNT}, s{sCNT}, 1')
            p(f's_cmp_gt_u32 s{sCNT}, {POLL_MAX}')
            p(f's_cbranch_scc1 {lo}')
            p('s_waitcnt vmcnt(0)')
            p(f'v_xor_b32 v109, s{sF+1}, v109')
            p(f'v_xor_b32 v108, s{sF}, v108')
            p(f'v_and_b32 v110, 0x0fffffff, v109')
            p(f'v_or_b32 v108, v108, v110')
            p(f'v_cmp_ne_u32 vcc, 0, v108')
            p(f's_cbranch_vccnz {ls}')
            p(f'v_cmp_ne_u64 vcc, s[{sF}:{sF+1}], {vr(112,2)}')
            p(f's_cbranch_vccnz {ls}')
            p(f'v_readlane_b32 s{sT1}, v109, 32')
            p(f'v_cmp_ne_u32 vcc, s{sT1}, v109')
            p(f's_cmp_eq_u32 vcc_hi, 0')
            p(f's_cselect_b32 s{sT1}, {0 if os.environ.get("FORCE_IMPURE") else 1}, 0')
            p(f'v_mov_b32 v108, s{sT1}')
            p(f'v_mov_b32 v109, {L_PUR}')
            p('ds_write_b32 v109, v108')
            p.label(lo)
            p.mark('maybe_end')
            p.label(l0)
            self.tail.append((ls, ['s_sleep 8', f's_branch {lp}']))
        if L0:
            first()
        self.pad()
        p('s_waitcnt vmcnt(0) lgkmcnt(0)')
        if L0:
            self.flag_opt(sJFL)
        self.stamp('kvd')
        p('s_barrier')
        self.stamp('A')
        if L0:
            p(f'v_mov_b32 v{t0}, {L_PUR}')
            p(f'ds_read_b32 v{t0}, v{t0}')
            p(f'v_readfirstlane_b32 s{sPURE}, v{t0}')
            p(f's_cmp_eq_u32 s{sPURE}, 0')
            p(f's_cselect_b64 s[{sIMP}:{sIMP+1}], -1, 0')
        p(f'v_lshlrev_b32 v{t0}, 7, v{vL}')
        p(f's_lshl_b32 s{sT0}, s{sCB}, 2')
        p(f's_add_u32 s{sT0}, s{sT0}, s{sRB}')
        p(f's_lshl_b32 s{sT1}, s{sT0}, 14')
        p(f's_lshl_b32 s{sT2}, s{sW}, 12')
        p(f's_add_u32 s{sT1}, s{sT1}, s{sT2}')
        p(f's_add_u32 s{sT1}, s{sT1}, {WOT}')
        p('s_mov_b32 exec_hi, 0')
        p(f'buffer_load_dword a255, v{t0}, {srd(S_WS)}, s{sT1} offen sc1')
        p('s_mov_b64 exec, -1')
        p.ext(self.pub_offsets(O_X1, O_ST1, O_FX1))
        p(f's_sub_u32 s{sT0}, s{sXD}, {29*128}')
        p(f'v_add_u32 v{t1}, s{sT0}, v{t0}')
        p(f'v_cmp_lt_u32 vcc, 28, v{vL}')
        p(f'v_cndmask_b32 v{vPT}, v{vPT}, v{t1}, vcc')
        p.ext(self.setexec(45))
        p(f'buffer_load_dword a255, v{vPT}, {srd(S_WS)}, 0 offen sc1')
        p('s_mov_b64 exec, -1')
        bg = self.w1_dma(0)
        bw = []
        if L0:
            p.ext(self.w2_setup(sO + 7, (vT + 10, vT + 11)))
            bw = self.w2_loads(ORDER, sO + 7, (vT + 10, vT + 11))

        def kread(t):
            return [f'ds_read_b128 {vr(KF+8*t+4*k)}, v{vKA} offset:{t*4096+k*1024}' for k in range(2)]

        def qk(t):
            s = ST + 16 * (t % 3)
            c = vr(MW, 16) if t == 0 else vr(MD, 16) if t == 8 else '0'
            return [f'{MF32} {vr(s,16)}, {vr(KF+8*t)}, {vr(QF)}, {c}',
                    f'{MF32} {vr(s,16)}, {vr(KF+8*t+4)}, {vr(QF+4)}, {vr(s,16)}']
        vM, vM2 = vT + 2, vT + 3

        def mx(t):
            s = ST + 16 * (t % 3)
            L = []
            for i in range(8):
                d = vM if i % 2 == 0 else vM2
                if t == 0 and i < 2:
                    L.append(f'v_max_f32 v{d}, v{s+2*i}, v{s+2*i+1}')
                else:
                    L.append(f'v_max3_f32 v{d}, v{s+2*i}, v{s+2*i+1}, v{d}')
            return L

        def vread(t):
            d = VF + 8 * (t % 2)
            return [f'ds_read_b64_tr_b16 {vr(d+4*kv+2*jj,2)}, v{vVA} offset:{t*4096+2048+(16*kv+8*jj)*64}'
                    for kv in range(2) for jj in range(2)]
        def popbg(bg=bg):
            L = []
            while bg:
                x = bg.pop(0)
                L.append(x)
                if is_mem(x):
                    break
            return L
        for t in range(4):
            p.ext(kread(t))
        q = qk(0)
        p.ext([q[0]] + kread(4) + [q[1]] + kread(5))
        q = qk(1)
        p.ext([q[0]] + kread(6) + popbg(bw) + [q[1]] + kread(7) + popbg(bw))
        for t in range(9):
            m = mx(t)
            if t + 2 < 9:
                q = qk(t + 2)
                extra = kread(8) if t == 0 else vread(0)[:2] if t == 5 else vread(0)[2:] if t == 6 else []
                if t % 2 == 1:
                    extra = extra + popbg()
                p.ext([q[0]] + extra + popbg(bw) + m[:4] + [q[1]] + popbg(bw) + m[4:])
            else:
                p.ext(m)
        self.stamp('a1')
        a, b2, r1 = vT + 4, vT + 5, vT + 6
        p(f'v_max_f32 v{vM}, v{vM}, v{vM2}')
        p(f'v_mov_b32 v{a}, v{vM}')
        p(f'v_permlane32_swap_b32 v{vM}, v{a}')
        p(f'v_max_f32 v{vM}, v{vM}, v{a}')
        p(f'v_xor_b32 v{vM}, 0x80000000, v{vM}')
        p(f'v_and_b32 v{a}, 0xffff0000, v{vM}')
        p(f'v_sub_f32 v{r1}, v{vM}, v{a}')
        p(f'v_and_b32 v{a}, 0xffff0000, v{r1}')
        p(f'v_sub_f32 v{b2}, v{r1}, v{a}')
        p('s_mov_b32 exec_lo, 0')
        p(f'v_perm_b32 v{QF+6}, v{r1}, v{vM}, s{sPERM}')
        p(f'v_perm_b32 v{QF+7}, 1.0, v{b2}, s{sPERM}')
        p('s_mov_b64 exec, -1')

        def ex(t):
            s = ST + 16 * (t % 3)
            pb = PB + 8 * (t % 2)
            L = []
            for i in range(8):
                L.append(f'v_exp_f32 v{s+2*i}, v{s+2*i}')
                L.append(f'v_exp_f32 v{s+2*i+1}, v{s+2*i+1}')
                if i:
                    L.append(f'v_cvt_pk_bf16_f32 v{pb+i-1}, v{s+2*i-2}, v{s+2*i-1}')
            L.append(f'v_cvt_pk_bf16_f32 v{pb+7}, v{s+14}, v{s+15}')
            return L

        def pv(t):
            d = VF + 8 * (t % 2)
            pb = PB + 8 * (t % 2)
            return [f'{MF32} {vr(OA,16)}, {vr(d)}, {vr(pb)}, {vr(OA,16) if t else 0}',
                    f'{MF32} {vr(OA,16)}, {vr(d+4)}, {vr(pb+4)}, {vr(OA,16)}']

        self.pad()

        def wol(i):
            ks, z = i // 2, i % 2
            return f'buffer_load_dwordx4 {vr(32+4*i)}, v{vZ+z}, {srd(S_WS)}, s{sWO + ks//2} offen offset:{(ks%2)*2048} sc1'
        p.ext(qk(0))
        p.ext(qk(1))
        for t in range(9):
            e = ex(t)
            mf = (pv(t - 1) if t else []) + (qk(t + 2) if t + 2 < 9 else [])
            out = []
            pos = [2, 7, 12, 17]
            for i, x in enumerate(e):
                out.append(x)
                if i in pos and pos.index(i) < len(mf):
                    k = pos.index(i)
                    out.append(mf[k])
                    if t + 1 < 9:
                        if t == 0:
                            out += vread(1)[2 * k:2 * k + 2]
                        elif k in (1, 2):
                            out += vread(t + 1)[2 * (k - 1):2 * (k - 1) + 2]
                        elif t == 7 and k == 1:
                            pass
                    if t < 6 and k in (0, 3) or t == 0:
                        out += popbg()
                    if t < 7:
                        out += popbg(bw) + (popbg(bw) if k % 2 or t == 0 else [])
                    if t >= 7:
                        out += [wol(8 * (t - 7) + 4 * k + q) for q in range(4)]
            if t == 7:
                out = out[:-3] + vread(8)[2:] + out[-3:]
            p.ext(out)
        assert not bg and not bw, (len(bg), len(bw))
        p.ext(pv(8))
        self.stamp('a2')
        p(f'v_mov_b32 v{a}, v{OA+12}')
        p(f'v_mov_b32 v{b2}, v{OA+12}')
        p(f'v_permlane32_swap_b32 v{a}, v{b2}')
        p(f'v_rcp_f32 v{b2}, v{b2}')
        for i in range(8):
            p(f'v_pk_mul_f32 {vr(OA+2*i,2)}, {vr(OA+2*i,2)}, {vr(a,2)} op_sel:[0,1] op_sel_hi:[1,1]')
            p(f'v_cvt_pk_bf16_f32 v{PB+i}, v{OA+2*i}, v{OA+2*i+1}')
            if i % 4 == 3:
                p(f'buffer_store_dwordx4 {vr(PB+i-3)}, v{vL16}, {srd(S_WS)}, s{sOD} offen offset:{(i//4)*1024}', tok='ost')
        self.publish(['ost'], sOF)
        self.stamp('att')

    def reduce_writes(self, ACC):
        return [Ins(f'ds_write_b128 v{vRW+x-1}, {vr(ACC+16*x+4*c)} offset:{c*1024}', 'rw') for x in range(1, 4) for c in range(4)]

    def reduce_finish(self, ACC, TMP):
        p = self.p
        p.wait('rw')
        self.pad()
        p('s_barrier')
        for c in range(4):
            for x in range(3):
                p(f'ds_read_b128 {vr(TMP+16*x+4*c)}, v{vRW+3} offset:{x*4096+c*1024}')
        for c in range(8):
            p(f'v_pk_add_f32 {vr(TMP+2*c,2)}, {vr(TMP+2*c,2)}, {vr(TMP+16+2*c,2)}')
            p(f'v_pk_add_f32 {vr(ACC+2*c,2)}, {vr(ACC+2*c,2)}, {vr(TMP+32+2*c,2)}')
            p(f'v_pk_add_f32 {vr(ACC+2*c,2)}, {vr(ACC+2*c,2)}, {vr(TMP+2*c,2)}')

    def yoffs(self, dst, mul, add):
        L = []
        for y in range(2):
            L += [f's_xor_b32 s{sT0}, s{sRHO}, {y}', f's_lshl_b32 s{sT1}, s{sRB}, 1', f's_add_u32 s{sT0}, s{sT0}, s{sT1}',
                  f's_lshl_b32 s{sT0}, s{sT0}, 2', f's_add_u32 s{sT0}, s{sT0}, s{sW}'] + self.roff(dst + y, sT0, mul, add)
        return L

    def p3(self):
        p, L0 = self.p, self.L == 0
        WO, OF, ACC, RING = 32, 96, 160, 200

        def colsum(part, AC=ACC, RG=RING, T=vT):
            for i in range(4):
                p(f'v_mov_b32 v{T+4+i}, s{sONES}')
            p(f's_lshl_b32 s{sT0}, s{sW}, 10')
            if part == 0:
                p(f'v_add_u32 v{T}, s{sT0}, v{vL16}')
            else:
                p(f's_min_u32 s{sT0}, s{sT0}, 2048')
                p(f'v_add_u32 v{T}, s{sT0}, v{vA1}')
            NRG = 6 if part == 0 else 4
            rd = lambda f: f'ds_read_b128 {vr(RG+4*(f%NRG))}, v{T} offset:{f*(4096, 3072)[part]}'
            for f in range(NRG - 1):
                p(rd(f))
            for f in range(14):
                p(f'{MF16} {vr(AC)}, {vr(T+4)}, {vr(RG+4*(f%NRG))}, {vr(AC) if f else 0}')
                if f + NRG - 1 < 14:
                    p(rd(f + NRG - 1))
            p(f's_lshl_b32 s{sT0}, s{sW}, 6')
            p(f's_add_u32 s{sT0}, s{sT0}, {L_CS1 + 256*part}')
            p(f'v_and_b32 v{T}, 15, v{vL}')
            p(f'v_lshlrev_b32 v{T}, 2, v{T}')
            p(f'v_add_u32 v{T}, s{sT0}, v{T}')
            p(f'ds_write_b32 v{T}, v{AC}')
            p('s_waitcnt lgkmcnt(0)')
        w1d = []
        self.pad()
        p('s_barrier')
        if L0:
            colsum(0)
        ljoin, lidle = p.newlabel('p3join'), p.newlabel('p3idle')
        p(f's_cmp_ge_u32 s{sM}, 28')
        p(f's_cbranch_scc1 {lidle}')
        p.mark('maybe_begin')
        sFO, sY = sO, sO + 2
        p(f's_lshl_b32 s{sT0}, s{sRB}, 3')
        p(f's_add_u32 s{sT0}, s{sT0}, s{sW}')
        p.ext(self.off(sFO, sT0, 32, O_FO))
        p.ext(self.yoffs(sY, 8192, O_O))
        p(f's_add_u32 s{sY+2}, s{sY}, 4096')
        p(f's_add_u32 s{sY+3}, s{sY+1}, 4096')
        self.vpoll(vFLG, f's{sFO}', 8)
        self.stamp('B')

        def ld(ks, y):
            return f'buffer_load_dwordx4 {vr(OF+(ks*2+y)*4)}, v{vL16}, {srd(S_WS)}, s{sY + 2*(ks//4) + y} offen offset:{(ks%4)*1024} sc1'

        def mf(ks, x):
            y, z = x >> 1, x & 1
            c = vr(ACC + 16 * x, 16) if ks else (vr(vRES, 16) if x == 0 else '0')
            return f'{MF32} {vr(ACC+16*x,16)}, {vr(WO+(ks*2+z)*4)}, {vr(OF+(ks*2+y)*4)}, {c}'
        for ks in range(5):
            for y in range(2):
                p(ld(ks, y))
        rest = list(w1d)
        for ks in range(8):
            for x in (1, 2, 3):
                p(mf(ks, x))
                if ks + 5 < 8 and x < 3:
                    p(ld(ks + 5, x - 1))
                elif ks >= 3 and rest:
                    y = rest.pop(0)
                    p.ext([y])
                    while rest and not is_mem(y):
                        y = rest.pop(0)
                        p.ext([y])
        assert not rest
        self.stamp('p3mm')
        p.ext(sched([mf(ks, 0) for ks in range(8)], {}, {}, self.reduce_writes(ACC), 2, start=2))
        self.stamp('p3rw')
        self.reduce_finish(ACC, 32)
        self.stamp('p3rd')
        P = 96
        for i in range(8):
            p(f'v_cvt_pk_bf16_f32 v{P+i}, v{ACC+2*i}, v{ACC+2*i+1}')
        self.x_store(P, vX1A, (0, 512))
        self.publish(['xst'], sXF)
        self.stamp('p3pub')
        p.ext(self.res_unpack(P))
        p.mark('maybe_end')
        p.label(ljoin)
        idle = [f'v_lshlrev_b32 v{vT}, 7, v{vL}', f's_lshl_b32 s{sT0}, s{sCB}, 2', f's_add_u32 s{sT0}, s{sT0}, s{sW}']
        if L0:
            idle += [f's_lshl_b32 s{sT1}, s{sT0}, 7', f's_add_u32 s{sT1}, s{sT1}, {F_W1}'] + self.poll_loop(vL8, f's{sT1}', 14)
        idle += [f's_mul_i32 s{sT1}, s{sT0}, 100352'] + self.prefetch(vT, sT1, W1T + 57344, 43008)
        self.tail.append((lidle, idle + [f's_branch {ljoin}']))
        self.colsum = colsum
        self.stamp('p3')

    def p45(self):
        p, L0 = self.p, self.L == 0
        X, ACC, RING, CS = 32, 144, 200, 224
        sXO, sST, sFX, sH, sHF = sO, sO + 4, sO + 5, sO + 6, sO + 8
        sFH, sST5, sW2 = sO + 9, sO + 10, sO + 11
        sY = [76, 77, 78, 79, sO + 12, sO + 13, sO + 14, sO + 15]
        vTC, vHA, vHB, vZ, vLb, PO = vT, vT + 1, vT + 2, (vT + 3, vT + 13), vT + 12, vT + 4
        p.ext(self.w1_dma(1))
        p.ext(self.xoff(sXO, sTP, 28672, O_X1))
        for g in range(1, 4):
            p(f's_add_u32 s{sXO+g}, s{sXO}, {8192*g}')
        p.ext(self.off(sST, sTP, 3584, O_ST1))
        p.ext(self.off(sFX, sTP, 128, O_FX1))
        p(f's_lshl_b32 s{sT0}, s{sTP}, 4')
        p(f's_add_u32 s{sT0}, s{sT0}, s{sJ}')
        p.ext(self.roff(sH, sT0, 7168, O_H))
        p(f's_add_u32 s{sH+1}, s{sH}, 4096')
        p.ext(self.off(sHF, sT0, 8, O_FH))
        p.ext([f'v_lshrrev_b32 v{vCSA}, 4, v{vL}', f'v_lshlrev_b32 v{vCSA}, 4, v{vCSA}', f'v_add_u32 v{vCSA}, {L_CS1}, v{vCSA}',
               f'v_lshrrev_b32 v{vHA}, 5, v{vL}', f'v_lshlrev_b32 v{vHA}, 10, v{vHA}',
               f'v_bfe_u32 v{vHB}, v{vL}, 4, 1', f'v_lshl_add_u32 v{vHA}, v{vHB}, 9, v{vHA}',
               f'v_and_b32 v{vTC}, 15, v{vL}', f'v_lshl_add_u32 v{vHA}, v{vTC}, 4, v{vHA}',
               f'v_lshlrev_b32 v{vHB}, 3, v{vHB}', f'v_lshl_add_u32 v{vHB}, v{vTC}, 4, v{vHB}',
               f'v_lshrrev_b32 v{vTC}, 5, v{vL}', f'v_lshl_add_u32 v{vHB}, v{vTC}, 9, v{vHB}',
               f'v_add_u32 v{vLb}, 4096, v{vL16}'])
        sRBc = sPOLL
        p(f's_min_u32 s{sRBc}, s{sRB}, 3')
        p(f's_lshl_b32 s{sT0}, s{sRBc}, 3')
        p(f's_add_u32 s{sT0}, s{sT0}, s{sW}')
        p.ext(self.off(sFH, sT0, 32, O_FH))
        for y in range(2):
            p.ext([f's_xor_b32 s{sT0}, s{sRHO}, {y}', f's_lshl_b32 s{sT1}, s{sRBc}, 1', f's_add_u32 s{sT0}, s{sT0}, s{sT1}',
                   f's_lshl_b32 s{sT0}, s{sT0}, 2', f's_add_u32 s{sT0}, s{sT0}, s{sW}'] + self.roff(sY[y], sT0, 28672, O_H))
            for sl in range(1, 4):
                p(f's_add_u32 s{sY[2*sl+y]}, s{sY[y]}, {7168*sl}')
        p(f's_lshl_b32 s{sT0}, s{sRBc}, 1')
        p(f's_add_u32 s{sT0}, s{sT0}, s{sRHO}')
        p.ext(self.off(sST5, sT0, 3584, O_ST1))
        if L0:
            p.ext(self.pub_offsets(O_XA + LSTRIDE, O_STA + LSTRIDE, O_FXA + LSTRIDE))
            p.ext([f's_lshl_b32 s{sT1}, s{sJ}, 7', f's_add_u32 s{sT1}, s{sT1}, {F_WQ - 14*8}',
                   f'v_mov_b32 v{PO}, s{sFX}', f'v_mov_b32 v{PO+1}, s{sT1}', f'v_cmp_le_u32 vcc, 14, v{vL}',
                   f'v_cndmask_b32 v{PO}, v{PO}, v{PO+1}, vcc', f'v_add_u32 v{PO}, v{PO}, v{vL8}'])
        p(f'v_lshlrev_b32 v{vTC}, 7, v{vL}')
        seq = [(t, s) for s in range(14) for t in range(4)] + [(t, s) for s in range(14) for t in range(4, 7)]

        def frag(f):
            base, off = (vL16, f * 1024) if f < 56 else (vA1, (f - 56) * 1024)
            return f'ds_read_b128 {vr(RING + 4*(f % 6))}, v{base} offset:{off}'

        def mf(f, u):
            t, s = seq[f]
            return f'{MF16} {vr(ACC+8*t+4*u)}, {vr(RING+4*(f%6))}, {vr(X+4*(2*s+u))}, {vr(ACC+8*t+4*u) if s else 0}'

        def xl(i):
            return f'buffer_load_dwordx4 {vr(X+4*i)}, v{(vL16, vLb)[(i//4)%2]}, {srd(S_WS)}, s{sXO + i//8} offen offset:{(i%4)*1024} sc1'

        def cs_reads(tiles):
            return [f'ds_read_b128 {vr(CS+4*(t%4))}, v{vCSA} offset:{t*64}' for t in tiles]
        PD = 4
        for f in range(PD):
            p(frag(f))
        self.pad()
        if L0:
            self.vpoll(PO, '0', 28)
        else:
            self.vpoll(vL8, f's{sFX}', 14)
        self.stamp('C')
        XP = 8
        for i in range(XP):
            p(xl(i))
        mem, pre = {}, {}
        for f in range(98):
            mem[2 * f] = [frag(f + PD)] if f + PD < 98 and not (f < 56 <= f + PD) else []
            mem[2 * f + 1] = []
            if f < 56 and f % 2 == 0 and f // 2 + XP < 28:
                mem[2 * f + 1] = [xl(f // 2 + XP)]
            if 27 <= f < 41 and f % 2 == 1:
                mem[2 * f + 1] = [self.stats_loads(sST, CS)[(f - 27) // 2]]
            if f % 2 == 0:
                tch = vr(RING + 4 * (f % 6)) + ' ' + vr(RING + 4 * ((f + 1) % 6))
                if f < 56 and f % 4 == 0:
                    tch += ' ' + vr(X + 8 * (f // 4), 8)
                pre[2 * f] = [Touch(tch)]
        i = 2 * 41 + 1
        mem[i] += self.touch(vTC, sH, 0, 56)
        if L0:
            xa = [f'v_add_u32 v{PO}, s{sXD}, v{vTC}', f's_add_u32 s{sT0}, s{sFX}, {LSTRIDE + O_FXA - O_FX1}', f's_add_u32 s{sT1}, s{sXS}, 128']
            for lane, r in ((16, sXS), (17, sT1), (18, sXF), (19, sT0)):
                xa.append(f'v_writelane_b32 v{PO}, s{r}, {lane}')
            mem[i + 2] += xa
            mem[i + 4].append(self.setexec(20) + [f'buffer_load_dword a255, v{PO}, {srd(S_WS)}, 0 offen sc1', 's_mov_b64 exec, -1'])
        for f in (0, 16, 38):
            mem[2 * f + 1] += self.stamp_items(f'g{f}')
        mfs = [mf(f, u) for f in range(98) for u in range(2)]
        side = self.stats_reduce(CS) + [f'v_mov_b32 v{vRSTD}, v{vMEAN}', 's_nop 0', f'v_permlane16_swap_b32 v{vMEAN}, v{vRSTD}']
        p.ext(sched(mfs[:112], pre, mem, side, 2, start=88))
        self.stamp('p4m1')
        self.pad()
        p('s_barrier')
        p.ext(cs_reads([0, 1, 2, 3]))
        self.stamp('p4g1')

        def epi(tiles, tok):
            L = []
            pairs = [tiles[i:i + 2] for i in range(0, len(tiles), 2)]
            n = 0
            for pr in pairs:
                for u in range(2):
                    po = PO + 4 * (n % 2)
                    n += 1
                    for k, t in enumerate(pr):
                        a = ACC + 8 * t + 4 * u
                        for r in (0, 2):
                            L.append(f'v_pk_fma_f32 {vr(a+r,2)}, {vr(CS+4*(t%4)+r,2)}, {vr(vMEAN,2)}, {vr(a+r,2)} op_sel:[0,{u},0] op_sel_hi:[1,{u},1]')
                    for k, t in enumerate(pr):
                        a = ACC + 8 * t + 4 * u
                        for r in range(2):
                            L.append(f'v_cvt_pk_bf16_f32 v{po+2*k+r}, v{a+2*r}, v{a+2*r+1}')
                    for k, t in enumerate(pr):
                        for r in range(2):
                            L.append(f'v_pk_max_i16 v{po+2*k+r}, v{po+2*k+r}, 0')
                    t = pr[0]
                    so, off = (sH, t * 1024) if t < 4 else (sH + 1, (t - 4) * 1024)
                    if len(pr) == 2:
                        L.append(Ins(f'buffer_store_dwordx4 {vr(po)}, v{vHA}, {srd(S_WS)}, s{so} offen offset:{off+u*256}', tok))
                    else:
                        L.append(Ins(f'buffer_store_dwordx2 {vr(po,2)}, v{vHB}, {srd(S_WS)}, s{so} offen offset:{off+u*256}', tok))
            return L
        for f in range(56, 56 + PD):
            p(frag(f))
        p.ext(epi([0, 1, 2, 3], 'h1'))
        if L0:
            self.colsum(1, AC=144, RG=160, T=vT + 4)
            p('s_barrier')
            for f in range(56, 56 + PD):
                pass
        self.stamp('p4e1')
        HR, AC5, NR, PD5, TAIL = 32, 160, 16, 5, 14
        order = ORDER

        def ld(i, y):
            sl, sg = order[i] // 7, order[i] % 7
            return (f'buffer_load_dwordx4 {vr(HR+((i%NR)*2+y)*4)}, v{(vL16, vLb)[sg//4]}, {srd(S_WS)}, s{sY[2*sl+y]} '
                    f'offen offset:{(sg%4)*1024} sc1')

        def m5(i, x):
            y, z = x >> 1, x & 1
            return f'{MF32} {vr(AC5+16*x,16)}, {ar(order[i]*8+z*4)}, {vr(HR+((i%NR)*2+y)*4)}, {vr(AC5+16*x,16) if i else 0}'
        pre2 = {i - 112: v for i, v in pre.items() if i >= 112}
        mem2 = {i - 112: v for i, v in mem.items() if i >= 112}
        NW2A = 14 if L0 else 0
        mem2[19] = self.publish_items(['h1'], sHF) + mem2[19]
        mem2[57] += self.peek_issue(vFLG, f's{sFH}', 8)
        mem2[59] += cs_reads([4, 5])
        mem2[61] += cs_reads([6])
        mem2[63] += self.peek_check(vFLG, f's{sFH}', 8)
        for k in range(2 * PD5):
            mem2[65 + 2 * k].append(ld(k // 2, k % 2))
        p.ext(sched(mfs[112:], pre2, mem2, [], 2, start=0))
        self.stamp('p4g2')
        p.ext(epi([4, 5, 6], 'h2'))
        self.stamp('p4')
        lskip, ljoin = p.newlabel('p5skip'), p.newlabel('p5join')
        self.pad()
        p(f's_cmp_ge_u32 s{sM}, 28')
        p(f's_cbranch_scc1 {lskip}')
        idle = ['s_waitcnt vmcnt(0)'] + self.publish_items([], sHF, 1024)
        if L0:
            idle += [f's_lshl_b32 s{sT0}, s{sCB}, 2', f's_add_u32 s{sT0}, s{sT0}, s{sW}', f's_lshl_b32 s{sT1}, s{sT0}, 7',
                     f's_add_u32 s{sT1}, s{sT1}, {F_WQ}'] + self.poll_loop(vL8, f's{sT1}', 14)
            idle += [f's_mul_i32 s{sT1}, s{sT0}, 86016'] + self.prefetch(vTC, sT1, WQT, 57344)
            idle += ['s_waitcnt vmcnt(0)', 's_barrier'] + self.wq_dma((0, 1)) + [f's_branch {ljoin}']
        else:
            idle += [f's_cmp_lg_u32 s{sM}, 28', 's_cbranch_scc1 L_fin', f's_cmp_lg_u32 s{sW}, 0', 's_cbranch_scc1 L_fin',
                     f's_sleep {os.environ.get("WBSLEEP", 20)}'] + ([] if os.environ.get('NOWB') else ['buffer_wbl2 sc1']) + ['s_waitcnt vmcnt(0)', 's_branch L_fin']
        self.tail.append((lskip, idle))
        mfs, mem = [], {}
        w2b = []
        stl = self.stats_loads(sST5, CS)
        for i in range(28):
            xs = (0, 1, 2, 3) if i < 28 - TAIL else (1, 2, 3)
            for n, x in enumerate(xs):
                k = len(mfs)
                mfs.append(m5(i, x))
                mem[k] = []
                if i == 3 and n == 3:
                    mem[k] += self.publish_items(['h2'], sHF, 1024)
                if i == 8 and n == 3:
                    mem[k] += self.peek_issue(vFLG, f's{sFH}', 8, 1024)
                if i == 11 and n == 0:
                    mem[k] += self.stamp_items('pk0') + self.peek_check(vFLG, f's{sFH}', 8, 1024) + self.stamp_items('pk1')
                if i + PD5 < 28 and n < 2:
                    mem[k].append(ld(i + PD5, n))
                elif w2b and n >= 2:
                    mem[k].append(w2b.pop(0))
                elif i + PD5 >= 28 and stl:
                    mem[k].append(stl.pop(0))
        assert not w2b and not stl
        p.ext(sched(mfs, {}, mem, [], 6))
        self.stamp('p5mm')
        mem = {}
        for i, x in enumerate(self.reduce_writes(AC5)):
            mem.setdefault(2 + i, []).append(x)
        p.ext(sched([m5(i, 0) for i in range(28 - TAIL, 28)], {}, mem, self.stats_reduce(CS), 5, start=0))
        self.stamp('p5rw')
        self.reduce_finish(AC5, 32)
        self.stamp('p5rd')
        P = 96
        for i in range(8):
            p(f'v_pk_fma_f32 {vr(AC5+2*i,2)}, {vr(AC5+2*i,2)}, {vr(vMEAN,2)}, {vr(vRES+2*i,2)} op_sel:[0,1,0] op_sel_hi:[1,1,1]')
            p(f'v_cvt_pk_bf16_f32 v{P+i}, v{AC5+2*i}, v{AC5+2*i+1}')
        if L0:
            self.x_store(P, vL16, (0, 1024))
            wq = self.wq_dma((0, 1))
            p.ext(wq[:9])
            self.publish(['xst'], sXF)
            p.ext(wq[9:])
            self.stamp('p5pub')
            p.ext(self.res_unpack(P))
            p.label(ljoin)
            p(f's_add_u32 s{sLB}, s{sLB}, {LSTRIDE}')
            p('s_waitcnt vmcnt(0) lgkmcnt(0)')
            p('s_barrier')
            return
        p(f'v_and_b32 v{vT+4}, 31, v{vL}')
        p(f'v_mul_u32_u24 v{vT+4}, 896, v{vT+4}')
        p(f'v_lshrrev_b32 v{vT+5}, 5, v{vL}')
        p(f'v_lshl_add_u32 v{vT+4}, v{vT+5}, 4, v{vT+4}')
        for hf in range(2):
            p(f'v_permlane32_swap_b32 v{P+4*hf}, v{P+4*hf+2}')
            p(f'v_permlane32_swap_b32 v{P+4*hf+1}, v{P+4*hf+3}')
            p(f'buffer_store_dwordx4 {vr(P+4*hf)}, v{vT+4}, {srd(S_OUT)}, s{sQOFF} offen offset:{32*hf}')
        p('s_cmp_lg_u32 s2, %d' % (27 * 8 + 7))
        p('s_cbranch_scc1 L_fin')
        p(f's_mov_b32 s{sT0}, {WS_EPOCH}')
        p.ext(self.flag_sc1(sT0))

    def build(self):
        p = self.p
        self.L = 0
        self.prologue()
        for self.L in range(2):
            for ph in ('p1', 'attn', 'p3', 'p45'):
                getattr(self, ph)()
        p.label('L_fin')
        self.stamp('end')
        self.stamp_dump()
        if os.environ.get('CALIB'):
            p.label('L_calib')
            p('s_memrealtime s[96:97]')
            p('s_waitcnt lgkmcnt(0)')
            p('s_sub_u32 s96, s96, s100')
            p(f's_cmp_lt_u32 s96, {int(os.environ["CALIB"])}')
            p('s_cbranch_scc1 L_calib')
        p.label('L_end')
        p('s_endpgm')
        for lab, code in self.tail:
            p.label(lab, reset='all')
            p.ext(code)
        p.label('L_codeend')
        self.emit_walker()
        p.insert_waits()
        probs = p.fix_hazards()
        for x in probs:
            print('branch hazard padded', x, file=sys.stderr)
        mx = p.maxregs()
        head = open(os.path.join(os.path.dirname(__file__), '..', 'cdna_kernels', NAME + '.s.ref')).read().split('\n')
        hdr = [l for l in head if l.startswith(';') and '@launch' not in l]
        out = '\n'.join(hdr) + f'\n; @launch grid=(256,1,1) block=(256,1,1) lds={LDS_BYTES}\n'
        out += '.amdgcn_target "amdgcn-amd-amdhsa--gfx950"\n.text\n'
        out += f'.globl {NAME}_kernel\n.p2align 8\n.type {NAME}_kernel,@function\n{NAME}_kernel:\n'
        out += p.text()
        out += '.fill 64, 4, 0xbf800000\n'
        out += f'''.section .rodata,"a"
.p2align 6
.amdhsa_kernel {NAME}_kernel
  .amdhsa_next_free_vgpr 512
  .amdhsa_next_free_sgpr 102
  .amdhsa_accum_offset 256
  .amdhsa_group_segment_fixed_size 0
  .amdhsa_kernarg_size 72
  .amdhsa_user_sgpr_count 2
  .amdhsa_user_sgpr_kernarg_segment_ptr 1
  .amdhsa_system_sgpr_workgroup_id_x 1
  .amdhsa_float_denorm_mode_32 3
.end_amdhsa_kernel
'''
        print('regs', mx, 'instrs', sum(1 for x in p.items if isinstance(x, Ins)), file=sys.stderr)
        return out


if __name__ == '__main__':
    stop = int(sys.argv[2]) if len(sys.argv) > 2 else None
    k = K(stop if stop and stop > 0 else None, dbg=sys.argv[3].split(',') if len(sys.argv) > 3 else None)
    open(sys.argv[1], 'w').write(k.build())
    if k.dbg:
        open(os.path.join(os.path.dirname(sys.argv[1]), 'stamps.txt'), 'w').write(' '.join(k.stamps))
```

```python
import sys, os, math, struct
sys.path.insert(0, os.path.dirname(__file__))
from asmlib import Prog, Ins, Wait, Mark, Label, Touch

NAME = 'interleave_layers__sliding_block__dense_activation_relu__prompt'

WS_EPOCH = 0
WS_PUR = 0x1000
F_WQ = 0x2000
F_W1 = 0x2800
F_W2 = 0x3000
F_WO = 0x4000
WQT = 0x100000
W1T = 0x250000
WOT = 0x3D8000
W2T = 0x448000
TEAM0 = 0x600000
LSTRIDE = 0x230000
STRIDE = 2 * LSTRIDE
O_KV = 0x000000
O_O = 0x080000
O_X1 = 0x0C0000
O_XA = 0x0F8000
O_ST1 = 0x130000
O_STA = 0x138000
O_FKV = 0x140000
O_FO = 0x144000
O_FX1 = 0x144400
O_FXA = 0x144800
O_FH = 0x145000
O_H = 0x150000
WS_BYTES = TEAM0 + 8 * STRIDE

LKV = 100352
L_CSQ = 149504
L_CS1 = L_CSQ + 512
L_STAMP = 160 * 1024 - 512
L_PUR = L_CS1 + 512 + 1536
L_CSP = L_CS1 + 512
LDS_BYTES = 163840

S_X, S_WQ, S_WO, S_W1, S_W2, S_OUT, S_WS = 8, 12, 16, 20, 24, 28, 32
S_WSP = 36
sTEAM, sM, sA, sJ, sW, sRB, sCB, sLB = 40, 41, 42, 43, 44, 45, 46, 47
sF, sPURE, sLAYER, sTP = 48, 50, 51, 52
sQOFF = 53
sIMP = 54
sPERM, sONES = 56, 57
sRHO, sNU = 58, 59
sT0, sT1, sT2, sT3, sT4, sT5 = 60, 61, 62, 63, 64, 65
sCNT = 66
sTB = 71
sJFL = 67
sXD, sXS, sXF = 68, 69, 70
sPOLL = 72
sRQ, sLQ = 76, 77
sO = 80

vL, vL16, vA1, vL8 = 0, 1, 2, 3
vSTA = 4
vFLG = 5
vRW = 6
vX1A = 10
vCSA = 11
vF = 12
vMEAN, vRSTD = 14, 15
vT = 16
vRES = 240

POLL_MAX = 1 << 16
ORDER = [7 * sl + sg for sl in range(4) for sg in range(4)] + [7 * sl + sg for sl in range(4) for sg in range(4, 7)]
MF32 = 'v_mfma_f32_32x32x16_bf16'
MF16 = 'v_mfma_f32_16x16x32_bf16'


def srd(b):
    return f's[{b}:{b+3}]'


def vr(b, n=4):
    return f'v[{b}:{b+n-1}]' if n > 1 else f'v{b}'


def ar(b, n=4):
    return f'a[{b}:{b+n-1}]'


def f32bits(x):
    return struct.unpack('<I', struct.pack('<f', x))[0]


def is_mem(x):
    if isinstance(x, (list, tuple)):
        return any(is_mem(y) for y in x)
    if isinstance(x, (Wait, Touch, Label, Mark)):
        return False
    t = x.text if isinstance(x, Ins) else x if isinstance(x, str) else ''
    return t.startswith('ds_') or t.startswith('buffer_') or t.startswith('global_')


def cost(x):
    if isinstance(x, (list, tuple)):
        return sum(cost(y) for y in x)
    if isinstance(x, (Wait, Touch)):
        return 1
    if isinstance(x, (Label, Mark)):
        return 0
    t = x.text if isinstance(x, Ins) else x
    return 2 if t.startswith('v_exp') or t.startswith('v_rsq') or t.startswith('v_rcp') or t.startswith('v_permlane') else 1


def sched(mfs, pre, mem, side, cap, start=0):
    out = []
    side = list(side)
    for i, m in enumerate(mfs):
        out += pre.get(i, [])
        out.append(m)
        n = 0
        for x in mem.get(i, []):
            out.append(x)
            n += cost(x)
        if pre.get(i + 1):
            n += 1
        valu = False
        if i >= start:
            while side and n + cost(side[0]) <= cap:
                if is_mem(side[0]) and valu:
                    break
                x = side.pop(0)
                if not is_mem(x) and not isinstance(x, (Wait, Touch)):
                    t = x[0] if isinstance(x, (list, tuple)) else x
                    if any((y.text if isinstance(y, Ins) else y).startswith('v_') for y in (x if isinstance(x, (list, tuple)) else [x]) if isinstance(y, (Ins, str))):
                        valu = True
                out.append(x)
                n += cost(x)
            if side and n == 0 and cost(side[0]) > cap:
                out.append(side.pop(0))
    return out + side


class K:
    def __init__(self, stop=None, dbg=False):
        self.p = Prog()
        self.stop = stop
        self.dbg = dbg
        self.stamps = []
        self.tail = []
        self.pads = []

    def stamp(self, name):
        if not self.dbg or (name not in self.dbg and name not in ('start', 'end')):
            return
        k = len(self.stamps)
        assert k < 32
        self.stamps.append(name)
        p = self.p
        p('s_memrealtime s[96:97]' if 'RT' in self.dbg else 's_memtime s[96:97]')
        if k == 0:
            p('v_readfirstlane_b32 s100, v0')
            p('s_lshr_b32 s100, s100, 6')
            p('s_lshl_b32 s101, s2, 2')
            p('s_add_u32 s100, s100, s101')
            p('s_lshl_b32 s100, s100, 7')
            p('s_add_u32 s100, s100, 0x40000')
        p('s_waitcnt lgkmcnt(0)')
        if k == 0:
            p('v_accvgpr_write_b32 a253, s96')
            return
        p('v_accvgpr_write_b32 a252, s96')
        p('s_mov_b64 exec, 1')
        p(f'buffer_store_dword a252, off, {srd(S_WS)}, s100 offset:{4*k}')
        p('s_mov_b64 exec, -1')

    def stamp_items(self, name):
        n = len(self.p.items)
        self.stamp(name)
        L = self.p.items[n:]
        del self.p.items[n:]
        return [L] if L else []

    def stamp_dump(self):
        if self.dbg:
            self.p(f'buffer_store_dword a253, off, {srd(S_WS)}, s100')

    def dma(self, srdb, voff, sreg, simm, m0, tok, sc='', n=1):
        mr, mi = m0
        L = [f's_add_u32 m0, s{mr}, {mi}' if mr is not None else f's_mov_b32 m0, {mi}',
             f's_add_u32 s{sT5}, s{sreg}, {simm}']
        for k in range(n):
            L.append(Ins(f'buffer_load_dwordx4 v{voff}, {srd(srdb)}, s{sT5} offen offset:{1024*k} {sc} lds', tok))
        return L

    @staticmethod
    def setexec(nl):
        if nl <= 32:
            return [f's_mov_b64 exec, {(1 << nl) - 1:#x}'] if nl < 32 else ['s_mov_b32 exec_hi, 0']
        return [f's_mov_b32 exec_hi, {(1 << (nl - 32)) - 1:#x}']

    def poll_loop(self, voff, soff, nl, imm=0):
        p = self.p
        lp, lo = p.newlabel('poll'), p.newlabel('pollout')
        return self.setexec(nl) + [f's_mov_b32 s{sCNT}, 0', Label(lp),
                f'buffer_load_dwordx2 {vr(vT + 14, 2)}, v{voff}, {srd(S_WS)}, {soff} offen offset:{imm} sc1',
                f's_add_u32 s{sCNT}, s{sCNT}, 1', f's_cmp_gt_u32 s{sCNT}, {POLL_MAX}', f's_cbranch_scc1 {lo}',
                's_waitcnt vmcnt(0)', f'v_cmp_ne_u64 vcc, s[{sF}:{sF+1}], {vr(vT + 14, 2)}', f's_cbranch_vccnz {lp}',
                Label(lo), 's_mov_b64 exec, -1']

    def vpoll(self, voff, soff, nl, acquire=True):
        p = self.p
        p.ext(self.poll_loop(voff, soff, nl))
        if acquire:
            lslow, lback = p.newlabel('acq'), p.newlabel('acqback')
            p(f's_cmp_lg_u32 s{sPURE}, 0')
            p(f's_cbranch_scc0 {lslow}')
            p.label(lback)
            self.tail.append((lslow, ['buffer_inv sc1', 's_waitcnt vmcnt(0)', f's_branch {lback}']))
        p.mark('drained_vm')

    def peek_issue(self, voff, soff, nl, imm=0):
        return [self.setexec(nl) + [f'buffer_load_dwordx2 {vr(vT + 14, 2)}, v{voff}, {srd(S_WS)}, {soff} offen offset:{imm} sc1',
                                    's_mov_b64 exec, -1']]

    def peek_check(self, voff, soff, nl, imm=0):
        p = self.p
        lslow, lback, lacq = p.newlabel('peek'), p.newlabel('peekback'), p.newlabel('peekacq')
        self.tail.append((lslow, self.poll_loop(voff, soff, nl, imm) +
                          [f's_cmp_lg_u32 s{sPURE}, 0', f's_cbranch_scc1 {lback}', 'buffer_inv sc1', 's_waitcnt vmcnt(0)',
                           f's_branch {lback}']))
        return [[Touch(vr(vT + 14, 2))] + self.setexec(nl) +
                [f'v_cmp_ne_u64 vcc, s[{sF}:{sF+1}], {vr(vT + 14, 2)}', 's_mov_b64 exec, -1',
                 f's_or_b64 vcc, vcc, s[{sIMP}:{sIMP+1}]', f's_cbranch_scc1 {lslow}', Label(lback)]]

    def publish_items(self, toks, soff, imm=0):
        p = self.p
        lslow, lback = p.newlabel('pubslow'), p.newlabel('pubback')
        self.tail.append((lslow, [
            'buffer_wbl2 sc1', 's_waitcnt vmcnt(0)',
            f'buffer_store_dwordx2 {vr(vF, 2)}, off, {srd(S_WS)}, s{soff} offset:{imm} sc1',
            f's_branch {lback}']))
        return [[Wait(toks), 's_mov_b64 exec, 1', f's_cmp_lg_u32 s{sPURE}, 0', f's_cbranch_scc0 {lslow}',
                 f'buffer_store_dwordx2 {vr(vF, 2)}, off, {srd(S_WS)}, s{soff} offset:{imm}', Label(lback), 's_mov_b64 exec, -1']]

    def publish(self, toks, soff, imm=0):
        self.p.ext(self.publish_items(toks, soff, imm))

    def flag_sc1(self, soff):
        return ['s_mov_b64 exec, 1', f'buffer_store_dwordx2 {vr(vF,2)}, off, {srd(S_WS)}, s{soff} sc1', 's_mov_b64 exec, -1']

    def flag_opt(self, soff):
        p = self.p
        l = p.newlabel('noflag')
        p(f's_cmp_eq_u32 s{soff}, -1')
        p(f's_cbranch_scc1 {l}')
        p.mark('maybe_begin')
        p.ext(self.flag_sc1(soff))
        p.mark('maybe_end')
        p.label(l)

    def stats_loads(self, soff, dst):
        return [f'buffer_load_dwordx2 {vr(dst + 2*i, 2)}, v{vSTA}, {srd(S_WS)}, s{soff} offen offset:{256*i} sc1' for i in range(7)]

    def stats_reduce(self, src):
        L = []
        for i in range(1, 7):
            L.append(f'v_add_f32 v{src}, v{src}, v{src+2*i}')
            L.append(f'v_add_f32 v{src+1}, v{src+1}, v{src+2*i+1}')
        s, q, t0, t1 = src, src + 1, src + 2, src + 3
        return L + [
            f'v_mov_b32 v{t0}, v{s}', f'v_mov_b32 v{t1}, v{q}', 's_nop 0',
            f'v_permlane32_swap_b32 v{s}, v{t0}', f'v_permlane32_swap_b32 v{q}, v{t1}',
            f'v_add_f32 v{s}, v{s}, v{t0}', f'v_add_f32 v{q}, v{q}, v{t1}',
            f'v_mul_f32 v{vMEAN}, {f32bits(-1.0/448):#x}, v{s}',
            f'v_mul_f32 v{q}, {f32bits(1.0/448):#x}, v{q}',
            f'v_fma_f32 v{q}, -v{vMEAN}, v{vMEAN}, v{q}',
            f'v_max_f32 v{q}, 0, v{q}',
            f'v_add_f32 v{q}, {f32bits(1e-5):#x}, v{q}',
            f'v_rsq_f32 v{vRSTD}, v{q}',
        ]

    def off(self, dst, idx_reg, mul, add):
        return [f's_mul_i32 s{dst}, s{idx_reg}, {mul}', f's_add_u32 s{dst}, s{dst}, s{sLB}', f's_add_u32 s{dst}, s{dst}, {add}']

    def xoff(self, dst, idx_reg, mul, add):
        return [f's_add_u32 s{sT3}, s{sLB}, {add}', f's_add_u32 s{sT4}, s{sTB}, {O_XA}', f's_cmp_lg_u32 s{sPURE}, 0',
                f's_cselect_b32 s{sT3}, s{sT4}, s{sT3}', f's_mul_i32 s{dst}, s{idx_reg}, {mul}', f's_add_u32 s{dst}, s{dst}, s{sT3}']

    def roff(self, dst, idx_reg, mul, add):
        return [f's_cmp_lg_u32 s{sPURE}, 0', f's_cselect_b32 s{sT3}, s{sTB}, s{sLB}',
                f's_mul_i32 s{dst}, s{idx_reg}, {mul}', f's_add_u32 s{dst}, s{dst}, s{sT3}', f's_add_u32 s{dst}, s{dst}, {add}']

    def pub_offsets(self, xoff, stoff, foff):
        return [f's_lshl_b32 s{sT0}, s{sRB}, 1', f's_add_u32 s{sT0}, s{sT0}, s{sRHO}',
                f's_lshl_b32 s{sT1}, s{sCB}, 1', f's_add_u32 s{sT1}, s{sT1}, s{sNU}',
                f's_mul_i32 s{sT2}, s{sT0}, 14', f's_add_u32 s{sT2}, s{sT2}, s{sT1}'] + \
            self.xoff(sXD, sT2, 2048, xoff) + self.off(sXS, sT2, 256, stoff) + \
            [f's_lshl_b32 s{sT0}, s{sT0}, 4', f's_add_u32 s{sT0}, s{sT0}, s{sT1}'] + self.off(sXF, sT0, 8, foff) + \
            [f's_cmp_ge_u32 s{sM}, 28'] + [f's_cselect_b32 s{r}, {WS_PUR}, s{r}' for r in (sXD, sXS, sXF)]

    def x_store(self, P, va, offs, sc=''):
        p = self.p
        S, Q2, t0, t1 = vT + 6, vT + 7, vT + 8, vT + 9
        for k in range(2):
            p(f'buffer_store_dwordx4 {vr(P+4*k)}, v{va}, {srd(S_WS)}, s{sXD} offen offset:{offs[k]} {sc}', tok='xst')
        p(f'v_mov_b32 v{t0}, s{sONES}')
        p(f'v_dot2_f32_bf16 v{S}, v{P}, v{t0}, 0')
        p(f'v_dot2_f32_bf16 v{Q2}, v{P}, v{P}, 0')
        for i in range(1, 8):
            p(f'v_dot2_f32_bf16 v{S}, v{P+i}, v{t0}, v{S}')
            p(f'v_dot2_f32_bf16 v{Q2}, v{P+i}, v{P+i}, v{Q2}')
        p(f'v_mov_b32 v{t0}, v{S}')
        p(f'v_mov_b32 v{t1}, v{Q2}')
        p(f'v_permlane32_swap_b32 v{S}, v{t0}')
        p(f'v_permlane32_swap_b32 v{Q2}, v{t1}')
        p(f'v_add_f32 v{S}, v{S}, v{t0}')
        p(f'v_add_f32 v{Q2}, v{Q2}, v{t1}')
        p('s_mov_b32 exec_hi, 0')
        p(f'buffer_store_dwordx2 {vr(S,2)}, v{vL8}, {srd(S_WS)}, s{sXS} offen {sc}', tok='xst')
        p('s_mov_b64 exec, -1')

    def res_unpack(self, P):
        L = []
        for q in range(8):
            L.append(f'v_lshlrev_b32 v{vRES+2*q}, 16, v{P+q}')
            L.append(f'v_and_b32 v{vRES+2*q+1}, 0xffff0000, v{P+q}')
        return L

    def prefetch(self, v128, sreg, base, nbytes):
        L = []
        o = 0
        while o < nbytes:
            oo = min(o, nbytes - 8192)
            L += [f's_add_u32 s{sT5}, s{sreg}, {base + oo}', f'buffer_load_dword a255, v{v128}, {srd(S_WS)}, s{sT5} offen sc1']
            o += 8192
        return L

    def touch(self, v128, sreg, imm, nlines):
        L = [f's_add_u32 s{sT5}, s{sreg}, {imm}']
        if nlines < 64:
            L += self.setexec(nlines)
        L.append(f'buffer_load_dword a255, v{v128}, {srd(S_WS)}, s{sT5} offen sc1')
        if nlines < 64:
            L.append('s_mov_b64 exec, -1')
        return [L]

    def wq_dma(self, tiles):
        sg, sl = sPOLL + 2, sPOLL + 3
        L = [f's_mul_i32 s{sg}, s{sJ}, 86016', f's_mul_i32 s{sl}, s{sW}, 7168', f's_add_u32 s{sg}, s{sg}, s{sl}']
        for tau in tiles:
            for o, n in ((0, 4), (4096, 3)):
                d = self.dma(S_WS, vL16, sg, WQT + tau * 28672 + o, (sl, tau * 28672 + o), 'wq', 'sc1', n)
                L += [d[:3]] + d[3:]
        return L

    def w1_dma(self, part):
        sg, sl = sPOLL, sPOLL + 1
        L = []
        if part == 0:
            for hf in range(2):
                L += [f's_xor_b32 s{sl}, s{sA}, {hf}', f's_lshl_b32 s{sg}, s{sW}, 1', f's_add_u32 s{sl}, s{sl}, s{sg}',
                      f's_mul_i32 s{sl}, s{sl}, 7168', f's_mul_i32 s{sg}, s{sJ}, 100352', f's_add_u32 s{sg}, s{sg}, s{sl}']
                for o, n in ((0, 4), (4096, 3)):
                    d = self.dma(S_WS, vL16, sg, W1T + o, (sl, o), 'w1', 'sc1', n)
                    L += [d[:3]] + d[3:]
            return L
        else:
            L += [f's_mul_i32 s{sg}, s{sJ}, 100352', f's_mul_i32 s{sl}, s{sW}, 10240', f's_add_u32 s{sg}, s{sg}, s{sl}']
            groups = [(0, 4), (4096, 4), (8192, 2)]
            base = 57344
        for o, n in groups:
            d = self.dma(S_WS, vL16, sg, W1T + base + o, (sl, base + o), 'w1', 'sc1', n)
            L += [d[:3]] + d[3:]
        if part == 1:
            L += [f's_sub_u32 s{sg}, s{sg}, s{sl}', f's_lshl_b32 s{sl}, s{sNU}, 10', f's_add_u32 s{sg}, s{sg}, s{sl}']
            L.append(self.dma(S_WS, vL16, sg, W1T + 98304, (sl, 98304), 'w1', 'sc1', 1))
        return L

    def w2_setup(self, sbase, vz):
        return [f's_lshl_b32 s{sbase}, s{sCB}, 2', f's_add_u32 s{sbase}, s{sbase}, s{sW}', f's_mul_i32 s{sbase}, s{sbase}, 57344',
                f's_lshl_b32 s{sT1}, s{sNU}, 10', f'v_xor_b32 v{vz[0]}, s{sT1}, v{vL16}', f'v_xor_b32 v{vz[1]}, 1024, v{vz[0]}']

    def w2_loads(self, sbase, vz):
        L = []
        for sl in range(4):
            pre = [f's_add_u32 s{sT3}, s{sRB}, {sl}', f's_and_b32 s{sT3}, s{sT3}, 3', f's_mul_i32 s{sT3}, s{sT3}, 14336',
                   f's_add_u32 s{sT3}, s{sT3}, s{sbase}']
            for sg in range(7):
                ks = 7 * sl + sg
                g = pre + [f's_add_u32 s{sT4}, s{sT3}, {W2T + sg*2048}',
                           f'buffer_load_dwordx4 {ar(ks*8)}, v{vz[0]}, {srd(S_WS)}, s{sT4} offen sc1']
                pre = []
                L += [g, f'buffer_load_dwordx4 {ar(ks*8+4)}, v{vz[1]}, {srd(S_WS)}, s{sT4} offen sc1']
        return L

    def lane_consts(self):
        p = self.p
        t0, t1 = vT + 6, vT + 7
        p(f'v_add_u32 v{vA1}, 57344, v{vL16}')
        p(f'v_and_b32 v{vSTA}, 31, v{vL}')
        p(f'v_lshlrev_b32 v{vSTA}, 3, v{vSTA}')
        p(f'v_lshrrev_b32 v{t0}, 5, v{vL}')
        p(f'v_mul_u32_u24 v{t1}, {7*256}, v{t0}')
        p(f'v_add_u32 v{vSTA}, v{vSTA}, v{t1}')
        p(f'v_lshrrev_b32 v{vFLG}, 2, v{vL}')
        p(f'v_lshlrev_b32 v{vFLG}, 7, v{vFLG}')
        p(f'v_and_b32 v{t1}, 3, v{vL}')
        p(f'v_lshl_add_u32 v{vFLG}, v{t1}, 3, v{vFLG}')
        for x in range(1, 4):
            p(f's_xor_b32 s{sT0}, s{sW}, {x}')
            p(f's_mul_i32 s{sT0}, s{sT0}, 12288')
            p(f's_add_u32 s{sT0}, s{sT0}, {LKV + (x-1)*4096}')
            p(f'v_add_u32 v{vRW+x-1}, s{sT0}, v{vL16}')
        p(f's_mul_i32 s{sT0}, s{sW}, 12288')
        p(f's_add_u32 s{sT0}, s{sT0}, {LKV}')
        p(f'v_add_u32 v{vRW+3}, s{sT0}, v{vL16}')
        p(f'v_bfe_u32 v{vX1A}, v{vL}, 4, 1')
        p(f'v_lshlrev_b32 v{vX1A}, 10, v{vX1A}')
        p(f'v_lshl_add_u32 v{vX1A}, v{t0}, 8, v{vX1A}')
        p(f'v_and_b32 v{t1}, 15, v{vL}')
        p(f'v_lshl_add_u32 v{vX1A}, v{t1}, 4, v{vX1A}')

    def pad(self):
        p = self.p
        k = len(self.pads)
        self.pads.append(f'L_pad{k}')
        p(f's_branch L_padskip{k}')
        p.label(f'L_pad{k}')
        p('s_setpc_b64 s[98:99]')
        p.label(f'L_padskip{k}')

    def emit_walker(self):
        L = []
        labs = [f'L_walk{w}' for w in range(4)]
        for w in range(1, 4):
            L += [Ins(f's_cmp_eq_u32 s{sW}, {w}'), Ins(f's_cbranch_scc1 {labs[w]}')]
        for w in range(4):
            if w:
                L.append(Label(labs[w]))
            for x in self.pads[w::4]:
                L.append(Ins(f's_call_b64 s[98:99], {x}'))
            if w < 3:
                L.append(Ins('s_branch L_walkend'))
        L.append(Label('L_walkend'))
        self.p.items[self.walker_at:self.walker_at] = L

    def rawq(self, tau, i):
        return (self.dma(S_WQ, self.vDQ, sRQ, (448, 896, 0)[tau] * 2 + i * 16 * 2688, (sLQ, tau * 28672 + i * 1024), f'rq{tau}{i}'))

    def xform(self, tau, R, vcs, vones, between=None):
        p = self.p

        def fin(i):
            p(f'ds_write_b128 v{self.vWQ}, {vr(R+4*i)} offset:{tau*28672+i*1024}')
            for q in range(4):
                p(f'v_dot2_f32_bf16 v{vcs}, v{R+4*i+q}, v{vones}, {f"v{vcs}" if i or q else 0}')
        for i in range(7):
            p.wait(f'rq{tau}{i}')
            for jj in range(2):
                p(f'ds_read_b64_tr_b16 {vr(R+4*i+2*jj,2)}, v{self.vTQ} offset:{tau*28672+i*1024+jj*512}')
            if between:
                between(i)
            if i >= 1:
                fin(i - 1)
        fin(6)

    def cs_partial(self, taus, vcs, t2, t3):
        p = self.p
        for k, tau in enumerate(taus):
            p(f'v_mov_b32 v{t2}, v{vcs+k}')
            p(f'v_permlane32_swap_b32 v{vcs+k}, v{t2}')
            p(f'v_add_f32 v{vcs+k}, v{vcs+k}, v{t2}')
        p(f'v_and_b32 v{t2}, 31, v{vL}')
        p(f'v_lshlrev_b32 v{t2}, 2, v{t2}')
        p(f's_mul_i32 s{sT0}, s{sW}, 384')
        p(f's_add_u32 s{sT0}, s{sT0}, {L_CSP}')
        p(f'v_add_u32 v{t3}, s{sT0}, v{t2}')
        for k, tau in enumerate(taus):
            p(f'ds_write_b32 v{t3}, v{vcs+k} offset:{tau*128}')

    def cs_sum(self, taus, R, t2, t3):
        p = self.p
        p(f'v_add_u32 v{t3}, {L_CSP}, v{t2}')
        for k, tau in enumerate(taus):
            for w in range(4):
                p(f'ds_read_b32 v{R+4*k+w}, v{t3} offset:{w*384+tau*128}')
        p(f'v_add_u32 v{t3}, {L_CSQ}, v{t2}')
        for k, tau in enumerate(taus):
            r = R + 4 * k
            p(f'v_add_f32 v{r}, v{r}, v{r+1}')
            p(f'v_add_f32 v{r+2}, v{r+2}, v{r+3}')
            p(f'v_add_f32 v{r}, v{r}, v{r+2}')
            p(f'ds_write_b32 v{t3}, v{r} offset:{tau*128}')
        p('s_waitcnt lgkmcnt(0)')

    def prologue(self):
        p = self.p
        t0, t1, t2, t3 = vT, vT + 1, vT + 2, vT + 3
        self.vDQ, self.vTQ, self.vWQ = vDQ, vTQ, vWQ = vT + 10, vT + 11, vT + 12
        p('s_cmp_ge_u32 s2, 256')
        p('s_cbranch_scc1 L_end')
        p(f's_load_dwordx16 s[{sO}:{sO+15}], s[0:1], 0')
        p(f's_load_dwordx2 s[{S_WSP}:{S_WSP+1}], s[0:1], 64')
        p(f's_getpc_b64 s[{sT0}:{sT0+1}]')
        p.label('L_pc')
        p(f'v_lshlrev_b32 v{t2}, 7, v0')
        p(f'global_load_dword a255, v{t2}, s[{sT0}:{sT0+1}]')
        p(f'v_add_u32 v{t2}, 0x8000, v{t2}')
        p(f'v_min_u32 v{t2}, L_codeend-L_pc, v{t2}')
        p(f'global_load_dword a255, v{t2}, s[{sT0}:{sT0+1}]')
        if os.environ.get('CALIB'):
            p('s_memrealtime s[100:101]')
        self.stamp('start')
        p(f'v_lshrrev_b32 v{vT}, 6, v0')
        p(f'v_and_b32 v{vL}, 63, v0')
        p(f'v_readfirstlane_b32 s{sW}, v{vT}')
        p(f's_lshr_b32 s{sM}, s2, 3')
        p(f's_and_b32 s{sTEAM}, s2, 7')
        p(f's_mul_i32 s{sRB}, s{sM}, 37')
        p(f's_lshr_b32 s{sRB}, s{sRB}, 8')
        p(f's_mul_i32 s{sT0}, s{sRB}, 7')
        p(f's_sub_u32 s{sCB}, s{sM}, s{sT0}')
        p(f's_lshr_b32 s{sRHO}, s{sW}, 1')
        p(f's_and_b32 s{sNU}, s{sW}, 1')
        p(f's_lshl_b32 s{sT0}, s{sTEAM}, 2')
        p(f's_add_u32 s{sT0}, s{sT0}, s{sRB}')
        p(f's_lshl_b32 s{sT1}, s{sT0}, 1')
        p(f's_add_u32 s{sT1}, s{sT1}, s{sRHO}')
        p(f's_mul_i32 s{sQOFF}, s{sT1}, {32*896}')
        p(f's_lshl_b32 s{sT1}, s{sCB}, 7')
        p(f's_add_u32 s{sQOFF}, s{sQOFF}, s{sT1}')
        p(f's_lshl_b32 s{sT1}, s{sNU}, 6')
        p(f's_add_u32 s{sQOFF}, s{sQOFF}, s{sT1}')
        vPK, vPQ, vH = vT + 14, vT + 15, vT + 13
        p(f'v_and_b32 v{t3}, 31, v{vL}')
        p(f'v_mul_u32_u24 v{t3}, 896, v{t3}')
        p(f'v_lshrrev_b32 v{vH}, 5, v{vL}')
        p(f'v_lshl_add_u32 v{t3}, v{vH}, 3, v{t3}')
        p(f's_lshl_b32 s{sT2}, s{sM}, 2')
        p(f's_add_u32 s{sT2}, s{sT2}, s{sW}')
        p(f's_mul_i32 s{sT3}, s{sT2}, 49')
        p(f'v_add_u32 v{t2}, s{sT3}, v{vL}')
        p(f'v_mul_u32_u24 v{vPK}, 74899, v{t2}')
        p(f'v_lshrrev_b32 v{vPK}, 20, v{vPK}')
        p(f'v_mul_u32_u24 v{vPK}, 7, v{vPK}')
        p(f'v_add_u32 v{vPK}, v{vPK}, v{t2}')
        p(f'v_lshlrev_b32 v{vPK}, 7, v{vPK}')
        b = sO

        def mksrd(d, src, n):
            p(f's_mov_b32 s{d}, s{src}')
            p(f's_and_b32 s{d+1}, s{src+1}, 0xffff')
            p(f's_mov_b32 s{d+2}, {n}')
            p(f's_mov_b32 s{d+3}, 0x20000')
        mksrd(S_X, b, 1835008)
        mksrd(S_WQ, b + 2, 1204224)
        XR = 96
        for q in range(4):
            p(f'buffer_load_dwordx2 {vr(XR+2*q,2)}, v{t3}, {srd(S_X)}, s{sQOFF} offen offset:{16*q}')
        p('s_mov_b32 exec_hi, 0x1ffff')
        p(f'buffer_load_dword a255, v{vPK}, {srd(S_WQ)}, 0 offen offset:896')
        p('s_mov_b64 exec, -1')
        p(f's_load_dwordx2 s[{sF}:{sF+1}], s[{S_WSP}:{S_WSP+1}], {WS_EPOCH}')
        for (d, src, n) in ((S_WO, b + 4, 401408), (S_W1, b + 8, 1605632),
                            (S_W2, b + 10, 1605632), (S_OUT, b + 12, 1835008), (S_WS, S_WSP, WS_BYTES)):
            mksrd(d, src, n)
        p(f's_mul_i32 s{sT3}, s{sT2}, 25')
        p(f'v_add_u32 v{t2}, s{sT3}, v{vL}')
        p(f'v_mul_u32_u24 v{vPQ}, 149797, v{t2}')
        p(f'v_lshrrev_b32 v{vPQ}, 20, v{vPQ}')
        p(f'v_mul_u32_u24 v{vPQ}, 14, v{vPQ}')
        p(f'v_add_u32 v{vPQ}, v{vPQ}, v{t2}')
        p(f'v_lshlrev_b32 v{vPQ}, 7, v{vPQ}')
        p(f's_and_b32 s{sJ}, s{sM}, 15')
        p(f's_lshr_b32 s{sA}, s{sM}, 4')
        p(f'v_lshrrev_b32 v{t0}, 2, v{vL}')
        p(f'v_and_b32 v{t1}, 3, v{vL}')
        p(f'v_lshlrev_b32 v{t3}, 3, v{t1}')
        p(f'v_lshlrev_b32 v{t1}, 4, v{t1}')
        self.stamp('ka')
        sI, sSTG = sO, sO + 1
        sFL, sDST, sJOB, sDST2 = sJFL, sO + 3, sO + 4, sO + 5

        p(f's_mul_i32 s{sLB}, s{sTEAM}, {STRIDE}')
        p(f's_add_u32 s{sLB}, s{sLB}, {TEAM0}')
        p(f's_mov_b32 s{sTB}, s{sLB}')
        p(f'v_lshlrev_b32 v{vL16}, 4, v{vL}')
        p(f'v_lshlrev_b32 v{vL8}, 3, v{vL}')
        p(f's_mov_b32 s{sONES}, 0x3f803f80')
        p(f's_mov_b32 s{sPURE}, 1')
        p(f's_mov_b64 s[{sIMP}:{sIMP+1}], 0')
        p.ext(self.pub_offsets(O_XA, O_STA, O_FXA))
        vD, vTR, vTR8 = vT + 4, vT + 5, vT + 13
        FR = 32
        p(f's_lshl_b32 s{sI}, s{sTEAM}, 1')
        p(f's_add_u32 s{sI}, s{sI}, s{sA}')
        p(f's_lshl_b32 s{sSTG}, s{sW}, 13')
        p(f's_add_u32 s{sSTG}, s{sSTG}, {LKV}')
        lA = [p.newlabel('jobA') for _ in range(4)]
        p(f's_mov_b32 s{sJOB}, 0')
        p.mark('maybe_begin')
        p(f's_cmp_ge_u32 s{sW}, 2')
        p(f's_cbranch_scc1 {lA[0]}')
        p(f's_cmp_eq_u32 s{sW}, 0')
        p(f's_cbranch_scc1 {lA[2]}')
        p(f's_cmp_ge_u32 s{sI}, 14')
        p(f's_cbranch_scc1 {lA[2]}')
        p(f'v_bfe_u32 v{vD}, v{vL}, 1, 3')
        p(f'v_bfe_u32 v{t2}, v{vL}, 4, 1')
        p(f'v_lshl_add_u32 v{vD}, v{t2}, 4, v{vD}')
        p(f'v_bfe_u32 v{t2}, v{vL}, 5, 1')
        p(f'v_lshl_add_u32 v{vD}, v{t2}, 3, v{vD}')
        p(f'v_mul_u32_u24 v{vD}, 3584, v{vD}')
        p(f'v_and_b32 v{t2}, 1, v{vL}')
        p(f'v_lshl_add_u32 v{vD}, v{t2}, 4, v{vD}')
        p(f's_mul_i32 s{sT0}, s{sI}, {32*3584}')
        p(f's_mul_i32 s{sT1}, s{sJ}, 224')
        p(f's_add_u32 s{sT0}, s{sT0}, s{sT1}')
        for t in range(7):
            p.ext(self.dma(S_W1, vD, sT0, t * 32, (sSTG, t * 1024), 'raw'))
        p(f's_mov_b32 s{sJOB}, 2')
        p('s_waitcnt vmcnt(8)')
        p(f's_branch {lA[3]}')
        p.label(lA[0])
        p(f'v_mul_u32_u24 v{vD}, 896, v{t0}')
        p(f'v_add_u32 v{vD}, v{vD}, v{t1}')
        p(f's_cmp_ge_u32 s{sM}, 28')
        p(f's_cbranch_scc1 {lA[1]}')
        sI2, sSL, sHF = sT2, sT3, sT4
        p(f's_lshl_b32 s{sI2}, s{sTEAM}, 2')
        p(f's_add_u32 s{sI2}, s{sI2}, s{sRB}')
        p(f's_lshr_b32 s{sSL}, s{sI2}, 1')
        p(f's_and_b32 s{sHF}, s{sI2}, 1')
        p(f's_mul_i32 s{sT0}, s{sSL}, {112*896}')
        p(f's_mul_i32 s{sT1}, s{sHF}, {64*896}')
        p(f's_add_u32 s{sT0}, s{sT0}, s{sT1}')
        p(f's_lshl_b32 s{sT1}, s{sCB}, 7')
        p(f's_add_u32 s{sT0}, s{sT0}, s{sT1}')
        p(f's_lshl_b32 s{sT1}, s{sNU}, 6')
        p(f's_add_u32 s{sT0}, s{sT0}, s{sT1}')
        for k in range(4):
            p.ext(self.dma(S_W2, vD, sT0, k * 16 * 896, (sSTG, k * 1024), 'raw'))
        p(f's_add_u32 s{sJOB}, s{sHF}, 3')
        p('s_waitcnt vmcnt(5)')
        p(f's_branch {lA[3]}')
        p.label(lA[1])
        p(f's_cmp_eq_u32 s{sTEAM}, 7')
        p(f's_cbranch_scc1 {lA[2]}')
        p(f's_mul_i32 s{sT0}, s{sCB}, {112*896}')
        p(f's_lshl_b32 s{sT1}, s{sTEAM}, 7')
        p(f's_add_u32 s{sT0}, s{sT0}, s{sT1}')
        p(f's_lshl_b32 s{sT1}, s{sNU}, 6')
        p(f's_add_u32 s{sT0}, s{sT0}, s{sT1}')
        for k in range(8):
            p.ext(self.dma(S_WO, vD, sT0, k * 16 * 896, (sSTG, k * 1024), 'raw'))
        p(f's_mov_b32 s{sJOB}, 5')
        p.label(lA[2])
        p('s_waitcnt vmcnt(1)')
        p.mark('maybe_end')
        p.label(lA[3])
        self.stamp('jA')
        lp0 = p.newlabel('p0skip')
        p(f's_cmp_ge_u32 s{sM}, 28')
        p(f's_cselect_b32 s{sXF}, -1, s{sXF}')
        p(f's_cbranch_scc1 {lp0}')
        p.mark('drained_vm')
        self.x_store(XR, vL16, (0, 1024), 'sc1')
        p.label(lp0)
        p('s_mov_b64 exec, 0x1ffffff')
        p(f'buffer_load_dword a255, v{vPQ}, {srd(S_WQ)}, 0 offen')
        p('s_mov_b64 exec, -1')
        self.stamp('x0')
        p(f'v_mul_u32_u24 v{vDQ}, 2688, v{t0}')
        p(f'v_add_u32 v{vDQ}, v{vDQ}, v{t1}')
        p(f's_mul_i32 s{sRQ}, s{sW}, {7*16*2688}')
        p(f's_mul_i32 s{sT1}, s{sJ}, 56')
        p(f's_add_u32 s{sRQ}, s{sRQ}, s{sT1}')
        p(f's_mul_i32 s{sLQ}, s{sW}, 7168')
        p(f'v_bfe_u32 v{t2}, v{vL}, 4, 1')
        p(f'v_lshl_add_u32 v{t2}, v{t2}, 5, v{t3}')
        p(f'v_bfe_u32 v{vTR}, v{vL}, 2, 2')
        p(f'v_lshl_add_u32 v{t2}, v{vTR}, 6, v{t2}')
        p(f'v_lshl_add_u32 v{vTQ}, v{vH}, 8, v{t2}')
        p(f'v_add_u32 v{vTR}, s{sSTG}, v{vTQ}')
        p(f'v_add_u32 v{t2}, s{sSTG}, v{t2}')
        p(f'v_lshl_add_u32 v{vTR8}, v{vH}, 9, v{t2}')
        p(f'v_add_u32 v{vTQ}, s{sLQ}, v{vTQ}')
        p(f'v_add_u32 v{vWQ}, s{sLQ}, v{vL16}')
        p(f's_mov_b32 s{sPERM}, 0x07060302')
        p(f's_lshl_b32 s{sTP}, s{sA}, 2')
        p(f's_add_u32 s{sTP}, s{sTP}, s{sW}')
        self.lane_consts()
        vCSP = 104
        p(f'v_mov_b32 v{vCSP+3}, s{sONES}')
        p.ext(self.res_unpack(XR))
        p('s_waitcnt lgkmcnt(0)')
        p(f's_add_u32 s{sF}, s{sF}, 1')
        p(f's_addc_u32 s{sF+1}, s{sF+1}, 0')
        p(f'v_mov_b32 v{vF}, s{sF}')
        p(f'v_mov_b32 v{vF+1}, s{sF+1}')
        self.walker_at = len(p.items)
        self.stamp('wk')
        p('s_waitcnt vmcnt(1)')
        p.mark('drained_vm')
        self.stamp('rt1')
        for i in range(4):
            p.ext(self.rawq(0, i))
        self.flag_opt(sXF)

        def finish(nfr, offs):
            L = []
            base = None
            for k in range(nfr):
                hi, lo = offs[k] // 4096 * 4096, offs[k] % 4096
                if hi != base:
                    L.append(f's_add_u32 s{sT5}, s{sDST}, {hi}')
                    base = hi
                L.append(f'buffer_store_dwordx4 {vr(FR+4*k)}, v{vL16}, {srd(S_WS)}, s{sT5} offen offset:{lo} sc1')
            return L
        lB = {k: p.newlabel('jobB') for k in (3, 4, 5, 'join')}
        p(f's_mov_b32 s{sFL}, -1')
        p.mark('maybe_begin')
        p(f's_cmp_eq_u32 s{sJOB}, 0')
        p(f's_cbranch_scc1 {lB["join"]}')
        p(f's_cmp_eq_u32 s{sJOB}, 5')
        p(f's_cbranch_scc1 {lB[5]}')
        p(f's_cmp_ge_u32 s{sJOB}, 3')
        p(f's_cbranch_scc1 {lB[3]}')
        p(f'v_lshl_add_u32 v{vTR}, v{t0}, 5, v{t3}')
        p(f'v_add_u32 v{vTR}, s{sSTG}, v{vTR}')
        for t in range(7):
            for jj in range(2):
                p(f'ds_read_b64_tr_b16 {vr(FR+t*4+2*jj,2)}, v{vTR} offset:{t*1024+jj*512}')
        p(f's_mul_i32 s{sDST}, s{sJ}, 100352')
        p(f's_add_u32 s{sDST}, s{sDST}, {W1T}')
        p(f's_mul_i32 s{sDST2}, s{sI}, 3072')
        p(f's_add_u32 s{sDST2}, s{sDST2}, s{sDST}')
        p(f's_add_u32 s{sDST2}, s{sDST2}, 57344')
        p(f's_lshl_b32 s{sT0}, s{sI}, 12')
        p(f's_add_u32 s{sDST}, s{sDST}, s{sT0}')
        p(f's_lshl_b32 s{sFL}, s{sJ}, 4')
        p(f's_add_u32 s{sFL}, s{sFL}, s{sI}')
        p(f's_lshl_b32 s{sFL}, s{sFL}, 3')
        p(f's_add_u32 s{sFL}, s{sFL}, {F_W1}')
        p.ext(finish(4, [t * 1024 for t in range(4)]))
        for t in range(4, 7):
            p(f'buffer_store_dwordx4 {vr(FR+4*t)}, v{vL16}, {srd(S_WS)}, s{sDST2} offen offset:{(t-4)*1024} sc1')
        p(f's_branch {lB["join"]}')
        p.label(lB[3])
        for sg in range(2):
            for jj in range(2):
                p(f'ds_read_b64_tr_b16 {vr(FR+sg*4+2*jj,2)}, v{vTR} offset:{(16*jj+8*sg)*64}')
        p(f's_lshl_b32 s{sI2}, s{sTEAM}, 2')
        p(f's_add_u32 s{sI2}, s{sI2}, s{sRB}')
        p(f's_lshr_b32 s{sSL}, s{sI2}, 1')
        p(f's_and_b32 s{sHF}, s{sI2}, 1')
        p(f's_mul_i32 s{sDST}, s{sCB}, 229376')
        p(f's_mul_i32 s{sT0}, s{sSL}, 14336')
        p(f's_add_u32 s{sDST}, s{sDST}, s{sT0}')
        p(f's_lshl_b32 s{sT0}, s{sHF}, 13')
        p(f's_add_u32 s{sDST}, s{sDST}, s{sT0}')
        p(f's_lshl_b32 s{sT0}, s{sNU}, 10')
        p(f's_add_u32 s{sDST}, s{sDST}, s{sT0}')
        p(f's_add_u32 s{sDST}, s{sDST}, {W2T}')
        p(f's_lshl_b32 s{sFL}, s{sCB}, 5')
        p(f's_add_u32 s{sFL}, s{sFL}, s{sI2}')
        p(f's_lshl_b32 s{sFL}, s{sFL}, 1')
        p(f's_add_u32 s{sFL}, s{sFL}, s{sNU}')
        p(f's_lshl_b32 s{sFL}, s{sFL}, 3')
        p(f's_add_u32 s{sFL}, s{sFL}, {F_W2}')
        p(f's_cmp_eq_u32 s{sJOB}, 4')
        p(f's_cbranch_scc1 {lB[4]}')
        for sg in range(2, 4):
            for jj in range(2):
                p(f'ds_read_b64_tr_b16 {vr(FR+sg*4+2*jj,2)}, v{vTR} offset:{(32+16*jj+8*(sg%2))*64}')
        p.ext(finish(4, [k * 2048 for k in range(4)]))
        p(f's_branch {lB["join"]}')
        p.label(lB[4])
        for jj in range(2):
            p(f'ds_read_b64_tr_b16 {vr(FR+8+2*jj,2)}, v{vTR8} offset:{(32+4*jj)*64}')
        p('s_waitcnt lgkmcnt(0)')
        p.ext(finish(3, [k * 2048 for k in range(3)]))
        p(f's_branch {lB["join"]}')
        p.label(lB[5])
        for hd in range(4):
            for kp in range(2):
                for jj in range(2):
                    p(f'ds_read_b64_tr_b16 {vr(FR+(hd*2+kp)*4+2*jj,2)}, v{vTR} offset:{(28*hd+16*kp+8*jj)*64}')
        p(f's_lshl_b32 s{sFL}, s{sTEAM}, 2')
        p(f's_add_u32 s{sFL}, s{sFL}, s{sCB}')
        p(f's_lshl_b32 s{sDST}, s{sFL}, 14')
        p(f's_lshl_b32 s{sT0}, s{sNU}, 10')
        p(f's_add_u32 s{sDST}, s{sDST}, s{sT0}')
        p(f's_add_u32 s{sDST}, s{sDST}, {WOT}')
        p(f's_lshl_b32 s{sFL}, s{sFL}, 1')
        p(f's_add_u32 s{sFL}, s{sFL}, s{sNU}')
        p(f's_lshl_b32 s{sFL}, s{sFL}, 3')
        p(f's_add_u32 s{sFL}, s{sFL}, {F_WO}')
        p('s_waitcnt lgkmcnt(0)')
        p('s_mov_b32 exec_lo, 0')
        for hd in range(4):
            p(f'v_mov_b32 v{FR+(hd*2+1)*4+2}, 0')
            p(f'v_mov_b32 v{FR+(hd*2+1)*4+3}, 0')
        p('s_mov_b64 exec, -1')
        p.ext(finish(8, [k * 2048 for k in range(8)]))
        p.mark('maybe_end')
        p.label(lB['join'])
        p(f's_getreg_b32 s{sT0}, hwreg(HW_REG_XCC_ID)')
        p(f's_and_b32 s{sT0}, s{sT0}, 15')
        p(f's_lshl_b32 s{sT0}, s{sT0}, 28')
        p(f's_xor_b32 s{sT0}, s{sT0}, s{sF+1}')
        p(f'v_mov_b32 v{t2}, s{sF}')
        p(f'v_mov_b32 v{t3}, s{sT0}')
        p(f's_lshl_b32 s{sT1}, s{sTEAM}, 8')
        p(f's_lshl_b32 s{sT2}, s{sM}, 3')
        p(f's_add_u32 s{sT1}, s{sT1}, s{sT2}')
        p(f's_add_u32 s{sT1}, s{sT1}, {WS_PUR}')
        lx = p.newlabel('noxcc')
        p(f's_cmp_lg_u32 s{sW}, 0')
        p(f's_cbranch_scc1 {lx}')
        p.mark('maybe_begin')
        p('s_mov_b64 exec, 1')
        p(f'buffer_store_dwordx2 {vr(t2,2)}, off, {srd(S_WS)}, s{sT1} sc1')
        p('s_mov_b64 exec, -1')
        p.mark('maybe_end')
        p.label(lx)
        self.stamp('jB')
        for i in range(4, 7):
            p.ext(self.rawq(0, i))
        for i in range(7):
            p.ext(self.rawq(1, i))
        self.xform(0, 128, vCSP, vCSP + 3)
        self.flag_opt(sFL)
        self.stamp('xf0')
        self.xform(1, 160, vCSP + 1, vCSP + 3)
        self.cs_partial((0, 1), vCSP, t2, t3)
        p('s_waitcnt lgkmcnt(0)')
        p('s_barrier')
        self.stamp('bar')
        self.cs_sum((0, 1), 108, t2, t3)
        self.stamp('pro')

    def wqt_publish(self, R):
        p = self.p
        l = p.newlabel('nowqt')
        p(f's_lshl_b32 s{sT0}, s{sTEAM}, 1')
        p(f's_add_u32 s{sT0}, s{sT0}, s{sA}')
        p(f's_cmp_ge_u32 s{sT0}, 14')
        p(f's_cbranch_scc1 {l}')
        p(f's_cmp_lg_u32 s{sW}, 0')
        p(f's_cbranch_scc1 {l}')
        p.mark('maybe_begin')
        p(f's_lshl_b32 s{sT1}, s{sT0}, 11')
        p(f'v_add_u32 v{R+24}, s{sT1}, v{vL16}')
        for tau in range(2):
            for kp in range(2):
                p(f'ds_read_b128 {vr(R+(tau*2+kp)*4)}, v{R+24} offset:{tau*28672+kp*1024}')
        p(f's_mul_i32 s{sT2}, s{sJ}, 86016')
        p(f's_add_u32 s{sT1}, s{sT1}, s{sT2}')
        for tau in range(2):
            p(f's_add_u32 s{sT2}, s{sT1}, {WQT + tau*28672}')
            for kp in range(2):
                p(f'buffer_store_dwordx4 {vr(R+(tau*2+kp)*4)}, v{vL16}, {srd(S_WS)}, s{sT2} offen offset:{kp*1024} sc1')
        p(f's_lshl_b32 s{sJFL}, s{sJ}, 4')
        p(f's_add_u32 s{sJFL}, s{sJFL}, s{sT0}')
        p(f's_lshl_b32 s{sJFL}, s{sJFL}, 3')
        p(f's_add_u32 s{sJFL}, s{sJFL}, {F_WQ}')
        p.mark('maybe_end')
        p.label(l)

    def p1(self):
        p, L0 = self.p, self.L == 0
        X, ACC, RING, CS = 32, 144, 192, 224
        accK, accV, accQ = ACC, ACC + 16, ACC + 32
        PK, PV = vT, vT + 8
        sXO, sST, sFX, sKV, sKF = sO, sO + 7, sO + 8, sO + 9, sO + 10
        p.ext(self.xoff(sXO, sTP, 28672, O_XA))
        for g in range(1, 7):
            p(f's_add_u32 s{sXO+g}, s{sXO}, {4096*g}')
        p.ext(self.off(sST, sTP, 3584, O_STA))
        p.ext(self.off(sFX, sTP, 128, O_FXA))
        p(f's_lshl_b32 s{sT0}, s{sJ}, 3')
        p(f's_add_u32 s{sT0}, s{sT0}, s{sTP}')
        p.ext(self.off(sKV, sT0, 4096, O_KV))
        p.ext(self.off(sKF, sT0, 128, O_FKV))
        p(f'v_lshrrev_b32 v{vCSA}, 5, v{vL}')
        p(f'v_lshlrev_b32 v{vCSA}, 4, v{vCSA}')
        p(f'v_add_u32 v{vCSA}, {L_CSQ}, v{vCSA}')
        sW2E, sW2F = sO + 11, sO + 12
        vQ = 238
        if L0:
            self.vDQ, self.vTQ, self.vWQ = vQ, 225, 226
            p.ext([f'v_lshrrev_b32 v{vQ}, 2, v{vL}', f'v_mul_u32_u24 v{vQ}, 2688, v{vQ}', f'v_and_b32 v{vQ+1}, 3, v{vL}',
                   f'v_lshl_add_u32 v{vQ}, v{vQ+1}, 4, v{vQ}', f'v_lshlrev_b32 v{vQ+1}, 7, v{vL}'])

        def frag(f):
            if f < 56:
                base, off = vL16, (f % 2) * 28672 + (f // 2) * 1024
            else:
                base, off = vA1, (f - 56) * 1024
            return f'ds_read_b128 {vr(RING + 4*(f % 8))}, v{base} offset:{off}'

        def mf(f):
            acc, s = ((accK, accV)[f % 2], f // 2) if f < 56 else (accQ, f - 56)
            return f'{MF32} {vr(acc,16)}, {vr(RING+4*(f%8))}, {vr(X+4*s)}, {vr(acc,16) if s else 0}'

        def xl(s):
            return f'buffer_load_dwordx4 {vr(X+4*s)}, v{vL16}, {srd(S_WS)}, s{sXO + s//4} offen offset:{(s%4)*1024} sc1'
        PD = 6
        for f in range(PD):
            p(frag(f))
        self.stamp('p5')
        self.pad()
        self.vpoll(vL8, f's{sFX}', 14, acquire=not L0)
        self.stamp('E')
        XP = 8
        for s in range(XP):
            p(xl(s))
        mem, pre = {}, {}
        for f in range(84):
            mem[f] = []
            if f + PD < 84 and not (f < 56 <= f + PD):
                mem[f].append(frag(f + PD))
            if f < 56 and f % 2 == 0 and f // 2 + XP < 28:
                mem[f].append(xl(f // 2 + XP))
            if 27 <= f < 41 and f % 2 == 1:
                mem[f].append(self.stats_loads(sST, CS)[(f - 27) // 2])
            if f % 2 == 0:
                pre[f] = [Touch(vr(RING + 4 * (f % 8)) + ' ' + vr(RING + 4 * ((f + 1) % 8)) + (' ' + vr(X + 4 * (f // 2)) if f < 56 else ''))]
        if L0:
            for i in range(7):
                mem[40 + 2 * i].append(self.rawq(2, i))
        else:
            p(f's_mul_i32 s{sT0}, s{sW}, 7168')
            p(f'v_add_u32 v{vQ}, s{sT0}, v{vA1}')
            for i in range(7):
                mem[3 + 4 * i].append(Ins(f'ds_write_b128 v{vQ}, {ar(224 + 4*i)} offset:{1024*i}', 'wq'))
        for f in (0, 16, 38):
            mem[f] += self.stamp_items(f'k{f}')

        def cs_reads(tau, dst):
            return [f'ds_read_b128 {vr(dst+4*q)}, v{vCSA} offset:{tau*128 + 32*q}' for q in range(4)]
        p.ext(sched([mf(f) for f in range(56)], pre, mem, cs_reads(1, accQ) + cs_reads(0, PK) + self.stats_reduce(CS), 6, start=43))
        self.stamp('kv')

        def epi(acc, cs, P):
            L = []
            for r in range(0, 16, 2):
                L.append(f'v_pk_fma_f32 {vr(acc+r,2)}, {vr(cs+r,2)}, {vr(vMEAN,2)}, {vr(acc+r,2)} op_sel:[0,0,0] op_sel_hi:[1,0,1]')
            for r in range(0, 16, 2):
                L.append(f'v_pk_mul_f32 {vr(acc+r,2)}, {vr(acc+r,2)}, {vr(vMEAN,2)} op_sel:[0,1] op_sel_hi:[1,1]')
                L.append(f'v_cvt_pk_bf16_f32 v{P+r//2}, v{acc+r}, v{acc+r+1}')
            return L

        def pad(P, c6, c7):
            return ['s_mov_b32 exec_lo, 0', f'v_mov_b32 v{P+6}, {c6:#x}', f'v_mov_b32 v{P+7}, {c7:#x}', 's_mov_b64 exec, -1']

        def st(P, o):
            return [Ins(f'buffer_store_dwordx4 {vr(P+4*k)}, v{vL16}, {srd(S_WS)}, s{sKV} offen offset:{o+1024*k} sc1', 'kvst') for k in range(2)]
        t0, t1 = CS, CS + 1
        p.ext(epi(accK, PK, PK) + pad(PK, 0x3f803f80, 0x3f80) + st(PK, 0))
        p.ext(epi(accV, accQ, PV) + pad(PV, 0x3f80, 0) + st(PV, 2048))
        self.stamp('kvs')
        if L0:
            R = ACC
            vcs, vones, t2, t3 = R + 28, R + 29, R + 30, R + 31
            p.ext([f'v_and_b32 v225, 3, v{vL}', 'v_lshlrev_b32 v225, 3, v225', f'v_bfe_u32 v226, v{vL}, 4, 1',
                   'v_lshl_add_u32 v225, v226, 5, v225', f'v_bfe_u32 v226, v{vL}, 2, 2', 'v_lshl_add_u32 v225, v226, 6, v225',
                   f'v_lshrrev_b32 v226, 5, v{vL}', 'v_lshl_add_u32 v225, v226, 8, v225', f'v_add_u32 v225, s{sLQ}, v225',
                   f'v_add_u32 v226, s{sLQ}, v{vL16}', f'v_mov_b32 v{vones}, s{sONES}'])
            self.xform(2, R, vcs, vones)
            p.wait('kvst')
            p.ext(self.flag_sc1(sKF))
            for i in range(28):
                p(f'v_accvgpr_write_b32 a{224+i}, v{R+i}')
            self.cs_partial((2,), vcs, t2, t3)
            p('s_waitcnt lgkmcnt(0)')
            p('s_barrier')
            self.cs_sum((2,), R, t2, t3)
        else:
            p.wait('wq')
            p('s_barrier')
        for f in range(56, 56 + PD):
            p(frag(f))
        side = [f's_lshl_b32 s{sT0}, s{sW}, 12', f's_add_u32 s{sT0}, s{sT0}, {LKV + 8*4096}',
                f'v_add_u32 v{t0}, s{sT0}, v{vL16}',
                f'ds_write_b128 v{t0}, {vr(PK)}', f'ds_write_b128 v{t0}, {vr(PK+4)} offset:1024',
                f'v_and_b32 v{t1}, 31, v{vL}', f'v_lshlrev_b32 v{t1}, 6, v{t1}', f'v_lshrrev_b32 v{t0}, 5, v{vL}',
                f'v_lshl_add_u32 v{t1}, v{t0}, 4, v{t1}', f'v_add_u32 v{t0}, s{sT0}, v{t1}',
                f'ds_write_b128 v{t0}, {vr(PV)} offset:2048', f'ds_write_b128 v{t0}, {vr(PV+4)} offset:{2048+32}',
                f'v_mul_f32 v{vRSTD}, {f32bits(28 ** -0.5 * math.log2(math.e)):#x}, v{vRSTD}'] + cs_reads(2, CS) + self.kv_addr()
        pre2 = {f - 56: v for f, v in pre.items() if f >= 56}
        mem2 = {f - 56: v for f, v in mem.items() if f >= 56}
        if not L0:
            mem2[22].append([Wait(['kvst'])] + self.flag_sc1(sKF))
        qs = sched([mf(f) for f in range(56, 84)], pre2, mem2, side, 6, start=0)
        cut = qs.index(mf(56 + 16)) if L0 else len(qs)
        while not isinstance(qs[cut - 1], (str, Ins, list)):
            cut -= 1
        p.ext(qs[:cut])
        self.stamp('q')
        self.kv_fetch()
        p.ext(qs[cut:])
        QF = 200
        p.ext(epi(accQ, CS, QF))
        p.ext(pad(QF, 0, 0x3f800000))
        if L0:
            p(f's_mov_b32 s{sJFL}, -1')
            self.wqt_publish(32)
        self.pad()
        p('s_barrier')
        self.stamp('p1')

    sKD, sKL, sKFl, sNULL = sO + 11, sO + 13, (sO + 15, 78), 79

    def kv_addr(self):
        sKD, sKL, sKFl, sNULL = self.sKD, self.sKL, self.sKFl, self.sNULL
        L = [f's_mov_b32 s{sNULL}, 0']
        for k in range(2):
            L += [f's_lshl_b32 s{sT0}, s{sW}, 1', f's_add_u32 s{sT0}, s{sT0}, {k}',
                  f's_lshl_b32 s{sKL+k}, s{sT0}, 12', f's_add_u32 s{sKL+k}, s{sKL+k}, {LKV}',
                  f's_lshl_b32 s{sT1}, s{sA}, 2', f's_add_u32 s{sT0}, s{sT0}, s{sT1}',
                  [f's_cmp_lt_u32 s{sT0}, 8', f's_cselect_b32 s{sT1}, {STRIDE}, 0'],
                  f's_sub_u32 s{sT1}, s{sLB}, s{sT1}', f's_and_b32 s{sT0}, s{sT0}, 7',
                  [f's_cmp_lt_i32 s{sT1}, {TEAM0}', f's_cselect_b32 s{sT2}, {1 << k}, 0',
                   f's_cselect_b32 s{sT1}, s{sLB}, s{sT1}', f's_cselect_b32 s{sT0}, s{sTP}, s{sT0}'],
                  f's_or_b32 s{sNULL}, s{sNULL}, s{sT2}', f's_lshl_b32 s{sT2}, s{sJ}, 3', f's_add_u32 s{sT0}, s{sT0}, s{sT2}',
                  f's_lshl_b32 s{sKD+k}, s{sT0}, 12', f's_add_u32 s{sKD+k}, s{sKD+k}, s{sT1}',
                  f's_lshl_b32 s{sT0}, s{sT0}, 7', f's_add_u32 s{sT0}, s{sT0}, s{sT1}', f's_add_u32 s{sKFl[k]}, s{sT0}, {O_FKV}']
        return L

    def kv_fetch(self):
        p = self.p
        t0, t1, Z, NK = 144, 145, 148, 2
        sKD, sKL, sKFl, sNULL = self.sKD, self.sKL, self.sKFl, self.sNULL
        p(f'v_bfe_u32 v{t0}, v{vL}, 1, 1')
        p(f'v_lshlrev_b32 v{t0}, 10, v{t0}')
        p(f'v_and_b32 v{t1}, 1, v{vL}')
        p(f'v_lshl_add_u32 v{t0}, v{t1}, 9, v{t0}')
        p(f'v_lshrrev_b32 v{t1}, 2, v{vL}')
        p(f'v_lshl_add_u32 v{t0}, v{t1}, 4, v{t0}')
        lp, lo = p.newlabel('kvpoll'), p.newlabel('kvpollout')
        self.stamp('w1')
        p('s_waitcnt lgkmcnt(0)')
        p(f's_mov_b32 s{sCNT}, 0')
        p.label(lp)
        for k in range(NK):
            p(f's_load_dwordx2 s[{sPOLL+2*k}:{sPOLL+2*k+1}], s[{S_WSP}:{S_WSP+1}], s{sKFl[k]} glc')
        p(f's_add_u32 s{sCNT}, s{sCNT}, 1')
        p(f's_cmp_gt_u32 s{sCNT}, {POLL_MAX}')
        p(f's_cbranch_scc1 {lo}')
        p('s_waitcnt lgkmcnt(0)')
        for k in range(NK):
            p(f's_cmp_eq_u64 s[{sPOLL+2*k}:{sPOLL+2*k+1}], s[{sF}:{sF+1}]')
            p(f's_cbranch_scc0 {lp}')
        p.label(lo)
        self.stamp('kvf')
        for k in range(NK):
            lnull, lb = p.newlabel('null'), p.newlabel('nullback')
            p(f's_bitcmp1_b32 s{sNULL}, {k}')
            p(f's_cbranch_scc1 {lnull}')
            p(f's_mov_b32 m0, s{sKL+k}')
            p(f's_sub_u32 s{sT5}, s{sKD+k}, 768')
            p(f'buffer_load_dwordx4 v{vL16}, {srd(S_WS)}, s{sKD+k} offen sc1 lds')
            p(f'buffer_load_dwordx4 v{vL16}, {srd(S_WS)}, s{sKD+k} offen offset:1024 sc1 lds')
            p(f'buffer_load_dwordx4 v{t0}, {srd(S_WS)}, s{sKD+k} offen offset:2048 sc1 lds')
            p(f'buffer_load_dwordx4 v{t0}, {srd(S_WS)}, s{sT5} offen offset:3072 sc1 lds')
            p.label(lb)
            self.tail.append((lnull, [
                f'v_add_u32 v{t1}, s{sKL+k}, v{vL16}',
                f'v_mov_b32 v{Z}, 0', f'v_mov_b32 v{Z+1}, 0', f'v_mov_b32 v{Z+2}, 0', f'v_mov_b32 v{Z+3}, 0'] +
                [f'ds_write_b128 v{t1}, {vr(Z)} offset:{o}' for o in (0, 2048, 3072)] +
                ['s_mov_b32 exec_lo, 0', f'v_mov_b32 v{Z+3}, 0xf1490000', 's_mov_b64 exec, -1',
                 f'ds_write_b128 v{t1}, {vr(Z)} offset:1024', f's_branch {lb}']))

    def attn(self):
        p, L0 = self.p, self.L == 0
        KF, ST, MW, MD, OA, QF, PB, VF = 32, 104, 152, 168, 184, 200, 208, 224
        t0, t1 = 104, 105
        t2, t3 = 106, 107
        p(f'v_and_b32 v{t2}, 31, v{vL}')
        p(f'v_lshrrev_b32 v{t3}, 5, v{vL}')
        p(f'v_lshlrev_b32 v{t3}, 2, v{t3}')
        p(f'v_sub_u32 v{t2}, v{t2}, v{t3}')
        p(f'v_mov_b32 v{t3}, {f32bits(-1e30):#x}')
        for r in range(0, 16, 2):
            k0, k1 = 8 * (r // 4) + r % 4, 8 * (r // 4) + r % 4 + 1
            p(f'v_cmp_le_i32 vcc, {k0}, v{t2}')
            p(f'v_cmp_le_i32 s[{sPOLL}:{sPOLL+1}], {k1}, v{t2}')
            p('s_nop 0')
            p(f'v_cndmask_b32_e64 v{MD+r}, v{t3}, 0, vcc')
            p(f'v_cndmask_b32_e64 v{MD+r+1}, v{t3}, 0, s[{sPOLL}:{sPOLL+1}]')
            p(f'v_cndmask_b32_e64 v{MW+r}, 0, v{t3}, vcc')
            p(f'v_cndmask_b32_e64 v{MW+r+1}, 0, v{t3}, s[{sPOLL}:{sPOLL+1}]')
        vKA, vVA = vT, vT + 1
        p(f's_lshl_b32 s{sT0}, s{sW}, 12')
        p(f's_add_u32 s{sT0}, s{sT0}, {LKV}')
        p(f'v_add_u32 v{vKA}, s{sT0}, v{vL16}')
        p(f'v_lshrrev_b32 v{t2}, 5, v{vL}')
        p(f'v_bfe_u32 v{t3}, v{vL}, 2, 2')
        p(f'v_lshl_add_u32 v{t2}, v{t2}, 2, v{t3}')
        p(f'v_lshlrev_b32 v{vVA}, 6, v{t2}')
        p(f'v_bfe_u32 v{t2}, v{vL}, 4, 1')
        p(f'v_lshl_add_u32 v{vVA}, v{t2}, 5, v{vVA}')
        p(f'v_and_b32 v{t2}, 1, v{vL}')
        p(f'v_lshl_add_u32 v{vVA}, v{t2}, 4, v{vVA}')
        p(f'v_bfe_u32 v{t2}, v{vL}, 1, 1')
        p(f'v_lshl_add_u32 v{vVA}, v{t2}, 3, v{vVA}')
        p(f'v_add_u32 v{vVA}, s{sT0}, v{vVA}')
        sOD, sOF, sWO = sO, sO + 1, sO + 2
        p(f's_lshl_b32 s{sT0}, s{sTP}, 4')
        p(f's_add_u32 s{sT0}, s{sT0}, s{sJ}')
        p.ext(self.roff(sOD, sT0, 2048, O_O))
        p.ext(self.off(sOF, sT0, 8, O_FO))
        p(f's_lshl_b32 s{sWO}, s{sCB}, 2')
        p(f's_add_u32 s{sWO}, s{sWO}, s{sW}')
        p(f's_lshl_b32 s{sWO}, s{sWO}, 14')
        p(f's_add_u32 s{sWO}, s{sWO}, {WOT}')
        for g in range(1, 4):
            p(f's_add_u32 s{sWO+g}, s{sWO}, {4096*g}')
        vPT = vT + 12
        p(f'v_lshlrev_b32 v{vPT}, 7, v{vL}')
        p(f'v_add_u32 v{vPT}, s{sOD}, v{vPT}')
        p(f's_lshl_b32 s{sT0}, s{sTP}, 7')
        p(f's_lshl_b32 s{sT1}, s{sRB}, 8')
        p(f's_lshl_b32 s{sT2}, s{sRHO}, 7')
        p(f's_add_u32 s{sT2}, s{sT2}, s{sT1}')
        p(f's_mul_i32 s{sT3}, s{sT2}, 28')
        p(f's_lshl_b32 s{sT4}, s{sCB}, 9')
        p(f's_add_u32 s{sT3}, s{sT3}, s{sT4}')
        p(f's_lshl_b32 s{sT4}, s{sNU}, 8')
        p(f's_add_u32 s{sT3}, s{sT3}, s{sT4}')
        for lane, (r, c) in enumerate([(sT0, O_FO), (sT1, O_FO), (sT1, O_FO + 128), (sT0, O_FX1), (sT2, O_FX1),
                                       (sT3, O_ST1), (sT3, O_ST1 + 128), (sT0, O_FH), (sT1, O_FH), (sT1, O_FH + 128),
                                       (sT0, O_FH + 1024), (sT1, O_FH + 1024), (sT1, O_FH + 1024 + 128)]):
            p(f's_add_u32 s{sT4}, s{r}, {c}')
            p(f's_add_u32 s{sT4}, s{sT4}, s{sLB}')
            p(f'v_writelane_b32 v{vPT}, s{sT4}, {16 + lane}')
        vZ = vT + 8
        p(f's_lshl_b32 s{sT0}, s{sNU}, 10')
        p(f'v_xor_b32 v{vZ}, s{sT0}, v{vL16}')
        p(f'v_xor_b32 v{vZ+1}, 1024, v{vZ}')

        def first():
            l0 = p.newlabel('first')
            p(f's_cmp_lg_u32 s{sW}, 0')
            p(f's_cbranch_scc1 {l0}')
            p.mark('maybe_begin')
            p(f's_lshl_b32 s{sT0}, s{sJ}, 7')
            p(f's_add_u32 s{sT0}, s{sT0}, {F_W1}')
            p(f's_lshl_b32 s{sT2}, s{sCB}, 6')
            p(f's_add_u32 s{sT2}, s{sT2}, {F_WO - 14*8}')
            p(f's_lshl_b32 s{sT3}, s{sTEAM}, 8')
            p(f's_add_u32 s{sT3}, s{sT3}, {WS_PUR - 32*8}')
            p(f'v_add_u32 v{t2}, s{sT0}, v{vL8}')
            p(f'v_min_u32 v{t3}, {21*8}, v{vL8}')
            p(f'v_add_u32 v{t3}, s{sT2}, v{t3}')
            p(f'v_cmp_le_u32 vcc, 14, v{vL}')
            p(f'v_cndmask_b32 v{t2}, v{t2}, v{t3}, vcc')
            p(f'v_add_u32 v{t3}, s{sT3}, v{vL8}')
            p(f'v_cmp_le_u32 vcc, 32, v{vL}')
            p(f'v_cndmask_b32 v{t2}, v{t2}, v{t3}, vcc')
            lp, lo, ls = p.newlabel('pur'), p.newlabel('purout'), p.newlabel('pursleep')
            p(f's_lshl_b32 s{sT0}, s{sCB}, 9')
            p(f's_add_u32 s{sT0}, s{sT0}, {F_W2}')
            p(f's_mov_b32 s{sCNT}, 0')
            p.label(lp)
            p(f'buffer_load_dwordx2 {vr(108,2)}, v{t2}, {srd(S_WS)}, 0 offen sc1')
            p(f'buffer_load_dwordx2 {vr(112,2)}, v{vL8}, {srd(S_WS)}, s{sT0} offen sc1')
            p(f's_add_u32 s{sCNT}, s{sCNT}, 1')
            p(f's_cmp_gt_u32 s{sCNT}, {POLL_MAX}')
            p(f's_cbranch_scc1 {lo}')
            p('s_waitcnt vmcnt(0)')
            p(f'v_xor_b32 v109, s{sF+1}, v109')
            p(f'v_xor_b32 v108, s{sF}, v108')
            p(f'v_and_b32 v110, 0x0fffffff, v109')
            p(f'v_or_b32 v108, v108, v110')
            p(f'v_cmp_ne_u32 vcc, 0, v108')
            p(f's_cbranch_vccnz {ls}')
            p(f'v_cmp_ne_u64 vcc, s[{sF}:{sF+1}], {vr(112,2)}')
            p(f's_cbranch_vccnz {ls}')
            p(f'v_readlane_b32 s{sT1}, v109, 32')
            p(f'v_cmp_ne_u32 vcc, s{sT1}, v109')
            p(f's_cmp_eq_u32 vcc_hi, 0')
            p(f's_cselect_b32 s{sT1}, {0 if os.environ.get("FORCE_IMPURE") else 1}, 0')
            p(f'v_mov_b32 v108, s{sT1}')
            p(f'v_mov_b32 v109, {L_PUR}')
            p('ds_write_b32 v109, v108')
            p.label(lo)
            p.mark('maybe_end')
            p.label(l0)
            self.tail.append((ls, ['s_sleep 8', f's_branch {lp}']))
        if L0:
            first()
        self.pad()
        p('s_waitcnt vmcnt(0) lgkmcnt(0)')
        if L0:
            self.flag_opt(sJFL)
        self.stamp('kvd')
        p('s_barrier')
        self.stamp('A')
        if L0:
            p(f'v_mov_b32 v{t0}, {L_PUR}')
            p(f'ds_read_b32 v{t0}, v{t0}')
            p(f'v_readfirstlane_b32 s{sPURE}, v{t0}')
            p(f's_cmp_eq_u32 s{sPURE}, 0')
            p(f's_cselect_b64 s[{sIMP}:{sIMP+1}], -1, 0')
        p(f'v_lshlrev_b32 v{t0}, 7, v{vL}')
        p(f's_lshl_b32 s{sT0}, s{sCB}, 2')
        p(f's_add_u32 s{sT0}, s{sT0}, s{sRB}')
        p(f's_lshl_b32 s{sT1}, s{sT0}, 14')
        p(f's_lshl_b32 s{sT2}, s{sW}, 12')
        p(f's_add_u32 s{sT1}, s{sT1}, s{sT2}')
        p(f's_add_u32 s{sT1}, s{sT1}, {WOT}')
        p('s_mov_b32 exec_hi, 0')
        p(f'buffer_load_dword a255, v{t0}, {srd(S_WS)}, s{sT1} offen sc1')
        p('s_mov_b64 exec, -1')
        p.ext(self.pub_offsets(O_X1, O_ST1, O_FX1))
        p(f's_sub_u32 s{sT0}, s{sXD}, {29*128}')
        p(f'v_add_u32 v{t1}, s{sT0}, v{t0}')
        p(f'v_cmp_lt_u32 vcc, 28, v{vL}')
        p(f'v_cndmask_b32 v{vPT}, v{vPT}, v{t1}, vcc')
        p.ext(self.setexec(45))
        p(f'buffer_load_dword a255, v{vPT}, {srd(S_WS)}, 0 offen sc1')
        p('s_mov_b64 exec, -1')
        bg = self.w1_dma(0)
        bw = []
        if L0:
            p(f's_lshl_b32 s{sT0}, s{sTP}, 4')
            p(f's_add_u32 s{sT0}, s{sT0}, s{sJ}')
            p.ext(self.off(sT1, sT0, 7168, O_H))
            p.ext(self.touch(t0, sT1, 0, 56))
            p.ext(self.w2_setup(sO + 7, (vT + 10, vT + 11)))
            bw = self.w2_loads(sO + 7, (vT + 10, vT + 11))

        def kread(t):
            return [f'ds_read_b128 {vr(KF+8*t+4*k)}, v{vKA} offset:{t*4096+k*1024}' for k in range(2)]

        def qk(t):
            s = ST + 16 * (t % 3)
            c = vr(MW, 16) if t == 0 else vr(MD, 16) if t == 8 else '0'
            return [f'{MF32} {vr(s,16)}, {vr(KF+8*t)}, {vr(QF)}, {c}',
                    f'{MF32} {vr(s,16)}, {vr(KF+8*t+4)}, {vr(QF+4)}, {vr(s,16)}']
        vM, vM2 = vT + 2, vT + 3

        def mx(t):
            s = ST + 16 * (t % 3)
            L = []
            for i in range(8):
                d = vM if i % 2 == 0 else vM2
                if t == 0 and i < 2:
                    L.append(f'v_max_f32 v{d}, v{s+2*i}, v{s+2*i+1}')
                else:
                    L.append(f'v_max3_f32 v{d}, v{s+2*i}, v{s+2*i+1}, v{d}')
            return L

        def vread(t):
            d = VF + 8 * (t % 2)
            return [f'ds_read_b64_tr_b16 {vr(d+4*kv+2*jj,2)}, v{vVA} offset:{t*4096+2048+(16*kv+8*jj)*64}'
                    for kv in range(2) for jj in range(2)]
        def popbg(bg=bg):
            L = []
            while bg:
                x = bg.pop(0)
                L.append(x)
                if is_mem(x):
                    break
            return L
        for t in range(4):
            p.ext(kread(t))
        q = qk(0)
        p.ext([q[0]] + kread(4) + [q[1]] + kread(5))
        q = qk(1)
        p.ext([q[0]] + kread(6) + popbg(bw) + [q[1]] + kread(7) + popbg(bw))
        for t in range(9):
            m = mx(t)
            if t + 2 < 9:
                q = qk(t + 2)
                extra = kread(8) if t == 0 else vread(0)[:2] if t == 5 else vread(0)[2:] if t == 6 else []
                if t % 2 == 1:
                    extra = extra + popbg()
                p.ext([q[0]] + extra + popbg(bw) + m[:4] + [q[1]] + popbg(bw) + m[4:])
            else:
                p.ext(m)
        self.stamp('a1')
        a, b2, r1 = vT + 4, vT + 5, vT + 6
        p(f'v_max_f32 v{vM}, v{vM}, v{vM2}')
        p(f'v_mov_b32 v{a}, v{vM}')
        p(f'v_permlane32_swap_b32 v{vM}, v{a}')
        p(f'v_max_f32 v{vM}, v{vM}, v{a}')
        p(f'v_xor_b32 v{vM}, 0x80000000, v{vM}')
        p(f'v_and_b32 v{a}, 0xffff0000, v{vM}')
        p(f'v_sub_f32 v{r1}, v{vM}, v{a}')
        p(f'v_and_b32 v{a}, 0xffff0000, v{r1}')
        p(f'v_sub_f32 v{b2}, v{r1}, v{a}')
        p('s_mov_b32 exec_lo, 0')
        p(f'v_perm_b32 v{QF+6}, v{r1}, v{vM}, s{sPERM}')
        p(f'v_perm_b32 v{QF+7}, 1.0, v{b2}, s{sPERM}')
        p('s_mov_b64 exec, -1')

        def ex(t):
            s = ST + 16 * (t % 3)
            pb = PB + 8 * (t % 2)
            L = []
            for i in range(8):
                L.append(f'v_exp_f32 v{s+2*i}, v{s+2*i}')
                L.append(f'v_exp_f32 v{s+2*i+1}, v{s+2*i+1}')
                if i:
                    L.append(f'v_cvt_pk_bf16_f32 v{pb+i-1}, v{s+2*i-2}, v{s+2*i-1}')
            L.append(f'v_cvt_pk_bf16_f32 v{pb+7}, v{s+14}, v{s+15}')
            return L

        def pv(t):
            d = VF + 8 * (t % 2)
            pb = PB + 8 * (t % 2)
            return [f'{MF32} {vr(OA,16)}, {vr(d)}, {vr(pb)}, {vr(OA,16) if t else 0}',
                    f'{MF32} {vr(OA,16)}, {vr(d+4)}, {vr(pb+4)}, {vr(OA,16)}']

        self.pad()

        def wol(i):
            ks, z = i // 2, i % 2
            return f'buffer_load_dwordx4 {vr(32+4*i)}, v{vZ+z}, {srd(S_WS)}, s{sWO + ks//2} offen offset:{(ks%2)*2048} sc1'
        p.ext(qk(0))
        p.ext(qk(1))
        for t in range(9):
            e = ex(t)
            mf = (pv(t - 1) if t else []) + (qk(t + 2) if t + 2 < 9 else [])
            out = []
            pos = [2, 7, 12, 17]
            for i, x in enumerate(e):
                out.append(x)
                if i in pos and pos.index(i) < len(mf):
                    k = pos.index(i)
                    out.append(mf[k])
                    if t + 1 < 9:
                        if t == 0:
                            out += vread(1)[2 * k:2 * k + 2]
                        elif k in (1, 2):
                            out += vread(t + 1)[2 * (k - 1):2 * (k - 1) + 2]
                        elif t == 7 and k == 1:
                            pass
                    if t < 6 and k in (0, 3) or t == 0:
                        out += popbg()
                    if t < 7:
                        out += popbg(bw) + (popbg(bw) if k % 2 or t == 0 else [])
                    if t >= 7:
                        out += [wol(8 * (t - 7) + 4 * k + q) for q in range(4)]
            if t == 7:
                out = out[:-3] + vread(8)[2:] + out[-3:]
            p.ext(out)
        assert not bg and not bw, (len(bg), len(bw))
        p.ext(pv(8))
        self.stamp('a2')
        p(f'v_mov_b32 v{a}, v{OA+12}')
        p(f'v_mov_b32 v{b2}, v{OA+12}')
        p(f'v_permlane32_swap_b32 v{a}, v{b2}')
        p(f'v_rcp_f32 v{b2}, v{b2}')
        for i in range(8):
            p(f'v_pk_mul_f32 {vr(OA+2*i,2)}, {vr(OA+2*i,2)}, {vr(a,2)} op_sel:[0,1] op_sel_hi:[1,1]')
            p(f'v_cvt_pk_bf16_f32 v{PB+i}, v{OA+2*i}, v{OA+2*i+1}')
            if i % 4 == 3:
                p(f'buffer_store_dwordx4 {vr(PB+i-3)}, v{vL16}, {srd(S_WS)}, s{sOD} offen offset:{(i//4)*1024}', tok='ost')
        self.publish(['ost'], sOF)
        self.stamp('att')

    def reduce_writes(self, ACC):
        return [Ins(f'ds_write_b128 v{vRW+x-1}, {vr(ACC+16*x+4*c)} offset:{c*1024}', 'rw') for x in range(1, 4) for c in range(4)]

    def reduce_finish(self, ACC, TMP):
        p = self.p
        p.wait('rw')
        self.pad()
        p('s_barrier')
        for c in range(4):
            for x in range(3):
                p(f'ds_read_b128 {vr(TMP+16*x+4*c)}, v{vRW+3} offset:{x*4096+c*1024}')
        for c in range(8):
            p(f'v_pk_add_f32 {vr(TMP+2*c,2)}, {vr(TMP+2*c,2)}, {vr(TMP+16+2*c,2)}')
            p(f'v_pk_add_f32 {vr(ACC+2*c,2)}, {vr(ACC+2*c,2)}, {vr(TMP+32+2*c,2)}')
            p(f'v_pk_add_f32 {vr(ACC+2*c,2)}, {vr(ACC+2*c,2)}, {vr(TMP+2*c,2)}')

    def yoffs(self, dst, mul, add):
        L = []
        for y in range(2):
            L += [f's_xor_b32 s{sT0}, s{sRHO}, {y}', f's_lshl_b32 s{sT1}, s{sRB}, 1', f's_add_u32 s{sT0}, s{sT0}, s{sT1}',
                  f's_lshl_b32 s{sT0}, s{sT0}, 2', f's_add_u32 s{sT0}, s{sT0}, s{sW}'] + self.roff(dst + y, sT0, mul, add)
        return L

    def p3(self):
        p, L0 = self.p, self.L == 0
        WO, OF, ACC, RING = 32, 96, 160, 200

        def colsum(part, AC=ACC, RG=RING, T=vT):
            for i in range(4):
                p(f'v_mov_b32 v{T+4+i}, s{sONES}')
            p(f's_lshl_b32 s{sT0}, s{sW}, 10')
            if part == 0:
                p(f'v_add_u32 v{T}, s{sT0}, v{vL16}')
            else:
                p(f's_min_u32 s{sT0}, s{sT0}, 2048')
                p(f'v_add_u32 v{T}, s{sT0}, v{vA1}')
            NRG = 6 if part == 0 else 4
            rd = lambda f: f'ds_read_b128 {vr(RG+4*(f%NRG))}, v{T} offset:{f*(4096, 3072)[part]}'
            for f in range(NRG - 1):
                p(rd(f))
            for f in range(14):
                p(f'{MF16} {vr(AC)}, {vr(T+4)}, {vr(RG+4*(f%NRG))}, {vr(AC) if f else 0}')
                if f + NRG - 1 < 14:
                    p(rd(f + NRG - 1))
            p(f's_lshl_b32 s{sT0}, s{sW}, 6')
            p(f's_add_u32 s{sT0}, s{sT0}, {L_CS1 + 256*part}')
            p(f'v_and_b32 v{T}, 15, v{vL}')
            p(f'v_lshlrev_b32 v{T}, 2, v{T}')
            p(f'v_add_u32 v{T}, s{sT0}, v{T}')
            p(f'ds_write_b32 v{T}, v{AC}')
            p('s_waitcnt lgkmcnt(0)')
        w1d = []
        self.pad()
        p('s_barrier')
        if L0:
            colsum(0)
        ljoin, lidle = p.newlabel('p3join'), p.newlabel('p3idle')
        p(f's_cmp_ge_u32 s{sM}, 28')
        p(f's_cbranch_scc1 {lidle}')
        p.mark('maybe_begin')
        sFO, sY = sO, sO + 2
        p(f's_lshl_b32 s{sT0}, s{sRB}, 3')
        p(f's_add_u32 s{sT0}, s{sT0}, s{sW}')
        p.ext(self.off(sFO, sT0, 32, O_FO))
        p.ext(self.yoffs(sY, 8192, O_O))
        p(f's_add_u32 s{sY+2}, s{sY}, 4096')
        p(f's_add_u32 s{sY+3}, s{sY+1}, 4096')
        self.vpoll(vFLG, f's{sFO}', 8)
        self.stamp('B')

        def ld(ks, y):
            return f'buffer_load_dwordx4 {vr(OF+(ks*2+y)*4)}, v{vL16}, {srd(S_WS)}, s{sY + 2*(ks//4) + y} offen offset:{(ks%4)*1024} sc1'

        def mf(ks, x):
            y, z = x >> 1, x & 1
            c = vr(ACC + 16 * x, 16) if ks else (vr(vRES, 16) if x == 0 else '0')
            return f'{MF32} {vr(ACC+16*x,16)}, {vr(WO+(ks*2+z)*4)}, {vr(OF+(ks*2+y)*4)}, {c}'
        for ks in range(5):
            for y in range(2):
                p(ld(ks, y))
        rest = list(w1d)
        for ks in range(8):
            for x in (1, 2, 3):
                p(mf(ks, x))
                if ks + 5 < 8 and x < 3:
                    p(ld(ks + 5, x - 1))
                elif ks >= 3 and rest:
                    y = rest.pop(0)
                    p.ext([y])
                    while rest and not is_mem(y):
                        y = rest.pop(0)
                        p.ext([y])
        assert not rest
        self.stamp('p3mm')
        p.ext(sched([mf(ks, 0) for ks in range(8)], {}, {}, self.reduce_writes(ACC), 2, start=2))
        self.stamp('p3rw')
        self.reduce_finish(ACC, 32)
        self.stamp('p3rd')
        P = 96
        for i in range(8):
            p(f'v_cvt_pk_bf16_f32 v{P+i}, v{ACC+2*i}, v{ACC+2*i+1}')
        self.x_store(P, vX1A, (0, 512))
        self.publish(['xst'], sXF)
        self.stamp('p3pub')
        p.ext(self.res_unpack(P))
        p.mark('maybe_end')
        p.label(ljoin)
        idle = [f'v_lshlrev_b32 v{vT}, 7, v{vL}', f's_lshl_b32 s{sT0}, s{sCB}, 2', f's_add_u32 s{sT0}, s{sT0}, s{sW}']
        if L0:
            idle += [f's_lshl_b32 s{sT1}, s{sT0}, 7', f's_add_u32 s{sT1}, s{sT1}, {F_W1}'] + self.poll_loop(vL8, f's{sT1}', 14)
        idle += [f's_mul_i32 s{sT1}, s{sT0}, 100352'] + self.prefetch(vT, sT1, W1T + 57344, 43008)
        self.tail.append((lidle, idle + [f's_branch {ljoin}']))
        self.colsum = colsum
        self.stamp('p3')

    def p45(self):
        p, L0 = self.p, self.L == 0
        X, ACC, RING, CS = 32, 144, 200, 224
        sXO, sST, sFX, sH, sHF = sO, sO + 4, sO + 5, sO + 6, sO + 8
        sFH, sST5, sW2 = sO + 9, sO + 10, sO + 11
        sY = [76, 77, 78, 79, sO + 12, sO + 13, sO + 14, sO + 15]
        vTC, vHA, vHB, vZ, vLb, PO = vT, vT + 1, vT + 2, (vT + 3, vT + 13), vT + 12, vT + 4
        p.ext(self.w1_dma(1))
        p.ext(self.xoff(sXO, sTP, 28672, O_X1))
        for g in range(1, 4):
            p(f's_add_u32 s{sXO+g}, s{sXO}, {8192*g}')
        p.ext(self.off(sST, sTP, 3584, O_ST1))
        p.ext(self.off(sFX, sTP, 128, O_FX1))
        p(f's_lshl_b32 s{sT0}, s{sTP}, 4')
        p(f's_add_u32 s{sT0}, s{sT0}, s{sJ}')
        p.ext(self.roff(sH, sT0, 7168, O_H))
        p(f's_add_u32 s{sH+1}, s{sH}, 4096')
        p.ext(self.off(sHF, sT0, 8, O_FH))
        p.ext([f'v_lshrrev_b32 v{vCSA}, 4, v{vL}', f'v_lshlrev_b32 v{vCSA}, 4, v{vCSA}', f'v_add_u32 v{vCSA}, {L_CS1}, v{vCSA}',
               f'v_lshrrev_b32 v{vHA}, 5, v{vL}', f'v_lshlrev_b32 v{vHA}, 10, v{vHA}',
               f'v_bfe_u32 v{vHB}, v{vL}, 4, 1', f'v_lshl_add_u32 v{vHA}, v{vHB}, 9, v{vHA}',
               f'v_and_b32 v{vTC}, 15, v{vL}', f'v_lshl_add_u32 v{vHA}, v{vTC}, 4, v{vHA}',
               f'v_lshlrev_b32 v{vHB}, 3, v{vHB}', f'v_lshl_add_u32 v{vHB}, v{vTC}, 4, v{vHB}',
               f'v_lshrrev_b32 v{vTC}, 5, v{vL}', f'v_lshl_add_u32 v{vHB}, v{vTC}, 9, v{vHB}',
               f'v_add_u32 v{vLb}, 4096, v{vL16}'])
        sRBc = sPOLL
        p(f's_min_u32 s{sRBc}, s{sRB}, 3')
        p(f's_lshl_b32 s{sT0}, s{sRBc}, 3')
        p(f's_add_u32 s{sT0}, s{sT0}, s{sW}')
        p.ext(self.off(sFH, sT0, 32, O_FH))
        for y in range(2):
            p.ext([f's_xor_b32 s{sT0}, s{sRHO}, {y}', f's_lshl_b32 s{sT1}, s{sRBc}, 1', f's_add_u32 s{sT0}, s{sT0}, s{sT1}',
                   f's_lshl_b32 s{sT0}, s{sT0}, 2', f's_add_u32 s{sT0}, s{sT0}, s{sW}'] + self.roff(sT2, sT0, 28672, O_H))
            for sl in range(4):
                p.ext([f's_add_u32 s{sT0}, s{sRB}, {sl}', f's_and_b32 s{sT0}, s{sT0}, 3', f's_mul_i32 s{sT0}, s{sT0}, 7168',
                       f's_add_u32 s{sY[2*sl+y]}, s{sT2}, s{sT0}'])
        p(f's_lshl_b32 s{sT0}, s{sRBc}, 1')
        p(f's_add_u32 s{sT0}, s{sT0}, s{sRHO}')
        p.ext(self.off(sST5, sT0, 3584, O_ST1))
        if L0:
            p.ext(self.pub_offsets(O_XA + LSTRIDE, O_STA + LSTRIDE, O_FXA + LSTRIDE))
            p.ext([f's_lshl_b32 s{sT1}, s{sJ}, 7', f's_add_u32 s{sT1}, s{sT1}, {F_WQ - 14*8}',
                   f'v_mov_b32 v{PO}, s{sFX}', f'v_mov_b32 v{PO+1}, s{sT1}', f'v_cmp_le_u32 vcc, 14, v{vL}',
                   f'v_cndmask_b32 v{PO}, v{PO}, v{PO+1}, vcc', f'v_add_u32 v{PO}, v{PO}, v{vL8}'])
        p(f'v_lshlrev_b32 v{vTC}, 7, v{vL}')
        seq = [(t, s) for s in range(14) for t in range(4)] + [(t, s) for s in range(14) for t in range(4, 7)]

        def frag(f):
            base, off = (vL16, f * 1024) if f < 56 else (vA1, (f - 56) * 1024)
            return f'ds_read_b128 {vr(RING + 4*(f % 6))}, v{base} offset:{off}'

        def mf(f, u):
            t, s = seq[f]
            return f'{MF16} {vr(ACC+8*t+4*u)}, {vr(RING+4*(f%6))}, {vr(X+4*(2*s+u))}, {vr(ACC+8*t+4*u) if s else 0}'

        def xl(i):
            return f'buffer_load_dwordx4 {vr(X+4*i)}, v{(vL16, vLb)[(i//4)%2]}, {srd(S_WS)}, s{sXO + i//8} offen offset:{(i%4)*1024} sc1'

        def cs_reads(tiles):
            return [f'ds_read_b128 {vr(CS+4*(t%4))}, v{vCSA} offset:{t*64}' for t in tiles]
        PD = 4
        for f in range(PD):
            p(frag(f))
        self.pad()
        if L0:
            self.vpoll(PO, '0', 28)
        else:
            self.vpoll(vL8, f's{sFX}', 14)
        self.stamp('C')
        XP = 8
        for i in range(XP):
            p(xl(i))
        mem, pre = {}, {}
        for f in range(98):
            mem[2 * f] = [frag(f + PD)] if f + PD < 98 and not (f < 56 <= f + PD) else []
            mem[2 * f + 1] = []
            if f < 56 and f % 2 == 0 and f // 2 + XP < 28:
                mem[2 * f + 1] = [xl(f // 2 + XP)]
            if 27 <= f < 41 and f % 2 == 1:
                mem[2 * f + 1] = [self.stats_loads(sST, CS)[(f - 27) // 2]]
            if f % 2 == 0:
                tch = vr(RING + 4 * (f % 6)) + ' ' + vr(RING + 4 * ((f + 1) % 6))
                if f < 56 and f % 4 == 0:
                    tch += ' ' + vr(X + 8 * (f // 4), 8)
                pre[2 * f] = [Touch(tch)]
        i = 2 * 41 + 1
        if not L0:
            mem[i] += self.touch(vTC, sH, 0, 56)
        if L0:
            xa = [f'v_add_u32 v{PO}, s{sXD}, v{vTC}', f's_add_u32 s{sT0}, s{sFX}, {LSTRIDE + O_FXA - O_FX1}', f's_add_u32 s{sT1}, s{sXS}, 128']
            for lane, r in ((16, sXS), (17, sT1), (18, sXF), (19, sT0)):
                xa.append(f'v_writelane_b32 v{PO}, s{r}, {lane}')
            mem[i + 2] += xa
            mem[i + 4].append(self.setexec(20) + [f'buffer_load_dword a255, v{PO}, {srd(S_WS)}, 0 offen sc1', 's_mov_b64 exec, -1'])
        for f in (0, 16, 38):
            mem[2 * f + 1] += self.stamp_items(f'g{f}')
        mfs = [mf(f, u) for f in range(98) for u in range(2)]
        side = self.stats_reduce(CS) + [f'v_mov_b32 v{vRSTD}, v{vMEAN}', 's_nop 0', f'v_permlane16_swap_b32 v{vMEAN}, v{vRSTD}']
        p.ext(sched(mfs[:112], pre, mem, side, 2, start=88))
        self.stamp('p4m1')
        self.pad()
        p('s_barrier')
        p.ext(cs_reads([0, 1, 2, 3]))
        self.stamp('p4g1')

        def epi(tiles, tok):
            L = []
            pairs = [tiles[i:i + 2] for i in range(0, len(tiles), 2)]
            n = 0
            for pr in pairs:
                for u in range(2):
                    po = PO + 4 * (n % 2)
                    n += 1
                    for k, t in enumerate(pr):
                        a = ACC + 8 * t + 4 * u
                        for r in (0, 2):
                            L.append(f'v_pk_fma_f32 {vr(a+r,2)}, {vr(CS+4*(t%4)+r,2)}, {vr(vMEAN,2)}, {vr(a+r,2)} op_sel:[0,{u},0] op_sel_hi:[1,{u},1]')
                    for k, t in enumerate(pr):
                        a = ACC + 8 * t + 4 * u
                        for r in range(2):
                            L.append(f'v_cvt_pk_bf16_f32 v{po+2*k+r}, v{a+2*r}, v{a+2*r+1}')
                    for k, t in enumerate(pr):
                        for r in range(2):
                            L.append(f'v_pk_max_i16 v{po+2*k+r}, v{po+2*k+r}, 0')
                    t = pr[0]
                    so, off = (sH, t * 1024) if t < 4 else (sH + 1, (t - 4) * 1024)
                    if len(pr) == 2:
                        L.append(Ins(f'buffer_store_dwordx4 {vr(po)}, v{vHA}, {srd(S_WS)}, s{so} offen offset:{off+u*256}', tok))
                    else:
                        L.append(Ins(f'buffer_store_dwordx2 {vr(po,2)}, v{vHB}, {srd(S_WS)}, s{so} offen offset:{off+u*256}', tok))
            return L
        for f in range(56, 56 + PD):
            p(frag(f))
        p.ext(epi([0, 1, 2, 3], 'h1'))
        if L0:
            self.colsum(1, AC=144, RG=160, T=vT + 4)
            p('s_barrier')
            for f in range(56, 56 + PD):
                pass
        self.stamp('p4e1')
        HR, AC5, NR, PD5, TAIL = 32, 160, 16, 5, 14
        order = ORDER

        def ld(i, y):
            sl, sg = order[i] // 7, order[i] % 7
            return (f'buffer_load_dwordx4 {vr(HR+((i%NR)*2+y)*4)}, v{(vL16, vLb)[sg//4]}, {srd(S_WS)}, s{sY[2*sl+y]} '
                    f'offen offset:{(sg%4)*1024} sc1')

        def m5(i, x):
            y, z = x >> 1, x & 1
            return f'{MF32} {vr(AC5+16*x,16)}, {ar(order[i]*8+z*4)}, {vr(HR+((i%NR)*2+y)*4)}, {vr(AC5+16*x,16) if i else 0}'
        pre2 = {i - 112: v for i, v in pre.items() if i >= 112}
        mem2 = {i - 112: v for i, v in mem.items() if i >= 112}
        NW2A = 14 if L0 else 0
        mem2[19] = self.publish_items(['h1'], sHF) + mem2[19]
        mem2[57] += self.peek_issue(vFLG, f's{sFH}', 8)
        mem2[59] += cs_reads([4, 5])
        mem2[61] += cs_reads([6])
        mem2[63] += self.peek_check(vFLG, f's{sFH}', 8)
        for k in range(2 * PD5):
            mem2[65 + 2 * k].append(ld(k // 2, k % 2))
        p.ext(sched(mfs[112:], pre2, mem2, [], 2, start=0))
        self.stamp('p4g2')
        p.ext(epi([4, 5, 6], 'h2'))
        self.stamp('p4')
        lskip, ljoin = p.newlabel('p5skip'), p.newlabel('p5join')
        self.pad()
        p(f's_cmp_ge_u32 s{sM}, 28')
        p(f's_cbranch_scc1 {lskip}')
        idle = ['s_waitcnt vmcnt(0)'] + self.publish_items([], sHF, 1024)
        if L0:
            idle += [f's_lshl_b32 s{sT0}, s{sCB}, 2', f's_add_u32 s{sT0}, s{sT0}, s{sW}', f's_lshl_b32 s{sT1}, s{sT0}, 7',
                     f's_add_u32 s{sT1}, s{sT1}, {F_WQ}'] + self.poll_loop(vL8, f's{sT1}', 14)
            idle += [f's_mul_i32 s{sT1}, s{sT0}, 86016'] + self.prefetch(vTC, sT1, WQT, 57344)
            idle += ['s_waitcnt vmcnt(0)', 's_barrier'] + self.wq_dma((0, 1)) + [f's_branch {ljoin}']
        else:
            idle += [f's_cmp_lg_u32 s{sM}, 28', 's_cbranch_scc1 L_fin', f's_cmp_lg_u32 s{sW}, 0', 's_cbranch_scc1 L_fin',
                     f's_sleep {os.environ.get("WBSLEEP", 20)}'] + ([] if os.environ.get('NOWB') else ['buffer_wbl2 sc1']) + ['s_waitcnt vmcnt(0)', 's_branch L_fin']
        self.tail.append((lskip, idle))
        mfs, mem = [], {}
        w2b = []
        stl = self.stats_loads(sST5, CS)
        for i in range(28):
            xs = (0, 1, 2, 3) if i < 28 - TAIL else (1, 2, 3)
            for n, x in enumerate(xs):
                k = len(mfs)
                mfs.append(m5(i, x))
                mem[k] = []
                if i == 3 and n == 3:
                    mem[k] += self.publish_items(['h2'], sHF, 1024)
                if i == 8 and n == 3:
                    mem[k] += self.peek_issue(vFLG, f's{sFH}', 8, 1024)
                if i == 11 and n == 0:
                    mem[k] += self.stamp_items('pk0') + self.peek_check(vFLG, f's{sFH}', 8, 1024) + self.stamp_items('pk1')
                if i + PD5 < 28 and n < 2:
                    mem[k].append(ld(i + PD5, n))
                elif w2b and n >= 2:
                    mem[k].append(w2b.pop(0))
                elif i + PD5 >= 28 and stl:
                    mem[k].append(stl.pop(0))
        assert not w2b and not stl
        p.ext(sched(mfs, {}, mem, [], 6))
        self.stamp('p5mm')
        mem = {}
        for i, x in enumerate(self.reduce_writes(AC5)):
            mem.setdefault(2 + i, []).append(x)
        p.ext(sched([m5(i, 0) for i in range(28 - TAIL, 28)], {}, mem, self.stats_reduce(CS), 5, start=0))
        self.stamp('p5rw')
        self.reduce_finish(AC5, 32)
        self.stamp('p5rd')
        P = 96
        for i in range(8):
            p(f'v_pk_fma_f32 {vr(AC5+2*i,2)}, {vr(AC5+2*i,2)}, {vr(vMEAN,2)}, {vr(vRES+2*i,2)} op_sel:[0,1,0] op_sel_hi:[1,1,1]')
            p(f'v_cvt_pk_bf16_f32 v{P+i}, v{AC5+2*i}, v{AC5+2*i+1}')
        if L0:
            self.x_store(P, vL16, (0, 1024))
            wq = self.wq_dma((0, 1))
            p.ext(wq[:9])
            self.publish(['xst'], sXF)
            p.ext(wq[9:])
            self.stamp('p5pub')
            p.ext(self.res_unpack(P))
            p.label(ljoin)
            p(f's_add_u32 s{sLB}, s{sLB}, {LSTRIDE}')
            p('s_waitcnt vmcnt(0) lgkmcnt(0)')
            p('s_barrier')
            return
        p(f'v_and_b32 v{vT+4}, 31, v{vL}')
        p(f'v_mul_u32_u24 v{vT+4}, 896, v{vT+4}')
        p(f'v_lshrrev_b32 v{vT+5}, 5, v{vL}')
        p(f'v_lshl_add_u32 v{vT+4}, v{vT+5}, 4, v{vT+4}')
        for hf in range(2):
            p(f'v_permlane32_swap_b32 v{P+4*hf}, v{P+4*hf+2}')
            p(f'v_permlane32_swap_b32 v{P+4*hf+1}, v{P+4*hf+3}')
            p(f'buffer_store_dwordx4 {vr(P+4*hf)}, v{vT+4}, {srd(S_OUT)}, s{sQOFF} offen offset:{32*hf}')
        p('s_cmp_lg_u32 s2, %d' % (27 * 8 + 7))
        p('s_cbranch_scc1 L_fin')
        p(f's_mov_b32 s{sT0}, {WS_EPOCH}')
        p.ext(self.flag_sc1(sT0))

    def build(self):
        p = self.p
        self.L = 0
        self.prologue()
        for self.L in range(2):
            for ph in ('p1', 'attn', 'p3', 'p45'):
                getattr(self, ph)()
        p.label('L_fin')
        self.stamp('end')
        self.stamp_dump()
        if os.environ.get('CALIB'):
            p.label('L_calib')
            p('s_memrealtime s[96:97]')
            p('s_waitcnt lgkmcnt(0)')
            p('s_sub_u32 s96, s96, s100')
            p(f's_cmp_lt_u32 s96, {int(os.environ["CALIB"])}')
            p('s_cbranch_scc1 L_calib')
        p.label('L_end')
        p('s_endpgm')
        for lab, code in self.tail:
            p.label(lab, reset='all')
            p.ext(code)
        p.label('L_codeend')
        self.emit_walker()
        p.insert_waits()
        probs = p.fix_hazards()
        for x in probs:
            print('branch hazard padded', x, file=sys.stderr)
        mx = p.maxregs()
        head = open(os.path.join(os.path.dirname(__file__), '..', 'cdna_kernels', NAME + '.s.ref')).read().split('\n')
        hdr = [l for l in head if l.startswith(';') and '@launch' not in l]
        out = '\n'.join(hdr) + f'\n; @launch grid=(256,1,1) block=(256,1,1) lds={LDS_BYTES}\n'
        out += '.amdgcn_target "amdgcn-amd-amdhsa--gfx950"\n.text\n'
        out += f'.globl {NAME}_kernel\n.p2align 8\n.type {NAME}_kernel,@function\n{NAME}_kernel:\n'
        out += p.text()
        out += '.fill 64, 4, 0xbf800000\n'
        out += f'''.section .rodata,"a"
.p2align 6
.amdhsa_kernel {NAME}_kernel
  .amdhsa_next_free_vgpr 512
  .amdhsa_next_free_sgpr 102
  .amdhsa_accum_offset 256
  .amdhsa_group_segment_fixed_size 0
  .amdhsa_kernarg_size 72
  .amdhsa_user_sgpr_count 2
  .amdhsa_user_sgpr_kernarg_segment_ptr 1
  .amdhsa_system_sgpr_workgroup_id_x 1
  .amdhsa_float_denorm_mode_32 3
.end_amdhsa_kernel
'''
        print('regs', mx, 'instrs', sum(1 for x in p.items if isinstance(x, Ins)), file=sys.stderr)
        return out


if __name__ == '__main__':
    stop = int(sys.argv[2]) if len(sys.argv) > 2 else None
    k = K(stop if stop and stop > 0 else None, dbg=sys.argv[3].split(',') if len(sys.argv) > 3 else None)
    open(sys.argv[1], 'w').write(k.build())
    if k.dbg:
        open(os.path.join(os.path.dirname(sys.argv[1]), 'stamps.txt'), 'w').write(' '.join(k.stamps))
```

```python
import sys, os, math, struct
sys.path.insert(0, os.path.dirname(__file__))
from asmlib import Prog, Ins, Wait, Mark, Label, Touch

NAME = 'interleave_layers__sliding_block__dense_activation_relu__prompt'

WS_EPOCH = 0
WS_PUR = 0x1000
F_WQ = 0x2000
F_W1 = 0x2800
F_W2 = 0x3000
F_WO = 0x4000
WQT = 0x100000
W1T = 0x250000
WOT = 0x3D8000
W2T = 0x448000
TEAM0 = 0x600000
LSTRIDE = 0x230000
STRIDE = 2 * LSTRIDE
O_KV = 0x000000
O_O = 0x080000
O_X1 = 0x0C0000
O_XA = 0x0F8000
O_ST1 = 0x130000
O_STA = 0x138000
O_FKV = 0x140000
O_FO = 0x144000
O_FX1 = 0x144400
O_FXA = 0x144800
O_FH = 0x145000
O_H = 0x150000
WS_BYTES = TEAM0 + 8 * STRIDE

LKV = 100352
L_CSQ = 149504
L_CS1 = L_CSQ + 512
L_STAMP = 160 * 1024 - 512
L_PUR = L_CS1 + 512 + 1536
L_CSP = L_CS1 + 512
LDS_BYTES = 163840

S_X, S_WQ, S_WO, S_W1, S_W2, S_OUT, S_WS = 8, 12, 16, 20, 24, 28, 32
S_WSP = 36
sTEAM, sM, sA, sJ, sW, sRB, sCB, sLB = 40, 41, 42, 43, 44, 45, 46, 47
sF, sPURE, sLAYER, sTP = 48, 50, 51, 52
sQOFF = 53
sIMP = 54
sPERM, sONES = 56, 57
sRHO, sNU = 58, 59
sT0, sT1, sT2, sT3, sT4, sT5 = 60, 61, 62, 63, 64, 65
sCNT = 66
sTB = 71
sJFL = 67
sXD, sXS, sXF = 68, 69, 70
sPOLL = 72
sRQ, sLQ = 76, 77
sO = 80

vL, vL16, vA1, vL8 = 0, 1, 2, 3
vSTA = 4
vFLG = 5
vRW = 6
vX1A = 10
vCSA = 11
vF = 12
vMEAN, vRSTD = 14, 15
vT = 16
vRES = 240

POLL_MAX = 1 << 16
ROT = f's{sRB}' if os.environ.get('ROT') else '0'
ROT1 = f's{sA}' if os.environ.get('ROT1') else '0'
HATT = bool(os.environ.get('HATT'))
ORDER = [7 * sl + sg for sl in range(4) for sg in range(4)] + [7 * sl + sg for sl in range(4) for sg in range(4, 7)]
MF32 = 'v_mfma_f32_32x32x16_bf16'
MF16 = 'v_mfma_f32_16x16x32_bf16'


def srd(b):
    return f's[{b}:{b+3}]'


def vr(b, n=4):
    return f'v[{b}:{b+n-1}]' if n > 1 else f'v{b}'


def ar(b, n=4):
    return f'a[{b}:{b+n-1}]'


def f32bits(x):
    return struct.unpack('<I', struct.pack('<f', x))[0]


def is_mem(x):
    if isinstance(x, (list, tuple)):
        return any(is_mem(y) for y in x)
    if isinstance(x, (Wait, Touch, Label, Mark)):
        return False
    t = x.text if isinstance(x, Ins) else x if isinstance(x, str) else ''
    return t.startswith('ds_') or t.startswith('buffer_') or t.startswith('global_')


def cost(x):
    if isinstance(x, (list, tuple)):
        return sum(cost(y) for y in x)
    if isinstance(x, (Wait, Touch)):
        return 1
    if isinstance(x, (Label, Mark)):
        return 0
    t = x.text if isinstance(x, Ins) else x
    return 2 if t.startswith('v_exp') or t.startswith('v_rsq') or t.startswith('v_rcp') or t.startswith('v_permlane') else 1


def sched(mfs, pre, mem, side, cap, start=0):
    out = []
    side = list(side)
    for i, m in enumerate(mfs):
        out += pre.get(i, [])
        out.append(m)
        n = 0
        for x in mem.get(i, []):
            out.append(x)
            n += cost(x)
        if pre.get(i + 1):
            n += 1
        valu = False
        if i >= start:
            while side and n + cost(side[0]) <= cap:
                if is_mem(side[0]) and valu:
                    break
                x = side.pop(0)
                if not is_mem(x) and not isinstance(x, (Wait, Touch)):
                    t = x[0] if isinstance(x, (list, tuple)) else x
                    if any((y.text if isinstance(y, Ins) else y).startswith('v_') for y in (x if isinstance(x, (list, tuple)) else [x]) if isinstance(y, (Ins, str))):
                        valu = True
                out.append(x)
                n += cost(x)
            if side and n == 0 and cost(side[0]) > cap:
                out.append(side.pop(0))
    return out + side


class K:
    def __init__(self, stop=None, dbg=False):
        self.p = Prog()
        self.stop = stop
        self.dbg = dbg
        self.stamps = []
        self.tail = []
        self.pads = []

    def stamp(self, name):
        if not self.dbg or (name not in self.dbg and name not in ('start', 'end')):
            return
        k = len(self.stamps)
        assert k < 32
        self.stamps.append(name)
        p = self.p
        p('s_memrealtime s[96:97]' if 'RT' in self.dbg else 's_memtime s[96:97]')
        if k == 0:
            p('v_readfirstlane_b32 s100, v0')
            p('s_lshr_b32 s100, s100, 6')
            p('s_lshl_b32 s101, s2, 2')
            p('s_add_u32 s100, s100, s101')
            p('s_lshl_b32 s100, s100, 7')
            p('s_add_u32 s100, s100, 0x40000')
        p('s_waitcnt lgkmcnt(0)')
        if k == 0:
            p('v_accvgpr_write_b32 a253, s96')
            return
        p('v_accvgpr_write_b32 a252, s96')
        p('s_mov_b64 exec, 1')
        p(f'buffer_store_dword a252, off, {srd(S_WS)}, s100 offset:{4*k}')
        p('s_mov_b64 exec, -1')

    def stamp_items(self, name):
        n = len(self.p.items)
        self.stamp(name)
        L = self.p.items[n:]
        del self.p.items[n:]
        return [L] if L else []

    def stamp_dump(self):
        if self.dbg:
            self.p(f'buffer_store_dword a253, off, {srd(S_WS)}, s100')

    def dma(self, srdb, voff, sreg, simm, m0, tok, sc='', n=1):
        mr, mi = m0
        L = [f's_add_u32 m0, s{mr}, {mi}' if mr is not None else f's_mov_b32 m0, {mi}',
             f's_add_u32 s{sT5}, s{sreg}, {simm}']
        for k in range(n):
            L.append(Ins(f'buffer_load_dwordx4 v{voff}, {srd(srdb)}, s{sT5} offen offset:{1024*k} {sc} lds', tok))
        return L

    @staticmethod
    def setexec(nl):
        if nl <= 32:
            return [f's_mov_b64 exec, {(1 << nl) - 1:#x}'] if nl < 32 else ['s_mov_b32 exec_hi, 0']
        return [f's_mov_b32 exec_hi, {(1 << (nl - 32)) - 1:#x}']

    def poll_loop(self, voff, soff, nl, imm=0):
        p = self.p
        lp, lo = p.newlabel('poll'), p.newlabel('pollout')
        return self.setexec(nl) + [f's_mov_b32 s{sCNT}, 0', Label(lp),
                f'buffer_load_dwordx2 {vr(vT + 14, 2)}, v{voff}, {srd(S_WS)}, {soff} offen offset:{imm} sc1',
                f's_add_u32 s{sCNT}, s{sCNT}, 1', f's_cmp_gt_u32 s{sCNT}, {POLL_MAX}', f's_cbranch_scc1 {lo}',
                's_waitcnt vmcnt(0)', f'v_cmp_ne_u64 vcc, s[{sF}:{sF+1}], {vr(vT + 14, 2)}', f's_cbranch_vccnz {lp}',
                Label(lo), 's_mov_b64 exec, -1']

    def vpoll(self, voff, soff, nl, acquire=True):
        p = self.p
        p.ext(self.poll_loop(voff, soff, nl))
        if acquire:
            lslow, lback = p.newlabel('acq'), p.newlabel('acqback')
            p(f's_cmp_lg_u32 s{sPURE}, 0')
            p(f's_cbranch_scc0 {lslow}')
            p.label(lback)
            self.tail.append((lslow, ['buffer_inv sc1', 's_waitcnt vmcnt(0)', f's_branch {lback}']))
        p.mark('drained_vm')

    def peek_issue(self, voff, soff, nl, imm=0):
        return [self.setexec(nl) + [f'buffer_load_dwordx2 {vr(vT + 14, 2)}, v{voff}, {srd(S_WS)}, {soff} offen offset:{imm} sc1',
                                    's_mov_b64 exec, -1']]

    def peek_check(self, voff, soff, nl, imm=0):
        p = self.p
        lslow, lback, lacq = p.newlabel('peek'), p.newlabel('peekback'), p.newlabel('peekacq')
        self.tail.append((lslow, self.poll_loop(voff, soff, nl, imm) +
                          [f's_cmp_lg_u32 s{sPURE}, 0', f's_cbranch_scc1 {lback}', 'buffer_inv sc1', 's_waitcnt vmcnt(0)',
                           f's_branch {lback}']))
        return [[Touch(vr(vT + 14, 2))] + self.setexec(nl) +
                [f'v_cmp_ne_u64 vcc, s[{sF}:{sF+1}], {vr(vT + 14, 2)}', 's_mov_b64 exec, -1',
                 f's_or_b64 vcc, vcc, s[{sIMP}:{sIMP+1}]', f's_cbranch_scc1 {lslow}', Label(lback)]]

    def publish_items(self, toks, soff, imm=0):
        p = self.p
        lslow, lback = p.newlabel('pubslow'), p.newlabel('pubback')
        self.tail.append((lslow, [
            'buffer_wbl2 sc1', 's_waitcnt vmcnt(0)',
            f'buffer_store_dwordx2 {vr(vF, 2)}, off, {srd(S_WS)}, s{soff} offset:{imm} sc1',
            f's_branch {lback}']))
        return [[Wait(toks), 's_mov_b64 exec, 1', f's_cmp_lg_u32 s{sPURE}, 0', f's_cbranch_scc0 {lslow}',
                 f'buffer_store_dwordx2 {vr(vF, 2)}, off, {srd(S_WS)}, s{soff} offset:{imm}', Label(lback), 's_mov_b64 exec, -1']]

    def publish(self, toks, soff, imm=0):
        self.p.ext(self.publish_items(toks, soff, imm))

    def flag_sc1(self, soff):
        return ['s_mov_b64 exec, 1', f'buffer_store_dwordx2 {vr(vF,2)}, off, {srd(S_WS)}, s{soff} sc1', 's_mov_b64 exec, -1']

    def flag_opt(self, soff):
        p = self.p
        l = p.newlabel('noflag')
        p(f's_cmp_eq_u32 s{soff}, -1')
        p(f's_cbranch_scc1 {l}')
        p.mark('maybe_begin')
        p.ext(self.flag_sc1(soff))
        p.mark('maybe_end')
        p.label(l)

    def stats_loads(self, soff, dst):
        return [f'buffer_load_dwordx2 {vr(dst + 2*i, 2)}, v{vSTA}, {srd(S_WS)}, s{soff} offen offset:{256*i} sc1' for i in range(7)]

    def stats_reduce(self, src):
        L = []
        for i in range(1, 7):
            L.append(f'v_add_f32 v{src}, v{src}, v{src+2*i}')
            L.append(f'v_add_f32 v{src+1}, v{src+1}, v{src+2*i+1}')
        s, q, t0, t1 = src, src + 1, src + 2, src + 3
        return L + [
            f'v_mov_b32 v{t0}, v{s}', f'v_mov_b32 v{t1}, v{q}', 's_nop 0',
            f'v_permlane32_swap_b32 v{s}, v{t0}', f'v_permlane32_swap_b32 v{q}, v{t1}',
            f'v_add_f32 v{s}, v{s}, v{t0}', f'v_add_f32 v{q}, v{q}, v{t1}',
            f'v_mul_f32 v{vMEAN}, {f32bits(-1.0/448):#x}, v{s}',
            f'v_mul_f32 v{q}, {f32bits(1.0/448):#x}, v{q}',
            f'v_fma_f32 v{q}, -v{vMEAN}, v{vMEAN}, v{q}',
            f'v_max_f32 v{q}, 0, v{q}',
            f'v_add_f32 v{q}, {f32bits(1e-5):#x}, v{q}',
            f'v_rsq_f32 v{vRSTD}, v{q}',
        ]

    def off(self, dst, idx_reg, mul, add):
        return [f's_mul_i32 s{dst}, s{idx_reg}, {mul}', f's_add_u32 s{dst}, s{dst}, s{sLB}', f's_add_u32 s{dst}, s{dst}, {add}']

    def xoff(self, dst, idx_reg, mul, add):
        return [f's_add_u32 s{sT3}, s{sLB}, {add}', f's_add_u32 s{sT4}, s{sTB}, {O_XA}', f's_cmp_lg_u32 s{sPURE}, 0',
                f's_cselect_b32 s{sT3}, s{sT4}, s{sT3}', f's_mul_i32 s{dst}, s{idx_reg}, {mul}', f's_add_u32 s{dst}, s{dst}, s{sT3}']

    def roff(self, dst, idx_reg, mul, add):
        return [f's_cmp_lg_u32 s{sPURE}, 0', f's_cselect_b32 s{sT3}, s{sTB}, s{sLB}',
                f's_mul_i32 s{dst}, s{idx_reg}, {mul}', f's_add_u32 s{dst}, s{dst}, s{sT3}', f's_add_u32 s{dst}, s{dst}, {add}']

    def pub_offsets(self, xoff, stoff, foff):
        return [f's_lshl_b32 s{sT0}, s{sRB}, 1', f's_add_u32 s{sT0}, s{sT0}, s{sRHO}',
                f's_lshl_b32 s{sT1}, s{sCB}, 1', f's_add_u32 s{sT1}, s{sT1}, s{sNU}',
                f's_mul_i32 s{sT2}, s{sT0}, 14', f's_add_u32 s{sT2}, s{sT2}, s{sT1}'] + \
            self.xoff(sXD, sT2, 2048, xoff) + self.off(sXS, sT2, 256, stoff) + \
            [f's_lshl_b32 s{sT0}, s{sT0}, 4', f's_add_u32 s{sT0}, s{sT0}, s{sT1}'] + self.off(sXF, sT0, 8, foff) + \
            [f's_cmp_ge_u32 s{sM}, 28'] + [f's_cselect_b32 s{r}, {WS_PUR}, s{r}' for r in (sXD, sXS, sXF)]

    def x_store(self, P, va, offs, sc=''):
        p = self.p
        S, Q2, t0, t1 = vT + 6, vT + 7, vT + 8, vT + 9
        for k in range(2):
            p(f'buffer_store_dwordx4 {vr(P+4*k)}, v{va}, {srd(S_WS)}, s{sXD} offen offset:{offs[k]} {sc}', tok='xst')
        p(f'v_mov_b32 v{t0}, s{sONES}')
        p(f'v_dot2_f32_bf16 v{S}, v{P}, v{t0}, 0')
        p(f'v_dot2_f32_bf16 v{Q2}, v{P}, v{P}, 0')
        for i in range(1, 8):
            p(f'v_dot2_f32_bf16 v{S}, v{P+i}, v{t0}, v{S}')
            p(f'v_dot2_f32_bf16 v{Q2}, v{P+i}, v{P+i}, v{Q2}')
        p(f'v_mov_b32 v{t0}, v{S}')
        p(f'v_mov_b32 v{t1}, v{Q2}')
        p(f'v_permlane32_swap_b32 v{S}, v{t0}')
        p(f'v_permlane32_swap_b32 v{Q2}, v{t1}')
        p(f'v_add_f32 v{S}, v{S}, v{t0}')
        p(f'v_add_f32 v{Q2}, v{Q2}, v{t1}')
        p('s_mov_b32 exec_hi, 0')
        p(f'buffer_store_dwordx2 {vr(S,2)}, v{vL8}, {srd(S_WS)}, s{sXS} offen {sc}', tok='xst')
        p('s_mov_b64 exec, -1')

    def res_unpack(self, P):
        L = []
        for q in range(8):
            L.append(f'v_lshlrev_b32 v{vRES+2*q}, 16, v{P+q}')
            L.append(f'v_and_b32 v{vRES+2*q+1}, 0xffff0000, v{P+q}')
        return L

    def prefetch(self, v128, sreg, base, nbytes):
        L = []
        o = 0
        while o < nbytes:
            oo = min(o, nbytes - 8192)
            L += [f's_add_u32 s{sT5}, s{sreg}, {base + oo}', f'buffer_load_dword a255, v{v128}, {srd(S_WS)}, s{sT5} offen sc1']
            o += 8192
        return L

    def touch(self, v128, sreg, imm, nlines):
        L = [f's_add_u32 s{sT5}, s{sreg}, {imm}']
        if nlines < 64:
            L += self.setexec(nlines)
        L.append(f'buffer_load_dword a255, v{v128}, {srd(S_WS)}, s{sT5} offen sc1')
        if nlines < 64:
            L.append('s_mov_b64 exec, -1')
        return [L]

    def wq_dma(self, tiles):
        sg, sl = sPOLL + 2, sPOLL + 3
        L = [f's_mul_i32 s{sg}, s{sJ}, 86016', f's_mul_i32 s{sl}, s{sW}, 7168', f's_add_u32 s{sg}, s{sg}, s{sl}']
        for tau in tiles:
            for o, n in ((0, 4), (4096, 3)):
                d = self.dma(S_WS, vL16, sg, WQT + tau * 28672 + o, (sl, tau * 28672 + o), 'wq', 'sc1', n)
                L += [d[:3]] + d[3:]
        return L

    def w1_dma(self, part):
        sg, sl = sPOLL, sPOLL + 1
        L = []
        if part == 0:
            for hf in range(2):
                L += [f's_xor_b32 s{sl}, {ROT1}, {hf}', f's_lshl_b32 s{sg}, s{sW}, 1', f's_add_u32 s{sl}, s{sl}, s{sg}',
                      f's_mul_i32 s{sl}, s{sl}, 7168', f's_mul_i32 s{sg}, s{sJ}, 100352', f's_add_u32 s{sg}, s{sg}, s{sl}']
                for o, n in ((0, 4), (4096, 3)):
                    d = self.dma(S_WS, vL16, sg, W1T + o, (sl, o), 'w1', 'sc1', n)
                    L += [d[:3]] + d[3:]
            return L
        else:
            L += [f's_mul_i32 s{sg}, s{sJ}, 100352', f's_mul_i32 s{sl}, s{sW}, 10240', f's_add_u32 s{sg}, s{sg}, s{sl}']
            groups = [(0, 4), (4096, 4), (8192, 2)]
            base = 57344
        for o, n in groups:
            d = self.dma(S_WS, vL16, sg, W1T + base + o, (sl, base + o), 'w1', 'sc1', n)
            L += [d[:3]] + d[3:]
        if part == 1:
            L += [f's_sub_u32 s{sg}, s{sg}, s{sl}', f's_lshl_b32 s{sl}, s{sNU}, 10', f's_add_u32 s{sg}, s{sg}, s{sl}']
            L.append(self.dma(S_WS, vL16, sg, W1T + 98304, (sl, 98304), 'w1', 'sc1', 1))
        return L

    def w2_setup(self, sbase, vz):
        return [f's_lshl_b32 s{sbase}, s{sCB}, 2', f's_add_u32 s{sbase}, s{sbase}, s{sW}', f's_mul_i32 s{sbase}, s{sbase}, 57344',
                f's_lshl_b32 s{sT1}, s{sNU}, 10', f'v_xor_b32 v{vz[0]}, s{sT1}, v{vL16}', f'v_xor_b32 v{vz[1]}, 1024, v{vz[0]}']

    def w2_loads(self, sbase, vz):
        L = []
        for sl in range(4):
            pre = [f's_add_u32 s{sT3}, {ROT}, {sl}', f's_and_b32 s{sT3}, s{sT3}, 3', f's_mul_i32 s{sT3}, s{sT3}, 14336',
                   f's_add_u32 s{sT3}, s{sT3}, s{sbase}']
            for sg in range(7):
                ks = 7 * sl + sg
                g = pre + [f's_add_u32 s{sT4}, s{sT3}, {W2T + sg*2048}',
                           f'buffer_load_dwordx4 {ar(ks*8)}, v{vz[0]}, {srd(S_WS)}, s{sT4} offen sc1']
                pre = []
                L += [g, f'buffer_load_dwordx4 {ar(ks*8+4)}, v{vz[1]}, {srd(S_WS)}, s{sT4} offen sc1']
        return L

    def lane_consts(self):
        p = self.p
        t0, t1 = vT + 6, vT + 7
        p(f'v_add_u32 v{vA1}, 57344, v{vL16}')
        p(f'v_and_b32 v{vSTA}, 31, v{vL}')
        p(f'v_lshlrev_b32 v{vSTA}, 3, v{vSTA}')
        p(f'v_lshrrev_b32 v{t0}, 5, v{vL}')
        p(f'v_mul_u32_u24 v{t1}, {7*256}, v{t0}')
        p(f'v_add_u32 v{vSTA}, v{vSTA}, v{t1}')
        p(f'v_lshrrev_b32 v{vFLG}, 2, v{vL}')
        p(f'v_lshlrev_b32 v{vFLG}, 7, v{vFLG}')
        p(f'v_and_b32 v{t1}, 3, v{vL}')
        p(f'v_lshl_add_u32 v{vFLG}, v{t1}, 3, v{vFLG}')
        for x in range(1, 4):
            p(f's_xor_b32 s{sT0}, s{sW}, {x}')
            p(f's_mul_i32 s{sT0}, s{sT0}, 12288')
            p(f's_add_u32 s{sT0}, s{sT0}, {LKV + (x-1)*4096}')
            p(f'v_add_u32 v{vRW+x-1}, s{sT0}, v{vL16}')
        p(f's_mul_i32 s{sT0}, s{sW}, 12288')
        p(f's_add_u32 s{sT0}, s{sT0}, {LKV}')
        p(f'v_add_u32 v{vRW+3}, s{sT0}, v{vL16}')
        p(f'v_bfe_u32 v{vX1A}, v{vL}, 4, 1')
        p(f'v_lshlrev_b32 v{vX1A}, 10, v{vX1A}')
        p(f'v_lshl_add_u32 v{vX1A}, v{t0}, 8, v{vX1A}')
        p(f'v_and_b32 v{t1}, 15, v{vL}')
        p(f'v_lshl_add_u32 v{vX1A}, v{t1}, 4, v{vX1A}')

    def pad(self):
        p = self.p
        k = len(self.pads)
        self.pads.append(f'L_pad{k}')
        p(f's_branch L_padskip{k}')
        p.label(f'L_pad{k}')
        p('s_setpc_b64 s[98:99]')
        p.label(f'L_padskip{k}')

    def emit_walker(self):
        L = []
        labs = [f'L_walk{w}' for w in range(4)]
        for w in range(1, 4):
            L += [Ins(f's_cmp_eq_u32 s{sW}, {w}'), Ins(f's_cbranch_scc1 {labs[w]}')]
        for w in range(4):
            if w:
                L.append(Label(labs[w]))
            for x in self.pads[w::4]:
                L.append(Ins(f's_call_b64 s[98:99], {x}'))
            if w < 3:
                L.append(Ins('s_branch L_walkend'))
        L.append(Label('L_walkend'))
        self.p.items[self.walker_at:self.walker_at] = L

    def rawq(self, tau, i):
        return (self.dma(S_WQ, self.vDQ, sRQ, (448, 896, 0)[tau] * 2 + i * 16 * 2688, (sLQ, tau * 28672 + i * 1024), f'rq{tau}{i}'))

    def xform(self, tau, R, vcs, vones, between=None):
        p = self.p

        def fin(i):
            p(f'ds_write_b128 v{self.vWQ}, {vr(R+4*i)} offset:{tau*28672+i*1024}')
            for q in range(4):
                p(f'v_dot2_f32_bf16 v{vcs}, v{R+4*i+q}, v{vones}, {f"v{vcs}" if i or q else 0}')
        for i in range(7):
            p.wait(f'rq{tau}{i}')
            for jj in range(2):
                p(f'ds_read_b64_tr_b16 {vr(R+4*i+2*jj,2)}, v{self.vTQ} offset:{tau*28672+i*1024+jj*512}')
            if between:
                between(i)
            if i >= 1:
                fin(i - 1)
        fin(6)

    def cs_partial(self, taus, vcs, t2, t3):
        p = self.p
        for k, tau in enumerate(taus):
            p(f'v_mov_b32 v{t2}, v{vcs+k}')
            p(f'v_permlane32_swap_b32 v{vcs+k}, v{t2}')
            p(f'v_add_f32 v{vcs+k}, v{vcs+k}, v{t2}')
        p(f'v_and_b32 v{t2}, 31, v{vL}')
        p(f'v_lshlrev_b32 v{t2}, 2, v{t2}')
        p(f's_mul_i32 s{sT0}, s{sW}, 384')
        p(f's_add_u32 s{sT0}, s{sT0}, {L_CSP}')
        p(f'v_add_u32 v{t3}, s{sT0}, v{t2}')
        for k, tau in enumerate(taus):
            p(f'ds_write_b32 v{t3}, v{vcs+k} offset:{tau*128}')

    def cs_sum(self, taus, R, t2, t3):
        p = self.p
        p(f'v_add_u32 v{t3}, {L_CSP}, v{t2}')
        for k, tau in enumerate(taus):
            for w in range(4):
                p(f'ds_read_b32 v{R+4*k+w}, v{t3} offset:{w*384+tau*128}')
        p(f'v_add_u32 v{t3}, {L_CSQ}, v{t2}')
        for k, tau in enumerate(taus):
            r = R + 4 * k
            p(f'v_add_f32 v{r}, v{r}, v{r+1}')
            p(f'v_add_f32 v{r+2}, v{r+2}, v{r+3}')
            p(f'v_add_f32 v{r}, v{r}, v{r+2}')
            p(f'ds_write_b32 v{t3}, v{r} offset:{tau*128}')
        p('s_waitcnt lgkmcnt(0)')

    def prologue(self):
        p = self.p
        t0, t1, t2, t3 = vT, vT + 1, vT + 2, vT + 3
        self.vDQ, self.vTQ, self.vWQ = vDQ, vTQ, vWQ = vT + 10, vT + 11, vT + 12
        p('s_cmp_ge_u32 s2, 256')
        p('s_cbranch_scc1 L_end')
        p(f's_load_dwordx16 s[{sO}:{sO+15}], s[0:1], 0')
        p(f's_load_dwordx2 s[{S_WSP}:{S_WSP+1}], s[0:1], 64')
        p(f's_getpc_b64 s[{sT0}:{sT0+1}]')
        p.label('L_pc')
        p(f'v_lshlrev_b32 v{t2}, 7, v0')
        p(f'global_load_dword a255, v{t2}, s[{sT0}:{sT0+1}]')
        p(f'v_add_u32 v{t2}, 0x8000, v{t2}')
        p(f'v_min_u32 v{t2}, L_codeend-L_pc, v{t2}')
        p(f'global_load_dword a255, v{t2}, s[{sT0}:{sT0+1}]')
        if os.environ.get('CALIB'):
            p('s_memrealtime s[100:101]')
        self.stamp('start')
        p(f'v_lshrrev_b32 v{vT}, 6, v0')
        p(f'v_and_b32 v{vL}, 63, v0')
        p(f'v_readfirstlane_b32 s{sW}, v{vT}')
        p(f's_lshr_b32 s{sM}, s2, 3')
        p(f's_and_b32 s{sTEAM}, s2, 7')
        p(f's_mul_i32 s{sRB}, s{sM}, 37')
        p(f's_lshr_b32 s{sRB}, s{sRB}, 8')
        p(f's_mul_i32 s{sT0}, s{sRB}, 7')
        p(f's_sub_u32 s{sCB}, s{sM}, s{sT0}')
        p(f's_lshr_b32 s{sRHO}, s{sW}, 1')
        p(f's_and_b32 s{sNU}, s{sW}, 1')
        p(f's_lshl_b32 s{sT0}, s{sTEAM}, 2')
        p(f's_add_u32 s{sT0}, s{sT0}, s{sRB}')
        p(f's_lshl_b32 s{sT1}, s{sT0}, 1')
        p(f's_add_u32 s{sT1}, s{sT1}, s{sRHO}')
        p(f's_mul_i32 s{sQOFF}, s{sT1}, {32*896}')
        p(f's_lshl_b32 s{sT1}, s{sCB}, 7')
        p(f's_add_u32 s{sQOFF}, s{sQOFF}, s{sT1}')
        p(f's_lshl_b32 s{sT1}, s{sNU}, 6')
        p(f's_add_u32 s{sQOFF}, s{sQOFF}, s{sT1}')
        vPK, vPQ, vH = vT + 14, vT + 15, vT + 13
        p(f'v_and_b32 v{t3}, 31, v{vL}')
        p(f'v_mul_u32_u24 v{t3}, 896, v{t3}')
        p(f'v_lshrrev_b32 v{vH}, 5, v{vL}')
        p(f'v_lshl_add_u32 v{t3}, v{vH}, 3, v{t3}')
        p(f's_lshl_b32 s{sT2}, s{sM}, 2')
        p(f's_add_u32 s{sT2}, s{sT2}, s{sW}')
        p(f's_mul_i32 s{sT3}, s{sT2}, 49')
        p(f'v_add_u32 v{t2}, s{sT3}, v{vL}')
        p(f'v_mul_u32_u24 v{vPK}, 74899, v{t2}')
        p(f'v_lshrrev_b32 v{vPK}, 20, v{vPK}')
        p(f'v_mul_u32_u24 v{vPK}, 7, v{vPK}')
        p(f'v_add_u32 v{vPK}, v{vPK}, v{t2}')
        p(f'v_lshlrev_b32 v{vPK}, 7, v{vPK}')
        b = sO

        def mksrd(d, src, n):
            p(f's_mov_b32 s{d}, s{src}')
            p(f's_and_b32 s{d+1}, s{src+1}, 0xffff')
            p(f's_mov_b32 s{d+2}, {n}')
            p(f's_mov_b32 s{d+3}, 0x20000')
        mksrd(S_X, b, 1835008)
        mksrd(S_WQ, b + 2, 1204224)
        XR = 96
        for q in range(4):
            p(f'buffer_load_dwordx2 {vr(XR+2*q,2)}, v{t3}, {srd(S_X)}, s{sQOFF} offen offset:{16*q}')
        p('s_mov_b32 exec_hi, 0x1ffff')
        p(f'buffer_load_dword a255, v{vPK}, {srd(S_WQ)}, 0 offen offset:896')
        p('s_mov_b64 exec, -1')
        p(f's_load_dwordx2 s[{sF}:{sF+1}], s[{S_WSP}:{S_WSP+1}], {WS_EPOCH}')
        for (d, src, n) in ((S_WO, b + 4, 401408), (S_W1, b + 8, 1605632),
                            (S_W2, b + 10, 1605632), (S_OUT, b + 12, 1835008), (S_WS, S_WSP, WS_BYTES)):
            mksrd(d, src, n)
        p(f's_mul_i32 s{sT3}, s{sT2}, 25')
        p(f'v_add_u32 v{t2}, s{sT3}, v{vL}')
        p(f'v_mul_u32_u24 v{vPQ}, 149797, v{t2}')
        p(f'v_lshrrev_b32 v{vPQ}, 20, v{vPQ}')
        p(f'v_mul_u32_u24 v{vPQ}, 14, v{vPQ}')
        p(f'v_add_u32 v{vPQ}, v{vPQ}, v{t2}')
        p(f'v_lshlrev_b32 v{vPQ}, 7, v{vPQ}')
        p(f's_and_b32 s{sJ}, s{sM}, 15')
        p(f's_lshr_b32 s{sA}, s{sM}, 4')
        p(f'v_lshrrev_b32 v{t0}, 2, v{vL}')
        p(f'v_and_b32 v{t1}, 3, v{vL}')
        p(f'v_lshlrev_b32 v{t3}, 3, v{t1}')
        p(f'v_lshlrev_b32 v{t1}, 4, v{t1}')
        self.stamp('ka')
        sI, sSTG = sO, sO + 1
        sFL, sDST, sJOB, sDST2 = sJFL, sO + 3, sO + 4, sO + 5

        p(f's_mul_i32 s{sLB}, s{sTEAM}, {STRIDE}')
        p(f's_add_u32 s{sLB}, s{sLB}, {TEAM0}')
        p(f's_mov_b32 s{sTB}, s{sLB}')
        p(f'v_lshlrev_b32 v{vL16}, 4, v{vL}')
        p(f'v_lshlrev_b32 v{vL8}, 3, v{vL}')
        p(f's_mov_b32 s{sONES}, 0x3f803f80')
        p(f's_mov_b32 s{sPURE}, 1')
        p(f's_mov_b64 s[{sIMP}:{sIMP+1}], 0')
        p.ext(self.pub_offsets(O_XA, O_STA, O_FXA))
        vD, vTR, vTR8 = vT + 4, vT + 5, vT + 13
        FR = 32
        p(f's_lshl_b32 s{sI}, s{sTEAM}, 1')
        p(f's_add_u32 s{sI}, s{sI}, s{sA}')
        p(f's_lshl_b32 s{sSTG}, s{sW}, 13')
        p(f's_add_u32 s{sSTG}, s{sSTG}, {LKV}')
        lA = [p.newlabel('jobA') for _ in range(4)]
        p(f's_mov_b32 s{sJOB}, 0')
        p.mark('maybe_begin')
        p(f's_cmp_ge_u32 s{sW}, 2')
        p(f's_cbranch_scc1 {lA[0]}')
        p(f's_cmp_eq_u32 s{sW}, 0')
        p(f's_cbranch_scc1 {lA[2]}')
        p(f's_cmp_ge_u32 s{sI}, 14')
        p(f's_cbranch_scc1 {lA[2]}')
        p(f'v_bfe_u32 v{vD}, v{vL}, 1, 3')
        p(f'v_bfe_u32 v{t2}, v{vL}, 4, 1')
        p(f'v_lshl_add_u32 v{vD}, v{t2}, 4, v{vD}')
        p(f'v_bfe_u32 v{t2}, v{vL}, 5, 1')
        p(f'v_lshl_add_u32 v{vD}, v{t2}, 3, v{vD}')
        p(f'v_mul_u32_u24 v{vD}, 3584, v{vD}')
        p(f'v_and_b32 v{t2}, 1, v{vL}')
        p(f'v_lshl_add_u32 v{vD}, v{t2}, 4, v{vD}')
        p(f's_mul_i32 s{sT0}, s{sI}, {32*3584}')
        p(f's_mul_i32 s{sT1}, s{sJ}, 224')
        p(f's_add_u32 s{sT0}, s{sT0}, s{sT1}')
        for t in range(7):
            p.ext(self.dma(S_W1, vD, sT0, t * 32, (sSTG, t * 1024), 'raw'))
        p(f's_mov_b32 s{sJOB}, 2')
        p('s_waitcnt vmcnt(8)')
        p(f's_branch {lA[3]}')
        p.label(lA[0])
        p(f'v_mul_u32_u24 v{vD}, 896, v{t0}')
        p(f'v_add_u32 v{vD}, v{vD}, v{t1}')
        p(f's_cmp_ge_u32 s{sM}, 28')
        p(f's_cbranch_scc1 {lA[1]}')
        sI2, sSL, sHF = sT2, sT3, sT4
        p(f's_lshl_b32 s{sI2}, s{sTEAM}, 2')
        p(f's_add_u32 s{sI2}, s{sI2}, s{sRB}')
        p(f's_lshr_b32 s{sSL}, s{sI2}, 1')
        p(f's_and_b32 s{sHF}, s{sI2}, 1')
        p(f's_mul_i32 s{sT0}, s{sSL}, {112*896}')
        p(f's_mul_i32 s{sT1}, s{sHF}, {64*896}')
        p(f's_add_u32 s{sT0}, s{sT0}, s{sT1}')
        p(f's_lshl_b32 s{sT1}, s{sCB}, 7')
        p(f's_add_u32 s{sT0}, s{sT0}, s{sT1}')
        p(f's_lshl_b32 s{sT1}, s{sNU}, 6')
        p(f's_add_u32 s{sT0}, s{sT0}, s{sT1}')
        for k in range(4):
            p.ext(self.dma(S_W2, vD, sT0, k * 16 * 896, (sSTG, k * 1024), 'raw'))
        p(f's_add_u32 s{sJOB}, s{sHF}, 3')
        p('s_waitcnt vmcnt(5)')
        p(f's_branch {lA[3]}')
        p.label(lA[1])
        p(f's_cmp_eq_u32 s{sTEAM}, 7')
        p(f's_cbranch_scc1 {lA[2]}')
        p(f's_mul_i32 s{sT0}, s{sCB}, {112*896}')
        p(f's_lshl_b32 s{sT1}, s{sTEAM}, 7')
        p(f's_add_u32 s{sT0}, s{sT0}, s{sT1}')
        p(f's_lshl_b32 s{sT1}, s{sNU}, 6')
        p(f's_add_u32 s{sT0}, s{sT0}, s{sT1}')
        for k in range(8):
            p.ext(self.dma(S_WO, vD, sT0, k * 16 * 896, (sSTG, k * 1024), 'raw'))
        p(f's_mov_b32 s{sJOB}, 5')
        p.label(lA[2])
        p('s_waitcnt vmcnt(1)')
        p.mark('maybe_end')
        p.label(lA[3])
        self.stamp('jA')
        lp0 = p.newlabel('p0skip')
        p(f's_cmp_ge_u32 s{sM}, 28')
        p(f's_cselect_b32 s{sXF}, -1, s{sXF}')
        p(f's_cbranch_scc1 {lp0}')
        p.mark('drained_vm')
        self.x_store(XR, vL16, (0, 1024), 'sc1')
        p.label(lp0)
        p('s_mov_b64 exec, 0x1ffffff')
        p(f'buffer_load_dword a255, v{vPQ}, {srd(S_WQ)}, 0 offen')
        p('s_mov_b64 exec, -1')
        self.stamp('x0')
        p(f'v_mul_u32_u24 v{vDQ}, 2688, v{t0}')
        p(f'v_add_u32 v{vDQ}, v{vDQ}, v{t1}')
        p(f's_mul_i32 s{sRQ}, s{sW}, {7*16*2688}')
        p(f's_mul_i32 s{sT1}, s{sJ}, 56')
        p(f's_add_u32 s{sRQ}, s{sRQ}, s{sT1}')
        p(f's_mul_i32 s{sLQ}, s{sW}, 7168')
        p(f'v_bfe_u32 v{t2}, v{vL}, 4, 1')
        p(f'v_lshl_add_u32 v{t2}, v{t2}, 5, v{t3}')
        p(f'v_bfe_u32 v{vTR}, v{vL}, 2, 2')
        p(f'v_lshl_add_u32 v{t2}, v{vTR}, 6, v{t2}')
        p(f'v_lshl_add_u32 v{vTQ}, v{vH}, 8, v{t2}')
        p(f'v_add_u32 v{vTR}, s{sSTG}, v{vTQ}')
        p(f'v_add_u32 v{t2}, s{sSTG}, v{t2}')
        p(f'v_lshl_add_u32 v{vTR8}, v{vH}, 9, v{t2}')
        p(f'v_add_u32 v{vTQ}, s{sLQ}, v{vTQ}')
        p(f'v_add_u32 v{vWQ}, s{sLQ}, v{vL16}')
        p(f's_mov_b32 s{sPERM}, 0x07060302')
        p(f's_lshl_b32 s{sTP}, s{sA}, 2')
        p(f's_add_u32 s{sTP}, s{sTP}, s{sW}')
        self.lane_consts()
        vCSP = 104
        p(f'v_mov_b32 v{vCSP+3}, s{sONES}')
        p.ext(self.res_unpack(XR))
        p('s_waitcnt lgkmcnt(0)')
        p(f's_add_u32 s{sF}, s{sF}, 1')
        p(f's_addc_u32 s{sF+1}, s{sF+1}, 0')
        p(f'v_mov_b32 v{vF}, s{sF}')
        p(f'v_mov_b32 v{vF+1}, s{sF+1}')
        self.walker_at = len(p.items)
        self.stamp('wk')
        p('s_waitcnt vmcnt(1)')
        p.mark('drained_vm')
        self.stamp('rt1')
        for i in range(4):
            p.ext(self.rawq(0, i))
        self.flag_opt(sXF)

        def finish(nfr, offs):
            L = []
            base = None
            for k in range(nfr):
                hi, lo = offs[k] // 4096 * 4096, offs[k] % 4096
                if hi != base:
                    L.append(f's_add_u32 s{sT5}, s{sDST}, {hi}')
                    base = hi
                L.append(f'buffer_store_dwordx4 {vr(FR+4*k)}, v{vL16}, {srd(S_WS)}, s{sT5} offen offset:{lo} sc1')
            return L
        lB = {k: p.newlabel('jobB') for k in (3, 4, 5, 'join')}
        p(f's_mov_b32 s{sFL}, -1')
        p.mark('maybe_begin')
        p(f's_cmp_eq_u32 s{sJOB}, 0')
        p(f's_cbranch_scc1 {lB["join"]}')
        p(f's_cmp_eq_u32 s{sJOB}, 5')
        p(f's_cbranch_scc1 {lB[5]}')
        p(f's_cmp_ge_u32 s{sJOB}, 3')
        p(f's_cbranch_scc1 {lB[3]}')
        p(f'v_lshl_add_u32 v{vTR}, v{t0}, 5, v{t3}')
        p(f'v_add_u32 v{vTR}, s{sSTG}, v{vTR}')
        for t in range(7):
            for jj in range(2):
                p(f'ds_read_b64_tr_b16 {vr(FR+t*4+2*jj,2)}, v{vTR} offset:{t*1024+jj*512}')
        p(f's_mul_i32 s{sDST}, s{sJ}, 100352')
        p(f's_add_u32 s{sDST}, s{sDST}, {W1T}')
        p(f's_mul_i32 s{sDST2}, s{sI}, 3072')
        p(f's_add_u32 s{sDST2}, s{sDST2}, s{sDST}')
        p(f's_add_u32 s{sDST2}, s{sDST2}, 57344')
        p(f's_lshl_b32 s{sT0}, s{sI}, 12')
        p(f's_add_u32 s{sDST}, s{sDST}, s{sT0}')
        p(f's_lshl_b32 s{sFL}, s{sJ}, 4')
        p(f's_add_u32 s{sFL}, s{sFL}, s{sI}')
        p(f's_lshl_b32 s{sFL}, s{sFL}, 3')
        p(f's_add_u32 s{sFL}, s{sFL}, {F_W1}')
        p.ext(finish(4, [t * 1024 for t in range(4)]))
        for t in range(4, 7):
            p(f'buffer_store_dwordx4 {vr(FR+4*t)}, v{vL16}, {srd(S_WS)}, s{sDST2} offen offset:{(t-4)*1024} sc1')
        p(f's_branch {lB["join"]}')
        p.label(lB[3])
        for sg in range(2):
            for jj in range(2):
                p(f'ds_read_b64_tr_b16 {vr(FR+sg*4+2*jj,2)}, v{vTR} offset:{(16*jj+8*sg)*64}')
        p(f's_lshl_b32 s{sI2}, s{sTEAM}, 2')
        p(f's_add_u32 s{sI2}, s{sI2}, s{sRB}')
        p(f's_lshr_b32 s{sSL}, s{sI2}, 1')
        p(f's_and_b32 s{sHF}, s{sI2}, 1')
        p(f's_mul_i32 s{sDST}, s{sCB}, 229376')
        p(f's_mul_i32 s{sT0}, s{sSL}, 14336')
        p(f's_add_u32 s{sDST}, s{sDST}, s{sT0}')
        p(f's_lshl_b32 s{sT0}, s{sHF}, 13')
        p(f's_add_u32 s{sDST}, s{sDST}, s{sT0}')
        p(f's_lshl_b32 s{sT0}, s{sNU}, 10')
        p(f's_add_u32 s{sDST}, s{sDST}, s{sT0}')
        p(f's_add_u32 s{sDST}, s{sDST}, {W2T}')
        p(f's_lshl_b32 s{sFL}, s{sCB}, 5')
        p(f's_add_u32 s{sFL}, s{sFL}, s{sI2}')
        p(f's_lshl_b32 s{sFL}, s{sFL}, 1')
        p(f's_add_u32 s{sFL}, s{sFL}, s{sNU}')
        p(f's_lshl_b32 s{sFL}, s{sFL}, 3')
        p(f's_add_u32 s{sFL}, s{sFL}, {F_W2}')
        p(f's_cmp_eq_u32 s{sJOB}, 4')
        p(f's_cbranch_scc1 {lB[4]}')
        for sg in range(2, 4):
            for jj in range(2):
                p(f'ds_read_b64_tr_b16 {vr(FR+sg*4+2*jj,2)}, v{vTR} offset:{(32+16*jj+8*(sg%2))*64}')
        p.ext(finish(4, [k * 2048 for k in range(4)]))
        p(f's_branch {lB["join"]}')
        p.label(lB[4])
        for jj in range(2):
            p(f'ds_read_b64_tr_b16 {vr(FR+8+2*jj,2)}, v{vTR8} offset:{(32+4*jj)*64}')
        p('s_waitcnt lgkmcnt(0)')
        p.ext(finish(3, [k * 2048 for k in range(3)]))
        p(f's_branch {lB["join"]}')
        p.label(lB[5])
        for hd in range(4):
            for kp in range(2):
                for jj in range(2):
                    p(f'ds_read_b64_tr_b16 {vr(FR+(hd*2+kp)*4+2*jj,2)}, v{vTR} offset:{(28*hd+16*kp+8*jj)*64}')
        p(f's_lshl_b32 s{sFL}, s{sTEAM}, 2')
        p(f's_add_u32 s{sFL}, s{sFL}, s{sCB}')
        p(f's_lshl_b32 s{sDST}, s{sFL}, 14')
        p(f's_lshl_b32 s{sT0}, s{sNU}, 10')
        p(f's_add_u32 s{sDST}, s{sDST}, s{sT0}')
        p(f's_add_u32 s{sDST}, s{sDST}, {WOT}')
        p(f's_lshl_b32 s{sFL}, s{sFL}, 1')
        p(f's_add_u32 s{sFL}, s{sFL}, s{sNU}')
        p(f's_lshl_b32 s{sFL}, s{sFL}, 3')
        p(f's_add_u32 s{sFL}, s{sFL}, {F_WO}')
        p('s_waitcnt lgkmcnt(0)')
        p('s_mov_b32 exec_lo, 0')
        for hd in range(4):
            p(f'v_mov_b32 v{FR+(hd*2+1)*4+2}, 0')
            p(f'v_mov_b32 v{FR+(hd*2+1)*4+3}, 0')
        p('s_mov_b64 exec, -1')
        p.ext(finish(8, [k * 2048 for k in range(8)]))
        p.mark('maybe_end')
        p.label(lB['join'])
        p(f's_getreg_b32 s{sT0}, hwreg(HW_REG_XCC_ID)')
        p(f's_and_b32 s{sT0}, s{sT0}, 15')
        p(f's_lshl_b32 s{sT0}, s{sT0}, 28')
        p(f's_xor_b32 s{sT0}, s{sT0}, s{sF+1}')
        p(f'v_mov_b32 v{t2}, s{sF}')
        p(f'v_mov_b32 v{t3}, s{sT0}')
        p(f's_lshl_b32 s{sT1}, s{sTEAM}, 8')
        p(f's_lshl_b32 s{sT2}, s{sM}, 3')
        p(f's_add_u32 s{sT1}, s{sT1}, s{sT2}')
        p(f's_add_u32 s{sT1}, s{sT1}, {WS_PUR}')
        lx = p.newlabel('noxcc')
        p(f's_cmp_lg_u32 s{sW}, 0')
        p(f's_cbranch_scc1 {lx}')
        p.mark('maybe_begin')
        p('s_mov_b64 exec, 1')
        p(f'buffer_store_dwordx2 {vr(t2,2)}, off, {srd(S_WS)}, s{sT1} sc1')
        p('s_mov_b64 exec, -1')
        p.mark('maybe_end')
        p.label(lx)
        self.stamp('jB')
        for i in range(4, 7):
            p.ext(self.rawq(0, i))
        for i in range(7):
            p.ext(self.rawq(1, i))
        self.xform(0, 128, vCSP, vCSP + 3)
        self.flag_opt(sFL)
        self.stamp('xf0')
        self.xform(1, 160, vCSP + 1, vCSP + 3)
        self.cs_partial((0, 1), vCSP, t2, t3)
        p('s_waitcnt lgkmcnt(0)')
        p('s_barrier')
        self.stamp('bar')
        self.cs_sum((0, 1), 108, t2, t3)
        self.stamp('pro')

    def wqt_publish(self, R):
        p = self.p
        l = p.newlabel('nowqt')
        p(f's_lshl_b32 s{sT0}, s{sTEAM}, 1')
        p(f's_add_u32 s{sT0}, s{sT0}, s{sA}')
        p(f's_cmp_ge_u32 s{sT0}, 14')
        p(f's_cbranch_scc1 {l}')
        p(f's_cmp_lg_u32 s{sW}, 0')
        p(f's_cbranch_scc1 {l}')
        p.mark('maybe_begin')
        p(f's_lshl_b32 s{sT1}, s{sT0}, 11')
        p(f'v_add_u32 v{R+24}, s{sT1}, v{vL16}')
        for tau in range(2):
            for kp in range(2):
                p(f'ds_read_b128 {vr(R+(tau*2+kp)*4)}, v{R+24} offset:{tau*28672+kp*1024}')
        p(f's_mul_i32 s{sT2}, s{sJ}, 86016')
        p(f's_add_u32 s{sT1}, s{sT1}, s{sT2}')
        for tau in range(2):
            p(f's_add_u32 s{sT2}, s{sT1}, {WQT + tau*28672}')
            for kp in range(2):
                p(f'buffer_store_dwordx4 {vr(R+(tau*2+kp)*4)}, v{vL16}, {srd(S_WS)}, s{sT2} offen offset:{kp*1024} sc1')
        p(f's_lshl_b32 s{sJFL}, s{sJ}, 4')
        p(f's_add_u32 s{sJFL}, s{sJFL}, s{sT0}')
        p(f's_lshl_b32 s{sJFL}, s{sJFL}, 3')
        p(f's_add_u32 s{sJFL}, s{sJFL}, {F_WQ}')
        p.mark('maybe_end')
        p.label(l)

    def p1(self):
        p, L0 = self.p, self.L == 0
        X, ACC, RING, CS = 32, 144, 192, 224
        accK, accV, accQ = ACC, ACC + 16, ACC + 32
        PK, PV = vT, vT + 8
        sXO, sST, sFX, sKV, sKF = sO, sO + 7, sO + 8, sO + 9, sO + 10
        p.ext(self.xoff(sXO, sTP, 28672, O_XA))
        for g in range(1, 7):
            p(f's_add_u32 s{sXO+g}, s{sXO}, {4096*g}')
        p.ext(self.off(sST, sTP, 3584, O_STA))
        p.ext(self.off(sFX, sTP, 128, O_FXA))
        p(f's_lshl_b32 s{sT0}, s{sJ}, 3')
        p(f's_add_u32 s{sT0}, s{sT0}, s{sTP}')
        p.ext(self.off(sKV, sT0, 4096, O_KV))
        p.ext(self.off(sKF, sT0, 128, O_FKV))
        p(f'v_lshrrev_b32 v{vCSA}, 5, v{vL}')
        p(f'v_lshlrev_b32 v{vCSA}, 4, v{vCSA}')
        p(f'v_add_u32 v{vCSA}, {L_CSQ}, v{vCSA}')
        sW2E, sW2F = sO + 11, sO + 12
        vQ = 238
        if L0:
            self.vDQ, self.vTQ, self.vWQ = vQ, 225, 226
            p.ext([f'v_lshrrev_b32 v{vQ}, 2, v{vL}', f'v_mul_u32_u24 v{vQ}, 2688, v{vQ}', f'v_and_b32 v{vQ+1}, 3, v{vL}',
                   f'v_lshl_add_u32 v{vQ}, v{vQ+1}, 4, v{vQ}', f'v_lshlrev_b32 v{vQ+1}, 7, v{vL}'])

        def frag(f):
            if f < 56:
                base, off = vL16, (f % 2) * 28672 + (f // 2) * 1024
            else:
                base, off = vA1, (f - 56) * 1024
            return f'ds_read_b128 {vr(RING + 4*(f % 8))}, v{base} offset:{off}'

        def mf(f):
            acc, s = ((accK, accV)[f % 2], f // 2) if f < 56 else (accQ, f - 56)
            return f'{MF32} {vr(acc,16)}, {vr(RING+4*(f%8))}, {vr(X+4*s)}, {vr(acc,16) if s else 0}'

        def xl(s):
            return f'buffer_load_dwordx4 {vr(X+4*s)}, v{vL16}, {srd(S_WS)}, s{sXO + s//4} offen offset:{(s%4)*1024} sc1'
        PD = 6
        for f in range(PD):
            p(frag(f))
        self.stamp('p5')
        self.pad()
        self.vpoll(vL8, f's{sFX}', 14, acquire=not L0)
        self.stamp('E')
        XP = 8
        for s in range(XP):
            p(xl(s))
        mem, pre = {}, {}
        for f in range(84):
            mem[f] = []
            if f + PD < 84 and not (f < 56 <= f + PD):
                mem[f].append(frag(f + PD))
            if f < 56 and f % 2 == 0 and f // 2 + XP < 28:
                mem[f].append(xl(f // 2 + XP))
            if 27 <= f < 41 and f % 2 == 1:
                mem[f].append(self.stats_loads(sST, CS)[(f - 27) // 2])
            if f % 2 == 0:
                pre[f] = [Touch(vr(RING + 4 * (f % 8)) + ' ' + vr(RING + 4 * ((f + 1) % 8)) + (' ' + vr(X + 4 * (f // 2)) if f < 56 else ''))]
        if L0:
            for i in range(7):
                mem[40 + 2 * i].append(self.rawq(2, i))
        else:
            p(f's_mul_i32 s{sT0}, s{sW}, 7168')
            p(f'v_add_u32 v{vQ}, s{sT0}, v{vA1}')
            for i in range(7):
                mem[3 + 4 * i].append(Ins(f'ds_write_b128 v{vQ}, {ar(224 + 4*i)} offset:{1024*i}', 'wq'))
        for f in (0, 16, 38):
            mem[f] += self.stamp_items(f'k{f}')

        def cs_reads(tau, dst):
            return [f'ds_read_b128 {vr(dst+4*q)}, v{vCSA} offset:{tau*128 + 32*q}' for q in range(4)]
        p.ext(sched([mf(f) for f in range(56)], pre, mem, cs_reads(1, accQ) + cs_reads(0, PK) + self.stats_reduce(CS), 6, start=43))
        self.stamp('kv')

        def epi(acc, cs, P):
            L = []
            for r in range(0, 16, 2):
                L.append(f'v_pk_fma_f32 {vr(acc+r,2)}, {vr(cs+r,2)}, {vr(vMEAN,2)}, {vr(acc+r,2)} op_sel:[0,0,0] op_sel_hi:[1,0,1]')
            for r in range(0, 16, 2):
                L.append(f'v_pk_mul_f32 {vr(acc+r,2)}, {vr(acc+r,2)}, {vr(vMEAN,2)} op_sel:[0,1] op_sel_hi:[1,1]')
                L.append(f'v_cvt_pk_bf16_f32 v{P+r//2}, v{acc+r}, v{acc+r+1}')
            return L

        def pad(P, c6, c7):
            return ['s_mov_b32 exec_lo, 0', f'v_mov_b32 v{P+6}, {c6:#x}', f'v_mov_b32 v{P+7}, {c7:#x}', 's_mov_b64 exec, -1']

        def st(P, o):
            return [Ins(f'buffer_store_dwordx4 {vr(P+4*k)}, v{vL16}, {srd(S_WS)}, s{sKV} offen offset:{o+1024*k} sc1', 'kvst') for k in range(2)]
        t0, t1 = CS, CS + 1
        p.ext(epi(accK, PK, PK) + pad(PK, 0x3f803f80, 0x3f80) + st(PK, 0))
        p.ext(epi(accV, accQ, PV) + pad(PV, 0x3f80, 0) + st(PV, 2048))
        self.stamp('kvs')
        if L0:
            R = ACC
            vcs, vones, t2, t3 = R + 28, R + 29, R + 30, R + 31
            p.ext([f'v_and_b32 v225, 3, v{vL}', 'v_lshlrev_b32 v225, 3, v225', f'v_bfe_u32 v226, v{vL}, 4, 1',
                   'v_lshl_add_u32 v225, v226, 5, v225', f'v_bfe_u32 v226, v{vL}, 2, 2', 'v_lshl_add_u32 v225, v226, 6, v225',
                   f'v_lshrrev_b32 v226, 5, v{vL}', 'v_lshl_add_u32 v225, v226, 8, v225', f'v_add_u32 v225, s{sLQ}, v225',
                   f'v_add_u32 v226, s{sLQ}, v{vL16}', f'v_mov_b32 v{vones}, s{sONES}'])
            self.xform(2, R, vcs, vones)
            p.wait('kvst')
            p.ext(self.flag_sc1(sKF))
            for i in range(28):
                p(f'v_accvgpr_write_b32 a{224+i}, v{R+i}')
            self.cs_partial((2,), vcs, t2, t3)
            p('s_waitcnt lgkmcnt(0)')
            p('s_barrier')
            self.cs_sum((2,), R, t2, t3)
        else:
            p.wait('wq')
            p('s_barrier')
        for f in range(56, 56 + PD):
            p(frag(f))
        side = [f's_lshl_b32 s{sT0}, s{sW}, 12', f's_add_u32 s{sT0}, s{sT0}, {LKV + 8*4096}',
                f'v_add_u32 v{t0}, s{sT0}, v{vL16}',
                f'ds_write_b128 v{t0}, {vr(PK)}', f'ds_write_b128 v{t0}, {vr(PK+4)} offset:1024',
                f'v_and_b32 v{t1}, 31, v{vL}', f'v_lshlrev_b32 v{t1}, 6, v{t1}', f'v_lshrrev_b32 v{t0}, 5, v{vL}',
                f'v_lshl_add_u32 v{t1}, v{t0}, 4, v{t1}', f'v_add_u32 v{t0}, s{sT0}, v{t1}',
                f'ds_write_b128 v{t0}, {vr(PV)} offset:2048', f'ds_write_b128 v{t0}, {vr(PV+4)} offset:{2048+32}',
                f'v_mul_f32 v{vRSTD}, {f32bits(28 ** -0.5 * math.log2(math.e)):#x}, v{vRSTD}'] + cs_reads(2, CS) + self.kv_addr()
        pre2 = {f - 56: v for f, v in pre.items() if f >= 56}
        mem2 = {f - 56: v for f, v in mem.items() if f >= 56}
        if not L0:
            mem2[22].append([Wait(['kvst'])] + self.flag_sc1(sKF))
        qs = sched([mf(f) for f in range(56, 84)], pre2, mem2, side, 6, start=0)
        cut = qs.index(mf(56 + 16)) if L0 else len(qs)
        while not isinstance(qs[cut - 1], (str, Ins, list)):
            cut -= 1
        p.ext(qs[:cut])
        self.stamp('q')
        self.kv_fetch()
        p.ext(qs[cut:])
        QF = 200
        p.ext(epi(accQ, CS, QF))
        p.ext(pad(QF, 0, 0x3f800000))
        if L0:
            p(f's_mov_b32 s{sJFL}, -1')
            self.wqt_publish(32)
        self.pad()
        p('s_barrier')
        self.stamp('p1')

    sKD, sKL, sKFl, sNULL = sO + 11, sO + 13, (sO + 15, 78), 79

    def kv_addr(self):
        sKD, sKL, sKFl, sNULL = self.sKD, self.sKL, self.sKFl, self.sNULL
        L = [f's_mov_b32 s{sNULL}, 0']
        for k in range(2):
            L += [f's_lshl_b32 s{sT0}, s{sW}, 1', f's_add_u32 s{sT0}, s{sT0}, {k}',
                  f's_lshl_b32 s{sKL+k}, s{sT0}, 12', f's_add_u32 s{sKL+k}, s{sKL+k}, {LKV}',
                  f's_lshl_b32 s{sT1}, s{sA}, 2', f's_add_u32 s{sT0}, s{sT0}, s{sT1}',
                  [f's_cmp_lt_u32 s{sT0}, 8', f's_cselect_b32 s{sT1}, {STRIDE}, 0'],
                  f's_sub_u32 s{sT1}, s{sLB}, s{sT1}', f's_and_b32 s{sT0}, s{sT0}, 7',
                  [f's_cmp_lt_i32 s{sT1}, {TEAM0}', f's_cselect_b32 s{sT2}, {1 << k}, 0',
                   f's_cselect_b32 s{sT1}, s{sLB}, s{sT1}', f's_cselect_b32 s{sT0}, s{sTP}, s{sT0}'],
                  f's_or_b32 s{sNULL}, s{sNULL}, s{sT2}', f's_lshl_b32 s{sT2}, s{sJ}, 3', f's_add_u32 s{sT0}, s{sT0}, s{sT2}',
                  f's_lshl_b32 s{sKD+k}, s{sT0}, 12', f's_add_u32 s{sKD+k}, s{sKD+k}, s{sT1}',
                  f's_lshl_b32 s{sT0}, s{sT0}, 7', f's_add_u32 s{sT0}, s{sT0}, s{sT1}', f's_add_u32 s{sKFl[k]}, s{sT0}, {O_FKV}']
        return L

    def kv_fetch(self):
        p = self.p
        t0, t1, Z, NK = 144, 145, 148, 2
        sKD, sKL, sKFl, sNULL = self.sKD, self.sKL, self.sKFl, self.sNULL
        p(f'v_bfe_u32 v{t0}, v{vL}, 1, 1')
        p(f'v_lshlrev_b32 v{t0}, 10, v{t0}')
        p(f'v_and_b32 v{t1}, 1, v{vL}')
        p(f'v_lshl_add_u32 v{t0}, v{t1}, 9, v{t0}')
        p(f'v_lshrrev_b32 v{t1}, 2, v{vL}')
        p(f'v_lshl_add_u32 v{t0}, v{t1}, 4, v{t0}')
        lp, lo = p.newlabel('kvpoll'), p.newlabel('kvpollout')
        self.stamp('w1')
        p('s_waitcnt lgkmcnt(0)')
        p(f's_mov_b32 s{sCNT}, 0')
        p.label(lp)
        for k in range(NK):
            p(f's_load_dwordx2 s[{sPOLL+2*k}:{sPOLL+2*k+1}], s[{S_WSP}:{S_WSP+1}], s{sKFl[k]} glc')
        p(f's_add_u32 s{sCNT}, s{sCNT}, 1')
        p(f's_cmp_gt_u32 s{sCNT}, {POLL_MAX}')
        p(f's_cbranch_scc1 {lo}')
        p('s_waitcnt lgkmcnt(0)')
        for k in range(NK):
            p(f's_cmp_eq_u64 s[{sPOLL+2*k}:{sPOLL+2*k+1}], s[{sF}:{sF+1}]')
            p(f's_cbranch_scc0 {lp}')
        p.label(lo)
        self.stamp('kvf')
        for k in range(NK):
            lnull, lb = p.newlabel('null'), p.newlabel('nullback')
            p(f's_bitcmp1_b32 s{sNULL}, {k}')
            p(f's_cbranch_scc1 {lnull}')
            p(f's_mov_b32 m0, s{sKL+k}')
            p(f's_sub_u32 s{sT5}, s{sKD+k}, 768')
            p(f'buffer_load_dwordx4 v{vL16}, {srd(S_WS)}, s{sKD+k} offen sc1 lds')
            p(f'buffer_load_dwordx4 v{vL16}, {srd(S_WS)}, s{sKD+k} offen offset:1024 sc1 lds')
            p(f'buffer_load_dwordx4 v{t0}, {srd(S_WS)}, s{sKD+k} offen offset:2048 sc1 lds')
            p(f'buffer_load_dwordx4 v{t0}, {srd(S_WS)}, s{sT5} offen offset:3072 sc1 lds')
            p.label(lb)
            self.tail.append((lnull, [
                f'v_add_u32 v{t1}, s{sKL+k}, v{vL16}',
                f'v_mov_b32 v{Z}, 0', f'v_mov_b32 v{Z+1}, 0', f'v_mov_b32 v{Z+2}, 0', f'v_mov_b32 v{Z+3}, 0'] +
                [f'ds_write_b128 v{t1}, {vr(Z)} offset:{o}' for o in (0, 2048, 3072)] +
                ['s_mov_b32 exec_lo, 0', f'v_mov_b32 v{Z+3}, 0xf1490000', 's_mov_b64 exec, -1',
                 f'ds_write_b128 v{t1}, {vr(Z)} offset:1024', f's_branch {lb}']))

    def attn(self):
        p, L0 = self.p, self.L == 0
        KF, ST, MW, MD, OA, QF, PB, VF = 32, 104, 152, 168, 184, 200, 208, 224
        t0, t1 = 104, 105
        t2, t3 = 106, 107
        p(f'v_and_b32 v{t2}, 31, v{vL}')
        p(f'v_lshrrev_b32 v{t3}, 5, v{vL}')
        p(f'v_lshlrev_b32 v{t3}, 2, v{t3}')
        p(f'v_sub_u32 v{t2}, v{t2}, v{t3}')
        p(f'v_mov_b32 v{t3}, {f32bits(-1e30):#x}')
        for r in range(0, 16, 2):
            k0, k1 = 8 * (r // 4) + r % 4, 8 * (r // 4) + r % 4 + 1
            p(f'v_cmp_le_i32 vcc, {k0}, v{t2}')
            p(f'v_cmp_le_i32 s[{sPOLL}:{sPOLL+1}], {k1}, v{t2}')
            p('s_nop 0')
            p(f'v_cndmask_b32_e64 v{MD+r}, v{t3}, 0, vcc')
            p(f'v_cndmask_b32_e64 v{MD+r+1}, v{t3}, 0, s[{sPOLL}:{sPOLL+1}]')
            p(f'v_cndmask_b32_e64 v{MW+r}, 0, v{t3}, vcc')
            p(f'v_cndmask_b32_e64 v{MW+r+1}, 0, v{t3}, s[{sPOLL}:{sPOLL+1}]')
        vKA, vVA = vT, vT + 1
        p(f's_lshl_b32 s{sT0}, s{sW}, 12')
        p(f's_add_u32 s{sT0}, s{sT0}, {LKV}')
        p(f'v_add_u32 v{vKA}, s{sT0}, v{vL16}')
        p(f'v_lshrrev_b32 v{t2}, 5, v{vL}')
        p(f'v_bfe_u32 v{t3}, v{vL}, 2, 2')
        p(f'v_lshl_add_u32 v{t2}, v{t2}, 2, v{t3}')
        p(f'v_lshlrev_b32 v{vVA}, 6, v{t2}')
        p(f'v_bfe_u32 v{t2}, v{vL}, 4, 1')
        p(f'v_lshl_add_u32 v{vVA}, v{t2}, 5, v{vVA}')
        p(f'v_and_b32 v{t2}, 1, v{vL}')
        p(f'v_lshl_add_u32 v{vVA}, v{t2}, 4, v{vVA}')
        p(f'v_bfe_u32 v{t2}, v{vL}, 1, 1')
        p(f'v_lshl_add_u32 v{vVA}, v{t2}, 3, v{vVA}')
        p(f'v_add_u32 v{vVA}, s{sT0}, v{vVA}')
        sOD, sOF, sWO = sO, sO + 1, sO + 2
        p(f's_lshl_b32 s{sT0}, s{sTP}, 4')
        p(f's_add_u32 s{sT0}, s{sT0}, s{sJ}')
        p.ext(self.roff(sOD, sT0, 2048, O_O))
        p.ext(self.off(sOF, sT0, 8, O_FO))
        p(f's_lshl_b32 s{sWO}, s{sCB}, 2')
        p(f's_add_u32 s{sWO}, s{sWO}, s{sW}')
        p(f's_lshl_b32 s{sWO}, s{sWO}, 14')
        p(f's_add_u32 s{sWO}, s{sWO}, {WOT}')
        for g in range(1, 4):
            p(f's_add_u32 s{sWO+g}, s{sWO}, {4096*g}')
        vPT = vT + 12
        p(f'v_lshlrev_b32 v{vPT}, 7, v{vL}')
        p(f'v_add_u32 v{vPT}, s{sOD}, v{vPT}')
        p(f's_lshl_b32 s{sT0}, s{sTP}, 7')
        p(f's_lshl_b32 s{sT1}, s{sRB}, 8')
        p(f's_lshl_b32 s{sT2}, s{sRHO}, 7')
        p(f's_add_u32 s{sT2}, s{sT2}, s{sT1}')
        p(f's_mul_i32 s{sT3}, s{sT2}, 28')
        p(f's_lshl_b32 s{sT4}, s{sCB}, 9')
        p(f's_add_u32 s{sT3}, s{sT3}, s{sT4}')
        p(f's_lshl_b32 s{sT4}, s{sNU}, 8')
        p(f's_add_u32 s{sT3}, s{sT3}, s{sT4}')
        for lane, (r, c) in enumerate([(sT0, O_FO), (sT1, O_FO), (sT1, O_FO + 128), (sT0, O_FX1), (sT2, O_FX1),
                                       (sT3, O_ST1), (sT3, O_ST1 + 128), (sT0, O_FH), (sT1, O_FH), (sT1, O_FH + 128),
                                       (sT0, O_FH + 1024), (sT1, O_FH + 1024), (sT1, O_FH + 1024 + 128)]):
            p(f's_add_u32 s{sT4}, s{r}, {c}')
            p(f's_add_u32 s{sT4}, s{sT4}, s{sLB}')
            p(f'v_writelane_b32 v{vPT}, s{sT4}, {16 + lane}')
        vZ = vT + 8
        p(f's_lshl_b32 s{sT0}, s{sNU}, 10')
        p(f'v_xor_b32 v{vZ}, s{sT0}, v{vL16}')
        p(f'v_xor_b32 v{vZ+1}, 1024, v{vZ}')

        def first():
            l0 = p.newlabel('first')
            p(f's_cmp_lg_u32 s{sW}, 0')
            p(f's_cbranch_scc1 {l0}')
            p.mark('maybe_begin')
            p(f's_lshl_b32 s{sT0}, s{sJ}, 7')
            p(f's_add_u32 s{sT0}, s{sT0}, {F_W1}')
            p(f's_lshl_b32 s{sT2}, s{sCB}, 6')
            p(f's_add_u32 s{sT2}, s{sT2}, {F_WO - 14*8}')
            p(f's_lshl_b32 s{sT3}, s{sTEAM}, 8')
            p(f's_add_u32 s{sT3}, s{sT3}, {WS_PUR - 32*8}')
            p(f'v_add_u32 v{t2}, s{sT0}, v{vL8}')
            p(f'v_min_u32 v{t3}, {21*8}, v{vL8}')
            p(f'v_add_u32 v{t3}, s{sT2}, v{t3}')
            p(f'v_cmp_le_u32 vcc, 14, v{vL}')
            p(f'v_cndmask_b32 v{t2}, v{t2}, v{t3}, vcc')
            p(f'v_add_u32 v{t3}, s{sT3}, v{vL8}')
            p(f'v_cmp_le_u32 vcc, 32, v{vL}')
            p(f'v_cndmask_b32 v{t2}, v{t2}, v{t3}, vcc')
            lp, lo, ls = p.newlabel('pur'), p.newlabel('purout'), p.newlabel('pursleep')
            p(f's_lshl_b32 s{sT0}, s{sCB}, 9')
            p(f's_add_u32 s{sT0}, s{sT0}, {F_W2}')
            p(f's_mov_b32 s{sCNT}, 0')
            p.label(lp)
            p(f'buffer_load_dwordx2 {vr(108,2)}, v{t2}, {srd(S_WS)}, 0 offen sc1')
            p(f'buffer_load_dwordx2 {vr(112,2)}, v{vL8}, {srd(S_WS)}, s{sT0} offen sc1')
            p(f's_add_u32 s{sCNT}, s{sCNT}, 1')
            p(f's_cmp_gt_u32 s{sCNT}, {POLL_MAX}')
            p(f's_cbranch_scc1 {lo}')
            p('s_waitcnt vmcnt(0)')
            p(f'v_xor_b32 v109, s{sF+1}, v109')
            p(f'v_xor_b32 v108, s{sF}, v108')
            p(f'v_and_b32 v110, 0x0fffffff, v109')
            p(f'v_or_b32 v108, v108, v110')
            p(f'v_cmp_ne_u32 vcc, 0, v108')
            p(f's_cbranch_vccnz {ls}')
            p(f'v_cmp_ne_u64 vcc, s[{sF}:{sF+1}], {vr(112,2)}')
            p(f's_cbranch_vccnz {ls}')
            p(f'v_readlane_b32 s{sT1}, v109, 32')
            p(f'v_cmp_ne_u32 vcc, s{sT1}, v109')
            p(f's_cmp_eq_u32 vcc_hi, 0')
            p(f's_cselect_b32 s{sT1}, {0 if os.environ.get("FORCE_IMPURE") else 1}, 0')
            p(f'v_mov_b32 v108, s{sT1}')
            p(f'v_mov_b32 v109, {L_PUR}')
            p('ds_write_b32 v109, v108')
            p.label(lo)
            p.mark('maybe_end')
            p.label(l0)
            self.tail.append((ls, ['s_sleep 8', f's_branch {lp}']))
        if L0:
            first()
        self.pad()
        p('s_waitcnt vmcnt(0) lgkmcnt(0)')
        if L0:
            self.flag_opt(sJFL)
        self.stamp('kvd')
        p('s_barrier')
        self.stamp('A')
        if L0:
            p(f'v_mov_b32 v{t0}, {L_PUR}')
            p(f'ds_read_b32 v{t0}, v{t0}')
            p(f'v_readfirstlane_b32 s{sPURE}, v{t0}')
            p(f's_cmp_eq_u32 s{sPURE}, 0')
            p(f's_cselect_b64 s[{sIMP}:{sIMP+1}], -1, 0')
        p(f'v_lshlrev_b32 v{t0}, 7, v{vL}')
        p(f's_lshl_b32 s{sT0}, s{sCB}, 2')
        p(f's_add_u32 s{sT0}, s{sT0}, s{sRB}')
        p(f's_lshl_b32 s{sT1}, s{sT0}, 14')
        p(f's_lshl_b32 s{sT2}, s{sW}, 12')
        p(f's_add_u32 s{sT1}, s{sT1}, s{sT2}')
        p(f's_add_u32 s{sT1}, s{sT1}, {WOT}')
        p('s_mov_b32 exec_hi, 0')
        p(f'buffer_load_dword a255, v{t0}, {srd(S_WS)}, s{sT1} offen sc1')
        p('s_mov_b64 exec, -1')
        p.ext(self.pub_offsets(O_X1, O_ST1, O_FX1))
        p(f's_sub_u32 s{sT0}, s{sXD}, {29*128}')
        p(f'v_add_u32 v{t1}, s{sT0}, v{t0}')
        p(f'v_cmp_lt_u32 vcc, 28, v{vL}')
        p(f'v_cndmask_b32 v{vPT}, v{vPT}, v{t1}, vcc')
        p.ext(self.setexec(45))
        p(f'buffer_load_dword a255, v{vPT}, {srd(S_WS)}, 0 offen sc1')
        p('s_mov_b64 exec, -1')
        bg = self.w1_dma(0)
        bw = []
        if L0 and HATT:
            p(f's_lshl_b32 s{sT0}, s{sTP}, 4')
            p(f's_add_u32 s{sT0}, s{sT0}, s{sJ}')
            p.ext(self.off(sT1, sT0, 7168, O_H))
            p.ext(self.touch(t0, sT1, 0, 56))
        if L0:
            p.ext(self.w2_setup(sO + 7, (vT + 10, vT + 11)))
            bw = self.w2_loads(sO + 7, (vT + 10, vT + 11))

        def kread(t):
            return [f'ds_read_b128 {vr(KF+8*t+4*k)}, v{vKA} offset:{t*4096+k*1024}' for k in range(2)]

        def qk(t):
            s = ST + 16 * (t % 3)
            c = vr(MW, 16) if t == 0 else vr(MD, 16) if t == 8 else '0'
            return [f'{MF32} {vr(s,16)}, {vr(KF+8*t)}, {vr(QF)}, {c}',
                    f'{MF32} {vr(s,16)}, {vr(KF+8*t+4)}, {vr(QF+4)}, {vr(s,16)}']
        vM, vM2 = vT + 2, vT + 3

        def mx(t):
            s = ST + 16 * (t % 3)
            L = []
            for i in range(8):
                d = vM if i % 2 == 0 else vM2
                if t == 0 and i < 2:
                    L.append(f'v_max_f32 v{d}, v{s+2*i}, v{s+2*i+1}')
                else:
                    L.append(f'v_max3_f32 v{d}, v{s+2*i}, v{s+2*i+1}, v{d}')
            return L

        def vread(t):
            d = VF + 8 * (t % 2)
            return [f'ds_read_b64_tr_b16 {vr(d+4*kv+2*jj,2)}, v{vVA} offset:{t*4096+2048+(16*kv+8*jj)*64}'
                    for kv in range(2) for jj in range(2)]
        def popbg(bg=bg):
            L = []
            while bg:
                x = bg.pop(0)
                L.append(x)
                if is_mem(x):
                    break
            return L
        for t in range(4):
            p.ext(kread(t))
        q = qk(0)
        p.ext([q[0]] + kread(4) + [q[1]] + kread(5))
        q = qk(1)
        p.ext([q[0]] + kread(6) + popbg(bw) + [q[1]] + kread(7) + popbg(bw))
        for t in range(9):
            m = mx(t)
            if t + 2 < 9:
                q = qk(t + 2)
                extra = kread(8) if t == 0 else vread(0)[:2] if t == 5 else vread(0)[2:] if t == 6 else []
                if t % 2 == 1:
                    extra = extra + popbg()
                p.ext([q[0]] + extra + popbg(bw) + m[:4] + [q[1]] + popbg(bw) + m[4:])
            else:
                p.ext(m)
        self.stamp('a1')
        a, b2, r1 = vT + 4, vT + 5, vT + 6
        p(f'v_max_f32 v{vM}, v{vM}, v{vM2}')
        p(f'v_mov_b32 v{a}, v{vM}')
        p(f'v_permlane32_swap_b32 v{vM}, v{a}')
        p(f'v_max_f32 v{vM}, v{vM}, v{a}')
        p(f'v_xor_b32 v{vM}, 0x80000000, v{vM}')
        p(f'v_and_b32 v{a}, 0xffff0000, v{vM}')
        p(f'v_sub_f32 v{r1}, v{vM}, v{a}')
        p(f'v_and_b32 v{a}, 0xffff0000, v{r1}')
        p(f'v_sub_f32 v{b2}, v{r1}, v{a}')
        p('s_mov_b32 exec_lo, 0')
        p(f'v_perm_b32 v{QF+6}, v{r1}, v{vM}, s{sPERM}')
        p(f'v_perm_b32 v{QF+7}, 1.0, v{b2}, s{sPERM}')
        p('s_mov_b64 exec, -1')

        def ex(t):
            s = ST + 16 * (t % 3)
            pb = PB + 8 * (t % 2)
            L = []
            for i in range(8):
                L.append(f'v_exp_f32 v{s+2*i}, v{s+2*i}')
                L.append(f'v_exp_f32 v{s+2*i+1}, v{s+2*i+1}')
                if i:
                    L.append(f'v_cvt_pk_bf16_f32 v{pb+i-1}, v{s+2*i-2}, v{s+2*i-1}')
            L.append(f'v_cvt_pk_bf16_f32 v{pb+7}, v{s+14}, v{s+15}')
            return L

        def pv(t):
            d = VF + 8 * (t % 2)
            pb = PB + 8 * (t % 2)
            return [f'{MF32} {vr(OA,16)}, {vr(d)}, {vr(pb)}, {vr(OA,16) if t else 0}',
                    f'{MF32} {vr(OA,16)}, {vr(d+4)}, {vr(pb+4)}, {vr(OA,16)}']

        self.pad()

        def wol(i):
            ks, z = i // 2, i % 2
            return f'buffer_load_dwordx4 {vr(32+4*i)}, v{vZ+z}, {srd(S_WS)}, s{sWO + ks//2} offen offset:{(ks%2)*2048} sc1'
        p.ext(qk(0))
        p.ext(qk(1))
        for t in range(9):
            e = ex(t)
            mf = (pv(t - 1) if t else []) + (qk(t + 2) if t + 2 < 9 else [])
            out = []
            pos = [2, 7, 12, 17]
            for i, x in enumerate(e):
                out.append(x)
                if i in pos and pos.index(i) < len(mf):
                    k = pos.index(i)
                    out.append(mf[k])
                    if t + 1 < 9:
                        if t == 0:
                            out += vread(1)[2 * k:2 * k + 2]
                        elif k in (1, 2):
                            out += vread(t + 1)[2 * (k - 1):2 * (k - 1) + 2]
                        elif t == 7 and k == 1:
                            pass
                    if t < 6 and k in (0, 3) or t == 0:
                        out += popbg()
                    if t < 7:
                        out += popbg(bw) + (popbg(bw) if k % 2 or t == 0 else [])
                    if t >= 7:
                        out += [wol(8 * (t - 7) + 4 * k + q) for q in range(4)]
            if t == 7:
                out = out[:-3] + vread(8)[2:] + out[-3:]
            p.ext(out)
        assert not bg and not bw, (len(bg), len(bw))
        p.ext(pv(8))
        self.stamp('a2')
        p(f'v_mov_b32 v{a}, v{OA+12}')
        p(f'v_mov_b32 v{b2}, v{OA+12}')
        p(f'v_permlane32_swap_b32 v{a}, v{b2}')
        p(f'v_rcp_f32 v{b2}, v{b2}')
        for i in range(8):
            p(f'v_pk_mul_f32 {vr(OA+2*i,2)}, {vr(OA+2*i,2)}, {vr(a,2)} op_sel:[0,1] op_sel_hi:[1,1]')
            p(f'v_cvt_pk_bf16_f32 v{PB+i}, v{OA+2*i}, v{OA+2*i+1}')
            if i % 4 == 3:
                p(f'buffer_store_dwordx4 {vr(PB+i-3)}, v{vL16}, {srd(S_WS)}, s{sOD} offen offset:{(i//4)*1024}', tok='ost')
        self.publish(['ost'], sOF)
        self.stamp('att')

    def reduce_writes(self, ACC):
        return [Ins(f'ds_write_b128 v{vRW+x-1}, {vr(ACC+16*x+4*c)} offset:{c*1024}', 'rw') for x in range(1, 4) for c in range(4)]

    def reduce_finish(self, ACC, TMP):
        p = self.p
        p.wait('rw')
        self.pad()
        p('s_barrier')
        for c in range(4):
            for x in range(3):
                p(f'ds_read_b128 {vr(TMP+16*x+4*c)}, v{vRW+3} offset:{x*4096+c*1024}')
        for c in range(8):
            p(f'v_pk_add_f32 {vr(TMP+2*c,2)}, {vr(TMP+2*c,2)}, {vr(TMP+16+2*c,2)}')
            p(f'v_pk_add_f32 {vr(ACC+2*c,2)}, {vr(ACC+2*c,2)}, {vr(TMP+32+2*c,2)}')
            p(f'v_pk_add_f32 {vr(ACC+2*c,2)}, {vr(ACC+2*c,2)}, {vr(TMP+2*c,2)}')

    def yoffs(self, dst, mul, add):
        L = []
        for y in range(2):
            L += [f's_xor_b32 s{sT0}, s{sRHO}, {y}', f's_lshl_b32 s{sT1}, s{sRB}, 1', f's_add_u32 s{sT0}, s{sT0}, s{sT1}',
                  f's_lshl_b32 s{sT0}, s{sT0}, 2', f's_add_u32 s{sT0}, s{sT0}, s{sW}'] + self.roff(dst + y, sT0, mul, add)
        return L

    def p3(self):
        p, L0 = self.p, self.L == 0
        WO, OF, ACC, RING = 32, 96, 160, 200

        def colsum(part, AC=ACC, RG=RING, T=vT):
            for i in range(4):
                p(f'v_mov_b32 v{T+4+i}, s{sONES}')
            p(f's_lshl_b32 s{sT0}, s{sW}, 10')
            if part == 0:
                p(f'v_add_u32 v{T}, s{sT0}, v{vL16}')
            else:
                p(f's_min_u32 s{sT0}, s{sT0}, 2048')
                p(f'v_add_u32 v{T}, s{sT0}, v{vA1}')
            NRG = 6 if part == 0 else 4
            rd = lambda f: f'ds_read_b128 {vr(RG+4*(f%NRG))}, v{T} offset:{f*(4096, 3072)[part]}'
            for f in range(NRG - 1):
                p(rd(f))
            for f in range(14):
                p(f'{MF16} {vr(AC)}, {vr(T+4)}, {vr(RG+4*(f%NRG))}, {vr(AC) if f else 0}')
                if f + NRG - 1 < 14:
                    p(rd(f + NRG - 1))
            p(f's_lshl_b32 s{sT0}, s{sW}, 6')
            p(f's_add_u32 s{sT0}, s{sT0}, {L_CS1 + 256*part}')
            p(f'v_and_b32 v{T}, 15, v{vL}')
            p(f'v_lshlrev_b32 v{T}, 2, v{T}')
            p(f'v_add_u32 v{T}, s{sT0}, v{T}')
            p(f'ds_write_b32 v{T}, v{AC}')
            p('s_waitcnt lgkmcnt(0)')
        w1d = []
        self.pad()
        p('s_barrier')
        if L0:
            colsum(0)
        ljoin, lidle = p.newlabel('p3join'), p.newlabel('p3idle')
        p(f's_cmp_ge_u32 s{sM}, 28')
        p(f's_cbranch_scc1 {lidle}')
        p.mark('maybe_begin')
        sFO, sY = sO, sO + 2
        p(f's_lshl_b32 s{sT0}, s{sRB}, 3')
        p(f's_add_u32 s{sT0}, s{sT0}, s{sW}')
        p.ext(self.off(sFO, sT0, 32, O_FO))
        p.ext(self.yoffs(sY, 8192, O_O))
        p(f's_add_u32 s{sY+2}, s{sY}, 4096')
        p(f's_add_u32 s{sY+3}, s{sY+1}, 4096')
        self.vpoll(vFLG, f's{sFO}', 8)
        self.stamp('B')

        def ld(ks, y):
            return f'buffer_load_dwordx4 {vr(OF+(ks*2+y)*4)}, v{vL16}, {srd(S_WS)}, s{sY + 2*(ks//4) + y} offen offset:{(ks%4)*1024} sc1'

        def mf(ks, x):
            y, z = x >> 1, x & 1
            c = vr(ACC + 16 * x, 16) if ks else (vr(vRES, 16) if x == 0 else '0')
            return f'{MF32} {vr(ACC+16*x,16)}, {vr(WO+(ks*2+z)*4)}, {vr(OF+(ks*2+y)*4)}, {c}'
        for ks in range(5):
            for y in range(2):
                p(ld(ks, y))
        rest = list(w1d)
        for ks in range(8):
            for x in (1, 2, 3):
                p(mf(ks, x))
                if ks + 5 < 8 and x < 3:
                    p(ld(ks + 5, x - 1))
                elif ks >= 3 and rest:
                    y = rest.pop(0)
                    p.ext([y])
                    while rest and not is_mem(y):
                        y = rest.pop(0)
                        p.ext([y])
        assert not rest
        self.stamp('p3mm')
        p.ext(sched([mf(ks, 0) for ks in range(8)], {}, {}, self.reduce_writes(ACC), 2, start=2))
        self.stamp('p3rw')
        self.reduce_finish(ACC, 32)
        self.stamp('p3rd')
        P = 96
        for i in range(8):
            p(f'v_cvt_pk_bf16_f32 v{P+i}, v{ACC+2*i}, v{ACC+2*i+1}')
        self.x_store(P, vX1A, (0, 512))
        self.publish(['xst'], sXF)
        self.stamp('p3pub')
        p.ext(self.res_unpack(P))
        p.mark('maybe_end')
        p.label(ljoin)
        idle = [f'v_lshlrev_b32 v{vT}, 7, v{vL}', f's_lshl_b32 s{sT0}, s{sCB}, 2', f's_add_u32 s{sT0}, s{sT0}, s{sW}']
        if L0:
            idle += [f's_lshl_b32 s{sT1}, s{sT0}, 7', f's_add_u32 s{sT1}, s{sT1}, {F_W1}'] + self.poll_loop(vL8, f's{sT1}', 14)
        idle += [f's_mul_i32 s{sT1}, s{sT0}, 100352'] + self.prefetch(vT, sT1, W1T + 57344, 43008)
        self.tail.append((lidle, idle + [f's_branch {ljoin}']))
        self.colsum = colsum
        self.stamp('p3')

    def p45(self):
        p, L0 = self.p, self.L == 0
        X, ACC, RING, CS = 32, 144, 200, 224
        sXO, sST, sFX, sH, sHF = sO, sO + 4, sO + 5, sO + 6, sO + 8
        sFH, sST5, sW2 = sO + 9, sO + 10, sO + 11
        sY = [76, 77, 78, 79, sO + 12, sO + 13, sO + 14, sO + 15]
        vTC, vHA, vHB, vZ, vLb, PO = vT, vT + 1, vT + 2, (vT + 3, vT + 13), vT + 12, vT + 4
        p.ext(self.w1_dma(1))
        p.ext(self.xoff(sXO, sTP, 28672, O_X1))
        for g in range(1, 4):
            p(f's_add_u32 s{sXO+g}, s{sXO}, {8192*g}')
        p.ext(self.off(sST, sTP, 3584, O_ST1))
        p.ext(self.off(sFX, sTP, 128, O_FX1))
        p(f's_lshl_b32 s{sT0}, s{sTP}, 4')
        p(f's_add_u32 s{sT0}, s{sT0}, s{sJ}')
        p.ext(self.roff(sH, sT0, 7168, O_H))
        p(f's_add_u32 s{sH+1}, s{sH}, 4096')
        p.ext(self.off(sHF, sT0, 8, O_FH))
        p.ext([f'v_lshrrev_b32 v{vCSA}, 4, v{vL}', f'v_lshlrev_b32 v{vCSA}, 4, v{vCSA}', f'v_add_u32 v{vCSA}, {L_CS1}, v{vCSA}',
               f'v_lshrrev_b32 v{vHA}, 5, v{vL}', f'v_lshlrev_b32 v{vHA}, 10, v{vHA}',
               f'v_bfe_u32 v{vHB}, v{vL}, 4, 1', f'v_lshl_add_u32 v{vHA}, v{vHB}, 9, v{vHA}',
               f'v_and_b32 v{vTC}, 15, v{vL}', f'v_lshl_add_u32 v{vHA}, v{vTC}, 4, v{vHA}',
               f'v_lshlrev_b32 v{vHB}, 3, v{vHB}', f'v_lshl_add_u32 v{vHB}, v{vTC}, 4, v{vHB}',
               f'v_lshrrev_b32 v{vTC}, 5, v{vL}', f'v_lshl_add_u32 v{vHB}, v{vTC}, 9, v{vHB}',
               f'v_add_u32 v{vLb}, 4096, v{vL16}'])
        sRBc = sPOLL
        p(f's_min_u32 s{sRBc}, s{sRB}, 3')
        p(f's_lshl_b32 s{sT0}, s{sRBc}, 3')
        p(f's_add_u32 s{sT0}, s{sT0}, s{sW}')
        p.ext(self.off(sFH, sT0, 32, O_FH))
        for y in range(2):
            p.ext([f's_xor_b32 s{sT0}, s{sRHO}, {y}', f's_lshl_b32 s{sT1}, s{sRBc}, 1', f's_add_u32 s{sT0}, s{sT0}, s{sT1}',
                   f's_lshl_b32 s{sT0}, s{sT0}, 2', f's_add_u32 s{sT0}, s{sT0}, s{sW}'] + self.roff(sT2, sT0, 28672, O_H))
            for sl in range(4):
                p.ext([f's_add_u32 s{sT0}, {ROT}, {sl}', f's_and_b32 s{sT0}, s{sT0}, 3', f's_mul_i32 s{sT0}, s{sT0}, 7168',
                       f's_add_u32 s{sY[2*sl+y]}, s{sT2}, s{sT0}'])
        p(f's_lshl_b32 s{sT0}, s{sRBc}, 1')
        p(f's_add_u32 s{sT0}, s{sT0}, s{sRHO}')
        p.ext(self.off(sST5, sT0, 3584, O_ST1))
        if L0:
            p.ext(self.pub_offsets(O_XA + LSTRIDE, O_STA + LSTRIDE, O_FXA + LSTRIDE))
            p.ext([f's_lshl_b32 s{sT1}, s{sJ}, 7', f's_add_u32 s{sT1}, s{sT1}, {F_WQ - 14*8}',
                   f'v_mov_b32 v{PO}, s{sFX}', f'v_mov_b32 v{PO+1}, s{sT1}', f'v_cmp_le_u32 vcc, 14, v{vL}',
                   f'v_cndmask_b32 v{PO}, v{PO}, v{PO+1}, vcc', f'v_add_u32 v{PO}, v{PO}, v{vL8}'])
        p(f'v_lshlrev_b32 v{vTC}, 7, v{vL}')
        seq = [(t, s) for s in range(14) for t in range(4)] + [(t, s) for s in range(14) for t in range(4, 7)]

        def frag(f):
            base, off = (vL16, f * 1024) if f < 56 else (vA1, (f - 56) * 1024)
            return f'ds_read_b128 {vr(RING + 4*(f % 6))}, v{base} offset:{off}'

        def mf(f, u):
            t, s = seq[f]
            return f'{MF16} {vr(ACC+8*t+4*u)}, {vr(RING+4*(f%6))}, {vr(X+4*(2*s+u))}, {vr(ACC+8*t+4*u) if s else 0}'

        def xl(i):
            return f'buffer_load_dwordx4 {vr(X+4*i)}, v{(vL16, vLb)[(i//4)%2]}, {srd(S_WS)}, s{sXO + i//8} offen offset:{(i%4)*1024} sc1'

        def cs_reads(tiles):
            return [f'ds_read_b128 {vr(CS+4*(t%4))}, v{vCSA} offset:{t*64}' for t in tiles]
        PD = 4
        for f in range(PD):
            p(frag(f))
        self.pad()
        if L0:
            self.vpoll(PO, '0', 28)
        else:
            self.vpoll(vL8, f's{sFX}', 14)
        self.stamp('C')
        XP = 8
        for i in range(XP):
            p(xl(i))
        mem, pre = {}, {}
        for f in range(98):
            mem[2 * f] = [frag(f + PD)] if f + PD < 98 and not (f < 56 <= f + PD) else []
            mem[2 * f + 1] = []
            if f < 56 and f % 2 == 0 and f // 2 + XP < 28:
                mem[2 * f + 1] = [xl(f // 2 + XP)]
            if 27 <= f < 41 and f % 2 == 1:
                mem[2 * f + 1] = [self.stats_loads(sST, CS)[(f - 27) // 2]]
            if f % 2 == 0:
                tch = vr(RING + 4 * (f % 6)) + ' ' + vr(RING + 4 * ((f + 1) % 6))
                if f < 56 and f % 4 == 0:
                    tch += ' ' + vr(X + 8 * (f // 4), 8)
                pre[2 * f] = [Touch(tch)]
        i = 2 * 41 + 1
        if not (L0 and (HATT or os.environ.get('NOH'))):
            mem[i] += self.touch(vTC, sH, 0, 56)
        if L0:
            xa = [f'v_add_u32 v{PO}, s{sXD}, v{vTC}', f's_add_u32 s{sT0}, s{sFX}, {LSTRIDE + O_FXA - O_FX1}', f's_add_u32 s{sT1}, s{sXS}, 128']
            for lane, r in ((16, sXS), (17, sT1), (18, sXF), (19, sT0)):
                xa.append(f'v_writelane_b32 v{PO}, s{r}, {lane}')
            mem[i + 2] += xa
            mem[i + 4].append(self.setexec(20) + [f'buffer_load_dword a255, v{PO}, {srd(S_WS)}, 0 offen sc1', 's_mov_b64 exec, -1'])
        for f in (0, 16, 38):
            mem[2 * f + 1] += self.stamp_items(f'g{f}')
        mfs = [mf(f, u) for f in range(98) for u in range(2)]
        side = self.stats_reduce(CS) + [f'v_mov_b32 v{vRSTD}, v{vMEAN}', 's_nop 0', f'v_permlane16_swap_b32 v{vMEAN}, v{vRSTD}']
        p.ext(sched(mfs[:112], pre, mem, side, 2, start=88))
        self.stamp('p4m1')
        self.pad()
        p('s_barrier')
        p.ext(cs_reads([0, 1, 2, 3]))
        self.stamp('p4g1')

        def epi(tiles, tok):
            L = []
            pairs = [tiles[i:i + 2] for i in range(0, len(tiles), 2)]
            n = 0
            for pr in pairs:
                for u in range(2):
                    po = PO + 4 * (n % 2)
                    n += 1
                    for k, t in enumerate(pr):
                        a = ACC + 8 * t + 4 * u
                        for r in (0, 2):
                            L.append(f'v_pk_fma_f32 {vr(a+r,2)}, {vr(CS+4*(t%4)+r,2)}, {vr(vMEAN,2)}, {vr(a+r,2)} op_sel:[0,{u},0] op_sel_hi:[1,{u},1]')
                    for k, t in enumerate(pr):
                        a = ACC + 8 * t + 4 * u
                        for r in range(2):
                            L.append(f'v_cvt_pk_bf16_f32 v{po+2*k+r}, v{a+2*r}, v{a+2*r+1}')
                    for k, t in enumerate(pr):
                        for r in range(2):
                            L.append(f'v_pk_max_i16 v{po+2*k+r}, v{po+2*k+r}, 0')
                    t = pr[0]
                    so, off = (sH, t * 1024) if t < 4 else (sH + 1, (t - 4) * 1024)
                    if len(pr) == 2:
                        L.append(Ins(f'buffer_store_dwordx4 {vr(po)}, v{vHA}, {srd(S_WS)}, s{so} offen offset:{off+u*256}', tok))
                    else:
                        L.append(Ins(f'buffer_store_dwordx2 {vr(po,2)}, v{vHB}, {srd(S_WS)}, s{so} offen offset:{off+u*256}', tok))
            return L
        for f in range(56, 56 + PD):
            p(frag(f))
        p.ext(epi([0, 1, 2, 3], 'h1'))
        if L0:
            self.colsum(1, AC=144, RG=160, T=vT + 4)
            p('s_barrier')
            for f in range(56, 56 + PD):
                pass
        self.stamp('p4e1')
        HR, AC5, NR, PD5, TAIL = 32, 160, 16, 5, 14
        order = ORDER

        def ld(i, y):
            sl, sg = order[i] // 7, order[i] % 7
            return (f'buffer_load_dwordx4 {vr(HR+((i%NR)*2+y)*4)}, v{(vL16, vLb)[sg//4]}, {srd(S_WS)}, s{sY[2*sl+y]} '
                    f'offen offset:{(sg%4)*1024} sc1')

        def m5(i, x):
            y, z = x >> 1, x & 1
            return f'{MF32} {vr(AC5+16*x,16)}, {ar(order[i]*8+z*4)}, {vr(HR+((i%NR)*2+y)*4)}, {vr(AC5+16*x,16) if i else 0}'
        pre2 = {i - 112: v for i, v in pre.items() if i >= 112}
        mem2 = {i - 112: v for i, v in mem.items() if i >= 112}
        NW2A = 14 if L0 else 0
        mem2[19] = self.publish_items(['h1'], sHF) + mem2[19]
        mem2[57] += self.peek_issue(vFLG, f's{sFH}', 8)
        mem2[59] += cs_reads([4, 5])
        mem2[61] += cs_reads([6])
        mem2[63] += self.peek_check(vFLG, f's{sFH}', 8)
        for k in range(2 * PD5):
            mem2[65 + 2 * k].append(ld(k // 2, k % 2))
        p.ext(sched(mfs[112:], pre2, mem2, [], 2, start=0))
        self.stamp('p4g2')
        p.ext(epi([4, 5, 6], 'h2'))
        self.stamp('p4')
        lskip, ljoin = p.newlabel('p5skip'), p.newlabel('p5join')
        self.pad()
        p(f's_cmp_ge_u32 s{sM}, 28')
        p(f's_cbranch_scc1 {lskip}')
        idle = ['s_waitcnt vmcnt(0)'] + self.publish_items([], sHF, 1024)
        if L0:
            idle += [f's_lshl_b32 s{sT0}, s{sCB}, 2', f's_add_u32 s{sT0}, s{sT0}, s{sW}', f's_lshl_b32 s{sT1}, s{sT0}, 7',
                     f's_add_u32 s{sT1}, s{sT1}, {F_WQ}'] + self.poll_loop(vL8, f's{sT1}', 14)
            idle += [f's_mul_i32 s{sT1}, s{sT0}, 86016'] + self.prefetch(vTC, sT1, WQT, 57344)
            idle += ['s_waitcnt vmcnt(0)', 's_barrier'] + self.wq_dma((0, 1)) + [f's_branch {ljoin}']
        else:
            idle += [f's_cmp_lg_u32 s{sM}, 28', 's_cbranch_scc1 L_fin', f's_cmp_lg_u32 s{sW}, 0', 's_cbranch_scc1 L_fin',
                     f's_sleep {os.environ.get("WBSLEEP", 20)}'] + ([] if os.environ.get('NOWB') else ['buffer_wbl2 sc1']) + ['s_waitcnt vmcnt(0)', 's_branch L_fin']
        self.tail.append((lskip, idle))
        mfs, mem = [], {}
        w2b = []
        stl = self.stats_loads(sST5, CS)
        for i in range(28):
            xs = (0, 1, 2, 3) if i < 28 - TAIL else (1, 2, 3)
            for n, x in enumerate(xs):
                k = len(mfs)
                mfs.append(m5(i, x))
                mem[k] = []
                if i == 3 and n == 3:
                    mem[k] += self.publish_items(['h2'], sHF, 1024)
                if i == 8 and n == 3:
                    mem[k] += self.peek_issue(vFLG, f's{sFH}', 8, 1024)
                if i == 11 and n == 0:
                    mem[k] += self.stamp_items('pk0') + self.peek_check(vFLG, f's{sFH}', 8, 1024) + self.stamp_items('pk1')
                if i + PD5 < 28 and n < 2:
                    mem[k].append(ld(i + PD5, n))
                elif w2b and n >= 2:
                    mem[k].append(w2b.pop(0))
                elif i + PD5 >= 28 and stl:
                    mem[k].append(stl.pop(0))
        assert not w2b and not stl
        p.ext(sched(mfs, {}, mem, [], 6))
        self.stamp('p5mm')
        mem = {}
        for i, x in enumerate(self.reduce_writes(AC5)):
            mem.setdefault(2 + i, []).append(x)
        p.ext(sched([m5(i, 0) for i in range(28 - TAIL, 28)], {}, mem, self.stats_reduce(CS), 5, start=0))
        self.stamp('p5rw')
        self.reduce_finish(AC5, 32)
        self.stamp('p5rd')
        P = 96
        for i in range(8):
            p(f'v_pk_fma_f32 {vr(AC5+2*i,2)}, {vr(AC5+2*i,2)}, {vr(vMEAN,2)}, {vr(vRES+2*i,2)} op_sel:[0,1,0] op_sel_hi:[1,1,1]')
            p(f'v_cvt_pk_bf16_f32 v{P+i}, v{AC5+2*i}, v{AC5+2*i+1}')
        if L0:
            self.x_store(P, vL16, (0, 1024))
            wq = self.wq_dma((0, 1))
            p.ext(wq[:9])
            self.publish(['xst'], sXF)
            p.ext(wq[9:])
            self.stamp('p5pub')
            p.ext(self.res_unpack(P))
            p.label(ljoin)
            p(f's_add_u32 s{sLB}, s{sLB}, {LSTRIDE}')
            p('s_waitcnt vmcnt(0) lgkmcnt(0)')
            p('s_barrier')
            return
        p(f'v_and_b32 v{vT+4}, 31, v{vL}')
        p(f'v_mul_u32_u24 v{vT+4}, 896, v{vT+4}')
        p(f'v_lshrrev_b32 v{vT+5}, 5, v{vL}')
        p(f'v_lshl_add_u32 v{vT+4}, v{vT+5}, 4, v{vT+4}')
        for hf in range(2):
            p(f'v_permlane32_swap_b32 v{P+4*hf}, v{P+4*hf+2}')
            p(f'v_permlane32_swap_b32 v{P+4*hf+1}, v{P+4*hf+3}')
            p(f'buffer_store_dwordx4 {vr(P+4*hf)}, v{vT+4}, {srd(S_OUT)}, s{sQOFF} offen offset:{32*hf}')
        p('s_cmp_lg_u32 s2, %d' % (27 * 8 + 7))
        p('s_cbranch_scc1 L_fin')
        p(f's_mov_b32 s{sT0}, {WS_EPOCH}')
        p.ext(self.flag_sc1(sT0))

    def build(self):
        p = self.p
        self.L = 0
        self.prologue()
        for self.L in range(2):
            for ph in ('p1', 'attn', 'p3', 'p45'):
                getattr(self, ph)()
        p.label('L_fin')
        self.stamp('end')
        self.stamp_dump()
        if os.environ.get('CALIB'):
            p.label('L_calib')
            p('s_memrealtime s[96:97]')
            p('s_waitcnt lgkmcnt(0)')
            p('s_sub_u32 s96, s96, s100')
            p(f's_cmp_lt_u32 s96, {int(os.environ["CALIB"])}')
            p('s_cbranch_scc1 L_calib')
        p.label('L_end')
        p('s_endpgm')
        for lab, code in self.tail:
            p.label(lab, reset='all')
            p.ext(code)
        p.label('L_codeend')
        self.emit_walker()
        p.insert_waits()
        probs = p.fix_hazards()
        for x in probs:
            print('branch hazard padded', x, file=sys.stderr)
        mx = p.maxregs()
        head = open(os.path.join(os.path.dirname(__file__), '..', 'cdna_kernels', NAME + '.s.ref')).read().split('\n')
        hdr = [l for l in head if l.startswith(';') and '@launch' not in l]
        out = '\n'.join(hdr) + f'\n; @launch grid=(256,1,1) block=(256,1,1) lds={LDS_BYTES}\n'
        out += '.amdgcn_target "amdgcn-amd-amdhsa--gfx950"\n.text\n'
        out += f'.globl {NAME}_kernel\n.p2align 8\n.type {NAME}_kernel,@function\n{NAME}_kernel:\n'
        out += p.text()
        out += '.fill 64, 4, 0xbf800000\n'
        out += f'''.section .rodata,"a"
.p2align 6
.amdhsa_kernel {NAME}_kernel
  .amdhsa_next_free_vgpr 512
  .amdhsa_next_free_sgpr 102
  .amdhsa_accum_offset 256
  .amdhsa_group_segment_fixed_size 0
  .amdhsa_kernarg_size 72
  .amdhsa_user_sgpr_count 2
  .amdhsa_user_sgpr_kernarg_segment_ptr 1
  .amdhsa_system_sgpr_workgroup_id_x 1
  .amdhsa_float_denorm_mode_32 3
.end_amdhsa_kernel
'''
        print('regs', mx, 'instrs', sum(1 for x in p.items if isinstance(x, Ins)), file=sys.stderr)
        return out


if __name__ == '__main__':
    stop = int(sys.argv[2]) if len(sys.argv) > 2 else None
    k = K(stop if stop and stop > 0 else None, dbg=sys.argv[3].split(',') if len(sys.argv) > 3 else None)
    open(sys.argv[1], 'w').write(k.build())
    if k.dbg:
        open(os.path.join(os.path.dirname(sys.argv[1]), 'stamps.txt'), 'w').write(' '.join(k.stamps))
```

```python
import sys, os, math, struct
sys.path.insert(0, os.path.dirname(__file__))
from asmlib import Prog, Ins, Wait, Mark, Label, Touch

NAME = 'interleave_layers__sliding_block__dense_activation_relu__prompt'

WS_EPOCH = 0
WS_PUR = 0x1000
F_WQ = 0x2000
F_W1 = 0x2800
F_W2 = 0x3000
F_WO = 0x4000
WQT = 0x100000
W1T = 0x250000
WOT = 0x3D8000
W2T = 0x448000
TEAM0 = 0x600000
LSTRIDE = 0x230000
STRIDE = 2 * LSTRIDE
O_KV = 0x000000
O_O = 0x080000
O_X1 = 0x0C0000
O_XA = 0x0F8000
O_ST1 = 0x130000
O_STA = 0x138000
O_FKV = 0x140000
O_FO = 0x144000
O_FX1 = 0x144400
O_FXA = 0x144800
O_FH = 0x145000
O_H = 0x150000
WS_BYTES = TEAM0 + 8 * STRIDE

LKV = 100352
L_CSQ = 149504
L_CS1 = L_CSQ + 512
L_STAMP = 160 * 1024 - 512
L_PUR = L_CS1 + 512 + 1536
L_CSP = L_CS1 + 512
LDS_BYTES = 163840

S_X, S_WQ, S_WO, S_W1, S_W2, S_OUT, S_WS = 8, 12, 16, 20, 24, 28, 32
S_WSP = 36
sTEAM, sM, sA, sJ, sW, sRB, sCB, sLB = 40, 41, 42, 43, 44, 45, 46, 47
sF, sPURE, sLAYER, sTP = 48, 50, 51, 52
sQOFF = 53
sIMP = 54
sPERM, sONES = 56, 57
sRHO, sNU = 58, 59
sT0, sT1, sT2, sT3, sT4, sT5 = 60, 61, 62, 63, 64, 65
sCNT = 66
sTB = 71
sJFL = 67
sXD, sXS, sXF = 68, 69, 70
sPOLL = 72
sRQ, sLQ = 76, 77
sO = 80

vL, vL16, vA1, vL8 = 0, 1, 2, 3
vSTA = 4
vFLG = 5
vRW = 6
vX1A = 10
vCSA = 11
vF = 12
vMEAN, vRSTD = 14, 15
vT = 16
vRES = 240

POLL_MAX = 1 << 16
ROT = {'rb': f's{sRB}', 'team': f's{sTEAM}', '': '0'}[os.environ.get('ROT', '')]
ROT1 = {'a': f's{sA}', 'team': f's{sTEAM}', '': '0'}[os.environ.get('ROT1', '')]
HATT = bool(os.environ.get('HATT'))
ORDER = [7 * sl + sg for sl in range(4) for sg in range(4)] + [7 * sl + sg for sl in range(4) for sg in range(4, 7)]
MF32 = 'v_mfma_f32_32x32x16_bf16'
MF16 = 'v_mfma_f32_16x16x32_bf16'


def srd(b):
    return f's[{b}:{b+3}]'


def vr(b, n=4):
    return f'v[{b}:{b+n-1}]' if n > 1 else f'v{b}'


def ar(b, n=4):
    return f'a[{b}:{b+n-1}]'


def f32bits(x):
    return struct.unpack('<I', struct.pack('<f', x))[0]


def is_mem(x):
    if isinstance(x, (list, tuple)):
        return any(is_mem(y) for y in x)
    if isinstance(x, (Wait, Touch, Label, Mark)):
        return False
    t = x.text if isinstance(x, Ins) else x if isinstance(x, str) else ''
    return t.startswith('ds_') or t.startswith('buffer_') or t.startswith('global_')


def cost(x):
    if isinstance(x, (list, tuple)):
        return sum(cost(y) for y in x)
    if isinstance(x, (Wait, Touch)):
        return 1
    if isinstance(x, (Label, Mark)):
        return 0
    t = x.text if isinstance(x, Ins) else x
    return 2 if t.startswith('v_exp') or t.startswith('v_rsq') or t.startswith('v_rcp') or t.startswith('v_permlane') else 1


def sched(mfs, pre, mem, side, cap, start=0):
    out = []
    side = list(side)
    for i, m in enumerate(mfs):
        out += pre.get(i, [])
        out.append(m)
        n = 0
        for x in mem.get(i, []):
            out.append(x)
            n += cost(x)
        if pre.get(i + 1):
            n += 1
        valu = False
        if i >= start:
            while side and n + cost(side[0]) <= cap:
                if is_mem(side[0]) and valu:
                    break
                x = side.pop(0)
                if not is_mem(x) and not isinstance(x, (Wait, Touch)):
                    t = x[0] if isinstance(x, (list, tuple)) else x
                    if any((y.text if isinstance(y, Ins) else y).startswith('v_') for y in (x if isinstance(x, (list, tuple)) else [x]) if isinstance(y, (Ins, str))):
                        valu = True
                out.append(x)
                n += cost(x)
            if side and n == 0 and cost(side[0]) > cap:
                out.append(side.pop(0))
    return out + side


class K:
    def __init__(self, stop=None, dbg=False):
        self.p = Prog()
        self.stop = stop
        self.dbg = dbg
        self.stamps = []
        self.tail = []
        self.pads = []

    def stamp(self, name):
        if not self.dbg or (name not in self.dbg and name not in ('start', 'end')):
            return
        k = len(self.stamps)
        assert k < 32
        self.stamps.append(name)
        p = self.p
        p('s_memrealtime s[96:97]' if 'RT' in self.dbg else 's_memtime s[96:97]')
        if k == 0:
            p('v_readfirstlane_b32 s100, v0')
            p('s_lshr_b32 s100, s100, 6')
            p('s_lshl_b32 s101, s2, 2')
            p('s_add_u32 s100, s100, s101')
            p('s_lshl_b32 s100, s100, 7')
            p('s_add_u32 s100, s100, 0x40000')
        p('s_waitcnt lgkmcnt(0)')
        if k == 0:
            p('v_accvgpr_write_b32 a253, s96')
            return
        p('v_accvgpr_write_b32 a252, s96')
        p('s_mov_b64 exec, 1')
        p(f'buffer_store_dword a252, off, {srd(S_WS)}, s100 offset:{4*k}')
        p('s_mov_b64 exec, -1')

    def stamp_items(self, name):
        n = len(self.p.items)
        self.stamp(name)
        L = self.p.items[n:]
        del self.p.items[n:]
        return [L] if L else []

    def stamp_dump(self):
        if self.dbg:
            self.p(f'buffer_store_dword a253, off, {srd(S_WS)}, s100')

    def dma(self, srdb, voff, sreg, simm, m0, tok, sc='', n=1):
        mr, mi = m0
        L = [f's_add_u32 m0, s{mr}, {mi}' if mr is not None else f's_mov_b32 m0, {mi}',
             f's_add_u32 s{sT5}, s{sreg}, {simm}']
        for k in range(n):
            L.append(Ins(f'buffer_load_dwordx4 v{voff}, {srd(srdb)}, s{sT5} offen offset:{1024*k} {sc} lds', tok))
        return L

    @staticmethod
    def setexec(nl):
        if nl <= 32:
            return [f's_mov_b64 exec, {(1 << nl) - 1:#x}'] if nl < 32 else ['s_mov_b32 exec_hi, 0']
        return [f's_mov_b32 exec_hi, {(1 << (nl - 32)) - 1:#x}']

    def poll_loop(self, voff, soff, nl, imm=0):
        p = self.p
        lp, lo = p.newlabel('poll'), p.newlabel('pollout')
        return self.setexec(nl) + [f's_mov_b32 s{sCNT}, 0', Label(lp),
                f'buffer_load_dwordx2 {vr(vT + 14, 2)}, v{voff}, {srd(S_WS)}, {soff} offen offset:{imm} sc1',
                f's_add_u32 s{sCNT}, s{sCNT}, 1', f's_cmp_gt_u32 s{sCNT}, {POLL_MAX}', f's_cbranch_scc1 {lo}',
                's_waitcnt vmcnt(0)', f'v_cmp_ne_u64 vcc, s[{sF}:{sF+1}], {vr(vT + 14, 2)}', f's_cbranch_vccnz {lp}',
                Label(lo), 's_mov_b64 exec, -1']

    def vpoll(self, voff, soff, nl, acquire=True):
        p = self.p
        p.ext(self.poll_loop(voff, soff, nl))
        if acquire:
            lslow, lback = p.newlabel('acq'), p.newlabel('acqback')
            p(f's_cmp_lg_u32 s{sPURE}, 0')
            p(f's_cbranch_scc0 {lslow}')
            p.label(lback)
            self.tail.append((lslow, ['buffer_inv sc1', 's_waitcnt vmcnt(0)', f's_branch {lback}']))
        p.mark('drained_vm')

    def peek_issue(self, voff, soff, nl, imm=0):
        return [self.setexec(nl) + [f'buffer_load_dwordx2 {vr(vT + 14, 2)}, v{voff}, {srd(S_WS)}, {soff} offen offset:{imm} sc1',
                                    's_mov_b64 exec, -1']]

    def peek_check(self, voff, soff, nl, imm=0):
        p = self.p
        lslow, lback, lacq = p.newlabel('peek'), p.newlabel('peekback'), p.newlabel('peekacq')
        self.tail.append((lslow, self.poll_loop(voff, soff, nl, imm) +
                          [f's_cmp_lg_u32 s{sPURE}, 0', f's_cbranch_scc1 {lback}', 'buffer_inv sc1', 's_waitcnt vmcnt(0)',
                           f's_branch {lback}']))
        return [[Touch(vr(vT + 14, 2))] + self.setexec(nl) +
                [f'v_cmp_ne_u64 vcc, s[{sF}:{sF+1}], {vr(vT + 14, 2)}', 's_mov_b64 exec, -1',
                 f's_or_b64 vcc, vcc, s[{sIMP}:{sIMP+1}]', f's_cbranch_scc1 {lslow}', Label(lback)]]

    def publish_items(self, toks, soff, imm=0):
        p = self.p
        lslow, lback = p.newlabel('pubslow'), p.newlabel('pubback')
        self.tail.append((lslow, [
            'buffer_wbl2 sc1', 's_waitcnt vmcnt(0)',
            f'buffer_store_dwordx2 {vr(vF, 2)}, off, {srd(S_WS)}, s{soff} offset:{imm} sc1',
            f's_branch {lback}']))
        return [[Wait(toks), 's_mov_b64 exec, 1', f's_cmp_lg_u32 s{sPURE}, 0', f's_cbranch_scc0 {lslow}',
                 f'buffer_store_dwordx2 {vr(vF, 2)}, off, {srd(S_WS)}, s{soff} offset:{imm}', Label(lback), 's_mov_b64 exec, -1']]

    def publish(self, toks, soff, imm=0):
        self.p.ext(self.publish_items(toks, soff, imm))

    def flag_sc1(self, soff):
        return ['s_mov_b64 exec, 1', f'buffer_store_dwordx2 {vr(vF,2)}, off, {srd(S_WS)}, s{soff} sc1', 's_mov_b64 exec, -1']

    def flag_opt(self, soff):
        p = self.p
        l = p.newlabel('noflag')
        p(f's_cmp_eq_u32 s{soff}, -1')
        p(f's_cbranch_scc1 {l}')
        p.mark('maybe_begin')
        p.ext(self.flag_sc1(soff))
        p.mark('maybe_end')
        p.label(l)

    def stats_loads(self, soff, dst):
        return [f'buffer_load_dwordx2 {vr(dst + 2*i, 2)}, v{vSTA}, {srd(S_WS)}, s{soff} offen offset:{256*i} sc1' for i in range(7)]

    def stats_reduce(self, src):
        L = []
        for i in range(1, 7):
            L.append(f'v_add_f32 v{src}, v{src}, v{src+2*i}')
            L.append(f'v_add_f32 v{src+1}, v{src+1}, v{src+2*i+1}')
        s, q, t0, t1 = src, src + 1, src + 2, src + 3
        return L + [
            f'v_mov_b32 v{t0}, v{s}', f'v_mov_b32 v{t1}, v{q}', 's_nop 0',
            f'v_permlane32_swap_b32 v{s}, v{t0}', f'v_permlane32_swap_b32 v{q}, v{t1}',
            f'v_add_f32 v{s}, v{s}, v{t0}', f'v_add_f32 v{q}, v{q}, v{t1}',
            f'v_mul_f32 v{vMEAN}, {f32bits(-1.0/448):#x}, v{s}',
            f'v_mul_f32 v{q}, {f32bits(1.0/448):#x}, v{q}',
            f'v_fma_f32 v{q}, -v{vMEAN}, v{vMEAN}, v{q}',
            f'v_max_f32 v{q}, 0, v{q}',
            f'v_add_f32 v{q}, {f32bits(1e-5):#x}, v{q}',
            f'v_rsq_f32 v{vRSTD}, v{q}',
        ]

    def off(self, dst, idx_reg, mul, add):
        return [f's_mul_i32 s{dst}, s{idx_reg}, {mul}', f's_add_u32 s{dst}, s{dst}, s{sLB}', f's_add_u32 s{dst}, s{dst}, {add}']

    def xoff(self, dst, idx_reg, mul, add):
        return [f's_add_u32 s{sT3}, s{sLB}, {add}', f's_add_u32 s{sT4}, s{sTB}, {O_XA}', f's_cmp_lg_u32 s{sPURE}, 0',
                f's_cselect_b32 s{sT3}, s{sT4}, s{sT3}', f's_mul_i32 s{dst}, s{idx_reg}, {mul}', f's_add_u32 s{dst}, s{dst}, s{sT3}']

    def roff(self, dst, idx_reg, mul, add):
        return [f's_cmp_lg_u32 s{sPURE}, 0', f's_cselect_b32 s{sT3}, s{sTB}, s{sLB}',
                f's_mul_i32 s{dst}, s{idx_reg}, {mul}', f's_add_u32 s{dst}, s{dst}, s{sT3}', f's_add_u32 s{dst}, s{dst}, {add}']

    def pub_offsets(self, xoff, stoff, foff):
        return [f's_lshl_b32 s{sT0}, s{sRB}, 1', f's_add_u32 s{sT0}, s{sT0}, s{sRHO}',
                f's_lshl_b32 s{sT1}, s{sCB}, 1', f's_add_u32 s{sT1}, s{sT1}, s{sNU}',
                f's_mul_i32 s{sT2}, s{sT0}, 14', f's_add_u32 s{sT2}, s{sT2}, s{sT1}'] + \
            self.xoff(sXD, sT2, 2048, xoff) + self.off(sXS, sT2, 256, stoff) + \
            [f's_lshl_b32 s{sT0}, s{sT0}, 4', f's_add_u32 s{sT0}, s{sT0}, s{sT1}'] + self.off(sXF, sT0, 8, foff) + \
            [f's_cmp_ge_u32 s{sM}, 28'] + [f's_cselect_b32 s{r}, {WS_PUR}, s{r}' for r in (sXD, sXS, sXF)]

    def x_store(self, P, va, offs, sc=''):
        p = self.p
        S, Q2, t0, t1 = vT + 6, vT + 7, vT + 8, vT + 9
        for k in range(2):
            p(f'buffer_store_dwordx4 {vr(P+4*k)}, v{va}, {srd(S_WS)}, s{sXD} offen offset:{offs[k]} {sc}', tok='xst')
        p(f'v_mov_b32 v{t0}, s{sONES}')
        p(f'v_dot2_f32_bf16 v{S}, v{P}, v{t0}, 0')
        p(f'v_dot2_f32_bf16 v{Q2}, v{P}, v{P}, 0')
        for i in range(1, 8):
            p(f'v_dot2_f32_bf16 v{S}, v{P+i}, v{t0}, v{S}')
            p(f'v_dot2_f32_bf16 v{Q2}, v{P+i}, v{P+i}, v{Q2}')
        p(f'v_mov_b32 v{t0}, v{S}')
        p(f'v_mov_b32 v{t1}, v{Q2}')
        p(f'v_permlane32_swap_b32 v{S}, v{t0}')
        p(f'v_permlane32_swap_b32 v{Q2}, v{t1}')
        p(f'v_add_f32 v{S}, v{S}, v{t0}')
        p(f'v_add_f32 v{Q2}, v{Q2}, v{t1}')
        p('s_mov_b32 exec_hi, 0')
        p(f'buffer_store_dwordx2 {vr(S,2)}, v{vL8}, {srd(S_WS)}, s{sXS} offen {sc}', tok='xst')
        p('s_mov_b64 exec, -1')

    def res_unpack(self, P):
        L = []
        for q in range(8):
            L.append(f'v_lshlrev_b32 v{vRES+2*q}, 16, v{P+q}')
            L.append(f'v_and_b32 v{vRES+2*q+1}, 0xffff0000, v{P+q}')
        return L

    def prefetch(self, v128, sreg, base, nbytes):
        L = []
        o = 0
        while o < nbytes:
            oo = min(o, nbytes - 8192)
            L += [f's_add_u32 s{sT5}, s{sreg}, {base + oo}', f'buffer_load_dword a255, v{v128}, {srd(S_WS)}, s{sT5} offen sc1']
            o += 8192
        return L

    def touch(self, v128, sreg, imm, nlines):
        L = [f's_add_u32 s{sT5}, s{sreg}, {imm}']
        if nlines < 64:
            L += self.setexec(nlines)
        L.append(f'buffer_load_dword a255, v{v128}, {srd(S_WS)}, s{sT5} offen sc1')
        if nlines < 64:
            L.append('s_mov_b64 exec, -1')
        return [L]

    def wq_dma(self, tiles):
        sg, sl = sPOLL + 2, sPOLL + 3
        L = [f's_mul_i32 s{sg}, s{sJ}, 86016', f's_mul_i32 s{sl}, s{sW}, 7168', f's_add_u32 s{sg}, s{sg}, s{sl}']
        for tau in tiles:
            for o, n in ((0, 4), (4096, 3)):
                d = self.dma(S_WS, vL16, sg, WQT + tau * 28672 + o, (sl, tau * 28672 + o), 'wq', 'sc1', n)
                L += [d[:3]] + d[3:]
        return L

    def w1_dma(self, part):
        sg, sl = sPOLL, sPOLL + 1
        L = []
        if part == 0:
            for hf in range(2):
                L += [f's_and_b32 s{sl}, {ROT1}, 1', f's_xor_b32 s{sl}, s{sl}, {hf}', f's_lshl_b32 s{sg}, s{sW}, 1', f's_add_u32 s{sl}, s{sl}, s{sg}',
                      f's_mul_i32 s{sl}, s{sl}, 7168', f's_mul_i32 s{sg}, s{sJ}, 100352', f's_add_u32 s{sg}, s{sg}, s{sl}']
                for o, n in ((0, 4), (4096, 3)):
                    d = self.dma(S_WS, vL16, sg, W1T + o, (sl, o), 'w1', 'sc1', n)
                    L += [d[:3]] + d[3:]
            return L
        else:
            L += [f's_mul_i32 s{sg}, s{sJ}, 100352', f's_mul_i32 s{sl}, s{sW}, 10240', f's_add_u32 s{sg}, s{sg}, s{sl}']
            groups = [(0, 4), (4096, 4), (8192, 2)]
            base = 57344
        for o, n in groups:
            d = self.dma(S_WS, vL16, sg, W1T + base + o, (sl, base + o), 'w1', 'sc1', n)
            L += [d[:3]] + d[3:]
        if part == 1:
            L += [f's_sub_u32 s{sg}, s{sg}, s{sl}', f's_lshl_b32 s{sl}, s{sNU}, 10', f's_add_u32 s{sg}, s{sg}, s{sl}']
            L.append(self.dma(S_WS, vL16, sg, W1T + 98304, (sl, 98304), 'w1', 'sc1', 1))
        return L

    def w2_setup(self, sbase, vz):
        return [f's_lshl_b32 s{sbase}, s{sCB}, 2', f's_add_u32 s{sbase}, s{sbase}, s{sW}', f's_mul_i32 s{sbase}, s{sbase}, 57344',
                f's_lshl_b32 s{sT1}, s{sNU}, 10', f'v_xor_b32 v{vz[0]}, s{sT1}, v{vL16}', f'v_xor_b32 v{vz[1]}, 1024, v{vz[0]}']

    def w2_loads(self, sbase, vz):
        L = []
        for sl in range(4):
            pre = [f's_add_u32 s{sT3}, {ROT}, {sl}', f's_and_b32 s{sT3}, s{sT3}, 3', f's_mul_i32 s{sT3}, s{sT3}, 14336',
                   f's_add_u32 s{sT3}, s{sT3}, s{sbase}']
            for sg in range(7):
                ks = 7 * sl + sg
                g = pre + [f's_add_u32 s{sT4}, s{sT3}, {W2T + sg*2048}',
                           f'buffer_load_dwordx4 {ar(ks*8)}, v{vz[0]}, {srd(S_WS)}, s{sT4} offen sc1']
                pre = []
                L += [g, f'buffer_load_dwordx4 {ar(ks*8+4)}, v{vz[1]}, {srd(S_WS)}, s{sT4} offen sc1']
        return L

    def lane_consts(self):
        p = self.p
        t0, t1 = vT + 6, vT + 7
        p(f'v_add_u32 v{vA1}, 57344, v{vL16}')
        p(f'v_and_b32 v{vSTA}, 31, v{vL}')
        p(f'v_lshlrev_b32 v{vSTA}, 3, v{vSTA}')
        p(f'v_lshrrev_b32 v{t0}, 5, v{vL}')
        p(f'v_mul_u32_u24 v{t1}, {7*256}, v{t0}')
        p(f'v_add_u32 v{vSTA}, v{vSTA}, v{t1}')
        p(f'v_lshrrev_b32 v{vFLG}, 2, v{vL}')
        p(f'v_lshlrev_b32 v{vFLG}, 7, v{vFLG}')
        p(f'v_and_b32 v{t1}, 3, v{vL}')
        p(f'v_lshl_add_u32 v{vFLG}, v{t1}, 3, v{vFLG}')
        for x in range(1, 4):
            p(f's_xor_b32 s{sT0}, s{sW}, {x}')
            p(f's_mul_i32 s{sT0}, s{sT0}, 12288')
            p(f's_add_u32 s{sT0}, s{sT0}, {LKV + (x-1)*4096}')
            p(f'v_add_u32 v{vRW+x-1}, s{sT0}, v{vL16}')
        p(f's_mul_i32 s{sT0}, s{sW}, 12288')
        p(f's_add_u32 s{sT0}, s{sT0}, {LKV}')
        p(f'v_add_u32 v{vRW+3}, s{sT0}, v{vL16}')
        p(f'v_bfe_u32 v{vX1A}, v{vL}, 4, 1')
        p(f'v_lshlrev_b32 v{vX1A}, 10, v{vX1A}')
        p(f'v_lshl_add_u32 v{vX1A}, v{t0}, 8, v{vX1A}')
        p(f'v_and_b32 v{t1}, 15, v{vL}')
        p(f'v_lshl_add_u32 v{vX1A}, v{t1}, 4, v{vX1A}')

    def pad(self):
        p = self.p
        k = len(self.pads)
        self.pads.append(f'L_pad{k}')
        p(f's_branch L_padskip{k}')
        p.label(f'L_pad{k}')
        p('s_setpc_b64 s[98:99]')
        p.label(f'L_padskip{k}')

    def emit_walker(self):
        L = []
        labs = [f'L_walk{w}' for w in range(4)]
        for w in range(1, 4):
            L += [Ins(f's_cmp_eq_u32 s{sW}, {w}'), Ins(f's_cbranch_scc1 {labs[w]}')]
        for w in range(4):
            if w:
                L.append(Label(labs[w]))
            for x in self.pads[w::4]:
                L.append(Ins(f's_call_b64 s[98:99], {x}'))
            if w < 3:
                L.append(Ins('s_branch L_walkend'))
        L.append(Label('L_walkend'))
        self.p.items[self.walker_at:self.walker_at] = L

    def rawq(self, tau, i):
        return (self.dma(S_WQ, self.vDQ, sRQ, (448, 896, 0)[tau] * 2 + i * 16 * 2688, (sLQ, tau * 28672 + i * 1024), f'rq{tau}{i}'))

    def xform(self, tau, R, vcs, vones, between=None):
        p = self.p

        def fin(i):
            p(f'ds_write_b128 v{self.vWQ}, {vr(R+4*i)} offset:{tau*28672+i*1024}')
            for q in range(4):
                p(f'v_dot2_f32_bf16 v{vcs}, v{R+4*i+q}, v{vones}, {f"v{vcs}" if i or q else 0}')
        for i in range(7):
            p.wait(f'rq{tau}{i}')
            for jj in range(2):
                p(f'ds_read_b64_tr_b16 {vr(R+4*i+2*jj,2)}, v{self.vTQ} offset:{tau*28672+i*1024+jj*512}')
            if between:
                between(i)
            if i >= 1:
                fin(i - 1)
        fin(6)

    def cs_partial(self, taus, vcs, t2, t3):
        p = self.p
        for k, tau in enumerate(taus):
            p(f'v_mov_b32 v{t2}, v{vcs+k}')
            p(f'v_permlane32_swap_b32 v{vcs+k}, v{t2}')
            p(f'v_add_f32 v{vcs+k}, v{vcs+k}, v{t2}')
        p(f'v_and_b32 v{t2}, 31, v{vL}')
        p(f'v_lshlrev_b32 v{t2}, 2, v{t2}')
        p(f's_mul_i32 s{sT0}, s{sW}, 384')
        p(f's_add_u32 s{sT0}, s{sT0}, {L_CSP}')
        p(f'v_add_u32 v{t3}, s{sT0}, v{t2}')
        for k, tau in enumerate(taus):
            p(f'ds_write_b32 v{t3}, v{vcs+k} offset:{tau*128}')

    def cs_sum(self, taus, R, t2, t3):
        p = self.p
        p(f'v_add_u32 v{t3}, {L_CSP}, v{t2}')
        for k, tau in enumerate(taus):
            for w in range(4):
                p(f'ds_read_b32 v{R+4*k+w}, v{t3} offset:{w*384+tau*128}')
        p(f'v_add_u32 v{t3}, {L_CSQ}, v{t2}')
        for k, tau in enumerate(taus):
            r = R + 4 * k
            p(f'v_add_f32 v{r}, v{r}, v{r+1}')
            p(f'v_add_f32 v{r+2}, v{r+2}, v{r+3}')
            p(f'v_add_f32 v{r}, v{r}, v{r+2}')
            p(f'ds_write_b32 v{t3}, v{r} offset:{tau*128}')
        p('s_waitcnt lgkmcnt(0)')

    def prologue(self):
        p = self.p
        t0, t1, t2, t3 = vT, vT + 1, vT + 2, vT + 3
        self.vDQ, self.vTQ, self.vWQ = vDQ, vTQ, vWQ = vT + 10, vT + 11, vT + 12
        p('s_cmp_ge_u32 s2, 256')
        p('s_cbranch_scc1 L_end')
        p(f's_load_dwordx16 s[{sO}:{sO+15}], s[0:1], 0')
        p(f's_load_dwordx2 s[{S_WSP}:{S_WSP+1}], s[0:1], 64')
        p(f's_getpc_b64 s[{sT0}:{sT0+1}]')
        p.label('L_pc')
        p(f'v_lshlrev_b32 v{t2}, 7, v0')
        p(f'global_load_dword a255, v{t2}, s[{sT0}:{sT0+1}]')
        p(f'v_add_u32 v{t2}, 0x8000, v{t2}')
        p(f'v_min_u32 v{t2}, L_codeend-L_pc, v{t2}')
        p(f'global_load_dword a255, v{t2}, s[{sT0}:{sT0+1}]')
        if os.environ.get('CALIB'):
            p('s_memrealtime s[100:101]')
        self.stamp('start')
        p(f'v_lshrrev_b32 v{vT}, 6, v0')
        p(f'v_and_b32 v{vL}, 63, v0')
        p(f'v_readfirstlane_b32 s{sW}, v{vT}')
        p(f's_lshr_b32 s{sM}, s2, 3')
        p(f's_and_b32 s{sTEAM}, s2, 7')
        p(f's_mul_i32 s{sRB}, s{sM}, 37')
        p(f's_lshr_b32 s{sRB}, s{sRB}, 8')
        p(f's_mul_i32 s{sT0}, s{sRB}, 7')
        p(f's_sub_u32 s{sCB}, s{sM}, s{sT0}')
        p(f's_lshr_b32 s{sRHO}, s{sW}, 1')
        p(f's_and_b32 s{sNU}, s{sW}, 1')
        p(f's_lshl_b32 s{sT0}, s{sTEAM}, 2')
        p(f's_add_u32 s{sT0}, s{sT0}, s{sRB}')
        p(f's_lshl_b32 s{sT1}, s{sT0}, 1')
        p(f's_add_u32 s{sT1}, s{sT1}, s{sRHO}')
        p(f's_mul_i32 s{sQOFF}, s{sT1}, {32*896}')
        p(f's_lshl_b32 s{sT1}, s{sCB}, 7')
        p(f's_add_u32 s{sQOFF}, s{sQOFF}, s{sT1}')
        p(f's_lshl_b32 s{sT1}, s{sNU}, 6')
        p(f's_add_u32 s{sQOFF}, s{sQOFF}, s{sT1}')
        vPK, vPQ, vH = vT + 14, vT + 15, vT + 13
        p(f'v_and_b32 v{t3}, 31, v{vL}')
        p(f'v_mul_u32_u24 v{t3}, 896, v{t3}')
        p(f'v_lshrrev_b32 v{vH}, 5, v{vL}')
        p(f'v_lshl_add_u32 v{t3}, v{vH}, 3, v{t3}')
        p(f's_lshl_b32 s{sT2}, s{sM}, 2')
        p(f's_add_u32 s{sT2}, s{sT2}, s{sW}')
        p(f's_mul_i32 s{sT3}, s{sT2}, 49')
        p(f'v_add_u32 v{t2}, s{sT3}, v{vL}')
        p(f'v_mul_u32_u24 v{vPK}, 74899, v{t2}')
        p(f'v_lshrrev_b32 v{vPK}, 20, v{vPK}')
        p(f'v_mul_u32_u24 v{vPK}, 7, v{vPK}')
        p(f'v_add_u32 v{vPK}, v{vPK}, v{t2}')
        p(f'v_lshlrev_b32 v{vPK}, 7, v{vPK}')
        b = sO

        def mksrd(d, src, n):
            p(f's_mov_b32 s{d}, s{src}')
            p(f's_and_b32 s{d+1}, s{src+1}, 0xffff')
            p(f's_mov_b32 s{d+2}, {n}')
            p(f's_mov_b32 s{d+3}, 0x20000')
        mksrd(S_X, b, 1835008)
        mksrd(S_WQ, b + 2, 1204224)
        XR = 96
        for q in range(4):
            p(f'buffer_load_dwordx2 {vr(XR+2*q,2)}, v{t3}, {srd(S_X)}, s{sQOFF} offen offset:{16*q}')
        p('s_mov_b32 exec_hi, 0x1ffff')
        p(f'buffer_load_dword a255, v{vPK}, {srd(S_WQ)}, 0 offen offset:896')
        p('s_mov_b64 exec, -1')
        p(f's_load_dwordx2 s[{sF}:{sF+1}], s[{S_WSP}:{S_WSP+1}], {WS_EPOCH}')
        for (d, src, n) in ((S_WO, b + 4, 401408), (S_W1, b + 8, 1605632),
                            (S_W2, b + 10, 1605632), (S_OUT, b + 12, 1835008), (S_WS, S_WSP, WS_BYTES)):
            mksrd(d, src, n)
        p(f's_mul_i32 s{sT3}, s{sT2}, 25')
        p(f'v_add_u32 v{t2}, s{sT3}, v{vL}')
        p(f'v_mul_u32_u24 v{vPQ}, 149797, v{t2}')
        p(f'v_lshrrev_b32 v{vPQ}, 20, v{vPQ}')
        p(f'v_mul_u32_u24 v{vPQ}, 14, v{vPQ}')
        p(f'v_add_u32 v{vPQ}, v{vPQ}, v{t2}')
        p(f'v_lshlrev_b32 v{vPQ}, 7, v{vPQ}')
        p(f's_and_b32 s{sJ}, s{sM}, 15')
        p(f's_lshr_b32 s{sA}, s{sM}, 4')
        p(f'v_lshrrev_b32 v{t0}, 2, v{vL}')
        p(f'v_and_b32 v{t1}, 3, v{vL}')
        p(f'v_lshlrev_b32 v{t3}, 3, v{t1}')
        p(f'v_lshlrev_b32 v{t1}, 4, v{t1}')
        self.stamp('ka')
        sI, sSTG = sO, sO + 1
        sFL, sDST, sJOB, sDST2 = sJFL, sO + 3, sO + 4, sO + 5

        p(f's_mul_i32 s{sLB}, s{sTEAM}, {STRIDE}')
        p(f's_add_u32 s{sLB}, s{sLB}, {TEAM0}')
        p(f's_mov_b32 s{sTB}, s{sLB}')
        p(f'v_lshlrev_b32 v{vL16}, 4, v{vL}')
        p(f'v_lshlrev_b32 v{vL8}, 3, v{vL}')
        p(f's_mov_b32 s{sONES}, 0x3f803f80')
        p(f's_mov_b32 s{sPURE}, 1')
        p(f's_mov_b64 s[{sIMP}:{sIMP+1}], 0')
        p.ext(self.pub_offsets(O_XA, O_STA, O_FXA))
        vD, vTR, vTR8 = vT + 4, vT + 5, vT + 13
        FR = 32
        p(f's_lshl_b32 s{sI}, s{sTEAM}, 1')
        p(f's_add_u32 s{sI}, s{sI}, s{sA}')
        p(f's_lshl_b32 s{sSTG}, s{sW}, 13')
        p(f's_add_u32 s{sSTG}, s{sSTG}, {LKV}')
        lA = [p.newlabel('jobA') for _ in range(4)]
        p(f's_mov_b32 s{sJOB}, 0')
        p.mark('maybe_begin')
        p(f's_cmp_ge_u32 s{sW}, 2')
        p(f's_cbranch_scc1 {lA[0]}')
        p(f's_cmp_eq_u32 s{sW}, 0')
        p(f's_cbranch_scc1 {lA[2]}')
        p(f's_cmp_ge_u32 s{sI}, 14')
        p(f's_cbranch_scc1 {lA[2]}')
        p(f'v_bfe_u32 v{vD}, v{vL}, 1, 3')
        p(f'v_bfe_u32 v{t2}, v{vL}, 4, 1')
        p(f'v_lshl_add_u32 v{vD}, v{t2}, 4, v{vD}')
        p(f'v_bfe_u32 v{t2}, v{vL}, 5, 1')
        p(f'v_lshl_add_u32 v{vD}, v{t2}, 3, v{vD}')
        p(f'v_mul_u32_u24 v{vD}, 3584, v{vD}')
        p(f'v_and_b32 v{t2}, 1, v{vL}')
        p(f'v_lshl_add_u32 v{vD}, v{t2}, 4, v{vD}')
        p(f's_mul_i32 s{sT0}, s{sI}, {32*3584}')
        p(f's_mul_i32 s{sT1}, s{sJ}, 224')
        p(f's_add_u32 s{sT0}, s{sT0}, s{sT1}')
        for t in range(7):
            p.ext(self.dma(S_W1, vD, sT0, t * 32, (sSTG, t * 1024), 'raw'))
        p(f's_mov_b32 s{sJOB}, 2')
        p('s_waitcnt vmcnt(8)')
        p(f's_branch {lA[3]}')
        p.label(lA[0])
        p(f'v_mul_u32_u24 v{vD}, 896, v{t0}')
        p(f'v_add_u32 v{vD}, v{vD}, v{t1}')
        p(f's_cmp_ge_u32 s{sM}, 28')
        p(f's_cbranch_scc1 {lA[1]}')
        sI2, sSL, sHF = sT2, sT3, sT4
        p(f's_lshl_b32 s{sI2}, s{sTEAM}, 2')
        p(f's_add_u32 s{sI2}, s{sI2}, s{sRB}')
        p(f's_lshr_b32 s{sSL}, s{sI2}, 1')
        p(f's_and_b32 s{sHF}, s{sI2}, 1')
        p(f's_mul_i32 s{sT0}, s{sSL}, {112*896}')
        p(f's_mul_i32 s{sT1}, s{sHF}, {64*896}')
        p(f's_add_u32 s{sT0}, s{sT0}, s{sT1}')
        p(f's_lshl_b32 s{sT1}, s{sCB}, 7')
        p(f's_add_u32 s{sT0}, s{sT0}, s{sT1}')
        p(f's_lshl_b32 s{sT1}, s{sNU}, 6')
        p(f's_add_u32 s{sT0}, s{sT0}, s{sT1}')
        for k in range(4):
            p.ext(self.dma(S_W2, vD, sT0, k * 16 * 896, (sSTG, k * 1024), 'raw'))
        p(f's_add_u32 s{sJOB}, s{sHF}, 3')
        p('s_waitcnt vmcnt(5)')
        p(f's_branch {lA[3]}')
        p.label(lA[1])
        p(f's_cmp_eq_u32 s{sTEAM}, 7')
        p(f's_cbranch_scc1 {lA[2]}')
        p(f's_mul_i32 s{sT0}, s{sCB}, {112*896}')
        p(f's_lshl_b32 s{sT1}, s{sTEAM}, 7')
        p(f's_add_u32 s{sT0}, s{sT0}, s{sT1}')
        p(f's_lshl_b32 s{sT1}, s{sNU}, 6')
        p(f's_add_u32 s{sT0}, s{sT0}, s{sT1}')
        for k in range(8):
            p.ext(self.dma(S_WO, vD, sT0, k * 16 * 896, (sSTG, k * 1024), 'raw'))
        p(f's_mov_b32 s{sJOB}, 5')
        p.label(lA[2])
        p('s_waitcnt vmcnt(1)')
        p.mark('maybe_end')
        p.label(lA[3])
        self.stamp('jA')
        lp0 = p.newlabel('p0skip')
        p(f's_cmp_ge_u32 s{sM}, 28')
        p(f's_cselect_b32 s{sXF}, -1, s{sXF}')
        p(f's_cbranch_scc1 {lp0}')
        p.mark('drained_vm')
        self.x_store(XR, vL16, (0, 1024), 'sc1')
        p.label(lp0)
        p(f's_lshl_b32 s{sTP}, s{sA}, 2')
        p(f's_add_u32 s{sTP}, s{sTP}, s{sW}')
        p(f's_lshl_b32 s{sT0}, s{sTP}, 4')
        p(f's_add_u32 s{sT0}, s{sT0}, s{sJ}')
        p.ext(self.off(sT1, sT0, 2048, O_O))
        p.ext(self.off(sT2, sT0, 7168, O_H))
        p(f's_add_u32 s{sT3}, s{sT2}, 4096')
        if not os.environ.get('NOWA'):
            for sr, n in ((sT1, 2), (sT2, 4), (sT3, 3)):
                for k in range(n):
                    p(f'buffer_store_dwordx4 {vr(XR)}, v{vL16}, {srd(S_WS)}, s{sr} offen offset:{1024*k} sc1')
        p('s_mov_b64 exec, 0x1ffffff')
        p(f'buffer_load_dword a255, v{vPQ}, {srd(S_WQ)}, 0 offen')
        p('s_mov_b64 exec, -1')
        self.stamp('x0')
        p(f'v_mul_u32_u24 v{vDQ}, 2688, v{t0}')
        p(f'v_add_u32 v{vDQ}, v{vDQ}, v{t1}')
        p(f's_mul_i32 s{sRQ}, s{sW}, {7*16*2688}')
        p(f's_mul_i32 s{sT1}, s{sJ}, 56')
        p(f's_add_u32 s{sRQ}, s{sRQ}, s{sT1}')
        p(f's_mul_i32 s{sLQ}, s{sW}, 7168')
        p(f'v_bfe_u32 v{t2}, v{vL}, 4, 1')
        p(f'v_lshl_add_u32 v{t2}, v{t2}, 5, v{t3}')
        p(f'v_bfe_u32 v{vTR}, v{vL}, 2, 2')
        p(f'v_lshl_add_u32 v{t2}, v{vTR}, 6, v{t2}')
        p(f'v_lshl_add_u32 v{vTQ}, v{vH}, 8, v{t2}')
        p(f'v_add_u32 v{vTR}, s{sSTG}, v{vTQ}')
        p(f'v_add_u32 v{t2}, s{sSTG}, v{t2}')
        p(f'v_lshl_add_u32 v{vTR8}, v{vH}, 9, v{t2}')
        p(f'v_add_u32 v{vTQ}, s{sLQ}, v{vTQ}')
        p(f'v_add_u32 v{vWQ}, s{sLQ}, v{vL16}')
        p(f's_mov_b32 s{sPERM}, 0x07060302')
        self.lane_consts()
        vCSP = 104
        p(f'v_mov_b32 v{vCSP+3}, s{sONES}')
        p.ext(self.res_unpack(XR))
        p('s_waitcnt lgkmcnt(0)')
        p(f's_add_u32 s{sF}, s{sF}, 1')
        p(f's_addc_u32 s{sF+1}, s{sF+1}, 0')
        p(f'v_mov_b32 v{vF}, s{sF}')
        p(f'v_mov_b32 v{vF+1}, s{sF+1}')
        self.walker_at = len(p.items)
        self.stamp('wk')
        p('s_waitcnt vmcnt(1)')
        p.mark('drained_vm')
        self.stamp('rt1')
        for i in range(4):
            p.ext(self.rawq(0, i))
        self.flag_opt(sXF)

        def finish(nfr, offs):
            L = []
            base = None
            for k in range(nfr):
                hi, lo = offs[k] // 4096 * 4096, offs[k] % 4096
                if hi != base:
                    L.append(f's_add_u32 s{sT5}, s{sDST}, {hi}')
                    base = hi
                L.append(f'buffer_store_dwordx4 {vr(FR+4*k)}, v{vL16}, {srd(S_WS)}, s{sT5} offen offset:{lo} sc1')
            return L
        lB = {k: p.newlabel('jobB') for k in (3, 4, 5, 'join')}
        p(f's_mov_b32 s{sFL}, -1')
        p.mark('maybe_begin')
        p(f's_cmp_eq_u32 s{sJOB}, 0')
        p(f's_cbranch_scc1 {lB["join"]}')
        p(f's_cmp_eq_u32 s{sJOB}, 5')
        p(f's_cbranch_scc1 {lB[5]}')
        p(f's_cmp_ge_u32 s{sJOB}, 3')
        p(f's_cbranch_scc1 {lB[3]}')
        p(f'v_lshl_add_u32 v{vTR}, v{t0}, 5, v{t3}')
        p(f'v_add_u32 v{vTR}, s{sSTG}, v{vTR}')
        for t in range(7):
            for jj in range(2):
                p(f'ds_read_b64_tr_b16 {vr(FR+t*4+2*jj,2)}, v{vTR} offset:{t*1024+jj*512}')
        p(f's_mul_i32 s{sDST}, s{sJ}, 100352')
        p(f's_add_u32 s{sDST}, s{sDST}, {W1T}')
        p(f's_mul_i32 s{sDST2}, s{sI}, 3072')
        p(f's_add_u32 s{sDST2}, s{sDST2}, s{sDST}')
        p(f's_add_u32 s{sDST2}, s{sDST2}, 57344')
        p(f's_lshl_b32 s{sT0}, s{sI}, 12')
        p(f's_add_u32 s{sDST}, s{sDST}, s{sT0}')
        p(f's_lshl_b32 s{sFL}, s{sJ}, 4')
        p(f's_add_u32 s{sFL}, s{sFL}, s{sI}')
        p(f's_lshl_b32 s{sFL}, s{sFL}, 3')
        p(f's_add_u32 s{sFL}, s{sFL}, {F_W1}')
        p.ext(finish(4, [t * 1024 for t in range(4)]))
        for t in range(4, 7):
            p(f'buffer_store_dwordx4 {vr(FR+4*t)}, v{vL16}, {srd(S_WS)}, s{sDST2} offen offset:{(t-4)*1024} sc1')
        p(f's_branch {lB["join"]}')
        p.label(lB[3])
        for sg in range(2):
            for jj in range(2):
                p(f'ds_read_b64_tr_b16 {vr(FR+sg*4+2*jj,2)}, v{vTR} offset:{(16*jj+8*sg)*64}')
        p(f's_lshl_b32 s{sI2}, s{sTEAM}, 2')
        p(f's_add_u32 s{sI2}, s{sI2}, s{sRB}')
        p(f's_lshr_b32 s{sSL}, s{sI2}, 1')
        p(f's_and_b32 s{sHF}, s{sI2}, 1')
        p(f's_mul_i32 s{sDST}, s{sCB}, 229376')
        p(f's_mul_i32 s{sT0}, s{sSL}, 14336')
        p(f's_add_u32 s{sDST}, s{sDST}, s{sT0}')
        p(f's_lshl_b32 s{sT0}, s{sHF}, 13')
        p(f's_add_u32 s{sDST}, s{sDST}, s{sT0}')
        p(f's_lshl_b32 s{sT0}, s{sNU}, 10')
        p(f's_add_u32 s{sDST}, s{sDST}, s{sT0}')
        p(f's_add_u32 s{sDST}, s{sDST}, {W2T}')
        p(f's_lshl_b32 s{sFL}, s{sCB}, 5')
        p(f's_add_u32 s{sFL}, s{sFL}, s{sI2}')
        p(f's_lshl_b32 s{sFL}, s{sFL}, 1')
        p(f's_add_u32 s{sFL}, s{sFL}, s{sNU}')
        p(f's_lshl_b32 s{sFL}, s{sFL}, 3')
        p(f's_add_u32 s{sFL}, s{sFL}, {F_W2}')
        p(f's_cmp_eq_u32 s{sJOB}, 4')
        p(f's_cbranch_scc1 {lB[4]}')
        for sg in range(2, 4):
            for jj in range(2):
                p(f'ds_read_b64_tr_b16 {vr(FR+sg*4+2*jj,2)}, v{vTR} offset:{(32+16*jj+8*(sg%2))*64}')
        p.ext(finish(4, [k * 2048 for k in range(4)]))
        p(f's_branch {lB["join"]}')
        p.label(lB[4])
        for jj in range(2):
            p(f'ds_read_b64_tr_b16 {vr(FR+8+2*jj,2)}, v{vTR8} offset:{(32+4*jj)*64}')
        p('s_waitcnt lgkmcnt(0)')
        p.ext(finish(3, [k * 2048 for k in range(3)]))
        p(f's_branch {lB["join"]}')
        p.label(lB[5])
        for hd in range(4):
            for kp in range(2):
                for jj in range(2):
                    p(f'ds_read_b64_tr_b16 {vr(FR+(hd*2+kp)*4+2*jj,2)}, v{vTR} offset:{(28*hd+16*kp+8*jj)*64}')
        p(f's_lshl_b32 s{sFL}, s{sTEAM}, 2')
        p(f's_add_u32 s{sFL}, s{sFL}, s{sCB}')
        p(f's_lshl_b32 s{sDST}, s{sFL}, 14')
        p(f's_lshl_b32 s{sT0}, s{sNU}, 10')
        p(f's_add_u32 s{sDST}, s{sDST}, s{sT0}')
        p(f's_add_u32 s{sDST}, s{sDST}, {WOT}')
        p(f's_lshl_b32 s{sFL}, s{sFL}, 1')
        p(f's_add_u32 s{sFL}, s{sFL}, s{sNU}')
        p(f's_lshl_b32 s{sFL}, s{sFL}, 3')
        p(f's_add_u32 s{sFL}, s{sFL}, {F_WO}')
        p('s_waitcnt lgkmcnt(0)')
        p('s_mov_b32 exec_lo, 0')
        for hd in range(4):
            p(f'v_mov_b32 v{FR+(hd*2+1)*4+2}, 0')
            p(f'v_mov_b32 v{FR+(hd*2+1)*4+3}, 0')
        p('s_mov_b64 exec, -1')
        p.ext(finish(8, [k * 2048 for k in range(8)]))
        p.mark('maybe_end')
        p.label(lB['join'])
        p(f's_getreg_b32 s{sT0}, hwreg(HW_REG_XCC_ID)')
        p(f's_and_b32 s{sT0}, s{sT0}, 15')
        p(f's_lshl_b32 s{sT0}, s{sT0}, 28')
        p(f's_xor_b32 s{sT0}, s{sT0}, s{sF+1}')
        p(f'v_mov_b32 v{t2}, s{sF}')
        p(f'v_mov_b32 v{t3}, s{sT0}')
        p(f's_lshl_b32 s{sT1}, s{sTEAM}, 8')
        p(f's_lshl_b32 s{sT2}, s{sM}, 3')
        p(f's_add_u32 s{sT1}, s{sT1}, s{sT2}')
        p(f's_add_u32 s{sT1}, s{sT1}, {WS_PUR}')
        lx = p.newlabel('noxcc')
        p(f's_cmp_lg_u32 s{sW}, 0')
        p(f's_cbranch_scc1 {lx}')
        p.mark('maybe_begin')
        p('s_mov_b64 exec, 1')
        p(f'buffer_store_dwordx2 {vr(t2,2)}, off, {srd(S_WS)}, s{sT1} sc1')
        p('s_mov_b64 exec, -1')
        p.mark('maybe_end')
        p.label(lx)
        self.stamp('jB')
        for i in range(4, 7):
            p.ext(self.rawq(0, i))
        for i in range(7):
            p.ext(self.rawq(1, i))
        self.xform(0, 128, vCSP, vCSP + 3)
        self.flag_opt(sFL)
        self.stamp('xf0')
        self.xform(1, 160, vCSP + 1, vCSP + 3)
        self.cs_partial((0, 1), vCSP, t2, t3)
        p('s_waitcnt lgkmcnt(0)')
        p('s_barrier')
        self.stamp('bar')
        self.cs_sum((0, 1), 108, t2, t3)
        self.stamp('pro')

    def wqt_publish(self, R):
        p = self.p
        l = p.newlabel('nowqt')
        p(f's_lshl_b32 s{sT0}, s{sTEAM}, 1')
        p(f's_add_u32 s{sT0}, s{sT0}, s{sA}')
        p(f's_cmp_ge_u32 s{sT0}, 14')
        p(f's_cbranch_scc1 {l}')
        p(f's_cmp_lg_u32 s{sW}, 0')
        p(f's_cbranch_scc1 {l}')
        p.mark('maybe_begin')
        p(f's_lshl_b32 s{sT1}, s{sT0}, 11')
        p(f'v_add_u32 v{R+24}, s{sT1}, v{vL16}')
        for tau in range(2):
            for kp in range(2):
                p(f'ds_read_b128 {vr(R+(tau*2+kp)*4)}, v{R+24} offset:{tau*28672+kp*1024}')
        p(f's_mul_i32 s{sT2}, s{sJ}, 86016')
        p(f's_add_u32 s{sT1}, s{sT1}, s{sT2}')
        for tau in range(2):
            p(f's_add_u32 s{sT2}, s{sT1}, {WQT + tau*28672}')
            for kp in range(2):
                p(f'buffer_store_dwordx4 {vr(R+(tau*2+kp)*4)}, v{vL16}, {srd(S_WS)}, s{sT2} offen offset:{kp*1024} sc1')
        p(f's_lshl_b32 s{sJFL}, s{sJ}, 4')
        p(f's_add_u32 s{sJFL}, s{sJFL}, s{sT0}')
        p(f's_lshl_b32 s{sJFL}, s{sJFL}, 3')
        p(f's_add_u32 s{sJFL}, s{sJFL}, {F_WQ}')
        p.mark('maybe_end')
        p.label(l)

    def p1(self):
        p, L0 = self.p, self.L == 0
        X, ACC, RING, CS = 32, 144, 192, 224
        accK, accV, accQ = ACC, ACC + 16, ACC + 32
        PK, PV = vT, vT + 8
        sXO, sST, sFX, sKV, sKF = sO, sO + 7, sO + 8, sO + 9, sO + 10
        p.ext(self.xoff(sXO, sTP, 28672, O_XA))
        for g in range(1, 7):
            p(f's_add_u32 s{sXO+g}, s{sXO}, {4096*g}')
        p.ext(self.off(sST, sTP, 3584, O_STA))
        p.ext(self.off(sFX, sTP, 128, O_FXA))
        p(f's_lshl_b32 s{sT0}, s{sJ}, 3')
        p(f's_add_u32 s{sT0}, s{sT0}, s{sTP}')
        p.ext(self.off(sKV, sT0, 4096, O_KV))
        p.ext(self.off(sKF, sT0, 128, O_FKV))
        p(f'v_lshrrev_b32 v{vCSA}, 5, v{vL}')
        p(f'v_lshlrev_b32 v{vCSA}, 4, v{vCSA}')
        p(f'v_add_u32 v{vCSA}, {L_CSQ}, v{vCSA}')
        sW2E, sW2F = sO + 11, sO + 12
        vQ = 238
        if L0:
            self.vDQ, self.vTQ, self.vWQ = vQ, 225, 226
            p.ext([f'v_lshrrev_b32 v{vQ}, 2, v{vL}', f'v_mul_u32_u24 v{vQ}, 2688, v{vQ}', f'v_and_b32 v{vQ+1}, 3, v{vL}',
                   f'v_lshl_add_u32 v{vQ}, v{vQ+1}, 4, v{vQ}', f'v_lshlrev_b32 v{vQ+1}, 7, v{vL}'])

        def frag(f):
            if f < 56:
                base, off = vL16, (f % 2) * 28672 + (f // 2) * 1024
            else:
                base, off = vA1, (f - 56) * 1024
            return f'ds_read_b128 {vr(RING + 4*(f % 8))}, v{base} offset:{off}'

        def mf(f):
            acc, s = ((accK, accV)[f % 2], f // 2) if f < 56 else (accQ, f - 56)
            return f'{MF32} {vr(acc,16)}, {vr(RING+4*(f%8))}, {vr(X+4*s)}, {vr(acc,16) if s else 0}'

        def xl(s):
            return f'buffer_load_dwordx4 {vr(X+4*s)}, v{vL16}, {srd(S_WS)}, s{sXO + s//4} offen offset:{(s%4)*1024} sc1'
        PD = 6
        for f in range(PD):
            p(frag(f))
        self.stamp('p5')
        self.pad()
        self.vpoll(vL8, f's{sFX}', 14, acquire=not L0)
        self.stamp('E')
        XP = 8
        for s in range(XP):
            p(xl(s))
        mem, pre = {}, {}
        for f in range(84):
            mem[f] = []
            if f + PD < 84 and not (f < 56 <= f + PD):
                mem[f].append(frag(f + PD))
            if f < 56 and f % 2 == 0 and f // 2 + XP < 28:
                mem[f].append(xl(f // 2 + XP))
            if 27 <= f < 41 and f % 2 == 1:
                mem[f].append(self.stats_loads(sST, CS)[(f - 27) // 2])
            if f % 2 == 0:
                pre[f] = [Touch(vr(RING + 4 * (f % 8)) + ' ' + vr(RING + 4 * ((f + 1) % 8)) + (' ' + vr(X + 4 * (f // 2)) if f < 56 else ''))]
        if L0:
            for i in range(7):
                mem[40 + 2 * i].append(self.rawq(2, i))
        else:
            p(f's_mul_i32 s{sT0}, s{sW}, 7168')
            p(f'v_add_u32 v{vQ}, s{sT0}, v{vA1}')
            for i in range(7):
                mem[3 + 4 * i].append(Ins(f'ds_write_b128 v{vQ}, {ar(224 + 4*i)} offset:{1024*i}', 'wq'))
        for f in (0, 16, 38):
            mem[f] += self.stamp_items(f'k{f}')

        def cs_reads(tau, dst):
            return [f'ds_read_b128 {vr(dst+4*q)}, v{vCSA} offset:{tau*128 + 32*q}' for q in range(4)]
        p.ext(sched([mf(f) for f in range(56)], pre, mem, cs_reads(1, accQ) + cs_reads(0, PK) + self.stats_reduce(CS), 6, start=43))
        self.stamp('kv')

        def epi(acc, cs, P):
            L = []
            for r in range(0, 16, 2):
                L.append(f'v_pk_fma_f32 {vr(acc+r,2)}, {vr(cs+r,2)}, {vr(vMEAN,2)}, {vr(acc+r,2)} op_sel:[0,0,0] op_sel_hi:[1,0,1]')
            for r in range(0, 16, 2):
                L.append(f'v_pk_mul_f32 {vr(acc+r,2)}, {vr(acc+r,2)}, {vr(vMEAN,2)} op_sel:[0,1] op_sel_hi:[1,1]')
                L.append(f'v_cvt_pk_bf16_f32 v{P+r//2}, v{acc+r}, v{acc+r+1}')
            return L

        def pad(P, c6, c7):
            return ['s_mov_b32 exec_lo, 0', f'v_mov_b32 v{P+6}, {c6:#x}', f'v_mov_b32 v{P+7}, {c7:#x}', 's_mov_b64 exec, -1']

        def st(P, o):
            return [Ins(f'buffer_store_dwordx4 {vr(P+4*k)}, v{vL16}, {srd(S_WS)}, s{sKV} offen offset:{o+1024*k} sc1', 'kvst') for k in range(2)]
        t0, t1 = CS, CS + 1
        p.ext(epi(accK, PK, PK) + pad(PK, 0x3f803f80, 0x3f80) + st(PK, 0))
        p.ext(epi(accV, accQ, PV) + pad(PV, 0x3f80, 0) + st(PV, 2048))
        self.stamp('kvs')
        if L0:
            R = ACC
            vcs, vones, t2, t3 = R + 28, R + 29, R + 30, R + 31
            p.ext([f'v_and_b32 v225, 3, v{vL}', 'v_lshlrev_b32 v225, 3, v225', f'v_bfe_u32 v226, v{vL}, 4, 1',
                   'v_lshl_add_u32 v225, v226, 5, v225', f'v_bfe_u32 v226, v{vL}, 2, 2', 'v_lshl_add_u32 v225, v226, 6, v225',
                   f'v_lshrrev_b32 v226, 5, v{vL}', 'v_lshl_add_u32 v225, v226, 8, v225', f'v_add_u32 v225, s{sLQ}, v225',
                   f'v_add_u32 v226, s{sLQ}, v{vL16}', f'v_mov_b32 v{vones}, s{sONES}'])
            self.xform(2, R, vcs, vones)
            p.wait('kvst')
            p.ext(self.flag_sc1(sKF))
            for i in range(28):
                p(f'v_accvgpr_write_b32 a{224+i}, v{R+i}')
            self.cs_partial((2,), vcs, t2, t3)
            p('s_waitcnt lgkmcnt(0)')
            p('s_barrier')
            self.cs_sum((2,), R, t2, t3)
        else:
            p.wait('wq')
            p('s_barrier')
        for f in range(56, 56 + PD):
            p(frag(f))
        side = [f's_lshl_b32 s{sT0}, s{sW}, 12', f's_add_u32 s{sT0}, s{sT0}, {LKV + 8*4096}',
                f'v_add_u32 v{t0}, s{sT0}, v{vL16}',
                f'ds_write_b128 v{t0}, {vr(PK)}', f'ds_write_b128 v{t0}, {vr(PK+4)} offset:1024',
                f'v_and_b32 v{t1}, 31, v{vL}', f'v_lshlrev_b32 v{t1}, 6, v{t1}', f'v_lshrrev_b32 v{t0}, 5, v{vL}',
                f'v_lshl_add_u32 v{t1}, v{t0}, 4, v{t1}', f'v_add_u32 v{t0}, s{sT0}, v{t1}',
                f'ds_write_b128 v{t0}, {vr(PV)} offset:2048', f'ds_write_b128 v{t0}, {vr(PV+4)} offset:{2048+32}',
                f'v_mul_f32 v{vRSTD}, {f32bits(28 ** -0.5 * math.log2(math.e)):#x}, v{vRSTD}'] + cs_reads(2, CS) + self.kv_addr()
        pre2 = {f - 56: v for f, v in pre.items() if f >= 56}
        mem2 = {f - 56: v for f, v in mem.items() if f >= 56}
        if not L0:
            mem2[22].append([Wait(['kvst'])] + self.flag_sc1(sKF))
        qs = sched([mf(f) for f in range(56, 84)], pre2, mem2, side, 6, start=0)
        cut = qs.index(mf(56 + 16)) if L0 else len(qs)
        while not isinstance(qs[cut - 1], (str, Ins, list)):
            cut -= 1
        p.ext(qs[:cut])
        self.stamp('q')
        self.kv_fetch()
        p.ext(qs[cut:])
        QF = 200
        p.ext(epi(accQ, CS, QF))
        p.ext(pad(QF, 0, 0x3f800000))
        if L0:
            p(f's_mov_b32 s{sJFL}, -1')
            self.wqt_publish(32)
        self.pad()
        p('s_barrier')
        self.stamp('p1')

    sKD, sKL, sKFl, sNULL = sO + 11, sO + 13, (sO + 15, 78), 79

    def kv_addr(self):
        sKD, sKL, sKFl, sNULL = self.sKD, self.sKL, self.sKFl, self.sNULL
        L = [f's_mov_b32 s{sNULL}, 0']
        for k in range(2):
            L += [f's_lshl_b32 s{sT0}, s{sW}, 1', f's_add_u32 s{sT0}, s{sT0}, {k}',
                  f's_lshl_b32 s{sKL+k}, s{sT0}, 12', f's_add_u32 s{sKL+k}, s{sKL+k}, {LKV}',
                  f's_lshl_b32 s{sT1}, s{sA}, 2', f's_add_u32 s{sT0}, s{sT0}, s{sT1}',
                  [f's_cmp_lt_u32 s{sT0}, 8', f's_cselect_b32 s{sT1}, {STRIDE}, 0'],
                  f's_sub_u32 s{sT1}, s{sLB}, s{sT1}', f's_and_b32 s{sT0}, s{sT0}, 7',
                  [f's_cmp_lt_i32 s{sT1}, {TEAM0}', f's_cselect_b32 s{sT2}, {1 << k}, 0',
                   f's_cselect_b32 s{sT1}, s{sLB}, s{sT1}', f's_cselect_b32 s{sT0}, s{sTP}, s{sT0}'],
                  f's_or_b32 s{sNULL}, s{sNULL}, s{sT2}', f's_lshl_b32 s{sT2}, s{sJ}, 3', f's_add_u32 s{sT0}, s{sT0}, s{sT2}',
                  f's_lshl_b32 s{sKD+k}, s{sT0}, 12', f's_add_u32 s{sKD+k}, s{sKD+k}, s{sT1}',
                  f's_lshl_b32 s{sT0}, s{sT0}, 7', f's_add_u32 s{sT0}, s{sT0}, s{sT1}', f's_add_u32 s{sKFl[k]}, s{sT0}, {O_FKV}']
        return L

    def kv_fetch(self):
        p = self.p
        t0, t1, Z, NK = 144, 145, 148, 2
        sKD, sKL, sKFl, sNULL = self.sKD, self.sKL, self.sKFl, self.sNULL
        p(f'v_bfe_u32 v{t0}, v{vL}, 1, 1')
        p(f'v_lshlrev_b32 v{t0}, 10, v{t0}')
        p(f'v_and_b32 v{t1}, 1, v{vL}')
        p(f'v_lshl_add_u32 v{t0}, v{t1}, 9, v{t0}')
        p(f'v_lshrrev_b32 v{t1}, 2, v{vL}')
        p(f'v_lshl_add_u32 v{t0}, v{t1}, 4, v{t0}')
        lp, lo = p.newlabel('kvpoll'), p.newlabel('kvpollout')
        self.stamp('w1')
        p('s_waitcnt lgkmcnt(0)')
        p(f's_mov_b32 s{sCNT}, 0')
        p.label(lp)
        for k in range(NK):
            p(f's_load_dwordx2 s[{sPOLL+2*k}:{sPOLL+2*k+1}], s[{S_WSP}:{S_WSP+1}], s{sKFl[k]} glc')
        p(f's_add_u32 s{sCNT}, s{sCNT}, 1')
        p(f's_cmp_gt_u32 s{sCNT}, {POLL_MAX}')
        p(f's_cbranch_scc1 {lo}')
        p('s_waitcnt lgkmcnt(0)')
        for k in range(NK):
            p(f's_cmp_eq_u64 s[{sPOLL+2*k}:{sPOLL+2*k+1}], s[{sF}:{sF+1}]')
            p(f's_cbranch_scc0 {lp}')
        p.label(lo)
        self.stamp('kvf')
        for k in range(NK):
            lnull, lb = p.newlabel('null'), p.newlabel('nullback')
            p(f's_bitcmp1_b32 s{sNULL}, {k}')
            p(f's_cbranch_scc1 {lnull}')
            p(f's_mov_b32 m0, s{sKL+k}')
            p(f's_sub_u32 s{sT5}, s{sKD+k}, 768')
            p(f'buffer_load_dwordx4 v{vL16}, {srd(S_WS)}, s{sKD+k} offen sc1 lds')
            p(f'buffer_load_dwordx4 v{vL16}, {srd(S_WS)}, s{sKD+k} offen offset:1024 sc1 lds')
            p(f'buffer_load_dwordx4 v{t0}, {srd(S_WS)}, s{sKD+k} offen offset:2048 sc1 lds')
            p(f'buffer_load_dwordx4 v{t0}, {srd(S_WS)}, s{sT5} offen offset:3072 sc1 lds')
            p.label(lb)
            self.tail.append((lnull, [
                f'v_add_u32 v{t1}, s{sKL+k}, v{vL16}',
                f'v_mov_b32 v{Z}, 0', f'v_mov_b32 v{Z+1}, 0', f'v_mov_b32 v{Z+2}, 0', f'v_mov_b32 v{Z+3}, 0'] +
                [f'ds_write_b128 v{t1}, {vr(Z)} offset:{o}' for o in (0, 2048, 3072)] +
                ['s_mov_b32 exec_lo, 0', f'v_mov_b32 v{Z+3}, 0xf1490000', 's_mov_b64 exec, -1',
                 f'ds_write_b128 v{t1}, {vr(Z)} offset:1024', f's_branch {lb}']))

    def attn(self):
        p, L0 = self.p, self.L == 0
        KF, ST, MW, MD, OA, QF, PB, VF = 32, 104, 152, 168, 184, 200, 208, 224
        t0, t1 = 104, 105
        t2, t3 = 106, 107
        p(f'v_and_b32 v{t2}, 31, v{vL}')
        p(f'v_lshrrev_b32 v{t3}, 5, v{vL}')
        p(f'v_lshlrev_b32 v{t3}, 2, v{t3}')
        p(f'v_sub_u32 v{t2}, v{t2}, v{t3}')
        p(f'v_mov_b32 v{t3}, {f32bits(-1e30):#x}')
        for r in range(0, 16, 2):
            k0, k1 = 8 * (r // 4) + r % 4, 8 * (r // 4) + r % 4 + 1
            p(f'v_cmp_le_i32 vcc, {k0}, v{t2}')
            p(f'v_cmp_le_i32 s[{sPOLL}:{sPOLL+1}], {k1}, v{t2}')
            p('s_nop 0')
            p(f'v_cndmask_b32_e64 v{MD+r}, v{t3}, 0, vcc')
            p(f'v_cndmask_b32_e64 v{MD+r+1}, v{t3}, 0, s[{sPOLL}:{sPOLL+1}]')
            p(f'v_cndmask_b32_e64 v{MW+r}, 0, v{t3}, vcc')
            p(f'v_cndmask_b32_e64 v{MW+r+1}, 0, v{t3}, s[{sPOLL}:{sPOLL+1}]')
        vKA, vVA = vT, vT + 1
        p(f's_lshl_b32 s{sT0}, s{sW}, 12')
        p(f's_add_u32 s{sT0}, s{sT0}, {LKV}')
        p(f'v_add_u32 v{vKA}, s{sT0}, v{vL16}')
        p(f'v_lshrrev_b32 v{t2}, 5, v{vL}')
        p(f'v_bfe_u32 v{t3}, v{vL}, 2, 2')
        p(f'v_lshl_add_u32 v{t2}, v{t2}, 2, v{t3}')
        p(f'v_lshlrev_b32 v{vVA}, 6, v{t2}')
        p(f'v_bfe_u32 v{t2}, v{vL}, 4, 1')
        p(f'v_lshl_add_u32 v{vVA}, v{t2}, 5, v{vVA}')
        p(f'v_and_b32 v{t2}, 1, v{vL}')
        p(f'v_lshl_add_u32 v{vVA}, v{t2}, 4, v{vVA}')
        p(f'v_bfe_u32 v{t2}, v{vL}, 1, 1')
        p(f'v_lshl_add_u32 v{vVA}, v{t2}, 3, v{vVA}')
        p(f'v_add_u32 v{vVA}, s{sT0}, v{vVA}')
        sOD, sOF, sWO = sO, sO + 1, sO + 2
        p(f's_lshl_b32 s{sT0}, s{sTP}, 4')
        p(f's_add_u32 s{sT0}, s{sT0}, s{sJ}')
        p.ext(self.roff(sOD, sT0, 2048, O_O))
        p.ext(self.off(sOF, sT0, 8, O_FO))
        p(f's_lshl_b32 s{sWO}, s{sCB}, 2')
        p(f's_add_u32 s{sWO}, s{sWO}, s{sW}')
        p(f's_lshl_b32 s{sWO}, s{sWO}, 14')
        p(f's_add_u32 s{sWO}, s{sWO}, {WOT}')
        for g in range(1, 4):
            p(f's_add_u32 s{sWO+g}, s{sWO}, {4096*g}')
        vPT = vT + 12
        p(f'v_lshlrev_b32 v{vPT}, 7, v{vL}')
        p(f'v_add_u32 v{vPT}, s{sOD}, v{vPT}')
        p(f's_lshl_b32 s{sT0}, s{sTP}, 7')
        p(f's_lshl_b32 s{sT1}, s{sRB}, 8')
        p(f's_lshl_b32 s{sT2}, s{sRHO}, 7')
        p(f's_add_u32 s{sT2}, s{sT2}, s{sT1}')
        p(f's_mul_i32 s{sT3}, s{sT2}, 28')
        p(f's_lshl_b32 s{sT4}, s{sCB}, 9')
        p(f's_add_u32 s{sT3}, s{sT3}, s{sT4}')
        p(f's_lshl_b32 s{sT4}, s{sNU}, 8')
        p(f's_add_u32 s{sT3}, s{sT3}, s{sT4}')
        for lane, (r, c) in enumerate([(sT0, O_FO), (sT1, O_FO), (sT1, O_FO + 128), (sT0, O_FX1), (sT2, O_FX1),
                                       (sT3, O_ST1), (sT3, O_ST1 + 128), (sT0, O_FH), (sT1, O_FH), (sT1, O_FH + 128),
                                       (sT0, O_FH + 1024), (sT1, O_FH + 1024), (sT1, O_FH + 1024 + 128)]):
            p(f's_add_u32 s{sT4}, s{r}, {c}')
            p(f's_add_u32 s{sT4}, s{sT4}, s{sLB}')
            p(f'v_writelane_b32 v{vPT}, s{sT4}, {16 + lane}')
        vZ = vT + 8
        p(f's_lshl_b32 s{sT0}, s{sNU}, 10')
        p(f'v_xor_b32 v{vZ}, s{sT0}, v{vL16}')
        p(f'v_xor_b32 v{vZ+1}, 1024, v{vZ}')

        def first():
            l0 = p.newlabel('first')
            p(f's_cmp_lg_u32 s{sW}, 0')
            p(f's_cbranch_scc1 {l0}')
            p.mark('maybe_begin')
            p(f's_lshl_b32 s{sT0}, s{sJ}, 7')
            p(f's_add_u32 s{sT0}, s{sT0}, {F_W1}')
            p(f's_lshl_b32 s{sT2}, s{sCB}, 6')
            p(f's_add_u32 s{sT2}, s{sT2}, {F_WO - 14*8}')
            p(f's_lshl_b32 s{sT3}, s{sTEAM}, 8')
            p(f's_add_u32 s{sT3}, s{sT3}, {WS_PUR - 32*8}')
            p(f'v_add_u32 v{t2}, s{sT0}, v{vL8}')
            p(f'v_min_u32 v{t3}, {21*8}, v{vL8}')
            p(f'v_add_u32 v{t3}, s{sT2}, v{t3}')
            p(f'v_cmp_le_u32 vcc, 14, v{vL}')
            p(f'v_cndmask_b32 v{t2}, v{t2}, v{t3}, vcc')
            p(f'v_add_u32 v{t3}, s{sT3}, v{vL8}')
            p(f'v_cmp_le_u32 vcc, 32, v{vL}')
            p(f'v_cndmask_b32 v{t2}, v{t2}, v{t3}, vcc')
            lp, lo, ls = p.newlabel('pur'), p.newlabel('purout'), p.newlabel('pursleep')
            p(f's_lshl_b32 s{sT0}, s{sCB}, 9')
            p(f's_add_u32 s{sT0}, s{sT0}, {F_W2}')
            p(f's_mov_b32 s{sCNT}, 0')
            p.label(lp)
            p(f'buffer_load_dwordx2 {vr(108,2)}, v{t2}, {srd(S_WS)}, 0 offen sc1')
            p(f'buffer_load_dwordx2 {vr(112,2)}, v{vL8}, {srd(S_WS)}, s{sT0} offen sc1')
            p(f's_add_u32 s{sCNT}, s{sCNT}, 1')
            p(f's_cmp_gt_u32 s{sCNT}, {POLL_MAX}')
            p(f's_cbranch_scc1 {lo}')
            p('s_waitcnt vmcnt(0)')
            p(f'v_xor_b32 v109, s{sF+1}, v109')
            p(f'v_xor_b32 v108, s{sF}, v108')
            p(f'v_and_b32 v110, 0x0fffffff, v109')
            p(f'v_or_b32 v108, v108, v110')
            p(f'v_cmp_ne_u32 vcc, 0, v108')
            p(f's_cbranch_vccnz {ls}')
            p(f'v_cmp_ne_u64 vcc, s[{sF}:{sF+1}], {vr(112,2)}')
            p(f's_cbranch_vccnz {ls}')
            p(f'v_readlane_b32 s{sT1}, v109, 32')
            p(f'v_cmp_ne_u32 vcc, s{sT1}, v109')
            p(f's_cmp_eq_u32 vcc_hi, 0')
            p(f's_cselect_b32 s{sT1}, {0 if os.environ.get("FORCE_IMPURE") else 1}, 0')
            p(f'v_mov_b32 v108, s{sT1}')
            p(f'v_mov_b32 v109, {L_PUR}')
            p('ds_write_b32 v109, v108')
            p.label(lo)
            p.mark('maybe_end')
            p.label(l0)
            self.tail.append((ls, ['s_sleep 8', f's_branch {lp}']))
        if L0:
            first()
        self.pad()
        p('s_waitcnt vmcnt(0) lgkmcnt(0)')
        if L0:
            self.flag_opt(sJFL)
        self.stamp('kvd')
        p('s_barrier')
        self.stamp('A')
        if L0:
            p(f'v_mov_b32 v{t0}, {L_PUR}')
            p(f'ds_read_b32 v{t0}, v{t0}')
            p(f'v_readfirstlane_b32 s{sPURE}, v{t0}')
            p(f's_cmp_eq_u32 s{sPURE}, 0')
            p(f's_cselect_b64 s[{sIMP}:{sIMP+1}], -1, 0')
        p(f'v_lshlrev_b32 v{t0}, 7, v{vL}')
        p(f's_lshl_b32 s{sT0}, s{sCB}, 2')
        p(f's_add_u32 s{sT0}, s{sT0}, s{sRB}')
        p(f's_lshl_b32 s{sT1}, s{sT0}, 14')
        p(f's_lshl_b32 s{sT2}, s{sW}, 12')
        p(f's_add_u32 s{sT1}, s{sT1}, s{sT2}')
        p(f's_add_u32 s{sT1}, s{sT1}, {WOT}')
        p('s_mov_b32 exec_hi, 0')
        p(f'buffer_load_dword a255, v{t0}, {srd(S_WS)}, s{sT1} offen sc1')
        p('s_mov_b64 exec, -1')
        p.ext(self.pub_offsets(O_X1, O_ST1, O_FX1))
        p(f's_sub_u32 s{sT0}, s{sXD}, {29*128}')
        p(f'v_add_u32 v{t1}, s{sT0}, v{t0}')
        p(f'v_cmp_lt_u32 vcc, 28, v{vL}')
        p(f'v_cndmask_b32 v{vPT}, v{vPT}, v{t1}, vcc')
        p.ext(self.setexec(45))
        p(f'buffer_load_dword a255, v{vPT}, {srd(S_WS)}, 0 offen sc1')
        p('s_mov_b64 exec, -1')
        bg = self.w1_dma(0)
        bw = []
        if L0 and HATT:
            p(f's_lshl_b32 s{sT0}, s{sTP}, 4')
            p(f's_add_u32 s{sT0}, s{sT0}, s{sJ}')
            p.ext(self.off(sT1, sT0, 7168, O_H))
            p.ext(self.touch(t0, sT1, 0, 56))
        if L0:
            p.ext(self.w2_setup(sO + 7, (vT + 10, vT + 11)))
            bw = self.w2_loads(sO + 7, (vT + 10, vT + 11))

        def kread(t):
            return [f'ds_read_b128 {vr(KF+8*t+4*k)}, v{vKA} offset:{t*4096+k*1024}' for k in range(2)]

        def qk(t):
            s = ST + 16 * (t % 3)
            c = vr(MW, 16) if t == 0 else vr(MD, 16) if t == 8 else '0'
            return [f'{MF32} {vr(s,16)}, {vr(KF+8*t)}, {vr(QF)}, {c}',
                    f'{MF32} {vr(s,16)}, {vr(KF+8*t+4)}, {vr(QF+4)}, {vr(s,16)}']
        vM, vM2 = vT + 2, vT + 3

        def mx(t):
            s = ST + 16 * (t % 3)
            L = []
            for i in range(8):
                d = vM if i % 2 == 0 else vM2
                if t == 0 and i < 2:
                    L.append(f'v_max_f32 v{d}, v{s+2*i}, v{s+2*i+1}')
                else:
                    L.append(f'v_max3_f32 v{d}, v{s+2*i}, v{s+2*i+1}, v{d}')
            return L

        def vread(t):
            d = VF + 8 * (t % 2)
            return [f'ds_read_b64_tr_b16 {vr(d+4*kv+2*jj,2)}, v{vVA} offset:{t*4096+2048+(16*kv+8*jj)*64}'
                    for kv in range(2) for jj in range(2)]
        def popbg(bg=bg):
            L = []
            while bg:
                x = bg.pop(0)
                L.append(x)
                if is_mem(x):
                    break
            return L
        for t in range(4):
            p.ext(kread(t))
        q = qk(0)
        p.ext([q[0]] + kread(4) + [q[1]] + kread(5))
        q = qk(1)
        p.ext([q[0]] + kread(6) + popbg(bw) + [q[1]] + kread(7) + popbg(bw))
        for t in range(9):
            m = mx(t)
            if t + 2 < 9:
                q = qk(t + 2)
                extra = kread(8) if t == 0 else vread(0)[:2] if t == 5 else vread(0)[2:] if t == 6 else []
                if t % 2 == 1:
                    extra = extra + popbg()
                p.ext([q[0]] + extra + popbg(bw) + m[:4] + [q[1]] + popbg(bw) + m[4:])
            else:
                p.ext(m)
        self.stamp('a1')
        a, b2, r1 = vT + 4, vT + 5, vT + 6
        p(f'v_max_f32 v{vM}, v{vM}, v{vM2}')
        p(f'v_mov_b32 v{a}, v{vM}')
        p(f'v_permlane32_swap_b32 v{vM}, v{a}')
        p(f'v_max_f32 v{vM}, v{vM}, v{a}')
        p(f'v_xor_b32 v{vM}, 0x80000000, v{vM}')
        p(f'v_and_b32 v{a}, 0xffff0000, v{vM}')
        p(f'v_sub_f32 v{r1}, v{vM}, v{a}')
        p(f'v_and_b32 v{a}, 0xffff0000, v{r1}')
        p(f'v_sub_f32 v{b2}, v{r1}, v{a}')
        p('s_mov_b32 exec_lo, 0')
        p(f'v_perm_b32 v{QF+6}, v{r1}, v{vM}, s{sPERM}')
        p(f'v_perm_b32 v{QF+7}, 1.0, v{b2}, s{sPERM}')
        p('s_mov_b64 exec, -1')

        def ex(t):
            s = ST + 16 * (t % 3)
            pb = PB + 8 * (t % 2)
            L = []
            for i in range(8):
                L.append(f'v_exp_f32 v{s+2*i}, v{s+2*i}')
                L.append(f'v_exp_f32 v{s+2*i+1}, v{s+2*i+1}')
                if i:
                    L.append(f'v_cvt_pk_bf16_f32 v{pb+i-1}, v{s+2*i-2}, v{s+2*i-1}')
            L.append(f'v_cvt_pk_bf16_f32 v{pb+7}, v{s+14}, v{s+15}')
            return L

        def pv(t):
            d = VF + 8 * (t % 2)
            pb = PB + 8 * (t % 2)
            return [f'{MF32} {vr(OA,16)}, {vr(d)}, {vr(pb)}, {vr(OA,16) if t else 0}',
                    f'{MF32} {vr(OA,16)}, {vr(d+4)}, {vr(pb+4)}, {vr(OA,16)}']

        self.pad()

        def wol(i):
            ks, z = i // 2, i % 2
            return f'buffer_load_dwordx4 {vr(32+4*i)}, v{vZ+z}, {srd(S_WS)}, s{sWO + ks//2} offen offset:{(ks%2)*2048} sc1'
        p.ext(qk(0))
        p.ext(qk(1))
        for t in range(9):
            e = ex(t)
            mf = (pv(t - 1) if t else []) + (qk(t + 2) if t + 2 < 9 else [])
            out = []
            pos = [2, 7, 12, 17]
            for i, x in enumerate(e):
                out.append(x)
                if i in pos and pos.index(i) < len(mf):
                    k = pos.index(i)
                    out.append(mf[k])
                    if t + 1 < 9:
                        if t == 0:
                            out += vread(1)[2 * k:2 * k + 2]
                        elif k in (1, 2):
                            out += vread(t + 1)[2 * (k - 1):2 * (k - 1) + 2]
                        elif t == 7 and k == 1:
                            pass
                    if t < 6 and k in (0, 3) or t == 0:
                        out += popbg()
                    if t < 7:
                        out += popbg(bw) + (popbg(bw) if k % 2 or t == 0 else [])
                    if t >= 7:
                        out += [wol(8 * (t - 7) + 4 * k + q) for q in range(4)]
            if t == 7:
                out = out[:-3] + vread(8)[2:] + out[-3:]
            p.ext(out)
        assert not bg and not bw, (len(bg), len(bw))
        p.ext(pv(8))
        self.stamp('a2')
        p(f'v_mov_b32 v{a}, v{OA+12}')
        p(f'v_mov_b32 v{b2}, v{OA+12}')
        p(f'v_permlane32_swap_b32 v{a}, v{b2}')
        p(f'v_rcp_f32 v{b2}, v{b2}')
        for i in range(8):
            p(f'v_pk_mul_f32 {vr(OA+2*i,2)}, {vr(OA+2*i,2)}, {vr(a,2)} op_sel:[0,1] op_sel_hi:[1,1]')
            p(f'v_cvt_pk_bf16_f32 v{PB+i}, v{OA+2*i}, v{OA+2*i+1}')
            if i % 4 == 3:
                p(f'buffer_store_dwordx4 {vr(PB+i-3)}, v{vL16}, {srd(S_WS)}, s{sOD} offen offset:{(i//4)*1024}', tok='ost')
        self.publish(['ost'], sOF)
        self.stamp('att')

    def reduce_writes(self, ACC):
        return [Ins(f'ds_write_b128 v{vRW+x-1}, {vr(ACC+16*x+4*c)} offset:{c*1024}', 'rw') for x in range(1, 4) for c in range(4)]

    def reduce_finish(self, ACC, TMP):
        p = self.p
        p.wait('rw')
        self.pad()
        p('s_barrier')
        for c in range(4):
            for x in range(3):
                p(f'ds_read_b128 {vr(TMP+16*x+4*c)}, v{vRW+3} offset:{x*4096+c*1024}')
        for c in range(8):
            p(f'v_pk_add_f32 {vr(TMP+2*c,2)}, {vr(TMP+2*c,2)}, {vr(TMP+16+2*c,2)}')
            p(f'v_pk_add_f32 {vr(ACC+2*c,2)}, {vr(ACC+2*c,2)}, {vr(TMP+32+2*c,2)}')
            p(f'v_pk_add_f32 {vr(ACC+2*c,2)}, {vr(ACC+2*c,2)}, {vr(TMP+2*c,2)}')

    def yoffs(self, dst, mul, add):
        L = []
        for y in range(2):
            L += [f's_xor_b32 s{sT0}, s{sRHO}, {y}', f's_lshl_b32 s{sT1}, s{sRB}, 1', f's_add_u32 s{sT0}, s{sT0}, s{sT1}',
                  f's_lshl_b32 s{sT0}, s{sT0}, 2', f's_add_u32 s{sT0}, s{sT0}, s{sW}'] + self.roff(dst + y, sT0, mul, add)
        return L

    def p3(self):
        p, L0 = self.p, self.L == 0
        WO, OF, ACC, RING = 32, 96, 160, 200

        def colsum(part, AC=ACC, RG=RING, T=vT):
            for i in range(4):
                p(f'v_mov_b32 v{T+4+i}, s{sONES}')
            p(f's_lshl_b32 s{sT0}, s{sW}, 10')
            if part == 0:
                p(f'v_add_u32 v{T}, s{sT0}, v{vL16}')
            else:
                p(f's_min_u32 s{sT0}, s{sT0}, 2048')
                p(f'v_add_u32 v{T}, s{sT0}, v{vA1}')
            NRG = 6 if part == 0 else 4
            rd = lambda f: f'ds_read_b128 {vr(RG+4*(f%NRG))}, v{T} offset:{f*(4096, 3072)[part]}'
            for f in range(NRG - 1):
                p(rd(f))
            for f in range(14):
                p(f'{MF16} {vr(AC)}, {vr(T+4)}, {vr(RG+4*(f%NRG))}, {vr(AC) if f else 0}')
                if f + NRG - 1 < 14:
                    p(rd(f + NRG - 1))
            p(f's_lshl_b32 s{sT0}, s{sW}, 6')
            p(f's_add_u32 s{sT0}, s{sT0}, {L_CS1 + 256*part}')
            p(f'v_and_b32 v{T}, 15, v{vL}')
            p(f'v_lshlrev_b32 v{T}, 2, v{T}')
            p(f'v_add_u32 v{T}, s{sT0}, v{T}')
            p(f'ds_write_b32 v{T}, v{AC}')
            p('s_waitcnt lgkmcnt(0)')
        w1d = []
        self.pad()
        p('s_barrier')
        if L0:
            colsum(0)
        ljoin, lidle = p.newlabel('p3join'), p.newlabel('p3idle')
        p(f's_cmp_ge_u32 s{sM}, 28')
        p(f's_cbranch_scc1 {lidle}')
        p.mark('maybe_begin')
        sFO, sY = sO, sO + 2
        p(f's_lshl_b32 s{sT0}, s{sRB}, 3')
        p(f's_add_u32 s{sT0}, s{sT0}, s{sW}')
        p.ext(self.off(sFO, sT0, 32, O_FO))
        p.ext(self.yoffs(sY, 8192, O_O))
        p(f's_add_u32 s{sY+2}, s{sY}, 4096')
        p(f's_add_u32 s{sY+3}, s{sY+1}, 4096')
        self.vpoll(vFLG, f's{sFO}', 8)
        self.stamp('B')

        def ld(ks, y):
            return f'buffer_load_dwordx4 {vr(OF+(ks*2+y)*4)}, v{vL16}, {srd(S_WS)}, s{sY + 2*(ks//4) + y} offen offset:{(ks%4)*1024} sc1'

        def mf(ks, x):
            y, z = x >> 1, x & 1
            c = vr(ACC + 16 * x, 16) if ks else (vr(vRES, 16) if x == 0 else '0')
            return f'{MF32} {vr(ACC+16*x,16)}, {vr(WO+(ks*2+z)*4)}, {vr(OF+(ks*2+y)*4)}, {c}'
        for ks in range(5):
            for y in range(2):
                p(ld(ks, y))
        rest = list(w1d)
        for ks in range(8):
            for x in (1, 2, 3):
                p(mf(ks, x))
                if ks + 5 < 8 and x < 3:
                    p(ld(ks + 5, x - 1))
                elif ks >= 3 and rest:
                    y = rest.pop(0)
                    p.ext([y])
                    while rest and not is_mem(y):
                        y = rest.pop(0)
                        p.ext([y])
        assert not rest
        self.stamp('p3mm')
        p.ext(sched([mf(ks, 0) for ks in range(8)], {}, {}, self.reduce_writes(ACC), 2, start=2))
        self.stamp('p3rw')
        self.reduce_finish(ACC, 32)
        self.stamp('p3rd')
        P = 96
        for i in range(8):
            p(f'v_cvt_pk_bf16_f32 v{P+i}, v{ACC+2*i}, v{ACC+2*i+1}')
        self.x_store(P, vX1A, (0, 512))
        self.publish(['xst'], sXF)
        self.stamp('p3pub')
        p.ext(self.res_unpack(P))
        p.mark('maybe_end')
        p.label(ljoin)
        idle = [f'v_lshlrev_b32 v{vT}, 7, v{vL}', f's_lshl_b32 s{sT0}, s{sCB}, 2', f's_add_u32 s{sT0}, s{sT0}, s{sW}']
        if L0:
            idle += [f's_lshl_b32 s{sT1}, s{sT0}, 7', f's_add_u32 s{sT1}, s{sT1}, {F_W1}'] + self.poll_loop(vL8, f's{sT1}', 14)
        idle += [f's_mul_i32 s{sT1}, s{sT0}, 100352'] + self.prefetch(vT, sT1, W1T + 57344, 43008)
        self.tail.append((lidle, idle + [f's_branch {ljoin}']))
        self.colsum = colsum
        self.stamp('p3')

    def p45(self):
        p, L0 = self.p, self.L == 0
        X, ACC, RING, CS = 32, 144, 200, 224
        sXO, sST, sFX, sH, sHF = sO, sO + 4, sO + 5, sO + 6, sO + 8
        sFH, sST5, sW2 = sO + 9, sO + 10, sO + 11
        sY = [76, 77, 78, 79, sO + 12, sO + 13, sO + 14, sO + 15]
        vTC, vHA, vHB, vZ, vLb, PO = vT, vT + 1, vT + 2, (vT + 3, vT + 13), vT + 12, vT + 4
        p.ext(self.w1_dma(1))
        p.ext(self.xoff(sXO, sTP, 28672, O_X1))
        for g in range(1, 4):
            p(f's_add_u32 s{sXO+g}, s{sXO}, {8192*g}')
        p.ext(self.off(sST, sTP, 3584, O_ST1))
        p.ext(self.off(sFX, sTP, 128, O_FX1))
        p(f's_lshl_b32 s{sT0}, s{sTP}, 4')
        p(f's_add_u32 s{sT0}, s{sT0}, s{sJ}')
        p.ext(self.roff(sH, sT0, 7168, O_H))
        p(f's_add_u32 s{sH+1}, s{sH}, 4096')
        p.ext(self.off(sHF, sT0, 8, O_FH))
        p.ext([f'v_lshrrev_b32 v{vCSA}, 4, v{vL}', f'v_lshlrev_b32 v{vCSA}, 4, v{vCSA}', f'v_add_u32 v{vCSA}, {L_CS1}, v{vCSA}',
               f'v_lshrrev_b32 v{vHA}, 5, v{vL}', f'v_lshlrev_b32 v{vHA}, 10, v{vHA}',
               f'v_bfe_u32 v{vHB}, v{vL}, 4, 1', f'v_lshl_add_u32 v{vHA}, v{vHB}, 9, v{vHA}',
               f'v_and_b32 v{vTC}, 15, v{vL}', f'v_lshl_add_u32 v{vHA}, v{vTC}, 4, v{vHA}',
               f'v_lshlrev_b32 v{vHB}, 3, v{vHB}', f'v_lshl_add_u32 v{vHB}, v{vTC}, 4, v{vHB}',
               f'v_lshrrev_b32 v{vTC}, 5, v{vL}', f'v_lshl_add_u32 v{vHB}, v{vTC}, 9, v{vHB}',
               f'v_add_u32 v{vLb}, 4096, v{vL16}'])
        sRBc = sPOLL
        p(f's_min_u32 s{sRBc}, s{sRB}, 3')
        p(f's_lshl_b32 s{sT0}, s{sRBc}, 3')
        p(f's_add_u32 s{sT0}, s{sT0}, s{sW}')
        p.ext(self.off(sFH, sT0, 32, O_FH))
        for y in range(2):
            p.ext([f's_xor_b32 s{sT0}, s{sRHO}, {y}', f's_lshl_b32 s{sT1}, s{sRBc}, 1', f's_add_u32 s{sT0}, s{sT0}, s{sT1}',
                   f's_lshl_b32 s{sT0}, s{sT0}, 2', f's_add_u32 s{sT0}, s{sT0}, s{sW}'] + self.roff(sT2, sT0, 28672, O_H))
            for sl in range(4):
                p.ext([f's_add_u32 s{sT0}, {ROT}, {sl}', f's_and_b32 s{sT0}, s{sT0}, 3', f's_mul_i32 s{sT0}, s{sT0}, 7168',
                       f's_add_u32 s{sY[2*sl+y]}, s{sT2}, s{sT0}'])
        p(f's_lshl_b32 s{sT0}, s{sRBc}, 1')
        p(f's_add_u32 s{sT0}, s{sT0}, s{sRHO}')
        p.ext(self.off(sST5, sT0, 3584, O_ST1))
        if L0:
            p.ext(self.pub_offsets(O_XA + LSTRIDE, O_STA + LSTRIDE, O_FXA + LSTRIDE))
            p.ext([f's_lshl_b32 s{sT1}, s{sJ}, 7', f's_add_u32 s{sT1}, s{sT1}, {F_WQ - 14*8}',
                   f'v_mov_b32 v{PO}, s{sFX}', f'v_mov_b32 v{PO+1}, s{sT1}', f'v_cmp_le_u32 vcc, 14, v{vL}',
                   f'v_cndmask_b32 v{PO}, v{PO}, v{PO+1}, vcc', f'v_add_u32 v{PO}, v{PO}, v{vL8}'])
        p(f'v_lshlrev_b32 v{vTC}, 7, v{vL}')
        seq = [(t, s) for s in range(14) for t in range(4)] + [(t, s) for s in range(14) for t in range(4, 7)]

        def frag(f):
            base, off = (vL16, f * 1024) if f < 56 else (vA1, (f - 56) * 1024)
            return f'ds_read_b128 {vr(RING + 4*(f % 6))}, v{base} offset:{off}'

        def mf(f, u):
            t, s = seq[f]
            return f'{MF16} {vr(ACC+8*t+4*u)}, {vr(RING+4*(f%6))}, {vr(X+4*(2*s+u))}, {vr(ACC+8*t+4*u) if s else 0}'

        def xl(i):
            return f'buffer_load_dwordx4 {vr(X+4*i)}, v{(vL16, vLb)[(i//4)%2]}, {srd(S_WS)}, s{sXO + i//8} offen offset:{(i%4)*1024} sc1'

        def cs_reads(tiles):
            return [f'ds_read_b128 {vr(CS+4*(t%4))}, v{vCSA} offset:{t*64}' for t in tiles]
        PD = 4
        for f in range(PD):
            p(frag(f))
        self.pad()
        if L0:
            self.vpoll(PO, '0', 28)
        else:
            self.vpoll(vL8, f's{sFX}', 14)
        self.stamp('C')
        XP = 8
        for i in range(XP):
            p(xl(i))
        mem, pre = {}, {}
        for f in range(98):
            mem[2 * f] = [frag(f + PD)] if f + PD < 98 and not (f < 56 <= f + PD) else []
            mem[2 * f + 1] = []
            if f < 56 and f % 2 == 0 and f // 2 + XP < 28:
                mem[2 * f + 1] = [xl(f // 2 + XP)]
            if 27 <= f < 41 and f % 2 == 1:
                mem[2 * f + 1] = [self.stats_loads(sST, CS)[(f - 27) // 2]]
            if f % 2 == 0:
                tch = vr(RING + 4 * (f % 6)) + ' ' + vr(RING + 4 * ((f + 1) % 6))
                if f < 56 and f % 4 == 0:
                    tch += ' ' + vr(X + 8 * (f // 4), 8)
                pre[2 * f] = [Touch(tch)]
        i = 2 * 41 + 1
        if not (L0 and (HATT or os.environ.get('NOH'))):
            mem[i] += self.touch(vTC, sH, 0, 56)
        if L0:
            xa = [f'v_add_u32 v{PO}, s{sXD}, v{vTC}', f's_add_u32 s{sT0}, s{sFX}, {LSTRIDE + O_FXA - O_FX1}', f's_add_u32 s{sT1}, s{sXS}, 128']
            for lane, r in ((16, sXS), (17, sT1), (18, sXF), (19, sT0)):
                xa.append(f'v_writelane_b32 v{PO}, s{r}, {lane}')
            mem[i + 2] += xa
            mem[i + 4].append(self.setexec(20) + [f'buffer_load_dword a255, v{PO}, {srd(S_WS)}, 0 offen sc1', 's_mov_b64 exec, -1'])
        for f in (0, 16, 38):
            mem[2 * f + 1] += self.stamp_items(f'g{f}')
        mfs = [mf(f, u) for f in range(98) for u in range(2)]
        side = self.stats_reduce(CS) + [f'v_mov_b32 v{vRSTD}, v{vMEAN}', 's_nop 0', f'v_permlane16_swap_b32 v{vMEAN}, v{vRSTD}']
        p.ext(sched(mfs[:112], pre, mem, side, 2, start=88))
        self.stamp('p4m1')
        self.pad()
        p('s_barrier')
        p.ext(cs_reads([0, 1, 2, 3]))
        self.stamp('p4g1')

        def epi(tiles, tok):
            L = []
            pairs = [tiles[i:i + 2] for i in range(0, len(tiles), 2)]
            n = 0
            for pr in pairs:
                for u in range(2):
                    po = PO + 4 * (n % 2)
                    n += 1
                    for k, t in enumerate(pr):
                        a = ACC + 8 * t + 4 * u
                        for r in (0, 2):
                            L.append(f'v_pk_fma_f32 {vr(a+r,2)}, {vr(CS+4*(t%4)+r,2)}, {vr(vMEAN,2)}, {vr(a+r,2)} op_sel:[0,{u},0] op_sel_hi:[1,{u},1]')
                    for k, t in enumerate(pr):
                        a = ACC + 8 * t + 4 * u
                        for r in range(2):
                            L.append(f'v_cvt_pk_bf16_f32 v{po+2*k+r}, v{a+2*r}, v{a+2*r+1}')
                    for k, t in enumerate(pr):
                        for r in range(2):
                            L.append(f'v_pk_max_i16 v{po+2*k+r}, v{po+2*k+r}, 0')
                    t = pr[0]
                    so, off = (sH, t * 1024) if t < 4 else (sH + 1, (t - 4) * 1024)
                    if len(pr) == 2:
                        L.append(Ins(f'buffer_store_dwordx4 {vr(po)}, v{vHA}, {srd(S_WS)}, s{so} offen offset:{off+u*256}', tok))
                    else:
                        L.append(Ins(f'buffer_store_dwordx2 {vr(po,2)}, v{vHB}, {srd(S_WS)}, s{so} offen offset:{off+u*256}', tok))
            return L
        for f in range(56, 56 + PD):
            p(frag(f))
        p.ext(epi([0, 1, 2, 3], 'h1'))
        if L0:
            self.colsum(1, AC=144, RG=160, T=vT + 4)
            p('s_barrier')
            for f in range(56, 56 + PD):
                pass
        self.stamp('p4e1')
        HR, AC5, NR, PD5, TAIL = 32, 160, 16, 5, 14
        order = ORDER

        def ld(i, y):
            sl, sg = order[i] // 7, order[i] % 7
            return (f'buffer_load_dwordx4 {vr(HR+((i%NR)*2+y)*4)}, v{(vL16, vLb)[sg//4]}, {srd(S_WS)}, s{sY[2*sl+y]} '
                    f'offen offset:{(sg%4)*1024} sc1')

        def m5(i, x):
            y, z = x >> 1, x & 1
            return f'{MF32} {vr(AC5+16*x,16)}, {ar(order[i]*8+z*4)}, {vr(HR+((i%NR)*2+y)*4)}, {vr(AC5+16*x,16) if i else 0}'
        pre2 = {i - 112: v for i, v in pre.items() if i >= 112}
        mem2 = {i - 112: v for i, v in mem.items() if i >= 112}
        NW2A = 14 if L0 else 0
        mem2[19] = self.publish_items(['h1'], sHF) + mem2[19]
        mem2[57] += self.peek_issue(vFLG, f's{sFH}', 8)
        mem2[59] += cs_reads([4, 5])
        mem2[61] += cs_reads([6])
        mem2[63] += self.peek_check(vFLG, f's{sFH}', 8)
        for k in range(2 * PD5):
            mem2[65 + 2 * k].append(ld(k // 2, k % 2))
        p.ext(sched(mfs[112:], pre2, mem2, [], 2, start=0))
        self.stamp('p4g2')
        p.ext(epi([4, 5, 6], 'h2'))
        self.stamp('p4')
        lskip, ljoin = p.newlabel('p5skip'), p.newlabel('p5join')
        self.pad()
        p(f's_cmp_ge_u32 s{sM}, 28')
        p(f's_cbranch_scc1 {lskip}')
        idle = ['s_waitcnt vmcnt(0)'] + self.publish_items([], sHF, 1024)
        if L0:
            idle += [f's_lshl_b32 s{sT0}, s{sCB}, 2', f's_add_u32 s{sT0}, s{sT0}, s{sW}', f's_lshl_b32 s{sT1}, s{sT0}, 7',
                     f's_add_u32 s{sT1}, s{sT1}, {F_WQ}'] + self.poll_loop(vL8, f's{sT1}', 14)
            idle += [f's_mul_i32 s{sT1}, s{sT0}, 86016'] + self.prefetch(vTC, sT1, WQT, 57344)
            idle += ['s_waitcnt vmcnt(0)', 's_barrier'] + self.wq_dma((0, 1)) + [f's_branch {ljoin}']
        else:
            idle += [f's_cmp_lg_u32 s{sM}, 28', 's_cbranch_scc1 L_fin', f's_cmp_lg_u32 s{sW}, 0', 's_cbranch_scc1 L_fin',
                     f's_sleep {os.environ.get("WBSLEEP", 20)}'] + ([] if os.environ.get('NOWB') else ['buffer_wbl2 sc1']) + ['s_waitcnt vmcnt(0)', 's_branch L_fin']
        self.tail.append((lskip, idle))
        mfs, mem = [], {}
        w2b = []
        stl = self.stats_loads(sST5, CS)
        for i in range(28):
            xs = (0, 1, 2, 3) if i < 28 - TAIL else (1, 2, 3)
            for n, x in enumerate(xs):
                k = len(mfs)
                mfs.append(m5(i, x))
                mem[k] = []
                if i == 3 and n == 3:
                    mem[k] += self.publish_items(['h2'], sHF, 1024)
                if i == 8 and n == 3:
                    mem[k] += self.peek_issue(vFLG, f's{sFH}', 8, 1024)
                if i == 11 and n == 0:
                    mem[k] += self.stamp_items('pk0') + self.peek_check(vFLG, f's{sFH}', 8, 1024) + self.stamp_items('pk1')
                if i + PD5 < 28 and n < 2:
                    mem[k].append(ld(i + PD5, n))
                elif w2b and n >= 2:
                    mem[k].append(w2b.pop(0))
                elif i + PD5 >= 28 and stl:
                    mem[k].append(stl.pop(0))
        assert not w2b and not stl
        p.ext(sched(mfs, {}, mem, [], 6))
        self.stamp('p5mm')
        mem = {}
        for i, x in enumerate(self.reduce_writes(AC5)):
            mem.setdefault(2 + i, []).append(x)
        p.ext(sched([m5(i, 0) for i in range(28 - TAIL, 28)], {}, mem, self.stats_reduce(CS), 5, start=0))
        self.stamp('p5rw')
        self.reduce_finish(AC5, 32)
        self.stamp('p5rd')
        P = 96
        for i in range(8):
            p(f'v_pk_fma_f32 {vr(AC5+2*i,2)}, {vr(AC5+2*i,2)}, {vr(vMEAN,2)}, {vr(vRES+2*i,2)} op_sel:[0,1,0] op_sel_hi:[1,1,1]')
            p(f'v_cvt_pk_bf16_f32 v{P+i}, v{AC5+2*i}, v{AC5+2*i+1}')
        if L0:
            self.x_store(P, vL16, (0, 1024))
            wq = self.wq_dma((0, 1))
            p.ext(wq[:9])
            self.publish(['xst'], sXF)
            p.ext(wq[9:])
            self.stamp('p5pub')
            p.ext(self.res_unpack(P))
            p.label(ljoin)
            p(f's_add_u32 s{sLB}, s{sLB}, {LSTRIDE}')
            p('s_waitcnt vmcnt(0) lgkmcnt(0)')
            p('s_barrier')
            return
        p(f'v_and_b32 v{vT+4}, 31, v{vL}')
        p(f'v_mul_u32_u24 v{vT+4}, 896, v{vT+4}')
        p(f'v_lshrrev_b32 v{vT+5}, 5, v{vL}')
        p(f'v_lshl_add_u32 v{vT+4}, v{vT+5}, 4, v{vT+4}')
        for hf in range(2):
            p(f'v_permlane32_swap_b32 v{P+4*hf}, v{P+4*hf+2}')
            p(f'v_permlane32_swap_b32 v{P+4*hf+1}, v{P+4*hf+3}')
            p(f'buffer_store_dwordx4 {vr(P+4*hf)}, v{vT+4}, {srd(S_OUT)}, s{sQOFF} offen offset:{32*hf}')
        p('s_cmp_lg_u32 s2, %d' % (27 * 8 + 7))
        p('s_cbranch_scc1 L_fin')
        p(f's_mov_b32 s{sT0}, {WS_EPOCH}')
        p.ext(self.flag_sc1(sT0))

    def build(self):
        p = self.p
        self.L = 0
        self.prologue()
        for self.L in range(2):
            for ph in ('p1', 'attn', 'p3', 'p45'):
                getattr(self, ph)()
        p.label('L_fin')
        self.stamp('end')
        self.stamp_dump()
        if os.environ.get('CALIB'):
            p.label('L_calib')
            p('s_memrealtime s[96:97]')
            p('s_waitcnt lgkmcnt(0)')
            p('s_sub_u32 s96, s96, s100')
            p(f's_cmp_lt_u32 s96, {int(os.environ["CALIB"])}')
            p('s_cbranch_scc1 L_calib')
        p.label('L_end')
        p('s_endpgm')
        for lab, code in self.tail:
            p.label(lab, reset='all')
            p.ext(code)
        p.label('L_codeend')
        self.emit_walker()
        p.insert_waits()
        probs = p.fix_hazards()
        for x in probs:
            print('branch hazard padded', x, file=sys.stderr)
        mx = p.maxregs()
        head = open(os.path.join(os.path.dirname(__file__), '..', 'cdna_kernels', NAME + '.s.ref')).read().split('\n')
        hdr = [l for l in head if l.startswith(';') and '@launch' not in l]
        out = '\n'.join(hdr) + f'\n; @launch grid=(256,1,1) block=(256,1,1) lds={LDS_BYTES}\n'
        out += '.amdgcn_target "amdgcn-amd-amdhsa--gfx950"\n.text\n'
        out += f'.globl {NAME}_kernel\n.p2align 8\n.type {NAME}_kernel,@function\n{NAME}_kernel:\n'
        out += p.text()
        out += '.fill 64, 4, 0xbf800000\n'
        out += f'''.section .rodata,"a"
.p2align 6
.amdhsa_kernel {NAME}_kernel
  .amdhsa_next_free_vgpr 512
  .amdhsa_next_free_sgpr 102
  .amdhsa_accum_offset 256
  .amdhsa_group_segment_fixed_size 0
  .amdhsa_kernarg_size 72
  .amdhsa_user_sgpr_count 2
  .amdhsa_user_sgpr_kernarg_segment_ptr 1
  .amdhsa_system_sgpr_workgroup_id_x 1
  .amdhsa_float_denorm_mode_32 3
.end_amdhsa_kernel
'''
        print('regs', mx, 'instrs', sum(1 for x in p.items if isinstance(x, Ins)), file=sys.stderr)
        return out


if __name__ == '__main__':
    stop = int(sys.argv[2]) if len(sys.argv) > 2 else None
    k = K(stop if stop and stop > 0 else None, dbg=sys.argv[3].split(',') if len(sys.argv) > 3 else None)
    open(sys.argv[1], 'w').write(k.build())
    if k.dbg:
        open(os.path.join(os.path.dirname(sys.argv[1]), 'stamps.txt'), 'w').write(' '.join(k.stamps))
```

```python
import sys, os, math, struct
sys.path.insert(0, os.path.dirname(__file__))
from asmlib import Prog, Ins, Wait, Mark, Label, Touch

NAME = 'interleave_layers__sliding_block__dense_activation_relu__prompt'

WS_EPOCH = 0
WS_PUR = 0x1000
F_WQ = 0x2000
F_W1 = 0x2800
F_W2 = 0x3000
F_WO = 0x4000
WQT = 0x100000
W1T = 0x250000
WOT = 0x3D8000
W2T = 0x448000
TEAM0 = 0x600000
LSTRIDE = 0x230000
STRIDE = 2 * LSTRIDE
O_KV = 0x000000
O_O = 0x080000
O_X1 = 0x0C0000
O_XA = 0x0F8000
O_ST1 = 0x130000
O_STA = 0x138000
O_FKV = 0x140000
O_FO = 0x144000
O_FX1 = 0x144400
O_FXA = 0x144800
O_FH = 0x145000
O_H = 0x150000
WS_BYTES = TEAM0 + 8 * STRIDE

LKV = 100352
L_CSQ = 149504
L_CS1 = L_CSQ + 512
L_STAMP = 160 * 1024 - 512
L_PUR = L_CS1 + 512 + 1536
L_CSP = L_CS1 + 512
LDS_BYTES = 163840

S_X, S_WQ, S_WO, S_W1, S_W2, S_OUT, S_WS = 8, 12, 16, 20, 24, 28, 32
S_WSP = 36
sTEAM, sM, sA, sJ, sW, sRB, sCB, sLB = 40, 41, 42, 43, 44, 45, 46, 47
sF, sPURE, sLAYER, sTP = 48, 50, 51, 52
sQOFF = 53
sIMP = 54
sPERM, sONES = 56, 57
sRHO, sNU = 58, 59
sT0, sT1, sT2, sT3, sT4, sT5 = 60, 61, 62, 63, 64, 65
sCNT = 66
sTB = 71
sJFL = 67
sXD, sXS, sXF = 68, 69, 70
sPOLL = 72
sRQ, sLQ = 76, 77
sO = 80

vL, vL16, vA1, vL8 = 0, 1, 2, 3
vSTA = 4
vFLG = 5
vRW = 6
vX1A = 10
vCSA = 11
vF = 12
vMEAN, vRSTD = 14, 15
vT = 16
vRES = 240

POLL_MAX = 1 << 16
ROT = {'rb': f's{sRB}', 'team': f's{sTEAM}', '': '0'}[os.environ.get('ROT', '')]
ROT1 = {'a': f's{sA}', 'team': f's{sTEAM}', '': '0'}[os.environ.get('ROT1', '')]
HATT = bool(os.environ.get('HATT'))
ORDER = [7 * sl + sg for sl in range(4) for sg in range(4)] + [7 * sl + sg for sl in range(4) for sg in range(4, 7)]
MF32 = 'v_mfma_f32_32x32x16_bf16'
MF16 = 'v_mfma_f32_16x16x32_bf16'


def srd(b):
    return f's[{b}:{b+3}]'


def vr(b, n=4):
    return f'v[{b}:{b+n-1}]' if n > 1 else f'v{b}'


def ar(b, n=4):
    return f'a[{b}:{b+n-1}]'


def f32bits(x):
    return struct.unpack('<I', struct.pack('<f', x))[0]


def is_mem(x):
    if isinstance(x, (list, tuple)):
        return any(is_mem(y) for y in x)
    if isinstance(x, (Wait, Touch, Label, Mark)):
        return False
    t = x.text if isinstance(x, Ins) else x if isinstance(x, str) else ''
    return t.startswith('ds_') or t.startswith('buffer_') or t.startswith('global_')


def cost(x):
    if isinstance(x, (list, tuple)):
        return sum(cost(y) for y in x)
    if isinstance(x, (Wait, Touch)):
        return 1
    if isinstance(x, (Label, Mark)):
        return 0
    t = x.text if isinstance(x, Ins) else x
    return 2 if t.startswith('v_exp') or t.startswith('v_rsq') or t.startswith('v_rcp') or t.startswith('v_permlane') else 1


def sched(mfs, pre, mem, side, cap, start=0):
    out = []
    side = list(side)
    for i, m in enumerate(mfs):
        out += pre.get(i, [])
        out.append(m)
        n = 0
        for x in mem.get(i, []):
            out.append(x)
            n += cost(x)
        if pre.get(i + 1):
            n += 1
        valu = False
        if i >= start:
            while side and n + cost(side[0]) <= cap:
                if is_mem(side[0]) and valu:
                    break
                x = side.pop(0)
                if not is_mem(x) and not isinstance(x, (Wait, Touch)):
                    t = x[0] if isinstance(x, (list, tuple)) else x
                    if any((y.text if isinstance(y, Ins) else y).startswith('v_') for y in (x if isinstance(x, (list, tuple)) else [x]) if isinstance(y, (Ins, str))):
                        valu = True
                out.append(x)
                n += cost(x)
            if side and n == 0 and cost(side[0]) > cap:
                out.append(side.pop(0))
    return out + side


class K:
    def __init__(self, stop=None, dbg=False):
        self.p = Prog()
        self.stop = stop
        self.dbg = dbg
        self.stamps = []
        self.tail = []
        self.pads = []

    def stamp(self, name):
        if not self.dbg or (name not in self.dbg and name not in ('start', 'end')):
            return
        k = len(self.stamps)
        assert k < 32
        self.stamps.append(name)
        p = self.p
        p('s_memrealtime s[96:97]' if 'RT' in self.dbg else 's_memtime s[96:97]')
        if k == 0:
            p('v_readfirstlane_b32 s100, v0')
            p('s_lshr_b32 s100, s100, 6')
            p('s_lshl_b32 s101, s2, 2')
            p('s_add_u32 s100, s100, s101')
            p('s_lshl_b32 s100, s100, 7')
            p('s_add_u32 s100, s100, 0x40000')
        p('s_waitcnt lgkmcnt(0)')
        if k == 0:
            p('v_accvgpr_write_b32 a253, s96')
            return
        p('v_accvgpr_write_b32 a252, s96')
        p('s_mov_b64 exec, 1')
        p(f'buffer_store_dword a252, off, {srd(S_WS)}, s100 offset:{4*k}')
        p('s_mov_b64 exec, -1')

    def stamp_items(self, name):
        n = len(self.p.items)
        self.stamp(name)
        L = self.p.items[n:]
        del self.p.items[n:]
        return [L] if L else []

    def stamp_dump(self):
        if self.dbg:
            self.p(f'buffer_store_dword a253, off, {srd(S_WS)}, s100')

    def dma(self, srdb, voff, sreg, simm, m0, tok, sc='', n=1):
        mr, mi = m0
        L = [f's_add_u32 m0, s{mr}, {mi}' if mr is not None else f's_mov_b32 m0, {mi}',
             f's_add_u32 s{sT5}, s{sreg}, {simm}']
        for k in range(n):
            L.append(Ins(f'buffer_load_dwordx4 v{voff}, {srd(srdb)}, s{sT5} offen offset:{1024*k} {sc} lds', tok))
        return L

    @staticmethod
    def setexec(nl):
        if nl <= 32:
            return [f's_mov_b64 exec, {(1 << nl) - 1:#x}'] if nl < 32 else ['s_mov_b32 exec_hi, 0']
        return [f's_mov_b32 exec_hi, {(1 << (nl - 32)) - 1:#x}']

    def poll_loop(self, voff, soff, nl, imm=0):
        p = self.p
        lp, lo = p.newlabel('poll'), p.newlabel('pollout')
        return self.setexec(nl) + [f's_mov_b32 s{sCNT}, 0', Label(lp),
                f'buffer_load_dwordx2 {vr(vT + 14, 2)}, v{voff}, {srd(S_WS)}, {soff} offen offset:{imm} sc1',
                f's_add_u32 s{sCNT}, s{sCNT}, 1', f's_cmp_gt_u32 s{sCNT}, {POLL_MAX}', f's_cbranch_scc1 {lo}',
                's_waitcnt vmcnt(0)', f'v_cmp_ne_u64 vcc, s[{sF}:{sF+1}], {vr(vT + 14, 2)}', f's_cbranch_vccnz {lp}',
                Label(lo), 's_mov_b64 exec, -1']

    def vpoll(self, voff, soff, nl, acquire=True):
        p = self.p
        p.ext(self.poll_loop(voff, soff, nl))
        if acquire:
            lslow, lback = p.newlabel('acq'), p.newlabel('acqback')
            p(f's_cmp_lg_u32 s{sPURE}, 0')
            p(f's_cbranch_scc0 {lslow}')
            p.label(lback)
            self.tail.append((lslow, ['buffer_inv sc1', 's_waitcnt vmcnt(0)', f's_branch {lback}']))
        p.mark('drained_vm')

    def peek_issue(self, voff, soff, nl, imm=0):
        return [self.setexec(nl) + [f'buffer_load_dwordx2 {vr(vT + 14, 2)}, v{voff}, {srd(S_WS)}, {soff} offen offset:{imm} sc1',
                                    's_mov_b64 exec, -1']]

    def peek_check(self, voff, soff, nl, imm=0):
        p = self.p
        lslow, lback, lacq = p.newlabel('peek'), p.newlabel('peekback'), p.newlabel('peekacq')
        self.tail.append((lslow, self.poll_loop(voff, soff, nl, imm) +
                          [f's_cmp_lg_u32 s{sPURE}, 0', f's_cbranch_scc1 {lback}', 'buffer_inv sc1', 's_waitcnt vmcnt(0)',
                           f's_branch {lback}']))
        return [[Touch(vr(vT + 14, 2))] + self.setexec(nl) +
                [f'v_cmp_ne_u64 vcc, s[{sF}:{sF+1}], {vr(vT + 14, 2)}', 's_mov_b64 exec, -1',
                 f's_or_b64 vcc, vcc, s[{sIMP}:{sIMP+1}]', f's_cbranch_scc1 {lslow}', Label(lback)]]

    def publish_items(self, toks, soff, imm=0):
        p = self.p
        lslow, lback = p.newlabel('pubslow'), p.newlabel('pubback')
        self.tail.append((lslow, [
            'buffer_wbl2 sc1', 's_waitcnt vmcnt(0)',
            f'buffer_store_dwordx2 {vr(vF, 2)}, off, {srd(S_WS)}, s{soff} offset:{imm} sc1',
            f's_branch {lback}']))
        return [[Wait(toks), 's_mov_b64 exec, 1', f's_cmp_lg_u32 s{sPURE}, 0', f's_cbranch_scc0 {lslow}',
                 f'buffer_store_dwordx2 {vr(vF, 2)}, off, {srd(S_WS)}, s{soff} offset:{imm}', Label(lback), 's_mov_b64 exec, -1']]

    def publish(self, toks, soff, imm=0):
        self.p.ext(self.publish_items(toks, soff, imm))

    def flag_sc1(self, soff):
        return ['s_mov_b64 exec, 1', f'buffer_store_dwordx2 {vr(vF,2)}, off, {srd(S_WS)}, s{soff} sc1', 's_mov_b64 exec, -1']

    def flag_opt(self, soff):
        p = self.p
        l = p.newlabel('noflag')
        p(f's_cmp_eq_u32 s{soff}, -1')
        p(f's_cbranch_scc1 {l}')
        p.mark('maybe_begin')
        p.ext(self.flag_sc1(soff))
        p.mark('maybe_end')
        p.label(l)

    def stats_loads(self, soff, dst):
        return [f'buffer_load_dwordx2 {vr(dst + 2*i, 2)}, v{vSTA}, {srd(S_WS)}, s{soff} offen offset:{256*i} sc1' for i in range(7)]

    def stats_reduce(self, src):
        L = []
        for i in range(1, 7):
            L.append(f'v_add_f32 v{src}, v{src}, v{src+2*i}')
            L.append(f'v_add_f32 v{src+1}, v{src+1}, v{src+2*i+1}')
        s, q, t0, t1 = src, src + 1, src + 2, src + 3
        return L + [
            f'v_mov_b32 v{t0}, v{s}', f'v_mov_b32 v{t1}, v{q}', 's_nop 0',
            f'v_permlane32_swap_b32 v{s}, v{t0}', f'v_permlane32_swap_b32 v{q}, v{t1}',
            f'v_add_f32 v{s}, v{s}, v{t0}', f'v_add_f32 v{q}, v{q}, v{t1}',
            f'v_mul_f32 v{vMEAN}, {f32bits(-1.0/448):#x}, v{s}',
            f'v_mul_f32 v{q}, {f32bits(1.0/448):#x}, v{q}',
            f'v_fma_f32 v{q}, -v{vMEAN}, v{vMEAN}, v{q}',
            f'v_max_f32 v{q}, 0, v{q}',
            f'v_add_f32 v{q}, {f32bits(1e-5):#x}, v{q}',
            f'v_rsq_f32 v{vRSTD}, v{q}',
        ]

    def off(self, dst, idx_reg, mul, add):
        return [f's_mul_i32 s{dst}, s{idx_reg}, {mul}', f's_add_u32 s{dst}, s{dst}, s{sLB}', f's_add_u32 s{dst}, s{dst}, {add}']

    def xoff(self, dst, idx_reg, mul, add):
        return [f's_add_u32 s{sT3}, s{sLB}, {add}', f's_add_u32 s{sT4}, s{sTB}, {O_XA}', f's_cmp_lg_u32 s{sPURE}, 0',
                f's_cselect_b32 s{sT3}, s{sT4}, s{sT3}', f's_mul_i32 s{dst}, s{idx_reg}, {mul}', f's_add_u32 s{dst}, s{dst}, s{sT3}']

    def roff(self, dst, idx_reg, mul, add):
        return [f's_cmp_lg_u32 s{sPURE}, 0', f's_cselect_b32 s{sT3}, s{sTB}, s{sLB}',
                f's_mul_i32 s{dst}, s{idx_reg}, {mul}', f's_add_u32 s{dst}, s{dst}, s{sT3}', f's_add_u32 s{dst}, s{dst}, {add}']

    def pub_offsets(self, xoff, stoff, foff):
        return [f's_lshl_b32 s{sT0}, s{sRB}, 1', f's_add_u32 s{sT0}, s{sT0}, s{sRHO}',
                f's_lshl_b32 s{sT1}, s{sCB}, 1', f's_add_u32 s{sT1}, s{sT1}, s{sNU}',
                f's_mul_i32 s{sT2}, s{sT0}, 14', f's_add_u32 s{sT2}, s{sT2}, s{sT1}'] + \
            self.xoff(sXD, sT2, 2048, xoff) + self.off(sXS, sT2, 256, stoff) + \
            [f's_lshl_b32 s{sT0}, s{sT0}, 4', f's_add_u32 s{sT0}, s{sT0}, s{sT1}'] + self.off(sXF, sT0, 8, foff) + \
            [f's_cmp_ge_u32 s{sM}, 28'] + [f's_cselect_b32 s{r}, {WS_PUR}, s{r}' for r in (sXD, sXS, sXF)]

    def x_store(self, P, va, offs, sc=''):
        p = self.p
        S, Q2, t0, t1 = vT + 6, vT + 7, vT + 8, vT + 9
        for k in range(2):
            p(f'buffer_store_dwordx4 {vr(P+4*k)}, v{va}, {srd(S_WS)}, s{sXD} offen offset:{offs[k]} {sc}', tok='xst')
        p(f'v_mov_b32 v{t0}, s{sONES}')
        p(f'v_dot2_f32_bf16 v{S}, v{P}, v{t0}, 0')
        p(f'v_dot2_f32_bf16 v{Q2}, v{P}, v{P}, 0')
        for i in range(1, 8):
            p(f'v_dot2_f32_bf16 v{S}, v{P+i}, v{t0}, v{S}')
            p(f'v_dot2_f32_bf16 v{Q2}, v{P+i}, v{P+i}, v{Q2}')
        p(f'v_mov_b32 v{t0}, v{S}')
        p(f'v_mov_b32 v{t1}, v{Q2}')
        p(f'v_permlane32_swap_b32 v{S}, v{t0}')
        p(f'v_permlane32_swap_b32 v{Q2}, v{t1}')
        p(f'v_add_f32 v{S}, v{S}, v{t0}')
        p(f'v_add_f32 v{Q2}, v{Q2}, v{t1}')
        p('s_mov_b32 exec_hi, 0')
        p(f'buffer_store_dwordx2 {vr(S,2)}, v{vL8}, {srd(S_WS)}, s{sXS} offen {sc}', tok='xst')
        p('s_mov_b64 exec, -1')

    def res_unpack(self, P):
        L = []
        for q in range(8):
            L.append(f'v_lshlrev_b32 v{vRES+2*q}, 16, v{P+q}')
            L.append(f'v_and_b32 v{vRES+2*q+1}, 0xffff0000, v{P+q}')
        return L

    def prefetch(self, v128, sreg, base, nbytes):
        L = []
        o = 0
        while o < nbytes:
            oo = min(o, nbytes - 8192)
            L += [f's_add_u32 s{sT5}, s{sreg}, {base + oo}', f'buffer_load_dword a255, v{v128}, {srd(S_WS)}, s{sT5} offen sc1']
            o += 8192
        return L

    def touch(self, v128, sreg, imm, nlines):
        L = [f's_add_u32 s{sT5}, s{sreg}, {imm}']
        if nlines < 64:
            L += self.setexec(nlines)
        L.append(f'buffer_load_dword a255, v{v128}, {srd(S_WS)}, s{sT5} offen sc1')
        if nlines < 64:
            L.append('s_mov_b64 exec, -1')
        return [L]

    def wq_dma(self, tiles):
        sg, sl = sPOLL + 2, sPOLL + 3
        L = [f's_mul_i32 s{sg}, s{sJ}, 86016', f's_mul_i32 s{sl}, s{sW}, 7168', f's_add_u32 s{sg}, s{sg}, s{sl}']
        for tau in tiles:
            for o, n in ((0, 4), (4096, 3)):
                d = self.dma(S_WS, vL16, sg, WQT + tau * 28672 + o, (sl, tau * 28672 + o), 'wq', 'sc1', n)
                L += [d[:3]] + d[3:]
        return L

    def w1_dma(self, part):
        sg, sl = sPOLL, sPOLL + 1
        L = []
        if part == 0:
            for hf in range(2):
                L += [f's_and_b32 s{sl}, {ROT1}, 1', f's_xor_b32 s{sl}, s{sl}, {hf}', f's_lshl_b32 s{sg}, s{sW}, 1', f's_add_u32 s{sl}, s{sl}, s{sg}',
                      f's_mul_i32 s{sl}, s{sl}, 7168', f's_mul_i32 s{sg}, s{sJ}, 100352', f's_add_u32 s{sg}, s{sg}, s{sl}']
                for o, n in ((0, 4), (4096, 3)):
                    d = self.dma(S_WS, vL16, sg, W1T + o, (sl, o), 'w1', 'sc1', n)
                    L += [d[:3]] + d[3:]
            return L
        else:
            L += [f's_mul_i32 s{sg}, s{sJ}, 100352', f's_mul_i32 s{sl}, s{sW}, 10240', f's_add_u32 s{sg}, s{sg}, s{sl}']
            groups = [(0, 4), (4096, 4), (8192, 2)]
            base = 57344
        for o, n in groups:
            d = self.dma(S_WS, vL16, sg, W1T + base + o, (sl, base + o), 'w1', 'sc1', n)
            L += [d[:3]] + d[3:]
        if part == 1:
            L += [f's_sub_u32 s{sg}, s{sg}, s{sl}', f's_lshl_b32 s{sl}, s{sNU}, 10', f's_add_u32 s{sg}, s{sg}, s{sl}']
            L.append(self.dma(S_WS, vL16, sg, W1T + 98304, (sl, 98304), 'w1', 'sc1', 1))
        return L

    def w2_setup(self, sbase, vz):
        return [f's_lshl_b32 s{sbase}, s{sCB}, 2', f's_add_u32 s{sbase}, s{sbase}, s{sW}', f's_mul_i32 s{sbase}, s{sbase}, 57344',
                f's_lshl_b32 s{sT1}, s{sNU}, 10', f'v_xor_b32 v{vz[0]}, s{sT1}, v{vL16}', f'v_xor_b32 v{vz[1]}, 1024, v{vz[0]}']

    def w2_loads(self, sbase, vz):
        L = []
        for sl in range(4):
            pre = [f's_add_u32 s{sT3}, {ROT}, {sl}', f's_and_b32 s{sT3}, s{sT3}, 3', f's_mul_i32 s{sT3}, s{sT3}, 14336',
                   f's_add_u32 s{sT3}, s{sT3}, s{sbase}']
            for sg in range(7):
                ks = 7 * sl + sg
                g = pre + [f's_add_u32 s{sT4}, s{sT3}, {W2T + sg*2048}',
                           f'buffer_load_dwordx4 {ar(ks*8)}, v{vz[0]}, {srd(S_WS)}, s{sT4} offen sc1']
                pre = []
                L += [g, f'buffer_load_dwordx4 {ar(ks*8+4)}, v{vz[1]}, {srd(S_WS)}, s{sT4} offen sc1']
        return L

    def lane_consts(self):
        p = self.p
        t0, t1 = vT + 6, vT + 7
        p(f'v_add_u32 v{vA1}, 57344, v{vL16}')
        p(f'v_and_b32 v{vSTA}, 31, v{vL}')
        p(f'v_lshlrev_b32 v{vSTA}, 3, v{vSTA}')
        p(f'v_lshrrev_b32 v{t0}, 5, v{vL}')
        p(f'v_mul_u32_u24 v{t1}, {7*256}, v{t0}')
        p(f'v_add_u32 v{vSTA}, v{vSTA}, v{t1}')
        p(f'v_lshrrev_b32 v{vFLG}, 2, v{vL}')
        p(f'v_lshlrev_b32 v{vFLG}, 7, v{vFLG}')
        p(f'v_and_b32 v{t1}, 3, v{vL}')
        p(f'v_lshl_add_u32 v{vFLG}, v{t1}, 3, v{vFLG}')
        for x in range(1, 4):
            p(f's_xor_b32 s{sT0}, s{sW}, {x}')
            p(f's_mul_i32 s{sT0}, s{sT0}, 12288')
            p(f's_add_u32 s{sT0}, s{sT0}, {LKV + (x-1)*4096}')
            p(f'v_add_u32 v{vRW+x-1}, s{sT0}, v{vL16}')
        p(f's_mul_i32 s{sT0}, s{sW}, 12288')
        p(f's_add_u32 s{sT0}, s{sT0}, {LKV}')
        p(f'v_add_u32 v{vRW+3}, s{sT0}, v{vL16}')
        p(f'v_bfe_u32 v{vX1A}, v{vL}, 4, 1')
        p(f'v_lshlrev_b32 v{vX1A}, 10, v{vX1A}')
        p(f'v_lshl_add_u32 v{vX1A}, v{t0}, 8, v{vX1A}')
        p(f'v_and_b32 v{t1}, 15, v{vL}')
        p(f'v_lshl_add_u32 v{vX1A}, v{t1}, 4, v{vX1A}')

    def pad(self):
        p = self.p
        k = len(self.pads)
        self.pads.append(f'L_pad{k}')
        p(f's_branch L_padskip{k}')
        p.label(f'L_pad{k}')
        p('s_setpc_b64 s[98:99]')
        p.label(f'L_padskip{k}')

    def emit_walker(self):
        L = []
        labs = [f'L_walk{w}' for w in range(4)]
        for w in range(1, 4):
            L += [Ins(f's_cmp_eq_u32 s{sW}, {w}'), Ins(f's_cbranch_scc1 {labs[w]}')]
        for w in range(4):
            if w:
                L.append(Label(labs[w]))
            for x in self.pads[w::4]:
                L.append(Ins(f's_call_b64 s[98:99], {x}'))
            if w < 3:
                L.append(Ins('s_branch L_walkend'))
        L.append(Label('L_walkend'))
        self.p.items[self.walker_at:self.walker_at] = L

    def rawq(self, tau, i):
        return (self.dma(S_WQ, self.vDQ, sRQ, (448, 896, 0)[tau] * 2 + i * 16 * 2688, (sLQ, tau * 28672 + i * 1024), f'rq{tau}{i}'))

    def xform(self, tau, R, vcs, vones, between=None):
        p = self.p

        def fin(i):
            p(f'ds_write_b128 v{self.vWQ}, {vr(R+4*i)} offset:{tau*28672+i*1024}')
            for q in range(4):
                p(f'v_dot2_f32_bf16 v{vcs}, v{R+4*i+q}, v{vones}, {f"v{vcs}" if i or q else 0}')
        for i in range(7):
            p.wait(f'rq{tau}{i}')
            for jj in range(2):
                p(f'ds_read_b64_tr_b16 {vr(R+4*i+2*jj,2)}, v{self.vTQ} offset:{tau*28672+i*1024+jj*512}')
            if between:
                between(i)
            if i >= 1:
                fin(i - 1)
        fin(6)

    def cs_partial(self, taus, vcs, t2, t3):
        p = self.p
        for k, tau in enumerate(taus):
            p(f'v_mov_b32 v{t2}, v{vcs+k}')
            p(f'v_permlane32_swap_b32 v{vcs+k}, v{t2}')
            p(f'v_add_f32 v{vcs+k}, v{vcs+k}, v{t2}')
        p(f'v_and_b32 v{t2}, 31, v{vL}')
        p(f'v_lshlrev_b32 v{t2}, 2, v{t2}')
        p(f's_mul_i32 s{sT0}, s{sW}, 384')
        p(f's_add_u32 s{sT0}, s{sT0}, {L_CSP}')
        p(f'v_add_u32 v{t3}, s{sT0}, v{t2}')
        for k, tau in enumerate(taus):
            p(f'ds_write_b32 v{t3}, v{vcs+k} offset:{tau*128}')

    def cs_sum(self, taus, R, t2, t3):
        p = self.p
        p(f'v_add_u32 v{t3}, {L_CSP}, v{t2}')
        for k, tau in enumerate(taus):
            for w in range(4):
                p(f'ds_read_b32 v{R+4*k+w}, v{t3} offset:{w*384+tau*128}')
        p(f'v_add_u32 v{t3}, {L_CSQ}, v{t2}')
        for k, tau in enumerate(taus):
            r = R + 4 * k
            p(f'v_add_f32 v{r}, v{r}, v{r+1}')
            p(f'v_add_f32 v{r+2}, v{r+2}, v{r+3}')
            p(f'v_add_f32 v{r}, v{r}, v{r+2}')
            p(f'ds_write_b32 v{t3}, v{r} offset:{tau*128}')
        p('s_waitcnt lgkmcnt(0)')

    def prologue(self):
        p = self.p
        t0, t1, t2, t3 = vT, vT + 1, vT + 2, vT + 3
        self.vDQ, self.vTQ, self.vWQ = vDQ, vTQ, vWQ = vT + 10, vT + 11, vT + 12
        p('s_cmp_ge_u32 s2, 256')
        p('s_cbranch_scc1 L_end')
        p(f's_load_dwordx16 s[{sO}:{sO+15}], s[0:1], 0')
        p(f's_load_dwordx2 s[{S_WSP}:{S_WSP+1}], s[0:1], 64')
        p(f's_getpc_b64 s[{sT0}:{sT0+1}]')
        p.label('L_pc')
        p(f'v_lshlrev_b32 v{t2}, 7, v0')
        p(f'global_load_dword a255, v{t2}, s[{sT0}:{sT0+1}]')
        p(f'v_add_u32 v{t2}, 0x8000, v{t2}')
        p(f'v_min_u32 v{t2}, L_codeend-L_pc, v{t2}')
        p(f'global_load_dword a255, v{t2}, s[{sT0}:{sT0+1}]')
        if os.environ.get('CALIB'):
            p('s_memrealtime s[100:101]')
        self.stamp('start')
        p(f'v_lshrrev_b32 v{vT}, 6, v0')
        p(f'v_and_b32 v{vL}, 63, v0')
        p(f'v_readfirstlane_b32 s{sW}, v{vT}')
        p(f's_lshr_b32 s{sM}, s2, 3')
        p(f's_and_b32 s{sTEAM}, s2, 7')
        p(f's_mul_i32 s{sRB}, s{sM}, 37')
        p(f's_lshr_b32 s{sRB}, s{sRB}, 8')
        p(f's_mul_i32 s{sT0}, s{sRB}, 7')
        p(f's_sub_u32 s{sCB}, s{sM}, s{sT0}')
        p(f's_lshr_b32 s{sRHO}, s{sW}, 1')
        p(f's_and_b32 s{sNU}, s{sW}, 1')
        p(f's_lshl_b32 s{sT0}, s{sTEAM}, 2')
        p(f's_add_u32 s{sT0}, s{sT0}, s{sRB}')
        p(f's_lshl_b32 s{sT1}, s{sT0}, 1')
        p(f's_add_u32 s{sT1}, s{sT1}, s{sRHO}')
        p(f's_mul_i32 s{sQOFF}, s{sT1}, {32*896}')
        p(f's_lshl_b32 s{sT1}, s{sCB}, 7')
        p(f's_add_u32 s{sQOFF}, s{sQOFF}, s{sT1}')
        p(f's_lshl_b32 s{sT1}, s{sNU}, 6')
        p(f's_add_u32 s{sQOFF}, s{sQOFF}, s{sT1}')
        vPK, vPQ, vH = vT + 14, vT + 15, vT + 13
        p(f'v_and_b32 v{t3}, 31, v{vL}')
        p(f'v_mul_u32_u24 v{t3}, 896, v{t3}')
        p(f'v_lshrrev_b32 v{vH}, 5, v{vL}')
        p(f'v_lshl_add_u32 v{t3}, v{vH}, 3, v{t3}')
        p(f's_lshl_b32 s{sT2}, s{sM}, 2')
        p(f's_add_u32 s{sT2}, s{sT2}, s{sW}')
        p(f's_mul_i32 s{sT3}, s{sT2}, 49')
        p(f'v_add_u32 v{t2}, s{sT3}, v{vL}')
        p(f'v_mul_u32_u24 v{vPK}, 74899, v{t2}')
        p(f'v_lshrrev_b32 v{vPK}, 20, v{vPK}')
        p(f'v_mul_u32_u24 v{vPK}, 7, v{vPK}')
        p(f'v_add_u32 v{vPK}, v{vPK}, v{t2}')
        p(f'v_lshlrev_b32 v{vPK}, 7, v{vPK}')
        b = sO

        def mksrd(d, src, n):
            p(f's_mov_b32 s{d}, s{src}')
            p(f's_and_b32 s{d+1}, s{src+1}, 0xffff')
            p(f's_mov_b32 s{d+2}, {n}')
            p(f's_mov_b32 s{d+3}, 0x20000')
        mksrd(S_X, b, 1835008)
        mksrd(S_WQ, b + 2, 1204224)
        XR = 96
        for q in range(4):
            p(f'buffer_load_dwordx2 {vr(XR+2*q,2)}, v{t3}, {srd(S_X)}, s{sQOFF} offen offset:{16*q}')
        p('s_mov_b32 exec_hi, 0x1ffff')
        p(f'buffer_load_dword a255, v{vPK}, {srd(S_WQ)}, 0 offen offset:896')
        p('s_mov_b64 exec, -1')
        p(f's_load_dwordx2 s[{sF}:{sF+1}], s[{S_WSP}:{S_WSP+1}], {WS_EPOCH}')
        for (d, src, n) in ((S_WO, b + 4, 401408), (S_W1, b + 8, 1605632),
                            (S_W2, b + 10, 1605632), (S_OUT, b + 12, 1835008), (S_WS, S_WSP, WS_BYTES)):
            mksrd(d, src, n)
        p(f's_mul_i32 s{sT3}, s{sT2}, 25')
        p(f'v_add_u32 v{t2}, s{sT3}, v{vL}')
        p(f'v_mul_u32_u24 v{vPQ}, 149797, v{t2}')
        p(f'v_lshrrev_b32 v{vPQ}, 20, v{vPQ}')
        p(f'v_mul_u32_u24 v{vPQ}, 14, v{vPQ}')
        p(f'v_add_u32 v{vPQ}, v{vPQ}, v{t2}')
        p(f'v_lshlrev_b32 v{vPQ}, 7, v{vPQ}')
        p(f's_and_b32 s{sJ}, s{sM}, 15')
        p(f's_lshr_b32 s{sA}, s{sM}, 4')
        p(f'v_lshrrev_b32 v{t0}, 2, v{vL}')
        p(f'v_and_b32 v{t1}, 3, v{vL}')
        p(f'v_lshlrev_b32 v{t3}, 3, v{t1}')
        p(f'v_lshlrev_b32 v{t1}, 4, v{t1}')
        self.stamp('ka')
        sI, sSTG = sO, sO + 1
        sFL, sDST, sJOB, sDST2 = sJFL, sO + 3, sO + 4, sO + 5

        p(f's_mul_i32 s{sLB}, s{sTEAM}, {STRIDE}')
        p(f's_add_u32 s{sLB}, s{sLB}, {TEAM0}')
        p(f's_mov_b32 s{sTB}, s{sLB}')
        p(f'v_lshlrev_b32 v{vL16}, 4, v{vL}')
        p(f'v_lshlrev_b32 v{vL8}, 3, v{vL}')
        p(f's_mov_b32 s{sONES}, 0x3f803f80')
        p(f's_mov_b32 s{sPURE}, 1')
        p(f's_mov_b64 s[{sIMP}:{sIMP+1}], 0')
        p.ext(self.pub_offsets(O_XA, O_STA, O_FXA))
        vD, vTR, vTR8 = vT + 4, vT + 5, vT + 13
        FR = 32
        p(f's_lshl_b32 s{sI}, s{sTEAM}, 1')
        p(f's_add_u32 s{sI}, s{sI}, s{sA}')
        p(f's_lshl_b32 s{sSTG}, s{sW}, 13')
        p(f's_add_u32 s{sSTG}, s{sSTG}, {LKV}')
        lA = [p.newlabel('jobA') for _ in range(4)]
        p(f's_mov_b32 s{sJOB}, 0')
        p.mark('maybe_begin')
        p(f's_cmp_ge_u32 s{sW}, 2')
        p(f's_cbranch_scc1 {lA[0]}')
        p(f's_cmp_eq_u32 s{sW}, 0')
        p(f's_cbranch_scc1 {lA[2]}')
        p(f's_cmp_ge_u32 s{sI}, 14')
        p(f's_cbranch_scc1 {lA[2]}')
        p(f'v_bfe_u32 v{vD}, v{vL}, 1, 3')
        p(f'v_bfe_u32 v{t2}, v{vL}, 4, 1')
        p(f'v_lshl_add_u32 v{vD}, v{t2}, 4, v{vD}')
        p(f'v_bfe_u32 v{t2}, v{vL}, 5, 1')
        p(f'v_lshl_add_u32 v{vD}, v{t2}, 3, v{vD}')
        p(f'v_mul_u32_u24 v{vD}, 3584, v{vD}')
        p(f'v_and_b32 v{t2}, 1, v{vL}')
        p(f'v_lshl_add_u32 v{vD}, v{t2}, 4, v{vD}')
        p(f's_mul_i32 s{sT0}, s{sI}, {32*3584}')
        p(f's_mul_i32 s{sT1}, s{sJ}, 224')
        p(f's_add_u32 s{sT0}, s{sT0}, s{sT1}')
        for t in range(7):
            p.ext(self.dma(S_W1, vD, sT0, t * 32, (sSTG, t * 1024), 'raw'))
        p(f's_mov_b32 s{sJOB}, 2')
        p('s_waitcnt vmcnt(8)')
        p(f's_branch {lA[3]}')
        p.label(lA[0])
        p(f'v_mul_u32_u24 v{vD}, 896, v{t0}')
        p(f'v_add_u32 v{vD}, v{vD}, v{t1}')
        p(f's_cmp_ge_u32 s{sM}, 28')
        p(f's_cbranch_scc1 {lA[1]}')
        sI2, sSL, sHF = sT2, sT3, sT4
        p(f's_lshl_b32 s{sI2}, s{sTEAM}, 2')
        p(f's_add_u32 s{sI2}, s{sI2}, s{sRB}')
        p(f's_lshr_b32 s{sSL}, s{sI2}, 1')
        p(f's_and_b32 s{sHF}, s{sI2}, 1')
        p(f's_mul_i32 s{sT0}, s{sSL}, {112*896}')
        p(f's_mul_i32 s{sT1}, s{sHF}, {64*896}')
        p(f's_add_u32 s{sT0}, s{sT0}, s{sT1}')
        p(f's_lshl_b32 s{sT1}, s{sCB}, 7')
        p(f's_add_u32 s{sT0}, s{sT0}, s{sT1}')
        p(f's_lshl_b32 s{sT1}, s{sNU}, 6')
        p(f's_add_u32 s{sT0}, s{sT0}, s{sT1}')
        for k in range(4):
            p.ext(self.dma(S_W2, vD, sT0, k * 16 * 896, (sSTG, k * 1024), 'raw'))
        p(f's_add_u32 s{sJOB}, s{sHF}, 3')
        p('s_waitcnt vmcnt(5)')
        p(f's_branch {lA[3]}')
        p.label(lA[1])
        p(f's_cmp_eq_u32 s{sTEAM}, 7')
        p(f's_cbranch_scc1 {lA[2]}')
        p(f's_mul_i32 s{sT0}, s{sCB}, {112*896}')
        p(f's_lshl_b32 s{sT1}, s{sTEAM}, 7')
        p(f's_add_u32 s{sT0}, s{sT0}, s{sT1}')
        p(f's_lshl_b32 s{sT1}, s{sNU}, 6')
        p(f's_add_u32 s{sT0}, s{sT0}, s{sT1}')
        for k in range(8):
            p.ext(self.dma(S_WO, vD, sT0, k * 16 * 896, (sSTG, k * 1024), 'raw'))
        p(f's_mov_b32 s{sJOB}, 5')
        p.label(lA[2])
        p('s_waitcnt vmcnt(1)')
        p.mark('maybe_end')
        p.label(lA[3])
        self.stamp('jA')
        lp0 = p.newlabel('p0skip')
        p(f's_cmp_ge_u32 s{sM}, 28')
        p(f's_cselect_b32 s{sXF}, -1, s{sXF}')
        p(f's_cbranch_scc1 {lp0}')
        p.mark('drained_vm')
        self.x_store(XR, vL16, (0, 1024), 'sc1')
        p.label(lp0)
        p(f's_lshl_b32 s{sTP}, s{sA}, 2')
        p(f's_add_u32 s{sTP}, s{sTP}, s{sW}')
        p(f's_lshl_b32 s{sT0}, s{sTP}, 4')
        p(f's_add_u32 s{sT0}, s{sT0}, s{sJ}')
        p.ext(self.off(sT1, sT0, 2048, O_O))
        p.ext(self.off(sT2, sT0, 7168, O_H))
        p(f's_add_u32 s{sT3}, s{sT2}, 4096')
        if os.environ.get('WA'):
            for sr, n in ((sT1, 2), (sT2, 4), (sT3, 3)):
                for k in range(n):
                    p(f'buffer_store_dwordx4 {vr(XR)}, v{vL16}, {srd(S_WS)}, s{sr} offen offset:{1024*k} sc1')
        p('s_mov_b64 exec, 0x1ffffff')
        p(f'buffer_load_dword a255, v{vPQ}, {srd(S_WQ)}, 0 offen')
        p('s_mov_b64 exec, -1')
        self.stamp('x0')
        p(f'v_mul_u32_u24 v{vDQ}, 2688, v{t0}')
        p(f'v_add_u32 v{vDQ}, v{vDQ}, v{t1}')
        p(f's_mul_i32 s{sRQ}, s{sW}, {7*16*2688}')
        p(f's_mul_i32 s{sT1}, s{sJ}, 56')
        p(f's_add_u32 s{sRQ}, s{sRQ}, s{sT1}')
        p(f's_mul_i32 s{sLQ}, s{sW}, 7168')
        p(f'v_bfe_u32 v{t2}, v{vL}, 4, 1')
        p(f'v_lshl_add_u32 v{t2}, v{t2}, 5, v{t3}')
        p(f'v_bfe_u32 v{vTR}, v{vL}, 2, 2')
        p(f'v_lshl_add_u32 v{t2}, v{vTR}, 6, v{t2}')
        p(f'v_lshl_add_u32 v{vTQ}, v{vH}, 8, v{t2}')
        p(f'v_add_u32 v{vTR}, s{sSTG}, v{vTQ}')
        p(f'v_add_u32 v{t2}, s{sSTG}, v{t2}')
        p(f'v_lshl_add_u32 v{vTR8}, v{vH}, 9, v{t2}')
        p(f'v_add_u32 v{vTQ}, s{sLQ}, v{vTQ}')
        p(f'v_add_u32 v{vWQ}, s{sLQ}, v{vL16}')
        p(f's_mov_b32 s{sPERM}, 0x07060302')
        self.lane_consts()
        vCSP = 104
        p(f'v_mov_b32 v{vCSP+3}, s{sONES}')
        p.ext(self.res_unpack(XR))
        p('s_waitcnt lgkmcnt(0)')
        p(f's_add_u32 s{sF}, s{sF}, 1')
        p(f's_addc_u32 s{sF+1}, s{sF+1}, 0')
        p(f'v_mov_b32 v{vF}, s{sF}')
        p(f'v_mov_b32 v{vF+1}, s{sF+1}')
        self.walker_at = len(p.items)
        self.stamp('wk')
        p('s_waitcnt vmcnt(1)')
        p.mark('drained_vm')
        self.stamp('rt1')
        for i in range(4):
            p.ext(self.rawq(0, i))
        self.flag_opt(sXF)

        def finish(nfr, offs):
            L = []
            base = None
            for k in range(nfr):
                hi, lo = offs[k] // 4096 * 4096, offs[k] % 4096
                if hi != base:
                    L.append(f's_add_u32 s{sT5}, s{sDST}, {hi}')
                    base = hi
                L.append(f'buffer_store_dwordx4 {vr(FR+4*k)}, v{vL16}, {srd(S_WS)}, s{sT5} offen offset:{lo} sc1')
            return L
        lB = {k: p.newlabel('jobB') for k in (3, 4, 5, 'join')}
        p(f's_mov_b32 s{sFL}, -1')
        p.mark('maybe_begin')
        p(f's_cmp_eq_u32 s{sJOB}, 0')
        p(f's_cbranch_scc1 {lB["join"]}')
        p(f's_cmp_eq_u32 s{sJOB}, 5')
        p(f's_cbranch_scc1 {lB[5]}')
        p(f's_cmp_ge_u32 s{sJOB}, 3')
        p(f's_cbranch_scc1 {lB[3]}')
        p(f'v_lshl_add_u32 v{vTR}, v{t0}, 5, v{t3}')
        p(f'v_add_u32 v{vTR}, s{sSTG}, v{vTR}')
        for t in range(7):
            for jj in range(2):
                p(f'ds_read_b64_tr_b16 {vr(FR+t*4+2*jj,2)}, v{vTR} offset:{t*1024+jj*512}')
        p(f's_mul_i32 s{sDST}, s{sJ}, 100352')
        p(f's_add_u32 s{sDST}, s{sDST}, {W1T}')
        p(f's_mul_i32 s{sDST2}, s{sI}, 3072')
        p(f's_add_u32 s{sDST2}, s{sDST2}, s{sDST}')
        p(f's_add_u32 s{sDST2}, s{sDST2}, 57344')
        p(f's_lshl_b32 s{sT0}, s{sI}, 12')
        p(f's_add_u32 s{sDST}, s{sDST}, s{sT0}')
        p(f's_lshl_b32 s{sFL}, s{sJ}, 4')
        p(f's_add_u32 s{sFL}, s{sFL}, s{sI}')
        p(f's_lshl_b32 s{sFL}, s{sFL}, 3')
        p(f's_add_u32 s{sFL}, s{sFL}, {F_W1}')
        p.ext(finish(4, [t * 1024 for t in range(4)]))
        for t in range(4, 7):
            p(f'buffer_store_dwordx4 {vr(FR+4*t)}, v{vL16}, {srd(S_WS)}, s{sDST2} offen offset:{(t-4)*1024} sc1')
        p(f's_branch {lB["join"]}')
        p.label(lB[3])
        for sg in range(2):
            for jj in range(2):
                p(f'ds_read_b64_tr_b16 {vr(FR+sg*4+2*jj,2)}, v{vTR} offset:{(16*jj+8*sg)*64}')
        p(f's_lshl_b32 s{sI2}, s{sTEAM}, 2')
        p(f's_add_u32 s{sI2}, s{sI2}, s{sRB}')
        p(f's_lshr_b32 s{sSL}, s{sI2}, 1')
        p(f's_and_b32 s{sHF}, s{sI2}, 1')
        p(f's_mul_i32 s{sDST}, s{sCB}, 229376')
        p(f's_mul_i32 s{sT0}, s{sSL}, 14336')
        p(f's_add_u32 s{sDST}, s{sDST}, s{sT0}')
        p(f's_lshl_b32 s{sT0}, s{sHF}, 13')
        p(f's_add_u32 s{sDST}, s{sDST}, s{sT0}')
        p(f's_lshl_b32 s{sT0}, s{sNU}, 10')
        p(f's_add_u32 s{sDST}, s{sDST}, s{sT0}')
        p(f's_add_u32 s{sDST}, s{sDST}, {W2T}')
        p(f's_lshl_b32 s{sFL}, s{sCB}, 5')
        p(f's_add_u32 s{sFL}, s{sFL}, s{sI2}')
        p(f's_lshl_b32 s{sFL}, s{sFL}, 1')
        p(f's_add_u32 s{sFL}, s{sFL}, s{sNU}')
        p(f's_lshl_b32 s{sFL}, s{sFL}, 3')
        p(f's_add_u32 s{sFL}, s{sFL}, {F_W2}')
        p(f's_cmp_eq_u32 s{sJOB}, 4')
        p(f's_cbranch_scc1 {lB[4]}')
        for sg in range(2, 4):
            for jj in range(2):
                p(f'ds_read_b64_tr_b16 {vr(FR+sg*4+2*jj,2)}, v{vTR} offset:{(32+16*jj+8*(sg%2))*64}')
        p.ext(finish(4, [k * 2048 for k in range(4)]))
        p(f's_branch {lB["join"]}')
        p.label(lB[4])
        for jj in range(2):
            p(f'ds_read_b64_tr_b16 {vr(FR+8+2*jj,2)}, v{vTR8} offset:{(32+4*jj)*64}')
        p('s_waitcnt lgkmcnt(0)')
        p.ext(finish(3, [k * 2048 for k in range(3)]))
        p(f's_branch {lB["join"]}')
        p.label(lB[5])
        for hd in range(4):
            for kp in range(2):
                for jj in range(2):
                    p(f'ds_read_b64_tr_b16 {vr(FR+(hd*2+kp)*4+2*jj,2)}, v{vTR} offset:{(28*hd+16*kp+8*jj)*64}')
        p(f's_lshl_b32 s{sFL}, s{sTEAM}, 2')
        p(f's_add_u32 s{sFL}, s{sFL}, s{sCB}')
        p(f's_lshl_b32 s{sDST}, s{sFL}, 14')
        p(f's_lshl_b32 s{sT0}, s{sNU}, 10')
        p(f's_add_u32 s{sDST}, s{sDST}, s{sT0}')
        p(f's_add_u32 s{sDST}, s{sDST}, {WOT}')
        p(f's_lshl_b32 s{sFL}, s{sFL}, 1')
        p(f's_add_u32 s{sFL}, s{sFL}, s{sNU}')
        p(f's_lshl_b32 s{sFL}, s{sFL}, 3')
        p(f's_add_u32 s{sFL}, s{sFL}, {F_WO}')
        p('s_waitcnt lgkmcnt(0)')
        p('s_mov_b32 exec_lo, 0')
        for hd in range(4):
            p(f'v_mov_b32 v{FR+(hd*2+1)*4+2}, 0')
            p(f'v_mov_b32 v{FR+(hd*2+1)*4+3}, 0')
        p('s_mov_b64 exec, -1')
        p.ext(finish(8, [k * 2048 for k in range(8)]))
        p.mark('maybe_end')
        p.label(lB['join'])
        p(f's_getreg_b32 s{sT0}, hwreg(HW_REG_XCC_ID)')
        p(f's_and_b32 s{sT0}, s{sT0}, 15')
        p(f's_lshl_b32 s{sT0}, s{sT0}, 28')
        p(f's_xor_b32 s{sT0}, s{sT0}, s{sF+1}')
        p(f'v_mov_b32 v{t2}, s{sF}')
        p(f'v_mov_b32 v{t3}, s{sT0}')
        p(f's_lshl_b32 s{sT1}, s{sTEAM}, 8')
        p(f's_lshl_b32 s{sT2}, s{sM}, 3')
        p(f's_add_u32 s{sT1}, s{sT1}, s{sT2}')
        p(f's_add_u32 s{sT1}, s{sT1}, {WS_PUR}')
        lx = p.newlabel('noxcc')
        p(f's_cmp_lg_u32 s{sW}, 0')
        p(f's_cbranch_scc1 {lx}')
        p.mark('maybe_begin')
        p('s_mov_b64 exec, 1')
        p(f'buffer_store_dwordx2 {vr(t2,2)}, off, {srd(S_WS)}, s{sT1} sc1')
        p('s_mov_b64 exec, -1')
        p.mark('maybe_end')
        p.label(lx)
        self.stamp('jB')
        for i in range(4, 7):
            p.ext(self.rawq(0, i))
        for i in range(7):
            p.ext(self.rawq(1, i))
        self.xform(0, 128, vCSP, vCSP + 3)
        self.flag_opt(sFL)
        self.stamp('xf0')
        self.xform(1, 160, vCSP + 1, vCSP + 3)
        self.cs_partial((0, 1), vCSP, t2, t3)
        p('s_waitcnt lgkmcnt(0)')
        p('s_barrier')
        self.stamp('bar')
        self.cs_sum((0, 1), 108, t2, t3)
        self.stamp('pro')

    def wqt_publish(self, R):
        p = self.p
        l = p.newlabel('nowqt')
        p(f's_lshl_b32 s{sT0}, s{sTEAM}, 1')
        p(f's_add_u32 s{sT0}, s{sT0}, s{sA}')
        p(f's_cmp_ge_u32 s{sT0}, 14')
        p(f's_cbranch_scc1 {l}')
        p(f's_cmp_lg_u32 s{sW}, 0')
        p(f's_cbranch_scc1 {l}')
        p.mark('maybe_begin')
        p(f's_lshl_b32 s{sT1}, s{sT0}, 11')
        p(f'v_add_u32 v{R+24}, s{sT1}, v{vL16}')
        for tau in range(2):
            for kp in range(2):
                p(f'ds_read_b128 {vr(R+(tau*2+kp)*4)}, v{R+24} offset:{tau*28672+kp*1024}')
        p(f's_mul_i32 s{sT2}, s{sJ}, 86016')
        p(f's_add_u32 s{sT1}, s{sT1}, s{sT2}')
        for tau in range(2):
            p(f's_add_u32 s{sT2}, s{sT1}, {WQT + tau*28672}')
            for kp in range(2):
                p(f'buffer_store_dwordx4 {vr(R+(tau*2+kp)*4)}, v{vL16}, {srd(S_WS)}, s{sT2} offen offset:{kp*1024} sc1')
        p(f's_lshl_b32 s{sJFL}, s{sJ}, 4')
        p(f's_add_u32 s{sJFL}, s{sJFL}, s{sT0}')
        p(f's_lshl_b32 s{sJFL}, s{sJFL}, 3')
        p(f's_add_u32 s{sJFL}, s{sJFL}, {F_WQ}')
        p.mark('maybe_end')
        p.label(l)

    def p1(self):
        p, L0 = self.p, self.L == 0
        X, ACC, RING, CS = 32, 144, 192, 224
        accK, accV, accQ = ACC, ACC + 16, ACC + 32
        PK, PV = vT, vT + 8
        sXO, sST, sFX, sKV, sKF = sO, sO + 7, sO + 8, sO + 9, sO + 10
        p.ext(self.xoff(sXO, sTP, 28672, O_XA))
        for g in range(1, 7):
            p(f's_add_u32 s{sXO+g}, s{sXO}, {4096*g}')
        p.ext(self.off(sST, sTP, 3584, O_STA))
        p.ext(self.off(sFX, sTP, 128, O_FXA))
        p(f's_lshl_b32 s{sT0}, s{sJ}, 3')
        p(f's_add_u32 s{sT0}, s{sT0}, s{sTP}')
        p.ext(self.off(sKV, sT0, 4096, O_KV))
        p.ext(self.off(sKF, sT0, 128, O_FKV))
        p(f'v_lshrrev_b32 v{vCSA}, 5, v{vL}')
        p(f'v_lshlrev_b32 v{vCSA}, 4, v{vCSA}')
        p(f'v_add_u32 v{vCSA}, {L_CSQ}, v{vCSA}')
        sW2E, sW2F = sO + 11, sO + 12
        vQ = 238
        if L0:
            self.vDQ, self.vTQ, self.vWQ = vQ, 225, 226
            p.ext([f'v_lshrrev_b32 v{vQ}, 2, v{vL}', f'v_mul_u32_u24 v{vQ}, 2688, v{vQ}', f'v_and_b32 v{vQ+1}, 3, v{vL}',
                   f'v_lshl_add_u32 v{vQ}, v{vQ+1}, 4, v{vQ}', f'v_lshlrev_b32 v{vQ+1}, 7, v{vL}'])

        def frag(f):
            if f < 56:
                base, off = vL16, (f % 2) * 28672 + (f // 2) * 1024
            else:
                base, off = vA1, (f - 56) * 1024
            return f'ds_read_b128 {vr(RING + 4*(f % 8))}, v{base} offset:{off}'

        def mf(f):
            acc, s = ((accK, accV)[f % 2], f // 2) if f < 56 else (accQ, f - 56)
            return f'{MF32} {vr(acc,16)}, {vr(RING+4*(f%8))}, {vr(X+4*s)}, {vr(acc,16) if s else 0}'

        def xl(s):
            return f'buffer_load_dwordx4 {vr(X+4*s)}, v{vL16}, {srd(S_WS)}, s{sXO + s//4} offen offset:{(s%4)*1024} sc1'
        PD = 6
        for f in range(PD):
            p(frag(f))
        self.stamp('p5')
        self.pad()
        self.vpoll(vL8, f's{sFX}', 14, acquire=not L0)
        self.stamp('E')
        XP = 8
        for s in range(XP):
            p(xl(s))
        mem, pre = {}, {}
        for f in range(84):
            mem[f] = []
            if f + PD < 84 and not (f < 56 <= f + PD):
                mem[f].append(frag(f + PD))
            if f < 56 and f % 2 == 0 and f // 2 + XP < 28:
                mem[f].append(xl(f // 2 + XP))
            if 27 <= f < 41 and f % 2 == 1:
                mem[f].append(self.stats_loads(sST, CS)[(f - 27) // 2])
            if f % 2 == 0:
                pre[f] = [Touch(vr(RING + 4 * (f % 8)) + ' ' + vr(RING + 4 * ((f + 1) % 8)) + (' ' + vr(X + 4 * (f // 2)) if f < 56 else ''))]
        if L0:
            for i in range(7):
                mem[40 + 2 * i].append(self.rawq(2, i))
        else:
            p(f's_mul_i32 s{sT0}, s{sW}, 7168')
            p(f'v_add_u32 v{vQ}, s{sT0}, v{vA1}')
            for i in range(7):
                mem[3 + 4 * i].append(Ins(f'ds_write_b128 v{vQ}, {ar(224 + 4*i)} offset:{1024*i}', 'wq'))
        for f in (0, 16, 38):
            mem[f] += self.stamp_items(f'k{f}')

        def cs_reads(tau, dst):
            return [f'ds_read_b128 {vr(dst+4*q)}, v{vCSA} offset:{tau*128 + 32*q}' for q in range(4)]
        p.ext(sched([mf(f) for f in range(56)], pre, mem, cs_reads(1, accQ) + cs_reads(0, PK) + self.stats_reduce(CS), 6, start=43))
        self.stamp('kv')

        def epi(acc, cs, P):
            L = []
            for r in range(0, 16, 2):
                L.append(f'v_pk_fma_f32 {vr(acc+r,2)}, {vr(cs+r,2)}, {vr(vMEAN,2)}, {vr(acc+r,2)} op_sel:[0,0,0] op_sel_hi:[1,0,1]')
            for r in range(0, 16, 2):
                L.append(f'v_pk_mul_f32 {vr(acc+r,2)}, {vr(acc+r,2)}, {vr(vMEAN,2)} op_sel:[0,1] op_sel_hi:[1,1]')
                L.append(f'v_cvt_pk_bf16_f32 v{P+r//2}, v{acc+r}, v{acc+r+1}')
            return L

        def pad(P, c6, c7):
            return ['s_mov_b32 exec_lo, 0', f'v_mov_b32 v{P+6}, {c6:#x}', f'v_mov_b32 v{P+7}, {c7:#x}', 's_mov_b64 exec, -1']

        def st(P, o):
            return [Ins(f'buffer_store_dwordx4 {vr(P+4*k)}, v{vL16}, {srd(S_WS)}, s{sKV} offen offset:{o+1024*k} sc1', 'kvst') for k in range(2)]
        t0, t1 = CS, CS + 1
        p.ext(epi(accK, PK, PK) + pad(PK, 0x3f803f80, 0x3f80) + st(PK, 0))
        p.ext(epi(accV, accQ, PV) + pad(PV, 0x3f80, 0) + st(PV, 2048))
        self.stamp('kvs')
        if L0:
            R = ACC
            vcs, vones, t2, t3 = R + 28, R + 29, R + 30, R + 31
            p.ext([f'v_and_b32 v225, 3, v{vL}', 'v_lshlrev_b32 v225, 3, v225', f'v_bfe_u32 v226, v{vL}, 4, 1',
                   'v_lshl_add_u32 v225, v226, 5, v225', f'v_bfe_u32 v226, v{vL}, 2, 2', 'v_lshl_add_u32 v225, v226, 6, v225',
                   f'v_lshrrev_b32 v226, 5, v{vL}', 'v_lshl_add_u32 v225, v226, 8, v225', f'v_add_u32 v225, s{sLQ}, v225',
                   f'v_add_u32 v226, s{sLQ}, v{vL16}', f'v_mov_b32 v{vones}, s{sONES}'])
            self.xform(2, R, vcs, vones)
            p.wait('kvst')
            p.ext(self.flag_sc1(sKF))
            for i in range(28):
                p(f'v_accvgpr_write_b32 a{224+i}, v{R+i}')
            self.cs_partial((2,), vcs, t2, t3)
            p('s_waitcnt lgkmcnt(0)')
            p('s_barrier')
            self.cs_sum((2,), R, t2, t3)
        else:
            p.wait('wq')
            p('s_barrier')
        for f in range(56, 56 + PD):
            p(frag(f))
        side = [f's_lshl_b32 s{sT0}, s{sW}, 12', f's_add_u32 s{sT0}, s{sT0}, {LKV + 8*4096}',
                f'v_add_u32 v{t0}, s{sT0}, v{vL16}',
                f'ds_write_b128 v{t0}, {vr(PK)}', f'ds_write_b128 v{t0}, {vr(PK+4)} offset:1024',
                f'v_and_b32 v{t1}, 31, v{vL}', f'v_lshlrev_b32 v{t1}, 6, v{t1}', f'v_lshrrev_b32 v{t0}, 5, v{vL}',
                f'v_lshl_add_u32 v{t1}, v{t0}, 4, v{t1}', f'v_add_u32 v{t0}, s{sT0}, v{t1}',
                f'ds_write_b128 v{t0}, {vr(PV)} offset:2048', f'ds_write_b128 v{t0}, {vr(PV+4)} offset:{2048+32}',
                f'v_mul_f32 v{vRSTD}, {f32bits(28 ** -0.5 * math.log2(math.e)):#x}, v{vRSTD}'] + cs_reads(2, CS) + self.kv_addr()
        pre2 = {f - 56: v for f, v in pre.items() if f >= 56}
        mem2 = {f - 56: v for f, v in mem.items() if f >= 56}
        if not L0:
            mem2[22].append([Wait(['kvst'])] + self.flag_sc1(sKF))
        qs = sched([mf(f) for f in range(56, 84)], pre2, mem2, side, 6, start=0)
        cut = qs.index(mf(56 + 16)) if L0 else len(qs)
        while not isinstance(qs[cut - 1], (str, Ins, list)):
            cut -= 1
        p.ext(qs[:cut])
        self.stamp('q')
        self.kv_fetch()
        p.ext(qs[cut:])
        QF = 200
        p.ext(epi(accQ, CS, QF))
        p.ext(pad(QF, 0, 0x3f800000))
        if L0:
            p(f's_mov_b32 s{sJFL}, -1')
            self.wqt_publish(32)
        self.pad()
        p('s_barrier')
        self.stamp('p1')

    sKD, sKL, sKFl, sNULL = sO + 11, sO + 13, (sO + 15, 78), 79

    def kv_addr(self):
        sKD, sKL, sKFl, sNULL = self.sKD, self.sKL, self.sKFl, self.sNULL
        L = [f's_mov_b32 s{sNULL}, 0']
        for k in range(2):
            L += [f's_lshl_b32 s{sT0}, s{sW}, 1', f's_add_u32 s{sT0}, s{sT0}, {k}',
                  f's_lshl_b32 s{sKL+k}, s{sT0}, 12', f's_add_u32 s{sKL+k}, s{sKL+k}, {LKV}',
                  f's_lshl_b32 s{sT1}, s{sA}, 2', f's_add_u32 s{sT0}, s{sT0}, s{sT1}',
                  [f's_cmp_lt_u32 s{sT0}, 8', f's_cselect_b32 s{sT1}, {STRIDE}, 0'],
                  f's_sub_u32 s{sT1}, s{sLB}, s{sT1}', f's_and_b32 s{sT0}, s{sT0}, 7',
                  [f's_cmp_lt_i32 s{sT1}, {TEAM0}', f's_cselect_b32 s{sT2}, {1 << k}, 0',
                   f's_cselect_b32 s{sT1}, s{sLB}, s{sT1}', f's_cselect_b32 s{sT0}, s{sTP}, s{sT0}'],
                  f's_or_b32 s{sNULL}, s{sNULL}, s{sT2}', f's_lshl_b32 s{sT2}, s{sJ}, 3', f's_add_u32 s{sT0}, s{sT0}, s{sT2}',
                  f's_lshl_b32 s{sKD+k}, s{sT0}, 12', f's_add_u32 s{sKD+k}, s{sKD+k}, s{sT1}',
                  f's_lshl_b32 s{sT0}, s{sT0}, 7', f's_add_u32 s{sT0}, s{sT0}, s{sT1}', f's_add_u32 s{sKFl[k]}, s{sT0}, {O_FKV}']
        return L

    def kv_fetch(self):
        p = self.p
        t0, t1, Z, NK = 144, 145, 148, 2
        sKD, sKL, sKFl, sNULL = self.sKD, self.sKL, self.sKFl, self.sNULL
        p(f'v_bfe_u32 v{t0}, v{vL}, 1, 1')
        p(f'v_lshlrev_b32 v{t0}, 10, v{t0}')
        p(f'v_and_b32 v{t1}, 1, v{vL}')
        p(f'v_lshl_add_u32 v{t0}, v{t1}, 9, v{t0}')
        p(f'v_lshrrev_b32 v{t1}, 2, v{vL}')
        p(f'v_lshl_add_u32 v{t0}, v{t1}, 4, v{t0}')
        lp, lo = p.newlabel('kvpoll'), p.newlabel('kvpollout')
        self.stamp('w1')
        p('s_waitcnt lgkmcnt(0)')
        p(f's_mov_b32 s{sCNT}, 0')
        p.label(lp)
        for k in range(NK):
            p(f's_load_dwordx2 s[{sPOLL+2*k}:{sPOLL+2*k+1}], s[{S_WSP}:{S_WSP+1}], s{sKFl[k]} glc')
        p(f's_add_u32 s{sCNT}, s{sCNT}, 1')
        p(f's_cmp_gt_u32 s{sCNT}, {POLL_MAX}')
        p(f's_cbranch_scc1 {lo}')
        p('s_waitcnt lgkmcnt(0)')
        for k in range(NK):
            p(f's_cmp_eq_u64 s[{sPOLL+2*k}:{sPOLL+2*k+1}], s[{sF}:{sF+1}]')
            p(f's_cbranch_scc0 {lp}')
        p.label(lo)
        self.stamp('kvf')
        for k in range(NK):
            lnull, lb = p.newlabel('null'), p.newlabel('nullback')
            p(f's_bitcmp1_b32 s{sNULL}, {k}')
            p(f's_cbranch_scc1 {lnull}')
            p(f's_mov_b32 m0, s{sKL+k}')
            p(f's_sub_u32 s{sT5}, s{sKD+k}, 768')
            p(f'buffer_load_dwordx4 v{vL16}, {srd(S_WS)}, s{sKD+k} offen sc1 lds')
            p(f'buffer_load_dwordx4 v{vL16}, {srd(S_WS)}, s{sKD+k} offen offset:1024 sc1 lds')
            p(f'buffer_load_dwordx4 v{t0}, {srd(S_WS)}, s{sKD+k} offen offset:2048 sc1 lds')
            p(f'buffer_load_dwordx4 v{t0}, {srd(S_WS)}, s{sT5} offen offset:3072 sc1 lds')
            p.label(lb)
            self.tail.append((lnull, [
                f'v_add_u32 v{t1}, s{sKL+k}, v{vL16}',
                f'v_mov_b32 v{Z}, 0', f'v_mov_b32 v{Z+1}, 0', f'v_mov_b32 v{Z+2}, 0', f'v_mov_b32 v{Z+3}, 0'] +
                [f'ds_write_b128 v{t1}, {vr(Z)} offset:{o}' for o in (0, 2048, 3072)] +
                ['s_mov_b32 exec_lo, 0', f'v_mov_b32 v{Z+3}, 0xf1490000', 's_mov_b64 exec, -1',
                 f'ds_write_b128 v{t1}, {vr(Z)} offset:1024', f's_branch {lb}']))

    def attn(self):
        p, L0 = self.p, self.L == 0
        KF, ST, MW, MD, OA, QF, PB, VF = 32, 104, 152, 168, 184, 200, 208, 224
        t0, t1 = 104, 105
        t2, t3 = 106, 107
        p(f'v_and_b32 v{t2}, 31, v{vL}')
        p(f'v_lshrrev_b32 v{t3}, 5, v{vL}')
        p(f'v_lshlrev_b32 v{t3}, 2, v{t3}')
        p(f'v_sub_u32 v{t2}, v{t2}, v{t3}')
        p(f'v_mov_b32 v{t3}, {f32bits(-1e30):#x}')
        for r in range(0, 16, 2):
            k0, k1 = 8 * (r // 4) + r % 4, 8 * (r // 4) + r % 4 + 1
            p(f'v_cmp_le_i32 vcc, {k0}, v{t2}')
            p(f'v_cmp_le_i32 s[{sPOLL}:{sPOLL+1}], {k1}, v{t2}')
            p('s_nop 0')
            p(f'v_cndmask_b32_e64 v{MD+r}, v{t3}, 0, vcc')
            p(f'v_cndmask_b32_e64 v{MD+r+1}, v{t3}, 0, s[{sPOLL}:{sPOLL+1}]')
            p(f'v_cndmask_b32_e64 v{MW+r}, 0, v{t3}, vcc')
            p(f'v_cndmask_b32_e64 v{MW+r+1}, 0, v{t3}, s[{sPOLL}:{sPOLL+1}]')
        vKA, vVA = vT, vT + 1
        p(f's_lshl_b32 s{sT0}, s{sW}, 12')
        p(f's_add_u32 s{sT0}, s{sT0}, {LKV}')
        p(f'v_add_u32 v{vKA}, s{sT0}, v{vL16}')
        p(f'v_lshrrev_b32 v{t2}, 5, v{vL}')
        p(f'v_bfe_u32 v{t3}, v{vL}, 2, 2')
        p(f'v_lshl_add_u32 v{t2}, v{t2}, 2, v{t3}')
        p(f'v_lshlrev_b32 v{vVA}, 6, v{t2}')
        p(f'v_bfe_u32 v{t2}, v{vL}, 4, 1')
        p(f'v_lshl_add_u32 v{vVA}, v{t2}, 5, v{vVA}')
        p(f'v_and_b32 v{t2}, 1, v{vL}')
        p(f'v_lshl_add_u32 v{vVA}, v{t2}, 4, v{vVA}')
        p(f'v_bfe_u32 v{t2}, v{vL}, 1, 1')
        p(f'v_lshl_add_u32 v{vVA}, v{t2}, 3, v{vVA}')
        p(f'v_add_u32 v{vVA}, s{sT0}, v{vVA}')
        sOD, sOF, sWO = sO, sO + 1, sO + 2
        p(f's_lshl_b32 s{sT0}, s{sTP}, 4')
        p(f's_add_u32 s{sT0}, s{sT0}, s{sJ}')
        p.ext(self.roff(sOD, sT0, 2048, O_O))
        p.ext(self.off(sOF, sT0, 8, O_FO))
        p(f's_lshl_b32 s{sWO}, s{sCB}, 2')
        p(f's_add_u32 s{sWO}, s{sWO}, s{sW}')
        p(f's_lshl_b32 s{sWO}, s{sWO}, 14')
        p(f's_add_u32 s{sWO}, s{sWO}, {WOT}')
        for g in range(1, 4):
            p(f's_add_u32 s{sWO+g}, s{sWO}, {4096*g}')
        vPT = vT + 12
        p(f'v_lshlrev_b32 v{vPT}, 7, v{vL}')
        p(f'v_add_u32 v{vPT}, s{sOD}, v{vPT}')
        p(f's_lshl_b32 s{sT0}, s{sTP}, 7')
        p(f's_lshl_b32 s{sT1}, s{sRB}, 8')
        p(f's_lshl_b32 s{sT2}, s{sRHO}, 7')
        p(f's_add_u32 s{sT2}, s{sT2}, s{sT1}')
        p(f's_mul_i32 s{sT3}, s{sT2}, 28')
        p(f's_lshl_b32 s{sT4}, s{sCB}, 9')
        p(f's_add_u32 s{sT3}, s{sT3}, s{sT4}')
        p(f's_lshl_b32 s{sT4}, s{sNU}, 8')
        p(f's_add_u32 s{sT3}, s{sT3}, s{sT4}')
        for lane, (r, c) in enumerate([(sT0, O_FO), (sT1, O_FO), (sT1, O_FO + 128), (sT0, O_FX1), (sT2, O_FX1),
                                       (sT3, O_ST1), (sT3, O_ST1 + 128), (sT0, O_FH), (sT1, O_FH), (sT1, O_FH + 128),
                                       (sT0, O_FH + 1024), (sT1, O_FH + 1024), (sT1, O_FH + 1024 + 128)]):
            p(f's_add_u32 s{sT4}, s{r}, {c}')
            p(f's_add_u32 s{sT4}, s{sT4}, s{sLB}')
            p(f'v_writelane_b32 v{vPT}, s{sT4}, {16 + lane}')
        vZ = vT + 8
        p(f's_lshl_b32 s{sT0}, s{sNU}, 10')
        p(f'v_xor_b32 v{vZ}, s{sT0}, v{vL16}')
        p(f'v_xor_b32 v{vZ+1}, 1024, v{vZ}')

        def first():
            l0 = p.newlabel('first')
            p(f's_cmp_lg_u32 s{sW}, 0')
            p(f's_cbranch_scc1 {l0}')
            p.mark('maybe_begin')
            p(f's_lshl_b32 s{sT0}, s{sJ}, 7')
            p(f's_add_u32 s{sT0}, s{sT0}, {F_W1}')
            p(f's_lshl_b32 s{sT2}, s{sCB}, 6')
            p(f's_add_u32 s{sT2}, s{sT2}, {F_WO - 14*8}')
            p(f's_lshl_b32 s{sT3}, s{sTEAM}, 8')
            p(f's_add_u32 s{sT3}, s{sT3}, {WS_PUR - 32*8}')
            p(f'v_add_u32 v{t2}, s{sT0}, v{vL8}')
            p(f'v_min_u32 v{t3}, {21*8}, v{vL8}')
            p(f'v_add_u32 v{t3}, s{sT2}, v{t3}')
            p(f'v_cmp_le_u32 vcc, 14, v{vL}')
            p(f'v_cndmask_b32 v{t2}, v{t2}, v{t3}, vcc')
            p(f'v_add_u32 v{t3}, s{sT3}, v{vL8}')
            p(f'v_cmp_le_u32 vcc, 32, v{vL}')
            p(f'v_cndmask_b32 v{t2}, v{t2}, v{t3}, vcc')
            lp, lo, ls = p.newlabel('pur'), p.newlabel('purout'), p.newlabel('pursleep')
            p(f's_lshl_b32 s{sT0}, s{sCB}, 9')
            p(f's_add_u32 s{sT0}, s{sT0}, {F_W2}')
            p(f's_mov_b32 s{sCNT}, 0')
            p.label(lp)
            p(f'buffer_load_dwordx2 {vr(108,2)}, v{t2}, {srd(S_WS)}, 0 offen sc1')
            p(f'buffer_load_dwordx2 {vr(112,2)}, v{vL8}, {srd(S_WS)}, s{sT0} offen sc1')
            p(f's_add_u32 s{sCNT}, s{sCNT}, 1')
            p(f's_cmp_gt_u32 s{sCNT}, {POLL_MAX}')
            p(f's_cbranch_scc1 {lo}')
            p('s_waitcnt vmcnt(0)')
            p(f'v_xor_b32 v109, s{sF+1}, v109')
            p(f'v_xor_b32 v108, s{sF}, v108')
            p(f'v_and_b32 v110, 0x0fffffff, v109')
            p(f'v_or_b32 v108, v108, v110')
            p(f'v_cmp_ne_u32 vcc, 0, v108')
            p(f's_cbranch_vccnz {ls}')
            p(f'v_cmp_ne_u64 vcc, s[{sF}:{sF+1}], {vr(112,2)}')
            p(f's_cbranch_vccnz {ls}')
            p(f'v_readlane_b32 s{sT1}, v109, 32')
            p(f'v_cmp_ne_u32 vcc, s{sT1}, v109')
            p(f's_cmp_eq_u32 vcc_hi, 0')
            p(f's_cselect_b32 s{sT1}, {0 if os.environ.get("FORCE_IMPURE") else 1}, 0')
            p(f'v_mov_b32 v108, s{sT1}')
            p(f'v_mov_b32 v109, {L_PUR}')
            p('ds_write_b32 v109, v108')
            p.label(lo)
            p.mark('maybe_end')
            p.label(l0)
            self.tail.append((ls, ['s_sleep 8', f's_branch {lp}']))
        if L0:
            first()
        self.pad()
        p('s_waitcnt vmcnt(0) lgkmcnt(0)')
        if L0:
            self.flag_opt(sJFL)
        self.stamp('kvd')
        p('s_barrier')
        self.stamp('A')
        if L0:
            p(f'v_mov_b32 v{t0}, {L_PUR}')
            p(f'ds_read_b32 v{t0}, v{t0}')
            p(f'v_readfirstlane_b32 s{sPURE}, v{t0}')
            p(f's_cmp_eq_u32 s{sPURE}, 0')
            p(f's_cselect_b64 s[{sIMP}:{sIMP+1}], -1, 0')
        p(f'v_lshlrev_b32 v{t0}, 7, v{vL}')
        p(f's_lshl_b32 s{sT0}, s{sCB}, 2')
        p(f's_add_u32 s{sT0}, s{sT0}, s{sRB}')
        p(f's_lshl_b32 s{sT1}, s{sT0}, 14')
        p(f's_lshl_b32 s{sT2}, s{sW}, 12')
        p(f's_add_u32 s{sT1}, s{sT1}, s{sT2}')
        p(f's_add_u32 s{sT1}, s{sT1}, {WOT}')
        p('s_mov_b32 exec_hi, 0')
        p(f'buffer_load_dword a255, v{t0}, {srd(S_WS)}, s{sT1} offen sc1')
        p('s_mov_b64 exec, -1')
        p.ext(self.pub_offsets(O_X1, O_ST1, O_FX1))
        p(f's_sub_u32 s{sT0}, s{sXD}, {29*128}')
        p(f'v_add_u32 v{t1}, s{sT0}, v{t0}')
        p(f'v_cmp_lt_u32 vcc, 28, v{vL}')
        p(f'v_cndmask_b32 v{vPT}, v{vPT}, v{t1}, vcc')
        p.ext(self.setexec(45))
        p(f'buffer_load_dword a255, v{vPT}, {srd(S_WS)}, 0 offen sc1')
        p('s_mov_b64 exec, -1')
        bg = self.w1_dma(0)
        bw = []
        if L0 and HATT:
            p(f's_lshl_b32 s{sT0}, s{sTP}, 4')
            p(f's_add_u32 s{sT0}, s{sT0}, s{sJ}')
            p.ext(self.off(sT1, sT0, 7168, O_H))
            p(f's_add_u32 s{sT2}, s{sT1}, 4096')
            for sr, n in ((sT1, 4), (sT2, 3)):
                for k in range(n):
                    p(f'buffer_store_dwordx4 {vr(MW)}, v{vL16}, {srd(S_WS)}, s{sr} offen offset:{1024*k} sc1')
        if L0:
            p.ext(self.w2_setup(sO + 7, (vT + 10, vT + 11)))
            bw = self.w2_loads(sO + 7, (vT + 10, vT + 11))

        def kread(t):
            return [f'ds_read_b128 {vr(KF+8*t+4*k)}, v{vKA} offset:{t*4096+k*1024}' for k in range(2)]

        def qk(t):
            s = ST + 16 * (t % 3)
            c = vr(MW, 16) if t == 0 else vr(MD, 16) if t == 8 else '0'
            return [f'{MF32} {vr(s,16)}, {vr(KF+8*t)}, {vr(QF)}, {c}',
                    f'{MF32} {vr(s,16)}, {vr(KF+8*t+4)}, {vr(QF+4)}, {vr(s,16)}']
        vM, vM2 = vT + 2, vT + 3

        def mx(t):
            s = ST + 16 * (t % 3)
            L = []
            for i in range(8):
                d = vM if i % 2 == 0 else vM2
                if t == 0 and i < 2:
                    L.append(f'v_max_f32 v{d}, v{s+2*i}, v{s+2*i+1}')
                else:
                    L.append(f'v_max3_f32 v{d}, v{s+2*i}, v{s+2*i+1}, v{d}')
            return L

        def vread(t):
            d = VF + 8 * (t % 2)
            return [f'ds_read_b64_tr_b16 {vr(d+4*kv+2*jj,2)}, v{vVA} offset:{t*4096+2048+(16*kv+8*jj)*64}'
                    for kv in range(2) for jj in range(2)]
        def popbg(bg=bg):
            L = []
            while bg:
                x = bg.pop(0)
                L.append(x)
                if is_mem(x):
                    break
            return L
        for t in range(4):
            p.ext(kread(t))
        q = qk(0)
        p.ext([q[0]] + kread(4) + [q[1]] + kread(5))
        q = qk(1)
        p.ext([q[0]] + kread(6) + popbg(bw) + [q[1]] + kread(7) + popbg(bw))
        for t in range(9):
            m = mx(t)
            if t + 2 < 9:
                q = qk(t + 2)
                extra = kread(8) if t == 0 else vread(0)[:2] if t == 5 else vread(0)[2:] if t == 6 else []
                if t % 2 == 1:
                    extra = extra + popbg()
                p.ext([q[0]] + extra + popbg(bw) + m[:4] + [q[1]] + popbg(bw) + m[4:])
            else:
                p.ext(m)
        self.stamp('a1')
        a, b2, r1 = vT + 4, vT + 5, vT + 6
        p(f'v_max_f32 v{vM}, v{vM}, v{vM2}')
        p(f'v_mov_b32 v{a}, v{vM}')
        p(f'v_permlane32_swap_b32 v{vM}, v{a}')
        p(f'v_max_f32 v{vM}, v{vM}, v{a}')
        p(f'v_xor_b32 v{vM}, 0x80000000, v{vM}')
        p(f'v_and_b32 v{a}, 0xffff0000, v{vM}')
        p(f'v_sub_f32 v{r1}, v{vM}, v{a}')
        p(f'v_and_b32 v{a}, 0xffff0000, v{r1}')
        p(f'v_sub_f32 v{b2}, v{r1}, v{a}')
        p('s_mov_b32 exec_lo, 0')
        p(f'v_perm_b32 v{QF+6}, v{r1}, v{vM}, s{sPERM}')
        p(f'v_perm_b32 v{QF+7}, 1.0, v{b2}, s{sPERM}')
        p('s_mov_b64 exec, -1')

        def ex(t):
            s = ST + 16 * (t % 3)
            pb = PB + 8 * (t % 2)
            L = []
            for i in range(8):
                L.append(f'v_exp_f32 v{s+2*i}, v{s+2*i}')
                L.append(f'v_exp_f32 v{s+2*i+1}, v{s+2*i+1}')
                if i:
                    L.append(f'v_cvt_pk_bf16_f32 v{pb+i-1}, v{s+2*i-2}, v{s+2*i-1}')
            L.append(f'v_cvt_pk_bf16_f32 v{pb+7}, v{s+14}, v{s+15}')
            return L

        def pv(t):
            d = VF + 8 * (t % 2)
            pb = PB + 8 * (t % 2)
            return [f'{MF32} {vr(OA,16)}, {vr(d)}, {vr(pb)}, {vr(OA,16) if t else 0}',
                    f'{MF32} {vr(OA,16)}, {vr(d+4)}, {vr(pb+4)}, {vr(OA,16)}']

        self.pad()

        def wol(i):
            ks, z = i // 2, i % 2
            return f'buffer_load_dwordx4 {vr(32+4*i)}, v{vZ+z}, {srd(S_WS)}, s{sWO + ks//2} offen offset:{(ks%2)*2048} sc1'
        p.ext(qk(0))
        p.ext(qk(1))
        for t in range(9):
            e = ex(t)
            mf = (pv(t - 1) if t else []) + (qk(t + 2) if t + 2 < 9 else [])
            out = []
            pos = [2, 7, 12, 17]
            for i, x in enumerate(e):
                out.append(x)
                if i in pos and pos.index(i) < len(mf):
                    k = pos.index(i)
                    out.append(mf[k])
                    if t + 1 < 9:
                        if t == 0:
                            out += vread(1)[2 * k:2 * k + 2]
                        elif k in (1, 2):
                            out += vread(t + 1)[2 * (k - 1):2 * (k - 1) + 2]
                        elif t == 7 and k == 1:
                            pass
                    if t < 6 and k in (0, 3) or t == 0:
                        out += popbg()
                    if t < 7:
                        out += popbg(bw) + (popbg(bw) if k % 2 or t == 0 else [])
                    if t >= 7:
                        out += [wol(8 * (t - 7) + 4 * k + q) for q in range(4)]
            if t == 7:
                out = out[:-3] + vread(8)[2:] + out[-3:]
            p.ext(out)
        assert not bg and not bw, (len(bg), len(bw))
        p.ext(pv(8))
        self.stamp('a2')
        p(f'v_mov_b32 v{a}, v{OA+12}')
        p(f'v_mov_b32 v{b2}, v{OA+12}')
        p(f'v_permlane32_swap_b32 v{a}, v{b2}')
        p(f'v_rcp_f32 v{b2}, v{b2}')
        for i in range(8):
            p(f'v_pk_mul_f32 {vr(OA+2*i,2)}, {vr(OA+2*i,2)}, {vr(a,2)} op_sel:[0,1] op_sel_hi:[1,1]')
            p(f'v_cvt_pk_bf16_f32 v{PB+i}, v{OA+2*i}, v{OA+2*i+1}')
            if i % 4 == 3:
                p(f'buffer_store_dwordx4 {vr(PB+i-3)}, v{vL16}, {srd(S_WS)}, s{sOD} offen offset:{(i//4)*1024}', tok='ost')
        self.publish(['ost'], sOF)
        self.stamp('att')

    def reduce_writes(self, ACC):
        return [Ins(f'ds_write_b128 v{vRW+x-1}, {vr(ACC+16*x+4*c)} offset:{c*1024}', 'rw') for x in range(1, 4) for c in range(4)]

    def reduce_finish(self, ACC, TMP):
        p = self.p
        p.wait('rw')
        self.pad()
        p('s_barrier')
        for c in range(4):
            for x in range(3):
                p(f'ds_read_b128 {vr(TMP+16*x+4*c)}, v{vRW+3} offset:{x*4096+c*1024}')
        for c in range(8):
            p(f'v_pk_add_f32 {vr(TMP+2*c,2)}, {vr(TMP+2*c,2)}, {vr(TMP+16+2*c,2)}')
            p(f'v_pk_add_f32 {vr(ACC+2*c,2)}, {vr(ACC+2*c,2)}, {vr(TMP+32+2*c,2)}')
            p(f'v_pk_add_f32 {vr(ACC+2*c,2)}, {vr(ACC+2*c,2)}, {vr(TMP+2*c,2)}')

    def yoffs(self, dst, mul, add):
        L = []
        for y in range(2):
            L += [f's_xor_b32 s{sT0}, s{sRHO}, {y}', f's_lshl_b32 s{sT1}, s{sRB}, 1', f's_add_u32 s{sT0}, s{sT0}, s{sT1}',
                  f's_lshl_b32 s{sT0}, s{sT0}, 2', f's_add_u32 s{sT0}, s{sT0}, s{sW}'] + self.roff(dst + y, sT0, mul, add)
        return L

    def p3(self):
        p, L0 = self.p, self.L == 0
        WO, OF, ACC, RING = 32, 96, 160, 200

        def colsum(part, AC=ACC, RG=RING, T=vT):
            for i in range(4):
                p(f'v_mov_b32 v{T+4+i}, s{sONES}')
            p(f's_lshl_b32 s{sT0}, s{sW}, 10')
            if part == 0:
                p(f'v_add_u32 v{T}, s{sT0}, v{vL16}')
            else:
                p(f's_min_u32 s{sT0}, s{sT0}, 2048')
                p(f'v_add_u32 v{T}, s{sT0}, v{vA1}')
            NRG = 6 if part == 0 else 4
            rd = lambda f: f'ds_read_b128 {vr(RG+4*(f%NRG))}, v{T} offset:{f*(4096, 3072)[part]}'
            for f in range(NRG - 1):
                p(rd(f))
            for f in range(14):
                p(f'{MF16} {vr(AC)}, {vr(T+4)}, {vr(RG+4*(f%NRG))}, {vr(AC) if f else 0}')
                if f + NRG - 1 < 14:
                    p(rd(f + NRG - 1))
            p(f's_lshl_b32 s{sT0}, s{sW}, 6')
            p(f's_add_u32 s{sT0}, s{sT0}, {L_CS1 + 256*part}')
            p(f'v_and_b32 v{T}, 15, v{vL}')
            p(f'v_lshlrev_b32 v{T}, 2, v{T}')
            p(f'v_add_u32 v{T}, s{sT0}, v{T}')
            p(f'ds_write_b32 v{T}, v{AC}')
            p('s_waitcnt lgkmcnt(0)')
        w1d = []
        self.pad()
        p('s_barrier')
        if L0:
            colsum(0)
        ljoin, lidle = p.newlabel('p3join'), p.newlabel('p3idle')
        p(f's_cmp_ge_u32 s{sM}, 28')
        p(f's_cbranch_scc1 {lidle}')
        p.mark('maybe_begin')
        sFO, sY = sO, sO + 2
        p(f's_lshl_b32 s{sT0}, s{sRB}, 3')
        p(f's_add_u32 s{sT0}, s{sT0}, s{sW}')
        p.ext(self.off(sFO, sT0, 32, O_FO))
        p.ext(self.yoffs(sY, 8192, O_O))
        p(f's_add_u32 s{sY+2}, s{sY}, 4096')
        p(f's_add_u32 s{sY+3}, s{sY+1}, 4096')
        self.vpoll(vFLG, f's{sFO}', 8)
        self.stamp('B')

        def ld(ks, y):
            return f'buffer_load_dwordx4 {vr(OF+(ks*2+y)*4)}, v{vL16}, {srd(S_WS)}, s{sY + 2*(ks//4) + y} offen offset:{(ks%4)*1024} sc1'

        def mf(ks, x):
            y, z = x >> 1, x & 1
            c = vr(ACC + 16 * x, 16) if ks else (vr(vRES, 16) if x == 0 else '0')
            return f'{MF32} {vr(ACC+16*x,16)}, {vr(WO+(ks*2+z)*4)}, {vr(OF+(ks*2+y)*4)}, {c}'
        for ks in range(5):
            for y in range(2):
                p(ld(ks, y))
        rest = list(w1d)
        for ks in range(8):
            for x in (1, 2, 3):
                p(mf(ks, x))
                if ks + 5 < 8 and x < 3:
                    p(ld(ks + 5, x - 1))
                elif ks >= 3 and rest:
                    y = rest.pop(0)
                    p.ext([y])
                    while rest and not is_mem(y):
                        y = rest.pop(0)
                        p.ext([y])
        assert not rest
        self.stamp('p3mm')
        p.ext(sched([mf(ks, 0) for ks in range(8)], {}, {}, self.reduce_writes(ACC), 2, start=2))
        self.stamp('p3rw')
        self.reduce_finish(ACC, 32)
        self.stamp('p3rd')
        P = 96
        for i in range(8):
            p(f'v_cvt_pk_bf16_f32 v{P+i}, v{ACC+2*i}, v{ACC+2*i+1}')
        self.x_store(P, vX1A, (0, 512))
        self.publish(['xst'], sXF)
        self.stamp('p3pub')
        p.ext(self.res_unpack(P))
        p.mark('maybe_end')
        p.label(ljoin)
        idle = [f'v_lshlrev_b32 v{vT}, 7, v{vL}', f's_lshl_b32 s{sT0}, s{sCB}, 2', f's_add_u32 s{sT0}, s{sT0}, s{sW}']
        if L0:
            idle += [f's_lshl_b32 s{sT1}, s{sT0}, 7', f's_add_u32 s{sT1}, s{sT1}, {F_W1}'] + self.poll_loop(vL8, f's{sT1}', 14)
        idle += [f's_mul_i32 s{sT1}, s{sT0}, 100352'] + self.prefetch(vT, sT1, W1T + 57344, 43008)
        self.tail.append((lidle, idle + [f's_branch {ljoin}']))
        self.colsum = colsum
        self.stamp('p3')

    def p45(self):
        p, L0 = self.p, self.L == 0
        X, ACC, RING, CS = 32, 144, 200, 224
        sXO, sST, sFX, sH, sHF = sO, sO + 4, sO + 5, sO + 6, sO + 8
        sFH, sST5, sW2 = sO + 9, sO + 10, sO + 11
        sY = [76, 77, 78, 79, sO + 12, sO + 13, sO + 14, sO + 15]
        vTC, vHA, vHB, vZ, vLb, PO = vT, vT + 1, vT + 2, (vT + 3, vT + 13), vT + 12, vT + 4
        p.ext(self.w1_dma(1))
        p.ext(self.xoff(sXO, sTP, 28672, O_X1))
        for g in range(1, 4):
            p(f's_add_u32 s{sXO+g}, s{sXO}, {8192*g}')
        p.ext(self.off(sST, sTP, 3584, O_ST1))
        p.ext(self.off(sFX, sTP, 128, O_FX1))
        p(f's_lshl_b32 s{sT0}, s{sTP}, 4')
        p(f's_add_u32 s{sT0}, s{sT0}, s{sJ}')
        p.ext(self.roff(sH, sT0, 7168, O_H))
        p(f's_add_u32 s{sH+1}, s{sH}, 4096')
        p.ext(self.off(sHF, sT0, 8, O_FH))
        p.ext([f'v_lshrrev_b32 v{vCSA}, 4, v{vL}', f'v_lshlrev_b32 v{vCSA}, 4, v{vCSA}', f'v_add_u32 v{vCSA}, {L_CS1}, v{vCSA}',
               f'v_lshrrev_b32 v{vHA}, 5, v{vL}', f'v_lshlrev_b32 v{vHA}, 10, v{vHA}',
               f'v_bfe_u32 v{vHB}, v{vL}, 4, 1', f'v_lshl_add_u32 v{vHA}, v{vHB}, 9, v{vHA}',
               f'v_and_b32 v{vTC}, 15, v{vL}', f'v_lshl_add_u32 v{vHA}, v{vTC}, 4, v{vHA}',
               f'v_lshlrev_b32 v{vHB}, 3, v{vHB}', f'v_lshl_add_u32 v{vHB}, v{vTC}, 4, v{vHB}',
               f'v_lshrrev_b32 v{vTC}, 5, v{vL}', f'v_lshl_add_u32 v{vHB}, v{vTC}, 9, v{vHB}',
               f'v_add_u32 v{vLb}, 4096, v{vL16}'])
        sRBc = sPOLL
        p(f's_min_u32 s{sRBc}, s{sRB}, 3')
        p(f's_lshl_b32 s{sT0}, s{sRBc}, 3')
        p(f's_add_u32 s{sT0}, s{sT0}, s{sW}')
        p.ext(self.off(sFH, sT0, 32, O_FH))
        for y in range(2):
            p.ext([f's_xor_b32 s{sT0}, s{sRHO}, {y}', f's_lshl_b32 s{sT1}, s{sRBc}, 1', f's_add_u32 s{sT0}, s{sT0}, s{sT1}',
                   f's_lshl_b32 s{sT0}, s{sT0}, 2', f's_add_u32 s{sT0}, s{sT0}, s{sW}'] + self.roff(sT2, sT0, 28672, O_H))
            for sl in range(4):
                p.ext([f's_add_u32 s{sT0}, {ROT}, {sl}', f's_and_b32 s{sT0}, s{sT0}, 3', f's_mul_i32 s{sT0}, s{sT0}, 7168',
                       f's_add_u32 s{sY[2*sl+y]}, s{sT2}, s{sT0}'])
        p(f's_lshl_b32 s{sT0}, s{sRBc}, 1')
        p(f's_add_u32 s{sT0}, s{sT0}, s{sRHO}')
        p.ext(self.off(sST5, sT0, 3584, O_ST1))
        if L0:
            p.ext(self.pub_offsets(O_XA + LSTRIDE, O_STA + LSTRIDE, O_FXA + LSTRIDE))
            p.ext([f's_lshl_b32 s{sT1}, s{sJ}, 7', f's_add_u32 s{sT1}, s{sT1}, {F_WQ - 14*8}',
                   f'v_mov_b32 v{PO}, s{sFX}', f'v_mov_b32 v{PO+1}, s{sT1}', f'v_cmp_le_u32 vcc, 14, v{vL}',
                   f'v_cndmask_b32 v{PO}, v{PO}, v{PO+1}, vcc', f'v_add_u32 v{PO}, v{PO}, v{vL8}'])
        p(f'v_lshlrev_b32 v{vTC}, 7, v{vL}')
        seq = [(t, s) for s in range(14) for t in range(4)] + [(t, s) for s in range(14) for t in range(4, 7)]

        def frag(f):
            base, off = (vL16, f * 1024) if f < 56 else (vA1, (f - 56) * 1024)
            return f'ds_read_b128 {vr(RING + 4*(f % 6))}, v{base} offset:{off}'

        def mf(f, u):
            t, s = seq[f]
            return f'{MF16} {vr(ACC+8*t+4*u)}, {vr(RING+4*(f%6))}, {vr(X+4*(2*s+u))}, {vr(ACC+8*t+4*u) if s else 0}'

        def xl(i):
            return f'buffer_load_dwordx4 {vr(X+4*i)}, v{(vL16, vLb)[(i//4)%2]}, {srd(S_WS)}, s{sXO + i//8} offen offset:{(i%4)*1024} sc1'

        def cs_reads(tiles):
            return [f'ds_read_b128 {vr(CS+4*(t%4))}, v{vCSA} offset:{t*64}' for t in tiles]
        PD = 4
        for f in range(PD):
            p(frag(f))
        self.pad()
        if L0:
            self.vpoll(PO, '0', 28)
        else:
            self.vpoll(vL8, f's{sFX}', 14)
        self.stamp('C')
        XP = 8
        for i in range(XP):
            p(xl(i))
        mem, pre = {}, {}
        for f in range(98):
            mem[2 * f] = [frag(f + PD)] if f + PD < 98 and not (f < 56 <= f + PD) else []
            mem[2 * f + 1] = []
            if f < 56 and f % 2 == 0 and f // 2 + XP < 28:
                mem[2 * f + 1] = [xl(f // 2 + XP)]
            if 27 <= f < 41 and f % 2 == 1:
                mem[2 * f + 1] = [self.stats_loads(sST, CS)[(f - 27) // 2]]
            if f % 2 == 0:
                tch = vr(RING + 4 * (f % 6)) + ' ' + vr(RING + 4 * ((f + 1) % 6))
                if f < 56 and f % 4 == 0:
                    tch += ' ' + vr(X + 8 * (f // 4), 8)
                pre[2 * f] = [Touch(tch)]
        i = 2 * 41 + 1
        if not (L0 and os.environ.get('NOH')):
            mem[i] += self.touch(vTC, sH, 0, 56)
        if L0:
            xa = [f'v_add_u32 v{PO}, s{sXD}, v{vTC}', f's_add_u32 s{sT0}, s{sFX}, {LSTRIDE + O_FXA - O_FX1}', f's_add_u32 s{sT1}, s{sXS}, 128']
            for lane, r in ((16, sXS), (17, sT1), (18, sXF), (19, sT0)):
                xa.append(f'v_writelane_b32 v{PO}, s{r}, {lane}')
            mem[i + 2] += xa
            mem[i + 4].append(self.setexec(20) + [f'buffer_load_dword a255, v{PO}, {srd(S_WS)}, 0 offen sc1', 's_mov_b64 exec, -1'])
        for f in (0, 16, 38):
            mem[2 * f + 1] += self.stamp_items(f'g{f}')
        mfs = [mf(f, u) for f in range(98) for u in range(2)]
        side = self.stats_reduce(CS) + [f'v_mov_b32 v{vRSTD}, v{vMEAN}', 's_nop 0', f'v_permlane16_swap_b32 v{vMEAN}, v{vRSTD}']
        p.ext(sched(mfs[:112], pre, mem, side, 2, start=88))
        self.stamp('p4m1')
        self.pad()
        p('s_barrier')
        p.ext(cs_reads([0, 1, 2, 3]))
        self.stamp('p4g1')

        HSC = 'sc1' if L0 and os.environ.get('H1') else ''

        def epi(tiles, tok):
            L = []
            pairs = [tiles[i:i + 2] for i in range(0, len(tiles), 2)]
            n = 0
            for pr in pairs:
                for u in range(2):
                    po = PO + 4 * (n % 2)
                    n += 1
                    for k, t in enumerate(pr):
                        a = ACC + 8 * t + 4 * u
                        for r in (0, 2):
                            L.append(f'v_pk_fma_f32 {vr(a+r,2)}, {vr(CS+4*(t%4)+r,2)}, {vr(vMEAN,2)}, {vr(a+r,2)} op_sel:[0,{u},0] op_sel_hi:[1,{u},1]')
                    for k, t in enumerate(pr):
                        a = ACC + 8 * t + 4 * u
                        for r in range(2):
                            L.append(f'v_cvt_pk_bf16_f32 v{po+2*k+r}, v{a+2*r}, v{a+2*r+1}')
                    for k, t in enumerate(pr):
                        for r in range(2):
                            L.append(f'v_pk_max_i16 v{po+2*k+r}, v{po+2*k+r}, 0')
                    t = pr[0]
                    so, off = (sH, t * 1024) if t < 4 else (sH + 1, (t - 4) * 1024)
                    if len(pr) == 2:
                        L.append(Ins(f'buffer_store_dwordx4 {vr(po)}, v{vHA}, {srd(S_WS)}, s{so} offen offset:{off+u*256} {HSC}', tok))
                    else:
                        L.append(Ins(f'buffer_store_dwordx2 {vr(po,2)}, v{vHB}, {srd(S_WS)}, s{so} offen offset:{off+u*256} {HSC}', tok))
            return L
        for f in range(56, 56 + PD):
            p(frag(f))
        p.ext(epi([0, 1, 2, 3], 'h1'))
        if L0:
            self.colsum(1, AC=144, RG=160, T=vT + 4)
            p('s_barrier')
            for f in range(56, 56 + PD):
                pass
        self.stamp('p4e1')
        HR, AC5, NR, PD5, TAIL = 32, 160, 16, 5, 14
        order = ORDER

        def ld(i, y):
            sl, sg = order[i] // 7, order[i] % 7
            return (f'buffer_load_dwordx4 {vr(HR+((i%NR)*2+y)*4)}, v{(vL16, vLb)[sg//4]}, {srd(S_WS)}, s{sY[2*sl+y]} '
                    f'offen offset:{(sg%4)*1024} sc1')

        def m5(i, x):
            y, z = x >> 1, x & 1
            return f'{MF32} {vr(AC5+16*x,16)}, {ar(order[i]*8+z*4)}, {vr(HR+((i%NR)*2+y)*4)}, {vr(AC5+16*x,16) if i else 0}'
        pre2 = {i - 112: v for i, v in pre.items() if i >= 112}
        mem2 = {i - 112: v for i, v in mem.items() if i >= 112}
        NW2A = 14 if L0 else 0
        mem2[19] = self.publish_items(['h1'], sHF) + mem2[19]
        mem2[57] += self.peek_issue(vFLG, f's{sFH}', 8)
        mem2[59] += cs_reads([4, 5])
        mem2[61] += cs_reads([6])
        mem2[63] += self.peek_check(vFLG, f's{sFH}', 8)
        for k in range(2 * PD5):
            mem2[65 + 2 * k].append(ld(k // 2, k % 2))
        p.ext(sched(mfs[112:], pre2, mem2, [], 2, start=0))
        self.stamp('p4g2')
        p.ext(epi([4, 5, 6], 'h2'))
        self.stamp('p4')
        lskip, ljoin = p.newlabel('p5skip'), p.newlabel('p5join')
        self.pad()
        p(f's_cmp_ge_u32 s{sM}, 28')
        p(f's_cbranch_scc1 {lskip}')
        idle = ['s_waitcnt vmcnt(0)'] + self.publish_items([], sHF, 1024)
        if L0:
            idle += [f's_lshl_b32 s{sT0}, s{sCB}, 2', f's_add_u32 s{sT0}, s{sT0}, s{sW}', f's_lshl_b32 s{sT1}, s{sT0}, 7',
                     f's_add_u32 s{sT1}, s{sT1}, {F_WQ}'] + self.poll_loop(vL8, f's{sT1}', 14)
            idle += [f's_mul_i32 s{sT1}, s{sT0}, 86016'] + self.prefetch(vTC, sT1, WQT, 57344)
            idle += ['s_waitcnt vmcnt(0)', 's_barrier'] + self.wq_dma((0, 1)) + [f's_branch {ljoin}']
        else:
            idle += [f's_cmp_lg_u32 s{sM}, 28', 's_cbranch_scc1 L_fin', f's_cmp_lg_u32 s{sW}, 0', 's_cbranch_scc1 L_fin',
                     f's_sleep {os.environ.get("WBSLEEP", 20)}'] + ([] if os.environ.get('NOWB') else ['buffer_wbl2 sc1']) + ['s_waitcnt vmcnt(0)', 's_branch L_fin']
        self.tail.append((lskip, idle))
        mfs, mem = [], {}
        w2b = []
        stl = self.stats_loads(sST5, CS)
        for i in range(28):
            xs = (0, 1, 2, 3) if i < 28 - TAIL else (1, 2, 3)
            for n, x in enumerate(xs):
                k = len(mfs)
                mfs.append(m5(i, x))
                mem[k] = []
                if i == 3 and n == 3:
                    mem[k] += self.publish_items(['h2'], sHF, 1024)
                if i == 8 and n == 3:
                    mem[k] += self.peek_issue(vFLG, f's{sFH}', 8, 1024)
                if i == 11 and n == 0:
                    mem[k] += self.stamp_items('pk0') + self.peek_check(vFLG, f's{sFH}', 8, 1024) + self.stamp_items('pk1')
                if i + PD5 < 28 and n < 2:
                    mem[k].append(ld(i + PD5, n))
                elif w2b and n >= 2:
                    mem[k].append(w2b.pop(0))
                elif i + PD5 >= 28 and stl:
                    mem[k].append(stl.pop(0))
        assert not w2b and not stl
        p.ext(sched(mfs, {}, mem, [], 6))
        self.stamp('p5mm')
        mem = {}
        for i, x in enumerate(self.reduce_writes(AC5)):
            mem.setdefault(2 + i, []).append(x)
        p.ext(sched([m5(i, 0) for i in range(28 - TAIL, 28)], {}, mem, self.stats_reduce(CS), 5, start=0))
        self.stamp('p5rw')
        self.reduce_finish(AC5, 32)
        self.stamp('p5rd')
        P = 96
        for i in range(8):
            p(f'v_pk_fma_f32 {vr(AC5+2*i,2)}, {vr(AC5+2*i,2)}, {vr(vMEAN,2)}, {vr(vRES+2*i,2)} op_sel:[0,1,0] op_sel_hi:[1,1,1]')
            p(f'v_cvt_pk_bf16_f32 v{P+i}, v{AC5+2*i}, v{AC5+2*i+1}')
        if L0:
            self.x_store(P, vL16, (0, 1024))
            wq = self.wq_dma((0, 1))
            p.ext(wq[:9])
            self.publish(['xst'], sXF)
            p.ext(wq[9:])
            self.stamp('p5pub')
            p.ext(self.res_unpack(P))
            p.label(ljoin)
            p(f's_add_u32 s{sLB}, s{sLB}, {LSTRIDE}')
            p('s_waitcnt vmcnt(0) lgkmcnt(0)')
            p('s_barrier')
            return
        p(f'v_and_b32 v{vT+4}, 31, v{vL}')
        p(f'v_mul_u32_u24 v{vT+4}, 896, v{vT+4}')
        p(f'v_lshrrev_b32 v{vT+5}, 5, v{vL}')
        p(f'v_lshl_add_u32 v{vT+4}, v{vT+5}, 4, v{vT+4}')
        for hf in range(2):
            p(f'v_permlane32_swap_b32 v{P+4*hf}, v{P+4*hf+2}')
            p(f'v_permlane32_swap_b32 v{P+4*hf+1}, v{P+4*hf+3}')
            p(f'buffer_store_dwordx4 {vr(P+4*hf)}, v{vT+4}, {srd(S_OUT)}, s{sQOFF} offen offset:{32*hf}')
        p('s_cmp_lg_u32 s2, %d' % (27 * 8 + 7))
        p('s_cbranch_scc1 L_fin')
        p(f's_mov_b32 s{sT0}, {WS_EPOCH}')
        p.ext(self.flag_sc1(sT0))

    def build(self):
        p = self.p
        self.L = 0
        self.prologue()
        for self.L in range(2):
            for ph in ('p1', 'attn', 'p3', 'p45'):
                getattr(self, ph)()
        p.label('L_fin')
        self.stamp('end')
        self.stamp_dump()
        if os.environ.get('CALIB'):
            p.label('L_calib')
            p('s_memrealtime s[96:97]')
            p('s_waitcnt lgkmcnt(0)')
            p('s_sub_u32 s96, s96, s100')
            p(f's_cmp_lt_u32 s96, {int(os.environ["CALIB"])}')
            p('s_cbranch_scc1 L_calib')
        p.label('L_end')
        p('s_endpgm')
        for lab, code in self.tail:
            p.label(lab, reset='all')
            p.ext(code)
        p.label('L_codeend')
        self.emit_walker()
        p.insert_waits()
        probs = p.fix_hazards()
        for x in probs:
            print('branch hazard padded', x, file=sys.stderr)
        mx = p.maxregs()
        head = open(os.path.join(os.path.dirname(__file__), '..', 'cdna_kernels', NAME + '.s.ref')).read().split('\n')
        hdr = [l for l in head if l.startswith(';') and '@launch' not in l]
        out = '\n'.join(hdr) + f'\n; @launch grid=(256,1,1) block=(256,1,1) lds={LDS_BYTES}\n'
        out += '.amdgcn_target "amdgcn-amd-amdhsa--gfx950"\n.text\n'
        out += f'.globl {NAME}_kernel\n.p2align 8\n.type {NAME}_kernel,@function\n{NAME}_kernel:\n'
        out += p.text()
        out += '.fill 64, 4, 0xbf800000\n'
        out += f'''.section .rodata,"a"
.p2align 6
.amdhsa_kernel {NAME}_kernel
  .amdhsa_next_free_vgpr 512
  .amdhsa_next_free_sgpr 102
  .amdhsa_accum_offset 256
  .amdhsa_group_segment_fixed_size 0
  .amdhsa_kernarg_size 72
  .amdhsa_user_sgpr_count 2
  .amdhsa_user_sgpr_kernarg_segment_ptr 1
  .amdhsa_system_sgpr_workgroup_id_x 1
  .amdhsa_float_denorm_mode_32 3
.end_amdhsa_kernel
'''
        print('regs', mx, 'instrs', sum(1 for x in p.items if isinstance(x, Ins)), file=sys.stderr)
        return out


if __name__ == '__main__':
    stop = int(sys.argv[2]) if len(sys.argv) > 2 else None
    k = K(stop if stop and stop > 0 else None, dbg=sys.argv[3].split(',') if len(sys.argv) > 3 else None)
    open(sys.argv[1], 'w').write(k.build())
    if k.dbg:
        open(os.path.join(os.path.dirname(sys.argv[1]), 'stamps.txt'), 'w').write(' '.join(k.stamps))
```

```python
import sys, os, math, struct
sys.path.insert(0, os.path.dirname(__file__))
from asmlib import Prog, Ins, Wait, Mark, Label, Touch

NAME = 'interleave_layers__sliding_block__dense_activation_relu__prompt'

WS_EPOCH = 0
WS_PUR = 0x1000
F_WQ = 0x2000
F_W1 = 0x2800
F_W2 = 0x3000
F_WO = 0x4000
WQT = 0x100000
W1T = 0x250000
WOT = 0x3D8000
W2T = 0x448000
TEAM0 = 0x600000
LSTRIDE = 0x230000
STRIDE = 2 * LSTRIDE
O_KV = 0x000000
O_O = 0x080000
O_X1 = 0x0C0000
O_XA = 0x0F8000
O_ST1 = 0x130000
O_STA = 0x138000
O_FKV = 0x140000
O_FO = 0x144000
O_FX1 = 0x144400
O_FXA = 0x144800
O_FH = 0x145000
O_H = 0x150000
WS_BYTES = TEAM0 + 8 * STRIDE

LKV = 100352
L_CSQ = 149504
L_CS1 = L_CSQ + 512
L_STAMP = 160 * 1024 - 512
L_PUR = L_CS1 + 512 + 1536
L_CSP = L_CS1 + 512
LDS_BYTES = 163840

S_X, S_WQ, S_WO, S_W1, S_W2, S_OUT, S_WS = 8, 12, 16, 20, 24, 28, 32
S_WSP = 36
sTEAM, sM, sA, sJ, sW, sRB, sCB, sLB = 40, 41, 42, 43, 44, 45, 46, 47
sF, sPURE, sLAYER, sTP = 48, 50, 51, 52
sQOFF = 53
sIMP = 54
sPERM, sONES = 56, 57
sRHO, sNU = 58, 59
sT0, sT1, sT2, sT3, sT4, sT5 = 60, 61, 62, 63, 64, 65
sCNT = 66
sTB = 71
sJFL = 67
sXD, sXS, sXF = 68, 69, 70
sPOLL = 72
sRQ, sLQ = 76, 77
sO = 80

vL, vL16, vA1, vL8 = 0, 1, 2, 3
vSTA = 4
vFLG = 5
vRW = 6
vX1A = 10
vCSA = 11
vF = 12
vMEAN, vRSTD = 14, 15
vT = 16
vRES = 240

POLL_MAX = 1 << 16
ROT = {'rb': f's{sRB}', 'team': f's{sTEAM}', '': '0'}[os.environ.get('ROT', '')]
ROT1 = {'a': f's{sA}', 'team': f's{sTEAM}', '': '0'}[os.environ.get('ROT1', '')]
HATT = bool(os.environ.get('HATT'))
ORDER = [7 * sl + sg for sl in range(4) for sg in range(4)] + [7 * sl + sg for sl in range(4) for sg in range(4, 7)]
MF32 = 'v_mfma_f32_32x32x16_bf16'
MF16 = 'v_mfma_f32_16x16x32_bf16'


def srd(b):
    return f's[{b}:{b+3}]'


def vr(b, n=4):
    return f'v[{b}:{b+n-1}]' if n > 1 else f'v{b}'


def ar(b, n=4):
    return f'a[{b}:{b+n-1}]'


def f32bits(x):
    return struct.unpack('<I', struct.pack('<f', x))[0]


def is_mem(x):
    if isinstance(x, (list, tuple)):
        return any(is_mem(y) for y in x)
    if isinstance(x, (Wait, Touch, Label, Mark)):
        return False
    t = x.text if isinstance(x, Ins) else x if isinstance(x, str) else ''
    return t.startswith('ds_') or t.startswith('buffer_') or t.startswith('global_')


def cost(x):
    if isinstance(x, (list, tuple)):
        return sum(cost(y) for y in x)
    if isinstance(x, (Wait, Touch)):
        return 1
    if isinstance(x, (Label, Mark)):
        return 0
    t = x.text if isinstance(x, Ins) else x
    return 2 if t.startswith('v_exp') or t.startswith('v_rsq') or t.startswith('v_rcp') or t.startswith('v_permlane') else 1


def sched(mfs, pre, mem, side, cap, start=0):
    out = []
    side = list(side)
    for i, m in enumerate(mfs):
        out += pre.get(i, [])
        out.append(m)
        n = 0
        for x in mem.get(i, []):
            out.append(x)
            n += cost(x)
        if pre.get(i + 1):
            n += 1
        valu = False
        if i >= start:
            while side and n + cost(side[0]) <= cap:
                if is_mem(side[0]) and valu:
                    break
                x = side.pop(0)
                if not is_mem(x) and not isinstance(x, (Wait, Touch)):
                    t = x[0] if isinstance(x, (list, tuple)) else x
                    if any((y.text if isinstance(y, Ins) else y).startswith('v_') for y in (x if isinstance(x, (list, tuple)) else [x]) if isinstance(y, (Ins, str))):
                        valu = True
                out.append(x)
                n += cost(x)
            if side and n == 0 and cost(side[0]) > cap:
                out.append(side.pop(0))
    return out + side


class K:
    def __init__(self, stop=None, dbg=False):
        self.p = Prog()
        self.stop = stop
        self.dbg = dbg
        self.stamps = []
        self.tail = []
        self.pads = []

    def stamp(self, name):
        if os.environ.get('PROBE') == f'{name}{self.L}':
            self.p('s_memrealtime s[98:99]')
            self.p('s_waitcnt lgkmcnt(0)')
        if not self.dbg or (name not in self.dbg and name not in ('start', 'end')):
            return
        k = len(self.stamps)
        assert k < 32
        self.stamps.append(name)
        p = self.p
        p('s_memrealtime s[96:97]' if 'RT' in self.dbg else 's_memtime s[96:97]')
        if k == 0:
            p('v_readfirstlane_b32 s100, v0')
            p('s_lshr_b32 s100, s100, 6')
            p('s_lshl_b32 s101, s2, 2')
            p('s_add_u32 s100, s100, s101')
            p('s_lshl_b32 s100, s100, 7')
            p('s_add_u32 s100, s100, 0x40000')
        p('s_waitcnt lgkmcnt(0)')
        if k == 0:
            p('v_accvgpr_write_b32 a253, s96')
            return
        p('v_accvgpr_write_b32 a252, s96')
        p('s_mov_b64 exec, 1')
        p(f'buffer_store_dword a252, off, {srd(S_WS)}, s100 offset:{4*k}')
        p('s_mov_b64 exec, -1')

    def stamp_items(self, name):
        n = len(self.p.items)
        self.stamp(name)
        L = self.p.items[n:]
        del self.p.items[n:]
        return [L] if L else []

    def stamp_dump(self):
        if self.dbg:
            self.p(f'buffer_store_dword a253, off, {srd(S_WS)}, s100')

    def dma(self, srdb, voff, sreg, simm, m0, tok, sc='', n=1):
        mr, mi = m0
        L = [f's_add_u32 m0, s{mr}, {mi}' if mr is not None else f's_mov_b32 m0, {mi}',
             f's_add_u32 s{sT5}, s{sreg}, {simm}']
        for k in range(n):
            L.append(Ins(f'buffer_load_dwordx4 v{voff}, {srd(srdb)}, s{sT5} offen offset:{1024*k} {sc} lds', tok))
        return L

    @staticmethod
    def setexec(nl):
        if nl <= 32:
            return [f's_mov_b64 exec, {(1 << nl) - 1:#x}'] if nl < 32 else ['s_mov_b32 exec_hi, 0']
        return [f's_mov_b32 exec_hi, {(1 << (nl - 32)) - 1:#x}']

    def poll_loop(self, voff, soff, nl, imm=0):
        p = self.p
        lp, lo = p.newlabel('poll'), p.newlabel('pollout')
        return self.setexec(nl) + [f's_mov_b32 s{sCNT}, 0', Label(lp),
                f'buffer_load_dwordx2 {vr(vT + 14, 2)}, v{voff}, {srd(S_WS)}, {soff} offen offset:{imm} sc1',
                f's_add_u32 s{sCNT}, s{sCNT}, 1', f's_cmp_gt_u32 s{sCNT}, {POLL_MAX}', f's_cbranch_scc1 {lo}',
                's_waitcnt vmcnt(0)', f'v_cmp_ne_u64 vcc, s[{sF}:{sF+1}], {vr(vT + 14, 2)}', f's_cbranch_vccnz {lp}',
                Label(lo), 's_mov_b64 exec, -1']

    def vpoll(self, voff, soff, nl, acquire=True):
        p = self.p
        p.ext(self.poll_loop(voff, soff, nl))
        if acquire:
            lslow, lback = p.newlabel('acq'), p.newlabel('acqback')
            p(f's_cmp_lg_u32 s{sPURE}, 0')
            p(f's_cbranch_scc0 {lslow}')
            p.label(lback)
            self.tail.append((lslow, ['buffer_inv sc1', 's_waitcnt vmcnt(0)', f's_branch {lback}']))
        p.mark('drained_vm')

    def peek_issue(self, voff, soff, nl, imm=0):
        return [self.setexec(nl) + [f'buffer_load_dwordx2 {vr(vT + 14, 2)}, v{voff}, {srd(S_WS)}, {soff} offen offset:{imm} sc1',
                                    's_mov_b64 exec, -1']]

    def peek_check(self, voff, soff, nl, imm=0):
        p = self.p
        lslow, lback, lacq = p.newlabel('peek'), p.newlabel('peekback'), p.newlabel('peekacq')
        self.tail.append((lslow, self.poll_loop(voff, soff, nl, imm) +
                          [f's_cmp_lg_u32 s{sPURE}, 0', f's_cbranch_scc1 {lback}', 'buffer_inv sc1', 's_waitcnt vmcnt(0)',
                           f's_branch {lback}']))
        return [[Touch(vr(vT + 14, 2))] + self.setexec(nl) +
                [f'v_cmp_ne_u64 vcc, s[{sF}:{sF+1}], {vr(vT + 14, 2)}', 's_mov_b64 exec, -1',
                 f's_or_b64 vcc, vcc, s[{sIMP}:{sIMP+1}]', f's_cbranch_scc1 {lslow}', Label(lback)]]

    def publish_items(self, toks, soff, imm=0):
        p = self.p
        lslow, lback = p.newlabel('pubslow'), p.newlabel('pubback')
        self.tail.append((lslow, [
            'buffer_wbl2 sc1', 's_waitcnt vmcnt(0)',
            f'buffer_store_dwordx2 {vr(vF, 2)}, off, {srd(S_WS)}, s{soff} offset:{imm} sc1',
            f's_branch {lback}']))
        return [[Wait(toks), 's_mov_b64 exec, 1', f's_cmp_lg_u32 s{sPURE}, 0', f's_cbranch_scc0 {lslow}',
                 f'buffer_store_dwordx2 {vr(vF, 2)}, off, {srd(S_WS)}, s{soff} offset:{imm}', Label(lback), 's_mov_b64 exec, -1']]

    def publish(self, toks, soff, imm=0):
        self.p.ext(self.publish_items(toks, soff, imm))

    def flag_sc1(self, soff):
        return ['s_mov_b64 exec, 1', f'buffer_store_dwordx2 {vr(vF,2)}, off, {srd(S_WS)}, s{soff} sc1', 's_mov_b64 exec, -1']

    def flag_opt(self, soff):
        p = self.p
        l = p.newlabel('noflag')
        p(f's_cmp_eq_u32 s{soff}, -1')
        p(f's_cbranch_scc1 {l}')
        p.mark('maybe_begin')
        p.ext(self.flag_sc1(soff))
        p.mark('maybe_end')
        p.label(l)

    def stats_loads(self, soff, dst):
        return [f'buffer_load_dwordx2 {vr(dst + 2*i, 2)}, v{vSTA}, {srd(S_WS)}, s{soff} offen offset:{256*i} sc1' for i in range(7)]

    def stats_reduce(self, src):
        L = []
        for i in range(1, 7):
            L.append(f'v_add_f32 v{src}, v{src}, v{src+2*i}')
            L.append(f'v_add_f32 v{src+1}, v{src+1}, v{src+2*i+1}')
        s, q, t0, t1 = src, src + 1, src + 2, src + 3
        return L + [
            f'v_mov_b32 v{t0}, v{s}', f'v_mov_b32 v{t1}, v{q}', 's_nop 0',
            f'v_permlane32_swap_b32 v{s}, v{t0}', f'v_permlane32_swap_b32 v{q}, v{t1}',
            f'v_add_f32 v{s}, v{s}, v{t0}', f'v_add_f32 v{q}, v{q}, v{t1}',
            f'v_mul_f32 v{vMEAN}, {f32bits(-1.0/448):#x}, v{s}',
            f'v_mul_f32 v{q}, {f32bits(1.0/448):#x}, v{q}',
            f'v_fma_f32 v{q}, -v{vMEAN}, v{vMEAN}, v{q}',
            f'v_max_f32 v{q}, 0, v{q}',
            f'v_add_f32 v{q}, {f32bits(1e-5):#x}, v{q}',
            f'v_rsq_f32 v{vRSTD}, v{q}',
        ]

    def off(self, dst, idx_reg, mul, add):
        return [f's_mul_i32 s{dst}, s{idx_reg}, {mul}', f's_add_u32 s{dst}, s{dst}, s{sLB}', f's_add_u32 s{dst}, s{dst}, {add}']

    def xoff(self, dst, idx_reg, mul, add):
        return [f's_add_u32 s{sT3}, s{sLB}, {add}', f's_add_u32 s{sT4}, s{sTB}, {O_XA}', f's_cmp_lg_u32 s{sPURE}, 0',
                f's_cselect_b32 s{sT3}, s{sT4}, s{sT3}', f's_mul_i32 s{dst}, s{idx_reg}, {mul}', f's_add_u32 s{dst}, s{dst}, s{sT3}']

    def roff(self, dst, idx_reg, mul, add):
        return [f's_cmp_lg_u32 s{sPURE}, 0', f's_cselect_b32 s{sT3}, s{sTB}, s{sLB}',
                f's_mul_i32 s{dst}, s{idx_reg}, {mul}', f's_add_u32 s{dst}, s{dst}, s{sT3}', f's_add_u32 s{dst}, s{dst}, {add}']

    def pub_offsets(self, xoff, stoff, foff):
        return [f's_lshl_b32 s{sT0}, s{sRB}, 1', f's_add_u32 s{sT0}, s{sT0}, s{sRHO}',
                f's_lshl_b32 s{sT1}, s{sCB}, 1', f's_add_u32 s{sT1}, s{sT1}, s{sNU}',
                f's_mul_i32 s{sT2}, s{sT0}, 14', f's_add_u32 s{sT2}, s{sT2}, s{sT1}'] + \
            self.xoff(sXD, sT2, 2048, xoff) + self.off(sXS, sT2, 256, stoff) + \
            [f's_lshl_b32 s{sT0}, s{sT0}, 4', f's_add_u32 s{sT0}, s{sT0}, s{sT1}'] + self.off(sXF, sT0, 8, foff) + \
            [f's_cmp_ge_u32 s{sM}, 28'] + [f's_cselect_b32 s{r}, {WS_PUR}, s{r}' for r in (sXD, sXS, sXF)]

    def x_store(self, P, va, offs, sc=''):
        p = self.p
        S, Q2, t0, t1 = vT + 6, vT + 7, vT + 8, vT + 9
        for k in range(2):
            p(f'buffer_store_dwordx4 {vr(P+4*k)}, v{va}, {srd(S_WS)}, s{sXD} offen offset:{offs[k]} {sc}', tok='xst')
        p(f'v_mov_b32 v{t0}, s{sONES}')
        p(f'v_dot2_f32_bf16 v{S}, v{P}, v{t0}, 0')
        p(f'v_dot2_f32_bf16 v{Q2}, v{P}, v{P}, 0')
        for i in range(1, 8):
            p(f'v_dot2_f32_bf16 v{S}, v{P+i}, v{t0}, v{S}')
            p(f'v_dot2_f32_bf16 v{Q2}, v{P+i}, v{P+i}, v{Q2}')
        p(f'v_mov_b32 v{t0}, v{S}')
        p(f'v_mov_b32 v{t1}, v{Q2}')
        p(f'v_permlane32_swap_b32 v{S}, v{t0}')
        p(f'v_permlane32_swap_b32 v{Q2}, v{t1}')
        p(f'v_add_f32 v{S}, v{S}, v{t0}')
        p(f'v_add_f32 v{Q2}, v{Q2}, v{t1}')
        p('s_mov_b32 exec_hi, 0')
        p(f'buffer_store_dwordx2 {vr(S,2)}, v{vL8}, {srd(S_WS)}, s{sXS} offen {sc}', tok='xst')
        p('s_mov_b64 exec, -1')

    def res_unpack(self, P):
        L = []
        for q in range(8):
            L.append(f'v_lshlrev_b32 v{vRES+2*q}, 16, v{P+q}')
            L.append(f'v_and_b32 v{vRES+2*q+1}, 0xffff0000, v{P+q}')
        return L

    def prefetch(self, v128, sreg, base, nbytes):
        L = []
        o = 0
        while o < nbytes:
            oo = min(o, nbytes - 8192)
            L += [f's_add_u32 s{sT5}, s{sreg}, {base + oo}', f'buffer_load_dword a255, v{v128}, {srd(S_WS)}, s{sT5} offen sc1']
            o += 8192
        return L

    def touch(self, v128, sreg, imm, nlines):
        L = [f's_add_u32 s{sT5}, s{sreg}, {imm}']
        if nlines < 64:
            L += self.setexec(nlines)
        L.append(f'buffer_load_dword a255, v{v128}, {srd(S_WS)}, s{sT5} offen sc1')
        if nlines < 64:
            L.append('s_mov_b64 exec, -1')
        return [L]

    def wq_dma(self, tiles):
        sg, sl = sPOLL + 2, sPOLL + 3
        L = [f's_mul_i32 s{sg}, s{sJ}, 86016', f's_mul_i32 s{sl}, s{sW}, 7168', f's_add_u32 s{sg}, s{sg}, s{sl}']
        for tau in tiles:
            for o, n in ((0, 4), (4096, 3)):
                d = self.dma(S_WS, vL16, sg, WQT + tau * 28672 + o, (sl, tau * 28672 + o), 'wq', 'sc1', n)
                L += [d[:3]] + d[3:]
        return L

    def w1_dma(self, part):
        sg, sl = sPOLL, sPOLL + 1
        L = []
        if part == 0:
            for hf in range(2):
                L += [f's_and_b32 s{sl}, {ROT1}, 1', f's_xor_b32 s{sl}, s{sl}, {hf}', f's_lshl_b32 s{sg}, s{sW}, 1', f's_add_u32 s{sl}, s{sl}, s{sg}',
                      f's_mul_i32 s{sl}, s{sl}, 7168', f's_mul_i32 s{sg}, s{sJ}, 100352', f's_add_u32 s{sg}, s{sg}, s{sl}']
                for o, n in ((0, 4), (4096, 3)):
                    d = self.dma(S_WS, vL16, sg, W1T + o, (sl, o), 'w1', 'sc1', n)
                    L += [d[:3]] + d[3:]
            return L
        else:
            L += [f's_mul_i32 s{sg}, s{sJ}, 100352', f's_mul_i32 s{sl}, s{sW}, 10240', f's_add_u32 s{sg}, s{sg}, s{sl}']
            groups = [(0, 4), (4096, 4), (8192, 2)]
            base = 57344
        for o, n in groups:
            d = self.dma(S_WS, vL16, sg, W1T + base + o, (sl, base + o), 'w1', 'sc1', n)
            L += [d[:3]] + d[3:]
        if part == 1:
            L += [f's_sub_u32 s{sg}, s{sg}, s{sl}', f's_lshl_b32 s{sl}, s{sNU}, 10', f's_add_u32 s{sg}, s{sg}, s{sl}']
            L.append(self.dma(S_WS, vL16, sg, W1T + 98304, (sl, 98304), 'w1', 'sc1', 1))
        return L

    def w2_setup(self, sbase, vz):
        return [f's_lshl_b32 s{sbase}, s{sCB}, 2', f's_add_u32 s{sbase}, s{sbase}, s{sW}', f's_mul_i32 s{sbase}, s{sbase}, 57344',
                f's_lshl_b32 s{sT1}, s{sNU}, 10', f'v_xor_b32 v{vz[0]}, s{sT1}, v{vL16}', f'v_xor_b32 v{vz[1]}, 1024, v{vz[0]}']

    def w2_loads(self, sbase, vz):
        L = []
        for sl in range(4):
            pre = [f's_add_u32 s{sT3}, {ROT}, {sl}', f's_and_b32 s{sT3}, s{sT3}, 3', f's_mul_i32 s{sT3}, s{sT3}, 14336',
                   f's_add_u32 s{sT3}, s{sT3}, s{sbase}']
            for sg in range(7):
                ks = 7 * sl + sg
                g = pre + [f's_add_u32 s{sT4}, s{sT3}, {W2T + sg*2048}',
                           f'buffer_load_dwordx4 {ar(ks*8)}, v{vz[0]}, {srd(S_WS)}, s{sT4} offen sc1']
                pre = []
                L += [g, f'buffer_load_dwordx4 {ar(ks*8+4)}, v{vz[1]}, {srd(S_WS)}, s{sT4} offen sc1']
        return L

    def lane_consts(self):
        p = self.p
        t0, t1 = vT + 6, vT + 7
        p(f'v_add_u32 v{vA1}, 57344, v{vL16}')
        p(f'v_and_b32 v{vSTA}, 31, v{vL}')
        p(f'v_lshlrev_b32 v{vSTA}, 3, v{vSTA}')
        p(f'v_lshrrev_b32 v{t0}, 5, v{vL}')
        p(f'v_mul_u32_u24 v{t1}, {7*256}, v{t0}')
        p(f'v_add_u32 v{vSTA}, v{vSTA}, v{t1}')
        p(f'v_lshrrev_b32 v{vFLG}, 2, v{vL}')
        p(f'v_lshlrev_b32 v{vFLG}, 7, v{vFLG}')
        p(f'v_and_b32 v{t1}, 3, v{vL}')
        p(f'v_lshl_add_u32 v{vFLG}, v{t1}, 3, v{vFLG}')
        for x in range(1, 4):
            p(f's_xor_b32 s{sT0}, s{sW}, {x}')
            p(f's_mul_i32 s{sT0}, s{sT0}, 12288')
            p(f's_add_u32 s{sT0}, s{sT0}, {LKV + (x-1)*4096}')
            p(f'v_add_u32 v{vRW+x-1}, s{sT0}, v{vL16}')
        p(f's_mul_i32 s{sT0}, s{sW}, 12288')
        p(f's_add_u32 s{sT0}, s{sT0}, {LKV}')
        p(f'v_add_u32 v{vRW+3}, s{sT0}, v{vL16}')
        p(f'v_bfe_u32 v{vX1A}, v{vL}, 4, 1')
        p(f'v_lshlrev_b32 v{vX1A}, 10, v{vX1A}')
        p(f'v_lshl_add_u32 v{vX1A}, v{t0}, 8, v{vX1A}')
        p(f'v_and_b32 v{t1}, 15, v{vL}')
        p(f'v_lshl_add_u32 v{vX1A}, v{t1}, 4, v{vX1A}')

    def pad(self):
        p = self.p
        k = len(self.pads)
        self.pads.append(f'L_pad{k}')
        p(f's_branch L_padskip{k}')
        p.label(f'L_pad{k}')
        p('s_setpc_b64 s[98:99]')
        p.label(f'L_padskip{k}')

    def emit_walker(self):
        L = []
        labs = [f'L_walk{w}' for w in range(4)]
        for w in range(1, 4):
            L += [Ins(f's_cmp_eq_u32 s{sW}, {w}'), Ins(f's_cbranch_scc1 {labs[w]}')]
        for w in range(4):
            if w:
                L.append(Label(labs[w]))
            for x in self.pads[w::4]:
                L.append(Ins(f's_call_b64 s[98:99], {x}'))
            if w < 3:
                L.append(Ins('s_branch L_walkend'))
        L.append(Label('L_walkend'))
        self.p.items[self.walker_at:self.walker_at] = L

    def rawq(self, tau, i):
        return (self.dma(S_WQ, self.vDQ, sRQ, (448, 896, 0)[tau] * 2 + i * 16 * 2688, (sLQ, tau * 28672 + i * 1024), f'rq{tau}{i}'))

    def xform(self, tau, R, vcs, vones, between=None):
        p = self.p

        def fin(i):
            p(f'ds_write_b128 v{self.vWQ}, {vr(R+4*i)} offset:{tau*28672+i*1024}')
            for q in range(4):
                p(f'v_dot2_f32_bf16 v{vcs}, v{R+4*i+q}, v{vones}, {f"v{vcs}" if i or q else 0}')
        for i in range(7):
            p.wait(f'rq{tau}{i}')
            for jj in range(2):
                p(f'ds_read_b64_tr_b16 {vr(R+4*i+2*jj,2)}, v{self.vTQ} offset:{tau*28672+i*1024+jj*512}')
            if between:
                between(i)
            if i >= 1:
                fin(i - 1)
        fin(6)

    def cs_partial(self, taus, vcs, t2, t3):
        p = self.p
        for k, tau in enumerate(taus):
            p(f'v_mov_b32 v{t2}, v{vcs+k}')
            p(f'v_permlane32_swap_b32 v{vcs+k}, v{t2}')
            p(f'v_add_f32 v{vcs+k}, v{vcs+k}, v{t2}')
        p(f'v_and_b32 v{t2}, 31, v{vL}')
        p(f'v_lshlrev_b32 v{t2}, 2, v{t2}')
        p(f's_mul_i32 s{sT0}, s{sW}, 384')
        p(f's_add_u32 s{sT0}, s{sT0}, {L_CSP}')
        p(f'v_add_u32 v{t3}, s{sT0}, v{t2}')
        for k, tau in enumerate(taus):
            p(f'ds_write_b32 v{t3}, v{vcs+k} offset:{tau*128}')

    def cs_sum(self, taus, R, t2, t3):
        p = self.p
        p(f'v_add_u32 v{t3}, {L_CSP}, v{t2}')
        for k, tau in enumerate(taus):
            for w in range(4):
                p(f'ds_read_b32 v{R+4*k+w}, v{t3} offset:{w*384+tau*128}')
        p(f'v_add_u32 v{t3}, {L_CSQ}, v{t2}')
        for k, tau in enumerate(taus):
            r = R + 4 * k
            p(f'v_add_f32 v{r}, v{r}, v{r+1}')
            p(f'v_add_f32 v{r+2}, v{r+2}, v{r+3}')
            p(f'v_add_f32 v{r}, v{r}, v{r+2}')
            p(f'ds_write_b32 v{t3}, v{r} offset:{tau*128}')
        p('s_waitcnt lgkmcnt(0)')

    def prologue(self):
        p = self.p
        t0, t1, t2, t3 = vT, vT + 1, vT + 2, vT + 3
        self.vDQ, self.vTQ, self.vWQ = vDQ, vTQ, vWQ = vT + 10, vT + 11, vT + 12
        p('s_cmp_ge_u32 s2, 256')
        p('s_cbranch_scc1 L_end')
        p(f's_load_dwordx16 s[{sO}:{sO+15}], s[0:1], 0')
        p(f's_load_dwordx2 s[{S_WSP}:{S_WSP+1}], s[0:1], 64')
        p(f's_getpc_b64 s[{sT0}:{sT0+1}]')
        p.label('L_pc')
        p(f'v_lshlrev_b32 v{t2}, 7, v0')
        p(f'global_load_dword a255, v{t2}, s[{sT0}:{sT0+1}]')
        p(f'v_add_u32 v{t2}, 0x8000, v{t2}')
        p(f'v_min_u32 v{t2}, L_codeend-L_pc, v{t2}')
        p(f'global_load_dword a255, v{t2}, s[{sT0}:{sT0+1}]')
        if os.environ.get('CALIB'):
            p('s_memrealtime s[100:101]')
        self.stamp('start')
        p(f'v_lshrrev_b32 v{vT}, 6, v0')
        p(f'v_and_b32 v{vL}, 63, v0')
        p(f'v_readfirstlane_b32 s{sW}, v{vT}')
        p(f's_lshr_b32 s{sM}, s2, 3')
        p(f's_and_b32 s{sTEAM}, s2, 7')
        p(f's_mul_i32 s{sRB}, s{sM}, 37')
        p(f's_lshr_b32 s{sRB}, s{sRB}, 8')
        p(f's_mul_i32 s{sT0}, s{sRB}, 7')
        p(f's_sub_u32 s{sCB}, s{sM}, s{sT0}')
        p(f's_lshr_b32 s{sRHO}, s{sW}, 1')
        p(f's_and_b32 s{sNU}, s{sW}, 1')
        p(f's_lshl_b32 s{sT0}, s{sTEAM}, 2')
        p(f's_add_u32 s{sT0}, s{sT0}, s{sRB}')
        p(f's_lshl_b32 s{sT1}, s{sT0}, 1')
        p(f's_add_u32 s{sT1}, s{sT1}, s{sRHO}')
        p(f's_mul_i32 s{sQOFF}, s{sT1}, {32*896}')
        p(f's_lshl_b32 s{sT1}, s{sCB}, 7')
        p(f's_add_u32 s{sQOFF}, s{sQOFF}, s{sT1}')
        p(f's_lshl_b32 s{sT1}, s{sNU}, 6')
        p(f's_add_u32 s{sQOFF}, s{sQOFF}, s{sT1}')
        vPK, vPQ, vH = vT + 14, vT + 15, vT + 13
        p(f'v_and_b32 v{t3}, 31, v{vL}')
        p(f'v_mul_u32_u24 v{t3}, 896, v{t3}')
        p(f'v_lshrrev_b32 v{vH}, 5, v{vL}')
        p(f'v_lshl_add_u32 v{t3}, v{vH}, 3, v{t3}')
        p(f's_lshl_b32 s{sT2}, s{sM}, 2')
        p(f's_add_u32 s{sT2}, s{sT2}, s{sW}')
        p(f's_mul_i32 s{sT3}, s{sT2}, 49')
        p(f'v_add_u32 v{t2}, s{sT3}, v{vL}')
        p(f'v_mul_u32_u24 v{vPK}, 74899, v{t2}')
        p(f'v_lshrrev_b32 v{vPK}, 20, v{vPK}')
        p(f'v_mul_u32_u24 v{vPK}, 7, v{vPK}')
        p(f'v_add_u32 v{vPK}, v{vPK}, v{t2}')
        p(f'v_lshlrev_b32 v{vPK}, 7, v{vPK}')
        b = sO

        def mksrd(d, src, n):
            p(f's_mov_b32 s{d}, s{src}')
            p(f's_and_b32 s{d+1}, s{src+1}, 0xffff')
            p(f's_mov_b32 s{d+2}, {n}')
            p(f's_mov_b32 s{d+3}, 0x20000')
        mksrd(S_X, b, 1835008)
        mksrd(S_WQ, b + 2, 1204224)
        XR = 96
        for q in range(4):
            p(f'buffer_load_dwordx2 {vr(XR+2*q,2)}, v{t3}, {srd(S_X)}, s{sQOFF} offen offset:{16*q}')
        p('s_mov_b32 exec_hi, 0x1ffff')
        p(f'buffer_load_dword a255, v{vPK}, {srd(S_WQ)}, 0 offen offset:896')
        p('s_mov_b64 exec, -1')
        p(f's_load_dwordx2 s[{sF}:{sF+1}], s[{S_WSP}:{S_WSP+1}], {WS_EPOCH}')
        for (d, src, n) in ((S_WO, b + 4, 401408), (S_W1, b + 8, 1605632),
                            (S_W2, b + 10, 1605632), (S_OUT, b + 12, 1835008), (S_WS, S_WSP, WS_BYTES)):
            mksrd(d, src, n)
        p(f's_mul_i32 s{sT3}, s{sT2}, 25')
        p(f'v_add_u32 v{t2}, s{sT3}, v{vL}')
        p(f'v_mul_u32_u24 v{vPQ}, 149797, v{t2}')
        p(f'v_lshrrev_b32 v{vPQ}, 20, v{vPQ}')
        p(f'v_mul_u32_u24 v{vPQ}, 14, v{vPQ}')
        p(f'v_add_u32 v{vPQ}, v{vPQ}, v{t2}')
        p(f'v_lshlrev_b32 v{vPQ}, 7, v{vPQ}')
        p(f's_and_b32 s{sJ}, s{sM}, 15')
        p(f's_lshr_b32 s{sA}, s{sM}, 4')
        p(f'v_lshrrev_b32 v{t0}, 2, v{vL}')
        p(f'v_and_b32 v{t1}, 3, v{vL}')
        p(f'v_lshlrev_b32 v{t3}, 3, v{t1}')
        p(f'v_lshlrev_b32 v{t1}, 4, v{t1}')
        self.stamp('ka')
        sI, sSTG = sO, sO + 1
        sFL, sDST, sJOB, sDST2 = sJFL, sO + 3, sO + 4, sO + 5

        p(f's_mul_i32 s{sLB}, s{sTEAM}, {STRIDE}')
        p(f's_add_u32 s{sLB}, s{sLB}, {TEAM0}')
        p(f's_mov_b32 s{sTB}, s{sLB}')
        p(f'v_lshlrev_b32 v{vL16}, 4, v{vL}')
        p(f'v_lshlrev_b32 v{vL8}, 3, v{vL}')
        p(f's_mov_b32 s{sONES}, 0x3f803f80')
        p(f's_mov_b32 s{sPURE}, 1')
        p(f's_mov_b64 s[{sIMP}:{sIMP+1}], 0')
        p.ext(self.pub_offsets(O_XA, O_STA, O_FXA))
        vD, vTR, vTR8 = vT + 4, vT + 5, vT + 13
        FR = 32
        p(f's_lshl_b32 s{sI}, s{sTEAM}, 1')
        p(f's_add_u32 s{sI}, s{sI}, s{sA}')
        p(f's_lshl_b32 s{sSTG}, s{sW}, 13')
        p(f's_add_u32 s{sSTG}, s{sSTG}, {LKV}')
        lA = [p.newlabel('jobA') for _ in range(4)]
        p(f's_mov_b32 s{sJOB}, 0')
        p.mark('maybe_begin')
        p(f's_cmp_ge_u32 s{sW}, 2')
        p(f's_cbranch_scc1 {lA[0]}')
        p(f's_cmp_eq_u32 s{sW}, 0')
        p(f's_cbranch_scc1 {lA[2]}')
        p(f's_cmp_ge_u32 s{sI}, 14')
        p(f's_cbranch_scc1 {lA[2]}')
        p(f'v_bfe_u32 v{vD}, v{vL}, 1, 3')
        p(f'v_bfe_u32 v{t2}, v{vL}, 4, 1')
        p(f'v_lshl_add_u32 v{vD}, v{t2}, 4, v{vD}')
        p(f'v_bfe_u32 v{t2}, v{vL}, 5, 1')
        p(f'v_lshl_add_u32 v{vD}, v{t2}, 3, v{vD}')
        p(f'v_mul_u32_u24 v{vD}, 3584, v{vD}')
        p(f'v_and_b32 v{t2}, 1, v{vL}')
        p(f'v_lshl_add_u32 v{vD}, v{t2}, 4, v{vD}')
        p(f's_mul_i32 s{sT0}, s{sI}, {32*3584}')
        p(f's_mul_i32 s{sT1}, s{sJ}, 224')
        p(f's_add_u32 s{sT0}, s{sT0}, s{sT1}')
        for t in range(7):
            p.ext(self.dma(S_W1, vD, sT0, t * 32, (sSTG, t * 1024), 'raw'))
        p(f's_mov_b32 s{sJOB}, 2')
        p('s_waitcnt vmcnt(8)')
        p(f's_branch {lA[3]}')
        p.label(lA[0])
        p(f'v_mul_u32_u24 v{vD}, 896, v{t0}')
        p(f'v_add_u32 v{vD}, v{vD}, v{t1}')
        p(f's_cmp_ge_u32 s{sM}, 28')
        p(f's_cbranch_scc1 {lA[1]}')
        sI2, sSL, sHF = sT2, sT3, sT4
        p(f's_lshl_b32 s{sI2}, s{sTEAM}, 2')
        p(f's_add_u32 s{sI2}, s{sI2}, s{sRB}')
        p(f's_lshr_b32 s{sSL}, s{sI2}, 1')
        p(f's_and_b32 s{sHF}, s{sI2}, 1')
        p(f's_mul_i32 s{sT0}, s{sSL}, {112*896}')
        p(f's_mul_i32 s{sT1}, s{sHF}, {64*896}')
        p(f's_add_u32 s{sT0}, s{sT0}, s{sT1}')
        p(f's_lshl_b32 s{sT1}, s{sCB}, 7')
        p(f's_add_u32 s{sT0}, s{sT0}, s{sT1}')
        p(f's_lshl_b32 s{sT1}, s{sNU}, 6')
        p(f's_add_u32 s{sT0}, s{sT0}, s{sT1}')
        for k in range(4):
            p.ext(self.dma(S_W2, vD, sT0, k * 16 * 896, (sSTG, k * 1024), 'raw'))
        p(f's_add_u32 s{sJOB}, s{sHF}, 3')
        p('s_waitcnt vmcnt(5)')
        p(f's_branch {lA[3]}')
        p.label(lA[1])
        p(f's_cmp_eq_u32 s{sTEAM}, 7')
        p(f's_cbranch_scc1 {lA[2]}')
        p(f's_mul_i32 s{sT0}, s{sCB}, {112*896}')
        p(f's_lshl_b32 s{sT1}, s{sTEAM}, 7')
        p(f's_add_u32 s{sT0}, s{sT0}, s{sT1}')
        p(f's_lshl_b32 s{sT1}, s{sNU}, 6')
        p(f's_add_u32 s{sT0}, s{sT0}, s{sT1}')
        for k in range(8):
            p.ext(self.dma(S_WO, vD, sT0, k * 16 * 896, (sSTG, k * 1024), 'raw'))
        p(f's_mov_b32 s{sJOB}, 5')
        p.label(lA[2])
        p('s_waitcnt vmcnt(1)')
        p.mark('maybe_end')
        p.label(lA[3])
        self.stamp('jA')
        lp0 = p.newlabel('p0skip')
        p(f's_cmp_ge_u32 s{sM}, 28')
        p(f's_cselect_b32 s{sXF}, -1, s{sXF}')
        p(f's_cbranch_scc1 {lp0}')
        p.mark('drained_vm')
        self.x_store(XR, vL16, (0, 1024), 'sc1')
        p.label(lp0)
        p(f's_lshl_b32 s{sTP}, s{sA}, 2')
        p(f's_add_u32 s{sTP}, s{sTP}, s{sW}')
        p(f's_lshl_b32 s{sT0}, s{sTP}, 4')
        p(f's_add_u32 s{sT0}, s{sT0}, s{sJ}')
        p.ext(self.off(sT1, sT0, 2048, O_O))
        p.ext(self.off(sT2, sT0, 7168, O_H))
        p(f's_add_u32 s{sT3}, s{sT2}, 4096')
        if os.environ.get('WA'):
            for sr, n in ((sT1, 2), (sT2, 4), (sT3, 3)):
                for k in range(n):
                    p(f'buffer_store_dwordx4 {vr(XR)}, v{vL16}, {srd(S_WS)}, s{sr} offen offset:{1024*k} sc1')
        p('s_mov_b64 exec, 0x1ffffff')
        p(f'buffer_load_dword a255, v{vPQ}, {srd(S_WQ)}, 0 offen')
        p('s_mov_b64 exec, -1')
        self.stamp('x0')
        p(f'v_mul_u32_u24 v{vDQ}, 2688, v{t0}')
        p(f'v_add_u32 v{vDQ}, v{vDQ}, v{t1}')
        p(f's_mul_i32 s{sRQ}, s{sW}, {7*16*2688}')
        p(f's_mul_i32 s{sT1}, s{sJ}, 56')
        p(f's_add_u32 s{sRQ}, s{sRQ}, s{sT1}')
        p(f's_mul_i32 s{sLQ}, s{sW}, 7168')
        p(f'v_bfe_u32 v{t2}, v{vL}, 4, 1')
        p(f'v_lshl_add_u32 v{t2}, v{t2}, 5, v{t3}')
        p(f'v_bfe_u32 v{vTR}, v{vL}, 2, 2')
        p(f'v_lshl_add_u32 v{t2}, v{vTR}, 6, v{t2}')
        p(f'v_lshl_add_u32 v{vTQ}, v{vH}, 8, v{t2}')
        p(f'v_add_u32 v{vTR}, s{sSTG}, v{vTQ}')
        p(f'v_add_u32 v{t2}, s{sSTG}, v{t2}')
        p(f'v_lshl_add_u32 v{vTR8}, v{vH}, 9, v{t2}')
        p(f'v_add_u32 v{vTQ}, s{sLQ}, v{vTQ}')
        p(f'v_add_u32 v{vWQ}, s{sLQ}, v{vL16}')
        p(f's_mov_b32 s{sPERM}, 0x07060302')
        self.lane_consts()
        vCSP = 104
        p(f'v_mov_b32 v{vCSP+3}, s{sONES}')
        p.ext(self.res_unpack(XR))
        p('s_waitcnt lgkmcnt(0)')
        p(f's_add_u32 s{sF}, s{sF}, 1')
        p(f's_addc_u32 s{sF+1}, s{sF+1}, 0')
        p(f'v_mov_b32 v{vF}, s{sF}')
        p(f'v_mov_b32 v{vF+1}, s{sF+1}')
        self.walker_at = len(p.items)
        self.stamp('wk')
        p('s_waitcnt vmcnt(1)')
        p.mark('drained_vm')
        self.stamp('rt1')
        for i in range(4):
            p.ext(self.rawq(0, i))
        self.flag_opt(sXF)

        def finish(nfr, offs):
            L = []
            base = None
            for k in range(nfr):
                hi, lo = offs[k] // 4096 * 4096, offs[k] % 4096
                if hi != base:
                    L.append(f's_add_u32 s{sT5}, s{sDST}, {hi}')
                    base = hi
                L.append(f'buffer_store_dwordx4 {vr(FR+4*k)}, v{vL16}, {srd(S_WS)}, s{sT5} offen offset:{lo} sc1')
            return L
        lB = {k: p.newlabel('jobB') for k in (3, 4, 5, 'join')}
        p(f's_mov_b32 s{sFL}, -1')
        p.mark('maybe_begin')
        p(f's_cmp_eq_u32 s{sJOB}, 0')
        p(f's_cbranch_scc1 {lB["join"]}')
        p(f's_cmp_eq_u32 s{sJOB}, 5')
        p(f's_cbranch_scc1 {lB[5]}')
        p(f's_cmp_ge_u32 s{sJOB}, 3')
        p(f's_cbranch_scc1 {lB[3]}')
        p(f'v_lshl_add_u32 v{vTR}, v{t0}, 5, v{t3}')
        p(f'v_add_u32 v{vTR}, s{sSTG}, v{vTR}')
        for t in range(7):
            for jj in range(2):
                p(f'ds_read_b64_tr_b16 {vr(FR+t*4+2*jj,2)}, v{vTR} offset:{t*1024+jj*512}')
        p(f's_mul_i32 s{sDST}, s{sJ}, 100352')
        p(f's_add_u32 s{sDST}, s{sDST}, {W1T}')
        p(f's_mul_i32 s{sDST2}, s{sI}, 3072')
        p(f's_add_u32 s{sDST2}, s{sDST2}, s{sDST}')
        p(f's_add_u32 s{sDST2}, s{sDST2}, 57344')
        p(f's_lshl_b32 s{sT0}, s{sI}, 12')
        p(f's_add_u32 s{sDST}, s{sDST}, s{sT0}')
        p(f's_lshl_b32 s{sFL}, s{sJ}, 4')
        p(f's_add_u32 s{sFL}, s{sFL}, s{sI}')
        p(f's_lshl_b32 s{sFL}, s{sFL}, 3')
        p(f's_add_u32 s{sFL}, s{sFL}, {F_W1}')
        p.ext(finish(4, [t * 1024 for t in range(4)]))
        for t in range(4, 7):
            p(f'buffer_store_dwordx4 {vr(FR+4*t)}, v{vL16}, {srd(S_WS)}, s{sDST2} offen offset:{(t-4)*1024} sc1')
        p(f's_branch {lB["join"]}')
        p.label(lB[3])
        for sg in range(2):
            for jj in range(2):
                p(f'ds_read_b64_tr_b16 {vr(FR+sg*4+2*jj,2)}, v{vTR} offset:{(16*jj+8*sg)*64}')
        p(f's_lshl_b32 s{sI2}, s{sTEAM}, 2')
        p(f's_add_u32 s{sI2}, s{sI2}, s{sRB}')
        p(f's_lshr_b32 s{sSL}, s{sI2}, 1')
        p(f's_and_b32 s{sHF}, s{sI2}, 1')
        p(f's_mul_i32 s{sDST}, s{sCB}, 229376')
        p(f's_mul_i32 s{sT0}, s{sSL}, 14336')
        p(f's_add_u32 s{sDST}, s{sDST}, s{sT0}')
        p(f's_lshl_b32 s{sT0}, s{sHF}, 13')
        p(f's_add_u32 s{sDST}, s{sDST}, s{sT0}')
        p(f's_lshl_b32 s{sT0}, s{sNU}, 10')
        p(f's_add_u32 s{sDST}, s{sDST}, s{sT0}')
        p(f's_add_u32 s{sDST}, s{sDST}, {W2T}')
        p(f's_lshl_b32 s{sFL}, s{sCB}, 5')
        p(f's_add_u32 s{sFL}, s{sFL}, s{sI2}')
        p(f's_lshl_b32 s{sFL}, s{sFL}, 1')
        p(f's_add_u32 s{sFL}, s{sFL}, s{sNU}')
        p(f's_lshl_b32 s{sFL}, s{sFL}, 3')
        p(f's_add_u32 s{sFL}, s{sFL}, {F_W2}')
        p(f's_cmp_eq_u32 s{sJOB}, 4')
        p(f's_cbranch_scc1 {lB[4]}')
        for sg in range(2, 4):
            for jj in range(2):
                p(f'ds_read_b64_tr_b16 {vr(FR+sg*4+2*jj,2)}, v{vTR} offset:{(32+16*jj+8*(sg%2))*64}')
        p.ext(finish(4, [k * 2048 for k in range(4)]))
        p(f's_branch {lB["join"]}')
        p.label(lB[4])
        for jj in range(2):
            p(f'ds_read_b64_tr_b16 {vr(FR+8+2*jj,2)}, v{vTR8} offset:{(32+4*jj)*64}')
        p('s_waitcnt lgkmcnt(0)')
        p.ext(finish(3, [k * 2048 for k in range(3)]))
        p(f's_branch {lB["join"]}')
        p.label(lB[5])
        for hd in range(4):
            for kp in range(2):
                for jj in range(2):
                    p(f'ds_read_b64_tr_b16 {vr(FR+(hd*2+kp)*4+2*jj,2)}, v{vTR} offset:{(28*hd+16*kp+8*jj)*64}')
        p(f's_lshl_b32 s{sFL}, s{sTEAM}, 2')
        p(f's_add_u32 s{sFL}, s{sFL}, s{sCB}')
        p(f's_lshl_b32 s{sDST}, s{sFL}, 14')
        p(f's_lshl_b32 s{sT0}, s{sNU}, 10')
        p(f's_add_u32 s{sDST}, s{sDST}, s{sT0}')
        p(f's_add_u32 s{sDST}, s{sDST}, {WOT}')
        p(f's_lshl_b32 s{sFL}, s{sFL}, 1')
        p(f's_add_u32 s{sFL}, s{sFL}, s{sNU}')
        p(f's_lshl_b32 s{sFL}, s{sFL}, 3')
        p(f's_add_u32 s{sFL}, s{sFL}, {F_WO}')
        p('s_waitcnt lgkmcnt(0)')
        p('s_mov_b32 exec_lo, 0')
        for hd in range(4):
            p(f'v_mov_b32 v{FR+(hd*2+1)*4+2}, 0')
            p(f'v_mov_b32 v{FR+(hd*2+1)*4+3}, 0')
        p('s_mov_b64 exec, -1')
        p.ext(finish(8, [k * 2048 for k in range(8)]))
        p.mark('maybe_end')
        p.label(lB['join'])
        p(f's_getreg_b32 s{sT0}, hwreg(HW_REG_XCC_ID)')
        p(f's_and_b32 s{sT0}, s{sT0}, 15')
        p(f's_lshl_b32 s{sT0}, s{sT0}, 28')
        p(f's_xor_b32 s{sT0}, s{sT0}, s{sF+1}')
        p(f'v_mov_b32 v{t2}, s{sF}')
        p(f'v_mov_b32 v{t3}, s{sT0}')
        p(f's_lshl_b32 s{sT1}, s{sTEAM}, 8')
        p(f's_lshl_b32 s{sT2}, s{sM}, 3')
        p(f's_add_u32 s{sT1}, s{sT1}, s{sT2}')
        p(f's_add_u32 s{sT1}, s{sT1}, {WS_PUR}')
        lx = p.newlabel('noxcc')
        p(f's_cmp_lg_u32 s{sW}, 0')
        p(f's_cbranch_scc1 {lx}')
        p.mark('maybe_begin')
        p('s_mov_b64 exec, 1')
        p(f'buffer_store_dwordx2 {vr(t2,2)}, off, {srd(S_WS)}, s{sT1} sc1')
        p('s_mov_b64 exec, -1')
        p.mark('maybe_end')
        p.label(lx)
        self.stamp('jB')
        for i in range(4, 7):
            p.ext(self.rawq(0, i))
        for i in range(7):
            p.ext(self.rawq(1, i))
        self.xform(0, 128, vCSP, vCSP + 3)
        self.flag_opt(sFL)
        self.stamp('xf0')
        self.xform(1, 160, vCSP + 1, vCSP + 3)
        self.cs_partial((0, 1), vCSP, t2, t3)
        p('s_waitcnt lgkmcnt(0)')
        p('s_barrier')
        self.stamp('bar')
        self.cs_sum((0, 1), 108, t2, t3)
        self.stamp('pro')

    def wqt_publish(self, R):
        p = self.p
        l = p.newlabel('nowqt')
        p(f's_lshl_b32 s{sT0}, s{sTEAM}, 1')
        p(f's_add_u32 s{sT0}, s{sT0}, s{sA}')
        p(f's_cmp_ge_u32 s{sT0}, 14')
        p(f's_cbranch_scc1 {l}')
        p(f's_cmp_lg_u32 s{sW}, 0')
        p(f's_cbranch_scc1 {l}')
        p.mark('maybe_begin')
        p(f's_lshl_b32 s{sT1}, s{sT0}, 11')
        p(f'v_add_u32 v{R+24}, s{sT1}, v{vL16}')
        for tau in range(2):
            for kp in range(2):
                p(f'ds_read_b128 {vr(R+(tau*2+kp)*4)}, v{R+24} offset:{tau*28672+kp*1024}')
        p(f's_mul_i32 s{sT2}, s{sJ}, 86016')
        p(f's_add_u32 s{sT1}, s{sT1}, s{sT2}')
        for tau in range(2):
            p(f's_add_u32 s{sT2}, s{sT1}, {WQT + tau*28672}')
            for kp in range(2):
                p(f'buffer_store_dwordx4 {vr(R+(tau*2+kp)*4)}, v{vL16}, {srd(S_WS)}, s{sT2} offen offset:{kp*1024} sc1')
        p(f's_lshl_b32 s{sJFL}, s{sJ}, 4')
        p(f's_add_u32 s{sJFL}, s{sJFL}, s{sT0}')
        p(f's_lshl_b32 s{sJFL}, s{sJFL}, 3')
        p(f's_add_u32 s{sJFL}, s{sJFL}, {F_WQ}')
        p.mark('maybe_end')
        p.label(l)

    def p1(self):
        p, L0 = self.p, self.L == 0
        X, ACC, RING, CS = 32, 144, 192, 224
        accK, accV, accQ = ACC, ACC + 16, ACC + 32
        PK, PV = vT, vT + 8
        sXO, sST, sFX, sKV, sKF = sO, sO + 7, sO + 8, sO + 9, sO + 10
        p.ext(self.xoff(sXO, sTP, 28672, O_XA))
        for g in range(1, 7):
            p(f's_add_u32 s{sXO+g}, s{sXO}, {4096*g}')
        p.ext(self.off(sST, sTP, 3584, O_STA))
        p.ext(self.off(sFX, sTP, 128, O_FXA))
        p(f's_lshl_b32 s{sT0}, s{sJ}, 3')
        p(f's_add_u32 s{sT0}, s{sT0}, s{sTP}')
        p.ext(self.off(sKV, sT0, 4096, O_KV))
        p.ext(self.off(sKF, sT0, 128, O_FKV))
        p(f'v_lshrrev_b32 v{vCSA}, 5, v{vL}')
        p(f'v_lshlrev_b32 v{vCSA}, 4, v{vCSA}')
        p(f'v_add_u32 v{vCSA}, {L_CSQ}, v{vCSA}')
        sW2E, sW2F = sO + 11, sO + 12
        vQ = 238
        if L0:
            self.vDQ, self.vTQ, self.vWQ = vQ, 225, 226
            p.ext([f'v_lshrrev_b32 v{vQ}, 2, v{vL}', f'v_mul_u32_u24 v{vQ}, 2688, v{vQ}', f'v_and_b32 v{vQ+1}, 3, v{vL}',
                   f'v_lshl_add_u32 v{vQ}, v{vQ+1}, 4, v{vQ}', f'v_lshlrev_b32 v{vQ+1}, 7, v{vL}'])

        def frag(f):
            if f < 56:
                base, off = vL16, (f % 2) * 28672 + (f // 2) * 1024
            else:
                base, off = vA1, (f - 56) * 1024
            return f'ds_read_b128 {vr(RING + 4*(f % 8))}, v{base} offset:{off}'

        def mf(f):
            acc, s = ((accK, accV)[f % 2], f // 2) if f < 56 else (accQ, f - 56)
            return f'{MF32} {vr(acc,16)}, {vr(RING+4*(f%8))}, {vr(X+4*s)}, {vr(acc,16) if s else 0}'

        def xl(s):
            return f'buffer_load_dwordx4 {vr(X+4*s)}, v{vL16}, {srd(S_WS)}, s{sXO + s//4} offen offset:{(s%4)*1024} sc1'
        PD = 6
        for f in range(PD):
            p(frag(f))
        self.stamp('p5')
        self.pad()
        self.vpoll(vL8, f's{sFX}', 14, acquire=not L0)
        self.stamp('E')
        XP = 8
        for s in range(XP):
            p(xl(s))
        mem, pre = {}, {}
        for f in range(84):
            mem[f] = []
            if f + PD < 84 and not (f < 56 <= f + PD):
                mem[f].append(frag(f + PD))
            if f < 56 and f % 2 == 0 and f // 2 + XP < 28:
                mem[f].append(xl(f // 2 + XP))
            if 27 <= f < 41 and f % 2 == 1:
                mem[f].append(self.stats_loads(sST, CS)[(f - 27) // 2])
            if f % 2 == 0:
                pre[f] = [Touch(vr(RING + 4 * (f % 8)) + ' ' + vr(RING + 4 * ((f + 1) % 8)) + (' ' + vr(X + 4 * (f // 2)) if f < 56 else ''))]
        if L0:
            for i in range(7):
                mem[40 + 2 * i].append(self.rawq(2, i))
        else:
            p(f's_mul_i32 s{sT0}, s{sW}, 7168')
            p(f'v_add_u32 v{vQ}, s{sT0}, v{vA1}')
            for i in range(7):
                mem[3 + 4 * i].append(Ins(f'ds_write_b128 v{vQ}, {ar(224 + 4*i)} offset:{1024*i}', 'wq'))
        for f in (0, 16, 38):
            mem[f] += self.stamp_items(f'k{f}')

        def cs_reads(tau, dst):
            return [f'ds_read_b128 {vr(dst+4*q)}, v{vCSA} offset:{tau*128 + 32*q}' for q in range(4)]
        p.ext(sched([mf(f) for f in range(56)], pre, mem, cs_reads(1, accQ) + cs_reads(0, PK) + self.stats_reduce(CS), 6, start=43))
        self.stamp('kv')

        def epi(acc, cs, P):
            L = []
            for r in range(0, 16, 2):
                L.append(f'v_pk_fma_f32 {vr(acc+r,2)}, {vr(cs+r,2)}, {vr(vMEAN,2)}, {vr(acc+r,2)} op_sel:[0,0,0] op_sel_hi:[1,0,1]')
            for r in range(0, 16, 2):
                L.append(f'v_pk_mul_f32 {vr(acc+r,2)}, {vr(acc+r,2)}, {vr(vMEAN,2)} op_sel:[0,1] op_sel_hi:[1,1]')
                L.append(f'v_cvt_pk_bf16_f32 v{P+r//2}, v{acc+r}, v{acc+r+1}')
            return L

        def pad(P, c6, c7):
            return ['s_mov_b32 exec_lo, 0', f'v_mov_b32 v{P+6}, {c6:#x}', f'v_mov_b32 v{P+7}, {c7:#x}', 's_mov_b64 exec, -1']

        def st(P, o):
            return [Ins(f'buffer_store_dwordx4 {vr(P+4*k)}, v{vL16}, {srd(S_WS)}, s{sKV} offen offset:{o+1024*k} sc1', 'kvst') for k in range(2)]
        t0, t1 = CS, CS + 1
        p.ext(epi(accK, PK, PK) + pad(PK, 0x3f803f80, 0x3f80) + st(PK, 0))
        p.ext(epi(accV, accQ, PV) + pad(PV, 0x3f80, 0) + st(PV, 2048))
        self.stamp('kvs')
        if L0:
            R = ACC
            vcs, vones, t2, t3 = R + 28, R + 29, R + 30, R + 31
            p.ext([f'v_and_b32 v225, 3, v{vL}', 'v_lshlrev_b32 v225, 3, v225', f'v_bfe_u32 v226, v{vL}, 4, 1',
                   'v_lshl_add_u32 v225, v226, 5, v225', f'v_bfe_u32 v226, v{vL}, 2, 2', 'v_lshl_add_u32 v225, v226, 6, v225',
                   f'v_lshrrev_b32 v226, 5, v{vL}', 'v_lshl_add_u32 v225, v226, 8, v225', f'v_add_u32 v225, s{sLQ}, v225',
                   f'v_add_u32 v226, s{sLQ}, v{vL16}', f'v_mov_b32 v{vones}, s{sONES}'])
            self.xform(2, R, vcs, vones)
            p.wait('kvst')
            p.ext(self.flag_sc1(sKF))
            for i in range(28):
                p(f'v_accvgpr_write_b32 a{224+i}, v{R+i}')
            self.cs_partial((2,), vcs, t2, t3)
            p('s_waitcnt lgkmcnt(0)')
            p('s_barrier')
            self.cs_sum((2,), R, t2, t3)
        else:
            p.wait('wq')
            p('s_barrier')
        for f in range(56, 56 + PD):
            p(frag(f))
        side = [f's_lshl_b32 s{sT0}, s{sW}, 12', f's_add_u32 s{sT0}, s{sT0}, {LKV + 8*4096}',
                f'v_add_u32 v{t0}, s{sT0}, v{vL16}',
                f'ds_write_b128 v{t0}, {vr(PK)}', f'ds_write_b128 v{t0}, {vr(PK+4)} offset:1024',
                f'v_and_b32 v{t1}, 31, v{vL}', f'v_lshlrev_b32 v{t1}, 6, v{t1}', f'v_lshrrev_b32 v{t0}, 5, v{vL}',
                f'v_lshl_add_u32 v{t1}, v{t0}, 4, v{t1}', f'v_add_u32 v{t0}, s{sT0}, v{t1}',
                f'ds_write_b128 v{t0}, {vr(PV)} offset:2048', f'ds_write_b128 v{t0}, {vr(PV+4)} offset:{2048+32}',
                f'v_mul_f32 v{vRSTD}, {f32bits(28 ** -0.5 * math.log2(math.e)):#x}, v{vRSTD}'] + cs_reads(2, CS) + self.kv_addr()
        pre2 = {f - 56: v for f, v in pre.items() if f >= 56}
        mem2 = {f - 56: v for f, v in mem.items() if f >= 56}
        if not L0:
            mem2[22].append([Wait(['kvst'])] + self.flag_sc1(sKF))
        qs = sched([mf(f) for f in range(56, 84)], pre2, mem2, side, 6, start=0)
        cut = qs.index(mf(56 + 16)) if L0 else len(qs)
        while not isinstance(qs[cut - 1], (str, Ins, list)):
            cut -= 1
        p.ext(qs[:cut])
        self.stamp('q')
        self.kv_fetch()
        p.ext(qs[cut:])
        QF = 200
        p.ext(epi(accQ, CS, QF))
        p.ext(pad(QF, 0, 0x3f800000))
        if L0:
            p(f's_mov_b32 s{sJFL}, -1')
            self.wqt_publish(32)
        self.pad()
        p('s_barrier')
        self.stamp('p1')

    sKD, sKL, sKFl, sNULL = sO + 11, sO + 13, (sO + 15, 78), 79

    def kv_addr(self):
        sKD, sKL, sKFl, sNULL = self.sKD, self.sKL, self.sKFl, self.sNULL
        L = [f's_mov_b32 s{sNULL}, 0']
        for k in range(2):
            L += [f's_lshl_b32 s{sT0}, s{sW}, 1', f's_add_u32 s{sT0}, s{sT0}, {k}',
                  f's_lshl_b32 s{sKL+k}, s{sT0}, 12', f's_add_u32 s{sKL+k}, s{sKL+k}, {LKV}',
                  f's_lshl_b32 s{sT1}, s{sA}, 2', f's_add_u32 s{sT0}, s{sT0}, s{sT1}',
                  [f's_cmp_lt_u32 s{sT0}, 8', f's_cselect_b32 s{sT1}, {STRIDE}, 0'],
                  f's_sub_u32 s{sT1}, s{sLB}, s{sT1}', f's_and_b32 s{sT0}, s{sT0}, 7',
                  [f's_cmp_lt_i32 s{sT1}, {TEAM0}', f's_cselect_b32 s{sT2}, {1 << k}, 0',
                   f's_cselect_b32 s{sT1}, s{sLB}, s{sT1}', f's_cselect_b32 s{sT0}, s{sTP}, s{sT0}'],
                  f's_or_b32 s{sNULL}, s{sNULL}, s{sT2}', f's_lshl_b32 s{sT2}, s{sJ}, 3', f's_add_u32 s{sT0}, s{sT0}, s{sT2}',
                  f's_lshl_b32 s{sKD+k}, s{sT0}, 12', f's_add_u32 s{sKD+k}, s{sKD+k}, s{sT1}',
                  f's_lshl_b32 s{sT0}, s{sT0}, 7', f's_add_u32 s{sT0}, s{sT0}, s{sT1}', f's_add_u32 s{sKFl[k]}, s{sT0}, {O_FKV}']
        return L

    def kv_fetch(self):
        p = self.p
        t0, t1, Z, NK = 144, 145, 148, 2
        sKD, sKL, sKFl, sNULL = self.sKD, self.sKL, self.sKFl, self.sNULL
        p(f'v_bfe_u32 v{t0}, v{vL}, 1, 1')
        p(f'v_lshlrev_b32 v{t0}, 10, v{t0}')
        p(f'v_and_b32 v{t1}, 1, v{vL}')
        p(f'v_lshl_add_u32 v{t0}, v{t1}, 9, v{t0}')
        p(f'v_lshrrev_b32 v{t1}, 2, v{vL}')
        p(f'v_lshl_add_u32 v{t0}, v{t1}, 4, v{t0}')
        lp, lo = p.newlabel('kvpoll'), p.newlabel('kvpollout')
        self.stamp('w1')
        p('s_waitcnt lgkmcnt(0)')
        p(f's_mov_b32 s{sCNT}, 0')
        p.label(lp)
        for k in range(NK):
            p(f's_load_dwordx2 s[{sPOLL+2*k}:{sPOLL+2*k+1}], s[{S_WSP}:{S_WSP+1}], s{sKFl[k]} glc')
        p(f's_add_u32 s{sCNT}, s{sCNT}, 1')
        p(f's_cmp_gt_u32 s{sCNT}, {POLL_MAX}')
        p(f's_cbranch_scc1 {lo}')
        p('s_waitcnt lgkmcnt(0)')
        for k in range(NK):
            p(f's_cmp_eq_u64 s[{sPOLL+2*k}:{sPOLL+2*k+1}], s[{sF}:{sF+1}]')
            p(f's_cbranch_scc0 {lp}')
        p.label(lo)
        self.stamp('kvf')
        for k in range(NK):
            lnull, lb = p.newlabel('null'), p.newlabel('nullback')
            p(f's_bitcmp1_b32 s{sNULL}, {k}')
            p(f's_cbranch_scc1 {lnull}')
            p(f's_mov_b32 m0, s{sKL+k}')
            p(f's_sub_u32 s{sT5}, s{sKD+k}, 768')
            p(f'buffer_load_dwordx4 v{vL16}, {srd(S_WS)}, s{sKD+k} offen sc1 lds')
            p(f'buffer_load_dwordx4 v{vL16}, {srd(S_WS)}, s{sKD+k} offen offset:1024 sc1 lds')
            p(f'buffer_load_dwordx4 v{t0}, {srd(S_WS)}, s{sKD+k} offen offset:2048 sc1 lds')
            p(f'buffer_load_dwordx4 v{t0}, {srd(S_WS)}, s{sT5} offen offset:3072 sc1 lds')
            p.label(lb)
            self.tail.append((lnull, [
                f'v_add_u32 v{t1}, s{sKL+k}, v{vL16}',
                f'v_mov_b32 v{Z}, 0', f'v_mov_b32 v{Z+1}, 0', f'v_mov_b32 v{Z+2}, 0', f'v_mov_b32 v{Z+3}, 0'] +
                [f'ds_write_b128 v{t1}, {vr(Z)} offset:{o}' for o in (0, 2048, 3072)] +
                ['s_mov_b32 exec_lo, 0', f'v_mov_b32 v{Z+3}, 0xf1490000', 's_mov_b64 exec, -1',
                 f'ds_write_b128 v{t1}, {vr(Z)} offset:1024', f's_branch {lb}']))

    def attn(self):
        p, L0 = self.p, self.L == 0
        KF, ST, MW, MD, OA, QF, PB, VF = 32, 104, 152, 168, 184, 200, 208, 224
        t0, t1 = 104, 105
        t2, t3 = 106, 107
        p(f'v_and_b32 v{t2}, 31, v{vL}')
        p(f'v_lshrrev_b32 v{t3}, 5, v{vL}')
        p(f'v_lshlrev_b32 v{t3}, 2, v{t3}')
        p(f'v_sub_u32 v{t2}, v{t2}, v{t3}')
        p(f'v_mov_b32 v{t3}, {f32bits(-1e30):#x}')
        for r in range(0, 16, 2):
            k0, k1 = 8 * (r // 4) + r % 4, 8 * (r // 4) + r % 4 + 1
            p(f'v_cmp_le_i32 vcc, {k0}, v{t2}')
            p(f'v_cmp_le_i32 s[{sPOLL}:{sPOLL+1}], {k1}, v{t2}')
            p('s_nop 0')
            p(f'v_cndmask_b32_e64 v{MD+r}, v{t3}, 0, vcc')
            p(f'v_cndmask_b32_e64 v{MD+r+1}, v{t3}, 0, s[{sPOLL}:{sPOLL+1}]')
            p(f'v_cndmask_b32_e64 v{MW+r}, 0, v{t3}, vcc')
            p(f'v_cndmask_b32_e64 v{MW+r+1}, 0, v{t3}, s[{sPOLL}:{sPOLL+1}]')
        vKA, vVA = vT, vT + 1
        p(f's_lshl_b32 s{sT0}, s{sW}, 12')
        p(f's_add_u32 s{sT0}, s{sT0}, {LKV}')
        p(f'v_add_u32 v{vKA}, s{sT0}, v{vL16}')
        p(f'v_lshrrev_b32 v{t2}, 5, v{vL}')
        p(f'v_bfe_u32 v{t3}, v{vL}, 2, 2')
        p(f'v_lshl_add_u32 v{t2}, v{t2}, 2, v{t3}')
        p(f'v_lshlrev_b32 v{vVA}, 6, v{t2}')
        p(f'v_bfe_u32 v{t2}, v{vL}, 4, 1')
        p(f'v_lshl_add_u32 v{vVA}, v{t2}, 5, v{vVA}')
        p(f'v_and_b32 v{t2}, 1, v{vL}')
        p(f'v_lshl_add_u32 v{vVA}, v{t2}, 4, v{vVA}')
        p(f'v_bfe_u32 v{t2}, v{vL}, 1, 1')
        p(f'v_lshl_add_u32 v{vVA}, v{t2}, 3, v{vVA}')
        p(f'v_add_u32 v{vVA}, s{sT0}, v{vVA}')
        sOD, sOF, sWO = sO, sO + 1, sO + 2
        p(f's_lshl_b32 s{sT0}, s{sTP}, 4')
        p(f's_add_u32 s{sT0}, s{sT0}, s{sJ}')
        p.ext(self.roff(sOD, sT0, 2048, O_O))
        p.ext(self.off(sOF, sT0, 8, O_FO))
        p(f's_lshl_b32 s{sWO}, s{sCB}, 2')
        p(f's_add_u32 s{sWO}, s{sWO}, s{sW}')
        p(f's_lshl_b32 s{sWO}, s{sWO}, 14')
        p(f's_add_u32 s{sWO}, s{sWO}, {WOT}')
        for g in range(1, 4):
            p(f's_add_u32 s{sWO+g}, s{sWO}, {4096*g}')
        vPT = vT + 12
        p(f'v_lshlrev_b32 v{vPT}, 7, v{vL}')
        p(f'v_add_u32 v{vPT}, s{sOD}, v{vPT}')
        p(f's_lshl_b32 s{sT0}, s{sTP}, 7')
        p(f's_lshl_b32 s{sT1}, s{sRB}, 8')
        p(f's_lshl_b32 s{sT2}, s{sRHO}, 7')
        p(f's_add_u32 s{sT2}, s{sT2}, s{sT1}')
        p(f's_mul_i32 s{sT3}, s{sT2}, 28')
        p(f's_lshl_b32 s{sT4}, s{sCB}, 9')
        p(f's_add_u32 s{sT3}, s{sT3}, s{sT4}')
        p(f's_lshl_b32 s{sT4}, s{sNU}, 8')
        p(f's_add_u32 s{sT3}, s{sT3}, s{sT4}')
        for lane, (r, c) in enumerate([(sT0, O_FO), (sT1, O_FO), (sT1, O_FO + 128), (sT0, O_FX1), (sT2, O_FX1),
                                       (sT3, O_ST1), (sT3, O_ST1 + 128), (sT0, O_FH), (sT1, O_FH), (sT1, O_FH + 128),
                                       (sT0, O_FH + 1024), (sT1, O_FH + 1024), (sT1, O_FH + 1024 + 128)]):
            p(f's_add_u32 s{sT4}, s{r}, {c}')
            p(f's_add_u32 s{sT4}, s{sT4}, s{sLB}')
            p(f'v_writelane_b32 v{vPT}, s{sT4}, {16 + lane}')
        vZ = vT + 8
        p(f's_lshl_b32 s{sT0}, s{sNU}, 10')
        p(f'v_xor_b32 v{vZ}, s{sT0}, v{vL16}')
        p(f'v_xor_b32 v{vZ+1}, 1024, v{vZ}')

        def first():
            l0 = p.newlabel('first')
            p(f's_cmp_lg_u32 s{sW}, 0')
            p(f's_cbranch_scc1 {l0}')
            p.mark('maybe_begin')
            p(f's_lshl_b32 s{sT0}, s{sJ}, 7')
            p(f's_add_u32 s{sT0}, s{sT0}, {F_W1}')
            p(f's_lshl_b32 s{sT2}, s{sCB}, 6')
            p(f's_add_u32 s{sT2}, s{sT2}, {F_WO - 14*8}')
            p(f's_lshl_b32 s{sT3}, s{sTEAM}, 8')
            p(f's_add_u32 s{sT3}, s{sT3}, {WS_PUR - 32*8}')
            p(f'v_add_u32 v{t2}, s{sT0}, v{vL8}')
            p(f'v_min_u32 v{t3}, {21*8}, v{vL8}')
            p(f'v_add_u32 v{t3}, s{sT2}, v{t3}')
            p(f'v_cmp_le_u32 vcc, 14, v{vL}')
            p(f'v_cndmask_b32 v{t2}, v{t2}, v{t3}, vcc')
            p(f'v_add_u32 v{t3}, s{sT3}, v{vL8}')
            p(f'v_cmp_le_u32 vcc, 32, v{vL}')
            p(f'v_cndmask_b32 v{t2}, v{t2}, v{t3}, vcc')
            lp, lo, ls = p.newlabel('pur'), p.newlabel('purout'), p.newlabel('pursleep')
            p(f's_lshl_b32 s{sT0}, s{sCB}, 9')
            p(f's_add_u32 s{sT0}, s{sT0}, {F_W2}')
            p(f's_mov_b32 s{sCNT}, 0')
            p.label(lp)
            p(f'buffer_load_dwordx2 {vr(108,2)}, v{t2}, {srd(S_WS)}, 0 offen sc1')
            p(f'buffer_load_dwordx2 {vr(112,2)}, v{vL8}, {srd(S_WS)}, s{sT0} offen sc1')
            p(f's_add_u32 s{sCNT}, s{sCNT}, 1')
            p(f's_cmp_gt_u32 s{sCNT}, {POLL_MAX}')
            p(f's_cbranch_scc1 {lo}')
            p('s_waitcnt vmcnt(0)')
            p(f'v_xor_b32 v109, s{sF+1}, v109')
            p(f'v_xor_b32 v108, s{sF}, v108')
            p(f'v_and_b32 v110, 0x0fffffff, v109')
            p(f'v_or_b32 v108, v108, v110')
            p(f'v_cmp_ne_u32 vcc, 0, v108')
            p(f's_cbranch_vccnz {ls}')
            p(f'v_cmp_ne_u64 vcc, s[{sF}:{sF+1}], {vr(112,2)}')
            p(f's_cbranch_vccnz {ls}')
            p(f'v_readlane_b32 s{sT1}, v109, 32')
            p(f'v_cmp_ne_u32 vcc, s{sT1}, v109')
            p(f's_cmp_eq_u32 vcc_hi, 0')
            p(f's_cselect_b32 s{sT1}, {0 if os.environ.get("FORCE_IMPURE") else 1}, 0')
            p(f'v_mov_b32 v108, s{sT1}')
            p(f'v_mov_b32 v109, {L_PUR}')
            p('ds_write_b32 v109, v108')
            p.label(lo)
            p.mark('maybe_end')
            p.label(l0)
            self.tail.append((ls, ['s_sleep 8', f's_branch {lp}']))
        if L0:
            first()
        self.pad()
        p('s_waitcnt vmcnt(0) lgkmcnt(0)')
        if L0:
            self.flag_opt(sJFL)
        self.stamp('kvd')
        p('s_barrier')
        self.stamp('A')
        if L0:
            p(f'v_mov_b32 v{t0}, {L_PUR}')
            p(f'ds_read_b32 v{t0}, v{t0}')
            p(f'v_readfirstlane_b32 s{sPURE}, v{t0}')
            p(f's_cmp_eq_u32 s{sPURE}, 0')
            p(f's_cselect_b64 s[{sIMP}:{sIMP+1}], -1, 0')
        p(f'v_lshlrev_b32 v{t0}, 7, v{vL}')
        p(f's_lshl_b32 s{sT0}, s{sCB}, 2')
        p(f's_add_u32 s{sT0}, s{sT0}, s{sRB}')
        p(f's_lshl_b32 s{sT1}, s{sT0}, 14')
        p(f's_lshl_b32 s{sT2}, s{sW}, 12')
        p(f's_add_u32 s{sT1}, s{sT1}, s{sT2}')
        p(f's_add_u32 s{sT1}, s{sT1}, {WOT}')
        p('s_mov_b32 exec_hi, 0')
        p(f'buffer_load_dword a255, v{t0}, {srd(S_WS)}, s{sT1} offen sc1')
        p('s_mov_b64 exec, -1')
        p.ext(self.pub_offsets(O_X1, O_ST1, O_FX1))
        p(f's_sub_u32 s{sT0}, s{sXD}, {29*128}')
        p(f'v_add_u32 v{t1}, s{sT0}, v{t0}')
        p(f'v_cmp_lt_u32 vcc, 28, v{vL}')
        p(f'v_cndmask_b32 v{vPT}, v{vPT}, v{t1}, vcc')
        p.ext(self.setexec(45))
        p(f'buffer_load_dword a255, v{vPT}, {srd(S_WS)}, 0 offen sc1')
        p('s_mov_b64 exec, -1')
        bg = self.w1_dma(0)
        bw = []
        if L0 and HATT:
            p(f's_lshl_b32 s{sT0}, s{sTP}, 4')
            p(f's_add_u32 s{sT0}, s{sT0}, s{sJ}')
            p.ext(self.off(sT1, sT0, 7168, O_H))
            p(f's_add_u32 s{sT2}, s{sT1}, 4096')
            for sr, n in ((sT1, 4), (sT2, 3)):
                for k in range(n):
                    p(f'buffer_store_dwordx4 {vr(MW)}, v{vL16}, {srd(S_WS)}, s{sr} offen offset:{1024*k} sc1')
        if L0:
            p.ext(self.w2_setup(sO + 7, (vT + 10, vT + 11)))
            bw = self.w2_loads(sO + 7, (vT + 10, vT + 11))

        def kread(t):
            return [f'ds_read_b128 {vr(KF+8*t+4*k)}, v{vKA} offset:{t*4096+k*1024}' for k in range(2)]

        def qk(t):
            s = ST + 16 * (t % 3)
            c = vr(MW, 16) if t == 0 else vr(MD, 16) if t == 8 else '0'
            return [f'{MF32} {vr(s,16)}, {vr(KF+8*t)}, {vr(QF)}, {c}',
                    f'{MF32} {vr(s,16)}, {vr(KF+8*t+4)}, {vr(QF+4)}, {vr(s,16)}']
        vM, vM2 = vT + 2, vT + 3

        def mx(t):
            s = ST + 16 * (t % 3)
            L = []
            for i in range(8):
                d = vM if i % 2 == 0 else vM2
                if t == 0 and i < 2:
                    L.append(f'v_max_f32 v{d}, v{s+2*i}, v{s+2*i+1}')
                else:
                    L.append(f'v_max3_f32 v{d}, v{s+2*i}, v{s+2*i+1}, v{d}')
            return L

        def vread(t):
            d = VF + 8 * (t % 2)
            return [f'ds_read_b64_tr_b16 {vr(d+4*kv+2*jj,2)}, v{vVA} offset:{t*4096+2048+(16*kv+8*jj)*64}'
                    for kv in range(2) for jj in range(2)]
        def popbg(bg=bg):
            L = []
            while bg:
                x = bg.pop(0)
                L.append(x)
                if is_mem(x):
                    break
            return L
        for t in range(4):
            p.ext(kread(t))
        q = qk(0)
        p.ext([q[0]] + kread(4) + [q[1]] + kread(5))
        q = qk(1)
        p.ext([q[0]] + kread(6) + popbg(bw) + [q[1]] + kread(7) + popbg(bw))
        for t in range(9):
            m = mx(t)
            if t + 2 < 9:
                q = qk(t + 2)
                extra = kread(8) if t == 0 else vread(0)[:2] if t == 5 else vread(0)[2:] if t == 6 else []
                if t % 2 == 1:
                    extra = extra + popbg()
                p.ext([q[0]] + extra + popbg(bw) + m[:4] + [q[1]] + popbg(bw) + m[4:])
            else:
                p.ext(m)
        self.stamp('a1')
        a, b2, r1 = vT + 4, vT + 5, vT + 6
        p(f'v_max_f32 v{vM}, v{vM}, v{vM2}')
        p(f'v_mov_b32 v{a}, v{vM}')
        p(f'v_permlane32_swap_b32 v{vM}, v{a}')
        p(f'v_max_f32 v{vM}, v{vM}, v{a}')
        p(f'v_xor_b32 v{vM}, 0x80000000, v{vM}')
        p(f'v_and_b32 v{a}, 0xffff0000, v{vM}')
        p(f'v_sub_f32 v{r1}, v{vM}, v{a}')
        p(f'v_and_b32 v{a}, 0xffff0000, v{r1}')
        p(f'v_sub_f32 v{b2}, v{r1}, v{a}')
        p('s_mov_b32 exec_lo, 0')
        p(f'v_perm_b32 v{QF+6}, v{r1}, v{vM}, s{sPERM}')
        p(f'v_perm_b32 v{QF+7}, 1.0, v{b2}, s{sPERM}')
        p('s_mov_b64 exec, -1')

        def ex(t):
            s = ST + 16 * (t % 3)
            pb = PB + 8 * (t % 2)
            L = []
            for i in range(8):
                L.append(f'v_exp_f32 v{s+2*i}, v{s+2*i}')
                L.append(f'v_exp_f32 v{s+2*i+1}, v{s+2*i+1}')
                if i:
                    L.append(f'v_cvt_pk_bf16_f32 v{pb+i-1}, v{s+2*i-2}, v{s+2*i-1}')
            L.append(f'v_cvt_pk_bf16_f32 v{pb+7}, v{s+14}, v{s+15}')
            return L

        def pv(t):
            d = VF + 8 * (t % 2)
            pb = PB + 8 * (t % 2)
            return [f'{MF32} {vr(OA,16)}, {vr(d)}, {vr(pb)}, {vr(OA,16) if t else 0}',
                    f'{MF32} {vr(OA,16)}, {vr(d+4)}, {vr(pb+4)}, {vr(OA,16)}']

        self.pad()

        def wol(i):
            ks, z = i // 2, i % 2
            return f'buffer_load_dwordx4 {vr(32+4*i)}, v{vZ+z}, {srd(S_WS)}, s{sWO + ks//2} offen offset:{(ks%2)*2048} sc1'
        p.ext(qk(0))
        p.ext(qk(1))
        for t in range(9):
            e = ex(t)
            mf = (pv(t - 1) if t else []) + (qk(t + 2) if t + 2 < 9 else [])
            out = []
            pos = [2, 7, 12, 17]
            for i, x in enumerate(e):
                out.append(x)
                if i in pos and pos.index(i) < len(mf):
                    k = pos.index(i)
                    out.append(mf[k])
                    if t + 1 < 9:
                        if t == 0:
                            out += vread(1)[2 * k:2 * k + 2]
                        elif k in (1, 2):
                            out += vread(t + 1)[2 * (k - 1):2 * (k - 1) + 2]
                        elif t == 7 and k == 1:
                            pass
                    if t < 6 and k in (0, 3) or t == 0:
                        out += popbg()
                    if t < 7:
                        out += popbg(bw) + (popbg(bw) if k % 2 or t == 0 else [])
                    if t >= 7:
                        out += [wol(8 * (t - 7) + 4 * k + q) for q in range(4)]
            if t == 7:
                out = out[:-3] + vread(8)[2:] + out[-3:]
            p.ext(out)
        assert not bg and not bw, (len(bg), len(bw))
        p.ext(pv(8))
        self.stamp('a2')
        p(f'v_mov_b32 v{a}, v{OA+12}')
        p(f'v_mov_b32 v{b2}, v{OA+12}')
        p(f'v_permlane32_swap_b32 v{a}, v{b2}')
        p(f'v_rcp_f32 v{b2}, v{b2}')
        for i in range(8):
            p(f'v_pk_mul_f32 {vr(OA+2*i,2)}, {vr(OA+2*i,2)}, {vr(a,2)} op_sel:[0,1] op_sel_hi:[1,1]')
            p(f'v_cvt_pk_bf16_f32 v{PB+i}, v{OA+2*i}, v{OA+2*i+1}')
            if i % 4 == 3:
                p(f'buffer_store_dwordx4 {vr(PB+i-3)}, v{vL16}, {srd(S_WS)}, s{sOD} offen offset:{(i//4)*1024}', tok='ost')
        self.publish(['ost'], sOF)
        self.stamp('att')

    def reduce_writes(self, ACC):
        return [Ins(f'ds_write_b128 v{vRW+x-1}, {vr(ACC+16*x+4*c)} offset:{c*1024}', 'rw') for x in range(1, 4) for c in range(4)]

    def reduce_finish(self, ACC, TMP):
        p = self.p
        p.wait('rw')
        self.pad()
        p('s_barrier')
        for c in range(4):
            for x in range(3):
                p(f'ds_read_b128 {vr(TMP+16*x+4*c)}, v{vRW+3} offset:{x*4096+c*1024}')
        for c in range(8):
            p(f'v_pk_add_f32 {vr(TMP+2*c,2)}, {vr(TMP+2*c,2)}, {vr(TMP+16+2*c,2)}')
            p(f'v_pk_add_f32 {vr(ACC+2*c,2)}, {vr(ACC+2*c,2)}, {vr(TMP+32+2*c,2)}')
            p(f'v_pk_add_f32 {vr(ACC+2*c,2)}, {vr(ACC+2*c,2)}, {vr(TMP+2*c,2)}')

    def yoffs(self, dst, mul, add):
        L = []
        for y in range(2):
            L += [f's_xor_b32 s{sT0}, s{sRHO}, {y}', f's_lshl_b32 s{sT1}, s{sRB}, 1', f's_add_u32 s{sT0}, s{sT0}, s{sT1}',
                  f's_lshl_b32 s{sT0}, s{sT0}, 2', f's_add_u32 s{sT0}, s{sT0}, s{sW}'] + self.roff(dst + y, sT0, mul, add)
        return L

    def p3(self):
        p, L0 = self.p, self.L == 0
        WO, OF, ACC, RING = 32, 96, 160, 200

        def colsum(part, AC=ACC, RG=RING, T=vT):
            for i in range(4):
                p(f'v_mov_b32 v{T+4+i}, s{sONES}')
            p(f's_lshl_b32 s{sT0}, s{sW}, 10')
            if part == 0:
                p(f'v_add_u32 v{T}, s{sT0}, v{vL16}')
            else:
                p(f's_min_u32 s{sT0}, s{sT0}, 2048')
                p(f'v_add_u32 v{T}, s{sT0}, v{vA1}')
            NRG = 6 if part == 0 else 4
            rd = lambda f: f'ds_read_b128 {vr(RG+4*(f%NRG))}, v{T} offset:{f*(4096, 3072)[part]}'
            for f in range(NRG - 1):
                p(rd(f))
            for f in range(14):
                p(f'{MF16} {vr(AC)}, {vr(T+4)}, {vr(RG+4*(f%NRG))}, {vr(AC) if f else 0}')
                if f + NRG - 1 < 14:
                    p(rd(f + NRG - 1))
            p(f's_lshl_b32 s{sT0}, s{sW}, 6')
            p(f's_add_u32 s{sT0}, s{sT0}, {L_CS1 + 256*part}')
            p(f'v_and_b32 v{T}, 15, v{vL}')
            p(f'v_lshlrev_b32 v{T}, 2, v{T}')
            p(f'v_add_u32 v{T}, s{sT0}, v{T}')
            p(f'ds_write_b32 v{T}, v{AC}')
            p('s_waitcnt lgkmcnt(0)')
        w1d = []
        self.pad()
        p('s_barrier')
        if L0:
            colsum(0)
        ljoin, lidle = p.newlabel('p3join'), p.newlabel('p3idle')
        p(f's_cmp_ge_u32 s{sM}, 28')
        p(f's_cbranch_scc1 {lidle}')
        p.mark('maybe_begin')
        sFO, sY = sO, sO + 2
        p(f's_lshl_b32 s{sT0}, s{sRB}, 3')
        p(f's_add_u32 s{sT0}, s{sT0}, s{sW}')
        p.ext(self.off(sFO, sT0, 32, O_FO))
        p.ext(self.yoffs(sY, 8192, O_O))
        p(f's_add_u32 s{sY+2}, s{sY}, 4096')
        p(f's_add_u32 s{sY+3}, s{sY+1}, 4096')
        self.vpoll(vFLG, f's{sFO}', 8)
        self.stamp('B')

        def ld(ks, y):
            return f'buffer_load_dwordx4 {vr(OF+(ks*2+y)*4)}, v{vL16}, {srd(S_WS)}, s{sY + 2*(ks//4) + y} offen offset:{(ks%4)*1024} sc1'

        def mf(ks, x):
            y, z = x >> 1, x & 1
            c = vr(ACC + 16 * x, 16) if ks else (vr(vRES, 16) if x == 0 else '0')
            return f'{MF32} {vr(ACC+16*x,16)}, {vr(WO+(ks*2+z)*4)}, {vr(OF+(ks*2+y)*4)}, {c}'
        for ks in range(5):
            for y in range(2):
                p(ld(ks, y))
        rest = list(w1d)
        for ks in range(8):
            for x in (1, 2, 3):
                p(mf(ks, x))
                if ks + 5 < 8 and x < 3:
                    p(ld(ks + 5, x - 1))
                elif ks >= 3 and rest:
                    y = rest.pop(0)
                    p.ext([y])
                    while rest and not is_mem(y):
                        y = rest.pop(0)
                        p.ext([y])
        assert not rest
        self.stamp('p3mm')
        p.ext(sched([mf(ks, 0) for ks in range(8)], {}, {}, self.reduce_writes(ACC), 2, start=2))
        self.stamp('p3rw')
        self.reduce_finish(ACC, 32)
        self.stamp('p3rd')
        P = 96
        for i in range(8):
            p(f'v_cvt_pk_bf16_f32 v{P+i}, v{ACC+2*i}, v{ACC+2*i+1}')
        self.x_store(P, vX1A, (0, 512))
        self.publish(['xst'], sXF)
        self.stamp('p3pub')
        p.ext(self.res_unpack(P))
        p.mark('maybe_end')
        p.label(ljoin)
        idle = [f'v_lshlrev_b32 v{vT}, 7, v{vL}', f's_lshl_b32 s{sT0}, s{sCB}, 2', f's_add_u32 s{sT0}, s{sT0}, s{sW}']
        if L0:
            idle += [f's_lshl_b32 s{sT1}, s{sT0}, 7', f's_add_u32 s{sT1}, s{sT1}, {F_W1}'] + self.poll_loop(vL8, f's{sT1}', 14)
        idle += [f's_mul_i32 s{sT1}, s{sT0}, 100352'] + self.prefetch(vT, sT1, W1T + 57344, 43008)
        self.tail.append((lidle, idle + [f's_branch {ljoin}']))
        self.colsum = colsum
        self.stamp('p3')

    def p45(self):
        p, L0 = self.p, self.L == 0
        X, ACC, RING, CS = 32, 144, 200, 224
        sXO, sST, sFX, sH, sHF = sO, sO + 4, sO + 5, sO + 6, sO + 8
        sFH, sST5, sW2 = sO + 9, sO + 10, sO + 11
        sY = [76, 77, 78, 79, sO + 12, sO + 13, sO + 14, sO + 15]
        vTC, vHA, vHB, vZ, vLb, PO = vT, vT + 1, vT + 2, (vT + 3, vT + 13), vT + 12, vT + 4
        p.ext(self.w1_dma(1))
        p.ext(self.xoff(sXO, sTP, 28672, O_X1))
        for g in range(1, 4):
            p(f's_add_u32 s{sXO+g}, s{sXO}, {8192*g}')
        p.ext(self.off(sST, sTP, 3584, O_ST1))
        p.ext(self.off(sFX, sTP, 128, O_FX1))
        p(f's_lshl_b32 s{sT0}, s{sTP}, 4')
        p(f's_add_u32 s{sT0}, s{sT0}, s{sJ}')
        p.ext(self.roff(sH, sT0, 7168, O_H))
        p(f's_add_u32 s{sH+1}, s{sH}, 4096')
        p.ext(self.off(sHF, sT0, 8, O_FH))
        p.ext([f'v_lshrrev_b32 v{vCSA}, 4, v{vL}', f'v_lshlrev_b32 v{vCSA}, 4, v{vCSA}', f'v_add_u32 v{vCSA}, {L_CS1}, v{vCSA}',
               f'v_lshrrev_b32 v{vHA}, 5, v{vL}', f'v_lshlrev_b32 v{vHA}, 10, v{vHA}',
               f'v_bfe_u32 v{vHB}, v{vL}, 4, 1', f'v_lshl_add_u32 v{vHA}, v{vHB}, 9, v{vHA}',
               f'v_and_b32 v{vTC}, 15, v{vL}', f'v_lshl_add_u32 v{vHA}, v{vTC}, 4, v{vHA}',
               f'v_lshlrev_b32 v{vHB}, 3, v{vHB}', f'v_lshl_add_u32 v{vHB}, v{vTC}, 4, v{vHB}',
               f'v_lshrrev_b32 v{vTC}, 5, v{vL}', f'v_lshl_add_u32 v{vHB}, v{vTC}, 9, v{vHB}',
               f'v_add_u32 v{vLb}, 4096, v{vL16}'])
        sRBc = sPOLL
        p(f's_min_u32 s{sRBc}, s{sRB}, 3')
        p(f's_lshl_b32 s{sT0}, s{sRBc}, 3')
        p(f's_add_u32 s{sT0}, s{sT0}, s{sW}')
        p.ext(self.off(sFH, sT0, 32, O_FH))
        for y in range(2):
            p.ext([f's_xor_b32 s{sT0}, s{sRHO}, {y}', f's_lshl_b32 s{sT1}, s{sRBc}, 1', f's_add_u32 s{sT0}, s{sT0}, s{sT1}',
                   f's_lshl_b32 s{sT0}, s{sT0}, 2', f's_add_u32 s{sT0}, s{sT0}, s{sW}'] + self.roff(sT2, sT0, 28672, O_H))
            for sl in range(4):
                p.ext([f's_add_u32 s{sT0}, {ROT}, {sl}', f's_and_b32 s{sT0}, s{sT0}, 3', f's_mul_i32 s{sT0}, s{sT0}, 7168',
                       f's_add_u32 s{sY[2*sl+y]}, s{sT2}, s{sT0}'])
        p(f's_lshl_b32 s{sT0}, s{sRBc}, 1')
        p(f's_add_u32 s{sT0}, s{sT0}, s{sRHO}')
        p.ext(self.off(sST5, sT0, 3584, O_ST1))
        if L0:
            p.ext(self.pub_offsets(O_XA + LSTRIDE, O_STA + LSTRIDE, O_FXA + LSTRIDE))
            p.ext([f's_lshl_b32 s{sT1}, s{sJ}, 7', f's_add_u32 s{sT1}, s{sT1}, {F_WQ - 14*8}',
                   f'v_mov_b32 v{PO}, s{sFX}', f'v_mov_b32 v{PO+1}, s{sT1}', f'v_cmp_le_u32 vcc, 14, v{vL}',
                   f'v_cndmask_b32 v{PO}, v{PO}, v{PO+1}, vcc', f'v_add_u32 v{PO}, v{PO}, v{vL8}'])
        p(f'v_lshlrev_b32 v{vTC}, 7, v{vL}')
        seq = [(t, s) for s in range(14) for t in range(4)] + [(t, s) for s in range(14) for t in range(4, 7)]

        def frag(f):
            base, off = (vL16, f * 1024) if f < 56 else (vA1, (f - 56) * 1024)
            return f'ds_read_b128 {vr(RING + 4*(f % 6))}, v{base} offset:{off}'

        def mf(f, u):
            t, s = seq[f]
            return f'{MF16} {vr(ACC+8*t+4*u)}, {vr(RING+4*(f%6))}, {vr(X+4*(2*s+u))}, {vr(ACC+8*t+4*u) if s else 0}'

        def xl(i):
            return f'buffer_load_dwordx4 {vr(X+4*i)}, v{(vL16, vLb)[(i//4)%2]}, {srd(S_WS)}, s{sXO + i//8} offen offset:{(i%4)*1024} sc1'

        def cs_reads(tiles):
            return [f'ds_read_b128 {vr(CS+4*(t%4))}, v{vCSA} offset:{t*64}' for t in tiles]
        PD = 4
        for f in range(PD):
            p(frag(f))
        self.pad()
        if L0:
            self.vpoll(PO, '0', 28)
        else:
            self.vpoll(vL8, f's{sFX}', 14)
        self.stamp('C')
        XP = 8
        for i in range(XP):
            p(xl(i))
        mem, pre = {}, {}
        for f in range(98):
            mem[2 * f] = [frag(f + PD)] if f + PD < 98 and not (f < 56 <= f + PD) else []
            mem[2 * f + 1] = []
            if f < 56 and f % 2 == 0 and f // 2 + XP < 28:
                mem[2 * f + 1] = [xl(f // 2 + XP)]
            if 27 <= f < 41 and f % 2 == 1:
                mem[2 * f + 1] = [self.stats_loads(sST, CS)[(f - 27) // 2]]
            if f % 2 == 0:
                tch = vr(RING + 4 * (f % 6)) + ' ' + vr(RING + 4 * ((f + 1) % 6))
                if f < 56 and f % 4 == 0:
                    tch += ' ' + vr(X + 8 * (f // 4), 8)
                pre[2 * f] = [Touch(tch)]
        i = 2 * 41 + 1
        if not L0 and not os.environ.get('H2'):
            mem[i] += self.touch(vTC, sH, 0, 56)
        if L0:
            xa = [f'v_add_u32 v{PO}, s{sXD}, v{vTC}', f's_add_u32 s{sT0}, s{sFX}, {LSTRIDE + O_FXA - O_FX1}', f's_add_u32 s{sT1}, s{sXS}, 128']
            for lane, r in ((16, sXS), (17, sT1), (18, sXF), (19, sT0)):
                xa.append(f'v_writelane_b32 v{PO}, s{r}, {lane}')
            mem[i + 2] += xa
            mem[i + 4].append(self.setexec(20) + [f'buffer_load_dword a255, v{PO}, {srd(S_WS)}, 0 offen sc1', 's_mov_b64 exec, -1'])
        for f in (0, 16, 38):
            mem[2 * f + 1] += self.stamp_items(f'g{f}')
        mfs = [mf(f, u) for f in range(98) for u in range(2)]
        side = self.stats_reduce(CS) + [f'v_mov_b32 v{vRSTD}, v{vMEAN}', 's_nop 0', f'v_permlane16_swap_b32 v{vMEAN}, v{vRSTD}']
        p.ext(sched(mfs[:112], pre, mem, side, 2, start=88))
        self.stamp('p4m1')
        self.pad()
        p('s_barrier')
        p.ext(cs_reads([0, 1, 2, 3]))
        self.stamp('p4g1')

        HSC = 'sc1' if L0 or os.environ.get('H2') else ''

        def epi(tiles, tok):
            L = []
            pairs = [tiles[i:i + 2] for i in range(0, len(tiles), 2)]
            n = 0
            for pr in pairs:
                for u in range(2):
                    po = PO + 4 * (n % 2)
                    n += 1
                    for k, t in enumerate(pr):
                        a = ACC + 8 * t + 4 * u
                        for r in (0, 2):
                            L.append(f'v_pk_fma_f32 {vr(a+r,2)}, {vr(CS+4*(t%4)+r,2)}, {vr(vMEAN,2)}, {vr(a+r,2)} op_sel:[0,{u},0] op_sel_hi:[1,{u},1]')
                    for k, t in enumerate(pr):
                        a = ACC + 8 * t + 4 * u
                        for r in range(2):
                            L.append(f'v_cvt_pk_bf16_f32 v{po+2*k+r}, v{a+2*r}, v{a+2*r+1}')
                    for k, t in enumerate(pr):
                        for r in range(2):
                            L.append(f'v_pk_max_i16 v{po+2*k+r}, v{po+2*k+r}, 0')
                    t = pr[0]
                    so, off = (sH, t * 1024) if t < 4 else (sH + 1, (t - 4) * 1024)
                    if len(pr) == 2:
                        L.append(Ins(f'buffer_store_dwordx4 {vr(po)}, v{vHA}, {srd(S_WS)}, s{so} offen offset:{off+u*256} {HSC}', tok))
                    else:
                        L.append(Ins(f'buffer_store_dwordx2 {vr(po,2)}, v{vHB}, {srd(S_WS)}, s{so} offen offset:{off+u*256} {HSC}', tok))
            return L
        for f in range(56, 56 + PD):
            p(frag(f))
        p.ext(epi([0, 1, 2, 3], 'h1'))
        if L0:
            self.colsum(1, AC=144, RG=160, T=vT + 4)
            p('s_barrier')
            for f in range(56, 56 + PD):
                pass
        self.stamp('p4e1')
        HR, AC5, NR, PD5, TAIL = 32, 160, 16, 5, 14
        order = ORDER

        def ld(i, y):
            sl, sg = order[i] // 7, order[i] % 7
            return (f'buffer_load_dwordx4 {vr(HR+((i%NR)*2+y)*4)}, v{(vL16, vLb)[sg//4]}, {srd(S_WS)}, s{sY[2*sl+y]} '
                    f'offen offset:{(sg%4)*1024} sc1')

        def m5(i, x):
            y, z = x >> 1, x & 1
            return f'{MF32} {vr(AC5+16*x,16)}, {ar(order[i]*8+z*4)}, {vr(HR+((i%NR)*2+y)*4)}, {vr(AC5+16*x,16) if i else 0}'
        pre2 = {i - 112: v for i, v in pre.items() if i >= 112}
        mem2 = {i - 112: v for i, v in mem.items() if i >= 112}
        NW2A = 14 if L0 else 0
        mem2[19] = self.publish_items(['h1'], sHF) + mem2[19]
        mem2[57] += self.peek_issue(vFLG, f's{sFH}', 8)
        mem2[59] += cs_reads([4, 5])
        mem2[61] += cs_reads([6])
        mem2[63] += self.peek_check(vFLG, f's{sFH}', 8)
        for k in range(2 * PD5):
            mem2[65 + 2 * k].append(ld(k // 2, k % 2))
        p.ext(sched(mfs[112:], pre2, mem2, [], 2, start=0))
        self.stamp('p4g2')
        p.ext(epi([4, 5, 6], 'h2'))
        self.stamp('p4')
        lskip, ljoin = p.newlabel('p5skip'), p.newlabel('p5join')
        self.pad()
        p(f's_cmp_ge_u32 s{sM}, 28')
        p(f's_cbranch_scc1 {lskip}')
        idle = ['s_waitcnt vmcnt(0)'] + self.publish_items([], sHF, 1024)
        if L0:
            idle += [f's_lshl_b32 s{sT0}, s{sCB}, 2', f's_add_u32 s{sT0}, s{sT0}, s{sW}', f's_lshl_b32 s{sT1}, s{sT0}, 7',
                     f's_add_u32 s{sT1}, s{sT1}, {F_WQ}'] + self.poll_loop(vL8, f's{sT1}', 14)
            idle += [f's_mul_i32 s{sT1}, s{sT0}, 86016'] + self.prefetch(vTC, sT1, WQT, 57344)
            idle += ['s_waitcnt vmcnt(0)', 's_barrier'] + self.wq_dma((0, 1)) + [f's_branch {ljoin}']
        else:
            idle += [f's_cmp_lg_u32 s{sM}, 28', 's_cbranch_scc1 L_fin', f's_cmp_lg_u32 s{sW}, 0', 's_cbranch_scc1 L_fin',
                     f's_sleep {os.environ.get("WBSLEEP", 60)}'] + ([] if os.environ.get('NOWB') else ['buffer_wbl2 sc1']) + ['s_waitcnt vmcnt(0)', 's_branch L_fin']
        self.tail.append((lskip, idle))
        mfs, mem = [], {}
        w2b = []
        stl = self.stats_loads(sST5, CS)
        for i in range(28):
            xs = (0, 1, 2, 3) if i < 28 - TAIL else (1, 2, 3)
            for n, x in enumerate(xs):
                k = len(mfs)
                mfs.append(m5(i, x))
                mem[k] = []
                if i == 3 and n == 3:
                    mem[k] += self.publish_items(['h2'], sHF, 1024)
                if i == 8 and n == 3:
                    mem[k] += self.peek_issue(vFLG, f's{sFH}', 8, 1024)
                if i == 11 and n == 0:
                    mem[k] += self.stamp_items('pk0') + self.peek_check(vFLG, f's{sFH}', 8, 1024) + self.stamp_items('pk1')
                if i + PD5 < 28 and n < 2:
                    mem[k].append(ld(i + PD5, n))
                elif w2b and n >= 2:
                    mem[k].append(w2b.pop(0))
                elif i + PD5 >= 28 and stl:
                    mem[k].append(stl.pop(0))
        assert not w2b and not stl
        p.ext(sched(mfs, {}, mem, [], 6))
        self.stamp('p5mm')
        mem = {}
        for i, x in enumerate(self.reduce_writes(AC5)):
            mem.setdefault(2 + i, []).append(x)
        p.ext(sched([m5(i, 0) for i in range(28 - TAIL, 28)], {}, mem, self.stats_reduce(CS), 5, start=0))
        self.stamp('p5rw')
        self.reduce_finish(AC5, 32)
        self.stamp('p5rd')
        P = 96
        for i in range(8):
            p(f'v_pk_fma_f32 {vr(AC5+2*i,2)}, {vr(AC5+2*i,2)}, {vr(vMEAN,2)}, {vr(vRES+2*i,2)} op_sel:[0,1,0] op_sel_hi:[1,1,1]')
            p(f'v_cvt_pk_bf16_f32 v{P+i}, v{AC5+2*i}, v{AC5+2*i+1}')
        if L0:
            self.x_store(P, vL16, (0, 1024))
            wq = self.wq_dma((0, 1))
            p.ext(wq[:9])
            self.publish(['xst'], sXF)
            p.ext(wq[9:])
            self.stamp('p5pub')
            p.ext(self.res_unpack(P))
            p.label(ljoin)
            p(f's_add_u32 s{sLB}, s{sLB}, {LSTRIDE}')
            p('s_waitcnt vmcnt(0) lgkmcnt(0)')
            p('s_barrier')
            return
        p(f'v_and_b32 v{vT+4}, 31, v{vL}')
        p(f'v_mul_u32_u24 v{vT+4}, 896, v{vT+4}')
        p(f'v_lshrrev_b32 v{vT+5}, 5, v{vL}')
        p(f'v_lshl_add_u32 v{vT+4}, v{vT+5}, 4, v{vT+4}')
        for hf in range(2):
            p(f'v_permlane32_swap_b32 v{P+4*hf}, v{P+4*hf+2}')
            p(f'v_permlane32_swap_b32 v{P+4*hf+1}, v{P+4*hf+3}')
            p(f'buffer_store_dwordx4 {vr(P+4*hf)}, v{vT+4}, {srd(S_OUT)}, s{sQOFF} offen offset:{32*hf}')
        p('s_cmp_lg_u32 s2, %d' % (27 * 8 + 7))
        p('s_cbranch_scc1 L_fin')
        p(f's_mov_b32 s{sT0}, {WS_EPOCH}')
        p.ext(self.flag_sc1(sT0))

    def build(self):
        p = self.p
        self.L = 0
        self.prologue()
        for self.L in range(2):
            for ph in ('p1', 'attn', 'p3', 'p45'):
                getattr(self, ph)()
        p.label('L_fin')
        self.stamp('end')
        self.stamp_dump()
        if os.environ.get('CALIB'):
            p.label('L_calib')
            p('s_memrealtime s[96:97]')
            p('s_waitcnt lgkmcnt(0)')
            p('s_sub_u32 s96, s96, s100')
            if os.environ.get('PROBE'):
                p('s_sub_u32 s97, s98, s100')
                p(f's_cmp_ge_u32 s{sM}, 28')
                p('s_cselect_b32 s97, 0, s97')
                p('s_sub_u32 s96, s96, s97')
                p('s_max_i32 s96, s96, 0')
            p(f's_cmp_lt_u32 s96, {int(os.environ["CALIB"])}')
            p('s_cbranch_scc1 L_calib')
        p.label('L_end')
        p('s_endpgm')
        for lab, code in self.tail:
            p.label(lab, reset='all')
            p.ext(code)
        p.label('L_codeend')
        self.emit_walker()
        p.insert_waits()
        probs = p.fix_hazards()
        for x in probs:
            print('branch hazard padded', x, file=sys.stderr)
        mx = p.maxregs()
        head = open(os.path.join(os.path.dirname(__file__), '..', 'cdna_kernels', NAME + '.s.ref')).read().split('\n')
        hdr = [l for l in head if l.startswith(';') and '@launch' not in l]
        out = '\n'.join(hdr) + f'\n; @launch grid=(256,1,1) block=(256,1,1) lds={LDS_BYTES}\n'
        out += '.amdgcn_target "amdgcn-amd-amdhsa--gfx950"\n.text\n'
        out += f'.globl {NAME}_kernel\n.p2align 8\n.type {NAME}_kernel,@function\n{NAME}_kernel:\n'
        out += p.text()
        out += '.fill 64, 4, 0xbf800000\n'
        out += f'''.section .rodata,"a"
.p2align 6
.amdhsa_kernel {NAME}_kernel
  .amdhsa_next_free_vgpr 512
  .amdhsa_next_free_sgpr 102
  .amdhsa_accum_offset 256
  .amdhsa_group_segment_fixed_size 0
  .amdhsa_kernarg_size 72
  .amdhsa_user_sgpr_count 2
  .amdhsa_user_sgpr_kernarg_segment_ptr 1
  .amdhsa_system_sgpr_workgroup_id_x 1
  .amdhsa_float_denorm_mode_32 3
.end_amdhsa_kernel
'''
        print('regs', mx, 'instrs', sum(1 for x in p.items if isinstance(x, Ins)), file=sys.stderr)
        return out


if __name__ == '__main__':
    stop = int(sys.argv[2]) if len(sys.argv) > 2 else None
    k = K(stop if stop and stop > 0 else None, dbg=sys.argv[3].split(',') if len(sys.argv) > 3 else None)
    open(sys.argv[1], 'w').write(k.build())
    if k.dbg:
        open(os.path.join(os.path.dirname(sys.argv[1]), 'stamps.txt'), 'w').write(' '.join(k.stamps))
```

```python
import sys, os, math, struct
sys.path.insert(0, os.path.dirname(__file__))
from asmlib import Prog, Ins, Wait, Mark, Label, Touch

NAME = 'interleave_layers__sliding_block__dense_activation_relu__prompt'

WS_EPOCH = 0
WS_PUR = 0x1000
F_WQ = 0x2000
F_W1 = 0x2800
F_W2 = 0x3000
F_WO = 0x4000
WQT = 0x100000
W1T = 0x250000
WOT = 0x3D8000
W2T = 0x448000
TEAM0 = 0x600000
LSTRIDE = 0x230000
STRIDE = 2 * LSTRIDE
O_KV = 0x000000
O_O = 0x080000
O_X1 = 0x0C0000
O_XA = 0x0F8000
O_ST1 = 0x130000
O_STA = 0x138000
O_FKV = 0x140000
O_FO = 0x144000
O_FX1 = 0x144400
O_FXA = 0x144800
O_FH = 0x145000
O_H = 0x150000
WS_BYTES = TEAM0 + 8 * STRIDE

LKV = 100352
L_CSQ = 149504
L_CS1 = L_CSQ + 512
L_STAMP = 160 * 1024 - 512
L_PUR = L_CS1 + 512 + 1536
L_CSP = L_CS1 + 512
LDS_BYTES = 163840

S_X, S_WQ, S_WO, S_W1, S_W2, S_OUT, S_WS = 8, 12, 16, 20, 24, 28, 32
S_WSP = 36
sTEAM, sM, sA, sJ, sW, sRB, sCB, sLB = 40, 41, 42, 43, 44, 45, 46, 47
sF, sPURE, sLAYER, sTP = 48, 50, 51, 52
sQOFF = 53
sIMP = 54
sPERM, sONES = 56, 57
sRHO, sNU = 58, 59
sT0, sT1, sT2, sT3, sT4, sT5 = 60, 61, 62, 63, 64, 65
sCNT = 66
sTB = 71
sJFL = 67
sXD, sXS, sXF = 68, 69, 70
sPOLL = 72
sRQ, sLQ = 76, 77
sO = 80

vL, vL16, vA1, vL8 = 0, 1, 2, 3
vSTA = 4
vFLG = 5
vRW = 6
vX1A = 10
vCSA = 11
vF = 12
vMEAN, vRSTD = 14, 15
vT = 16
vRES = 240

POLL_MAX = 1 << 16
ROT = {'rb': f's{sRB}', 'team': f's{sTEAM}', '': '0'}[os.environ.get('ROT', '')]
ROT1 = {'a': f's{sA}', 'team': f's{sTEAM}', '': '0'}[os.environ.get('ROT1', '')]
PT = not os.environ.get('NOPT')
H1POS = int(os.environ.get('H1POS', 39))
H2POS = int(os.environ.get('H2POS', 5))
ORDER = [7 * sl + sg for sl in range(4) for sg in range(4)] + [7 * sl + sg for sl in range(4) for sg in range(4, 7)]
MF32 = 'v_mfma_f32_32x32x16_bf16'
MF16 = 'v_mfma_f32_16x16x32_bf16'


def srd(b):
    return f's[{b}:{b+3}]'


def vr(b, n=4):
    return f'v[{b}:{b+n-1}]' if n > 1 else f'v{b}'


def ar(b, n=4):
    return f'a[{b}:{b+n-1}]'


def f32bits(x):
    return struct.unpack('<I', struct.pack('<f', x))[0]


def is_mem(x):
    if isinstance(x, (list, tuple)):
        return any(is_mem(y) for y in x)
    if isinstance(x, (Wait, Touch, Label, Mark)):
        return False
    t = x.text if isinstance(x, Ins) else x if isinstance(x, str) else ''
    return t.startswith('ds_') or t.startswith('buffer_') or t.startswith('global_')


def cost(x):
    if isinstance(x, (list, tuple)):
        return sum(cost(y) for y in x)
    if isinstance(x, (Wait, Touch)):
        return 1
    if isinstance(x, (Label, Mark)):
        return 0
    t = x.text if isinstance(x, Ins) else x
    return 2 if t.startswith('v_exp') or t.startswith('v_rsq') or t.startswith('v_rcp') or t.startswith('v_permlane') else 1


def sched(mfs, pre, mem, side, cap, start=0):
    out = []
    side = list(side)
    for i, m in enumerate(mfs):
        out += pre.get(i, [])
        out.append(m)
        n = 0
        for x in mem.get(i, []):
            out.append(x)
            n += cost(x)
        if pre.get(i + 1):
            n += 1
        valu = False
        if i >= start:
            while side and n + cost(side[0]) <= cap:
                if is_mem(side[0]) and valu:
                    break
                x = side.pop(0)
                if not is_mem(x) and not isinstance(x, (Wait, Touch)):
                    t = x[0] if isinstance(x, (list, tuple)) else x
                    if any((y.text if isinstance(y, Ins) else y).startswith('v_') for y in (x if isinstance(x, (list, tuple)) else [x]) if isinstance(y, (Ins, str))):
                        valu = True
                out.append(x)
                n += cost(x)
            if side and n == 0 and cost(side[0]) > cap:
                out.append(side.pop(0))
    return out + side


class K:
    def __init__(self, stop=None, dbg=False):
        self.p = Prog()
        self.stop = stop
        self.dbg = dbg
        self.stamps = []
        self.tail = []
        self.pads = []

    def stamp(self, name):
        if os.environ.get('PROBE') == f'{name}{self.L}':
            self.p('s_memrealtime s[98:99]')
            self.p('s_waitcnt lgkmcnt(0)')
        if not self.dbg or (name not in self.dbg and name not in ('start', 'end')):
            return
        k = len(self.stamps)
        assert k < 32
        self.stamps.append(name)
        p = self.p
        p('s_memrealtime s[96:97]' if 'RT' in self.dbg else 's_memtime s[96:97]')
        if k == 0:
            p('v_readfirstlane_b32 s100, v0')
            p('s_lshr_b32 s100, s100, 6')
            p('s_lshl_b32 s101, s2, 2')
            p('s_add_u32 s100, s100, s101')
            p('s_lshl_b32 s100, s100, 7')
            p('s_add_u32 s100, s100, 0x40000')
        p('s_waitcnt lgkmcnt(0)')
        if k == 0:
            p('v_accvgpr_write_b32 a253, s96')
            return
        p('v_accvgpr_write_b32 a252, s96')
        p('s_mov_b64 exec, 1')
        p(f'buffer_store_dword a252, off, {srd(S_WS)}, s100 offset:{4*k}')
        p('s_mov_b64 exec, -1')

    def stamp_items(self, name):
        n = len(self.p.items)
        self.stamp(name)
        L = self.p.items[n:]
        del self.p.items[n:]
        return [L] if L else []

    def stamp_dump(self):
        if self.dbg:
            self.p(f'buffer_store_dword a253, off, {srd(S_WS)}, s100')

    def dma(self, srdb, voff, sreg, simm, m0, tok, sc='', n=1):
        mr, mi = m0
        L = [f's_add_u32 m0, s{mr}, {mi}' if mr is not None else f's_mov_b32 m0, {mi}',
             f's_add_u32 s{sT5}, s{sreg}, {simm}']
        for k in range(n):
            L.append(Ins(f'buffer_load_dwordx4 v{voff}, {srd(srdb)}, s{sT5} offen offset:{1024*k} {sc} lds', tok))
        return L

    @staticmethod
    def setexec(nl):
        if nl <= 32:
            return [f's_mov_b64 exec, {(1 << nl) - 1:#x}'] if nl < 32 else ['s_mov_b32 exec_hi, 0']
        return [f's_mov_b32 exec_hi, {(1 << (nl - 32)) - 1:#x}']

    def poll_loop(self, voff, soff, nl, imm=0):
        p = self.p
        lp, lo = p.newlabel('poll'), p.newlabel('pollout')
        return self.setexec(nl) + [f's_mov_b32 s{sCNT}, 0', Label(lp),
                f'buffer_load_dwordx2 {vr(vT + 14, 2)}, v{voff}, {srd(S_WS)}, {soff} offen offset:{imm} sc1',
                f's_add_u32 s{sCNT}, s{sCNT}, 1', f's_cmp_gt_u32 s{sCNT}, {POLL_MAX}', f's_cbranch_scc1 {lo}',
                's_waitcnt vmcnt(0)', f'v_cmp_ne_u64 vcc, s[{sF}:{sF+1}], {vr(vT + 14, 2)}', f's_cbranch_vccnz {lp}',
                Label(lo), 's_mov_b64 exec, -1']

    def vpoll(self, voff, soff, nl, acquire=True):
        p = self.p
        p.ext(self.poll_loop(voff, soff, nl))
        if acquire:
            lslow, lback = p.newlabel('acq'), p.newlabel('acqback')
            p(f's_cmp_lg_u32 s{sPURE}, 0')
            p(f's_cbranch_scc0 {lslow}')
            p.label(lback)
            self.tail.append((lslow, ['buffer_inv sc1', 's_waitcnt vmcnt(0)', f's_branch {lback}']))
        p.mark('drained_vm')

    def peek_issue(self, voff, soff, nl, imm=0):
        return [self.setexec(nl) + [f'buffer_load_dwordx2 {vr(vT + 14, 2)}, v{voff}, {srd(S_WS)}, {soff} offen offset:{imm} sc1',
                                    's_mov_b64 exec, -1']]

    def peek_check(self, voff, soff, nl, imm=0):
        p = self.p
        lslow, lback, lacq = p.newlabel('peek'), p.newlabel('peekback'), p.newlabel('peekacq')
        self.tail.append((lslow, self.poll_loop(voff, soff, nl, imm) +
                          [f's_cmp_lg_u32 s{sPURE}, 0', f's_cbranch_scc1 {lback}', 'buffer_inv sc1', 's_waitcnt vmcnt(0)',
                           f's_branch {lback}']))
        return [[Touch(vr(vT + 14, 2))] + self.setexec(nl) +
                [f'v_cmp_ne_u64 vcc, s[{sF}:{sF+1}], {vr(vT + 14, 2)}', 's_mov_b64 exec, -1',
                 f's_or_b64 vcc, vcc, s[{sIMP}:{sIMP+1}]', f's_cbranch_scc1 {lslow}', Label(lback)]]

    def publish_items(self, toks, soff, imm=0, post=()):
        p = self.p
        lslow, lback = p.newlabel('pubslow'), p.newlabel('pubback')
        self.tail.append((lslow, [
            'buffer_wbl2 sc1', 's_waitcnt vmcnt(0)',
            f'buffer_store_dwordx2 {vr(vF, 2)}, off, {srd(S_WS)}, s{soff} offset:{imm} sc1',
            f's_branch {lback}']))
        return [[Wait(toks), 's_mov_b64 exec, 1', f's_cmp_lg_u32 s{sPURE}, 0', f's_cbranch_scc0 {lslow}',
                 f'buffer_store_dwordx2 {vr(vF, 2)}, off, {srd(S_WS)}, s{soff} offset:{imm}', Label(lback), 's_mov_b64 exec, -1']] + list(post)

    def publish(self, toks, soff, imm=0):
        self.p.ext(self.publish_items(toks, soff, imm))

    def flag_sc1(self, soff):
        return ['s_mov_b64 exec, 1', f'buffer_store_dwordx2 {vr(vF,2)}, off, {srd(S_WS)}, s{soff} sc1', 's_mov_b64 exec, -1']

    def flag_opt(self, soff):
        p = self.p
        l = p.newlabel('noflag')
        p(f's_cmp_eq_u32 s{soff}, -1')
        p(f's_cbranch_scc1 {l}')
        p.mark('maybe_begin')
        p.ext(self.flag_sc1(soff))
        p.mark('maybe_end')
        p.label(l)

    def stats_loads(self, soff, dst):
        return [f'buffer_load_dwordx2 {vr(dst + 2*i, 2)}, v{vSTA}, {srd(S_WS)}, s{soff} offen offset:{256*i} sc1' for i in range(7)]

    def stats_reduce(self, src):
        L = []
        for i in range(1, 7):
            L.append(f'v_add_f32 v{src}, v{src}, v{src+2*i}')
            L.append(f'v_add_f32 v{src+1}, v{src+1}, v{src+2*i+1}')
        s, q, t0, t1 = src, src + 1, src + 2, src + 3
        return L + [
            f'v_mov_b32 v{t0}, v{s}', f'v_mov_b32 v{t1}, v{q}', 's_nop 0',
            f'v_permlane32_swap_b32 v{s}, v{t0}', f'v_permlane32_swap_b32 v{q}, v{t1}',
            f'v_add_f32 v{s}, v{s}, v{t0}', f'v_add_f32 v{q}, v{q}, v{t1}',
            f'v_mul_f32 v{vMEAN}, {f32bits(-1.0/448):#x}, v{s}',
            f'v_mul_f32 v{q}, {f32bits(1.0/448):#x}, v{q}',
            f'v_fma_f32 v{q}, -v{vMEAN}, v{vMEAN}, v{q}',
            f'v_max_f32 v{q}, 0, v{q}',
            f'v_add_f32 v{q}, {f32bits(1e-5):#x}, v{q}',
            f'v_rsq_f32 v{vRSTD}, v{q}',
        ]

    def off(self, dst, idx_reg, mul, add):
        return [f's_mul_i32 s{dst}, s{idx_reg}, {mul}', f's_add_u32 s{dst}, s{dst}, s{sLB}', f's_add_u32 s{dst}, s{dst}, {add}']

    def xoff(self, dst, idx_reg, mul, add):
        return [f's_add_u32 s{sT3}, s{sLB}, {add}', f's_add_u32 s{sT4}, s{sTB}, {O_XA}', f's_cmp_lg_u32 s{sPURE}, 0',
                f's_cselect_b32 s{sT3}, s{sT4}, s{sT3}', f's_mul_i32 s{dst}, s{idx_reg}, {mul}', f's_add_u32 s{dst}, s{dst}, s{sT3}']

    def roff(self, dst, idx_reg, mul, add):
        return [f's_cmp_lg_u32 s{sPURE}, 0', f's_cselect_b32 s{sT3}, s{sTB}, s{sLB}',
                f's_mul_i32 s{dst}, s{idx_reg}, {mul}', f's_add_u32 s{dst}, s{dst}, s{sT3}', f's_add_u32 s{dst}, s{dst}, {add}']

    def pub_offsets(self, xoff, stoff, foff):
        return [f's_lshl_b32 s{sT0}, s{sRB}, 1', f's_add_u32 s{sT0}, s{sT0}, s{sRHO}',
                f's_lshl_b32 s{sT1}, s{sCB}, 1', f's_add_u32 s{sT1}, s{sT1}, s{sNU}',
                f's_mul_i32 s{sT2}, s{sT0}, 14', f's_add_u32 s{sT2}, s{sT2}, s{sT1}'] + \
            self.xoff(sXD, sT2, 2048, xoff) + self.off(sXS, sT2, 256, stoff) + \
            [f's_lshl_b32 s{sT0}, s{sT0}, 4', f's_add_u32 s{sT0}, s{sT0}, s{sT1}'] + self.off(sXF, sT0, 8, foff) + \
            [f's_cmp_ge_u32 s{sM}, 28'] + [f's_cselect_b32 s{r}, {WS_PUR}, s{r}' for r in (sXD, sXS, sXF)]

    def x_store(self, P, va, offs, sc=''):
        p = self.p
        S, Q2, t0, t1 = vT + 6, vT + 7, vT + 8, vT + 9
        for k in range(2):
            p(f'buffer_store_dwordx4 {vr(P+4*k)}, v{va}, {srd(S_WS)}, s{sXD} offen offset:{offs[k]} {sc}', tok='xst')
        p(f'v_mov_b32 v{t0}, s{sONES}')
        p(f'v_dot2_f32_bf16 v{S}, v{P}, v{t0}, 0')
        p(f'v_dot2_f32_bf16 v{Q2}, v{P}, v{P}, 0')
        for i in range(1, 8):
            p(f'v_dot2_f32_bf16 v{S}, v{P+i}, v{t0}, v{S}')
            p(f'v_dot2_f32_bf16 v{Q2}, v{P+i}, v{P+i}, v{Q2}')
        p(f'v_mov_b32 v{t0}, v{S}')
        p(f'v_mov_b32 v{t1}, v{Q2}')
        p(f'v_permlane32_swap_b32 v{S}, v{t0}')
        p(f'v_permlane32_swap_b32 v{Q2}, v{t1}')
        p(f'v_add_f32 v{S}, v{S}, v{t0}')
        p(f'v_add_f32 v{Q2}, v{Q2}, v{t1}')
        p('s_mov_b32 exec_hi, 0')
        p(f'buffer_store_dwordx2 {vr(S,2)}, v{vL8}, {srd(S_WS)}, s{sXS} offen {sc}', tok='xst')
        p('s_mov_b64 exec, -1')

    def res_unpack(self, P):
        L = []
        for q in range(8):
            L.append(f'v_lshlrev_b32 v{vRES+2*q}, 16, v{P+q}')
            L.append(f'v_and_b32 v{vRES+2*q+1}, 0xffff0000, v{P+q}')
        return L

    def prefetch(self, v128, sreg, base, nbytes):
        L = []
        o = 0
        while o < nbytes:
            oo = min(o, nbytes - 8192)
            L += [f's_add_u32 s{sT5}, s{sreg}, {base + oo}', f'buffer_load_dword a255, v{v128}, {srd(S_WS)}, s{sT5} offen sc1']
            o += 8192
        return L

    def touch(self, v128, sreg, imm, nlines):
        L = [f's_add_u32 s{sT5}, s{sreg}, {imm}']
        if nlines < 64:
            L += self.setexec(nlines)
        L.append(f'buffer_load_dword a255, v{v128}, {srd(S_WS)}, s{sT5} offen sc1')
        if nlines < 64:
            L.append('s_mov_b64 exec, -1')
        return [L]

    def wq_dma(self, tiles):
        sg, sl = sPOLL + 2, sPOLL + 3
        L = [f's_mul_i32 s{sg}, s{sJ}, 86016', f's_mul_i32 s{sl}, s{sW}, 7168', f's_add_u32 s{sg}, s{sg}, s{sl}']
        for tau in tiles:
            for o, n in ((0, 4), (4096, 3)):
                d = self.dma(S_WS, vL16, sg, WQT + tau * 28672 + o, (sl, tau * 28672 + o), 'wq', 'sc1', n)
                L += [d[:3]] + d[3:]
        return L

    def w1_dma(self, part):
        sg, sl = sPOLL, sPOLL + 1
        L = []
        if part == 0:
            for hf in range(2):
                L += [f's_and_b32 s{sl}, {ROT1}, 1', f's_xor_b32 s{sl}, s{sl}, {hf}', f's_lshl_b32 s{sg}, s{sW}, 1', f's_add_u32 s{sl}, s{sl}, s{sg}',
                      f's_mul_i32 s{sl}, s{sl}, 7168', f's_mul_i32 s{sg}, s{sJ}, 100352', f's_add_u32 s{sg}, s{sg}, s{sl}']
                for o, n in ((0, 4), (4096, 3)):
                    d = self.dma(S_WS, vL16, sg, W1T + o, (sl, o), 'w1', 'sc1', n)
                    L += [d[:3]] + d[3:]
            return L
        else:
            L += [f's_mul_i32 s{sg}, s{sJ}, 100352', f's_mul_i32 s{sl}, s{sW}, 10240', f's_add_u32 s{sg}, s{sg}, s{sl}']
            groups = [(0, 4), (4096, 4), (8192, 2)]
            base = 57344
        for o, n in groups:
            d = self.dma(S_WS, vL16, sg, W1T + base + o, (sl, base + o), 'w1', 'sc1', n)
            L += [d[:3]] + d[3:]
        if part == 1:
            L += [f's_sub_u32 s{sg}, s{sg}, s{sl}', f's_lshl_b32 s{sl}, s{sNU}, 10', f's_add_u32 s{sg}, s{sg}, s{sl}']
            L.append(self.dma(S_WS, vL16, sg, W1T + 98304, (sl, 98304), 'w1', 'sc1', 1))
        return L

    def w2_setup(self, sbase, vz):
        return [f's_lshl_b32 s{sbase}, s{sCB}, 2', f's_add_u32 s{sbase}, s{sbase}, s{sW}', f's_mul_i32 s{sbase}, s{sbase}, 57344',
                f's_lshl_b32 s{sT1}, s{sNU}, 10', f'v_xor_b32 v{vz[0]}, s{sT1}, v{vL16}', f'v_xor_b32 v{vz[1]}, 1024, v{vz[0]}']

    def w2_loads(self, sbase, vz):
        L = []
        for sl in range(4):
            pre = [f's_add_u32 s{sT3}, {ROT}, {sl}', f's_and_b32 s{sT3}, s{sT3}, 3', f's_mul_i32 s{sT3}, s{sT3}, 14336',
                   f's_add_u32 s{sT3}, s{sT3}, s{sbase}']
            for sg in range(7):
                ks = 7 * sl + sg
                g = pre + [f's_add_u32 s{sT4}, s{sT3}, {W2T + sg*2048}',
                           f'buffer_load_dwordx4 {ar(ks*8)}, v{vz[0]}, {srd(S_WS)}, s{sT4} offen sc1']
                pre = []
                L += [g, f'buffer_load_dwordx4 {ar(ks*8+4)}, v{vz[1]}, {srd(S_WS)}, s{sT4} offen sc1']
        return L

    def lane_consts(self):
        p = self.p
        t0, t1 = vT + 6, vT + 7
        p(f'v_add_u32 v{vA1}, 57344, v{vL16}')
        p(f'v_and_b32 v{vSTA}, 31, v{vL}')
        p(f'v_lshlrev_b32 v{vSTA}, 3, v{vSTA}')
        p(f'v_lshrrev_b32 v{t0}, 5, v{vL}')
        p(f'v_mul_u32_u24 v{t1}, {7*256}, v{t0}')
        p(f'v_add_u32 v{vSTA}, v{vSTA}, v{t1}')
        p(f'v_lshrrev_b32 v{vFLG}, 2, v{vL}')
        p(f'v_lshlrev_b32 v{vFLG}, 7, v{vFLG}')
        p(f'v_and_b32 v{t1}, 3, v{vL}')
        p(f'v_lshl_add_u32 v{vFLG}, v{t1}, 3, v{vFLG}')
        for x in range(1, 4):
            p(f's_xor_b32 s{sT0}, s{sW}, {x}')
            p(f's_mul_i32 s{sT0}, s{sT0}, 12288')
            p(f's_add_u32 s{sT0}, s{sT0}, {LKV + (x-1)*4096}')
            p(f'v_add_u32 v{vRW+x-1}, s{sT0}, v{vL16}')
        p(f's_mul_i32 s{sT0}, s{sW}, 12288')
        p(f's_add_u32 s{sT0}, s{sT0}, {LKV}')
        p(f'v_add_u32 v{vRW+3}, s{sT0}, v{vL16}')
        p(f'v_bfe_u32 v{vX1A}, v{vL}, 4, 1')
        p(f'v_lshlrev_b32 v{vX1A}, 10, v{vX1A}')
        p(f'v_lshl_add_u32 v{vX1A}, v{t0}, 8, v{vX1A}')
        p(f'v_and_b32 v{t1}, 15, v{vL}')
        p(f'v_lshl_add_u32 v{vX1A}, v{t1}, 4, v{vX1A}')

    def pad(self):
        p = self.p
        k = len(self.pads)
        self.pads.append(f'L_pad{k}')
        p(f's_branch L_padskip{k}')
        p.label(f'L_pad{k}')
        p('s_setpc_b64 s[98:99]')
        p.label(f'L_padskip{k}')

    def emit_walker(self):
        L = []
        labs = [f'L_walk{w}' for w in range(4)]
        for w in range(1, 4):
            L += [Ins(f's_cmp_eq_u32 s{sW}, {w}'), Ins(f's_cbranch_scc1 {labs[w]}')]
        for w in range(4):
            if w:
                L.append(Label(labs[w]))
            for x in self.pads[w::4]:
                L.append(Ins(f's_call_b64 s[98:99], {x}'))
            if w < 3:
                L.append(Ins('s_branch L_walkend'))
        L.append(Label('L_walkend'))
        self.p.items[self.walker_at:self.walker_at] = L

    def rawq(self, tau, i):
        return (self.dma(S_WQ, self.vDQ, sRQ, (448, 896, 0)[tau] * 2 + i * 16 * 2688, (sLQ, tau * 28672 + i * 1024), f'rq{tau}{i}'))

    def xform(self, tau, R, vcs, vones, between=None):
        p = self.p

        def fin(i):
            p(f'ds_write_b128 v{self.vWQ}, {vr(R+4*i)} offset:{tau*28672+i*1024}')
            for q in range(4):
                p(f'v_dot2_f32_bf16 v{vcs}, v{R+4*i+q}, v{vones}, {f"v{vcs}" if i or q else 0}')
        for i in range(7):
            p.wait(f'rq{tau}{i}')
            for jj in range(2):
                p(f'ds_read_b64_tr_b16 {vr(R+4*i+2*jj,2)}, v{self.vTQ} offset:{tau*28672+i*1024+jj*512}')
            if between:
                between(i)
            if i >= 1:
                fin(i - 1)
        fin(6)

    def cs_partial(self, taus, vcs, t2, t3):
        p = self.p
        for k, tau in enumerate(taus):
            p(f'v_mov_b32 v{t2}, v{vcs+k}')
            p(f'v_permlane32_swap_b32 v{vcs+k}, v{t2}')
            p(f'v_add_f32 v{vcs+k}, v{vcs+k}, v{t2}')
        p(f'v_and_b32 v{t2}, 31, v{vL}')
        p(f'v_lshlrev_b32 v{t2}, 2, v{t2}')
        p(f's_mul_i32 s{sT0}, s{sW}, 384')
        p(f's_add_u32 s{sT0}, s{sT0}, {L_CSP}')
        p(f'v_add_u32 v{t3}, s{sT0}, v{t2}')
        for k, tau in enumerate(taus):
            p(f'ds_write_b32 v{t3}, v{vcs+k} offset:{tau*128}')

    def cs_sum(self, taus, R, t2, t3):
        p = self.p
        p(f'v_add_u32 v{t3}, {L_CSP}, v{t2}')
        for k, tau in enumerate(taus):
            for w in range(4):
                p(f'ds_read_b32 v{R+4*k+w}, v{t3} offset:{w*384+tau*128}')
        p(f'v_add_u32 v{t3}, {L_CSQ}, v{t2}')
        for k, tau in enumerate(taus):
            r = R + 4 * k
            p(f'v_add_f32 v{r}, v{r}, v{r+1}')
            p(f'v_add_f32 v{r+2}, v{r+2}, v{r+3}')
            p(f'v_add_f32 v{r}, v{r}, v{r+2}')
            p(f'ds_write_b32 v{t3}, v{r} offset:{tau*128}')
        p('s_waitcnt lgkmcnt(0)')

    def prologue(self):
        p = self.p
        t0, t1, t2, t3 = vT, vT + 1, vT + 2, vT + 3
        self.vDQ, self.vTQ, self.vWQ = vDQ, vTQ, vWQ = vT + 10, vT + 11, vT + 12
        p('s_cmp_ge_u32 s2, 256')
        p('s_cbranch_scc1 L_end')
        p(f's_load_dwordx16 s[{sO}:{sO+15}], s[0:1], 0')
        p(f's_load_dwordx2 s[{S_WSP}:{S_WSP+1}], s[0:1], 64')
        p(f's_getpc_b64 s[{sT0}:{sT0+1}]')
        p.label('L_pc')
        p(f'v_lshlrev_b32 v{t2}, 7, v0')
        p(f'global_load_dword a255, v{t2}, s[{sT0}:{sT0+1}]')
        p(f'v_add_u32 v{t2}, 0x8000, v{t2}')
        p(f'v_min_u32 v{t2}, L_codeend-L_pc, v{t2}')
        p(f'global_load_dword a255, v{t2}, s[{sT0}:{sT0+1}]')
        if os.environ.get('CALIB'):
            p('s_memrealtime s[100:101]')
        self.stamp('start')
        p(f'v_lshrrev_b32 v{vT}, 6, v0')
        p(f'v_and_b32 v{vL}, 63, v0')
        p(f'v_readfirstlane_b32 s{sW}, v{vT}')
        p(f's_lshr_b32 s{sM}, s2, 3')
        p(f's_and_b32 s{sTEAM}, s2, 7')
        p(f's_mul_i32 s{sRB}, s{sM}, 37')
        p(f's_lshr_b32 s{sRB}, s{sRB}, 8')
        p(f's_mul_i32 s{sT0}, s{sRB}, 7')
        p(f's_sub_u32 s{sCB}, s{sM}, s{sT0}')
        p(f's_lshr_b32 s{sRHO}, s{sW}, 1')
        p(f's_and_b32 s{sNU}, s{sW}, 1')
        p(f's_lshl_b32 s{sT0}, s{sTEAM}, 2')
        p(f's_add_u32 s{sT0}, s{sT0}, s{sRB}')
        p(f's_lshl_b32 s{sT1}, s{sT0}, 1')
        p(f's_add_u32 s{sT1}, s{sT1}, s{sRHO}')
        p(f's_mul_i32 s{sQOFF}, s{sT1}, {32*896}')
        p(f's_lshl_b32 s{sT1}, s{sCB}, 7')
        p(f's_add_u32 s{sQOFF}, s{sQOFF}, s{sT1}')
        p(f's_lshl_b32 s{sT1}, s{sNU}, 6')
        p(f's_add_u32 s{sQOFF}, s{sQOFF}, s{sT1}')
        vPK, vPQ, vH = vT + 14, vT + 15, vT + 13
        p(f'v_and_b32 v{t3}, 31, v{vL}')
        p(f'v_mul_u32_u24 v{t3}, 896, v{t3}')
        p(f'v_lshrrev_b32 v{vH}, 5, v{vL}')
        p(f'v_lshl_add_u32 v{t3}, v{vH}, 3, v{t3}')
        p(f's_lshl_b32 s{sT2}, s{sM}, 2')
        p(f's_add_u32 s{sT2}, s{sT2}, s{sW}')
        p(f's_mul_i32 s{sT3}, s{sT2}, 49')
        p(f'v_add_u32 v{t2}, s{sT3}, v{vL}')
        p(f'v_mul_u32_u24 v{vPK}, 74899, v{t2}')
        p(f'v_lshrrev_b32 v{vPK}, 20, v{vPK}')
        p(f'v_mul_u32_u24 v{vPK}, 7, v{vPK}')
        p(f'v_add_u32 v{vPK}, v{vPK}, v{t2}')
        p(f'v_lshlrev_b32 v{vPK}, 7, v{vPK}')
        b = sO

        def mksrd(d, src, n):
            p(f's_mov_b32 s{d}, s{src}')
            p(f's_and_b32 s{d+1}, s{src+1}, 0xffff')
            p(f's_mov_b32 s{d+2}, {n}')
            p(f's_mov_b32 s{d+3}, 0x20000')
        mksrd(S_X, b, 1835008)
        mksrd(S_WQ, b + 2, 1204224)
        XR = 96
        for q in range(4):
            p(f'buffer_load_dwordx2 {vr(XR+2*q,2)}, v{t3}, {srd(S_X)}, s{sQOFF} offen offset:{16*q}')
        p('s_mov_b32 exec_hi, 0x1ffff')
        p(f'buffer_load_dword a255, v{vPK}, {srd(S_WQ)}, 0 offen offset:896')
        p('s_mov_b64 exec, -1')
        p(f's_load_dwordx2 s[{sF}:{sF+1}], s[{S_WSP}:{S_WSP+1}], {WS_EPOCH}')
        for (d, src, n) in ((S_WO, b + 4, 401408), (S_W1, b + 8, 1605632),
                            (S_W2, b + 10, 1605632), (S_OUT, b + 12, 1835008), (S_WS, S_WSP, WS_BYTES)):
            mksrd(d, src, n)
        p(f's_mul_i32 s{sT3}, s{sT2}, 25')
        p(f'v_add_u32 v{t2}, s{sT3}, v{vL}')
        p(f'v_mul_u32_u24 v{vPQ}, 149797, v{t2}')
        p(f'v_lshrrev_b32 v{vPQ}, 20, v{vPQ}')
        p(f'v_mul_u32_u24 v{vPQ}, 14, v{vPQ}')
        p(f'v_add_u32 v{vPQ}, v{vPQ}, v{t2}')
        p(f'v_lshlrev_b32 v{vPQ}, 7, v{vPQ}')
        p(f's_and_b32 s{sJ}, s{sM}, 15')
        p(f's_lshr_b32 s{sA}, s{sM}, 4')
        p(f'v_lshrrev_b32 v{t0}, 2, v{vL}')
        p(f'v_and_b32 v{t1}, 3, v{vL}')
        p(f'v_lshlrev_b32 v{t3}, 3, v{t1}')
        p(f'v_lshlrev_b32 v{t1}, 4, v{t1}')
        self.stamp('ka')
        sI, sSTG = sO, sO + 1
        sFL, sDST, sJOB, sDST2 = sJFL, sO + 3, sO + 4, sO + 5

        p(f's_mul_i32 s{sLB}, s{sTEAM}, {STRIDE}')
        p(f's_add_u32 s{sLB}, s{sLB}, {TEAM0}')
        p(f's_mov_b32 s{sTB}, s{sLB}')
        p(f'v_lshlrev_b32 v{vL16}, 4, v{vL}')
        p(f'v_lshlrev_b32 v{vL8}, 3, v{vL}')
        p(f's_mov_b32 s{sONES}, 0x3f803f80')
        p(f's_mov_b32 s{sPURE}, 1')
        p(f's_mov_b64 s[{sIMP}:{sIMP+1}], 0')
        p.ext(self.pub_offsets(O_XA, O_STA, O_FXA))
        vD, vTR, vTR8 = vT + 4, vT + 5, vT + 13
        FR = 32
        p(f's_lshl_b32 s{sI}, s{sTEAM}, 1')
        p(f's_add_u32 s{sI}, s{sI}, s{sA}')
        p(f's_lshl_b32 s{sSTG}, s{sW}, 13')
        p(f's_add_u32 s{sSTG}, s{sSTG}, {LKV}')
        lA = [p.newlabel('jobA') for _ in range(4)]
        p(f's_mov_b32 s{sJOB}, 0')
        p.mark('maybe_begin')
        p(f's_cmp_ge_u32 s{sW}, 2')
        p(f's_cbranch_scc1 {lA[0]}')
        p(f's_cmp_eq_u32 s{sW}, 0')
        p(f's_cbranch_scc1 {lA[2]}')
        p(f's_cmp_ge_u32 s{sI}, 14')
        p(f's_cbranch_scc1 {lA[2]}')
        p(f'v_bfe_u32 v{vD}, v{vL}, 1, 3')
        p(f'v_bfe_u32 v{t2}, v{vL}, 4, 1')
        p(f'v_lshl_add_u32 v{vD}, v{t2}, 4, v{vD}')
        p(f'v_bfe_u32 v{t2}, v{vL}, 5, 1')
        p(f'v_lshl_add_u32 v{vD}, v{t2}, 3, v{vD}')
        p(f'v_mul_u32_u24 v{vD}, 3584, v{vD}')
        p(f'v_and_b32 v{t2}, 1, v{vL}')
        p(f'v_lshl_add_u32 v{vD}, v{t2}, 4, v{vD}')
        p(f's_mul_i32 s{sT0}, s{sI}, {32*3584}')
        p(f's_mul_i32 s{sT1}, s{sJ}, 224')
        p(f's_add_u32 s{sT0}, s{sT0}, s{sT1}')
        for t in range(7):
            p.ext(self.dma(S_W1, vD, sT0, t * 32, (sSTG, t * 1024), 'raw'))
        p(f's_mov_b32 s{sJOB}, 2')
        p('s_waitcnt vmcnt(8)')
        p(f's_branch {lA[3]}')
        p.label(lA[0])
        p(f'v_mul_u32_u24 v{vD}, 896, v{t0}')
        p(f'v_add_u32 v{vD}, v{vD}, v{t1}')
        p(f's_cmp_ge_u32 s{sM}, 28')
        p(f's_cbranch_scc1 {lA[1]}')
        sI2, sSL, sHF = sT2, sT3, sT4
        p(f's_lshl_b32 s{sI2}, s{sTEAM}, 2')
        p(f's_add_u32 s{sI2}, s{sI2}, s{sRB}')
        p(f's_lshr_b32 s{sSL}, s{sI2}, 1')
        p(f's_and_b32 s{sHF}, s{sI2}, 1')
        p(f's_mul_i32 s{sT0}, s{sSL}, {112*896}')
        p(f's_mul_i32 s{sT1}, s{sHF}, {64*896}')
        p(f's_add_u32 s{sT0}, s{sT0}, s{sT1}')
        p(f's_lshl_b32 s{sT1}, s{sCB}, 7')
        p(f's_add_u32 s{sT0}, s{sT0}, s{sT1}')
        p(f's_lshl_b32 s{sT1}, s{sNU}, 6')
        p(f's_add_u32 s{sT0}, s{sT0}, s{sT1}')
        for k in range(4):
            p.ext(self.dma(S_W2, vD, sT0, k * 16 * 896, (sSTG, k * 1024), 'raw'))
        p(f's_add_u32 s{sJOB}, s{sHF}, 3')
        p('s_waitcnt vmcnt(5)')
        p(f's_branch {lA[3]}')
        p.label(lA[1])
        p(f's_cmp_eq_u32 s{sTEAM}, 7')
        p(f's_cbranch_scc1 {lA[2]}')
        p(f's_mul_i32 s{sT0}, s{sCB}, {112*896}')
        p(f's_lshl_b32 s{sT1}, s{sTEAM}, 7')
        p(f's_add_u32 s{sT0}, s{sT0}, s{sT1}')
        p(f's_lshl_b32 s{sT1}, s{sNU}, 6')
        p(f's_add_u32 s{sT0}, s{sT0}, s{sT1}')
        for k in range(8):
            p.ext(self.dma(S_WO, vD, sT0, k * 16 * 896, (sSTG, k * 1024), 'raw'))
        p(f's_mov_b32 s{sJOB}, 5')
        p.label(lA[2])
        p('s_waitcnt vmcnt(1)')
        p.mark('maybe_end')
        p.label(lA[3])
        self.stamp('jA')
        lp0 = p.newlabel('p0skip')
        p(f's_cmp_ge_u32 s{sM}, 28')
        p(f's_cselect_b32 s{sXF}, -1, s{sXF}')
        p(f's_cbranch_scc1 {lp0}')
        p.mark('drained_vm')
        self.x_store(XR, vL16, (0, 1024), 'sc1')
        p.label(lp0)
        p(f's_lshl_b32 s{sTP}, s{sA}, 2')
        p(f's_add_u32 s{sTP}, s{sTP}, s{sW}')
        p('s_mov_b64 exec, 0x1ffffff')
        p(f'buffer_load_dword a255, v{vPQ}, {srd(S_WQ)}, 0 offen')
        p('s_mov_b64 exec, -1')
        self.stamp('x0')
        p(f'v_mul_u32_u24 v{vDQ}, 2688, v{t0}')
        p(f'v_add_u32 v{vDQ}, v{vDQ}, v{t1}')
        p(f's_mul_i32 s{sRQ}, s{sW}, {7*16*2688}')
        p(f's_mul_i32 s{sT1}, s{sJ}, 56')
        p(f's_add_u32 s{sRQ}, s{sRQ}, s{sT1}')
        p(f's_mul_i32 s{sLQ}, s{sW}, 7168')
        p(f'v_bfe_u32 v{t2}, v{vL}, 4, 1')
        p(f'v_lshl_add_u32 v{t2}, v{t2}, 5, v{t3}')
        p(f'v_bfe_u32 v{vTR}, v{vL}, 2, 2')
        p(f'v_lshl_add_u32 v{t2}, v{vTR}, 6, v{t2}')
        p(f'v_lshl_add_u32 v{vTQ}, v{vH}, 8, v{t2}')
        p(f'v_add_u32 v{vTR}, s{sSTG}, v{vTQ}')
        p(f'v_add_u32 v{t2}, s{sSTG}, v{t2}')
        p(f'v_lshl_add_u32 v{vTR8}, v{vH}, 9, v{t2}')
        p(f'v_add_u32 v{vTQ}, s{sLQ}, v{vTQ}')
        p(f'v_add_u32 v{vWQ}, s{sLQ}, v{vL16}')
        p(f's_mov_b32 s{sPERM}, 0x07060302')
        self.lane_consts()
        vCSP = 104
        p(f'v_mov_b32 v{vCSP+3}, s{sONES}')
        p.ext(self.res_unpack(XR))
        p('s_waitcnt lgkmcnt(0)')
        p(f's_add_u32 s{sF}, s{sF}, 1')
        p(f's_addc_u32 s{sF+1}, s{sF+1}, 0')
        p(f'v_mov_b32 v{vF}, s{sF}')
        p(f'v_mov_b32 v{vF+1}, s{sF+1}')
        self.walker_at = len(p.items)
        self.stamp('wk')
        p('s_waitcnt vmcnt(1)')
        p.mark('drained_vm')
        self.stamp('rt1')
        for i in range(4):
            p.ext(self.rawq(0, i))
        self.flag_opt(sXF)

        def finish(nfr, offs):
            L = []
            base = None
            for k in range(nfr):
                hi, lo = offs[k] // 4096 * 4096, offs[k] % 4096
                if hi != base:
                    L.append(f's_add_u32 s{sT5}, s{sDST}, {hi}')
                    base = hi
                L.append(f'buffer_store_dwordx4 {vr(FR+4*k)}, v{vL16}, {srd(S_WS)}, s{sT5} offen offset:{lo} sc1')
            return L
        lB = {k: p.newlabel('jobB') for k in (3, 4, 5, 'join')}
        p(f's_mov_b32 s{sFL}, -1')
        p.mark('maybe_begin')
        p(f's_cmp_eq_u32 s{sJOB}, 0')
        p(f's_cbranch_scc1 {lB["join"]}')
        p(f's_cmp_eq_u32 s{sJOB}, 5')
        p(f's_cbranch_scc1 {lB[5]}')
        p(f's_cmp_ge_u32 s{sJOB}, 3')
        p(f's_cbranch_scc1 {lB[3]}')
        p(f'v_lshl_add_u32 v{vTR}, v{t0}, 5, v{t3}')
        p(f'v_add_u32 v{vTR}, s{sSTG}, v{vTR}')
        for t in range(7):
            for jj in range(2):
                p(f'ds_read_b64_tr_b16 {vr(FR+t*4+2*jj,2)}, v{vTR} offset:{t*1024+jj*512}')
        p(f's_mul_i32 s{sDST}, s{sJ}, 100352')
        p(f's_add_u32 s{sDST}, s{sDST}, {W1T}')
        p(f's_mul_i32 s{sDST2}, s{sI}, 3072')
        p(f's_add_u32 s{sDST2}, s{sDST2}, s{sDST}')
        p(f's_add_u32 s{sDST2}, s{sDST2}, 57344')
        p(f's_lshl_b32 s{sT0}, s{sI}, 12')
        p(f's_add_u32 s{sDST}, s{sDST}, s{sT0}')
        p(f's_lshl_b32 s{sFL}, s{sJ}, 4')
        p(f's_add_u32 s{sFL}, s{sFL}, s{sI}')
        p(f's_lshl_b32 s{sFL}, s{sFL}, 3')
        p(f's_add_u32 s{sFL}, s{sFL}, {F_W1}')
        p.ext(finish(4, [t * 1024 for t in range(4)]))
        for t in range(4, 7):
            p(f'buffer_store_dwordx4 {vr(FR+4*t)}, v{vL16}, {srd(S_WS)}, s{sDST2} offen offset:{(t-4)*1024} sc1')
        p(f's_branch {lB["join"]}')
        p.label(lB[3])
        for sg in range(2):
            for jj in range(2):
                p(f'ds_read_b64_tr_b16 {vr(FR+sg*4+2*jj,2)}, v{vTR} offset:{(16*jj+8*sg)*64}')
        p(f's_lshl_b32 s{sI2}, s{sTEAM}, 2')
        p(f's_add_u32 s{sI2}, s{sI2}, s{sRB}')
        p(f's_lshr_b32 s{sSL}, s{sI2}, 1')
        p(f's_and_b32 s{sHF}, s{sI2}, 1')
        p(f's_mul_i32 s{sDST}, s{sCB}, 229376')
        p(f's_mul_i32 s{sT0}, s{sSL}, 14336')
        p(f's_add_u32 s{sDST}, s{sDST}, s{sT0}')
        p(f's_lshl_b32 s{sT0}, s{sHF}, 13')
        p(f's_add_u32 s{sDST}, s{sDST}, s{sT0}')
        p(f's_lshl_b32 s{sT0}, s{sNU}, 10')
        p(f's_add_u32 s{sDST}, s{sDST}, s{sT0}')
        p(f's_add_u32 s{sDST}, s{sDST}, {W2T}')
        p(f's_lshl_b32 s{sFL}, s{sCB}, 5')
        p(f's_add_u32 s{sFL}, s{sFL}, s{sI2}')
        p(f's_lshl_b32 s{sFL}, s{sFL}, 1')
        p(f's_add_u32 s{sFL}, s{sFL}, s{sNU}')
        p(f's_lshl_b32 s{sFL}, s{sFL}, 3')
        p(f's_add_u32 s{sFL}, s{sFL}, {F_W2}')
        p(f's_cmp_eq_u32 s{sJOB}, 4')
        p(f's_cbranch_scc1 {lB[4]}')
        for sg in range(2, 4):
            for jj in range(2):
                p(f'ds_read_b64_tr_b16 {vr(FR+sg*4+2*jj,2)}, v{vTR} offset:{(32+16*jj+8*(sg%2))*64}')
        p.ext(finish(4, [k * 2048 for k in range(4)]))
        p(f's_branch {lB["join"]}')
        p.label(lB[4])
        for jj in range(2):
            p(f'ds_read_b64_tr_b16 {vr(FR+8+2*jj,2)}, v{vTR8} offset:{(32+4*jj)*64}')
        p('s_waitcnt lgkmcnt(0)')
        p.ext(finish(3, [k * 2048 for k in range(3)]))
        p(f's_branch {lB["join"]}')
        p.label(lB[5])
        for hd in range(4):
            for kp in range(2):
                for jj in range(2):
                    p(f'ds_read_b64_tr_b16 {vr(FR+(hd*2+kp)*4+2*jj,2)}, v{vTR} offset:{(28*hd+16*kp+8*jj)*64}')
        p(f's_lshl_b32 s{sFL}, s{sTEAM}, 2')
        p(f's_add_u32 s{sFL}, s{sFL}, s{sCB}')
        p(f's_lshl_b32 s{sDST}, s{sFL}, 14')
        p(f's_lshl_b32 s{sT0}, s{sNU}, 10')
        p(f's_add_u32 s{sDST}, s{sDST}, s{sT0}')
        p(f's_add_u32 s{sDST}, s{sDST}, {WOT}')
        p(f's_lshl_b32 s{sFL}, s{sFL}, 1')
        p(f's_add_u32 s{sFL}, s{sFL}, s{sNU}')
        p(f's_lshl_b32 s{sFL}, s{sFL}, 3')
        p(f's_add_u32 s{sFL}, s{sFL}, {F_WO}')
        p('s_waitcnt lgkmcnt(0)')
        p('s_mov_b32 exec_lo, 0')
        for hd in range(4):
            p(f'v_mov_b32 v{FR+(hd*2+1)*4+2}, 0')
            p(f'v_mov_b32 v{FR+(hd*2+1)*4+3}, 0')
        p('s_mov_b64 exec, -1')
        p.ext(finish(8, [k * 2048 for k in range(8)]))
        p.mark('maybe_end')
        p.label(lB['join'])
        p(f's_getreg_b32 s{sT0}, hwreg(HW_REG_XCC_ID)')
        p(f's_and_b32 s{sT0}, s{sT0}, 15')
        p(f's_lshl_b32 s{sT0}, s{sT0}, 28')
        p(f's_xor_b32 s{sT0}, s{sT0}, s{sF+1}')
        p(f'v_mov_b32 v{t2}, s{sF}')
        p(f'v_mov_b32 v{t3}, s{sT0}')
        p(f's_lshl_b32 s{sT1}, s{sTEAM}, 8')
        p(f's_lshl_b32 s{sT2}, s{sM}, 3')
        p(f's_add_u32 s{sT1}, s{sT1}, s{sT2}')
        p(f's_add_u32 s{sT1}, s{sT1}, {WS_PUR}')
        lx = p.newlabel('noxcc')
        p(f's_cmp_lg_u32 s{sW}, 0')
        p(f's_cbranch_scc1 {lx}')
        p.mark('maybe_begin')
        p('s_mov_b64 exec, 1')
        p(f'buffer_store_dwordx2 {vr(t2,2)}, off, {srd(S_WS)}, s{sT1} sc1')
        p('s_mov_b64 exec, -1')
        p.mark('maybe_end')
        p.label(lx)
        self.stamp('jB')
        for i in range(4, 7):
            p.ext(self.rawq(0, i))
        for i in range(7):
            p.ext(self.rawq(1, i))
        self.xform(0, 128, vCSP, vCSP + 3)
        self.flag_opt(sFL)
        self.stamp('xf0')
        self.xform(1, 160, vCSP + 1, vCSP + 3)
        self.cs_partial((0, 1), vCSP, t2, t3)
        p('s_waitcnt lgkmcnt(0)')
        p('s_barrier')
        self.stamp('bar')
        self.cs_sum((0, 1), 108, t2, t3)
        self.stamp('pro')

    def wqt_publish(self, R):
        p = self.p
        l = p.newlabel('nowqt')
        p(f's_lshl_b32 s{sT0}, s{sTEAM}, 1')
        p(f's_add_u32 s{sT0}, s{sT0}, s{sA}')
        p(f's_cmp_ge_u32 s{sT0}, 14')
        p(f's_cbranch_scc1 {l}')
        p(f's_cmp_lg_u32 s{sW}, 0')
        p(f's_cbranch_scc1 {l}')
        p.mark('maybe_begin')
        p(f's_lshl_b32 s{sT1}, s{sT0}, 11')
        p(f'v_add_u32 v{R+24}, s{sT1}, v{vL16}')
        for tau in range(2):
            for kp in range(2):
                p(f'ds_read_b128 {vr(R+(tau*2+kp)*4)}, v{R+24} offset:{tau*28672+kp*1024}')
        p(f's_mul_i32 s{sT2}, s{sJ}, 86016')
        p(f's_add_u32 s{sT1}, s{sT1}, s{sT2}')
        for tau in range(2):
            p(f's_add_u32 s{sT2}, s{sT1}, {WQT + tau*28672}')
            for kp in range(2):
                p(f'buffer_store_dwordx4 {vr(R+(tau*2+kp)*4)}, v{vL16}, {srd(S_WS)}, s{sT2} offen offset:{kp*1024} sc1')
        p(f's_lshl_b32 s{sJFL}, s{sJ}, 4')
        p(f's_add_u32 s{sJFL}, s{sJFL}, s{sT0}')
        p(f's_lshl_b32 s{sJFL}, s{sJFL}, 3')
        p(f's_add_u32 s{sJFL}, s{sJFL}, {F_WQ}')
        p.mark('maybe_end')
        p.label(l)

    def p1(self):
        p, L0 = self.p, self.L == 0
        X, ACC, RING, CS = 32, 144, 192, 224
        accK, accV, accQ = ACC, ACC + 16, ACC + 32
        PK, PV = vT, vT + 8
        sXO, sST, sFX, sKV, sKF = sO, sO + 7, sO + 8, sO + 9, sO + 10
        p.ext(self.xoff(sXO, sTP, 28672, O_XA))
        for g in range(1, 7):
            p(f's_add_u32 s{sXO+g}, s{sXO}, {4096*g}')
        p.ext(self.off(sST, sTP, 3584, O_STA))
        p.ext(self.off(sFX, sTP, 128, O_FXA))
        p(f's_lshl_b32 s{sT0}, s{sJ}, 3')
        p(f's_add_u32 s{sT0}, s{sT0}, s{sTP}')
        p.ext(self.off(sKV, sT0, 4096, O_KV))
        p.ext(self.off(sKF, sT0, 128, O_FKV))
        p(f'v_lshrrev_b32 v{vCSA}, 5, v{vL}')
        p(f'v_lshlrev_b32 v{vCSA}, 4, v{vCSA}')
        p(f'v_add_u32 v{vCSA}, {L_CSQ}, v{vCSA}')
        sW2E, sW2F = sO + 11, sO + 12
        vQ = 238
        if L0:
            self.vDQ, self.vTQ, self.vWQ = vQ, 225, 226
            p.ext([f'v_lshrrev_b32 v{vQ}, 2, v{vL}', f'v_mul_u32_u24 v{vQ}, 2688, v{vQ}', f'v_and_b32 v{vQ+1}, 3, v{vL}',
                   f'v_lshl_add_u32 v{vQ}, v{vQ+1}, 4, v{vQ}', f'v_lshlrev_b32 v{vQ+1}, 7, v{vL}'])

        def frag(f):
            if f < 56:
                base, off = vL16, (f % 2) * 28672 + (f // 2) * 1024
            else:
                base, off = vA1, (f - 56) * 1024
            return f'ds_read_b128 {vr(RING + 4*(f % 8))}, v{base} offset:{off}'

        def mf(f):
            acc, s = ((accK, accV)[f % 2], f // 2) if f < 56 else (accQ, f - 56)
            return f'{MF32} {vr(acc,16)}, {vr(RING+4*(f%8))}, {vr(X+4*s)}, {vr(acc,16) if s else 0}'

        def xl(s):
            return f'buffer_load_dwordx4 {vr(X+4*s)}, v{vL16}, {srd(S_WS)}, s{sXO + s//4} offen offset:{(s%4)*1024} sc1'
        PD = 6
        for f in range(PD):
            p(frag(f))
        self.stamp('p5')
        self.pad()
        self.vpoll(vL8, f's{sFX}', 14, acquire=not L0)
        self.stamp('E')
        XP = 8
        for s in range(XP):
            p(xl(s))
        mem, pre = {}, {}
        for f in range(84):
            mem[f] = []
            if f + PD < 84 and not (f < 56 <= f + PD):
                mem[f].append(frag(f + PD))
            if f < 56 and f % 2 == 0 and f // 2 + XP < 28:
                mem[f].append(xl(f // 2 + XP))
            if 27 <= f < 41 and f % 2 == 1:
                mem[f].append(self.stats_loads(sST, CS)[(f - 27) // 2])
            if f % 2 == 0:
                pre[f] = [Touch(vr(RING + 4 * (f % 8)) + ' ' + vr(RING + 4 * ((f + 1) % 8)) + (' ' + vr(X + 4 * (f // 2)) if f < 56 else ''))]
        if L0:
            for i in range(7):
                mem[40 + 2 * i].append(self.rawq(2, i))
        else:
            p(f's_mul_i32 s{sT0}, s{sW}, 7168')
            p(f'v_add_u32 v{vQ}, s{sT0}, v{vA1}')
            for i in range(7):
                mem[3 + 4 * i].append(Ins(f'ds_write_b128 v{vQ}, {ar(224 + 4*i)} offset:{1024*i}', 'wq'))
        for f in (0, 16, 38):
            mem[f] += self.stamp_items(f'k{f}')

        def cs_reads(tau, dst):
            return [f'ds_read_b128 {vr(dst+4*q)}, v{vCSA} offset:{tau*128 + 32*q}' for q in range(4)]
        p.ext(sched([mf(f) for f in range(56)], pre, mem, cs_reads(1, accQ) + cs_reads(0, PK) + self.stats_reduce(CS), 6, start=43))
        self.stamp('kv')

        def epi(acc, cs, P):
            L = []
            for r in range(0, 16, 2):
                L.append(f'v_pk_fma_f32 {vr(acc+r,2)}, {vr(cs+r,2)}, {vr(vMEAN,2)}, {vr(acc+r,2)} op_sel:[0,0,0] op_sel_hi:[1,0,1]')
            for r in range(0, 16, 2):
                L.append(f'v_pk_mul_f32 {vr(acc+r,2)}, {vr(acc+r,2)}, {vr(vMEAN,2)} op_sel:[0,1] op_sel_hi:[1,1]')
                L.append(f'v_cvt_pk_bf16_f32 v{P+r//2}, v{acc+r}, v{acc+r+1}')
            return L

        def pad(P, c6, c7):
            return ['s_mov_b32 exec_lo, 0', f'v_mov_b32 v{P+6}, {c6:#x}', f'v_mov_b32 v{P+7}, {c7:#x}', 's_mov_b64 exec, -1']

        def st(P, o):
            return [Ins(f'buffer_store_dwordx4 {vr(P+4*k)}, v{vL16}, {srd(S_WS)}, s{sKV} offen offset:{o+1024*k} sc1', 'kvst') for k in range(2)]
        t0, t1 = CS, CS + 1
        p.ext(epi(accK, PK, PK) + pad(PK, 0x3f803f80, 0x3f80) + st(PK, 0))
        p.ext(epi(accV, accQ, PV) + pad(PV, 0x3f80, 0) + st(PV, 2048))
        self.stamp('kvs')
        if L0:
            R = ACC
            vcs, vones, t2, t3 = R + 28, R + 29, R + 30, R + 31
            p.ext([f'v_and_b32 v225, 3, v{vL}', 'v_lshlrev_b32 v225, 3, v225', f'v_bfe_u32 v226, v{vL}, 4, 1',
                   'v_lshl_add_u32 v225, v226, 5, v225', f'v_bfe_u32 v226, v{vL}, 2, 2', 'v_lshl_add_u32 v225, v226, 6, v225',
                   f'v_lshrrev_b32 v226, 5, v{vL}', 'v_lshl_add_u32 v225, v226, 8, v225', f'v_add_u32 v225, s{sLQ}, v225',
                   f'v_add_u32 v226, s{sLQ}, v{vL16}', f'v_mov_b32 v{vones}, s{sONES}'])
            self.xform(2, R, vcs, vones)
            p.wait('kvst')
            p.ext(self.flag_sc1(sKF))
            for i in range(28):
                p(f'v_accvgpr_write_b32 a{224+i}, v{R+i}')
            self.cs_partial((2,), vcs, t2, t3)
            p('s_waitcnt lgkmcnt(0)')
            p('s_barrier')
            self.cs_sum((2,), R, t2, t3)
        else:
            p.wait('wq')
            p('s_barrier')
        for f in range(56, 56 + PD):
            p(frag(f))
        side = [f's_lshl_b32 s{sT0}, s{sW}, 12', f's_add_u32 s{sT0}, s{sT0}, {LKV + 8*4096}',
                f'v_add_u32 v{t0}, s{sT0}, v{vL16}',
                f'ds_write_b128 v{t0}, {vr(PK)}', f'ds_write_b128 v{t0}, {vr(PK+4)} offset:1024',
                f'v_and_b32 v{t1}, 31, v{vL}', f'v_lshlrev_b32 v{t1}, 6, v{t1}', f'v_lshrrev_b32 v{t0}, 5, v{vL}',
                f'v_lshl_add_u32 v{t1}, v{t0}, 4, v{t1}', f'v_add_u32 v{t0}, s{sT0}, v{t1}',
                f'ds_write_b128 v{t0}, {vr(PV)} offset:2048', f'ds_write_b128 v{t0}, {vr(PV+4)} offset:{2048+32}',
                f'v_mul_f32 v{vRSTD}, {f32bits(28 ** -0.5 * math.log2(math.e)):#x}, v{vRSTD}'] + cs_reads(2, CS) + self.kv_addr()
        pre2 = {f - 56: v for f, v in pre.items() if f >= 56}
        mem2 = {f - 56: v for f, v in mem.items() if f >= 56}
        if not L0:
            mem2[22].append([Wait(['kvst'])] + self.flag_sc1(sKF))
        qs = sched([mf(f) for f in range(56, 84)], pre2, mem2, side, 6, start=0)
        cut = qs.index(mf(56 + 16)) if L0 else len(qs)
        while not isinstance(qs[cut - 1], (str, Ins, list)):
            cut -= 1
        p.ext(qs[:cut])
        self.stamp('q')
        self.kv_fetch()
        p.ext(qs[cut:])
        QF = 200
        p.ext(epi(accQ, CS, QF))
        p.ext(pad(QF, 0, 0x3f800000))
        if L0:
            p(f's_mov_b32 s{sJFL}, -1')
            self.wqt_publish(32)
        self.pad()
        p('s_barrier')
        self.stamp('p1')

    sKD, sKL, sKFl, sNULL = sO + 11, sO + 13, (sO + 15, 78), 79

    def kv_addr(self):
        sKD, sKL, sKFl, sNULL = self.sKD, self.sKL, self.sKFl, self.sNULL
        L = [f's_mov_b32 s{sNULL}, 0']
        for k in range(2):
            L += [f's_lshl_b32 s{sT0}, s{sW}, 1', f's_add_u32 s{sT0}, s{sT0}, {k}',
                  f's_lshl_b32 s{sKL+k}, s{sT0}, 12', f's_add_u32 s{sKL+k}, s{sKL+k}, {LKV}',
                  f's_lshl_b32 s{sT1}, s{sA}, 2', f's_add_u32 s{sT0}, s{sT0}, s{sT1}',
                  [f's_cmp_lt_u32 s{sT0}, 8', f's_cselect_b32 s{sT1}, {STRIDE}, 0'],
                  f's_sub_u32 s{sT1}, s{sLB}, s{sT1}', f's_and_b32 s{sT0}, s{sT0}, 7',
                  [f's_cmp_lt_i32 s{sT1}, {TEAM0}', f's_cselect_b32 s{sT2}, {1 << k}, 0',
                   f's_cselect_b32 s{sT1}, s{sLB}, s{sT1}', f's_cselect_b32 s{sT0}, s{sTP}, s{sT0}'],
                  f's_or_b32 s{sNULL}, s{sNULL}, s{sT2}', f's_lshl_b32 s{sT2}, s{sJ}, 3', f's_add_u32 s{sT0}, s{sT0}, s{sT2}',
                  f's_lshl_b32 s{sKD+k}, s{sT0}, 12', f's_add_u32 s{sKD+k}, s{sKD+k}, s{sT1}',
                  f's_lshl_b32 s{sT0}, s{sT0}, 7', f's_add_u32 s{sT0}, s{sT0}, s{sT1}', f's_add_u32 s{sKFl[k]}, s{sT0}, {O_FKV}']
        return L

    def kv_fetch(self):
        p = self.p
        t0, t1, Z, NK = 144, 145, 148, 2
        sKD, sKL, sKFl, sNULL = self.sKD, self.sKL, self.sKFl, self.sNULL
        p(f'v_bfe_u32 v{t0}, v{vL}, 1, 1')
        p(f'v_lshlrev_b32 v{t0}, 10, v{t0}')
        p(f'v_and_b32 v{t1}, 1, v{vL}')
        p(f'v_lshl_add_u32 v{t0}, v{t1}, 9, v{t0}')
        p(f'v_lshrrev_b32 v{t1}, 2, v{vL}')
        p(f'v_lshl_add_u32 v{t0}, v{t1}, 4, v{t0}')
        lp, lo = p.newlabel('kvpoll'), p.newlabel('kvpollout')
        self.stamp('w1')
        p('s_waitcnt lgkmcnt(0)')
        p(f's_mov_b32 s{sCNT}, 0')
        p.label(lp)
        for k in range(NK):
            p(f's_load_dwordx2 s[{sPOLL+2*k}:{sPOLL+2*k+1}], s[{S_WSP}:{S_WSP+1}], s{sKFl[k]} glc')
        p(f's_add_u32 s{sCNT}, s{sCNT}, 1')
        p(f's_cmp_gt_u32 s{sCNT}, {POLL_MAX}')
        p(f's_cbranch_scc1 {lo}')
        p('s_waitcnt lgkmcnt(0)')
        for k in range(NK):
            p(f's_cmp_eq_u64 s[{sPOLL+2*k}:{sPOLL+2*k+1}], s[{sF}:{sF+1}]')
            p(f's_cbranch_scc0 {lp}')
        p.label(lo)
        self.stamp('kvf')
        for k in range(NK):
            lnull, lb = p.newlabel('null'), p.newlabel('nullback')
            p(f's_bitcmp1_b32 s{sNULL}, {k}')
            p(f's_cbranch_scc1 {lnull}')
            p(f's_mov_b32 m0, s{sKL+k}')
            p(f's_sub_u32 s{sT5}, s{sKD+k}, 768')
            p(f'buffer_load_dwordx4 v{vL16}, {srd(S_WS)}, s{sKD+k} offen sc1 lds')
            p(f'buffer_load_dwordx4 v{vL16}, {srd(S_WS)}, s{sKD+k} offen offset:1024 sc1 lds')
            p(f'buffer_load_dwordx4 v{t0}, {srd(S_WS)}, s{sKD+k} offen offset:2048 sc1 lds')
            p(f'buffer_load_dwordx4 v{t0}, {srd(S_WS)}, s{sT5} offen offset:3072 sc1 lds')
            p.label(lb)
            self.tail.append((lnull, [
                f'v_add_u32 v{t1}, s{sKL+k}, v{vL16}',
                f'v_mov_b32 v{Z}, 0', f'v_mov_b32 v{Z+1}, 0', f'v_mov_b32 v{Z+2}, 0', f'v_mov_b32 v{Z+3}, 0'] +
                [f'ds_write_b128 v{t1}, {vr(Z)} offset:{o}' for o in (0, 2048, 3072)] +
                ['s_mov_b32 exec_lo, 0', f'v_mov_b32 v{Z+3}, 0xf1490000', 's_mov_b64 exec, -1',
                 f'ds_write_b128 v{t1}, {vr(Z)} offset:1024', f's_branch {lb}']))

    def attn(self):
        p, L0 = self.p, self.L == 0
        KF, ST, MW, MD, OA, QF, PB, VF = 32, 104, 152, 168, 184, 200, 208, 224
        t0, t1 = 104, 105
        t2, t3 = 106, 107
        p(f'v_and_b32 v{t2}, 31, v{vL}')
        p(f'v_lshrrev_b32 v{t3}, 5, v{vL}')
        p(f'v_lshlrev_b32 v{t3}, 2, v{t3}')
        p(f'v_sub_u32 v{t2}, v{t2}, v{t3}')
        p(f'v_mov_b32 v{t3}, {f32bits(-1e30):#x}')
        for r in range(0, 16, 2):
            k0, k1 = 8 * (r // 4) + r % 4, 8 * (r // 4) + r % 4 + 1
            p(f'v_cmp_le_i32 vcc, {k0}, v{t2}')
            p(f'v_cmp_le_i32 s[{sPOLL}:{sPOLL+1}], {k1}, v{t2}')
            p('s_nop 0')
            p(f'v_cndmask_b32_e64 v{MD+r}, v{t3}, 0, vcc')
            p(f'v_cndmask_b32_e64 v{MD+r+1}, v{t3}, 0, s[{sPOLL}:{sPOLL+1}]')
            p(f'v_cndmask_b32_e64 v{MW+r}, 0, v{t3}, vcc')
            p(f'v_cndmask_b32_e64 v{MW+r+1}, 0, v{t3}, s[{sPOLL}:{sPOLL+1}]')
        vKA, vVA = vT, vT + 1
        p(f's_lshl_b32 s{sT0}, s{sW}, 12')
        p(f's_add_u32 s{sT0}, s{sT0}, {LKV}')
        p(f'v_add_u32 v{vKA}, s{sT0}, v{vL16}')
        p(f'v_lshrrev_b32 v{t2}, 5, v{vL}')
        p(f'v_bfe_u32 v{t3}, v{vL}, 2, 2')
        p(f'v_lshl_add_u32 v{t2}, v{t2}, 2, v{t3}')
        p(f'v_lshlrev_b32 v{vVA}, 6, v{t2}')
        p(f'v_bfe_u32 v{t2}, v{vL}, 4, 1')
        p(f'v_lshl_add_u32 v{vVA}, v{t2}, 5, v{vVA}')
        p(f'v_and_b32 v{t2}, 1, v{vL}')
        p(f'v_lshl_add_u32 v{vVA}, v{t2}, 4, v{vVA}')
        p(f'v_bfe_u32 v{t2}, v{vL}, 1, 1')
        p(f'v_lshl_add_u32 v{vVA}, v{t2}, 3, v{vVA}')
        p(f'v_add_u32 v{vVA}, s{sT0}, v{vVA}')
        sOD, sOF, sWO = sO, sO + 1, sO + 2
        p(f's_lshl_b32 s{sT0}, s{sTP}, 4')
        p(f's_add_u32 s{sT0}, s{sT0}, s{sJ}')
        p.ext(self.roff(sOD, sT0, 2048, O_O))
        p.ext(self.off(sOF, sT0, 8, O_FO))
        p(f's_lshl_b32 s{sWO}, s{sCB}, 2')
        p(f's_add_u32 s{sWO}, s{sWO}, s{sW}')
        p(f's_lshl_b32 s{sWO}, s{sWO}, 14')
        p(f's_add_u32 s{sWO}, s{sWO}, {WOT}')
        for g in range(1, 4):
            p(f's_add_u32 s{sWO+g}, s{sWO}, {4096*g}')
        vPT = vT + 12
        p(f'v_lshlrev_b32 v{vPT}, 7, v{vL}')
        p(f'v_add_u32 v{vPT}, s{sOD}, v{vPT}')
        p(f's_lshl_b32 s{sT0}, s{sTP}, 7')
        p(f's_lshl_b32 s{sT1}, s{sRB}, 8')
        p(f's_lshl_b32 s{sT2}, s{sRHO}, 7')
        p(f's_add_u32 s{sT2}, s{sT2}, s{sT1}')
        p(f's_mul_i32 s{sT3}, s{sT2}, 28')
        p(f's_lshl_b32 s{sT4}, s{sCB}, 9')
        p(f's_add_u32 s{sT3}, s{sT3}, s{sT4}')
        p(f's_lshl_b32 s{sT4}, s{sNU}, 8')
        p(f's_add_u32 s{sT3}, s{sT3}, s{sT4}')
        for lane, (r, c) in enumerate([(sT0, O_FO), (sT1, O_FO), (sT1, O_FO + 128), (sT0, O_FX1), (sT2, O_FX1),
                                       (sT3, O_ST1), (sT3, O_ST1 + 128), (sT0, O_FH), (sT1, O_FH), (sT1, O_FH + 128),
                                       (sT0, O_FH + 1024), (sT1, O_FH + 1024), (sT1, O_FH + 1024 + 128)]):
            p(f's_add_u32 s{sT4}, s{r}, {c}')
            p(f's_add_u32 s{sT4}, s{sT4}, s{sLB}')
            p(f'v_writelane_b32 v{vPT}, s{sT4}, {16 + lane}')
        vZ = vT + 8
        p(f's_lshl_b32 s{sT0}, s{sNU}, 10')
        p(f'v_xor_b32 v{vZ}, s{sT0}, v{vL16}')
        p(f'v_xor_b32 v{vZ+1}, 1024, v{vZ}')

        def first():
            l0 = p.newlabel('first')
            p(f's_cmp_lg_u32 s{sW}, 0')
            p(f's_cbranch_scc1 {l0}')
            p.mark('maybe_begin')
            p(f's_lshl_b32 s{sT0}, s{sJ}, 7')
            p(f's_add_u32 s{sT0}, s{sT0}, {F_W1}')
            p(f's_lshl_b32 s{sT2}, s{sCB}, 6')
            p(f's_add_u32 s{sT2}, s{sT2}, {F_WO - 14*8}')
            p(f's_lshl_b32 s{sT3}, s{sTEAM}, 8')
            p(f's_add_u32 s{sT3}, s{sT3}, {WS_PUR - 32*8}')
            p(f'v_add_u32 v{t2}, s{sT0}, v{vL8}')
            p(f'v_min_u32 v{t3}, {21*8}, v{vL8}')
            p(f'v_add_u32 v{t3}, s{sT2}, v{t3}')
            p(f'v_cmp_le_u32 vcc, 14, v{vL}')
            p(f'v_cndmask_b32 v{t2}, v{t2}, v{t3}, vcc')
            p(f'v_add_u32 v{t3}, s{sT3}, v{vL8}')
            p(f'v_cmp_le_u32 vcc, 32, v{vL}')
            p(f'v_cndmask_b32 v{t2}, v{t2}, v{t3}, vcc')
            lp, lo, ls = p.newlabel('pur'), p.newlabel('purout'), p.newlabel('pursleep')
            p(f's_lshl_b32 s{sT0}, s{sCB}, 9')
            p(f's_add_u32 s{sT0}, s{sT0}, {F_W2}')
            p(f's_mov_b32 s{sCNT}, 0')
            p.label(lp)
            p(f'buffer_load_dwordx2 {vr(108,2)}, v{t2}, {srd(S_WS)}, 0 offen sc1')
            p(f'buffer_load_dwordx2 {vr(112,2)}, v{vL8}, {srd(S_WS)}, s{sT0} offen sc1')
            p(f's_add_u32 s{sCNT}, s{sCNT}, 1')
            p(f's_cmp_gt_u32 s{sCNT}, {POLL_MAX}')
            p(f's_cbranch_scc1 {lo}')
            p('s_waitcnt vmcnt(0)')
            p(f'v_xor_b32 v109, s{sF+1}, v109')
            p(f'v_xor_b32 v108, s{sF}, v108')
            p(f'v_and_b32 v110, 0x0fffffff, v109')
            p(f'v_or_b32 v108, v108, v110')
            p(f'v_cmp_ne_u32 vcc, 0, v108')
            p(f's_cbranch_vccnz {ls}')
            p(f'v_cmp_ne_u64 vcc, s[{sF}:{sF+1}], {vr(112,2)}')
            p(f's_cbranch_vccnz {ls}')
            p(f'v_readlane_b32 s{sT1}, v109, 32')
            p(f'v_cmp_ne_u32 vcc, s{sT1}, v109')
            p(f's_cmp_eq_u32 vcc_hi, 0')
            p(f's_cselect_b32 s{sT1}, {0 if os.environ.get("FORCE_IMPURE") else 1}, 0')
            p(f'v_mov_b32 v108, s{sT1}')
            p(f'v_mov_b32 v109, {L_PUR}')
            p('ds_write_b32 v109, v108')
            p.label(lo)
            p.mark('maybe_end')
            p.label(l0)
            self.tail.append((ls, ['s_sleep 8', f's_branch {lp}']))
        if L0:
            first()
        self.pad()
        p('s_waitcnt vmcnt(0) lgkmcnt(0)')
        if L0:
            self.flag_opt(sJFL)
        self.stamp('kvd')
        p('s_barrier')
        self.stamp('A')
        if L0:
            p(f'v_mov_b32 v{t0}, {L_PUR}')
            p(f'ds_read_b32 v{t0}, v{t0}')
            p(f'v_readfirstlane_b32 s{sPURE}, v{t0}')
            p(f's_cmp_eq_u32 s{sPURE}, 0')
            p(f's_cselect_b64 s[{sIMP}:{sIMP+1}], -1, 0')
        p(f'v_lshlrev_b32 v{t0}, 7, v{vL}')
        p(f's_lshl_b32 s{sT0}, s{sCB}, 2')
        p(f's_add_u32 s{sT0}, s{sT0}, s{sRB}')
        p(f's_lshl_b32 s{sT1}, s{sT0}, 14')
        p(f's_lshl_b32 s{sT2}, s{sW}, 12')
        p(f's_add_u32 s{sT1}, s{sT1}, s{sT2}')
        p(f's_add_u32 s{sT1}, s{sT1}, {WOT}')
        p('s_mov_b32 exec_hi, 0')
        p(f'buffer_load_dword a255, v{t0}, {srd(S_WS)}, s{sT1} offen sc1')
        p('s_mov_b64 exec, -1')
        p.ext(self.pub_offsets(O_X1, O_ST1, O_FX1))
        p(f's_sub_u32 s{sT0}, s{sXD}, {29*128}')
        p(f'v_add_u32 v{t1}, s{sT0}, v{t0}')
        p(f'v_cmp_lt_u32 vcc, 28, v{vL}')
        p(f'v_cndmask_b32 v{vPT}, v{vPT}, v{t1}, vcc')
        p.ext(self.setexec(45))
        p(f'buffer_load_dword a255, v{vPT}, {srd(S_WS)}, 0 offen sc1')
        p('s_mov_b64 exec, -1')
        bg = self.w1_dma(0)
        bw = []
        if L0:
            p.ext(self.w2_setup(sO + 7, (vT + 10, vT + 11)))
            bw = self.w2_loads(sO + 7, (vT + 10, vT + 11))

        def kread(t):
            return [f'ds_read_b128 {vr(KF+8*t+4*k)}, v{vKA} offset:{t*4096+k*1024}' for k in range(2)]

        def qk(t):
            s = ST + 16 * (t % 3)
            c = vr(MW, 16) if t == 0 else vr(MD, 16) if t == 8 else '0'
            return [f'{MF32} {vr(s,16)}, {vr(KF+8*t)}, {vr(QF)}, {c}',
                    f'{MF32} {vr(s,16)}, {vr(KF+8*t+4)}, {vr(QF+4)}, {vr(s,16)}']
        vM, vM2 = vT + 2, vT + 3

        def mx(t):
            s = ST + 16 * (t % 3)
            L = []
            for i in range(8):
                d = vM if i % 2 == 0 else vM2
                if t == 0 and i < 2:
                    L.append(f'v_max_f32 v{d}, v{s+2*i}, v{s+2*i+1}')
                else:
                    L.append(f'v_max3_f32 v{d}, v{s+2*i}, v{s+2*i+1}, v{d}')
            return L

        def vread(t):
            d = VF + 8 * (t % 2)
            return [f'ds_read_b64_tr_b16 {vr(d+4*kv+2*jj,2)}, v{vVA} offset:{t*4096+2048+(16*kv+8*jj)*64}'
                    for kv in range(2) for jj in range(2)]
        def popbg(bg=bg):
            L = []
            while bg:
                x = bg.pop(0)
                L.append(x)
                if is_mem(x):
                    break
            return L
        for t in range(4):
            p.ext(kread(t))
        q = qk(0)
        p.ext([q[0]] + kread(4) + [q[1]] + kread(5))
        q = qk(1)
        p.ext([q[0]] + kread(6) + popbg(bw) + [q[1]] + kread(7) + popbg(bw))
        for t in range(9):
            m = mx(t)
            if t + 2 < 9:
                q = qk(t + 2)
                extra = kread(8) if t == 0 else vread(0)[:2] if t == 5 else vread(0)[2:] if t == 6 else []
                if t % 2 == 1:
                    extra = extra + popbg()
                p.ext([q[0]] + extra + popbg(bw) + m[:4] + [q[1]] + popbg(bw) + m[4:])
            else:
                p.ext(m)
        self.stamp('a1')
        a, b2, r1 = vT + 4, vT + 5, vT + 6
        p(f'v_max_f32 v{vM}, v{vM}, v{vM2}')
        p(f'v_mov_b32 v{a}, v{vM}')
        p(f'v_permlane32_swap_b32 v{vM}, v{a}')
        p(f'v_max_f32 v{vM}, v{vM}, v{a}')
        p(f'v_xor_b32 v{vM}, 0x80000000, v{vM}')
        p(f'v_and_b32 v{a}, 0xffff0000, v{vM}')
        p(f'v_sub_f32 v{r1}, v{vM}, v{a}')
        p(f'v_and_b32 v{a}, 0xffff0000, v{r1}')
        p(f'v_sub_f32 v{b2}, v{r1}, v{a}')
        p('s_mov_b32 exec_lo, 0')
        p(f'v_perm_b32 v{QF+6}, v{r1}, v{vM}, s{sPERM}')
        p(f'v_perm_b32 v{QF+7}, 1.0, v{b2}, s{sPERM}')
        p('s_mov_b64 exec, -1')

        def ex(t):
            s = ST + 16 * (t % 3)
            pb = PB + 8 * (t % 2)
            L = []
            for i in range(8):
                L.append(f'v_exp_f32 v{s+2*i}, v{s+2*i}')
                L.append(f'v_exp_f32 v{s+2*i+1}, v{s+2*i+1}')
                if i:
                    L.append(f'v_cvt_pk_bf16_f32 v{pb+i-1}, v{s+2*i-2}, v{s+2*i-1}')
            L.append(f'v_cvt_pk_bf16_f32 v{pb+7}, v{s+14}, v{s+15}')
            return L

        def pv(t):
            d = VF + 8 * (t % 2)
            pb = PB + 8 * (t % 2)
            return [f'{MF32} {vr(OA,16)}, {vr(d)}, {vr(pb)}, {vr(OA,16) if t else 0}',
                    f'{MF32} {vr(OA,16)}, {vr(d+4)}, {vr(pb+4)}, {vr(OA,16)}']

        self.pad()

        def wol(i):
            ks, z = i // 2, i % 2
            return f'buffer_load_dwordx4 {vr(32+4*i)}, v{vZ+z}, {srd(S_WS)}, s{sWO + ks//2} offen offset:{(ks%2)*2048} sc1'
        p.ext(qk(0))
        p.ext(qk(1))
        for t in range(9):
            e = ex(t)
            mf = (pv(t - 1) if t else []) + (qk(t + 2) if t + 2 < 9 else [])
            out = []
            pos = [2, 7, 12, 17]
            for i, x in enumerate(e):
                out.append(x)
                if i in pos and pos.index(i) < len(mf):
                    k = pos.index(i)
                    out.append(mf[k])
                    if t + 1 < 9:
                        if t == 0:
                            out += vread(1)[2 * k:2 * k + 2]
                        elif k in (1, 2):
                            out += vread(t + 1)[2 * (k - 1):2 * (k - 1) + 2]
                        elif t == 7 and k == 1:
                            pass
                    if t < 6 and k in (0, 3) or t == 0:
                        out += popbg()
                    if t < 7:
                        out += popbg(bw) + (popbg(bw) if k % 2 or t == 0 else [])
                    if t >= 7:
                        out += [wol(8 * (t - 7) + 4 * k + q) for q in range(4)]
            if t == 7:
                out = out[:-3] + vread(8)[2:] + out[-3:]
            p.ext(out)
        assert not bg and not bw, (len(bg), len(bw))
        p.ext(pv(8))
        self.stamp('a2')
        p(f'v_mov_b32 v{a}, v{OA+12}')
        p(f'v_mov_b32 v{b2}, v{OA+12}')
        p(f'v_permlane32_swap_b32 v{a}, v{b2}')
        p(f'v_rcp_f32 v{b2}, v{b2}')
        for i in range(8):
            p(f'v_pk_mul_f32 {vr(OA+2*i,2)}, {vr(OA+2*i,2)}, {vr(a,2)} op_sel:[0,1] op_sel_hi:[1,1]')
            p(f'v_cvt_pk_bf16_f32 v{PB+i}, v{OA+2*i}, v{OA+2*i+1}')
            if i % 4 == 3:
                p(f'buffer_store_dwordx4 {vr(PB+i-3)}, v{vL16}, {srd(S_WS)}, s{sOD} offen offset:{(i//4)*1024}', tok='ost')
        self.publish(['ost'], sOF)
        self.stamp('att')

    def reduce_writes(self, ACC):
        return [Ins(f'ds_write_b128 v{vRW+x-1}, {vr(ACC+16*x+4*c)} offset:{c*1024}', 'rw') for x in range(1, 4) for c in range(4)]

    def reduce_finish(self, ACC, TMP):
        p = self.p
        p.wait('rw')
        self.pad()
        p('s_barrier')
        for c in range(4):
            for x in range(3):
                p(f'ds_read_b128 {vr(TMP+16*x+4*c)}, v{vRW+3} offset:{x*4096+c*1024}')
        for c in range(8):
            p(f'v_pk_add_f32 {vr(TMP+2*c,2)}, {vr(TMP+2*c,2)}, {vr(TMP+16+2*c,2)}')
            p(f'v_pk_add_f32 {vr(ACC+2*c,2)}, {vr(ACC+2*c,2)}, {vr(TMP+32+2*c,2)}')
            p(f'v_pk_add_f32 {vr(ACC+2*c,2)}, {vr(ACC+2*c,2)}, {vr(TMP+2*c,2)}')

    def yoffs(self, dst, mul, add):
        L = []
        for y in range(2):
            L += [f's_xor_b32 s{sT0}, s{sRHO}, {y}', f's_lshl_b32 s{sT1}, s{sRB}, 1', f's_add_u32 s{sT0}, s{sT0}, s{sT1}',
                  f's_lshl_b32 s{sT0}, s{sT0}, 2', f's_add_u32 s{sT0}, s{sT0}, s{sW}'] + self.roff(dst + y, sT0, mul, add)
        return L

    def p3(self):
        p, L0 = self.p, self.L == 0
        WO, OF, ACC, RING = 32, 96, 160, 200

        def colsum(part, AC=ACC, RG=RING, T=vT):
            for i in range(4):
                p(f'v_mov_b32 v{T+4+i}, s{sONES}')
            p(f's_lshl_b32 s{sT0}, s{sW}, 10')
            if part == 0:
                p(f'v_add_u32 v{T}, s{sT0}, v{vL16}')
            else:
                p(f's_min_u32 s{sT0}, s{sT0}, 2048')
                p(f'v_add_u32 v{T}, s{sT0}, v{vA1}')
            NRG = 6 if part == 0 else 4
            rd = lambda f: f'ds_read_b128 {vr(RG+4*(f%NRG))}, v{T} offset:{f*(4096, 3072)[part]}'
            for f in range(NRG - 1):
                p(rd(f))
            for f in range(14):
                p(f'{MF16} {vr(AC)}, {vr(T+4)}, {vr(RG+4*(f%NRG))}, {vr(AC) if f else 0}')
                if f + NRG - 1 < 14:
                    p(rd(f + NRG - 1))
            p(f's_lshl_b32 s{sT0}, s{sW}, 6')
            p(f's_add_u32 s{sT0}, s{sT0}, {L_CS1 + 256*part}')
            p(f'v_and_b32 v{T}, 15, v{vL}')
            p(f'v_lshlrev_b32 v{T}, 2, v{T}')
            p(f'v_add_u32 v{T}, s{sT0}, v{T}')
            p(f'ds_write_b32 v{T}, v{AC}')
            p('s_waitcnt lgkmcnt(0)')
        w1d = []
        self.pad()
        p('s_barrier')
        if L0:
            colsum(0)
        ljoin, lidle = p.newlabel('p3join'), p.newlabel('p3idle')
        p(f's_cmp_ge_u32 s{sM}, 28')
        p(f's_cbranch_scc1 {lidle}')
        p.mark('maybe_begin')
        sFO, sY = sO, sO + 2
        p(f's_lshl_b32 s{sT0}, s{sRB}, 3')
        p(f's_add_u32 s{sT0}, s{sT0}, s{sW}')
        p.ext(self.off(sFO, sT0, 32, O_FO))
        p.ext(self.yoffs(sY, 8192, O_O))
        p(f's_add_u32 s{sY+2}, s{sY}, 4096')
        p(f's_add_u32 s{sY+3}, s{sY+1}, 4096')
        self.vpoll(vFLG, f's{sFO}', 8)
        self.stamp('B')

        def ld(ks, y):
            return f'buffer_load_dwordx4 {vr(OF+(ks*2+y)*4)}, v{vL16}, {srd(S_WS)}, s{sY + 2*(ks//4) + y} offen offset:{(ks%4)*1024} sc1'

        def mf(ks, x):
            y, z = x >> 1, x & 1
            c = vr(ACC + 16 * x, 16) if ks else (vr(vRES, 16) if x == 0 else '0')
            return f'{MF32} {vr(ACC+16*x,16)}, {vr(WO+(ks*2+z)*4)}, {vr(OF+(ks*2+y)*4)}, {c}'
        for ks in range(5):
            for y in range(2):
                p(ld(ks, y))
        rest = list(w1d)
        for ks in range(8):
            for x in (1, 2, 3):
                p(mf(ks, x))
                if ks + 5 < 8 and x < 3:
                    p(ld(ks + 5, x - 1))
                elif ks >= 3 and rest:
                    y = rest.pop(0)
                    p.ext([y])
                    while rest and not is_mem(y):
                        y = rest.pop(0)
                        p.ext([y])
        assert not rest
        self.stamp('p3mm')
        p.ext(sched([mf(ks, 0) for ks in range(8)], {}, {}, self.reduce_writes(ACC), 2, start=2))
        self.stamp('p3rw')
        self.reduce_finish(ACC, 32)
        self.stamp('p3rd')
        P = 96
        for i in range(8):
            p(f'v_cvt_pk_bf16_f32 v{P+i}, v{ACC+2*i}, v{ACC+2*i+1}')
        self.x_store(P, vX1A, (0, 512))
        self.publish(['xst'], sXF)
        self.stamp('p3pub')
        p.ext(self.res_unpack(P))
        p.mark('maybe_end')
        p.label(ljoin)
        idle = [f'v_lshlrev_b32 v{vT}, 7, v{vL}', f's_lshl_b32 s{sT0}, s{sCB}, 2', f's_add_u32 s{sT0}, s{sT0}, s{sW}']
        if L0:
            idle += [f's_lshl_b32 s{sT1}, s{sT0}, 7', f's_add_u32 s{sT1}, s{sT1}, {F_W1}'] + self.poll_loop(vL8, f's{sT1}', 14)
        idle += [f's_mul_i32 s{sT1}, s{sT0}, 100352'] + self.prefetch(vT, sT1, W1T + 57344, 43008)
        self.tail.append((lidle, idle + [f's_branch {ljoin}']))
        self.colsum = colsum
        self.stamp('p3')

    def p45(self):
        p, L0 = self.p, self.L == 0
        X, ACC, RING, CS = 32, 144, 200, 224
        sXO, sST, sFX, sH, sHF = sO, sO + 4, sO + 5, sO + 6, sO + 8
        sFH, sST5, sW2 = sO + 9, sO + 10, sO + 11
        sY = [76, 77, 78, 79, sO + 12, sO + 13, sO + 14, sO + 15]
        vTC, vHA, vHB, vZ, vLb, PO = vT, vT + 1, vT + 2, (vT + 3, vT + 13), vT + 12, vT + 4
        p.ext(self.w1_dma(1))
        p.ext(self.xoff(sXO, sTP, 28672, O_X1))
        for g in range(1, 4):
            p(f's_add_u32 s{sXO+g}, s{sXO}, {8192*g}')
        p.ext(self.off(sST, sTP, 3584, O_ST1))
        p.ext(self.off(sFX, sTP, 128, O_FX1))
        p(f's_lshl_b32 s{sT0}, s{sTP}, 4')
        p(f's_add_u32 s{sT0}, s{sT0}, s{sJ}')
        p.ext(self.off(sH, sT0, 7168, O_H))
        p(f's_add_u32 s{sH+1}, s{sH}, 4096')
        p.ext(self.off(sHF, sT0, 8, O_FH))
        p.ext([f'v_lshrrev_b32 v{vCSA}, 4, v{vL}', f'v_lshlrev_b32 v{vCSA}, 4, v{vCSA}', f'v_add_u32 v{vCSA}, {L_CS1}, v{vCSA}',
               f'v_lshrrev_b32 v{vHA}, 5, v{vL}', f'v_lshlrev_b32 v{vHA}, 10, v{vHA}',
               f'v_bfe_u32 v{vHB}, v{vL}, 4, 1', f'v_lshl_add_u32 v{vHA}, v{vHB}, 9, v{vHA}',
               f'v_and_b32 v{vTC}, 15, v{vL}', f'v_lshl_add_u32 v{vHA}, v{vTC}, 4, v{vHA}',
               f'v_lshlrev_b32 v{vHB}, 3, v{vHB}', f'v_lshl_add_u32 v{vHB}, v{vTC}, 4, v{vHB}',
               f'v_lshrrev_b32 v{vTC}, 5, v{vL}', f'v_lshl_add_u32 v{vHB}, v{vTC}, 9, v{vHB}',
               f'v_add_u32 v{vLb}, 4096, v{vL16}'])
        sRBc = sPOLL
        p(f's_min_u32 s{sRBc}, s{sRB}, 3')
        p(f's_lshl_b32 s{sT0}, s{sRBc}, 3')
        p(f's_add_u32 s{sT0}, s{sT0}, s{sW}')
        p.ext(self.off(sFH, sT0, 32, O_FH))
        for y in range(2):
            p.ext([f's_xor_b32 s{sT0}, s{sRHO}, {y}', f's_lshl_b32 s{sT1}, s{sRBc}, 1', f's_add_u32 s{sT0}, s{sT0}, s{sT1}',
                   f's_lshl_b32 s{sT0}, s{sT0}, 2', f's_add_u32 s{sT0}, s{sT0}, s{sW}'] + self.off(sT2, sT0, 28672, O_H))
            for sl in range(4):
                p.ext([f's_add_u32 s{sT0}, {ROT}, {sl}', f's_and_b32 s{sT0}, s{sT0}, 3', f's_mul_i32 s{sT0}, s{sT0}, 7168',
                       f's_add_u32 s{sY[2*sl+y]}, s{sT2}, s{sT0}'])
        p(f's_lshl_b32 s{sT0}, s{sRBc}, 1')
        p(f's_add_u32 s{sT0}, s{sT0}, s{sRHO}')
        p.ext(self.off(sST5, sT0, 3584, O_ST1))
        if L0:
            p.ext(self.pub_offsets(O_XA + LSTRIDE, O_STA + LSTRIDE, O_FXA + LSTRIDE))
            p.ext([f's_lshl_b32 s{sT1}, s{sJ}, 7', f's_add_u32 s{sT1}, s{sT1}, {F_WQ - 14*8}',
                   f'v_mov_b32 v{PO}, s{sFX}', f'v_mov_b32 v{PO+1}, s{sT1}', f'v_cmp_le_u32 vcc, 14, v{vL}',
                   f'v_cndmask_b32 v{PO}, v{PO}, v{PO+1}, vcc', f'v_add_u32 v{PO}, v{PO}, v{vL8}'])
        p(f'v_lshlrev_b32 v{vTC}, 7, v{vL}')
        seq = [(t, s) for s in range(14) for t in range(4)] + [(t, s) for s in range(14) for t in range(4, 7)]

        def frag(f):
            base, off = (vL16, f * 1024) if f < 56 else (vA1, (f - 56) * 1024)
            return f'ds_read_b128 {vr(RING + 4*(f % 6))}, v{base} offset:{off}'

        def mf(f, u):
            t, s = seq[f]
            return f'{MF16} {vr(ACC+8*t+4*u)}, {vr(RING+4*(f%6))}, {vr(X+4*(2*s+u))}, {vr(ACC+8*t+4*u) if s else 0}'

        def xl(i):
            return f'buffer_load_dwordx4 {vr(X+4*i)}, v{(vL16, vLb)[(i//4)%2]}, {srd(S_WS)}, s{sXO + i//8} offen offset:{(i%4)*1024} sc1'

        def cs_reads(tiles):
            return [f'ds_read_b128 {vr(CS+4*(t%4))}, v{vCSA} offset:{t*64}' for t in tiles]
        PD = 4
        for f in range(PD):
            p(frag(f))
        self.pad()
        if L0:
            self.vpoll(PO, '0', 28)
        else:
            self.vpoll(vL8, f's{sFX}', 14)
        self.stamp('C')
        XP = 8
        for i in range(XP):
            p(xl(i))
        mem, pre = {}, {}
        for f in range(98):
            mem[2 * f] = [frag(f + PD)] if f + PD < 98 and not (f < 56 <= f + PD) else []
            mem[2 * f + 1] = []
            if f < 56 and f % 2 == 0 and f // 2 + XP < 28:
                mem[2 * f + 1] = [xl(f // 2 + XP)]
            if 27 <= f < 41 and f % 2 == 1:
                mem[2 * f + 1] = [self.stats_loads(sST, CS)[(f - 27) // 2]]
            if f % 2 == 0:
                tch = vr(RING + 4 * (f % 6)) + ' ' + vr(RING + 4 * ((f + 1) % 6))
                if f < 56 and f % 4 == 0:
                    tch += ' ' + vr(X + 8 * (f // 4), 8)
                pre[2 * f] = [Touch(tch)]
        i = 2 * 41 + 1
        if L0:
            xa = [f'v_add_u32 v{PO}, s{sXD}, v{vTC}', f's_add_u32 s{sT0}, s{sFX}, {LSTRIDE + O_FXA - O_FX1}', f's_add_u32 s{sT1}, s{sXS}, 128']
            for lane, r in ((16, sXS), (17, sT1), (18, sXF), (19, sT0)):
                xa.append(f'v_writelane_b32 v{PO}, s{r}, {lane}')
            mem[i + 2] += xa
            mem[i + 4].append(self.setexec(20) + [f'buffer_load_dword a255, v{PO}, {srd(S_WS)}, 0 offen sc1', 's_mov_b64 exec, -1'])
        for f in (0, 16, 38):
            mem[2 * f + 1] += self.stamp_items(f'g{f}')
        mfs = [mf(f, u) for f in range(98) for u in range(2)]
        side = self.stats_reduce(CS) + [f'v_mov_b32 v{vRSTD}, v{vMEAN}', 's_nop 0', f'v_permlane16_swap_b32 v{vMEAN}, v{vRSTD}']
        p.ext(sched(mfs[:112], pre, mem, side, 2, start=88))
        self.stamp('p4m1')
        self.pad()
        p('s_barrier')
        p.ext(cs_reads([0, 1, 2, 3]))
        self.stamp('p4g1')

        HSC = 'sc1'

        def epi(tiles, tok):
            L = []
            pairs = [tiles[i:i + 2] for i in range(0, len(tiles), 2)]
            n = 0
            for pr in pairs:
                for u in range(2):
                    po = PO + 4 * (n % 2)
                    n += 1
                    for k, t in enumerate(pr):
                        a = ACC + 8 * t + 4 * u
                        for r in (0, 2):
                            L.append(f'v_pk_fma_f32 {vr(a+r,2)}, {vr(CS+4*(t%4)+r,2)}, {vr(vMEAN,2)}, {vr(a+r,2)} op_sel:[0,{u},0] op_sel_hi:[1,{u},1]')
                    for k, t in enumerate(pr):
                        a = ACC + 8 * t + 4 * u
                        for r in range(2):
                            L.append(f'v_cvt_pk_bf16_f32 v{po+2*k+r}, v{a+2*r}, v{a+2*r+1}')
                    for k, t in enumerate(pr):
                        for r in range(2):
                            L.append(f'v_pk_max_i16 v{po+2*k+r}, v{po+2*k+r}, 0')
                    t = pr[0]
                    so, off = (sH, t * 1024) if t < 4 else (sH + 1, (t - 4) * 1024)
                    if len(pr) == 2:
                        L.append(Ins(f'buffer_store_dwordx4 {vr(po)}, v{vHA}, {srd(S_WS)}, s{so} offen offset:{off+u*256} {HSC}', tok))
                    else:
                        L.append(Ins(f'buffer_store_dwordx2 {vr(po,2)}, v{vHB}, {srd(S_WS)}, s{so} offen offset:{off+u*256} {HSC}', tok))
            return L
        for f in range(56, 56 + PD):
            p(frag(f))
        p.ext(epi([0, 1, 2, 3], 'h1'))
        if L0:
            self.colsum(1, AC=144, RG=160, T=vT + 4)
            p('s_barrier')
            for f in range(56, 56 + PD):
                pass
        self.stamp('p4e1')
        HR, AC5, NR, PD5, TAIL = 32, 160, 16, 5, 14
        order = ORDER

        def ld(i, y):
            sl, sg = order[i] // 7, order[i] % 7
            return (f'buffer_load_dwordx4 {vr(HR+((i%NR)*2+y)*4)}, v{(vL16, vLb)[sg//4]}, {srd(S_WS)}, s{sY[2*sl+y]} '
                    f'offen offset:{(sg%4)*1024} sc1')

        def m5(i, x):
            y, z = x >> 1, x & 1
            return f'{MF32} {vr(AC5+16*x,16)}, {ar(order[i]*8+z*4)}, {vr(HR+((i%NR)*2+y)*4)}, {vr(AC5+16*x,16) if i else 0}'
        pre2 = {i - 112: v for i, v in pre.items() if i >= 112}
        mem2 = {i - 112: v for i, v in mem.items() if i >= 112}
        NW2A = 14 if L0 else 0
        mem2[H1POS] = self.publish_items(['h1'], sHF, 0, self.touch(vTC, sH, 0, 32) if PT else ()) + mem2[H1POS]
        mem2[57] += self.peek_issue(vFLG, f's{sFH}', 8)
        mem2[59] += cs_reads([4, 5])
        mem2[61] += cs_reads([6])
        mem2[63] += self.peek_check(vFLG, f's{sFH}', 8)
        for k in range(2 * PD5):
            mem2[65 + 2 * k].append(ld(k // 2, k % 2))
        p.ext(sched(mfs[112:], pre2, mem2, [], 2, start=0))
        self.stamp('p4g2')
        p.ext(epi([4, 5, 6], 'h2'))
        self.stamp('p4')
        lskip, ljoin = p.newlabel('p5skip'), p.newlabel('p5join')
        self.pad()
        p(f's_cmp_ge_u32 s{sM}, 28')
        p(f's_cbranch_scc1 {lskip}')
        idle = ['s_waitcnt vmcnt(0)'] + self.publish_items([], sHF, 1024, self.touch(vTC, sH + 1, 0, 24) if PT else ())
        if L0:
            idle += [f's_lshl_b32 s{sT0}, s{sCB}, 2', f's_add_u32 s{sT0}, s{sT0}, s{sW}', f's_lshl_b32 s{sT1}, s{sT0}, 7',
                     f's_add_u32 s{sT1}, s{sT1}, {F_WQ}'] + self.poll_loop(vL8, f's{sT1}', 14)
            idle += [f's_mul_i32 s{sT1}, s{sT0}, 86016'] + self.prefetch(vTC, sT1, WQT, 57344)
            idle += ['s_waitcnt vmcnt(0)', 's_barrier'] + self.wq_dma((0, 1)) + [f's_branch {ljoin}']
        else:
            idle += ['s_branch L_fin']
        self.tail.append((lskip, idle))
        mfs, mem = [], {}
        w2b = []
        stl = self.stats_loads(sST5, CS)
        for i in range(28):
            xs = (0, 1, 2, 3) if i < 28 - TAIL else (1, 2, 3)
            for n, x in enumerate(xs):
                k = len(mfs)
                mfs.append(m5(i, x))
                mem[k] = []
                if i == H2POS and n == 3:
                    mem[k] += self.publish_items(['h2'], sHF, 1024, self.touch(vTC, sH + 1, 0, 24) if PT else ())
                if i == 8 and n == 3:
                    mem[k] += self.peek_issue(vFLG, f's{sFH}', 8, 1024)
                if i == 11 and n == 0:
                    mem[k] += self.stamp_items('pk0') + self.peek_check(vFLG, f's{sFH}', 8, 1024) + self.stamp_items('pk1')
                if i + PD5 < 28 and n < 2:
                    mem[k].append(ld(i + PD5, n))
                elif w2b and n >= 2:
                    mem[k].append(w2b.pop(0))
                elif i + PD5 >= 28 and stl:
                    mem[k].append(stl.pop(0))
        assert not w2b and not stl
        p.ext(sched(mfs, {}, mem, [], 6))
        self.stamp('p5mm')
        mem = {}
        for i, x in enumerate(self.reduce_writes(AC5)):
            mem.setdefault(2 + i, []).append(x)
        p.ext(sched([m5(i, 0) for i in range(28 - TAIL, 28)], {}, mem, self.stats_reduce(CS), 5, start=0))
        self.stamp('p5rw')
        self.reduce_finish(AC5, 32)
        self.stamp('p5rd')
        P = 96
        for i in range(8):
            p(f'v_pk_fma_f32 {vr(AC5+2*i,2)}, {vr(AC5+2*i,2)}, {vr(vMEAN,2)}, {vr(vRES+2*i,2)} op_sel:[0,1,0] op_sel_hi:[1,1,1]')
            p(f'v_cvt_pk_bf16_f32 v{P+i}, v{AC5+2*i}, v{AC5+2*i+1}')
        if L0:
            self.x_store(P, vL16, (0, 1024))
            wq = self.wq_dma((0, 1))
            p.ext(wq[:9])
            self.publish(['xst'], sXF)
            p.ext(wq[9:])
            self.stamp('p5pub')
            p.ext(self.res_unpack(P))
            p.label(ljoin)
            p(f's_add_u32 s{sLB}, s{sLB}, {LSTRIDE}')
            p('s_waitcnt vmcnt(0) lgkmcnt(0)')
            p('s_barrier')
            return
        p(f'v_and_b32 v{vT+4}, 31, v{vL}')
        p(f'v_mul_u32_u24 v{vT+4}, 896, v{vT+4}')
        p(f'v_lshrrev_b32 v{vT+5}, 5, v{vL}')
        p(f'v_lshl_add_u32 v{vT+4}, v{vT+5}, 4, v{vT+4}')
        for hf in range(2):
            p(f'v_permlane32_swap_b32 v{P+4*hf}, v{P+4*hf+2}')
            p(f'v_permlane32_swap_b32 v{P+4*hf+1}, v{P+4*hf+3}')
            p(f'buffer_store_dwordx4 {vr(P+4*hf)}, v{vT+4}, {srd(S_OUT)}, s{sQOFF} offen offset:{32*hf}')
        p('s_cmp_lg_u32 s2, %d' % (27 * 8 + 7))
        p('s_cbranch_scc1 L_fin')
        p(f's_mov_b32 s{sT0}, {WS_EPOCH}')
        p.ext(self.flag_sc1(sT0))

    def build(self):
        p = self.p
        self.L = 0
        self.prologue()
        for self.L in range(2):
            for ph in ('p1', 'attn', 'p3', 'p45'):
                getattr(self, ph)()
        p.label('L_fin')
        self.stamp('end')
        self.stamp_dump()
        if os.environ.get('CALIB'):
            p.label('L_calib')
            p('s_memrealtime s[96:97]')
            p('s_waitcnt lgkmcnt(0)')
            p('s_sub_u32 s96, s96, s100')
            if os.environ.get('PROBE'):
                p('s_sub_u32 s97, s98, s100')
                p(f's_cmp_ge_u32 s{sM}, 28')
                p('s_cselect_b32 s97, 0, s97')
                p('s_sub_u32 s96, s96, s97')
                p('s_max_i32 s96, s96, 0')
            p(f's_cmp_lt_u32 s96, {int(os.environ["CALIB"])}')
            p('s_cbranch_scc1 L_calib')
        p.label('L_end')
        p('s_endpgm')
        for lab, code in self.tail:
            p.label(lab, reset='all')
            p.ext(code)
        p.label('L_codeend')
        self.emit_walker()
        p.insert_waits()
        probs = p.fix_hazards()
        for x in probs:
            print('branch hazard padded', x, file=sys.stderr)
        mx = p.maxregs()
        head = open(os.path.join(os.path.dirname(__file__), '..', 'cdna_kernels', NAME + '.s.ref')).read().split('\n')
        hdr = [l for l in head if l.startswith(';') and '@launch' not in l]
        out = '\n'.join(hdr) + f'\n; @launch grid=(256,1,1) block=(256,1,1) lds={LDS_BYTES}\n'
        out += '.amdgcn_target "amdgcn-amd-amdhsa--gfx950"\n.text\n'
        out += f'.globl {NAME}_kernel\n.p2align 8\n.type {NAME}_kernel,@function\n{NAME}_kernel:\n'
        out += p.text()
        out += '.fill 64, 4, 0xbf800000\n'
        out += f'''.section .rodata,"a"
.p2align 6
.amdhsa_kernel {NAME}_kernel
  .amdhsa_next_free_vgpr 512
  .amdhsa_next_free_sgpr 102
  .amdhsa_accum_offset 256
  .amdhsa_group_segment_fixed_size 0
  .amdhsa_kernarg_size 72
  .amdhsa_user_sgpr_count 2
  .amdhsa_user_sgpr_kernarg_segment_ptr 1
  .amdhsa_system_sgpr_workgroup_id_x 1
  .amdhsa_float_denorm_mode_32 3
.end_amdhsa_kernel
'''
        print('regs', mx, 'instrs', sum(1 for x in p.items if isinstance(x, Ins)), file=sys.stderr)
        return out


if __name__ == '__main__':
    stop = int(sys.argv[2]) if len(sys.argv) > 2 else None
    k = K(stop if stop and stop > 0 else None, dbg=sys.argv[3].split(',') if len(sys.argv) > 3 else None)
    open(sys.argv[1], 'w').write(k.build())
    if k.dbg:
        open(os.path.join(os.path.dirname(sys.argv[1]), 'stamps.txt'), 'w').write(' '.join(k.stamps))
```

```python
import sys, os, math, struct
sys.path.insert(0, os.path.dirname(__file__))
from asmlib import Prog, Ins, Wait, Mark, Label, Touch

NAME = 'interleave_layers__sliding_block__dense_activation_relu__prompt'

WS_EPOCH = 0
WS_PUR = 0x1000
F_WQ = 0x2000
F_W1 = 0x2800
F_W2 = 0x3000
F_WO = 0x4000
WQT = 0x100000
W1T = 0x250000
WOT = 0x3D8000
W2T = 0x448000
TEAM0 = 0x600000
LSTRIDE = 0x230000
STRIDE = 2 * LSTRIDE
O_KV = 0x000000
O_O = 0x080000
O_X1 = 0x0C0000
O_XA = 0x0F8000
O_ST1 = 0x130000
O_STA = 0x138000
O_FKV = 0x140000
O_FO = 0x144000
O_FX1 = 0x144400
O_FXA = 0x144800
O_FH = 0x145000
O_H = 0x150000
WS_BYTES = TEAM0 + 8 * STRIDE

LKV = 100352
L_CSQ = 149504
L_CS1 = L_CSQ + 512
L_STAMP = 160 * 1024 - 512
L_PUR = L_CS1 + 512 + 1536
L_CSP = L_CS1 + 512
LDS_BYTES = 163840

S_X, S_WQ, S_WO, S_W1, S_W2, S_OUT, S_WS = 8, 12, 16, 20, 24, 28, 32
S_WSP = 36
sTEAM, sM, sA, sJ, sW, sRB, sCB, sLB = 40, 41, 42, 43, 44, 45, 46, 47
sF, sPURE, sLAYER, sTP = 48, 50, 51, 52
sQOFF = 53
sIMP = 54
sPERM, sONES = 56, 57
sRHO, sNU = 58, 59
sT0, sT1, sT2, sT3, sT4, sT5 = 60, 61, 62, 63, 64, 65
sCNT = 66
sTB = 71
sJFL = 67
sXD, sXS, sXF = 68, 69, 70
sPOLL = 72
sRQ, sLQ = 76, 77
sO = 80

vL, vL16, vA1, vL8 = 0, 1, 2, 3
vSTA = 4
vFLG = 5
vRW = 6
vX1A = 10
vCSA = 11
vF = 12
vMEAN, vRSTD = 14, 15
vT = 16
vRES = 240

POLL_MAX = 1 << 16
ROT = {'rb': f's{sRB}', 'team': f's{sTEAM}', '': '0'}[os.environ.get('ROT', '')]
ROT1 = {'a': f's{sA}', 'team': f's{sTEAM}', '': '0'}[os.environ.get('ROT1', '')]
PT = bool(os.environ.get('PT'))
H1POS = int(os.environ.get('H1POS', 19))
H2POS = int(os.environ.get('H2POS', 3))
PK1 = int(os.environ.get('PK1', 57))
PK2 = int(os.environ.get('PK2', 8))
ORDER = [7 * sl + sg for sl in range(4) for sg in range(4)] + [7 * sl + sg for sl in range(4) for sg in range(4, 7)]
MF32 = 'v_mfma_f32_32x32x16_bf16'
MF16 = 'v_mfma_f32_16x16x32_bf16'


def srd(b):
    return f's[{b}:{b+3}]'


def vr(b, n=4):
    return f'v[{b}:{b+n-1}]' if n > 1 else f'v{b}'


def ar(b, n=4):
    return f'a[{b}:{b+n-1}]'


def f32bits(x):
    return struct.unpack('<I', struct.pack('<f', x))[0]


def is_mem(x):
    if isinstance(x, (list, tuple)):
        return any(is_mem(y) for y in x)
    if isinstance(x, (Wait, Touch, Label, Mark)):
        return False
    t = x.text if isinstance(x, Ins) else x if isinstance(x, str) else ''
    return t.startswith('ds_') or t.startswith('buffer_') or t.startswith('global_')


def cost(x):
    if isinstance(x, (list, tuple)):
        return sum(cost(y) for y in x)
    if isinstance(x, (Wait, Touch)):
        return 1
    if isinstance(x, (Label, Mark)):
        return 0
    t = x.text if isinstance(x, Ins) else x
    return 2 if t.startswith('v_exp') or t.startswith('v_rsq') or t.startswith('v_rcp') or t.startswith('v_permlane') else 1


def sched(mfs, pre, mem, side, cap, start=0):
    out = []
    side = list(side)
    for i, m in enumerate(mfs):
        out += pre.get(i, [])
        out.append(m)
        n = 0
        for x in mem.get(i, []):
            out.append(x)
            n += cost(x)
        if pre.get(i + 1):
            n += 1
        valu = False
        if i >= start:
            while side and n + cost(side[0]) <= cap:
                if is_mem(side[0]) and valu:
                    break
                x = side.pop(0)
                if not is_mem(x) and not isinstance(x, (Wait, Touch)):
                    t = x[0] if isinstance(x, (list, tuple)) else x
                    if any((y.text if isinstance(y, Ins) else y).startswith('v_') for y in (x if isinstance(x, (list, tuple)) else [x]) if isinstance(y, (Ins, str))):
                        valu = True
                out.append(x)
                n += cost(x)
            if side and n == 0 and cost(side[0]) > cap:
                out.append(side.pop(0))
    return out + side


class K:
    def __init__(self, stop=None, dbg=False):
        self.p = Prog()
        self.stop = stop
        self.dbg = dbg
        self.stamps = []
        self.tail = []
        self.pads = []

    def stamp(self, name):
        if os.environ.get('PROBE') == f'{name}{self.L}':
            self.p('s_memrealtime s[98:99]')
            self.p('s_waitcnt lgkmcnt(0)')
        if not self.dbg or (name not in self.dbg and name not in ('start', 'end')):
            return
        k = len(self.stamps)
        assert k < 32
        self.stamps.append(name)
        p = self.p
        p('s_memrealtime s[96:97]' if 'RT' in self.dbg else 's_memtime s[96:97]')
        if k == 0:
            p('v_readfirstlane_b32 s100, v0')
            p('s_lshr_b32 s100, s100, 6')
            p('s_lshl_b32 s101, s2, 2')
            p('s_add_u32 s100, s100, s101')
            p('s_lshl_b32 s100, s100, 7')
            p('s_add_u32 s100, s100, 0x40000')
        p('s_waitcnt lgkmcnt(0)')
        if k == 0:
            p('v_accvgpr_write_b32 a253, s96')
            return
        p('v_accvgpr_write_b32 a252, s96')
        p('s_mov_b64 exec, 1')
        p(f'buffer_store_dword a252, off, {srd(S_WS)}, s100 offset:{4*k}')
        p('s_mov_b64 exec, -1')

    def stamp_items(self, name):
        n = len(self.p.items)
        self.stamp(name)
        L = self.p.items[n:]
        del self.p.items[n:]
        return [L] if L else []

    def stamp_dump(self):
        if self.dbg:
            self.p(f'buffer_store_dword a253, off, {srd(S_WS)}, s100')

    def dma(self, srdb, voff, sreg, simm, m0, tok, sc='', n=1):
        mr, mi = m0
        L = [f's_add_u32 m0, s{mr}, {mi}' if mr is not None else f's_mov_b32 m0, {mi}',
             f's_add_u32 s{sT5}, s{sreg}, {simm}']
        for k in range(n):
            L.append(Ins(f'buffer_load_dwordx4 v{voff}, {srd(srdb)}, s{sT5} offen offset:{1024*k} {sc} lds', tok))
        return L

    @staticmethod
    def setexec(nl):
        if nl <= 32:
            return [f's_mov_b64 exec, {(1 << nl) - 1:#x}'] if nl < 32 else ['s_mov_b32 exec_hi, 0']
        return [f's_mov_b32 exec_hi, {(1 << (nl - 32)) - 1:#x}']

    def poll_loop(self, voff, soff, nl, imm=0):
        p = self.p
        lp, lo = p.newlabel('poll'), p.newlabel('pollout')
        return self.setexec(nl) + [f's_mov_b32 s{sCNT}, 0', Label(lp),
                f'buffer_load_dwordx2 {vr(vT + 14, 2)}, v{voff}, {srd(S_WS)}, {soff} offen offset:{imm} sc1',
                f's_add_u32 s{sCNT}, s{sCNT}, 1', f's_cmp_gt_u32 s{sCNT}, {POLL_MAX}', f's_cbranch_scc1 {lo}',
                's_waitcnt vmcnt(0)', f'v_cmp_ne_u64 vcc, s[{sF}:{sF+1}], {vr(vT + 14, 2)}', f's_cbranch_vccnz {lp}',
                Label(lo), 's_mov_b64 exec, -1']

    def vpoll(self, voff, soff, nl, acquire=True):
        p = self.p
        p.ext(self.poll_loop(voff, soff, nl))
        if acquire:
            lslow, lback = p.newlabel('acq'), p.newlabel('acqback')
            p(f's_cmp_lg_u32 s{sPURE}, 0')
            p(f's_cbranch_scc0 {lslow}')
            p.label(lback)
            self.tail.append((lslow, ['buffer_inv sc1', 's_waitcnt vmcnt(0)', f's_branch {lback}']))
        p.mark('drained_vm')

    def peek_issue(self, voff, soff, nl, imm=0):
        return [self.setexec(nl) + [f'buffer_load_dwordx2 {vr(vT + 14, 2)}, v{voff}, {srd(S_WS)}, {soff} offen offset:{imm} sc1',
                                    's_mov_b64 exec, -1']]

    def peek_check(self, voff, soff, nl, imm=0):
        p = self.p
        lslow, lback, lacq = p.newlabel('peek'), p.newlabel('peekback'), p.newlabel('peekacq')
        self.tail.append((lslow, self.poll_loop(voff, soff, nl, imm) +
                          [f's_cmp_lg_u32 s{sPURE}, 0', f's_cbranch_scc1 {lback}', 'buffer_inv sc1', 's_waitcnt vmcnt(0)',
                           f's_branch {lback}']))
        return [[Touch(vr(vT + 14, 2))] + self.setexec(nl) +
                [f'v_cmp_ne_u64 vcc, s[{sF}:{sF+1}], {vr(vT + 14, 2)}', 's_mov_b64 exec, -1',
                 f's_or_b64 vcc, vcc, s[{sIMP}:{sIMP+1}]', f's_cbranch_scc1 {lslow}', Label(lback)]]

    def publish_items(self, toks, soff, imm=0, post=()):
        p = self.p
        lslow, lback = p.newlabel('pubslow'), p.newlabel('pubback')
        self.tail.append((lslow, [
            'buffer_wbl2 sc1', 's_waitcnt vmcnt(0)',
            f'buffer_store_dwordx2 {vr(vF, 2)}, off, {srd(S_WS)}, s{soff} offset:{imm} sc1',
            f's_branch {lback}']))
        return [[Wait(toks), 's_mov_b64 exec, 1', f's_cmp_lg_u32 s{sPURE}, 0', f's_cbranch_scc0 {lslow}',
                 f'buffer_store_dwordx2 {vr(vF, 2)}, off, {srd(S_WS)}, s{soff} offset:{imm}', Label(lback), 's_mov_b64 exec, -1']] + list(post)

    def publish(self, toks, soff, imm=0):
        self.p.ext(self.publish_items(toks, soff, imm))

    def flag_sc1(self, soff):
        return ['s_mov_b64 exec, 1', f'buffer_store_dwordx2 {vr(vF,2)}, off, {srd(S_WS)}, s{soff} sc1', 's_mov_b64 exec, -1']

    def flag_opt(self, soff):
        p = self.p
        l = p.newlabel('noflag')
        p(f's_cmp_eq_u32 s{soff}, -1')
        p(f's_cbranch_scc1 {l}')
        p.mark('maybe_begin')
        p.ext(self.flag_sc1(soff))
        p.mark('maybe_end')
        p.label(l)

    def stats_loads(self, soff, dst):
        return [f'buffer_load_dwordx2 {vr(dst + 2*i, 2)}, v{vSTA}, {srd(S_WS)}, s{soff} offen offset:{256*i} sc1' for i in range(7)]

    def stats_reduce(self, src):
        L = []
        for i in range(1, 7):
            L.append(f'v_add_f32 v{src}, v{src}, v{src+2*i}')
            L.append(f'v_add_f32 v{src+1}, v{src+1}, v{src+2*i+1}')
        s, q, t0, t1 = src, src + 1, src + 2, src + 3
        return L + [
            f'v_mov_b32 v{t0}, v{s}', f'v_mov_b32 v{t1}, v{q}', 's_nop 0',
            f'v_permlane32_swap_b32 v{s}, v{t0}', f'v_permlane32_swap_b32 v{q}, v{t1}',
            f'v_add_f32 v{s}, v{s}, v{t0}', f'v_add_f32 v{q}, v{q}, v{t1}',
            f'v_mul_f32 v{vMEAN}, {f32bits(-1.0/448):#x}, v{s}',
            f'v_mul_f32 v{q}, {f32bits(1.0/448):#x}, v{q}',
            f'v_fma_f32 v{q}, -v{vMEAN}, v{vMEAN}, v{q}',
            f'v_max_f32 v{q}, 0, v{q}',
            f'v_add_f32 v{q}, {f32bits(1e-5):#x}, v{q}',
            f'v_rsq_f32 v{vRSTD}, v{q}',
        ]

    def off(self, dst, idx_reg, mul, add):
        return [f's_mul_i32 s{dst}, s{idx_reg}, {mul}', f's_add_u32 s{dst}, s{dst}, s{sLB}', f's_add_u32 s{dst}, s{dst}, {add}']

    def xoff(self, dst, idx_reg, mul, add):
        return [f's_add_u32 s{sT3}, s{sLB}, {add}', f's_add_u32 s{sT4}, s{sTB}, {O_XA}', f's_cmp_lg_u32 s{sPURE}, 0',
                f's_cselect_b32 s{sT3}, s{sT4}, s{sT3}', f's_mul_i32 s{dst}, s{idx_reg}, {mul}', f's_add_u32 s{dst}, s{dst}, s{sT3}']

    def roff(self, dst, idx_reg, mul, add):
        return [f's_cmp_lg_u32 s{sPURE}, 0', f's_cselect_b32 s{sT3}, s{sTB}, s{sLB}',
                f's_mul_i32 s{dst}, s{idx_reg}, {mul}', f's_add_u32 s{dst}, s{dst}, s{sT3}', f's_add_u32 s{dst}, s{dst}, {add}']

    def pub_offsets(self, xoff, stoff, foff):
        return [f's_lshl_b32 s{sT0}, s{sRB}, 1', f's_add_u32 s{sT0}, s{sT0}, s{sRHO}',
                f's_lshl_b32 s{sT1}, s{sCB}, 1', f's_add_u32 s{sT1}, s{sT1}, s{sNU}',
                f's_mul_i32 s{sT2}, s{sT0}, 14', f's_add_u32 s{sT2}, s{sT2}, s{sT1}'] + \
            self.xoff(sXD, sT2, 2048, xoff) + self.off(sXS, sT2, 256, stoff) + \
            [f's_lshl_b32 s{sT0}, s{sT0}, 4', f's_add_u32 s{sT0}, s{sT0}, s{sT1}'] + self.off(sXF, sT0, 8, foff) + \
            [f's_cmp_ge_u32 s{sM}, 28'] + [f's_cselect_b32 s{r}, {WS_PUR}, s{r}' for r in (sXD, sXS, sXF)]

    def x_store(self, P, va, offs, sc=''):
        p = self.p
        S, Q2, t0, t1 = vT + 6, vT + 7, vT + 8, vT + 9
        for k in range(2):
            p(f'buffer_store_dwordx4 {vr(P+4*k)}, v{va}, {srd(S_WS)}, s{sXD} offen offset:{offs[k]} {sc}', tok='xst')
        p(f'v_mov_b32 v{t0}, s{sONES}')
        p(f'v_dot2_f32_bf16 v{S}, v{P}, v{t0}, 0')
        p(f'v_dot2_f32_bf16 v{Q2}, v{P}, v{P}, 0')
        for i in range(1, 8):
            p(f'v_dot2_f32_bf16 v{S}, v{P+i}, v{t0}, v{S}')
            p(f'v_dot2_f32_bf16 v{Q2}, v{P+i}, v{P+i}, v{Q2}')
        p(f'v_mov_b32 v{t0}, v{S}')
        p(f'v_mov_b32 v{t1}, v{Q2}')
        p(f'v_permlane32_swap_b32 v{S}, v{t0}')
        p(f'v_permlane32_swap_b32 v{Q2}, v{t1}')
        p(f'v_add_f32 v{S}, v{S}, v{t0}')
        p(f'v_add_f32 v{Q2}, v{Q2}, v{t1}')
        p('s_mov_b32 exec_hi, 0')
        p(f'buffer_store_dwordx2 {vr(S,2)}, v{vL8}, {srd(S_WS)}, s{sXS} offen {sc}', tok='xst')
        p('s_mov_b64 exec, -1')

    def res_unpack(self, P):
        L = []
        for q in range(8):
            L.append(f'v_lshlrev_b32 v{vRES+2*q}, 16, v{P+q}')
            L.append(f'v_and_b32 v{vRES+2*q+1}, 0xffff0000, v{P+q}')
        return L

    def prefetch(self, v128, sreg, base, nbytes):
        L = []
        o = 0
        while o < nbytes:
            oo = min(o, nbytes - 8192)
            L += [f's_add_u32 s{sT5}, s{sreg}, {base + oo}', f'buffer_load_dword a255, v{v128}, {srd(S_WS)}, s{sT5} offen sc1']
            o += 8192
        return L

    def touch(self, v128, sreg, imm, nlines):
        L = [f's_add_u32 s{sT5}, s{sreg}, {imm}']
        if nlines < 64:
            L += self.setexec(nlines)
        L.append(f'buffer_load_dword a255, v{v128}, {srd(S_WS)}, s{sT5} offen sc1')
        if nlines < 64:
            L.append('s_mov_b64 exec, -1')
        return [L]

    def wq_dma(self, tiles):
        sg, sl = sPOLL + 2, sPOLL + 3
        L = [f's_mul_i32 s{sg}, s{sJ}, 86016', f's_mul_i32 s{sl}, s{sW}, 7168', f's_add_u32 s{sg}, s{sg}, s{sl}']
        for tau in tiles:
            for o, n in ((0, 4), (4096, 3)):
                d = self.dma(S_WS, vL16, sg, WQT + tau * 28672 + o, (sl, tau * 28672 + o), 'wq', 'sc1', n)
                L += [d[:3]] + d[3:]
        return L

    def w1_dma(self, part):
        sg, sl = sPOLL, sPOLL + 1
        L = []
        if part == 0:
            for hf in range(2):
                L += [f's_and_b32 s{sl}, {ROT1}, 1', f's_xor_b32 s{sl}, s{sl}, {hf}', f's_lshl_b32 s{sg}, s{sW}, 1', f's_add_u32 s{sl}, s{sl}, s{sg}',
                      f's_mul_i32 s{sl}, s{sl}, 7168', f's_mul_i32 s{sg}, s{sJ}, 100352', f's_add_u32 s{sg}, s{sg}, s{sl}']
                for o, n in ((0, 4), (4096, 3)):
                    d = self.dma(S_WS, vL16, sg, W1T + o, (sl, o), 'w1', 'sc1', n)
                    L += [d[:3]] + d[3:]
            return L
        else:
            L += [f's_mul_i32 s{sg}, s{sJ}, 100352', f's_mul_i32 s{sl}, s{sW}, 10240', f's_add_u32 s{sg}, s{sg}, s{sl}']
            groups = [(0, 4), (4096, 4), (8192, 2)]
            base = 57344
        for o, n in groups:
            d = self.dma(S_WS, vL16, sg, W1T + base + o, (sl, base + o), 'w1', 'sc1', n)
            L += [d[:3]] + d[3:]
        if part == 1:
            L += [f's_sub_u32 s{sg}, s{sg}, s{sl}', f's_lshl_b32 s{sl}, s{sNU}, 10', f's_add_u32 s{sg}, s{sg}, s{sl}']
            L.append(self.dma(S_WS, vL16, sg, W1T + 98304, (sl, 98304), 'w1', 'sc1', 1))
        return L

    def w2_setup(self, sbase, vz):
        return [f's_lshl_b32 s{sbase}, s{sCB}, 2', f's_add_u32 s{sbase}, s{sbase}, s{sW}', f's_mul_i32 s{sbase}, s{sbase}, 57344',
                f's_lshl_b32 s{sT1}, s{sNU}, 10', f'v_xor_b32 v{vz[0]}, s{sT1}, v{vL16}', f'v_xor_b32 v{vz[1]}, 1024, v{vz[0]}']

    def w2_loads(self, sbase, vz):
        L = []
        for sl in range(4):
            pre = [f's_add_u32 s{sT3}, {ROT}, {sl}', f's_and_b32 s{sT3}, s{sT3}, 3', f's_mul_i32 s{sT3}, s{sT3}, 14336',
                   f's_add_u32 s{sT3}, s{sT3}, s{sbase}']
            for sg in range(7):
                ks = 7 * sl + sg
                g = pre + [f's_add_u32 s{sT4}, s{sT3}, {W2T + sg*2048}',
                           f'buffer_load_dwordx4 {ar(ks*8)}, v{vz[0]}, {srd(S_WS)}, s{sT4} offen sc1']
                pre = []
                L += [g, f'buffer_load_dwordx4 {ar(ks*8+4)}, v{vz[1]}, {srd(S_WS)}, s{sT4} offen sc1']
        return L

    def lane_consts(self):
        p = self.p
        t0, t1 = vT + 6, vT + 7
        p(f'v_add_u32 v{vA1}, 57344, v{vL16}')
        p(f'v_and_b32 v{vSTA}, 31, v{vL}')
        p(f'v_lshlrev_b32 v{vSTA}, 3, v{vSTA}')
        p(f'v_lshrrev_b32 v{t0}, 5, v{vL}')
        p(f'v_mul_u32_u24 v{t1}, {7*256}, v{t0}')
        p(f'v_add_u32 v{vSTA}, v{vSTA}, v{t1}')
        p(f'v_lshrrev_b32 v{vFLG}, 2, v{vL}')
        p(f'v_lshlrev_b32 v{vFLG}, 7, v{vFLG}')
        p(f'v_and_b32 v{t1}, 3, v{vL}')
        p(f'v_lshl_add_u32 v{vFLG}, v{t1}, 3, v{vFLG}')
        for x in range(1, 4):
            p(f's_xor_b32 s{sT0}, s{sW}, {x}')
            p(f's_mul_i32 s{sT0}, s{sT0}, 12288')
            p(f's_add_u32 s{sT0}, s{sT0}, {LKV + (x-1)*4096}')
            p(f'v_add_u32 v{vRW+x-1}, s{sT0}, v{vL16}')
        p(f's_mul_i32 s{sT0}, s{sW}, 12288')
        p(f's_add_u32 s{sT0}, s{sT0}, {LKV}')
        p(f'v_add_u32 v{vRW+3}, s{sT0}, v{vL16}')
        p(f'v_bfe_u32 v{vX1A}, v{vL}, 4, 1')
        p(f'v_lshlrev_b32 v{vX1A}, 10, v{vX1A}')
        p(f'v_lshl_add_u32 v{vX1A}, v{t0}, 8, v{vX1A}')
        p(f'v_and_b32 v{t1}, 15, v{vL}')
        p(f'v_lshl_add_u32 v{vX1A}, v{t1}, 4, v{vX1A}')

    def pad(self):
        p = self.p
        k = len(self.pads)
        self.pads.append(f'L_pad{k}')
        p(f's_branch L_padskip{k}')
        p.label(f'L_pad{k}')
        p('s_setpc_b64 s[98:99]')
        p.label(f'L_padskip{k}')

    def emit_walker(self):
        L = []
        labs = [f'L_walk{w}' for w in range(4)]
        for w in range(1, 4):
            L += [Ins(f's_cmp_eq_u32 s{sW}, {w}'), Ins(f's_cbranch_scc1 {labs[w]}')]
        for w in range(4):
            if w:
                L.append(Label(labs[w]))
            for x in self.pads[w::4]:
                L.append(Ins(f's_call_b64 s[98:99], {x}'))
            if w < 3:
                L.append(Ins('s_branch L_walkend'))
        L.append(Label('L_walkend'))
        self.p.items[self.walker_at:self.walker_at] = L

    def rawq(self, tau, i):
        return (self.dma(S_WQ, self.vDQ, sRQ, (448, 896, 0)[tau] * 2 + i * 16 * 2688, (sLQ, tau * 28672 + i * 1024), f'rq{tau}{i}'))

    def xform(self, tau, R, vcs, vones, between=None):
        p = self.p

        def fin(i):
            p(f'ds_write_b128 v{self.vWQ}, {vr(R+4*i)} offset:{tau*28672+i*1024}')
            for q in range(4):
                p(f'v_dot2_f32_bf16 v{vcs}, v{R+4*i+q}, v{vones}, {f"v{vcs}" if i or q else 0}')
        for i in range(7):
            p.wait(f'rq{tau}{i}')
            for jj in range(2):
                p(f'ds_read_b64_tr_b16 {vr(R+4*i+2*jj,2)}, v{self.vTQ} offset:{tau*28672+i*1024+jj*512}')
            if between:
                between(i)
            if i >= 1:
                fin(i - 1)
        fin(6)

    def cs_partial(self, taus, vcs, t2, t3):
        p = self.p
        for k, tau in enumerate(taus):
            p(f'v_mov_b32 v{t2}, v{vcs+k}')
            p(f'v_permlane32_swap_b32 v{vcs+k}, v{t2}')
            p(f'v_add_f32 v{vcs+k}, v{vcs+k}, v{t2}')
        p(f'v_and_b32 v{t2}, 31, v{vL}')
        p(f'v_lshlrev_b32 v{t2}, 2, v{t2}')
        p(f's_mul_i32 s{sT0}, s{sW}, 384')
        p(f's_add_u32 s{sT0}, s{sT0}, {L_CSP}')
        p(f'v_add_u32 v{t3}, s{sT0}, v{t2}')
        for k, tau in enumerate(taus):
            p(f'ds_write_b32 v{t3}, v{vcs+k} offset:{tau*128}')

    def cs_sum(self, taus, R, t2, t3):
        p = self.p
        p(f'v_add_u32 v{t3}, {L_CSP}, v{t2}')
        for k, tau in enumerate(taus):
            for w in range(4):
                p(f'ds_read_b32 v{R+4*k+w}, v{t3} offset:{w*384+tau*128}')
        p(f'v_add_u32 v{t3}, {L_CSQ}, v{t2}')
        for k, tau in enumerate(taus):
            r = R + 4 * k
            p(f'v_add_f32 v{r}, v{r}, v{r+1}')
            p(f'v_add_f32 v{r+2}, v{r+2}, v{r+3}')
            p(f'v_add_f32 v{r}, v{r}, v{r+2}')
            p(f'ds_write_b32 v{t3}, v{r} offset:{tau*128}')
        p('s_waitcnt lgkmcnt(0)')

    def prologue(self):
        p = self.p
        t0, t1, t2, t3 = vT, vT + 1, vT + 2, vT + 3
        self.vDQ, self.vTQ, self.vWQ = vDQ, vTQ, vWQ = vT + 10, vT + 11, vT + 12
        p('s_cmp_ge_u32 s2, 256')
        p('s_cbranch_scc1 L_end')
        p(f's_load_dwordx16 s[{sO}:{sO+15}], s[0:1], 0')
        p(f's_load_dwordx2 s[{S_WSP}:{S_WSP+1}], s[0:1], 64')
        p(f's_getpc_b64 s[{sT0}:{sT0+1}]')
        p.label('L_pc')
        p(f'v_lshlrev_b32 v{t2}, 7, v0')
        p(f'global_load_dword a255, v{t2}, s[{sT0}:{sT0+1}]')
        p(f'v_add_u32 v{t2}, 0x8000, v{t2}')
        p(f'v_min_u32 v{t2}, L_codeend-L_pc, v{t2}')
        p(f'global_load_dword a255, v{t2}, s[{sT0}:{sT0+1}]')
        if os.environ.get('CALIB'):
            p('s_memrealtime s[100:101]')
        self.stamp('start')
        p(f'v_lshrrev_b32 v{vT}, 6, v0')
        p(f'v_and_b32 v{vL}, 63, v0')
        p(f'v_readfirstlane_b32 s{sW}, v{vT}')
        p(f's_lshr_b32 s{sM}, s2, 3')
        p(f's_and_b32 s{sTEAM}, s2, 7')
        p(f's_mul_i32 s{sRB}, s{sM}, 37')
        p(f's_lshr_b32 s{sRB}, s{sRB}, 8')
        p(f's_mul_i32 s{sT0}, s{sRB}, 7')
        p(f's_sub_u32 s{sCB}, s{sM}, s{sT0}')
        p(f's_lshr_b32 s{sRHO}, s{sW}, 1')
        p(f's_and_b32 s{sNU}, s{sW}, 1')
        p(f's_lshl_b32 s{sT0}, s{sTEAM}, 2')
        p(f's_add_u32 s{sT0}, s{sT0}, s{sRB}')
        p(f's_lshl_b32 s{sT1}, s{sT0}, 1')
        p(f's_add_u32 s{sT1}, s{sT1}, s{sRHO}')
        p(f's_mul_i32 s{sQOFF}, s{sT1}, {32*896}')
        p(f's_lshl_b32 s{sT1}, s{sCB}, 7')
        p(f's_add_u32 s{sQOFF}, s{sQOFF}, s{sT1}')
        p(f's_lshl_b32 s{sT1}, s{sNU}, 6')
        p(f's_add_u32 s{sQOFF}, s{sQOFF}, s{sT1}')
        vPK, vPQ, vH = vT + 14, vT + 15, vT + 13
        p(f'v_and_b32 v{t3}, 31, v{vL}')
        p(f'v_mul_u32_u24 v{t3}, 896, v{t3}')
        p(f'v_lshrrev_b32 v{vH}, 5, v{vL}')
        p(f'v_lshl_add_u32 v{t3}, v{vH}, 3, v{t3}')
        p(f's_lshl_b32 s{sT2}, s{sM}, 2')
        p(f's_add_u32 s{sT2}, s{sT2}, s{sW}')
        p(f's_mul_i32 s{sT3}, s{sT2}, 49')
        p(f'v_add_u32 v{t2}, s{sT3}, v{vL}')
        p(f'v_mul_u32_u24 v{vPK}, 74899, v{t2}')
        p(f'v_lshrrev_b32 v{vPK}, 20, v{vPK}')
        p(f'v_mul_u32_u24 v{vPK}, 7, v{vPK}')
        p(f'v_add_u32 v{vPK}, v{vPK}, v{t2}')
        p(f'v_lshlrev_b32 v{vPK}, 7, v{vPK}')
        b = sO

        def mksrd(d, src, n):
            p(f's_mov_b32 s{d}, s{src}')
            p(f's_and_b32 s{d+1}, s{src+1}, 0xffff')
            p(f's_mov_b32 s{d+2}, {n}')
            p(f's_mov_b32 s{d+3}, 0x20000')
        mksrd(S_X, b, 1835008)
        mksrd(S_WQ, b + 2, 1204224)
        XR = 96
        for q in range(4):
            p(f'buffer_load_dwordx2 {vr(XR+2*q,2)}, v{t3}, {srd(S_X)}, s{sQOFF} offen offset:{16*q}')
        p('s_mov_b32 exec_hi, 0x1ffff')
        p(f'buffer_load_dword a255, v{vPK}, {srd(S_WQ)}, 0 offen offset:896')
        p('s_mov_b64 exec, -1')
        p(f's_load_dwordx2 s[{sF}:{sF+1}], s[{S_WSP}:{S_WSP+1}], {WS_EPOCH}')
        for (d, src, n) in ((S_WO, b + 4, 401408), (S_W1, b + 8, 1605632),
                            (S_W2, b + 10, 1605632), (S_OUT, b + 12, 1835008), (S_WS, S_WSP, WS_BYTES)):
            mksrd(d, src, n)
        p(f's_mul_i32 s{sT3}, s{sT2}, 25')
        p(f'v_add_u32 v{t2}, s{sT3}, v{vL}')
        p(f'v_mul_u32_u24 v{vPQ}, 149797, v{t2}')
        p(f'v_lshrrev_b32 v{vPQ}, 20, v{vPQ}')
        p(f'v_mul_u32_u24 v{vPQ}, 14, v{vPQ}')
        p(f'v_add_u32 v{vPQ}, v{vPQ}, v{t2}')
        p(f'v_lshlrev_b32 v{vPQ}, 7, v{vPQ}')
        p(f's_and_b32 s{sJ}, s{sM}, 15')
        p(f's_lshr_b32 s{sA}, s{sM}, 4')
        p(f'v_lshrrev_b32 v{t0}, 2, v{vL}')
        p(f'v_and_b32 v{t1}, 3, v{vL}')
        p(f'v_lshlrev_b32 v{t3}, 3, v{t1}')
        p(f'v_lshlrev_b32 v{t1}, 4, v{t1}')
        self.stamp('ka')
        sI, sSTG = sO, sO + 1
        sFL, sDST, sJOB, sDST2 = sJFL, sO + 3, sO + 4, sO + 5

        p(f's_mul_i32 s{sLB}, s{sTEAM}, {STRIDE}')
        p(f's_add_u32 s{sLB}, s{sLB}, {TEAM0}')
        p(f's_mov_b32 s{sTB}, s{sLB}')
        p(f'v_lshlrev_b32 v{vL16}, 4, v{vL}')
        p(f'v_lshlrev_b32 v{vL8}, 3, v{vL}')
        p(f's_mov_b32 s{sONES}, 0x3f803f80')
        p(f's_mov_b32 s{sPURE}, 1')
        p(f's_mov_b64 s[{sIMP}:{sIMP+1}], 0')
        p.ext(self.pub_offsets(O_XA, O_STA, O_FXA))
        vD, vTR, vTR8 = vT + 4, vT + 5, vT + 13
        FR = 32
        p(f's_lshl_b32 s{sI}, s{sTEAM}, 1')
        p(f's_add_u32 s{sI}, s{sI}, s{sA}')
        p(f's_lshl_b32 s{sSTG}, s{sW}, 13')
        p(f's_add_u32 s{sSTG}, s{sSTG}, {LKV}')
        lA = [p.newlabel('jobA') for _ in range(4)]
        p(f's_mov_b32 s{sJOB}, 0')
        p.mark('maybe_begin')
        p(f's_cmp_ge_u32 s{sW}, 2')
        p(f's_cbranch_scc1 {lA[0]}')
        p(f's_cmp_eq_u32 s{sW}, 0')
        p(f's_cbranch_scc1 {lA[2]}')
        p(f's_cmp_ge_u32 s{sI}, 14')
        p(f's_cbranch_scc1 {lA[2]}')
        p(f'v_bfe_u32 v{vD}, v{vL}, 1, 3')
        p(f'v_bfe_u32 v{t2}, v{vL}, 4, 1')
        p(f'v_lshl_add_u32 v{vD}, v{t2}, 4, v{vD}')
        p(f'v_bfe_u32 v{t2}, v{vL}, 5, 1')
        p(f'v_lshl_add_u32 v{vD}, v{t2}, 3, v{vD}')
        p(f'v_mul_u32_u24 v{vD}, 3584, v{vD}')
        p(f'v_and_b32 v{t2}, 1, v{vL}')
        p(f'v_lshl_add_u32 v{vD}, v{t2}, 4, v{vD}')
        p(f's_mul_i32 s{sT0}, s{sI}, {32*3584}')
        p(f's_mul_i32 s{sT1}, s{sJ}, 224')
        p(f's_add_u32 s{sT0}, s{sT0}, s{sT1}')
        for t in range(7):
            p.ext(self.dma(S_W1, vD, sT0, t * 32, (sSTG, t * 1024), 'raw'))
        p(f's_mov_b32 s{sJOB}, 2')
        p('s_waitcnt vmcnt(8)')
        p(f's_branch {lA[3]}')
        p.label(lA[0])
        p(f'v_mul_u32_u24 v{vD}, 896, v{t0}')
        p(f'v_add_u32 v{vD}, v{vD}, v{t1}')
        p(f's_cmp_ge_u32 s{sM}, 28')
        p(f's_cbranch_scc1 {lA[1]}')
        sI2, sSL, sHF = sT2, sT3, sT4
        p(f's_lshl_b32 s{sI2}, s{sTEAM}, 2')
        p(f's_add_u32 s{sI2}, s{sI2}, s{sRB}')
        p(f's_lshr_b32 s{sSL}, s{sI2}, 1')
        p(f's_and_b32 s{sHF}, s{sI2}, 1')
        p(f's_mul_i32 s{sT0}, s{sSL}, {112*896}')
        p(f's_mul_i32 s{sT1}, s{sHF}, {64*896}')
        p(f's_add_u32 s{sT0}, s{sT0}, s{sT1}')
        p(f's_lshl_b32 s{sT1}, s{sCB}, 7')
        p(f's_add_u32 s{sT0}, s{sT0}, s{sT1}')
        p(f's_lshl_b32 s{sT1}, s{sNU}, 6')
        p(f's_add_u32 s{sT0}, s{sT0}, s{sT1}')
        for k in range(4):
            p.ext(self.dma(S_W2, vD, sT0, k * 16 * 896, (sSTG, k * 1024), 'raw'))
        p(f's_add_u32 s{sJOB}, s{sHF}, 3')
        p('s_waitcnt vmcnt(5)')
        p(f's_branch {lA[3]}')
        p.label(lA[1])
        p(f's_cmp_eq_u32 s{sTEAM}, 7')
        p(f's_cbranch_scc1 {lA[2]}')
        p(f's_mul_i32 s{sT0}, s{sCB}, {112*896}')
        p(f's_lshl_b32 s{sT1}, s{sTEAM}, 7')
        p(f's_add_u32 s{sT0}, s{sT0}, s{sT1}')
        p(f's_lshl_b32 s{sT1}, s{sNU}, 6')
        p(f's_add_u32 s{sT0}, s{sT0}, s{sT1}')
        for k in range(8):
            p.ext(self.dma(S_WO, vD, sT0, k * 16 * 896, (sSTG, k * 1024), 'raw'))
        p(f's_mov_b32 s{sJOB}, 5')
        p.label(lA[2])
        p('s_waitcnt vmcnt(1)')
        p.mark('maybe_end')
        p.label(lA[3])
        self.stamp('jA')
        lp0 = p.newlabel('p0skip')
        p(f's_cmp_ge_u32 s{sM}, 28')
        p(f's_cselect_b32 s{sXF}, -1, s{sXF}')
        p(f's_cbranch_scc1 {lp0}')
        p.mark('drained_vm')
        self.x_store(XR, vL16, (0, 1024), 'sc1')
        p.label(lp0)
        p(f's_lshl_b32 s{sTP}, s{sA}, 2')
        p(f's_add_u32 s{sTP}, s{sTP}, s{sW}')
        p('s_mov_b64 exec, 0x1ffffff')
        p(f'buffer_load_dword a255, v{vPQ}, {srd(S_WQ)}, 0 offen')
        p('s_mov_b64 exec, -1')
        self.stamp('x0')
        p(f'v_mul_u32_u24 v{vDQ}, 2688, v{t0}')
        p(f'v_add_u32 v{vDQ}, v{vDQ}, v{t1}')
        p(f's_mul_i32 s{sRQ}, s{sW}, {7*16*2688}')
        p(f's_mul_i32 s{sT1}, s{sJ}, 56')
        p(f's_add_u32 s{sRQ}, s{sRQ}, s{sT1}')
        p(f's_mul_i32 s{sLQ}, s{sW}, 7168')
        p(f'v_bfe_u32 v{t2}, v{vL}, 4, 1')
        p(f'v_lshl_add_u32 v{t2}, v{t2}, 5, v{t3}')
        p(f'v_bfe_u32 v{vTR}, v{vL}, 2, 2')
        p(f'v_lshl_add_u32 v{t2}, v{vTR}, 6, v{t2}')
        p(f'v_lshl_add_u32 v{vTQ}, v{vH}, 8, v{t2}')
        p(f'v_add_u32 v{vTR}, s{sSTG}, v{vTQ}')
        p(f'v_add_u32 v{t2}, s{sSTG}, v{t2}')
        p(f'v_lshl_add_u32 v{vTR8}, v{vH}, 9, v{t2}')
        p(f'v_add_u32 v{vTQ}, s{sLQ}, v{vTQ}')
        p(f'v_add_u32 v{vWQ}, s{sLQ}, v{vL16}')
        p(f's_mov_b32 s{sPERM}, 0x07060302')
        self.lane_consts()
        vCSP = 104
        p(f'v_mov_b32 v{vCSP+3}, s{sONES}')
        p.ext(self.res_unpack(XR))
        p('s_waitcnt lgkmcnt(0)')
        p(f's_add_u32 s{sF}, s{sF}, 1')
        p(f's_addc_u32 s{sF+1}, s{sF+1}, 0')
        p(f'v_mov_b32 v{vF}, s{sF}')
        p(f'v_mov_b32 v{vF+1}, s{sF+1}')
        self.walker_at = len(p.items)
        self.stamp('wk')
        p('s_waitcnt vmcnt(1)')
        p.mark('drained_vm')
        self.stamp('rt1')
        for i in range(4):
            p.ext(self.rawq(0, i))
        self.flag_opt(sXF)

        def finish(nfr, offs):
            L = []
            base = None
            for k in range(nfr):
                hi, lo = offs[k] // 4096 * 4096, offs[k] % 4096
                if hi != base:
                    L.append(f's_add_u32 s{sT5}, s{sDST}, {hi}')
                    base = hi
                L.append(f'buffer_store_dwordx4 {vr(FR+4*k)}, v{vL16}, {srd(S_WS)}, s{sT5} offen offset:{lo} sc1')
            return L
        lB = {k: p.newlabel('jobB') for k in (3, 4, 5, 'join')}
        p(f's_mov_b32 s{sFL}, -1')
        p.mark('maybe_begin')
        p(f's_cmp_eq_u32 s{sJOB}, 0')
        p(f's_cbranch_scc1 {lB["join"]}')
        p(f's_cmp_eq_u32 s{sJOB}, 5')
        p(f's_cbranch_scc1 {lB[5]}')
        p(f's_cmp_ge_u32 s{sJOB}, 3')
        p(f's_cbranch_scc1 {lB[3]}')
        p(f'v_lshl_add_u32 v{vTR}, v{t0}, 5, v{t3}')
        p(f'v_add_u32 v{vTR}, s{sSTG}, v{vTR}')
        for t in range(7):
            for jj in range(2):
                p(f'ds_read_b64_tr_b16 {vr(FR+t*4+2*jj,2)}, v{vTR} offset:{t*1024+jj*512}')
        p(f's_mul_i32 s{sDST}, s{sJ}, 100352')
        p(f's_add_u32 s{sDST}, s{sDST}, {W1T}')
        p(f's_mul_i32 s{sDST2}, s{sI}, 3072')
        p(f's_add_u32 s{sDST2}, s{sDST2}, s{sDST}')
        p(f's_add_u32 s{sDST2}, s{sDST2}, 57344')
        p(f's_lshl_b32 s{sT0}, s{sI}, 12')
        p(f's_add_u32 s{sDST}, s{sDST}, s{sT0}')
        p(f's_lshl_b32 s{sFL}, s{sJ}, 4')
        p(f's_add_u32 s{sFL}, s{sFL}, s{sI}')
        p(f's_lshl_b32 s{sFL}, s{sFL}, 3')
        p(f's_add_u32 s{sFL}, s{sFL}, {F_W1}')
        p.ext(finish(4, [t * 1024 for t in range(4)]))
        for t in range(4, 7):
            p(f'buffer_store_dwordx4 {vr(FR+4*t)}, v{vL16}, {srd(S_WS)}, s{sDST2} offen offset:{(t-4)*1024} sc1')
        p(f's_branch {lB["join"]}')
        p.label(lB[3])
        for sg in range(2):
            for jj in range(2):
                p(f'ds_read_b64_tr_b16 {vr(FR+sg*4+2*jj,2)}, v{vTR} offset:{(16*jj+8*sg)*64}')
        p(f's_lshl_b32 s{sI2}, s{sTEAM}, 2')
        p(f's_add_u32 s{sI2}, s{sI2}, s{sRB}')
        p(f's_lshr_b32 s{sSL}, s{sI2}, 1')
        p(f's_and_b32 s{sHF}, s{sI2}, 1')
        p(f's_mul_i32 s{sDST}, s{sCB}, 229376')
        p(f's_mul_i32 s{sT0}, s{sSL}, 14336')
        p(f's_add_u32 s{sDST}, s{sDST}, s{sT0}')
        p(f's_lshl_b32 s{sT0}, s{sHF}, 13')
        p(f's_add_u32 s{sDST}, s{sDST}, s{sT0}')
        p(f's_lshl_b32 s{sT0}, s{sNU}, 10')
        p(f's_add_u32 s{sDST}, s{sDST}, s{sT0}')
        p(f's_add_u32 s{sDST}, s{sDST}, {W2T}')
        p(f's_lshl_b32 s{sFL}, s{sCB}, 5')
        p(f's_add_u32 s{sFL}, s{sFL}, s{sI2}')
        p(f's_lshl_b32 s{sFL}, s{sFL}, 1')
        p(f's_add_u32 s{sFL}, s{sFL}, s{sNU}')
        p(f's_lshl_b32 s{sFL}, s{sFL}, 3')
        p(f's_add_u32 s{sFL}, s{sFL}, {F_W2}')
        p(f's_cmp_eq_u32 s{sJOB}, 4')
        p(f's_cbranch_scc1 {lB[4]}')
        for sg in range(2, 4):
            for jj in range(2):
                p(f'ds_read_b64_tr_b16 {vr(FR+sg*4+2*jj,2)}, v{vTR} offset:{(32+16*jj+8*(sg%2))*64}')
        p.ext(finish(4, [k * 2048 for k in range(4)]))
        p(f's_branch {lB["join"]}')
        p.label(lB[4])
        for jj in range(2):
            p(f'ds_read_b64_tr_b16 {vr(FR+8+2*jj,2)}, v{vTR8} offset:{(32+4*jj)*64}')
        p('s_waitcnt lgkmcnt(0)')
        p.ext(finish(3, [k * 2048 for k in range(3)]))
        p(f's_branch {lB["join"]}')
        p.label(lB[5])
        for hd in range(4):
            for kp in range(2):
                for jj in range(2):
                    p(f'ds_read_b64_tr_b16 {vr(FR+(hd*2+kp)*4+2*jj,2)}, v{vTR} offset:{(28*hd+16*kp+8*jj)*64}')
        p(f's_lshl_b32 s{sFL}, s{sTEAM}, 2')
        p(f's_add_u32 s{sFL}, s{sFL}, s{sCB}')
        p(f's_lshl_b32 s{sDST}, s{sFL}, 14')
        p(f's_lshl_b32 s{sT0}, s{sNU}, 10')
        p(f's_add_u32 s{sDST}, s{sDST}, s{sT0}')
        p(f's_add_u32 s{sDST}, s{sDST}, {WOT}')
        p(f's_lshl_b32 s{sFL}, s{sFL}, 1')
        p(f's_add_u32 s{sFL}, s{sFL}, s{sNU}')
        p(f's_lshl_b32 s{sFL}, s{sFL}, 3')
        p(f's_add_u32 s{sFL}, s{sFL}, {F_WO}')
        p('s_waitcnt lgkmcnt(0)')
        p('s_mov_b32 exec_lo, 0')
        for hd in range(4):
            p(f'v_mov_b32 v{FR+(hd*2+1)*4+2}, 0')
            p(f'v_mov_b32 v{FR+(hd*2+1)*4+3}, 0')
        p('s_mov_b64 exec, -1')
        p.ext(finish(8, [k * 2048 for k in range(8)]))
        p.mark('maybe_end')
        p.label(lB['join'])
        p(f's_getreg_b32 s{sT0}, hwreg(HW_REG_XCC_ID)')
        p(f's_and_b32 s{sT0}, s{sT0}, 15')
        p(f's_lshl_b32 s{sT0}, s{sT0}, 28')
        p(f's_xor_b32 s{sT0}, s{sT0}, s{sF+1}')
        p(f'v_mov_b32 v{t2}, s{sF}')
        p(f'v_mov_b32 v{t3}, s{sT0}')
        p(f's_lshl_b32 s{sT1}, s{sTEAM}, 8')
        p(f's_lshl_b32 s{sT2}, s{sM}, 3')
        p(f's_add_u32 s{sT1}, s{sT1}, s{sT2}')
        p(f's_add_u32 s{sT1}, s{sT1}, {WS_PUR}')
        lx = p.newlabel('noxcc')
        p(f's_cmp_lg_u32 s{sW}, 0')
        p(f's_cbranch_scc1 {lx}')
        p.mark('maybe_begin')
        p('s_mov_b64 exec, 1')
        p(f'buffer_store_dwordx2 {vr(t2,2)}, off, {srd(S_WS)}, s{sT1} sc1')
        p('s_mov_b64 exec, -1')
        p.mark('maybe_end')
        p.label(lx)
        self.stamp('jB')
        for i in range(4, 7):
            p.ext(self.rawq(0, i))
        for i in range(7):
            p.ext(self.rawq(1, i))
        self.xform(0, 128, vCSP, vCSP + 3)
        self.flag_opt(sFL)
        self.stamp('xf0')
        self.xform(1, 160, vCSP + 1, vCSP + 3)
        self.cs_partial((0, 1), vCSP, t2, t3)
        p('s_waitcnt lgkmcnt(0)')
        p('s_barrier')
        self.stamp('bar')
        self.cs_sum((0, 1), 108, t2, t3)
        self.stamp('pro')

    def wqt_publish(self, R):
        p = self.p
        l = p.newlabel('nowqt')
        p(f's_lshl_b32 s{sT0}, s{sTEAM}, 1')
        p(f's_add_u32 s{sT0}, s{sT0}, s{sA}')
        p(f's_cmp_ge_u32 s{sT0}, 14')
        p(f's_cbranch_scc1 {l}')
        p(f's_cmp_lg_u32 s{sW}, 0')
        p(f's_cbranch_scc1 {l}')
        p.mark('maybe_begin')
        p(f's_lshl_b32 s{sT1}, s{sT0}, 11')
        p(f'v_add_u32 v{R+24}, s{sT1}, v{vL16}')
        for tau in range(2):
            for kp in range(2):
                p(f'ds_read_b128 {vr(R+(tau*2+kp)*4)}, v{R+24} offset:{tau*28672+kp*1024}')
        p(f's_mul_i32 s{sT2}, s{sJ}, 86016')
        p(f's_add_u32 s{sT1}, s{sT1}, s{sT2}')
        for tau in range(2):
            p(f's_add_u32 s{sT2}, s{sT1}, {WQT + tau*28672}')
            for kp in range(2):
                p(f'buffer_store_dwordx4 {vr(R+(tau*2+kp)*4)}, v{vL16}, {srd(S_WS)}, s{sT2} offen offset:{kp*1024} sc1')
        p(f's_lshl_b32 s{sJFL}, s{sJ}, 4')
        p(f's_add_u32 s{sJFL}, s{sJFL}, s{sT0}')
        p(f's_lshl_b32 s{sJFL}, s{sJFL}, 3')
        p(f's_add_u32 s{sJFL}, s{sJFL}, {F_WQ}')
        p.mark('maybe_end')
        p.label(l)

    def p1(self):
        p, L0 = self.p, self.L == 0
        X, ACC, RING, CS = 32, 144, 192, 224
        accK, accV, accQ = ACC, ACC + 16, ACC + 32
        PK, PV = vT, vT + 8
        sXO, sST, sFX, sKV, sKF = sO, sO + 7, sO + 8, sO + 9, sO + 10
        p.ext(self.xoff(sXO, sTP, 28672, O_XA))
        for g in range(1, 7):
            p(f's_add_u32 s{sXO+g}, s{sXO}, {4096*g}')
        p.ext(self.off(sST, sTP, 3584, O_STA))
        p.ext(self.off(sFX, sTP, 128, O_FXA))
        p(f's_lshl_b32 s{sT0}, s{sJ}, 3')
        p(f's_add_u32 s{sT0}, s{sT0}, s{sTP}')
        p.ext(self.off(sKV, sT0, 4096, O_KV))
        p.ext(self.off(sKF, sT0, 128, O_FKV))
        p(f'v_lshrrev_b32 v{vCSA}, 5, v{vL}')
        p(f'v_lshlrev_b32 v{vCSA}, 4, v{vCSA}')
        p(f'v_add_u32 v{vCSA}, {L_CSQ}, v{vCSA}')
        sW2E, sW2F = sO + 11, sO + 12
        vQ = 238
        if L0:
            self.vDQ, self.vTQ, self.vWQ = vQ, 225, 226
            p.ext([f'v_lshrrev_b32 v{vQ}, 2, v{vL}', f'v_mul_u32_u24 v{vQ}, 2688, v{vQ}', f'v_and_b32 v{vQ+1}, 3, v{vL}',
                   f'v_lshl_add_u32 v{vQ}, v{vQ+1}, 4, v{vQ}', f'v_lshlrev_b32 v{vQ+1}, 7, v{vL}'])

        def frag(f):
            if f < 56:
                base, off = vL16, (f % 2) * 28672 + (f // 2) * 1024
            else:
                base, off = vA1, (f - 56) * 1024
            return f'ds_read_b128 {vr(RING + 4*(f % 8))}, v{base} offset:{off}'

        def mf(f):
            acc, s = ((accK, accV)[f % 2], f // 2) if f < 56 else (accQ, f - 56)
            return f'{MF32} {vr(acc,16)}, {vr(RING+4*(f%8))}, {vr(X+4*s)}, {vr(acc,16) if s else 0}'

        def xl(s):
            return f'buffer_load_dwordx4 {vr(X+4*s)}, v{vL16}, {srd(S_WS)}, s{sXO + s//4} offen offset:{(s%4)*1024} sc1'
        PD = 6
        for f in range(PD):
            p(frag(f))
        self.stamp('p5')
        self.pad()
        self.vpoll(vL8, f's{sFX}', 14, acquire=not L0)
        self.stamp('E')
        XP = 8
        for s in range(XP):
            p(xl(s))
        mem, pre = {}, {}
        for f in range(84):
            mem[f] = []
            if f + PD < 84 and not (f < 56 <= f + PD):
                mem[f].append(frag(f + PD))
            if f < 56 and f % 2 == 0 and f // 2 + XP < 28:
                mem[f].append(xl(f // 2 + XP))
            if 27 <= f < 41 and f % 2 == 1:
                mem[f].append(self.stats_loads(sST, CS)[(f - 27) // 2])
            if f % 2 == 0:
                pre[f] = [Touch(vr(RING + 4 * (f % 8)) + ' ' + vr(RING + 4 * ((f + 1) % 8)) + (' ' + vr(X + 4 * (f // 2)) if f < 56 else ''))]
        if L0:
            for i in range(7):
                mem[40 + 2 * i].append(self.rawq(2, i))
        else:
            p(f's_mul_i32 s{sT0}, s{sW}, 7168')
            p(f'v_add_u32 v{vQ}, s{sT0}, v{vA1}')
            for i in range(7):
                mem[3 + 4 * i].append(Ins(f'ds_write_b128 v{vQ}, {ar(224 + 4*i)} offset:{1024*i}', 'wq'))
        for f in (0, 16, 38):
            mem[f] += self.stamp_items(f'k{f}')

        def cs_reads(tau, dst):
            return [f'ds_read_b128 {vr(dst+4*q)}, v{vCSA} offset:{tau*128 + 32*q}' for q in range(4)]
        p.ext(sched([mf(f) for f in range(56)], pre, mem, cs_reads(1, accQ) + cs_reads(0, PK) + self.stats_reduce(CS), 6, start=43))
        self.stamp('kv')

        def epi(acc, cs, P):
            L = []
            for r in range(0, 16, 2):
                L.append(f'v_pk_fma_f32 {vr(acc+r,2)}, {vr(cs+r,2)}, {vr(vMEAN,2)}, {vr(acc+r,2)} op_sel:[0,0,0] op_sel_hi:[1,0,1]')
            for r in range(0, 16, 2):
                L.append(f'v_pk_mul_f32 {vr(acc+r,2)}, {vr(acc+r,2)}, {vr(vMEAN,2)} op_sel:[0,1] op_sel_hi:[1,1]')
                L.append(f'v_cvt_pk_bf16_f32 v{P+r//2}, v{acc+r}, v{acc+r+1}')
            return L

        def pad(P, c6, c7):
            return ['s_mov_b32 exec_lo, 0', f'v_mov_b32 v{P+6}, {c6:#x}', f'v_mov_b32 v{P+7}, {c7:#x}', 's_mov_b64 exec, -1']

        def st(P, o):
            return [Ins(f'buffer_store_dwordx4 {vr(P+4*k)}, v{vL16}, {srd(S_WS)}, s{sKV} offen offset:{o+1024*k} sc1', 'kvst') for k in range(2)]
        t0, t1 = CS, CS + 1
        p.ext(epi(accK, PK, PK) + pad(PK, 0x3f803f80, 0x3f80) + st(PK, 0))
        p.ext(epi(accV, accQ, PV) + pad(PV, 0x3f80, 0) + st(PV, 2048))
        self.stamp('kvs')
        if L0:
            R = ACC
            vcs, vones, t2, t3 = R + 28, R + 29, R + 30, R + 31
            p.ext([f'v_and_b32 v225, 3, v{vL}', 'v_lshlrev_b32 v225, 3, v225', f'v_bfe_u32 v226, v{vL}, 4, 1',
                   'v_lshl_add_u32 v225, v226, 5, v225', f'v_bfe_u32 v226, v{vL}, 2, 2', 'v_lshl_add_u32 v225, v226, 6, v225',
                   f'v_lshrrev_b32 v226, 5, v{vL}', 'v_lshl_add_u32 v225, v226, 8, v225', f'v_add_u32 v225, s{sLQ}, v225',
                   f'v_add_u32 v226, s{sLQ}, v{vL16}', f'v_mov_b32 v{vones}, s{sONES}'])
            self.xform(2, R, vcs, vones)
            p.wait('kvst')
            p.ext(self.flag_sc1(sKF))
            for i in range(28):
                p(f'v_accvgpr_write_b32 a{224+i}, v{R+i}')
            self.cs_partial((2,), vcs, t2, t3)
            p('s_waitcnt lgkmcnt(0)')
            p('s_barrier')
            self.cs_sum((2,), R, t2, t3)
        else:
            p.wait('wq')
            p('s_barrier')
        for f in range(56, 56 + PD):
            p(frag(f))
        side = [f's_lshl_b32 s{sT0}, s{sW}, 12', f's_add_u32 s{sT0}, s{sT0}, {LKV + 8*4096}',
                f'v_add_u32 v{t0}, s{sT0}, v{vL16}',
                f'ds_write_b128 v{t0}, {vr(PK)}', f'ds_write_b128 v{t0}, {vr(PK+4)} offset:1024',
                f'v_and_b32 v{t1}, 31, v{vL}', f'v_lshlrev_b32 v{t1}, 6, v{t1}', f'v_lshrrev_b32 v{t0}, 5, v{vL}',
                f'v_lshl_add_u32 v{t1}, v{t0}, 4, v{t1}', f'v_add_u32 v{t0}, s{sT0}, v{t1}',
                f'ds_write_b128 v{t0}, {vr(PV)} offset:2048', f'ds_write_b128 v{t0}, {vr(PV+4)} offset:{2048+32}',
                f'v_mul_f32 v{vRSTD}, {f32bits(28 ** -0.5 * math.log2(math.e)):#x}, v{vRSTD}'] + cs_reads(2, CS) + self.kv_addr()
        pre2 = {f - 56: v for f, v in pre.items() if f >= 56}
        mem2 = {f - 56: v for f, v in mem.items() if f >= 56}
        if not L0:
            mem2[22].append([Wait(['kvst'])] + self.flag_sc1(sKF))
        qs = sched([mf(f) for f in range(56, 84)], pre2, mem2, side, 6, start=0)
        cut = qs.index(mf(56 + 16)) if L0 else len(qs)
        while not isinstance(qs[cut - 1], (str, Ins, list)):
            cut -= 1
        p.ext(qs[:cut])
        self.stamp('q')
        self.kv_fetch()
        p.ext(qs[cut:])
        QF = 200
        p.ext(epi(accQ, CS, QF))
        p.ext(pad(QF, 0, 0x3f800000))
        if L0:
            p(f's_mov_b32 s{sJFL}, -1')
            self.wqt_publish(32)
        self.pad()
        p('s_barrier')
        self.stamp('p1')

    sKD, sKL, sKFl, sNULL = sO + 11, sO + 13, (sO + 15, 78), 79

    def kv_addr(self):
        sKD, sKL, sKFl, sNULL = self.sKD, self.sKL, self.sKFl, self.sNULL
        L = [f's_mov_b32 s{sNULL}, 0']
        for k in range(2):
            L += [f's_lshl_b32 s{sT0}, s{sW}, 1', f's_add_u32 s{sT0}, s{sT0}, {k}',
                  f's_lshl_b32 s{sKL+k}, s{sT0}, 12', f's_add_u32 s{sKL+k}, s{sKL+k}, {LKV}',
                  f's_lshl_b32 s{sT1}, s{sA}, 2', f's_add_u32 s{sT0}, s{sT0}, s{sT1}',
                  [f's_cmp_lt_u32 s{sT0}, 8', f's_cselect_b32 s{sT1}, {STRIDE}, 0'],
                  f's_sub_u32 s{sT1}, s{sLB}, s{sT1}', f's_and_b32 s{sT0}, s{sT0}, 7',
                  [f's_cmp_lt_i32 s{sT1}, {TEAM0}', f's_cselect_b32 s{sT2}, {1 << k}, 0',
                   f's_cselect_b32 s{sT1}, s{sLB}, s{sT1}', f's_cselect_b32 s{sT0}, s{sTP}, s{sT0}'],
                  f's_or_b32 s{sNULL}, s{sNULL}, s{sT2}', f's_lshl_b32 s{sT2}, s{sJ}, 3', f's_add_u32 s{sT0}, s{sT0}, s{sT2}',
                  f's_lshl_b32 s{sKD+k}, s{sT0}, 12', f's_add_u32 s{sKD+k}, s{sKD+k}, s{sT1}',
                  f's_lshl_b32 s{sT0}, s{sT0}, 7', f's_add_u32 s{sT0}, s{sT0}, s{sT1}', f's_add_u32 s{sKFl[k]}, s{sT0}, {O_FKV}']
        return L

    def kv_fetch(self):
        p = self.p
        t0, t1, Z, NK = 144, 145, 148, 2
        sKD, sKL, sKFl, sNULL = self.sKD, self.sKL, self.sKFl, self.sNULL
        p(f'v_bfe_u32 v{t0}, v{vL}, 1, 1')
        p(f'v_lshlrev_b32 v{t0}, 10, v{t0}')
        p(f'v_and_b32 v{t1}, 1, v{vL}')
        p(f'v_lshl_add_u32 v{t0}, v{t1}, 9, v{t0}')
        p(f'v_lshrrev_b32 v{t1}, 2, v{vL}')
        p(f'v_lshl_add_u32 v{t0}, v{t1}, 4, v{t0}')
        lp, lo = p.newlabel('kvpoll'), p.newlabel('kvpollout')
        self.stamp('w1')
        p('s_waitcnt lgkmcnt(0)')
        p(f's_mov_b32 s{sCNT}, 0')
        p.label(lp)
        for k in range(NK):
            p(f's_load_dwordx2 s[{sPOLL+2*k}:{sPOLL+2*k+1}], s[{S_WSP}:{S_WSP+1}], s{sKFl[k]} glc')
        p(f's_add_u32 s{sCNT}, s{sCNT}, 1')
        p(f's_cmp_gt_u32 s{sCNT}, {POLL_MAX}')
        p(f's_cbranch_scc1 {lo}')
        p('s_waitcnt lgkmcnt(0)')
        for k in range(NK):
            p(f's_cmp_eq_u64 s[{sPOLL+2*k}:{sPOLL+2*k+1}], s[{sF}:{sF+1}]')
            p(f's_cbranch_scc0 {lp}')
        p.label(lo)
        self.stamp('kvf')
        for k in range(NK):
            lnull, lb = p.newlabel('null'), p.newlabel('nullback')
            p(f's_bitcmp1_b32 s{sNULL}, {k}')
            p(f's_cbranch_scc1 {lnull}')
            p(f's_mov_b32 m0, s{sKL+k}')
            p(f's_sub_u32 s{sT5}, s{sKD+k}, 768')
            p(f'buffer_load_dwordx4 v{vL16}, {srd(S_WS)}, s{sKD+k} offen sc1 lds')
            p(f'buffer_load_dwordx4 v{vL16}, {srd(S_WS)}, s{sKD+k} offen offset:1024 sc1 lds')
            p(f'buffer_load_dwordx4 v{t0}, {srd(S_WS)}, s{sKD+k} offen offset:2048 sc1 lds')
            p(f'buffer_load_dwordx4 v{t0}, {srd(S_WS)}, s{sT5} offen offset:3072 sc1 lds')
            p.label(lb)
            self.tail.append((lnull, [
                f'v_add_u32 v{t1}, s{sKL+k}, v{vL16}',
                f'v_mov_b32 v{Z}, 0', f'v_mov_b32 v{Z+1}, 0', f'v_mov_b32 v{Z+2}, 0', f'v_mov_b32 v{Z+3}, 0'] +
                [f'ds_write_b128 v{t1}, {vr(Z)} offset:{o}' for o in (0, 2048, 3072)] +
                ['s_mov_b32 exec_lo, 0', f'v_mov_b32 v{Z+3}, 0xf1490000', 's_mov_b64 exec, -1',
                 f'ds_write_b128 v{t1}, {vr(Z)} offset:1024', f's_branch {lb}']))

    def attn(self):
        p, L0 = self.p, self.L == 0
        KF, ST, MW, MD, OA, QF, PB, VF = 32, 104, 152, 168, 184, 200, 208, 224
        t0, t1 = 104, 105
        t2, t3 = 106, 107
        p(f'v_and_b32 v{t2}, 31, v{vL}')
        p(f'v_lshrrev_b32 v{t3}, 5, v{vL}')
        p(f'v_lshlrev_b32 v{t3}, 2, v{t3}')
        p(f'v_sub_u32 v{t2}, v{t2}, v{t3}')
        p(f'v_mov_b32 v{t3}, {f32bits(-1e30):#x}')
        for r in range(0, 16, 2):
            k0, k1 = 8 * (r // 4) + r % 4, 8 * (r // 4) + r % 4 + 1
            p(f'v_cmp_le_i32 vcc, {k0}, v{t2}')
            p(f'v_cmp_le_i32 s[{sPOLL}:{sPOLL+1}], {k1}, v{t2}')
            p('s_nop 0')
            p(f'v_cndmask_b32_e64 v{MD+r}, v{t3}, 0, vcc')
            p(f'v_cndmask_b32_e64 v{MD+r+1}, v{t3}, 0, s[{sPOLL}:{sPOLL+1}]')
            p(f'v_cndmask_b32_e64 v{MW+r}, 0, v{t3}, vcc')
            p(f'v_cndmask_b32_e64 v{MW+r+1}, 0, v{t3}, s[{sPOLL}:{sPOLL+1}]')
        vKA, vVA = vT, vT + 1
        p(f's_lshl_b32 s{sT0}, s{sW}, 12')
        p(f's_add_u32 s{sT0}, s{sT0}, {LKV}')
        p(f'v_add_u32 v{vKA}, s{sT0}, v{vL16}')
        p(f'v_lshrrev_b32 v{t2}, 5, v{vL}')
        p(f'v_bfe_u32 v{t3}, v{vL}, 2, 2')
        p(f'v_lshl_add_u32 v{t2}, v{t2}, 2, v{t3}')
        p(f'v_lshlrev_b32 v{vVA}, 6, v{t2}')
        p(f'v_bfe_u32 v{t2}, v{vL}, 4, 1')
        p(f'v_lshl_add_u32 v{vVA}, v{t2}, 5, v{vVA}')
        p(f'v_and_b32 v{t2}, 1, v{vL}')
        p(f'v_lshl_add_u32 v{vVA}, v{t2}, 4, v{vVA}')
        p(f'v_bfe_u32 v{t2}, v{vL}, 1, 1')
        p(f'v_lshl_add_u32 v{vVA}, v{t2}, 3, v{vVA}')
        p(f'v_add_u32 v{vVA}, s{sT0}, v{vVA}')
        sOD, sOF, sWO = sO, sO + 1, sO + 2
        p(f's_lshl_b32 s{sT0}, s{sTP}, 4')
        p(f's_add_u32 s{sT0}, s{sT0}, s{sJ}')
        p.ext(self.roff(sOD, sT0, 2048, O_O))
        p.ext(self.off(sOF, sT0, 8, O_FO))
        p(f's_lshl_b32 s{sWO}, s{sCB}, 2')
        p(f's_add_u32 s{sWO}, s{sWO}, s{sW}')
        p(f's_lshl_b32 s{sWO}, s{sWO}, 14')
        p(f's_add_u32 s{sWO}, s{sWO}, {WOT}')
        for g in range(1, 4):
            p(f's_add_u32 s{sWO+g}, s{sWO}, {4096*g}')
        vPT = vT + 12
        p(f'v_lshlrev_b32 v{vPT}, 7, v{vL}')
        p(f'v_add_u32 v{vPT}, s{sOD}, v{vPT}')
        p(f's_lshl_b32 s{sT0}, s{sTP}, 7')
        p(f's_lshl_b32 s{sT1}, s{sRB}, 8')
        p(f's_lshl_b32 s{sT2}, s{sRHO}, 7')
        p(f's_add_u32 s{sT2}, s{sT2}, s{sT1}')
        p(f's_mul_i32 s{sT3}, s{sT2}, 28')
        p(f's_lshl_b32 s{sT4}, s{sCB}, 9')
        p(f's_add_u32 s{sT3}, s{sT3}, s{sT4}')
        p(f's_lshl_b32 s{sT4}, s{sNU}, 8')
        p(f's_add_u32 s{sT3}, s{sT3}, s{sT4}')
        for lane, (r, c) in enumerate([(sT0, O_FO), (sT1, O_FO), (sT1, O_FO + 128), (sT0, O_FX1), (sT2, O_FX1),
                                       (sT3, O_ST1), (sT3, O_ST1 + 128), (sT0, O_FH), (sT1, O_FH), (sT1, O_FH + 128),
                                       (sT0, O_FH + 1024), (sT1, O_FH + 1024), (sT1, O_FH + 1024 + 128)]):
            p(f's_add_u32 s{sT4}, s{r}, {c}')
            p(f's_add_u32 s{sT4}, s{sT4}, s{sLB}')
            p(f'v_writelane_b32 v{vPT}, s{sT4}, {16 + lane}')
        vZ = vT + 8
        p(f's_lshl_b32 s{sT0}, s{sNU}, 10')
        p(f'v_xor_b32 v{vZ}, s{sT0}, v{vL16}')
        p(f'v_xor_b32 v{vZ+1}, 1024, v{vZ}')

        def first():
            l0 = p.newlabel('first')
            p(f's_cmp_lg_u32 s{sW}, 0')
            p(f's_cbranch_scc1 {l0}')
            p.mark('maybe_begin')
            p(f's_lshl_b32 s{sT0}, s{sJ}, 7')
            p(f's_add_u32 s{sT0}, s{sT0}, {F_W1}')
            p(f's_lshl_b32 s{sT2}, s{sCB}, 6')
            p(f's_add_u32 s{sT2}, s{sT2}, {F_WO - 14*8}')
            p(f's_lshl_b32 s{sT3}, s{sTEAM}, 8')
            p(f's_add_u32 s{sT3}, s{sT3}, {WS_PUR - 32*8}')
            p(f'v_add_u32 v{t2}, s{sT0}, v{vL8}')
            p(f'v_min_u32 v{t3}, {21*8}, v{vL8}')
            p(f'v_add_u32 v{t3}, s{sT2}, v{t3}')
            p(f'v_cmp_le_u32 vcc, 14, v{vL}')
            p(f'v_cndmask_b32 v{t2}, v{t2}, v{t3}, vcc')
            p(f'v_add_u32 v{t3}, s{sT3}, v{vL8}')
            p(f'v_cmp_le_u32 vcc, 32, v{vL}')
            p(f'v_cndmask_b32 v{t2}, v{t2}, v{t3}, vcc')
            lp, lo, ls = p.newlabel('pur'), p.newlabel('purout'), p.newlabel('pursleep')
            p(f's_lshl_b32 s{sT0}, s{sCB}, 9')
            p(f's_add_u32 s{sT0}, s{sT0}, {F_W2}')
            p(f's_mov_b32 s{sCNT}, 0')
            p.label(lp)
            p(f'buffer_load_dwordx2 {vr(108,2)}, v{t2}, {srd(S_WS)}, 0 offen sc1')
            p(f'buffer_load_dwordx2 {vr(112,2)}, v{vL8}, {srd(S_WS)}, s{sT0} offen sc1')
            p(f's_add_u32 s{sCNT}, s{sCNT}, 1')
            p(f's_cmp_gt_u32 s{sCNT}, {POLL_MAX}')
            p(f's_cbranch_scc1 {lo}')
            p('s_waitcnt vmcnt(0)')
            p(f'v_xor_b32 v109, s{sF+1}, v109')
            p(f'v_xor_b32 v108, s{sF}, v108')
            p(f'v_and_b32 v110, 0x0fffffff, v109')
            p(f'v_or_b32 v108, v108, v110')
            p(f'v_cmp_ne_u32 vcc, 0, v108')
            p(f's_cbranch_vccnz {ls}')
            p(f'v_cmp_ne_u64 vcc, s[{sF}:{sF+1}], {vr(112,2)}')
            p(f's_cbranch_vccnz {ls}')
            p(f'v_readlane_b32 s{sT1}, v109, 32')
            p(f'v_cmp_ne_u32 vcc, s{sT1}, v109')
            p(f's_cmp_eq_u32 vcc_hi, 0')
            p(f's_cselect_b32 s{sT1}, {0 if os.environ.get("FORCE_IMPURE") else 1}, 0')
            p(f'v_mov_b32 v108, s{sT1}')
            p(f'v_mov_b32 v109, {L_PUR}')
            p('ds_write_b32 v109, v108')
            p.label(lo)
            p.mark('maybe_end')
            p.label(l0)
            self.tail.append((ls, ['s_sleep 8', f's_branch {lp}']))
        if L0:
            first()
        self.pad()
        p('s_waitcnt vmcnt(0) lgkmcnt(0)')
        if L0:
            self.flag_opt(sJFL)
        self.stamp('kvd')
        p('s_barrier')
        self.stamp('A')
        if L0:
            p(f'v_mov_b32 v{t0}, {L_PUR}')
            p(f'ds_read_b32 v{t0}, v{t0}')
            p(f'v_readfirstlane_b32 s{sPURE}, v{t0}')
            p(f's_cmp_eq_u32 s{sPURE}, 0')
            p(f's_cselect_b64 s[{sIMP}:{sIMP+1}], -1, 0')
        p(f'v_lshlrev_b32 v{t0}, 7, v{vL}')
        p(f's_lshl_b32 s{sT0}, s{sCB}, 2')
        p(f's_add_u32 s{sT0}, s{sT0}, s{sRB}')
        p(f's_lshl_b32 s{sT1}, s{sT0}, 14')
        p(f's_lshl_b32 s{sT2}, s{sW}, 12')
        p(f's_add_u32 s{sT1}, s{sT1}, s{sT2}')
        p(f's_add_u32 s{sT1}, s{sT1}, {WOT}')
        p('s_mov_b32 exec_hi, 0')
        p(f'buffer_load_dword a255, v{t0}, {srd(S_WS)}, s{sT1} offen sc1')
        p('s_mov_b64 exec, -1')
        p.ext(self.pub_offsets(O_X1, O_ST1, O_FX1))
        p(f's_sub_u32 s{sT0}, s{sXD}, {29*128}')
        p(f'v_add_u32 v{t1}, s{sT0}, v{t0}')
        p(f'v_cmp_lt_u32 vcc, 28, v{vL}')
        p(f'v_cndmask_b32 v{vPT}, v{vPT}, v{t1}, vcc')
        p.ext(self.setexec(45))
        p(f'buffer_load_dword a255, v{vPT}, {srd(S_WS)}, 0 offen sc1')
        p('s_mov_b64 exec, -1')
        bg = self.w1_dma(0)
        bw = []
        if L0:
            p.ext(self.w2_setup(sO + 7, (vT + 10, vT + 11)))
            bw = self.w2_loads(sO + 7, (vT + 10, vT + 11))

        def kread(t):
            return [f'ds_read_b128 {vr(KF+8*t+4*k)}, v{vKA} offset:{t*4096+k*1024}' for k in range(2)]

        def qk(t):
            s = ST + 16 * (t % 3)
            c = vr(MW, 16) if t == 0 else vr(MD, 16) if t == 8 else '0'
            return [f'{MF32} {vr(s,16)}, {vr(KF+8*t)}, {vr(QF)}, {c}',
                    f'{MF32} {vr(s,16)}, {vr(KF+8*t+4)}, {vr(QF+4)}, {vr(s,16)}']
        vM, vM2 = vT + 2, vT + 3

        def mx(t):
            s = ST + 16 * (t % 3)
            L = []
            for i in range(8):
                d = vM if i % 2 == 0 else vM2
                if t == 0 and i < 2:
                    L.append(f'v_max_f32 v{d}, v{s+2*i}, v{s+2*i+1}')
                else:
                    L.append(f'v_max3_f32 v{d}, v{s+2*i}, v{s+2*i+1}, v{d}')
            return L

        def vread(t):
            d = VF + 8 * (t % 2)
            return [f'ds_read_b64_tr_b16 {vr(d+4*kv+2*jj,2)}, v{vVA} offset:{t*4096+2048+(16*kv+8*jj)*64}'
                    for kv in range(2) for jj in range(2)]
        def popbg(bg=bg):
            L = []
            while bg:
                x = bg.pop(0)
                L.append(x)
                if is_mem(x):
                    break
            return L
        for t in range(4):
            p.ext(kread(t))
        q = qk(0)
        p.ext([q[0]] + kread(4) + [q[1]] + kread(5))
        q = qk(1)
        p.ext([q[0]] + kread(6) + popbg(bw) + [q[1]] + kread(7) + popbg(bw))
        for t in range(9):
            m = mx(t)
            if t + 2 < 9:
                q = qk(t + 2)
                extra = kread(8) if t == 0 else vread(0)[:2] if t == 5 else vread(0)[2:] if t == 6 else []
                if t % 2 == 1:
                    extra = extra + popbg()
                p.ext([q[0]] + extra + popbg(bw) + m[:4] + [q[1]] + popbg(bw) + m[4:])
            else:
                p.ext(m)
        self.stamp('a1')
        a, b2, r1 = vT + 4, vT + 5, vT + 6
        p(f'v_max_f32 v{vM}, v{vM}, v{vM2}')
        p(f'v_mov_b32 v{a}, v{vM}')
        p(f'v_permlane32_swap_b32 v{vM}, v{a}')
        p(f'v_max_f32 v{vM}, v{vM}, v{a}')
        p(f'v_xor_b32 v{vM}, 0x80000000, v{vM}')
        p(f'v_and_b32 v{a}, 0xffff0000, v{vM}')
        p(f'v_sub_f32 v{r1}, v{vM}, v{a}')
        p(f'v_and_b32 v{a}, 0xffff0000, v{r1}')
        p(f'v_sub_f32 v{b2}, v{r1}, v{a}')
        p('s_mov_b32 exec_lo, 0')
        p(f'v_perm_b32 v{QF+6}, v{r1}, v{vM}, s{sPERM}')
        p(f'v_perm_b32 v{QF+7}, 1.0, v{b2}, s{sPERM}')
        p('s_mov_b64 exec, -1')

        def ex(t):
            s = ST + 16 * (t % 3)
            pb = PB + 8 * (t % 2)
            L = []
            for i in range(8):
                L.append(f'v_exp_f32 v{s+2*i}, v{s+2*i}')
                L.append(f'v_exp_f32 v{s+2*i+1}, v{s+2*i+1}')
                if i:
                    L.append(f'v_cvt_pk_bf16_f32 v{pb+i-1}, v{s+2*i-2}, v{s+2*i-1}')
            L.append(f'v_cvt_pk_bf16_f32 v{pb+7}, v{s+14}, v{s+15}')
            return L

        def pv(t):
            d = VF + 8 * (t % 2)
            pb = PB + 8 * (t % 2)
            return [f'{MF32} {vr(OA,16)}, {vr(d)}, {vr(pb)}, {vr(OA,16) if t else 0}',
                    f'{MF32} {vr(OA,16)}, {vr(d+4)}, {vr(pb+4)}, {vr(OA,16)}']

        self.pad()

        def wol(i):
            ks, z = i // 2, i % 2
            return f'buffer_load_dwordx4 {vr(32+4*i)}, v{vZ+z}, {srd(S_WS)}, s{sWO + ks//2} offen offset:{(ks%2)*2048} sc1'
        p.ext(qk(0))
        p.ext(qk(1))
        for t in range(9):
            e = ex(t)
            mf = (pv(t - 1) if t else []) + (qk(t + 2) if t + 2 < 9 else [])
            out = []
            pos = [2, 7, 12, 17]
            for i, x in enumerate(e):
                out.append(x)
                if i in pos and pos.index(i) < len(mf):
                    k = pos.index(i)
                    out.append(mf[k])
                    if t + 1 < 9:
                        if t == 0:
                            out += vread(1)[2 * k:2 * k + 2]
                        elif k in (1, 2):
                            out += vread(t + 1)[2 * (k - 1):2 * (k - 1) + 2]
                        elif t == 7 and k == 1:
                            pass
                    if t < 6 and k in (0, 3) or t == 0:
                        out += popbg()
                    if t < 7:
                        out += popbg(bw) + (popbg(bw) if k % 2 or t == 0 else [])
                    if t >= 7:
                        out += [wol(8 * (t - 7) + 4 * k + q) for q in range(4)]
            if t == 7:
                out = out[:-3] + vread(8)[2:] + out[-3:]
            p.ext(out)
        assert not bg and not bw, (len(bg), len(bw))
        p.ext(pv(8))
        self.stamp('a2')
        p(f'v_mov_b32 v{a}, v{OA+12}')
        p(f'v_mov_b32 v{b2}, v{OA+12}')
        p(f'v_permlane32_swap_b32 v{a}, v{b2}')
        p(f'v_rcp_f32 v{b2}, v{b2}')
        for i in range(8):
            p(f'v_pk_mul_f32 {vr(OA+2*i,2)}, {vr(OA+2*i,2)}, {vr(a,2)} op_sel:[0,1] op_sel_hi:[1,1]')
            p(f'v_cvt_pk_bf16_f32 v{PB+i}, v{OA+2*i}, v{OA+2*i+1}')
            if i % 4 == 3:
                p(f'buffer_store_dwordx4 {vr(PB+i-3)}, v{vL16}, {srd(S_WS)}, s{sOD} offen offset:{(i//4)*1024}', tok='ost')
        self.publish(['ost'], sOF)
        self.stamp('att')

    def reduce_writes(self, ACC):
        return [Ins(f'ds_write_b128 v{vRW+x-1}, {vr(ACC+16*x+4*c)} offset:{c*1024}', 'rw') for x in range(1, 4) for c in range(4)]

    def reduce_finish(self, ACC, TMP):
        p = self.p
        p.wait('rw')
        self.pad()
        p('s_barrier')
        for c in range(4):
            for x in range(3):
                p(f'ds_read_b128 {vr(TMP+16*x+4*c)}, v{vRW+3} offset:{x*4096+c*1024}')
        for c in range(8):
            p(f'v_pk_add_f32 {vr(TMP+2*c,2)}, {vr(TMP+2*c,2)}, {vr(TMP+16+2*c,2)}')
            p(f'v_pk_add_f32 {vr(ACC+2*c,2)}, {vr(ACC+2*c,2)}, {vr(TMP+32+2*c,2)}')
            p(f'v_pk_add_f32 {vr(ACC+2*c,2)}, {vr(ACC+2*c,2)}, {vr(TMP+2*c,2)}')

    def yoffs(self, dst, mul, add):
        L = []
        for y in range(2):
            L += [f's_xor_b32 s{sT0}, s{sRHO}, {y}', f's_lshl_b32 s{sT1}, s{sRB}, 1', f's_add_u32 s{sT0}, s{sT0}, s{sT1}',
                  f's_lshl_b32 s{sT0}, s{sT0}, 2', f's_add_u32 s{sT0}, s{sT0}, s{sW}'] + self.roff(dst + y, sT0, mul, add)
        return L

    def p3(self):
        p, L0 = self.p, self.L == 0
        WO, OF, ACC, RING = 32, 96, 160, 200

        def colsum(part, AC=ACC, RG=RING, T=vT):
            for i in range(4):
                p(f'v_mov_b32 v{T+4+i}, s{sONES}')
            p(f's_lshl_b32 s{sT0}, s{sW}, 10')
            if part == 0:
                p(f'v_add_u32 v{T}, s{sT0}, v{vL16}')
            else:
                p(f's_min_u32 s{sT0}, s{sT0}, 2048')
                p(f'v_add_u32 v{T}, s{sT0}, v{vA1}')
            NRG = 6 if part == 0 else 4
            rd = lambda f: f'ds_read_b128 {vr(RG+4*(f%NRG))}, v{T} offset:{f*(4096, 3072)[part]}'
            for f in range(NRG - 1):
                p(rd(f))
            for f in range(14):
                p(f'{MF16} {vr(AC)}, {vr(T+4)}, {vr(RG+4*(f%NRG))}, {vr(AC) if f else 0}')
                if f + NRG - 1 < 14:
                    p(rd(f + NRG - 1))
            p(f's_lshl_b32 s{sT0}, s{sW}, 6')
            p(f's_add_u32 s{sT0}, s{sT0}, {L_CS1 + 256*part}')
            p(f'v_and_b32 v{T}, 15, v{vL}')
            p(f'v_lshlrev_b32 v{T}, 2, v{T}')
            p(f'v_add_u32 v{T}, s{sT0}, v{T}')
            p(f'ds_write_b32 v{T}, v{AC}')
            p('s_waitcnt lgkmcnt(0)')
        w1d = []
        self.pad()
        p('s_barrier')
        if L0:
            colsum(0)
        ljoin, lidle = p.newlabel('p3join'), p.newlabel('p3idle')
        p(f's_cmp_ge_u32 s{sM}, 28')
        p(f's_cbranch_scc1 {lidle}')
        p.mark('maybe_begin')
        sFO, sY = sO, sO + 2
        p(f's_lshl_b32 s{sT0}, s{sRB}, 3')
        p(f's_add_u32 s{sT0}, s{sT0}, s{sW}')
        p.ext(self.off(sFO, sT0, 32, O_FO))
        p.ext(self.yoffs(sY, 8192, O_O))
        p(f's_add_u32 s{sY+2}, s{sY}, 4096')
        p(f's_add_u32 s{sY+3}, s{sY+1}, 4096')
        self.vpoll(vFLG, f's{sFO}', 8)
        self.stamp('B')

        def ld(ks, y):
            return f'buffer_load_dwordx4 {vr(OF+(ks*2+y)*4)}, v{vL16}, {srd(S_WS)}, s{sY + 2*(ks//4) + y} offen offset:{(ks%4)*1024} sc1'

        def mf(ks, x):
            y, z = x >> 1, x & 1
            c = vr(ACC + 16 * x, 16) if ks else (vr(vRES, 16) if x == 0 else '0')
            return f'{MF32} {vr(ACC+16*x,16)}, {vr(WO+(ks*2+z)*4)}, {vr(OF+(ks*2+y)*4)}, {c}'
        for ks in range(5):
            for y in range(2):
                p(ld(ks, y))
        rest = list(w1d)
        for ks in range(8):
            for x in (1, 2, 3):
                p(mf(ks, x))
                if ks + 5 < 8 and x < 3:
                    p(ld(ks + 5, x - 1))
                elif ks >= 3 and rest:
                    y = rest.pop(0)
                    p.ext([y])
                    while rest and not is_mem(y):
                        y = rest.pop(0)
                        p.ext([y])
        assert not rest
        self.stamp('p3mm')
        p.ext(sched([mf(ks, 0) for ks in range(8)], {}, {}, self.reduce_writes(ACC), 2, start=2))
        self.stamp('p3rw')
        self.reduce_finish(ACC, 32)
        self.stamp('p3rd')
        P = 96
        for i in range(8):
            p(f'v_cvt_pk_bf16_f32 v{P+i}, v{ACC+2*i}, v{ACC+2*i+1}')
        self.x_store(P, vX1A, (0, 512))
        self.publish(['xst'], sXF)
        self.stamp('p3pub')
        p.ext(self.res_unpack(P))
        p.mark('maybe_end')
        p.label(ljoin)
        idle = [f'v_lshlrev_b32 v{vT}, 7, v{vL}', f's_lshl_b32 s{sT0}, s{sCB}, 2', f's_add_u32 s{sT0}, s{sT0}, s{sW}']
        if L0:
            idle += [f's_lshl_b32 s{sT1}, s{sT0}, 7', f's_add_u32 s{sT1}, s{sT1}, {F_W1}'] + self.poll_loop(vL8, f's{sT1}', 14)
        idle += [f's_mul_i32 s{sT1}, s{sT0}, 100352'] + self.prefetch(vT, sT1, W1T + 57344, 43008)
        self.tail.append((lidle, idle + [f's_branch {ljoin}']))
        self.colsum = colsum
        self.stamp('p3')

    def p45(self):
        p, L0 = self.p, self.L == 0
        X, ACC, RING, CS = 32, 144, 200, 224
        sXO, sST, sFX, sH, sHF = sO, sO + 4, sO + 5, sO + 6, sO + 8
        sFH, sST5, sW2 = sO + 9, sO + 10, sO + 11
        sY = [76, 77, 78, 79, sO + 12, sO + 13, sO + 14, sO + 15]
        vTC, vHA, vHB, vZ, vLb, PO = vT, vT + 1, vT + 2, (vT + 3, vT + 13), vT + 12, vT + 4
        p.ext(self.w1_dma(1))
        p.ext(self.xoff(sXO, sTP, 28672, O_X1))
        for g in range(1, 4):
            p(f's_add_u32 s{sXO+g}, s{sXO}, {8192*g}')
        p.ext(self.off(sST, sTP, 3584, O_ST1))
        p.ext(self.off(sFX, sTP, 128, O_FX1))
        p(f's_lshl_b32 s{sT0}, s{sTP}, 4')
        p(f's_add_u32 s{sT0}, s{sT0}, s{sJ}')
        p.ext(self.off(sH, sT0, 7168, O_H))
        p(f's_add_u32 s{sH+1}, s{sH}, 4096')
        p.ext(self.off(sHF, sT0, 8, O_FH))
        p.ext([f'v_lshrrev_b32 v{vCSA}, 4, v{vL}', f'v_lshlrev_b32 v{vCSA}, 4, v{vCSA}', f'v_add_u32 v{vCSA}, {L_CS1}, v{vCSA}',
               f'v_lshrrev_b32 v{vHA}, 5, v{vL}', f'v_lshlrev_b32 v{vHA}, 10, v{vHA}',
               f'v_bfe_u32 v{vHB}, v{vL}, 4, 1', f'v_lshl_add_u32 v{vHA}, v{vHB}, 9, v{vHA}',
               f'v_and_b32 v{vTC}, 15, v{vL}', f'v_lshl_add_u32 v{vHA}, v{vTC}, 4, v{vHA}',
               f'v_lshlrev_b32 v{vHB}, 3, v{vHB}', f'v_lshl_add_u32 v{vHB}, v{vTC}, 4, v{vHB}',
               f'v_lshrrev_b32 v{vTC}, 5, v{vL}', f'v_lshl_add_u32 v{vHB}, v{vTC}, 9, v{vHB}',
               f'v_add_u32 v{vLb}, 4096, v{vL16}'])
        sRBc = sPOLL
        p(f's_min_u32 s{sRBc}, s{sRB}, 3')
        p(f's_lshl_b32 s{sT0}, s{sRBc}, 3')
        p(f's_add_u32 s{sT0}, s{sT0}, s{sW}')
        p.ext(self.off(sFH, sT0, 32, O_FH))
        for y in range(2):
            p.ext([f's_xor_b32 s{sT0}, s{sRHO}, {y}', f's_lshl_b32 s{sT1}, s{sRBc}, 1', f's_add_u32 s{sT0}, s{sT0}, s{sT1}',
                   f's_lshl_b32 s{sT0}, s{sT0}, 2', f's_add_u32 s{sT0}, s{sT0}, s{sW}'] + self.off(sT2, sT0, 28672, O_H))
            for sl in range(4):
                p.ext([f's_add_u32 s{sT0}, {ROT}, {sl}', f's_and_b32 s{sT0}, s{sT0}, 3', f's_mul_i32 s{sT0}, s{sT0}, 7168',
                       f's_add_u32 s{sY[2*sl+y]}, s{sT2}, s{sT0}'])
        p(f's_lshl_b32 s{sT0}, s{sRBc}, 1')
        p(f's_add_u32 s{sT0}, s{sT0}, s{sRHO}')
        p.ext(self.off(sST5, sT0, 3584, O_ST1))
        if L0:
            p.ext(self.pub_offsets(O_XA + LSTRIDE, O_STA + LSTRIDE, O_FXA + LSTRIDE))
            p.ext([f's_lshl_b32 s{sT1}, s{sJ}, 7', f's_add_u32 s{sT1}, s{sT1}, {F_WQ - 14*8}',
                   f'v_mov_b32 v{PO}, s{sFX}', f'v_mov_b32 v{PO+1}, s{sT1}', f'v_cmp_le_u32 vcc, 14, v{vL}',
                   f'v_cndmask_b32 v{PO}, v{PO}, v{PO+1}, vcc', f'v_add_u32 v{PO}, v{PO}, v{vL8}'])
        p(f'v_lshlrev_b32 v{vTC}, 7, v{vL}')
        seq = [(t, s) for s in range(14) for t in range(4)] + [(t, s) for s in range(14) for t in range(4, 7)]

        def frag(f):
            base, off = (vL16, f * 1024) if f < 56 else (vA1, (f - 56) * 1024)
            return f'ds_read_b128 {vr(RING + 4*(f % 6))}, v{base} offset:{off}'

        def mf(f, u):
            t, s = seq[f]
            return f'{MF16} {vr(ACC+8*t+4*u)}, {vr(RING+4*(f%6))}, {vr(X+4*(2*s+u))}, {vr(ACC+8*t+4*u) if s else 0}'

        def xl(i):
            return f'buffer_load_dwordx4 {vr(X+4*i)}, v{(vL16, vLb)[(i//4)%2]}, {srd(S_WS)}, s{sXO + i//8} offen offset:{(i%4)*1024} sc1'

        def cs_reads(tiles):
            return [f'ds_read_b128 {vr(CS+4*(t%4))}, v{vCSA} offset:{t*64}' for t in tiles]
        PD = 4
        for f in range(PD):
            p(frag(f))
        self.pad()
        if L0:
            self.vpoll(PO, '0', 28)
        else:
            self.vpoll(vL8, f's{sFX}', 14)
        self.stamp('C')
        XP = 8
        for i in range(XP):
            p(xl(i))
        mem, pre = {}, {}
        for f in range(98):
            mem[2 * f] = [frag(f + PD)] if f + PD < 98 and not (f < 56 <= f + PD) else []
            mem[2 * f + 1] = []
            if f < 56 and f % 2 == 0 and f // 2 + XP < 28:
                mem[2 * f + 1] = [xl(f // 2 + XP)]
            if 27 <= f < 41 and f % 2 == 1:
                mem[2 * f + 1] = [self.stats_loads(sST, CS)[(f - 27) // 2]]
            if f % 2 == 0:
                tch = vr(RING + 4 * (f % 6)) + ' ' + vr(RING + 4 * ((f + 1) % 6))
                if f < 56 and f % 4 == 0:
                    tch += ' ' + vr(X + 8 * (f // 4), 8)
                pre[2 * f] = [Touch(tch)]
        i = 2 * 41 + 1
        if L0:
            xa = [f'v_add_u32 v{PO}, s{sXD}, v{vTC}', f's_add_u32 s{sT0}, s{sFX}, {LSTRIDE + O_FXA - O_FX1}', f's_add_u32 s{sT1}, s{sXS}, 128']
            for lane, r in ((16, sXS), (17, sT1), (18, sXF), (19, sT0)):
                xa.append(f'v_writelane_b32 v{PO}, s{r}, {lane}')
            mem[i + 2] += xa
            mem[i + 4].append(self.setexec(20) + [f'buffer_load_dword a255, v{PO}, {srd(S_WS)}, 0 offen sc1', 's_mov_b64 exec, -1'])
        for f in (0, 16, 38):
            mem[2 * f + 1] += self.stamp_items(f'g{f}')
        mfs = [mf(f, u) for f in range(98) for u in range(2)]
        side = self.stats_reduce(CS) + [f'v_mov_b32 v{vRSTD}, v{vMEAN}', 's_nop 0', f'v_permlane16_swap_b32 v{vMEAN}, v{vRSTD}']
        p.ext(sched(mfs[:112], pre, mem, side, 2, start=88))
        self.stamp('p4m1')
        self.pad()
        p('s_barrier')
        p.ext(cs_reads([0, 1, 2, 3]))
        self.stamp('p4g1')

        HSC = 'sc1'

        def epi(tiles, tok):
            L = []
            pairs = [tiles[i:i + 2] for i in range(0, len(tiles), 2)]
            n = 0
            for pr in pairs:
                for u in range(2):
                    po = PO + 4 * (n % 2)
                    n += 1
                    for k, t in enumerate(pr):
                        a = ACC + 8 * t + 4 * u
                        for r in (0, 2):
                            L.append(f'v_pk_fma_f32 {vr(a+r,2)}, {vr(CS+4*(t%4)+r,2)}, {vr(vMEAN,2)}, {vr(a+r,2)} op_sel:[0,{u},0] op_sel_hi:[1,{u},1]')
                    for k, t in enumerate(pr):
                        a = ACC + 8 * t + 4 * u
                        for r in range(2):
                            L.append(f'v_cvt_pk_bf16_f32 v{po+2*k+r}, v{a+2*r}, v{a+2*r+1}')
                    for k, t in enumerate(pr):
                        for r in range(2):
                            L.append(f'v_pk_max_i16 v{po+2*k+r}, v{po+2*k+r}, 0')
                    t = pr[0]
                    so, off = (sH, t * 1024) if t < 4 else (sH + 1, (t - 4) * 1024)
                    if len(pr) == 2:
                        L.append(Ins(f'buffer_store_dwordx4 {vr(po)}, v{vHA}, {srd(S_WS)}, s{so} offen offset:{off+u*256} {HSC}', tok))
                    else:
                        L.append(Ins(f'buffer_store_dwordx2 {vr(po,2)}, v{vHB}, {srd(S_WS)}, s{so} offen offset:{off+u*256} {HSC}', tok))
            return L
        for f in range(56, 56 + PD):
            p(frag(f))
        p.ext(epi([0, 1, 2, 3], 'h1'))
        if L0:
            self.colsum(1, AC=144, RG=160, T=vT + 4)
            p('s_barrier')
            for f in range(56, 56 + PD):
                pass
        self.stamp('p4e1')
        HR, AC5, NR, PD5, TAIL = 32, 160, 16, 5, 14
        order = ORDER

        def ld(i, y):
            sl, sg = order[i] // 7, order[i] % 7
            return (f'buffer_load_dwordx4 {vr(HR+((i%NR)*2+y)*4)}, v{(vL16, vLb)[sg//4]}, {srd(S_WS)}, s{sY[2*sl+y]} '
                    f'offen offset:{(sg%4)*1024} sc1')

        def m5(i, x):
            y, z = x >> 1, x & 1
            return f'{MF32} {vr(AC5+16*x,16)}, {ar(order[i]*8+z*4)}, {vr(HR+((i%NR)*2+y)*4)}, {vr(AC5+16*x,16) if i else 0}'
        pre2 = {i - 112: v for i, v in pre.items() if i >= 112}
        mem2 = {i - 112: v for i, v in mem.items() if i >= 112}
        NW2A = 14 if L0 else 0
        mem2[H1POS] = self.publish_items(['h1'], sHF, 0, self.touch(vTC, sH, 0, 32) if PT else ()) + mem2[H1POS]
        mem2[59] += cs_reads([4, 5])
        mem2[61] += cs_reads([6])
        e2 = epi([4, 5, 6], 'h2')
        if PK1 < 64:
            mem2[PK1] += self.peek_issue(vFLG, f's{sFH}', 8)
            mem2[63] += self.peek_check(vFLG, f's{sFH}', 8)
            for k in range(2 * PD5):
                mem2[65 + 2 * k].append(ld(k // 2, k % 2))
        else:
            mem2[PK1] += self.peek_issue(vFLG, f's{sFH}', 8)
            first_store = next(i for i, x in enumerate(e2) if is_mem(x))
            e2 = e2[:first_store] + self.peek_check(vFLG, f's{sFH}', 8) + [ld(k // 2, k % 2) for k in range(2 * PD5)] + e2[first_store:]
        p.ext(sched(mfs[112:], pre2, mem2, [], 2, start=0))
        self.stamp('p4g2')
        p.ext(e2)
        self.stamp('p4')
        lskip, ljoin = p.newlabel('p5skip'), p.newlabel('p5join')
        self.pad()
        p(f's_cmp_ge_u32 s{sM}, 28')
        p(f's_cbranch_scc1 {lskip}')
        idle = ['s_waitcnt vmcnt(0)'] + self.publish_items([], sHF, 1024, self.touch(vTC, sH + 1, 0, 24) if PT else ())
        if L0:
            idle += [f's_lshl_b32 s{sT0}, s{sCB}, 2', f's_add_u32 s{sT0}, s{sT0}, s{sW}', f's_lshl_b32 s{sT1}, s{sT0}, 7',
                     f's_add_u32 s{sT1}, s{sT1}, {F_WQ}'] + self.poll_loop(vL8, f's{sT1}', 14)
            idle += [f's_mul_i32 s{sT1}, s{sT0}, 86016'] + self.prefetch(vTC, sT1, WQT, 57344)
            idle += ['s_waitcnt vmcnt(0)', 's_barrier'] + self.wq_dma((0, 1)) + [f's_branch {ljoin}']
        else:
            idle += ['s_branch L_fin']
        self.tail.append((lskip, idle))
        mfs, mem = [], {}
        w2b = []
        stl = self.stats_loads(sST5, CS)
        for i in range(28):
            xs = (0, 1, 2, 3) if i < 28 - TAIL else (1, 2, 3)
            for n, x in enumerate(xs):
                k = len(mfs)
                mfs.append(m5(i, x))
                mem[k] = []
                if i == H2POS and n == 3:
                    mem[k] += self.publish_items(['h2'], sHF, 1024, self.touch(vTC, sH + 1, 0, 24) if PT else ())
                if i == PK2 and n == 3:
                    mem[k] += self.peek_issue(vFLG, f's{sFH}', 8, 1024)
                if i == 11 and n == 0:
                    mem[k] += self.stamp_items('pk0') + self.peek_check(vFLG, f's{sFH}', 8, 1024) + self.stamp_items('pk1')
                if i + PD5 < 28 and n < 2:
                    mem[k].append(ld(i + PD5, n))
                elif w2b and n >= 2:
                    mem[k].append(w2b.pop(0))
                elif i + PD5 >= 28 and stl:
                    mem[k].append(stl.pop(0))
        assert not w2b and not stl
        p.ext(sched(mfs, {}, mem, [], 6))
        self.stamp('p5mm')
        mem = {}
        for i, x in enumerate(self.reduce_writes(AC5)):
            mem.setdefault(2 + i, []).append(x)
        p.ext(sched([m5(i, 0) for i in range(28 - TAIL, 28)], {}, mem, self.stats_reduce(CS), 5, start=0))
        self.stamp('p5rw')
        self.reduce_finish(AC5, 32)
        self.stamp('p5rd')
        P = 96
        for i in range(8):
            p(f'v_pk_fma_f32 {vr(AC5+2*i,2)}, {vr(AC5+2*i,2)}, {vr(vMEAN,2)}, {vr(vRES+2*i,2)} op_sel:[0,1,0] op_sel_hi:[1,1,1]')
            p(f'v_cvt_pk_bf16_f32 v{P+i}, v{AC5+2*i}, v{AC5+2*i+1}')
        if L0:
            self.x_store(P, vL16, (0, 1024))
            wq = self.wq_dma((0, 1))
            p.ext(wq[:9])
            self.publish(['xst'], sXF)
            p.ext(wq[9:])
            self.stamp('p5pub')
            p.ext(self.res_unpack(P))
            p.label(ljoin)
            p(f's_add_u32 s{sLB}, s{sLB}, {LSTRIDE}')
            p('s_waitcnt vmcnt(0) lgkmcnt(0)')
            p('s_barrier')
            return
        p(f'v_and_b32 v{vT+4}, 31, v{vL}')
        p(f'v_mul_u32_u24 v{vT+4}, 896, v{vT+4}')
        p(f'v_lshrrev_b32 v{vT+5}, 5, v{vL}')
        p(f'v_lshl_add_u32 v{vT+4}, v{vT+5}, 4, v{vT+4}')
        for hf in range(2):
            p(f'v_permlane32_swap_b32 v{P+4*hf}, v{P+4*hf+2}')
            p(f'v_permlane32_swap_b32 v{P+4*hf+1}, v{P+4*hf+3}')
            p(f'buffer_store_dwordx4 {vr(P+4*hf)}, v{vT+4}, {srd(S_OUT)}, s{sQOFF} offen offset:{32*hf}')
        p('s_cmp_lg_u32 s2, %d' % (27 * 8 + 7))
        p('s_cbranch_scc1 L_fin')
        p(f's_mov_b32 s{sT0}, {WS_EPOCH}')
        p.ext(self.flag_sc1(sT0))

    def build(self):
        p = self.p
        self.L = 0
        self.prologue()
        for self.L in range(2):
            for ph in ('p1', 'attn', 'p3', 'p45'):
                getattr(self, ph)()
        p.label('L_fin')
        self.stamp('end')
        self.stamp_dump()
        if os.environ.get('CALIB'):
            p.label('L_calib')
            p('s_memrealtime s[96:97]')
            p('s_waitcnt lgkmcnt(0)')
            p('s_sub_u32 s96, s96, s100')
            if os.environ.get('PROBE'):
                p('s_sub_u32 s97, s98, s100')
                p(f's_cmp_ge_u32 s{sM}, 28')
                p('s_cselect_b32 s97, 0, s97')
                p('s_sub_u32 s96, s96, s97')
                p('s_max_i32 s96, s96, 0')
            p(f's_cmp_lt_u32 s96, {int(os.environ["CALIB"])}')
            p('s_cbranch_scc1 L_calib')
        p.label('L_end')
        p('s_endpgm')
        for lab, code in self.tail:
            p.label(lab, reset='all')
            p.ext(code)
        p.label('L_codeend')
        self.emit_walker()
        p.insert_waits()
        probs = p.fix_hazards()
        for x in probs:
            print('branch hazard padded', x, file=sys.stderr)
        mx = p.maxregs()
        head = open(os.path.join(os.path.dirname(__file__), '..', 'cdna_kernels', NAME + '.s.ref')).read().split('\n')
        hdr = [l for l in head if l.startswith(';') and '@launch' not in l]
        out = '\n'.join(hdr) + f'\n; @launch grid=(256,1,1) block=(256,1,1) lds={LDS_BYTES}\n'
        out += '.amdgcn_target "amdgcn-amd-amdhsa--gfx950"\n.text\n'
        out += f'.globl {NAME}_kernel\n.p2align 8\n.type {NAME}_kernel,@function\n{NAME}_kernel:\n'
        out += p.text()
        out += '.fill 64, 4, 0xbf800000\n'
        out += f'''.section .rodata,"a"
.p2align 6
.amdhsa_kernel {NAME}_kernel
  .amdhsa_next_free_vgpr 512
  .amdhsa_next_free_sgpr 102
  .amdhsa_accum_offset 256
  .amdhsa_group_segment_fixed_size 0
  .amdhsa_kernarg_size 72
  .amdhsa_user_sgpr_count 2
  .amdhsa_user_sgpr_kernarg_segment_ptr 1
  .amdhsa_system_sgpr_workgroup_id_x 1
  .amdhsa_float_denorm_mode_32 3
.end_amdhsa_kernel
'''
        print('regs', mx, 'instrs', sum(1 for x in p.items if isinstance(x, Ins)), file=sys.stderr)
        return out


if __name__ == '__main__':
    stop = int(sys.argv[2]) if len(sys.argv) > 2 else None
    k = K(stop if stop and stop > 0 else None, dbg=sys.argv[3].split(',') if len(sys.argv) > 3 else None)
    open(sys.argv[1], 'w').write(k.build())
    if k.dbg:
        open(os.path.join(os.path.dirname(sys.argv[1]), 'stamps.txt'), 'w').write(' '.join(k.stamps))
```

```python
import sys, os, math, struct
sys.path.insert(0, os.path.dirname(__file__))
from asmlib import Prog, Ins, Wait, Mark, Label, Touch

NAME = 'interleave_layers__sliding_block__dense_activation_relu__prompt'

WS_EPOCH = 0
WS_PUR = 0x1000
F_WQ = 0x2000
F_W1 = 0x2800
F_W2 = 0x3000
F_WO = 0x4000
WQT = 0x100000
W1T = 0x250000
WOT = 0x3D8000
W2T = 0x448000
TEAM0 = 0x600000
LSTRIDE = 0x230000
STRIDE = 2 * LSTRIDE
O_KV = 0x000000
O_O = 0x080000
O_X1 = 0x0C0000
O_XA = 0x0F8000
O_ST1 = 0x130000
O_STA = 0x138000
O_FKV = 0x140000
O_FO = 0x144000
O_FX1 = 0x144400
O_FXA = 0x144800
O_FH = 0x145000
O_H = 0x150000
WS_BYTES = TEAM0 + 8 * STRIDE

LKV = 100352
L_CSQ = 149504
L_CS1 = L_CSQ + 512
L_STAMP = 160 * 1024 - 512
L_PUR = L_CS1 + 512 + 1536
L_CSP = L_CS1 + 512
LDS_BYTES = 163840

S_X, S_WQ, S_WO, S_W1, S_W2, S_OUT, S_WS = 8, 12, 16, 20, 24, 28, 32
S_WSP = 36
sTEAM, sM, sA, sJ, sW, sRB, sCB, sLB = 40, 41, 42, 43, 44, 45, 46, 47
sF, sPURE, sLAYER, sTP = 48, 50, 51, 52
sQOFF = 53
sIMP = 54
sPERM, sONES = 56, 57
sRHO, sNU = 58, 59
sT0, sT1, sT2, sT3, sT4, sT5 = 60, 61, 62, 63, 64, 65
sCNT = 66
sTB = 71
sJFL = 67
sXD, sXS, sXF = 68, 69, 70
sPOLL = 72
sRQ, sLQ = 76, 77
sO = 80

vL, vL16, vA1, vL8 = 0, 1, 2, 3
vSTA = 4
vFLG = 5
vRW = 6
vX1A = 10
vCSA = 11
vF = 12
vMEAN, vRSTD = 14, 15
vT = 16
vRES = 240

POLL_MAX = 1 << 16
ROT = {'rb': f's{sRB}', 'team': f's{sTEAM}', '': '0'}[os.environ.get('ROT', '')]
ROT1 = {'a': f's{sA}', 'team': f's{sTEAM}', '': '0'}[os.environ.get('ROT1', '')]
PT = bool(os.environ.get('PT'))
H1POS = int(os.environ.get('H1POS', 19))
H2POS = int(os.environ.get('H2POS', 3))
PK1 = int(os.environ.get('PK1', 57))
EK = not os.environ.get('NOEK')
DP = not os.environ.get('NODP')
NW1 = int(os.environ.get('NW1', 10))
PK2 = int(os.environ.get('PK2', 8))
ORDER = [7 * sl + sg for sl in range(4) for sg in range(4)] + [7 * sl + sg for sl in range(4) for sg in range(4, 7)]
MF32 = 'v_mfma_f32_32x32x16_bf16'
MF16 = 'v_mfma_f32_16x16x32_bf16'


def srd(b):
    return f's[{b}:{b+3}]'


def vr(b, n=4):
    return f'v[{b}:{b+n-1}]' if n > 1 else f'v{b}'


def ar(b, n=4):
    return f'a[{b}:{b+n-1}]'


def f32bits(x):
    return struct.unpack('<I', struct.pack('<f', x))[0]


def is_mem(x):
    if isinstance(x, (list, tuple)):
        return any(is_mem(y) for y in x)
    if isinstance(x, (Wait, Touch, Label, Mark)):
        return False
    t = x.text if isinstance(x, Ins) else x if isinstance(x, str) else ''
    return t.startswith('ds_') or t.startswith('buffer_') or t.startswith('global_')


def cost(x):
    if isinstance(x, (list, tuple)):
        return sum(cost(y) for y in x)
    if isinstance(x, (Wait, Touch)):
        return 1
    if isinstance(x, (Label, Mark)):
        return 0
    t = x.text if isinstance(x, Ins) else x
    return 2 if t.startswith('v_exp') or t.startswith('v_rsq') or t.startswith('v_rcp') or t.startswith('v_permlane') else 1


def sched(mfs, pre, mem, side, cap, start=0):
    out = []
    side = list(side)
    for i, m in enumerate(mfs):
        out += pre.get(i, [])
        out.append(m)
        n = 0
        for x in mem.get(i, []):
            out.append(x)
            n += cost(x)
        if pre.get(i + 1):
            n += 1
        valu = False
        if i >= start:
            while side and n + cost(side[0]) <= cap:
                if is_mem(side[0]) and valu:
                    break
                x = side.pop(0)
                if not is_mem(x) and not isinstance(x, (Wait, Touch)):
                    t = x[0] if isinstance(x, (list, tuple)) else x
                    if any((y.text if isinstance(y, Ins) else y).startswith('v_') for y in (x if isinstance(x, (list, tuple)) else [x]) if isinstance(y, (Ins, str))):
                        valu = True
                out.append(x)
                n += cost(x)
            if side and n == 0 and cost(side[0]) > cap:
                out.append(side.pop(0))
    return out + side


class K:
    def __init__(self, stop=None, dbg=False):
        self.p = Prog()
        self.stop = stop
        self.dbg = dbg
        self.stamps = []
        self.tail = []
        self.pads = []
        self.vP2 = 236

    def stamp(self, name):
        if os.environ.get('PROBE') == f'{name}{self.L}':
            self.p('s_memrealtime s[98:99]')
            self.p('s_waitcnt lgkmcnt(0)')
        if not self.dbg or (name not in self.dbg and name not in ('start', 'end')):
            return
        k = len(self.stamps)
        assert k < 32
        self.stamps.append(name)
        p = self.p
        p('s_memrealtime s[96:97]' if 'RT' in self.dbg else 's_memtime s[96:97]')
        if k == 0:
            p('v_readfirstlane_b32 s100, v0')
            p('s_lshr_b32 s100, s100, 6')
            p('s_lshl_b32 s101, s2, 2')
            p('s_add_u32 s100, s100, s101')
            p('s_lshl_b32 s100, s100, 7')
            p('s_add_u32 s100, s100, 0x40000')
        p('s_waitcnt lgkmcnt(0)')
        if k == 0:
            p('v_accvgpr_write_b32 a253, s96')
            return
        p('v_accvgpr_write_b32 a252, s96')
        p('s_mov_b64 exec, 1')
        p(f'buffer_store_dword a252, off, {srd(S_WS)}, s100 offset:{4*k}')
        p('s_mov_b64 exec, -1')

    def stamp_items(self, name):
        n = len(self.p.items)
        self.stamp(name)
        L = self.p.items[n:]
        del self.p.items[n:]
        return [L] if L else []

    def stamp_dump(self):
        if self.dbg:
            self.p(f'buffer_store_dword a253, off, {srd(S_WS)}, s100')

    def dma(self, srdb, voff, sreg, simm, m0, tok, sc='', n=1):
        mr, mi = m0
        L = [f's_add_u32 m0, s{mr}, {mi}' if mr is not None else f's_mov_b32 m0, {mi}',
             f's_add_u32 s{sT5}, s{sreg}, {simm}']
        for k in range(n):
            L.append(Ins(f'buffer_load_dwordx4 v{voff}, {srd(srdb)}, s{sT5} offen offset:{1024*k} {sc} lds', tok))
        return L

    @staticmethod
    def setexec(nl):
        if nl <= 32:
            return [f's_mov_b64 exec, {(1 << nl) - 1:#x}'] if nl < 32 else ['s_mov_b32 exec_hi, 0']
        return [f's_mov_b32 exec_hi, {(1 << (nl - 32)) - 1:#x}']

    def poll_loop(self, voff, soff, nl, imm=0):
        p = self.p
        lp, lo = p.newlabel('poll'), p.newlabel('pollout')
        return self.setexec(nl) + [f's_mov_b32 s{sCNT}, 0', Label(lp),
                f'buffer_load_dwordx2 {vr(vT + 14, 2)}, v{voff}, {srd(S_WS)}, {soff} offen offset:{imm} sc1',
                f's_add_u32 s{sCNT}, s{sCNT}, 1', f's_cmp_gt_u32 s{sCNT}, {POLL_MAX}', f's_cbranch_scc1 {lo}',
                's_waitcnt vmcnt(0)', f'v_cmp_ne_u64 vcc, s[{sF}:{sF+1}], {vr(vT + 14, 2)}', f's_cbranch_vccnz {lp}',
                Label(lo), 's_mov_b64 exec, -1']

    def poll_first(self, voff, soff, nl):
        self.p.ext(self.peek_issue(voff, soff, nl))

    def vpoll(self, voff, soff, nl, acquire=True):
        p = self.p
        lp, lo = p.newlabel('poll'), p.newlabel('pollout')
        ra, rb = vr(vT + 14, 2), vr(self.vP2, 2)
        ldf = lambda r: f'buffer_load_dwordx2 {r}, v{voff}, {srd(S_WS)}, {soff} offen sc1'
        p.ext(self.setexec(nl) + [f's_mov_b32 s{sCNT}, 0', Label(lp), ldf(rb),
               f's_add_u32 s{sCNT}, s{sCNT}, 1', f's_cmp_gt_u32 s{sCNT}, {POLL_MAX}', f's_cbranch_scc1 {lo}',
               f'v_cmp_ne_u64 vcc, s[{sF}:{sF+1}], {ra}', f's_cbranch_vccz {lo}', ldf(ra),
               f'v_cmp_ne_u64 vcc, s[{sF}:{sF+1}], {rb}', f's_cbranch_vccnz {lp}', Label(lo), 's_mov_b64 exec, -1'])
        if acquire:
            lslow, lback = p.newlabel('acq'), p.newlabel('acqback')
            p(f's_cmp_lg_u32 s{sPURE}, 0')
            p(f's_cbranch_scc0 {lslow}')
            p.label(lback)
            self.tail.append((lslow, ['buffer_inv sc1', 's_waitcnt vmcnt(0)', f's_branch {lback}']))
        p.mark('drained_vm')

    def peek_issue(self, voff, soff, nl, imm=0):
        return [self.setexec(nl) + [f'buffer_load_dwordx2 {vr(vT + 14, 2)}, v{voff}, {srd(S_WS)}, {soff} offen offset:{imm} sc1',
                                    's_mov_b64 exec, -1']]

    def peek_check(self, voff, soff, nl, imm=0, acquire=True):
        p = self.p
        lslow, lback, lacq = p.newlabel('peek'), p.newlabel('peekback'), p.newlabel('peekacq')
        self.tail.append((lslow, self.poll_loop(voff, soff, nl, imm) +
                          [f's_cmp_lg_u32 s{sPURE}, 0', f's_cbranch_scc1 {lback}', 'buffer_inv sc1', 's_waitcnt vmcnt(0)',
                           f's_branch {lback}']))
        return [[Touch(vr(vT + 14, 2))] + self.setexec(nl) +
                [f'v_cmp_ne_u64 vcc, s[{sF}:{sF+1}], {vr(vT + 14, 2)}', 's_mov_b64 exec, -1',
                 f's_or_b64 vcc, vcc, s[{sIMP}:{sIMP+1}]' if acquire else 's_or_b64 vcc, vcc, vcc', f's_cbranch_scc1 {lslow}', Label(lback)]]

    def publish_items(self, toks, soff, imm=0, post=()):
        p = self.p
        lslow, lback = p.newlabel('pubslow'), p.newlabel('pubback')
        self.tail.append((lslow, [
            'buffer_wbl2 sc1', 's_waitcnt vmcnt(0)',
            f'buffer_store_dwordx2 {vr(vF, 2)}, off, {srd(S_WS)}, s{soff} offset:{imm} sc1',
            f's_branch {lback}']))
        return [[Wait(toks), 's_mov_b64 exec, 1', f's_cmp_lg_u32 s{sPURE}, 0', f's_cbranch_scc0 {lslow}',
                 f'buffer_store_dwordx2 {vr(vF, 2)}, off, {srd(S_WS)}, s{soff} offset:{imm}', Label(lback), 's_mov_b64 exec, -1']] + list(post)

    def publish(self, toks, soff, imm=0):
        self.p.ext(self.publish_items(toks, soff, imm))

    def flag_sc1(self, soff):
        return ['s_mov_b64 exec, 1', f'buffer_store_dwordx2 {vr(vF,2)}, off, {srd(S_WS)}, s{soff} sc1', 's_mov_b64 exec, -1']

    def flag_opt(self, soff):
        p = self.p
        l = p.newlabel('noflag')
        p(f's_cmp_eq_u32 s{soff}, -1')
        p(f's_cbranch_scc1 {l}')
        p.mark('maybe_begin')
        p.ext(self.flag_sc1(soff))
        p.mark('maybe_end')
        p.label(l)

    def stats_loads(self, soff, dst):
        return [f'buffer_load_dwordx2 {vr(dst + 2*i, 2)}, v{vSTA}, {srd(S_WS)}, s{soff} offen offset:{256*i} sc1' for i in range(7)]

    def stats_reduce(self, src):
        L = []
        for i in range(1, 7):
            L.append(f'v_add_f32 v{src}, v{src}, v{src+2*i}')
            L.append(f'v_add_f32 v{src+1}, v{src+1}, v{src+2*i+1}')
        s, q, t0, t1 = src, src + 1, src + 2, src + 3
        return L + [
            f'v_mov_b32 v{t0}, v{s}', f'v_mov_b32 v{t1}, v{q}', 's_nop 0',
            f'v_permlane32_swap_b32 v{s}, v{t0}', f'v_permlane32_swap_b32 v{q}, v{t1}',
            f'v_add_f32 v{s}, v{s}, v{t0}', f'v_add_f32 v{q}, v{q}, v{t1}',
            f'v_mul_f32 v{vMEAN}, {f32bits(-1.0/448):#x}, v{s}',
            f'v_mul_f32 v{q}, {f32bits(1.0/448):#x}, v{q}',
            f'v_fma_f32 v{q}, -v{vMEAN}, v{vMEAN}, v{q}',
            f'v_max_f32 v{q}, 0, v{q}',
            f'v_add_f32 v{q}, {f32bits(1e-5):#x}, v{q}',
            f'v_rsq_f32 v{vRSTD}, v{q}',
        ]

    def off(self, dst, idx_reg, mul, add):
        return [f's_mul_i32 s{dst}, s{idx_reg}, {mul}', f's_add_u32 s{dst}, s{dst}, s{sLB}', f's_add_u32 s{dst}, s{dst}, {add}']

    def xoff(self, dst, idx_reg, mul, add):
        return [f's_add_u32 s{sT3}, s{sLB}, {add}', f's_add_u32 s{sT4}, s{sTB}, {O_XA}', f's_cmp_lg_u32 s{sPURE}, 0',
                f's_cselect_b32 s{sT3}, s{sT4}, s{sT3}', f's_mul_i32 s{dst}, s{idx_reg}, {mul}', f's_add_u32 s{dst}, s{dst}, s{sT3}']

    def roff(self, dst, idx_reg, mul, add):
        return [f's_cmp_lg_u32 s{sPURE}, 0', f's_cselect_b32 s{sT3}, s{sTB}, s{sLB}',
                f's_mul_i32 s{dst}, s{idx_reg}, {mul}', f's_add_u32 s{dst}, s{dst}, s{sT3}', f's_add_u32 s{dst}, s{dst}, {add}']

    def pub_offsets(self, xoff, stoff, foff):
        return [f's_lshl_b32 s{sT0}, s{sRB}, 1', f's_add_u32 s{sT0}, s{sT0}, s{sRHO}',
                f's_lshl_b32 s{sT1}, s{sCB}, 1', f's_add_u32 s{sT1}, s{sT1}, s{sNU}',
                f's_mul_i32 s{sT2}, s{sT0}, 14', f's_add_u32 s{sT2}, s{sT2}, s{sT1}'] + \
            self.xoff(sXD, sT2, 2048, xoff) + self.off(sXS, sT2, 256, stoff) + \
            [f's_lshl_b32 s{sT0}, s{sT0}, 4', f's_add_u32 s{sT0}, s{sT0}, s{sT1}'] + self.off(sXF, sT0, 8, foff) + \
            [f's_cmp_ge_u32 s{sM}, 28'] + [f's_cselect_b32 s{r}, {WS_PUR}, s{r}' for r in (sXD, sXS, sXF)]

    def x_store(self, P, va, offs, sc=''):
        p = self.p
        S, Q2, t0, t1 = vT + 6, vT + 7, vT + 8, vT + 9
        for k in range(2):
            p(f'buffer_store_dwordx4 {vr(P+4*k)}, v{va}, {srd(S_WS)}, s{sXD} offen offset:{offs[k]} {sc}', tok='xst')
        p(f'v_mov_b32 v{t0}, s{sONES}')
        p(f'v_dot2_f32_bf16 v{S}, v{P}, v{t0}, 0')
        p(f'v_dot2_f32_bf16 v{Q2}, v{P}, v{P}, 0')
        for i in range(1, 8):
            p(f'v_dot2_f32_bf16 v{S}, v{P+i}, v{t0}, v{S}')
            p(f'v_dot2_f32_bf16 v{Q2}, v{P+i}, v{P+i}, v{Q2}')
        p(f'v_mov_b32 v{t0}, v{S}')
        p(f'v_mov_b32 v{t1}, v{Q2}')
        p(f'v_permlane32_swap_b32 v{S}, v{t0}')
        p(f'v_permlane32_swap_b32 v{Q2}, v{t1}')
        p(f'v_add_f32 v{S}, v{S}, v{t0}')
        p(f'v_add_f32 v{Q2}, v{Q2}, v{t1}')
        p('s_mov_b32 exec_hi, 0')
        p(f'buffer_store_dwordx2 {vr(S,2)}, v{vL8}, {srd(S_WS)}, s{sXS} offen {sc}', tok='xst')
        p('s_mov_b64 exec, -1')

    def res_unpack(self, P):
        L = []
        for q in range(8):
            L.append(f'v_lshlrev_b32 v{vRES+2*q}, 16, v{P+q}')
            L.append(f'v_and_b32 v{vRES+2*q+1}, 0xffff0000, v{P+q}')
        return L

    def prefetch(self, v128, sreg, base, nbytes):
        L = []
        o = 0
        while o < nbytes:
            oo = min(o, nbytes - 8192)
            L += [f's_add_u32 s{sT5}, s{sreg}, {base + oo}', f'buffer_load_dword a255, v{v128}, {srd(S_WS)}, s{sT5} offen sc1']
            o += 8192
        return L

    def touch(self, v128, sreg, imm, nlines):
        L = [f's_add_u32 s{sT5}, s{sreg}, {imm}']
        if nlines < 64:
            L += self.setexec(nlines)
        L.append(f'buffer_load_dword a255, v{v128}, {srd(S_WS)}, s{sT5} offen sc1')
        if nlines < 64:
            L.append('s_mov_b64 exec, -1')
        return [L]

    def wq_dma(self, tiles):
        sg, sl = sPOLL + 2, sPOLL + 3
        L = [f's_mul_i32 s{sg}, s{sJ}, 86016', f's_mul_i32 s{sl}, s{sW}, 7168', f's_add_u32 s{sg}, s{sg}, s{sl}']
        for tau in tiles:
            for o, n in ((0, 4), (4096, 3)):
                d = self.dma(S_WS, vL16, sg, WQT + tau * 28672 + o, (sl, tau * 28672 + o), 'wq', 'sc1', n)
                L += [d[:3]] + d[3:]
        return L

    def w1_dma(self, part):
        sg, sl = sPOLL, sPOLL + 1
        L = []
        if part == 0:
            for hf in range(2):
                L += [f's_and_b32 s{sl}, {ROT1}, 1', f's_xor_b32 s{sl}, s{sl}, {hf}', f's_lshl_b32 s{sg}, s{sW}, 1', f's_add_u32 s{sl}, s{sl}, s{sg}',
                      f's_mul_i32 s{sl}, s{sl}, 7168', f's_mul_i32 s{sg}, s{sJ}, 100352', f's_add_u32 s{sg}, s{sg}, s{sl}']
                for o, n in ((0, 4), (4096, 3)):
                    d = self.dma(S_WS, vL16, sg, W1T + o, (sl, o), 'w1', 'sc1', n)
                    L += [d[:3]] + d[3:]
            return L
        else:
            L += [f's_mul_i32 s{sg}, s{sJ}, 100352', f's_mul_i32 s{sl}, s{sW}, 10240', f's_add_u32 s{sg}, s{sg}, s{sl}']
            groups = [(0, 4), (4096, 4), (8192, 2)]
            base = 57344
        for o, n in groups:
            d = self.dma(S_WS, vL16, sg, W1T + base + o, (sl, base + o), 'w1', 'sc1', n)
            L += [d[:3]] + d[3:]
        if part == 1:
            L += [f's_sub_u32 s{sg}, s{sg}, s{sl}', f's_lshl_b32 s{sl}, s{sNU}, 10', f's_add_u32 s{sg}, s{sg}, s{sl}']
            L.append(self.dma(S_WS, vL16, sg, W1T + 98304, (sl, 98304), 'w1', 'sc1', 1))
        return L

    def w2_setup(self, sbase, vz):
        return [f's_lshl_b32 s{sbase}, s{sCB}, 2', f's_add_u32 s{sbase}, s{sbase}, s{sW}', f's_mul_i32 s{sbase}, s{sbase}, 57344',
                f's_lshl_b32 s{sT1}, s{sNU}, 10', f'v_xor_b32 v{vz[0]}, s{sT1}, v{vL16}', f'v_xor_b32 v{vz[1]}, 1024, v{vz[0]}']

    def w2_loads(self, sbase, vz):
        L = []
        for sl in range(4):
            pre = [f's_add_u32 s{sT3}, {ROT}, {sl}', f's_and_b32 s{sT3}, s{sT3}, 3', f's_mul_i32 s{sT3}, s{sT3}, 14336',
                   f's_add_u32 s{sT3}, s{sT3}, s{sbase}']
            for sg in range(7):
                ks = 7 * sl + sg
                g = pre + [f's_add_u32 s{sT4}, s{sT3}, {W2T + sg*2048}',
                           f'buffer_load_dwordx4 {ar(ks*8)}, v{vz[0]}, {srd(S_WS)}, s{sT4} offen sc1']
                pre = []
                L += [g, f'buffer_load_dwordx4 {ar(ks*8+4)}, v{vz[1]}, {srd(S_WS)}, s{sT4} offen sc1']
        return L

    def lane_consts(self):
        p = self.p
        t0, t1 = vT + 6, vT + 7
        p(f'v_add_u32 v{vA1}, 57344, v{vL16}')
        p(f'v_and_b32 v{vSTA}, 31, v{vL}')
        p(f'v_lshlrev_b32 v{vSTA}, 3, v{vSTA}')
        p(f'v_lshrrev_b32 v{t0}, 5, v{vL}')
        p(f'v_mul_u32_u24 v{t1}, {7*256}, v{t0}')
        p(f'v_add_u32 v{vSTA}, v{vSTA}, v{t1}')
        p(f'v_lshrrev_b32 v{vFLG}, 2, v{vL}')
        p(f'v_lshlrev_b32 v{vFLG}, 7, v{vFLG}')
        p(f'v_and_b32 v{t1}, 3, v{vL}')
        p(f'v_lshl_add_u32 v{vFLG}, v{t1}, 3, v{vFLG}')
        for x in range(1, 4):
            p(f's_xor_b32 s{sT0}, s{sW}, {x}')
            p(f's_mul_i32 s{sT0}, s{sT0}, 12288')
            p(f's_add_u32 s{sT0}, s{sT0}, {LKV + (x-1)*4096}')
            p(f'v_add_u32 v{vRW+x-1}, s{sT0}, v{vL16}')
        p(f's_mul_i32 s{sT0}, s{sW}, 12288')
        p(f's_add_u32 s{sT0}, s{sT0}, {LKV}')
        p(f'v_add_u32 v{vRW+3}, s{sT0}, v{vL16}')
        p(f'v_bfe_u32 v{vX1A}, v{vL}, 4, 1')
        p(f'v_lshlrev_b32 v{vX1A}, 10, v{vX1A}')
        p(f'v_lshl_add_u32 v{vX1A}, v{t0}, 8, v{vX1A}')
        p(f'v_and_b32 v{t1}, 15, v{vL}')
        p(f'v_lshl_add_u32 v{vX1A}, v{t1}, 4, v{vX1A}')

    def pad(self):
        p = self.p
        k = len(self.pads)
        self.pads.append(f'L_pad{k}')
        p(f's_branch L_padskip{k}')
        p.label(f'L_pad{k}')
        p('s_setpc_b64 s[98:99]')
        p.label(f'L_padskip{k}')

    def emit_walker(self):
        L = []
        labs = [f'L_walk{w}' for w in range(4)]
        for w in range(1, 4):
            L += [Ins(f's_cmp_eq_u32 s{sW}, {w}'), Ins(f's_cbranch_scc1 {labs[w]}')]
        for w in range(4):
            if w:
                L.append(Label(labs[w]))
            for x in self.pads[w::4]:
                L.append(Ins(f's_call_b64 s[98:99], {x}'))
            if w < 3:
                L.append(Ins('s_branch L_walkend'))
        L.append(Label('L_walkend'))
        self.p.items[self.walker_at:self.walker_at] = L

    def rawq(self, tau, i):
        return (self.dma(S_WQ, self.vDQ, sRQ, (448, 896, 0)[tau] * 2 + i * 16 * 2688, (sLQ, tau * 28672 + i * 1024), f'rq{tau}{i}'))

    def xform(self, tau, R, vcs, vones, between=None):
        p = self.p

        def fin(i):
            p(f'ds_write_b128 v{self.vWQ}, {vr(R+4*i)} offset:{tau*28672+i*1024}')
            for q in range(4):
                p(f'v_dot2_f32_bf16 v{vcs}, v{R+4*i+q}, v{vones}, {f"v{vcs}" if i or q else 0}')
        for i in range(7):
            p.wait(f'rq{tau}{i}')
            for jj in range(2):
                p(f'ds_read_b64_tr_b16 {vr(R+4*i+2*jj,2)}, v{self.vTQ} offset:{tau*28672+i*1024+jj*512}')
            if between:
                between(i)
            if i >= 1:
                fin(i - 1)
        fin(6)

    def cs_partial(self, taus, vcs, t2, t3):
        p = self.p
        for k, tau in enumerate(taus):
            p(f'v_mov_b32 v{t2}, v{vcs+k}')
            p(f'v_permlane32_swap_b32 v{vcs+k}, v{t2}')
            p(f'v_add_f32 v{vcs+k}, v{vcs+k}, v{t2}')
        p(f'v_and_b32 v{t2}, 31, v{vL}')
        p(f'v_lshlrev_b32 v{t2}, 2, v{t2}')
        p(f's_mul_i32 s{sT0}, s{sW}, 384')
        p(f's_add_u32 s{sT0}, s{sT0}, {L_CSP}')
        p(f'v_add_u32 v{t3}, s{sT0}, v{t2}')
        for k, tau in enumerate(taus):
            p(f'ds_write_b32 v{t3}, v{vcs+k} offset:{tau*128}')

    def cs_sum(self, taus, R, t2, t3):
        p = self.p
        p(f'v_add_u32 v{t3}, {L_CSP}, v{t2}')
        for k, tau in enumerate(taus):
            for w in range(4):
                p(f'ds_read_b32 v{R+4*k+w}, v{t3} offset:{w*384+tau*128}')
        p(f'v_add_u32 v{t3}, {L_CSQ}, v{t2}')
        for k, tau in enumerate(taus):
            r = R + 4 * k
            p(f'v_add_f32 v{r}, v{r}, v{r+1}')
            p(f'v_add_f32 v{r+2}, v{r+2}, v{r+3}')
            p(f'v_add_f32 v{r}, v{r}, v{r+2}')
            p(f'ds_write_b32 v{t3}, v{r} offset:{tau*128}')
        p('s_waitcnt lgkmcnt(0)')

    def prologue(self):
        p = self.p
        t0, t1, t2, t3 = vT, vT + 1, vT + 2, vT + 3
        self.vDQ, self.vTQ, self.vWQ = vDQ, vTQ, vWQ = vT + 10, vT + 11, vT + 12
        p('s_cmp_ge_u32 s2, 256')
        p('s_cbranch_scc1 L_end')
        p(f's_load_dwordx16 s[{sO}:{sO+15}], s[0:1], 0')
        p(f's_load_dwordx2 s[{S_WSP}:{S_WSP+1}], s[0:1], 64')
        p(f's_getpc_b64 s[{sT0}:{sT0+1}]')
        p.label('L_pc')
        p(f'v_lshlrev_b32 v{t2}, 7, v0')
        p(f'global_load_dword a255, v{t2}, s[{sT0}:{sT0+1}]')
        p(f'v_add_u32 v{t2}, 0x8000, v{t2}')
        p(f'v_min_u32 v{t2}, L_codeend-L_pc, v{t2}')
        p(f'global_load_dword a255, v{t2}, s[{sT0}:{sT0+1}]')
        if os.environ.get('CALIB'):
            p('s_memrealtime s[100:101]')
        self.stamp('start')
        p(f'v_lshrrev_b32 v{vT}, 6, v0')
        p(f'v_and_b32 v{vL}, 63, v0')
        p(f'v_readfirstlane_b32 s{sW}, v{vT}')
        p(f's_lshr_b32 s{sM}, s2, 3')
        p(f's_and_b32 s{sTEAM}, s2, 7')
        p(f's_mul_i32 s{sRB}, s{sM}, 37')
        p(f's_lshr_b32 s{sRB}, s{sRB}, 8')
        p(f's_mul_i32 s{sT0}, s{sRB}, 7')
        p(f's_sub_u32 s{sCB}, s{sM}, s{sT0}')
        p(f's_lshr_b32 s{sRHO}, s{sW}, 1')
        p(f's_and_b32 s{sNU}, s{sW}, 1')
        p(f's_lshl_b32 s{sT0}, s{sTEAM}, 2')
        p(f's_add_u32 s{sT0}, s{sT0}, s{sRB}')
        p(f's_lshl_b32 s{sT1}, s{sT0}, 1')
        p(f's_add_u32 s{sT1}, s{sT1}, s{sRHO}')
        p(f's_mul_i32 s{sQOFF}, s{sT1}, {32*896}')
        p(f's_lshl_b32 s{sT1}, s{sCB}, 7')
        p(f's_add_u32 s{sQOFF}, s{sQOFF}, s{sT1}')
        p(f's_lshl_b32 s{sT1}, s{sNU}, 6')
        p(f's_add_u32 s{sQOFF}, s{sQOFF}, s{sT1}')
        vPK, vPQ, vH = vT + 14, vT + 15, vT + 13
        p(f'v_and_b32 v{t3}, 31, v{vL}')
        p(f'v_mul_u32_u24 v{t3}, 896, v{t3}')
        p(f'v_lshrrev_b32 v{vH}, 5, v{vL}')
        p(f'v_lshl_add_u32 v{t3}, v{vH}, 3, v{t3}')
        p(f's_lshl_b32 s{sT2}, s{sM}, 2')
        p(f's_add_u32 s{sT2}, s{sT2}, s{sW}')
        p(f's_mul_i32 s{sT3}, s{sT2}, 49')
        p(f'v_add_u32 v{t2}, s{sT3}, v{vL}')
        p(f'v_mul_u32_u24 v{vPK}, 74899, v{t2}')
        p(f'v_lshrrev_b32 v{vPK}, 20, v{vPK}')
        p(f'v_mul_u32_u24 v{vPK}, 7, v{vPK}')
        p(f'v_add_u32 v{vPK}, v{vPK}, v{t2}')
        p(f'v_lshlrev_b32 v{vPK}, 7, v{vPK}')
        b = sO

        def mksrd(d, src, n):
            p(f's_mov_b32 s{d}, s{src}')
            p(f's_and_b32 s{d+1}, s{src+1}, 0xffff')
            p(f's_mov_b32 s{d+2}, {n}')
            p(f's_mov_b32 s{d+3}, 0x20000')
        mksrd(S_X, b, 1835008)
        mksrd(S_WQ, b + 2, 1204224)
        XR = 96
        for q in range(4):
            p(f'buffer_load_dwordx2 {vr(XR+2*q,2)}, v{t3}, {srd(S_X)}, s{sQOFF} offen offset:{16*q}')
        p('s_mov_b32 exec_hi, 0x1ffff')
        p(f'buffer_load_dword a255, v{vPK}, {srd(S_WQ)}, 0 offen offset:896')
        p('s_mov_b64 exec, -1')
        p(f's_load_dwordx2 s[{sF}:{sF+1}], s[{S_WSP}:{S_WSP+1}], {WS_EPOCH}')
        for (d, src, n) in ((S_WO, b + 4, 401408), (S_W1, b + 8, 1605632),
                            (S_W2, b + 10, 1605632), (S_OUT, b + 12, 1835008), (S_WS, S_WSP, WS_BYTES)):
            mksrd(d, src, n)
        p(f's_mul_i32 s{sT3}, s{sT2}, 25')
        p(f'v_add_u32 v{t2}, s{sT3}, v{vL}')
        p(f'v_mul_u32_u24 v{vPQ}, 149797, v{t2}')
        p(f'v_lshrrev_b32 v{vPQ}, 20, v{vPQ}')
        p(f'v_mul_u32_u24 v{vPQ}, 14, v{vPQ}')
        p(f'v_add_u32 v{vPQ}, v{vPQ}, v{t2}')
        p(f'v_lshlrev_b32 v{vPQ}, 7, v{vPQ}')
        p(f's_and_b32 s{sJ}, s{sM}, 15')
        p(f's_lshr_b32 s{sA}, s{sM}, 4')
        p(f'v_lshrrev_b32 v{t0}, 2, v{vL}')
        p(f'v_and_b32 v{t1}, 3, v{vL}')
        p(f'v_lshlrev_b32 v{t3}, 3, v{t1}')
        p(f'v_lshlrev_b32 v{t1}, 4, v{t1}')
        self.stamp('ka')
        sI, sSTG = sO, sO + 1
        sFL, sDST, sJOB, sDST2 = sJFL, sO + 3, sO + 4, sO + 5

        p(f's_mul_i32 s{sLB}, s{sTEAM}, {STRIDE}')
        p(f's_add_u32 s{sLB}, s{sLB}, {TEAM0}')
        p(f's_mov_b32 s{sTB}, s{sLB}')
        p(f'v_lshlrev_b32 v{vL16}, 4, v{vL}')
        p(f'v_lshlrev_b32 v{vL8}, 3, v{vL}')
        p(f's_mov_b32 s{sONES}, 0x3f803f80')
        p(f's_mov_b32 s{sPURE}, 1')
        p(f's_mov_b64 s[{sIMP}:{sIMP+1}], 0')
        p.ext(self.pub_offsets(O_XA, O_STA, O_FXA))
        vD, vTR, vTR8 = vT + 4, vT + 5, vT + 13
        FR = 32
        p(f's_lshl_b32 s{sI}, s{sTEAM}, 1')
        p(f's_add_u32 s{sI}, s{sI}, s{sA}')
        p(f's_lshl_b32 s{sSTG}, s{sW}, 13')
        p(f's_add_u32 s{sSTG}, s{sSTG}, {LKV}')
        lA = [p.newlabel('jobA') for _ in range(4)]
        p(f's_mov_b32 s{sJOB}, 0')
        p.mark('maybe_begin')
        p(f's_cmp_ge_u32 s{sW}, 2')
        p(f's_cbranch_scc1 {lA[0]}')
        p(f's_cmp_eq_u32 s{sW}, 0')
        p(f's_cbranch_scc1 {lA[2]}')
        p(f's_cmp_ge_u32 s{sI}, 14')
        p(f's_cbranch_scc1 {lA[2]}')
        p(f'v_bfe_u32 v{vD}, v{vL}, 1, 3')
        p(f'v_bfe_u32 v{t2}, v{vL}, 4, 1')
        p(f'v_lshl_add_u32 v{vD}, v{t2}, 4, v{vD}')
        p(f'v_bfe_u32 v{t2}, v{vL}, 5, 1')
        p(f'v_lshl_add_u32 v{vD}, v{t2}, 3, v{vD}')
        p(f'v_mul_u32_u24 v{vD}, 3584, v{vD}')
        p(f'v_and_b32 v{t2}, 1, v{vL}')
        p(f'v_lshl_add_u32 v{vD}, v{t2}, 4, v{vD}')
        p(f's_mul_i32 s{sT0}, s{sI}, {32*3584}')
        p(f's_mul_i32 s{sT1}, s{sJ}, 224')
        p(f's_add_u32 s{sT0}, s{sT0}, s{sT1}')
        for t in range(7):
            p.ext(self.dma(S_W1, vD, sT0, t * 32, (sSTG, t * 1024), 'raw'))
        p(f's_mov_b32 s{sJOB}, 2')
        p('s_waitcnt vmcnt(8)')
        p(f's_branch {lA[3]}')
        p.label(lA[0])
        p(f'v_mul_u32_u24 v{vD}, 896, v{t0}')
        p(f'v_add_u32 v{vD}, v{vD}, v{t1}')
        p(f's_cmp_ge_u32 s{sM}, 28')
        p(f's_cbranch_scc1 {lA[1]}')
        sI2, sSL, sHF = sT2, sT3, sT4
        p(f's_lshl_b32 s{sI2}, s{sTEAM}, 2')
        p(f's_add_u32 s{sI2}, s{sI2}, s{sRB}')
        p(f's_lshr_b32 s{sSL}, s{sI2}, 1')
        p(f's_and_b32 s{sHF}, s{sI2}, 1')
        p(f's_mul_i32 s{sT0}, s{sSL}, {112*896}')
        p(f's_mul_i32 s{sT1}, s{sHF}, {64*896}')
        p(f's_add_u32 s{sT0}, s{sT0}, s{sT1}')
        p(f's_lshl_b32 s{sT1}, s{sCB}, 7')
        p(f's_add_u32 s{sT0}, s{sT0}, s{sT1}')
        p(f's_lshl_b32 s{sT1}, s{sNU}, 6')
        p(f's_add_u32 s{sT0}, s{sT0}, s{sT1}')
        for k in range(4):
            p.ext(self.dma(S_W2, vD, sT0, k * 16 * 896, (sSTG, k * 1024), 'raw'))
        p(f's_add_u32 s{sJOB}, s{sHF}, 3')
        p('s_waitcnt vmcnt(5)')
        p(f's_branch {lA[3]}')
        p.label(lA[1])
        p(f's_cmp_eq_u32 s{sTEAM}, 7')
        p(f's_cbranch_scc1 {lA[2]}')
        p(f's_mul_i32 s{sT0}, s{sCB}, {112*896}')
        p(f's_lshl_b32 s{sT1}, s{sTEAM}, 7')
        p(f's_add_u32 s{sT0}, s{sT0}, s{sT1}')
        p(f's_lshl_b32 s{sT1}, s{sNU}, 6')
        p(f's_add_u32 s{sT0}, s{sT0}, s{sT1}')
        for k in range(8):
            p.ext(self.dma(S_WO, vD, sT0, k * 16 * 896, (sSTG, k * 1024), 'raw'))
        p(f's_mov_b32 s{sJOB}, 5')
        p.label(lA[2])
        p('s_waitcnt vmcnt(1)')
        p.mark('maybe_end')
        p.label(lA[3])
        self.stamp('jA')
        lp0 = p.newlabel('p0skip')
        p(f's_cmp_ge_u32 s{sM}, 28')
        p(f's_cselect_b32 s{sXF}, -1, s{sXF}')
        p(f's_cbranch_scc1 {lp0}')
        p.mark('drained_vm')
        self.x_store(XR, vL16, (0, 1024), 'sc1')
        p.label(lp0)
        p(f's_lshl_b32 s{sTP}, s{sA}, 2')
        p(f's_add_u32 s{sTP}, s{sTP}, s{sW}')
        p('s_mov_b64 exec, 0x1ffffff')
        p(f'buffer_load_dword a255, v{vPQ}, {srd(S_WQ)}, 0 offen')
        p('s_mov_b64 exec, -1')
        self.stamp('x0')
        p(f'v_mul_u32_u24 v{vDQ}, 2688, v{t0}')
        p(f'v_add_u32 v{vDQ}, v{vDQ}, v{t1}')
        p(f's_mul_i32 s{sRQ}, s{sW}, {7*16*2688}')
        p(f's_mul_i32 s{sT1}, s{sJ}, 56')
        p(f's_add_u32 s{sRQ}, s{sRQ}, s{sT1}')
        p(f's_mul_i32 s{sLQ}, s{sW}, 7168')
        p(f'v_bfe_u32 v{t2}, v{vL}, 4, 1')
        p(f'v_lshl_add_u32 v{t2}, v{t2}, 5, v{t3}')
        p(f'v_bfe_u32 v{vTR}, v{vL}, 2, 2')
        p(f'v_lshl_add_u32 v{t2}, v{vTR}, 6, v{t2}')
        p(f'v_lshl_add_u32 v{vTQ}, v{vH}, 8, v{t2}')
        p(f'v_add_u32 v{vTR}, s{sSTG}, v{vTQ}')
        p(f'v_add_u32 v{t2}, s{sSTG}, v{t2}')
        p(f'v_lshl_add_u32 v{vTR8}, v{vH}, 9, v{t2}')
        p(f'v_add_u32 v{vTQ}, s{sLQ}, v{vTQ}')
        p(f'v_add_u32 v{vWQ}, s{sLQ}, v{vL16}')
        p(f's_mov_b32 s{sPERM}, 0x07060302')
        self.lane_consts()
        vCSP = 104
        p(f'v_mov_b32 v{vCSP+3}, s{sONES}')
        p.ext(self.res_unpack(XR))
        p('s_waitcnt lgkmcnt(0)')
        p(f's_add_u32 s{sF}, s{sF}, 1')
        p(f's_addc_u32 s{sF+1}, s{sF+1}, 0')
        p(f'v_mov_b32 v{vF}, s{sF}')
        p(f'v_mov_b32 v{vF+1}, s{sF+1}')
        self.walker_at = len(p.items)
        self.stamp('wk')
        p('s_waitcnt vmcnt(1)')
        p.mark('drained_vm')
        self.stamp('rt1')
        for i in range(4):
            p.ext(self.rawq(0, i))
        self.flag_opt(sXF)

        def finish(nfr, offs):
            L = []
            base = None
            for k in range(nfr):
                hi, lo = offs[k] // 4096 * 4096, offs[k] % 4096
                if hi != base:
                    L.append(f's_add_u32 s{sT5}, s{sDST}, {hi}')
                    base = hi
                L.append(f'buffer_store_dwordx4 {vr(FR+4*k)}, v{vL16}, {srd(S_WS)}, s{sT5} offen offset:{lo} sc1')
            return L
        lB = {k: p.newlabel('jobB') for k in (3, 4, 5, 'join')}
        p(f's_mov_b32 s{sFL}, -1')
        p.mark('maybe_begin')
        p(f's_cmp_eq_u32 s{sJOB}, 0')
        p(f's_cbranch_scc1 {lB["join"]}')
        p(f's_cmp_eq_u32 s{sJOB}, 5')
        p(f's_cbranch_scc1 {lB[5]}')
        p(f's_cmp_ge_u32 s{sJOB}, 3')
        p(f's_cbranch_scc1 {lB[3]}')
        p(f'v_lshl_add_u32 v{vTR}, v{t0}, 5, v{t3}')
        p(f'v_add_u32 v{vTR}, s{sSTG}, v{vTR}')
        for t in range(7):
            for jj in range(2):
                p(f'ds_read_b64_tr_b16 {vr(FR+t*4+2*jj,2)}, v{vTR} offset:{t*1024+jj*512}')
        p(f's_mul_i32 s{sDST}, s{sJ}, 100352')
        p(f's_add_u32 s{sDST}, s{sDST}, {W1T}')
        p(f's_mul_i32 s{sDST2}, s{sI}, 3072')
        p(f's_add_u32 s{sDST2}, s{sDST2}, s{sDST}')
        p(f's_add_u32 s{sDST2}, s{sDST2}, 57344')
        p(f's_lshl_b32 s{sT0}, s{sI}, 12')
        p(f's_add_u32 s{sDST}, s{sDST}, s{sT0}')
        p(f's_lshl_b32 s{sFL}, s{sJ}, 4')
        p(f's_add_u32 s{sFL}, s{sFL}, s{sI}')
        p(f's_lshl_b32 s{sFL}, s{sFL}, 3')
        p(f's_add_u32 s{sFL}, s{sFL}, {F_W1}')
        p.ext(finish(4, [t * 1024 for t in range(4)]))
        for t in range(4, 7):
            p(f'buffer_store_dwordx4 {vr(FR+4*t)}, v{vL16}, {srd(S_WS)}, s{sDST2} offen offset:{(t-4)*1024} sc1')
        p(f's_branch {lB["join"]}')
        p.label(lB[3])
        for sg in range(2):
            for jj in range(2):
                p(f'ds_read_b64_tr_b16 {vr(FR+sg*4+2*jj,2)}, v{vTR} offset:{(16*jj+8*sg)*64}')
        p(f's_lshl_b32 s{sI2}, s{sTEAM}, 2')
        p(f's_add_u32 s{sI2}, s{sI2}, s{sRB}')
        p(f's_lshr_b32 s{sSL}, s{sI2}, 1')
        p(f's_and_b32 s{sHF}, s{sI2}, 1')
        p(f's_mul_i32 s{sDST}, s{sCB}, 229376')
        p(f's_mul_i32 s{sT0}, s{sSL}, 14336')
        p(f's_add_u32 s{sDST}, s{sDST}, s{sT0}')
        p(f's_lshl_b32 s{sT0}, s{sHF}, 13')
        p(f's_add_u32 s{sDST}, s{sDST}, s{sT0}')
        p(f's_lshl_b32 s{sT0}, s{sNU}, 10')
        p(f's_add_u32 s{sDST}, s{sDST}, s{sT0}')
        p(f's_add_u32 s{sDST}, s{sDST}, {W2T}')
        p(f's_lshl_b32 s{sFL}, s{sCB}, 5')
        p(f's_add_u32 s{sFL}, s{sFL}, s{sI2}')
        p(f's_lshl_b32 s{sFL}, s{sFL}, 1')
        p(f's_add_u32 s{sFL}, s{sFL}, s{sNU}')
        p(f's_lshl_b32 s{sFL}, s{sFL}, 3')
        p(f's_add_u32 s{sFL}, s{sFL}, {F_W2}')
        p(f's_cmp_eq_u32 s{sJOB}, 4')
        p(f's_cbranch_scc1 {lB[4]}')
        for sg in range(2, 4):
            for jj in range(2):
                p(f'ds_read_b64_tr_b16 {vr(FR+sg*4+2*jj,2)}, v{vTR} offset:{(32+16*jj+8*(sg%2))*64}')
        p.ext(finish(4, [k * 2048 for k in range(4)]))
        p(f's_branch {lB["join"]}')
        p.label(lB[4])
        for jj in range(2):
            p(f'ds_read_b64_tr_b16 {vr(FR+8+2*jj,2)}, v{vTR8} offset:{(32+4*jj)*64}')
        p('s_waitcnt lgkmcnt(0)')
        p.ext(finish(3, [k * 2048 for k in range(3)]))
        p(f's_branch {lB["join"]}')
        p.label(lB[5])
        for hd in range(4):
            for kp in range(2):
                for jj in range(2):
                    p(f'ds_read_b64_tr_b16 {vr(FR+(hd*2+kp)*4+2*jj,2)}, v{vTR} offset:{(28*hd+16*kp+8*jj)*64}')
        p(f's_lshl_b32 s{sFL}, s{sTEAM}, 2')
        p(f's_add_u32 s{sFL}, s{sFL}, s{sCB}')
        p(f's_lshl_b32 s{sDST}, s{sFL}, 14')
        p(f's_lshl_b32 s{sT0}, s{sNU}, 10')
        p(f's_add_u32 s{sDST}, s{sDST}, s{sT0}')
        p(f's_add_u32 s{sDST}, s{sDST}, {WOT}')
        p(f's_lshl_b32 s{sFL}, s{sFL}, 1')
        p(f's_add_u32 s{sFL}, s{sFL}, s{sNU}')
        p(f's_lshl_b32 s{sFL}, s{sFL}, 3')
        p(f's_add_u32 s{sFL}, s{sFL}, {F_WO}')
        p('s_waitcnt lgkmcnt(0)')
        p('s_mov_b32 exec_lo, 0')
        for hd in range(4):
            p(f'v_mov_b32 v{FR+(hd*2+1)*4+2}, 0')
            p(f'v_mov_b32 v{FR+(hd*2+1)*4+3}, 0')
        p('s_mov_b64 exec, -1')
        p.ext(finish(8, [k * 2048 for k in range(8)]))
        p.mark('maybe_end')
        p.label(lB['join'])
        p(f's_getreg_b32 s{sT0}, hwreg(HW_REG_XCC_ID)')
        p(f's_and_b32 s{sT0}, s{sT0}, 15')
        p(f's_lshl_b32 s{sT0}, s{sT0}, 28')
        p(f's_xor_b32 s{sT0}, s{sT0}, s{sF+1}')
        p(f'v_mov_b32 v{t2}, s{sF}')
        p(f'v_mov_b32 v{t3}, s{sT0}')
        p(f's_lshl_b32 s{sT1}, s{sTEAM}, 8')
        p(f's_lshl_b32 s{sT2}, s{sM}, 3')
        p(f's_add_u32 s{sT1}, s{sT1}, s{sT2}')
        p(f's_add_u32 s{sT1}, s{sT1}, {WS_PUR}')
        lx = p.newlabel('noxcc')
        p(f's_cmp_lg_u32 s{sW}, 0')
        p(f's_cbranch_scc1 {lx}')
        p.mark('maybe_begin')
        p('s_mov_b64 exec, 1')
        p(f'buffer_store_dwordx2 {vr(t2,2)}, off, {srd(S_WS)}, s{sT1} sc1')
        p('s_mov_b64 exec, -1')
        p.mark('maybe_end')
        p.label(lx)
        self.stamp('jB')
        for i in range(4, 7):
            p.ext(self.rawq(0, i))
        for i in range(7):
            p.ext(self.rawq(1, i))
        self.xform(0, 128, vCSP, vCSP + 3)
        self.flag_opt(sFL)
        self.stamp('xf0')
        self.xform(1, 160, vCSP + 1, vCSP + 3)
        self.cs_partial((0, 1), vCSP, t2, t3)
        p('s_waitcnt lgkmcnt(0)')
        p('s_barrier')
        self.stamp('bar')
        self.cs_sum((0, 1), 108, t2, t3)
        self.stamp('pro')

    def wqt_publish(self, R):
        p = self.p
        l = p.newlabel('nowqt')
        p(f's_lshl_b32 s{sT0}, s{sTEAM}, 1')
        p(f's_add_u32 s{sT0}, s{sT0}, s{sA}')
        p(f's_cmp_ge_u32 s{sT0}, 14')
        p(f's_cbranch_scc1 {l}')
        p(f's_cmp_lg_u32 s{sW}, 0')
        p(f's_cbranch_scc1 {l}')
        p.mark('maybe_begin')
        p(f's_lshl_b32 s{sT1}, s{sT0}, 11')
        p(f'v_add_u32 v{R+24}, s{sT1}, v{vL16}')
        for tau in range(2):
            for kp in range(2):
                p(f'ds_read_b128 {vr(R+(tau*2+kp)*4)}, v{R+24} offset:{tau*28672+kp*1024}')
        p(f's_mul_i32 s{sT2}, s{sJ}, 86016')
        p(f's_add_u32 s{sT1}, s{sT1}, s{sT2}')
        for tau in range(2):
            p(f's_add_u32 s{sT2}, s{sT1}, {WQT + tau*28672}')
            for kp in range(2):
                p(f'buffer_store_dwordx4 {vr(R+(tau*2+kp)*4)}, v{vL16}, {srd(S_WS)}, s{sT2} offen offset:{kp*1024} sc1')
        p(f's_lshl_b32 s{sJFL}, s{sJ}, 4')
        p(f's_add_u32 s{sJFL}, s{sJFL}, s{sT0}')
        p(f's_lshl_b32 s{sJFL}, s{sJFL}, 3')
        p(f's_add_u32 s{sJFL}, s{sJFL}, {F_WQ}')
        p.mark('maybe_end')
        p.label(l)

    def p1(self):
        p, L0 = self.p, self.L == 0
        X, ACC, RING, CS = 32, 144, 192, 224
        accK, accV, accQ = ACC, ACC + 16, ACC + 32
        PK, PV = vT, vT + 8
        sXO, sST, sFX, sKV, sKF = sO, sO + 7, sO + 8, sO + 9, sO + 10
        p.ext(self.off(sFX, sTP, 128, O_FXA))
        if not L0:
            self.poll_first(vL8, f's{sFX}', 14)
        p.ext(self.xoff(sXO, sTP, 28672, O_XA))
        for g in range(1, 7):
            p(f's_add_u32 s{sXO+g}, s{sXO}, {4096*g}')
        p.ext(self.off(sST, sTP, 3584, O_STA))
        p(f's_lshl_b32 s{sT0}, s{sJ}, 3')
        p(f's_add_u32 s{sT0}, s{sT0}, s{sTP}')
        p.ext(self.off(sKV, sT0, 4096, O_KV))
        p.ext(self.off(sKF, sT0, 128, O_FKV))
        p(f'v_lshrrev_b32 v{vCSA}, 5, v{vL}')
        p(f'v_lshlrev_b32 v{vCSA}, 4, v{vCSA}')
        p(f'v_add_u32 v{vCSA}, {L_CSQ}, v{vCSA}')
        sW2E, sW2F = sO + 11, sO + 12
        vQ = 238
        if L0:
            self.vDQ, self.vTQ, self.vWQ = vQ, 225, 226
            p.ext([f'v_lshrrev_b32 v{vQ}, 2, v{vL}', f'v_mul_u32_u24 v{vQ}, 2688, v{vQ}', f'v_and_b32 v{vQ+1}, 3, v{vL}',
                   f'v_lshl_add_u32 v{vQ}, v{vQ+1}, 4, v{vQ}', f'v_lshlrev_b32 v{vQ+1}, 7, v{vL}'])

        def frag(f):
            if f < 56:
                base, off = vL16, (f % 2) * 28672 + (f // 2) * 1024
            else:
                base, off = vA1, (f - 56) * 1024
            return f'ds_read_b128 {vr(RING + 4*(f % 8))}, v{base} offset:{off}'

        def mf(f):
            acc, s = ((accK, accV)[f % 2], f // 2) if f < 56 else (accQ, f - 56)
            return f'{MF32} {vr(acc,16)}, {vr(RING+4*(f%8))}, {vr(X+4*s)}, {vr(acc,16) if s else 0}'

        def xl(s):
            return f'buffer_load_dwordx4 {vr(X+4*s)}, v{vL16}, {srd(S_WS)}, s{sXO + s//4} offen offset:{(s%4)*1024} sc1'
        PD = 6
        for f in range(PD):
            p(frag(f))
        self.stamp('p5')
        self.pad()
        if L0:
            a0, a1, d0 = 144, 145, 146
            p.ext([f'v_min_u32 v{a0}, {13*8}, v{vL8}', f'v_add_u32 v{a0}, s{sFX}, v{a0}',
                   f's_lshl_b32 s{sT0}, s{sTEAM}, 8', f's_add_u32 s{sT0}, s{sT0}, {WS_PUR - 32*8}', f'v_add_u32 v{a1}, s{sT0}, v{vL8}',
                   f'v_cmp_le_u32 vcc, 32, v{vL}', f'v_cndmask_b32 v{a0}, v{a0}, v{a1}, vcc'])
            lp, lo = p.newlabel('pur'), p.newlabel('purout')
            p.ext([f's_mov_b32 s{sCNT}, 0', Label(lp),
                   f'buffer_load_dwordx2 {vr(d0,2)}, v{a0}, {srd(S_WS)}, 0 offen sc1',
                   f's_add_u32 s{sCNT}, s{sCNT}, 1', f's_cmp_gt_u32 s{sCNT}, {POLL_MAX}', f's_cbranch_scc1 {lo}', 's_waitcnt vmcnt(0)',
                   f'v_xor_b32 v{d0+1}, s{sF+1}, v{d0+1}', f'v_xor_b32 v{d0}, s{sF}, v{d0}', f'v_and_b32 v{a1}, 0x0fffffff, v{d0+1}',
                   f'v_or_b32 v{d0}, v{d0}, v{a1}', f'v_cmp_ne_u32 vcc, 0, v{d0}', f's_cbranch_vccnz {lp}', Label(lo), Mark('drained_vm')])
        else:
            self.vpoll(vL8, f's{sFX}', 14)
        self.stamp('E')
        XP = 8
        for s in range(XP):
            p(xl(s))
        if L0:
            p.ext([f'v_readlane_b32 s{sT1}, v{d0+1}, 32', f'v_cmp_ne_u32 vcc, s{sT1}, v{d0+1}', 's_cmp_eq_u32 vcc_hi, 0',
                   f's_cselect_b32 s{sPURE}, {0 if os.environ.get("FORCE_IMPURE") else 1}, 0',
                   f's_cmp_eq_u32 s{sPURE}, 0', f's_cselect_b64 s[{sIMP}:{sIMP+1}], -1, 0'])
        mem, pre = {}, {}
        for f in range(84):
            mem[f] = []
            if f + PD < 84 and not (f < 56 <= f + PD):
                mem[f].append(frag(f + PD))
            if f < 56 and f % 2 == 0 and f // 2 + XP < 28:
                mem[f].append(xl(f // 2 + XP))
            if 27 <= f < 41 and f % 2 == 1:
                mem[f].append(self.stats_loads(sST, CS)[(f - 27) // 2])
            if f % 2 == 0:
                pre[f] = [Touch(vr(RING + 4 * (f % 8)) + ' ' + vr(RING + 4 * ((f + 1) % 8)) + (' ' + vr(X + 4 * (f // 2)) if f < 56 else ''))]
        if L0:
            for i in range(7):
                mem[40 + 2 * i].append(self.rawq(2, i))
        else:
            p(f's_mul_i32 s{sT0}, s{sW}, 7168')
            p(f'v_add_u32 v{vQ}, s{sT0}, v{vA1}')
            for i in range(7):
                mem[3 + 4 * i].append(Ins(f'ds_write_b128 v{vQ}, {ar(224 + 4*i)} offset:{1024*i}', 'wq'))
        for f in (0, 16, 38):
            mem[f] += self.stamp_items(f'k{f}')

        def cs_reads(tau, dst):
            return [f'ds_read_b128 {vr(dst+4*q)}, v{vCSA} offset:{tau*128 + 32*q}' for q in range(4)]
        p.ext(sched([mf(f) for f in range(56)], pre, mem, cs_reads(1, accQ) + cs_reads(0, PK) + self.stats_reduce(CS), 6, start=43))
        self.stamp('kv')

        def epi(acc, cs, P):
            L = []
            for r in range(0, 16, 2):
                L.append(f'v_pk_fma_f32 {vr(acc+r,2)}, {vr(cs+r,2)}, {vr(vMEAN,2)}, {vr(acc+r,2)} op_sel:[0,0,0] op_sel_hi:[1,0,1]')
            for r in range(0, 16, 2):
                L.append(f'v_pk_mul_f32 {vr(acc+r,2)}, {vr(acc+r,2)}, {vr(vMEAN,2)} op_sel:[0,1] op_sel_hi:[1,1]')
                L.append(f'v_cvt_pk_bf16_f32 v{P+r//2}, v{acc+r}, v{acc+r+1}')
            return L

        def pad(P, c6, c7):
            return ['s_mov_b32 exec_lo, 0', f'v_mov_b32 v{P+6}, {c6:#x}', f'v_mov_b32 v{P+7}, {c7:#x}', 's_mov_b64 exec, -1']

        def st(P, o):
            return [Ins(f'buffer_store_dwordx4 {vr(P+4*k)}, v{vL16}, {srd(S_WS)}, s{sKV} offen offset:{o+1024*k} sc1', 'kvst') for k in range(2)]
        t0, t1 = CS, CS + 1
        p.ext(epi(accK, PK, PK) + pad(PK, 0x3f803f80, 0x3f80) + st(PK, 0))
        p.ext(epi(accV, accQ, PV) + pad(PV, 0x3f80, 0) + st(PV, 2048))
        self.stamp('kvs')
        if L0:
            R = ACC
            vcs, vones, t2, t3 = R + 28, R + 29, R + 30, R + 31
            p.ext([f'v_and_b32 v225, 3, v{vL}', 'v_lshlrev_b32 v225, 3, v225', f'v_bfe_u32 v226, v{vL}, 4, 1',
                   'v_lshl_add_u32 v225, v226, 5, v225', f'v_bfe_u32 v226, v{vL}, 2, 2', 'v_lshl_add_u32 v225, v226, 6, v225',
                   f'v_lshrrev_b32 v226, 5, v{vL}', 'v_lshl_add_u32 v225, v226, 8, v225', f'v_add_u32 v225, s{sLQ}, v225',
                   f'v_add_u32 v226, s{sLQ}, v{vL16}', f'v_mov_b32 v{vones}, s{sONES}'])
            self.xform(2, R, vcs, vones)
            p.wait('kvst')
            p.ext(self.flag_sc1(sKF))
            for i in range(28):
                p(f'v_accvgpr_write_b32 a{224+i}, v{R+i}')
            self.cs_partial((2,), vcs, t2, t3)
            p('s_waitcnt lgkmcnt(0)')
            p('s_barrier')
            self.cs_sum((2,), R, t2, t3)
        else:
            p.wait('wq')
            p('s_barrier')
        for f in range(56, 56 + PD):
            p(frag(f))
        side = [f's_lshl_b32 s{sT0}, s{sW}, 12', f's_add_u32 s{sT0}, s{sT0}, {LKV + 8*4096}',
                f'v_add_u32 v{t0}, s{sT0}, v{vL16}',
                f'ds_write_b128 v{t0}, {vr(PK)}', f'ds_write_b128 v{t0}, {vr(PK+4)} offset:1024',
                f'v_and_b32 v{t1}, 31, v{vL}', f'v_lshlrev_b32 v{t1}, 6, v{t1}', f'v_lshrrev_b32 v{t0}, 5, v{vL}',
                f'v_lshl_add_u32 v{t1}, v{t0}, 4, v{t1}', f'v_add_u32 v{t0}, s{sT0}, v{t1}',
                f'ds_write_b128 v{t0}, {vr(PV)} offset:2048', f'ds_write_b128 v{t0}, {vr(PV+4)} offset:{2048+32}',
                f'v_mul_f32 v{vRSTD}, {f32bits(28 ** -0.5 * math.log2(math.e)):#x}, v{vRSTD}'] + cs_reads(2, CS) + self.kv_addr()
        pre2 = {f - 56: v for f, v in pre.items() if f >= 56}
        mem2 = {f - 56: v for f, v in mem.items() if f >= 56}
        if not L0:
            mem2[22].append([Wait(['kvst'])] + self.flag_sc1(sKF))
        if L0:
            vW = 146
            p.ext([f's_lshl_b32 s{sT0}, s{sJ}, 7', f's_add_u32 s{sT0}, s{sT0}, {F_W1}', f's_lshl_b32 s{sT1}, s{sCB}, 6',
                   f's_add_u32 s{sT1}, s{sT1}, {F_WO - 14*8}', f's_lshl_b32 s{sT2}, s{sCB}, 9', f's_lshl_b32 s{sT3}, s{sW}, 7',
                   f's_add_u32 s{sT2}, s{sT2}, s{sT3}', f's_add_u32 s{sT2}, s{sT2}, {F_W2 - 22*8}',
                   f'v_mov_b32 v{vW}, s{sT0}', f'v_mov_b32 v{vW+1}, s{sT1}', f'v_cmp_le_u32 vcc, 14, v{vL}',
                   f'v_cndmask_b32 v{vW}, v{vW}, v{vW+1}, vcc', f'v_mov_b32 v{vW+1}, s{sT2}', f'v_cmp_le_u32 vcc, 22, v{vL}',
                   f'v_cndmask_b32 v{vW}, v{vW}, v{vW+1}, vcc', f'v_add_u32 v{vW}, v{vW}, v{vL8}'])
            mem2[4] += self.peek_issue(vW, '0', 38)
            mem2[15] += self.peek_check(vW, '0', 38, acquire=False)
        cut = 16 if L0 else 28
        p.ext(sched([mf(f) for f in range(56, 56 + cut)], pre2, mem2, side, 6, start=0))
        self.stamp('q')
        self.kv_fetch()
        p.ext(sched([mf(f) for f in range(56 + cut, 84)], {k - cut: v for k, v in pre2.items() if k >= cut},
                    {k - cut: v for k, v in mem2.items() if k >= cut}, [], 6))
        QF = 200
        p.ext(epi(accQ, CS, QF))
        p.ext(pad(QF, 0, 0x3f800000))
        if L0:
            p(f's_mov_b32 s{sJFL}, -1')
            self.wqt_publish(32)
        self.pad()
        p('s_barrier')
        self.stamp('p1')

    sKD, sKL, sKFl, sNULL = sO + 11, sO + 13, (sO + 15, 78), 79

    def kv_addr(self):
        sKD, sKL, sKFl, sNULL = self.sKD, self.sKL, self.sKFl, self.sNULL
        L = [f's_mov_b32 s{sNULL}, 0']
        for k in range(2):
            L += [f's_lshl_b32 s{sT0}, s{sW}, 1', f's_add_u32 s{sT0}, s{sT0}, {k}',
                  f's_lshl_b32 s{sKL+k}, s{sT0}, 12', f's_add_u32 s{sKL+k}, s{sKL+k}, {LKV}',
                  f's_lshl_b32 s{sT1}, s{sA}, 2', f's_add_u32 s{sT0}, s{sT0}, s{sT1}',
                  [f's_cmp_lt_u32 s{sT0}, 8', f's_cselect_b32 s{sT1}, {STRIDE}, 0'],
                  f's_sub_u32 s{sT1}, s{sLB}, s{sT1}', f's_and_b32 s{sT0}, s{sT0}, 7',
                  [f's_cmp_lt_i32 s{sT1}, {TEAM0}', f's_cselect_b32 s{sT2}, {1 << k}, 0',
                   f's_cselect_b32 s{sT1}, s{sLB}, s{sT1}', f's_cselect_b32 s{sT0}, s{sTP}, s{sT0}'],
                  f's_or_b32 s{sNULL}, s{sNULL}, s{sT2}', f's_lshl_b32 s{sT2}, s{sJ}, 3', f's_add_u32 s{sT0}, s{sT0}, s{sT2}',
                  f's_lshl_b32 s{sKD+k}, s{sT0}, 12', f's_add_u32 s{sKD+k}, s{sKD+k}, s{sT1}',
                  f's_lshl_b32 s{sT0}, s{sT0}, 7', f's_add_u32 s{sT0}, s{sT0}, s{sT1}', f's_add_u32 s{sKFl[k]}, s{sT0}, {O_FKV}']
        return L

    def kv_fetch(self):
        p = self.p
        t0, t1, Z, NK = 144, 145, 148, 2
        sKD, sKL, sKFl, sNULL = self.sKD, self.sKL, self.sKFl, self.sNULL
        p(f'v_bfe_u32 v{t0}, v{vL}, 1, 1')
        p(f'v_lshlrev_b32 v{t0}, 10, v{t0}')
        p(f'v_and_b32 v{t1}, 1, v{vL}')
        p(f'v_lshl_add_u32 v{t0}, v{t1}, 9, v{t0}')
        p(f'v_lshrrev_b32 v{t1}, 2, v{vL}')
        p(f'v_lshl_add_u32 v{t0}, v{t1}, 4, v{t0}')
        lp, lo = p.newlabel('kvpoll'), p.newlabel('kvpollout')
        self.stamp('w1')
        p('s_waitcnt lgkmcnt(0)')
        p(f's_mov_b32 s{sCNT}, 0')
        p.label(lp)
        for k in range(NK):
            p(f's_buffer_load_dwordx2 s[{sPOLL+2*k}:{sPOLL+2*k+1}], {srd(S_WS)}, s{sKFl[k]} glc')
        p(f's_add_u32 s{sCNT}, s{sCNT}, 1')
        p(f's_cmp_gt_u32 s{sCNT}, {POLL_MAX}')
        p(f's_cbranch_scc1 {lo}')
        p('s_waitcnt lgkmcnt(0)')
        for k in range(NK):
            p(f's_cmp_eq_u64 s[{sPOLL+2*k}:{sPOLL+2*k+1}], s[{sF}:{sF+1}]')
            p(f's_cbranch_scc0 {lp}')
        p.label(lo)
        self.stamp('kvf')
        for k in range(NK):
            lnull, lb = p.newlabel('null'), p.newlabel('nullback')
            p(f's_bitcmp1_b32 s{sNULL}, {k}')
            p(f's_cbranch_scc1 {lnull}')
            p.mark('maybe_begin')
            p(f's_mov_b32 m0, s{sKL+k}')
            p(f's_sub_u32 s{sT5}, s{sKD+k}, 768')
            p(f'buffer_load_dwordx4 v{vL16}, {srd(S_WS)}, s{sKD+k} offen sc1 lds')
            p(f'buffer_load_dwordx4 v{vL16}, {srd(S_WS)}, s{sKD+k} offen offset:1024 sc1 lds')
            p(f'buffer_load_dwordx4 v{t0}, {srd(S_WS)}, s{sKD+k} offen offset:2048 sc1 lds')
            p(f'buffer_load_dwordx4 v{t0}, {srd(S_WS)}, s{sT5} offen offset:3072 sc1 lds')
            p.mark('maybe_end')
            p.label(lb)
            self.tail.append((lnull, [
                f'v_add_u32 v{t1}, s{sKL+k}, v{vL16}',
                f'v_mov_b32 v{Z}, 0', f'v_mov_b32 v{Z+1}, 0', f'v_mov_b32 v{Z+2}, 0', f'v_mov_b32 v{Z+3}, 0'] +
                [f'ds_write_b128 v{t1}, {vr(Z)} offset:{o}' for o in (0, 2048, 3072)] +
                ['s_mov_b32 exec_lo, 0', f'v_mov_b32 v{Z+3}, 0xf1490000', 's_mov_b64 exec, -1',
                 f'ds_write_b128 v{t1}, {vr(Z)} offset:1024', f's_branch {lb}']))

    def attn(self):
        p, L0 = self.p, self.L == 0
        KF, ST, MW, MD, OA, QF, PB, VF = 32, 104, 152, 168, 184, 200, 208, 224
        t0, t1 = 104, 105
        t2, t3 = 106, 107
        p(f'v_and_b32 v{t2}, 31, v{vL}')
        p(f'v_lshrrev_b32 v{t3}, 5, v{vL}')
        p(f'v_lshlrev_b32 v{t3}, 2, v{t3}')
        p(f'v_sub_u32 v{t2}, v{t2}, v{t3}')
        p(f'v_mov_b32 v{t3}, {f32bits(-1e30):#x}')
        for r in range(0, 16, 2):
            k0, k1 = 8 * (r // 4) + r % 4, 8 * (r // 4) + r % 4 + 1
            p(f'v_cmp_le_i32 vcc, {k0}, v{t2}')
            p(f'v_cmp_le_i32 s[{sPOLL}:{sPOLL+1}], {k1}, v{t2}')
            p('s_nop 0')
            p(f'v_cndmask_b32_e64 v{MD+r}, v{t3}, 0, vcc')
            p(f'v_cndmask_b32_e64 v{MD+r+1}, v{t3}, 0, s[{sPOLL}:{sPOLL+1}]')
            p(f'v_cndmask_b32_e64 v{MW+r}, 0, v{t3}, vcc')
            p(f'v_cndmask_b32_e64 v{MW+r+1}, 0, v{t3}, s[{sPOLL}:{sPOLL+1}]')
        vKA, vVA = vT, vT + 1
        p(f's_lshl_b32 s{sT0}, s{sW}, 12')
        p(f's_add_u32 s{sT0}, s{sT0}, {LKV}')
        p(f'v_add_u32 v{vKA}, s{sT0}, v{vL16}')
        p(f'v_lshrrev_b32 v{t2}, 5, v{vL}')
        p(f'v_bfe_u32 v{t3}, v{vL}, 2, 2')
        p(f'v_lshl_add_u32 v{t2}, v{t2}, 2, v{t3}')
        p(f'v_lshlrev_b32 v{vVA}, 6, v{t2}')
        p(f'v_bfe_u32 v{t2}, v{vL}, 4, 1')
        p(f'v_lshl_add_u32 v{vVA}, v{t2}, 5, v{vVA}')
        p(f'v_and_b32 v{t2}, 1, v{vL}')
        p(f'v_lshl_add_u32 v{vVA}, v{t2}, 4, v{vVA}')
        p(f'v_bfe_u32 v{t2}, v{vL}, 1, 1')
        p(f'v_lshl_add_u32 v{vVA}, v{t2}, 3, v{vVA}')
        p(f'v_add_u32 v{vVA}, s{sT0}, v{vVA}')
        sOD, sOF, sWO = sO, sO + 1, sO + 2
        p(f's_lshl_b32 s{sT0}, s{sTP}, 4')
        p(f's_add_u32 s{sT0}, s{sT0}, s{sJ}')
        p.ext(self.roff(sOD, sT0, 2048, O_O))
        p.ext(self.off(sOF, sT0, 8, O_FO))
        p(f's_lshl_b32 s{sWO}, s{sCB}, 2')
        p(f's_add_u32 s{sWO}, s{sWO}, s{sW}')
        p(f's_lshl_b32 s{sWO}, s{sWO}, 14')
        p(f's_add_u32 s{sWO}, s{sWO}, {WOT}')
        for g in range(1, 4):
            p(f's_add_u32 s{sWO+g}, s{sWO}, {4096*g}')
        vPT = vT + 12
        p(f'v_lshlrev_b32 v{vPT}, 7, v{vL}')
        p(f'v_add_u32 v{vPT}, s{sOD}, v{vPT}')
        p(f's_lshl_b32 s{sT0}, s{sTP}, 7')
        p(f's_lshl_b32 s{sT1}, s{sRB}, 8')
        p(f's_lshl_b32 s{sT2}, s{sRHO}, 7')
        p(f's_add_u32 s{sT2}, s{sT2}, s{sT1}')
        p(f's_mul_i32 s{sT3}, s{sT2}, 28')
        p(f's_lshl_b32 s{sT4}, s{sCB}, 9')
        p(f's_add_u32 s{sT3}, s{sT3}, s{sT4}')
        p(f's_lshl_b32 s{sT4}, s{sNU}, 8')
        p(f's_add_u32 s{sT3}, s{sT3}, s{sT4}')
        for lane, (r, c) in enumerate([(sT0, O_FO), (sT1, O_FO), (sT1, O_FO + 128), (sT0, O_FX1), (sT2, O_FX1),
                                       (sT3, O_ST1), (sT3, O_ST1 + 128), (sT0, O_FH), (sT1, O_FH), (sT1, O_FH + 128),
                                       (sT0, O_FH + 1024), (sT1, O_FH + 1024), (sT1, O_FH + 1024 + 128)]):
            p(f's_add_u32 s{sT4}, s{r}, {c}')
            p(f's_add_u32 s{sT4}, s{sT4}, s{sLB}')
            p(f'v_writelane_b32 v{vPT}, s{sT4}, {16 + lane}')
        vZ = vT + 8
        p(f's_lshl_b32 s{sT0}, s{sNU}, 10')
        p(f'v_xor_b32 v{vZ}, s{sT0}, v{vL16}')
        p(f'v_xor_b32 v{vZ+1}, 1024, v{vZ}')
        vT7 = vT + 7
        p(f'v_lshlrev_b32 v{vT7}, 7, v{vL}')
        p.ext(self.pub_offsets(O_X1, O_ST1, O_FX1))
        p(f's_sub_u32 s{sT0}, s{sXD}, {29*128}')
        p(f'v_add_u32 v{t2}, s{sT0}, v{vT7}')
        p(f'v_cmp_lt_u32 vcc, 28, v{vL}')
        p(f'v_cndmask_b32 v{vPT}, v{vPT}, v{t2}, vcc')
        sWT = sO + 6
        p(f's_lshl_b32 s{sT0}, s{sCB}, 2')
        p(f's_add_u32 s{sT0}, s{sT0}, s{sRB}')
        p(f's_lshl_b32 s{sWT}, s{sT0}, 14')
        p(f's_lshl_b32 s{sT2}, s{sW}, 12')
        p(f's_add_u32 s{sWT}, s{sWT}, s{sT2}')
        p(f's_add_u32 s{sWT}, s{sWT}, {WOT}')
        touches = ['s_mov_b32 exec_hi, 0', f'buffer_load_dword a255, v{vT7}, {srd(S_WS)}, s{sWT} offen sc1', self.setexec(45),
                   f'buffer_load_dword a255, v{vPT}, {srd(S_WS)}, 0 offen sc1', 's_mov_b64 exec, -1']
        bg = self.w1_dma(0)
        while not is_mem(bg[0]):
            p.ext([bg.pop(0)])
        bw = []
        if L0:
            p.ext(self.w2_setup(sO + 7, (vT + 10, vT + 11)))
            bw = self.w2_loads(sO + 7, (vT + 10, vT + 11))
            for _ in range(NW1):
                p.ext([bw.pop(0)])
        self.pad()
        p(f's_waitcnt vmcnt({NW1 if L0 else 0}) lgkmcnt(0)')
        if L0:
            self.flag_opt(sJFL)
        self.stamp('kvd')
        p('s_barrier')
        self.stamp('A')
        p.ext(touches)

        def kread(t):
            return [f'ds_read_b128 {vr(KF+8*t+4*k)}, v{vKA} offset:{t*4096+k*1024}' for k in range(2)]

        def qk(t):
            s = ST + 16 * (t % 3)
            c = vr(MW, 16) if t == 0 else vr(MD, 16) if t == 8 else '0'
            return [f'{MF32} {vr(s,16)}, {vr(KF+8*t)}, {vr(QF)}, {c}',
                    f'{MF32} {vr(s,16)}, {vr(KF+8*t+4)}, {vr(QF+4)}, {vr(s,16)}']
        vM, vM2 = vT + 2, vT + 3

        def mx(t):
            s = ST + 16 * (t % 3)
            L = []
            for i in range(8):
                d = vM if i % 2 == 0 else vM2
                if t == 0 and i < 2:
                    L.append(f'v_max_f32 v{d}, v{s+2*i}, v{s+2*i+1}')
                else:
                    L.append(f'v_max3_f32 v{d}, v{s+2*i}, v{s+2*i+1}, v{d}')
            return L

        def vread(t):
            d = VF + 8 * (t % 2)
            return [f'ds_read_b64_tr_b16 {vr(d+4*kv+2*jj,2)}, v{vVA} offset:{t*4096+2048+(16*kv+8*jj)*64}'
                    for kv in range(2) for jj in range(2)]
        def popbg(bg=bg):
            L = []
            while bg:
                x = bg.pop(0)
                L.append(x)
                if is_mem(x):
                    break
            return L
        for t in range(4):
            p.ext(kread(t))
        q = qk(0)
        p.ext([q[0]] + kread(4) + [q[1]] + kread(5))
        q = qk(1)
        p.ext([q[0]] + kread(6) + popbg(bw) + [q[1]] + kread(7) + popbg(bw))
        for t in range(9):
            m = mx(t)
            if t + 2 < 9:
                q = qk(t + 2)
                extra = kread(8) if t == 0 else vread(0)[:2] if t == 5 else vread(0)[2:] if t == 6 else []
                if t % 2 == 1:
                    extra = extra + popbg()
                p.ext([q[0]] + extra + popbg(bw) + m[:4] + [q[1]] + popbg(bw) + m[4:])
            else:
                p.ext(m)
        self.stamp('a1')
        a, b2, r1 = vT + 4, vT + 5, vT + 6
        p(f'v_max_f32 v{vM}, v{vM}, v{vM2}')
        p(f'v_mov_b32 v{a}, v{vM}')
        p(f'v_permlane32_swap_b32 v{vM}, v{a}')
        p(f'v_max_f32 v{vM}, v{vM}, v{a}')
        p(f'v_xor_b32 v{vM}, 0x80000000, v{vM}')
        p(f'v_and_b32 v{a}, 0xffff0000, v{vM}')
        p(f'v_sub_f32 v{r1}, v{vM}, v{a}')
        p(f'v_and_b32 v{a}, 0xffff0000, v{r1}')
        p(f'v_sub_f32 v{b2}, v{r1}, v{a}')
        p('s_mov_b32 exec_lo, 0')
        p(f'v_perm_b32 v{QF+6}, v{r1}, v{vM}, s{sPERM}')
        p(f'v_perm_b32 v{QF+7}, 1.0, v{b2}, s{sPERM}')
        p('s_mov_b64 exec, -1')

        def ex(t):
            s = ST + 16 * (t % 3)
            pb = PB + 8 * (t % 2)
            L = []
            for i in range(8):
                L.append(f'v_exp_f32 v{s+2*i}, v{s+2*i}')
                L.append(f'v_exp_f32 v{s+2*i+1}, v{s+2*i+1}')
                if i:
                    L.append(f'v_cvt_pk_bf16_f32 v{pb+i-1}, v{s+2*i-2}, v{s+2*i-1}')
            L.append(f'v_cvt_pk_bf16_f32 v{pb+7}, v{s+14}, v{s+15}')
            return L

        def pv(t):
            d = VF + 8 * (t % 2)
            pb = PB + 8 * (t % 2)
            return [f'{MF32} {vr(OA,16)}, {vr(d)}, {vr(pb)}, {vr(OA,16) if t else 0}',
                    f'{MF32} {vr(OA,16)}, {vr(d+4)}, {vr(pb+4)}, {vr(OA,16)}']

        self.pad()

        def wol(i):
            ks, z = i // 2, i % 2
            return f'buffer_load_dwordx4 {vr(32+4*i)}, v{vZ+z}, {srd(S_WS)}, s{sWO + ks//2} offen offset:{(ks%2)*2048} sc1'
        p.ext(qk(0))
        p.ext(qk(1))
        for t in range(9):
            e = ex(t)
            mf = (pv(t - 1) if t else []) + (qk(t + 2) if t + 2 < 9 else [])
            out = []
            pos = [2, 7, 12, 17]
            for i, x in enumerate(e):
                out.append(x)
                if i in pos and pos.index(i) < len(mf):
                    k = pos.index(i)
                    out.append(mf[k])
                    if t + 1 < 9:
                        if t == 0:
                            out += vread(1)[2 * k:2 * k + 2]
                        elif k in (1, 2):
                            out += vread(t + 1)[2 * (k - 1):2 * (k - 1) + 2]
                        elif t == 7 and k == 1:
                            pass
                    if t < 6 and k in (0, 3) or t == 0:
                        out += popbg()
                    if t < 7:
                        out += popbg(bw) + (popbg(bw) if k % 2 or t == 0 else [])
                    if t >= 7:
                        out += [wol(8 * (t - 7) + 4 * k + q) for q in range(4)]
            if t == 7:
                out = out[:-3] + vread(8)[2:] + out[-3:]
            p.ext(out)
        assert not bg and not bw, (len(bg), len(bw))
        p.ext(pv(8))
        self.stamp('a2')
        p(f'v_mov_b32 v{a}, v{OA+12}')
        p(f'v_mov_b32 v{b2}, v{OA+12}')
        p(f'v_permlane32_swap_b32 v{a}, v{b2}')
        p(f'v_rcp_f32 v{b2}, v{b2}')
        for i in range(8):
            p(f'v_pk_mul_f32 {vr(OA+2*i,2)}, {vr(OA+2*i,2)}, {vr(a,2)} op_sel:[0,1] op_sel_hi:[1,1]')
            p(f'v_cvt_pk_bf16_f32 v{PB+i}, v{OA+2*i}, v{OA+2*i+1}')
            if i % 4 == 3:
                p(f'buffer_store_dwordx4 {vr(PB+i-3)}, v{vL16}, {srd(S_WS)}, s{sOD} offen offset:{(i//4)*1024}', tok='ost')
        self.publish(['ost'], sOF)
        self.stamp('att')

    def reduce_writes(self, ACC):
        return [Ins(f'ds_write_b128 v{vRW+x-1}, {vr(ACC+16*x+4*c)} offset:{c*1024}', 'rw') for x in range(1, 4) for c in range(4)]

    def reduce_finish(self, ACC, TMP):
        p = self.p
        p.wait('rw')
        self.pad()
        p('s_barrier')
        for c in range(4):
            for x in range(3):
                p(f'ds_read_b128 {vr(TMP+16*x+4*c)}, v{vRW+3} offset:{x*4096+c*1024}')
        for c in range(8):
            p(f'v_pk_add_f32 {vr(TMP+2*c,2)}, {vr(TMP+2*c,2)}, {vr(TMP+16+2*c,2)}')
            p(f'v_pk_add_f32 {vr(ACC+2*c,2)}, {vr(ACC+2*c,2)}, {vr(TMP+32+2*c,2)}')
            p(f'v_pk_add_f32 {vr(ACC+2*c,2)}, {vr(ACC+2*c,2)}, {vr(TMP+2*c,2)}')

    def yoffs(self, dst, mul, add):
        L = []
        for y in range(2):
            L += [f's_xor_b32 s{sT0}, s{sRHO}, {y}', f's_lshl_b32 s{sT1}, s{sRB}, 1', f's_add_u32 s{sT0}, s{sT0}, s{sT1}',
                  f's_lshl_b32 s{sT0}, s{sT0}, 2', f's_add_u32 s{sT0}, s{sT0}, s{sW}'] + self.roff(dst + y, sT0, mul, add)
        return L

    def p3(self):
        p, L0 = self.p, self.L == 0
        WO, OF, ACC, RING = 32, 96, 160, 200

        def colsum(part, AC=ACC, RG=RING, T=vT):
            for i in range(4):
                p(f'v_mov_b32 v{T+4+i}, s{sONES}')
            p(f's_lshl_b32 s{sT0}, s{sW}, 10')
            if part == 0:
                p(f'v_add_u32 v{T}, s{sT0}, v{vL16}')
            else:
                p(f's_min_u32 s{sT0}, s{sT0}, 2048')
                p(f'v_add_u32 v{T}, s{sT0}, v{vA1}')
            NRG = 6 if part == 0 else 4
            rd = lambda f: f'ds_read_b128 {vr(RG+4*(f%NRG))}, v{T} offset:{f*(4096, 3072)[part]}'
            for f in range(NRG - 1):
                p(rd(f))
            for f in range(14):
                p(f'{MF16} {vr(AC)}, {vr(T+4)}, {vr(RG+4*(f%NRG))}, {vr(AC) if f else 0}')
                if f + NRG - 1 < 14:
                    p(rd(f + NRG - 1))
            p(f's_lshl_b32 s{sT0}, s{sW}, 6')
            p(f's_add_u32 s{sT0}, s{sT0}, {L_CS1 + 256*part}')
            p(f'v_and_b32 v{T}, 15, v{vL}')
            p(f'v_lshlrev_b32 v{T}, 2, v{T}')
            p(f'v_add_u32 v{T}, s{sT0}, v{T}')
            p(f'ds_write_b32 v{T}, v{AC}')
            p('s_waitcnt lgkmcnt(0)')
        w1d = []
        self.pad()
        p('s_barrier')
        if L0:
            colsum(0)
        ljoin, lidle = p.newlabel('p3join'), p.newlabel('p3idle')
        p(f's_cmp_ge_u32 s{sM}, 28')
        p(f's_cbranch_scc1 {lidle}')
        p.mark('maybe_begin')
        sFO, sY = sO, sO + 2
        p(f's_lshl_b32 s{sT0}, s{sRB}, 3')
        p(f's_add_u32 s{sT0}, s{sT0}, s{sW}')
        p.ext(self.off(sFO, sT0, 32, O_FO))
        self.poll_first(vFLG, f's{sFO}', 8)
        p.ext(self.yoffs(sY, 8192, O_O))
        p(f's_add_u32 s{sY+2}, s{sY}, 4096')
        p(f's_add_u32 s{sY+3}, s{sY+1}, 4096')
        self.vpoll(vFLG, f's{sFO}', 8)
        self.stamp('B')

        def ld(ks, y):
            return f'buffer_load_dwordx4 {vr(OF+(ks*2+y)*4)}, v{vL16}, {srd(S_WS)}, s{sY + 2*(ks//4) + y} offen offset:{(ks%4)*1024} sc1'

        def mf(ks, x):
            y, z = x >> 1, x & 1
            c = vr(ACC + 16 * x, 16) if ks else (vr(vRES, 16) if x == 0 else '0')
            return f'{MF32} {vr(ACC+16*x,16)}, {vr(WO+(ks*2+z)*4)}, {vr(OF+(ks*2+y)*4)}, {c}'
        for ks in range(5):
            for y in range(2):
                p(ld(ks, y))
        rest = list(w1d)
        for ks in range(8):
            for x in (1, 2, 3):
                p(mf(ks, x))
                if ks + 5 < 8 and x < 3:
                    p(ld(ks + 5, x - 1))
                elif ks >= 3 and rest:
                    y = rest.pop(0)
                    p.ext([y])
                    while rest and not is_mem(y):
                        y = rest.pop(0)
                        p.ext([y])
        assert not rest
        self.stamp('p3mm')
        p.ext(sched([mf(ks, 0) for ks in range(8)], {}, {}, self.reduce_writes(ACC), 2, start=2))
        self.stamp('p3rw')
        self.reduce_finish(ACC, 32)
        self.stamp('p3rd')
        P = 96
        for i in range(8):
            p(f'v_cvt_pk_bf16_f32 v{P+i}, v{ACC+2*i}, v{ACC+2*i+1}')
        self.x_store(P, vX1A, (0, 512))
        self.publish(['xst'], sXF)
        self.stamp('p3pub')
        p.ext(self.res_unpack(P))
        p.mark('maybe_end')
        p.label(ljoin)
        idle = [f'v_lshlrev_b32 v{vT}, 7, v{vL}', f's_lshl_b32 s{sT0}, s{sCB}, 2', f's_add_u32 s{sT0}, s{sT0}, s{sW}']
        if L0:
            idle += [f's_lshl_b32 s{sT1}, s{sT0}, 7', f's_add_u32 s{sT1}, s{sT1}, {F_W1}'] + self.poll_loop(vL8, f's{sT1}', 14)
        idle += [f's_mul_i32 s{sT1}, s{sT0}, 100352'] + self.prefetch(vT, sT1, W1T + 57344, 43008)
        self.tail.append((lidle, idle + [f's_branch {ljoin}']))
        self.colsum = colsum
        self.stamp('p3')

    def p45(self):
        p, L0 = self.p, self.L == 0
        X, ACC, RING, CS = 32, 144, 200, 224
        sXO, sST, sFX, sH, sHF = sO, sO + 4, sO + 5, sO + 6, sO + 8
        sFH, sST5, sW2 = sO + 9, sO + 10, sO + 11
        sY = [76, 77, 78, 79, sO + 12, sO + 13, sO + 14, sO + 15]
        vTC, vHA, vHB, vZ, vLb, PO = vT, vT + 1, vT + 2, (vT + 3, vT + 13), vT + 12, vT + 4
        p.ext(self.w1_dma(1))
        p.ext(self.off(sFX, sTP, 128, O_FX1))
        if L0:
            p.ext([f's_lshl_b32 s{sT1}, s{sJ}, 7', f's_add_u32 s{sT1}, s{sT1}, {F_WQ - 14*8}',
                   f'v_mov_b32 v{PO}, s{sFX}', f'v_mov_b32 v{PO+1}, s{sT1}', f'v_cmp_le_u32 vcc, 14, v{vL}',
                   f'v_cndmask_b32 v{PO}, v{PO}, v{PO+1}, vcc', f'v_add_u32 v{PO}, v{PO}, v{vL8}'])
            self.poll_first(PO, '0', 28)
        else:
            self.poll_first(vL8, f's{sFX}', 14)
        p.ext(self.xoff(sXO, sTP, 28672, O_X1))
        for g in range(1, 4):
            p(f's_add_u32 s{sXO+g}, s{sXO}, {8192*g}')
        p.ext(self.off(sST, sTP, 3584, O_ST1))
        p(f's_lshl_b32 s{sT0}, s{sTP}, 4')
        p(f's_add_u32 s{sT0}, s{sT0}, s{sJ}')
        p.ext(self.off(sH, sT0, 7168, O_H))
        p(f's_add_u32 s{sH+1}, s{sH}, 4096')
        p.ext(self.off(sHF, sT0, 8, O_FH))
        p.ext([f'v_lshrrev_b32 v{vCSA}, 4, v{vL}', f'v_lshlrev_b32 v{vCSA}, 4, v{vCSA}', f'v_add_u32 v{vCSA}, {L_CS1}, v{vCSA}',
               f'v_lshrrev_b32 v{vHA}, 5, v{vL}', f'v_lshlrev_b32 v{vHA}, 10, v{vHA}',
               f'v_bfe_u32 v{vHB}, v{vL}, 4, 1', f'v_lshl_add_u32 v{vHA}, v{vHB}, 9, v{vHA}',
               f'v_and_b32 v{vTC}, 15, v{vL}', f'v_lshl_add_u32 v{vHA}, v{vTC}, 4, v{vHA}',
               f'v_lshlrev_b32 v{vHB}, 3, v{vHB}', f'v_lshl_add_u32 v{vHB}, v{vTC}, 4, v{vHB}',
               f'v_lshrrev_b32 v{vTC}, 5, v{vL}', f'v_lshl_add_u32 v{vHB}, v{vTC}, 9, v{vHB}',
               f'v_add_u32 v{vLb}, 4096, v{vL16}'])
        sRBc = sPOLL
        p(f's_min_u32 s{sRBc}, s{sRB}, 3')
        p(f's_lshl_b32 s{sT0}, s{sRBc}, 3')
        p(f's_add_u32 s{sT0}, s{sT0}, s{sW}')
        p.ext(self.off(sFH, sT0, 32, O_FH))
        for y in range(2):
            p.ext([f's_xor_b32 s{sT0}, s{sRHO}, {y}', f's_lshl_b32 s{sT1}, s{sRBc}, 1', f's_add_u32 s{sT0}, s{sT0}, s{sT1}',
                   f's_lshl_b32 s{sT0}, s{sT0}, 2', f's_add_u32 s{sT0}, s{sT0}, s{sW}'] + self.off(sT2, sT0, 28672, O_H))
            for sl in range(4):
                p.ext([f's_add_u32 s{sT0}, {ROT}, {sl}', f's_and_b32 s{sT0}, s{sT0}, 3', f's_mul_i32 s{sT0}, s{sT0}, 7168',
                       f's_add_u32 s{sY[2*sl+y]}, s{sT2}, s{sT0}'])
        p(f's_lshl_b32 s{sT0}, s{sRBc}, 1')
        p(f's_add_u32 s{sT0}, s{sT0}, s{sRHO}')
        p.ext(self.off(sST5, sT0, 3584, O_ST1))
        if L0:
            p.ext(self.pub_offsets(O_XA + LSTRIDE, O_STA + LSTRIDE, O_FXA + LSTRIDE))
        p(f'v_lshlrev_b32 v{vTC}, 7, v{vL}')
        seq = [(t, s) for s in range(14) for t in range(4)] + [(t, s) for s in range(14) for t in range(4, 7)]

        def frag(f):
            base, off = (vL16, f * 1024) if f < 56 else (vA1, (f - 56) * 1024)
            return f'ds_read_b128 {vr(RING + 4*(f % 6))}, v{base} offset:{off}'

        def mf(f, u):
            t, s = seq[f]
            return f'{MF16} {vr(ACC+8*t+4*u)}, {vr(RING+4*(f%6))}, {vr(X+4*(2*s+u))}, {vr(ACC+8*t+4*u) if s else 0}'

        def xl(i):
            return f'buffer_load_dwordx4 {vr(X+4*i)}, v{(vL16, vLb)[(i//4)%2]}, {srd(S_WS)}, s{sXO + i//8} offen offset:{(i%4)*1024} sc1'

        def cs_reads(tiles):
            return [f'ds_read_b128 {vr(CS+4*(t%4))}, v{vCSA} offset:{t*64}' for t in tiles]
        PD = 4
        for f in range(PD):
            p(frag(f))
        self.pad()
        if L0:
            self.vpoll(PO, '0', 28)
        else:
            self.vpoll(vL8, f's{sFX}', 14)
        self.stamp('C')
        XP = 8
        for i in range(XP):
            p(xl(i))
        mem, pre = {}, {}
        for f in range(98):
            mem[2 * f] = [frag(f + PD)] if f + PD < 98 and not (f < 56 <= f + PD) else []
            mem[2 * f + 1] = []
            if f < 56 and f % 2 == 0 and f // 2 + XP < 28:
                mem[2 * f + 1] = [xl(f // 2 + XP)]
            if 27 <= f < 41 and f % 2 == 1:
                mem[2 * f + 1] = [self.stats_loads(sST, CS)[(f - 27) // 2]]
            if f % 2 == 0:
                tch = vr(RING + 4 * (f % 6)) + ' ' + vr(RING + 4 * ((f + 1) % 6))
                if f < 56 and f % 4 == 0:
                    tch += ' ' + vr(X + 8 * (f // 4), 8)
                pre[2 * f] = [Touch(tch)]
        i = 2 * 41 + 1
        if L0:
            xa = [f'v_add_u32 v{PO}, s{sXD}, v{vTC}', f's_add_u32 s{sT0}, s{sFX}, {LSTRIDE + O_FXA - O_FX1}', f's_add_u32 s{sT1}, s{sXS}, 128']
            for lane, r in ((16, sXS), (17, sT1), (18, sXF), (19, sT0)):
                xa.append(f'v_writelane_b32 v{PO}, s{r}, {lane}')
            mem[i + 2] += xa
            mem[i + 4].append(self.setexec(20) + [f'buffer_load_dword a255, v{PO}, {srd(S_WS)}, 0 offen sc1', 's_mov_b64 exec, -1'])
        for f in (0, 16, 38):
            mem[2 * f + 1] += self.stamp_items(f'g{f}')
        mfs = [mf(f, u) for f in range(98) for u in range(2)]
        side = self.stats_reduce(CS) + [f'v_mov_b32 v{vRSTD}, v{vMEAN}', 's_nop 0', f'v_permlane16_swap_b32 v{vMEAN}, v{vRSTD}']
        p.ext(sched(mfs[:112], pre, mem, side, 2, start=88))
        self.stamp('p4m1')
        self.pad()
        p('s_barrier')
        p.ext(cs_reads([0, 1, 2, 3]))
        self.stamp('p4g1')

        HSC = 'sc1'

        def epi(tiles, tok):
            L = []
            pairs = [tiles[i:i + 2] for i in range(0, len(tiles), 2)]
            n = 0
            for pr in pairs:
                for u in range(2):
                    po = PO + 4 * (n % 2)
                    n += 1
                    for k, t in enumerate(pr):
                        a = ACC + 8 * t + 4 * u
                        for r in (0, 2):
                            L.append(f'v_pk_fma_f32 {vr(a+r,2)}, {vr(CS+4*(t%4)+r,2)}, {vr(vMEAN,2)}, {vr(a+r,2)} op_sel:[0,{u},0] op_sel_hi:[1,{u},1]')
                    for k, t in enumerate(pr):
                        a = ACC + 8 * t + 4 * u
                        for r in range(2):
                            L.append(f'v_cvt_pk_bf16_f32 v{po+2*k+r}, v{a+2*r}, v{a+2*r+1}')
                    for k, t in enumerate(pr):
                        for r in range(2):
                            L.append(f'v_pk_max_i16 v{po+2*k+r}, v{po+2*k+r}, 0')
                    t = pr[0]
                    so, off = (sH, t * 1024) if t < 4 else (sH + 1, (t - 4) * 1024)
                    if len(pr) == 2:
                        L.append(Ins(f'buffer_store_dwordx4 {vr(po)}, v{vHA}, {srd(S_WS)}, s{so} offen offset:{off+u*256} {HSC}', tok))
                    else:
                        L.append(Ins(f'buffer_store_dwordx2 {vr(po,2)}, v{vHB}, {srd(S_WS)}, s{so} offen offset:{off+u*256} {HSC}', tok))
            return L
        for f in range(56, 56 + PD):
            p(frag(f))
        p.ext(epi([0, 1, 2, 3], 'h1'))
        if L0:
            self.colsum(1, AC=144, RG=160, T=vT + 4)
            p('s_barrier')
            for f in range(56, 56 + PD):
                pass
        self.stamp('p4e1')
        HR, AC5, NR, PD5, TAIL = 32, 160, 16, 5, 14
        order = ORDER

        def ld(i, y):
            sl, sg = order[i] // 7, order[i] % 7
            return (f'buffer_load_dwordx4 {vr(HR+((i%NR)*2+y)*4)}, v{(vL16, vLb)[sg//4]}, {srd(S_WS)}, s{sY[2*sl+y]} '
                    f'offen offset:{(sg%4)*1024} sc1')

        def m5(i, x):
            y, z = x >> 1, x & 1
            return f'{MF32} {vr(AC5+16*x,16)}, {ar(order[i]*8+z*4)}, {vr(HR+((i%NR)*2+y)*4)}, {vr(AC5+16*x,16) if i else 0}'
        pre2 = {i - 112: v for i, v in pre.items() if i >= 112}
        mem2 = {i - 112: v for i, v in mem.items() if i >= 112}
        NW2A = 14 if L0 else 0
        mem2[H1POS] = self.publish_items(['h1'], sHF, 0, self.touch(vTC, sH, 0, 32) if PT else ()) + mem2[H1POS]
        mem2[59] += cs_reads([4, 5])
        mem2[61] += cs_reads([6])
        e2 = epi([4, 5, 6], 'h2')
        if PK1 < 64:
            mem2[PK1] += self.peek_issue(vFLG, f's{sFH}', 8)
            mem2[63] += self.peek_check(vFLG, f's{sFH}', 8)
            for k in range(2 * PD5):
                mem2[65 + 2 * k].append(ld(k // 2, k % 2))
        else:
            mem2[PK1] += self.peek_issue(vFLG, f's{sFH}', 8)
            first_store = next(i for i, x in enumerate(e2) if is_mem(x))
            e2 = e2[:first_store] + self.peek_check(vFLG, f's{sFH}', 8) + [ld(k // 2, k % 2) for k in range(2 * PD5)] + e2[first_store:]
        p.ext(sched(mfs[112:], pre2, mem2, [], 2, start=0))
        self.stamp('p4g2')
        p.ext(e2)
        self.stamp('p4')
        lskip, ljoin = p.newlabel('p5skip'), p.newlabel('p5join')
        self.pad()
        p(f's_cmp_ge_u32 s{sM}, 28')
        p(f's_cbranch_scc1 {lskip}')
        idle = ['s_waitcnt vmcnt(0)'] + self.publish_items([], sHF, 1024, self.touch(vTC, sH + 1, 0, 24) if PT else ())
        if L0:
            idle += [f's_lshl_b32 s{sT0}, s{sCB}, 2', f's_add_u32 s{sT0}, s{sT0}, s{sW}', f's_lshl_b32 s{sT1}, s{sT0}, 7',
                     f's_add_u32 s{sT1}, s{sT1}, {F_WQ}'] + self.poll_loop(vL8, f's{sT1}', 14)
            idle += [f's_mul_i32 s{sT1}, s{sT0}, 86016'] + self.prefetch(vTC, sT1, WQT, 57344)
            idle += ['s_waitcnt vmcnt(0)', 's_barrier', 's_barrier'] + self.wq_dma((0, 1)) + [f's_branch {ljoin}']
        else:
            idle += ['s_branch L_fin']
        self.tail.append((lskip, idle))
        if L0:
            p('s_barrier')
        wqk = self.wq_dma((0,)) if L0 and EK else []
        mfs, mem = [], {}
        w2b = []
        stl = self.stats_loads(sST5, CS)
        for i in range(28):
            xs = (0, 1, 2, 3) if i < 28 - TAIL else (1, 2, 3)
            for n, x in enumerate(xs):
                k = len(mfs)
                mfs.append(m5(i, x))
                mem[k] = []
                if i == H2POS and n == 3:
                    mem[k] += self.publish_items(['h2'], sHF, 1024, self.touch(vTC, sH + 1, 0, 24) if PT else ())
                if i == PK2 and n == 3:
                    mem[k] += self.peek_issue(vFLG, f's{sFH}', 8, 1024)
                if i == 11 and n == 0:
                    mem[k] += self.stamp_items('pk0') + self.peek_check(vFLG, f's{sFH}', 8, 1024) + self.stamp_items('pk1')
                if i + PD5 < 28 and n < 2:
                    mem[k].append(ld(i + PD5, n))
                elif w2b and n >= 2:
                    mem[k].append(w2b.pop(0))
                elif i + PD5 >= 28 and stl:
                    mem[k].append(stl.pop(0))
                elif i + PD5 >= 28 and wqk:
                    while wqk:
                        x2 = wqk.pop(0)
                        mem[k].append(x2)
                        if is_mem(x2):
                            break
        assert not w2b and not stl and not wqk
        p.ext(sched(mfs, {}, mem, [], 6))
        self.stamp('p5mm')
        mem = {}
        for i, x in enumerate(self.reduce_writes(AC5)):
            mem.setdefault(2 + i, []).append(x)
        p.ext(sched([m5(i, 0) for i in range(28 - TAIL, 28)], {}, mem, self.stats_reduce(CS), 5, start=0))
        self.stamp('p5rw')
        self.reduce_finish(AC5, 32)
        self.stamp('p5rd')
        P = 96
        for i in range(8):
            p(f'v_pk_fma_f32 {vr(AC5+2*i,2)}, {vr(AC5+2*i,2)}, {vr(vMEAN,2)}, {vr(vRES+2*i,2)} op_sel:[0,1,0] op_sel_hi:[1,1,1]')
            p(f'v_cvt_pk_bf16_f32 v{P+i}, v{AC5+2*i}, v{AC5+2*i+1}')
        if L0:
            self.x_store(P, vL16, (0, 1024))
            wq = self.wq_dma((1,) if EK else (0, 1))
            p.ext(wq[:9])
            self.publish(['xst'], sXF)
            p.ext(wq[9:])
            self.stamp('p5pub')
            p.ext(self.res_unpack(P))
            p.label(ljoin)
            p(f's_add_u32 s{sLB}, s{sLB}, {LSTRIDE}')
            p('s_waitcnt vmcnt(0) lgkmcnt(0)')
            p('s_barrier')
            return
        p(f'v_and_b32 v{vT+4}, 31, v{vL}')
        p(f'v_mul_u32_u24 v{vT+4}, 896, v{vT+4}')
        p(f'v_lshrrev_b32 v{vT+5}, 5, v{vL}')
        p(f'v_lshl_add_u32 v{vT+4}, v{vT+5}, 4, v{vT+4}')
        for hf in range(2):
            p(f'v_permlane32_swap_b32 v{P+4*hf}, v{P+4*hf+2}')
            p(f'v_permlane32_swap_b32 v{P+4*hf+1}, v{P+4*hf+3}')
            p(f'buffer_store_dwordx4 {vr(P+4*hf)}, v{vT+4}, {srd(S_OUT)}, s{sQOFF} offen offset:{32*hf}')
        p('s_cmp_lg_u32 s2, %d' % (27 * 8 + 7))
        p('s_cbranch_scc1 L_fin')
        p(f's_mov_b32 s{sT0}, {WS_EPOCH}')
        p.ext(self.flag_sc1(sT0))

    def build(self):
        p = self.p
        self.L = 0
        self.prologue()
        for self.L in range(2):
            for ph in ('p1', 'attn', 'p3', 'p45'):
                getattr(self, ph)()
        p.label('L_fin')
        self.stamp('end')
        self.stamp_dump()
        if os.environ.get('CALIB'):
            p.label('L_calib')
            p('s_memrealtime s[96:97]')
            p('s_waitcnt lgkmcnt(0)')
            p('s_sub_u32 s96, s96, s100')
            if os.environ.get('PROBE'):
                p('s_sub_u32 s97, s98, s100')
                p(f's_cmp_ge_u32 s{sM}, 28')
                p('s_cselect_b32 s97, 0, s97')
                p('s_sub_u32 s96, s96, s97')
                p('s_max_i32 s96, s96, 0')
            p(f's_cmp_lt_u32 s96, {int(os.environ["CALIB"])}')
            p('s_cbranch_scc1 L_calib')
        p.label('L_end')
        p('s_endpgm')
        for lab, code in self.tail:
            p.label(lab, reset='all')
            p.ext(code)
        p.label('L_codeend')
        self.emit_walker()
        p.insert_waits()
        probs = p.fix_hazards()
        for x in probs:
            print('branch hazard padded', x, file=sys.stderr)
        mx = p.maxregs()
        head = open(os.path.join(os.path.dirname(__file__), '..', 'cdna_kernels', NAME + '.s.ref')).read().split('\n')
        hdr = [l for l in head if l.startswith(';') and '@launch' not in l]
        out = '\n'.join(hdr) + f'\n; @launch grid=(256,1,1) block=(256,1,1) lds={LDS_BYTES}\n'
        out += '.amdgcn_target "amdgcn-amd-amdhsa--gfx950"\n.text\n'
        out += f'.globl {NAME}_kernel\n.p2align 8\n.type {NAME}_kernel,@function\n{NAME}_kernel:\n'
        out += p.text()
        out += '.fill 64, 4, 0xbf800000\n'
        out += f'''.section .rodata,"a"
.p2align 6
.amdhsa_kernel {NAME}_kernel
  .amdhsa_next_free_vgpr 512
  .amdhsa_next_free_sgpr 102
  .amdhsa_accum_offset 256
  .amdhsa_group_segment_fixed_size 0
  .amdhsa_kernarg_size 72
  .amdhsa_user_sgpr_count 2
  .amdhsa_user_sgpr_kernarg_segment_ptr 1
  .amdhsa_system_sgpr_workgroup_id_x 1
  .amdhsa_float_denorm_mode_32 3
.end_amdhsa_kernel
'''
        print('regs', mx, 'instrs', sum(1 for x in p.items if isinstance(x, Ins)), file=sys.stderr)
        return out


if __name__ == '__main__':
    stop = int(sys.argv[2]) if len(sys.argv) > 2 else None
    k = K(stop if stop and stop > 0 else None, dbg=sys.argv[3].split(',') if len(sys.argv) > 3 else None)
    open(sys.argv[1], 'w').write(k.build())
    if k.dbg:
        open(os.path.join(os.path.dirname(sys.argv[1]), 'stamps.txt'), 'w').write(' '.join(k.stamps))
```

```python
import sys, os, math, struct
sys.path.insert(0, os.path.dirname(__file__))
from asmlib import Prog, Ins, Wait, Mark, Label, Touch

NAME = 'interleave_layers__sliding_block__dense_activation_relu__prompt'

WS_EPOCH = 0
WS_PUR = 0x1000
F_WQ = 0x2000
F_W1 = 0x2800
F_W2 = 0x3000
F_WO = 0x4000
WQT = 0x100000
W1T = 0x250000
WOT = 0x3D8000
W2T = 0x448000
TEAM0 = 0x600000
LSTRIDE = 0x230000
STRIDE = 2 * LSTRIDE
O_KV = 0x000000
O_O = 0x080000
O_X1 = 0x0C0000
O_XA = 0x0F8000
O_ST1 = 0x130000
O_STA = 0x138000
O_FKV = 0x140000
O_FO = 0x144000
O_FX1 = 0x144400
O_FXA = 0x144800
O_FH = 0x145000
O_H = 0x150000
WS_BYTES = TEAM0 + 8 * STRIDE

LW1 = 57344
LKV = LW1 + 55296
L_CSQ = LKV + 49152
L_CS1 = L_CSQ + 512
L_CSP = L_CS1 + 512
LDS_BYTES = 163840

S_X, S_WQ, S_WO, S_W1, S_W2, S_OUT, S_WS = 8, 12, 16, 20, 24, 28, 32
S_WSP = 36
sTEAM, sM, sA, sJ, sW, sRB, sCB, sLB = 40, 41, 42, 43, 44, 45, 46, 47
sF, sPURE, sLAYER, sTP = 48, 50, 51, 52
sQOFF = 53
sIMP = 54
sPERM, sONES = 56, 57
sRHO, sNU = 58, 59
sT0, sT1, sT2, sT3, sT4, sT5 = 60, 61, 62, 63, 64, 65
sCNT = 66
sTB = 71
sJFL = 67
sXD, sXS, sXF = 68, 69, 70
sPOLL = 72
sRQ, sLQ = 76, 77
sO = 80

vL, vL16, vA1, vL8 = 0, 1, 2, 3
vSTA = 4
vFLG = 5
vRW = 6
vX1A = 10
vCSA = 11
vF = 12
vMEAN, vRSTD = 14, 15
vT = 16
vRES = 240

POLL_MAX = 1 << 16
ROT = {'rb': f's{sRB}', 'team': f's{sTEAM}', '': '0'}[os.environ.get('ROT', '')]
ROT1 = {'a': f's{sA}', 'team': f's{sTEAM}', '': '0'}[os.environ.get('ROT1', '')]
PT = bool(os.environ.get('PT'))
H1POS = int(os.environ.get('H1POS', 19))
H2POS = int(os.environ.get('H2POS', 3))
PK1 = int(os.environ.get('PK1', 57))
IDLE5 = int(os.environ.get('IDLE5', 40960))
QCUT = int(os.environ.get('QCUT', 10))
NG1 = int(os.environ.get('NG1', 0))
EK = bool(os.environ.get('EK'))
DP = not os.environ.get('NODP')
NW1 = int(os.environ.get('NW1', 20))
PK2 = int(os.environ.get('PK2', 8))
ORDER = [7 * sl + sg for sl in range(4) for sg in range(4)] + [7 * sl + sg for sl in range(4) for sg in range(4, 7)]
MF32 = 'v_mfma_f32_32x32x16_bf16'
MF16 = 'v_mfma_f32_16x16x32_bf16'


def srd(b):
    return f's[{b}:{b+3}]'


def vr(b, n=4):
    return f'v[{b}:{b+n-1}]' if n > 1 else f'v{b}'


def ar(b, n=4):
    return f'a[{b}:{b+n-1}]'


def f32bits(x):
    return struct.unpack('<I', struct.pack('<f', x))[0]


def is_mem(x):
    if isinstance(x, (list, tuple)):
        return any(is_mem(y) for y in x)
    if isinstance(x, (Wait, Touch, Label, Mark)):
        return False
    t = x.text if isinstance(x, Ins) else x if isinstance(x, str) else ''
    return t.startswith('ds_') or t.startswith('buffer_') or t.startswith('global_')


def cost(x):
    if isinstance(x, (list, tuple)):
        return sum(cost(y) for y in x)
    if isinstance(x, (Wait, Touch)):
        return 1
    if isinstance(x, (Label, Mark)):
        return 0
    t = x.text if isinstance(x, Ins) else x
    return 2 if t.startswith('v_exp') or t.startswith('v_rsq') or t.startswith('v_rcp') or t.startswith('v_permlane') else 1


def sched(mfs, pre, mem, side, cap, start=0):
    out = []
    side = list(side)
    for i, m in enumerate(mfs):
        out += pre.get(i, [])
        out.append(m)
        n = 0
        for x in mem.get(i, []):
            out.append(x)
            n += cost(x)
        if pre.get(i + 1):
            n += 1
        valu = False
        if i >= start:
            while side and n + cost(side[0]) <= cap:
                if is_mem(side[0]) and valu:
                    break
                x = side.pop(0)
                if not is_mem(x) and not isinstance(x, (Wait, Touch)):
                    t = x[0] if isinstance(x, (list, tuple)) else x
                    if any((y.text if isinstance(y, Ins) else y).startswith('v_') for y in (x if isinstance(x, (list, tuple)) else [x]) if isinstance(y, (Ins, str))):
                        valu = True
                out.append(x)
                n += cost(x)
            if side and n == 0 and cost(side[0]) > cap:
                out.append(side.pop(0))
    return out + side


class K:
    def __init__(self, stop=None, dbg=False):
        self.p = Prog()
        self.stop = stop
        self.dbg = dbg
        self.stamps = []
        self.tail = []
        self.pads = []
        self.vP2 = 236

    def stamp(self, name):
        if os.environ.get('PROBE') == f'{name}{self.L}':
            self.p('s_memrealtime s[98:99]')
            self.p('s_waitcnt lgkmcnt(0)')
        if not self.dbg or (name not in self.dbg and name not in ('start', 'end')):
            return
        k = len(self.stamps)
        assert k < 32
        self.stamps.append(name)
        p = self.p
        p('s_memrealtime s[96:97]' if 'RT' in self.dbg else 's_memtime s[96:97]')
        if k == 0:
            p('v_readfirstlane_b32 s100, v0')
            p('s_lshr_b32 s100, s100, 6')
            p('s_lshl_b32 s101, s2, 2')
            p('s_add_u32 s100, s100, s101')
            p('s_lshl_b32 s100, s100, 7')
            p('s_add_u32 s100, s100, 0x40000')
        p('s_waitcnt lgkmcnt(0)')
        if k == 0:
            p('v_accvgpr_write_b32 a253, s96')
            return
        p('v_accvgpr_write_b32 a252, s96')
        p('s_mov_b64 exec, 1')
        p(f'buffer_store_dword a252, off, {srd(S_WS)}, s100 offset:{4*k}')
        p('s_mov_b64 exec, -1')

    def stamp_items(self, name):
        n = len(self.p.items)
        self.stamp(name)
        L = self.p.items[n:]
        del self.p.items[n:]
        return [L] if L else []

    def stamp_dump(self):
        if self.dbg:
            self.p(f'buffer_store_dword a253, off, {srd(S_WS)}, s100')

    def dma(self, srdb, voff, sreg, simm, m0, tok, sc='', n=1):
        mr, mi = m0
        L = [f's_add_u32 m0, s{mr}, {mi}' if mr is not None else f's_mov_b32 m0, {mi}',
             f's_add_u32 s{sT5}, s{sreg}, {simm}']
        for k in range(n):
            L.append(Ins(f'buffer_load_dwordx4 v{voff}, {srd(srdb)}, s{sT5} offen offset:{1024*k} {sc} lds', tok))
        return L

    @staticmethod
    def setexec(nl):
        if nl <= 32:
            return [f's_mov_b64 exec, {(1 << nl) - 1:#x}'] if nl < 32 else ['s_mov_b32 exec_hi, 0']
        return [f's_mov_b32 exec_hi, {(1 << (nl - 32)) - 1:#x}']

    def poll_loop(self, voff, soff, nl, imm=0):
        p = self.p
        lp, lo = p.newlabel('poll'), p.newlabel('pollout')
        return self.setexec(nl) + [f's_mov_b32 s{sCNT}, 0', Label(lp),
                f'buffer_load_dwordx2 {vr(vT + 14, 2)}, v{voff}, {srd(S_WS)}, {soff} offen offset:{imm} sc1',
                f's_add_u32 s{sCNT}, s{sCNT}, 1', f's_cmp_gt_u32 s{sCNT}, {POLL_MAX}', f's_cbranch_scc1 {lo}',
                's_waitcnt vmcnt(0)', f'v_cmp_ne_u64 vcc, s[{sF}:{sF+1}], {vr(vT + 14, 2)}', f's_cbranch_vccnz {lp}',
                Label(lo), 's_mov_b64 exec, -1']

    def poll_first(self, voff, soff, nl):
        self.p.ext(self.peek_issue(voff, soff, nl))

    def vpoll(self, voff, soff, nl, acquire=True):
        p = self.p
        lp, lo = p.newlabel('poll'), p.newlabel('pollout')
        ra, rb = vr(vT + 14, 2), vr(self.vP2, 2)
        ldf = lambda r: f'buffer_load_dwordx2 {r}, v{voff}, {srd(S_WS)}, {soff} offen sc1'
        p.ext(self.setexec(nl) + [f's_mov_b32 s{sCNT}, 0', Label(lp), ldf(rb),
               f's_add_u32 s{sCNT}, s{sCNT}, 1', f's_cmp_gt_u32 s{sCNT}, {POLL_MAX}', f's_cbranch_scc1 {lo}',
               f'v_cmp_ne_u64 vcc, s[{sF}:{sF+1}], {ra}', f's_cbranch_vccz {lo}', ldf(ra),
               f'v_cmp_ne_u64 vcc, s[{sF}:{sF+1}], {rb}', f's_cbranch_vccnz {lp}', Label(lo), 's_mov_b64 exec, -1'])
        if acquire:
            lslow, lback = p.newlabel('acq'), p.newlabel('acqback')
            p(f's_cmp_lg_u32 s{sPURE}, 0')
            p(f's_cbranch_scc0 {lslow}')
            p.label(lback)
            self.tail.append((lslow, ['buffer_inv sc1', 's_waitcnt vmcnt(0)', f's_branch {lback}']))
        p.mark('drained_vm')

    def peek_issue(self, voff, soff, nl, imm=0):
        return [self.setexec(nl) + [f'buffer_load_dwordx2 {vr(vT + 14, 2)}, v{voff}, {srd(S_WS)}, {soff} offen offset:{imm} sc1',
                                    's_mov_b64 exec, -1']]

    def peek_check(self, voff, soff, nl, imm=0, acquire=True):
        p = self.p
        lslow, lback, lacq = p.newlabel('peek'), p.newlabel('peekback'), p.newlabel('peekacq')
        self.tail.append((lslow, self.poll_loop(voff, soff, nl, imm) +
                          [f's_cmp_lg_u32 s{sPURE}, 0', f's_cbranch_scc1 {lback}', 'buffer_inv sc1', 's_waitcnt vmcnt(0)',
                           f's_branch {lback}']))
        return [[Touch(vr(vT + 14, 2))] + self.setexec(nl) +
                [f'v_cmp_ne_u64 vcc, s[{sF}:{sF+1}], {vr(vT + 14, 2)}', 's_mov_b64 exec, -1',
                 f's_or_b64 vcc, vcc, s[{sIMP}:{sIMP+1}]' if acquire else 's_or_b64 vcc, vcc, vcc', f's_cbranch_scc1 {lslow}', Label(lback)]]

    def publish_items(self, toks, soff, imm=0, post=()):
        p = self.p
        lslow, lback = p.newlabel('pubslow'), p.newlabel('pubback')
        self.tail.append((lslow, [
            'buffer_wbl2 sc1', 's_waitcnt vmcnt(0)',
            f'buffer_store_dwordx2 {vr(vF, 2)}, off, {srd(S_WS)}, s{soff} offset:{imm} sc1',
            f's_branch {lback}']))
        return [[Wait(toks), 's_mov_b64 exec, 1', f's_cmp_lg_u32 s{sPURE}, 0', f's_cbranch_scc0 {lslow}',
                 f'buffer_store_dwordx2 {vr(vF, 2)}, off, {srd(S_WS)}, s{soff} offset:{imm}', Label(lback), 's_mov_b64 exec, -1']] + list(post)

    def publish(self, toks, soff, imm=0):
        self.p.ext(self.publish_items(toks, soff, imm))

    def flag_sc1(self, soff):
        return ['s_mov_b64 exec, 1', f'buffer_store_dwordx2 {vr(vF,2)}, off, {srd(S_WS)}, s{soff} sc1', 's_mov_b64 exec, -1']

    def flag_opt(self, soff):
        p = self.p
        l = p.newlabel('noflag')
        p(f's_cmp_eq_u32 s{soff}, -1')
        p(f's_cbranch_scc1 {l}')
        p.mark('maybe_begin')
        p.ext(self.flag_sc1(soff))
        p.mark('maybe_end')
        p.label(l)

    def stats_loads(self, soff, dst):
        return [f'buffer_load_dwordx2 {vr(dst + 2*i, 2)}, v{vSTA}, {srd(S_WS)}, s{soff} offen offset:{256*i} sc1' for i in range(7)]

    def stats_reduce(self, src):
        L = []
        for i in range(1, 7):
            L.append(f'v_add_f32 v{src}, v{src}, v{src+2*i}')
            L.append(f'v_add_f32 v{src+1}, v{src+1}, v{src+2*i+1}')
        s, q, t0, t1 = src, src + 1, src + 2, src + 3
        return L + [
            f'v_mov_b32 v{t0}, v{s}', f'v_mov_b32 v{t1}, v{q}', 's_nop 0',
            f'v_permlane32_swap_b32 v{s}, v{t0}', f'v_permlane32_swap_b32 v{q}, v{t1}',
            f'v_add_f32 v{s}, v{s}, v{t0}', f'v_add_f32 v{q}, v{q}, v{t1}',
            f'v_mul_f32 v{vMEAN}, {f32bits(-1.0/448):#x}, v{s}',
            f'v_mul_f32 v{q}, {f32bits(1.0/448):#x}, v{q}',
            f'v_fma_f32 v{q}, -v{vMEAN}, v{vMEAN}, v{q}',
            f'v_max_f32 v{q}, 0, v{q}',
            f'v_add_f32 v{q}, {f32bits(1e-5):#x}, v{q}',
            f'v_rsq_f32 v{vRSTD}, v{q}',
        ]

    def off(self, dst, idx_reg, mul, add):
        return [f's_mul_i32 s{dst}, s{idx_reg}, {mul}', f's_add_u32 s{dst}, s{dst}, s{sLB}', f's_add_u32 s{dst}, s{dst}, {add}']

    def xoff(self, dst, idx_reg, mul, add):
        return [f's_add_u32 s{sT3}, s{sLB}, {add}', f's_add_u32 s{sT4}, s{sTB}, {O_XA}', f's_cmp_lg_u32 s{sPURE}, 0',
                f's_cselect_b32 s{sT3}, s{sT4}, s{sT3}', f's_mul_i32 s{dst}, s{idx_reg}, {mul}', f's_add_u32 s{dst}, s{dst}, s{sT3}']

    def roff(self, dst, idx_reg, mul, add):
        return [f's_cmp_lg_u32 s{sPURE}, 0', f's_cselect_b32 s{sT3}, s{sTB}, s{sLB}',
                f's_mul_i32 s{dst}, s{idx_reg}, {mul}', f's_add_u32 s{dst}, s{dst}, s{sT3}', f's_add_u32 s{dst}, s{dst}, {add}']

    def pub_offsets(self, xoff, stoff, foff):
        return [f's_lshl_b32 s{sT0}, s{sRB}, 1', f's_add_u32 s{sT0}, s{sT0}, s{sRHO}',
                f's_lshl_b32 s{sT1}, s{sCB}, 1', f's_add_u32 s{sT1}, s{sT1}, s{sNU}',
                f's_mul_i32 s{sT2}, s{sT0}, 14', f's_add_u32 s{sT2}, s{sT2}, s{sT1}'] + \
            self.xoff(sXD, sT2, 2048, xoff) + self.off(sXS, sT2, 256, stoff) + \
            [f's_lshl_b32 s{sT0}, s{sT0}, 4', f's_add_u32 s{sT0}, s{sT0}, s{sT1}'] + self.off(sXF, sT0, 8, foff) + \
            [f's_cmp_ge_u32 s{sM}, 28'] + [f's_cselect_b32 s{r}, {WS_PUR}, s{r}' for r in (sXD, sXS, sXF)]

    def x_store(self, P, va, offs, sc=''):
        p = self.p
        S, Q2, t0, t1 = vT + 6, vT + 7, vT + 8, vT + 9
        for k in range(2):
            p(f'buffer_store_dwordx4 {vr(P+4*k)}, v{va}, {srd(S_WS)}, s{sXD} offen offset:{offs[k]} {sc}', tok='xst')
        p(f'v_mov_b32 v{t0}, s{sONES}')
        p(f'v_dot2_f32_bf16 v{S}, v{P}, v{t0}, 0')
        p(f'v_dot2_f32_bf16 v{Q2}, v{P}, v{P}, 0')
        for i in range(1, 8):
            p(f'v_dot2_f32_bf16 v{S}, v{P+i}, v{t0}, v{S}')
            p(f'v_dot2_f32_bf16 v{Q2}, v{P+i}, v{P+i}, v{Q2}')
        p(f'v_mov_b32 v{t0}, v{S}')
        p(f'v_mov_b32 v{t1}, v{Q2}')
        p(f'v_permlane32_swap_b32 v{S}, v{t0}')
        p(f'v_permlane32_swap_b32 v{Q2}, v{t1}')
        p(f'v_add_f32 v{S}, v{S}, v{t0}')
        p(f'v_add_f32 v{Q2}, v{Q2}, v{t1}')
        p('s_mov_b32 exec_hi, 0')
        p(f'buffer_store_dwordx2 {vr(S,2)}, v{vL8}, {srd(S_WS)}, s{sXS} offen {sc}', tok='xst')
        p('s_mov_b64 exec, -1')

    def res_unpack(self, P):
        L = []
        for q in range(8):
            L.append(f'v_lshlrev_b32 v{vRES+2*q}, 16, v{P+q}')
            L.append(f'v_and_b32 v{vRES+2*q+1}, 0xffff0000, v{P+q}')
        return L

    def prefetch(self, v128, sreg, base, nbytes):
        L = []
        o = 0
        while o < nbytes:
            oo = min(o, nbytes - 8192)
            L += [f's_add_u32 s{sT5}, s{sreg}, {base + oo}', f'buffer_load_dword a255, v{v128}, {srd(S_WS)}, s{sT5} offen sc1']
            o += 8192
        return L

    def touch(self, v128, sreg, imm, nlines):
        L = [f's_add_u32 s{sT5}, s{sreg}, {imm}']
        if nlines < 64:
            L += self.setexec(nlines)
        L.append(f'buffer_load_dword a255, v{v128}, {srd(S_WS)}, s{sT5} offen sc1')
        if nlines < 64:
            L.append('s_mov_b64 exec, -1')
        return [L]

    def w1_dma(self, part):
        sg, sl = sPOLL, sPOLL + 1
        per, base = ((13, 0), (11, 55296))[part]
        L = [f's_mul_i32 s{sg}, s{sJ}, 100352', f's_mul_i32 s{sl}, s{sW}, {per*1024}', f's_add_u32 s{sg}, s{sg}, s{sl}']
        for o in range(0, per, 4):
            d = self.dma(S_WS, vL16, sg, W1T + base + o * 1024, (sl, LW1 + base + o * 1024), 'w1', 'sc1', min(4, per - o))
            L += [d[:3]] + d[3:]
        if part == 0:
            L += [f's_sub_u32 s{sg}, s{sg}, s{sl}', f's_lshl_b32 s{sl}, s{sNU}, 10', f's_add_u32 s{sg}, s{sg}, s{sl}']
            L.append(self.dma(S_WS, vL16, sg, W1T + 52 * 1024, (sl, LW1 + 52 * 1024), 'w1', 'sc1', 1))
        return L

    def w2_setup(self, sbase, vz):
        return [f's_lshl_b32 s{sbase}, s{sCB}, 2', f's_add_u32 s{sbase}, s{sbase}, s{sW}', f's_mul_i32 s{sbase}, s{sbase}, 57344',
                f's_lshl_b32 s{sT1}, s{sNU}, 10', f'v_xor_b32 v{vz[0]}, s{sT1}, v{vL16}', f'v_xor_b32 v{vz[1]}, 1024, v{vz[0]}']

    def w2_loads(self, sbase, vz):
        L = []
        for sl in range(4):
            pre = [f's_add_u32 s{sT3}, {ROT}, {sl}', f's_and_b32 s{sT3}, s{sT3}, 3', f's_mul_i32 s{sT3}, s{sT3}, 14336',
                   f's_add_u32 s{sT3}, s{sT3}, s{sbase}']
            for sg in range(7):
                ks = 7 * sl + sg
                g = pre + [f's_add_u32 s{sT4}, s{sT3}, {W2T + sg*2048}',
                           f'buffer_load_dwordx4 {ar(ks*8)}, v{vz[0]}, {srd(S_WS)}, s{sT4} offen sc1']
                pre = []
                L += [g, f'buffer_load_dwordx4 {ar(ks*8+4)}, v{vz[1]}, {srd(S_WS)}, s{sT4} offen sc1']
        return L

    def lane_consts(self):
        p = self.p
        t0, t1 = vT + 6, vT + 7
        p(f'v_add_u32 v{vA1}, 57344, v{vL16}')
        p(f'v_and_b32 v{vSTA}, 31, v{vL}')
        p(f'v_lshlrev_b32 v{vSTA}, 3, v{vSTA}')
        p(f'v_lshrrev_b32 v{t0}, 5, v{vL}')
        p(f'v_mul_u32_u24 v{t1}, {7*256}, v{t0}')
        p(f'v_add_u32 v{vSTA}, v{vSTA}, v{t1}')
        p(f'v_lshrrev_b32 v{vFLG}, 2, v{vL}')
        p(f'v_lshlrev_b32 v{vFLG}, 7, v{vFLG}')
        p(f'v_and_b32 v{t1}, 3, v{vL}')
        p(f'v_lshl_add_u32 v{vFLG}, v{t1}, 3, v{vFLG}')
        for x in range(1, 4):
            p(f's_xor_b32 s{sT0}, s{sW}, {x}')
            p(f's_mul_i32 s{sT0}, s{sT0}, 12288')
            p(f's_add_u32 s{sT0}, s{sT0}, {LKV + (x-1)*4096}')
            p(f'v_add_u32 v{vRW+x-1}, s{sT0}, v{vL16}')
        p(f's_mul_i32 s{sT0}, s{sW}, 12288')
        p(f's_add_u32 s{sT0}, s{sT0}, {LKV}')
        p(f'v_add_u32 v{vRW+3}, s{sT0}, v{vL16}')
        p(f'v_bfe_u32 v{vX1A}, v{vL}, 4, 1')
        p(f'v_lshlrev_b32 v{vX1A}, 10, v{vX1A}')
        p(f'v_lshl_add_u32 v{vX1A}, v{t0}, 8, v{vX1A}')
        p(f'v_and_b32 v{t1}, 15, v{vL}')
        p(f'v_lshl_add_u32 v{vX1A}, v{t1}, 4, v{vX1A}')

    def pad(self):
        p = self.p
        k = len(self.pads)
        self.pads.append(f'L_pad{k}')
        p(f's_branch L_padskip{k}')
        p.label(f'L_pad{k}')
        p('s_setpc_b64 s[98:99]')
        p.label(f'L_padskip{k}')

    def emit_walker(self):
        L = []
        labs = [f'L_walk{w}' for w in range(4)]
        for w in range(1, 4):
            L += [Ins(f's_cmp_eq_u32 s{sW}, {w}'), Ins(f's_cbranch_scc1 {labs[w]}')]
        for w in range(4):
            if w:
                L.append(Label(labs[w]))
            for x in self.pads[w::4]:
                L.append(Ins(f's_call_b64 s[98:99], {x}'))
            if w < 3:
                L.append(Ins('s_branch L_walkend'))
        L.append(Label('L_walkend'))
        self.p.items[self.walker_at:self.walker_at] = L

    def rawq(self, tau, i):
        return (self.dma(S_WQ, self.vDQ, sRQ, (448, 896, 0)[tau] * 2 + i * 16 * 2688, (sLQ, tau * 28672 + i * 1024), f'rq{tau}{i}'))

    def xform(self, tau, R, vcs, vones, between=None):
        p = self.p

        def fin(i):
            p(f'ds_write_b128 v{self.vWQ}, {vr(R+4*i)} offset:{tau*28672+i*1024}')
            for q in range(4):
                p(f'v_dot2_f32_bf16 v{vcs}, v{R+4*i+q}, v{vones}, {f"v{vcs}" if i or q else 0}')
        for i in range(7):
            p.wait(f'rq{tau}{i}')
            for jj in range(2):
                p(f'ds_read_b64_tr_b16 {vr(R+4*i+2*jj,2)}, v{self.vTQ} offset:{tau*28672+i*1024+jj*512}')
            if between:
                between(i)
            if i >= 1:
                fin(i - 1)
        fin(6)

    def cs_partial(self, taus, vcs, t2, t3):
        p = self.p
        for k, tau in enumerate(taus):
            p(f'v_mov_b32 v{t2}, v{vcs+k}')
            p(f'v_permlane32_swap_b32 v{vcs+k}, v{t2}')
            p(f'v_add_f32 v{vcs+k}, v{vcs+k}, v{t2}')
        p(f'v_and_b32 v{t2}, 31, v{vL}')
        p(f'v_lshlrev_b32 v{t2}, 2, v{t2}')
        p(f's_lshl_b32 s{sT0}, s{sW}, 8')
        p(f's_add_u32 s{sT0}, s{sT0}, {L_CSP}')
        p(f'v_add_u32 v{t3}, s{sT0}, v{t2}')
        for k, tau in enumerate(taus):
            p(f'ds_write_b32 v{t3}, v{vcs+k} offset:{k*128}')

    def cs_sum(self, taus, R, t2, t3):
        p = self.p
        p(f'v_add_u32 v{t3}, {L_CSP}, v{t2}')
        for k, tau in enumerate(taus):
            for w in range(4):
                p(f'ds_read_b32 v{R+4*k+w}, v{t3} offset:{w*256+k*128}')
        p(f'v_add_u32 v{t3}, {L_CSQ}, v{t2}')
        for k, tau in enumerate(taus):
            r = R + 4 * k
            p(f'v_add_f32 v{r}, v{r}, v{r+1}')
            p(f'v_add_f32 v{r+2}, v{r+2}, v{r+3}')
            p(f'v_add_f32 v{r}, v{r}, v{r+2}')
            p(f'ds_write_b32 v{t3}, v{r} offset:{tau*128}')
        p('s_waitcnt lgkmcnt(0)')

    def prologue(self):
        p = self.p
        t0, t1, t2, t3 = vT, vT + 1, vT + 2, vT + 3
        self.vDQ, self.vTQ, self.vWQ = vDQ, vTQ, vWQ = vT + 10, vT + 11, vT + 12
        p('s_cmp_ge_u32 s2, 256')
        p('s_cbranch_scc1 L_end')
        p(f's_load_dwordx16 s[{sO}:{sO+15}], s[0:1], 0')
        p(f's_load_dwordx2 s[{S_WSP}:{S_WSP+1}], s[0:1], 64')
        p(f's_getpc_b64 s[{sT0}:{sT0+1}]')
        p.label('L_pc')
        p(f'v_lshlrev_b32 v{t2}, 7, v0')
        p(f'global_load_dword a255, v{t2}, s[{sT0}:{sT0+1}]')
        p(f'v_add_u32 v{t2}, 0x8000, v{t2}')
        p(f'v_min_u32 v{t2}, L_codeend-L_pc, v{t2}')
        p(f'global_load_dword a255, v{t2}, s[{sT0}:{sT0+1}]')
        if os.environ.get('CALIB'):
            p('s_memrealtime s[100:101]')
        self.stamp('start')
        p(f'v_lshrrev_b32 v{vT}, 6, v0')
        p(f'v_and_b32 v{vL}, 63, v0')
        p(f'v_readfirstlane_b32 s{sW}, v{vT}')
        p(f's_lshr_b32 s{sM}, s2, 3')
        p(f's_and_b32 s{sTEAM}, s2, 7')
        p(f's_mul_i32 s{sRB}, s{sM}, 37')
        p(f's_lshr_b32 s{sRB}, s{sRB}, 8')
        p(f's_mul_i32 s{sT0}, s{sRB}, 7')
        p(f's_sub_u32 s{sCB}, s{sM}, s{sT0}')
        p(f's_lshr_b32 s{sRHO}, s{sW}, 1')
        p(f's_and_b32 s{sNU}, s{sW}, 1')
        p(f's_lshl_b32 s{sT0}, s{sTEAM}, 2')
        p(f's_add_u32 s{sT0}, s{sT0}, s{sRB}')
        p(f's_lshl_b32 s{sT1}, s{sT0}, 1')
        p(f's_add_u32 s{sT1}, s{sT1}, s{sRHO}')
        p(f's_mul_i32 s{sQOFF}, s{sT1}, {32*896}')
        p(f's_lshl_b32 s{sT1}, s{sCB}, 7')
        p(f's_add_u32 s{sQOFF}, s{sQOFF}, s{sT1}')
        p(f's_lshl_b32 s{sT1}, s{sNU}, 6')
        p(f's_add_u32 s{sQOFF}, s{sQOFF}, s{sT1}')
        vPK, vPQ, vH = vT + 14, vT + 15, vT + 13
        p(f'v_and_b32 v{t3}, 31, v{vL}')
        p(f'v_mul_u32_u24 v{t3}, 896, v{t3}')
        p(f'v_lshrrev_b32 v{vH}, 5, v{vL}')
        p(f'v_lshl_add_u32 v{t3}, v{vH}, 3, v{t3}')
        p(f's_lshl_b32 s{sT2}, s{sM}, 2')
        p(f's_add_u32 s{sT2}, s{sT2}, s{sW}')
        p(f's_mul_i32 s{sT3}, s{sT2}, 49')
        p(f'v_add_u32 v{t2}, s{sT3}, v{vL}')
        p(f'v_mul_u32_u24 v{vPK}, 74899, v{t2}')
        p(f'v_lshrrev_b32 v{vPK}, 20, v{vPK}')
        p(f'v_mul_u32_u24 v{vPK}, 7, v{vPK}')
        p(f'v_add_u32 v{vPK}, v{vPK}, v{t2}')
        p(f'v_lshlrev_b32 v{vPK}, 7, v{vPK}')
        b = sO

        def mksrd(d, src, n):
            p(f's_mov_b32 s{d}, s{src}')
            p(f's_and_b32 s{d+1}, s{src+1}, 0xffff')
            p(f's_mov_b32 s{d+2}, {n}')
            p(f's_mov_b32 s{d+3}, 0x20000')
        mksrd(S_X, b, 1835008)
        mksrd(S_WQ, b + 2, 1204224)
        XR = 96
        for q in range(4):
            p(f'buffer_load_dwordx2 {vr(XR+2*q,2)}, v{t3}, {srd(S_X)}, s{sQOFF} offen offset:{16*q}')
        p('s_mov_b32 exec_hi, 0x1ffff')
        p(f'buffer_load_dword a255, v{vPK}, {srd(S_WQ)}, 0 offen offset:896')
        p('s_mov_b64 exec, -1')
        p(f's_load_dwordx2 s[{sF}:{sF+1}], s[{S_WSP}:{S_WSP+1}], {WS_EPOCH}')
        for (d, src, n) in ((S_WO, b + 4, 401408), (S_W1, b + 8, 1605632),
                            (S_W2, b + 10, 1605632), (S_OUT, b + 12, 1835008), (S_WS, S_WSP, WS_BYTES)):
            mksrd(d, src, n)
        p(f's_mul_i32 s{sT3}, s{sT2}, 25')
        p(f'v_add_u32 v{t2}, s{sT3}, v{vL}')
        p(f'v_mul_u32_u24 v{vPQ}, 149797, v{t2}')
        p(f'v_lshrrev_b32 v{vPQ}, 20, v{vPQ}')
        p(f'v_mul_u32_u24 v{vPQ}, 14, v{vPQ}')
        p(f'v_add_u32 v{vPQ}, v{vPQ}, v{t2}')
        p(f'v_lshlrev_b32 v{vPQ}, 7, v{vPQ}')
        p(f's_and_b32 s{sJ}, s{sM}, 15')
        p(f's_lshr_b32 s{sA}, s{sM}, 4')
        p(f'v_lshrrev_b32 v{t0}, 2, v{vL}')
        p(f'v_and_b32 v{t1}, 3, v{vL}')
        p(f'v_lshlrev_b32 v{t3}, 3, v{t1}')
        p(f'v_lshlrev_b32 v{t1}, 4, v{t1}')
        self.stamp('ka')
        sI, sSTG = sO, sO + 1
        sFL, sDST, sJOB, sDST2 = sJFL, sO + 3, sO + 4, sO + 5

        p(f's_mul_i32 s{sLB}, s{sTEAM}, {STRIDE}')
        p(f's_add_u32 s{sLB}, s{sLB}, {TEAM0}')
        p(f's_mov_b32 s{sTB}, s{sLB}')
        p(f'v_lshlrev_b32 v{vL16}, 4, v{vL}')
        p(f'v_lshlrev_b32 v{vL8}, 3, v{vL}')
        p(f's_mov_b32 s{sONES}, 0x3f803f80')
        p(f's_mov_b32 s{sPURE}, 1')
        p(f's_mov_b64 s[{sIMP}:{sIMP+1}], 0')
        p.ext(self.pub_offsets(O_XA, O_STA, O_FXA))
        vD, vTR, vTR8 = vT + 4, vT + 5, vT + 13
        FR = 32
        p(f's_lshl_b32 s{sI}, s{sTEAM}, 1')
        p(f's_add_u32 s{sI}, s{sI}, s{sA}')
        p(f's_lshl_b32 s{sSTG}, s{sW}, 13')
        p(f's_add_u32 s{sSTG}, s{sSTG}, {LKV}')
        lA = [p.newlabel('jobA') for _ in range(4)]
        p(f's_mov_b32 s{sJOB}, 0')
        p.mark('maybe_begin')
        p(f's_cmp_ge_u32 s{sW}, 2')
        p(f's_cbranch_scc1 {lA[0]}')
        p(f's_cmp_eq_u32 s{sW}, 0')
        p(f's_cbranch_scc1 {lA[2]}')
        p(f's_cmp_ge_u32 s{sI}, 14')
        p(f's_cbranch_scc1 {lA[2]}')
        p(f'v_bfe_u32 v{vD}, v{vL}, 1, 3')
        p(f'v_bfe_u32 v{t2}, v{vL}, 4, 1')
        p(f'v_lshl_add_u32 v{vD}, v{t2}, 4, v{vD}')
        p(f'v_bfe_u32 v{t2}, v{vL}, 5, 1')
        p(f'v_lshl_add_u32 v{vD}, v{t2}, 3, v{vD}')
        p(f'v_mul_u32_u24 v{vD}, 3584, v{vD}')
        p(f'v_and_b32 v{t2}, 1, v{vL}')
        p(f'v_lshl_add_u32 v{vD}, v{t2}, 4, v{vD}')
        p(f's_mul_i32 s{sT0}, s{sI}, {32*3584}')
        p(f's_mul_i32 s{sT1}, s{sJ}, 224')
        p(f's_add_u32 s{sT0}, s{sT0}, s{sT1}')
        for t in range(7):
            p.ext(self.dma(S_W1, vD, sT0, t * 32, (sSTG, t * 1024), 'raw'))
        p(f's_mov_b32 s{sJOB}, 2')
        p('s_waitcnt vmcnt(8)')
        p(f's_branch {lA[3]}')
        p.label(lA[0])
        p(f'v_mul_u32_u24 v{vD}, 896, v{t0}')
        p(f'v_add_u32 v{vD}, v{vD}, v{t1}')
        p(f's_cmp_ge_u32 s{sM}, 28')
        p(f's_cbranch_scc1 {lA[1]}')
        sI2, sSL, sHF = sT2, sT3, sT4
        p(f's_lshl_b32 s{sI2}, s{sTEAM}, 2')
        p(f's_add_u32 s{sI2}, s{sI2}, s{sRB}')
        p(f's_lshr_b32 s{sSL}, s{sI2}, 1')
        p(f's_and_b32 s{sHF}, s{sI2}, 1')
        p(f's_mul_i32 s{sT0}, s{sSL}, {112*896}')
        p(f's_mul_i32 s{sT1}, s{sHF}, {64*896}')
        p(f's_add_u32 s{sT0}, s{sT0}, s{sT1}')
        p(f's_lshl_b32 s{sT1}, s{sCB}, 7')
        p(f's_add_u32 s{sT0}, s{sT0}, s{sT1}')
        p(f's_lshl_b32 s{sT1}, s{sNU}, 6')
        p(f's_add_u32 s{sT0}, s{sT0}, s{sT1}')
        for k in range(4):
            p.ext(self.dma(S_W2, vD, sT0, k * 16 * 896, (sSTG, k * 1024), 'raw'))
        p(f's_add_u32 s{sJOB}, s{sHF}, 3')
        p('s_waitcnt vmcnt(5)')
        p(f's_branch {lA[3]}')
        p.label(lA[1])
        p(f's_cmp_eq_u32 s{sTEAM}, 7')
        p(f's_cbranch_scc1 {lA[2]}')
        p(f's_mul_i32 s{sT0}, s{sCB}, {112*896}')
        p(f's_lshl_b32 s{sT1}, s{sTEAM}, 7')
        p(f's_add_u32 s{sT0}, s{sT0}, s{sT1}')
        p(f's_lshl_b32 s{sT1}, s{sNU}, 6')
        p(f's_add_u32 s{sT0}, s{sT0}, s{sT1}')
        for k in range(8):
            p.ext(self.dma(S_WO, vD, sT0, k * 16 * 896, (sSTG, k * 1024), 'raw'))
        p(f's_mov_b32 s{sJOB}, 5')
        p.label(lA[2])
        p('s_waitcnt vmcnt(1)')
        p.mark('maybe_end')
        p.label(lA[3])
        self.stamp('jA')
        lp0 = p.newlabel('p0skip')
        p(f's_cmp_ge_u32 s{sM}, 28')
        p(f's_cselect_b32 s{sXF}, -1, s{sXF}')
        p(f's_cbranch_scc1 {lp0}')
        p.mark('drained_vm')
        self.x_store(XR, vL16, (0, 1024), 'sc1')
        p.label(lp0)
        p(f's_lshl_b32 s{sTP}, s{sA}, 2')
        p(f's_add_u32 s{sTP}, s{sTP}, s{sW}')
        p('s_mov_b64 exec, 0x1ffffff')
        p(f'buffer_load_dword a255, v{vPQ}, {srd(S_WQ)}, 0 offen')
        p('s_mov_b64 exec, -1')
        self.stamp('x0')
        p(f'v_mul_u32_u24 v{vDQ}, 2688, v{t0}')
        p(f'v_add_u32 v{vDQ}, v{vDQ}, v{t1}')
        p(f's_mul_i32 s{sRQ}, s{sW}, {7*16*2688}')
        p(f's_mul_i32 s{sT1}, s{sJ}, 56')
        p(f's_add_u32 s{sRQ}, s{sRQ}, s{sT1}')
        p(f's_mul_i32 s{sLQ}, s{sW}, 7168')
        p(f'v_bfe_u32 v{t2}, v{vL}, 4, 1')
        p(f'v_lshl_add_u32 v{t2}, v{t2}, 5, v{t3}')
        p(f'v_bfe_u32 v{vTR}, v{vL}, 2, 2')
        p(f'v_lshl_add_u32 v{t2}, v{vTR}, 6, v{t2}')
        p(f'v_lshl_add_u32 v{vTQ}, v{vH}, 8, v{t2}')
        p(f'v_add_u32 v{vTR}, s{sSTG}, v{vTQ}')
        p(f'v_add_u32 v{t2}, s{sSTG}, v{t2}')
        p(f'v_lshl_add_u32 v{vTR8}, v{vH}, 9, v{t2}')
        p(f'v_add_u32 v{vTQ}, s{sLQ}, v{vTQ}')
        p(f'v_add_u32 v{vWQ}, s{sLQ}, v{vL16}')
        p(f's_mov_b32 s{sPERM}, 0x07060302')
        self.lane_consts()
        vCSP = 104
        p(f'v_mov_b32 v{vCSP+3}, s{sONES}')
        p.ext(self.res_unpack(XR))
        p('s_waitcnt lgkmcnt(0)')
        p(f's_add_u32 s{sF}, s{sF}, 1')
        p(f's_addc_u32 s{sF+1}, s{sF+1}, 0')
        p(f'v_mov_b32 v{vF}, s{sF}')
        p(f'v_mov_b32 v{vF+1}, s{sF+1}')
        p(f's_getreg_b32 s{sT0}, hwreg(HW_REG_XCC_ID)')
        p(f's_and_b32 s{sT0}, s{sT0}, 15')
        p(f's_lshl_b32 s{sT0}, s{sT0}, 28')
        p(f's_xor_b32 s{sT0}, s{sT0}, s{sF+1}')
        p(f'v_mov_b32 v{vT+6}, s{sF}')
        p(f'v_mov_b32 v{vT+7}, s{sT0}')
        p(f's_lshl_b32 s{sT1}, s{sTEAM}, 8')
        p(f's_lshl_b32 s{sT2}, s{sM}, 3')
        p(f's_add_u32 s{sT1}, s{sT1}, s{sT2}')
        p(f's_add_u32 s{sT1}, s{sT1}, {WS_PUR}')
        lx = p.newlabel('noxcc')
        p(f's_cmp_lg_u32 s{sW}, 0')
        p(f's_cbranch_scc1 {lx}')
        p.mark('maybe_begin')
        p('s_mov_b64 exec, 1')
        p(f'buffer_store_dwordx2 {vr(vT+6,2)}, off, {srd(S_WS)}, s{sT1} sc1')
        p('s_mov_b64 exec, -1')
        p.mark('maybe_end')
        p.label(lx)
        p.mark('drained_vm')
        for i in range(7):
            p.ext(self.rawq(0, i))
        self.walker_at = len(p.items)
        self.stamp('wk')
        for i in range(7):
            p.ext(self.rawq(1, i))
        p('s_waitcnt vmcnt(14)')
        self.stamp('rt1')
        self.flag_opt(sXF)
        self.xform(0, 128, vCSP, vCSP + 3)
        self.stamp('xf0')
        self.xform(1, 160, vCSP + 1, vCSP + 3)
        self.cs_partial((0, 1), vCSP, vT + 6, vT + 7)

        def finish(nfr, offs):
            L = []
            base = None
            for k in range(nfr):
                hi, lo = offs[k] // 4096 * 4096, offs[k] % 4096
                if hi != base:
                    L.append(f's_add_u32 s{sT5}, s{sDST}, {hi}')
                    base = hi
                L.append(f'buffer_store_dwordx4 {vr(FR+4*k)}, v{vL16}, {srd(S_WS)}, s{sT5} offen offset:{lo} sc1')
            return L
        lB = {k: p.newlabel('jobB') for k in (3, 4, 5, 'join')}
        p(f's_mov_b32 s{sFL}, -1')
        p.mark('maybe_begin')
        p(f's_cmp_eq_u32 s{sJOB}, 0')
        p(f's_cbranch_scc1 {lB["join"]}')
        p(f's_cmp_eq_u32 s{sJOB}, 5')
        p(f's_cbranch_scc1 {lB[5]}')
        p(f's_cmp_ge_u32 s{sJOB}, 3')
        p(f's_cbranch_scc1 {lB[3]}')
        p(f'v_lshl_add_u32 v{vTR}, v{t0}, 5, v{t3}')
        p(f'v_add_u32 v{vTR}, s{sSTG}, v{vTR}')
        for t in range(7):
            for jj in range(2):
                p(f'ds_read_b64_tr_b16 {vr(FR+t*4+2*jj,2)}, v{vTR} offset:{t*1024+jj*512}')
        p(f's_mul_i32 s{sDST}, s{sJ}, 100352')
        p(f's_add_u32 s{sDST}, s{sDST}, {W1T}')
        p(f's_mul_i32 s{sDST2}, s{sI}, 3072')
        p(f's_add_u32 s{sDST2}, s{sDST2}, s{sDST}')
        p(f's_add_u32 s{sDST2}, s{sDST2}, 57344')
        p(f's_lshl_b32 s{sT0}, s{sI}, 12')
        p(f's_add_u32 s{sDST}, s{sDST}, s{sT0}')
        p(f's_lshl_b32 s{sFL}, s{sJ}, 4')
        p(f's_add_u32 s{sFL}, s{sFL}, s{sI}')
        p(f's_lshl_b32 s{sFL}, s{sFL}, 3')
        p(f's_add_u32 s{sFL}, s{sFL}, {F_W1}')
        p.ext(finish(4, [t * 1024 for t in range(4)]))
        for t in range(4, 7):
            p(f'buffer_store_dwordx4 {vr(FR+4*t)}, v{vL16}, {srd(S_WS)}, s{sDST2} offen offset:{(t-4)*1024} sc1')
        p(f's_branch {lB["join"]}')
        p.label(lB[3])
        for sg in range(2):
            for jj in range(2):
                p(f'ds_read_b64_tr_b16 {vr(FR+sg*4+2*jj,2)}, v{vTR} offset:{(16*jj+8*sg)*64}')
        p(f's_lshl_b32 s{sI2}, s{sTEAM}, 2')
        p(f's_add_u32 s{sI2}, s{sI2}, s{sRB}')
        p(f's_lshr_b32 s{sSL}, s{sI2}, 1')
        p(f's_and_b32 s{sHF}, s{sI2}, 1')
        p(f's_mul_i32 s{sDST}, s{sCB}, 229376')
        p(f's_mul_i32 s{sT0}, s{sSL}, 14336')
        p(f's_add_u32 s{sDST}, s{sDST}, s{sT0}')
        p(f's_lshl_b32 s{sT0}, s{sHF}, 13')
        p(f's_add_u32 s{sDST}, s{sDST}, s{sT0}')
        p(f's_lshl_b32 s{sT0}, s{sNU}, 10')
        p(f's_add_u32 s{sDST}, s{sDST}, s{sT0}')
        p(f's_add_u32 s{sDST}, s{sDST}, {W2T}')
        p(f's_lshl_b32 s{sFL}, s{sCB}, 5')
        p(f's_add_u32 s{sFL}, s{sFL}, s{sI2}')
        p(f's_lshl_b32 s{sFL}, s{sFL}, 1')
        p(f's_add_u32 s{sFL}, s{sFL}, s{sNU}')
        p(f's_lshl_b32 s{sFL}, s{sFL}, 3')
        p(f's_add_u32 s{sFL}, s{sFL}, {F_W2}')
        p(f's_cmp_eq_u32 s{sJOB}, 4')
        p(f's_cbranch_scc1 {lB[4]}')
        for sg in range(2, 4):
            for jj in range(2):
                p(f'ds_read_b64_tr_b16 {vr(FR+sg*4+2*jj,2)}, v{vTR} offset:{(32+16*jj+8*(sg%2))*64}')
        p.ext(finish(4, [k * 2048 for k in range(4)]))
        p(f's_branch {lB["join"]}')
        p.label(lB[4])
        for jj in range(2):
            p(f'ds_read_b64_tr_b16 {vr(FR+8+2*jj,2)}, v{vTR8} offset:{(32+4*jj)*64}')
        p('s_waitcnt lgkmcnt(0)')
        p.ext(finish(3, [k * 2048 for k in range(3)]))
        p(f's_branch {lB["join"]}')
        p.label(lB[5])
        for hd in range(4):
            for kp in range(2):
                for jj in range(2):
                    p(f'ds_read_b64_tr_b16 {vr(FR+(hd*2+kp)*4+2*jj,2)}, v{vTR} offset:{(28*hd+16*kp+8*jj)*64}')
        p(f's_lshl_b32 s{sFL}, s{sTEAM}, 2')
        p(f's_add_u32 s{sFL}, s{sFL}, s{sCB}')
        p(f's_lshl_b32 s{sDST}, s{sFL}, 14')
        p(f's_lshl_b32 s{sT0}, s{sNU}, 10')
        p(f's_add_u32 s{sDST}, s{sDST}, s{sT0}')
        p(f's_add_u32 s{sDST}, s{sDST}, {WOT}')
        p(f's_lshl_b32 s{sFL}, s{sFL}, 1')
        p(f's_add_u32 s{sFL}, s{sFL}, s{sNU}')
        p(f's_lshl_b32 s{sFL}, s{sFL}, 3')
        p(f's_add_u32 s{sFL}, s{sFL}, {F_WO}')
        p('s_waitcnt lgkmcnt(0)')
        p('s_mov_b32 exec_lo, 0')
        for hd in range(4):
            p(f'v_mov_b32 v{FR+(hd*2+1)*4+2}, 0')
            p(f'v_mov_b32 v{FR+(hd*2+1)*4+3}, 0')
        p('s_mov_b64 exec, -1')
        p.ext(finish(8, [k * 2048 for k in range(8)]))
        p.mark('maybe_end')
        p.label(lB['join'])
        self.stamp('jB')
        p('s_waitcnt lgkmcnt(0)')
        p('s_barrier')
        self.stamp('bar')
        self.cs_sum((0, 1), 108, vT + 6, vT + 7)
        self.stamp('pro')

    def p1(self):
        p, L0 = self.p, self.L == 0
        X, ACC, RING, CS = 32, 144, 192, 224
        accK, accV, accQ = ACC, ACC + 16, ACC + 32
        PK, PV = vT, vT + 8
        sXO, sST, sFX, sKV, sKF = sO, sO + 7, sO + 8, sO + 9, sO + 10
        p.ext(self.off(sFX, sTP, 128, O_FXA))
        if not L0:
            self.poll_first(vL8, f's{sFX}', 14)
        p.ext(self.xoff(sXO, sTP, 28672, O_XA))
        for g in range(1, 7):
            p(f's_add_u32 s{sXO+g}, s{sXO}, {4096*g}')
        p.ext(self.off(sST, sTP, 3584, O_STA))
        p(f's_lshl_b32 s{sT0}, s{sJ}, 3')
        p(f's_add_u32 s{sT0}, s{sT0}, s{sTP}')
        p.ext(self.off(sKV, sT0, 4096, O_KV))
        p.ext(self.off(sKF, sT0, 128, O_FKV))
        p(f'v_lshrrev_b32 v{vCSA}, 5, v{vL}')
        p(f'v_lshlrev_b32 v{vCSA}, 4, v{vCSA}')
        p(f'v_add_u32 v{vCSA}, {L_CSQ}, v{vCSA}')
        sW2E, sW2F = sO + 11, sO + 12
        vQ = 238
        if L0:
            self.vDQ, self.vTQ, self.vWQ = vQ, 225, 226
            p.ext([f'v_lshrrev_b32 v{vQ}, 2, v{vL}', f'v_mul_u32_u24 v{vQ}, 2688, v{vQ}', f'v_and_b32 v{vQ+1}, 3, v{vL}',
                   f'v_lshl_add_u32 v{vQ}, v{vQ+1}, 4, v{vQ}', f'v_lshlrev_b32 v{vQ+1}, 7, v{vL}'])

        def frag(f):
            if f < 56:
                base, off = vL16, (f % 2) * 28672 + (f // 2) * 1024
            else:
                base, off = vA1, (f - 56) * 1024
            return f'ds_read_b128 {vr(RING + 4*(f % 8))}, v{base} offset:{off}'

        def mf(f):
            acc, s = ((accK, accV)[f % 2], f // 2) if f < 56 else (accQ, f - 56)
            return f'{MF32} {vr(acc,16)}, {vr(RING+4*(f%8))}, {vr(X+4*s)}, {vr(acc,16) if s else 0}'

        def xl(s):
            return f'buffer_load_dwordx4 {vr(X+4*s)}, v{vL16}, {srd(S_WS)}, s{sXO + s//4} offen offset:{(s%4)*1024} sc1'
        PD = 6
        for f in range(PD):
            p(frag(f))
        self.stamp('p5')
        self.pad()
        if L0:
            a0, a1, d0 = 144, 145, 146
            p.ext([f'v_min_u32 v{a0}, {13*8}, v{vL8}', f'v_add_u32 v{a0}, s{sFX}, v{a0}',
                   f's_lshl_b32 s{sT0}, s{sTEAM}, 8', f's_add_u32 s{sT0}, s{sT0}, {WS_PUR - 32*8}', f'v_add_u32 v{a1}, s{sT0}, v{vL8}',
                   f'v_cmp_le_u32 vcc, 32, v{vL}', f'v_cndmask_b32 v{a0}, v{a0}, v{a1}, vcc'])
            lp, lo = p.newlabel('pur'), p.newlabel('purout')
            p.ext([f's_mov_b32 s{sCNT}, 0', Label(lp),
                   f'buffer_load_dwordx2 {vr(d0,2)}, v{a0}, {srd(S_WS)}, 0 offen sc1',
                   f's_add_u32 s{sCNT}, s{sCNT}, 1', f's_cmp_gt_u32 s{sCNT}, {POLL_MAX}', f's_cbranch_scc1 {lo}', 's_waitcnt vmcnt(0)',
                   f'v_xor_b32 v{d0+1}, s{sF+1}, v{d0+1}', f'v_xor_b32 v{d0}, s{sF}, v{d0}', f'v_and_b32 v{a1}, 0x0fffffff, v{d0+1}',
                   f'v_or_b32 v{d0}, v{d0}, v{a1}', f'v_cmp_ne_u32 vcc, 0, v{d0}', f's_cbranch_vccnz {lp}', Label(lo), Mark('drained_vm')])
        else:
            self.vpoll(vL8, f's{sFX}', 14)
        self.stamp('E')
        XP = 8
        for s in range(XP):
            p(xl(s))
        if L0:
            self.flag_opt(sJFL)
            p.ext([f'v_readlane_b32 s{sT1}, v{d0+1}, 32', f'v_cmp_ne_u32 vcc, s{sT1}, v{d0+1}', 's_cmp_eq_u32 vcc_hi, 0',
                   f's_cselect_b32 s{sPURE}, {0 if os.environ.get("FORCE_IMPURE") else 1}, 0',
                   f's_cmp_eq_u32 s{sPURE}, 0', f's_cselect_b64 s[{sIMP}:{sIMP+1}], -1, 0'])
        mem, pre = {}, {}
        for f in range(84):
            mem[f] = []
            if f + PD < 84 and not (f < 56 <= f + PD):
                mem[f].append(frag(f + PD))
            if f < 56 and f % 2 == 0 and f // 2 + XP < 28:
                mem[f].append(xl(f // 2 + XP))
            if 27 <= f < 41 and f % 2 == 1:
                mem[f].append(self.stats_loads(sST, CS)[(f - 27) // 2])
            if f % 2 == 0:
                pre[f] = [Touch(vr(RING + 4 * (f % 8)) + ' ' + vr(RING + 4 * ((f + 1) % 8)) + (' ' + vr(X + 4 * (f // 2)) if f < 56 else ''))]
        if L0:
            for i in range(7):
                mem[40 + 2 * i].append(self.rawq(2, i))
        else:
            p(f's_mul_i32 s{sT0}, s{sW}, 7168')
            p(f'v_add_u32 v{vQ}, s{sT0}, v{vA1}')
            for i in range(7):
                mem[3 + 4 * i].append(Ins(f'ds_write_b128 v{vQ}, {ar(224 + 4*i)} offset:{1024*i}', 'wq'))
        for f in (0, 16, 38):
            mem[f] += self.stamp_items(f'k{f}')

        def cs_reads(tau, dst):
            return [f'ds_read_b128 {vr(dst+4*q)}, v{vCSA} offset:{tau*128 + 32*q}' for q in range(4)]
        p.ext(sched([mf(f) for f in range(56)], pre, mem, self.kv_addr() + cs_reads(1, accQ) + cs_reads(0, PK) + self.stats_reduce(CS), 6, start=30))
        self.stamp('kv')

        def epi(acc, cs, P):
            L = []
            for r in range(0, 16, 2):
                L.append(f'v_pk_fma_f32 {vr(acc+r,2)}, {vr(cs+r,2)}, {vr(vMEAN,2)}, {vr(acc+r,2)} op_sel:[0,0,0] op_sel_hi:[1,0,1]')
            for r in range(0, 16, 2):
                L.append(f'v_pk_mul_f32 {vr(acc+r,2)}, {vr(acc+r,2)}, {vr(vMEAN,2)} op_sel:[0,1] op_sel_hi:[1,1]')
                L.append(f'v_cvt_pk_bf16_f32 v{P+r//2}, v{acc+r}, v{acc+r+1}')
            return L

        def pad(P, c6, c7):
            return ['s_mov_b32 exec_lo, 0', f'v_mov_b32 v{P+6}, {c6:#x}', f'v_mov_b32 v{P+7}, {c7:#x}', 's_mov_b64 exec, -1']

        def st(P, o):
            return [Ins(f'buffer_store_dwordx4 {vr(P+4*k)}, v{vL16}, {srd(S_WS)}, s{sKV} offen offset:{o+1024*k} sc1', 'kvst') for k in range(2)]
        t0, t1 = CS, CS + 1
        p.ext(epi(accK, PK, PK) + pad(PK, 0x3f803f80, 0x3f80) + st(PK, 0))
        p.ext(epi(accV, accQ, PV) + pad(PV, 0x3f80, 0) + st(PV, 2048))
        self.stamp('kvs')
        if L0:
            R = ACC
            vcs, vones, t2, t3 = R + 28, R + 29, R + 30, R + 31
            p.ext([f'v_and_b32 v225, 3, v{vL}', 'v_lshlrev_b32 v225, 3, v225', f'v_bfe_u32 v226, v{vL}, 4, 1',
                   'v_lshl_add_u32 v225, v226, 5, v225', f'v_bfe_u32 v226, v{vL}, 2, 2', 'v_lshl_add_u32 v225, v226, 6, v225',
                   f'v_lshrrev_b32 v226, 5, v{vL}', 'v_lshl_add_u32 v225, v226, 8, v225', f'v_add_u32 v225, s{sLQ}, v225',
                   f'v_add_u32 v226, s{sLQ}, v{vL16}', f'v_mov_b32 v{vones}, s{sONES}'])
            self.xform(2, R, vcs, vones)
            p.wait('kvst')
            p.ext(self.flag_sc1(sKF))
            for i in range(28):
                p(f'v_accvgpr_write_b32 a{224+i}, v{R+i}')
            self.cs_partial((2,), vcs, t2, t3)
            p('s_waitcnt lgkmcnt(0)')
            p('s_barrier')
            self.cs_sum((2,), R, t2, t3)
        else:
            p.wait('wq')
            p('s_barrier')
        for f in range(56, 56 + PD):
            p(frag(f))
        side = [f's_lshl_b32 s{sT0}, s{sW}, 12', f's_add_u32 s{sT0}, s{sT0}, {LKV + 8*4096}',
                f'v_add_u32 v{t0}, s{sT0}, v{vL16}',
                f'ds_write_b128 v{t0}, {vr(PK)}', f'ds_write_b128 v{t0}, {vr(PK+4)} offset:1024',
                f'v_and_b32 v{t1}, 31, v{vL}', f'v_lshlrev_b32 v{t1}, 6, v{t1}', f'v_lshrrev_b32 v{t0}, 5, v{vL}',
                f'v_lshl_add_u32 v{t1}, v{t0}, 4, v{t1}', f'v_add_u32 v{t0}, s{sT0}, v{t1}',
                f'ds_write_b128 v{t0}, {vr(PV)} offset:2048', f'ds_write_b128 v{t0}, {vr(PV+4)} offset:{2048+32}',
                f'v_mul_f32 v{vRSTD}, {f32bits(28 ** -0.5 * math.log2(math.e)):#x}, v{vRSTD}']
        pre2 = {f - 56: v for f, v in pre.items() if f >= 56}
        mem2 = {f - 56: v for f, v in mem.items() if f >= 56}
        if not L0:
            mem2[22].append([Wait(['kvst'])] + self.flag_sc1(sKF))
        if L0:
            vW = 236
            p.ext([f's_lshl_b32 s{sT0}, s{sJ}, 7', f's_add_u32 s{sT0}, s{sT0}, {F_W1}', f's_lshl_b32 s{sT1}, s{sCB}, 6',
                   f's_add_u32 s{sT1}, s{sT1}, {F_WO - 14*8}', f's_lshl_b32 s{sT2}, s{sCB}, 9', f's_lshl_b32 s{sT3}, s{sW}, 7',
                   f's_add_u32 s{sT2}, s{sT2}, s{sT3}', f's_add_u32 s{sT2}, s{sT2}, {F_W2 - 22*8}',
                   f'v_mov_b32 v{vW}, s{sT0}', f'v_mov_b32 v{vW+1}, s{sT1}', f'v_cmp_le_u32 vcc, 14, v{vL}',
                   f'v_cndmask_b32 v{vW}, v{vW}, v{vW+1}, vcc', f'v_mov_b32 v{vW+1}, s{sT2}', f'v_cmp_le_u32 vcc, 22, v{vL}',
                   f'v_cndmask_b32 v{vW}, v{vW}, v{vW+1}, vcc', f'v_add_u32 v{vW}, v{vW}, v{vL8}'])
            side += self.peek_issue(vW, '0', 38)
        side2 = self.masks() + cs_reads(2, CS)
        cut = QCUT if L0 else 28
        p.ext(sched([mf(f) for f in range(56, 56 + cut)], pre2, mem2, side + ([] if L0 else side2), 6, start=0))
        self.stamp('q')
        if L0:
            p.ext(self.peek_check(vW, '0', 38, acquire=False))
        self.kv_fetch()
        p.ext(sched([mf(f) for f in range(56 + cut, 84)], {k - cut: v for k, v in pre2.items() if k >= cut},
                    {k - cut: v for k, v in mem2.items() if k >= cut}, side2 if L0 else [], 6))
        QF = 136
        p.ext(epi(accQ, CS, QF))
        p.ext(pad(QF, 0, 0x3f800000))
        self.pad()
        p('s_barrier')
        self.stamp('p1')

    sKD, sKL, sKFl, sNULL = sO + 11, sO + 13, (sO + 15, 78), 79

    def kv_addr(self):
        sKD, sKL, sKFl, sNULL = self.sKD, self.sKL, self.sKFl, self.sNULL
        L = [f's_mov_b32 s{sNULL}, 0']
        for k in range(2):
            L += [f's_lshl_b32 s{sT0}, s{sW}, 1', f's_add_u32 s{sT0}, s{sT0}, {k}',
                  f's_lshl_b32 s{sKL+k}, s{sT0}, 12', f's_add_u32 s{sKL+k}, s{sKL+k}, {LKV}',
                  f's_lshl_b32 s{sT1}, s{sA}, 2', f's_add_u32 s{sT0}, s{sT0}, s{sT1}',
                  [f's_cmp_lt_u32 s{sT0}, 8', f's_cselect_b32 s{sT1}, {STRIDE}, 0'],
                  f's_sub_u32 s{sT1}, s{sLB}, s{sT1}', f's_and_b32 s{sT0}, s{sT0}, 7',
                  [f's_cmp_lt_i32 s{sT1}, {TEAM0}', f's_cselect_b32 s{sT2}, {1 << k}, 0',
                   f's_cselect_b32 s{sT1}, s{sLB}, s{sT1}', f's_cselect_b32 s{sT0}, s{sTP}, s{sT0}'],
                  f's_or_b32 s{sNULL}, s{sNULL}, s{sT2}', f's_lshl_b32 s{sT2}, s{sJ}, 3', f's_add_u32 s{sT0}, s{sT0}, s{sT2}',
                  f's_lshl_b32 s{sKD+k}, s{sT0}, 12', f's_add_u32 s{sKD+k}, s{sKD+k}, s{sT1}',
                  f's_lshl_b32 s{sT0}, s{sT0}, 7', f's_add_u32 s{sT0}, s{sT0}, s{sT1}', f's_add_u32 s{sKFl[k]}, s{sT0}, {O_FKV}']
        return L

    def masks(self):
        MW, MD, t2, t3 = 144, 160, 238, 239
        L = [f'v_and_b32 v{t2}, 31, v{vL}', f'v_lshrrev_b32 v{t3}, 5, v{vL}', f'v_lshlrev_b32 v{t3}, 2, v{t3}',
             f'v_sub_u32 v{t2}, v{t2}, v{t3}', f'v_mov_b32 v{t3}, {f32bits(-1e30):#x}']
        for r in range(0, 16, 2):
            k0, k1 = 8 * (r // 4) + r % 4, 8 * (r // 4) + r % 4 + 1
            L.append([f'v_cmp_le_i32 vcc, {k0}, v{t2}', f'v_cmp_le_i32 s[4:5], {k1}, v{t2}'])
            L += [f'v_cndmask_b32_e64 v{MD+r}, v{t3}, 0, vcc', f'v_cndmask_b32_e64 v{MD+r+1}, v{t3}, 0, s[4:5]',
                  f'v_cndmask_b32_e64 v{MW+r}, 0, v{t3}, vcc', f'v_cndmask_b32_e64 v{MW+r+1}, 0, v{t3}, s[4:5]']
        return L

    def kv_fetch(self):
        p = self.p
        t0, t1, Z, NK = 16, 17, 20, 2
        sKD, sKL, sKFl, sNULL = self.sKD, self.sKL, self.sKFl, self.sNULL
        p(f'v_bfe_u32 v{t0}, v{vL}, 1, 1')
        p(f'v_lshlrev_b32 v{t0}, 10, v{t0}')
        p(f'v_and_b32 v{t1}, 1, v{vL}')
        p(f'v_lshl_add_u32 v{t0}, v{t1}, 9, v{t0}')
        p(f'v_lshrrev_b32 v{t1}, 2, v{vL}')
        p(f'v_lshl_add_u32 v{t0}, v{t1}, 4, v{t0}')
        lp, lo = p.newlabel('kvpoll'), p.newlabel('kvpollout')
        self.stamp('w1')
        p('s_waitcnt lgkmcnt(0)')
        p(f's_mov_b32 s{sCNT}, 0')
        p.label(lp)
        for k in range(NK):
            p(f's_buffer_load_dwordx2 s[{sPOLL+2*k}:{sPOLL+2*k+1}], {srd(S_WS)}, s{sKFl[k]} glc')
        p(f's_add_u32 s{sCNT}, s{sCNT}, 1')
        p(f's_cmp_gt_u32 s{sCNT}, {POLL_MAX}')
        p(f's_cbranch_scc1 {lo}')
        p('s_waitcnt lgkmcnt(0)')
        for k in range(NK):
            p(f's_cmp_eq_u64 s[{sPOLL+2*k}:{sPOLL+2*k+1}], s[{sF}:{sF+1}]')
            p(f's_cbranch_scc0 {lp}')
        p.label(lo)
        self.stamp('kvf')
        for k in range(NK):
            lnull, lb = p.newlabel('null'), p.newlabel('nullback')
            p(f's_bitcmp1_b32 s{sNULL}, {k}')
            p(f's_cbranch_scc1 {lnull}')
            p.mark('maybe_begin')
            p(f's_mov_b32 m0, s{sKL+k}')
            p(f's_sub_u32 s{sT5}, s{sKD+k}, 768')
            p(f'buffer_load_dwordx4 v{vL16}, {srd(S_WS)}, s{sKD+k} offen sc1 lds')
            p(f'buffer_load_dwordx4 v{vL16}, {srd(S_WS)}, s{sKD+k} offen offset:1024 sc1 lds')
            p(f'buffer_load_dwordx4 v{t0}, {srd(S_WS)}, s{sKD+k} offen offset:2048 sc1 lds')
            p(f'buffer_load_dwordx4 v{t0}, {srd(S_WS)}, s{sT5} offen offset:3072 sc1 lds')
            p.mark('maybe_end')
            p.label(lb)
            self.tail.append((lnull, [
                f'v_add_u32 v{t1}, s{sKL+k}, v{vL16}',
                f'v_mov_b32 v{Z}, 0', f'v_mov_b32 v{Z+1}, 0', f'v_mov_b32 v{Z+2}, 0', f'v_mov_b32 v{Z+3}, 0'] +
                [f'ds_write_b128 v{t1}, {vr(Z)} offset:{o}' for o in (0, 2048, 3072)] +
                ['s_mov_b32 exec_lo, 0', f'v_mov_b32 v{Z+3}, 0xf1490000', 's_mov_b64 exec, -1',
                 f'ds_write_b128 v{t1}, {vr(Z)} offset:1024', f's_branch {lb}']))

    def attn(self):
        p, L0 = self.p, self.L == 0
        KF, MW, MD, OA, QF, PB, VF = 32, 144, 160, 192, 136, 208, 224
        STL = (104, 120, 176)
        t0, t1 = 104, 105
        t2, t3 = 106, 107
        vKA, vVA = vT, vT + 1
        p(f's_lshl_b32 s{sT0}, s{sW}, 12')
        p(f's_add_u32 s{sT0}, s{sT0}, {LKV}')
        p(f'v_add_u32 v{vKA}, s{sT0}, v{vL16}')
        p(f'v_lshrrev_b32 v{t2}, 5, v{vL}')
        p(f'v_bfe_u32 v{t3}, v{vL}, 2, 2')
        p(f'v_lshl_add_u32 v{t2}, v{t2}, 2, v{t3}')
        p(f'v_lshlrev_b32 v{vVA}, 6, v{t2}')
        p(f'v_bfe_u32 v{t2}, v{vL}, 4, 1')
        p(f'v_lshl_add_u32 v{vVA}, v{t2}, 5, v{vVA}')
        p(f'v_and_b32 v{t2}, 1, v{vL}')
        p(f'v_lshl_add_u32 v{vVA}, v{t2}, 4, v{vVA}')
        p(f'v_bfe_u32 v{t2}, v{vL}, 1, 1')
        p(f'v_lshl_add_u32 v{vVA}, v{t2}, 3, v{vVA}')
        p(f'v_add_u32 v{vVA}, s{sT0}, v{vVA}')
        sOD, sOF, sWO = sO, sO + 1, sO + 2
        p(f's_lshl_b32 s{sT0}, s{sTP}, 4')
        p(f's_add_u32 s{sT0}, s{sT0}, s{sJ}')
        p.ext(self.roff(sOD, sT0, 2048, O_O))
        p.ext(self.off(sOF, sT0, 8, O_FO))
        p(f's_lshl_b32 s{sWO}, s{sCB}, 2')
        p(f's_add_u32 s{sWO}, s{sWO}, s{sW}')
        p(f's_lshl_b32 s{sWO}, s{sWO}, 14')
        p(f's_add_u32 s{sWO}, s{sWO}, {WOT}')
        for g in range(1, 4):
            p(f's_add_u32 s{sWO+g}, s{sWO}, {4096*g}')
        vPT = vT + 12
        p(f'v_lshlrev_b32 v{vPT}, 7, v{vL}')
        p(f'v_add_u32 v{vPT}, s{sOD}, v{vPT}')
        p(f's_lshl_b32 s{sT0}, s{sTP}, 7')
        p(f's_lshl_b32 s{sT1}, s{sRB}, 8')
        p(f's_lshl_b32 s{sT2}, s{sRHO}, 7')
        p(f's_add_u32 s{sT2}, s{sT2}, s{sT1}')
        p(f's_mul_i32 s{sT3}, s{sT2}, 28')
        p(f's_lshl_b32 s{sT4}, s{sCB}, 9')
        p(f's_add_u32 s{sT3}, s{sT3}, s{sT4}')
        p(f's_lshl_b32 s{sT4}, s{sNU}, 8')
        p(f's_add_u32 s{sT3}, s{sT3}, s{sT4}')
        for lane, (r, c) in enumerate([(sT0, O_FO), (sT1, O_FO), (sT1, O_FO + 128), (sT0, O_FX1), (sT2, O_FX1),
                                       (sT3, O_ST1), (sT3, O_ST1 + 128), (sT0, O_FH), (sT1, O_FH), (sT1, O_FH + 128),
                                       (sT0, O_FH + 1024), (sT1, O_FH + 1024), (sT1, O_FH + 1024 + 128)]):
            p(f's_add_u32 s{sT4}, s{r}, {c}')
            p(f's_add_u32 s{sT4}, s{sT4}, s{sLB}')
            p(f'v_writelane_b32 v{vPT}, s{sT4}, {16 + lane}')
        vZ = vT + 8
        p(f's_lshl_b32 s{sT0}, s{sNU}, 10')
        p(f'v_xor_b32 v{vZ}, s{sT0}, v{vL16}')
        p(f'v_xor_b32 v{vZ+1}, 1024, v{vZ}')
        vT7 = vT + 7
        p(f'v_lshlrev_b32 v{vT7}, 7, v{vL}')
        p.ext(self.pub_offsets(O_X1, O_ST1, O_FX1))
        p(f's_sub_u32 s{sT0}, s{sXD}, {29*128}')
        p(f'v_add_u32 v{t2}, s{sT0}, v{vT7}')
        p(f'v_cmp_lt_u32 vcc, 28, v{vL}')
        p(f'v_cndmask_b32 v{vPT}, v{vPT}, v{t2}, vcc')
        sWT = sO + 6
        p(f's_lshl_b32 s{sT0}, s{sCB}, 2')
        p(f's_add_u32 s{sT0}, s{sT0}, s{sRB}')
        p(f's_lshl_b32 s{sWT}, s{sT0}, 14')
        p(f's_lshl_b32 s{sT2}, s{sW}, 12')
        p(f's_add_u32 s{sWT}, s{sWT}, s{sT2}')
        p(f's_add_u32 s{sWT}, s{sWT}, {WOT}')
        touches = ['s_mov_b32 exec_hi, 0', f'buffer_load_dword a255, v{vT7}, {srd(S_WS)}, s{sWT} offen sc1', self.setexec(45),
                   f'buffer_load_dword a255, v{vPT}, {srd(S_WS)}, 0 offen sc1', 's_mov_b64 exec, -1']
        bg = self.w1_dma(0)
        n1 = 0
        while not is_mem(bg[0]) or n1 < NG1:
            n1 += is_mem(bg[0])
            p.ext([bg.pop(0)])
            if not bg:
                break
        bw = []
        if L0:
            p.ext(self.w2_setup(sO + 7, (vT + 10, vT + 11)))
            bw = self.w2_loads(sO + 7, (vT + 10, vT + 11))
            for _ in range(NW1):
                p.ext([bw.pop(0)])
        self.pad()
        p(f's_waitcnt vmcnt({NG1 + (NW1 if L0 else 0)}) lgkmcnt(0)')
        self.stamp('kvd')
        p('s_barrier')
        self.stamp('A')
        p.ext(touches)

        def kread(t):
            return [f'ds_read_b128 {vr(KF+8*t+4*k)}, v{vKA} offset:{t*4096+k*1024}' for k in range(2)]

        def qk(t):
            s = STL[t % 3]
            c = vr(MW, 16) if t == 0 else vr(MD, 16) if t == 8 else '0'
            return [f'{MF32} {vr(s,16)}, {vr(KF+8*t)}, {vr(QF)}, {c}',
                    f'{MF32} {vr(s,16)}, {vr(KF+8*t+4)}, {vr(QF+4)}, {vr(s,16)}']
        vM, vM2 = vT + 2, vT + 3

        def mx(t):
            s = STL[t % 3]
            L = []
            for i in range(8):
                d = vM if i % 2 == 0 else vM2
                if t == 0 and i < 2:
                    L.append(f'v_max_f32 v{d}, v{s+2*i}, v{s+2*i+1}')
                else:
                    L.append(f'v_max3_f32 v{d}, v{s+2*i}, v{s+2*i+1}, v{d}')
            return L

        def vread(t):
            d = VF + 8 * (t % 2)
            return [f'ds_read_b64_tr_b16 {vr(d+4*kv+2*jj,2)}, v{vVA} offset:{t*4096+2048+(16*kv+8*jj)*64}'
                    for kv in range(2) for jj in range(2)]
        def popbg(bg=bg):
            L = []
            while bg:
                x = bg.pop(0)
                L.append(x)
                if is_mem(x):
                    break
            return L
        for t in range(4):
            p.ext(kread(t))
        q = qk(0)
        p.ext([q[0]] + kread(4) + [q[1]] + kread(5))
        q = qk(1)
        p.ext([q[0]] + kread(6) + popbg(bw) + [q[1]] + kread(7) + popbg(bw))
        for t in range(9):
            m = mx(t)
            if t + 2 < 9:
                q = qk(t + 2)
                extra = kread(8) if t == 0 else vread(0)[:2] if t == 5 else vread(0)[2:] if t == 6 else []
                if t % 2 == 1:
                    extra = extra + popbg()
                p.ext([q[0]] + extra + popbg(bw) + m[:4] + [q[1]] + popbg(bw) + m[4:])
            else:
                p.ext(m)
        self.stamp('a1')
        a, b2, r1 = vT + 4, vT + 5, vT + 6
        p(f'v_max_f32 v{vM}, v{vM}, v{vM2}')
        p(f'v_mov_b32 v{a}, v{vM}')
        p(f'v_permlane32_swap_b32 v{vM}, v{a}')
        p(f'v_max_f32 v{vM}, v{vM}, v{a}')
        p(f'v_xor_b32 v{vM}, 0x80000000, v{vM}')
        p(f'v_and_b32 v{a}, 0xffff0000, v{vM}')
        p(f'v_sub_f32 v{r1}, v{vM}, v{a}')
        p(f'v_and_b32 v{a}, 0xffff0000, v{r1}')
        p(f'v_sub_f32 v{b2}, v{r1}, v{a}')
        p('s_mov_b32 exec_lo, 0')
        p(f'v_perm_b32 v{QF+6}, v{r1}, v{vM}, s{sPERM}')
        p(f'v_perm_b32 v{QF+7}, 1.0, v{b2}, s{sPERM}')
        p('s_mov_b64 exec, -1')

        def ex(t):
            s = STL[t % 3]
            pb = PB + 8 * (t % 2)
            L = []
            for i in range(8):
                L.append(f'v_exp_f32 v{s+2*i}, v{s+2*i}')
                L.append(f'v_exp_f32 v{s+2*i+1}, v{s+2*i+1}')
                if i:
                    L.append(f'v_cvt_pk_bf16_f32 v{pb+i-1}, v{s+2*i-2}, v{s+2*i-1}')
            L.append(f'v_cvt_pk_bf16_f32 v{pb+7}, v{s+14}, v{s+15}')
            return L

        def pv(t):
            d = VF + 8 * (t % 2)
            pb = PB + 8 * (t % 2)
            return [f'{MF32} {vr(OA,16)}, {vr(d)}, {vr(pb)}, {vr(OA,16) if t else 0}',
                    f'{MF32} {vr(OA,16)}, {vr(d+4)}, {vr(pb+4)}, {vr(OA,16)}']

        self.pad()

        def wol(i):
            ks, z = i // 2, i % 2
            return f'buffer_load_dwordx4 {vr(32+4*i)}, v{vZ+z}, {srd(S_WS)}, s{sWO + ks//2} offen offset:{(ks%2)*2048} sc1'
        p.ext(qk(0))
        p.ext(qk(1))
        for t in range(9):
            e = ex(t)
            mf = (pv(t - 1) if t else []) + (qk(t + 2) if t + 2 < 9 else [])
            out = []
            pos = [2, 7, 12, 17]
            for i, x in enumerate(e):
                out.append(x)
                if i in pos and pos.index(i) < len(mf):
                    k = pos.index(i)
                    out.append(mf[k])
                    if t + 1 < 9:
                        if t == 0:
                            out += vread(1)[2 * k:2 * k + 2]
                        elif k in (1, 2):
                            out += vread(t + 1)[2 * (k - 1):2 * (k - 1) + 2]
                        elif t == 7 and k == 1:
                            pass
                    if t < 6 and k in (0, 3) or t == 0:
                        out += popbg()
                    if t < 7:
                        out += popbg(bw) + (popbg(bw) if k % 2 or t == 0 else [])
                    if t >= 7:
                        out += [wol(8 * (t - 7) + 4 * k + q) for q in range(4)]
            if t == 7:
                out = out[:-3] + vread(8)[2:] + out[-3:]
            p.ext(out)
        assert not bg and not bw, (len(bg), len(bw))
        p.ext(pv(8))
        self.stamp('a2')
        p(f'v_mov_b32 v{a}, v{OA+12}')
        p(f'v_mov_b32 v{b2}, v{OA+12}')
        p(f'v_permlane32_swap_b32 v{a}, v{b2}')
        p(f'v_rcp_f32 v{b2}, v{b2}')
        for i in range(8):
            p(f'v_pk_mul_f32 {vr(OA+2*i,2)}, {vr(OA+2*i,2)}, {vr(a,2)} op_sel:[0,1] op_sel_hi:[1,1]')
            p(f'v_cvt_pk_bf16_f32 v{PB+i}, v{OA+2*i}, v{OA+2*i+1}')
            if i % 4 == 3:
                p(f'buffer_store_dwordx4 {vr(PB+i-3)}, v{vL16}, {srd(S_WS)}, s{sOD} offen offset:{(i//4)*1024}', tok='ost')
        self.publish(['ost'], sOF)
        self.stamp('att')

    def reduce_writes(self, ACC):
        return [Ins(f'ds_write_b128 v{vRW+x-1}, {vr(ACC+16*x+4*c)} offset:{c*1024}', 'rw') for x in range(1, 4) for c in range(4)]

    def reduce_finish(self, ACC, TMP):
        p = self.p
        p.wait('rw')
        self.pad()
        p('s_barrier')
        for c in range(4):
            for x in range(3):
                p(f'ds_read_b128 {vr(TMP+16*x+4*c)}, v{vRW+3} offset:{x*4096+c*1024}')
        for c in range(8):
            p(f'v_pk_add_f32 {vr(TMP+2*c,2)}, {vr(TMP+2*c,2)}, {vr(TMP+16+2*c,2)}')
            p(f'v_pk_add_f32 {vr(ACC+2*c,2)}, {vr(ACC+2*c,2)}, {vr(TMP+32+2*c,2)}')
            p(f'v_pk_add_f32 {vr(ACC+2*c,2)}, {vr(ACC+2*c,2)}, {vr(TMP+2*c,2)}')

    def yoffs(self, dst, mul, add):
        L = []
        for y in range(2):
            L += [f's_xor_b32 s{sT0}, s{sRHO}, {y}', f's_lshl_b32 s{sT1}, s{sRB}, 1', f's_add_u32 s{sT0}, s{sT0}, s{sT1}',
                  f's_lshl_b32 s{sT0}, s{sT0}, 2', f's_add_u32 s{sT0}, s{sT0}, s{sW}'] + self.roff(dst + y, sT0, mul, add)
        return L

    def p3(self):
        p, L0 = self.p, self.L == 0
        WO, OF, ACC, RING = 32, 96, 160, 200

        def colsum(part, AC=ACC, RG=RING, T=vT, extra=()):
            for i in range(4):
                p(f'v_mov_b32 v{T+4+i}, s{sONES}')
            p(f's_lshl_b32 s{sT0}, s{sW}, 10')
            if part == 0:
                p(f'v_add_u32 v{T}, s{sT0}, v{vA1}')
            else:
                p(f's_min_u32 s{sT0}, s{sT0}, 2048')
                p(f's_add_u32 s{sT0}, s{sT0}, {LW1}')
                p(f'v_add_u32 v{T}, s{sT0}, v{vA1}')
            NRG = 4
            rd = lambda f: f'ds_read_b128 {vr(RG+4*(f%NRG))}, v{T} offset:{f*(4096, 3072)[part]}'
            for f in range(NRG - 1):
                p(rd(f))
            for f in range(14):
                p(f'{MF16} {vr(AC)}, {vr(T+4)}, {vr(RG+4*(f%NRG))}, {vr(AC) if f else 0}')
                if f + NRG - 1 < 14:
                    p(rd(f + NRG - 1))
                if f % 3 == 1 and extra:
                    p(extra.pop(0))
            p(f's_lshl_b32 s{sT0}, s{sW}, 6')
            p(f's_add_u32 s{sT0}, s{sT0}, {L_CS1 + 256*part}')
            p(f'v_and_b32 v{T}, 15, v{vL}')
            p(f'v_lshlrev_b32 v{T}, 2, v{T}')
            p(f'v_add_u32 v{T}, s{sT0}, v{T}')
            p(f'ds_write_b32 v{T}, v{AC}')
            p('s_waitcnt lgkmcnt(0)')
        w1d = []
        self.pad()
        p('s_barrier')
        ljoin, lidle = p.newlabel('p3join'), p.newlabel('p3idle')
        p(f's_cmp_ge_u32 s{sM}, 28')
        p(f's_cbranch_scc1 {lidle}')
        p.mark('maybe_begin')
        sFO, sY = sO, sO + 2
        p(f's_lshl_b32 s{sT0}, s{sRB}, 3')
        p(f's_add_u32 s{sT0}, s{sT0}, s{sW}')
        p.ext(self.off(sFO, sT0, 32, O_FO))
        self.poll_first(vFLG, f's{sFO}', 8)
        p.ext(self.yoffs(sY, 8192, O_O))
        p(f's_add_u32 s{sY+2}, s{sY}, 4096')
        p(f's_add_u32 s{sY+3}, s{sY+1}, 4096')
        self.vpoll(vFLG, f's{sFO}', 8)
        self.stamp('B')

        def ld(ks, y):
            return f'buffer_load_dwordx4 {vr(OF+(ks*2+y)*4)}, v{vL16}, {srd(S_WS)}, s{sY + 2*(ks//4) + y} offen offset:{(ks%4)*1024} sc1'

        def mf(ks, x):
            y, z = x >> 1, x & 1
            c = vr(ACC + 16 * x, 16) if ks else (vr(vRES, 16) if x == 0 else '0')
            return f'{MF32} {vr(ACC+16*x,16)}, {vr(WO+(ks*2+z)*4)}, {vr(OF+(ks*2+y)*4)}, {c}'
        for ks in range(5):
            for y in range(2):
                p(ld(ks, y))
        rest = list(w1d)
        for ks in range(8):
            for x in (1, 2, 3):
                p(mf(ks, x))
                if ks + 5 < 8 and x < 3:
                    p(ld(ks + 5, x - 1))
                elif ks >= 3 and rest:
                    y = rest.pop(0)
                    p.ext([y])
                    while rest and not is_mem(y):
                        y = rest.pop(0)
                        p.ext([y])
        assert not rest
        self.stamp('p3mm')
        p.ext(sched([mf(ks, 0) for ks in range(8)], {}, {}, self.reduce_writes(ACC), 2, start=2))
        self.stamp('p3rw')
        self.reduce_finish(ACC, 32)
        self.stamp('p3rd')
        P = 96
        for i in range(8):
            p(f'v_cvt_pk_bf16_f32 v{P+i}, v{ACC+2*i}, v{ACC+2*i+1}')
        self.x_store(P, vX1A, (0, 512))
        self.publish(['xst'], sXF)
        self.stamp('p3pub')
        p.ext(self.res_unpack(P))
        p.mark('maybe_end')
        p.label(ljoin)
        idle = [f'v_lshlrev_b32 v{vT}, 7, v{vL}', f's_lshl_b32 s{sT0}, s{sCB}, 2', f's_add_u32 s{sT0}, s{sT0}, s{sW}']
        if L0:
            idle += [f's_lshl_b32 s{sT1}, s{sT0}, 7', f's_add_u32 s{sT1}, s{sT1}, {F_W1}'] + self.poll_loop(vL8, f's{sT1}', 14)
        idle += [f's_mul_i32 s{sT1}, s{sT0}, 100352'] + self.prefetch(vT, sT1, W1T + 55296, 45056)
        self.tail.append((lidle, idle + [f's_branch {ljoin}']))
        self.colsum = colsum
        self.stamp('p3')

    def p45(self):
        p, L0 = self.p, self.L == 0
        X, ACC, RING, CS = 32, 144, 200, 224
        sXO, sST, sFX, sH, sHF = sO, sO + 4, sO + 5, sO + 6, sO + 8
        sFH, sST5, sW2 = sO + 9, sO + 10, sO + 11
        sY = [76, 77, 78, 79, sO + 12, sO + 13, sO + 14, sO + 15]
        vTC, vHA, vHB, vZ, vLb, PO = vT, vT + 1, vT + 2, (vT + 3, vT + 13), vT + 12, vT + 4
        p('s_barrier')
        p.ext(self.w1_dma(1))
        p.ext(self.off(sFX, sTP, 128, O_FX1))
        if False:
            p.ext([f's_lshl_b32 s{sT1}, s{sJ}, 7', f's_add_u32 s{sT1}, s{sT1}, {F_WQ - 14*8}',
                   f'v_mov_b32 v{PO}, s{sFX}', f'v_mov_b32 v{PO+1}, s{sT1}', f'v_cmp_le_u32 vcc, 14, v{vL}',
                   f'v_cndmask_b32 v{PO}, v{PO}, v{PO+1}, vcc', f'v_add_u32 v{PO}, v{PO}, v{vL8}'])
            self.poll_first(PO, '0', 28)
        else:
            self.poll_first(vL8, f's{sFX}', 14)
        p.ext(self.xoff(sXO, sTP, 28672, O_X1))
        for g in range(1, 4):
            p(f's_add_u32 s{sXO+g}, s{sXO}, {8192*g}')
        p.ext(self.off(sST, sTP, 3584, O_ST1))
        p(f's_lshl_b32 s{sT0}, s{sTP}, 4')
        p(f's_add_u32 s{sT0}, s{sT0}, s{sJ}')
        p.ext(self.off(sH, sT0, 7168, O_H))
        p(f's_add_u32 s{sH+1}, s{sH}, 4096')
        p.ext(self.off(sHF, sT0, 8, O_FH))
        p.ext([f'v_lshrrev_b32 v{vCSA}, 4, v{vL}', f'v_lshlrev_b32 v{vCSA}, 4, v{vCSA}', f'v_add_u32 v{vCSA}, {L_CS1}, v{vCSA}',
               f'v_lshrrev_b32 v{vHA}, 5, v{vL}', f'v_lshlrev_b32 v{vHA}, 10, v{vHA}',
               f'v_bfe_u32 v{vHB}, v{vL}, 4, 1', f'v_lshl_add_u32 v{vHA}, v{vHB}, 9, v{vHA}',
               f'v_and_b32 v{vTC}, 15, v{vL}', f'v_lshl_add_u32 v{vHA}, v{vTC}, 4, v{vHA}',
               f'v_lshlrev_b32 v{vHB}, 3, v{vHB}', f'v_lshl_add_u32 v{vHB}, v{vTC}, 4, v{vHB}',
               f'v_lshrrev_b32 v{vTC}, 5, v{vL}', f'v_lshl_add_u32 v{vHB}, v{vTC}, 9, v{vHB}',
               f'v_add_u32 v{vLb}, 4096, v{vL16}', f'v_add_u32 v{vZ[0]}, {LW1}, v{vA1}'])
        sRBc = sPOLL
        p(f's_min_u32 s{sRBc}, s{sRB}, 3')
        p(f's_lshl_b32 s{sT0}, s{sRBc}, 3')
        p(f's_add_u32 s{sT0}, s{sT0}, s{sW}')
        p.ext(self.off(sFH, sT0, 32, O_FH))
        for y in range(2):
            p.ext([f's_xor_b32 s{sT0}, s{sRHO}, {y}', f's_lshl_b32 s{sT1}, s{sRBc}, 1', f's_add_u32 s{sT0}, s{sT0}, s{sT1}',
                   f's_lshl_b32 s{sT0}, s{sT0}, 2', f's_add_u32 s{sT0}, s{sT0}, s{sW}'] + self.off(sT2, sT0, 28672, O_H))
            for sl in range(4):
                p.ext([f's_add_u32 s{sT0}, {ROT}, {sl}', f's_and_b32 s{sT0}, s{sT0}, 3', f's_mul_i32 s{sT0}, s{sT0}, 7168',
                       f's_add_u32 s{sY[2*sl+y]}, s{sT2}, s{sT0}'])
        p(f's_lshl_b32 s{sT0}, s{sRBc}, 1')
        p(f's_add_u32 s{sT0}, s{sT0}, s{sRHO}')
        p.ext(self.off(sST5, sT0, 3584, O_ST1))
        if L0:
            p.ext(self.pub_offsets(O_XA + LSTRIDE, O_STA + LSTRIDE, O_FXA + LSTRIDE))
        p(f'v_lshlrev_b32 v{vTC}, 7, v{vL}')
        seq = [(t, s) for s in range(14) for t in range(4)] + [(t, s) for s in range(14) for t in range(4, 7)]

        def frag(f):
            base, off = (vA1, f * 1024) if f < 56 else (vZ[0], (f - 56) * 1024)
            return f'ds_read_b128 {vr(RING + 4*(f % 6))}, v{base} offset:{off}'

        def mf(f, u):
            t, s = seq[f]
            return f'{MF16} {vr(ACC+8*t+4*u)}, {vr(RING+4*(f%6))}, {vr(X+4*(2*s+u))}, {vr(ACC+8*t+4*u) if s else 0}'

        def xl(i):
            return f'buffer_load_dwordx4 {vr(X+4*i)}, v{(vL16, vLb)[(i//4)%2]}, {srd(S_WS)}, s{sXO + i//8} offen offset:{(i%4)*1024} sc1'

        def cs_reads(tiles):
            return [f'ds_read_b128 {vr(CS+4*(t%4))}, v{vCSA} offset:{t*64}' for t in tiles]
        PD = 4
        for f in range(PD):
            p(frag(f))
        self.pad()
        self.vpoll(vL8, f's{sFX}', 14)
        self.stamp('C')
        XP = 8
        for i in range(XP):
            p(xl(i))
        p('s_barrier')
        if L0:
            extra = [xl(i) for i in range(XP, XP + 10)]
            self.colsum(0, AC=176, RG=180, T=vT + 4, extra=extra)
            self.colsum(1, AC=176, RG=180, T=vT + 4, extra=extra)
            XP += 10
        mem, pre = {}, {}
        for f in range(98):
            mem[2 * f] = [frag(f + PD)] if f + PD < 98 else []
            mem[2 * f + 1] = []
            if f < 56 and f % 2 == 0 and f // 2 + XP < 28:
                mem[2 * f + 1] = [xl(f // 2 + XP)]
            if 27 <= f < 41 and f % 2 == 1:
                mem[2 * f + 1] = [self.stats_loads(sST, CS)[(f - 27) // 2]]
            if f % 2 == 0:
                tch = vr(RING + 4 * (f % 6)) + ' ' + vr(RING + 4 * ((f + 1) % 6))
                if f < 56 and f % 4 == 0:
                    tch += ' ' + vr(X + 8 * (f // 4), 8)
                pre[2 * f] = [Touch(tch)]
        i = 2 * 41 + 1
        if L0:
            xa = [f'v_add_u32 v{PO}, s{sXD}, v{vTC}', f's_add_u32 s{sT0}, s{sFX}, {LSTRIDE + O_FXA - O_FX1}', f's_add_u32 s{sT1}, s{sXS}, 128']
            for lane, r in ((16, sXS), (17, sT1), (18, sXF), (19, sT0)):
                xa.append(f'v_writelane_b32 v{PO}, s{r}, {lane}')
            mem[i + 2] += xa
            mem[i + 4].append(self.setexec(20) + [f'buffer_load_dword a255, v{PO}, {srd(S_WS)}, 0 offen sc1', 's_mov_b64 exec, -1'])
        for f in (0, 16, 38):
            mem[2 * f + 1] += self.stamp_items(f'g{f}')
        mfs = [mf(f, u) for f in range(98) for u in range(2)]
        side = self.stats_reduce(CS) + [f'v_mov_b32 v{vRSTD}, v{vMEAN}', 's_nop 0', f'v_permlane16_swap_b32 v{vMEAN}, v{vRSTD}']
        p.ext(sched(mfs[:112], pre, mem, side, 2, start=88))
        self.stamp('p4m1')
        self.pad()
        if L0:
            p('s_barrier')
        p.ext(cs_reads([0, 1, 2, 3]))
        self.stamp('p4g1')

        HSC = 'sc1'

        def epi(tiles, tok):
            L = []
            pairs = [tiles[i:i + 2] for i in range(0, len(tiles), 2)]
            n = 0
            for pr in pairs:
                for u in range(2):
                    po = PO + 4 * (n % 2)
                    n += 1
                    for k, t in enumerate(pr):
                        a = ACC + 8 * t + 4 * u
                        for r in (0, 2):
                            L.append(f'v_pk_fma_f32 {vr(a+r,2)}, {vr(CS+4*(t%4)+r,2)}, {vr(vMEAN,2)}, {vr(a+r,2)} op_sel:[0,{u},0] op_sel_hi:[1,{u},1]')
                    for k, t in enumerate(pr):
                        a = ACC + 8 * t + 4 * u
                        for r in range(2):
                            L.append(f'v_cvt_pk_bf16_f32 v{po+2*k+r}, v{a+2*r}, v{a+2*r+1}')
                    for k, t in enumerate(pr):
                        for r in range(2):
                            L.append(f'v_pk_max_i16 v{po+2*k+r}, v{po+2*k+r}, 0')
                    t = pr[0]
                    so, off = (sH, t * 1024) if t < 4 else (sH + 1, (t - 4) * 1024)
                    if len(pr) == 2:
                        L.append(Ins(f'buffer_store_dwordx4 {vr(po)}, v{vHA}, {srd(S_WS)}, s{so} offen offset:{off+u*256} {HSC}', tok))
                    else:
                        L.append(Ins(f'buffer_store_dwordx2 {vr(po,2)}, v{vHB}, {srd(S_WS)}, s{so} offen offset:{off+u*256} {HSC}', tok))
            return L
        p.ext(epi([0, 1, 2, 3], 'h1'))
        self.stamp('p4e1')
        HR, AC5, NR, PD5, TAIL = 32, 160, 16, 5, 14
        order = ORDER

        def ld(i, y):
            sl, sg = order[i] // 7, order[i] % 7
            return (f'buffer_load_dwordx4 {vr(HR+((i%NR)*2+y)*4)}, v{(vL16, vLb)[sg//4]}, {srd(S_WS)}, s{sY[2*sl+y]} '
                    f'offen offset:{(sg%4)*1024} sc1')

        def m5(i, x):
            y, z = x >> 1, x & 1
            return f'{MF32} {vr(AC5+16*x,16)}, {ar(order[i]*8+z*4)}, {vr(HR+((i%NR)*2+y)*4)}, {vr(AC5+16*x,16) if i else 0}'
        pre2 = {i - 112: v for i, v in pre.items() if i >= 112}
        mem2 = {i - 112: v for i, v in mem.items() if i >= 112}
        NW2A = 14 if L0 else 0
        mem2[H1POS] = self.publish_items(['h1'], sHF, 0, self.touch(vTC, sH, 0, 32) if PT else ()) + mem2[H1POS]
        mem2[59] += cs_reads([4, 5])
        mem2[61] += cs_reads([6])
        e2 = epi([4, 5, 6], 'h2')
        if PK1 < 64:
            mem2[PK1] += self.peek_issue(vFLG, f's{sFH}', 8)
            mem2[63] += self.peek_check(vFLG, f's{sFH}', 8)
            for k in range(2 * PD5):
                mem2[65 + 2 * k].append(ld(k // 2, k % 2))
        else:
            mem2[PK1] += self.peek_issue(vFLG, f's{sFH}', 8)
            first_store = next(i for i, x in enumerate(e2) if is_mem(x))
            e2 = e2[:first_store] + self.peek_check(vFLG, f's{sFH}', 8) + [ld(k // 2, k % 2) for k in range(2 * PD5)] + e2[first_store:]
        p.ext(sched(mfs[112:], pre2, mem2, [], 2, start=0))
        self.stamp('p4g2')
        p.ext(e2)
        self.stamp('p4')
        lskip, ljoin = p.newlabel('p5skip'), p.newlabel('p5join')
        self.pad()
        p(f's_cmp_ge_u32 s{sM}, 28')
        p(f's_cbranch_scc1 {lskip}')
        idle = ['s_waitcnt vmcnt(0)'] + self.publish_items([], sHF, 1024, self.touch(vTC, sH + 1, 0, 24) if PT else ())
        if L0:
            idle += [f's_lshl_b32 s{sT0}, s{sCB}, 2', f's_add_u32 s{sT0}, s{sT0}, s{sW}', f's_mul_i32 s{sT1}, s{sT0}, 28672']
            idle += self.prefetch(vTC, sT1, WOT, 28672)
            idle += [f's_mul_i32 s{sT1}, s{sT0}, 100352'] + self.prefetch(vTC, sT1, W1T, IDLE5) + [f's_branch {ljoin}']
        else:
            idle += ['s_branch L_fin']
        self.tail.append((lskip, idle))
        p('s_barrier')
        wqk = []
        mfs, mem = [], {}
        w2b = []
        stl = self.stats_loads(sST5, CS)
        for i in range(28):
            xs = (0, 1, 2, 3) if i < 28 - TAIL else (1, 2, 3)
            for n, x in enumerate(xs):
                k = len(mfs)
                mfs.append(m5(i, x))
                mem[k] = []
                if i == H2POS and n == 3:
                    mem[k] += self.publish_items(['h2'], sHF, 1024, self.touch(vTC, sH + 1, 0, 24) if PT else ())
                if i == PK2 and n == 3:
                    mem[k] += self.peek_issue(vFLG, f's{sFH}', 8, 1024)
                if i == 11 and n == 0:
                    mem[k] += self.stamp_items('pk0') + self.peek_check(vFLG, f's{sFH}', 8, 1024) + self.stamp_items('pk1')
                if i + PD5 < 28 and n < 2:
                    mem[k].append(ld(i + PD5, n))
                elif w2b and n >= 2:
                    mem[k].append(w2b.pop(0))
                elif i + PD5 >= 28 and stl:
                    mem[k].append(stl.pop(0))
                elif i + PD5 >= 28 and wqk:
                    while wqk:
                        x2 = wqk.pop(0)
                        mem[k].append(x2)
                        if is_mem(x2):
                            break
        assert not w2b and not stl and not wqk
        p.ext(sched(mfs, {}, mem, [], 6))
        self.stamp('p5mm')
        mem = {}
        for i, x in enumerate(self.reduce_writes(AC5)):
            mem.setdefault(2 + i, []).append(x)
        p.ext(sched([m5(i, 0) for i in range(28 - TAIL, 28)], {}, mem, self.stats_reduce(CS), 5, start=0))
        self.stamp('p5rw')
        self.reduce_finish(AC5, 32)
        self.stamp('p5rd')
        P = 96
        for i in range(8):
            p(f'v_pk_fma_f32 {vr(AC5+2*i,2)}, {vr(AC5+2*i,2)}, {vr(vMEAN,2)}, {vr(vRES+2*i,2)} op_sel:[0,1,0] op_sel_hi:[1,1,1]')
            p(f'v_cvt_pk_bf16_f32 v{P+i}, v{AC5+2*i}, v{AC5+2*i+1}')
        if L0:
            self.x_store(P, vL16, (0, 1024))
            self.publish(['xst'], sXF)
            self.stamp('p5pub')
            p.ext(self.res_unpack(P))
            p.label(ljoin)
            p(f's_add_u32 s{sLB}, s{sLB}, {LSTRIDE}')
            p('s_barrier')
            return
        p(f'v_and_b32 v{vT+4}, 31, v{vL}')
        p(f'v_mul_u32_u24 v{vT+4}, 896, v{vT+4}')
        p(f'v_lshrrev_b32 v{vT+5}, 5, v{vL}')
        p(f'v_lshl_add_u32 v{vT+4}, v{vT+5}, 4, v{vT+4}')
        for hf in range(2):
            p(f'v_permlane32_swap_b32 v{P+4*hf}, v{P+4*hf+2}')
            p(f'v_permlane32_swap_b32 v{P+4*hf+1}, v{P+4*hf+3}')
            p(f'buffer_store_dwordx4 {vr(P+4*hf)}, v{vT+4}, {srd(S_OUT)}, s{sQOFF} offen offset:{32*hf}')
        p('s_cmp_lg_u32 s2, %d' % (27 * 8 + 7))
        p('s_cbranch_scc1 L_fin')
        p(f's_mov_b32 s{sT0}, {WS_EPOCH}')
        p.ext(self.flag_sc1(sT0))

    def build(self):
        p = self.p
        self.L = 0
        self.prologue()
        for self.L in range(2):
            for ph in ('p1', 'attn', 'p3', 'p45'):
                getattr(self, ph)()
        p.label('L_fin')
        self.stamp('end')
        self.stamp_dump()
        if os.environ.get('CALIB'):
            p.label('L_calib')
            p('s_memrealtime s[96:97]')
            p('s_waitcnt lgkmcnt(0)')
            p('s_sub_u32 s96, s96, s100')
            if os.environ.get('PROBE'):
                p('s_sub_u32 s97, s98, s100')
                p(f's_cmp_ge_u32 s{sM}, 28')
                p('s_cselect_b32 s97, 0, s97')
                p('s_sub_u32 s96, s96, s97')
                p('s_max_i32 s96, s96, 0')
            p(f's_cmp_lt_u32 s96, {int(os.environ["CALIB"])}')
            p('s_cbranch_scc1 L_calib')
        p.label('L_end')
        p('s_endpgm')
        for lab, code in self.tail:
            p.label(lab, reset='all')
            p.ext(code)
        p.label('L_codeend')
        self.emit_walker()
        p.insert_waits()
        probs = p.fix_hazards()
        for x in probs:
            print('branch hazard padded', x, file=sys.stderr)
        mx = p.maxregs()
        head = open(os.path.join(os.path.dirname(__file__), '..', 'cdna_kernels', NAME + '.s.ref')).read().split('\n')
        hdr = [l for l in head if l.startswith(';') and '@launch' not in l]
        out = '\n'.join(hdr) + f'\n; @launch grid=(256,1,1) block=(256,1,1) lds={LDS_BYTES}\n'
        out += '.amdgcn_target "amdgcn-amd-amdhsa--gfx950"\n.text\n'
        out += f'.globl {NAME}_kernel\n.p2align 8\n.type {NAME}_kernel,@function\n{NAME}_kernel:\n'
        out += p.text()
        out += '.fill 64, 4, 0xbf800000\n'
        out += f'''.section .rodata,"a"
.p2align 6
.amdhsa_kernel {NAME}_kernel
  .amdhsa_next_free_vgpr 512
  .amdhsa_next_free_sgpr 102
  .amdhsa_accum_offset 256
  .amdhsa_group_segment_fixed_size 0
  .amdhsa_kernarg_size 72
  .amdhsa_user_sgpr_count 2
  .amdhsa_user_sgpr_kernarg_segment_ptr 1
  .amdhsa_system_sgpr_workgroup_id_x 1
  .amdhsa_float_denorm_mode_32 3
.end_amdhsa_kernel
'''
        print('regs', mx, 'instrs', sum(1 for x in p.items if isinstance(x, Ins)), file=sys.stderr)
        return out


if __name__ == '__main__':
    stop = int(sys.argv[2]) if len(sys.argv) > 2 else None
    k = K(stop if stop and stop > 0 else None, dbg=sys.argv[3].split(',') if len(sys.argv) > 3 else None)
    open(sys.argv[1], 'w').write(k.build())
    if k.dbg:
        open(os.path.join(os.path.dirname(sys.argv[1]), 'stamps.txt'), 'w').write(' '.join(k.stamps))
```

```python
import sys, os, math, struct
sys.path.insert(0, os.path.dirname(__file__))
from asmlib import Prog, Ins, Wait, Mark, Label, Touch

NAME = 'interleave_layers__sliding_block__dense_activation_relu__prompt'

WS_EPOCH = 0
WS_PUR = 0x1000
F_WQ = 0x2000
F_W1 = 0x2800
F_W2 = 0x3000
F_WO = 0x4000
WQT = 0x100000
W1T = 0x250000
WOT = 0x3D8000
W2T = 0x448000
TEAM0 = 0x600000
LSTRIDE = 0x230000
STRIDE = 2 * LSTRIDE
O_KV = 0x000000
O_O = 0x080000
O_X1 = 0x0C0000
O_XA = 0x0F8000
O_ST1 = 0x130000
O_STA = 0x138000
O_FKV = 0x140000
O_FO = 0x144000
O_FX1 = 0x144400
O_FXA = 0x144800
O_FH = 0x145000
O_H = 0x150000
WS_BYTES = TEAM0 + 8 * STRIDE

LW1 = 57344
LKV = LW1 + 55296
L_CSQ = LKV + 49152
L_CS1 = L_CSQ + 512
L_CSP = L_CS1 + 512
LDS_BYTES = 163840

S_X, S_WQ, S_WO, S_W1, S_W2, S_OUT, S_WS = 8, 12, 16, 20, 24, 28, 32
S_WSP = 36
sTEAM, sM, sA, sJ, sW, sRB, sCB, sLB = 40, 41, 42, 43, 44, 45, 46, 47
sF, sPURE, sLAYER, sTP = 48, 50, 51, 52
sQOFF = 53
sIMP = 54
sPERM, sONES = 56, 57
sRHO, sNU = 58, 59
sT0, sT1, sT2, sT3, sT4, sT5 = 60, 61, 62, 63, 64, 65
sCNT = 66
sTB = 71
sJFL = 67
sXD, sXS, sXF = 68, 69, 70
sPOLL = 72
sRQ, sLQ = 76, 77
sO = 80

vL, vL16, vA1, vL8 = 0, 1, 2, 3
vSTA = 4
vFLG = 5
vRW = 6
vX1A = 10
vCSA = 11
vF = 12
vMEAN, vRSTD = 14, 15
vT = 16
vRES = 240

POLL_MAX = 1 << 16
ROT = {'rb': f's{sRB}', 'team': f's{sTEAM}', '': '0'}[os.environ.get('ROT', '')]
ROT1 = {'a': f's{sA}', 'team': f's{sTEAM}', '': '0'}[os.environ.get('ROT1', '')]
PT = bool(os.environ.get('PT'))
H1POS = int(os.environ.get('H1POS', 19))
H2POS = int(os.environ.get('H2POS', 3))
PK1 = int(os.environ.get('PK1', 57))
IDLE5 = int(os.environ.get('IDLE5', 40960))
QCUT = int(os.environ.get('QCUT', 10))
KE = int(os.environ.get('KE', 3))
NG1 = int(os.environ.get('NG1', 0))
EK = bool(os.environ.get('EK'))
DP = not os.environ.get('NODP')
NW1 = int(os.environ.get('NW1', 20))
PK2 = int(os.environ.get('PK2', 8))
ORDER = [7 * sl + sg for sl in range(4) for sg in range(4)] + [7 * sl + sg for sl in range(4) for sg in range(4, 7)]
MF32 = 'v_mfma_f32_32x32x16_bf16'
MF16 = 'v_mfma_f32_16x16x32_bf16'


def srd(b):
    return f's[{b}:{b+3}]'


def vr(b, n=4):
    return f'v[{b}:{b+n-1}]' if n > 1 else f'v{b}'


def ar(b, n=4):
    return f'a[{b}:{b+n-1}]'


def f32bits(x):
    return struct.unpack('<I', struct.pack('<f', x))[0]


def is_mem(x):
    if isinstance(x, (list, tuple)):
        return any(is_mem(y) for y in x)
    if isinstance(x, (Wait, Touch, Label, Mark)):
        return False
    t = x.text if isinstance(x, Ins) else x if isinstance(x, str) else ''
    return t.startswith('ds_') or t.startswith('buffer_') or t.startswith('global_')


def cost(x):
    if isinstance(x, (list, tuple)):
        return sum(cost(y) for y in x)
    if isinstance(x, (Wait, Touch)):
        return 1
    if isinstance(x, (Label, Mark)):
        return 0
    t = x.text if isinstance(x, Ins) else x
    return 2 if t.startswith('v_exp') or t.startswith('v_rsq') or t.startswith('v_rcp') or t.startswith('v_permlane') else 1


def sched(mfs, pre, mem, side, cap, start=0):
    out = []
    side = list(side)
    for i, m in enumerate(mfs):
        out += pre.get(i, [])
        out.append(m)
        n = 0
        for x in mem.get(i, []):
            out.append(x)
            n += cost(x)
        if pre.get(i + 1):
            n += 1
        valu = False
        if i >= start:
            while side and n + cost(side[0]) <= cap:
                if is_mem(side[0]) and valu:
                    break
                x = side.pop(0)
                if not is_mem(x) and not isinstance(x, (Wait, Touch)):
                    t = x[0] if isinstance(x, (list, tuple)) else x
                    if any((y.text if isinstance(y, Ins) else y).startswith('v_') for y in (x if isinstance(x, (list, tuple)) else [x]) if isinstance(y, (Ins, str))):
                        valu = True
                out.append(x)
                n += cost(x)
            if side and n == 0 and cost(side[0]) > cap:
                out.append(side.pop(0))
    return out + side


class K:
    def __init__(self, stop=None, dbg=False):
        self.p = Prog()
        self.stop = stop
        self.dbg = dbg
        self.stamps = []
        self.tail = []
        self.pads = []
        self.vP2 = 236

    def stamp(self, name):
        if os.environ.get('PROBE') == f'{name}{self.L}':
            self.p('s_memrealtime s[98:99]')
            self.p('s_waitcnt lgkmcnt(0)')
        if not self.dbg or (name not in self.dbg and name not in ('start', 'end')):
            return
        k = len(self.stamps)
        assert k < 32
        self.stamps.append(name)
        p = self.p
        p('s_memrealtime s[96:97]' if 'RT' in self.dbg else 's_memtime s[96:97]')
        if k == 0:
            p('v_readfirstlane_b32 s100, v0')
            p('s_lshr_b32 s100, s100, 6')
            p('s_lshl_b32 s101, s2, 2')
            p('s_add_u32 s100, s100, s101')
            p('s_lshl_b32 s100, s100, 7')
            p('s_add_u32 s100, s100, 0x40000')
        p('s_waitcnt lgkmcnt(0)')
        if k == 0:
            p('v_accvgpr_write_b32 a253, s96')
            return
        p('v_accvgpr_write_b32 a252, s96')
        p('s_mov_b64 exec, 1')
        p(f'buffer_store_dword a252, off, {srd(S_WS)}, s100 offset:{4*k}')
        p('s_mov_b64 exec, -1')

    def stamp_items(self, name):
        n = len(self.p.items)
        self.stamp(name)
        L = self.p.items[n:]
        del self.p.items[n:]
        return [L] if L else []

    def stamp_dump(self):
        if self.dbg:
            self.p(f'buffer_store_dword a253, off, {srd(S_WS)}, s100')

    def dma(self, srdb, voff, sreg, simm, m0, tok, sc='', n=1):
        mr, mi = m0
        L = [f's_add_u32 m0, s{mr}, {mi}' if mr is not None else f's_mov_b32 m0, {mi}',
             f's_add_u32 s{sT5}, s{sreg}, {simm}']
        for k in range(n):
            L.append(Ins(f'buffer_load_dwordx4 v{voff}, {srd(srdb)}, s{sT5} offen offset:{1024*k} {sc} lds', tok))
        return L

    @staticmethod
    def setexec(nl):
        if nl <= 32:
            return [f's_mov_b64 exec, {(1 << nl) - 1:#x}'] if nl < 32 else ['s_mov_b32 exec_hi, 0']
        return [f's_mov_b32 exec_hi, {(1 << (nl - 32)) - 1:#x}']

    def poll_loop(self, voff, soff, nl, imm=0):
        p = self.p
        lp, lo = p.newlabel('poll'), p.newlabel('pollout')
        return self.setexec(nl) + [f's_mov_b32 s{sCNT}, 0', Label(lp),
                f'buffer_load_dwordx2 {vr(vT + 14, 2)}, v{voff}, {srd(S_WS)}, {soff} offen offset:{imm} sc1',
                f's_add_u32 s{sCNT}, s{sCNT}, 1', f's_cmp_gt_u32 s{sCNT}, {POLL_MAX}', f's_cbranch_scc1 {lo}',
                's_waitcnt vmcnt(0)', f'v_cmp_ne_u64 vcc, s[{sF}:{sF+1}], {vr(vT + 14, 2)}', f's_cbranch_vccnz {lp}',
                Label(lo), 's_mov_b64 exec, -1']

    def poll_first(self, voff, soff, nl):
        self.p.ext(self.peek_issue(voff, soff, nl))

    def vpoll(self, voff, soff, nl, acquire=True):
        p = self.p
        lp, lo = p.newlabel('poll'), p.newlabel('pollout')
        ra, rb = vr(vT + 14, 2), vr(self.vP2, 2)
        ldf = lambda r: f'buffer_load_dwordx2 {r}, v{voff}, {srd(S_WS)}, {soff} offen sc1'
        p.ext(self.setexec(nl) + [f's_mov_b32 s{sCNT}, 0', Label(lp), ldf(rb),
               f's_add_u32 s{sCNT}, s{sCNT}, 1', f's_cmp_gt_u32 s{sCNT}, {POLL_MAX}', f's_cbranch_scc1 {lo}',
               f'v_cmp_ne_u64 vcc, s[{sF}:{sF+1}], {ra}', f's_cbranch_vccz {lo}', ldf(ra),
               f'v_cmp_ne_u64 vcc, s[{sF}:{sF+1}], {rb}', f's_cbranch_vccnz {lp}', Label(lo), 's_mov_b64 exec, -1'])
        if acquire:
            lslow, lback = p.newlabel('acq'), p.newlabel('acqback')
            p(f's_cmp_lg_u32 s{sPURE}, 0')
            p(f's_cbranch_scc0 {lslow}')
            p.label(lback)
            self.tail.append((lslow, ['buffer_inv sc1', 's_waitcnt vmcnt(0)', f's_branch {lback}']))
        p.mark('drained_vm')

    def peek_issue(self, voff, soff, nl, imm=0):
        return [self.setexec(nl) + [f'buffer_load_dwordx2 {vr(vT + 14, 2)}, v{voff}, {srd(S_WS)}, {soff} offen offset:{imm} sc1',
                                    's_mov_b64 exec, -1']]

    def peek_check(self, voff, soff, nl, imm=0, acquire=True):
        p = self.p
        lslow, lback, lacq = p.newlabel('peek'), p.newlabel('peekback'), p.newlabel('peekacq')
        self.tail.append((lslow, self.poll_loop(voff, soff, nl, imm) +
                          [f's_cmp_lg_u32 s{sPURE}, 0', f's_cbranch_scc1 {lback}', 'buffer_inv sc1', 's_waitcnt vmcnt(0)',
                           f's_branch {lback}']))
        return [[Touch(vr(vT + 14, 2))] + self.setexec(nl) +
                [f'v_cmp_ne_u64 vcc, s[{sF}:{sF+1}], {vr(vT + 14, 2)}', 's_mov_b64 exec, -1',
                 f's_or_b64 vcc, vcc, s[{sIMP}:{sIMP+1}]' if acquire else 's_or_b64 vcc, vcc, vcc', f's_cbranch_scc1 {lslow}', Label(lback)]]

    def publish_items(self, toks, soff, imm=0, post=()):
        p = self.p
        lslow, lback = p.newlabel('pubslow'), p.newlabel('pubback')
        self.tail.append((lslow, [
            'buffer_wbl2 sc1', 's_waitcnt vmcnt(0)',
            f'buffer_store_dwordx2 {vr(vF, 2)}, off, {srd(S_WS)}, s{soff} offset:{imm} sc1',
            f's_branch {lback}']))
        return [[Wait(toks), 's_mov_b64 exec, 1', f's_cmp_lg_u32 s{sPURE}, 0', f's_cbranch_scc0 {lslow}',
                 f'buffer_store_dwordx2 {vr(vF, 2)}, off, {srd(S_WS)}, s{soff} offset:{imm}', Label(lback), 's_mov_b64 exec, -1']] + list(post)

    def publish(self, toks, soff, imm=0):
        self.p.ext(self.publish_items(toks, soff, imm))

    def flag_sc1(self, soff):
        return ['s_mov_b64 exec, 1', f'buffer_store_dwordx2 {vr(vF,2)}, off, {srd(S_WS)}, s{soff} sc1', 's_mov_b64 exec, -1']

    def flag_opt(self, soff):
        p = self.p
        l = p.newlabel('noflag')
        p(f's_cmp_eq_u32 s{soff}, -1')
        p(f's_cbranch_scc1 {l}')
        p.mark('maybe_begin')
        p.ext(self.flag_sc1(soff))
        p.mark('maybe_end')
        p.label(l)

    def stats_loads(self, soff, dst):
        return [f'buffer_load_dwordx2 {vr(dst + 2*i, 2)}, v{vSTA}, {srd(S_WS)}, s{soff} offen offset:{256*i} sc1' for i in range(7)]

    def stats_reduce(self, src):
        L = []
        for i in range(1, 7):
            L.append(f'v_add_f32 v{src}, v{src}, v{src+2*i}')
            L.append(f'v_add_f32 v{src+1}, v{src+1}, v{src+2*i+1}')
        s, q, t0, t1 = src, src + 1, src + 2, src + 3
        return L + [
            f'v_mov_b32 v{t0}, v{s}', f'v_mov_b32 v{t1}, v{q}', 's_nop 0',
            f'v_permlane32_swap_b32 v{s}, v{t0}', f'v_permlane32_swap_b32 v{q}, v{t1}',
            f'v_add_f32 v{s}, v{s}, v{t0}', f'v_add_f32 v{q}, v{q}, v{t1}',
            f'v_mul_f32 v{vMEAN}, {f32bits(-1.0/448):#x}, v{s}',
            f'v_mul_f32 v{q}, {f32bits(1.0/448):#x}, v{q}',
            f'v_fma_f32 v{q}, -v{vMEAN}, v{vMEAN}, v{q}',
            f'v_max_f32 v{q}, 0, v{q}',
            f'v_add_f32 v{q}, {f32bits(1e-5):#x}, v{q}',
            f'v_rsq_f32 v{vRSTD}, v{q}',
        ]

    def off(self, dst, idx_reg, mul, add):
        return [f's_mul_i32 s{dst}, s{idx_reg}, {mul}', f's_add_u32 s{dst}, s{dst}, s{sLB}', f's_add_u32 s{dst}, s{dst}, {add}']

    def xoff(self, dst, idx_reg, mul, add):
        return [f's_add_u32 s{sT3}, s{sLB}, {add}', f's_add_u32 s{sT4}, s{sTB}, {O_XA}', f's_cmp_lg_u32 s{sPURE}, 0',
                f's_cselect_b32 s{sT3}, s{sT4}, s{sT3}', f's_mul_i32 s{dst}, s{idx_reg}, {mul}', f's_add_u32 s{dst}, s{dst}, s{sT3}']

    def roff(self, dst, idx_reg, mul, add):
        return [f's_cmp_lg_u32 s{sPURE}, 0', f's_cselect_b32 s{sT3}, s{sTB}, s{sLB}',
                f's_mul_i32 s{dst}, s{idx_reg}, {mul}', f's_add_u32 s{dst}, s{dst}, s{sT3}', f's_add_u32 s{dst}, s{dst}, {add}']

    def pub_offsets(self, xoff, stoff, foff):
        return [f's_lshl_b32 s{sT0}, s{sRB}, 1', f's_add_u32 s{sT0}, s{sT0}, s{sRHO}',
                f's_lshl_b32 s{sT1}, s{sCB}, 1', f's_add_u32 s{sT1}, s{sT1}, s{sNU}',
                f's_mul_i32 s{sT2}, s{sT0}, 14', f's_add_u32 s{sT2}, s{sT2}, s{sT1}'] + \
            self.xoff(sXD, sT2, 2048, xoff) + self.off(sXS, sT2, 256, stoff) + \
            [f's_lshl_b32 s{sT0}, s{sT0}, 4', f's_add_u32 s{sT0}, s{sT0}, s{sT1}'] + self.off(sXF, sT0, 8, foff) + \
            [f's_cmp_ge_u32 s{sM}, 28'] + [f's_cselect_b32 s{r}, {WS_PUR}, s{r}' for r in (sXD, sXS, sXF)]

    def x_store(self, P, va, offs, sc=''):
        p = self.p
        S, Q2, t0, t1 = vT + 6, vT + 7, vT + 8, vT + 9
        for k in range(2):
            p(f'buffer_store_dwordx4 {vr(P+4*k)}, v{va}, {srd(S_WS)}, s{sXD} offen offset:{offs[k]} {sc}', tok='xst')
        p(f'v_mov_b32 v{t0}, s{sONES}')
        p(f'v_dot2_f32_bf16 v{S}, v{P}, v{t0}, 0')
        p(f'v_dot2_f32_bf16 v{Q2}, v{P}, v{P}, 0')
        for i in range(1, 8):
            p(f'v_dot2_f32_bf16 v{S}, v{P+i}, v{t0}, v{S}')
            p(f'v_dot2_f32_bf16 v{Q2}, v{P+i}, v{P+i}, v{Q2}')
        p(f'v_mov_b32 v{t0}, v{S}')
        p(f'v_mov_b32 v{t1}, v{Q2}')
        p(f'v_permlane32_swap_b32 v{S}, v{t0}')
        p(f'v_permlane32_swap_b32 v{Q2}, v{t1}')
        p(f'v_add_f32 v{S}, v{S}, v{t0}')
        p(f'v_add_f32 v{Q2}, v{Q2}, v{t1}')
        p('s_mov_b32 exec_hi, 0')
        p(f'buffer_store_dwordx2 {vr(S,2)}, v{vL8}, {srd(S_WS)}, s{sXS} offen {sc}', tok='xst')
        p('s_mov_b64 exec, -1')

    def res_unpack(self, P):
        L = []
        for q in range(8):
            L.append(f'v_lshlrev_b32 v{vRES+2*q}, 16, v{P+q}')
            L.append(f'v_and_b32 v{vRES+2*q+1}, 0xffff0000, v{P+q}')
        return L

    def prefetch(self, v128, sreg, base, nbytes):
        L = []
        o = 0
        while o < nbytes:
            oo = min(o, nbytes - 8192)
            L += [f's_add_u32 s{sT5}, s{sreg}, {base + oo}', f'buffer_load_dword a255, v{v128}, {srd(S_WS)}, s{sT5} offen sc1']
            o += 8192
        return L

    def touch(self, v128, sreg, imm, nlines):
        L = [f's_add_u32 s{sT5}, s{sreg}, {imm}']
        if nlines < 64:
            L += self.setexec(nlines)
        L.append(f'buffer_load_dword a255, v{v128}, {srd(S_WS)}, s{sT5} offen sc1')
        if nlines < 64:
            L.append('s_mov_b64 exec, -1')
        return [L]

    def w1_dma(self, part):
        sg, sl = sPOLL, sPOLL + 1
        per, base = ((13, 0), (11, 55296))[part]
        L = [f's_mul_i32 s{sg}, s{sJ}, 100352', f's_mul_i32 s{sl}, s{sW}, {per*1024}', f's_add_u32 s{sg}, s{sg}, s{sl}']
        for o in range(0, per, 4):
            d = self.dma(S_WS, vL16, sg, W1T + base + o * 1024, (sl, LW1 + base + o * 1024), 'w1', 'sc1', min(4, per - o))
            L += [d[:3]] + d[3:]
        if part == 0:
            L += [f's_sub_u32 s{sg}, s{sg}, s{sl}', f's_lshl_b32 s{sl}, s{sNU}, 10', f's_add_u32 s{sg}, s{sg}, s{sl}']
            L.append(self.dma(S_WS, vL16, sg, W1T + 52 * 1024, (sl, LW1 + 52 * 1024), 'w1', 'sc1', 1))
        return L

    def w2_setup(self, sbase, vz):
        return [f's_lshl_b32 s{sbase}, s{sCB}, 2', f's_add_u32 s{sbase}, s{sbase}, s{sW}', f's_mul_i32 s{sbase}, s{sbase}, 57344',
                f's_lshl_b32 s{sT1}, s{sNU}, 10', f'v_xor_b32 v{vz[0]}, s{sT1}, v{vL16}', f'v_xor_b32 v{vz[1]}, 1024, v{vz[0]}']

    def w2_loads(self, sbase, vz):
        L = []
        for sl in range(4):
            pre = [f's_add_u32 s{sT3}, {ROT}, {sl}', f's_and_b32 s{sT3}, s{sT3}, 3', f's_mul_i32 s{sT3}, s{sT3}, 14336',
                   f's_add_u32 s{sT3}, s{sT3}, s{sbase}']
            for sg in range(7):
                ks = 7 * sl + sg
                g = pre + [f's_add_u32 s{sT4}, s{sT3}, {W2T + sg*2048}',
                           f'buffer_load_dwordx4 {ar(ks*8)}, v{vz[0]}, {srd(S_WS)}, s{sT4} offen sc1']
                pre = []
                L += [g, f'buffer_load_dwordx4 {ar(ks*8+4)}, v{vz[1]}, {srd(S_WS)}, s{sT4} offen sc1']
        return L

    def lane_consts(self):
        p = self.p
        t0, t1 = vT + 6, vT + 7
        p(f'v_add_u32 v{vA1}, 57344, v{vL16}')
        p(f'v_and_b32 v{vSTA}, 31, v{vL}')
        p(f'v_lshlrev_b32 v{vSTA}, 3, v{vSTA}')
        p(f'v_lshrrev_b32 v{t0}, 5, v{vL}')
        p(f'v_mul_u32_u24 v{t1}, {7*256}, v{t0}')
        p(f'v_add_u32 v{vSTA}, v{vSTA}, v{t1}')
        p(f'v_lshrrev_b32 v{vFLG}, 2, v{vL}')
        p(f'v_lshlrev_b32 v{vFLG}, 7, v{vFLG}')
        p(f'v_and_b32 v{t1}, 3, v{vL}')
        p(f'v_lshl_add_u32 v{vFLG}, v{t1}, 3, v{vFLG}')
        for x in range(1, 4):
            p(f's_xor_b32 s{sT0}, s{sW}, {x}')
            p(f's_mul_i32 s{sT0}, s{sT0}, 12288')
            p(f's_add_u32 s{sT0}, s{sT0}, {LKV + (x-1)*4096}')
            p(f'v_add_u32 v{vRW+x-1}, s{sT0}, v{vL16}')
        p(f's_mul_i32 s{sT0}, s{sW}, 12288')
        p(f's_add_u32 s{sT0}, s{sT0}, {LKV}')
        p(f'v_add_u32 v{vRW+3}, s{sT0}, v{vL16}')
        p(f'v_bfe_u32 v{vX1A}, v{vL}, 4, 1')
        p(f'v_lshlrev_b32 v{vX1A}, 10, v{vX1A}')
        p(f'v_lshl_add_u32 v{vX1A}, v{t0}, 8, v{vX1A}')
        p(f'v_and_b32 v{t1}, 15, v{vL}')
        p(f'v_lshl_add_u32 v{vX1A}, v{t1}, 4, v{vX1A}')

    def pad(self):
        p = self.p
        k = len(self.pads)
        self.pads.append(f'L_pad{k}')
        p(f's_branch L_padskip{k}')
        p.label(f'L_pad{k}')
        p('s_setpc_b64 s[98:99]')
        p.label(f'L_padskip{k}')

    def emit_walker(self):
        L = []
        labs = [f'L_walk{w}' for w in range(4)]
        for w in range(1, 4):
            L += [Ins(f's_cmp_eq_u32 s{sW}, {w}'), Ins(f's_cbranch_scc1 {labs[w]}')]
        for w in range(4):
            if w:
                L.append(Label(labs[w]))
            for x in self.pads[w::4]:
                L.append(Ins(f's_call_b64 s[98:99], {x}'))
            if w < 3:
                L.append(Ins('s_branch L_walkend'))
        L.append(Label('L_walkend'))
        self.p.items[self.walker_at:self.walker_at] = L

    def rawq(self, tau, i):
        return (self.dma(S_WQ, self.vDQ, sRQ, (448, 896, 0)[tau] * 2 + i * 16 * 2688, (sLQ, tau * 28672 + i * 1024), f'rq{tau}{i}'))

    def xform(self, tau, R, vcs, vones, between=None):
        p = self.p

        def fin(i):
            p(f'ds_write_b128 v{self.vWQ}, {vr(R+4*i)} offset:{tau*28672+i*1024}')
            for q in range(4):
                p(f'v_dot2_f32_bf16 v{vcs}, v{R+4*i+q}, v{vones}, {f"v{vcs}" if i or q else 0}')
        for i in range(7):
            p.wait(f'rq{tau}{i}')
            for jj in range(2):
                p(f'ds_read_b64_tr_b16 {vr(R+4*i+2*jj,2)}, v{self.vTQ} offset:{tau*28672+i*1024+jj*512}')
            if between:
                between(i)
            if i >= 1:
                fin(i - 1)
        fin(6)

    def cs_partial(self, taus, vcs, t2, t3):
        p = self.p
        for k, tau in enumerate(taus):
            p(f'v_mov_b32 v{t2}, v{vcs+k}')
            p(f'v_permlane32_swap_b32 v{vcs+k}, v{t2}')
            p(f'v_add_f32 v{vcs+k}, v{vcs+k}, v{t2}')
        p(f'v_and_b32 v{t2}, 31, v{vL}')
        p(f'v_lshlrev_b32 v{t2}, 2, v{t2}')
        p(f's_lshl_b32 s{sT0}, s{sW}, 8')
        p(f's_add_u32 s{sT0}, s{sT0}, {L_CSP}')
        p(f'v_add_u32 v{t3}, s{sT0}, v{t2}')
        for k, tau in enumerate(taus):
            p(f'ds_write_b32 v{t3}, v{vcs+k} offset:{k*128}')

    def cs_sum(self, taus, R, t2, t3):
        p = self.p
        p(f'v_add_u32 v{t3}, {L_CSP}, v{t2}')
        for k, tau in enumerate(taus):
            for w in range(4):
                p(f'ds_read_b32 v{R+4*k+w}, v{t3} offset:{w*256+k*128}')
        p(f'v_add_u32 v{t3}, {L_CSQ}, v{t2}')
        for k, tau in enumerate(taus):
            r = R + 4 * k
            p(f'v_add_f32 v{r}, v{r}, v{r+1}')
            p(f'v_add_f32 v{r+2}, v{r+2}, v{r+3}')
            p(f'v_add_f32 v{r}, v{r}, v{r+2}')
            p(f'ds_write_b32 v{t3}, v{r} offset:{tau*128}')
        p('s_waitcnt lgkmcnt(0)')

    def prologue(self):
        p = self.p
        t0, t1, t2, t3 = vT, vT + 1, vT + 2, vT + 3
        self.vDQ, self.vTQ, self.vWQ = vDQ, vTQ, vWQ = vT + 10, vT + 11, vT + 12
        p('s_cmp_ge_u32 s2, 256')
        p('s_cbranch_scc1 L_end')
        p(f's_load_dwordx16 s[{sO}:{sO+15}], s[0:1], 0')
        p(f's_load_dwordx2 s[{S_WSP}:{S_WSP+1}], s[0:1], 64')
        p(f's_getpc_b64 s[{sT0}:{sT0+1}]')
        p.label('L_pc')
        p(f'v_lshlrev_b32 v{t2}, 7, v0')
        p(f'global_load_dword a255, v{t2}, s[{sT0}:{sT0+1}]')
        p(f'v_add_u32 v{t2}, 0x8000, v{t2}')
        p(f'v_min_u32 v{t2}, L_codeend-L_pc, v{t2}')
        p(f'global_load_dword a255, v{t2}, s[{sT0}:{sT0+1}]')
        if os.environ.get('CALIB'):
            p('s_memrealtime s[100:101]')
        self.stamp('start')
        p(f'v_lshrrev_b32 v{vT}, 6, v0')
        p(f'v_and_b32 v{vL}, 63, v0')
        p(f'v_readfirstlane_b32 s{sW}, v{vT}')
        p(f's_lshr_b32 s{sM}, s2, 3')
        p(f's_and_b32 s{sTEAM}, s2, 7')
        p(f's_mul_i32 s{sRB}, s{sM}, 37')
        p(f's_lshr_b32 s{sRB}, s{sRB}, 8')
        p(f's_mul_i32 s{sT0}, s{sRB}, 7')
        p(f's_sub_u32 s{sCB}, s{sM}, s{sT0}')
        p(f's_lshr_b32 s{sRHO}, s{sW}, 1')
        p(f's_and_b32 s{sNU}, s{sW}, 1')
        p(f's_lshl_b32 s{sT0}, s{sTEAM}, 2')
        p(f's_add_u32 s{sT0}, s{sT0}, s{sRB}')
        p(f's_lshl_b32 s{sT1}, s{sT0}, 1')
        p(f's_add_u32 s{sT1}, s{sT1}, s{sRHO}')
        p(f's_mul_i32 s{sQOFF}, s{sT1}, {32*896}')
        p(f's_lshl_b32 s{sT1}, s{sCB}, 7')
        p(f's_add_u32 s{sQOFF}, s{sQOFF}, s{sT1}')
        p(f's_lshl_b32 s{sT1}, s{sNU}, 6')
        p(f's_add_u32 s{sQOFF}, s{sQOFF}, s{sT1}')
        vPK, vPQ, vH = vT + 14, vT + 15, vT + 13
        p(f'v_and_b32 v{t3}, 31, v{vL}')
        p(f'v_mul_u32_u24 v{t3}, 896, v{t3}')
        p(f'v_lshrrev_b32 v{vH}, 5, v{vL}')
        p(f'v_lshl_add_u32 v{t3}, v{vH}, 4, v{t3}')
        p(f's_lshl_b32 s{sT2}, s{sM}, 2')
        p(f's_add_u32 s{sT2}, s{sT2}, s{sW}')
        p(f's_mul_i32 s{sT3}, s{sT2}, 49')
        p(f'v_add_u32 v{t2}, s{sT3}, v{vL}')
        p(f'v_mul_u32_u24 v{vPK}, 74899, v{t2}')
        p(f'v_lshrrev_b32 v{vPK}, 20, v{vPK}')
        p(f'v_mul_u32_u24 v{vPK}, 7, v{vPK}')
        p(f'v_add_u32 v{vPK}, v{vPK}, v{t2}')
        p(f'v_lshlrev_b32 v{vPK}, 7, v{vPK}')
        b = sO

        def mksrd(d, src, n):
            p(f's_mov_b32 s{d}, s{src}')
            p(f's_and_b32 s{d+1}, s{src+1}, 0xffff')
            p(f's_mov_b32 s{d+2}, {n}')
            p(f's_mov_b32 s{d+3}, 0x20000')
        mksrd(S_X, b, 1835008)
        mksrd(S_WQ, b + 2, 1204224)
        XR = 96
        for q in range(2):
            p(f'buffer_load_dwordx4 {vr(XR+4*q)}, v{t3}, {srd(S_X)}, s{sQOFF} offen offset:{32*q}')
        p('s_mov_b32 exec_hi, 0x1ffff')
        p(f'buffer_load_dword a255, v{vPK}, {srd(S_WQ)}, 0 offen offset:896')
        p('s_mov_b64 exec, -1')
        p(f's_load_dwordx2 s[{sF}:{sF+1}], s[{S_WSP}:{S_WSP+1}], {WS_EPOCH}')
        for (d, src, n) in ((S_WO, b + 4, 401408), (S_W1, b + 8, 1605632),
                            (S_W2, b + 10, 1605632), (S_OUT, b + 12, 1835008), (S_WS, S_WSP, WS_BYTES)):
            mksrd(d, src, n)
        p(f's_mul_i32 s{sT3}, s{sT2}, 25')
        p(f'v_add_u32 v{t2}, s{sT3}, v{vL}')
        p(f'v_mul_u32_u24 v{vPQ}, 149797, v{t2}')
        p(f'v_lshrrev_b32 v{vPQ}, 20, v{vPQ}')
        p(f'v_mul_u32_u24 v{vPQ}, 14, v{vPQ}')
        p(f'v_add_u32 v{vPQ}, v{vPQ}, v{t2}')
        p(f'v_lshlrev_b32 v{vPQ}, 7, v{vPQ}')
        p(f's_and_b32 s{sJ}, s{sM}, 15')
        p(f's_lshr_b32 s{sA}, s{sM}, 4')
        p(f'v_lshrrev_b32 v{t0}, 2, v{vL}')
        p(f'v_and_b32 v{t1}, 3, v{vL}')
        p(f'v_lshlrev_b32 v{t3}, 3, v{t1}')
        p(f'v_lshlrev_b32 v{t1}, 4, v{t1}')
        p(f'v_mul_u32_u24 v{vDQ}, 2688, v{t0}')
        p(f'v_add_u32 v{vDQ}, v{vDQ}, v{t1}')
        p(f's_mul_i32 s{sRQ}, s{sW}, {7*16*2688}')
        p(f's_mul_i32 s{sT1}, s{sJ}, 56')
        p(f's_add_u32 s{sRQ}, s{sRQ}, s{sT1}')
        p(f's_mul_i32 s{sLQ}, s{sW}, 7168')
        for i in range(KE):
            p.ext(self.rawq(0, i))
        self.stamp('ka')
        sI, sSTG = sO, sO + 1
        sFL, sDST, sJOB, sDST2 = sJFL, sO + 3, sO + 4, sO + 5

        p(f's_mul_i32 s{sLB}, s{sTEAM}, {STRIDE}')
        p(f's_add_u32 s{sLB}, s{sLB}, {TEAM0}')
        p(f's_mov_b32 s{sTB}, s{sLB}')
        p(f'v_lshlrev_b32 v{vL16}, 4, v{vL}')
        p(f'v_lshlrev_b32 v{vL8}, 3, v{vL}')
        p(f's_mov_b32 s{sONES}, 0x3f803f80')
        p(f's_mov_b32 s{sPURE}, 1')
        p(f's_mov_b64 s[{sIMP}:{sIMP+1}], 0')
        p.ext(self.pub_offsets(O_XA, O_STA, O_FXA))
        vD, vTR, vTR8 = vT + 4, vT + 5, vT + 13
        FR = 32
        p(f's_lshl_b32 s{sI}, s{sTEAM}, 1')
        p(f's_add_u32 s{sI}, s{sI}, s{sA}')
        p(f's_lshl_b32 s{sSTG}, s{sW}, 13')
        p(f's_add_u32 s{sSTG}, s{sSTG}, {LKV}')
        lA = [p.newlabel('jobA') for _ in range(4)]
        p(f's_mov_b32 s{sJOB}, 0')
        p.mark('maybe_begin')
        p(f's_cmp_ge_u32 s{sW}, 2')
        p(f's_cbranch_scc1 {lA[0]}')
        p(f's_cmp_eq_u32 s{sW}, 0')
        p(f's_cbranch_scc1 {lA[2]}')
        p(f's_cmp_ge_u32 s{sI}, 14')
        p(f's_cbranch_scc1 {lA[2]}')
        p(f'v_bfe_u32 v{vD}, v{vL}, 1, 3')
        p(f'v_bfe_u32 v{t2}, v{vL}, 4, 1')
        p(f'v_lshl_add_u32 v{vD}, v{t2}, 4, v{vD}')
        p(f'v_bfe_u32 v{t2}, v{vL}, 5, 1')
        p(f'v_lshl_add_u32 v{vD}, v{t2}, 3, v{vD}')
        p(f'v_mul_u32_u24 v{vD}, 3584, v{vD}')
        p(f'v_and_b32 v{t2}, 1, v{vL}')
        p(f'v_lshl_add_u32 v{vD}, v{t2}, 4, v{vD}')
        p(f's_mul_i32 s{sT0}, s{sI}, {32*3584}')
        p(f's_mul_i32 s{sT1}, s{sJ}, 224')
        p(f's_add_u32 s{sT0}, s{sT0}, s{sT1}')
        for t in range(7):
            p.ext(self.dma(S_W1, vD, sT0, t * 32, (sSTG, t * 1024), 'raw'))
        p(f's_mov_b32 s{sJOB}, 2')
        p(f's_waitcnt vmcnt({8 + KE})')
        p(f's_branch {lA[3]}')
        p.label(lA[0])
        p(f'v_mul_u32_u24 v{vD}, 896, v{t0}')
        p(f'v_add_u32 v{vD}, v{vD}, v{t1}')
        p(f's_cmp_ge_u32 s{sM}, 28')
        p(f's_cbranch_scc1 {lA[1]}')
        sI2, sSL, sHF = sT2, sT3, sT4
        p(f's_lshl_b32 s{sI2}, s{sTEAM}, 2')
        p(f's_add_u32 s{sI2}, s{sI2}, s{sRB}')
        p(f's_lshr_b32 s{sSL}, s{sI2}, 1')
        p(f's_and_b32 s{sHF}, s{sI2}, 1')
        p(f's_mul_i32 s{sT0}, s{sSL}, {112*896}')
        p(f's_mul_i32 s{sT1}, s{sHF}, {64*896}')
        p(f's_add_u32 s{sT0}, s{sT0}, s{sT1}')
        p(f's_lshl_b32 s{sT1}, s{sCB}, 7')
        p(f's_add_u32 s{sT0}, s{sT0}, s{sT1}')
        p(f's_lshl_b32 s{sT1}, s{sNU}, 6')
        p(f's_add_u32 s{sT0}, s{sT0}, s{sT1}')
        for k in range(4):
            p.ext(self.dma(S_W2, vD, sT0, k * 16 * 896, (sSTG, k * 1024), 'raw'))
        p(f's_add_u32 s{sJOB}, s{sHF}, 3')
        p(f's_waitcnt vmcnt({5 + KE})')
        p(f's_branch {lA[3]}')
        p.label(lA[1])
        p(f's_cmp_eq_u32 s{sTEAM}, 7')
        p(f's_cbranch_scc1 {lA[2]}')
        p(f's_mul_i32 s{sT0}, s{sCB}, {112*896}')
        p(f's_lshl_b32 s{sT1}, s{sTEAM}, 7')
        p(f's_add_u32 s{sT0}, s{sT0}, s{sT1}')
        p(f's_lshl_b32 s{sT1}, s{sNU}, 6')
        p(f's_add_u32 s{sT0}, s{sT0}, s{sT1}')
        for k in range(8):
            p.ext(self.dma(S_WO, vD, sT0, k * 16 * 896, (sSTG, k * 1024), 'raw'))
        p(f's_mov_b32 s{sJOB}, 5')
        p.label(lA[2])
        p(f's_waitcnt vmcnt({1 + KE})')
        p.mark('maybe_end')
        p.label(lA[3])
        self.stamp('jA')
        p.mark('drained_vm')
        for q in range(2):
            p(f'v_permlane32_swap_b32 v{XR+4*q}, v{XR+4*q+2}')
            p(f'v_permlane32_swap_b32 v{XR+4*q+1}, v{XR+4*q+3}')
        lp0 = p.newlabel('p0skip')
        p(f's_cmp_ge_u32 s{sM}, 28')
        p(f's_cselect_b32 s{sXF}, -1, s{sXF}')
        p(f's_cbranch_scc1 {lp0}')
        p.mark('drained_vm')
        self.x_store(XR, vL16, (0, 1024), 'sc1')
        p.label(lp0)
        p(f's_lshl_b32 s{sTP}, s{sA}, 2')
        p(f's_add_u32 s{sTP}, s{sTP}, s{sW}')
        p.mark('drained_vm')
        for i in range(KE, 7):
            p.ext(self.rawq(0, i))
        for i in range(7):
            p.ext(self.rawq(1, i))
        p('s_mov_b64 exec, 0x1ffffff')
        p(f'buffer_load_dword a255, v{vPQ}, {srd(S_WQ)}, 0 offen')
        p('s_mov_b64 exec, -1')
        self.stamp('x0')
        p(f'v_bfe_u32 v{t2}, v{vL}, 4, 1')
        p(f'v_lshl_add_u32 v{t2}, v{t2}, 5, v{t3}')
        p(f'v_bfe_u32 v{vTR}, v{vL}, 2, 2')
        p(f'v_lshl_add_u32 v{t2}, v{vTR}, 6, v{t2}')
        p(f'v_lshl_add_u32 v{vTQ}, v{vH}, 8, v{t2}')
        p(f'v_add_u32 v{vTR}, s{sSTG}, v{vTQ}')
        p(f'v_add_u32 v{t2}, s{sSTG}, v{t2}')
        p(f'v_lshl_add_u32 v{vTR8}, v{vH}, 9, v{t2}')
        p(f'v_add_u32 v{vTQ}, s{sLQ}, v{vTQ}')
        p(f'v_add_u32 v{vWQ}, s{sLQ}, v{vL16}')
        p(f's_mov_b32 s{sPERM}, 0x07060302')
        self.lane_consts()
        vCSP = 104
        p(f'v_mov_b32 v{vCSP+3}, s{sONES}')
        p.ext(self.res_unpack(XR))
        p('s_waitcnt lgkmcnt(0)')
        p(f's_add_u32 s{sF}, s{sF}, 1')
        p(f's_addc_u32 s{sF+1}, s{sF+1}, 0')
        p(f'v_mov_b32 v{vF}, s{sF}')
        p(f'v_mov_b32 v{vF+1}, s{sF+1}')
        p(f's_waitcnt vmcnt({15 - KE})')
        self.stamp('rt1')
        self.flag_opt(sXF)
        p(f's_getreg_b32 s{sT0}, hwreg(HW_REG_XCC_ID)')
        p(f's_and_b32 s{sT0}, s{sT0}, 15')
        p(f's_lshl_b32 s{sT0}, s{sT0}, 28')
        p(f's_xor_b32 s{sT0}, s{sT0}, s{sF+1}')
        p(f'v_mov_b32 v{vT+6}, s{sF}')
        p(f'v_mov_b32 v{vT+7}, s{sT0}')
        p(f's_lshl_b32 s{sT1}, s{sTEAM}, 8')
        p(f's_lshl_b32 s{sT2}, s{sM}, 3')
        p(f's_add_u32 s{sT1}, s{sT1}, s{sT2}')
        p(f's_add_u32 s{sT1}, s{sT1}, {WS_PUR}')
        lx = p.newlabel('noxcc')
        p(f's_cmp_lg_u32 s{sW}, 0')
        p(f's_cbranch_scc1 {lx}')
        p.mark('maybe_begin')
        p('s_mov_b64 exec, 1')
        p(f'buffer_store_dwordx2 {vr(vT+6,2)}, off, {srd(S_WS)}, s{sT1} sc1')
        p('s_mov_b64 exec, -1')
        p.mark('maybe_end')
        p.label(lx)
        self.xform(0, 128, vCSP, vCSP + 3)
        self.walker_at = len(p.items)
        self.stamp('xf0')
        self.xform(1, 160, vCSP + 1, vCSP + 3)
        self.cs_partial((0, 1), vCSP, vT + 6, vT + 7)

        def finish(nfr, offs):
            L = []
            base = None
            for k in range(nfr):
                hi, lo = offs[k] // 4096 * 4096, offs[k] % 4096
                if hi != base:
                    L.append(f's_add_u32 s{sT5}, s{sDST}, {hi}')
                    base = hi
                L.append(f'buffer_store_dwordx4 {vr(FR+4*k)}, v{vL16}, {srd(S_WS)}, s{sT5} offen offset:{lo} sc1')
            return L
        lB = {k: p.newlabel('jobB') for k in (3, 4, 5, 'join')}
        p(f's_mov_b32 s{sFL}, -1')
        p.mark('maybe_begin')
        p(f's_cmp_eq_u32 s{sJOB}, 0')
        p(f's_cbranch_scc1 {lB["join"]}')
        p(f's_cmp_eq_u32 s{sJOB}, 5')
        p(f's_cbranch_scc1 {lB[5]}')
        p(f's_cmp_ge_u32 s{sJOB}, 3')
        p(f's_cbranch_scc1 {lB[3]}')
        p(f'v_lshl_add_u32 v{vTR}, v{t0}, 5, v{t3}')
        p(f'v_add_u32 v{vTR}, s{sSTG}, v{vTR}')
        for t in range(7):
            for jj in range(2):
                p(f'ds_read_b64_tr_b16 {vr(FR+t*4+2*jj,2)}, v{vTR} offset:{t*1024+jj*512}')
        p(f's_mul_i32 s{sDST}, s{sJ}, 100352')
        p(f's_add_u32 s{sDST}, s{sDST}, {W1T}')
        p(f's_mul_i32 s{sDST2}, s{sI}, 3072')
        p(f's_add_u32 s{sDST2}, s{sDST2}, s{sDST}')
        p(f's_add_u32 s{sDST2}, s{sDST2}, 57344')
        p(f's_lshl_b32 s{sT0}, s{sI}, 12')
        p(f's_add_u32 s{sDST}, s{sDST}, s{sT0}')
        p(f's_lshl_b32 s{sFL}, s{sJ}, 4')
        p(f's_add_u32 s{sFL}, s{sFL}, s{sI}')
        p(f's_lshl_b32 s{sFL}, s{sFL}, 3')
        p(f's_add_u32 s{sFL}, s{sFL}, {F_W1}')
        p.ext(finish(4, [t * 1024 for t in range(4)]))
        for t in range(4, 7):
            p(f'buffer_store_dwordx4 {vr(FR+4*t)}, v{vL16}, {srd(S_WS)}, s{sDST2} offen offset:{(t-4)*1024} sc1')
        p(f's_branch {lB["join"]}')
        p.label(lB[3])
        for sg in range(2):
            for jj in range(2):
                p(f'ds_read_b64_tr_b16 {vr(FR+sg*4+2*jj,2)}, v{vTR} offset:{(16*jj+8*sg)*64}')
        p(f's_lshl_b32 s{sI2}, s{sTEAM}, 2')
        p(f's_add_u32 s{sI2}, s{sI2}, s{sRB}')
        p(f's_lshr_b32 s{sSL}, s{sI2}, 1')
        p(f's_and_b32 s{sHF}, s{sI2}, 1')
        p(f's_mul_i32 s{sDST}, s{sCB}, 229376')
        p(f's_mul_i32 s{sT0}, s{sSL}, 14336')
        p(f's_add_u32 s{sDST}, s{sDST}, s{sT0}')
        p(f's_lshl_b32 s{sT0}, s{sHF}, 13')
        p(f's_add_u32 s{sDST}, s{sDST}, s{sT0}')
        p(f's_lshl_b32 s{sT0}, s{sNU}, 10')
        p(f's_add_u32 s{sDST}, s{sDST}, s{sT0}')
        p(f's_add_u32 s{sDST}, s{sDST}, {W2T}')
        p(f's_lshl_b32 s{sFL}, s{sCB}, 5')
        p(f's_add_u32 s{sFL}, s{sFL}, s{sI2}')
        p(f's_lshl_b32 s{sFL}, s{sFL}, 1')
        p(f's_add_u32 s{sFL}, s{sFL}, s{sNU}')
        p(f's_lshl_b32 s{sFL}, s{sFL}, 3')
        p(f's_add_u32 s{sFL}, s{sFL}, {F_W2}')
        p(f's_cmp_eq_u32 s{sJOB}, 4')
        p(f's_cbranch_scc1 {lB[4]}')
        for sg in range(2, 4):
            for jj in range(2):
                p(f'ds_read_b64_tr_b16 {vr(FR+sg*4+2*jj,2)}, v{vTR} offset:{(32+16*jj+8*(sg%2))*64}')
        p.ext(finish(4, [k * 2048 for k in range(4)]))
        p(f's_branch {lB["join"]}')
        p.label(lB[4])
        for jj in range(2):
            p(f'ds_read_b64_tr_b16 {vr(FR+8+2*jj,2)}, v{vTR8} offset:{(32+4*jj)*64}')
        p('s_waitcnt lgkmcnt(0)')
        p.ext(finish(3, [k * 2048 for k in range(3)]))
        p(f's_branch {lB["join"]}')
        p.label(lB[5])
        for hd in range(4):
            for kp in range(2):
                for jj in range(2):
                    p(f'ds_read_b64_tr_b16 {vr(FR+(hd*2+kp)*4+2*jj,2)}, v{vTR} offset:{(28*hd+16*kp+8*jj)*64}')
        p(f's_lshl_b32 s{sFL}, s{sTEAM}, 2')
        p(f's_add_u32 s{sFL}, s{sFL}, s{sCB}')
        p(f's_lshl_b32 s{sDST}, s{sFL}, 14')
        p(f's_lshl_b32 s{sT0}, s{sNU}, 10')
        p(f's_add_u32 s{sDST}, s{sDST}, s{sT0}')
        p(f's_add_u32 s{sDST}, s{sDST}, {WOT}')
        p(f's_lshl_b32 s{sFL}, s{sFL}, 1')
        p(f's_add_u32 s{sFL}, s{sFL}, s{sNU}')
        p(f's_lshl_b32 s{sFL}, s{sFL}, 3')
        p(f's_add_u32 s{sFL}, s{sFL}, {F_WO}')
        p('s_waitcnt lgkmcnt(0)')
        p('s_mov_b32 exec_lo, 0')
        for hd in range(4):
            p(f'v_mov_b32 v{FR+(hd*2+1)*4+2}, 0')
            p(f'v_mov_b32 v{FR+(hd*2+1)*4+3}, 0')
        p('s_mov_b64 exec, -1')
        p.ext(finish(8, [k * 2048 for k in range(8)]))
        p.mark('maybe_end')
        p.label(lB['join'])
        self.stamp('jB')
        p('s_waitcnt lgkmcnt(0)')
        p('s_barrier')
        self.stamp('bar')
        self.cs_sum((0, 1), 108, vT + 6, vT + 7)
        self.stamp('pro')

    def p1(self):
        p, L0 = self.p, self.L == 0
        X, ACC, RING, CS = 32, 144, 192, 224
        accK, accV, accQ = ACC, ACC + 16, ACC + 32
        PK, PV = vT, vT + 8
        sXO, sST, sFX, sKV, sKF = sO, sO + 7, sO + 8, sO + 9, sO + 10
        p.ext(self.off(sFX, sTP, 128, O_FXA))
        if not L0:
            self.poll_first(vL8, f's{sFX}', 14)
        p.ext(self.xoff(sXO, sTP, 28672, O_XA))
        for g in range(1, 7):
            p(f's_add_u32 s{sXO+g}, s{sXO}, {4096*g}')
        p.ext(self.off(sST, sTP, 3584, O_STA))
        p(f's_lshl_b32 s{sT0}, s{sJ}, 3')
        p(f's_add_u32 s{sT0}, s{sT0}, s{sTP}')
        p.ext(self.off(sKV, sT0, 4096, O_KV))
        p.ext(self.off(sKF, sT0, 128, O_FKV))
        p(f'v_lshrrev_b32 v{vCSA}, 5, v{vL}')
        p(f'v_lshlrev_b32 v{vCSA}, 4, v{vCSA}')
        p(f'v_add_u32 v{vCSA}, {L_CSQ}, v{vCSA}')
        sW2E, sW2F = sO + 11, sO + 12
        vQ = 238
        if L0:
            self.vDQ, self.vTQ, self.vWQ = vQ, 225, 226
            p.ext([f'v_lshrrev_b32 v{vQ}, 2, v{vL}', f'v_mul_u32_u24 v{vQ}, 2688, v{vQ}', f'v_and_b32 v{vQ+1}, 3, v{vL}',
                   f'v_lshl_add_u32 v{vQ}, v{vQ+1}, 4, v{vQ}', f'v_lshlrev_b32 v{vQ+1}, 7, v{vL}'])

        def frag(f):
            if f < 56:
                base, off = vL16, (f % 2) * 28672 + (f // 2) * 1024
            else:
                base, off = vA1, (f - 56) * 1024
            return f'ds_read_b128 {vr(RING + 4*(f % 8))}, v{base} offset:{off}'

        def mf(f):
            acc, s = ((accK, accV)[f % 2], f // 2) if f < 56 else (accQ, f - 56)
            return f'{MF32} {vr(acc,16)}, {vr(RING+4*(f%8))}, {vr(X+4*s)}, {vr(acc,16) if s else 0}'

        def xl(s):
            return f'buffer_load_dwordx4 {vr(X+4*s)}, v{vL16}, {srd(S_WS)}, s{sXO + s//4} offen offset:{(s%4)*1024} sc1'
        PD = 6
        for f in range(PD):
            p(frag(f))
        self.stamp('p5')
        self.pad()
        if L0:
            a0, a1, d0 = 144, 145, 146
            p.ext([f'v_min_u32 v{a0}, {13*8}, v{vL8}', f'v_add_u32 v{a0}, s{sFX}, v{a0}',
                   f's_lshl_b32 s{sT0}, s{sTEAM}, 8', f's_add_u32 s{sT0}, s{sT0}, {WS_PUR - 32*8}', f'v_add_u32 v{a1}, s{sT0}, v{vL8}',
                   f'v_cmp_le_u32 vcc, 32, v{vL}', f'v_cndmask_b32 v{a0}, v{a0}, v{a1}, vcc'])
            lp, lo = p.newlabel('pur'), p.newlabel('purout')
            p.ext([f's_mov_b32 s{sCNT}, 0', Label(lp),
                   f'buffer_load_dwordx2 {vr(d0,2)}, v{a0}, {srd(S_WS)}, 0 offen sc1',
                   f's_add_u32 s{sCNT}, s{sCNT}, 1', f's_cmp_gt_u32 s{sCNT}, {POLL_MAX}', f's_cbranch_scc1 {lo}', 's_waitcnt vmcnt(0)',
                   f'v_xor_b32 v{d0+1}, s{sF+1}, v{d0+1}', f'v_xor_b32 v{d0}, s{sF}, v{d0}', f'v_and_b32 v{a1}, 0x0fffffff, v{d0+1}',
                   f'v_or_b32 v{d0}, v{d0}, v{a1}', f'v_cmp_ne_u32 vcc, 0, v{d0}', f's_cbranch_vccnz {lp}', Label(lo), Mark('drained_vm')])
        else:
            self.vpoll(vL8, f's{sFX}', 14)
        self.stamp('E')
        XP = 8
        for s in range(XP):
            p(xl(s))
        if L0:
            self.flag_opt(sJFL)
            p.ext([f'v_readlane_b32 s{sT1}, v{d0+1}, 32', f'v_cmp_ne_u32 vcc, s{sT1}, v{d0+1}', 's_cmp_eq_u32 vcc_hi, 0',
                   f's_cselect_b32 s{sPURE}, {0 if os.environ.get("FORCE_IMPURE") else 1}, 0',
                   f's_cmp_eq_u32 s{sPURE}, 0', f's_cselect_b64 s[{sIMP}:{sIMP+1}], -1, 0'])
        mem, pre = {}, {}
        for f in range(84):
            mem[f] = []
            if f + PD < 84 and not (f < 56 <= f + PD):
                mem[f].append(frag(f + PD))
            if f < 56 and f % 2 == 0 and f // 2 + XP < 28:
                mem[f].append(xl(f // 2 + XP))
            if 27 <= f < 41 and f % 2 == 1:
                mem[f].append(self.stats_loads(sST, CS)[(f - 27) // 2])
            if f % 2 == 0:
                pre[f] = [Touch(vr(RING + 4 * (f % 8)) + ' ' + vr(RING + 4 * ((f + 1) % 8)) + (' ' + vr(X + 4 * (f // 2)) if f < 56 else ''))]
        if L0:
            for i in range(7):
                mem[40 + 2 * i].append(self.rawq(2, i))
        else:
            p(f's_mul_i32 s{sT0}, s{sW}, 7168')
            p(f'v_add_u32 v{vQ}, s{sT0}, v{vA1}')
            for i in range(7):
                mem[3 + 4 * i].append(Ins(f'ds_write_b128 v{vQ}, {ar(224 + 4*i)} offset:{1024*i}', 'wq'))
        for f in (0, 16, 38):
            mem[f] += self.stamp_items(f'k{f}')

        def cs_reads(tau, dst):
            return [f'ds_read_b128 {vr(dst+4*q)}, v{vCSA} offset:{tau*128 + 32*q}' for q in range(4)]
        p.ext(sched([mf(f) for f in range(56)], pre, mem, self.kv_addr() + cs_reads(1, accQ) + cs_reads(0, PK) + self.stats_reduce(CS), 6, start=30))
        self.stamp('kv')

        def epi(acc, cs, P):
            L = []
            for r in range(0, 16, 2):
                L.append(f'v_pk_fma_f32 {vr(acc+r,2)}, {vr(cs+r,2)}, {vr(vMEAN,2)}, {vr(acc+r,2)} op_sel:[0,0,0] op_sel_hi:[1,0,1]')
            for r in range(0, 16, 2):
                L.append(f'v_pk_mul_f32 {vr(acc+r,2)}, {vr(acc+r,2)}, {vr(vMEAN,2)} op_sel:[0,1] op_sel_hi:[1,1]')
                L.append(f'v_cvt_pk_bf16_f32 v{P+r//2}, v{acc+r}, v{acc+r+1}')
            return L

        def pad(P, c6, c7):
            return ['s_mov_b32 exec_lo, 0', f'v_mov_b32 v{P+6}, {c6:#x}', f'v_mov_b32 v{P+7}, {c7:#x}', 's_mov_b64 exec, -1']

        def st(P, o):
            return [Ins(f'buffer_store_dwordx4 {vr(P+4*k)}, v{vL16}, {srd(S_WS)}, s{sKV} offen offset:{o+1024*k} sc1', 'kvst') for k in range(2)]
        t0, t1 = CS, CS + 1
        p.ext(epi(accK, PK, PK) + pad(PK, 0x3f803f80, 0x3f80) + st(PK, 0))
        p.ext(epi(accV, accQ, PV) + pad(PV, 0x3f80, 0) + st(PV, 2048))
        self.stamp('kvs')
        if L0:
            R = ACC
            vcs, vones, t2, t3 = R + 28, R + 29, R + 30, R + 31
            p.ext([f'v_and_b32 v225, 3, v{vL}', 'v_lshlrev_b32 v225, 3, v225', f'v_bfe_u32 v226, v{vL}, 4, 1',
                   'v_lshl_add_u32 v225, v226, 5, v225', f'v_bfe_u32 v226, v{vL}, 2, 2', 'v_lshl_add_u32 v225, v226, 6, v225',
                   f'v_lshrrev_b32 v226, 5, v{vL}', 'v_lshl_add_u32 v225, v226, 8, v225', f'v_add_u32 v225, s{sLQ}, v225',
                   f'v_add_u32 v226, s{sLQ}, v{vL16}', f'v_mov_b32 v{vones}, s{sONES}'])
            self.xform(2, R, vcs, vones)
            p.wait('kvst')
            p.ext(self.flag_sc1(sKF))
            for i in range(28):
                p(f'v_accvgpr_write_b32 a{224+i}, v{R+i}')
            self.cs_partial((2,), vcs, t2, t3)
            p('s_waitcnt lgkmcnt(0)')
            p('s_barrier')
            self.cs_sum((2,), R, t2, t3)
        else:
            p.wait('wq')
            p('s_barrier')
        for f in range(56, 56 + PD):
            p(frag(f))
        side = [f's_lshl_b32 s{sT0}, s{sW}, 12', f's_add_u32 s{sT0}, s{sT0}, {LKV + 8*4096}',
                f'v_add_u32 v{t0}, s{sT0}, v{vL16}',
                f'ds_write_b128 v{t0}, {vr(PK)}', f'ds_write_b128 v{t0}, {vr(PK+4)} offset:1024',
                f'v_and_b32 v{t1}, 31, v{vL}', f'v_lshlrev_b32 v{t1}, 6, v{t1}', f'v_lshrrev_b32 v{t0}, 5, v{vL}',
                f'v_lshl_add_u32 v{t1}, v{t0}, 4, v{t1}', f'v_add_u32 v{t0}, s{sT0}, v{t1}',
                f'ds_write_b128 v{t0}, {vr(PV)} offset:2048', f'ds_write_b128 v{t0}, {vr(PV+4)} offset:{2048+32}',
                f'v_mul_f32 v{vRSTD}, {f32bits(28 ** -0.5 * math.log2(math.e)):#x}, v{vRSTD}']
        pre2 = {f - 56: v for f, v in pre.items() if f >= 56}
        mem2 = {f - 56: v for f, v in mem.items() if f >= 56}
        if not L0:
            mem2[22].append([Wait(['kvst'])] + self.flag_sc1(sKF))
        if L0:
            vW = 236
            p.ext([f's_lshl_b32 s{sT0}, s{sJ}, 7', f's_add_u32 s{sT0}, s{sT0}, {F_W1}', f's_lshl_b32 s{sT1}, s{sCB}, 6',
                   f's_add_u32 s{sT1}, s{sT1}, {F_WO - 14*8}', f's_lshl_b32 s{sT2}, s{sCB}, 9', f's_lshl_b32 s{sT3}, s{sW}, 7',
                   f's_add_u32 s{sT2}, s{sT2}, s{sT3}', f's_add_u32 s{sT2}, s{sT2}, {F_W2 - 22*8}',
                   f'v_mov_b32 v{vW}, s{sT0}', f'v_mov_b32 v{vW+1}, s{sT1}', f'v_cmp_le_u32 vcc, 14, v{vL}',
                   f'v_cndmask_b32 v{vW}, v{vW}, v{vW+1}, vcc', f'v_mov_b32 v{vW+1}, s{sT2}', f'v_cmp_le_u32 vcc, 22, v{vL}',
                   f'v_cndmask_b32 v{vW}, v{vW}, v{vW+1}, vcc', f'v_add_u32 v{vW}, v{vW}, v{vL8}'])
            side += self.peek_issue(vW, '0', 38)
        side2 = self.masks() + cs_reads(2, CS)
        cut = QCUT if L0 else 28
        p.ext(sched([mf(f) for f in range(56, 56 + cut)], pre2, mem2, side + ([] if L0 else side2), 6, start=0))
        self.stamp('q')
        if L0:
            p.ext(self.peek_check(vW, '0', 38, acquire=False))
        self.kv_fetch()
        p.ext(sched([mf(f) for f in range(56 + cut, 84)], {k - cut: v for k, v in pre2.items() if k >= cut},
                    {k - cut: v for k, v in mem2.items() if k >= cut}, side2 if L0 else [], 6))
        QF = 136
        p.ext(epi(accQ, CS, QF))
        p.ext(pad(QF, 0, 0x3f800000))
        self.pad()
        p('s_barrier')
        self.stamp('p1')

    sKD, sKL, sKFl, sNULL = sO + 11, sO + 13, (sO + 15, 78), 79

    def kv_addr(self):
        sKD, sKL, sKFl, sNULL = self.sKD, self.sKL, self.sKFl, self.sNULL
        L = [f's_mov_b32 s{sNULL}, 0']
        for k in range(2):
            L += [f's_lshl_b32 s{sT0}, s{sW}, 1', f's_add_u32 s{sT0}, s{sT0}, {k}',
                  f's_lshl_b32 s{sKL+k}, s{sT0}, 12', f's_add_u32 s{sKL+k}, s{sKL+k}, {LKV}',
                  f's_lshl_b32 s{sT1}, s{sA}, 2', f's_add_u32 s{sT0}, s{sT0}, s{sT1}',
                  [f's_cmp_lt_u32 s{sT0}, 8', f's_cselect_b32 s{sT1}, {STRIDE}, 0'],
                  f's_sub_u32 s{sT1}, s{sLB}, s{sT1}', f's_and_b32 s{sT0}, s{sT0}, 7',
                  [f's_cmp_lt_i32 s{sT1}, {TEAM0}', f's_cselect_b32 s{sT2}, {1 << k}, 0',
                   f's_cselect_b32 s{sT1}, s{sLB}, s{sT1}', f's_cselect_b32 s{sT0}, s{sTP}, s{sT0}'],
                  f's_or_b32 s{sNULL}, s{sNULL}, s{sT2}', f's_lshl_b32 s{sT2}, s{sJ}, 3', f's_add_u32 s{sT0}, s{sT0}, s{sT2}',
                  f's_lshl_b32 s{sKD+k}, s{sT0}, 12', f's_add_u32 s{sKD+k}, s{sKD+k}, s{sT1}',
                  f's_lshl_b32 s{sT0}, s{sT0}, 7', f's_add_u32 s{sT0}, s{sT0}, s{sT1}', f's_add_u32 s{sKFl[k]}, s{sT0}, {O_FKV}']
        return L

    def masks(self):
        MW, MD, t2, t3 = 144, 160, 238, 239
        L = [f'v_and_b32 v{t2}, 31, v{vL}', f'v_lshrrev_b32 v{t3}, 5, v{vL}', f'v_lshlrev_b32 v{t3}, 2, v{t3}',
             f'v_sub_u32 v{t2}, v{t2}, v{t3}', f'v_mov_b32 v{t3}, {f32bits(-1e30):#x}']
        for r in range(0, 16, 2):
            k0, k1 = 8 * (r // 4) + r % 4, 8 * (r // 4) + r % 4 + 1
            L.append([f'v_cmp_le_i32 vcc, {k0}, v{t2}', f'v_cmp_le_i32 s[4:5], {k1}, v{t2}'])
            L += [f'v_cndmask_b32_e64 v{MD+r}, v{t3}, 0, vcc', f'v_cndmask_b32_e64 v{MD+r+1}, v{t3}, 0, s[4:5]',
                  f'v_cndmask_b32_e64 v{MW+r}, 0, v{t3}, vcc', f'v_cndmask_b32_e64 v{MW+r+1}, 0, v{t3}, s[4:5]']
        return L

    def kv_fetch(self):
        p = self.p
        t0, t1, Z, NK = 16, 17, 20, 2
        sKD, sKL, sKFl, sNULL = self.sKD, self.sKL, self.sKFl, self.sNULL
        p(f'v_bfe_u32 v{t0}, v{vL}, 1, 1')
        p(f'v_lshlrev_b32 v{t0}, 10, v{t0}')
        p(f'v_and_b32 v{t1}, 1, v{vL}')
        p(f'v_lshl_add_u32 v{t0}, v{t1}, 9, v{t0}')
        p(f'v_lshrrev_b32 v{t1}, 2, v{vL}')
        p(f'v_lshl_add_u32 v{t0}, v{t1}, 4, v{t0}')
        lp, lo = p.newlabel('kvpoll'), p.newlabel('kvpollout')
        self.stamp('w1')
        p('s_waitcnt lgkmcnt(0)')
        p(f's_mov_b32 s{sCNT}, 0')
        p.label(lp)
        for k in range(NK):
            p(f's_buffer_load_dwordx2 s[{sPOLL+2*k}:{sPOLL+2*k+1}], {srd(S_WS)}, s{sKFl[k]} glc')
        p(f's_add_u32 s{sCNT}, s{sCNT}, 1')
        p(f's_cmp_gt_u32 s{sCNT}, {POLL_MAX}')
        p(f's_cbranch_scc1 {lo}')
        p('s_waitcnt lgkmcnt(0)')
        for k in range(NK):
            p(f's_cmp_eq_u64 s[{sPOLL+2*k}:{sPOLL+2*k+1}], s[{sF}:{sF+1}]')
            p(f's_cbranch_scc0 {lp}')
        p.label(lo)
        self.stamp('kvf')
        for k in range(NK):
            lnull, lb = p.newlabel('null'), p.newlabel('nullback')
            p(f's_bitcmp1_b32 s{sNULL}, {k}')
            p(f's_cbranch_scc1 {lnull}')
            p.mark('maybe_begin')
            p(f's_mov_b32 m0, s{sKL+k}')
            p(f's_sub_u32 s{sT5}, s{sKD+k}, 768')
            p(f'buffer_load_dwordx4 v{vL16}, {srd(S_WS)}, s{sKD+k} offen sc1 lds')
            p(f'buffer_load_dwordx4 v{vL16}, {srd(S_WS)}, s{sKD+k} offen offset:1024 sc1 lds')
            p(f'buffer_load_dwordx4 v{t0}, {srd(S_WS)}, s{sKD+k} offen offset:2048 sc1 lds')
            p(f'buffer_load_dwordx4 v{t0}, {srd(S_WS)}, s{sT5} offen offset:3072 sc1 lds')
            p.mark('maybe_end')
            p.label(lb)
            self.tail.append((lnull, [
                f'v_add_u32 v{t1}, s{sKL+k}, v{vL16}',
                f'v_mov_b32 v{Z}, 0', f'v_mov_b32 v{Z+1}, 0', f'v_mov_b32 v{Z+2}, 0', f'v_mov_b32 v{Z+3}, 0'] +
                [f'ds_write_b128 v{t1}, {vr(Z)} offset:{o}' for o in (0, 2048, 3072)] +
                ['s_mov_b32 exec_lo, 0', f'v_mov_b32 v{Z+3}, 0xf1490000', 's_mov_b64 exec, -1',
                 f'ds_write_b128 v{t1}, {vr(Z)} offset:1024', f's_branch {lb}']))

    def attn(self):
        p, L0 = self.p, self.L == 0
        KF, MW, MD, OA, QF, PB, VF = 32, 144, 160, 192, 136, 208, 224
        STL = (104, 120, 176)
        t0, t1 = 104, 105
        t2, t3 = 106, 107
        vKA, vVA = vT, vT + 1
        p(f's_lshl_b32 s{sT0}, s{sW}, 12')
        p(f's_add_u32 s{sT0}, s{sT0}, {LKV}')
        p(f'v_add_u32 v{vKA}, s{sT0}, v{vL16}')
        p(f'v_lshrrev_b32 v{t2}, 5, v{vL}')
        p(f'v_bfe_u32 v{t3}, v{vL}, 2, 2')
        p(f'v_lshl_add_u32 v{t2}, v{t2}, 2, v{t3}')
        p(f'v_lshlrev_b32 v{vVA}, 6, v{t2}')
        p(f'v_bfe_u32 v{t2}, v{vL}, 4, 1')
        p(f'v_lshl_add_u32 v{vVA}, v{t2}, 5, v{vVA}')
        p(f'v_and_b32 v{t2}, 1, v{vL}')
        p(f'v_lshl_add_u32 v{vVA}, v{t2}, 4, v{vVA}')
        p(f'v_bfe_u32 v{t2}, v{vL}, 1, 1')
        p(f'v_lshl_add_u32 v{vVA}, v{t2}, 3, v{vVA}')
        p(f'v_add_u32 v{vVA}, s{sT0}, v{vVA}')
        sOD, sOF, sWO = sO, sO + 1, sO + 2
        p(f's_lshl_b32 s{sT0}, s{sTP}, 4')
        p(f's_add_u32 s{sT0}, s{sT0}, s{sJ}')
        p.ext(self.roff(sOD, sT0, 2048, O_O))
        p.ext(self.off(sOF, sT0, 8, O_FO))
        p(f's_lshl_b32 s{sWO}, s{sCB}, 2')
        p(f's_add_u32 s{sWO}, s{sWO}, s{sW}')
        p(f's_lshl_b32 s{sWO}, s{sWO}, 14')
        p(f's_add_u32 s{sWO}, s{sWO}, {WOT}')
        for g in range(1, 4):
            p(f's_add_u32 s{sWO+g}, s{sWO}, {4096*g}')
        vPT = vT + 12
        p(f'v_lshlrev_b32 v{vPT}, 7, v{vL}')
        p(f'v_add_u32 v{vPT}, s{sOD}, v{vPT}')
        p(f's_lshl_b32 s{sT0}, s{sTP}, 7')
        p(f's_lshl_b32 s{sT1}, s{sRB}, 8')
        p(f's_lshl_b32 s{sT2}, s{sRHO}, 7')
        p(f's_add_u32 s{sT2}, s{sT2}, s{sT1}')
        p(f's_mul_i32 s{sT3}, s{sT2}, 28')
        p(f's_lshl_b32 s{sT4}, s{sCB}, 9')
        p(f's_add_u32 s{sT3}, s{sT3}, s{sT4}')
        p(f's_lshl_b32 s{sT4}, s{sNU}, 8')
        p(f's_add_u32 s{sT3}, s{sT3}, s{sT4}')
        for lane, (r, c) in enumerate([(sT0, O_FO), (sT1, O_FO), (sT1, O_FO + 128), (sT0, O_FX1), (sT2, O_FX1),
                                       (sT3, O_ST1), (sT3, O_ST1 + 128), (sT0, O_FH), (sT1, O_FH), (sT1, O_FH + 128),
                                       (sT0, O_FH + 1024), (sT1, O_FH + 1024), (sT1, O_FH + 1024 + 128)]):
            p(f's_add_u32 s{sT4}, s{r}, {c}')
            p(f's_add_u32 s{sT4}, s{sT4}, s{sLB}')
            p(f'v_writelane_b32 v{vPT}, s{sT4}, {16 + lane}')
        vZ = vT + 8
        p(f's_lshl_b32 s{sT0}, s{sNU}, 10')
        p(f'v_xor_b32 v{vZ}, s{sT0}, v{vL16}')
        p(f'v_xor_b32 v{vZ+1}, 1024, v{vZ}')
        vT7 = vT + 7
        p(f'v_lshlrev_b32 v{vT7}, 7, v{vL}')
        p.ext(self.pub_offsets(O_X1, O_ST1, O_FX1))
        p(f's_sub_u32 s{sT0}, s{sXD}, {29*128}')
        p(f'v_add_u32 v{t2}, s{sT0}, v{vT7}')
        p(f'v_cmp_lt_u32 vcc, 28, v{vL}')
        p(f'v_cndmask_b32 v{vPT}, v{vPT}, v{t2}, vcc')
        sWT = sO + 6
        p(f's_lshl_b32 s{sT0}, s{sCB}, 2')
        p(f's_add_u32 s{sT0}, s{sT0}, s{sRB}')
        p(f's_lshl_b32 s{sWT}, s{sT0}, 14')
        p(f's_lshl_b32 s{sT2}, s{sW}, 12')
        p(f's_add_u32 s{sWT}, s{sWT}, s{sT2}')
        p(f's_add_u32 s{sWT}, s{sWT}, {WOT}')
        touches = ['s_mov_b32 exec_hi, 0', f'buffer_load_dword a255, v{vT7}, {srd(S_WS)}, s{sWT} offen sc1', self.setexec(45),
                   f'buffer_load_dword a255, v{vPT}, {srd(S_WS)}, 0 offen sc1', 's_mov_b64 exec, -1']
        bg = self.w1_dma(0)
        n1 = 0
        while not is_mem(bg[0]) or n1 < NG1:
            n1 += is_mem(bg[0])
            p.ext([bg.pop(0)])
            if not bg:
                break
        bw = []
        if L0:
            p.ext(self.w2_setup(sO + 7, (vT + 10, vT + 11)))
            bw = self.w2_loads(sO + 7, (vT + 10, vT + 11))
            for _ in range(NW1):
                p.ext([bw.pop(0)])
        self.pad()
        p(f's_waitcnt vmcnt({NG1 + (NW1 if L0 else 0)}) lgkmcnt(0)')
        self.stamp('kvd')
        p('s_barrier')
        self.stamp('A')
        p.ext(touches)

        def kread(t):
            return [f'ds_read_b128 {vr(KF+8*t+4*k)}, v{vKA} offset:{t*4096+k*1024}' for k in range(2)]

        def qk(t):
            s = STL[t % 3]
            c = vr(MW, 16) if t == 0 else vr(MD, 16) if t == 8 else '0'
            return [f'{MF32} {vr(s,16)}, {vr(KF+8*t)}, {vr(QF)}, {c}',
                    f'{MF32} {vr(s,16)}, {vr(KF+8*t+4)}, {vr(QF+4)}, {vr(s,16)}']
        vM, vM2 = vT + 2, vT + 3

        def mx(t):
            s = STL[t % 3]
            L = []
            for i in range(8):
                d = vM if i % 2 == 0 else vM2
                if t == 0 and i < 2:
                    L.append(f'v_max_f32 v{d}, v{s+2*i}, v{s+2*i+1}')
                else:
                    L.append(f'v_max3_f32 v{d}, v{s+2*i}, v{s+2*i+1}, v{d}')
            return L

        def vread(t):
            d = VF + 8 * (t % 2)
            return [f'ds_read_b64_tr_b16 {vr(d+4*kv+2*jj,2)}, v{vVA} offset:{t*4096+2048+(16*kv+8*jj)*64}'
                    for kv in range(2) for jj in range(2)]
        def popbg(bg=bg):
            L = []
            while bg:
                x = bg.pop(0)
                L.append(x)
                if is_mem(x):
                    break
            return L
        for t in range(4):
            p.ext(kread(t))
        q = qk(0)
        p.ext([q[0]] + kread(4) + [q[1]] + kread(5))
        q = qk(1)
        p.ext([q[0]] + kread(6) + popbg(bw) + [q[1]] + kread(7) + popbg(bw))
        for t in range(9):
            m = mx(t)
            if t + 2 < 9:
                q = qk(t + 2)
                extra = kread(8) if t == 0 else vread(0)[:2] if t == 5 else vread(0)[2:] if t == 6 else []
                if t % 2 == 1:
                    extra = extra + popbg()
                p.ext([q[0]] + extra + popbg(bw) + m[:4] + [q[1]] + popbg(bw) + m[4:])
            else:
                p.ext(m)
        self.stamp('a1')
        a, b2, r1 = vT + 4, vT + 5, vT + 6
        p(f'v_max_f32 v{vM}, v{vM}, v{vM2}')
        p(f'v_mov_b32 v{a}, v{vM}')
        p(f'v_permlane32_swap_b32 v{vM}, v{a}')
        p(f'v_max_f32 v{vM}, v{vM}, v{a}')
        p(f'v_xor_b32 v{vM}, 0x80000000, v{vM}')
        p(f'v_and_b32 v{a}, 0xffff0000, v{vM}')
        p(f'v_sub_f32 v{r1}, v{vM}, v{a}')
        p(f'v_and_b32 v{a}, 0xffff0000, v{r1}')
        p(f'v_sub_f32 v{b2}, v{r1}, v{a}')
        p('s_mov_b32 exec_lo, 0')
        p(f'v_perm_b32 v{QF+6}, v{r1}, v{vM}, s{sPERM}')
        p(f'v_perm_b32 v{QF+7}, 1.0, v{b2}, s{sPERM}')
        p('s_mov_b64 exec, -1')

        def ex(t):
            s = STL[t % 3]
            pb = PB + 8 * (t % 2)
            L = []
            for i in range(8):
                L.append(f'v_exp_f32 v{s+2*i}, v{s+2*i}')
                L.append(f'v_exp_f32 v{s+2*i+1}, v{s+2*i+1}')
                if i:
                    L.append(f'v_cvt_pk_bf16_f32 v{pb+i-1}, v{s+2*i-2}, v{s+2*i-1}')
            L.append(f'v_cvt_pk_bf16_f32 v{pb+7}, v{s+14}, v{s+15}')
            return L

        def pv(t):
            d = VF + 8 * (t % 2)
            pb = PB + 8 * (t % 2)
            return [f'{MF32} {vr(OA,16)}, {vr(d)}, {vr(pb)}, {vr(OA,16) if t else 0}',
                    f'{MF32} {vr(OA,16)}, {vr(d+4)}, {vr(pb+4)}, {vr(OA,16)}']

        self.pad()

        def wol(i):
            ks, z = i // 2, i % 2
            return f'buffer_load_dwordx4 {vr(32+4*i)}, v{vZ+z}, {srd(S_WS)}, s{sWO + ks//2} offen offset:{(ks%2)*2048} sc1'
        p.ext(qk(0))
        p.ext(qk(1))
        for t in range(9):
            e = ex(t)
            mf = (pv(t - 1) if t else []) + (qk(t + 2) if t + 2 < 9 else [])
            out = []
            pos = [2, 7, 12, 17]
            for i, x in enumerate(e):
                out.append(x)
                if i in pos and pos.index(i) < len(mf):
                    k = pos.index(i)
                    out.append(mf[k])
                    if t + 1 < 9:
                        if t == 0:
                            out += vread(1)[2 * k:2 * k + 2]
                        elif k in (1, 2):
                            out += vread(t + 1)[2 * (k - 1):2 * (k - 1) + 2]
                        elif t == 7 and k == 1:
                            pass
                    if t < 6 and k in (0, 3) or t == 0:
                        out += popbg()
                    if t < 7:
                        out += popbg(bw) + (popbg(bw) if k % 2 or t == 0 else [])
                    if t >= 7:
                        out += [wol(8 * (t - 7) + 4 * k + q) for q in range(4)]
            if t == 7:
                out = out[:-3] + vread(8)[2:] + out[-3:]
            p.ext(out)
        assert not bg and not bw, (len(bg), len(bw))
        p.ext(pv(8))
        self.stamp('a2')
        p(f'v_mov_b32 v{a}, v{OA+12}')
        p(f'v_mov_b32 v{b2}, v{OA+12}')
        p(f'v_permlane32_swap_b32 v{a}, v{b2}')
        p(f'v_rcp_f32 v{b2}, v{b2}')
        for i in range(8):
            p(f'v_pk_mul_f32 {vr(OA+2*i,2)}, {vr(OA+2*i,2)}, {vr(a,2)} op_sel:[0,1] op_sel_hi:[1,1]')
            p(f'v_cvt_pk_bf16_f32 v{PB+i}, v{OA+2*i}, v{OA+2*i+1}')
            if i % 4 == 3:
                p(f'buffer_store_dwordx4 {vr(PB+i-3)}, v{vL16}, {srd(S_WS)}, s{sOD} offen offset:{(i//4)*1024}', tok='ost')
        self.publish(['ost'], sOF)
        self.stamp('att')

    def reduce_writes(self, ACC):
        return [Ins(f'ds_write_b128 v{vRW+x-1}, {vr(ACC+16*x+4*c)} offset:{c*1024}', 'rw') for x in range(1, 4) for c in range(4)]

    def reduce_finish(self, ACC, TMP):
        p = self.p
        p.wait('rw')
        self.pad()
        p('s_barrier')
        for c in range(4):
            for x in range(3):
                p(f'ds_read_b128 {vr(TMP+16*x+4*c)}, v{vRW+3} offset:{x*4096+c*1024}')
        for c in range(8):
            p(f'v_pk_add_f32 {vr(TMP+2*c,2)}, {vr(TMP+2*c,2)}, {vr(TMP+16+2*c,2)}')
            p(f'v_pk_add_f32 {vr(ACC+2*c,2)}, {vr(ACC+2*c,2)}, {vr(TMP+32+2*c,2)}')
            p(f'v_pk_add_f32 {vr(ACC+2*c,2)}, {vr(ACC+2*c,2)}, {vr(TMP+2*c,2)}')

    def yoffs(self, dst, mul, add):
        L = []
        for y in range(2):
            L += [f's_xor_b32 s{sT0}, s{sRHO}, {y}', f's_lshl_b32 s{sT1}, s{sRB}, 1', f's_add_u32 s{sT0}, s{sT0}, s{sT1}',
                  f's_lshl_b32 s{sT0}, s{sT0}, 2', f's_add_u32 s{sT0}, s{sT0}, s{sW}'] + self.roff(dst + y, sT0, mul, add)
        return L

    def p3(self):
        p, L0 = self.p, self.L == 0
        WO, OF, ACC, RING = 32, 96, 160, 200

        def colsum(part, AC=ACC, RG=RING, T=vT, extra=()):
            for i in range(4):
                p(f'v_mov_b32 v{T+4+i}, s{sONES}')
            p(f's_lshl_b32 s{sT0}, s{sW}, 10')
            if part == 0:
                p(f'v_add_u32 v{T}, s{sT0}, v{vA1}')
            else:
                p(f's_min_u32 s{sT0}, s{sT0}, 2048')
                p(f's_add_u32 s{sT0}, s{sT0}, {LW1}')
                p(f'v_add_u32 v{T}, s{sT0}, v{vA1}')
            NRG = 4
            rd = lambda f: f'ds_read_b128 {vr(RG+4*(f%NRG))}, v{T} offset:{f*(4096, 3072)[part]}'
            for f in range(NRG - 1):
                p(rd(f))
            for f in range(14):
                p(f'{MF16} {vr(AC)}, {vr(T+4)}, {vr(RG+4*(f%NRG))}, {vr(AC) if f else 0}')
                if f + NRG - 1 < 14:
                    p(rd(f + NRG - 1))
                if f % 3 == 1 and extra:
                    p(extra.pop(0))
            p(f's_lshl_b32 s{sT0}, s{sW}, 6')
            p(f's_add_u32 s{sT0}, s{sT0}, {L_CS1 + 256*part}')
            p(f'v_and_b32 v{T}, 15, v{vL}')
            p(f'v_lshlrev_b32 v{T}, 2, v{T}')
            p(f'v_add_u32 v{T}, s{sT0}, v{T}')
            p(f'ds_write_b32 v{T}, v{AC}')
            p('s_waitcnt lgkmcnt(0)')
        w1d = []
        self.pad()
        p('s_barrier')
        ljoin, lidle = p.newlabel('p3join'), p.newlabel('p3idle')
        p(f's_cmp_ge_u32 s{sM}, 28')
        p(f's_cbranch_scc1 {lidle}')
        p.mark('maybe_begin')
        sFO, sY = sO, sO + 2
        p(f's_lshl_b32 s{sT0}, s{sRB}, 3')
        p(f's_add_u32 s{sT0}, s{sT0}, s{sW}')
        p.ext(self.off(sFO, sT0, 32, O_FO))
        self.poll_first(vFLG, f's{sFO}', 8)
        p.ext(self.yoffs(sY, 8192, O_O))
        p(f's_add_u32 s{sY+2}, s{sY}, 4096')
        p(f's_add_u32 s{sY+3}, s{sY+1}, 4096')
        self.vpoll(vFLG, f's{sFO}', 8)
        self.stamp('B')

        def ld(ks, y):
            return f'buffer_load_dwordx4 {vr(OF+(ks*2+y)*4)}, v{vL16}, {srd(S_WS)}, s{sY + 2*(ks//4) + y} offen offset:{(ks%4)*1024} sc1'

        def mf(ks, x):
            y, z = x >> 1, x & 1
            c = vr(ACC + 16 * x, 16) if ks else (vr(vRES, 16) if x == 0 else '0')
            return f'{MF32} {vr(ACC+16*x,16)}, {vr(WO+(ks*2+z)*4)}, {vr(OF+(ks*2+y)*4)}, {c}'
        for ks in range(5):
            for y in range(2):
                p(ld(ks, y))
        rest = list(w1d)
        for ks in range(8):
            for x in (1, 2, 3):
                p(mf(ks, x))
                if ks + 5 < 8 and x < 3:
                    p(ld(ks + 5, x - 1))
                elif ks >= 3 and rest:
                    y = rest.pop(0)
                    p.ext([y])
                    while rest and not is_mem(y):
                        y = rest.pop(0)
                        p.ext([y])
        assert not rest
        self.stamp('p3mm')
        p.ext(sched([mf(ks, 0) for ks in range(8)], {}, {}, self.reduce_writes(ACC), 2, start=2))
        self.stamp('p3rw')
        self.reduce_finish(ACC, 32)
        self.stamp('p3rd')
        P = 96
        for i in range(8):
            p(f'v_cvt_pk_bf16_f32 v{P+i}, v{ACC+2*i}, v{ACC+2*i+1}')
        self.x_store(P, vX1A, (0, 512))
        self.publish(['xst'], sXF)
        self.stamp('p3pub')
        p.ext(self.res_unpack(P))
        p.mark('maybe_end')
        p.label(ljoin)
        idle = [f'v_lshlrev_b32 v{vT}, 7, v{vL}', f's_lshl_b32 s{sT0}, s{sCB}, 2', f's_add_u32 s{sT0}, s{sT0}, s{sW}']
        if L0:
            idle += [f's_lshl_b32 s{sT1}, s{sT0}, 7', f's_add_u32 s{sT1}, s{sT1}, {F_W1}'] + self.poll_loop(vL8, f's{sT1}', 14)
        idle += [f's_mul_i32 s{sT1}, s{sT0}, 100352'] + self.prefetch(vT, sT1, W1T + 55296, 45056)
        self.tail.append((lidle, idle + [f's_branch {ljoin}']))
        self.colsum = colsum
        self.stamp('p3')

    def p45(self):
        p, L0 = self.p, self.L == 0
        X, ACC, RING, CS = 32, 144, 200, 224
        sXO, sST, sFX, sH, sHF = sO, sO + 4, sO + 5, sO + 6, sO + 8
        sFH, sST5, sW2 = sO + 9, sO + 10, sO + 11
        sY = [76, 77, 78, 79, sO + 12, sO + 13, sO + 14, sO + 15]
        vTC, vHA, vHB, vZ, vLb, PO = vT, vT + 1, vT + 2, (vT + 3, vT + 13), vT + 12, vT + 4
        p('s_barrier')
        p.ext(self.w1_dma(1))
        p.ext(self.off(sFX, sTP, 128, O_FX1))
        if False:
            p.ext([f's_lshl_b32 s{sT1}, s{sJ}, 7', f's_add_u32 s{sT1}, s{sT1}, {F_WQ - 14*8}',
                   f'v_mov_b32 v{PO}, s{sFX}', f'v_mov_b32 v{PO+1}, s{sT1}', f'v_cmp_le_u32 vcc, 14, v{vL}',
                   f'v_cndmask_b32 v{PO}, v{PO}, v{PO+1}, vcc', f'v_add_u32 v{PO}, v{PO}, v{vL8}'])
            self.poll_first(PO, '0', 28)
        else:
            self.poll_first(vL8, f's{sFX}', 14)
        p.ext(self.xoff(sXO, sTP, 28672, O_X1))
        for g in range(1, 4):
            p(f's_add_u32 s{sXO+g}, s{sXO}, {8192*g}')
        p.ext(self.off(sST, sTP, 3584, O_ST1))
        p(f's_lshl_b32 s{sT0}, s{sTP}, 4')
        p(f's_add_u32 s{sT0}, s{sT0}, s{sJ}')
        p.ext(self.off(sH, sT0, 7168, O_H))
        p(f's_add_u32 s{sH+1}, s{sH}, 4096')
        p.ext(self.off(sHF, sT0, 8, O_FH))
        p.ext([f'v_lshrrev_b32 v{vCSA}, 4, v{vL}', f'v_lshlrev_b32 v{vCSA}, 4, v{vCSA}', f'v_add_u32 v{vCSA}, {L_CS1}, v{vCSA}',
               f'v_lshrrev_b32 v{vHA}, 5, v{vL}', f'v_lshlrev_b32 v{vHA}, 10, v{vHA}',
               f'v_bfe_u32 v{vHB}, v{vL}, 4, 1', f'v_lshl_add_u32 v{vHA}, v{vHB}, 9, v{vHA}',
               f'v_and_b32 v{vTC}, 15, v{vL}', f'v_lshl_add_u32 v{vHA}, v{vTC}, 4, v{vHA}',
               f'v_lshlrev_b32 v{vHB}, 3, v{vHB}', f'v_lshl_add_u32 v{vHB}, v{vTC}, 4, v{vHB}',
               f'v_lshrrev_b32 v{vTC}, 5, v{vL}', f'v_lshl_add_u32 v{vHB}, v{vTC}, 9, v{vHB}',
               f'v_add_u32 v{vLb}, 4096, v{vL16}', f'v_add_u32 v{vZ[0]}, {LW1}, v{vA1}'])
        sRBc = sPOLL
        p(f's_min_u32 s{sRBc}, s{sRB}, 3')
        p(f's_lshl_b32 s{sT0}, s{sRBc}, 3')
        p(f's_add_u32 s{sT0}, s{sT0}, s{sW}')
        p.ext(self.off(sFH, sT0, 32, O_FH))
        for y in range(2):
            p.ext([f's_xor_b32 s{sT0}, s{sRHO}, {y}', f's_lshl_b32 s{sT1}, s{sRBc}, 1', f's_add_u32 s{sT0}, s{sT0}, s{sT1}',
                   f's_lshl_b32 s{sT0}, s{sT0}, 2', f's_add_u32 s{sT0}, s{sT0}, s{sW}'] + self.off(sT2, sT0, 28672, O_H))
            for sl in range(4):
                p.ext([f's_add_u32 s{sT0}, {ROT}, {sl}', f's_and_b32 s{sT0}, s{sT0}, 3', f's_mul_i32 s{sT0}, s{sT0}, 7168',
                       f's_add_u32 s{sY[2*sl+y]}, s{sT2}, s{sT0}'])
        p(f's_lshl_b32 s{sT0}, s{sRBc}, 1')
        p(f's_add_u32 s{sT0}, s{sT0}, s{sRHO}')
        p.ext(self.off(sST5, sT0, 3584, O_ST1))
        if L0:
            p.ext(self.pub_offsets(O_XA + LSTRIDE, O_STA + LSTRIDE, O_FXA + LSTRIDE))
        p(f'v_lshlrev_b32 v{vTC}, 7, v{vL}')
        seq = [(t, s) for s in range(14) for t in range(4)] + [(t, s) for s in range(14) for t in range(4, 7)]

        def frag(f):
            base, off = (vA1, f * 1024) if f < 56 else (vZ[0], (f - 56) * 1024)
            return f'ds_read_b128 {vr(RING + 4*(f % 6))}, v{base} offset:{off}'

        def mf(f, u):
            t, s = seq[f]
            return f'{MF16} {vr(ACC+8*t+4*u)}, {vr(RING+4*(f%6))}, {vr(X+4*(2*s+u))}, {vr(ACC+8*t+4*u) if s else 0}'

        def xl(i):
            return f'buffer_load_dwordx4 {vr(X+4*i)}, v{(vL16, vLb)[(i//4)%2]}, {srd(S_WS)}, s{sXO + i//8} offen offset:{(i%4)*1024} sc1'

        def cs_reads(tiles):
            return [f'ds_read_b128 {vr(CS+4*(t%4))}, v{vCSA} offset:{t*64}' for t in tiles]
        PD = 4
        for f in range(PD):
            p(frag(f))
        self.pad()
        self.vpoll(vL8, f's{sFX}', 14)
        self.stamp('C')
        XP = 8
        for i in range(XP):
            p(xl(i))
        p('s_barrier')
        if L0:
            extra = [xl(i) for i in range(XP, XP + 10)]
            self.colsum(0, AC=176, RG=180, T=vT + 4, extra=extra)
            self.colsum(1, AC=176, RG=180, T=vT + 4, extra=extra)
            XP += 10
        mem, pre = {}, {}
        for f in range(98):
            mem[2 * f] = [frag(f + PD)] if f + PD < 98 else []
            mem[2 * f + 1] = []
            if f < 56 and f % 2 == 0 and f // 2 + XP < 28:
                mem[2 * f + 1] = [xl(f // 2 + XP)]
            if 27 <= f < 41 and f % 2 == 1:
                mem[2 * f + 1] = [self.stats_loads(sST, CS)[(f - 27) // 2]]
            if f % 2 == 0:
                tch = vr(RING + 4 * (f % 6)) + ' ' + vr(RING + 4 * ((f + 1) % 6))
                if f < 56 and f % 4 == 0:
                    tch += ' ' + vr(X + 8 * (f // 4), 8)
                pre[2 * f] = [Touch(tch)]
        i = 2 * 41 + 1
        if L0:
            xa = [f'v_add_u32 v{PO}, s{sXD}, v{vTC}', f's_add_u32 s{sT0}, s{sFX}, {LSTRIDE + O_FXA - O_FX1}', f's_add_u32 s{sT1}, s{sXS}, 128']
            for lane, r in ((16, sXS), (17, sT1), (18, sXF), (19, sT0)):
                xa.append(f'v_writelane_b32 v{PO}, s{r}, {lane}')
            mem[i + 2] += xa
            mem[i + 4].append(self.setexec(20) + [f'buffer_load_dword a255, v{PO}, {srd(S_WS)}, 0 offen sc1', 's_mov_b64 exec, -1'])
        for f in (0, 16, 38):
            mem[2 * f + 1] += self.stamp_items(f'g{f}')
        mfs = [mf(f, u) for f in range(98) for u in range(2)]
        side = self.stats_reduce(CS) + [f'v_mov_b32 v{vRSTD}, v{vMEAN}', 's_nop 0', f'v_permlane16_swap_b32 v{vMEAN}, v{vRSTD}']
        p.ext(sched(mfs[:112], pre, mem, side, 2, start=88))
        self.stamp('p4m1')
        self.pad()
        if L0:
            p('s_barrier')
        p.ext(cs_reads([0, 1, 2, 3]))
        self.stamp('p4g1')

        HSC = 'sc1'

        def epi(tiles, tok):
            L = []
            pairs = [tiles[i:i + 2] for i in range(0, len(tiles), 2)]
            n = 0
            for pr in pairs:
                for u in range(2):
                    po = PO + 4 * (n % 2)
                    n += 1
                    for k, t in enumerate(pr):
                        a = ACC + 8 * t + 4 * u
                        for r in (0, 2):
                            L.append(f'v_pk_fma_f32 {vr(a+r,2)}, {vr(CS+4*(t%4)+r,2)}, {vr(vMEAN,2)}, {vr(a+r,2)} op_sel:[0,{u},0] op_sel_hi:[1,{u},1]')
                    for k, t in enumerate(pr):
                        a = ACC + 8 * t + 4 * u
                        for r in range(2):
                            L.append(f'v_cvt_pk_bf16_f32 v{po+2*k+r}, v{a+2*r}, v{a+2*r+1}')
                    for k, t in enumerate(pr):
                        for r in range(2):
                            L.append(f'v_pk_max_i16 v{po+2*k+r}, v{po+2*k+r}, 0')
                    t = pr[0]
                    so, off = (sH, t * 1024) if t < 4 else (sH + 1, (t - 4) * 1024)
                    if len(pr) == 2:
                        L.append(Ins(f'buffer_store_dwordx4 {vr(po)}, v{vHA}, {srd(S_WS)}, s{so} offen offset:{off+u*256} {HSC}', tok))
                    else:
                        L.append(Ins(f'buffer_store_dwordx2 {vr(po,2)}, v{vHB}, {srd(S_WS)}, s{so} offen offset:{off+u*256} {HSC}', tok))
            return L
        p.ext(epi([0, 1, 2, 3], 'h1'))
        self.stamp('p4e1')
        HR, AC5, NR, PD5, TAIL = 32, 160, 16, 5, 14
        order = ORDER

        def ld(i, y):
            sl, sg = order[i] // 7, order[i] % 7
            return (f'buffer_load_dwordx4 {vr(HR+((i%NR)*2+y)*4)}, v{(vL16, vLb)[sg//4]}, {srd(S_WS)}, s{sY[2*sl+y]} '
                    f'offen offset:{(sg%4)*1024} sc1')

        def m5(i, x):
            y, z = x >> 1, x & 1
            return f'{MF32} {vr(AC5+16*x,16)}, {ar(order[i]*8+z*4)}, {vr(HR+((i%NR)*2+y)*4)}, {vr(AC5+16*x,16) if i else 0}'
        pre2 = {i - 112: v for i, v in pre.items() if i >= 112}
        mem2 = {i - 112: v for i, v in mem.items() if i >= 112}
        NW2A = 14 if L0 else 0
        mem2[H1POS] = self.publish_items(['h1'], sHF, 0, self.touch(vTC, sH, 0, 32) if PT else ()) + mem2[H1POS]
        mem2[59] += cs_reads([4, 5])
        mem2[61] += cs_reads([6])
        e2 = epi([4, 5, 6], 'h2')
        if PK1 < 64:
            mem2[PK1] += self.peek_issue(vFLG, f's{sFH}', 8)
            mem2[63] += self.peek_check(vFLG, f's{sFH}', 8)
            for k in range(2 * PD5):
                mem2[65 + 2 * k].append(ld(k // 2, k % 2))
        else:
            mem2[PK1] += self.peek_issue(vFLG, f's{sFH}', 8)
            first_store = next(i for i, x in enumerate(e2) if is_mem(x))
            e2 = e2[:first_store] + self.peek_check(vFLG, f's{sFH}', 8) + [ld(k // 2, k % 2) for k in range(2 * PD5)] + e2[first_store:]
        p.ext(sched(mfs[112:], pre2, mem2, [], 2, start=0))
        self.stamp('p4g2')
        p.ext(e2)
        self.stamp('p4')
        lskip, ljoin = p.newlabel('p5skip'), p.newlabel('p5join')
        self.pad()
        p(f's_cmp_ge_u32 s{sM}, 28')
        p(f's_cbranch_scc1 {lskip}')
        idle = ['s_waitcnt vmcnt(0)'] + self.publish_items([], sHF, 1024, self.touch(vTC, sH + 1, 0, 24) if PT else ())
        if L0:
            idle += [f's_lshl_b32 s{sT0}, s{sCB}, 2', f's_add_u32 s{sT0}, s{sT0}, s{sW}', f's_mul_i32 s{sT1}, s{sT0}, 28672']
            idle += self.prefetch(vTC, sT1, WOT, 28672)
            idle += [f's_mul_i32 s{sT1}, s{sT0}, 100352'] + self.prefetch(vTC, sT1, W1T, IDLE5) + [f's_branch {ljoin}']
        else:
            idle += ['s_branch L_fin']
        self.tail.append((lskip, idle))
        p('s_barrier')
        wqk = []
        mfs, mem = [], {}
        w2b = []
        stl = self.stats_loads(sST5, CS)
        for i in range(28):
            xs = (0, 1, 2, 3) if i < 28 - TAIL else (1, 2, 3)
            for n, x in enumerate(xs):
                k = len(mfs)
                mfs.append(m5(i, x))
                mem[k] = []
                if i == H2POS and n == 3:
                    mem[k] += self.publish_items(['h2'], sHF, 1024, self.touch(vTC, sH + 1, 0, 24) if PT else ())
                if i == PK2 and n == 3:
                    mem[k] += self.peek_issue(vFLG, f's{sFH}', 8, 1024)
                if i == 11 and n == 0:
                    mem[k] += self.stamp_items('pk0') + self.peek_check(vFLG, f's{sFH}', 8, 1024) + self.stamp_items('pk1')
                if i + PD5 < 28 and n < 2:
                    mem[k].append(ld(i + PD5, n))
                elif w2b and n >= 2:
                    mem[k].append(w2b.pop(0))
                elif i + PD5 >= 28 and stl:
                    mem[k].append(stl.pop(0))
                elif i + PD5 >= 28 and wqk:
                    while wqk:
                        x2 = wqk.pop(0)
                        mem[k].append(x2)
                        if is_mem(x2):
                            break
        assert not w2b and not stl and not wqk
        p.ext(sched(mfs, {}, mem, [], 6))
        self.stamp('p5mm')
        mem = {}
        for i, x in enumerate(self.reduce_writes(AC5)):
            mem.setdefault(2 + i, []).append(x)
        p.ext(sched([m5(i, 0) for i in range(28 - TAIL, 28)], {}, mem, self.stats_reduce(CS), 5, start=0))
        self.stamp('p5rw')
        self.reduce_finish(AC5, 32)
        self.stamp('p5rd')
        P = 96
        for i in range(8):
            p(f'v_pk_fma_f32 {vr(AC5+2*i,2)}, {vr(AC5+2*i,2)}, {vr(vMEAN,2)}, {vr(vRES+2*i,2)} op_sel:[0,1,0] op_sel_hi:[1,1,1]')
            p(f'v_cvt_pk_bf16_f32 v{P+i}, v{AC5+2*i}, v{AC5+2*i+1}')
        if L0:
            self.x_store(P, vL16, (0, 1024))
            self.publish(['xst'], sXF)
            self.stamp('p5pub')
            p.ext(self.res_unpack(P))
            p.label(ljoin)
            p(f's_add_u32 s{sLB}, s{sLB}, {LSTRIDE}')
            p('s_barrier')
            return
        p(f'v_and_b32 v{vT+4}, 31, v{vL}')
        p(f'v_mul_u32_u24 v{vT+4}, 896, v{vT+4}')
        p(f'v_lshrrev_b32 v{vT+5}, 5, v{vL}')
        p(f'v_lshl_add_u32 v{vT+4}, v{vT+5}, 4, v{vT+4}')
        for hf in range(2):
            p(f'v_permlane32_swap_b32 v{P+4*hf}, v{P+4*hf+2}')
            p(f'v_permlane32_swap_b32 v{P+4*hf+1}, v{P+4*hf+3}')
            p(f'buffer_store_dwordx4 {vr(P+4*hf)}, v{vT+4}, {srd(S_OUT)}, s{sQOFF} offen offset:{32*hf}')
        p('s_cmp_lg_u32 s2, %d' % (27 * 8 + 7))
        p('s_cbranch_scc1 L_fin')
        p(f's_mov_b32 s{sT0}, {WS_EPOCH}')
        p.ext(self.flag_sc1(sT0))

    def build(self):
        p = self.p
        self.L = 0
        self.prologue()
        for self.L in range(2):
            for ph in ('p1', 'attn', 'p3', 'p45'):
                getattr(self, ph)()
        p.label('L_fin')
        self.stamp('end')
        self.stamp_dump()
        if os.environ.get('CALIB'):
            p.label('L_calib')
            p('s_memrealtime s[96:97]')
            p('s_waitcnt lgkmcnt(0)')
            p('s_sub_u32 s96, s96, s100')
            if os.environ.get('PROBE'):
                p('s_sub_u32 s97, s98, s100')
                p(f's_cmp_ge_u32 s{sM}, 28')
                p('s_cselect_b32 s97, 0, s97')
                p('s_sub_u32 s96, s96, s97')
                p('s_max_i32 s96, s96, 0')
            p(f's_cmp_lt_u32 s96, {int(os.environ["CALIB"])}')
            p('s_cbranch_scc1 L_calib')
        p.label('L_end')
        p('s_endpgm')
        for lab, code in self.tail:
            p.label(lab, reset='all')
            p.ext(code)
        p.label('L_codeend')
        self.emit_walker()
        p.insert_waits()
        probs = p.fix_hazards()
        for x in probs:
            print('branch hazard padded', x, file=sys.stderr)
        mx = p.maxregs()
        head = open(os.path.join(os.path.dirname(__file__), '..', 'cdna_kernels', NAME + '.s.ref')).read().split('\n')
        hdr = [l for l in head if l.startswith(';') and '@launch' not in l]
        out = '\n'.join(hdr) + f'\n; @launch grid=(256,1,1) block=(256,1,1) lds={LDS_BYTES}\n'
        out += '.amdgcn_target "amdgcn-amd-amdhsa--gfx950"\n.text\n'
        out += f'.globl {NAME}_kernel\n.p2align 8\n.type {NAME}_kernel,@function\n{NAME}_kernel:\n'
        out += p.text()
        out += '.fill 64, 4, 0xbf800000\n'
        out += f'''.section .rodata,"a"
.p2align 6
.amdhsa_kernel {NAME}_kernel
  .amdhsa_next_free_vgpr 512
  .amdhsa_next_free_sgpr 102
  .amdhsa_accum_offset 256
  .amdhsa_group_segment_fixed_size 0
  .amdhsa_kernarg_size 72
  .amdhsa_user_sgpr_count 2
  .amdhsa_user_sgpr_kernarg_segment_ptr 1
  .amdhsa_system_sgpr_workgroup_id_x 1
  .amdhsa_float_denorm_mode_32 3
.end_amdhsa_kernel
'''
        print('regs', mx, 'instrs', sum(1 for x in p.items if isinstance(x, Ins)), file=sys.stderr)
        return out


if __name__ == '__main__':
    stop = int(sys.argv[2]) if len(sys.argv) > 2 else None
    k = K(stop if stop and stop > 0 else None, dbg=sys.argv[3].split(',') if len(sys.argv) > 3 else None)
    open(sys.argv[1], 'w').write(k.build())
    if k.dbg:
        open(os.path.join(os.path.dirname(sys.argv[1]), 'stamps.txt'), 'w').write(' '.join(k.stamps))
```

```python
import sys, os, math, struct
sys.path.insert(0, os.path.dirname(__file__))
from asmlib import Prog, Ins, Wait, Mark, Label, Touch

NAME = 'interleave_layers__sliding_block__dense_activation_relu__prompt'

WS_EPOCH = 0
WS_PUR = 0x1000
F_WQ = 0x2000
F_W1 = 0x2800
F_W2 = 0x3000
F_WO = 0x4000
WQT = 0x100000
W1T = 0x250000
WOT = 0x3D8000
W2T = 0x448000
TEAM0 = 0x600000
LSTRIDE = 0x230000
STRIDE = 2 * LSTRIDE
O_KV = 0x000000
O_O = 0x080000
O_X1 = 0x0C0000
O_XA = 0x0F8000
O_ST1 = 0x130000
O_STA = 0x138000
O_FKV = 0x140000
O_FO = 0x144000
O_FX1 = 0x144400
O_FXA = 0x144800
O_FH = 0x145000
O_H = 0x150000
WS_BYTES = TEAM0 + 8 * STRIDE

LW1 = 57344
LKV = LW1 + 55296
L_CSQ = LKV + 49152
L_CS1 = L_CSQ + 512
L_CSP = L_CS1 + 512
LDS_BYTES = 163840

S_X, S_WQ, S_WO, S_W1, S_W2, S_OUT, S_WS = 8, 12, 16, 20, 24, 28, 32
S_WSP = 36
sTEAM, sM, sA, sJ, sW, sRB, sCB, sLB = 40, 41, 42, 43, 44, 45, 46, 47
sF, sPURE, sLAYER, sTP = 48, 50, 51, 52
sQOFF = 53
sIMP = 54
sPERM, sONES = 56, 57
sRHO, sNU = 58, 59
sT0, sT1, sT2, sT3, sT4, sT5 = 60, 61, 62, 63, 64, 65
sCNT = 66
sTB = 71
sJFL = 67
sXD, sXS, sXF = 68, 69, 70
sPOLL = 72
sRQ, sLQ = 76, 77
sO = 80

vL, vL16, vA1, vL8 = 0, 1, 2, 3
vSTA = 4
vFLG = 5
vRW = 6
vX1A = 10
vCSA = 11
vF = 12
vMEAN, vRSTD = 14, 15
vT = 16
vRES = 240

POLL_MAX = 1 << 16
ROT = {'rb': f's{sRB}', 'team': f's{sTEAM}', '': '0'}[os.environ.get('ROT', '')]
ROT1 = {'a': f's{sA}', 'team': f's{sTEAM}', '': '0'}[os.environ.get('ROT1', '')]
PT = bool(os.environ.get('PT'))
H1POS = int(os.environ.get('H1POS', 19))
H2POS = int(os.environ.get('H2POS', 3))
PK1 = int(os.environ.get('PK1', 57))
IDLE5 = int(os.environ.get('IDLE5', 40960))
QCUT = int(os.environ.get('QCUT', 10))
KE = int(os.environ.get('KE', 3))
PERM = not os.environ.get('NOPERM')
NG1 = int(os.environ.get('NG1', 0))
EK = bool(os.environ.get('EK'))
DP = not os.environ.get('NODP')
NW1 = int(os.environ.get('NW1', 20))
PK2 = int(os.environ.get('PK2', 8))
ORDER = [7 * sl + sg for sl in range(4) for sg in range(4)] + [7 * sl + sg for sl in range(4) for sg in range(4, 7)]
MF32 = 'v_mfma_f32_32x32x16_bf16'
MF16 = 'v_mfma_f32_16x16x32_bf16'


def srd(b):
    return f's[{b}:{b+3}]'


def vr(b, n=4):
    return f'v[{b}:{b+n-1}]' if n > 1 else f'v{b}'


def ar(b, n=4):
    return f'a[{b}:{b+n-1}]'


def f32bits(x):
    return struct.unpack('<I', struct.pack('<f', x))[0]


def is_mem(x):
    if isinstance(x, (list, tuple)):
        return any(is_mem(y) for y in x)
    if isinstance(x, (Wait, Touch, Label, Mark)):
        return False
    t = x.text if isinstance(x, Ins) else x if isinstance(x, str) else ''
    return t.startswith('ds_') or t.startswith('buffer_') or t.startswith('global_')


def cost(x):
    if isinstance(x, (list, tuple)):
        return sum(cost(y) for y in x)
    if isinstance(x, (Wait, Touch)):
        return 1
    if isinstance(x, (Label, Mark)):
        return 0
    t = x.text if isinstance(x, Ins) else x
    return 2 if t.startswith('v_exp') or t.startswith('v_rsq') or t.startswith('v_rcp') or t.startswith('v_permlane') else 1


def sched(mfs, pre, mem, side, cap, start=0):
    out = []
    side = list(side)
    for i, m in enumerate(mfs):
        out += pre.get(i, [])
        out.append(m)
        n = 0
        for x in mem.get(i, []):
            out.append(x)
            n += cost(x)
        if pre.get(i + 1):
            n += 1
        valu = False
        if i >= start:
            while side and n + cost(side[0]) <= cap:
                if is_mem(side[0]) and valu:
                    break
                x = side.pop(0)
                if not is_mem(x) and not isinstance(x, (Wait, Touch)):
                    t = x[0] if isinstance(x, (list, tuple)) else x
                    if any((y.text if isinstance(y, Ins) else y).startswith('v_') for y in (x if isinstance(x, (list, tuple)) else [x]) if isinstance(y, (Ins, str))):
                        valu = True
                out.append(x)
                n += cost(x)
            if side and n == 0 and cost(side[0]) > cap:
                out.append(side.pop(0))
    return out + side


class K:
    def __init__(self, stop=None, dbg=False):
        self.p = Prog()
        self.stop = stop
        self.dbg = dbg
        self.stamps = []
        self.tail = []
        self.pads = []
        self.vP2 = 236

    def stamp(self, name):
        if os.environ.get('PROBE') == f'{name}{self.L}':
            self.p('s_memrealtime s[98:99]')
            self.p('s_waitcnt lgkmcnt(0)')
        if not self.dbg or (name not in self.dbg and name not in ('start', 'end')):
            return
        k = len(self.stamps)
        assert k < 32
        self.stamps.append(name)
        p = self.p
        p('s_memrealtime s[96:97]' if 'RT' in self.dbg else 's_memtime s[96:97]')
        if k == 0:
            p('v_readfirstlane_b32 s100, v0')
            p('s_lshr_b32 s100, s100, 6')
            p('s_lshl_b32 s101, s2, 2')
            p('s_add_u32 s100, s100, s101')
            p('s_lshl_b32 s100, s100, 7')
            p('s_add_u32 s100, s100, 0x40000')
        p('s_waitcnt lgkmcnt(0)')
        if k == 0:
            p('v_accvgpr_write_b32 a253, s96')
            return
        p('v_accvgpr_write_b32 a252, s96')
        p('s_mov_b64 exec, 1')
        p(f'buffer_store_dword a252, off, {srd(S_WS)}, s100 offset:{4*k}')
        p('s_mov_b64 exec, -1')

    def stamp_items(self, name):
        n = len(self.p.items)
        self.stamp(name)
        L = self.p.items[n:]
        del self.p.items[n:]
        return [L] if L else []

    def stamp_dump(self):
        if self.dbg:
            self.p(f'buffer_store_dword a253, off, {srd(S_WS)}, s100')

    def dma(self, srdb, voff, sreg, simm, m0, tok, sc='', n=1):
        mr, mi = m0
        L = [f's_add_u32 m0, s{mr}, {mi}' if mr is not None else f's_mov_b32 m0, {mi}',
             f's_add_u32 s{sT5}, s{sreg}, {simm}']
        for k in range(n):
            L.append(Ins(f'buffer_load_dwordx4 v{voff}, {srd(srdb)}, s{sT5} offen offset:{1024*k} {sc} lds', tok))
        return L

    @staticmethod
    def setexec(nl):
        if nl <= 32:
            return [f's_mov_b64 exec, {(1 << nl) - 1:#x}'] if nl < 32 else ['s_mov_b32 exec_hi, 0']
        return [f's_mov_b32 exec_hi, {(1 << (nl - 32)) - 1:#x}']

    def poll_loop(self, voff, soff, nl, imm=0):
        p = self.p
        lp, lo = p.newlabel('poll'), p.newlabel('pollout')
        return self.setexec(nl) + [f's_mov_b32 s{sCNT}, 0', Label(lp),
                f'buffer_load_dwordx2 {vr(vT + 14, 2)}, v{voff}, {srd(S_WS)}, {soff} offen offset:{imm} sc1',
                f's_add_u32 s{sCNT}, s{sCNT}, 1', f's_cmp_gt_u32 s{sCNT}, {POLL_MAX}', f's_cbranch_scc1 {lo}',
                's_waitcnt vmcnt(0)', f'v_cmp_ne_u64 vcc, s[{sF}:{sF+1}], {vr(vT + 14, 2)}', f's_cbranch_vccnz {lp}',
                Label(lo), 's_mov_b64 exec, -1']

    def poll_first(self, voff, soff, nl):
        self.p.ext(self.peek_issue(voff, soff, nl))

    def vpoll(self, voff, soff, nl, acquire=True):
        p = self.p
        lp, lo = p.newlabel('poll'), p.newlabel('pollout')
        ra, rb = vr(vT + 14, 2), vr(self.vP2, 2)
        ldf = lambda r: f'buffer_load_dwordx2 {r}, v{voff}, {srd(S_WS)}, {soff} offen sc1'
        p.ext(self.setexec(nl) + [f's_mov_b32 s{sCNT}, 0', Label(lp), ldf(rb),
               f's_add_u32 s{sCNT}, s{sCNT}, 1', f's_cmp_gt_u32 s{sCNT}, {POLL_MAX}', f's_cbranch_scc1 {lo}',
               f'v_cmp_ne_u64 vcc, s[{sF}:{sF+1}], {ra}', f's_cbranch_vccz {lo}', ldf(ra),
               f'v_cmp_ne_u64 vcc, s[{sF}:{sF+1}], {rb}', f's_cbranch_vccnz {lp}', Label(lo), 's_mov_b64 exec, -1'])
        if acquire:
            lslow, lback = p.newlabel('acq'), p.newlabel('acqback')
            p(f's_cmp_lg_u32 s{sPURE}, 0')
            p(f's_cbranch_scc0 {lslow}')
            p.label(lback)
            self.tail.append((lslow, ['buffer_inv sc1', 's_waitcnt vmcnt(0)', f's_branch {lback}']))
        p.mark('drained_vm')

    def peek_issue(self, voff, soff, nl, imm=0):
        return [self.setexec(nl) + [f'buffer_load_dwordx2 {vr(vT + 14, 2)}, v{voff}, {srd(S_WS)}, {soff} offen offset:{imm} sc1',
                                    's_mov_b64 exec, -1']]

    def peek_check(self, voff, soff, nl, imm=0, acquire=True):
        p = self.p
        lslow, lback, lacq = p.newlabel('peek'), p.newlabel('peekback'), p.newlabel('peekacq')
        self.tail.append((lslow, self.poll_loop(voff, soff, nl, imm) +
                          [f's_cmp_lg_u32 s{sPURE}, 0', f's_cbranch_scc1 {lback}', 'buffer_inv sc1', 's_waitcnt vmcnt(0)',
                           f's_branch {lback}']))
        return [[Touch(vr(vT + 14, 2))] + self.setexec(nl) +
                [f'v_cmp_ne_u64 vcc, s[{sF}:{sF+1}], {vr(vT + 14, 2)}', 's_mov_b64 exec, -1',
                 f's_or_b64 vcc, vcc, s[{sIMP}:{sIMP+1}]' if acquire else 's_or_b64 vcc, vcc, vcc', f's_cbranch_scc1 {lslow}', Label(lback)]]

    def publish_items(self, toks, soff, imm=0, post=()):
        p = self.p
        lslow, lback = p.newlabel('pubslow'), p.newlabel('pubback')
        self.tail.append((lslow, [
            'buffer_wbl2 sc1', 's_waitcnt vmcnt(0)',
            f'buffer_store_dwordx2 {vr(vF, 2)}, off, {srd(S_WS)}, s{soff} offset:{imm} sc1',
            f's_branch {lback}']))
        return [[Wait(toks), 's_mov_b64 exec, 1', f's_cmp_lg_u32 s{sPURE}, 0', f's_cbranch_scc0 {lslow}',
                 f'buffer_store_dwordx2 {vr(vF, 2)}, off, {srd(S_WS)}, s{soff} offset:{imm}', Label(lback), 's_mov_b64 exec, -1']] + list(post)

    def publish(self, toks, soff, imm=0):
        self.p.ext(self.publish_items(toks, soff, imm))

    def flag_sc1(self, soff):
        return ['s_mov_b64 exec, 1', f'buffer_store_dwordx2 {vr(vF,2)}, off, {srd(S_WS)}, s{soff} sc1', 's_mov_b64 exec, -1']

    def flag_opt(self, soff):
        p = self.p
        l = p.newlabel('noflag')
        p(f's_cmp_eq_u32 s{soff}, -1')
        p(f's_cbranch_scc1 {l}')
        p.mark('maybe_begin')
        p.ext(self.flag_sc1(soff))
        p.mark('maybe_end')
        p.label(l)

    def stats_loads(self, soff, dst):
        return [f'buffer_load_dwordx2 {vr(dst + 2*i, 2)}, v{vSTA}, {srd(S_WS)}, s{soff} offen offset:{256*i} sc1' for i in range(7)]

    def stats_reduce(self, src):
        L = []
        for i in range(1, 7):
            L.append(f'v_add_f32 v{src}, v{src}, v{src+2*i}')
            L.append(f'v_add_f32 v{src+1}, v{src+1}, v{src+2*i+1}')
        s, q, t0, t1 = src, src + 1, src + 2, src + 3
        return L + [
            f'v_mov_b32 v{t0}, v{s}', f'v_mov_b32 v{t1}, v{q}', 's_nop 0',
            f'v_permlane32_swap_b32 v{s}, v{t0}', f'v_permlane32_swap_b32 v{q}, v{t1}',
            f'v_add_f32 v{s}, v{s}, v{t0}', f'v_add_f32 v{q}, v{q}, v{t1}',
            f'v_mul_f32 v{vMEAN}, {f32bits(-1.0/448):#x}, v{s}',
            f'v_mul_f32 v{q}, {f32bits(1.0/448):#x}, v{q}',
            f'v_fma_f32 v{q}, -v{vMEAN}, v{vMEAN}, v{q}',
            f'v_max_f32 v{q}, 0, v{q}',
            f'v_add_f32 v{q}, {f32bits(1e-5):#x}, v{q}',
            f'v_rsq_f32 v{vRSTD}, v{q}',
        ]

    def off(self, dst, idx_reg, mul, add):
        return [f's_mul_i32 s{dst}, s{idx_reg}, {mul}', f's_add_u32 s{dst}, s{dst}, s{sLB}', f's_add_u32 s{dst}, s{dst}, {add}']

    def xoff(self, dst, idx_reg, mul, add):
        return [f's_add_u32 s{sT3}, s{sLB}, {add}', f's_add_u32 s{sT4}, s{sTB}, {O_XA}', f's_cmp_lg_u32 s{sPURE}, 0',
                f's_cselect_b32 s{sT3}, s{sT4}, s{sT3}', f's_mul_i32 s{dst}, s{idx_reg}, {mul}', f's_add_u32 s{dst}, s{dst}, s{sT3}']

    def roff(self, dst, idx_reg, mul, add):
        return [f's_cmp_lg_u32 s{sPURE}, 0', f's_cselect_b32 s{sT3}, s{sTB}, s{sLB}',
                f's_mul_i32 s{dst}, s{idx_reg}, {mul}', f's_add_u32 s{dst}, s{dst}, s{sT3}', f's_add_u32 s{dst}, s{dst}, {add}']

    def pub_offsets(self, xoff, stoff, foff):
        return [f's_lshl_b32 s{sT0}, s{sRB}, 1', f's_add_u32 s{sT0}, s{sT0}, s{sRHO}',
                f's_lshl_b32 s{sT1}, s{sCB}, 1', f's_add_u32 s{sT1}, s{sT1}, s{sNU}',
                f's_mul_i32 s{sT2}, s{sT0}, 14', f's_add_u32 s{sT2}, s{sT2}, s{sT1}'] + \
            self.xoff(sXD, sT2, 2048, xoff) + self.off(sXS, sT2, 256, stoff) + \
            [f's_lshl_b32 s{sT0}, s{sT0}, 4', f's_add_u32 s{sT0}, s{sT0}, s{sT1}'] + self.off(sXF, sT0, 8, foff) + \
            [f's_cmp_ge_u32 s{sM}, 28'] + [f's_cselect_b32 s{r}, {WS_PUR}, s{r}' for r in (sXD, sXS, sXF)]

    def x_store(self, P, va, offs, sc=''):
        p = self.p
        S, Q2, t0, t1 = vT + 6, vT + 7, vT + 8, vT + 9
        for k in range(2):
            p(f'buffer_store_dwordx4 {vr(P+4*k)}, v{va}, {srd(S_WS)}, s{sXD} offen offset:{offs[k]} {sc}', tok='xst')
        p(f'v_mov_b32 v{t0}, s{sONES}')
        p(f'v_dot2_f32_bf16 v{S}, v{P}, v{t0}, 0')
        p(f'v_dot2_f32_bf16 v{Q2}, v{P}, v{P}, 0')
        for i in range(1, 8):
            p(f'v_dot2_f32_bf16 v{S}, v{P+i}, v{t0}, v{S}')
            p(f'v_dot2_f32_bf16 v{Q2}, v{P+i}, v{P+i}, v{Q2}')
        p(f'v_mov_b32 v{t0}, v{S}')
        p(f'v_mov_b32 v{t1}, v{Q2}')
        p(f'v_permlane32_swap_b32 v{S}, v{t0}')
        p(f'v_permlane32_swap_b32 v{Q2}, v{t1}')
        p(f'v_add_f32 v{S}, v{S}, v{t0}')
        p(f'v_add_f32 v{Q2}, v{Q2}, v{t1}')
        p('s_mov_b32 exec_hi, 0')
        p(f'buffer_store_dwordx2 {vr(S,2)}, v{vL8}, {srd(S_WS)}, s{sXS} offen {sc}', tok='xst')
        p('s_mov_b64 exec, -1')

    def res_unpack(self, P):
        L = []
        for q in range(8):
            L.append(f'v_lshlrev_b32 v{vRES+2*q}, 16, v{P+q}')
            L.append(f'v_and_b32 v{vRES+2*q+1}, 0xffff0000, v{P+q}')
        return L

    def prefetch(self, v128, sreg, base, nbytes):
        L = []
        o = 0
        while o < nbytes:
            oo = min(o, nbytes - 8192)
            L += [f's_add_u32 s{sT5}, s{sreg}, {base + oo}', f'buffer_load_dword a255, v{v128}, {srd(S_WS)}, s{sT5} offen sc1']
            o += 8192
        return L

    def touch(self, v128, sreg, imm, nlines):
        L = [f's_add_u32 s{sT5}, s{sreg}, {imm}']
        if nlines < 64:
            L += self.setexec(nlines)
        L.append(f'buffer_load_dword a255, v{v128}, {srd(S_WS)}, s{sT5} offen sc1')
        if nlines < 64:
            L.append('s_mov_b64 exec, -1')
        return [L]

    def w1_dma(self, part):
        sg, sl = sPOLL, sPOLL + 1
        per, base = ((13, 0), (11, 55296))[part]
        L = [f's_mul_i32 s{sg}, s{sJ}, 100352', f's_mul_i32 s{sl}, s{sW}, {per*1024}', f's_add_u32 s{sg}, s{sg}, s{sl}']
        for o in range(0, per, 4):
            d = self.dma(S_WS, vL16, sg, W1T + base + o * 1024, (sl, LW1 + base + o * 1024), 'w1', 'sc1', min(4, per - o))
            L += [d[:3]] + d[3:]
        if part == 0:
            L += [f's_sub_u32 s{sg}, s{sg}, s{sl}', f's_lshl_b32 s{sl}, s{sNU}, 10', f's_add_u32 s{sg}, s{sg}, s{sl}']
            L.append(self.dma(S_WS, vL16, sg, W1T + 52 * 1024, (sl, LW1 + 52 * 1024), 'w1', 'sc1', 1))
        return L

    def w2_setup(self, sbase, vz):
        return [f's_lshl_b32 s{sbase}, s{sCB}, 2', f's_add_u32 s{sbase}, s{sbase}, s{sW}', f's_mul_i32 s{sbase}, s{sbase}, 57344',
                f's_lshl_b32 s{sT1}, s{sNU}, 10', f'v_xor_b32 v{vz[0]}, s{sT1}, v{vL16}', f'v_xor_b32 v{vz[1]}, 1024, v{vz[0]}']

    def w2_loads(self, sbase, vz):
        L = []
        for sl in range(4):
            pre = [f's_add_u32 s{sT3}, {ROT}, {sl}', f's_and_b32 s{sT3}, s{sT3}, 3', f's_mul_i32 s{sT3}, s{sT3}, 14336',
                   f's_add_u32 s{sT3}, s{sT3}, s{sbase}']
            for sg in range(7):
                ks = 7 * sl + sg
                g = pre + [f's_add_u32 s{sT4}, s{sT3}, {W2T + sg*2048}',
                           f'buffer_load_dwordx4 {ar(ks*8)}, v{vz[0]}, {srd(S_WS)}, s{sT4} offen sc1']
                pre = []
                L += [g, f'buffer_load_dwordx4 {ar(ks*8+4)}, v{vz[1]}, {srd(S_WS)}, s{sT4} offen sc1']
        return L

    def lane_consts(self):
        p = self.p
        t0, t1 = vT + 6, vT + 7
        p(f'v_add_u32 v{vA1}, 57344, v{vL16}')
        p(f'v_and_b32 v{vSTA}, 31, v{vL}')
        p(f'v_lshlrev_b32 v{vSTA}, 3, v{vSTA}')
        p(f'v_lshrrev_b32 v{t0}, 5, v{vL}')
        p(f'v_mul_u32_u24 v{t1}, {7*256}, v{t0}')
        p(f'v_add_u32 v{vSTA}, v{vSTA}, v{t1}')
        p(f'v_lshrrev_b32 v{vFLG}, 2, v{vL}')
        p(f'v_lshlrev_b32 v{vFLG}, 7, v{vFLG}')
        p(f'v_and_b32 v{t1}, 3, v{vL}')
        p(f'v_lshl_add_u32 v{vFLG}, v{t1}, 3, v{vFLG}')
        for x in range(1, 4):
            p(f's_xor_b32 s{sT0}, s{sW}, {x}')
            p(f's_mul_i32 s{sT0}, s{sT0}, 12288')
            p(f's_add_u32 s{sT0}, s{sT0}, {LKV + (x-1)*4096}')
            p(f'v_add_u32 v{vRW+x-1}, s{sT0}, v{vL16}')
        p(f's_mul_i32 s{sT0}, s{sW}, 12288')
        p(f's_add_u32 s{sT0}, s{sT0}, {LKV}')
        p(f'v_add_u32 v{vRW+3}, s{sT0}, v{vL16}')
        p(f'v_bfe_u32 v{vX1A}, v{vL}, 4, 1')
        p(f'v_lshlrev_b32 v{vX1A}, 10, v{vX1A}')
        p(f'v_lshl_add_u32 v{vX1A}, v{t0}, 8, v{vX1A}')
        p(f'v_and_b32 v{t1}, 15, v{vL}')
        p(f'v_lshl_add_u32 v{vX1A}, v{t1}, 4, v{vX1A}')

    def pad(self):
        p = self.p
        k = len(self.pads)
        self.pads.append(f'L_pad{k}')
        p(f's_branch L_padskip{k}')
        p.label(f'L_pad{k}')
        p('s_setpc_b64 s[98:99]')
        p.label(f'L_padskip{k}')

    def emit_walker(self):
        L = []
        labs = [f'L_walk{w}' for w in range(4)]
        for w in range(1, 4):
            L += [Ins(f's_cmp_eq_u32 s{sW}, {w}'), Ins(f's_cbranch_scc1 {labs[w]}')]
        for w in range(4):
            if w:
                L.append(Label(labs[w]))
            for x in self.pads[w::4]:
                L.append(Ins(f's_call_b64 s[98:99], {x}'))
            if w < 3:
                L.append(Ins('s_branch L_walkend'))
        L.append(Label('L_walkend'))
        self.p.items[self.walker_at:self.walker_at] = L

    def rawq(self, tau, i):
        return (self.dma(S_WQ, self.vDQ, sRQ, (448, 896, 0)[tau] * 2 + i * 16 * 2688, (sLQ, tau * 28672 + i * 1024), f'rq{tau}{i}'))

    def xform(self, tau, R, vcs, vones, between=None):
        p = self.p

        def fin(i):
            p(f'ds_write_b128 v{self.vWQ}, {vr(R+4*i)} offset:{tau*28672+i*1024}')
            for q in range(4):
                p(f'v_dot2_f32_bf16 v{vcs}, v{R+4*i+q}, v{vones}, {f"v{vcs}" if i or q else 0}')
        for i in range(7):
            p.wait(f'rq{tau}{i}')
            for jj in range(2):
                p(f'ds_read_b64_tr_b16 {vr(R+4*i+2*jj,2)}, v{self.vTQ} offset:{tau*28672+i*1024+jj*512}')
            if between:
                between(i)
            if i >= 1:
                fin(i - 1)
        fin(6)

    def cs_partial(self, taus, vcs, t2, t3):
        p = self.p
        for k, tau in enumerate(taus):
            p(f'v_mov_b32 v{t2}, v{vcs+k}')
            p(f'v_permlane32_swap_b32 v{vcs+k}, v{t2}')
            p(f'v_add_f32 v{vcs+k}, v{vcs+k}, v{t2}')
        p(f'v_and_b32 v{t2}, 31, v{vL}')
        p(f'v_lshlrev_b32 v{t2}, 2, v{t2}')
        p(f's_lshl_b32 s{sT0}, s{sW}, 8')
        p(f's_add_u32 s{sT0}, s{sT0}, {L_CSP}')
        p(f'v_add_u32 v{t3}, s{sT0}, v{t2}')
        for k, tau in enumerate(taus):
            p(f'ds_write_b32 v{t3}, v{vcs+k} offset:{k*128}')

    def cs_sum(self, taus, R, t2, t3):
        p = self.p
        p(f'v_add_u32 v{t3}, {L_CSP}, v{t2}')
        for k, tau in enumerate(taus):
            for w in range(4):
                p(f'ds_read_b32 v{R+4*k+w}, v{t3} offset:{w*256+k*128}')
        p(f'v_add_u32 v{t3}, {L_CSQ}, v{t2}')
        for k, tau in enumerate(taus):
            r = R + 4 * k
            p(f'v_add_f32 v{r}, v{r}, v{r+1}')
            p(f'v_add_f32 v{r+2}, v{r+2}, v{r+3}')
            p(f'v_add_f32 v{r}, v{r}, v{r+2}')
            p(f'ds_write_b32 v{t3}, v{r} offset:{tau*128}')
        p('s_waitcnt lgkmcnt(0)')

    def prologue(self):
        p = self.p
        t0, t1, t2, t3 = vT, vT + 1, vT + 2, vT + 3
        self.vDQ, self.vTQ, self.vWQ = vDQ, vTQ, vWQ = vT + 10, vT + 11, vT + 12
        p('s_cmp_ge_u32 s2, 256')
        p('s_cbranch_scc1 L_end')
        p(f's_load_dwordx16 s[{sO}:{sO+15}], s[0:1], 0')
        p(f's_load_dwordx2 s[{S_WSP}:{S_WSP+1}], s[0:1], 64')
        p(f's_getpc_b64 s[{sT0}:{sT0+1}]')
        p.label('L_pc')
        p(f'v_lshlrev_b32 v{t2}, 7, v0')
        p(f'global_load_dword a255, v{t2}, s[{sT0}:{sT0+1}]')
        p(f'v_add_u32 v{t2}, 0x8000, v{t2}')
        p(f'v_min_u32 v{t2}, L_codeend-L_pc, v{t2}')
        p(f'global_load_dword a255, v{t2}, s[{sT0}:{sT0+1}]')
        if os.environ.get('CALIB'):
            p('s_memrealtime s[100:101]')
        self.stamp('start')
        p(f'v_lshrrev_b32 v{vT}, 6, v0')
        p(f'v_and_b32 v{vL}, 63, v0')
        p(f'v_readfirstlane_b32 s{sW}, v{vT}')
        p(f's_lshr_b32 s{sM}, s2, 3')
        p(f's_and_b32 s{sTEAM}, s2, 7')
        if PERM:
            p(f's_lshr_b32 s{sT0}, s{sTEAM}, 1')
            p(f's_and_b32 s{sT0}, s{sT0}, 2')
            p(f's_xor_b32 s{sTEAM}, s{sTEAM}, s{sT0}')
        p(f's_mul_i32 s{sRB}, s{sM}, 37')
        p(f's_lshr_b32 s{sRB}, s{sRB}, 8')
        p(f's_mul_i32 s{sT0}, s{sRB}, 7')
        p(f's_sub_u32 s{sCB}, s{sM}, s{sT0}')
        p(f's_lshr_b32 s{sRHO}, s{sW}, 1')
        p(f's_and_b32 s{sNU}, s{sW}, 1')
        p(f's_lshl_b32 s{sT0}, s{sTEAM}, 2')
        p(f's_add_u32 s{sT0}, s{sT0}, s{sRB}')
        p(f's_lshl_b32 s{sT1}, s{sT0}, 1')
        p(f's_add_u32 s{sT1}, s{sT1}, s{sRHO}')
        p(f's_mul_i32 s{sQOFF}, s{sT1}, {32*896}')
        p(f's_lshl_b32 s{sT1}, s{sCB}, 7')
        p(f's_add_u32 s{sQOFF}, s{sQOFF}, s{sT1}')
        p(f's_lshl_b32 s{sT1}, s{sNU}, 6')
        p(f's_add_u32 s{sQOFF}, s{sQOFF}, s{sT1}')
        vPK, vPQ, vH = vT + 14, vT + 15, vT + 13
        p(f'v_and_b32 v{t3}, 31, v{vL}')
        p(f'v_mul_u32_u24 v{t3}, 896, v{t3}')
        p(f'v_lshrrev_b32 v{vH}, 5, v{vL}')
        p(f'v_lshl_add_u32 v{t3}, v{vH}, 4, v{t3}')
        p(f's_lshl_b32 s{sT2}, s{sM}, 2')
        p(f's_add_u32 s{sT2}, s{sT2}, s{sW}')
        p(f's_mul_i32 s{sT3}, s{sT2}, 49')
        p(f'v_add_u32 v{t2}, s{sT3}, v{vL}')
        p(f'v_mul_u32_u24 v{vPK}, 74899, v{t2}')
        p(f'v_lshrrev_b32 v{vPK}, 20, v{vPK}')
        p(f'v_mul_u32_u24 v{vPK}, 7, v{vPK}')
        p(f'v_add_u32 v{vPK}, v{vPK}, v{t2}')
        p(f'v_lshlrev_b32 v{vPK}, 7, v{vPK}')
        b = sO

        def mksrd(d, src, n):
            p(f's_mov_b32 s{d}, s{src}')
            p(f's_and_b32 s{d+1}, s{src+1}, 0xffff')
            p(f's_mov_b32 s{d+2}, {n}')
            p(f's_mov_b32 s{d+3}, 0x20000')
        mksrd(S_X, b, 1835008)
        mksrd(S_WQ, b + 2, 1204224)
        XR = 96
        for q in range(2):
            p(f'buffer_load_dwordx4 {vr(XR+4*q)}, v{t3}, {srd(S_X)}, s{sQOFF} offen offset:{32*q}')
        p('s_mov_b32 exec_hi, 0x1ffff')
        p(f'buffer_load_dword a255, v{vPK}, {srd(S_WQ)}, 0 offen offset:896')
        p('s_mov_b64 exec, -1')
        p(f's_load_dwordx2 s[{sF}:{sF+1}], s[{S_WSP}:{S_WSP+1}], {WS_EPOCH}')
        for (d, src, n) in ((S_WO, b + 4, 401408), (S_W1, b + 8, 1605632),
                            (S_W2, b + 10, 1605632), (S_OUT, b + 12, 1835008), (S_WS, S_WSP, WS_BYTES)):
            mksrd(d, src, n)
        p(f's_mul_i32 s{sT3}, s{sT2}, 25')
        p(f'v_add_u32 v{t2}, s{sT3}, v{vL}')
        p(f'v_mul_u32_u24 v{vPQ}, 149797, v{t2}')
        p(f'v_lshrrev_b32 v{vPQ}, 20, v{vPQ}')
        p(f'v_mul_u32_u24 v{vPQ}, 14, v{vPQ}')
        p(f'v_add_u32 v{vPQ}, v{vPQ}, v{t2}')
        p(f'v_lshlrev_b32 v{vPQ}, 7, v{vPQ}')
        p(f's_and_b32 s{sJ}, s{sM}, 15')
        p(f's_lshr_b32 s{sA}, s{sM}, 4')
        p(f'v_lshrrev_b32 v{t0}, 2, v{vL}')
        p(f'v_and_b32 v{t1}, 3, v{vL}')
        p(f'v_lshlrev_b32 v{t3}, 3, v{t1}')
        p(f'v_lshlrev_b32 v{t1}, 4, v{t1}')
        p(f'v_mul_u32_u24 v{vDQ}, 2688, v{t0}')
        p(f'v_add_u32 v{vDQ}, v{vDQ}, v{t1}')
        p(f's_mul_i32 s{sRQ}, s{sW}, {7*16*2688}')
        p(f's_mul_i32 s{sT1}, s{sJ}, 56')
        p(f's_add_u32 s{sRQ}, s{sRQ}, s{sT1}')
        p(f's_mul_i32 s{sLQ}, s{sW}, 7168')
        for i in range(KE):
            p.ext(self.rawq(0, i))
        self.stamp('ka')
        sI, sSTG = sO, sO + 1
        sFL, sDST, sJOB, sDST2 = sJFL, sO + 3, sO + 4, sO + 5

        p(f's_mul_i32 s{sLB}, s{sTEAM}, {STRIDE}')
        p(f's_add_u32 s{sLB}, s{sLB}, {TEAM0}')
        p(f's_mov_b32 s{sTB}, s{sLB}')
        p(f'v_lshlrev_b32 v{vL16}, 4, v{vL}')
        p(f'v_lshlrev_b32 v{vL8}, 3, v{vL}')
        p(f's_mov_b32 s{sONES}, 0x3f803f80')
        p(f's_mov_b32 s{sPURE}, 1')
        p(f's_mov_b64 s[{sIMP}:{sIMP+1}], 0')
        p.ext(self.pub_offsets(O_XA, O_STA, O_FXA))
        vD, vTR, vTR8 = vT + 4, vT + 5, vT + 13
        FR = 32
        p(f's_lshl_b32 s{sI}, s{sTEAM}, 1')
        p(f's_add_u32 s{sI}, s{sI}, s{sA}')
        p(f's_lshl_b32 s{sSTG}, s{sW}, 13')
        p(f's_add_u32 s{sSTG}, s{sSTG}, {LKV}')
        lA = [p.newlabel('jobA') for _ in range(4)]
        p(f's_mov_b32 s{sJOB}, 0')
        p.mark('maybe_begin')
        p(f's_cmp_ge_u32 s{sW}, 2')
        p(f's_cbranch_scc1 {lA[0]}')
        p(f's_cmp_eq_u32 s{sW}, 0')
        p(f's_cbranch_scc1 {lA[2]}')
        p(f's_cmp_ge_u32 s{sI}, 14')
        p(f's_cbranch_scc1 {lA[2]}')
        p(f'v_bfe_u32 v{vD}, v{vL}, 1, 3')
        p(f'v_bfe_u32 v{t2}, v{vL}, 4, 1')
        p(f'v_lshl_add_u32 v{vD}, v{t2}, 4, v{vD}')
        p(f'v_bfe_u32 v{t2}, v{vL}, 5, 1')
        p(f'v_lshl_add_u32 v{vD}, v{t2}, 3, v{vD}')
        p(f'v_mul_u32_u24 v{vD}, 3584, v{vD}')
        p(f'v_and_b32 v{t2}, 1, v{vL}')
        p(f'v_lshl_add_u32 v{vD}, v{t2}, 4, v{vD}')
        p(f's_mul_i32 s{sT0}, s{sI}, {32*3584}')
        p(f's_mul_i32 s{sT1}, s{sJ}, 224')
        p(f's_add_u32 s{sT0}, s{sT0}, s{sT1}')
        for t in range(7):
            p.ext(self.dma(S_W1, vD, sT0, t * 32, (sSTG, t * 1024), 'raw'))
        p(f's_mov_b32 s{sJOB}, 2')
        p(f's_waitcnt vmcnt({8 + KE})')
        p(f's_branch {lA[3]}')
        p.label(lA[0])
        p(f'v_mul_u32_u24 v{vD}, 896, v{t0}')
        p(f'v_add_u32 v{vD}, v{vD}, v{t1}')
        p(f's_cmp_ge_u32 s{sM}, 28')
        p(f's_cbranch_scc1 {lA[1]}')
        sI2, sSL, sHF = sT2, sT3, sT4
        p(f's_lshl_b32 s{sI2}, s{sTEAM}, 2')
        p(f's_add_u32 s{sI2}, s{sI2}, s{sRB}')
        p(f's_lshr_b32 s{sSL}, s{sI2}, 1')
        p(f's_and_b32 s{sHF}, s{sI2}, 1')
        p(f's_mul_i32 s{sT0}, s{sSL}, {112*896}')
        p(f's_mul_i32 s{sT1}, s{sHF}, {64*896}')
        p(f's_add_u32 s{sT0}, s{sT0}, s{sT1}')
        p(f's_lshl_b32 s{sT1}, s{sCB}, 7')
        p(f's_add_u32 s{sT0}, s{sT0}, s{sT1}')
        p(f's_lshl_b32 s{sT1}, s{sNU}, 6')
        p(f's_add_u32 s{sT0}, s{sT0}, s{sT1}')
        for k in range(4):
            p.ext(self.dma(S_W2, vD, sT0, k * 16 * 896, (sSTG, k * 1024), 'raw'))
        p(f's_add_u32 s{sJOB}, s{sHF}, 3')
        p(f's_waitcnt vmcnt({5 + KE})')
        p(f's_branch {lA[3]}')
        p.label(lA[1])
        p(f's_cmp_eq_u32 s{sTEAM}, 7')
        p(f's_cbranch_scc1 {lA[2]}')
        p(f's_mul_i32 s{sT0}, s{sCB}, {112*896}')
        p(f's_lshl_b32 s{sT1}, s{sTEAM}, 7')
        p(f's_add_u32 s{sT0}, s{sT0}, s{sT1}')
        p(f's_lshl_b32 s{sT1}, s{sNU}, 6')
        p(f's_add_u32 s{sT0}, s{sT0}, s{sT1}')
        for k in range(8):
            p.ext(self.dma(S_WO, vD, sT0, k * 16 * 896, (sSTG, k * 1024), 'raw'))
        p(f's_mov_b32 s{sJOB}, 5')
        p.label(lA[2])
        p(f's_waitcnt vmcnt({1 + KE})')
        p.mark('maybe_end')
        p.label(lA[3])
        self.stamp('jA')
        p.mark('drained_vm')
        for q in range(2):
            p(f'v_permlane32_swap_b32 v{XR+4*q}, v{XR+4*q+2}')
            p(f'v_permlane32_swap_b32 v{XR+4*q+1}, v{XR+4*q+3}')
        lp0 = p.newlabel('p0skip')
        p(f's_cmp_ge_u32 s{sM}, 28')
        p(f's_cselect_b32 s{sXF}, -1, s{sXF}')
        p(f's_cbranch_scc1 {lp0}')
        p.mark('drained_vm')
        self.x_store(XR, vL16, (0, 1024), 'sc1')
        p.label(lp0)
        p(f's_lshl_b32 s{sTP}, s{sA}, 2')
        p(f's_add_u32 s{sTP}, s{sTP}, s{sW}')
        p.mark('drained_vm')
        for i in range(KE, 7):
            p.ext(self.rawq(0, i))
        for i in range(7):
            p.ext(self.rawq(1, i))
        p('s_mov_b64 exec, 0x1ffffff')
        p(f'buffer_load_dword a255, v{vPQ}, {srd(S_WQ)}, 0 offen')
        p('s_mov_b64 exec, -1')
        self.stamp('x0')
        p(f'v_bfe_u32 v{t2}, v{vL}, 4, 1')
        p(f'v_lshl_add_u32 v{t2}, v{t2}, 5, v{t3}')
        p(f'v_bfe_u32 v{vTR}, v{vL}, 2, 2')
        p(f'v_lshl_add_u32 v{t2}, v{vTR}, 6, v{t2}')
        p(f'v_lshl_add_u32 v{vTQ}, v{vH}, 8, v{t2}')
        p(f'v_add_u32 v{vTR}, s{sSTG}, v{vTQ}')
        p(f'v_add_u32 v{t2}, s{sSTG}, v{t2}')
        p(f'v_lshl_add_u32 v{vTR8}, v{vH}, 9, v{t2}')
        p(f'v_add_u32 v{vTQ}, s{sLQ}, v{vTQ}')
        p(f'v_add_u32 v{vWQ}, s{sLQ}, v{vL16}')
        p(f's_mov_b32 s{sPERM}, 0x07060302')
        self.lane_consts()
        vCSP = 104
        p(f'v_mov_b32 v{vCSP+3}, s{sONES}')
        p.ext(self.res_unpack(XR))
        p('s_waitcnt lgkmcnt(0)')
        p(f's_add_u32 s{sF}, s{sF}, 1')
        p(f's_addc_u32 s{sF+1}, s{sF+1}, 0')
        p(f'v_mov_b32 v{vF}, s{sF}')
        p(f'v_mov_b32 v{vF+1}, s{sF+1}')
        p(f's_waitcnt vmcnt({15 - KE})')
        self.stamp('rt1')
        self.flag_opt(sXF)
        p(f's_getreg_b32 s{sT0}, hwreg(HW_REG_XCC_ID)')
        p(f's_and_b32 s{sT0}, s{sT0}, 15')
        p(f's_lshl_b32 s{sT0}, s{sT0}, 28')
        p(f's_xor_b32 s{sT0}, s{sT0}, s{sF+1}')
        p(f'v_mov_b32 v{vT+6}, s{sF}')
        p(f'v_mov_b32 v{vT+7}, s{sT0}')
        p(f's_lshl_b32 s{sT1}, s{sTEAM}, 8')
        p(f's_lshl_b32 s{sT2}, s{sM}, 3')
        p(f's_add_u32 s{sT1}, s{sT1}, s{sT2}')
        p(f's_add_u32 s{sT1}, s{sT1}, {WS_PUR}')
        lx = p.newlabel('noxcc')
        p(f's_cmp_lg_u32 s{sW}, 0')
        p(f's_cbranch_scc1 {lx}')
        p.mark('maybe_begin')
        p('s_mov_b64 exec, 1')
        p(f'buffer_store_dwordx2 {vr(vT+6,2)}, off, {srd(S_WS)}, s{sT1} sc1')
        p('s_mov_b64 exec, -1')
        p.mark('maybe_end')
        p.label(lx)
        self.xform(0, 128, vCSP, vCSP + 3)
        self.walker_at = len(p.items)
        self.stamp('xf0')
        self.xform(1, 160, vCSP + 1, vCSP + 3)
        self.cs_partial((0, 1), vCSP, vT + 6, vT + 7)

        def finish(nfr, offs):
            L = []
            base = None
            for k in range(nfr):
                hi, lo = offs[k] // 4096 * 4096, offs[k] % 4096
                if hi != base:
                    L.append(f's_add_u32 s{sT5}, s{sDST}, {hi}')
                    base = hi
                L.append(f'buffer_store_dwordx4 {vr(FR+4*k)}, v{vL16}, {srd(S_WS)}, s{sT5} offen offset:{lo} sc1')
            return L
        lB = {k: p.newlabel('jobB') for k in (3, 4, 5, 'join')}
        p(f's_mov_b32 s{sFL}, -1')
        p.mark('maybe_begin')
        p(f's_cmp_eq_u32 s{sJOB}, 0')
        p(f's_cbranch_scc1 {lB["join"]}')
        p(f's_cmp_eq_u32 s{sJOB}, 5')
        p(f's_cbranch_scc1 {lB[5]}')
        p(f's_cmp_ge_u32 s{sJOB}, 3')
        p(f's_cbranch_scc1 {lB[3]}')
        p(f'v_lshl_add_u32 v{vTR}, v{t0}, 5, v{t3}')
        p(f'v_add_u32 v{vTR}, s{sSTG}, v{vTR}')
        for t in range(7):
            for jj in range(2):
                p(f'ds_read_b64_tr_b16 {vr(FR+t*4+2*jj,2)}, v{vTR} offset:{t*1024+jj*512}')
        p(f's_mul_i32 s{sDST}, s{sJ}, 100352')
        p(f's_add_u32 s{sDST}, s{sDST}, {W1T}')
        p(f's_mul_i32 s{sDST2}, s{sI}, 3072')
        p(f's_add_u32 s{sDST2}, s{sDST2}, s{sDST}')
        p(f's_add_u32 s{sDST2}, s{sDST2}, 57344')
        p(f's_lshl_b32 s{sT0}, s{sI}, 12')
        p(f's_add_u32 s{sDST}, s{sDST}, s{sT0}')
        p(f's_lshl_b32 s{sFL}, s{sJ}, 4')
        p(f's_add_u32 s{sFL}, s{sFL}, s{sI}')
        p(f's_lshl_b32 s{sFL}, s{sFL}, 3')
        p(f's_add_u32 s{sFL}, s{sFL}, {F_W1}')
        p.ext(finish(4, [t * 1024 for t in range(4)]))
        for t in range(4, 7):
            p(f'buffer_store_dwordx4 {vr(FR+4*t)}, v{vL16}, {srd(S_WS)}, s{sDST2} offen offset:{(t-4)*1024} sc1')
        p(f's_branch {lB["join"]}')
        p.label(lB[3])
        for sg in range(2):
            for jj in range(2):
                p(f'ds_read_b64_tr_b16 {vr(FR+sg*4+2*jj,2)}, v{vTR} offset:{(16*jj+8*sg)*64}')
        p(f's_lshl_b32 s{sI2}, s{sTEAM}, 2')
        p(f's_add_u32 s{sI2}, s{sI2}, s{sRB}')
        p(f's_lshr_b32 s{sSL}, s{sI2}, 1')
        p(f's_and_b32 s{sHF}, s{sI2}, 1')
        p(f's_mul_i32 s{sDST}, s{sCB}, 229376')
        p(f's_mul_i32 s{sT0}, s{sSL}, 14336')
        p(f's_add_u32 s{sDST}, s{sDST}, s{sT0}')
        p(f's_lshl_b32 s{sT0}, s{sHF}, 13')
        p(f's_add_u32 s{sDST}, s{sDST}, s{sT0}')
        p(f's_lshl_b32 s{sT0}, s{sNU}, 10')
        p(f's_add_u32 s{sDST}, s{sDST}, s{sT0}')
        p(f's_add_u32 s{sDST}, s{sDST}, {W2T}')
        p(f's_lshl_b32 s{sFL}, s{sCB}, 5')
        p(f's_add_u32 s{sFL}, s{sFL}, s{sI2}')
        p(f's_lshl_b32 s{sFL}, s{sFL}, 1')
        p(f's_add_u32 s{sFL}, s{sFL}, s{sNU}')
        p(f's_lshl_b32 s{sFL}, s{sFL}, 3')
        p(f's_add_u32 s{sFL}, s{sFL}, {F_W2}')
        p(f's_cmp_eq_u32 s{sJOB}, 4')
        p(f's_cbranch_scc1 {lB[4]}')
        for sg in range(2, 4):
            for jj in range(2):
                p(f'ds_read_b64_tr_b16 {vr(FR+sg*4+2*jj,2)}, v{vTR} offset:{(32+16*jj+8*(sg%2))*64}')
        p.ext(finish(4, [k * 2048 for k in range(4)]))
        p(f's_branch {lB["join"]}')
        p.label(lB[4])
        for jj in range(2):
            p(f'ds_read_b64_tr_b16 {vr(FR+8+2*jj,2)}, v{vTR8} offset:{(32+4*jj)*64}')
        p('s_waitcnt lgkmcnt(0)')
        p.ext(finish(3, [k * 2048 for k in range(3)]))
        p(f's_branch {lB["join"]}')
        p.label(lB[5])
        for hd in range(4):
            for kp in range(2):
                for jj in range(2):
                    p(f'ds_read_b64_tr_b16 {vr(FR+(hd*2+kp)*4+2*jj,2)}, v{vTR} offset:{(28*hd+16*kp+8*jj)*64}')
        p(f's_lshl_b32 s{sFL}, s{sTEAM}, 2')
        p(f's_add_u32 s{sFL}, s{sFL}, s{sCB}')
        p(f's_lshl_b32 s{sDST}, s{sFL}, 14')
        p(f's_lshl_b32 s{sT0}, s{sNU}, 10')
        p(f's_add_u32 s{sDST}, s{sDST}, s{sT0}')
        p(f's_add_u32 s{sDST}, s{sDST}, {WOT}')
        p(f's_lshl_b32 s{sFL}, s{sFL}, 1')
        p(f's_add_u32 s{sFL}, s{sFL}, s{sNU}')
        p(f's_lshl_b32 s{sFL}, s{sFL}, 3')
        p(f's_add_u32 s{sFL}, s{sFL}, {F_WO}')
        p('s_waitcnt lgkmcnt(0)')
        p('s_mov_b32 exec_lo, 0')
        for hd in range(4):
            p(f'v_mov_b32 v{FR+(hd*2+1)*4+2}, 0')
            p(f'v_mov_b32 v{FR+(hd*2+1)*4+3}, 0')
        p('s_mov_b64 exec, -1')
        p.ext(finish(8, [k * 2048 for k in range(8)]))
        p.mark('maybe_end')
        p.label(lB['join'])
        self.stamp('jB')
        p('s_waitcnt lgkmcnt(0)')
        p('s_barrier')
        self.stamp('bar')
        self.cs_sum((0, 1), 108, vT + 6, vT + 7)
        self.stamp('pro')

    def p1(self):
        p, L0 = self.p, self.L == 0
        X, ACC, RING, CS = 32, 144, 192, 224
        accK, accV, accQ = ACC, ACC + 16, ACC + 32
        PK, PV = vT, vT + 8
        sXO, sST, sFX, sKV, sKF = sO, sO + 7, sO + 8, sO + 9, sO + 10
        p.ext(self.off(sFX, sTP, 128, O_FXA))
        if not L0:
            self.poll_first(vL8, f's{sFX}', 14)
        p.ext(self.xoff(sXO, sTP, 28672, O_XA))
        for g in range(1, 7):
            p(f's_add_u32 s{sXO+g}, s{sXO}, {4096*g}')
        p.ext(self.off(sST, sTP, 3584, O_STA))
        p(f's_lshl_b32 s{sT0}, s{sJ}, 3')
        p(f's_add_u32 s{sT0}, s{sT0}, s{sTP}')
        p.ext(self.off(sKV, sT0, 4096, O_KV))
        p.ext(self.off(sKF, sT0, 128, O_FKV))
        p(f'v_lshrrev_b32 v{vCSA}, 5, v{vL}')
        p(f'v_lshlrev_b32 v{vCSA}, 4, v{vCSA}')
        p(f'v_add_u32 v{vCSA}, {L_CSQ}, v{vCSA}')
        sW2E, sW2F = sO + 11, sO + 12
        vQ = 238
        if L0:
            self.vDQ, self.vTQ, self.vWQ = vQ, 225, 226
            p.ext([f'v_lshrrev_b32 v{vQ}, 2, v{vL}', f'v_mul_u32_u24 v{vQ}, 2688, v{vQ}', f'v_and_b32 v{vQ+1}, 3, v{vL}',
                   f'v_lshl_add_u32 v{vQ}, v{vQ+1}, 4, v{vQ}', f'v_lshlrev_b32 v{vQ+1}, 7, v{vL}'])

        def frag(f):
            if f < 56:
                base, off = vL16, (f % 2) * 28672 + (f // 2) * 1024
            else:
                base, off = vA1, (f - 56) * 1024
            return f'ds_read_b128 {vr(RING + 4*(f % 8))}, v{base} offset:{off}'

        def mf(f):
            acc, s = ((accK, accV)[f % 2], f // 2) if f < 56 else (accQ, f - 56)
            return f'{MF32} {vr(acc,16)}, {vr(RING+4*(f%8))}, {vr(X+4*s)}, {vr(acc,16) if s else 0}'

        def xl(s):
            return f'buffer_load_dwordx4 {vr(X+4*s)}, v{vL16}, {srd(S_WS)}, s{sXO + s//4} offen offset:{(s%4)*1024} sc1'
        PD = 6
        for f in range(PD):
            p(frag(f))
        self.stamp('p5')
        self.pad()
        if L0:
            a0, a1, d0 = 144, 145, 146
            p.ext([f'v_min_u32 v{a0}, {13*8}, v{vL8}', f'v_add_u32 v{a0}, s{sFX}, v{a0}',
                   f's_lshl_b32 s{sT0}, s{sTEAM}, 8', f's_add_u32 s{sT0}, s{sT0}, {WS_PUR - 32*8}', f'v_add_u32 v{a1}, s{sT0}, v{vL8}',
                   f'v_cmp_le_u32 vcc, 32, v{vL}', f'v_cndmask_b32 v{a0}, v{a0}, v{a1}, vcc'])
            lp, lo = p.newlabel('pur'), p.newlabel('purout')
            p.ext([f's_mov_b32 s{sCNT}, 0', Label(lp),
                   f'buffer_load_dwordx2 {vr(d0,2)}, v{a0}, {srd(S_WS)}, 0 offen sc1',
                   f's_add_u32 s{sCNT}, s{sCNT}, 1', f's_cmp_gt_u32 s{sCNT}, {POLL_MAX}', f's_cbranch_scc1 {lo}', 's_waitcnt vmcnt(0)',
                   f'v_xor_b32 v{d0+1}, s{sF+1}, v{d0+1}', f'v_xor_b32 v{d0}, s{sF}, v{d0}', f'v_and_b32 v{a1}, 0x0fffffff, v{d0+1}',
                   f'v_or_b32 v{d0}, v{d0}, v{a1}', f'v_cmp_ne_u32 vcc, 0, v{d0}', f's_cbranch_vccnz {lp}', Label(lo), Mark('drained_vm')])
        else:
            self.vpoll(vL8, f's{sFX}', 14)
        self.stamp('E')
        XP = 8
        for s in range(XP):
            p(xl(s))
        if L0:
            self.flag_opt(sJFL)
            p.ext([f'v_readlane_b32 s{sT1}, v{d0+1}, 32', f'v_cmp_ne_u32 vcc, s{sT1}, v{d0+1}', 's_cmp_eq_u32 vcc_hi, 0',
                   f's_cselect_b32 s{sPURE}, {0 if os.environ.get("FORCE_IMPURE") else 1}, 0',
                   f's_cmp_eq_u32 s{sPURE}, 0', f's_cselect_b64 s[{sIMP}:{sIMP+1}], -1, 0'])
        mem, pre = {}, {}
        for f in range(84):
            mem[f] = []
            if f + PD < 84 and not (f < 56 <= f + PD):
                mem[f].append(frag(f + PD))
            if f < 56 and f % 2 == 0 and f // 2 + XP < 28:
                mem[f].append(xl(f // 2 + XP))
            if 27 <= f < 41 and f % 2 == 1:
                mem[f].append(self.stats_loads(sST, CS)[(f - 27) // 2])
            if f % 2 == 0:
                pre[f] = [Touch(vr(RING + 4 * (f % 8)) + ' ' + vr(RING + 4 * ((f + 1) % 8)) + (' ' + vr(X + 4 * (f // 2)) if f < 56 else ''))]
        if L0:
            for i in range(7):
                mem[40 + 2 * i].append(self.rawq(2, i))
        else:
            p(f's_mul_i32 s{sT0}, s{sW}, 7168')
            p(f'v_add_u32 v{vQ}, s{sT0}, v{vA1}')
            for i in range(7):
                mem[3 + 4 * i].append(Ins(f'ds_write_b128 v{vQ}, {ar(224 + 4*i)} offset:{1024*i}', 'wq'))
        for f in (0, 16, 38):
            mem[f] += self.stamp_items(f'k{f}')

        def cs_reads(tau, dst):
            return [f'ds_read_b128 {vr(dst+4*q)}, v{vCSA} offset:{tau*128 + 32*q}' for q in range(4)]
        p.ext(sched([mf(f) for f in range(56)], pre, mem, self.kv_addr() + cs_reads(1, accQ) + cs_reads(0, PK) + self.stats_reduce(CS), 6, start=30))
        self.stamp('kv')

        def epi(acc, cs, P):
            L = []
            for r in range(0, 16, 2):
                L.append(f'v_pk_fma_f32 {vr(acc+r,2)}, {vr(cs+r,2)}, {vr(vMEAN,2)}, {vr(acc+r,2)} op_sel:[0,0,0] op_sel_hi:[1,0,1]')
            for r in range(0, 16, 2):
                L.append(f'v_pk_mul_f32 {vr(acc+r,2)}, {vr(acc+r,2)}, {vr(vMEAN,2)} op_sel:[0,1] op_sel_hi:[1,1]')
                L.append(f'v_cvt_pk_bf16_f32 v{P+r//2}, v{acc+r}, v{acc+r+1}')
            return L

        def pad(P, c6, c7):
            return ['s_mov_b32 exec_lo, 0', f'v_mov_b32 v{P+6}, {c6:#x}', f'v_mov_b32 v{P+7}, {c7:#x}', 's_mov_b64 exec, -1']

        def st(P, o):
            return [Ins(f'buffer_store_dwordx4 {vr(P+4*k)}, v{vL16}, {srd(S_WS)}, s{sKV} offen offset:{o+1024*k} sc1', 'kvst') for k in range(2)]
        t0, t1 = CS, CS + 1
        p.ext(epi(accK, PK, PK) + pad(PK, 0x3f803f80, 0x3f80) + st(PK, 0))
        p.ext(epi(accV, accQ, PV) + pad(PV, 0x3f80, 0) + st(PV, 2048))
        self.stamp('kvs')
        if L0:
            R = ACC
            vcs, vones, t2, t3 = R + 28, R + 29, R + 30, R + 31
            p.ext([f'v_and_b32 v225, 3, v{vL}', 'v_lshlrev_b32 v225, 3, v225', f'v_bfe_u32 v226, v{vL}, 4, 1',
                   'v_lshl_add_u32 v225, v226, 5, v225', f'v_bfe_u32 v226, v{vL}, 2, 2', 'v_lshl_add_u32 v225, v226, 6, v225',
                   f'v_lshrrev_b32 v226, 5, v{vL}', 'v_lshl_add_u32 v225, v226, 8, v225', f'v_add_u32 v225, s{sLQ}, v225',
                   f'v_add_u32 v226, s{sLQ}, v{vL16}', f'v_mov_b32 v{vones}, s{sONES}'])
            self.xform(2, R, vcs, vones)
            p.wait('kvst')
            p.ext(self.flag_sc1(sKF))
            for i in range(28):
                p(f'v_accvgpr_write_b32 a{224+i}, v{R+i}')
            self.cs_partial((2,), vcs, t2, t3)
            p('s_waitcnt lgkmcnt(0)')
            p('s_barrier')
            self.cs_sum((2,), R, t2, t3)
        else:
            p.wait('wq')
            p('s_barrier')
        for f in range(56, 56 + PD):
            p(frag(f))
        side = [f's_lshl_b32 s{sT0}, s{sW}, 12', f's_add_u32 s{sT0}, s{sT0}, {LKV + 8*4096}',
                f'v_add_u32 v{t0}, s{sT0}, v{vL16}',
                f'ds_write_b128 v{t0}, {vr(PK)}', f'ds_write_b128 v{t0}, {vr(PK+4)} offset:1024',
                f'v_and_b32 v{t1}, 31, v{vL}', f'v_lshlrev_b32 v{t1}, 6, v{t1}', f'v_lshrrev_b32 v{t0}, 5, v{vL}',
                f'v_lshl_add_u32 v{t1}, v{t0}, 4, v{t1}', f'v_add_u32 v{t0}, s{sT0}, v{t1}',
                f'ds_write_b128 v{t0}, {vr(PV)} offset:2048', f'ds_write_b128 v{t0}, {vr(PV+4)} offset:{2048+32}',
                f'v_mul_f32 v{vRSTD}, {f32bits(28 ** -0.5 * math.log2(math.e)):#x}, v{vRSTD}']
        pre2 = {f - 56: v for f, v in pre.items() if f >= 56}
        mem2 = {f - 56: v for f, v in mem.items() if f >= 56}
        if not L0:
            mem2[22].append([Wait(['kvst'])] + self.flag_sc1(sKF))
        if L0:
            vW = 236
            p.ext([f's_lshl_b32 s{sT0}, s{sJ}, 7', f's_add_u32 s{sT0}, s{sT0}, {F_W1}', f's_lshl_b32 s{sT1}, s{sCB}, 6',
                   f's_add_u32 s{sT1}, s{sT1}, {F_WO - 14*8}', f's_lshl_b32 s{sT2}, s{sCB}, 9', f's_lshl_b32 s{sT3}, s{sW}, 7',
                   f's_add_u32 s{sT2}, s{sT2}, s{sT3}', f's_add_u32 s{sT2}, s{sT2}, {F_W2 - 22*8}',
                   f'v_mov_b32 v{vW}, s{sT0}', f'v_mov_b32 v{vW+1}, s{sT1}', f'v_cmp_le_u32 vcc, 14, v{vL}',
                   f'v_cndmask_b32 v{vW}, v{vW}, v{vW+1}, vcc', f'v_mov_b32 v{vW+1}, s{sT2}', f'v_cmp_le_u32 vcc, 22, v{vL}',
                   f'v_cndmask_b32 v{vW}, v{vW}, v{vW+1}, vcc', f'v_add_u32 v{vW}, v{vW}, v{vL8}'])
            side += self.peek_issue(vW, '0', 38)
        side2 = self.masks() + cs_reads(2, CS)
        cut = QCUT if L0 else 28
        p.ext(sched([mf(f) for f in range(56, 56 + cut)], pre2, mem2, side + ([] if L0 else side2), 6, start=0))
        self.stamp('q')
        if L0:
            p.ext(self.peek_check(vW, '0', 38, acquire=False))
        self.kv_fetch()
        p.ext(sched([mf(f) for f in range(56 + cut, 84)], {k - cut: v for k, v in pre2.items() if k >= cut},
                    {k - cut: v for k, v in mem2.items() if k >= cut}, side2 if L0 else [], 6))
        QF = 136
        p.ext(epi(accQ, CS, QF))
        p.ext(pad(QF, 0, 0x3f800000))
        self.pad()
        p('s_barrier')
        self.stamp('p1')

    sKD, sKL, sKFl, sNULL = sO + 11, sO + 13, (sO + 15, 78), 79

    def kv_addr(self):
        sKD, sKL, sKFl, sNULL = self.sKD, self.sKL, self.sKFl, self.sNULL
        L = [f's_mov_b32 s{sNULL}, 0']
        for k in range(2):
            L += [f's_lshl_b32 s{sT0}, s{sW}, 1', f's_add_u32 s{sT0}, s{sT0}, {k}',
                  f's_lshl_b32 s{sKL+k}, s{sT0}, 12', f's_add_u32 s{sKL+k}, s{sKL+k}, {LKV}',
                  f's_lshl_b32 s{sT1}, s{sA}, 2', f's_add_u32 s{sT0}, s{sT0}, s{sT1}',
                  [f's_cmp_lt_u32 s{sT0}, 8', f's_cselect_b32 s{sT1}, {STRIDE}, 0'],
                  f's_sub_u32 s{sT1}, s{sLB}, s{sT1}', f's_and_b32 s{sT0}, s{sT0}, 7',
                  [f's_cmp_lt_i32 s{sT1}, {TEAM0}', f's_cselect_b32 s{sT2}, {1 << k}, 0',
                   f's_cselect_b32 s{sT1}, s{sLB}, s{sT1}', f's_cselect_b32 s{sT0}, s{sTP}, s{sT0}'],
                  f's_or_b32 s{sNULL}, s{sNULL}, s{sT2}', f's_lshl_b32 s{sT2}, s{sJ}, 3', f's_add_u32 s{sT0}, s{sT0}, s{sT2}',
                  f's_lshl_b32 s{sKD+k}, s{sT0}, 12', f's_add_u32 s{sKD+k}, s{sKD+k}, s{sT1}',
                  f's_lshl_b32 s{sT0}, s{sT0}, 7', f's_add_u32 s{sT0}, s{sT0}, s{sT1}', f's_add_u32 s{sKFl[k]}, s{sT0}, {O_FKV}']
        return L

    def masks(self):
        MW, MD, t2, t3 = 144, 160, 238, 239
        L = [f'v_and_b32 v{t2}, 31, v{vL}', f'v_lshrrev_b32 v{t3}, 5, v{vL}', f'v_lshlrev_b32 v{t3}, 2, v{t3}',
             f'v_sub_u32 v{t2}, v{t2}, v{t3}', f'v_mov_b32 v{t3}, {f32bits(-1e30):#x}']
        for r in range(0, 16, 2):
            k0, k1 = 8 * (r // 4) + r % 4, 8 * (r // 4) + r % 4 + 1
            L.append([f'v_cmp_le_i32 vcc, {k0}, v{t2}', f'v_cmp_le_i32 s[4:5], {k1}, v{t2}'])
            L += [f'v_cndmask_b32_e64 v{MD+r}, v{t3}, 0, vcc', f'v_cndmask_b32_e64 v{MD+r+1}, v{t3}, 0, s[4:5]',
                  f'v_cndmask_b32_e64 v{MW+r}, 0, v{t3}, vcc', f'v_cndmask_b32_e64 v{MW+r+1}, 0, v{t3}, s[4:5]']
        return L

    def kv_fetch(self):
        p = self.p
        t0, t1, Z, NK = 16, 17, 20, 2
        sKD, sKL, sKFl, sNULL = self.sKD, self.sKL, self.sKFl, self.sNULL
        p(f'v_bfe_u32 v{t0}, v{vL}, 1, 1')
        p(f'v_lshlrev_b32 v{t0}, 10, v{t0}')
        p(f'v_and_b32 v{t1}, 1, v{vL}')
        p(f'v_lshl_add_u32 v{t0}, v{t1}, 9, v{t0}')
        p(f'v_lshrrev_b32 v{t1}, 2, v{vL}')
        p(f'v_lshl_add_u32 v{t0}, v{t1}, 4, v{t0}')
        lp, lo = p.newlabel('kvpoll'), p.newlabel('kvpollout')
        self.stamp('w1')
        p('s_waitcnt lgkmcnt(0)')
        p(f's_mov_b32 s{sCNT}, 0')
        p.label(lp)
        for k in range(NK):
            p(f's_buffer_load_dwordx2 s[{sPOLL+2*k}:{sPOLL+2*k+1}], {srd(S_WS)}, s{sKFl[k]} glc')
        p(f's_add_u32 s{sCNT}, s{sCNT}, 1')
        p(f's_cmp_gt_u32 s{sCNT}, {POLL_MAX}')
        p(f's_cbranch_scc1 {lo}')
        p('s_waitcnt lgkmcnt(0)')
        for k in range(NK):
            p(f's_cmp_eq_u64 s[{sPOLL+2*k}:{sPOLL+2*k+1}], s[{sF}:{sF+1}]')
            p(f's_cbranch_scc0 {lp}')
        p.label(lo)
        self.stamp('kvf')
        for k in range(NK):
            lnull, lb = p.newlabel('null'), p.newlabel('nullback')
            p(f's_bitcmp1_b32 s{sNULL}, {k}')
            p(f's_cbranch_scc1 {lnull}')
            p.mark('maybe_begin')
            p(f's_mov_b32 m0, s{sKL+k}')
            p(f's_sub_u32 s{sT5}, s{sKD+k}, 768')
            p(f'buffer_load_dwordx4 v{vL16}, {srd(S_WS)}, s{sKD+k} offen sc1 lds')
            p(f'buffer_load_dwordx4 v{vL16}, {srd(S_WS)}, s{sKD+k} offen offset:1024 sc1 lds')
            p(f'buffer_load_dwordx4 v{t0}, {srd(S_WS)}, s{sKD+k} offen offset:2048 sc1 lds')
            p(f'buffer_load_dwordx4 v{t0}, {srd(S_WS)}, s{sT5} offen offset:3072 sc1 lds')
            p.mark('maybe_end')
            p.label(lb)
            self.tail.append((lnull, [
                f'v_add_u32 v{t1}, s{sKL+k}, v{vL16}',
                f'v_mov_b32 v{Z}, 0', f'v_mov_b32 v{Z+1}, 0', f'v_mov_b32 v{Z+2}, 0', f'v_mov_b32 v{Z+3}, 0'] +
                [f'ds_write_b128 v{t1}, {vr(Z)} offset:{o}' for o in (0, 2048, 3072)] +
                ['s_mov_b32 exec_lo, 0', f'v_mov_b32 v{Z+3}, 0xf1490000', 's_mov_b64 exec, -1',
                 f'ds_write_b128 v{t1}, {vr(Z)} offset:1024', f's_branch {lb}']))

    def attn(self):
        p, L0 = self.p, self.L == 0
        KF, MW, MD, OA, QF, PB, VF = 32, 144, 160, 192, 136, 208, 224
        STL = (104, 120, 176)
        t0, t1 = 104, 105
        t2, t3 = 106, 107
        vKA, vVA = vT, vT + 1
        p(f's_lshl_b32 s{sT0}, s{sW}, 12')
        p(f's_add_u32 s{sT0}, s{sT0}, {LKV}')
        p(f'v_add_u32 v{vKA}, s{sT0}, v{vL16}')
        p(f'v_lshrrev_b32 v{t2}, 5, v{vL}')
        p(f'v_bfe_u32 v{t3}, v{vL}, 2, 2')
        p(f'v_lshl_add_u32 v{t2}, v{t2}, 2, v{t3}')
        p(f'v_lshlrev_b32 v{vVA}, 6, v{t2}')
        p(f'v_bfe_u32 v{t2}, v{vL}, 4, 1')
        p(f'v_lshl_add_u32 v{vVA}, v{t2}, 5, v{vVA}')
        p(f'v_and_b32 v{t2}, 1, v{vL}')
        p(f'v_lshl_add_u32 v{vVA}, v{t2}, 4, v{vVA}')
        p(f'v_bfe_u32 v{t2}, v{vL}, 1, 1')
        p(f'v_lshl_add_u32 v{vVA}, v{t2}, 3, v{vVA}')
        p(f'v_add_u32 v{vVA}, s{sT0}, v{vVA}')
        sOD, sOF, sWO = sO, sO + 1, sO + 2
        p(f's_lshl_b32 s{sT0}, s{sTP}, 4')
        p(f's_add_u32 s{sT0}, s{sT0}, s{sJ}')
        p.ext(self.roff(sOD, sT0, 2048, O_O))
        p.ext(self.off(sOF, sT0, 8, O_FO))
        p(f's_lshl_b32 s{sWO}, s{sCB}, 2')
        p(f's_add_u32 s{sWO}, s{sWO}, s{sW}')
        p(f's_lshl_b32 s{sWO}, s{sWO}, 14')
        p(f's_add_u32 s{sWO}, s{sWO}, {WOT}')
        for g in range(1, 4):
            p(f's_add_u32 s{sWO+g}, s{sWO}, {4096*g}')
        vPT = vT + 12
        p(f'v_lshlrev_b32 v{vPT}, 7, v{vL}')
        p(f'v_add_u32 v{vPT}, s{sOD}, v{vPT}')
        p(f's_lshl_b32 s{sT0}, s{sTP}, 7')
        p(f's_lshl_b32 s{sT1}, s{sRB}, 8')
        p(f's_lshl_b32 s{sT2}, s{sRHO}, 7')
        p(f's_add_u32 s{sT2}, s{sT2}, s{sT1}')
        p(f's_mul_i32 s{sT3}, s{sT2}, 28')
        p(f's_lshl_b32 s{sT4}, s{sCB}, 9')
        p(f's_add_u32 s{sT3}, s{sT3}, s{sT4}')
        p(f's_lshl_b32 s{sT4}, s{sNU}, 8')
        p(f's_add_u32 s{sT3}, s{sT3}, s{sT4}')
        for lane, (r, c) in enumerate([(sT0, O_FO), (sT1, O_FO), (sT1, O_FO + 128), (sT0, O_FX1), (sT2, O_FX1),
                                       (sT3, O_ST1), (sT3, O_ST1 + 128), (sT0, O_FH), (sT1, O_FH), (sT1, O_FH + 128),
                                       (sT0, O_FH + 1024), (sT1, O_FH + 1024), (sT1, O_FH + 1024 + 128)]):
            p(f's_add_u32 s{sT4}, s{r}, {c}')
            p(f's_add_u32 s{sT4}, s{sT4}, s{sLB}')
            p(f'v_writelane_b32 v{vPT}, s{sT4}, {16 + lane}')
        vZ = vT + 8
        p(f's_lshl_b32 s{sT0}, s{sNU}, 10')
        p(f'v_xor_b32 v{vZ}, s{sT0}, v{vL16}')
        p(f'v_xor_b32 v{vZ+1}, 1024, v{vZ}')
        vT7 = vT + 7
        p(f'v_lshlrev_b32 v{vT7}, 7, v{vL}')
        p.ext(self.pub_offsets(O_X1, O_ST1, O_FX1))
        p(f's_sub_u32 s{sT0}, s{sXD}, {29*128}')
        p(f'v_add_u32 v{t2}, s{sT0}, v{vT7}')
        p(f'v_cmp_lt_u32 vcc, 28, v{vL}')
        p(f'v_cndmask_b32 v{vPT}, v{vPT}, v{t2}, vcc')
        sWT = sO + 6
        p(f's_lshl_b32 s{sT0}, s{sCB}, 2')
        p(f's_add_u32 s{sT0}, s{sT0}, s{sRB}')
        p(f's_lshl_b32 s{sWT}, s{sT0}, 14')
        p(f's_lshl_b32 s{sT2}, s{sW}, 12')
        p(f's_add_u32 s{sWT}, s{sWT}, s{sT2}')
        p(f's_add_u32 s{sWT}, s{sWT}, {WOT}')
        touches = ['s_mov_b32 exec_hi, 0', f'buffer_load_dword a255, v{vT7}, {srd(S_WS)}, s{sWT} offen sc1', self.setexec(45),
                   f'buffer_load_dword a255, v{vPT}, {srd(S_WS)}, 0 offen sc1', 's_mov_b64 exec, -1']
        bg = self.w1_dma(0)
        n1 = 0
        while not is_mem(bg[0]) or n1 < NG1:
            n1 += is_mem(bg[0])
            p.ext([bg.pop(0)])
            if not bg:
                break
        bw = []
        if L0:
            p.ext(self.w2_setup(sO + 7, (vT + 10, vT + 11)))
            bw = self.w2_loads(sO + 7, (vT + 10, vT + 11))
            for _ in range(NW1):
                p.ext([bw.pop(0)])
        self.pad()
        p(f's_waitcnt vmcnt({NG1 + (NW1 if L0 else 0)}) lgkmcnt(0)')
        self.stamp('kvd')
        p('s_barrier')
        self.stamp('A')
        p.ext(touches)

        def kread(t):
            return [f'ds_read_b128 {vr(KF+8*t+4*k)}, v{vKA} offset:{t*4096+k*1024}' for k in range(2)]

        def qk(t):
            s = STL[t % 3]
            c = vr(MW, 16) if t == 0 else vr(MD, 16) if t == 8 else '0'
            return [f'{MF32} {vr(s,16)}, {vr(KF+8*t)}, {vr(QF)}, {c}',
                    f'{MF32} {vr(s,16)}, {vr(KF+8*t+4)}, {vr(QF+4)}, {vr(s,16)}']
        vM, vM2 = vT + 2, vT + 3

        def mx(t):
            s = STL[t % 3]
            L = []
            for i in range(8):
                d = vM if i % 2 == 0 else vM2
                if t == 0 and i < 2:
                    L.append(f'v_max_f32 v{d}, v{s+2*i}, v{s+2*i+1}')
                else:
                    L.append(f'v_max3_f32 v{d}, v{s+2*i}, v{s+2*i+1}, v{d}')
            return L

        def vread(t):
            d = VF + 8 * (t % 2)
            return [f'ds_read_b64_tr_b16 {vr(d+4*kv+2*jj,2)}, v{vVA} offset:{t*4096+2048+(16*kv+8*jj)*64}'
                    for kv in range(2) for jj in range(2)]
        def popbg(bg=bg):
            L = []
            while bg:
                x = bg.pop(0)
                L.append(x)
                if is_mem(x):
                    break
            return L
        for t in range(4):
            p.ext(kread(t))
        q = qk(0)
        p.ext([q[0]] + kread(4) + [q[1]] + kread(5))
        q = qk(1)
        p.ext([q[0]] + kread(6) + popbg(bw) + [q[1]] + kread(7) + popbg(bw))
        for t in range(9):
            m = mx(t)
            if t + 2 < 9:
                q = qk(t + 2)
                extra = kread(8) if t == 0 else vread(0)[:2] if t == 5 else vread(0)[2:] if t == 6 else []
                if t % 2 == 1:
                    extra = extra + popbg()
                p.ext([q[0]] + extra + popbg(bw) + m[:4] + [q[1]] + popbg(bw) + m[4:])
            else:
                p.ext(m)
        self.stamp('a1')
        a, b2, r1 = vT + 4, vT + 5, vT + 6
        p(f'v_max_f32 v{vM}, v{vM}, v{vM2}')
        p(f'v_mov_b32 v{a}, v{vM}')
        p(f'v_permlane32_swap_b32 v{vM}, v{a}')
        p(f'v_max_f32 v{vM}, v{vM}, v{a}')
        p(f'v_xor_b32 v{vM}, 0x80000000, v{vM}')
        p(f'v_and_b32 v{a}, 0xffff0000, v{vM}')
        p(f'v_sub_f32 v{r1}, v{vM}, v{a}')
        p(f'v_and_b32 v{a}, 0xffff0000, v{r1}')
        p(f'v_sub_f32 v{b2}, v{r1}, v{a}')
        p('s_mov_b32 exec_lo, 0')
        p(f'v_perm_b32 v{QF+6}, v{r1}, v{vM}, s{sPERM}')
        p(f'v_perm_b32 v{QF+7}, 1.0, v{b2}, s{sPERM}')
        p('s_mov_b64 exec, -1')

        def ex(t):
            s = STL[t % 3]
            pb = PB + 8 * (t % 2)
            L = []
            for i in range(8):
                L.append(f'v_exp_f32 v{s+2*i}, v{s+2*i}')
                L.append(f'v_exp_f32 v{s+2*i+1}, v{s+2*i+1}')
                if i:
                    L.append(f'v_cvt_pk_bf16_f32 v{pb+i-1}, v{s+2*i-2}, v{s+2*i-1}')
            L.append(f'v_cvt_pk_bf16_f32 v{pb+7}, v{s+14}, v{s+15}')
            return L

        def pv(t):
            d = VF + 8 * (t % 2)
            pb = PB + 8 * (t % 2)
            return [f'{MF32} {vr(OA,16)}, {vr(d)}, {vr(pb)}, {vr(OA,16) if t else 0}',
                    f'{MF32} {vr(OA,16)}, {vr(d+4)}, {vr(pb+4)}, {vr(OA,16)}']

        self.pad()

        def wol(i):
            ks, z = i // 2, i % 2
            return f'buffer_load_dwordx4 {vr(32+4*i)}, v{vZ+z}, {srd(S_WS)}, s{sWO + ks//2} offen offset:{(ks%2)*2048} sc1'
        p.ext(qk(0))
        p.ext(qk(1))
        for t in range(9):
            e = ex(t)
            mf = (pv(t - 1) if t else []) + (qk(t + 2) if t + 2 < 9 else [])
            out = []
            pos = [2, 7, 12, 17]
            for i, x in enumerate(e):
                out.append(x)
                if i in pos and pos.index(i) < len(mf):
                    k = pos.index(i)
                    out.append(mf[k])
                    if t + 1 < 9:
                        if t == 0:
                            out += vread(1)[2 * k:2 * k + 2]
                        elif k in (1, 2):
                            out += vread(t + 1)[2 * (k - 1):2 * (k - 1) + 2]
                        elif t == 7 and k == 1:
                            pass
                    if t < 6 and k in (0, 3) or t == 0:
                        out += popbg()
                    if t < 7:
                        out += popbg(bw) + (popbg(bw) if k % 2 or t == 0 else [])
                    if t >= 7:
                        out += [wol(8 * (t - 7) + 4 * k + q) for q in range(4)]
            if t == 7:
                out = out[:-3] + vread(8)[2:] + out[-3:]
            p.ext(out)
        assert not bg and not bw, (len(bg), len(bw))
        p.ext(pv(8))
        self.stamp('a2')
        p(f'v_mov_b32 v{a}, v{OA+12}')
        p(f'v_mov_b32 v{b2}, v{OA+12}')
        p(f'v_permlane32_swap_b32 v{a}, v{b2}')
        p(f'v_rcp_f32 v{b2}, v{b2}')
        for i in range(8):
            p(f'v_pk_mul_f32 {vr(OA+2*i,2)}, {vr(OA+2*i,2)}, {vr(a,2)} op_sel:[0,1] op_sel_hi:[1,1]')
            p(f'v_cvt_pk_bf16_f32 v{PB+i}, v{OA+2*i}, v{OA+2*i+1}')
            if i % 4 == 3:
                p(f'buffer_store_dwordx4 {vr(PB+i-3)}, v{vL16}, {srd(S_WS)}, s{sOD} offen offset:{(i//4)*1024}', tok='ost')
        self.publish(['ost'], sOF)
        self.stamp('att')

    def reduce_writes(self, ACC):
        return [Ins(f'ds_write_b128 v{vRW+x-1}, {vr(ACC+16*x+4*c)} offset:{c*1024}', 'rw') for x in range(1, 4) for c in range(4)]

    def reduce_finish(self, ACC, TMP):
        p = self.p
        p.wait('rw')
        self.pad()
        p('s_barrier')
        for c in range(4):
            for x in range(3):
                p(f'ds_read_b128 {vr(TMP+16*x+4*c)}, v{vRW+3} offset:{x*4096+c*1024}')
        for c in range(8):
            p(f'v_pk_add_f32 {vr(TMP+2*c,2)}, {vr(TMP+2*c,2)}, {vr(TMP+16+2*c,2)}')
            p(f'v_pk_add_f32 {vr(ACC+2*c,2)}, {vr(ACC+2*c,2)}, {vr(TMP+32+2*c,2)}')
            p(f'v_pk_add_f32 {vr(ACC+2*c,2)}, {vr(ACC+2*c,2)}, {vr(TMP+2*c,2)}')

    def yoffs(self, dst, mul, add):
        L = []
        for y in range(2):
            L += [f's_xor_b32 s{sT0}, s{sRHO}, {y}', f's_lshl_b32 s{sT1}, s{sRB}, 1', f's_add_u32 s{sT0}, s{sT0}, s{sT1}',
                  f's_lshl_b32 s{sT0}, s{sT0}, 2', f's_add_u32 s{sT0}, s{sT0}, s{sW}'] + self.roff(dst + y, sT0, mul, add)
        return L

    def p3(self):
        p, L0 = self.p, self.L == 0
        WO, OF, ACC, RING = 32, 96, 160, 200

        def colsum(part, AC=ACC, RG=RING, T=vT, extra=()):
            for i in range(4):
                p(f'v_mov_b32 v{T+4+i}, s{sONES}')
            p(f's_lshl_b32 s{sT0}, s{sW}, 10')
            if part == 0:
                p(f'v_add_u32 v{T}, s{sT0}, v{vA1}')
            else:
                p(f's_min_u32 s{sT0}, s{sT0}, 2048')
                p(f's_add_u32 s{sT0}, s{sT0}, {LW1}')
                p(f'v_add_u32 v{T}, s{sT0}, v{vA1}')
            NRG = 4
            rd = lambda f: f'ds_read_b128 {vr(RG+4*(f%NRG))}, v{T} offset:{f*(4096, 3072)[part]}'
            for f in range(NRG - 1):
                p(rd(f))
            for f in range(14):
                p(f'{MF16} {vr(AC)}, {vr(T+4)}, {vr(RG+4*(f%NRG))}, {vr(AC) if f else 0}')
                if f + NRG - 1 < 14:
                    p(rd(f + NRG - 1))
                if f % 3 == 1 and extra:
                    p(extra.pop(0))
            p(f's_lshl_b32 s{sT0}, s{sW}, 6')
            p(f's_add_u32 s{sT0}, s{sT0}, {L_CS1 + 256*part}')
            p(f'v_and_b32 v{T}, 15, v{vL}')
            p(f'v_lshlrev_b32 v{T}, 2, v{T}')
            p(f'v_add_u32 v{T}, s{sT0}, v{T}')
            p(f'ds_write_b32 v{T}, v{AC}')
            p('s_waitcnt lgkmcnt(0)')
        w1d = []
        self.pad()
        p('s_barrier')
        ljoin, lidle = p.newlabel('p3join'), p.newlabel('p3idle')
        p(f's_cmp_ge_u32 s{sM}, 28')
        p(f's_cbranch_scc1 {lidle}')
        p.mark('maybe_begin')
        sFO, sY = sO, sO + 2
        p(f's_lshl_b32 s{sT0}, s{sRB}, 3')
        p(f's_add_u32 s{sT0}, s{sT0}, s{sW}')
        p.ext(self.off(sFO, sT0, 32, O_FO))
        self.poll_first(vFLG, f's{sFO}', 8)
        p.ext(self.yoffs(sY, 8192, O_O))
        p(f's_add_u32 s{sY+2}, s{sY}, 4096')
        p(f's_add_u32 s{sY+3}, s{sY+1}, 4096')
        self.vpoll(vFLG, f's{sFO}', 8)
        self.stamp('B')

        def ld(ks, y):
            return f'buffer_load_dwordx4 {vr(OF+(ks*2+y)*4)}, v{vL16}, {srd(S_WS)}, s{sY + 2*(ks//4) + y} offen offset:{(ks%4)*1024} sc1'

        def mf(ks, x):
            y, z = x >> 1, x & 1
            c = vr(ACC + 16 * x, 16) if ks else (vr(vRES, 16) if x == 0 else '0')
            return f'{MF32} {vr(ACC+16*x,16)}, {vr(WO+(ks*2+z)*4)}, {vr(OF+(ks*2+y)*4)}, {c}'
        for ks in range(5):
            for y in range(2):
                p(ld(ks, y))
        rest = list(w1d)
        for ks in range(8):
            for x in (1, 2, 3):
                p(mf(ks, x))
                if ks + 5 < 8 and x < 3:
                    p(ld(ks + 5, x - 1))
                elif ks >= 3 and rest:
                    y = rest.pop(0)
                    p.ext([y])
                    while rest and not is_mem(y):
                        y = rest.pop(0)
                        p.ext([y])
        assert not rest
        self.stamp('p3mm')
        p.ext(sched([mf(ks, 0) for ks in range(8)], {}, {}, self.reduce_writes(ACC), 2, start=2))
        self.stamp('p3rw')
        self.reduce_finish(ACC, 32)
        self.stamp('p3rd')
        P = 96
        for i in range(8):
            p(f'v_cvt_pk_bf16_f32 v{P+i}, v{ACC+2*i}, v{ACC+2*i+1}')
        self.x_store(P, vX1A, (0, 512))
        self.publish(['xst'], sXF)
        self.stamp('p3pub')
        p.ext(self.res_unpack(P))
        p.mark('maybe_end')
        p.label(ljoin)
        idle = [f'v_lshlrev_b32 v{vT}, 7, v{vL}', f's_lshl_b32 s{sT0}, s{sCB}, 2', f's_add_u32 s{sT0}, s{sT0}, s{sW}']
        if L0:
            idle += [f's_lshl_b32 s{sT1}, s{sT0}, 7', f's_add_u32 s{sT1}, s{sT1}, {F_W1}'] + self.poll_loop(vL8, f's{sT1}', 14)
        idle += [f's_mul_i32 s{sT1}, s{sT0}, 100352'] + self.prefetch(vT, sT1, W1T + 55296, 45056)
        self.tail.append((lidle, idle + [f's_branch {ljoin}']))
        self.colsum = colsum
        self.stamp('p3')

    def p45(self):
        p, L0 = self.p, self.L == 0
        X, ACC, RING, CS = 32, 144, 200, 224
        sXO, sST, sFX, sH, sHF = sO, sO + 4, sO + 5, sO + 6, sO + 8
        sFH, sST5, sW2 = sO + 9, sO + 10, sO + 11
        sY = [76, 77, 78, 79, sO + 12, sO + 13, sO + 14, sO + 15]
        vTC, vHA, vHB, vZ, vLb, PO = vT, vT + 1, vT + 2, (vT + 3, vT + 13), vT + 12, vT + 4
        p('s_barrier')
        p.ext(self.w1_dma(1))
        p.ext(self.off(sFX, sTP, 128, O_FX1))
        if False:
            p.ext([f's_lshl_b32 s{sT1}, s{sJ}, 7', f's_add_u32 s{sT1}, s{sT1}, {F_WQ - 14*8}',
                   f'v_mov_b32 v{PO}, s{sFX}', f'v_mov_b32 v{PO+1}, s{sT1}', f'v_cmp_le_u32 vcc, 14, v{vL}',
                   f'v_cndmask_b32 v{PO}, v{PO}, v{PO+1}, vcc', f'v_add_u32 v{PO}, v{PO}, v{vL8}'])
            self.poll_first(PO, '0', 28)
        else:
            self.poll_first(vL8, f's{sFX}', 14)
        p.ext(self.xoff(sXO, sTP, 28672, O_X1))
        for g in range(1, 4):
            p(f's_add_u32 s{sXO+g}, s{sXO}, {8192*g}')
        p.ext(self.off(sST, sTP, 3584, O_ST1))
        p(f's_lshl_b32 s{sT0}, s{sTP}, 4')
        p(f's_add_u32 s{sT0}, s{sT0}, s{sJ}')
        p.ext(self.off(sH, sT0, 7168, O_H))
        p(f's_add_u32 s{sH+1}, s{sH}, 4096')
        p.ext(self.off(sHF, sT0, 8, O_FH))
        p.ext([f'v_lshrrev_b32 v{vCSA}, 4, v{vL}', f'v_lshlrev_b32 v{vCSA}, 4, v{vCSA}', f'v_add_u32 v{vCSA}, {L_CS1}, v{vCSA}',
               f'v_lshrrev_b32 v{vHA}, 5, v{vL}', f'v_lshlrev_b32 v{vHA}, 10, v{vHA}',
               f'v_bfe_u32 v{vHB}, v{vL}, 4, 1', f'v_lshl_add_u32 v{vHA}, v{vHB}, 9, v{vHA}',
               f'v_and_b32 v{vTC}, 15, v{vL}', f'v_lshl_add_u32 v{vHA}, v{vTC}, 4, v{vHA}',
               f'v_lshlrev_b32 v{vHB}, 3, v{vHB}', f'v_lshl_add_u32 v{vHB}, v{vTC}, 4, v{vHB}',
               f'v_lshrrev_b32 v{vTC}, 5, v{vL}', f'v_lshl_add_u32 v{vHB}, v{vTC}, 9, v{vHB}',
               f'v_add_u32 v{vLb}, 4096, v{vL16}', f'v_add_u32 v{vZ[0]}, {LW1}, v{vA1}'])
        sRBc = sPOLL
        p(f's_min_u32 s{sRBc}, s{sRB}, 3')
        p(f's_lshl_b32 s{sT0}, s{sRBc}, 3')
        p(f's_add_u32 s{sT0}, s{sT0}, s{sW}')
        p.ext(self.off(sFH, sT0, 32, O_FH))
        for y in range(2):
            p.ext([f's_xor_b32 s{sT0}, s{sRHO}, {y}', f's_lshl_b32 s{sT1}, s{sRBc}, 1', f's_add_u32 s{sT0}, s{sT0}, s{sT1}',
                   f's_lshl_b32 s{sT0}, s{sT0}, 2', f's_add_u32 s{sT0}, s{sT0}, s{sW}'] + self.off(sT2, sT0, 28672, O_H))
            for sl in range(4):
                p.ext([f's_add_u32 s{sT0}, {ROT}, {sl}', f's_and_b32 s{sT0}, s{sT0}, 3', f's_mul_i32 s{sT0}, s{sT0}, 7168',
                       f's_add_u32 s{sY[2*sl+y]}, s{sT2}, s{sT0}'])
        p(f's_lshl_b32 s{sT0}, s{sRBc}, 1')
        p(f's_add_u32 s{sT0}, s{sT0}, s{sRHO}')
        p.ext(self.off(sST5, sT0, 3584, O_ST1))
        if L0:
            p.ext(self.pub_offsets(O_XA + LSTRIDE, O_STA + LSTRIDE, O_FXA + LSTRIDE))
        p(f'v_lshlrev_b32 v{vTC}, 7, v{vL}')
        seq = [(t, s) for s in range(14) for t in range(4)] + [(t, s) for s in range(14) for t in range(4, 7)]

        def frag(f):
            base, off = (vA1, f * 1024) if f < 56 else (vZ[0], (f - 56) * 1024)
            return f'ds_read_b128 {vr(RING + 4*(f % 6))}, v{base} offset:{off}'

        def mf(f, u):
            t, s = seq[f]
            return f'{MF16} {vr(ACC+8*t+4*u)}, {vr(RING+4*(f%6))}, {vr(X+4*(2*s+u))}, {vr(ACC+8*t+4*u) if s else 0}'

        def xl(i):
            return f'buffer_load_dwordx4 {vr(X+4*i)}, v{(vL16, vLb)[(i//4)%2]}, {srd(S_WS)}, s{sXO + i//8} offen offset:{(i%4)*1024} sc1'

        def cs_reads(tiles):
            return [f'ds_read_b128 {vr(CS+4*(t%4))}, v{vCSA} offset:{t*64}' for t in tiles]
        PD = 4
        for f in range(PD):
            p(frag(f))
        self.pad()
        self.vpoll(vL8, f's{sFX}', 14)
        self.stamp('C')
        XP = 8
        for i in range(XP):
            p(xl(i))
        p('s_barrier')
        if L0:
            extra = [xl(i) for i in range(XP, XP + 10)]
            self.colsum(0, AC=176, RG=180, T=vT + 4, extra=extra)
            self.colsum(1, AC=176, RG=180, T=vT + 4, extra=extra)
            XP += 10
        mem, pre = {}, {}
        for f in range(98):
            mem[2 * f] = [frag(f + PD)] if f + PD < 98 else []
            mem[2 * f + 1] = []
            if f < 56 and f % 2 == 0 and f // 2 + XP < 28:
                mem[2 * f + 1] = [xl(f // 2 + XP)]
            if 27 <= f < 41 and f % 2 == 1:
                mem[2 * f + 1] = [self.stats_loads(sST, CS)[(f - 27) // 2]]
            if f % 2 == 0:
                tch = vr(RING + 4 * (f % 6)) + ' ' + vr(RING + 4 * ((f + 1) % 6))
                if f < 56 and f % 4 == 0:
                    tch += ' ' + vr(X + 8 * (f // 4), 8)
                pre[2 * f] = [Touch(tch)]
        i = 2 * 41 + 1
        if L0:
            xa = [f'v_add_u32 v{PO}, s{sXD}, v{vTC}', f's_add_u32 s{sT0}, s{sFX}, {LSTRIDE + O_FXA - O_FX1}', f's_add_u32 s{sT1}, s{sXS}, 128']
            for lane, r in ((16, sXS), (17, sT1), (18, sXF), (19, sT0)):
                xa.append(f'v_writelane_b32 v{PO}, s{r}, {lane}')
            mem[i + 2] += xa
            mem[i + 4].append(self.setexec(20) + [f'buffer_load_dword a255, v{PO}, {srd(S_WS)}, 0 offen sc1', 's_mov_b64 exec, -1'])
        for f in (0, 16, 38):
            mem[2 * f + 1] += self.stamp_items(f'g{f}')
        mfs = [mf(f, u) for f in range(98) for u in range(2)]
        side = self.stats_reduce(CS) + [f'v_mov_b32 v{vRSTD}, v{vMEAN}', 's_nop 0', f'v_permlane16_swap_b32 v{vMEAN}, v{vRSTD}']
        p.ext(sched(mfs[:112], pre, mem, side, 2, start=88))
        self.stamp('p4m1')
        self.pad()
        if L0:
            p('s_barrier')
        p.ext(cs_reads([0, 1, 2, 3]))
        self.stamp('p4g1')

        HSC = 'sc1'

        def epi(tiles, tok):
            L = []
            pairs = [tiles[i:i + 2] for i in range(0, len(tiles), 2)]
            n = 0
            for pr in pairs:
                for u in range(2):
                    po = PO + 4 * (n % 2)
                    n += 1
                    for k, t in enumerate(pr):
                        a = ACC + 8 * t + 4 * u
                        for r in (0, 2):
                            L.append(f'v_pk_fma_f32 {vr(a+r,2)}, {vr(CS+4*(t%4)+r,2)}, {vr(vMEAN,2)}, {vr(a+r,2)} op_sel:[0,{u},0] op_sel_hi:[1,{u},1]')
                    for k, t in enumerate(pr):
                        a = ACC + 8 * t + 4 * u
                        for r in range(2):
                            L.append(f'v_cvt_pk_bf16_f32 v{po+2*k+r}, v{a+2*r}, v{a+2*r+1}')
                    for k, t in enumerate(pr):
                        for r in range(2):
                            L.append(f'v_pk_max_i16 v{po+2*k+r}, v{po+2*k+r}, 0')
                    t = pr[0]
                    so, off = (sH, t * 1024) if t < 4 else (sH + 1, (t - 4) * 1024)
                    if len(pr) == 2:
                        L.append(Ins(f'buffer_store_dwordx4 {vr(po)}, v{vHA}, {srd(S_WS)}, s{so} offen offset:{off+u*256} {HSC}', tok))
                    else:
                        L.append(Ins(f'buffer_store_dwordx2 {vr(po,2)}, v{vHB}, {srd(S_WS)}, s{so} offen offset:{off+u*256} {HSC}', tok))
            return L
        p.ext(epi([0, 1, 2, 3], 'h1'))
        self.stamp('p4e1')
        HR, AC5, NR, PD5, TAIL = 32, 160, 16, 5, 14
        order = ORDER

        def ld(i, y):
            sl, sg = order[i] // 7, order[i] % 7
            return (f'buffer_load_dwordx4 {vr(HR+((i%NR)*2+y)*4)}, v{(vL16, vLb)[sg//4]}, {srd(S_WS)}, s{sY[2*sl+y]} '
                    f'offen offset:{(sg%4)*1024} sc1')

        def m5(i, x):
            y, z = x >> 1, x & 1
            return f'{MF32} {vr(AC5+16*x,16)}, {ar(order[i]*8+z*4)}, {vr(HR+((i%NR)*2+y)*4)}, {vr(AC5+16*x,16) if i else 0}'
        pre2 = {i - 112: v for i, v in pre.items() if i >= 112}
        mem2 = {i - 112: v for i, v in mem.items() if i >= 112}
        NW2A = 14 if L0 else 0
        mem2[H1POS] = self.publish_items(['h1'], sHF, 0, self.touch(vTC, sH, 0, 32) if PT else ()) + mem2[H1POS]
        mem2[59] += cs_reads([4, 5])
        mem2[61] += cs_reads([6])
        e2 = epi([4, 5, 6], 'h2')
        if PK1 < 64:
            mem2[PK1] += self.peek_issue(vFLG, f's{sFH}', 8)
            mem2[63] += self.peek_check(vFLG, f's{sFH}', 8)
            for k in range(2 * PD5):
                mem2[65 + 2 * k].append(ld(k // 2, k % 2))
        else:
            mem2[PK1] += self.peek_issue(vFLG, f's{sFH}', 8)
            first_store = next(i for i, x in enumerate(e2) if is_mem(x))
            e2 = e2[:first_store] + self.peek_check(vFLG, f's{sFH}', 8) + [ld(k // 2, k % 2) for k in range(2 * PD5)] + e2[first_store:]
        p.ext(sched(mfs[112:], pre2, mem2, [], 2, start=0))
        self.stamp('p4g2')
        p.ext(e2)
        self.stamp('p4')
        lskip, ljoin = p.newlabel('p5skip'), p.newlabel('p5join')
        self.pad()
        p(f's_cmp_ge_u32 s{sM}, 28')
        p(f's_cbranch_scc1 {lskip}')
        idle = ['s_waitcnt vmcnt(0)'] + self.publish_items([], sHF, 1024, self.touch(vTC, sH + 1, 0, 24) if PT else ())
        if L0:
            idle += [f's_lshl_b32 s{sT0}, s{sCB}, 2', f's_add_u32 s{sT0}, s{sT0}, s{sW}', f's_mul_i32 s{sT1}, s{sT0}, 28672']
            idle += self.prefetch(vTC, sT1, WOT, 28672)
            idle += [f's_mul_i32 s{sT1}, s{sT0}, 100352'] + self.prefetch(vTC, sT1, W1T, IDLE5) + [f's_branch {ljoin}']
        else:
            idle += ['s_branch L_fin']
        self.tail.append((lskip, idle))
        p('s_barrier')
        wqk = []
        mfs, mem = [], {}
        w2b = []
        stl = self.stats_loads(sST5, CS)
        for i in range(28):
            xs = (0, 1, 2, 3) if i < 28 - TAIL else (1, 2, 3)
            for n, x in enumerate(xs):
                k = len(mfs)
                mfs.append(m5(i, x))
                mem[k] = []
                if i == H2POS and n == 3:
                    mem[k] += self.publish_items(['h2'], sHF, 1024, self.touch(vTC, sH + 1, 0, 24) if PT else ())
                if i == PK2 and n == 3:
                    mem[k] += self.peek_issue(vFLG, f's{sFH}', 8, 1024)
                if i == 11 and n == 0:
                    mem[k] += self.stamp_items('pk0') + self.peek_check(vFLG, f's{sFH}', 8, 1024) + self.stamp_items('pk1')
                if i + PD5 < 28 and n < 2:
                    mem[k].append(ld(i + PD5, n))
                elif w2b and n >= 2:
                    mem[k].append(w2b.pop(0))
                elif i + PD5 >= 28 and stl:
                    mem[k].append(stl.pop(0))
                elif i + PD5 >= 28 and wqk:
                    while wqk:
                        x2 = wqk.pop(0)
                        mem[k].append(x2)
                        if is_mem(x2):
                            break
        assert not w2b and not stl and not wqk
        p.ext(sched(mfs, {}, mem, [], 6))
        self.stamp('p5mm')
        mem = {}
        for i, x in enumerate(self.reduce_writes(AC5)):
            mem.setdefault(2 + i, []).append(x)
        p.ext(sched([m5(i, 0) for i in range(28 - TAIL, 28)], {}, mem, self.stats_reduce(CS), 5, start=0))
        self.stamp('p5rw')
        self.reduce_finish(AC5, 32)
        self.stamp('p5rd')
        P = 96
        for i in range(8):
            p(f'v_pk_fma_f32 {vr(AC5+2*i,2)}, {vr(AC5+2*i,2)}, {vr(vMEAN,2)}, {vr(vRES+2*i,2)} op_sel:[0,1,0] op_sel_hi:[1,1,1]')
            p(f'v_cvt_pk_bf16_f32 v{P+i}, v{AC5+2*i}, v{AC5+2*i+1}')
        if L0:
            self.x_store(P, vL16, (0, 1024))
            self.publish(['xst'], sXF)
            self.stamp('p5pub')
            p.ext(self.res_unpack(P))
            p.label(ljoin)
            p(f's_add_u32 s{sLB}, s{sLB}, {LSTRIDE}')
            p('s_barrier')
            return
        p(f'v_and_b32 v{vT+4}, 31, v{vL}')
        p(f'v_mul_u32_u24 v{vT+4}, 896, v{vT+4}')
        p(f'v_lshrrev_b32 v{vT+5}, 5, v{vL}')
        p(f'v_lshl_add_u32 v{vT+4}, v{vT+5}, 4, v{vT+4}')
        for hf in range(2):
            p(f'v_permlane32_swap_b32 v{P+4*hf}, v{P+4*hf+2}')
            p(f'v_permlane32_swap_b32 v{P+4*hf+1}, v{P+4*hf+3}')
            p(f'buffer_store_dwordx4 {vr(P+4*hf)}, v{vT+4}, {srd(S_OUT)}, s{sQOFF} offen offset:{32*hf}')
        p('s_cmp_lg_u32 s2, %d' % (27 * 8 + (5 if PERM else 7)))
        p('s_cbranch_scc1 L_fin')
        p(f's_mov_b32 s{sT0}, {WS_EPOCH}')
        p.ext(self.flag_sc1(sT0))

    def build(self):
        p = self.p
        self.L = 0
        self.prologue()
        for self.L in range(2):
            for ph in ('p1', 'attn', 'p3', 'p45'):
                getattr(self, ph)()
        p.label('L_fin')
        self.stamp('end')
        self.stamp_dump()
        if os.environ.get('CALIB'):
            p.label('L_calib')
            p('s_memrealtime s[96:97]')
            p('s_waitcnt lgkmcnt(0)')
            p('s_sub_u32 s96, s96, s100')
            if os.environ.get('PROBE'):
                p('s_sub_u32 s97, s98, s100')
                p(f's_cmp_ge_u32 s{sM}, 28')
                p('s_cselect_b32 s97, 0, s97')
                p('s_sub_u32 s96, s96, s97')
                p('s_max_i32 s96, s96, 0')
            p(f's_cmp_lt_u32 s96, {int(os.environ["CALIB"])}')
            p('s_cbranch_scc1 L_calib')
        p.label('L_end')
        p('s_endpgm')
        for lab, code in self.tail:
            p.label(lab, reset='all')
            p.ext(code)
        p.label('L_codeend')
        self.emit_walker()
        p.insert_waits()
        probs = p.fix_hazards()
        for x in probs:
            print('branch hazard padded', x, file=sys.stderr)
        mx = p.maxregs()
        head = open(os.path.join(os.path.dirname(__file__), '..', 'cdna_kernels', NAME + '.s.ref')).read().split('\n')
        hdr = [l for l in head if l.startswith(';') and '@launch' not in l]
        out = '\n'.join(hdr) + f'\n; @launch grid=(256,1,1) block=(256,1,1) lds={LDS_BYTES}\n'
        out += '.amdgcn_target "amdgcn-amd-amdhsa--gfx950"\n.text\n'
        out += f'.globl {NAME}_kernel\n.p2align 8\n.type {NAME}_kernel,@function\n{NAME}_kernel:\n'
        out += p.text()
        out += '.fill 64, 4, 0xbf800000\n'
        out += f'''.section .rodata,"a"
.p2align 6
.amdhsa_kernel {NAME}_kernel
  .amdhsa_next_free_vgpr 512
  .amdhsa_next_free_sgpr 102
  .amdhsa_accum_offset 256
  .amdhsa_group_segment_fixed_size 0
  .amdhsa_kernarg_size 72
  .amdhsa_user_sgpr_count 2
  .amdhsa_user_sgpr_kernarg_segment_ptr 1
  .amdhsa_system_sgpr_workgroup_id_x 1
  .amdhsa_float_denorm_mode_32 3
.end_amdhsa_kernel
'''
        print('regs', mx, 'instrs', sum(1 for x in p.items if isinstance(x, Ins)), file=sys.stderr)
        return out


if __name__ == '__main__':
    stop = int(sys.argv[2]) if len(sys.argv) > 2 else None
    k = K(stop if stop and stop > 0 else None, dbg=sys.argv[3].split(',') if len(sys.argv) > 3 else None)
    open(sys.argv[1], 'w').write(k.build())
    if k.dbg:
        open(os.path.join(os.path.dirname(sys.argv[1]), 'stamps.txt'), 'w').write(' '.join(k.stamps))
```

```python
import sys, os, math, struct
sys.path.insert(0, os.path.dirname(__file__))
from asmlib import Prog, Ins, Wait, Mark, Label, Touch

NAME = 'interleave_layers__sliding_block__dense_activation_relu__prompt'

WS_EPOCH = 0
WS_PUR = 0x1000
F_WQ = 0x2000
F_W1 = 0x2800
F_W2 = 0x3000
F_WO = 0x4000
WQT = 0x100000
W1T = 0x250000
WOT = 0x3D8000
W2T = 0x448000
TEAM0 = 0x600000
LSTRIDE = 0x230000
STRIDE = 2 * LSTRIDE
O_KV = 0x000000
O_O = 0x080000
O_X1 = 0x0C0000
O_XA = 0x0F8000
O_ST1 = 0x130000
O_STA = 0x138000
O_FKV = 0x140000
O_FO = 0x144000
O_FX1 = 0x144400
O_FXA = 0x144800
O_FH = 0x145000
O_H = 0x150000
WS_BYTES = TEAM0 + 8 * STRIDE

LW1 = 57344
LKV = LW1 + 55296
L_CSQ = LKV + 49152
L_CS1 = L_CSQ + 512
L_CSP = L_CS1 + 512
LDS_BYTES = 163840

S_X, S_WQ, S_WO, S_W1, S_W2, S_OUT, S_WS = 8, 12, 16, 20, 24, 28, 32
S_WSP = 36
sTEAM, sM, sA, sJ, sW, sRB, sCB, sLB = 40, 41, 42, 43, 44, 45, 46, 47
sF, sPURE, sLAYER, sTP = 48, 50, 51, 52
sQOFF = 53
sIMP = 54
sPERM, sONES = 56, 57
sRHO, sNU = 58, 59
sT0, sT1, sT2, sT3, sT4, sT5 = 60, 61, 62, 63, 64, 65
sCNT = 66
sTB = 71
sJFL = 67
sXD, sXS, sXF = 68, 69, 70
sPOLL = 72
sRQ, sLQ = 76, 77
sO = 80

vL, vL16, vA1, vL8 = 0, 1, 2, 3
vSTA = 4
vFLG = 5
vRW = 6
vX1A = 10
vCSA = 11
vF = 12
vMEAN, vRSTD = 14, 15
vT = 16
vRES = 240

POLL_MAX = 1 << 16
ROT = {'rb': f's{sRB}', 'team': f's{sTEAM}', '': '0'}[os.environ.get('ROT', '')]
ROT1 = {'a': f's{sA}', 'team': f's{sTEAM}', '': '0'}[os.environ.get('ROT1', '')]
PT = bool(os.environ.get('PT'))
H1POS = int(os.environ.get('H1POS', 19))
H2POS = int(os.environ.get('H2POS', 3))
PK1 = int(os.environ.get('PK1', 57))
XT = bool(os.environ.get('XT'))
IDLE3 = int(os.environ.get('IDLE3', 0))
IDLE5 = int(os.environ.get('IDLE5', 0))
QCUT = int(os.environ.get('QCUT', 10))
KE = int(os.environ.get('KE', 3))
PERM = not os.environ.get('NOPERM')
NG1 = int(os.environ.get('NG1', 0))
EK = bool(os.environ.get('EK'))
DP = not os.environ.get('NODP')
NW1 = int(os.environ.get('NW1', 20))
PK2 = int(os.environ.get('PK2', 8))
ORDER = [7 * sl + sg for sl in range(4) for sg in range(4)] + [7 * sl + sg for sl in range(4) for sg in range(4, 7)]
MF32 = 'v_mfma_f32_32x32x16_bf16'
MF16 = 'v_mfma_f32_16x16x32_bf16'


def srd(b):
    return f's[{b}:{b+3}]'


def vr(b, n=4):
    return f'v[{b}:{b+n-1}]' if n > 1 else f'v{b}'


def ar(b, n=4):
    return f'a[{b}:{b+n-1}]'


def f32bits(x):
    return struct.unpack('<I', struct.pack('<f', x))[0]


def is_mem(x):
    if isinstance(x, (list, tuple)):
        return any(is_mem(y) for y in x)
    if isinstance(x, (Wait, Touch, Label, Mark)):
        return False
    t = x.text if isinstance(x, Ins) else x if isinstance(x, str) else ''
    return t.startswith('ds_') or t.startswith('buffer_') or t.startswith('global_')


def cost(x):
    if isinstance(x, (list, tuple)):
        return sum(cost(y) for y in x)
    if isinstance(x, (Wait, Touch)):
        return 1
    if isinstance(x, (Label, Mark)):
        return 0
    t = x.text if isinstance(x, Ins) else x
    return 2 if t.startswith('v_exp') or t.startswith('v_rsq') or t.startswith('v_rcp') or t.startswith('v_permlane') else 1


def sched(mfs, pre, mem, side, cap, start=0):
    out = []
    side = list(side)
    for i, m in enumerate(mfs):
        out += pre.get(i, [])
        out.append(m)
        n = 0
        for x in mem.get(i, []):
            out.append(x)
            n += cost(x)
        if pre.get(i + 1):
            n += 1
        valu = False
        if i >= start:
            while side and n + cost(side[0]) <= cap:
                if is_mem(side[0]) and valu:
                    break
                x = side.pop(0)
                if not is_mem(x) and not isinstance(x, (Wait, Touch)):
                    t = x[0] if isinstance(x, (list, tuple)) else x
                    if any((y.text if isinstance(y, Ins) else y).startswith('v_') for y in (x if isinstance(x, (list, tuple)) else [x]) if isinstance(y, (Ins, str))):
                        valu = True
                out.append(x)
                n += cost(x)
            if side and n == 0 and cost(side[0]) > cap:
                out.append(side.pop(0))
    return out + side


class K:
    def __init__(self, stop=None, dbg=False):
        self.p = Prog()
        self.stop = stop
        self.dbg = dbg
        self.stamps = []
        self.tail = []
        self.pads = []
        self.vP2 = 236

    def stamp(self, name):
        if os.environ.get('PROBE') == f'{name}{self.L}':
            self.p('s_memrealtime s[98:99]')
            self.p('s_waitcnt lgkmcnt(0)')
        if not self.dbg or (name not in self.dbg and name not in ('start', 'end')):
            return
        k = len(self.stamps)
        assert k < 32
        self.stamps.append(name)
        p = self.p
        p('s_memrealtime s[96:97]' if 'RT' in self.dbg else 's_memtime s[96:97]')
        if k == 0:
            p('v_readfirstlane_b32 s100, v0')
            p('s_lshr_b32 s100, s100, 6')
            p('s_lshl_b32 s101, s2, 2')
            p('s_add_u32 s100, s100, s101')
            p('s_lshl_b32 s100, s100, 7')
            p('s_add_u32 s100, s100, 0x40000')
        p('s_waitcnt lgkmcnt(0)')
        if k == 0:
            p('v_accvgpr_write_b32 a253, s96')
            return
        p('v_accvgpr_write_b32 a252, s96')
        p('s_mov_b64 exec, 1')
        p(f'buffer_store_dword a252, off, {srd(S_WS)}, s100 offset:{4*k}')
        p('s_mov_b64 exec, -1')

    def stamp_items(self, name):
        n = len(self.p.items)
        self.stamp(name)
        L = self.p.items[n:]
        del self.p.items[n:]
        return [L] if L else []

    def stamp_dump(self):
        if self.dbg:
            self.p(f'buffer_store_dword a253, off, {srd(S_WS)}, s100')

    def dma(self, srdb, voff, sreg, simm, m0, tok, sc='', n=1):
        mr, mi = m0
        L = [f's_add_u32 m0, s{mr}, {mi}' if mr is not None else f's_mov_b32 m0, {mi}',
             f's_add_u32 s{sT5}, s{sreg}, {simm}']
        for k in range(n):
            L.append(Ins(f'buffer_load_dwordx4 v{voff}, {srd(srdb)}, s{sT5} offen offset:{1024*k} {sc} lds', tok))
        return L

    @staticmethod
    def setexec(nl):
        if nl <= 32:
            return [f's_mov_b64 exec, {(1 << nl) - 1:#x}'] if nl < 32 else ['s_mov_b32 exec_hi, 0']
        return [f's_mov_b32 exec_hi, {(1 << (nl - 32)) - 1:#x}']

    def poll_loop(self, voff, soff, nl, imm=0):
        p = self.p
        lp, lo = p.newlabel('poll'), p.newlabel('pollout')
        return self.setexec(nl) + [f's_mov_b32 s{sCNT}, 0', Label(lp),
                f'buffer_load_dwordx2 {vr(vT + 14, 2)}, v{voff}, {srd(S_WS)}, {soff} offen offset:{imm} sc1',
                f's_add_u32 s{sCNT}, s{sCNT}, 1', f's_cmp_gt_u32 s{sCNT}, {POLL_MAX}', f's_cbranch_scc1 {lo}',
                's_waitcnt vmcnt(0)', f'v_cmp_ne_u64 vcc, s[{sF}:{sF+1}], {vr(vT + 14, 2)}', f's_cbranch_vccnz {lp}',
                Label(lo), 's_mov_b64 exec, -1']

    def poll_first(self, voff, soff, nl):
        self.p.ext(self.peek_issue(voff, soff, nl))

    def vpoll(self, voff, soff, nl, acquire=True):
        p = self.p
        lp, lo = p.newlabel('poll'), p.newlabel('pollout')
        ra, rb = vr(vT + 14, 2), vr(self.vP2, 2)
        ldf = lambda r: f'buffer_load_dwordx2 {r}, v{voff}, {srd(S_WS)}, {soff} offen sc1'
        p.ext(self.setexec(nl) + [f's_mov_b32 s{sCNT}, 0', Label(lp), ldf(rb),
               f's_add_u32 s{sCNT}, s{sCNT}, 1', f's_cmp_gt_u32 s{sCNT}, {POLL_MAX}', f's_cbranch_scc1 {lo}',
               f'v_cmp_ne_u64 vcc, s[{sF}:{sF+1}], {ra}', f's_cbranch_vccz {lo}', ldf(ra),
               f'v_cmp_ne_u64 vcc, s[{sF}:{sF+1}], {rb}', f's_cbranch_vccnz {lp}', Label(lo), 's_mov_b64 exec, -1'])
        if acquire:
            lslow, lback = p.newlabel('acq'), p.newlabel('acqback')
            p(f's_cmp_lg_u32 s{sPURE}, 0')
            p(f's_cbranch_scc0 {lslow}')
            p.label(lback)
            self.tail.append((lslow, ['buffer_inv sc1', 's_waitcnt vmcnt(0)', f's_branch {lback}']))
        p.mark('drained_vm')

    def peek_issue(self, voff, soff, nl, imm=0):
        return [self.setexec(nl) + [f'buffer_load_dwordx2 {vr(vT + 14, 2)}, v{voff}, {srd(S_WS)}, {soff} offen offset:{imm} sc1',
                                    's_mov_b64 exec, -1']]

    def peek_check(self, voff, soff, nl, imm=0, acquire=True):
        p = self.p
        lslow, lback, lacq = p.newlabel('peek'), p.newlabel('peekback'), p.newlabel('peekacq')
        self.tail.append((lslow, self.poll_loop(voff, soff, nl, imm) +
                          [f's_cmp_lg_u32 s{sPURE}, 0', f's_cbranch_scc1 {lback}', 'buffer_inv sc1', 's_waitcnt vmcnt(0)',
                           f's_branch {lback}']))
        return [[Touch(vr(vT + 14, 2))] + self.setexec(nl) +
                [f'v_cmp_ne_u64 vcc, s[{sF}:{sF+1}], {vr(vT + 14, 2)}', 's_mov_b64 exec, -1',
                 f's_or_b64 vcc, vcc, s[{sIMP}:{sIMP+1}]' if acquire else 's_or_b64 vcc, vcc, vcc', f's_cbranch_scc1 {lslow}', Label(lback)]]

    def publish_items(self, toks, soff, imm=0, post=()):
        p = self.p
        lslow, lback = p.newlabel('pubslow'), p.newlabel('pubback')
        self.tail.append((lslow, [
            'buffer_wbl2 sc1', 's_waitcnt vmcnt(0)',
            f'buffer_store_dwordx2 {vr(vF, 2)}, off, {srd(S_WS)}, s{soff} offset:{imm} sc1',
            f's_branch {lback}']))
        return [[Wait(toks), 's_mov_b64 exec, 1', f's_cmp_lg_u32 s{sPURE}, 0', f's_cbranch_scc0 {lslow}',
                 f'buffer_store_dwordx2 {vr(vF, 2)}, off, {srd(S_WS)}, s{soff} offset:{imm}', Label(lback), 's_mov_b64 exec, -1']] + list(post)

    def publish(self, toks, soff, imm=0):
        self.p.ext(self.publish_items(toks, soff, imm))

    def flag_sc1(self, soff):
        return ['s_mov_b64 exec, 1', f'buffer_store_dwordx2 {vr(vF,2)}, off, {srd(S_WS)}, s{soff} sc1', 's_mov_b64 exec, -1']

    def flag_opt(self, soff):
        p = self.p
        l = p.newlabel('noflag')
        p(f's_cmp_eq_u32 s{soff}, -1')
        p(f's_cbranch_scc1 {l}')
        p.mark('maybe_begin')
        p.ext(self.flag_sc1(soff))
        p.mark('maybe_end')
        p.label(l)

    def stats_loads(self, soff, dst):
        return [f'buffer_load_dwordx2 {vr(dst + 2*i, 2)}, v{vSTA}, {srd(S_WS)}, s{soff} offen offset:{256*i} sc1' for i in range(7)]

    def stats_reduce(self, src):
        L = []
        for i in range(1, 7):
            L.append(f'v_add_f32 v{src}, v{src}, v{src+2*i}')
            L.append(f'v_add_f32 v{src+1}, v{src+1}, v{src+2*i+1}')
        s, q, t0, t1 = src, src + 1, src + 2, src + 3
        return L + [
            f'v_mov_b32 v{t0}, v{s}', f'v_mov_b32 v{t1}, v{q}', 's_nop 0',
            f'v_permlane32_swap_b32 v{s}, v{t0}', f'v_permlane32_swap_b32 v{q}, v{t1}',
            f'v_add_f32 v{s}, v{s}, v{t0}', f'v_add_f32 v{q}, v{q}, v{t1}',
            f'v_mul_f32 v{vMEAN}, {f32bits(-1.0/448):#x}, v{s}',
            f'v_mul_f32 v{q}, {f32bits(1.0/448):#x}, v{q}',
            f'v_fma_f32 v{q}, -v{vMEAN}, v{vMEAN}, v{q}',
            f'v_max_f32 v{q}, 0, v{q}',
            f'v_add_f32 v{q}, {f32bits(1e-5):#x}, v{q}',
            f'v_rsq_f32 v{vRSTD}, v{q}',
        ]

    def off(self, dst, idx_reg, mul, add):
        return [f's_mul_i32 s{dst}, s{idx_reg}, {mul}', f's_add_u32 s{dst}, s{dst}, s{sLB}', f's_add_u32 s{dst}, s{dst}, {add}']

    def xoff(self, dst, idx_reg, mul, add):
        return [f's_add_u32 s{sT3}, s{sLB}, {add}', f's_add_u32 s{sT4}, s{sTB}, {O_XA}', f's_cmp_lg_u32 s{sPURE}, 0',
                f's_cselect_b32 s{sT3}, s{sT4}, s{sT3}', f's_mul_i32 s{dst}, s{idx_reg}, {mul}', f's_add_u32 s{dst}, s{dst}, s{sT3}']

    def roff(self, dst, idx_reg, mul, add):
        return [f's_cmp_lg_u32 s{sPURE}, 0', f's_cselect_b32 s{sT3}, s{sTB}, s{sLB}',
                f's_mul_i32 s{dst}, s{idx_reg}, {mul}', f's_add_u32 s{dst}, s{dst}, s{sT3}', f's_add_u32 s{dst}, s{dst}, {add}']

    def pub_offsets(self, xoff, stoff, foff):
        return [f's_lshl_b32 s{sT0}, s{sRB}, 1', f's_add_u32 s{sT0}, s{sT0}, s{sRHO}',
                f's_lshl_b32 s{sT1}, s{sCB}, 1', f's_add_u32 s{sT1}, s{sT1}, s{sNU}',
                f's_mul_i32 s{sT2}, s{sT0}, 14', f's_add_u32 s{sT2}, s{sT2}, s{sT1}'] + \
            self.xoff(sXD, sT2, 2048, xoff) + self.off(sXS, sT2, 256, stoff) + \
            [f's_lshl_b32 s{sT0}, s{sT0}, 4', f's_add_u32 s{sT0}, s{sT0}, s{sT1}'] + self.off(sXF, sT0, 8, foff) + \
            [f's_cmp_ge_u32 s{sM}, 28'] + [f's_cselect_b32 s{r}, {WS_PUR}, s{r}' for r in (sXD, sXS, sXF)]

    def x_store(self, P, va, offs, sc=''):
        p = self.p
        S, Q2, t0, t1 = vT + 6, vT + 7, vT + 8, vT + 9
        for k in range(2):
            p(f'buffer_store_dwordx4 {vr(P+4*k)}, v{va}, {srd(S_WS)}, s{sXD} offen offset:{offs[k]} {sc}', tok='xst')
        p(f'v_mov_b32 v{t0}, s{sONES}')
        p(f'v_dot2_f32_bf16 v{S}, v{P}, v{t0}, 0')
        p(f'v_dot2_f32_bf16 v{Q2}, v{P}, v{P}, 0')
        for i in range(1, 8):
            p(f'v_dot2_f32_bf16 v{S}, v{P+i}, v{t0}, v{S}')
            p(f'v_dot2_f32_bf16 v{Q2}, v{P+i}, v{P+i}, v{Q2}')
        p(f'v_mov_b32 v{t0}, v{S}')
        p(f'v_mov_b32 v{t1}, v{Q2}')
        p(f'v_permlane32_swap_b32 v{S}, v{t0}')
        p(f'v_permlane32_swap_b32 v{Q2}, v{t1}')
        p(f'v_add_f32 v{S}, v{S}, v{t0}')
        p(f'v_add_f32 v{Q2}, v{Q2}, v{t1}')
        p('s_mov_b32 exec_hi, 0')
        p(f'buffer_store_dwordx2 {vr(S,2)}, v{vL8}, {srd(S_WS)}, s{sXS} offen {sc}', tok='xst')
        p('s_mov_b64 exec, -1')

    def res_unpack(self, P):
        L = []
        for q in range(8):
            L.append(f'v_lshlrev_b32 v{vRES+2*q}, 16, v{P+q}')
            L.append(f'v_and_b32 v{vRES+2*q+1}, 0xffff0000, v{P+q}')
        return L

    def prefetch(self, v128, sreg, base, nbytes):
        L = []
        o = 0
        while o < nbytes:
            oo = min(o, nbytes - 8192)
            L += [f's_add_u32 s{sT5}, s{sreg}, {base + oo}', f'buffer_load_dword a255, v{v128}, {srd(S_WS)}, s{sT5} offen sc1']
            o += 8192
        return L

    def touch(self, v128, sreg, imm, nlines):
        L = [f's_add_u32 s{sT5}, s{sreg}, {imm}']
        if nlines < 64:
            L += self.setexec(nlines)
        L.append(f'buffer_load_dword a255, v{v128}, {srd(S_WS)}, s{sT5} offen sc1')
        if nlines < 64:
            L.append('s_mov_b64 exec, -1')
        return [L]

    def w1_dma(self, part):
        sg, sl = sPOLL, sPOLL + 1
        per, base = ((13, 0), (11, 55296))[part]
        L = [f's_mul_i32 s{sg}, s{sJ}, 100352', f's_mul_i32 s{sl}, s{sW}, {per*1024}', f's_add_u32 s{sg}, s{sg}, s{sl}']
        for o in range(0, per, 4):
            d = self.dma(S_WS, vL16, sg, W1T + base + o * 1024, (sl, LW1 + base + o * 1024), 'w1', 'sc1', min(4, per - o))
            L += [d[:3]] + d[3:]
        if part == 0:
            L += [f's_sub_u32 s{sg}, s{sg}, s{sl}', f's_lshl_b32 s{sl}, s{sNU}, 10', f's_add_u32 s{sg}, s{sg}, s{sl}']
            L.append(self.dma(S_WS, vL16, sg, W1T + 52 * 1024, (sl, LW1 + 52 * 1024), 'w1', 'sc1', 1))
        return L

    def w2_setup(self, sbase, vz):
        return [f's_lshl_b32 s{sbase}, s{sCB}, 2', f's_add_u32 s{sbase}, s{sbase}, s{sW}', f's_mul_i32 s{sbase}, s{sbase}, 57344',
                f's_lshl_b32 s{sT1}, s{sNU}, 10', f'v_xor_b32 v{vz[0]}, s{sT1}, v{vL16}', f'v_xor_b32 v{vz[1]}, 1024, v{vz[0]}']

    def w2_loads(self, sbase, vz):
        L = []
        for sl in range(4):
            pre = [f's_add_u32 s{sT3}, {ROT}, {sl}', f's_and_b32 s{sT3}, s{sT3}, 3', f's_mul_i32 s{sT3}, s{sT3}, 14336',
                   f's_add_u32 s{sT3}, s{sT3}, s{sbase}']
            for sg in range(7):
                ks = 7 * sl + sg
                g = pre + [f's_add_u32 s{sT4}, s{sT3}, {W2T + sg*2048}',
                           f'buffer_load_dwordx4 {ar(ks*8)}, v{vz[0]}, {srd(S_WS)}, s{sT4} offen sc1']
                pre = []
                L += [g, f'buffer_load_dwordx4 {ar(ks*8+4)}, v{vz[1]}, {srd(S_WS)}, s{sT4} offen sc1']
        return L

    def lane_consts(self):
        p = self.p
        t0, t1 = vT + 6, vT + 7
        p(f'v_add_u32 v{vA1}, 57344, v{vL16}')
        p(f'v_and_b32 v{vSTA}, 31, v{vL}')
        p(f'v_lshlrev_b32 v{vSTA}, 3, v{vSTA}')
        p(f'v_lshrrev_b32 v{t0}, 5, v{vL}')
        p(f'v_mul_u32_u24 v{t1}, {7*256}, v{t0}')
        p(f'v_add_u32 v{vSTA}, v{vSTA}, v{t1}')
        p(f'v_lshrrev_b32 v{vFLG}, 2, v{vL}')
        p(f'v_lshlrev_b32 v{vFLG}, 7, v{vFLG}')
        p(f'v_and_b32 v{t1}, 3, v{vL}')
        p(f'v_lshl_add_u32 v{vFLG}, v{t1}, 3, v{vFLG}')
        for x in range(1, 4):
            p(f's_xor_b32 s{sT0}, s{sW}, {x}')
            p(f's_mul_i32 s{sT0}, s{sT0}, 12288')
            p(f's_add_u32 s{sT0}, s{sT0}, {LKV + (x-1)*4096}')
            p(f'v_add_u32 v{vRW+x-1}, s{sT0}, v{vL16}')
        p(f's_mul_i32 s{sT0}, s{sW}, 12288')
        p(f's_add_u32 s{sT0}, s{sT0}, {LKV}')
        p(f'v_add_u32 v{vRW+3}, s{sT0}, v{vL16}')
        p(f'v_bfe_u32 v{vX1A}, v{vL}, 4, 1')
        p(f'v_lshlrev_b32 v{vX1A}, 10, v{vX1A}')
        p(f'v_lshl_add_u32 v{vX1A}, v{t0}, 8, v{vX1A}')
        p(f'v_and_b32 v{t1}, 15, v{vL}')
        p(f'v_lshl_add_u32 v{vX1A}, v{t1}, 4, v{vX1A}')

    def pad(self):
        p = self.p
        k = len(self.pads)
        self.pads.append(f'L_pad{k}')
        p(f's_branch L_padskip{k}')
        p.label(f'L_pad{k}')
        p('s_setpc_b64 s[98:99]')
        p.label(f'L_padskip{k}')

    def emit_walker2(self, n):
        L = []
        labs = [f'L_walkb{w}' for w in range(4)]
        for w in range(1, 4):
            L += [Ins(f's_cmp_eq_u32 s{sW}, {w}'), Ins(f's_cbranch_scc1 {labs[w]}')]
        N = len(self.pads)
        for w in range(4):
            if w:
                L.append(Label(labs[w]))
            for k in range(n):
                L.append(Ins(f's_call_b64 s[98:99], {self.pads[(w * N // 4 + N // 8 + k) % N]}'))
            if w < 3:
                L.append(Ins('s_branch L_walkbend'))
        L.append(Label('L_walkbend'))
        return L

    def emit_walker(self):
        L = []
        labs = [f'L_walk{w}' for w in range(4)]
        for w in range(1, 4):
            L += [Ins(f's_cmp_eq_u32 s{sW}, {w}'), Ins(f's_cbranch_scc1 {labs[w]}')]
        for w in range(4):
            if w:
                L.append(Label(labs[w]))
            for x in (self.pads[w::4] if not os.environ.get('NOWALK') else []) * int(os.environ.get('WALKREP', 1)):
                L.append(Ins(f's_call_b64 s[98:99], {x}'))
            if w < 3:
                L.append(Ins('s_branch L_walkend'))
        L.append(Label('L_walkend'))
        self.p.items[self.walker_at:self.walker_at] = L

    @staticmethod
    def q67fix(reg, tmp):
        return [f'v_and_b32 v{tmp}, 18, v{vL}', f'v_cmp_eq_u32 vcc, 18, v{tmp}', f'v_xor_b32 v{tmp}, 8, v{reg}',
                f'v_cndmask_b32 v{reg}, v{reg}, v{tmp}, vcc']

    def rawq(self, tau, i):
        return (self.dma(S_WQ, self.vDQ, sRQ, (448, 896, 0)[tau] * 2 + i * 16 * 2688, (sLQ, tau * 28672 + i * 1024), f'rq{tau}{i}'))

    def xform(self, tau, R, vcs, vones, between=None):
        p = self.p

        def fin(i):
            p(f'ds_write_b128 v{self.vWQ}, {vr(R+4*i)} offset:{tau*28672+i*1024}')
            for q in range(4):
                p(f'v_dot2_f32_bf16 v{vcs}, v{R+4*i+q}, v{vones}, {f"v{vcs}" if i or q else 0}')
        for i in range(7):
            p.wait(f'rq{tau}{i}')
            for jj in range(2):
                p(f'ds_read_b64_tr_b16 {vr(R+4*i+2*jj,2)}, v{self.vTQ} offset:{tau*28672+i*1024+jj*512}')
            if between:
                between(i)
            if i >= 1:
                fin(i - 1)
        fin(6)

    def cs_partial(self, taus, vcs, t2, t3):
        p = self.p
        for k, tau in enumerate(taus):
            p(f'v_mov_b32 v{t2}, v{vcs+k}')
            p(f'v_permlane32_swap_b32 v{vcs+k}, v{t2}')
            p(f'v_add_f32 v{vcs+k}, v{vcs+k}, v{t2}')
        p(f'v_and_b32 v{t2}, 31, v{vL}')
        p(f'v_lshlrev_b32 v{t2}, 2, v{t2}')
        p(f's_lshl_b32 s{sT0}, s{sW}, 8')
        p(f's_add_u32 s{sT0}, s{sT0}, {L_CSP}')
        p(f'v_add_u32 v{t3}, s{sT0}, v{t2}')
        for k, tau in enumerate(taus):
            p(f'ds_write_b32 v{t3}, v{vcs+k} offset:{k*128}')

    def cs_sum(self, taus, R, t2, t3):
        p = self.p
        p(f'v_add_u32 v{t3}, {L_CSP}, v{t2}')
        for k, tau in enumerate(taus):
            for w in range(4):
                p(f'ds_read_b32 v{R+4*k+w}, v{t3} offset:{w*256+k*128}')
        p(f'v_add_u32 v{t3}, {L_CSQ}, v{t2}')
        for k, tau in enumerate(taus):
            r = R + 4 * k
            p(f'v_add_f32 v{r}, v{r}, v{r+1}')
            p(f'v_add_f32 v{r+2}, v{r+2}, v{r+3}')
            p(f'v_add_f32 v{r}, v{r}, v{r+2}')
            p(f'ds_write_b32 v{t3}, v{r} offset:{tau*128}')
        p('s_waitcnt lgkmcnt(0)')

    def prologue(self):
        p = self.p
        t0, t1, t2, t3 = vT, vT + 1, vT + 2, vT + 3
        self.vDQ, self.vTQ, self.vWQ = vDQ, vTQ, vWQ = vT + 10, vT + 11, vT + 12
        p('s_cmp_ge_u32 s2, 256')
        p('s_cbranch_scc1 L_end')
        p(f's_load_dwordx16 s[{sO}:{sO+15}], s[0:1], 0')
        p(f's_load_dwordx2 s[{S_WSP}:{S_WSP+1}], s[0:1], 64')
        p(f's_getpc_b64 s[{sT0}:{sT0+1}]')
        p.label('L_pc')
        p(f'v_lshrrev_b32 v{t2}, 4, v0')
        p(f's_lshr_b32 s{sT2}, s2, 3')
        p(f's_lshl_b32 s{sT2}, s{sT2}, 4')
        p(f'v_add_u32 v{t2}, s{sT2}, v{t2}')
        p(f'v_lshlrev_b32 v{t2}, 7, v{t2}')
        p(f'v_min_u32 v{t2}, L_codeend-L_pc, v{t2}')
        p('s_mov_b32 exec_lo, 0x10001')
        p('s_mov_b32 exec_hi, 0x10001')
        p(f'global_load_dword a255, v{t2}, s[{sT0}:{sT0+1}]')
        p('s_mov_b64 exec, -1')
        if os.environ.get('CALIB'):
            p('s_memrealtime s[100:101]')
        self.stamp('start')
        p(f'v_lshrrev_b32 v{vT}, 6, v0')
        p(f'v_and_b32 v{vL}, 63, v0')
        p(f'v_readfirstlane_b32 s{sW}, v{vT}')
        p(f's_lshr_b32 s{sM}, s2, 3')
        p(f's_and_b32 s{sTEAM}, s2, 7')
        if PERM:
            p(f's_lshr_b32 s{sT0}, s{sTEAM}, 1')
            p(f's_and_b32 s{sT0}, s{sT0}, 2')
            p(f's_xor_b32 s{sTEAM}, s{sTEAM}, s{sT0}')
        p(f's_mul_i32 s{sRB}, s{sM}, 37')
        p(f's_lshr_b32 s{sRB}, s{sRB}, 8')
        p(f's_mul_i32 s{sT0}, s{sRB}, 7')
        p(f's_sub_u32 s{sCB}, s{sM}, s{sT0}')
        p(f's_lshr_b32 s{sRHO}, s{sW}, 1')
        p(f's_and_b32 s{sNU}, s{sW}, 1')
        p(f's_lshl_b32 s{sT0}, s{sTEAM}, 2')
        p(f's_add_u32 s{sT0}, s{sT0}, s{sRB}')
        p(f's_lshl_b32 s{sT1}, s{sT0}, 1')
        p(f's_add_u32 s{sT1}, s{sT1}, s{sRHO}')
        p(f's_mul_i32 s{sQOFF}, s{sT1}, {32*896}')
        p(f's_lshl_b32 s{sT1}, s{sCB}, 7')
        p(f's_add_u32 s{sQOFF}, s{sQOFF}, s{sT1}')
        p(f's_lshl_b32 s{sT1}, s{sNU}, 6')
        p(f's_add_u32 s{sQOFF}, s{sQOFF}, s{sT1}')
        vPK, vPQ, vH = vT + 14, vT + 15, vT + 13
        p(f'v_and_b32 v{t3}, 31, v{vL}')
        p(f'v_mul_u32_u24 v{t3}, 896, v{t3}')
        p(f'v_lshrrev_b32 v{vH}, 5, v{vL}')
        p(f'v_lshl_add_u32 v{t3}, v{vH}, 4, v{t3}')
        STR = 0x2A54 if os.environ.get('BAL') else 0
        NP = 10 if STR else 16
        NKV, NQ = (79, 40) if STR else (49, 25)
        p(f's_and_b32 s{sJ}, s{sM}, 15')
        p(f's_lshr_b32 s{sA}, s{sM}, 4')
        p(f's_bfm_b32 s{sT2}, s{sJ}, 0')
        p(f's_andn2_b32 s{sT2}, s{sT2}, {STR}')
        p(f's_bcnt1_i32_b32 s{sT2}, s{sT2}')
        p(f's_mul_i32 s{sT3}, s{sA}, {NP}')
        p(f's_add_u32 s{sT2}, s{sT2}, s{sT3}')
        p(f's_lshl_b32 s{sT2}, s{sT2}, 2')
        p(f's_add_u32 s{sT2}, s{sT2}, s{sW}')
        p(f's_bitcmp1_b32 {STR}, s{sJ}')
        p(f's_cselect_b32 s{sT4}, 0x10000000, 0')
        p(f's_mul_i32 s{sT3}, s{sT2}, {NKV}')
        vPK2 = vT + 9
        for r, o in ((vPK, 0), (vPK2, 64))[:1 + (NKV > 64)]:
            p(f's_add_u32 s{sT1}, s{sT3}, {o}')
            p(f'v_add_u32 v{t2}, s{sT1}, v{vL}')
            p(f'v_mul_u32_u24 v{r}, 74899, v{t2}')
            p(f'v_lshrrev_b32 v{r}, 20, v{r}')
            p(f'v_mul_u32_u24 v{r}, 7, v{r}')
            p(f'v_add_u32 v{r}, v{r}, v{t2}')
            p(f'v_lshlrev_b32 v{r}, 7, v{r}')
        b = sO

        def mksrd(d, src, n):
            p(f's_mov_b32 s{d}, s{src}')
            p(f's_and_b32 s{d+1}, s{src+1}, 0xffff')
            p(f's_mov_b32 s{d+2}, {n}')
            p(f's_mov_b32 s{d+3}, 0x20000')
        mksrd(S_X, b, 1835008)
        mksrd(S_WQ, b + 2, 1204224)
        XR = 96
        for q in range(2):
            p(f'buffer_load_dwordx4 {vr(XR+4*q)}, v{t3}, {srd(S_X)}, s{sQOFF} offen offset:{32*q}')
        if NKV > 64:
            p(f'buffer_load_dword a255, v{vPK}, {srd(S_WQ)}, s{sT4} offen offset:896')
            p('s_mov_b64 exec, 0x7fff')
            p(f'buffer_load_dword a255, v{vPK2}, {srd(S_WQ)}, s{sT4} offen offset:896')
        else:
            p('s_mov_b32 exec_hi, 0x1ffff')
            p(f'buffer_load_dword a255, v{vPK}, {srd(S_WQ)}, s{sT4} offen offset:896')
        p('s_mov_b64 exec, -1')
        NPF = 1 + (NKV > 64)
        p(f's_load_dwordx2 s[{sF}:{sF+1}], s[{S_WSP}:{S_WSP+1}], {WS_EPOCH}')
        for (d, src, n) in ((S_WO, b + 4, 401408), (S_W1, b + 8, 1605632),
                            (S_W2, b + 10, 1605632), (S_OUT, b + 12, 1835008), (S_WS, S_WSP, WS_BYTES)):
            mksrd(d, src, n)
        p(f's_mul_i32 s{sT3}, s{sT2}, {NQ}')
        p(f'v_add_u32 v{t2}, s{sT3}, v{vL}')
        p(f'v_mul_u32_u24 v{vPQ}, 149797, v{t2}')
        p(f'v_lshrrev_b32 v{vPQ}, 20, v{vPQ}')
        p(f'v_mul_u32_u24 v{vPQ}, 14, v{vPQ}')
        p(f'v_add_u32 v{vPQ}, v{vPQ}, v{t2}')
        p(f'v_lshlrev_b32 v{vPQ}, 7, v{vPQ}')
        p(f'v_add_u32 v{vPQ}, s{sT4}, v{vPQ}')
        p(f'v_lshrrev_b32 v{t0}, 2, v{vL}')
        p(f'v_and_b32 v{t1}, 3, v{vL}')
        p(f'v_lshlrev_b32 v{t3}, 3, v{t1}')
        p(f'v_lshlrev_b32 v{t1}, 4, v{t1}')
        p(f'v_mul_u32_u24 v{vDQ}, 2688, v{t0}')
        p(f'v_min_u32 v{t2}, 40, v{t1}')
        p(f'v_add_u32 v{vDQ}, v{vDQ}, v{t2}')
        p(f's_mul_i32 s{sRQ}, s{sW}, {7*16*2688}')
        p(f's_mul_i32 s{sT1}, s{sJ}, 56')
        p(f's_add_u32 s{sRQ}, s{sRQ}, s{sT1}')
        p(f's_mul_i32 s{sLQ}, s{sW}, 7168')
        for i in range(KE):
            p.ext(self.rawq(0, i))
        self.stamp('ka')
        sI, sSTG = sO, sO + 1
        sFL, sDST, sJOB, sDST2 = sJFL, sO + 3, sO + 4, sO + 5

        p(f's_mul_i32 s{sLB}, s{sTEAM}, {STRIDE}')
        p(f's_add_u32 s{sLB}, s{sLB}, {TEAM0}')
        p(f's_mov_b32 s{sTB}, s{sLB}')
        p(f'v_lshlrev_b32 v{vL16}, 4, v{vL}')
        p(f'v_lshlrev_b32 v{vL8}, 3, v{vL}')
        p(f's_mov_b32 s{sONES}, 0x3f803f80')
        p(f's_mov_b32 s{sPURE}, 1')
        p(f's_mov_b64 s[{sIMP}:{sIMP+1}], 0')
        p.ext(self.pub_offsets(O_XA, O_STA, O_FXA))
        vD, vTR, vTR8 = vT + 4, vT + 5, vT + 13
        FR = 32
        p(f's_lshl_b32 s{sI}, s{sTEAM}, 1')
        p(f's_add_u32 s{sI}, s{sI}, s{sA}')
        p(f's_lshl_b32 s{sSTG}, s{sW}, 13')
        p(f's_add_u32 s{sSTG}, s{sSTG}, {LKV}')
        lA = [p.newlabel('jobA') for _ in range(4)]
        p(f's_mov_b32 s{sJOB}, 0')
        p.mark('maybe_begin')
        p(f's_cmp_ge_u32 s{sW}, 2')
        p(f's_cbranch_scc1 {lA[0]}')
        sJJ = sO + 6
        p(f's_xor_b32 s{sT0}, s{sW}, 1')
        p(f's_add_u32 s{sJJ}, s{sJ}, s{sT0}')
        p(f's_lshr_b32 s{sT1}, {0x2A54}, s{sJJ}')
        p(f's_and_b32 s{sT1}, s{sT1}, 1')
        p(f's_cmp_lg_u32 s{sT1}, s{sT0}')
        p(f's_cbranch_scc1 {lA[2]}')
        p(f's_cmp_ge_u32 s{sI}, 14')
        p(f's_cbranch_scc1 {lA[2]}')
        p(f'v_bfe_u32 v{vD}, v{vL}, 1, 3')
        p(f'v_bfe_u32 v{t2}, v{vL}, 4, 1')
        p(f'v_lshl_add_u32 v{vD}, v{t2}, 4, v{vD}')
        p(f'v_bfe_u32 v{t2}, v{vL}, 5, 1')
        p(f'v_lshl_add_u32 v{vD}, v{t2}, 3, v{vD}')
        p(f'v_mul_u32_u24 v{vD}, 3584, v{vD}')
        p(f'v_and_b32 v{t2}, 1, v{vL}')
        p(f'v_lshl_add_u32 v{vD}, v{t2}, 4, v{vD}')
        p(f's_mul_i32 s{sT0}, s{sI}, {32*3584}')
        p(f's_mul_i32 s{sT1}, s{sJJ}, 224')
        p(f's_add_u32 s{sT0}, s{sT0}, s{sT1}')
        for t in range(7):
            p.ext(self.dma(S_W1, vD, sT0, t * 32, (sSTG, t * 1024), 'raw'))
        p(f's_mov_b32 s{sJOB}, 2')
        p(f's_branch {lA[3]}')
        p.label(lA[0])
        p(f'v_mul_u32_u24 v{vD}, 896, v{t0}')
        p(f'v_add_u32 v{vD}, v{vD}, v{t1}')
        p(f's_cmp_ge_u32 s{sM}, 28')
        p(f's_cbranch_scc1 {lA[1]}')
        sI2, sSL, sHF = sT2, sT3, sT4
        p(f's_lshl_b32 s{sI2}, s{sTEAM}, 2')
        p(f's_add_u32 s{sI2}, s{sI2}, s{sRB}')
        p(f's_lshr_b32 s{sSL}, s{sI2}, 1')
        p(f's_and_b32 s{sHF}, s{sI2}, 1')
        p(f's_mul_i32 s{sT0}, s{sSL}, {112*896}')
        p(f's_mul_i32 s{sT1}, s{sHF}, {64*896}')
        p(f's_add_u32 s{sT0}, s{sT0}, s{sT1}')
        p(f's_lshl_b32 s{sT1}, s{sCB}, 7')
        p(f's_add_u32 s{sT0}, s{sT0}, s{sT1}')
        p(f's_lshl_b32 s{sT1}, s{sNU}, 6')
        p(f's_add_u32 s{sT0}, s{sT0}, s{sT1}')
        for k in range(4):
            p.ext(self.dma(S_W2, vD, sT0, k * 16 * 896, (sSTG, k * 1024), 'raw'))
        p(f's_add_u32 s{sJOB}, s{sHF}, 3')
        p(f's_branch {lA[3]}')
        p.label(lA[1])
        p(f's_cmp_eq_u32 s{sTEAM}, 7')
        p(f's_cbranch_scc1 {lA[2]}')
        p(f's_mul_i32 s{sT0}, s{sCB}, {112*896}')
        p(f's_lshl_b32 s{sT1}, s{sTEAM}, 7')
        p(f's_add_u32 s{sT0}, s{sT0}, s{sT1}')
        p(f's_lshl_b32 s{sT1}, s{sNU}, 6')
        p(f's_add_u32 s{sT0}, s{sT0}, s{sT1}')
        for k in range(8):
            p.ext(self.dma(S_WO, vD, sT0, k * 16 * 896, (sSTG, k * 1024), 'raw'))
        p(f's_mov_b32 s{sJOB}, 5')
        p.label(lA[2])
        p.mark('maybe_end')
        p.label(lA[3])
        self.walker2_at = len(p.items)
        lw = [p.newlabel('xw') for _ in range(3)]
        p(f's_cmp_eq_u32 s{sJOB}, 2')
        p(f's_cbranch_scc1 {lw[0]}')
        p(f's_cmp_eq_u32 s{sJOB}, 0')
        p(f's_cbranch_scc1 {lw[1]}')
        p(f's_waitcnt vmcnt({4 + NPF + KE})')
        p(f's_branch {lw[2]}')
        p.label(lw[0])
        p(f's_waitcnt vmcnt({7 + NPF + KE})')
        p(f's_branch {lw[2]}')
        p.label(lw[1])
        p(f's_waitcnt vmcnt({0 + NPF + KE})')
        p.label(lw[2])
        self.stamp('jA')
        p.mark('drained_vm')
        for q in range(2):
            p(f'v_permlane32_swap_b32 v{XR+4*q}, v{XR+4*q+2}')
            p(f'v_permlane32_swap_b32 v{XR+4*q+1}, v{XR+4*q+3}')
        lp0 = p.newlabel('p0skip')
        p(f's_cmp_ge_u32 s{sM}, 28')
        p(f's_cselect_b32 s{sXF}, -1, s{sXF}')
        p(f's_cbranch_scc1 {lp0}')
        p.mark('drained_vm')
        self.x_store(XR, vL16, (0, 1024), 'sc1')
        p.label(lp0)
        p(f's_lshl_b32 s{sTP}, s{sA}, 2')
        p(f's_add_u32 s{sTP}, s{sTP}, s{sW}')
        p.mark('drained_vm')
        for i in range(KE, 7):
            p.ext(self.rawq(0, i))
        for i in range(7):
            p.ext(self.rawq(1, i))
        p.ext(self.setexec(NQ))
        p(f'buffer_load_dword a255, v{vPQ}, {srd(S_WQ)}, 0 offen')
        p('s_mov_b64 exec, -1')
        self.stamp('x0')
        p(f'v_bfe_u32 v{t2}, v{vL}, 4, 1')
        p(f'v_lshl_add_u32 v{t2}, v{t2}, 5, v{t3}')
        p(f'v_bfe_u32 v{vTR}, v{vL}, 2, 2')
        p(f'v_lshl_add_u32 v{t2}, v{vTR}, 6, v{t2}')
        p(f'v_lshl_add_u32 v{vTQ}, v{vH}, 8, v{t2}')
        p(f'v_add_u32 v{vTR}, s{sSTG}, v{vTQ}')
        p(f'v_add_u32 v{t2}, s{sSTG}, v{t2}')
        p(f'v_lshl_add_u32 v{vTR8}, v{vH}, 9, v{t2}')
        p(f'v_add_u32 v{vTQ}, s{sLQ}, v{vTQ}')
        p.ext(self.q67fix(vTQ, t2))
        p(f'v_add_u32 v{vWQ}, s{sLQ}, v{vL16}')
        p(f's_mov_b32 s{sPERM}, 0x07060302')
        self.lane_consts()
        vCSP = 104
        p(f'v_mov_b32 v{vCSP+3}, s{sONES}')
        p.ext(self.res_unpack(XR))
        p('s_waitcnt lgkmcnt(0)')
        p(f's_add_u32 s{sF}, s{sF}, 1')
        p(f's_addc_u32 s{sF+1}, s{sF+1}, 0')
        p(f'v_mov_b32 v{vF}, s{sF}')
        p(f'v_mov_b32 v{vF+1}, s{sF+1}')
        p(f's_waitcnt vmcnt({15 - KE})')
        self.stamp('rt1')
        self.flag_opt(sXF)
        p(f's_getreg_b32 s{sT0}, hwreg(HW_REG_XCC_ID)')
        p(f's_and_b32 s{sT0}, s{sT0}, 15')
        p(f's_lshl_b32 s{sT0}, s{sT0}, 28')
        p(f's_xor_b32 s{sT0}, s{sT0}, s{sF+1}')
        p(f'v_mov_b32 v{vT+6}, s{sF}')
        p(f'v_mov_b32 v{vT+7}, s{sT0}')
        p(f's_lshl_b32 s{sT1}, s{sTEAM}, 8')
        p(f's_lshl_b32 s{sT2}, s{sM}, 3')
        p(f's_add_u32 s{sT1}, s{sT1}, s{sT2}')
        p(f's_add_u32 s{sT1}, s{sT1}, {WS_PUR}')
        lx = p.newlabel('noxcc')
        p(f's_cmp_lg_u32 s{sW}, 0')
        p(f's_cbranch_scc1 {lx}')
        p.mark('maybe_begin')
        p('s_mov_b64 exec, 1')
        p(f'buffer_store_dwordx2 {vr(vT+6,2)}, off, {srd(S_WS)}, s{sT1} sc1')
        p('s_mov_b64 exec, -1')
        p.mark('maybe_end')
        p.label(lx)
        self.xform(0, 128, vCSP, vCSP + 3)
        self.walker_at = len(p.items)
        self.stamp('xf0')
        self.xform(1, 160, vCSP + 1, vCSP + 3)
        self.cs_partial((0, 1), vCSP, vT + 6, vT + 7)

        def finish(nfr, offs):
            L = []
            base = None
            for k in range(nfr):
                hi, lo = offs[k] // 4096 * 4096, offs[k] % 4096
                if hi != base:
                    L.append(f's_add_u32 s{sT5}, s{sDST}, {hi}')
                    base = hi
                L.append(f'buffer_store_dwordx4 {vr(FR+4*k)}, v{vL16}, {srd(S_WS)}, s{sT5} offen offset:{lo} sc1')
            return L
        lB = {k: p.newlabel('jobB') for k in (3, 4, 5, 'join')}
        p(f's_mov_b32 s{sFL}, -1')
        p.mark('maybe_begin')
        p(f's_cmp_eq_u32 s{sJOB}, 0')
        p(f's_cbranch_scc1 {lB["join"]}')
        p(f's_cmp_eq_u32 s{sJOB}, 5')
        p(f's_cbranch_scc1 {lB[5]}')
        p(f's_cmp_ge_u32 s{sJOB}, 3')
        p(f's_cbranch_scc1 {lB[3]}')
        p(f'v_lshl_add_u32 v{vTR}, v{t0}, 5, v{t3}')
        p(f'v_add_u32 v{vTR}, s{sSTG}, v{vTR}')
        for t in range(7):
            for jj in range(2):
                p(f'ds_read_b64_tr_b16 {vr(FR+t*4+2*jj,2)}, v{vTR} offset:{t*1024+jj*512}')
        p(f's_mul_i32 s{sDST}, s{sJJ}, 100352')
        p(f's_add_u32 s{sDST}, s{sDST}, {W1T}')
        p(f's_mul_i32 s{sDST2}, s{sI}, 3072')
        p(f's_add_u32 s{sDST2}, s{sDST2}, s{sDST}')
        p(f's_add_u32 s{sDST2}, s{sDST2}, 57344')
        p(f's_lshl_b32 s{sT0}, s{sI}, 12')
        p(f's_add_u32 s{sDST}, s{sDST}, s{sT0}')
        p(f's_lshl_b32 s{sFL}, s{sJJ}, 4')
        p(f's_add_u32 s{sFL}, s{sFL}, s{sI}')
        p(f's_lshl_b32 s{sFL}, s{sFL}, 3')
        p(f's_add_u32 s{sFL}, s{sFL}, {F_W1}')
        p.ext(finish(4, [t * 1024 for t in range(4)]))
        for t in range(4, 7):
            p(f'buffer_store_dwordx4 {vr(FR+4*t)}, v{vL16}, {srd(S_WS)}, s{sDST2} offen offset:{(t-4)*1024} sc1')
        p(f's_branch {lB["join"]}')
        p.label(lB[3])
        for sg in range(2):
            for jj in range(2):
                p(f'ds_read_b64_tr_b16 {vr(FR+sg*4+2*jj,2)}, v{vTR} offset:{(16*jj+8*sg)*64}')
        p(f's_lshl_b32 s{sI2}, s{sTEAM}, 2')
        p(f's_add_u32 s{sI2}, s{sI2}, s{sRB}')
        p(f's_lshr_b32 s{sSL}, s{sI2}, 1')
        p(f's_and_b32 s{sHF}, s{sI2}, 1')
        p(f's_mul_i32 s{sDST}, s{sCB}, 229376')
        p(f's_mul_i32 s{sT0}, s{sSL}, 14336')
        p(f's_add_u32 s{sDST}, s{sDST}, s{sT0}')
        p(f's_lshl_b32 s{sT0}, s{sHF}, 13')
        p(f's_add_u32 s{sDST}, s{sDST}, s{sT0}')
        p(f's_lshl_b32 s{sT0}, s{sNU}, 10')
        p(f's_add_u32 s{sDST}, s{sDST}, s{sT0}')
        p(f's_add_u32 s{sDST}, s{sDST}, {W2T}')
        p(f's_lshl_b32 s{sFL}, s{sCB}, 5')
        p(f's_add_u32 s{sFL}, s{sFL}, s{sI2}')
        p(f's_lshl_b32 s{sFL}, s{sFL}, 1')
        p(f's_add_u32 s{sFL}, s{sFL}, s{sNU}')
        p(f's_lshl_b32 s{sFL}, s{sFL}, 3')
        p(f's_add_u32 s{sFL}, s{sFL}, {F_W2}')
        p(f's_cmp_eq_u32 s{sJOB}, 4')
        p(f's_cbranch_scc1 {lB[4]}')
        for sg in range(2, 4):
            for jj in range(2):
                p(f'ds_read_b64_tr_b16 {vr(FR+sg*4+2*jj,2)}, v{vTR} offset:{(32+16*jj+8*(sg%2))*64}')
        p.ext(finish(4, [k * 2048 for k in range(4)]))
        p(f's_branch {lB["join"]}')
        p.label(lB[4])
        for jj in range(2):
            p(f'ds_read_b64_tr_b16 {vr(FR+8+2*jj,2)}, v{vTR8} offset:{(32+4*jj)*64}')
        p('s_waitcnt lgkmcnt(0)')
        p.ext(finish(3, [k * 2048 for k in range(3)]))
        p(f's_branch {lB["join"]}')
        p.label(lB[5])
        for hd in range(4):
            for kp in range(2):
                for jj in range(2):
                    p(f'ds_read_b64_tr_b16 {vr(FR+(hd*2+kp)*4+2*jj,2)}, v{vTR} offset:{(28*hd+16*kp+8*jj)*64}')
        p(f's_lshl_b32 s{sFL}, s{sTEAM}, 2')
        p(f's_add_u32 s{sFL}, s{sFL}, s{sCB}')
        p(f's_lshl_b32 s{sDST}, s{sFL}, 14')
        p(f's_lshl_b32 s{sT0}, s{sNU}, 10')
        p(f's_add_u32 s{sDST}, s{sDST}, s{sT0}')
        p(f's_add_u32 s{sDST}, s{sDST}, {WOT}')
        p(f's_lshl_b32 s{sFL}, s{sFL}, 1')
        p(f's_add_u32 s{sFL}, s{sFL}, s{sNU}')
        p(f's_lshl_b32 s{sFL}, s{sFL}, 3')
        p(f's_add_u32 s{sFL}, s{sFL}, {F_WO}')
        p('s_waitcnt lgkmcnt(0)')
        p('s_mov_b32 exec_lo, 0')
        for hd in range(4):
            p(f'v_mov_b32 v{FR+(hd*2+1)*4+2}, 0')
            p(f'v_mov_b32 v{FR+(hd*2+1)*4+3}, 0')
        p('s_mov_b64 exec, -1')
        p.ext(finish(8, [k * 2048 for k in range(8)]))
        p.mark('maybe_end')
        p.label(lB['join'])
        self.stamp('jB')
        p('s_waitcnt lgkmcnt(0)')
        p('s_barrier')
        self.stamp('bar')
        self.cs_sum((0, 1), 108, vT + 6, vT + 7)
        self.stamp('pro')

    def p1(self):
        p, L0 = self.p, self.L == 0
        X, ACC, RING, CS = 32, 144, 192, 224
        accK, accV, accQ = ACC, ACC + 16, ACC + 32
        PK, PV = vT, vT + 8
        sXO, sST, sFX, sKV, sKF = sO, sO + 7, sO + 8, sO + 9, sO + 10
        p.ext(self.off(sFX, sTP, 128, O_FXA))
        if not L0:
            self.poll_first(vL8, f's{sFX}', 14)
        p.ext(self.xoff(sXO, sTP, 28672, O_XA))
        for g in range(1, 7):
            p(f's_add_u32 s{sXO+g}, s{sXO}, {4096*g}')
        p.ext(self.off(sST, sTP, 3584, O_STA))
        p(f's_lshl_b32 s{sT0}, s{sJ}, 3')
        p(f's_add_u32 s{sT0}, s{sT0}, s{sTP}')
        p.ext(self.off(sKV, sT0, 4096, O_KV))
        p.ext(self.off(sKF, sT0, 128, O_FKV))
        p(f'v_lshrrev_b32 v{vCSA}, 5, v{vL}')
        p(f'v_lshlrev_b32 v{vCSA}, 4, v{vCSA}')
        p(f'v_add_u32 v{vCSA}, {L_CSQ}, v{vCSA}')
        sW2E, sW2F = sO + 11, sO + 12
        vQ = 238
        if L0:
            self.vDQ, self.vTQ, self.vWQ = vQ, 225, 226
            p.ext([f'v_lshrrev_b32 v{vQ}, 2, v{vL}', f'v_mul_u32_u24 v{vQ}, 2688, v{vQ}', f'v_and_b32 v{vQ+1}, 3, v{vL}',
                   f'v_lshlrev_b32 v{vQ+1}, 4, v{vQ+1}', f'v_min_u32 v{vQ+1}, 40, v{vQ+1}', f'v_add_u32 v{vQ}, v{vQ}, v{vQ+1}'])

        def frag(f):
            if f < 56:
                base, off = vL16, (f % 2) * 28672 + (f // 2) * 1024
            else:
                base, off = vA1, (f - 56) * 1024
            return f'ds_read_b128 {vr(RING + 4*(f % 8))}, v{base} offset:{off}'

        def mf(f):
            acc, s = ((accK, accV)[f % 2], f // 2) if f < 56 else (accQ, f - 56)
            return f'{MF32} {vr(acc,16)}, {vr(RING+4*(f%8))}, {vr(X+4*s)}, {vr(acc,16) if s else 0}'

        def xl(s):
            return f'buffer_load_dwordx4 {vr(X+4*s)}, v{vL16}, {srd(S_WS)}, s{sXO + s//4} offen offset:{(s%4)*1024} sc1'
        PD = 6
        for f in range(PD):
            p(frag(f))
        self.stamp('p5')
        self.pad()
        if L0:
            a0, a1, d0 = 144, 145, 146
            p.ext([f'v_min_u32 v{a0}, {13*8}, v{vL8}', f'v_add_u32 v{a0}, s{sFX}, v{a0}',
                   f's_lshl_b32 s{sT0}, s{sTEAM}, 8', f's_add_u32 s{sT0}, s{sT0}, {WS_PUR - 32*8}', f'v_add_u32 v{a1}, s{sT0}, v{vL8}',
                   f'v_cmp_le_u32 vcc, 32, v{vL}', f'v_cndmask_b32 v{a0}, v{a0}, v{a1}, vcc'])
            lp, lo = p.newlabel('pur'), p.newlabel('purout')
            p.ext([f's_mov_b32 s{sCNT}, 0', Label(lp),
                   f'buffer_load_dwordx2 {vr(d0,2)}, v{a0}, {srd(S_WS)}, 0 offen sc1',
                   f's_add_u32 s{sCNT}, s{sCNT}, 1', f's_cmp_gt_u32 s{sCNT}, {POLL_MAX}', f's_cbranch_scc1 {lo}', 's_waitcnt vmcnt(0)',
                   f'v_xor_b32 v{d0+1}, s{sF+1}, v{d0+1}', f'v_xor_b32 v{d0}, s{sF}, v{d0}', f'v_and_b32 v{a1}, 0x0fffffff, v{d0+1}',
                   f'v_or_b32 v{d0}, v{d0}, v{a1}', f'v_cmp_ne_u32 vcc, 0, v{d0}', f's_cbranch_vccnz {lp}', Label(lo), Mark('drained_vm')])
        else:
            self.vpoll(vL8, f's{sFX}', 14)
        self.stamp('E')
        XP = int(os.environ.get('XP', 8))
        for s in range(XP):
            p(xl(s))
        if L0:
            self.flag_opt(sJFL)
            p.ext([f'v_readlane_b32 s{sT1}, v{d0+1}, 32', f'v_cmp_ne_u32 vcc, s{sT1}, v{d0+1}', 's_cmp_eq_u32 vcc_hi, 0',
                   f's_cselect_b32 s{sPURE}, {0 if os.environ.get("FORCE_IMPURE") else 1}, 0',
                   f's_cmp_eq_u32 s{sPURE}, 0', f's_cselect_b64 s[{sIMP}:{sIMP+1}], -1, 0'])
        mem, pre = {}, {}
        for f in range(84):
            mem[f] = []
            if f + PD < 84 and not (f < 56 <= f + PD):
                mem[f].append(frag(f + PD))
            if f < 56 and f % 2 == 0 and f // 2 + XP < 28:
                mem[f].append(xl(f // 2 + XP))
            if 27 <= f < 41 and f % 2 == 1:
                mem[f].append(self.stats_loads(sST, CS)[(f - 27) // 2])
            if f % 2 == 0:
                pre[f] = [Touch(vr(RING + 4 * (f % 8)) + ' ' + vr(RING + 4 * ((f + 1) % 8)) + (' ' + vr(X + 4 * (f // 2)) if f < 56 else ''))]
        if L0:
            for i in range(7):
                mem[40 + 2 * i].append(self.rawq(2, i))
        else:
            p(f's_mul_i32 s{sT0}, s{sW}, 7168')
            p(f'v_add_u32 v{vQ}, s{sT0}, v{vA1}')
            for i in range(7):
                mem[3 + 4 * i].append(Ins(f'ds_write_b128 v{vQ}, {ar(224 + 4*i)} offset:{1024*i}', 'wq'))
        for f in (0, 16, 38):
            mem[f] += self.stamp_items(f'k{f}')

        def cs_reads(tau, dst):
            return [f'ds_read_b128 {vr(dst+4*q)}, v{vCSA} offset:{tau*128 + 32*q}' for q in range(4)]
        p.ext(sched([mf(f) for f in range(56)], pre, mem, self.kv_addr() + cs_reads(1, accQ) + cs_reads(0, PK) + self.stats_reduce(CS), 6, start=30))
        self.stamp('kv')

        def epi(acc, cs, P):
            L = []
            for r in range(0, 16, 2):
                L.append(f'v_pk_fma_f32 {vr(acc+r,2)}, {vr(cs+r,2)}, {vr(vMEAN,2)}, {vr(acc+r,2)} op_sel:[0,0,0] op_sel_hi:[1,0,1]')
            for r in range(0, 16, 2):
                L.append(f'v_pk_mul_f32 {vr(acc+r,2)}, {vr(acc+r,2)}, {vr(vMEAN,2)} op_sel:[0,1] op_sel_hi:[1,1]')
                L.append(f'v_cvt_pk_bf16_f32 v{P+r//2}, v{acc+r}, v{acc+r+1}')
            return L

        def pad(P, c6, c7):
            return ['s_mov_b32 exec_lo, 0', f'v_mov_b32 v{P+6}, {c6:#x}', f'v_mov_b32 v{P+7}, {c7:#x}', 's_mov_b64 exec, -1']

        def st(P, o):
            return [Ins(f'buffer_store_dwordx4 {vr(P+4*k)}, v{vL16}, {srd(S_WS)}, s{sKV} offen offset:{o+1024*k} sc1', 'kvst') for k in range(2)]
        t0, t1 = CS, CS + 1
        p.ext(epi(accK, PK, PK) + pad(PK, 0x3f803f80, 0x3f80) + st(PK, 0))
        p.ext(epi(accV, accQ, PV) + pad(PV, 0x3f80, 0) + st(PV, 2048))
        self.stamp('kvs')
        if L0:
            R = ACC
            vcs, vones, t2, t3 = R + 28, R + 29, R + 30, R + 31
            p.ext([f'v_and_b32 v225, 3, v{vL}', 'v_lshlrev_b32 v225, 3, v225', f'v_bfe_u32 v226, v{vL}, 4, 1',
                   'v_lshl_add_u32 v225, v226, 5, v225', f'v_bfe_u32 v226, v{vL}, 2, 2', 'v_lshl_add_u32 v225, v226, 6, v225',
                   f'v_lshrrev_b32 v226, 5, v{vL}', 'v_lshl_add_u32 v225, v226, 8, v225', f'v_add_u32 v225, s{sLQ}, v225'] +
                  self.q67fix(225, 226) + [f'v_add_u32 v226, s{sLQ}, v{vL16}', f'v_mov_b32 v{vones}, s{sONES}'])
            self.xform(2, R, vcs, vones)
            p.wait('kvst')
            p.ext(self.flag_sc1(sKF))
            for i in range(28):
                p(f'v_accvgpr_write_b32 a{224+i}, v{R+i}')
            self.cs_partial((2,), vcs, t2, t3)
            p('s_waitcnt lgkmcnt(0)')
            p('s_barrier')
            self.cs_sum((2,), R, t2, t3)
        else:
            p.wait('wq')
            p('s_barrier')
        for f in range(56, 56 + PD):
            p(frag(f))
        side = [f's_lshl_b32 s{sT0}, s{sW}, 12', f's_add_u32 s{sT0}, s{sT0}, {LKV + 8*4096}',
                f'v_add_u32 v{t0}, s{sT0}, v{vL16}',
                f'ds_write_b128 v{t0}, {vr(PK)}', f'ds_write_b128 v{t0}, {vr(PK+4)} offset:1024',
                f'v_and_b32 v{t1}, 31, v{vL}', f'v_lshlrev_b32 v{t1}, 6, v{t1}', f'v_lshrrev_b32 v{t0}, 5, v{vL}',
                f'v_lshl_add_u32 v{t1}, v{t0}, 4, v{t1}', f'v_add_u32 v{t0}, s{sT0}, v{t1}',
                f'ds_write_b128 v{t0}, {vr(PV)} offset:2048', f'ds_write_b128 v{t0}, {vr(PV+4)} offset:{2048+32}',
                f'v_mul_f32 v{vRSTD}, {f32bits(28 ** -0.5 * math.log2(math.e)):#x}, v{vRSTD}']
        pre2 = {f - 56: v for f, v in pre.items() if f >= 56}
        mem2 = {f - 56: v for f, v in mem.items() if f >= 56}
        if not L0:
            mem2[22].append([Wait(['kvst'])] + self.flag_sc1(sKF))
        if L0:
            vW = 236
            p.ext([f's_lshl_b32 s{sT0}, s{sJ}, 7', f's_add_u32 s{sT0}, s{sT0}, {F_W1}', f's_lshl_b32 s{sT1}, s{sCB}, 6',
                   f's_add_u32 s{sT1}, s{sT1}, {F_WO - 14*8}', f's_lshl_b32 s{sT2}, s{sCB}, 9', f's_lshl_b32 s{sT3}, s{sW}, 7',
                   f's_add_u32 s{sT2}, s{sT2}, s{sT3}', f's_add_u32 s{sT2}, s{sT2}, {F_W2 - 22*8}',
                   f'v_mov_b32 v{vW}, s{sT0}', f'v_mov_b32 v{vW+1}, s{sT1}', f'v_cmp_le_u32 vcc, 14, v{vL}',
                   f'v_cndmask_b32 v{vW}, v{vW}, v{vW+1}, vcc', f'v_mov_b32 v{vW+1}, s{sT2}', f'v_cmp_le_u32 vcc, 22, v{vL}',
                   f'v_cndmask_b32 v{vW}, v{vW}, v{vW+1}, vcc', f'v_add_u32 v{vW}, v{vW}, v{vL8}'])
            side += self.peek_issue(vW, '0', 38)
        side2 = self.masks() + cs_reads(2, CS)
        cut = QCUT if L0 else 28
        p.ext(sched([mf(f) for f in range(56, 56 + cut)], pre2, mem2, side + ([] if L0 else side2), 6, start=0))
        self.stamp('q')
        if L0:
            p.ext(self.peek_check(vW, '0', 38, acquire=False))
        self.kv_fetch()
        p.ext(sched([mf(f) for f in range(56 + cut, 84)], {k - cut: v for k, v in pre2.items() if k >= cut},
                    {k - cut: v for k, v in mem2.items() if k >= cut}, side2 if L0 else [], 6))
        QF = 136
        p.ext(epi(accQ, CS, QF))
        p.ext(pad(QF, 0, 0x3f800000))
        self.pad()
        p('s_barrier')
        self.stamp('p1')

    sKD, sKL, sKFl, sNULL = sO + 11, sO + 13, (sO + 15, 78), 79

    def kv_addr(self):
        sKD, sKL, sKFl, sNULL = self.sKD, self.sKL, self.sKFl, self.sNULL
        L = [f's_mov_b32 s{sNULL}, 0']
        for k in range(2):
            L += [f's_lshl_b32 s{sT0}, s{sW}, 1', f's_add_u32 s{sT0}, s{sT0}, {k}',
                  f's_lshl_b32 s{sKL+k}, s{sT0}, 12', f's_add_u32 s{sKL+k}, s{sKL+k}, {LKV}',
                  f's_lshl_b32 s{sT1}, s{sA}, 2', f's_add_u32 s{sT0}, s{sT0}, s{sT1}',
                  [f's_cmp_lt_u32 s{sT0}, 8', f's_cselect_b32 s{sT1}, {STRIDE}, 0'],
                  f's_sub_u32 s{sT1}, s{sLB}, s{sT1}', f's_and_b32 s{sT0}, s{sT0}, 7',
                  [f's_cmp_lt_i32 s{sT1}, {TEAM0}', f's_cselect_b32 s{sT2}, {1 << k}, 0',
                   f's_cselect_b32 s{sT1}, s{sLB}, s{sT1}', f's_cselect_b32 s{sT0}, s{sTP}, s{sT0}'],
                  f's_or_b32 s{sNULL}, s{sNULL}, s{sT2}', f's_lshl_b32 s{sT2}, s{sJ}, 3', f's_add_u32 s{sT0}, s{sT0}, s{sT2}',
                  f's_lshl_b32 s{sKD+k}, s{sT0}, 12', f's_add_u32 s{sKD+k}, s{sKD+k}, s{sT1}',
                  f's_lshl_b32 s{sT0}, s{sT0}, 7', f's_add_u32 s{sT0}, s{sT0}, s{sT1}', f's_add_u32 s{sKFl[k]}, s{sT0}, {O_FKV}']
        return L

    def masks(self):
        MW, MD, t2, t3 = 144, 160, 238, 239
        L = [f'v_and_b32 v{t2}, 31, v{vL}', f'v_lshrrev_b32 v{t3}, 5, v{vL}', f'v_lshlrev_b32 v{t3}, 2, v{t3}',
             f'v_sub_u32 v{t2}, v{t2}, v{t3}', f'v_mov_b32 v{t3}, {f32bits(-1e30):#x}']
        for r in range(0, 16, 2):
            k0, k1 = 8 * (r // 4) + r % 4, 8 * (r // 4) + r % 4 + 1
            L.append([f'v_cmp_le_i32 vcc, {k0}, v{t2}', f'v_cmp_le_i32 s[4:5], {k1}, v{t2}'])
            L += [f'v_cndmask_b32_e64 v{MD+r}, v{t3}, 0, vcc', f'v_cndmask_b32_e64 v{MD+r+1}, v{t3}, 0, s[4:5]',
                  f'v_cndmask_b32_e64 v{MW+r}, 0, v{t3}, vcc', f'v_cndmask_b32_e64 v{MW+r+1}, 0, v{t3}, s[4:5]']
        return L

    def kv_fetch(self):
        p = self.p
        t0, t1, Z, NK = 16, 17, 20, 2
        sKD, sKL, sKFl, sNULL = self.sKD, self.sKL, self.sKFl, self.sNULL
        p(f'v_bfe_u32 v{t0}, v{vL}, 1, 1')
        p(f'v_lshlrev_b32 v{t0}, 10, v{t0}')
        p(f'v_and_b32 v{t1}, 1, v{vL}')
        p(f'v_lshl_add_u32 v{t0}, v{t1}, 9, v{t0}')
        p(f'v_lshrrev_b32 v{t1}, 2, v{vL}')
        p(f'v_lshl_add_u32 v{t0}, v{t1}, 4, v{t0}')
        lp, lo = p.newlabel('kvpoll'), p.newlabel('kvpollout')
        self.stamp('w1')
        p('s_waitcnt lgkmcnt(0)')
        p(f's_mov_b32 s{sCNT}, 0')
        p.label(lp)
        for k in range(NK):
            p(f's_buffer_load_dwordx2 s[{sPOLL+2*k}:{sPOLL+2*k+1}], {srd(S_WS)}, s{sKFl[k]} glc')
        p(f's_add_u32 s{sCNT}, s{sCNT}, 1')
        p(f's_cmp_gt_u32 s{sCNT}, {POLL_MAX}')
        p(f's_cbranch_scc1 {lo}')
        p('s_waitcnt lgkmcnt(0)')
        for k in range(NK):
            p(f's_cmp_eq_u64 s[{sPOLL+2*k}:{sPOLL+2*k+1}], s[{sF}:{sF+1}]')
            p(f's_cbranch_scc0 {lp}')
        p.label(lo)
        self.stamp('kvf')
        for k in range(NK):
            lnull, lb = p.newlabel('null'), p.newlabel('nullback')
            p(f's_bitcmp1_b32 s{sNULL}, {k}')
            p(f's_cbranch_scc1 {lnull}')
            p.mark('maybe_begin')
            p(f's_mov_b32 m0, s{sKL+k}')
            p(f's_sub_u32 s{sT5}, s{sKD+k}, 768')
            p(f'buffer_load_dwordx4 v{vL16}, {srd(S_WS)}, s{sKD+k} offen sc1 lds')
            p(f'buffer_load_dwordx4 v{vL16}, {srd(S_WS)}, s{sKD+k} offen offset:1024 sc1 lds')
            p(f'buffer_load_dwordx4 v{t0}, {srd(S_WS)}, s{sKD+k} offen offset:2048 sc1 lds')
            p(f'buffer_load_dwordx4 v{t0}, {srd(S_WS)}, s{sT5} offen offset:3072 sc1 lds')
            p.mark('maybe_end')
            p.label(lb)
            self.tail.append((lnull, [
                f'v_add_u32 v{t1}, s{sKL+k}, v{vL16}',
                f'v_mov_b32 v{Z}, 0', f'v_mov_b32 v{Z+1}, 0', f'v_mov_b32 v{Z+2}, 0', f'v_mov_b32 v{Z+3}, 0'] +
                [f'ds_write_b128 v{t1}, {vr(Z)} offset:{o}' for o in (0, 2048, 3072)] +
                ['s_mov_b32 exec_lo, 0', f'v_mov_b32 v{Z+3}, 0xf1490000', 's_mov_b64 exec, -1',
                 f'ds_write_b128 v{t1}, {vr(Z)} offset:1024', f's_branch {lb}']))

    def attn(self):
        p, L0 = self.p, self.L == 0
        KF, MW, MD, OA, QF, PB, VF = 32, 144, 160, 192, 136, 208, 224
        STL = (104, 120, 176)
        t0, t1 = 104, 105
        t2, t3 = 106, 107
        vKA, vVA = vT, vT + 1
        p(f's_lshl_b32 s{sT0}, s{sW}, 12')
        p(f's_add_u32 s{sT0}, s{sT0}, {LKV}')
        p(f'v_add_u32 v{vKA}, s{sT0}, v{vL16}')
        p(f'v_lshrrev_b32 v{t2}, 5, v{vL}')
        p(f'v_bfe_u32 v{t3}, v{vL}, 2, 2')
        p(f'v_lshl_add_u32 v{t2}, v{t2}, 2, v{t3}')
        p(f'v_lshlrev_b32 v{vVA}, 6, v{t2}')
        p(f'v_bfe_u32 v{t2}, v{vL}, 4, 1')
        p(f'v_lshl_add_u32 v{vVA}, v{t2}, 5, v{vVA}')
        p(f'v_and_b32 v{t2}, 1, v{vL}')
        p(f'v_lshl_add_u32 v{vVA}, v{t2}, 4, v{vVA}')
        p(f'v_bfe_u32 v{t2}, v{vL}, 1, 1')
        p(f'v_lshl_add_u32 v{vVA}, v{t2}, 3, v{vVA}')
        p(f'v_add_u32 v{vVA}, s{sT0}, v{vVA}')
        sOD, sOF, sWO = sO, sO + 1, sO + 2
        p(f's_lshl_b32 s{sT0}, s{sTP}, 4')
        p(f's_add_u32 s{sT0}, s{sT0}, s{sJ}')
        p.ext(self.roff(sOD, sT0, 2048, O_O))
        p.ext(self.off(sOF, sT0, 8, O_FO))
        p(f's_lshl_b32 s{sWO}, s{sCB}, 2')
        p(f's_add_u32 s{sWO}, s{sWO}, s{sW}')
        p(f's_lshl_b32 s{sWO}, s{sWO}, 14')
        p(f's_add_u32 s{sWO}, s{sWO}, {WOT}')
        for g in range(1, 4):
            p(f's_add_u32 s{sWO+g}, s{sWO}, {4096*g}')
        vPT = vT + 12
        p(f'v_lshlrev_b32 v{vPT}, 7, v{vL}')
        p(f'v_add_u32 v{vPT}, s{sOD}, v{vPT}')
        p(f's_lshl_b32 s{sT0}, s{sTP}, 7')
        p(f's_lshl_b32 s{sT1}, s{sRB}, 8')
        p(f's_lshl_b32 s{sT2}, s{sRHO}, 7')
        p(f's_add_u32 s{sT2}, s{sT2}, s{sT1}')
        p(f's_mul_i32 s{sT3}, s{sT2}, 28')
        p(f's_lshl_b32 s{sT4}, s{sCB}, 9')
        p(f's_add_u32 s{sT3}, s{sT3}, s{sT4}')
        p(f's_lshl_b32 s{sT4}, s{sNU}, 8')
        p(f's_add_u32 s{sT3}, s{sT3}, s{sT4}')
        for lane, (r, c) in enumerate([(sT0, O_FO), (sT1, O_FO), (sT1, O_FO + 128), (sT0, O_FX1), (sT2, O_FX1),
                                       (sT3, O_ST1), (sT3, O_ST1 + 128), (sT0, O_FH), (sT1, O_FH), (sT1, O_FH + 128),
                                       (sT0, O_FH + 1024), (sT1, O_FH + 1024), (sT1, O_FH + 1024 + 128)]):
            p(f's_add_u32 s{sT4}, s{r}, {c}')
            p(f's_add_u32 s{sT4}, s{sT4}, s{sLB}')
            p(f'v_writelane_b32 v{vPT}, s{sT4}, {16 + lane}')
        nxt = []
        if L0:
            nxt = [(sT3, LSTRIDE + O_STA), (sT3, LSTRIDE + O_STA + 128), (sT2, LSTRIDE + O_FXA), (sT0, LSTRIDE + O_FXA)]
            for k, (r, c) in enumerate(nxt):
                p(f's_add_u32 s{4+k}, s{r}, {c}')
                p(f's_add_u32 s{4+k}, s{4+k}, s{sLB}')
        vZ = vT + 8
        p(f's_lshl_b32 s{sT0}, s{sNU}, 10')
        p(f'v_xor_b32 v{vZ}, s{sT0}, v{vL16}')
        p(f'v_xor_b32 v{vZ+1}, 1024, v{vZ}')
        vT7 = vT + 7
        p(f'v_lshlrev_b32 v{vT7}, 7, v{vL}')
        p.ext(self.pub_offsets(O_X1, O_ST1, O_FX1))
        p(f's_sub_u32 s{sT0}, s{sXD}, {29*128}')
        p(f'v_add_u32 v{t2}, s{sT0}, v{vT7}')
        p(f'v_cmp_lt_u32 vcc, 28, v{vL}')
        p(f'v_cndmask_b32 v{vPT}, v{vPT}, v{t2}, vcc')
        for k in range(len(nxt)):
            p(f'v_writelane_b32 v{vPT}, s{4+k}, {45 + k}')
        sWT = sO + 6
        p(f's_lshl_b32 s{sT0}, s{sCB}, 2')
        p(f's_add_u32 s{sT0}, s{sT0}, s{sRB}')
        p(f's_lshl_b32 s{sWT}, s{sT0}, 14')
        p(f's_lshl_b32 s{sT2}, s{sW}, 12')
        p(f's_add_u32 s{sWT}, s{sWT}, s{sT2}')
        p(f's_add_u32 s{sWT}, s{sWT}, {WOT}')
        touches = ['s_mov_b32 exec_hi, 0', f'buffer_load_dword a255, v{vT7}, {srd(S_WS)}, s{sWT} offen sc1', self.setexec(45 + len(nxt)),
                   f'buffer_load_dword a255, v{vPT}, {srd(S_WS)}, 0 offen sc1', 's_mov_b64 exec, -1']
        bg = self.w1_dma(0)
        n1 = 0
        while not is_mem(bg[0]) or n1 < NG1:
            n1 += is_mem(bg[0])
            p.ext([bg.pop(0)])
            if not bg:
                break
        bw = []
        if L0:
            p.ext(self.w2_setup(sO + 7, (vT + 10, vT + 11)))
            bw = self.w2_loads(sO + 7, (vT + 10, vT + 11))
            for _ in range(NW1):
                p.ext([bw.pop(0)])
        self.pad()
        p(f's_waitcnt vmcnt({NG1 + (NW1 if L0 else 0)}) lgkmcnt(0)')
        self.stamp('kvd')
        p('s_barrier')
        self.stamp('A')
        p.ext(touches)

        def kread(t):
            return [f'ds_read_b128 {vr(KF+8*t+4*k)}, v{vKA} offset:{t*4096+k*1024}' for k in range(2)]

        def qk(t):
            s = STL[t % 3]
            c = vr(MW, 16) if t == 0 else vr(MD, 16) if t == 8 else '0'
            return [f'{MF32} {vr(s,16)}, {vr(KF+8*t)}, {vr(QF)}, {c}',
                    f'{MF32} {vr(s,16)}, {vr(KF+8*t+4)}, {vr(QF+4)}, {vr(s,16)}']
        vM, vM2 = vT + 2, vT + 3

        def mx(t):
            s = STL[t % 3]
            L = []
            for i in range(8):
                d = vM if i % 2 == 0 else vM2
                if t == 0 and i < 2:
                    L.append(f'v_max_f32 v{d}, v{s+2*i}, v{s+2*i+1}')
                else:
                    L.append(f'v_max3_f32 v{d}, v{s+2*i}, v{s+2*i+1}, v{d}')
            return L

        def vread(t):
            d = VF + 8 * (t % 2)
            return [f'ds_read_b64_tr_b16 {vr(d+4*kv+2*jj,2)}, v{vVA} offset:{t*4096+2048+(16*kv+8*jj)*64}'
                    for kv in range(2) for jj in range(2)]
        def popbg(bg=bg):
            L = []
            while bg:
                x = bg.pop(0)
                L.append(x)
                if is_mem(x):
                    break
            return L
        for t in range(4):
            p.ext(kread(t))
        q = qk(0)
        p.ext([q[0]] + kread(4) + [q[1]] + kread(5))
        q = qk(1)
        p.ext([q[0]] + kread(6) + popbg(bw) + [q[1]] + kread(7) + popbg(bw))
        for t in range(9):
            m = mx(t)
            if t + 2 < 9:
                q = qk(t + 2)
                extra = kread(8) if t == 0 else vread(0)[:2] if t == 5 else vread(0)[2:] if t == 6 else []
                if t % 2 == 1:
                    extra = extra + popbg()
                p.ext([q[0]] + extra + popbg(bw) + m[:4] + [q[1]] + popbg(bw) + m[4:])
            else:
                p.ext(m)
        self.stamp('a1')
        a, b2, r1 = vT + 4, vT + 5, vT + 6
        p(f'v_max_f32 v{vM}, v{vM}, v{vM2}')
        p(f'v_mov_b32 v{a}, v{vM}')
        p(f'v_permlane32_swap_b32 v{vM}, v{a}')
        p(f'v_max_f32 v{vM}, v{vM}, v{a}')
        p(f'v_xor_b32 v{vM}, 0x80000000, v{vM}')
        p(f'v_and_b32 v{a}, 0xffff0000, v{vM}')
        p(f'v_sub_f32 v{r1}, v{vM}, v{a}')
        p(f'v_and_b32 v{a}, 0xffff0000, v{r1}')
        p(f'v_sub_f32 v{b2}, v{r1}, v{a}')
        p('s_mov_b32 exec_lo, 0')
        p(f'v_perm_b32 v{QF+6}, v{r1}, v{vM}, s{sPERM}')
        p(f'v_perm_b32 v{QF+7}, 1.0, v{b2}, s{sPERM}')
        p('s_mov_b64 exec, -1')

        def ex(t):
            s = STL[t % 3]
            pb = PB + 8 * (t % 2)
            L = []
            for i in range(8):
                L.append(f'v_exp_f32 v{s+2*i}, v{s+2*i}')
                L.append(f'v_exp_f32 v{s+2*i+1}, v{s+2*i+1}')
                if i:
                    L.append(f'v_cvt_pk_bf16_f32 v{pb+i-1}, v{s+2*i-2}, v{s+2*i-1}')
            L.append(f'v_cvt_pk_bf16_f32 v{pb+7}, v{s+14}, v{s+15}')
            return L

        def pv(t):
            d = VF + 8 * (t % 2)
            pb = PB + 8 * (t % 2)
            return [f'{MF32} {vr(OA,16)}, {vr(d)}, {vr(pb)}, {vr(OA,16) if t else 0}',
                    f'{MF32} {vr(OA,16)}, {vr(d+4)}, {vr(pb+4)}, {vr(OA,16)}']

        self.pad()

        def wol(i):
            ks, z = i // 2, i % 2
            return f'buffer_load_dwordx4 {vr(32+4*i)}, v{vZ+z}, {srd(S_WS)}, s{sWO + ks//2} offen offset:{(ks%2)*2048} sc1'
        p.ext(qk(0))
        p.ext(qk(1))
        for t in range(9):
            e = ex(t)
            mf = (pv(t - 1) if t else []) + (qk(t + 2) if t + 2 < 9 else [])
            out = []
            pos = [2, 7, 12, 17]
            for i, x in enumerate(e):
                out.append(x)
                if i in pos and pos.index(i) < len(mf):
                    k = pos.index(i)
                    out.append(mf[k])
                    if t + 1 < 9:
                        if t == 0:
                            out += vread(1)[2 * k:2 * k + 2]
                        elif k in (1, 2):
                            out += vread(t + 1)[2 * (k - 1):2 * (k - 1) + 2]
                        elif t == 7 and k == 1:
                            pass
                    if t < 6 and k in (0, 3) or t == 0:
                        out += popbg()
                    if t < 7:
                        out += popbg(bw) + (popbg(bw) if k % 2 or t == 0 else [])
                    if t >= 7:
                        out += [wol(8 * (t - 7) + 4 * k + q) for q in range(4)]
            if t == 7:
                out = out[:-3] + vread(8)[2:] + out[-3:]
            p.ext(out)
        assert not bg and not bw, (len(bg), len(bw))
        p.ext(pv(8))
        self.stamp('a2')
        p(f'v_mov_b32 v{a}, v{OA+12}')
        p(f'v_mov_b32 v{b2}, v{OA+12}')
        p(f'v_permlane32_swap_b32 v{a}, v{b2}')
        p(f'v_rcp_f32 v{b2}, v{b2}')
        for i in range(8):
            p(f'v_pk_mul_f32 {vr(OA+2*i,2)}, {vr(OA+2*i,2)}, {vr(a,2)} op_sel:[0,1] op_sel_hi:[1,1]')
            p(f'v_cvt_pk_bf16_f32 v{PB+i}, v{OA+2*i}, v{OA+2*i+1}')
            if i % 4 == 3:
                p(f'buffer_store_dwordx4 {vr(PB+i-3)}, v{vL16}, {srd(S_WS)}, s{sOD} offen offset:{(i//4)*1024}', tok='ost')
        self.publish(['ost'], sOF)
        self.stamp('att')

    def reduce_writes(self, ACC):
        return [Ins(f'ds_write_b128 v{vRW+x-1}, {vr(ACC+16*x+4*c)} offset:{c*1024}', 'rw') for x in range(1, 4) for c in range(4)]

    def reduce_finish(self, ACC, TMP):
        p = self.p
        p.wait('rw')
        self.pad()
        p('s_barrier')
        for c in range(4):
            for x in range(3):
                p(f'ds_read_b128 {vr(TMP+16*x+4*c)}, v{vRW+3} offset:{x*4096+c*1024}')
        for c in range(8):
            p(f'v_pk_add_f32 {vr(TMP+2*c,2)}, {vr(TMP+2*c,2)}, {vr(TMP+16+2*c,2)}')
            p(f'v_pk_add_f32 {vr(ACC+2*c,2)}, {vr(ACC+2*c,2)}, {vr(TMP+32+2*c,2)}')
            p(f'v_pk_add_f32 {vr(ACC+2*c,2)}, {vr(ACC+2*c,2)}, {vr(TMP+2*c,2)}')

    def yoffs(self, dst, mul, add):
        L = []
        for y in range(2):
            L += [f's_xor_b32 s{sT0}, s{sRHO}, {y}', f's_lshl_b32 s{sT1}, s{sRB}, 1', f's_add_u32 s{sT0}, s{sT0}, s{sT1}',
                  f's_lshl_b32 s{sT0}, s{sT0}, 2', f's_add_u32 s{sT0}, s{sT0}, s{sW}'] + self.roff(dst + y, sT0, mul, add)
        return L

    def p3(self):
        p, L0 = self.p, self.L == 0
        WO, OF, ACC, RING = 32, 96, 160, 200

        def colsum(part, AC=ACC, RG=RING, T=vT, extra=()):
            for i in range(4):
                p(f'v_mov_b32 v{T+4+i}, s{sONES}')
            p(f's_lshl_b32 s{sT0}, s{sW}, 10')
            if part == 0:
                p(f'v_add_u32 v{T}, s{sT0}, v{vA1}')
            else:
                p(f's_min_u32 s{sT0}, s{sT0}, 2048')
                p(f's_add_u32 s{sT0}, s{sT0}, {LW1}')
                p(f'v_add_u32 v{T}, s{sT0}, v{vA1}')
            NRG = 4
            rd = lambda f: f'ds_read_b128 {vr(RG+4*(f%NRG))}, v{T} offset:{f*(4096, 3072)[part]}'
            for f in range(NRG - 1):
                p(rd(f))
            for f in range(14):
                p(f'{MF16} {vr(AC)}, {vr(T+4)}, {vr(RG+4*(f%NRG))}, {vr(AC) if f else 0}')
                if f + NRG - 1 < 14:
                    p(rd(f + NRG - 1))
                if f % 3 == 1 and extra:
                    p(extra.pop(0))
            p(f's_lshl_b32 s{sT0}, s{sW}, 6')
            p(f's_add_u32 s{sT0}, s{sT0}, {L_CS1 + 256*part}')
            p(f'v_and_b32 v{T}, 15, v{vL}')
            p(f'v_lshlrev_b32 v{T}, 2, v{T}')
            p(f'v_add_u32 v{T}, s{sT0}, v{T}')
            p(f'ds_write_b32 v{T}, v{AC}')
            p('s_waitcnt lgkmcnt(0)')
        w1d = []
        self.pad()
        p('s_barrier')
        ljoin, lidle = p.newlabel('p3join'), p.newlabel('p3idle')
        p(f's_cmp_ge_u32 s{sM}, 28')
        p(f's_cbranch_scc1 {lidle}')
        p.mark('maybe_begin')
        sFO, sY = sO, sO + 2
        p(f's_lshl_b32 s{sT0}, s{sRB}, 3')
        p(f's_add_u32 s{sT0}, s{sT0}, s{sW}')
        p.ext(self.off(sFO, sT0, 32, O_FO))
        self.poll_first(vFLG, f's{sFO}', 8)
        p.ext(self.yoffs(sY, 8192, O_O))
        p(f's_add_u32 s{sY+2}, s{sY}, 4096')
        p(f's_add_u32 s{sY+3}, s{sY+1}, 4096')
        self.vpoll(vFLG, f's{sFO}', 8)
        self.stamp('B')

        def ld(ks, y):
            return f'buffer_load_dwordx4 {vr(OF+(ks*2+y)*4)}, v{vL16}, {srd(S_WS)}, s{sY + 2*(ks//4) + y} offen offset:{(ks%4)*1024} sc1'

        def mf(ks, x):
            y, z = x >> 1, x & 1
            c = vr(ACC + 16 * x, 16) if ks else (vr(vRES, 16) if x == 0 else '0')
            return f'{MF32} {vr(ACC+16*x,16)}, {vr(WO+(ks*2+z)*4)}, {vr(OF+(ks*2+y)*4)}, {c}'
        for ks in range(5):
            for y in range(2):
                p(ld(ks, y))
        rest = list(w1d)
        for ks in range(8):
            for x in (1, 2, 3):
                p(mf(ks, x))
                if ks + 5 < 8 and x < 3:
                    p(ld(ks + 5, x - 1))
                elif ks >= 3 and rest:
                    y = rest.pop(0)
                    p.ext([y])
                    while rest and not is_mem(y):
                        y = rest.pop(0)
                        p.ext([y])
        assert not rest
        self.stamp('p3mm')
        p.ext(sched([mf(ks, 0) for ks in range(8)], {}, {}, self.reduce_writes(ACC), 2, start=2))
        self.stamp('p3rw')
        self.reduce_finish(ACC, 32)
        self.stamp('p3rd')
        P = 96
        for i in range(8):
            p(f'v_cvt_pk_bf16_f32 v{P+i}, v{ACC+2*i}, v{ACC+2*i+1}')
        self.x_store(P, vX1A, (0, 512))
        self.publish(['xst'], sXF)
        self.stamp('p3pub')
        p.ext(self.res_unpack(P))
        p.mark('maybe_end')
        p.label(ljoin)
        idle = [f'v_lshlrev_b32 v{vT}, 7, v{vL}', f's_lshl_b32 s{sT0}, s{sCB}, 2', f's_add_u32 s{sT0}, s{sT0}, s{sW}']
        if L0 and IDLE3:
            idle += [f's_lshl_b32 s{sT1}, s{sT0}, 7', f's_add_u32 s{sT1}, s{sT1}, {F_W1}'] + self.poll_loop(vL8, f's{sT1}', 14)
        idle += [f's_mul_i32 s{sT1}, s{sT0}, 100352'] + self.prefetch(vT, sT1, W1T + 55296, IDLE3)
        self.tail.append((lidle, idle + [f's_branch {ljoin}']))
        self.colsum = colsum
        self.stamp('p3')

    def p45(self):
        p, L0 = self.p, self.L == 0
        X, ACC, RING, CS = 32, 144, 200, 224
        sXO, sST, sFX, sH, sHF = sO, sO + 4, sO + 5, sO + 6, sO + 8
        sFH, sST5, sW2 = sO + 9, sO + 10, sO + 11
        sY = [76, 77, 78, 79, sO + 12, sO + 13, sO + 14, sO + 15]
        vTC, vHA, vHB, vZ, vLb, PO = vT, vT + 1, vT + 2, (vT + 3, vT + 13), vT + 12, vT + 4
        p('s_barrier')
        p.ext(self.w1_dma(1))
        p.ext(self.off(sFX, sTP, 128, O_FX1))
        if False:
            p.ext([f's_lshl_b32 s{sT1}, s{sJ}, 7', f's_add_u32 s{sT1}, s{sT1}, {F_WQ - 14*8}',
                   f'v_mov_b32 v{PO}, s{sFX}', f'v_mov_b32 v{PO+1}, s{sT1}', f'v_cmp_le_u32 vcc, 14, v{vL}',
                   f'v_cndmask_b32 v{PO}, v{PO}, v{PO+1}, vcc', f'v_add_u32 v{PO}, v{PO}, v{vL8}'])
            self.poll_first(PO, '0', 28)
        else:
            self.poll_first(vL8, f's{sFX}', 14)
        p.ext(self.xoff(sXO, sTP, 28672, O_X1))
        for g in range(1, 4):
            p(f's_add_u32 s{sXO+g}, s{sXO}, {8192*g}')
        p.ext(self.off(sST, sTP, 3584, O_ST1))
        p(f's_lshl_b32 s{sT0}, s{sTP}, 4')
        p(f's_add_u32 s{sT0}, s{sT0}, s{sJ}')
        p.ext(self.off(sH, sT0, 7168, O_H))
        p(f's_add_u32 s{sH+1}, s{sH}, 4096')
        p.ext(self.off(sHF, sT0, 8, O_FH))
        p.ext([f'v_lshrrev_b32 v{vCSA}, 4, v{vL}', f'v_lshlrev_b32 v{vCSA}, 4, v{vCSA}', f'v_add_u32 v{vCSA}, {L_CS1}, v{vCSA}',
               f'v_lshrrev_b32 v{vHA}, 5, v{vL}', f'v_lshlrev_b32 v{vHA}, 10, v{vHA}',
               f'v_bfe_u32 v{vHB}, v{vL}, 4, 1', f'v_lshl_add_u32 v{vHA}, v{vHB}, 9, v{vHA}',
               f'v_and_b32 v{vTC}, 15, v{vL}', f'v_lshl_add_u32 v{vHA}, v{vTC}, 4, v{vHA}',
               f'v_lshlrev_b32 v{vHB}, 3, v{vHB}', f'v_lshl_add_u32 v{vHB}, v{vTC}, 4, v{vHB}',
               f'v_lshrrev_b32 v{vTC}, 5, v{vL}', f'v_lshl_add_u32 v{vHB}, v{vTC}, 9, v{vHB}',
               f'v_add_u32 v{vLb}, 4096, v{vL16}', f'v_add_u32 v{vZ[0]}, {LW1}, v{vA1}'])
        sRBc = sPOLL
        p(f's_min_u32 s{sRBc}, s{sRB}, 3')
        p(f's_lshl_b32 s{sT0}, s{sRBc}, 3')
        p(f's_add_u32 s{sT0}, s{sT0}, s{sW}')
        p.ext(self.off(sFH, sT0, 32, O_FH))
        for y in range(2):
            p.ext([f's_xor_b32 s{sT0}, s{sRHO}, {y}', f's_lshl_b32 s{sT1}, s{sRBc}, 1', f's_add_u32 s{sT0}, s{sT0}, s{sT1}',
                   f's_lshl_b32 s{sT0}, s{sT0}, 2', f's_add_u32 s{sT0}, s{sT0}, s{sW}'] + self.off(sT2, sT0, 28672, O_H))
            for sl in range(4):
                p.ext([f's_add_u32 s{sT0}, {ROT}, {sl}', f's_and_b32 s{sT0}, s{sT0}, 3', f's_mul_i32 s{sT0}, s{sT0}, 7168',
                       f's_add_u32 s{sY[2*sl+y]}, s{sT2}, s{sT0}'])
        p(f's_lshl_b32 s{sT0}, s{sRBc}, 1')
        p(f's_add_u32 s{sT0}, s{sT0}, s{sRHO}')
        p.ext(self.off(sST5, sT0, 3584, O_ST1))
        if L0:
            p.ext(self.pub_offsets(O_XA + LSTRIDE, O_STA + LSTRIDE, O_FXA + LSTRIDE))
        p(f'v_lshlrev_b32 v{vTC}, 7, v{vL}')
        seq = [(t, s) for s in range(14) for t in range(4)] + [(t, s) for s in range(14) for t in range(4, 7)]

        def frag(f):
            base, off = (vA1, f * 1024) if f < 56 else (vZ[0], (f - 56) * 1024)
            return f'ds_read_b128 {vr(RING + 4*(f % 6))}, v{base} offset:{off}'

        def mf(f, u):
            t, s = seq[f]
            return f'{MF16} {vr(ACC+8*t+4*u)}, {vr(RING+4*(f%6))}, {vr(X+4*(2*s+u))}, {vr(ACC+8*t+4*u) if s else 0}'

        def xl(i):
            return f'buffer_load_dwordx4 {vr(X+4*i)}, v{(vL16, vLb)[(i//4)%2]}, {srd(S_WS)}, s{sXO + i//8} offen offset:{(i%4)*1024} sc1'

        def cs_reads(tiles):
            return [f'ds_read_b128 {vr(CS+4*(t%4))}, v{vCSA} offset:{t*64}' for t in tiles]
        PD = 4
        for f in range(PD):
            p(frag(f))
        self.pad()
        self.vpoll(vL8, f's{sFX}', 14)
        self.stamp('C')
        XP = int(os.environ.get('XP', 8))
        for i in range(XP):
            p(xl(i))
        p('s_barrier')
        if L0:
            extra = [xl(i) for i in range(XP, XP + 10)]
            self.colsum(0, AC=176, RG=180, T=vT + 4, extra=extra)
            self.colsum(1, AC=176, RG=180, T=vT + 4, extra=extra)
            XP += 10
        mem, pre = {}, {}
        for f in range(98):
            mem[2 * f] = [frag(f + PD)] if f + PD < 98 else []
            mem[2 * f + 1] = []
            if f < 56 and f % 2 == 0 and f // 2 + XP < 28:
                mem[2 * f + 1] = [xl(f // 2 + XP)]
            if 27 <= f < 41 and f % 2 == 1:
                mem[2 * f + 1] = [self.stats_loads(sST, CS)[(f - 27) // 2]]
            if f % 2 == 0:
                tch = vr(RING + 4 * (f % 6)) + ' ' + vr(RING + 4 * ((f + 1) % 6))
                if f < 56 and f % 4 == 0:
                    tch += ' ' + vr(X + 8 * (f // 4), 8)
                pre[2 * f] = [Touch(tch)]
        i = 2 * 41 + 1
        if L0:
            mem[i] += self.touch(vTC, sXD, 0, 16) if XT else []
        for f in (0, 16, 38):
            mem[2 * f + 1] += self.stamp_items(f'g{f}')
        mfs = [mf(f, u) for f in range(98) for u in range(2)]
        side = self.stats_reduce(CS) + [f'v_mov_b32 v{vRSTD}, v{vMEAN}', 's_nop 0', f'v_permlane16_swap_b32 v{vMEAN}, v{vRSTD}']
        p.ext(sched(mfs[:112], pre, mem, side, 2, start=88))
        self.stamp('p4m1')
        self.pad()
        if L0:
            p('s_barrier')
        p.ext(cs_reads([0, 1, 2, 3]))
        self.stamp('p4g1')

        HSC = 'sc1'

        def epi(tiles, tok):
            L = []
            pairs = [tiles[i:i + 2] for i in range(0, len(tiles), 2)]
            n = 0
            for pr in pairs:
                for u in range(2):
                    po = PO + 4 * (n % 2)
                    n += 1
                    for k, t in enumerate(pr):
                        a = ACC + 8 * t + 4 * u
                        for r in (0, 2):
                            L.append(f'v_pk_fma_f32 {vr(a+r,2)}, {vr(CS+4*(t%4)+r,2)}, {vr(vMEAN,2)}, {vr(a+r,2)} op_sel:[0,{u},0] op_sel_hi:[1,{u},1]')
                    for k, t in enumerate(pr):
                        a = ACC + 8 * t + 4 * u
                        for r in range(2):
                            L.append(f'v_cvt_pk_bf16_f32 v{po+2*k+r}, v{a+2*r}, v{a+2*r+1}')
                    for k, t in enumerate(pr):
                        for r in range(2):
                            L.append(f'v_pk_max_i16 v{po+2*k+r}, v{po+2*k+r}, 0')
                    t = pr[0]
                    so, off = (sH, t * 1024) if t < 4 else (sH + 1, (t - 4) * 1024)
                    if len(pr) == 2:
                        L.append(Ins(f'buffer_store_dwordx4 {vr(po)}, v{vHA}, {srd(S_WS)}, s{so} offen offset:{off+u*256} {HSC}', tok))
                    else:
                        L.append(Ins(f'buffer_store_dwordx2 {vr(po,2)}, v{vHB}, {srd(S_WS)}, s{so} offen offset:{off+u*256} {HSC}', tok))
            return L
        p.ext(epi([0, 1, 2, 3], 'h1'))
        self.stamp('p4e1')
        HR, AC5, NR, PD5, TAIL = 32, 160, 16, int(os.environ.get('PD5', 5)), int(os.environ.get('TAIL', 14))
        order = ORDER

        def ld(i, y):
            sl, sg = order[i] // 7, order[i] % 7
            return (f'buffer_load_dwordx4 {vr(HR+((i%NR)*2+y)*4)}, v{(vL16, vLb)[sg//4]}, {srd(S_WS)}, s{sY[2*sl+y]} '
                    f'offen offset:{(sg%4)*1024} sc1')

        def m5(i, x):
            y, z = x >> 1, x & 1
            return f'{MF32} {vr(AC5+16*x,16)}, {ar(order[i]*8+z*4)}, {vr(HR+((i%NR)*2+y)*4)}, {vr(AC5+16*x,16) if i else 0}'
        pre2 = {i - 112: v for i, v in pre.items() if i >= 112}
        mem2 = {i - 112: v for i, v in mem.items() if i >= 112}
        NW2A = 14 if L0 else 0
        mem2[H1POS] = self.publish_items(['h1'], sHF, 0, self.touch(vTC, sH, 0, 32) if PT else ()) + mem2[H1POS]
        mem2[59] += cs_reads([4, 5])
        mem2[61] += cs_reads([6])
        e2 = epi([4, 5, 6], 'h2')
        if PK1 < 64:
            mem2[PK1] += self.peek_issue(vFLG, f's{sFH}', 8)
            mem2[63] += self.peek_check(vFLG, f's{sFH}', 8)
            for k in range(2 * PD5):
                mem2[min(65 + 2 * k, 83)].append(ld(k // 2, k % 2))
        else:
            mem2[PK1] += self.peek_issue(vFLG, f's{sFH}', 8)
            first_store = next(i for i, x in enumerate(e2) if is_mem(x))
            e2 = e2[:first_store] + self.peek_check(vFLG, f's{sFH}', 8) + [ld(k // 2, k % 2) for k in range(2 * PD5)] + e2[first_store:]
        p.ext(sched(mfs[112:], pre2, mem2, [], 2, start=0))
        self.stamp('p4g2')
        p.ext(e2)
        self.stamp('p4')
        lskip, ljoin = p.newlabel('p5skip'), p.newlabel('p5join')
        self.pad()
        p(f's_cmp_ge_u32 s{sM}, 28')
        p(f's_cbranch_scc1 {lskip}')
        idle = ['s_waitcnt vmcnt(0)'] + self.publish_items([], sHF, 1024, self.touch(vTC, sH + 1, 0, 24) if PT else ())
        if L0:
            idle += [f's_lshl_b32 s{sT0}, s{sCB}, 2', f's_add_u32 s{sT0}, s{sT0}, s{sW}', f's_mul_i32 s{sT1}, s{sT0}, 28672']
            idle += self.prefetch(vTC, sT1, WOT, 28672) if IDLE5 else []
            idle += [f's_mul_i32 s{sT1}, s{sT0}, 100352'] + self.prefetch(vTC, sT1, W1T, IDLE5) + [f's_branch {ljoin}']
        else:
            idle += ['s_branch L_fin']
        self.tail.append((lskip, idle))
        p('s_barrier')
        wqk = []
        mfs, mem = [], {}
        w2b = []
        stl = self.stats_loads(sST5, CS)
        for i in range(28):
            xs = (0, 1, 2, 3) if i < 28 - TAIL else (1, 2, 3)
            for n, x in enumerate(xs):
                k = len(mfs)
                mfs.append(m5(i, x))
                mem[k] = []
                if i == H2POS and n == 3:
                    mem[k] += self.publish_items(['h2'], sHF, 1024, self.touch(vTC, sH + 1, 0, 24) if PT else ())
                if i == PK2 and n == 3:
                    mem[k] += self.peek_issue(vFLG, f's{sFH}', 8, 1024)
                if i == 16 - PD5 and n == 0:
                    mem[k] += self.stamp_items('pk0') + self.peek_check(vFLG, f's{sFH}', 8, 1024) + self.stamp_items('pk1')
                if i + PD5 < 28 and n < 2:
                    mem[k].append(ld(i + PD5, n))
                elif w2b and n >= 2:
                    mem[k].append(w2b.pop(0))
                elif i + PD5 >= 28 and stl:
                    mem[k].append(stl.pop(0))
                elif i + PD5 >= 28 and wqk:
                    while wqk:
                        x2 = wqk.pop(0)
                        mem[k].append(x2)
                        if is_mem(x2):
                            break
        assert not w2b and not stl and not wqk
        p.ext(sched(mfs, {}, mem, [], 6))
        self.stamp('p5mm')
        mem = {}
        for i, x in enumerate(self.reduce_writes(AC5)):
            mem.setdefault(2 + i, []).append(x)
        p.ext(sched([m5(i, 0) for i in range(28 - TAIL, 28)], {}, mem, self.stats_reduce(CS), 5, start=0))
        self.stamp('p5rw')
        self.reduce_finish(AC5, 32)
        self.stamp('p5rd')
        P = 96
        for i in range(8):
            p(f'v_pk_fma_f32 {vr(AC5+2*i,2)}, {vr(AC5+2*i,2)}, {vr(vMEAN,2)}, {vr(vRES+2*i,2)} op_sel:[0,1,0] op_sel_hi:[1,1,1]')
            p(f'v_cvt_pk_bf16_f32 v{P+i}, v{AC5+2*i}, v{AC5+2*i+1}')
        if L0:
            self.x_store(P, vL16, (0, 1024))
            self.publish(['xst'], sXF)
            self.stamp('p5pub')
            p.ext(self.res_unpack(P))
            p.label(ljoin)
            p(f's_add_u32 s{sLB}, s{sLB}, {LSTRIDE}')
            p('s_barrier')
            return
        p(f'v_and_b32 v{vT+4}, 31, v{vL}')
        p(f'v_mul_u32_u24 v{vT+4}, 896, v{vT+4}')
        p(f'v_lshrrev_b32 v{vT+5}, 5, v{vL}')
        p(f'v_lshl_add_u32 v{vT+4}, v{vT+5}, 4, v{vT+4}')
        for hf in range(2):
            p(f'v_permlane32_swap_b32 v{P+4*hf}, v{P+4*hf+2}')
            p(f'v_permlane32_swap_b32 v{P+4*hf+1}, v{P+4*hf+3}')
            p(f'buffer_store_dwordx4 {vr(P+4*hf)}, v{vT+4}, {srd(S_OUT)}, s{sQOFF} offen offset:{32*hf}')
        p('s_cmp_lg_u32 s2, %d' % (27 * 8 + (5 if PERM else 7)))
        p('s_cbranch_scc1 L_fin')
        p(f's_mov_b32 s{sT0}, {WS_EPOCH}')
        p.ext(self.flag_sc1(sT0))

    def build(self):
        p = self.p
        self.L = 0
        self.prologue()
        for self.L in range(2):
            for ph in ('p1', 'attn', 'p3', 'p45'):
                getattr(self, ph)()
        p.label('L_fin')
        self.stamp('end')
        self.stamp_dump()
        if os.environ.get('CALIB'):
            p.label('L_calib')
            p('s_memrealtime s[96:97]')
            p('s_waitcnt lgkmcnt(0)')
            p('s_sub_u32 s96, s96, s100')
            if os.environ.get('PROBE'):
                p('s_sub_u32 s97, s98, s100')
                p(f's_cmp_ge_u32 s{sM}, 28')
                p('s_cselect_b32 s97, 0, s97')
                p('s_sub_u32 s96, s96, s97')
                p('s_max_i32 s96, s96, 0')
            p(f's_cmp_lt_u32 s96, {int(os.environ["CALIB"])}')
            p('s_cbranch_scc1 L_calib')
        p.label('L_end')
        p('s_endpgm')
        for lab, code in self.tail:
            p.label(lab, reset='all')
            p.ext(code)
        p.label('L_codeend')
        self.emit_walker()
        n2 = int(os.environ.get('WALK2', 10))
        if n2:
            p.items[self.walker2_at:self.walker2_at] = self.emit_walker2(n2)
        p.insert_waits()
        probs = p.fix_hazards()
        for x in probs:
            print('branch hazard padded', x, file=sys.stderr)
        mx = p.maxregs()
        head = open(os.path.join(os.path.dirname(__file__), '..', 'cdna_kernels', NAME + '.s.ref')).read().split('\n')
        hdr = [l for l in head if l.startswith(';') and '@launch' not in l]
        out = '\n'.join(hdr) + f'\n; @launch grid=(256,1,1) block=(256,1,1) lds={LDS_BYTES}\n'
        out += '.amdgcn_target "amdgcn-amd-amdhsa--gfx950"\n.text\n'
        out += f'.globl {NAME}_kernel\n.p2align 8\n.type {NAME}_kernel,@function\n{NAME}_kernel:\n'
        out += p.text()
        out += '.fill 64, 4, 0xbf800000\n'
        out += f'''.section .rodata,"a"
.p2align 6
.amdhsa_kernel {NAME}_kernel
  .amdhsa_next_free_vgpr 512
  .amdhsa_next_free_sgpr 102
  .amdhsa_accum_offset 256
  .amdhsa_group_segment_fixed_size 0
  .amdhsa_kernarg_size 72
  .amdhsa_user_sgpr_count 2
  .amdhsa_user_sgpr_kernarg_segment_ptr 1
  .amdhsa_system_sgpr_workgroup_id_x 1
  .amdhsa_float_denorm_mode_32 3
.end_amdhsa_kernel
'''
        print('regs', mx, 'instrs', sum(1 for x in p.items if isinstance(x, Ins)), file=sys.stderr)
        return out


if __name__ == '__main__':
    stop = int(sys.argv[2]) if len(sys.argv) > 2 else None
    k = K(stop if stop and stop > 0 else None, dbg=sys.argv[3].split(',') if len(sys.argv) > 3 else None)
    open(sys.argv[1], 'w').write(k.build())
    if k.dbg:
        open(os.path.join(os.path.dirname(sys.argv[1]), 'stamps.txt'), 'w').write(' '.join(k.stamps))
```
